```python
import torch

def _softmax(x, axis=-1):
    return torch.softmax(x, dim=axis)
def _gelu(x):
    return torch.nn.functional.gelu(x, approximate="tanh")
def _silu(x):
    return torch.nn.functional.silu(x)
def _sigmoid(x):
    return torch.sigmoid(x)
def _layernorm(x, axis=-1, eps=1e-5):
    m = x.mean(dim=axis, keepdim=True)
    v = x.var(dim=axis, keepdim=True, unbiased=False)
    return (x - m) / torch.sqrt(v + eps)
def _scatter_add(tgt, idx, src, axis=0):
    return tgt.clone().index_add_(axis, idx, src)
def _segment_sum(src, seg, n):
    out = torch.zeros((n,) + src.shape[1:], dtype=src.dtype)
    return out.index_add_(0, seg, src)
def _pad(x, pw):
    flat = tuple(v for pair in reversed(pw) for v in pair)
    return torch.nn.functional.pad(x, flat)

kernel_name = 'sequential_preLN__sliding_block__mixer_channel_mlp__prompt'

def setup_inputs():

    _w = (lambda a: (lambda t: t.to(torch.bfloat16) if t.is_floating_point() else t)(torch.as_tensor(a)))
    def _A_setup():
        B, S, D = 1, 2048, 1024
        return {
            "x": _w((lambda *s: torch.randn(*s, dtype=torch.bfloat16) * 0.05)(B, S, D)),
            "wqkv": _w((lambda *s: torch.randn(*s, dtype=torch.bfloat16) * 0.05)(D, 3 * D)),
            "wo": _w((lambda *s: torch.randn(*s, dtype=torch.bfloat16) * 0.05)(D, D)),
        }
    _A_in = _A_setup()

    def _B_setup():
        B, S, D, F = 1, 2048, 1024, 3584
        return {
            "x": _w((lambda *s: torch.randn(*s, dtype=torch.bfloat16) * 0.05)(B, S, D)),
            "w1": _w((lambda *s: torch.randn(*s, dtype=torch.bfloat16) * 3.2)(D, F) * (D ** -0.5)),
            "b1": _w((lambda *s: torch.randn(*s, dtype=torch.bfloat16) * 1.6)(F)),
            "w2": _w((lambda *s: torch.randn(*s, dtype=torch.bfloat16) * 0.4)(F, D) * (F ** -0.5)),
            "b2": _w((lambda *s: torch.randn(*s, dtype=torch.bfloat16) * 0.8)(D)),
        }
    _B_in = _B_setup()

    return {
        "A_x": _A_in["x"],
        "A_wqkv": _A_in["wqkv"],
        "A_wo": _A_in["wo"],
        "B_x": _B_in["x"],
        "B_w1": _B_in["w1"],
        "B_b1": _B_in["b1"],
        "B_w2": _B_in["w2"],
        "B_b2": _B_in["b2"],
    }

def reference(A_x, A_wqkv, A_wo, B_x, B_w1, B_b1, B_w2, B_b2):
    def _A_ref(x, wqkv, wo):
        B, S, D = x.shape
        H = 32; Dh = D // H; W = 256
        qkv = (lambda x, *d: x.permute(*d))((x @ wqkv).reshape(B, S, 3, H, Dh), 2, 0, 3, 1, 4)
        q, k, v = qkv[0], qkv[1], qkv[2]
        scores = torch.einsum("bhqd,bhkd->bhqk", q, k) * (Dh ** -0.5)
        idx = torch.arange(S)
        mask = (idx[:, None] - idx[None, :] >= 0) & (idx[:, None] - idx[None, :] < W)
        scores = torch.where(mask[None, None], scores, -1e9)
        p = _softmax(scores, axis=-1)
        o = torch.einsum("bhqk,bhkd->bhqd", p, v)
        return (lambda x, *d: x.permute(*d))(o, 0, 2, 1, 3).reshape(B, S, D) @ wo

    def _B_ref(x, w1, b1, w2, b2):
        y = _layernorm(x, axis=-1)
        h = _gelu(torch.einsum("bsd,df->bsf", y, w1) + b1)
        return torch.einsum("bsf,fd->bsd", h, w2) + b2

    x = A_x
    h = x + _A_ref(_layernorm(x, axis=-1), A_wqkv, A_wo)
    h2 = h + _B_ref(_layernorm(h, axis=-1), B_w1, B_b1, B_w2, B_b2)
    return h2
```

```python
import sys, math

OUT = "sequential_preLN__sliding_block__mixer_channel_mlp__prompt.s"

S = 2048; D = 1024; F = 3584; H = 32; DH = 32; WIN = 256
ARG = dict(x=0, wqkv=8, wo=16, bx=24, w1=32, b1=40, w2=48, b2=56, out=64, dbg=72, ws=80)
MB = 1 << 20
WS_Y1 = 0
WS_QKV = 4 * MB
WS_O = 16 * MB
WS_H = 20 * MB
WS_Y2 = 24 * MB
WS_H1 = 28 * MB
WS_SIZE = 256 * MB


class Asm:
    def __init__(self):
        self.lines = []
        self.nlab = 0

    def __call__(self, s):
        self.lines.append("    " + s)

    def label(self, l):
        self.lines.append(l + ":")

    def newlabel(self, base="L"):
        self.nlab += 1
        return f"{base}_{self.nlab}"

    def c(self, s):
        self.lines.append("    ; " + s)


def v(i, n=1):
    return f"v{i}" if n == 1 else f"v[{i}:{i+n-1}]"


def s(i, n=1):
    return f"s{i}" if n == 1 else f"s[{i}:{i+n-1}]"


def srd(a, d, base, off, nbytes):
    if off:
        a(f"s_add_u32 s{d}, s{base}, {off}")
        a(f"s_addc_u32 s{d+1}, s{base+1}, 0")
    else:
        a(f"s_mov_b32 s{d}, s{base}")
        a(f"s_mov_b32 s{d+1}, s{base+1}")
    a(f"s_and_b32 s{d+1}, s{d+1}, 0xffff")
    a(f"s_mov_b32 s{d+2}, {nbytes}")
    a(f"s_mov_b32 s{d+3}, 0x00020000")


def kernel_header(a, name):
    a.lines.append(".p2align 8")
    a.lines.append(f".globl {name}")
    a.lines.append(f".type {name},@function")
    a.label(name)


def kernel_desc(name, nvgpr, nsgpr=102, accum=None):
    nv = ((nvgpr + 7) // 8) * 8
    acc = accum if accum is not None else ((nvgpr + 3) // 4) * 4
    return f""".amdhsa_kernel {name}
  .amdhsa_next_free_vgpr {nv if accum is None else nvgpr}
  .amdhsa_next_free_sgpr {nsgpr}
  .amdhsa_accum_offset {min(acc,256)}
  .amdhsa_group_segment_fixed_size 0
  .amdhsa_kernarg_size 88
  .amdhsa_user_sgpr_count 2
  .amdhsa_user_sgpr_kernarg_segment_ptr 1
  .amdhsa_system_sgpr_workgroup_id_x 1
.end_amdhsa_kernel
"""


def gen_ln(a, name, src_arg, src_off, dst_off, double):
    nwg = S // 4
    kernel_header(a, name)
    end = a.newlabel("L_end")
    a(f"s_cmp_ge_u32 s2, {nwg}")
    a(f"s_cbranch_scc1 {end}")
    a(f"s_load_dwordx2 s[4:5], s[0:1], {ARG[src_arg]}")
    a(f"s_load_dwordx2 s[6:7], s[0:1], {ARG['ws']}")
    a("v_lshrrev_b32 v1, 6, v0")
    a("v_and_b32 v2, 63, v0")
    a("s_lshl_b32 s3, s2, 2")
    a("v_add_u32 v1, s3, v1")
    a("v_lshlrev_b32 v3, 11, v1")
    a("v_lshl_add_u32 v3, v2, 5, v3")
    for i, m in enumerate([1, 2, 4, 8, 16, 32]):
        a(f"v_xor_b32 v{12+i}, {m}, v2")
        a(f"v_lshlrev_b32 v{12+i}, 2, v{12+i}")
    a("s_waitcnt lgkmcnt(0)")
    srd(a, 8, 4, src_off, S * D * 2)
    srd(a, 12, 6, dst_off, S * D * 2)
    a("buffer_load_dwordx4 v[4:7], v3, s[8:11], 0 offen")
    a("buffer_load_dwordx4 v[8:11], v3, s[8:11], 0 offen offset:16")
    a("s_waitcnt vmcnt(0)")

    def unpack():
        for i in range(8):
            a(f"v_lshlrev_b32 v{20+2*i}, 16, v{4+i}")
            a(f"v_and_b32 v{21+2*i}, 0xffff0000, v{4+i}")

    def bfly():
        for i in range(6):
            a(f"ds_bpermute_b32 v41, v{12+i}, v40")
            a("s_waitcnt lgkmcnt(0)")
            a("v_add_f32 v40, v40, v41")

    def norm():
        a("v_add_f32 v40, v20, v21")
        for i in range(2, 16):
            a(f"v_add_f32 v40, v40, v{20+i}")
        bfly()
        a("v_mul_f32 v40, 0x3a800000, v40")
        for i in range(16):
            a(f"v_sub_f32 v{20+i}, v{20+i}, v40")
        a("v_mul_f32 v40, v20, v20")
        for i in range(1, 16):
            a(f"v_fmac_f32 v40, v{20+i}, v{20+i}")
        bfly()
        a("v_mov_b32 v42, 0x3727c5ac")
        a("v_fma_f32 v40, v40, v43, v42")
        a("v_rsq_f32 v40, v40")
        a("s_nop 0")
        for i in range(16):
            a(f"v_mul_f32 v{20+i}, v{20+i}, v40")
        for i in range(8):
            a(f"v_cvt_pk_bf16_f32 v{4+i}, v{20+2*i}, v{21+2*i}")

    a("v_mov_b32 v43, 0x3a800000")
    unpack()
    norm()
    if double:
        unpack()
        norm()
    a("buffer_store_dwordx4 v[4:7], v3, s[12:15], 0 offen")
    a("buffer_store_dwordx4 v[8:11], v3, s[12:15], 0 offen offset:16")
    a.label(end)
    a("s_endpgm")
    return dict(name=name, grid=nwg, block=256, lds=0, desc=kernel_desc(name, 48))


def gen_gemm(a, name, N, K, BN, a_off, w_arg, epi, out_arg, out_off, res_arg=None, res_off=0,
             bias_arg=None, BM=128, NSTAGE=3):
    M = S
    BK = 64
    NT_M = M // BM
    NT_N = N // BN
    ntiles = NT_M * NT_N
    MT = BM // 2 // 16
    NTW = BN // 2 // 16
    RB = {64: 128, 128: 256, 192: 128, 96: 64, 224: 64, 112: 32}[BN]
    ABYTES = BM * BK * 2
    BBYTES = BK * BN * 2
    STAGE = ABYTES + BBYTES
    PA = ABYTES // 1024 // 4
    PB = BBYTES // 1024 // 4
    assert PA * 4096 == ABYTES and PB * 4096 == BBYTES
    P = PA + PB
    NS = K // BK
    lds = STAGE * NSTAGE

    vA = list(range(2, 2 + PA))
    vB = list(range(2 + PA, 2 + PA + PB))
    nxt = 2 + PA + PB
    vXb = [nxt, nxt + 1]; nxt += 2
    vWb = list(range(nxt, nxt + NTW)); nxt += NTW
    vXc = [nxt, nxt + 1]; nxt += 2
    vWc = list(range(nxt, nxt + NTW)); nxt += NTW
    vT = list(range(nxt, nxt + 8)); nxt += 8
    nxt = (nxt + 3) // 4 * 4
    FX = [nxt, nxt + 4 * MT]; nxt += 8 * MT
    FW = [nxt, nxt + 4 * NTW]; nxt += 8 * NTW
    ACC = nxt; nxt += 4 * MT * NTW
    nvgpr = nxt

    def acc(nt, mt):
        return ACC + 4 * (nt * MT + mt)

    kernel_header(a, name)
    end = a.newlabel("L_end")
    a(f"s_cmp_ge_u32 s2, {ntiles}")
    a(f"s_cbranch_scc1 {end}")
    a(f"s_load_dwordx2 s[24:25], s[0:1], {ARG['ws']}")
    a(f"s_load_dwordx2 s[26:27], s[0:1], {ARG[w_arg]}")
    a(f"s_load_dwordx2 s[34:35], s[0:1], {ARG[out_arg]}")
    if res_arg:
        a(f"s_load_dwordx2 s[36:37], s[0:1], {ARG[res_arg]}")
    if bias_arg:
        a(f"s_load_dwordx2 s[38:39], s[0:1], {ARG[bias_arg]}")
    magic = (1 << 32) // NT_N + 1
    a(f"s_mov_b32 s3, {magic}")
    a("s_mul_hi_u32 s28, s2, s3")
    a(f"s_mul_i32 s3, s28, {NT_N}")
    a("s_sub_u32 s29, s2, s3")
    a("v_and_b32 v1, 63, v0")
    a(f"v_lshrrev_b32 {v(vT[0])}, 6, v0")
    a("s_nop 0")
    a(f"v_readfirstlane_b32 s30, {v(vT[0])}")
    a("s_nop 3")
    a("s_lshr_b32 s44, s30, 1")
    a("s_and_b32 s45, s30, 1")
    t0, t1, t2, t3 = vT[0], vT[1], vT[2], vT[3]
    a(f"s_mul_i32 s3, s30, {PA*8}")
    a(f"v_lshrrev_b32 {v(t0)}, 3, v1")
    a(f"v_add_u32 {v(t0)}, s3, {v(t0)}")
    a(f"s_mul_i32 s3, s28, {BM}")
    for i in range(PA):
        a(f"v_add_u32 {v(t1)}, {8*i}, {v(t0)}")
        a(f"v_lshrrev_b32 {v(t2)}, 1, {v(t1)}")
        a(f"v_and_b32 {v(t2)}, 7, {v(t2)}")
        a(f"v_and_b32 {v(t3)}, 7, v1")
        a(f"v_xor_b32 {v(t2)}, {v(t2)}, {v(t3)}")
        a(f"v_add_u32 {v(t1)}, s3, {v(t1)}")
        a(f"v_mul_u32_u24 {v(t1)}, {K*2}, {v(t1)}")
        a(f"v_lshl_add_u32 {v(vA[i])}, {v(t2)}, 4, {v(t1)}")
    CPR = RB // 16
    lg_cpr = int(math.log2(CPR))
    RPP = 1024 // RB
    PPB = RB // 16
    lg_ppb = int(math.log2(PPB))
    a(f"s_mul_i32 s3, s29, {BN*2}")
    for i in range(PB):
        a(f"s_mul_i32 s46, s30, {PB}")
        a(f"s_add_u32 s46, s46, {i}")
        a(f"s_lshr_b32 s47, s46, {lg_ppb}")
        a(f"s_and_b32 s46, s46, {PPB-1}")
        a(f"s_mul_i32 s46, s46, {RPP}")
        a(f"s_mul_i32 s47, s47, {RB}")
        a("s_add_u32 s47, s47, s3")
        a(f"v_lshrrev_b32 {v(t0)}, {lg_cpr}, v1")
        a(f"v_add_u32 {v(t0)}, s46, {v(t0)}")
        a(f"v_and_b32 {v(t1)}, {CPR-1}, v1")
        if RB == 256:
            a(f"v_and_b32 {v(t2)}, 3, {v(t0)}")
            a(f"v_bfe_u32 {v(t3)}, {v(t0)}, 3, 1")
            a(f"v_lshl_add_u32 {v(t2)}, {v(t3)}, 2, {v(t2)}")
        elif RB == 128:
            a(f"v_bfe_u32 {v(t2)}, {v(t0)}, 1, 1")
            a(f"v_bfe_u32 {v(t3)}, {v(t0)}, 3, 1")
            a(f"v_lshl_add_u32 {v(t2)}, {v(t3)}, 1, {v(t2)}")
        elif RB == 64:
            a(f"v_bfe_u32 {v(t2)}, {v(t0)}, 3, 1")
        else:
            a(f"v_mov_b32 {v(t2)}, 0")
        a(f"v_lshlrev_b32 {v(t2)}, 1, {v(t2)}")
        a(f"v_xor_b32 {v(t1)}, {v(t1)}, {v(t2)}")
        a(f"v_mul_u32_u24 {v(t0)}, {N*2}, {v(t0)}")
        a(f"v_lshl_add_u32 {v(t0)}, {v(t1)}, 4, {v(t0)}")
        a(f"v_add_u32 {v(vB[i])}, s47, {v(t0)}")
    a(f"v_and_b32 {v(t0)}, 15, v1")
    a("s_lshl_b32 s3, s44, 6")
    a(f"v_add_u32 {v(t0)}, s3, {v(t0)}")
    a(f"v_lshlrev_b32 {v(t0)}, 7, {v(t0)}")
    a(f"v_lshrrev_b32 {v(t1)}, 4, v1")
    a(f"v_bfe_u32 {v(t2)}, v1, 1, 3")
    a(f"v_xor_b32 {v(t3)}, {v(t1)}, {v(t2)}")
    a(f"v_lshl_add_u32 {v(vXb[0])}, {v(t3)}, 4, {v(t0)}")
    a(f"v_xor_b32 {v(t3)}, 4, {v(t3)}")
    a(f"v_lshl_add_u32 {v(vXb[1])}, {v(t3)}, 4, {v(t0)}")
    PPR = RB // 32
    a(f"v_bfe_u32 {v(t0)}, v1, 2, 2")
    a(f"v_lshl_add_u32 {v(t2)}, {v(t1)}, 3, {v(t0)}")
    if RB == 256:
        a(f"v_and_b32 {v(t3)}, 1, {v(t1)}")
        a(f"v_lshl_add_u32 {v(t3)}, {v(t3)}, 2, {v(t0)}")
    elif RB == 128:
        a(f"v_and_b32 {v(t3)}, 1, {v(t1)}")
        a(f"v_lshrrev_b32 {v(t0)}, 1, {v(t0)}")
        a(f"v_lshl_add_u32 {v(t3)}, {v(t3)}, 1, {v(t0)}")
    elif RB == 64:
        a(f"v_and_b32 {v(t3)}, 1, {v(t1)}")
    else:
        a(f"v_mov_b32 {v(t3)}, 0")
    a(f"v_mul_u32_u24 {v(t2)}, {RB}, {v(t2)}")
    a(f"v_and_b32 {v(t0)}, 3, v1")
    a(f"v_lshl_add_u32 {v(t2)}, {v(t0)}, 3, {v(t2)}")
    a(f"v_add_u32 {v(t2)}, {ABYTES}, {v(t2)}")
    a(f"s_mul_i32 s3, s45, {NTW}")
    lg_ppr = int(math.log2(PPR))
    for nt in range(NTW):
        a(f"s_add_u32 s46, s3, {nt}")
        if PPR > 1:
            a(f"s_lshr_b32 s47, s46, {lg_ppr}")
            a(f"s_and_b32 s46, s46, {PPR-1}")
        else:
            a("s_mov_b32 s47, s46")
            a("s_mov_b32 s46, 0")
        a(f"s_mul_i32 s47, s47, {64*RB}")
        a(f"v_xor_b32 {v(t0)}, s46, {v(t3)}")
        a(f"v_lshl_add_u32 {v(t0)}, {v(t0)}, 5, {v(t2)}")
        a(f"v_add_u32 {v(vWb[nt])}, s47, {v(t0)}")
    a(f"s_mul_i32 s31, s30, {PA*1024}")
    a(f"s_mul_i32 s32, s30, {PB*1024}")
    a(f"s_add_u32 s32, s32, {ABYTES}")
    a("s_waitcnt lgkmcnt(0)")
    srd(a, 4, 24, a_off, M * K * 2)
    srd(a, 8, 26, 0, K * N * 2)
    osz = M * N * 2
    srd(a, 12, 34, out_off, osz)
    if res_arg:
        srd(a, 16, 36, res_off, M * N * 2)
    if bias_arg:
        srd(a, 20, 38, 0, N * 2)
    for i in range(4 * MT * NTW):
        a(f"v_mov_b32 v{ACC+i}, 0")
    a("s_mov_b32 s40, 0")
    a("s_mov_b32 s41, 0")
    a("s_mov_b32 s42, 0")
    a("s_mov_b32 s43, 0")

    def dma():
        a("s_add_u32 s33, s43, s31")
        for i in range(PA):
            a(f"s_add_u32 m0, s33, {i*1024}")
            a("s_nop 0")
            a(f"buffer_load_dwordx4 {v(vA[i])}, s[4:7], s40 offen lds")
        a("s_add_u32 s33, s43, s32")
        for i in range(PB):
            a(f"s_add_u32 m0, s33, {i*1024}")
            a("s_nop 0")
            a(f"buffer_load_dwordx4 {v(vB[i])}, s[8:11], s41 offen lds")
        a(f"s_add_u32 s40, s40, {BK*2}")
        a(f"s_add_u32 s41, s41, {BK*N*2}")
        a(f"s_add_u32 s43, s43, {STAGE}")
        a(f"s_cmp_ge_u32 s43, {STAGE*NSTAGE}")
        a("s_cselect_b32 s43, 0, s43")

    def set_cur():
        for kk in range(2):
            a(f"v_add_u32 {v(vXc[kk])}, s42, {v(vXb[kk])}")
        for nt in range(NTW):
            a(f"v_add_u32 {v(vWc[nt])}, s42, {v(vWb[nt])}")
        a(f"s_add_u32 s42, s42, {STAGE}")
        a(f"s_cmp_ge_u32 s42, {STAGE*NSTAGE}")
        a("s_cselect_b32 s42, 0, s42")

    def reads(kk, f):
        for mt in range(MT):
            a(f"ds_read_b128 {v(FX[f]+4*mt,4)}, {v(vXc[kk])} offset:{mt*2048}")
        for nt in range(NTW):
            for rd in range(2):
                a(f"ds_read_b64_tr_b16 {v(FW[f]+4*nt+2*rd,2)}, {v(vWc[nt])} offset:{kk*32*RB+rd*4*RB}")

    def mfmas(f):
        for nt in range(NTW):
            for mt in range(MT):
                a(f"v_mfma_f32_16x16x32_bf16 {v(acc(nt,mt),4)}, {v(FW[f]+4*nt,4)}, {v(FX[f]+4*mt,4)}, {v(acc(nt,mt),4)}")

    dma(); dma()
    a(f"s_waitcnt vmcnt({P})")
    a("s_barrier")
    dma()
    set_cur()
    reads(0, 0)
    a("s_waitcnt lgkmcnt(0)")
    reads(1, 1)
    mfmas(0)
    a("s_waitcnt lgkmcnt(0)")

    def body(do_dma, vm):
        a(f"s_waitcnt vmcnt({vm})")
        a("s_barrier")
        if do_dma:
            dma()
        set_cur()
        reads(0, 0)
        mfmas(1)
        a("s_waitcnt lgkmcnt(0)")
        reads(1, 1)
        mfmas(0)
        a("s_waitcnt lgkmcnt(0)")

    nloop = NS - 3
    a(f"s_mov_b32 s48, {nloop}")
    loop = a.newlabel("L_loop")
    a.label(loop)
    body(True, P)
    a("s_sub_u32 s48, s48, 1")
    a("s_cmp_lg_u32 s48, 0")
    a(f"s_cbranch_scc1 {loop}")
    body(False, P)
    body(False, 0)
    mfmas(1)

    vo = vT[0]
    vbq = vT[1]
    a(f"v_and_b32 {v(t2)}, 15, v1")
    a(f"s_mul_i32 s3, s28, {BM}")
    a("s_lshl_b32 s46, s44, 6")
    a("s_add_u32 s3, s3, s46")
    a(f"v_add_u32 {v(t2)}, s3, {v(t2)}")
    a(f"v_mul_u32_u24 {v(t2)}, {N*2}, {v(t2)}")
    a(f"v_lshrrev_b32 {v(t3)}, 4, v1")
    a(f"v_lshlrev_b32 {v(t3)}, 3, {v(t3)}")
    a(f"s_mul_i32 s3, s29, {BN*2}")
    a(f"s_mul_i32 s46, s45, {BN}")
    a("s_add_u32 s3, s3, s46")
    a(f"v_add_u32 {v(vbq)}, s3, {v(t3)}")
    a(f"v_add_u32 {v(vo)}, {v(t2)}, {v(vbq)}")
    for mt in range(MT):
        a(f"s_mov_b32 s{50+mt}, {mt*16*N*2}")
    RES = FX[0]
    BIAS = RES + 2 * MT * NTW
    assert BIAS + 2 * NTW <= ACC
    if res_arg:
        for nt in range(NTW):
            for mt in range(MT):
                a(f"buffer_load_dwordx2 {v(RES+2*(nt*MT+mt),2)}, {v(vo)}, s[16:19], s{50+mt} offen offset:{nt*32}")
    if bias_arg:
        for nt in range(NTW):
            a(f"buffer_load_dwordx2 {v(BIAS+2*nt,2)}, {v(vbq)}, s[20:23], 0 offen offset:{nt*32}")
    a("s_nop 7")
    a("s_nop 7")
    a("s_waitcnt vmcnt(0)")
    x0, x1, x2, x3 = vT[4], vT[5], vT[6], vT[7]
    for nt in range(NTW):
        if bias_arg:
            b = BIAS + 2 * nt
            a(f"v_lshlrev_b32 {v(x0)}, 16, {v(b)}")
            a(f"v_and_b32 {v(x1)}, 0xffff0000, {v(b)}")
            a(f"v_lshlrev_b32 {v(x2)}, 16, {v(b+1)}")
            a(f"v_and_b32 {v(x3)}, 0xffff0000, {v(b+1)}")
        for mt in range(MT):
            c0 = acc(nt, mt)
            if bias_arg:
                for r, xr in enumerate((x0, x1, x2, x3)):
                    a(f"v_add_f32 {v(c0+r)}, {v(c0+r)}, {v(xr)}")
            if epi == 'gelu':
                for r in range(4):
                    cr = v(c0 + r)
                    a(f"v_mul_f32 {v(t2)}, {cr}, {cr}")
                    a(f"v_mov_b32 {v(t3)}, 0x3f4c422a")
                    a(f"v_fmac_f32 {v(t3)}, 0x3d122279, {v(t2)}")
                    a(f"v_mul_f32 {v(t3)}, {cr}, {v(t3)}")
                    a(f"v_mul_f32 {v(t3)}, 0x4038aa3b, {v(t3)}")
                    a(f"v_exp_f32 {v(t3)}, {v(t3)}")
                    a("s_nop 0")
                    a(f"v_add_f32 {v(t3)}, 1.0, {v(t3)}")
                    a(f"v_rcp_f32 {v(t3)}, {v(t3)}")
                    a("s_nop 0")
                    a(f"v_fma_f32 {cr}, -{cr}, {v(t3)}, {cr}")
            if res_arg:
                rr = RES + 2 * (nt * MT + mt)
                a(f"v_lshlrev_b32 {v(t2)}, 16, {v(rr)}")
                a(f"v_add_f32 {v(c0)}, {v(c0)}, {v(t2)}")
                a(f"v_and_b32 {v(t2)}, 0xffff0000, {v(rr)}")
                a(f"v_add_f32 {v(c0+1)}, {v(c0+1)}, {v(t2)}")
                a(f"v_lshlrev_b32 {v(t2)}, 16, {v(rr+1)}")
                a(f"v_add_f32 {v(c0+2)}, {v(c0+2)}, {v(t2)}")
                a(f"v_and_b32 {v(t2)}, 0xffff0000, {v(rr+1)}")
                a(f"v_add_f32 {v(c0+3)}, {v(c0+3)}, {v(t2)}")
            a(f"v_cvt_pk_bf16_f32 {v(c0)}, {v(c0)}, {v(c0+1)}")
            a(f"v_cvt_pk_bf16_f32 {v(c0+1)}, {v(c0+2)}, {v(c0+3)}")
            a(f"buffer_store_dwordx2 {v(c0,2)}, {v(vo)}, s[12:15], s{50+mt} offen offset:{nt*32}")
    a.label(end)
    a("s_endpgm")
    return dict(name=name, grid=ntiles, block=256, lds=lds, desc=kernel_desc(name, nvgpr))


def gen_attn(a, name):
    NQB = S // 32
    ntask = H * NQB
    nwg = ntask // 4
    QKV_ROW = 3 * D * 2
    VLDS = 288 * 64
    lds = 4 * VLDS
    kernel_header(a, name)
    end = a.newlabel("L_end")
    a(f"s_cmp_ge_u32 s2, {nwg}")
    a(f"s_cbranch_scc1 {end}")
    a(f"s_load_dwordx2 s[24:25], s[0:1], {ARG['ws']}")
    a("v_and_b32 v1, 63, v0")
    a("v_lshrrev_b32 v2, 6, v0")
    a("s_nop 0")
    a("v_readfirstlane_b32 s30, v2")
    a("s_nop 3")
    a("s_lshl_b32 s3, s2, 2")
    a("s_add_u32 s3, s3, s30")
    a("s_and_b32 s28, s3, 31")
    a("s_lshr_b32 s29, s3, 5")
    a("s_lshl_b32 s31, s29, 5")
    a("s_sub_u32 s32, s31, 256")
    a("s_lshl_b32 s33, s28, 6")
    a(f"s_add_u32 s35, s33, {2*D*2}")
    a("s_waitcnt lgkmcnt(0)")
    srd(a, 4, 24, WS_QKV, S * 3 * D * 2)
    srd(a, 8, 24, WS_O, S * D * 2)
    a("v_and_b32 v2, 31, v1")
    a("v_lshrrev_b32 v3, 5, v1")
    a("v_add_u32 v4, s31, v2")
    a(f"v_mul_u32_u24 v4, {QKV_ROW}, v4")
    a("v_lshl_add_u32 v4, v3, 4, v4")
    a("v_add_u32 v4, s33, v4")
    a("buffer_load_dwordx4 v[8:11], v4, s[4:7], 0 offen")
    a("buffer_load_dwordx4 v[12:15], v4, s[4:7], 0 offen offset:32")
    a("v_lshrrev_b32 v5, 2, v1")
    a("v_and_b32 v6, 3, v1")
    a(f"s_mul_i32 s34, s30, {VLDS}")
    for p in range(18):
        a(f"v_add_u32 v7, {16*p}, v5")
        a("v_add_u32 v7, s32, v7")
        a("v_max_i32 v7, 0, v7")
        a(f"v_mul_u32_u24 v7, {QKV_ROW}, v7")
        a("v_lshl_add_u32 v7, v6, 4, v7")
        a("v_add_u32 v7, s35, v7")
        a(f"s_add_u32 m0, s34, {p*1024}")
        a("s_nop 0")
        a(f"buffer_load_dwordx4 v7, s[4:7], 0 offen lds")
    KF = 16
    for t in range(9):
        a(f"v_add_u32 v7, {32*t}, v2")
        a("v_add_u32 v7, s32, v7")
        a("v_max_i32 v7, 0, v7")
        a(f"v_mul_u32_u24 v7, {QKV_ROW}, v7")
        a("v_lshl_add_u32 v7, v3, 4, v7")
        a("v_add_u32 v7, s33, v7")
        a(f"buffer_load_dwordx4 {v(KF+8*t,4)}, v7, s[4:7], 0 offen offset:{D*2}")
        a(f"buffer_load_dwordx4 {v(KF+8*t+4,4)}, v7, s[4:7], 0 offen offset:{D*2+32}")
    SC = 96
    a("s_waitcnt vmcnt(0)")
    for t in range(9):
        for r in range(16):
            a(f"v_mov_b32 v{SC+16*t+r}, 0")
    a("s_nop 1")
    for t in range(9):
        a(f"v_mfma_f32_32x32x16_bf16 {v(SC+16*t,16)}, {v(KF+8*t,4)}, v[8:11], {v(SC+16*t,16)}")
        a(f"v_mfma_f32_32x32x16_bf16 {v(SC+16*t,16)}, {v(KF+8*t+4,4)}, v[12:15], {v(SC+16*t,16)}")
    a("s_nop 7")
    a("s_nop 7")
    a("v_lshlrev_b32 v5, 2, v3")
    a("v_sub_u32 v5, v2, v5")
    a("v_add_u32 v5, 256, v5")
    a("v_lshlrev_b32 v6, 2, v3")
    a("v_add_u32 v6, s32, v6")
    a("v_mov_b32 v7, 0xf149f2ca")
    a("v_mov_b32 v4, v7")
    for t in range(9):
        for r in range(16):
            c = 32 * t + (r & 3) + 8 * (r >> 2)
            reg = SC + 16 * t + r
            a(f"v_subrev_u32 v16, {c}, v5")
            a(f"v_add_u32 v17, {c}, v6")
            a("v_cmp_gt_u32 vcc, 256, v16")
            a("v_cmp_le_i32 s[36:37], 0, v17")
            a("s_nop 1")
            a("s_and_b64 vcc, vcc, s[36:37]")
            a("s_nop 1")
            a(f"v_cndmask_b32 v{reg}, v7, v{reg}, vcc")
            a(f"v_max_f32 v4, v4, v{reg}")
    a("v_xor_b32 v16, 32, v1")
    a("v_lshlrev_b32 v16, 2, v16")
    a("ds_bpermute_b32 v17, v16, v4")
    a("s_waitcnt lgkmcnt(0)")
    a("v_max_f32 v4, v4, v17")
    sc = (DH ** -0.5) * math.log2(math.e)
    import struct
    sc_bits = struct.unpack("<I", struct.pack("<f", sc))[0]
    a(f"s_mov_b32 s38, {sc_bits}")
    a("v_mul_f32 v4, s38, v4")
    a("v_mov_b32 v5, 0")
    for t in range(9):
        for r in range(16):
            reg = SC + 16 * t + r
            a(f"v_fma_f32 v{reg}, v{reg}, s38, -v4")
            a(f"v_exp_f32 v{reg}, v{reg}")
            a("s_nop 0")
            a(f"v_add_f32 v5, v5, v{reg}")
    a("ds_bpermute_b32 v17, v16, v5")
    a("s_waitcnt lgkmcnt(0)")
    a("v_add_f32 v5, v5, v17")
    a("v_rcp_f32 v5, v5")
    for t in range(9):
        for j in range(8):
            a(f"v_cvt_pk_bf16_f32 v{KF+8*t+j}, v{SC+16*t+2*j}, v{SC+16*t+2*j+1}")
    a("v_bfe_u32 v6, v1, 2, 2")
    a("v_lshl_add_u32 v6, v3, 2, v6")
    a("v_lshlrev_b32 v6, 6, v6")
    a("v_bfe_u32 v7, v1, 4, 1")
    a("v_lshl_add_u32 v6, v7, 5, v6")
    a("v_and_b32 v7, 3, v1")
    a("v_lshl_add_u32 v6, v7, 3, v6")
    a("v_add_u32 v6, s34, v6")
    OA = SC
    VF = SC + 16
    for r in range(16):
        a(f"v_mov_b32 v{OA+r}, 0")
    for t in range(9):
        for sidx in range(2):
            f = VF + 4 * (2 * t + sidx)
            base = (32 * t + 16 * sidx) * 64
            a(f"ds_read_b64_tr_b16 {v(f,2)}, v6 offset:{base}")
            a(f"ds_read_b64_tr_b16 {v(f+2,2)}, v6 offset:{base+8*64}")
    a("s_waitcnt lgkmcnt(0)")
    for t in range(9):
        for sidx in range(2):
            f = VF + 4 * (2 * t + sidx)
            a(f"v_mfma_f32_32x32x16_bf16 {v(OA,16)}, {v(f,4)}, {v(KF+8*t+4*sidx,4)}, {v(OA,16)}")
    a("s_nop 7")
    a("s_nop 7")
    a("v_add_u32 v7, s31, v2")
    a(f"v_lshlrev_b32 v7, 11, v7")
    a("v_lshl_add_u32 v7, v3, 3, v7")
    a("v_add_u32 v7, s33, v7")
    for g in range(4):
        for r in range(4):
            a(f"v_mul_f32 v{OA+4*g+r}, v{OA+4*g+r}, v5")
        a(f"v_cvt_pk_bf16_f32 v{OA+4*g}, v{OA+4*g}, v{OA+4*g+1}")
        a(f"v_cvt_pk_bf16_f32 v{OA+4*g+1}, v{OA+4*g+2}, v{OA+4*g+3}")
        a(f"buffer_store_dwordx2 {v(OA+4*g,2)}, v7, s[8:11], 0 offen offset:{16*g}")
    a.label(end)
    a("s_endpgm")
    return dict(name=name, grid=nwg, block=256, lds=lds, desc=kernel_desc(name, 240))


def main():
    a = Asm()
    ks = []
    ks.append(gen_ln(a, "ln1_kernel", "x", 0, WS_Y1, False))
    ks.append(gen_gemm(a, "qkv_kernel", 3 * D, D, 128, WS_Y1, "wqkv", "plain", "ws", WS_QKV))
    ks.append(gen_attn(a, "attn_kernel"))
    ks.append(gen_gemm(a, "oproj_kernel", D, D, 64, WS_O, "wo", "plain", "ws", WS_H, res_arg="x"))
    ks.append(gen_ln(a, "ln2_kernel", "ws", WS_H, WS_Y2, True))
    ks.append(gen_gemm(a, "ffn1_kernel", F, D, 128, WS_Y2, "w1", "gelu", "ws", WS_H1, bias_arg="b1"))
    ks.append(gen_gemm(a, "ffn2_kernel", D, F, 64, WS_H1, "w2", "plain", "out", 0, res_arg="ws", res_off=WS_H,
                       bias_arg="b2"))
    hdr = []
    for k in ks:
        hdr.append(f"; @launch kernel={k['name']} grid=({k['grid']},1,1) block=({k['block']},1,1) lds={k['lds']}")
    txt = "\n".join(hdr) + "\n"
    txt += '.amdgcn_target "amdgcn-amd-amdhsa--gfx950"\n.text\n'
    txt += "\n".join(a.lines) + "\n"
    txt += '.section .rodata,"a"\n'
    for k in ks:
        txt += ".p2align 6\n" + k["desc"]
    open(OUT, "w").write(txt)


if __name__ == "__main__":
    main()
```

```python
import sys, math, os
EXP=os.environ.get('EXP','')

OUT = os.environ.get("OUTF","sequential_preLN__sliding_block__mixer_channel_mlp__prompt.s")

S = 2048; D = 1024; F = 3584; H = 32; DH = 32; WIN = 256
ARG = dict(x=0, wqkv=8, wo=16, bx=24, w1=32, b1=40, w2=48, b2=56, out=64, dbg=72, ws=80)
MB = 1 << 20
WS_Y1 = 0
WS_QKV = 4 * MB
WS_O = 16 * MB
WS_H = 20 * MB
WS_Y2 = 24 * MB
WS_H1 = 28 * MB
WS_SIZE = 256 * MB


class Asm:
    def __init__(self):
        self.lines = []
        self.nlab = 0

    def __call__(self, s):
        self.lines.append("    " + s)

    def label(self, l):
        self.lines.append(l + ":")

    def newlabel(self, base="L"):
        self.nlab += 1
        return f"{base}_{self.nlab}"

    def c(self, s):
        self.lines.append("    ; " + s)


def v(i, n=1):
    return f"v{i}" if n == 1 else f"v[{i}:{i+n-1}]"


def s(i, n=1):
    return f"s{i}" if n == 1 else f"s[{i}:{i+n-1}]"


def srd(a, d, base, off, nbytes):
    if off:
        a(f"s_add_u32 s{d}, s{base}, {off}")
        a(f"s_addc_u32 s{d+1}, s{base+1}, 0")
    else:
        a(f"s_mov_b32 s{d}, s{base}")
        a(f"s_mov_b32 s{d+1}, s{base+1}")
    a(f"s_and_b32 s{d+1}, s{d+1}, 0xffff")
    a(f"s_mov_b32 s{d+2}, {nbytes}")
    a(f"s_mov_b32 s{d+3}, 0x00020000")


def hex_f32(x):
    import struct
    return hex(struct.unpack('<I', struct.pack('<f', x))[0])


def kernel_header(a, name):
    a.lines.append(".p2align 8")
    a.lines.append(f".globl {name}")
    a.lines.append(f".type {name},@function")
    a.label(name)


def kernel_desc(name, nvgpr, nsgpr=102, accum=None):
    nv = ((nvgpr + 7) // 8) * 8
    acc = accum if accum is not None else ((nvgpr + 3) // 4) * 4
    return f""".amdhsa_kernel {name}
  .amdhsa_next_free_vgpr {nv if accum is None else nvgpr}
  .amdhsa_next_free_sgpr {nsgpr}
  .amdhsa_accum_offset {min(acc,256)}
  .amdhsa_group_segment_fixed_size 0
  .amdhsa_kernarg_size 88
  .amdhsa_user_sgpr_count 2
  .amdhsa_user_sgpr_kernarg_segment_ptr 1
  .amdhsa_system_sgpr_workgroup_id_x 1
.end_amdhsa_kernel
"""


def gen_ln(a, name, src_arg, src_off, dst_off, double):
    nwg = S // 4
    kernel_header(a, name)
    end = a.newlabel("L_end")
    a(f"s_cmp_ge_u32 s2, {nwg}")
    a(f"s_cbranch_scc1 {end}")
    a(f"s_load_dwordx2 s[4:5], s[0:1], {ARG[src_arg]}")
    a(f"s_load_dwordx2 s[6:7], s[0:1], {ARG['ws']}")
    a("v_lshrrev_b32 v1, 6, v0")
    a("v_and_b32 v2, 63, v0")
    a("s_lshl_b32 s3, s2, 2")
    a("v_add_u32 v1, s3, v1")
    a("v_lshlrev_b32 v3, 11, v1")
    a("v_lshl_add_u32 v3, v2, 5, v3")
    for i, m in enumerate([1, 2, 4, 8, 16, 32]):
        a(f"v_xor_b32 v{12+i}, {m}, v2")
        a(f"v_lshlrev_b32 v{12+i}, 2, v{12+i}")
    a("s_waitcnt lgkmcnt(0)")
    srd(a, 8, 4, src_off, S * D * 2)
    srd(a, 12, 6, dst_off, S * D * 2)
    a("buffer_load_dwordx4 v[4:7], v3, s[8:11], 0 offen")
    a("buffer_load_dwordx4 v[8:11], v3, s[8:11], 0 offen offset:16")
    a("s_waitcnt vmcnt(0)")

    def unpack():
        for i in range(8):
            a(f"v_lshlrev_b32 v{20+2*i}, 16, v{4+i}")
            a(f"v_and_b32 v{21+2*i}, 0xffff0000, v{4+i}")

    def bfly():
        for i in range(6):
            a(f"ds_bpermute_b32 v41, v{12+i}, v40")
            a("s_waitcnt lgkmcnt(0)")
            a("v_add_f32 v40, v40, v41")

    def norm():
        a("v_add_f32 v40, v20, v21")
        for i in range(2, 16):
            a(f"v_add_f32 v40, v40, v{20+i}")
        bfly()
        a("v_mul_f32 v40, 0x3a800000, v40")
        for i in range(16):
            a(f"v_sub_f32 v{20+i}, v{20+i}, v40")
        a("v_mul_f32 v40, v20, v20")
        for i in range(1, 16):
            a(f"v_fmac_f32 v40, v{20+i}, v{20+i}")
        bfly()
        a("v_mov_b32 v42, 0x3727c5ac")
        a("v_fma_f32 v40, v40, v43, v42")
        a("v_rsq_f32 v40, v40")
        a("s_nop 0")
        for i in range(16):
            a(f"v_mul_f32 v{20+i}, v{20+i}, v40")
        for i in range(8):
            a(f"v_cvt_pk_bf16_f32 v{4+i}, v{20+2*i}, v{21+2*i}")

    a("v_mov_b32 v43, 0x3a800000")
    unpack()
    norm()
    if double:
        unpack()
        norm()
    a("buffer_store_dwordx4 v[4:7], v3, s[12:15], 0 offen")
    a("buffer_store_dwordx4 v[8:11], v3, s[12:15], 0 offen offset:16")
    a.label(end)
    a("s_endpgm")
    return dict(name=name, grid=nwg, block=256, lds=0, desc=kernel_desc(name, 48))


def gen_gemm(a, name, N, K, BN, a_off, w_arg, epi, out_arg, out_off, res_arg=None, res_off=0,
             bias_arg=None, BM=128, NSTAGE=3, RA=4, RBN=8, ln=None, a_arg='ws'):
    M = S
    BK = 64
    NT_M = M // BM
    NT_N = N // BN
    ntiles = NT_M * NT_N
    MT = BM // 2 // 16
    NTW = BN // 2 // 16
    RB = {64: 128, 128: 256, 192: 128, 96: 64, 224: 64, 112: 32}[BN]
    ABYTES = BM * BK * 2
    BBYTES = BK * BN * 2
    STAGE = ABYTES + BBYTES
    PA = ABYTES // 1024 // 4
    PB = BBYTES // 1024 // 4
    assert PA * 4096 == ABYTES and PB * 4096 == BBYTES
    P = PA + PB
    NS = K // BK
    lds = STAGE * NSTAGE
    CROW = BN * 4 + 16
    assert BM * CROW <= lds

    vA = list(range(2, 2 + PA))
    vB = list(range(2 + PA, 2 + PA + PB))
    nxt = 2 + PA + PB
    vXb = [nxt, nxt + 1]; nxt += 2
    vWb = list(range(nxt, nxt + NTW)); nxt += NTW
    vXc = [nxt, nxt + 1]; nxt += 2
    vWc = list(range(nxt, nxt + NTW)); nxt += NTW
    vT = list(range(nxt, nxt + 8)); nxt += 8
    nxt = (nxt + 3) // 4 * 4
    FX = [nxt, nxt + 4 * MT]; nxt += 8 * MT
    FW = [nxt, nxt + 4 * NTW]; nxt += 8 * NTW
    ACC = nxt; nxt += 4 * MT * NTW
    nvgpr = nxt
    assert nvgpr <= 256

    def acc(nt, mt):
        return ACC + 4 * (nt * MT + mt)

    def stamp(i):
        if 'stamp' in EXP:
            a(f"s_memtime s[{60+2*i}:{61+2*i}]")
            if i >= 6: a("s_waitcnt lgkmcnt(0)")

    def stamp_out():
        if 'stamp' not in EXP: return
        a("s_waitcnt lgkmcnt(0)")
        srd(a, 80, 24, 200 * MB, 1 << 20)
        a("s_lshl_b32 s3, s2, 3")
        a("s_add_u32 s3, s3, s49")
        a("s_lshl_b32 s3, s3, 6")
        a("v_mov_b32 v2, s3")
        for i in range(8):
            a(f"v_mov_b32 v4, s{60+2*i}")
            a(f"v_mov_b32 v5, s{61+2*i}")
            a(f"buffer_store_dwordx2 v[4:5], v2, s[80:83], 0 offen offset:{8*i}")
            a("s_nop 1")

    kernel_header(a, name)
    end = a.newlabel("L_end")
    stamp(0)
    lab_loader = a.newlabel("L_loader")
    lab_store = a.newlabel("L_store")
    a(f"s_cmp_ge_u32 s2, {ntiles}")
    a(f"s_cbranch_scc1 {end}")
    a(f"s_load_dwordx2 s[24:25], s[0:1], {ARG['ws']}")
    a(f"s_load_dwordx2 s[58:59], s[0:1], {ARG[a_arg]}")
    a(f"s_load_dwordx2 s[26:27], s[0:1], {ARG[w_arg]}")
    a(f"s_load_dwordx2 s[34:35], s[0:1], {ARG[out_arg]}")
    if res_arg:
        a(f"s_load_dwordx2 s[36:37], s[0:1], {ARG[res_arg]}")
    if bias_arg:
        a(f"s_load_dwordx2 s[38:39], s[0:1], {ARG[bias_arg]}")
    assert ntiles == 256 and RA * RBN == 32 and NT_M % RA == 0 and NT_N % RBN == 0
    XB = NT_N // RBN
    a("s_and_b32 s3, s2, 7")
    a("s_lshr_b32 s46, s2, 3")
    a(f"s_lshr_b32 s28, s3, {int(math.log2(XB))}")
    a(f"s_and_b32 s29, s3, {XB-1}")
    a(f"s_mul_i32 s28, s28, {RA}")
    a(f"s_mul_i32 s29, s29, {RBN}")
    a(f"s_lshr_b32 s3, s46, {int(math.log2(RBN))}")
    a("s_add_u32 s28, s28, s3")
    a(f"s_and_b32 s3, s46, {RBN-1}")
    a("s_add_u32 s29, s29, s3")
    a("v_and_b32 v1, 63, v0")
    a(f"v_lshrrev_b32 {v(vT[0])}, 6, v0")
    a("s_nop 0")
    a(f"v_readfirstlane_b32 s49, {v(vT[0])}")
    a("s_nop 3")
    a("s_and_b32 s30, s49, 3")
    a("s_lshr_b32 s44, s30, 1")
    a("s_and_b32 s45, s30, 1")
    a("s_waitcnt lgkmcnt(0)")
    srd(a, 4, 58, a_off, M * K * 2)
    srd(a, 8, 26, 0, K * N * 2)
    osz = M * N * 2
    srd(a, 12, 34, out_off, osz)
    if res_arg:
        srd(a, 16, 36, res_off, M * N * 2)
    if bias_arg:
        srd(a, 20, 38, 0, N * 2)
    t0, t1, t2, t3 = vT[0], vT[1], vT[2], vT[3]
    TABLE = STAGE * (NSTAGE - 1)
    SD = 128

    def stats_load():
        a(f"v_lshrrev_b32 {v(t0)}, 3, v1")
        a("s_lshl_b32 s3, s49, 4")
        a(f"v_add_u32 {v(t0)}, s3, {v(t0)}")
        a(f"s_mul_i32 s3, s28, {BM}")
        a(f"v_add_u32 {v(t1)}, s3, {v(t0)}")
        a(f"v_mul_u32_u24 {v(t1)}, {K*2}, {v(t1)}")
        a(f"v_and_b32 {v(t2)}, 7, v1")
        a(f"v_lshl_add_u32 {v(t1)}, {v(t2)}, 4, {v(t1)}")
        a(f"v_add_u32 {v(t2)}, {8*K*2}, {v(t1)}")
        for ps, vo in enumerate((t1, t2)):
            for j in range(16):
                a(f"buffer_load_dwordx4 {v(SD+64*ps+4*j,4)}, {v(vo)}, s[4:7], 0 offen offset:{j*128}")

    def stats_compute():
        acc_ = [vT[4], vT[5], vT[6], vT[7]]
        a(f"v_mov_b32 {v(t3)}, 0x3f803f80")
        for r in acc_:
            a(f"v_mov_b32 {v(r)}, 0")
        for j in range(64):
            for ps in range(2):
                d = v(SD + 64 * ps + j)
                a(f"v_dot2_f32_bf16 {v(acc_[2*ps])}, {d}, {v(t3)}, {v(acc_[2*ps])}")
                a(f"v_dot2_f32_bf16 {v(acc_[2*ps+1])}, {d}, {d}, {v(acc_[2*ps+1])}")
        a("s_nop 3")
        for mode in ("quad_perm:[1,0,3,2]", "quad_perm:[2,3,0,1]", "row_half_mirror"):
            for k_, r in enumerate(acc_):
                a(f"v_add_f32_dpp {v(SD+k_)}, {v(r)}, {v(r)} {mode} row_mask:0xf bank_mask:0xf")
            a("s_nop 1")
            for k_, r in enumerate(acc_):
                a(f"v_mov_b32 {v(r)}, {v(SD+k_)}")
            a("s_nop 1")
        for ps in range(2):
            sm, sq = acc_[2 * ps], acc_[2 * ps + 1]
            a(f"v_mul_f32 {v(sm)}, {hex_f32(1.0/K)}, {v(sm)}")
            a(f"v_mul_f32 {v(sq)}, {hex_f32(1.0/K)}, {v(sq)}")
            a(f"v_fma_f32 {v(sq)}, -{v(sm)}, {v(sm)}, {v(sq)}")
            a(f"v_max_f32 {v(sq)}, 0, {v(sq)}")
            a(f"v_add_f32 {v(SD)}, {hex_f32(1e-5)}, {v(sq)}")
            a(f"v_rsq_f32 {v(SD)}, {v(SD)}")
            a("s_nop 0")
            if ln == 'double':
                a(f"v_mul_f32 {v(SD+1)}, {v(SD)}, {v(SD)}")
                a(f"v_mul_f32 {v(SD+1)}, {v(SD+1)}, {v(sq)}")
                a(f"v_add_f32 {v(SD+1)}, {hex_f32(1e-5)}, {v(SD+1)}")
                a(f"v_rsq_f32 {v(SD+1)}, {v(SD+1)}")
                a("s_nop 0")
                a(f"v_mul_f32 {v(SD)}, {v(SD)}, {v(SD+1)}")
            a(f"v_mul_f32 {v(SD+1)}, {v(sm)}, {v(SD)}")
            a(f"v_sub_f32 {v(SD+1)}, 0, {v(SD+1)}")
            a(f"v_lshlrev_b32 {v(SD+2)}, 3, {v(t0)}")
            a(f"ds_write_b64 {v(SD+2)}, {v(SD,2)} offset:{TABLE % 65536 + 64*ps}" if TABLE < 65536 else "s_nop 0")
            if TABLE >= 65536:
                a(f"v_add_u32 {v(SD+2)}, {TABLE}, {v(SD+2)}")
                a(f"ds_write_b64 {v(SD+2)}, {v(SD,2)} offset:{64*ps}")
        a("s_waitcnt lgkmcnt(0)")
        a("s_barrier")

    a("s_cmp_ge_u32 s49, 4")
    a(f"s_cbranch_scc1 {lab_loader}")
    if ln:
        stats_load()
        a("s_waitcnt vmcnt(0)")
        stats_compute()

    a(f"v_and_b32 {v(t0)}, 15, v1")
    a("s_lshl_b32 s3, s44, 6")
    a(f"v_add_u32 {v(t0)}, s3, {v(t0)}")
    a(f"v_lshlrev_b32 {v(t0)}, 7, {v(t0)}")
    a(f"v_lshrrev_b32 {v(t1)}, 4, v1")
    a(f"v_bfe_u32 {v(t2)}, v1, 1, 3")
    a(f"v_xor_b32 {v(t3)}, {v(t1)}, {v(t2)}")
    a(f"v_lshl_add_u32 {v(vXb[0])}, {v(t3)}, 4, {v(t0)}")
    a(f"v_xor_b32 {v(t3)}, 4, {v(t3)}")
    a(f"v_lshl_add_u32 {v(vXb[1])}, {v(t3)}, 4, {v(t0)}")
    PPR = RB // 32
    a(f"v_bfe_u32 {v(t0)}, v1, 2, 2")
    a(f"v_lshl_add_u32 {v(t2)}, {v(t1)}, 3, {v(t0)}")
    if RB == 256:
        a(f"v_and_b32 {v(t3)}, 1, {v(t1)}")
        a(f"v_lshl_add_u32 {v(t3)}, {v(t3)}, 2, {v(t0)}")
    elif RB == 128:
        a(f"v_and_b32 {v(t3)}, 1, {v(t1)}")
        a(f"v_lshrrev_b32 {v(t0)}, 1, {v(t0)}")
        a(f"v_lshl_add_u32 {v(t3)}, {v(t3)}, 1, {v(t0)}")
    elif RB == 64:
        a(f"v_and_b32 {v(t3)}, 1, {v(t1)}")
    else:
        a(f"v_mov_b32 {v(t3)}, 0")
    a(f"v_mul_u32_u24 {v(t2)}, {RB}, {v(t2)}")
    a(f"v_and_b32 {v(t0)}, 3, v1")
    a(f"v_lshl_add_u32 {v(t2)}, {v(t0)}, 3, {v(t2)}")
    a(f"v_add_u32 {v(t2)}, {ABYTES}, {v(t2)}")
    a(f"s_mul_i32 s3, s45, {NTW}")
    lg_ppr = int(math.log2(PPR))
    for nt in range(NTW):
        a(f"s_add_u32 s46, s3, {nt}")
        if PPR > 1:
            a(f"s_lshr_b32 s47, s46, {lg_ppr}")
            a(f"s_and_b32 s46, s46, {PPR-1}")
        else:
            a("s_mov_b32 s47, s46")
            a("s_mov_b32 s46, 0")
        a(f"s_mul_i32 s47, s47, {64*RB}")
        a(f"v_xor_b32 {v(t0)}, s46, {v(t3)}")
        a(f"v_lshl_add_u32 {v(t0)}, {v(t0)}, 5, {v(t2)}")
        a(f"v_add_u32 {v(vWb[nt])}, s47, {v(t0)}")
    for i in range(4 * MT * NTW):
        a(f"v_mov_b32 v{ACC+i}, 0")
    a("s_mov_b32 s42, 0")
    BIAS = vA[0] if False else None

    def set_cur():
        for kk in range(2):
            a(f"v_add_u32 {v(vXc[kk])}, s42, {v(vXb[kk])}")
        for nt in range(NTW):
            a(f"v_add_u32 {v(vWc[nt])}, s42, {v(vWb[nt])}")
        a(f"s_add_u32 s42, s42, {STAGE}")
        a(f"s_cmp_ge_u32 s42, {STAGE*NSTAGE}")
        a("s_cselect_b32 s42, 0, s42")

    def read_list(kk, f):
        if 'noreads' in EXP: return []
        L = []
        for nt in range(NTW):
            if nt < MT:
                L.append(f"ds_read_b128 {v(FX[f]+4*nt,4)}, {v(vXc[kk])} offset:{nt*2048}")
            for rd in range(2):
                L.append(f"ds_read_b64_tr_b16 {v(FW[f]+4*nt+2*rd,2)}, {v(vWc[nt])} offset:{kk*32*RB+rd*4*RB}")
        for mt in range(NTW, MT):
            L.append(f"ds_read_b128 {v(FX[f]+4*mt,4)}, {v(vXc[kk])} offset:{mt*2048}")
        return L

    def mfma_list(f):
        if 'nomfma' in EXP: return []
        L = []
        for nt in range(NTW):
            for mt in range(MT):
                L.append(f"v_mfma_f32_16x16x32_bf16 {v(acc(nt,mt),4)}, {v(FW[f]+4*nt,4)}, {v(FX[f]+4*mt,4)}, {v(acc(nt,mt),4)}")
        return L

    def reads(kk, f):
        for x in read_list(kk, f): a(x)

    def mfmas(f):
        for x in mfma_list(f): a(x)

    def inter(kk, fr, fm):
        R = read_list(kk, fr); Mm = mfma_list(fm)
        n = max(len(R), len(Mm))
        for i in range(n):
            if i < len(Mm): a(Mm[i])
            if i < len(R): a(R[i])

    stamp(1)
    a("s_barrier")
    stamp(2)
    set_cur()
    reads(0, 0)
    a("s_waitcnt lgkmcnt(0)")
    inter(1, 1, 0)
    a("s_waitcnt lgkmcnt(0)")
    a(f"s_mov_b32 s48, {NS-1}")
    loop = a.newlabel("L_cloop")
    a.label(loop)
    a("s_barrier")
    set_cur()
    inter(0, 0, 1)
    a("s_waitcnt lgkmcnt(0)")
    inter(1, 1, 0)
    a("s_waitcnt lgkmcnt(0)")
    a("s_sub_u32 s48, s48, 1")
    a("s_cmp_lg_u32 s48, 0")
    a(f"s_cbranch_scc1 {loop}")
    stamp(3)
    mfmas(1)
    a("s_barrier")
    vc = vT[0]
    a(f"v_and_b32 {v(t2)}, 15, v1")
    a("s_lshl_b32 s3, s44, 6")
    a(f"v_add_u32 {v(t2)}, s3, {v(t2)}")
    a(f"v_mul_u32_u24 {v(t2)}, {CROW}, {v(t2)}")
    a(f"v_lshrrev_b32 {v(t3)}, 4, v1")
    a(f"v_lshlrev_b32 {v(t3)}, 4, {v(t3)}")
    a(f"s_mul_i32 s3, s45, {BN*2}")
    a(f"v_add_u32 {v(t3)}, s3, {v(t3)}")
    a(f"v_add_u32 {v(vc)}, {v(t2)}, {v(t3)}")
    a("s_nop 4")
    for nt in range(NTW):
        for mt in range(MT):
            a(f"ds_write_b128 {v(vc)}, {v(acc(nt,mt),4)} offset:{mt*16*CROW + nt*64}")
    a("s_waitcnt lgkmcnt(0)")
    stamp(4)
    a("s_barrier")
    a(f"s_branch {lab_store}")

    a.label(lab_loader)
    LW = 40; LT = 44; LS = 48
    LX = 64
    LD = 72
    assert (not ln) or (vT[7] < 40 and LD + 16 * (NSTAGE - 1) <= 128)
    a(f"s_mul_i32 s3, s30, {PA*8}")
    a(f"v_lshrrev_b32 {v(t0)}, 3, v1")
    a(f"v_add_u32 {v(t0)}, s3, {v(t0)}")
    a(f"s_mul_i32 s3, s28, {BM}")
    for i in range(PA):
        a(f"v_add_u32 {v(t1)}, {8*i}, {v(t0)}")
        a(f"v_lshrrev_b32 {v(t2)}, 1, {v(t1)}")
        a(f"v_and_b32 {v(t2)}, 7, {v(t2)}")
        a(f"v_and_b32 {v(t3)}, 7, v1")
        a(f"v_xor_b32 {v(t2)}, {v(t2)}, {v(t3)}")
        if ln:
            a(f"v_lshlrev_b32 {v(LW+i)}, 7, {v(t1)}")
            a(f"v_lshl_add_u32 {v(LW+i)}, {v(t2)}, 4, {v(LW+i)}")
            a(f"v_lshlrev_b32 {v(LT+i)}, 3, {v(t1)}")
            a(f"v_add_u32 {v(LT+i)}, {TABLE}, {v(LT+i)}")
            a(f"v_mov_b32 {v(t2)}, {v(t3)}")
        a(f"v_add_u32 {v(t1)}, s3, {v(t1)}")
        a(f"v_mul_u32_u24 {v(t1)}, {K*2}, {v(t1)}")
        a(f"v_lshl_add_u32 {v(vA[i])}, {v(t2)}, 4, {v(t1)}")
    CPR = RB // 16
    lg_cpr = int(math.log2(CPR))
    RPP = 1024 // RB
    PPB = RB // 16
    lg_ppb = int(math.log2(PPB))
    a(f"s_mul_i32 s3, s29, {BN*2}")
    for i in range(PB):
        a(f"s_mul_i32 s46, s30, {PB}")
        a(f"s_add_u32 s46, s46, {i}")
        a(f"s_lshr_b32 s47, s46, {lg_ppb}")
        a(f"s_and_b32 s46, s46, {PPB-1}")
        a(f"s_mul_i32 s46, s46, {RPP}")
        a(f"s_mul_i32 s47, s47, {RB}")
        a("s_add_u32 s47, s47, s3")
        a(f"v_lshrrev_b32 {v(t0)}, {lg_cpr}, v1")
        a(f"v_add_u32 {v(t0)}, s46, {v(t0)}")
        a(f"v_and_b32 {v(t1)}, {CPR-1}, v1")
        if RB == 256:
            a(f"v_and_b32 {v(t2)}, 3, {v(t0)}")
            a(f"v_bfe_u32 {v(t3)}, {v(t0)}, 3, 1")
            a(f"v_lshl_add_u32 {v(t2)}, {v(t3)}, 2, {v(t2)}")
        elif RB == 128:
            a(f"v_bfe_u32 {v(t2)}, {v(t0)}, 1, 1")
            a(f"v_bfe_u32 {v(t3)}, {v(t0)}, 3, 1")
            a(f"v_lshl_add_u32 {v(t2)}, {v(t3)}, 1, {v(t2)}")
        elif RB == 64:
            a(f"v_bfe_u32 {v(t2)}, {v(t0)}, 3, 1")
        else:
            a(f"v_mov_b32 {v(t2)}, 0")
        a(f"v_lshlrev_b32 {v(t2)}, 1, {v(t2)}")
        a(f"v_xor_b32 {v(t1)}, {v(t1)}, {v(t2)}")
        a(f"v_mul_u32_u24 {v(t0)}, {N*2}, {v(t0)}")
        a(f"v_lshl_add_u32 {v(t0)}, {v(t1)}, 4, {v(t0)}")
        a(f"v_add_u32 {v(vB[i])}, s47, {v(t0)}")
    a(f"s_mul_i32 s31, s30, {PA*1024}")
    a(f"s_mul_i32 s32, s30, {PB*1024}")
    a(f"s_add_u32 s32, s32, {ABYTES}")
    a("s_mov_b32 s40, 0")
    a("s_mov_b32 s41, 0")
    a("s_mov_b32 s43, 0")

    def dma(stage=None):
        if 'nodma' in EXP: return
        if not ln:
            a("s_add_u32 s33, s43, s31")
            for i in range(PA):
                a(f"s_add_u32 m0, s33, {i*1024}")
                a("s_nop 0")
                a(f"buffer_load_dwordx4 {v(vA[i])}, s[4:7], s40 offen lds")
        else:
            rs = LD + 16 * (stage % (NSTAGE - 1))
            for i in range(PA):
                a(f"buffer_load_dwordx4 {v(rs+4*i,4)}, {v(vA[i])}, s[4:7], s40 offen")
        a("s_add_u32 s33, s43, s32")
        for i in range(PB):
            a(f"s_add_u32 m0, s33, {i*1024}")
            a("s_nop 0")
            a(f"buffer_load_dwordx4 {v(vB[i])}, s[8:11], s41 offen lds")
        a(f"s_add_u32 s40, s40, {BK*2}")
        a(f"s_add_u32 s41, s41, {BK*N*2}")
        a(f"s_add_u32 s43, s43, {STAGE}")
        a(f"s_cmp_ge_u32 s43, {STAGE*NSTAGE}")
        a("s_cselect_b32 s43, 0, s43")

    def norm_write(stage):
        rs = LD + 16 * (stage % (NSTAGE - 1))
        boff = STAGE * (stage % NSTAGE)
        for i in range(PA):
            for j in range(4):
                d = rs + 4 * i + j
                a(f"v_lshlrev_b32 {v(LX+2*j)}, 16, {v(d)}")
                a(f"v_and_b32 {v(LX+2*j+1)}, 0xffff0000, {v(d)}")
            for j in range(4):
                a(f"v_pk_fma_f32 {v(LX+2*j,2)}, {v(LX+2*j,2)}, {v(LS+4*i,2)}, {v(LS+4*i+2,2)}")
            for j in range(4):
                a(f"v_cvt_pk_bf16_f32 {v(rs+4*i+j)}, {v(LX+2*j)}, {v(LX+2*j+1)}")
            a(f"v_add_u32 {v(LX)}, {boff}, {v(LW+i)}")
            a(f"ds_write_b128 {v(LX)}, {v(rs+4*i,4)}")

    stamp(1)
    if not ln:
        for _ in range(NSTAGE - 1):
            dma()
        stamp(2)
        nloop = NS - NSTAGE + 1
        a(f"s_mov_b32 s48, {nloop}")
        lloop = a.newlabel("L_lloop")
        a.label(lloop)
        a(f"s_waitcnt vmcnt({(NSTAGE-2)*P})")
        a("s_barrier")
        dma()
        a("s_sub_u32 s48, s48, 1")
        a("s_cmp_lg_u32 s48, 0")
        a(f"s_cbranch_scc1 {lloop}")
        for j in range(NS - NSTAGE + 1, NS):
            a(f"s_waitcnt vmcnt({(NS-1-j)*P})")
            a("s_barrier")
    else:
        for st in range(NSTAGE - 1):
            dma(st)
        stats_load()
        a("s_waitcnt vmcnt(0)")
        stats_compute()
        stamp(2)
        for i in range(PA):
            a(f"ds_read_b64 {v(LX+2*i,2)}, {v(LT+i)}")
        a("s_waitcnt lgkmcnt(0)")
        for i in range(PA):
            a(f"v_mov_b32 {v(LS+4*i)}, {v(LX+2*i)}")
            a(f"v_mov_b32 {v(LS+4*i+1)}, {v(LX+2*i)}")
            a(f"v_mov_b32 {v(LS+4*i+2)}, {v(LX+2*i+1)}")
            a(f"v_mov_b32 {v(LS+4*i+3)}, {v(LX+2*i+1)}")
        norm_write(0)
        a("s_waitcnt lgkmcnt(0)")
        for j in range(NS):
            a("s_barrier")
            if j + NSTAGE - 1 < NS:
                dma(j + NSTAGE - 1)
            if j + 1 < NS:
                last_issued = min(j + NSTAGE - 1, NS - 1)
                a(f"s_waitcnt vmcnt({(last_issued - (j + 1)) * P})")
                norm_write(j + 1)
                a("s_waitcnt lgkmcnt(0)")
    stamp(3)
    a("s_barrier")
    stamp(4)
    a("s_barrier")

    a.label(lab_store)
    CPRW = BN // 8
    NIT = BM * CPRW // 512
    assert NIT * 512 == BM * CPRW
    magic = ((1 << 32) + CPRW - 1) // CPRW
    a(f"s_mov_b32 s46, {magic}")
    a(f"s_mul_i32 s3, s49, {NIT*64}")
    a(f"v_add_u32 {v(t0)}, s3, v1")
    a(f"s_mul_i32 s3, s28, {BM}")
    a(f"s_mul_i32 s47, s29, {BN*2}")
    R0 = (vT[7] + 4) // 4 * 4
    RR = R0 + 8 * NIT
    RBI = RR + 4 * NIT
    OFF = RBI + 4 * NIT
    GT = (OFF + NIT + 3) // 4 * 4
    assert GT + 10 <= 256
    for it in range(NIT):
        a(f"v_add_u32 {v(t1)}, {it*64}, {v(t0)}")
        a(f"v_mul_hi_u32 {v(t2)}, {v(t1)}, s46")
        a(f"v_mul_u32_u24 {v(t3)}, {CPRW}, {v(t2)}")
        a(f"v_sub_u32 {v(t3)}, {v(t1)}, {v(t3)}")
        a(f"v_mul_u32_u24 {v(t1)}, {CROW}, {v(t2)}")
        a(f"v_lshl_add_u32 {v(t1)}, {v(t3)}, 5, {v(t1)}")
        a(f"ds_read_b128 {v(R0+8*it,4)}, {v(t1)}")
        a(f"ds_read_b128 {v(R0+8*it+4,4)}, {v(t1)} offset:16")
        a(f"v_add_u32 {v(t2)}, s3, {v(t2)}")
        a(f"v_mul_u32_u24 {v(t2)}, {N*2}, {v(t2)}")
        a(f"v_lshlrev_b32 {v(t3)}, 4, {v(t3)}")
        a(f"v_add_u32 {v(t3)}, s47, {v(t3)}")
        a(f"v_add_u32 {v(OFF+it)}, {v(t3)}, {v(t2)}")
        if res_arg:
            a(f"buffer_load_dwordx4 {v(RR+4*it,4)}, {v(OFF+it)}, s[16:19], 0 offen")
        if bias_arg:
            a(f"buffer_load_dwordx4 {v(RBI+4*it,4)}, {v(t3)}, s[20:23], 0 offen")
    if epi == 'gelu':
        import struct
        c2 = 2 * math.log2(math.e)
        k1 = struct.unpack("<I", struct.pack("<f", 0.7978845608 * c2))[0]
        k3 = struct.unpack("<I", struct.pack("<f", 0.7978845608 * 0.044715 * c2))[0]
        a(f"s_mov_b32 s52, {k3}"); a(f"s_mov_b32 s53, {k3}")
        a(f"v_mov_b32 {v(GT+8)}, {k1}"); a(f"v_mov_b32 {v(GT+9)}, {k1}")
        a("s_mov_b32 s56, 1.0"); a("s_mov_b32 s57, 1.0")
    a("s_waitcnt vmcnt(0) lgkmcnt(0)")
    stamp(5)
    for it in range(NIT):
        c0 = R0 + 8 * it
        if bias_arg:
            for j in range(4):
                b = RBI + 4 * it + j
                a(f"v_lshlrev_b32 {v(GT+2*j)}, 16, {v(b)}")
                a(f"v_and_b32 {v(GT+2*j+1)}, 0xffff0000, {v(b)}")
            for j in range(4):
                a(f"v_pk_add_f32 {v(c0+2*j,2)}, {v(c0+2*j,2)}, {v(GT+2*j,2)}")
        if epi == 'gelu':
            for j in range(4):
                a(f"v_pk_mul_f32 {v(GT+2*j,2)}, {v(c0+2*j,2)}, {v(c0+2*j,2)}")
            for j in range(4):
                a(f"v_pk_fma_f32 {v(GT+2*j,2)}, {v(GT+2*j,2)}, s[52:53], {v(GT+8,2)}")
            for j in range(4):
                a(f"v_pk_mul_f32 {v(GT+2*j,2)}, {v(GT+2*j,2)}, {v(c0+2*j,2)}")
            for r in range(8):
                a(f"v_exp_f32 {v(GT+r)}, {v(GT+r)}")
            a("s_nop 0")
            for j in range(4):
                a(f"v_pk_add_f32 {v(GT+2*j,2)}, {v(GT+2*j,2)}, s[56:57]")
            for r in range(8):
                a(f"v_rcp_f32 {v(GT+r)}, {v(GT+r)}")
            a("s_nop 0")
            for j in range(4):
                cc = v(c0 + 2 * j, 2)
                a(f"v_pk_fma_f32 {cc}, {cc}, {v(GT+2*j,2)}, {cc} neg_lo:[1,0,0] neg_hi:[1,0,0]")
        for j in range(4):
            a(f"v_cvt_pk_bf16_f32 {v(c0+j)}, {v(c0+2*j)}, {v(c0+2*j+1)}")
        if res_arg:
            for j in range(4):
                d = c0 + j
                r = RR + 4 * it + j
                a(f"v_lshlrev_b32 {v(GT)}, 16, {v(d)}")
                a(f"v_lshlrev_b32 {v(GT+1)}, 16, {v(r)}")
                a(f"v_and_b32 {v(GT+2)}, 0xffff0000, {v(d)}")
                a(f"v_and_b32 {v(GT+3)}, 0xffff0000, {v(r)}")
                a(f"v_add_f32 {v(GT)}, {v(GT)}, {v(GT+1)}")
                a(f"v_add_f32 {v(GT+2)}, {v(GT+2)}, {v(GT+3)}")
                a(f"v_cvt_pk_bf16_f32 {v(d)}, {v(GT)}, {v(GT+2)}")
        a(f"buffer_store_dwordx4 {v(c0,4)}, {v(OFF+it)}, s[12:15], 0 offen")
    stamp(6)
    a("s_waitcnt vmcnt(0)")
    stamp(7)
    stamp_out()
    a.label(end)
    a("s_endpgm")
    return dict(name=name, grid=ntiles, block=512, lds=lds, desc=kernel_desc(name, 256 if ln else max(nvgpr, GT + 10)))


def gen_attn(a, name):
    import struct
    NQB = S // 32
    ntask = H * NQB
    nwg = ntask // 4
    QKV_ROW = 3 * D * 2
    VLDS = 288 * 64
    lds = 4 * VLDS
    kernel_header(a, name)
    end = a.newlabel("L_end")
    a(f"s_cmp_ge_u32 s2, {nwg}")
    a(f"s_cbranch_scc1 {end}")
    a(f"s_load_dwordx2 s[24:25], s[0:1], {ARG['ws']}")
    a("v_and_b32 v1, 63, v0")
    a("v_lshrrev_b32 v2, 6, v0")
    a("s_nop 0")
    a("v_readfirstlane_b32 s30, v2")
    a("s_nop 3")
    a("s_lshl_b32 s3, s2, 2")
    a("s_add_u32 s3, s3, s30")
    a("s_and_b32 s28, s3, 31")
    a("s_lshr_b32 s29, s3, 5")
    a("s_lshl_b32 s31, s29, 5")
    a("s_sub_u32 s32, s31, 256")
    a("s_lshl_b32 s33, s28, 6")
    a(f"s_add_u32 s35, s33, {2*D*2}")
    a("v_and_b32 v2, 31, v1")
    a("v_lshrrev_b32 v3, 5, v1")
    a("v_add_u32 v4, s31, v2")
    a(f"v_mul_u32_u24 v4, {QKV_ROW}, v4")
    a("v_lshl_add_u32 v4, v3, 4, v4")
    a("v_add_u32 v4, s33, v4")
    a("s_waitcnt lgkmcnt(0)")
    srd(a, 4, 24, WS_QKV, S * 3 * D * 2)
    srd(a, 8, 24, WS_O, S * D * 2)
    a("buffer_load_dwordx4 v[8:11], v4, s[4:7], 0 offen")
    a("buffer_load_dwordx4 v[12:15], v4, s[4:7], 0 offen offset:32")
    KF = 16
    for t in range(9):
        a(f"v_add_u32 v7, {32*t}, v2")
        a("v_add_u32 v7, s32, v7")
        a("v_max_i32 v7, 0, v7")
        a(f"v_mul_u32_u24 v7, {QKV_ROW}, v7")
        a("v_lshl_add_u32 v7, v3, 4, v7")
        a("v_add_u32 v7, s33, v7")
        a(f"buffer_load_dwordx4 {v(KF+8*t,4)}, v7, s[4:7], 0 offen offset:{D*2}")
        a(f"buffer_load_dwordx4 {v(KF+8*t+4,4)}, v7, s[4:7], 0 offen offset:{D*2+32}")
    a("v_lshrrev_b32 v5, 2, v1")
    a("v_and_b32 v6, 3, v1")
    a(f"s_mul_i32 s34, s30, {VLDS}")
    for p in range(18):
        a(f"v_add_u32 v7, {16*p}, v5")
        a("v_add_u32 v7, s32, v7")
        a("v_max_i32 v7, 0, v7")
        a(f"v_mul_u32_u24 v7, {QKV_ROW}, v7")
        a("v_lshl_add_u32 v7, v6, 4, v7")
        a("v_add_u32 v7, s35, v7")
        a(f"s_add_u32 m0, s34, {p*1024}")
        a("s_nop 0")
        a(f"buffer_load_dwordx4 v7, s[4:7], 0 offen lds")
    SC = 96
    a("v_mov_b32 v7, 0xf149f2ca")
    for t in range(9):
        a(f"s_waitcnt vmcnt({18 + 2*(8-t)})")
        if t < 8:
            lab_inv = a.newlabel("L_inv"); lab_done = a.newlabel("L_tdone")
            a(f"s_add_i32 s3, s32, {32*t}")
            a("s_cmp_lt_i32 s3, 0")
            a(f"s_cbranch_scc1 {lab_inv}")
        a(f"v_mfma_f32_32x32x16_bf16 {v(SC+16*t,16)}, {v(KF+8*t,4)}, v[8:11], 0")
        a(f"v_mfma_f32_32x32x16_bf16 {v(SC+16*t,16)}, {v(KF+8*t+4,4)}, v[12:15], {v(SC+16*t,16)}")
        if t < 8:
            a(f"s_branch {lab_done}")
            a.label(lab_inv)
            for r in range(16):
                a(f"v_mov_b32 v{SC+16*t+r}, v7")
            a.label(lab_done)
    a("v_lshlrev_b32 v5, 2, v3")
    a("v_sub_u32 v5, v2, v5")
    a("s_nop 7")
    a("s_nop 7")
    for r in range(16):
        c = (r & 3) + 8 * (r >> 2)
        a(f"v_cmp_gt_i32 vcc, {c}, v5")
        a(f"v_cmp_le_i32 s[36:37], {c}, v5")
        a("s_nop 0")
        a(f"v_cndmask_b32 v{SC+r}, v7, v{SC+r}, vcc")
        a(f"v_cndmask_b32 v{SC+128+r}, v7, v{SC+128+r}, s[36:37]")
    a(f"v_max3_f32 v4, v{SC}, v{SC+1}, v{SC+2}")
    a(f"v_max3_f32 v6, v{SC+3}, v{SC+4}, v{SC+5}")
    for i in range(6, 144, 4):
        a(f"v_max3_f32 v4, v4, v{SC+i}, v{SC+i+1}")
        if i + 3 < 144:
            a(f"v_max3_f32 v6, v6, v{SC+i+2}, v{SC+i+3}")
    a("v_max_f32 v4, v4, v6")
    a("v_xor_b32 v88, 32, v1")
    a("v_lshlrev_b32 v88, 2, v88")
    a("ds_bpermute_b32 v89, v88, v4")
    a("s_waitcnt lgkmcnt(0)")
    a("v_max_f32 v4, v4, v89")
    sc = (DH ** -0.5) * math.log2(math.e)
    sc_bits = struct.unpack("<I", struct.pack("<f", sc))[0]
    a(f"s_mov_b32 s38, {sc_bits}")
    a("v_mul_f32 v4, s38, v4")
    sums = [5, 6, 90, 91]
    for sreg in sums:
        a(f"v_mov_b32 v{sreg}, 0")
    for g in range(0, 144, 4):
        for j in range(4):
            a(f"v_fma_f32 v{SC+g+j}, v{SC+g+j}, s38, -v4")
        for j in range(4):
            a(f"v_exp_f32 v{SC+g+j}, v{SC+g+j}")
        if g >= 4:
            for j in range(4):
                a(f"v_add_f32 v{sums[j]}, v{sums[j]}, v{SC+g-4+j}")
            tt, jj = divmod(g - 4, 16)
            a(f"v_cvt_pk_bf16_f32 v{KF+8*tt+jj//2}, v{SC+g-4}, v{SC+g-3}")
            a(f"v_cvt_pk_bf16_f32 v{KF+8*tt+jj//2+1}, v{SC+g-2}, v{SC+g-1}")
    a("s_nop 0")
    g = 144
    for j in range(4):
        a(f"v_add_f32 v{sums[j]}, v{sums[j]}, v{SC+g-4+j}")
    tt, jj = divmod(g - 4, 16)
    a(f"v_cvt_pk_bf16_f32 v{KF+8*tt+jj//2}, v{SC+g-4}, v{SC+g-3}")
    a(f"v_cvt_pk_bf16_f32 v{KF+8*tt+jj//2+1}, v{SC+g-2}, v{SC+g-1}")
    a("v_add_f32 v5, v5, v6")
    a("v_add_f32 v90, v90, v91")
    a("v_add_f32 v5, v5, v90")
    a("ds_bpermute_b32 v89, v88, v5")
    a("v_bfe_u32 v6, v1, 2, 2")
    a("v_lshl_add_u32 v6, v3, 2, v6")
    a("v_lshlrev_b32 v6, 6, v6")
    a("v_bfe_u32 v7, v1, 4, 1")
    a("v_lshl_add_u32 v6, v7, 5, v6")
    a("v_and_b32 v7, 3, v1")
    a("v_lshl_add_u32 v6, v7, 3, v6")
    a("v_add_u32 v6, s34, v6")
    OA = SC
    VF = SC + 16
    a("s_waitcnt vmcnt(0) lgkmcnt(0)")
    a("v_add_f32 v5, v5, v89")
    a("v_rcp_f32 v5, v5")
    for t in range(9):
        for sidx in range(2):
            f = VF + 4 * (2 * t + sidx)
            base = (32 * t + 16 * sidx) * 64
            a(f"ds_read_b64_tr_b16 {v(f,2)}, v6 offset:{base}")
            a(f"ds_read_b64_tr_b16 {v(f+2,2)}, v6 offset:{base+8*64}")
    first = True
    for t in range(9):
        for sidx in range(2):
            f = VF + 4 * (2 * t + sidx)
            idx = 2 * t + sidx
            rem = 36 - 2 * (idx + 1)
            a(f"s_waitcnt lgkmcnt({min(rem,15)})")
            a(f"v_mfma_f32_32x32x16_bf16 {v(OA,16)}, {v(f,4)}, {v(KF+8*t+4*sidx,4)}, {'0' if first else v(OA,16)}")
            first = False
    a("v_add_u32 v7, s31, v2")
    a(f"v_lshlrev_b32 v7, 11, v7")
    a("v_lshl_add_u32 v7, v3, 3, v7")
    a("v_add_u32 v7, s33, v7")
    a("s_nop 7")
    a("s_nop 7")
    for g in range(4):
        for r in range(4):
            a(f"v_mul_f32 v{OA+4*g+r}, v{OA+4*g+r}, v5")
        a(f"v_cvt_pk_bf16_f32 v{OA+4*g}, v{OA+4*g}, v{OA+4*g+1}")
        a(f"v_cvt_pk_bf16_f32 v{OA+4*g+1}, v{OA+4*g+2}, v{OA+4*g+3}")
        a(f"buffer_store_dwordx2 {v(OA+4*g,2)}, v7, s[8:11], 0 offen offset:{16*g}")
    a.label(end)
    a("s_endpgm")
    return dict(name=name, grid=nwg, block=256, lds=lds, desc=kernel_desc(name, 240))


def main():
    a = Asm()
    ks = []
    ks.append(gen_ln(a, "ln1_kernel", "x", 0, WS_Y1, False))
    ks.append(gen_gemm(a, "qkv_kernel", 3 * D, D, 192, WS_Y1, "wqkv", "plain", "ws", WS_QKV, NSTAGE=4, RA=8, RBN=4))
    ks.append(gen_attn(a, "attn_kernel"))
    ks.append(gen_gemm(a, "oproj_kernel", D, D, 64, WS_O, "wo", "plain", "ws", WS_H, res_arg="x", NSTAGE=6))
    ks.append(gen_ln(a, "ln2_kernel", "ws", WS_H, WS_Y2, True))
    ks.append(gen_gemm(a, "ffn1_kernel", F, D, 224, WS_Y2, "w1", "gelu", "ws", WS_H1, bias_arg="b1", RA=8, RBN=4))
    ks.append(gen_gemm(a, "ffn2_kernel", D, F, 64, WS_H1, "w2", "plain", "out", 0, res_arg="ws", res_off=WS_H,
                       bias_arg="b2", NSTAGE=6))
    hdr = []
    for k in ks:
        hdr.append(f"; @launch kernel={k['name']} grid=({k['grid']},1,1) block=({k['block']},1,1) lds={k['lds']}")
    txt = "\n".join(hdr) + "\n"
    txt += '.amdgcn_target "amdgcn-amd-amdhsa--gfx950"\n.text\n'
    txt += "\n".join(a.lines) + "\n"
    txt += '.section .rodata,"a"\n'
    for k in ks:
        txt += ".p2align 6\n" + k["desc"]
    open(OUT, "w").write(txt)


if __name__ == "__main__":
    main()
```

```python
import sys, math, os
EXP=os.environ.get('EXP','')

OUT = os.environ.get("OUTF","sequential_preLN__sliding_block__mixer_channel_mlp__prompt.s")

S = 2048; D = 1024; F = 3584; H = 32; DH = 32; WIN = 256
ARG = dict(x=0, wqkv=8, wo=16, bx=24, w1=32, b1=40, w2=48, b2=56, out=64, dbg=72, ws=80)
MB = 1 << 20
WS_Y1 = 0
WS_QKV = 4 * MB
WS_O = 16 * MB
WS_H = 20 * MB
WS_Y2 = 24 * MB
WS_H1 = 28 * MB
WS_SIZE = 256 * MB


class Asm:
    def __init__(self):
        self.lines = []
        self.nlab = 0

    def __call__(self, s):
        self.lines.append("    " + s)

    def label(self, l):
        self.lines.append(l + ":")

    def newlabel(self, base="L"):
        self.nlab += 1
        return f"{base}_{self.nlab}"

    def c(self, s):
        self.lines.append("    ; " + s)


def v(i, n=1):
    return f"v{i}" if n == 1 else f"v[{i}:{i+n-1}]"


def s(i, n=1):
    return f"s{i}" if n == 1 else f"s[{i}:{i+n-1}]"


def srd(a, d, base, off, nbytes):
    if off:
        a(f"s_add_u32 s{d}, s{base}, {off}")
        a(f"s_addc_u32 s{d+1}, s{base+1}, 0")
    else:
        a(f"s_mov_b32 s{d}, s{base}")
        a(f"s_mov_b32 s{d+1}, s{base+1}")
    a(f"s_and_b32 s{d+1}, s{d+1}, 0xffff")
    a(f"s_mov_b32 s{d+2}, {nbytes}")
    a(f"s_mov_b32 s{d+3}, 0x00020000")


def hex_f32(x):
    import struct
    return hex(struct.unpack('<I', struct.pack('<f', x))[0])


def kernel_header(a, name):
    a.lines.append(".p2align 8")
    a.lines.append(f".globl {name}")
    a.lines.append(f".type {name},@function")
    a.label(name)


def kernel_desc(name, nvgpr, nsgpr=102, accum=None):
    nv = ((nvgpr + 7) // 8) * 8
    acc = accum if accum is not None else ((nvgpr + 3) // 4) * 4
    return f""".amdhsa_kernel {name}
  .amdhsa_next_free_vgpr {nv if accum is None else nvgpr}
  .amdhsa_next_free_sgpr {nsgpr}
  .amdhsa_accum_offset {min(acc,256)}
  .amdhsa_group_segment_fixed_size 0
  .amdhsa_kernarg_size 88
  .amdhsa_user_sgpr_count 2
  .amdhsa_user_sgpr_kernarg_segment_ptr 1
  .amdhsa_system_sgpr_workgroup_id_x 1
.end_amdhsa_kernel
"""


def gen_prefetch(a, regions, end_label):
    CH = 32768
    counts = [nbytes // CH for _, nbytes in regions]
    for (_, nbytes), c in zip(regions, counts):
        assert c * CH == nbytes
    total = sum(counts)
    skip = a.newlabel("L_nopf")
    a(f"s_cmp_ge_u32 s2, {total}")
    a(f"s_cbranch_scc1 {skip}")
    base = 0
    for (arg, nbytes), c in zip(regions, counts):
        nxt = a.newlabel("L_pfn")
        a(f"s_cmp_ge_u32 s2, {base + c}")
        a(f"s_cbranch_scc1 {nxt}")
        a(f"s_load_dwordx2 s[4:5], s[0:1], {ARG[arg]}")
        a(f"s_sub_u32 s3, s2, {base}")
        a("s_lshl_b32 s3, s3, 15")
        a("v_lshlrev_b32 v1, 4, v0")
        a("v_add_u32 v1, s3, v1")
        a("s_waitcnt lgkmcnt(0)")
        srd(a, 8, 4, 0, nbytes)
        for j in range(8):
            a(f"v_add_u32 v2, {4096*j}, v1")
            a(f"buffer_load_dwordx4 {v(4+4*j,4)}, v2, s[8:11], 0 offen")
        a("s_waitcnt vmcnt(0)")
        a(f"s_branch {end_label}")
        a.label(nxt)
        base += c
    a.label(skip)
    a(f"s_sub_u32 s2, s2, {total}")
    return total


def tail_prefetch(a, task, lane, regions, vtmp, vdst):
    ntask = 2048
    total = sum(n for _, n in regions)
    per = total // ntask
    assert per * ntask == total and per % 1024 == 0
    nld = per // 1024
    base = 0
    done = a.newlabel("L_pfdone")
    for arg, nbytes in regions:
        cnt = nbytes // per
        assert cnt * per == nbytes
        nxt = a.newlabel("L_pfn")
        a(f"s_cmp_ge_u32 s{task}, {base + cnt}")
        a(f"s_cbranch_scc1 {nxt}")
        a(f"s_load_dwordx2 s[94:95], s[0:1], {ARG[arg]}")
        a(f"s_sub_u32 s93, s{task}, {base}")
        a(f"s_mul_i32 s93, s93, {per}")
        a(f"v_lshlrev_b32 {v(vtmp)}, 4, {v(lane)}")
        a(f"v_add_u32 {v(vtmp)}, s93, {v(vtmp)}")
        a("s_waitcnt lgkmcnt(0)")
        srd(a, 96, 94, 0, nbytes)
        for j in range(nld):
            if j and j % 4 == 0:
                a(f"v_add_u32 {v(vtmp)}, 4096, {v(vtmp)}")
            a(f"buffer_load_dwordx4 {v(vdst,4)}, {v(vtmp)}, s[96:99], 0 offen offset:{1024*(j%4)}")
        a(f"s_branch {done}")
        a.label(nxt)
        base += cnt
    a.label(done)
    return nld

def gen_ln(a, name, src_arg, src_off, dst_off, double, pf=None):
    nwg = S // 4
    kernel_header(a, name)
    end = a.newlabel("L_end")
    npf = 0
    a(f"s_cmp_ge_u32 s2, {nwg}")
    a(f"s_cbranch_scc1 {end}")
    a(f"s_load_dwordx2 s[4:5], s[0:1], {ARG[src_arg]}")
    a(f"s_load_dwordx2 s[6:7], s[0:1], {ARG['ws']}")
    a("v_lshrrev_b32 v1, 6, v0")
    a("v_and_b32 v2, 63, v0")
    a("s_lshl_b32 s3, s2, 2")
    a("v_add_u32 v1, s3, v1")
    a("v_lshlrev_b32 v3, 11, v1")
    a("v_lshl_add_u32 v3, v2, 5, v3")
    for i, m in enumerate([1, 2, 4, 8, 16, 32]):
        a(f"v_xor_b32 v{12+i}, {m}, v2")
        a(f"v_lshlrev_b32 v{12+i}, 2, v{12+i}")
    a("s_waitcnt lgkmcnt(0)")
    srd(a, 8, 4, src_off, S * D * 2)
    srd(a, 12, 6, dst_off, S * D * 2)
    a("buffer_load_dwordx4 v[4:7], v3, s[8:11], 0 offen")
    a("buffer_load_dwordx4 v[8:11], v3, s[8:11], 0 offen offset:16")
    npl = 0
    if pf:
        a("v_readfirstlane_b32 s92, v1")
        a("s_nop 3")
        npl = tail_prefetch(a, 92, 2, pf, 44, 48)
    a(f"s_waitcnt vmcnt({npl})")

    def unpack():
        for i in range(8):
            a(f"v_lshlrev_b32 v{20+2*i}, 16, v{4+i}")
            a(f"v_and_b32 v{21+2*i}, 0xffff0000, v{4+i}")

    def bfly():
        for i in range(6):
            a(f"ds_bpermute_b32 v41, v{12+i}, v40")
            a("s_waitcnt lgkmcnt(0)")
            a("v_add_f32 v40, v40, v41")

    def norm():
        a("v_add_f32 v40, v20, v21")
        for i in range(2, 16):
            a(f"v_add_f32 v40, v40, v{20+i}")
        bfly()
        a("v_mul_f32 v40, 0x3a800000, v40")
        for i in range(16):
            a(f"v_sub_f32 v{20+i}, v{20+i}, v40")
        a("v_mul_f32 v40, v20, v20")
        for i in range(1, 16):
            a(f"v_fmac_f32 v40, v{20+i}, v{20+i}")
        bfly()
        a("v_mov_b32 v42, 0x3727c5ac")
        a("v_fma_f32 v40, v40, v43, v42")
        a("v_rsq_f32 v40, v40")
        a("s_nop 0")
        for i in range(16):
            a(f"v_mul_f32 v{20+i}, v{20+i}, v40")
        for i in range(8):
            a(f"v_cvt_pk_bf16_f32 v{4+i}, v{20+2*i}, v{21+2*i}")

    a("v_mov_b32 v43, 0x3a800000")
    unpack()
    norm()
    if double:
        unpack()
        norm()
    a("buffer_store_dwordx4 v[4:7], v3, s[12:15], 0 offen")
    a("buffer_store_dwordx4 v[8:11], v3, s[12:15], 0 offen offset:16")
    a.label(end)
    a("s_endpgm")
    return dict(name=name, grid=nwg + npf, block=256, lds=0, desc=kernel_desc(name, 56))


def gen_gemm(a, name, N, K, BN, a_off, w_arg, epi, out_arg, out_off, res_arg=None, res_off=0,
             bias_arg=None, BM=128, NSTAGE=3, RA=4, RBN=8, ln=None, a_arg='ws', pf=None):
    M = S
    BK = 64
    NT_M = M // BM
    NT_N = N // BN
    ntiles = NT_M * NT_N
    MT = BM // 2 // 16
    NTW = BN // 2 // 16
    RB = {64: 128, 128: 256, 192: 128, 96: 64, 224: 64, 112: 32}[BN]
    ABYTES = BM * BK * 2
    BBYTES = BK * BN * 2
    STAGE = ABYTES + BBYTES
    PA = ABYTES // 1024 // 4
    PB = BBYTES // 1024 // 4
    assert PA * 4096 == ABYTES and PB * 4096 == BBYTES
    P = PA + PB + (1 if pf else 0)
    NS = K // BK
    lds = STAGE * NSTAGE
    CROW = BN * 4 + 16
    assert BM * CROW <= lds

    vA = list(range(2, 2 + PA))
    vB = list(range(2 + PA, 2 + PA + PB))
    nxt = 2 + PA + PB
    vXb = [nxt, nxt + 1]; nxt += 2
    vWb = list(range(nxt, nxt + NTW)); nxt += NTW
    vXc = [nxt, nxt + 1]; nxt += 2
    vWc = list(range(nxt, nxt + NTW)); nxt += NTW
    vT = list(range(nxt, nxt + 8)); nxt += 8
    nxt = (nxt + 3) // 4 * 4
    FX = [nxt, nxt + 4 * MT]; nxt += 8 * MT
    FW = [nxt, nxt + 4 * NTW]; nxt += 8 * NTW
    ACC = nxt; nxt += 4 * MT * NTW
    nvgpr = nxt
    assert nvgpr <= 256

    def acc(nt, mt):
        return ACC + 4 * (nt * MT + mt)

    def stamp(i):
        if 'stamp' in EXP:
            a(f"s_memtime s[{60+2*i}:{61+2*i}]")
            if i >= 6: a("s_waitcnt lgkmcnt(0)")

    def stamp_out():
        if 'stamp' not in EXP: return
        a("s_waitcnt lgkmcnt(0)")
        srd(a, 80, 24, 200 * MB, 1 << 20)
        a("s_lshl_b32 s3, s2, 3")
        a("s_add_u32 s3, s3, s49")
        a("s_lshl_b32 s3, s3, 6")
        a("v_mov_b32 v2, s3")
        for i in range(8):
            a(f"v_mov_b32 v4, s{60+2*i}")
            a(f"v_mov_b32 v5, s{61+2*i}")
            a(f"buffer_store_dwordx2 v[4:5], v2, s[80:83], 0 offen offset:{8*i}")
            a("s_nop 1")

    kernel_header(a, name)
    end = a.newlabel("L_end")
    stamp(0)
    lab_loader = a.newlabel("L_loader")
    lab_store = a.newlabel("L_store")
    a(f"s_cmp_ge_u32 s2, {ntiles}")
    a(f"s_cbranch_scc1 {end}")
    a(f"s_load_dwordx2 s[24:25], s[0:1], {ARG['ws']}")
    a(f"s_load_dwordx2 s[58:59], s[0:1], {ARG[a_arg]}")
    a(f"s_load_dwordx2 s[26:27], s[0:1], {ARG[w_arg]}")
    a(f"s_load_dwordx2 s[34:35], s[0:1], {ARG[out_arg]}")
    if res_arg:
        a(f"s_load_dwordx2 s[36:37], s[0:1], {ARG[res_arg]}")
    if bias_arg:
        a(f"s_load_dwordx2 s[38:39], s[0:1], {ARG[bias_arg]}")
    assert ntiles == 256 and RA * RBN == 32 and NT_M % RA == 0 and NT_N % RBN == 0
    XB = NT_N // RBN
    a("s_and_b32 s3, s2, 7")
    a("s_lshr_b32 s46, s2, 3")
    a(f"s_lshr_b32 s28, s3, {int(math.log2(XB))}")
    a(f"s_and_b32 s29, s3, {XB-1}")
    a(f"s_mul_i32 s28, s28, {RA}")
    a(f"s_mul_i32 s29, s29, {RBN}")
    a(f"s_lshr_b32 s3, s46, {int(math.log2(RBN))}")
    a("s_add_u32 s28, s28, s3")
    a(f"s_and_b32 s3, s46, {RBN-1}")
    a("s_add_u32 s29, s29, s3")
    a("v_and_b32 v1, 63, v0")
    a(f"v_lshrrev_b32 {v(vT[0])}, 6, v0")
    a("s_nop 0")
    a(f"v_readfirstlane_b32 s49, {v(vT[0])}")
    a("s_nop 3")
    a("s_and_b32 s30, s49, 3")
    a("s_lshr_b32 s44, s30, 1")
    a("s_and_b32 s45, s30, 1")
    a("s_waitcnt lgkmcnt(0)")
    srd(a, 4, 58, a_off, M * K * 2)
    srd(a, 8, 26, 0, K * N * 2)
    osz = M * N * 2
    srd(a, 12, 34, out_off, osz)
    if res_arg:
        srd(a, 16, 36, res_off, M * N * 2)
    if bias_arg:
        srd(a, 20, 38, 0, N * 2)
    t0, t1, t2, t3 = vT[0], vT[1], vT[2], vT[3]
    TABLE = STAGE * (NSTAGE - 1)
    SD = 128

    def stats_load():
        a(f"v_lshrrev_b32 {v(t0)}, 3, v1")
        a("s_lshl_b32 s3, s49, 4")
        a(f"v_add_u32 {v(t0)}, s3, {v(t0)}")
        a(f"s_mul_i32 s3, s28, {BM}")
        a(f"v_add_u32 {v(t1)}, s3, {v(t0)}")
        a(f"v_mul_u32_u24 {v(t1)}, {K*2}, {v(t1)}")
        a(f"v_and_b32 {v(t2)}, 7, v1")
        a(f"v_lshl_add_u32 {v(t1)}, {v(t2)}, 4, {v(t1)}")
        a(f"v_add_u32 {v(t2)}, {8*K*2}, {v(t1)}")
        for ps, vo in enumerate((t1, t2)):
            for j in range(16):
                a(f"buffer_load_dwordx4 {v(SD+64*ps+4*j,4)}, {v(vo)}, s[4:7], 0 offen offset:{j*128}")

    def stats_compute():
        acc_ = [vT[4], vT[5], vT[6], vT[7]]
        a(f"v_mov_b32 {v(t3)}, 0x3f803f80")
        for r in acc_:
            a(f"v_mov_b32 {v(r)}, 0")
        for j in range(64):
            for ps in range(2):
                d = v(SD + 64 * ps + j)
                a(f"v_dot2_f32_bf16 {v(acc_[2*ps])}, {d}, {v(t3)}, {v(acc_[2*ps])}")
                a(f"v_dot2_f32_bf16 {v(acc_[2*ps+1])}, {d}, {d}, {v(acc_[2*ps+1])}")
        a("s_nop 3")
        for mode in ("quad_perm:[1,0,3,2]", "quad_perm:[2,3,0,1]", "row_half_mirror"):
            for k_, r in enumerate(acc_):
                a(f"v_add_f32_dpp {v(SD+k_)}, {v(r)}, {v(r)} {mode} row_mask:0xf bank_mask:0xf")
            a("s_nop 1")
            for k_, r in enumerate(acc_):
                a(f"v_mov_b32 {v(r)}, {v(SD+k_)}")
            a("s_nop 1")
        for ps in range(2):
            sm, sq = acc_[2 * ps], acc_[2 * ps + 1]
            a(f"v_mul_f32 {v(sm)}, {hex_f32(1.0/K)}, {v(sm)}")
            a(f"v_mul_f32 {v(sq)}, {hex_f32(1.0/K)}, {v(sq)}")
            a(f"v_fma_f32 {v(sq)}, -{v(sm)}, {v(sm)}, {v(sq)}")
            a(f"v_max_f32 {v(sq)}, 0, {v(sq)}")
            a(f"v_add_f32 {v(SD)}, {hex_f32(1e-5)}, {v(sq)}")
            a(f"v_rsq_f32 {v(SD)}, {v(SD)}")
            a("s_nop 0")
            if ln == 'double':
                a(f"v_mul_f32 {v(SD+1)}, {v(SD)}, {v(SD)}")
                a(f"v_mul_f32 {v(SD+1)}, {v(SD+1)}, {v(sq)}")
                a(f"v_add_f32 {v(SD+1)}, {hex_f32(1e-5)}, {v(SD+1)}")
                a(f"v_rsq_f32 {v(SD+1)}, {v(SD+1)}")
                a("s_nop 0")
                a(f"v_mul_f32 {v(SD)}, {v(SD)}, {v(SD+1)}")
            a(f"v_mul_f32 {v(SD+1)}, {v(sm)}, {v(SD)}")
            a(f"v_sub_f32 {v(SD+1)}, 0, {v(SD+1)}")
            a(f"v_lshlrev_b32 {v(SD+2)}, 3, {v(t0)}")
            a(f"ds_write_b64 {v(SD+2)}, {v(SD,2)} offset:{TABLE % 65536 + 64*ps}" if TABLE < 65536 else "s_nop 0")
            if TABLE >= 65536:
                a(f"v_add_u32 {v(SD+2)}, {TABLE}, {v(SD+2)}")
                a(f"ds_write_b64 {v(SD+2)}, {v(SD,2)} offset:{64*ps}")
        a("s_waitcnt lgkmcnt(0)")
        a("s_barrier")

    a("s_cmp_ge_u32 s49, 4")
    a(f"s_cbranch_scc1 {lab_loader}")
    if ln:
        stats_load()
        a("s_waitcnt vmcnt(0)")
        stats_compute()

    a(f"v_and_b32 {v(t0)}, 15, v1")
    a("s_lshl_b32 s3, s44, 6")
    a(f"v_add_u32 {v(t0)}, s3, {v(t0)}")
    a(f"v_lshlrev_b32 {v(t0)}, 7, {v(t0)}")
    a(f"v_lshrrev_b32 {v(t1)}, 4, v1")
    a(f"v_bfe_u32 {v(t2)}, v1, 1, 3")
    a(f"v_xor_b32 {v(t3)}, {v(t1)}, {v(t2)}")
    a(f"v_lshl_add_u32 {v(vXb[0])}, {v(t3)}, 4, {v(t0)}")
    a(f"v_xor_b32 {v(t3)}, 4, {v(t3)}")
    a(f"v_lshl_add_u32 {v(vXb[1])}, {v(t3)}, 4, {v(t0)}")
    PPR = RB // 32
    a(f"v_bfe_u32 {v(t0)}, v1, 2, 2")
    a(f"v_lshl_add_u32 {v(t2)}, {v(t1)}, 3, {v(t0)}")
    if RB == 256:
        a(f"v_and_b32 {v(t3)}, 1, {v(t1)}")
        a(f"v_lshl_add_u32 {v(t3)}, {v(t3)}, 2, {v(t0)}")
    elif RB == 128:
        a(f"v_and_b32 {v(t3)}, 1, {v(t1)}")
        a(f"v_lshrrev_b32 {v(t0)}, 1, {v(t0)}")
        a(f"v_lshl_add_u32 {v(t3)}, {v(t3)}, 1, {v(t0)}")
    elif RB == 64:
        a(f"v_and_b32 {v(t3)}, 1, {v(t1)}")
    else:
        a(f"v_mov_b32 {v(t3)}, 0")
    a(f"v_mul_u32_u24 {v(t2)}, {RB}, {v(t2)}")
    a(f"v_and_b32 {v(t0)}, 3, v1")
    a(f"v_lshl_add_u32 {v(t2)}, {v(t0)}, 3, {v(t2)}")
    a(f"v_add_u32 {v(t2)}, {ABYTES}, {v(t2)}")
    a(f"s_mul_i32 s3, s45, {NTW}")
    lg_ppr = int(math.log2(PPR))
    for nt in range(NTW):
        a(f"s_add_u32 s46, s3, {nt}")
        if PPR > 1:
            a(f"s_lshr_b32 s47, s46, {lg_ppr}")
            a(f"s_and_b32 s46, s46, {PPR-1}")
        else:
            a("s_mov_b32 s47, s46")
            a("s_mov_b32 s46, 0")
        a(f"s_mul_i32 s47, s47, {64*RB}")
        a(f"v_xor_b32 {v(t0)}, s46, {v(t3)}")
        a(f"v_lshl_add_u32 {v(t0)}, {v(t0)}, 5, {v(t2)}")
        a(f"v_add_u32 {v(vWb[nt])}, s47, {v(t0)}")
    for i in range(4 * MT * NTW):
        a(f"v_mov_b32 v{ACC+i}, 0")
    a("s_mov_b32 s42, 0")
    BIAS = vA[0] if False else None

    def set_cur():
        for kk in range(2):
            a(f"v_add_u32 {v(vXc[kk])}, s42, {v(vXb[kk])}")
        for nt in range(NTW):
            a(f"v_add_u32 {v(vWc[nt])}, s42, {v(vWb[nt])}")
        a(f"s_add_u32 s42, s42, {STAGE}")
        a(f"s_cmp_ge_u32 s42, {STAGE*NSTAGE}")
        a("s_cselect_b32 s42, 0, s42")

    def read_list(kk, f):
        if 'noreads' in EXP: return []
        L = []
        for nt in range(NTW):
            if nt < MT:
                L.append(f"ds_read_b128 {v(FX[f]+4*nt,4)}, {v(vXc[kk])} offset:{nt*2048}")
            for rd in range(2):
                L.append(f"ds_read_b64_tr_b16 {v(FW[f]+4*nt+2*rd,2)}, {v(vWc[nt])} offset:{kk*32*RB+rd*4*RB}")
        for mt in range(NTW, MT):
            L.append(f"ds_read_b128 {v(FX[f]+4*mt,4)}, {v(vXc[kk])} offset:{mt*2048}")
        return L

    def mfma_list(f):
        if 'nomfma' in EXP: return []
        L = []
        for nt in range(NTW):
            for mt in range(MT):
                L.append(f"v_mfma_f32_16x16x32_bf16 {v(acc(nt,mt),4)}, {v(FW[f]+4*nt,4)}, {v(FX[f]+4*mt,4)}, {v(acc(nt,mt),4)}")
        return L

    def reads(kk, f):
        for x in read_list(kk, f): a(x)

    def mfmas(f):
        for x in mfma_list(f): a(x)

    def inter(kk, fr, fm):
        R = read_list(kk, fr); Mm = mfma_list(fm)
        n = max(len(R), len(Mm))
        for i in range(n):
            if i < len(Mm): a(Mm[i])
            if i < len(R): a(R[i])

    stamp(1)
    a("s_barrier")
    stamp(2)
    set_cur()
    reads(0, 0)
    a("s_waitcnt lgkmcnt(0)")
    inter(1, 1, 0)
    a("s_waitcnt lgkmcnt(0)")
    a(f"s_mov_b32 s48, {NS-1}")
    loop = a.newlabel("L_cloop")
    a.label(loop)
    a("s_barrier")
    set_cur()
    inter(0, 0, 1)
    a("s_waitcnt lgkmcnt(0)")
    inter(1, 1, 0)
    a("s_waitcnt lgkmcnt(0)")
    a("s_sub_u32 s48, s48, 1")
    a("s_cmp_lg_u32 s48, 0")
    a(f"s_cbranch_scc1 {loop}")
    stamp(3)
    mfmas(1)
    a("s_barrier")
    vc = vT[0]
    a(f"v_and_b32 {v(t2)}, 15, v1")
    a("s_lshl_b32 s3, s44, 6")
    a(f"v_add_u32 {v(t2)}, s3, {v(t2)}")
    a(f"v_mul_u32_u24 {v(t2)}, {CROW}, {v(t2)}")
    a(f"v_lshrrev_b32 {v(t3)}, 4, v1")
    a(f"v_lshlrev_b32 {v(t3)}, 4, {v(t3)}")
    a(f"s_mul_i32 s3, s45, {BN*2}")
    a(f"v_add_u32 {v(t3)}, s3, {v(t3)}")
    a(f"v_add_u32 {v(vc)}, {v(t2)}, {v(t3)}")
    a("s_nop 4")
    for nt in range(NTW):
        for mt in range(MT):
            a(f"ds_write_b128 {v(vc)}, {v(acc(nt,mt),4)} offset:{mt*16*CROW + nt*64}")
    a("s_waitcnt lgkmcnt(0)")
    stamp(4)
    a("s_barrier")
    a(f"s_branch {lab_store}")

    a.label(lab_loader)
    LW = 40; LT = 44; LS = 48
    LX = 64
    PFV = 39; PFD = 124
    LD = 72
    assert (not ln) or (vT[7] < 40 and LD + 16 * (NSTAGE - 1) <= 128)
    a(f"s_mul_i32 s3, s30, {PA*8}")
    a(f"v_lshrrev_b32 {v(t0)}, 3, v1")
    a(f"v_add_u32 {v(t0)}, s3, {v(t0)}")
    a(f"s_mul_i32 s3, s28, {BM}")
    for i in range(PA):
        a(f"v_add_u32 {v(t1)}, {8*i}, {v(t0)}")
        a(f"v_lshrrev_b32 {v(t2)}, 1, {v(t1)}")
        a(f"v_and_b32 {v(t2)}, 7, {v(t2)}")
        a(f"v_and_b32 {v(t3)}, 7, v1")
        a(f"v_xor_b32 {v(t2)}, {v(t2)}, {v(t3)}")
        if ln:
            a(f"v_lshlrev_b32 {v(LW+i)}, 7, {v(t1)}")
            a(f"v_lshl_add_u32 {v(LW+i)}, {v(t2)}, 4, {v(LW+i)}")
            a(f"v_lshlrev_b32 {v(LT+i)}, 3, {v(t1)}")
            a(f"v_add_u32 {v(LT+i)}, {TABLE}, {v(LT+i)}")
            a(f"v_mov_b32 {v(t2)}, {v(t3)}")
        a(f"v_add_u32 {v(t1)}, s3, {v(t1)}")
        a(f"v_mul_u32_u24 {v(t1)}, {K*2}, {v(t1)}")
        a(f"v_lshl_add_u32 {v(vA[i])}, {v(t2)}, 4, {v(t1)}")
    CPR = RB // 16
    lg_cpr = int(math.log2(CPR))
    RPP = 1024 // RB
    PPB = RB // 16
    lg_ppb = int(math.log2(PPB))
    a(f"s_mul_i32 s3, s29, {BN*2}")
    for i in range(PB):
        a(f"s_mul_i32 s46, s30, {PB}")
        a(f"s_add_u32 s46, s46, {i}")
        a(f"s_lshr_b32 s47, s46, {lg_ppb}")
        a(f"s_and_b32 s46, s46, {PPB-1}")
        a(f"s_mul_i32 s46, s46, {RPP}")
        a(f"s_mul_i32 s47, s47, {RB}")
        a("s_add_u32 s47, s47, s3")
        a(f"v_lshrrev_b32 {v(t0)}, {lg_cpr}, v1")
        a(f"v_add_u32 {v(t0)}, s46, {v(t0)}")
        a(f"v_and_b32 {v(t1)}, {CPR-1}, v1")
        if RB == 256:
            a(f"v_and_b32 {v(t2)}, 3, {v(t0)}")
            a(f"v_bfe_u32 {v(t3)}, {v(t0)}, 3, 1")
            a(f"v_lshl_add_u32 {v(t2)}, {v(t3)}, 2, {v(t2)}")
        elif RB == 128:
            a(f"v_bfe_u32 {v(t2)}, {v(t0)}, 1, 1")
            a(f"v_bfe_u32 {v(t3)}, {v(t0)}, 3, 1")
            a(f"v_lshl_add_u32 {v(t2)}, {v(t3)}, 1, {v(t2)}")
        elif RB == 64:
            a(f"v_bfe_u32 {v(t2)}, {v(t0)}, 3, 1")
        else:
            a(f"v_mov_b32 {v(t2)}, 0")
        a(f"v_lshlrev_b32 {v(t2)}, 1, {v(t2)}")
        a(f"v_xor_b32 {v(t1)}, {v(t1)}, {v(t2)}")
        a(f"v_mul_u32_u24 {v(t0)}, {N*2}, {v(t0)}")
        a(f"v_lshl_add_u32 {v(t0)}, {v(t1)}, 4, {v(t0)}")
        a(f"v_add_u32 {v(vB[i])}, s47, {v(t0)}")
    a(f"s_mul_i32 s31, s30, {PA*1024}")
    a(f"s_mul_i32 s32, s30, {PB*1024}")
    a(f"s_add_u32 s32, s32, {ABYTES}")
    a("s_mov_b32 s40, 0")
    a("s_mov_b32 s41, 0")
    a("s_mov_b32 s43, 0")
    if pf:
        (pa, pbytes), (pb, pbytes2) = pf
        assert pbytes == pbytes2 and pbytes % (1 << 20) == 0 and 2 * pbytes <= NS << 20
        a(f"s_load_dwordx2 s[84:85], s[0:1], {ARG[pa]}")
        a(f"s_load_dwordx2 s[90:91], s[0:1], {ARG[pb]}")
        a("s_lshl_b32 s3, s2, 2")
        a("s_add_u32 s3, s3, s30")
        a("s_lshl_b32 s3, s3, 10")
        a(f"v_lshlrev_b32 {v(PFV)}, 4, v1")
        a(f"v_add_u32 {v(PFV)}, s3, {v(PFV)}")
        a("s_waitcnt lgkmcnt(0)")
        srd(a, 84, 84, 0, pbytes)
        srd(a, 88, 90, 0, pbytes)
        a("s_mov_b32 s92, 0")
        a("s_mov_b32 s93, 0")

    def dma(stage=None):
        if 'nodma' in EXP: return
        if not ln:
            a("s_add_u32 s33, s43, s31")
            for i in range(PA):
                a(f"s_add_u32 m0, s33, {i*1024}")
                a("s_nop 0")
                a(f"buffer_load_dwordx4 {v(vA[i])}, s[4:7], s40 offen lds")
        else:
            rs = LD + 16 * (stage % (NSTAGE - 1))
            for i in range(PA):
                a(f"buffer_load_dwordx4 {v(rs+4*i,4)}, {v(vA[i])}, s[4:7], s40 offen")
        a("s_add_u32 s33, s43, s32")
        for i in range(PB):
            a(f"s_add_u32 m0, s33, {i*1024}")
            a("s_nop 0")
            a(f"buffer_load_dwordx4 {v(vB[i])}, s[8:11], s41 offen lds")
        if pf:
            a(f"buffer_load_dwordx4 {v(PFD,4)}, {v(PFV)}, s[84:87], s92 offen")
            a(f"s_add_u32 s92, s92, {1<<20}")
            a(f"s_cmp_eq_u32 s92, {pf[0][1]}")
            a("s_cselect_b32 s84, s88, s84")
            a("s_cselect_b32 s85, s89, s85")
            a("s_cselect_b32 s3, 1, 0")
            a("s_cmp_eq_u32 s93, 0")
            a("s_cselect_b32 s3, s3, 0")
            a("s_cmp_eq_u32 s3, 1")
            a("s_cselect_b32 s92, 0, s92")
            a("s_cselect_b32 s93, 1, s93")
        a(f"s_add_u32 s40, s40, {BK*2}")
        a(f"s_add_u32 s41, s41, {BK*N*2}")
        a(f"s_add_u32 s43, s43, {STAGE}")
        a(f"s_cmp_ge_u32 s43, {STAGE*NSTAGE}")
        a("s_cselect_b32 s43, 0, s43")

    def norm_write(stage):
        rs = LD + 16 * (stage % (NSTAGE - 1))
        boff = STAGE * (stage % NSTAGE)
        for i in range(PA):
            for j in range(4):
                d = rs + 4 * i + j
                a(f"v_lshlrev_b32 {v(LX+2*j)}, 16, {v(d)}")
                a(f"v_and_b32 {v(LX+2*j+1)}, 0xffff0000, {v(d)}")
            for j in range(4):
                a(f"v_pk_fma_f32 {v(LX+2*j,2)}, {v(LX+2*j,2)}, {v(LS+4*i,2)}, {v(LS+4*i+2,2)}")
            for j in range(4):
                a(f"v_cvt_pk_bf16_f32 {v(rs+4*i+j)}, {v(LX+2*j)}, {v(LX+2*j+1)}")
            a(f"v_add_u32 {v(LX)}, {boff}, {v(LW+i)}")
            a(f"ds_write_b128 {v(LX)}, {v(rs+4*i,4)}")

    stamp(1)
    if not ln:
        for _ in range(NSTAGE - 1):
            dma()
        stamp(2)
        nloop = NS - NSTAGE + 1
        a(f"s_mov_b32 s48, {nloop}")
        lloop = a.newlabel("L_lloop")
        a.label(lloop)
        a(f"s_waitcnt vmcnt({(NSTAGE-2)*P})")
        a("s_barrier")
        dma()
        a("s_sub_u32 s48, s48, 1")
        a("s_cmp_lg_u32 s48, 0")
        a(f"s_cbranch_scc1 {lloop}")
        for j in range(NS - NSTAGE + 1, NS):
            a(f"s_waitcnt vmcnt({(NS-1-j)*P})")
            a("s_barrier")
    else:
        for st in range(NSTAGE - 1):
            dma(st)
        stats_load()
        a("s_waitcnt vmcnt(0)")
        stats_compute()
        stamp(2)
        for i in range(PA):
            a(f"ds_read_b64 {v(LX+2*i,2)}, {v(LT+i)}")
        a("s_waitcnt lgkmcnt(0)")
        for i in range(PA):
            a(f"v_mov_b32 {v(LS+4*i)}, {v(LX+2*i)}")
            a(f"v_mov_b32 {v(LS+4*i+1)}, {v(LX+2*i)}")
            a(f"v_mov_b32 {v(LS+4*i+2)}, {v(LX+2*i+1)}")
            a(f"v_mov_b32 {v(LS+4*i+3)}, {v(LX+2*i+1)}")
        norm_write(0)
        a("s_waitcnt lgkmcnt(0)")
        for j in range(NS):
            a("s_barrier")
            if j + NSTAGE - 1 < NS:
                dma(j + NSTAGE - 1)
            if j + 1 < NS:
                last_issued = min(j + NSTAGE - 1, NS - 1)
                a(f"s_waitcnt vmcnt({(last_issued - (j + 1)) * P})")
                norm_write(j + 1)
                a("s_waitcnt lgkmcnt(0)")
    stamp(3)
    a("s_barrier")
    stamp(4)
    a("s_barrier")

    a.label(lab_store)
    CPRW = BN // 8
    NIT = BM * CPRW // 512
    assert NIT * 512 == BM * CPRW
    magic = ((1 << 32) + CPRW - 1) // CPRW
    a(f"s_mov_b32 s46, {magic}")
    a(f"s_mul_i32 s3, s49, {NIT*64}")
    a(f"v_add_u32 {v(t0)}, s3, v1")
    a(f"s_mul_i32 s3, s28, {BM}")
    a(f"s_mul_i32 s47, s29, {BN*2}")
    R0 = (vT[7] + 4) // 4 * 4
    RR = R0 + 8 * NIT
    RBI = RR + 4 * NIT
    OFF = RBI + 4 * NIT
    GT = (OFF + NIT + 3) // 4 * 4
    assert GT + 10 <= 256
    for it in range(NIT):
        a(f"v_add_u32 {v(t1)}, {it*64}, {v(t0)}")
        a(f"v_mul_hi_u32 {v(t2)}, {v(t1)}, s46")
        a(f"v_mul_u32_u24 {v(t3)}, {CPRW}, {v(t2)}")
        a(f"v_sub_u32 {v(t3)}, {v(t1)}, {v(t3)}")
        a(f"v_mul_u32_u24 {v(t1)}, {CROW}, {v(t2)}")
        a(f"v_lshl_add_u32 {v(t1)}, {v(t3)}, 5, {v(t1)}")
        a(f"ds_read_b128 {v(R0+8*it,4)}, {v(t1)}")
        a(f"ds_read_b128 {v(R0+8*it+4,4)}, {v(t1)} offset:16")
        a(f"v_add_u32 {v(t2)}, s3, {v(t2)}")
        a(f"v_mul_u32_u24 {v(t2)}, {N*2}, {v(t2)}")
        a(f"v_lshlrev_b32 {v(t3)}, 4, {v(t3)}")
        a(f"v_add_u32 {v(t3)}, s47, {v(t3)}")
        a(f"v_add_u32 {v(OFF+it)}, {v(t3)}, {v(t2)}")
        if res_arg:
            a(f"buffer_load_dwordx4 {v(RR+4*it,4)}, {v(OFF+it)}, s[16:19], 0 offen")
        if bias_arg:
            a(f"buffer_load_dwordx4 {v(RBI+4*it,4)}, {v(t3)}, s[20:23], 0 offen")
    if epi == 'gelu':
        import struct
        c2 = 2 * math.log2(math.e)
        k1 = struct.unpack("<I", struct.pack("<f", 0.7978845608 * c2))[0]
        k3 = struct.unpack("<I", struct.pack("<f", 0.7978845608 * 0.044715 * c2))[0]
        a(f"s_mov_b32 s52, {k3}"); a(f"s_mov_b32 s53, {k3}")
        a(f"v_mov_b32 {v(GT+8)}, {k1}"); a(f"v_mov_b32 {v(GT+9)}, {k1}")
        a("s_mov_b32 s56, 1.0"); a("s_mov_b32 s57, 1.0")
    a("s_waitcnt vmcnt(0) lgkmcnt(0)")
    stamp(5)
    for it in range(NIT):
        c0 = R0 + 8 * it
        if bias_arg:
            for j in range(4):
                b = RBI + 4 * it + j
                a(f"v_lshlrev_b32 {v(GT+2*j)}, 16, {v(b)}")
                a(f"v_and_b32 {v(GT+2*j+1)}, 0xffff0000, {v(b)}")
            for j in range(4):
                a(f"v_pk_add_f32 {v(c0+2*j,2)}, {v(c0+2*j,2)}, {v(GT+2*j,2)}")
        if epi == 'gelu':
            for j in range(4):
                a(f"v_pk_mul_f32 {v(GT+2*j,2)}, {v(c0+2*j,2)}, {v(c0+2*j,2)}")
            for j in range(4):
                a(f"v_pk_fma_f32 {v(GT+2*j,2)}, {v(GT+2*j,2)}, s[52:53], {v(GT+8,2)}")
            for j in range(4):
                a(f"v_pk_mul_f32 {v(GT+2*j,2)}, {v(GT+2*j,2)}, {v(c0+2*j,2)}")
            for r in range(8):
                a(f"v_exp_f32 {v(GT+r)}, {v(GT+r)}")
            a("s_nop 0")
            for j in range(4):
                a(f"v_pk_add_f32 {v(GT+2*j,2)}, {v(GT+2*j,2)}, s[56:57]")
            for r in range(8):
                a(f"v_rcp_f32 {v(GT+r)}, {v(GT+r)}")
            a("s_nop 0")
            for j in range(4):
                cc = v(c0 + 2 * j, 2)
                a(f"v_pk_fma_f32 {cc}, {cc}, {v(GT+2*j,2)}, {cc} neg_lo:[1,0,0] neg_hi:[1,0,0]")
        for j in range(4):
            a(f"v_cvt_pk_bf16_f32 {v(c0+j)}, {v(c0+2*j)}, {v(c0+2*j+1)}")
        if res_arg:
            for j in range(4):
                d = c0 + j
                r = RR + 4 * it + j
                a(f"v_lshlrev_b32 {v(GT)}, 16, {v(d)}")
                a(f"v_lshlrev_b32 {v(GT+1)}, 16, {v(r)}")
                a(f"v_and_b32 {v(GT+2)}, 0xffff0000, {v(d)}")
                a(f"v_and_b32 {v(GT+3)}, 0xffff0000, {v(r)}")
                a(f"v_add_f32 {v(GT)}, {v(GT)}, {v(GT+1)}")
                a(f"v_add_f32 {v(GT+2)}, {v(GT+2)}, {v(GT+3)}")
                a(f"v_cvt_pk_bf16_f32 {v(d)}, {v(GT)}, {v(GT+2)}")
        a(f"buffer_store_dwordx4 {v(c0,4)}, {v(OFF+it)}, s[12:15], 0 offen")
    stamp(6)
    a("s_waitcnt vmcnt(0)")
    stamp(7)
    stamp_out()
    a.label(end)
    a("s_endpgm")
    return dict(name=name, grid=ntiles, block=512, lds=lds, desc=kernel_desc(name, 256 if ln else max(nvgpr, GT + 10)))


def gen_attn(a, name, pf=None):
    import struct
    NQB = S // 32
    ntask = H * NQB
    nwg = ntask // 4
    QKV_ROW = 3 * D * 2
    VLDS = 288 * 64
    lds = 4 * VLDS
    kernel_header(a, name)
    end = a.newlabel("L_end")
    npf = 0
    a(f"s_cmp_ge_u32 s2, {nwg}")
    a(f"s_cbranch_scc1 {end}")
    a(f"s_load_dwordx2 s[24:25], s[0:1], {ARG['ws']}")
    a("v_and_b32 v1, 63, v0")
    a("v_lshrrev_b32 v2, 6, v0")
    a("s_nop 0")
    a("v_readfirstlane_b32 s30, v2")
    a("s_nop 3")
    a("s_lshl_b32 s3, s2, 2")
    a("s_add_u32 s3, s3, s30")
    a("s_mov_b32 s92, s3")
    a("s_and_b32 s28, s3, 31")
    a("s_lshr_b32 s29, s3, 5")
    a("s_lshl_b32 s31, s29, 5")
    a("s_sub_u32 s32, s31, 256")
    a("s_lshl_b32 s33, s28, 6")
    a(f"s_add_u32 s35, s33, {2*D*2}")
    a("v_and_b32 v2, 31, v1")
    a("v_lshrrev_b32 v3, 5, v1")
    a("v_add_u32 v4, s31, v2")
    a(f"v_mul_u32_u24 v4, {QKV_ROW}, v4")
    a("v_lshl_add_u32 v4, v3, 4, v4")
    a("v_add_u32 v4, s33, v4")
    a("s_waitcnt lgkmcnt(0)")
    srd(a, 4, 24, WS_QKV, S * 3 * D * 2)
    srd(a, 8, 24, WS_O, S * D * 2)
    a("buffer_load_dwordx4 v[8:11], v4, s[4:7], 0 offen")
    a("buffer_load_dwordx4 v[12:15], v4, s[4:7], 0 offen offset:32")
    KF = 16
    for t in range(9):
        a(f"v_add_u32 v7, {32*t}, v2")
        a("v_add_u32 v7, s32, v7")
        a("v_max_i32 v7, 0, v7")
        a(f"v_mul_u32_u24 v7, {QKV_ROW}, v7")
        a("v_lshl_add_u32 v7, v3, 4, v7")
        a("v_add_u32 v7, s33, v7")
        a(f"buffer_load_dwordx4 {v(KF+8*t,4)}, v7, s[4:7], 0 offen offset:{D*2}")
        a(f"buffer_load_dwordx4 {v(KF+8*t+4,4)}, v7, s[4:7], 0 offen offset:{D*2+32}")
    a("v_lshrrev_b32 v5, 2, v1")
    a("v_and_b32 v6, 3, v1")
    a(f"s_mul_i32 s34, s30, {VLDS}")
    for p in range(18):
        a(f"v_add_u32 v7, {16*p}, v5")
        a("v_add_u32 v7, s32, v7")
        a("v_max_i32 v7, 0, v7")
        a(f"v_mul_u32_u24 v7, {QKV_ROW}, v7")
        a("v_lshl_add_u32 v7, v6, 4, v7")
        a("v_add_u32 v7, s35, v7")
        a(f"s_add_u32 m0, s34, {p*1024}")
        a("s_nop 0")
        a(f"buffer_load_dwordx4 v7, s[4:7], 0 offen lds")
    SC = 96
    npl = tail_prefetch(a, 92, 1, pf, 7, 240) if pf else 0
    a("v_mov_b32 v7, 0xf149f2ca")
    for t in range(9):
        a(f"s_waitcnt vmcnt({npl + 18 + 2*(8-t)})")
        if t < 8:
            lab_inv = a.newlabel("L_inv"); lab_done = a.newlabel("L_tdone")
            a(f"s_add_i32 s3, s32, {32*t}")
            a("s_cmp_lt_i32 s3, 0")
            a(f"s_cbranch_scc1 {lab_inv}")
        a(f"v_mfma_f32_32x32x16_bf16 {v(SC+16*t,16)}, {v(KF+8*t,4)}, v[8:11], 0")
        a(f"v_mfma_f32_32x32x16_bf16 {v(SC+16*t,16)}, {v(KF+8*t+4,4)}, v[12:15], {v(SC+16*t,16)}")
        if t < 8:
            a(f"s_branch {lab_done}")
            a.label(lab_inv)
            for r in range(16):
                a(f"v_mov_b32 v{SC+16*t+r}, v7")
            a.label(lab_done)
    a("v_lshlrev_b32 v5, 2, v3")
    a("v_sub_u32 v5, v2, v5")
    a("s_nop 7")
    a("s_nop 7")
    for r in range(16):
        c = (r & 3) + 8 * (r >> 2)
        a(f"v_cmp_gt_i32 vcc, {c}, v5")
        a(f"v_cmp_le_i32 s[36:37], {c}, v5")
        a("s_nop 0")
        a(f"v_cndmask_b32 v{SC+r}, v7, v{SC+r}, vcc")
        a(f"v_cndmask_b32 v{SC+128+r}, v7, v{SC+128+r}, s[36:37]")
    a(f"v_max3_f32 v4, v{SC}, v{SC+1}, v{SC+2}")
    a(f"v_max3_f32 v6, v{SC+3}, v{SC+4}, v{SC+5}")
    for i in range(6, 144, 4):
        a(f"v_max3_f32 v4, v4, v{SC+i}, v{SC+i+1}")
        if i + 3 < 144:
            a(f"v_max3_f32 v6, v6, v{SC+i+2}, v{SC+i+3}")
    a("v_max_f32 v4, v4, v6")
    a("v_xor_b32 v88, 32, v1")
    a("v_lshlrev_b32 v88, 2, v88")
    a("ds_bpermute_b32 v89, v88, v4")
    a("s_waitcnt lgkmcnt(0)")
    a("v_max_f32 v4, v4, v89")
    sc = (DH ** -0.5) * math.log2(math.e)
    sc_bits = struct.unpack("<I", struct.pack("<f", sc))[0]
    a(f"s_mov_b32 s38, {sc_bits}")
    a("v_mul_f32 v4, s38, v4")
    sums = [5, 6, 90, 91]
    for sreg in sums:
        a(f"v_mov_b32 v{sreg}, 0")
    for g in range(0, 144, 4):
        for j in range(4):
            a(f"v_fma_f32 v{SC+g+j}, v{SC+g+j}, s38, -v4")
        for j in range(4):
            a(f"v_exp_f32 v{SC+g+j}, v{SC+g+j}")
        if g >= 4:
            for j in range(4):
                a(f"v_add_f32 v{sums[j]}, v{sums[j]}, v{SC+g-4+j}")
            tt, jj = divmod(g - 4, 16)
            a(f"v_cvt_pk_bf16_f32 v{KF+8*tt+jj//2}, v{SC+g-4}, v{SC+g-3}")
            a(f"v_cvt_pk_bf16_f32 v{KF+8*tt+jj//2+1}, v{SC+g-2}, v{SC+g-1}")
    a("s_nop 0")
    g = 144
    for j in range(4):
        a(f"v_add_f32 v{sums[j]}, v{sums[j]}, v{SC+g-4+j}")
    tt, jj = divmod(g - 4, 16)
    a(f"v_cvt_pk_bf16_f32 v{KF+8*tt+jj//2}, v{SC+g-4}, v{SC+g-3}")
    a(f"v_cvt_pk_bf16_f32 v{KF+8*tt+jj//2+1}, v{SC+g-2}, v{SC+g-1}")
    a("v_add_f32 v5, v5, v6")
    a("v_add_f32 v90, v90, v91")
    a("v_add_f32 v5, v5, v90")
    a("ds_bpermute_b32 v89, v88, v5")
    a("v_bfe_u32 v6, v1, 2, 2")
    a("v_lshl_add_u32 v6, v3, 2, v6")
    a("v_lshlrev_b32 v6, 6, v6")
    a("v_bfe_u32 v7, v1, 4, 1")
    a("v_lshl_add_u32 v6, v7, 5, v6")
    a("v_and_b32 v7, 3, v1")
    a("v_lshl_add_u32 v6, v7, 3, v6")
    a("v_add_u32 v6, s34, v6")
    OA = SC
    VF = SC + 16
    a(f"s_waitcnt vmcnt({npl}) lgkmcnt(0)")
    a("v_add_f32 v5, v5, v89")
    a("v_rcp_f32 v5, v5")
    for t in range(9):
        for sidx in range(2):
            f = VF + 4 * (2 * t + sidx)
            base = (32 * t + 16 * sidx) * 64
            a(f"ds_read_b64_tr_b16 {v(f,2)}, v6 offset:{base}")
            a(f"ds_read_b64_tr_b16 {v(f+2,2)}, v6 offset:{base+8*64}")
    first = True
    for t in range(9):
        for sidx in range(2):
            f = VF + 4 * (2 * t + sidx)
            idx = 2 * t + sidx
            rem = 36 - 2 * (idx + 1)
            a(f"s_waitcnt lgkmcnt({min(rem,15)})")
            a(f"v_mfma_f32_32x32x16_bf16 {v(OA,16)}, {v(f,4)}, {v(KF+8*t+4*sidx,4)}, {'0' if first else v(OA,16)}")
            first = False
    a("v_add_u32 v7, s31, v2")
    a(f"v_lshlrev_b32 v7, 11, v7")
    a("v_lshl_add_u32 v7, v3, 3, v7")
    a("v_add_u32 v7, s33, v7")
    a("s_nop 7")
    a("s_nop 7")
    for g in range(4):
        for r in range(4):
            a(f"v_mul_f32 v{OA+4*g+r}, v{OA+4*g+r}, v5")
        a(f"v_cvt_pk_bf16_f32 v{OA+4*g}, v{OA+4*g}, v{OA+4*g+1}")
        a(f"v_cvt_pk_bf16_f32 v{OA+4*g+1}, v{OA+4*g+2}, v{OA+4*g+3}")
        a(f"buffer_store_dwordx2 {v(OA+4*g,2)}, v7, s[8:11], 0 offen offset:{16*g}")
    a.label(end)
    a("s_endpgm")
    return dict(name=name, grid=nwg + npf, block=256, lds=lds, desc=kernel_desc(name, 244))


def main():
    a = Asm()
    ks = []
    ks.append(gen_ln(a, "ln1_kernel", "x", 0, WS_Y1, False, pf=[("wqkv", D*3*D*2), ("wo", D*D*2)]))
    ks.append(gen_gemm(a, "qkv_kernel", 3 * D, D, 192, WS_Y1, "wqkv", "plain", "ws", WS_QKV, NSTAGE=4, RA=8, RBN=4))
    ks.append(gen_attn(a, "attn_kernel", pf=[("w1", D*F*2), ("w2", F*D*2)]))
    ks.append(gen_gemm(a, "oproj_kernel", D, D, 64, WS_O, "wo", "plain", "ws", WS_H, res_arg="x", NSTAGE=6))
    ks.append(gen_ln(a, "ln2_kernel", "ws", WS_H, WS_Y2, True))
    ks.append(gen_gemm(a, "ffn1_kernel", F, D, 224, WS_Y2, "w1", "gelu", "ws", WS_H1, bias_arg="b1", RA=8, RBN=4))
    ks.append(gen_gemm(a, "ffn2_kernel", D, F, 64, WS_H1, "w2", "plain", "out", 0, res_arg="ws", res_off=WS_H,
                       bias_arg="b2", NSTAGE=6))
    hdr = []
    for k in ks:
        hdr.append(f"; @launch kernel={k['name']} grid=({k['grid']},1,1) block=({k['block']},1,1) lds={k['lds']}")
    txt = "\n".join(hdr) + "\n"
    txt += '.amdgcn_target "amdgcn-amd-amdhsa--gfx950"\n.text\n'
    txt += "\n".join(a.lines) + "\n"
    txt += '.section .rodata,"a"\n'
    for k in ks:
        txt += ".p2align 6\n" + k["desc"]
    open(OUT, "w").write(txt)


if __name__ == "__main__":
    main()
```

```python
import sys, math, os
EXP=os.environ.get('EXP','')

OUT = os.environ.get("OUTF","sequential_preLN__sliding_block__mixer_channel_mlp__prompt.s")

S = 2048; D = 1024; F = 3584; H = 32; DH = 32; WIN = 256
ARG = dict(x=0, wqkv=8, wo=16, bx=24, w1=32, b1=40, w2=48, b2=56, out=64, dbg=72, ws=80)
MB = 1 << 20
WS_Y1 = 0
WS_QKV = 4 * MB
WS_O = 16 * MB
WS_H = 20 * MB
WS_Y2 = 24 * MB
WS_H1 = 28 * MB
WS_SIZE = 256 * MB


class Asm:
    def __init__(self):
        self.lines = []
        self.nlab = 0

    def __call__(self, s):
        self.lines.append("    " + s)

    def label(self, l):
        self.lines.append(l + ":")

    def newlabel(self, base="L"):
        self.nlab += 1
        return f"{base}_{self.nlab}"

    def c(self, s):
        self.lines.append("    ; " + s)


def v(i, n=1):
    return f"v{i}" if n == 1 else f"v[{i}:{i+n-1}]"


def s(i, n=1):
    return f"s{i}" if n == 1 else f"s[{i}:{i+n-1}]"


def srd(a, d, base, off, nbytes):
    if off:
        a(f"s_add_u32 s{d}, s{base}, {off}")
        a(f"s_addc_u32 s{d+1}, s{base+1}, 0")
    else:
        a(f"s_mov_b32 s{d}, s{base}")
        a(f"s_mov_b32 s{d+1}, s{base+1}")
    a(f"s_and_b32 s{d+1}, s{d+1}, 0xffff")
    a(f"s_mov_b32 s{d+2}, {nbytes}")
    a(f"s_mov_b32 s{d+3}, 0x00020000")


def hex_f32(x):
    import struct
    return hex(struct.unpack('<I', struct.pack('<f', x))[0])


def kernel_header(a, name):
    a.lines.append(".p2align 8")
    a.lines.append(f".globl {name}")
    a.lines.append(f".type {name},@function")
    a.label(name)


def kernel_desc(name, nvgpr, nsgpr=102, accum=None):
    nv = ((nvgpr + 7) // 8) * 8
    acc = accum if accum is not None else ((nvgpr + 3) // 4) * 4
    return f""".amdhsa_kernel {name}
  .amdhsa_next_free_vgpr {nv if accum is None else nvgpr}
  .amdhsa_next_free_sgpr {nsgpr}
  .amdhsa_accum_offset {min(acc,256)}
  .amdhsa_group_segment_fixed_size 0
  .amdhsa_kernarg_size 88
  .amdhsa_user_sgpr_count 2
  .amdhsa_user_sgpr_kernarg_segment_ptr 1
  .amdhsa_system_sgpr_workgroup_id_x 1
.end_amdhsa_kernel
"""


def gen_prefetch(a, regions, end_label):
    CH = 32768
    counts = [nbytes // CH for _, nbytes in regions]
    for (_, nbytes), c in zip(regions, counts):
        assert c * CH == nbytes
    total = sum(counts)
    skip = a.newlabel("L_nopf")
    a(f"s_cmp_ge_u32 s2, {total}")
    a(f"s_cbranch_scc1 {skip}")
    base = 0
    for (arg, nbytes), c in zip(regions, counts):
        nxt = a.newlabel("L_pfn")
        a(f"s_cmp_ge_u32 s2, {base + c}")
        a(f"s_cbranch_scc1 {nxt}")
        a(f"s_load_dwordx2 s[4:5], s[0:1], {ARG[arg]}")
        a(f"s_sub_u32 s3, s2, {base}")
        a("s_lshl_b32 s3, s3, 15")
        a("v_lshlrev_b32 v1, 4, v0")
        a("v_add_u32 v1, s3, v1")
        a("s_waitcnt lgkmcnt(0)")
        srd(a, 8, 4, 0, nbytes)
        for j in range(8):
            a(f"v_add_u32 v2, {4096*j}, v1")
            a(f"buffer_load_dwordx4 {v(4+4*j,4)}, v2, s[8:11], 0 offen")
        a("s_waitcnt vmcnt(0)")
        a(f"s_branch {end_label}")
        a.label(nxt)
        base += c
    a.label(skip)
    a(f"s_sub_u32 s2, s2, {total}")
    return total


def tail_prefetch(a, task, lane, regions, vtmp, vdst):
    ntask = 2048
    total = sum(n for _, n in regions)
    per = total // ntask
    assert per * ntask == total and per % 1024 == 0
    nld = per // 1024
    base = 0
    done = a.newlabel("L_pfdone")
    for arg, nbytes in regions:
        cnt = nbytes // per
        assert cnt * per == nbytes
        nxt = a.newlabel("L_pfn")
        a(f"s_cmp_ge_u32 s{task}, {base + cnt}")
        a(f"s_cbranch_scc1 {nxt}")
        a(f"s_load_dwordx2 s[94:95], s[0:1], {ARG[arg]}")
        a(f"s_sub_u32 s93, s{task}, {base}")
        a(f"s_mul_i32 s93, s93, {per}")
        a(f"v_lshlrev_b32 {v(vtmp)}, 4, {v(lane)}")
        a(f"v_add_u32 {v(vtmp)}, s93, {v(vtmp)}")
        a("s_waitcnt lgkmcnt(0)")
        srd(a, 96, 94, 0, nbytes)
        for j in range(nld):
            if j and j % 4 == 0:
                a(f"v_add_u32 {v(vtmp)}, 4096, {v(vtmp)}")
            a(f"buffer_load_dwordx4 {v(vdst,4)}, {v(vtmp)}, s[96:99], 0 offen offset:{1024*(j%4)}")
        a(f"s_branch {done}")
        a.label(nxt)
        base += cnt
    a.label(done)
    return nld

def gen_ln(a, name, src_arg, src_off, dst_off, double, pf=None):
    nwg = S // 4
    kernel_header(a, name)
    end = a.newlabel("L_end")
    npf = 0
    a(f"s_cmp_ge_u32 s2, {nwg}")
    a(f"s_cbranch_scc1 {end}")
    a(f"s_load_dwordx2 s[4:5], s[0:1], {ARG[src_arg]}")
    a(f"s_load_dwordx2 s[6:7], s[0:1], {ARG['ws']}")
    a("v_lshrrev_b32 v1, 6, v0")
    a("v_and_b32 v2, 63, v0")
    a("s_lshl_b32 s3, s2, 2")
    a("v_add_u32 v1, s3, v1")
    a("v_lshlrev_b32 v3, 11, v1")
    a("v_lshl_add_u32 v3, v2, 5, v3")
    for i, m in enumerate([1, 2, 4, 8, 16, 32]):
        a(f"v_xor_b32 v{12+i}, {m}, v2")
        a(f"v_lshlrev_b32 v{12+i}, 2, v{12+i}")
    a("s_waitcnt lgkmcnt(0)")
    srd(a, 8, 4, src_off, S * D * 2)
    srd(a, 12, 6, dst_off, S * D * 2)
    a("buffer_load_dwordx4 v[4:7], v3, s[8:11], 0 offen")
    a("buffer_load_dwordx4 v[8:11], v3, s[8:11], 0 offen offset:16")
    npl = 0
    if pf:
        a("v_readfirstlane_b32 s92, v1")
        a("s_nop 3")
        npl = tail_prefetch(a, 92, 2, pf, 44, 48)
    a(f"s_waitcnt vmcnt({npl})")

    def unpack():
        for i in range(8):
            a(f"v_lshlrev_b32 v{20+2*i}, 16, v{4+i}")
            a(f"v_and_b32 v{21+2*i}, 0xffff0000, v{4+i}")

    def bfly():
        for i in range(6):
            a(f"ds_bpermute_b32 v41, v{12+i}, v40")
            a("s_waitcnt lgkmcnt(0)")
            a("v_add_f32 v40, v40, v41")

    def norm():
        a("v_add_f32 v40, v20, v21")
        for i in range(2, 16):
            a(f"v_add_f32 v40, v40, v{20+i}")
        bfly()
        a("v_mul_f32 v40, 0x3a800000, v40")
        for i in range(16):
            a(f"v_sub_f32 v{20+i}, v{20+i}, v40")
        a("v_mul_f32 v40, v20, v20")
        for i in range(1, 16):
            a(f"v_fmac_f32 v40, v{20+i}, v{20+i}")
        bfly()
        a("v_mov_b32 v42, 0x3727c5ac")
        a("v_fma_f32 v40, v40, v43, v42")
        a("v_rsq_f32 v40, v40")
        a("s_nop 0")
        for i in range(16):
            a(f"v_mul_f32 v{20+i}, v{20+i}, v40")
        for i in range(8):
            a(f"v_cvt_pk_bf16_f32 v{4+i}, v{20+2*i}, v{21+2*i}")

    a("v_mov_b32 v43, 0x3a800000")
    unpack()
    norm()
    if double:
        unpack()
        norm()
    a("buffer_store_dwordx4 v[4:7], v3, s[12:15], 0 offen")
    a("buffer_store_dwordx4 v[8:11], v3, s[12:15], 0 offen offset:16")
    a.label(end)
    a("s_endpgm")
    return dict(name=name, grid=nwg + npf, block=256, lds=0, desc=kernel_desc(name, 56))


def gen_gemm(a, name, N, K, BN, a_off, w_arg, epi, out_arg, out_off, res_arg=None, res_off=0,
             bias_arg=None, BM=128, NSTAGE=3, RA=4, RBN=8, ln=None, a_arg='ws'):
    import struct
    M = S
    BK = 64
    NT_M = M // BM
    NT_N = N // BN
    ntiles = NT_M * NT_N
    MT = BM // 2 // 16
    NTW = BN // 2 // 16
    RB = {64: 128, 128: 256, 192: 128, 96: 64, 224: 64, 112: 32}[BN]
    ABYTES = BM * BK * 2
    BBYTES = BK * BN * 2
    STAGE = ABYTES + BBYTES
    PA = ABYTES // 1024 // 4
    PB = BBYTES // 1024 // 4
    assert PA * 4096 == ABYTES and PB * 4096 == BBYTES
    P = PA + PB
    NS = K // BK
    lds = STAGE * NSTAGE
    CROW = BN * 4 + 16
    RTAB = BM * CROW
    CTAB = RTAB + BM * 8
    assert CTAB + BN * 4 <= lds
    PPR = RB // 32
    lg_ppr = int(math.log2(PPR))

    vA = list(range(2, 2 + PA))
    vB = list(range(2 + PA, 2 + PA + PB))
    nxt = 2 + PA + PB
    vXb = [nxt, nxt + 1]; nxt += 2
    vWb = list(range(nxt, nxt + NTW)); nxt += NTW
    vXc = [nxt, nxt + 1]; nxt += 2
    vWc = list(range(nxt, nxt + NTW)); nxt += NTW
    vT = list(range(nxt, nxt + 8)); nxt += 8
    nxt = (nxt + 3) // 4 * 4
    FX = [nxt, nxt + 4 * MT]; nxt += 8 * MT
    FW = [nxt, nxt + 4 * NTW]; nxt += 8 * NTW
    ACC = nxt; nxt += 4 * MT * NTW
    nvgpr = nxt
    assert nvgpr <= 256
    t0, t1, t2, t3 = vT[0], vT[1], vT[2], vT[3]

    def acc(nt, mt):
        return ACC + 4 * (nt * MT + mt)

    def stamp(i):
        if 'stamp' in EXP:
            a(f"s_memtime s[{60+2*i}:{61+2*i}]")
            if i >= 6: a("s_waitcnt lgkmcnt(0)")

    def stamp_out():
        if 'stamp' not in EXP: return
        a("s_waitcnt lgkmcnt(0)")
        srd(a, 80, 24, 200 * MB, 1 << 20)
        a("s_lshl_b32 s3, s2, 3")
        a("s_add_u32 s3, s3, s49")
        a("s_lshl_b32 s3, s3, 6")
        a("v_mov_b32 v2, s3")
        for i in range(8):
            a(f"v_mov_b32 v4, s{60+2*i}")
            a(f"v_mov_b32 v5, s{61+2*i}")
            a(f"buffer_store_dwordx2 v[4:5], v2, s[80:83], 0 offen offset:{8*i}")
            a("s_nop 1")

    def wfrag_addr_common():
        a(f"v_lshrrev_b32 {v(t1)}, 4, v1")
        a(f"v_bfe_u32 {v(t0)}, v1, 2, 2")
        a(f"v_lshl_add_u32 {v(t2)}, {v(t1)}, 3, {v(t0)}")
        if RB == 256:
            a(f"v_and_b32 {v(t3)}, 1, {v(t1)}")
            a(f"v_lshl_add_u32 {v(t3)}, {v(t3)}, 2, {v(t0)}")
        elif RB == 128:
            a(f"v_and_b32 {v(t3)}, 1, {v(t1)}")
            a(f"v_lshrrev_b32 {v(t0)}, 1, {v(t0)}")
            a(f"v_lshl_add_u32 {v(t3)}, {v(t3)}, 1, {v(t0)}")
        elif RB == 64:
            a(f"v_and_b32 {v(t3)}, 1, {v(t1)}")
        else:
            a(f"v_mov_b32 {v(t3)}, 0")
        a(f"v_mul_u32_u24 {v(t2)}, {RB}, {v(t2)}")
        a(f"v_and_b32 {v(t0)}, 3, v1")
        a(f"v_lshl_add_u32 {v(t2)}, {v(t0)}, 3, {v(t2)}")
        a(f"v_add_u32 {v(t2)}, {ABYTES}, {v(t2)}")

    def wfrag_addr(dst):
        if PPR > 1:
            a(f"s_lshr_b32 s47, s46, {lg_ppr}")
            a(f"s_and_b32 s46, s46, {PPR-1}")
        else:
            a("s_mov_b32 s47, s46")
            a("s_mov_b32 s46, 0")
        a(f"s_mul_i32 s47, s47, {64*RB}")
        a(f"v_xor_b32 {v(t0)}, s46, {v(t3)}")
        a(f"v_lshl_add_u32 {v(t0)}, {v(t0)}, 5, {v(t2)}")
        a(f"v_add_u32 {v(dst)}, s47, {v(t0)}")

    kernel_header(a, name)
    end = a.newlabel("L_end")
    stamp(0)
    lab_loader = a.newlabel("L_loader")
    lab_store = a.newlabel("L_store")
    a(f"s_cmp_ge_u32 s2, {ntiles}")
    a(f"s_cbranch_scc1 {end}")
    a(f"s_load_dwordx2 s[24:25], s[0:1], {ARG['ws']}")
    a(f"s_load_dwordx2 s[58:59], s[0:1], {ARG[a_arg]}")
    a(f"s_load_dwordx2 s[26:27], s[0:1], {ARG[w_arg]}")
    a(f"s_load_dwordx2 s[34:35], s[0:1], {ARG[out_arg]}")
    if res_arg:
        a(f"s_load_dwordx2 s[36:37], s[0:1], {ARG[res_arg]}")
    if bias_arg:
        a(f"s_load_dwordx2 s[38:39], s[0:1], {ARG[bias_arg]}")
    assert ntiles == 256 and RA * RBN == 32 and NT_M % RA == 0 and NT_N % RBN == 0
    XB = NT_N // RBN
    a("s_and_b32 s3, s2, 7")
    a("s_lshr_b32 s46, s2, 3")
    a(f"s_lshr_b32 s28, s3, {int(math.log2(XB))}")
    a(f"s_and_b32 s29, s3, {XB-1}")
    a(f"s_mul_i32 s28, s28, {RA}")
    a(f"s_mul_i32 s29, s29, {RBN}")
    a(f"s_lshr_b32 s3, s46, {int(math.log2(RBN))}")
    a("s_add_u32 s28, s28, s3")
    a(f"s_and_b32 s3, s46, {RBN-1}")
    a("s_add_u32 s29, s29, s3")
    a("v_and_b32 v1, 63, v0")
    a(f"v_lshrrev_b32 {v(vT[0])}, 6, v0")
    a("s_nop 0")
    a(f"v_readfirstlane_b32 s49, {v(vT[0])}")
    a("s_nop 3")
    a("s_and_b32 s30, s49, 3")
    a("s_lshr_b32 s44, s30, 1")
    a("s_and_b32 s45, s30, 1")

    def build_srds():
        a("s_waitcnt lgkmcnt(0)")
        srd(a, 4, 58, a_off, M * K * 2)
        srd(a, 8, 26, 0, K * N * 2)
        srd(a, 12, 34, out_off, M * N * 2)
        if res_arg:
            srd(a, 16, 36, res_off, M * N * 2)
        if bias_arg:
            srd(a, 20, 38, 0, N * 2)

    a("s_cmp_ge_u32 s49, 4")
    a(f"s_cbranch_scc1 {lab_loader}")

    a(f"v_and_b32 {v(t0)}, 15, v1")
    a("s_lshl_b32 s3, s44, 6")
    a(f"v_add_u32 {v(t0)}, s3, {v(t0)}")
    a(f"v_lshlrev_b32 {v(t0)}, 7, {v(t0)}")
    a(f"v_lshrrev_b32 {v(t1)}, 4, v1")
    a(f"v_bfe_u32 {v(t2)}, v1, 1, 3")
    a(f"v_xor_b32 {v(t3)}, {v(t1)}, {v(t2)}")
    a(f"v_lshl_add_u32 {v(vXb[0])}, {v(t3)}, 4, {v(t0)}")
    a(f"v_xor_b32 {v(t3)}, 4, {v(t3)}")
    a(f"v_lshl_add_u32 {v(vXb[1])}, {v(t3)}, 4, {v(t0)}")
    wfrag_addr_common()
    a(f"s_mul_i32 s3, s45, {NTW}")
    for nt in range(NTW):
        a(f"s_add_u32 s46, s3, {nt}")
        wfrag_addr(vWb[nt])
    for i in range(4 * MT * NTW):
        a(f"v_mov_b32 v{ACC+i}, 0")
    a("s_mov_b32 s42, 0")
    build_srds()

    def set_cur():
        for kk in range(2):
            a(f"v_add_u32 {v(vXc[kk])}, s42, {v(vXb[kk])}")
        for nt in range(NTW):
            a(f"v_add_u32 {v(vWc[nt])}, s42, {v(vWb[nt])}")
        a(f"s_add_u32 s42, s42, {STAGE}")
        a(f"s_cmp_ge_u32 s42, {STAGE*NSTAGE}")
        a("s_cselect_b32 s42, 0, s42")

    def read_list(kk, f):
        if 'noreads' in EXP: return []
        L = []
        for nt in range(NTW):
            if nt < MT:
                L.append(f"ds_read_b128 {v(FX[f]+4*nt,4)}, {v(vXc[kk])} offset:{nt*2048}")
            for rd in range(2):
                L.append(f"ds_read_b64_tr_b16 {v(FW[f]+4*nt+2*rd,2)}, {v(vWc[nt])} offset:{kk*32*RB+rd*4*RB}")
        for mt in range(NTW, MT):
            L.append(f"ds_read_b128 {v(FX[f]+4*mt,4)}, {v(vXc[kk])} offset:{mt*2048}")
        return L

    def mfma_list(f):
        if 'nomfma' in EXP: return []
        L = []
        for nt in range(NTW):
            for mt in range(MT):
                L.append(f"v_mfma_f32_16x16x32_bf16 {v(acc(nt,mt),4)}, {v(FW[f]+4*nt,4)}, {v(FX[f]+4*mt,4)}, {v(acc(nt,mt),4)}")
        return L

    def reads(kk, f):
        for x in read_list(kk, f): a(x)

    def mfmas(f):
        for x in mfma_list(f): a(x)

    def inter(kk, fr, fm):
        R = read_list(kk, fr); Mm = mfma_list(fm)
        n = max(len(R), len(Mm))
        for i in range(n):
            if i < len(Mm): a(Mm[i])
            if i < len(R): a(R[i])

    stamp(1)
    a("s_barrier")
    stamp(2)
    set_cur()
    reads(0, 0)
    a("s_waitcnt lgkmcnt(0)")
    inter(1, 1, 0)
    a("s_waitcnt lgkmcnt(0)")
    a(f"s_mov_b32 s48, {NS-1}")
    loop = a.newlabel("L_cloop")
    a.label(loop)
    a("s_barrier")
    set_cur()
    inter(0, 0, 1)
    a("s_waitcnt lgkmcnt(0)")
    inter(1, 1, 0)
    a("s_waitcnt lgkmcnt(0)")
    a("s_sub_u32 s48, s48, 1")
    a("s_cmp_lg_u32 s48, 0")
    a(f"s_cbranch_scc1 {loop}")
    stamp(3)
    mfmas(1)
    a("s_barrier")
    vc = vT[0]
    a(f"v_and_b32 {v(t2)}, 15, v1")
    a("s_lshl_b32 s3, s44, 6")
    a(f"v_add_u32 {v(t2)}, s3, {v(t2)}")
    a(f"v_mul_u32_u24 {v(t2)}, {CROW}, {v(t2)}")
    a(f"v_lshrrev_b32 {v(t3)}, 4, v1")
    a(f"v_lshlrev_b32 {v(t3)}, 4, {v(t3)}")
    a(f"s_mul_i32 s3, s45, {BN*2}")
    a(f"v_add_u32 {v(t3)}, s3, {v(t3)}")
    a(f"v_add_u32 {v(vc)}, {v(t2)}, {v(t3)}")
    a("s_nop 4")
    for nt in range(NTW):
        for mt in range(MT):
            a(f"ds_write_b128 {v(vc)}, {v(acc(nt,mt),4)} offset:{mt*16*CROW + nt*64}")
    a("s_waitcnt lgkmcnt(0)")
    stamp(4)
    a("s_barrier")
    a(f"s_branch {lab_store}")

    a.label(lab_loader)
    if 'noprio' not in EXP: a("s_setprio 2")
    NPL = (BN // 16 + 3) // 4
    LSA = 40
    LCW = 44
    LSC = 48; LCC = 52
    LONE = 56
    LST = 60
    LCS = 68
    LSD = 84
    LWD = 100
    assert vT[7] < 40
    a(f"s_mul_i32 s3, s30, {PA*8}")
    a(f"v_lshrrev_b32 {v(t0)}, 3, v1")
    a(f"v_add_u32 {v(t0)}, s3, {v(t0)}")
    a(f"s_mul_i32 s3, s28, {BM}")
    for i in range(PA):
        a(f"v_add_u32 {v(t1)}, {8*i}, {v(t0)}")
        a(f"v_lshrrev_b32 {v(t2)}, 1, {v(t1)}")
        a(f"v_and_b32 {v(t2)}, 7, {v(t2)}")
        a(f"v_and_b32 {v(t3)}, 7, v1")
        a(f"v_xor_b32 {v(t2)}, {v(t2)}, {v(t3)}")
        if ln:
            a(f"v_lshlrev_b32 {v(LSA+i)}, 7, {v(t1)}")
            a(f"v_lshl_add_u32 {v(LSA+i)}, {v(t3)}, 4, {v(LSA+i)}")
        a(f"v_add_u32 {v(t1)}, s3, {v(t1)}")
        a(f"v_mul_u32_u24 {v(t1)}, {K*2}, {v(t1)}")
        a(f"v_lshl_add_u32 {v(vA[i])}, {v(t2)}, 4, {v(t1)}")
    CPR = RB // 16
    lg_cpr = int(math.log2(CPR))
    RPP = 1024 // RB
    PPB = RB // 16
    lg_ppb = int(math.log2(PPB))
    a(f"s_mul_i32 s3, s29, {BN*2}")
    for i in range(PB):
        a(f"s_mul_i32 s46, s30, {PB}")
        a(f"s_add_u32 s46, s46, {i}")
        a(f"s_lshr_b32 s47, s46, {lg_ppb}")
        a(f"s_and_b32 s46, s46, {PPB-1}")
        a(f"s_mul_i32 s46, s46, {RPP}")
        a(f"s_mul_i32 s47, s47, {RB}")
        a("s_add_u32 s47, s47, s3")
        a(f"v_lshrrev_b32 {v(t0)}, {lg_cpr}, v1")
        a(f"v_add_u32 {v(t0)}, s46, {v(t0)}")
        a(f"v_and_b32 {v(t1)}, {CPR-1}, v1")
        if RB == 256:
            a(f"v_and_b32 {v(t2)}, 3, {v(t0)}")
            a(f"v_bfe_u32 {v(t3)}, {v(t0)}, 3, 1")
            a(f"v_lshl_add_u32 {v(t2)}, {v(t3)}, 2, {v(t2)}")
        elif RB == 128:
            a(f"v_bfe_u32 {v(t2)}, {v(t0)}, 1, 1")
            a(f"v_bfe_u32 {v(t3)}, {v(t0)}, 3, 1")
            a(f"v_lshl_add_u32 {v(t2)}, {v(t3)}, 1, {v(t2)}")
        elif RB == 64:
            a(f"v_bfe_u32 {v(t2)}, {v(t0)}, 3, 1")
        else:
            a(f"v_mov_b32 {v(t2)}, 0")
        a(f"v_lshlrev_b32 {v(t2)}, 1, {v(t2)}")
        a(f"v_xor_b32 {v(t1)}, {v(t1)}, {v(t2)}")
        a(f"v_mul_u32_u24 {v(t0)}, {N*2}, {v(t0)}")
        a(f"v_lshl_add_u32 {v(t0)}, {v(t1)}, 4, {v(t0)}")
        a(f"v_add_u32 {v(vB[i])}, s47, {v(t0)}")
    a(f"s_mul_i32 s31, s30, {PA*1024}")
    a(f"s_mul_i32 s32, s30, {PB*1024}")
    a(f"s_add_u32 s32, s32, {ABYTES}")
    a("s_mov_b32 s40, 0")
    a("s_mov_b32 s41, 0")
    a("s_mov_b32 s43, 0")
    a("s_mov_b32 s42, 0")
    build_srds()

    def dma():
        if 'nodma' in EXP: return
        a("s_add_u32 s33, s43, s31")
        for i in range(PA):
            a(f"s_add_u32 m0, s33, {i*1024}")
            a("s_nop 0")
            a(f"buffer_load_dwordx4 {v(vA[i])}, s[4:7], s40 offen lds")
        a("s_add_u32 s33, s43, s32")
        for i in range(PB):
            a(f"s_add_u32 m0, s33, {i*1024}")
            a("s_nop 0")
            a(f"buffer_load_dwordx4 {v(vB[i])}, s[8:11], s41 offen lds")
        a(f"s_add_u32 s40, s40, {BK*2}")
        a(f"s_add_u32 s41, s41, {BK*N*2}")
        a(f"s_add_u32 s43, s43, {STAGE}")
        a(f"s_cmp_ge_u32 s43, {STAGE*NSTAGE}")
        a("s_cselect_b32 s43, 0, s43")

    stamp(1)
    for _ in range(NSTAGE - 1):
        dma()
    stamp(2)
    if ln:
        wfrag_addr_common()
        for i in range(NPL):
            a(f"s_mul_i32 s46, s30, {NPL}")
            a(f"s_add_u32 s46, s46, {i}")
            a(f"s_min_u32 s46, s46, {BN//16-1}")
            wfrag_addr(LCW + i)
        for i in range(4):
            a(f"v_mov_b32 {v(LONE+i)}, 0x3f803f80")
        for i in range(2 * PA):
            a(f"v_mov_b32 {v(LST+i)}, 0")
        for i in range(4 * NPL):
            a(f"v_mov_b32 {v(LCS+i)}, 0")

    def stats_reads():
        for i in range(PA):
            a(f"v_add_u32 {v(LSC+i)}, s42, {v(LSA+i)}")
        for i in range(NPL):
            a(f"v_add_u32 {v(LCC+i)}, s42, {v(LCW+i)}")
        a(f"s_add_u32 s42, s42, {STAGE}")
        a(f"s_cmp_ge_u32 s42, {STAGE*NSTAGE}")
        a("s_cselect_b32 s42, 0, s42")
        for i in range(PA):
            a(f"ds_read_b128 {v(LSD+4*i,4)}, {v(LSC+i)}")
        for i in range(NPL):
            for kk in range(2):
                for rd in range(2):
                    a(f"ds_read_b64_tr_b16 {v(LWD+8*i+4*kk+2*rd,2)}, {v(LCC+i)} offset:{kk*32*RB+rd*4*RB}")

    def stats_math():
        a("s_waitcnt lgkmcnt(0)")
        for i in range(NPL):
            for kk in range(2):
                a(f"v_mfma_f32_16x16x32_bf16 {v(LCS+4*i,4)}, {v(LWD+8*i+4*kk,4)}, {v(LONE,4)}, {v(LCS+4*i,4)}")
        for j in range(4):
            for i in range(PA):
                d = v(LSD + 4 * i + j)
                a(f"v_dot2_f32_bf16 {v(LST+2*i)}, {d}, {v(LONE)}, {v(LST+2*i)}")
                a(f"v_dot2_f32_bf16 {v(LST+2*i+1)}, {d}, {d}, {v(LST+2*i+1)}")

    nloop = NS - NSTAGE + 1
    a(f"s_mov_b32 s48, {nloop}")
    lloop = a.newlabel("L_lloop")
    a.label(lloop)
    a(f"s_waitcnt vmcnt({(NSTAGE-2)*P})")
    a("s_barrier")
    if ln: stats_reads()
    dma()
    if ln: stats_math()
    a("s_sub_u32 s48, s48, 1")
    a("s_cmp_lg_u32 s48, 0")
    a(f"s_cbranch_scc1 {lloop}")
    for j in range(NS - NSTAGE + 1, NS):
        a(f"s_waitcnt vmcnt({(NS-1-j)*P})")
        a("s_barrier")
        if ln:
            stats_reads()
            stats_math()
    stamp(3)
    if ln:
        a("s_nop 3")
        X0 = LSD
        for mode in ("quad_perm:[1,0,3,2]", "quad_perm:[2,3,0,1]", "row_half_mirror"):
            for k_ in range(2 * PA):
                a(f"v_add_f32_dpp {v(X0+k_)}, {v(LST+k_)}, {v(LST+k_)} {mode} row_mask:0xf bank_mask:0xf")
            a("s_nop 1")
            for k_ in range(2 * PA):
                a(f"v_mov_b32 {v(LST+k_)}, {v(X0+k_)}")
            a("s_nop 1")
        for i in range(PA):
            sm, sq = LST + 2 * i, LST + 2 * i + 1
            r1, r2 = X0 + 2 * i, X0 + 2 * i + 1
            a(f"v_mul_f32 {v(sm)}, {hex_f32(1.0/K)}, {v(sm)}")
            a(f"v_mul_f32 {v(sq)}, {hex_f32(1.0/K)}, {v(sq)}")
            a(f"v_fma_f32 {v(sq)}, -{v(sm)}, {v(sm)}, {v(sq)}")
            a(f"v_max_f32 {v(sq)}, 0, {v(sq)}")
            a(f"v_add_f32 {v(r1)}, {hex_f32(1e-5)}, {v(sq)}")
            a(f"v_rsq_f32 {v(r1)}, {v(r1)}")
            a("s_nop 0")
            if ln == 'double':
                a(f"v_mul_f32 {v(r2)}, {v(r1)}, {v(r1)}")
                a(f"v_mul_f32 {v(r2)}, {v(r2)}, {v(sq)}")
                a(f"v_add_f32 {v(r2)}, {hex_f32(1e-5)}, {v(r2)}")
                a(f"v_rsq_f32 {v(r2)}, {v(r2)}")
                a("s_nop 0")
                a(f"v_mul_f32 {v(r1)}, {v(r1)}, {v(r2)}")
            a(f"v_mul_f32 {v(r2)}, {v(sm)}, {v(r1)}")
            a(f"v_sub_f32 {v(r2)}, 0, {v(r2)}")
            a(f"v_lshrrev_b32 {v(LSC+i)}, 7, {v(LSA+i)}")
            a(f"v_lshlrev_b32 {v(LSC+i)}, 3, {v(LSC+i)}")
            a(f"v_add_u32 {v(LSC+i)}, {RTAB}, {v(LSC+i)}")
        a(f"v_lshrrev_b32 {v(t0)}, 4, v1")
        a(f"v_lshlrev_b32 {v(t0)}, 4, {v(t0)}")
        for i in range(NPL):
            a(f"s_mul_i32 s46, s30, {NPL}")
            a(f"s_add_u32 s46, s46, {i}")
            a(f"s_min_u32 s46, s46, {BN//16-1}")
            a("s_lshl_b32 s46, s46, 6")
            a(f"s_add_u32 s46, s46, {CTAB}")
            a(f"v_add_u32 {v(LCC+i)}, s46, {v(t0)}")
    a("s_barrier")
    if ln:
        for i in range(PA):
            a(f"ds_write_b64 {v(LSC+i)}, {v(LSD+2*i,2)}")
        for i in range(NPL):
            a(f"ds_write_b128 {v(LCC+i)}, {v(LCS+4*i,4)}")
        a("s_waitcnt lgkmcnt(0)")
    stamp(4)
    a("s_barrier")

    a.label(lab_store)
    CPRW = BN // 8
    NIT = BM * CPRW // 512
    assert NIT * 512 == BM * CPRW
    magic = ((1 << 32) + CPRW - 1) // CPRW
    a(f"s_mov_b32 s46, {magic}")
    a(f"s_mul_i32 s3, s49, {NIT*64}")
    a(f"v_add_u32 {v(t0)}, s3, v1")
    a(f"s_mul_i32 s3, s28, {BM}")
    a(f"s_mul_i32 s47, s29, {BN*2}")
    R0 = (vT[7] + 4) // 4 * 4
    RR = R0 + 8 * NIT
    RBI = RR + 4 * NIT
    RCS = RBI + 4 * NIT
    RRS = RCS + (8 * NIT if ln else 0)
    OFF = RRS + (2 * NIT if ln else 0)
    GT = (OFF + NIT + 3) // 4 * 4
    assert GT + 10 <= 256
    for it in range(NIT):
        a(f"v_add_u32 {v(t1)}, {it*64}, {v(t0)}")
        a(f"v_mul_hi_u32 {v(t2)}, {v(t1)}, s46")
        a(f"v_mul_u32_u24 {v(t3)}, {CPRW}, {v(t2)}")
        a(f"v_sub_u32 {v(t3)}, {v(t1)}, {v(t3)}")
        a(f"v_mul_u32_u24 {v(t1)}, {CROW}, {v(t2)}")
        a(f"v_lshl_add_u32 {v(t1)}, {v(t3)}, 5, {v(t1)}")
        a(f"ds_read_b128 {v(R0+8*it,4)}, {v(t1)}")
        a(f"ds_read_b128 {v(R0+8*it+4,4)}, {v(t1)} offset:16")
        if ln:
            a(f"v_lshlrev_b32 {v(t1)}, 3, {v(t2)}")
            a(f"v_add_u32 {v(t1)}, {RTAB}, {v(t1)}")
            a(f"ds_read_b64 {v(RRS+2*it,2)}, {v(t1)}")
            a(f"v_lshlrev_b32 {v(t1)}, 5, {v(t3)}")
            a(f"v_add_u32 {v(t1)}, {CTAB}, {v(t1)}")
            a(f"ds_read_b128 {v(RCS+8*it,4)}, {v(t1)}")
            a(f"ds_read_b128 {v(RCS+8*it+4,4)}, {v(t1)} offset:16")
        a(f"v_add_u32 {v(t2)}, s3, {v(t2)}")
        a(f"v_mul_u32_u24 {v(t2)}, {N*2}, {v(t2)}")
        a(f"v_lshlrev_b32 {v(t3)}, 4, {v(t3)}")
        a(f"v_add_u32 {v(t3)}, s47, {v(t3)}")
        a(f"v_add_u32 {v(OFF+it)}, {v(t3)}, {v(t2)}")
        if res_arg:
            a(f"buffer_load_dwordx4 {v(RR+4*it,4)}, {v(OFF+it)}, s[16:19], 0 offen")
        if bias_arg:
            a(f"buffer_load_dwordx4 {v(RBI+4*it,4)}, {v(t3)}, s[20:23], 0 offen")
    if epi == 'gelu':
        c2 = 2 * math.log2(math.e)
        k1 = struct.unpack("<I", struct.pack("<f", 0.7978845608 * c2))[0]
        k3 = struct.unpack("<I", struct.pack("<f", 0.7978845608 * 0.044715 * c2))[0]
        a(f"s_mov_b32 s52, {k3}"); a(f"s_mov_b32 s53, {k3}")
        a(f"v_mov_b32 {v(GT+8)}, {k1}"); a(f"v_mov_b32 {v(GT+9)}, {k1}")
        a("s_mov_b32 s56, 1.0"); a("s_mov_b32 s57, 1.0")
    a("s_waitcnt vmcnt(0) lgkmcnt(0)")
    stamp(5)
    for it in range(NIT):
        c0 = R0 + 8 * it
        if ln:
            for j in range(8):
                a(f"v_mul_f32 {v(RCS+8*it+j)}, {v(RCS+8*it+j)}, {v(RRS+2*it+1)}")
            for j in range(8):
                a(f"v_fma_f32 {v(c0+j)}, {v(c0+j)}, {v(RRS+2*it)}, {v(RCS+8*it+j)}")
        if bias_arg:
            for j in range(4):
                b = RBI + 4 * it + j
                a(f"v_lshlrev_b32 {v(GT+2*j)}, 16, {v(b)}")
                a(f"v_and_b32 {v(GT+2*j+1)}, 0xffff0000, {v(b)}")
            for j in range(4):
                a(f"v_pk_add_f32 {v(c0+2*j,2)}, {v(c0+2*j,2)}, {v(GT+2*j,2)}")
        if epi == 'gelu':
            for j in range(4):
                a(f"v_pk_mul_f32 {v(GT+2*j,2)}, {v(c0+2*j,2)}, {v(c0+2*j,2)}")
            for j in range(4):
                a(f"v_pk_fma_f32 {v(GT+2*j,2)}, {v(GT+2*j,2)}, s[52:53], {v(GT+8,2)}")
            for j in range(4):
                a(f"v_pk_mul_f32 {v(GT+2*j,2)}, {v(GT+2*j,2)}, {v(c0+2*j,2)}")
            for r in range(8):
                a(f"v_exp_f32 {v(GT+r)}, {v(GT+r)}")
            a("s_nop 0")
            for j in range(4):
                a(f"v_pk_add_f32 {v(GT+2*j,2)}, {v(GT+2*j,2)}, s[56:57]")
            for r in range(8):
                a(f"v_rcp_f32 {v(GT+r)}, {v(GT+r)}")
            a("s_nop 0")
            for j in range(4):
                cc = v(c0 + 2 * j, 2)
                a(f"v_pk_fma_f32 {cc}, {cc}, {v(GT+2*j,2)}, {cc} neg_lo:[1,0,0] neg_hi:[1,0,0]")
        for j in range(4):
            a(f"v_cvt_pk_bf16_f32 {v(c0+j)}, {v(c0+2*j)}, {v(c0+2*j+1)}")
        if res_arg:
            for j in range(4):
                d = c0 + j
                r = RR + 4 * it + j
                a(f"v_lshlrev_b32 {v(GT)}, 16, {v(d)}")
                a(f"v_lshlrev_b32 {v(GT+1)}, 16, {v(r)}")
                a(f"v_and_b32 {v(GT+2)}, 0xffff0000, {v(d)}")
                a(f"v_and_b32 {v(GT+3)}, 0xffff0000, {v(r)}")
                a(f"v_add_f32 {v(GT)}, {v(GT)}, {v(GT+1)}")
                a(f"v_add_f32 {v(GT+2)}, {v(GT+2)}, {v(GT+3)}")
                a(f"v_cvt_pk_bf16_f32 {v(d)}, {v(GT)}, {v(GT+2)}")
        a(f"buffer_store_dwordx4 {v(c0,4)}, {v(OFF+it)}, s[12:15], 0 offen")
    stamp(6)
    if 'stamp' in EXP: a("s_waitcnt vmcnt(0)")
    stamp(7)
    stamp_out()
    a.label(end)
    a("s_endpgm")
    return dict(name=name, grid=ntiles, block=512, lds=lds, desc=kernel_desc(name, max(nvgpr, GT + 10, 136)))


def gen_attn(a, name, pf=None):
    import struct
    NQB = S // 32
    ntask = H * NQB
    nwg = ntask // 4
    QKV_ROW = 3 * D * 2
    VLDS = 288 * 64
    lds = 4 * VLDS
    kernel_header(a, name)
    end = a.newlabel("L_end")
    npf = 0
    a(f"s_cmp_ge_u32 s2, {nwg}")
    a(f"s_cbranch_scc1 {end}")
    a(f"s_load_dwordx2 s[24:25], s[0:1], {ARG['ws']}")
    a("v_and_b32 v1, 63, v0")
    a("v_lshrrev_b32 v2, 6, v0")
    a("s_nop 0")
    a("v_readfirstlane_b32 s30, v2")
    a("s_nop 3")
    a("s_lshl_b32 s3, s2, 2")
    a("s_add_u32 s3, s3, s30")
    a("s_mov_b32 s92, s3")
    a("s_and_b32 s28, s3, 31")
    a("s_lshr_b32 s29, s3, 5")
    a("s_lshl_b32 s31, s29, 5")
    a("s_sub_u32 s32, s31, 256")
    a("s_lshl_b32 s33, s28, 6")
    a(f"s_add_u32 s35, s33, {2*D*2}")
    a("v_and_b32 v2, 31, v1")
    a("v_lshrrev_b32 v3, 5, v1")
    a("v_add_u32 v4, s31, v2")
    a(f"v_mul_u32_u24 v4, {QKV_ROW}, v4")
    a("v_lshl_add_u32 v4, v3, 4, v4")
    a("v_add_u32 v4, s33, v4")
    a("s_waitcnt lgkmcnt(0)")
    srd(a, 4, 24, WS_QKV, S * 3 * D * 2)
    srd(a, 8, 24, WS_O, S * D * 2)
    a("buffer_load_dwordx4 v[8:11], v4, s[4:7], 0 offen")
    a("buffer_load_dwordx4 v[12:15], v4, s[4:7], 0 offen offset:32")
    KF = 16
    for t in range(9):
        a(f"v_add_u32 v7, {32*t}, v2")
        a("v_add_u32 v7, s32, v7")
        a("v_max_i32 v7, 0, v7")
        a(f"v_mul_u32_u24 v7, {QKV_ROW}, v7")
        a("v_lshl_add_u32 v7, v3, 4, v7")
        a("v_add_u32 v7, s33, v7")
        a(f"buffer_load_dwordx4 {v(KF+8*t,4)}, v7, s[4:7], 0 offen offset:{D*2}")
        a(f"buffer_load_dwordx4 {v(KF+8*t+4,4)}, v7, s[4:7], 0 offen offset:{D*2+32}")
    a("v_lshrrev_b32 v5, 2, v1")
    a("v_and_b32 v6, 3, v1")
    a(f"s_mul_i32 s34, s30, {VLDS}")
    for p in range(18):
        a(f"v_add_u32 v7, {16*p}, v5")
        a("v_add_u32 v7, s32, v7")
        a("v_max_i32 v7, 0, v7")
        a(f"v_mul_u32_u24 v7, {QKV_ROW}, v7")
        a("v_lshl_add_u32 v7, v6, 4, v7")
        a("v_add_u32 v7, s35, v7")
        a(f"s_add_u32 m0, s34, {p*1024}")
        a("s_nop 0")
        a(f"buffer_load_dwordx4 v7, s[4:7], 0 offen lds")
    SC = 96
    npl = tail_prefetch(a, 92, 1, pf, 7, 240) if pf else 0
    a("v_mov_b32 v7, 0xf149f2ca")
    for t in range(9):
        a(f"s_waitcnt vmcnt({npl + 18 + 2*(8-t)})")
        if t < 8:
            lab_inv = a.newlabel("L_inv"); lab_done = a.newlabel("L_tdone")
            a(f"s_add_i32 s3, s32, {32*t}")
            a("s_cmp_lt_i32 s3, 0")
            a(f"s_cbranch_scc1 {lab_inv}")
        a(f"v_mfma_f32_32x32x16_bf16 {v(SC+16*t,16)}, {v(KF+8*t,4)}, v[8:11], 0")
        a(f"v_mfma_f32_32x32x16_bf16 {v(SC+16*t,16)}, {v(KF+8*t+4,4)}, v[12:15], {v(SC+16*t,16)}")
        if t < 8:
            a(f"s_branch {lab_done}")
            a.label(lab_inv)
            for r in range(16):
                a(f"v_mov_b32 v{SC+16*t+r}, v7")
            a.label(lab_done)
    a("v_lshlrev_b32 v5, 2, v3")
    a("v_sub_u32 v5, v2, v5")
    a("s_nop 7")
    a("s_nop 7")
    for r in range(16):
        c = (r & 3) + 8 * (r >> 2)
        a(f"v_cmp_gt_i32 vcc, {c}, v5")
        a(f"v_cmp_le_i32 s[36:37], {c}, v5")
        a("s_nop 0")
        a(f"v_cndmask_b32 v{SC+r}, v7, v{SC+r}, vcc")
        a(f"v_cndmask_b32 v{SC+128+r}, v7, v{SC+128+r}, s[36:37]")
    a(f"v_max3_f32 v4, v{SC}, v{SC+1}, v{SC+2}")
    a(f"v_max3_f32 v6, v{SC+3}, v{SC+4}, v{SC+5}")
    for i in range(6, 144, 4):
        a(f"v_max3_f32 v4, v4, v{SC+i}, v{SC+i+1}")
        if i + 3 < 144:
            a(f"v_max3_f32 v6, v6, v{SC+i+2}, v{SC+i+3}")
    a("v_max_f32 v4, v4, v6")
    a("v_xor_b32 v88, 32, v1")
    a("v_lshlrev_b32 v88, 2, v88")
    a("ds_bpermute_b32 v89, v88, v4")
    a("s_waitcnt lgkmcnt(0)")
    a("v_max_f32 v4, v4, v89")
    sc = (DH ** -0.5) * math.log2(math.e)
    sc_bits = struct.unpack("<I", struct.pack("<f", sc))[0]
    a(f"s_mov_b32 s38, {sc_bits}")
    a("v_mul_f32 v4, s38, v4")
    sums = [5, 6, 90, 91]
    for sreg in sums:
        a(f"v_mov_b32 v{sreg}, 0")
    for g in range(0, 144, 4):
        for j in range(4):
            a(f"v_fma_f32 v{SC+g+j}, v{SC+g+j}, s38, -v4")
        for j in range(4):
            a(f"v_exp_f32 v{SC+g+j}, v{SC+g+j}")
        if g >= 4:
            for j in range(4):
                a(f"v_add_f32 v{sums[j]}, v{sums[j]}, v{SC+g-4+j}")
            tt, jj = divmod(g - 4, 16)
            a(f"v_cvt_pk_bf16_f32 v{KF+8*tt+jj//2}, v{SC+g-4}, v{SC+g-3}")
            a(f"v_cvt_pk_bf16_f32 v{KF+8*tt+jj//2+1}, v{SC+g-2}, v{SC+g-1}")
    a("s_nop 0")
    g = 144
    for j in range(4):
        a(f"v_add_f32 v{sums[j]}, v{sums[j]}, v{SC+g-4+j}")
    tt, jj = divmod(g - 4, 16)
    a(f"v_cvt_pk_bf16_f32 v{KF+8*tt+jj//2}, v{SC+g-4}, v{SC+g-3}")
    a(f"v_cvt_pk_bf16_f32 v{KF+8*tt+jj//2+1}, v{SC+g-2}, v{SC+g-1}")
    a("v_add_f32 v5, v5, v6")
    a("v_add_f32 v90, v90, v91")
    a("v_add_f32 v5, v5, v90")
    a("ds_bpermute_b32 v89, v88, v5")
    a("v_bfe_u32 v6, v1, 2, 2")
    a("v_lshl_add_u32 v6, v3, 2, v6")
    a("v_lshlrev_b32 v6, 6, v6")
    a("v_bfe_u32 v7, v1, 4, 1")
    a("v_lshl_add_u32 v6, v7, 5, v6")
    a("v_and_b32 v7, 3, v1")
    a("v_lshl_add_u32 v6, v7, 3, v6")
    a("v_add_u32 v6, s34, v6")
    OA = SC
    VF = SC + 16
    a(f"s_waitcnt vmcnt({npl}) lgkmcnt(0)")
    a("v_add_f32 v5, v5, v89")
    a("v_rcp_f32 v5, v5")
    for t in range(9):
        for sidx in range(2):
            f = VF + 4 * (2 * t + sidx)
            base = (32 * t + 16 * sidx) * 64
            a(f"ds_read_b64_tr_b16 {v(f,2)}, v6 offset:{base}")
            a(f"ds_read_b64_tr_b16 {v(f+2,2)}, v6 offset:{base+8*64}")
    first = True
    for t in range(9):
        for sidx in range(2):
            f = VF + 4 * (2 * t + sidx)
            idx = 2 * t + sidx
            rem = 36 - 2 * (idx + 1)
            a(f"s_waitcnt lgkmcnt({min(rem,15)})")
            a(f"v_mfma_f32_32x32x16_bf16 {v(OA,16)}, {v(f,4)}, {v(KF+8*t+4*sidx,4)}, {'0' if first else v(OA,16)}")
            first = False
    a("v_add_u32 v7, s31, v2")
    a(f"v_lshlrev_b32 v7, 11, v7")
    a("v_lshl_add_u32 v7, v3, 3, v7")
    a("v_add_u32 v7, s33, v7")
    a("s_nop 7")
    a("s_nop 7")
    for g in range(4):
        for r in range(4):
            a(f"v_mul_f32 v{OA+4*g+r}, v{OA+4*g+r}, v5")
        a(f"v_cvt_pk_bf16_f32 v{OA+4*g}, v{OA+4*g}, v{OA+4*g+1}")
        a(f"v_cvt_pk_bf16_f32 v{OA+4*g+1}, v{OA+4*g+2}, v{OA+4*g+3}")
        a(f"buffer_store_dwordx2 {v(OA+4*g,2)}, v7, s[8:11], 0 offen offset:{16*g}")
    a.label(end)
    a("s_endpgm")
    return dict(name=name, grid=nwg + npf, block=256, lds=lds, desc=kernel_desc(name, 244))


def main():
    a = Asm()
    ks = []
    FUSE = 'nofuse' not in EXP
    if FUSE:
        ks.append(gen_gemm(a, "qkv_kernel", 3 * D, D, 192, 0, "wqkv", "plain", "ws", WS_QKV, NSTAGE=4, RA=8, RBN=4,
                           ln='single', a_arg='x'))
    else:
        ks.append(gen_ln(a, "ln1_kernel", "x", 0, WS_Y1, False, pf=[("wqkv", D*3*D*2), ("wo", D*D*2)]))
        ks.append(gen_gemm(a, "qkv_kernel", 3 * D, D, 192, WS_Y1, "wqkv", "plain", "ws", WS_QKV, NSTAGE=4, RA=8, RBN=4))
    ks.append(gen_attn(a, "attn_kernel", pf=[("w1", D*F*2), ("w2", F*D*2), ("wo", D*D*2)] if FUSE else [("w1", D*F*2), ("w2", F*D*2)]))
    ks.append(gen_gemm(a, "oproj_kernel", D, D, 64, WS_O, "wo", "plain", "ws", WS_H, res_arg="x", NSTAGE=6))
    if FUSE:
        ks.append(gen_gemm(a, "ffn1_kernel", F, D, 224, WS_H, "w1", "gelu", "ws", WS_H1, bias_arg="b1", RA=8, RBN=4,
                           ln='double'))
    else:
        ks.append(gen_ln(a, "ln2_kernel", "ws", WS_H, WS_Y2, True))
        ks.append(gen_gemm(a, "ffn1_kernel", F, D, 224, WS_Y2, "w1", "gelu", "ws", WS_H1, bias_arg="b1", RA=8, RBN=4))
    ks.append(gen_gemm(a, "ffn2_kernel", D, F, 64, WS_H1, "w2", "plain", "out", 0, res_arg="ws", res_off=WS_H,
                       bias_arg="b2", NSTAGE=6))
    hdr = []
    for k in ks:
        hdr.append(f"; @launch kernel={k['name']} grid=({k['grid']},1,1) block=({k['block']},1,1) lds={k['lds']}")
    txt = "\n".join(hdr) + "\n"
    txt += '.amdgcn_target "amdgcn-amd-amdhsa--gfx950"\n.text\n'
    txt += "\n".join(a.lines) + "\n"
    txt += '.section .rodata,"a"\n'
    for k in ks:
        txt += ".p2align 6\n" + k["desc"]
    open(OUT, "w").write(txt)


if __name__ == "__main__":
    main()
```

```python
import sys, math, os
EXP=os.environ.get('EXP','')

OUT = os.environ.get("OUTF","sequential_preLN__sliding_block__mixer_channel_mlp__prompt.s")

S = 2048; D = 1024; F = 3584; H = 32; DH = 32; WIN = 256
ARG = dict(x=0, wqkv=8, wo=16, bx=24, w1=32, b1=40, w2=48, b2=56, out=64, dbg=72, ws=80)
MB = 1 << 20
WS_Y1 = 0
WS_QKV = 4 * MB
WS_O = 16 * MB
WS_H = 20 * MB
WS_Y2 = 24 * MB
WS_H1 = 28 * MB
WS_SIZE = 256 * MB


class Asm:
    def __init__(self):
        self.lines = []
        self.nlab = 0

    def __call__(self, s):
        self.lines.append("    " + s)

    def label(self, l):
        self.lines.append(l + ":")

    def newlabel(self, base="L"):
        self.nlab += 1
        return f"{base}_{self.nlab}"

    def c(self, s):
        self.lines.append("    ; " + s)


def v(i, n=1):
    return f"v{i}" if n == 1 else f"v[{i}:{i+n-1}]"


def s(i, n=1):
    return f"s{i}" if n == 1 else f"s[{i}:{i+n-1}]"


def srd(a, d, base, off, nbytes):
    if off:
        a(f"s_add_u32 s{d}, s{base}, {off}")
        a(f"s_addc_u32 s{d+1}, s{base+1}, 0")
    else:
        a(f"s_mov_b32 s{d}, s{base}")
        a(f"s_mov_b32 s{d+1}, s{base+1}")
    a(f"s_and_b32 s{d+1}, s{d+1}, 0xffff")
    a(f"s_mov_b32 s{d+2}, {nbytes}")
    a(f"s_mov_b32 s{d+3}, 0x00020000")


def hex_f32(x):
    import struct
    return hex(struct.unpack('<I', struct.pack('<f', x))[0])


def kernel_header(a, name):
    a.lines.append(".p2align 8")
    a.lines.append(f".globl {name}")
    a.lines.append(f".type {name},@function")
    a.label(name)


def kernel_desc(name, nvgpr, nsgpr=102, accum=None):
    nv = ((nvgpr + 7) // 8) * 8
    acc = accum if accum is not None else ((nvgpr + 3) // 4) * 4
    return f""".amdhsa_kernel {name}
  .amdhsa_next_free_vgpr {nv if accum is None else nvgpr}
  .amdhsa_next_free_sgpr {nsgpr}
  .amdhsa_accum_offset {min(acc,256)}
  .amdhsa_group_segment_fixed_size 0
  .amdhsa_kernarg_size 88
  .amdhsa_user_sgpr_count 2
  .amdhsa_user_sgpr_kernarg_segment_ptr 1
  .amdhsa_system_sgpr_workgroup_id_x 1
.end_amdhsa_kernel
"""


def gen_prefetch(a, regions, end_label):
    CH = 32768
    counts = [nbytes // CH for _, nbytes in regions]
    for (_, nbytes), c in zip(regions, counts):
        assert c * CH == nbytes
    total = sum(counts)
    skip = a.newlabel("L_nopf")
    a(f"s_cmp_ge_u32 s2, {total}")
    a(f"s_cbranch_scc1 {skip}")
    base = 0
    for (arg, nbytes), c in zip(regions, counts):
        nxt = a.newlabel("L_pfn")
        a(f"s_cmp_ge_u32 s2, {base + c}")
        a(f"s_cbranch_scc1 {nxt}")
        a(f"s_load_dwordx2 s[4:5], s[0:1], {ARG[arg]}")
        a(f"s_sub_u32 s3, s2, {base}")
        a("s_lshl_b32 s3, s3, 15")
        a("v_lshlrev_b32 v1, 4, v0")
        a("v_add_u32 v1, s3, v1")
        a("s_waitcnt lgkmcnt(0)")
        srd(a, 8, 4, 0, nbytes)
        for j in range(8):
            a(f"v_add_u32 v2, {4096*j}, v1")
            a(f"buffer_load_dwordx4 {v(4+4*j,4)}, v2, s[8:11], 0 offen")
        a("s_waitcnt vmcnt(0)")
        a(f"s_branch {end_label}")
        a.label(nxt)
        base += c
    a.label(skip)
    a(f"s_sub_u32 s2, s2, {total}")
    return total


def tail_prefetch(a, task, lane, regions, vtmp, vdst):
    ntask = 2048
    total = sum(n for _, n in regions)
    per = total // ntask
    assert per * ntask == total and per % 1024 == 0
    nld = per // 1024
    base = 0
    done = a.newlabel("L_pfdone")
    for arg, nbytes in regions:
        cnt = nbytes // per
        assert cnt * per == nbytes
        nxt = a.newlabel("L_pfn")
        a(f"s_cmp_ge_u32 s{task}, {base + cnt}")
        a(f"s_cbranch_scc1 {nxt}")
        a(f"s_load_dwordx2 s[94:95], s[0:1], {ARG[arg]}")
        a(f"s_sub_u32 s93, s{task}, {base}")
        a(f"s_mul_i32 s93, s93, {per}")
        a(f"v_lshlrev_b32 {v(vtmp)}, 4, {v(lane)}")
        a(f"v_add_u32 {v(vtmp)}, s93, {v(vtmp)}")
        a("s_waitcnt lgkmcnt(0)")
        srd(a, 96, 94, 0, nbytes)
        for j in range(nld):
            if j and j % 4 == 0:
                a(f"v_add_u32 {v(vtmp)}, 4096, {v(vtmp)}")
            a(f"buffer_load_dwordx4 {v(vdst,4)}, {v(vtmp)}, s[96:99], 0 offen offset:{1024*(j%4)}")
        a(f"s_branch {done}")
        a.label(nxt)
        base += cnt
    a.label(done)
    return nld

def gen_ln(a, name, src_arg, src_off, dst_off, double, pf=None):
    nwg = S // 4
    kernel_header(a, name)
    end = a.newlabel("L_end")
    npf = 0
    a(f"s_cmp_ge_u32 s2, {nwg}")
    a(f"s_cbranch_scc1 {end}")
    a(f"s_load_dwordx2 s[4:5], s[0:1], {ARG[src_arg]}")
    a(f"s_load_dwordx2 s[6:7], s[0:1], {ARG['ws']}")
    a("v_lshrrev_b32 v1, 6, v0")
    a("v_and_b32 v2, 63, v0")
    a("s_lshl_b32 s3, s2, 2")
    a("v_add_u32 v1, s3, v1")
    a("v_lshlrev_b32 v3, 11, v1")
    a("v_lshl_add_u32 v3, v2, 5, v3")
    for i, m in enumerate([1, 2, 4, 8, 16, 32]):
        a(f"v_xor_b32 v{12+i}, {m}, v2")
        a(f"v_lshlrev_b32 v{12+i}, 2, v{12+i}")
    a("s_waitcnt lgkmcnt(0)")
    srd(a, 8, 4, src_off, S * D * 2)
    srd(a, 12, 6, dst_off, S * D * 2)
    a("buffer_load_dwordx4 v[4:7], v3, s[8:11], 0 offen")
    a("buffer_load_dwordx4 v[8:11], v3, s[8:11], 0 offen offset:16")
    npl = 0
    if pf:
        a("v_readfirstlane_b32 s92, v1")
        a("s_nop 3")
        npl = tail_prefetch(a, 92, 2, pf, 44, 48)
    a(f"s_waitcnt vmcnt({npl})")

    def unpack():
        for i in range(8):
            a(f"v_lshlrev_b32 v{20+2*i}, 16, v{4+i}")
            a(f"v_and_b32 v{21+2*i}, 0xffff0000, v{4+i}")

    def bfly():
        for i in range(6):
            a(f"ds_bpermute_b32 v41, v{12+i}, v40")
            a("s_waitcnt lgkmcnt(0)")
            a("v_add_f32 v40, v40, v41")

    def norm():
        a("v_add_f32 v40, v20, v21")
        for i in range(2, 16):
            a(f"v_add_f32 v40, v40, v{20+i}")
        bfly()
        a("v_mul_f32 v40, 0x3a800000, v40")
        for i in range(16):
            a(f"v_sub_f32 v{20+i}, v{20+i}, v40")
        a("v_mul_f32 v40, v20, v20")
        for i in range(1, 16):
            a(f"v_fmac_f32 v40, v{20+i}, v{20+i}")
        bfly()
        a("v_mov_b32 v42, 0x3727c5ac")
        a("v_fma_f32 v40, v40, v43, v42")
        a("v_rsq_f32 v40, v40")
        a("s_nop 0")
        for i in range(16):
            a(f"v_mul_f32 v{20+i}, v{20+i}, v40")
        for i in range(8):
            a(f"v_cvt_pk_bf16_f32 v{4+i}, v{20+2*i}, v{21+2*i}")

    a("v_mov_b32 v43, 0x3a800000")
    unpack()
    norm()
    if double:
        unpack()
        norm()
    a("buffer_store_dwordx4 v[4:7], v3, s[12:15], 0 offen")
    a("buffer_store_dwordx4 v[8:11], v3, s[12:15], 0 offen offset:16")
    a.label(end)
    a("s_endpgm")
    return dict(name=name, grid=nwg + npf, block=256, lds=0, desc=kernel_desc(name, 56))


def gen_gemm(a, name, N, K, BN, a_off, w_arg, epi, out_arg, out_off, res_arg=None, res_off=0,
             bias_arg=None, BM=128, NSTAGE=3, RA=4, RBN=8, ln=None, a_arg='ws'):
    import struct
    M = S
    BK = 64
    NT_M = M // BM
    NT_N = N // BN
    ntiles = NT_M * NT_N
    MT = BM // 2 // 16
    NTW = BN // 2 // 16
    RB = {64: 128, 128: 256, 192: 128, 96: 64, 224: 64, 112: 32}[BN]
    ABYTES = BM * BK * 2
    BBYTES = BK * BN * 2
    STAGE = ABYTES + BBYTES
    PA = ABYTES // 1024 // 4
    PB = BBYTES // 1024 // 4
    assert PA * 4096 == ABYTES and PB * 4096 == BBYTES
    P = PA + PB
    NS = K // BK
    lds = STAGE * NSTAGE
    CROW = BN * 4 + 16
    RTAB = BM * CROW
    CTAB = RTAB + BM * 8
    assert CTAB + BN * 4 <= lds
    PPR = RB // 32
    lg_ppr = int(math.log2(PPR))

    vA = list(range(2, 2 + PA))
    vB = list(range(2 + PA, 2 + PA + PB))
    nxt = 2 + PA + PB
    vXb = [nxt, nxt + 1]; nxt += 2
    vWb = list(range(nxt, nxt + NTW)); nxt += NTW
    vXc = [nxt, nxt + 1]; nxt += 2
    vWc = list(range(nxt, nxt + NTW)); nxt += NTW
    vT = list(range(nxt, nxt + 8)); nxt += 8
    nxt = (nxt + 3) // 4 * 4
    FX = [nxt, nxt + 4 * MT]; nxt += 8 * MT
    FW = [nxt, nxt + 4 * NTW]; nxt += 8 * NTW
    ACC = nxt; nxt += 4 * MT * NTW
    nvgpr = nxt
    assert nvgpr <= 256
    t0, t1, t2, t3 = vT[0], vT[1], vT[2], vT[3]

    def acc(nt, mt):
        return ACC + 4 * (nt * MT + mt)

    def stamp(i):
        if 'stamp' in EXP:
            a(f"s_memtime s[{60+2*i}:{61+2*i}]")
            if i >= 6: a("s_waitcnt lgkmcnt(0)")

    def stamp_out():
        if 'stamp' not in EXP: return
        a("s_waitcnt lgkmcnt(0)")
        srd(a, 80, 24, 200 * MB, 1 << 20)
        a("s_lshl_b32 s3, s2, 3")
        a("s_add_u32 s3, s3, s49")
        a("s_lshl_b32 s3, s3, 6")
        a("v_mov_b32 v2, s3")
        for i in range(8):
            a(f"v_mov_b32 v4, s{60+2*i}")
            a(f"v_mov_b32 v5, s{61+2*i}")
            a(f"buffer_store_dwordx2 v[4:5], v2, s[80:83], 0 offen offset:{8*i}")
            a("s_nop 1")

    def wfrag_addr_common():
        a(f"v_lshrrev_b32 {v(t1)}, 4, v1")
        a(f"v_bfe_u32 {v(t0)}, v1, 2, 2")
        a(f"v_lshl_add_u32 {v(t2)}, {v(t1)}, 3, {v(t0)}")
        if RB == 256:
            a(f"v_and_b32 {v(t3)}, 1, {v(t1)}")
            a(f"v_lshl_add_u32 {v(t3)}, {v(t3)}, 2, {v(t0)}")
        elif RB == 128:
            a(f"v_and_b32 {v(t3)}, 1, {v(t1)}")
            a(f"v_lshrrev_b32 {v(t0)}, 1, {v(t0)}")
            a(f"v_lshl_add_u32 {v(t3)}, {v(t3)}, 1, {v(t0)}")
        elif RB == 64:
            a(f"v_and_b32 {v(t3)}, 1, {v(t1)}")
        else:
            a(f"v_mov_b32 {v(t3)}, 0")
        a(f"v_mul_u32_u24 {v(t2)}, {RB}, {v(t2)}")
        a(f"v_and_b32 {v(t0)}, 3, v1")
        a(f"v_lshl_add_u32 {v(t2)}, {v(t0)}, 3, {v(t2)}")
        a(f"v_add_u32 {v(t2)}, {ABYTES}, {v(t2)}")

    def wfrag_addr(dst):
        if PPR > 1:
            a(f"s_lshr_b32 s47, s46, {lg_ppr}")
            a(f"s_and_b32 s46, s46, {PPR-1}")
        else:
            a("s_mov_b32 s47, s46")
            a("s_mov_b32 s46, 0")
        a(f"s_mul_i32 s47, s47, {64*RB}")
        a(f"v_xor_b32 {v(t0)}, s46, {v(t3)}")
        a(f"v_lshl_add_u32 {v(t0)}, {v(t0)}, 5, {v(t2)}")
        a(f"v_add_u32 {v(dst)}, s47, {v(t0)}")

    kernel_header(a, name)
    end = a.newlabel("L_end")
    stamp(0)
    lab_loader = a.newlabel("L_loader")
    lab_store = a.newlabel("L_store")
    a(f"s_cmp_ge_u32 s2, {ntiles}")
    a(f"s_cbranch_scc1 {end}")
    a(f"s_load_dwordx2 s[24:25], s[0:1], {ARG['ws']}")
    a(f"s_load_dwordx2 s[58:59], s[0:1], {ARG[a_arg]}")
    a(f"s_load_dwordx2 s[26:27], s[0:1], {ARG[w_arg]}")
    a(f"s_load_dwordx2 s[34:35], s[0:1], {ARG[out_arg]}")
    if res_arg:
        a(f"s_load_dwordx2 s[36:37], s[0:1], {ARG[res_arg]}")
    if bias_arg:
        a(f"s_load_dwordx2 s[38:39], s[0:1], {ARG[bias_arg]}")
    assert ntiles == 256 and RA * RBN == 32 and NT_M % RA == 0 and NT_N % RBN == 0
    XB = NT_N // RBN
    a("s_and_b32 s3, s2, 7")
    a("s_lshr_b32 s46, s2, 3")
    a(f"s_lshr_b32 s28, s3, {int(math.log2(XB))}")
    a(f"s_and_b32 s29, s3, {XB-1}")
    a(f"s_mul_i32 s28, s28, {RA}")
    a(f"s_mul_i32 s29, s29, {RBN}")
    a(f"s_lshr_b32 s3, s46, {int(math.log2(RBN))}")
    a("s_add_u32 s28, s28, s3")
    a(f"s_and_b32 s3, s46, {RBN-1}")
    a("s_add_u32 s29, s29, s3")
    a("v_and_b32 v1, 63, v0")
    a(f"v_lshrrev_b32 {v(vT[0])}, 6, v0")
    a("s_nop 0")
    a(f"v_readfirstlane_b32 s49, {v(vT[0])}")
    a("s_nop 3")
    a("s_and_b32 s30, s49, 3")
    a("s_lshr_b32 s44, s30, 1")
    a("s_and_b32 s45, s30, 1")

    def build_srds():
        a("s_waitcnt lgkmcnt(0)")
        srd(a, 4, 58, a_off, M * K * 2)
        srd(a, 8, 26, 0, K * N * 2)
        srd(a, 12, 34, out_off, M * N * 2)
        if res_arg:
            srd(a, 16, 36, res_off, M * N * 2)
        if bias_arg:
            srd(a, 20, 38, 0, N * 2)

    a("s_cmp_ge_u32 s49, 4")
    a(f"s_cbranch_scc1 {lab_loader}")

    a(f"v_and_b32 {v(t0)}, 15, v1")
    a("s_lshl_b32 s3, s44, 6")
    a(f"v_add_u32 {v(t0)}, s3, {v(t0)}")
    a(f"v_lshlrev_b32 {v(t0)}, 7, {v(t0)}")
    a(f"v_lshrrev_b32 {v(t1)}, 4, v1")
    a(f"v_bfe_u32 {v(t2)}, v1, 1, 3")
    a(f"v_xor_b32 {v(t3)}, {v(t1)}, {v(t2)}")
    a(f"v_lshl_add_u32 {v(vXb[0])}, {v(t3)}, 4, {v(t0)}")
    a(f"v_xor_b32 {v(t3)}, 4, {v(t3)}")
    a(f"v_lshl_add_u32 {v(vXb[1])}, {v(t3)}, 4, {v(t0)}")
    wfrag_addr_common()
    a(f"s_mul_i32 s3, s45, {NTW}")
    for nt in range(NTW):
        a(f"s_add_u32 s46, s3, {nt}")
        wfrag_addr(vWb[nt])
    for i in range(4 * MT * NTW):
        a(f"v_mov_b32 v{ACC+i}, 0")
    a("s_mov_b32 s42, 0")
    build_srds()

    def set_cur():
        for kk in range(2):
            a(f"v_add_u32 {v(vXc[kk])}, s42, {v(vXb[kk])}")
        for nt in range(NTW):
            a(f"v_add_u32 {v(vWc[nt])}, s42, {v(vWb[nt])}")
        a(f"s_add_u32 s42, s42, {STAGE}")
        a(f"s_cmp_ge_u32 s42, {STAGE*NSTAGE}")
        a("s_cselect_b32 s42, 0, s42")

    def read_list(kk, f):
        if 'noreads' in EXP: return []
        L = []
        for nt in range(NTW):
            if nt < MT:
                L.append(f"ds_read_b128 {v(FX[f]+4*nt,4)}, {v(vXc[kk])} offset:{nt*2048}")
            for rd in range(2):
                L.append(f"ds_read_b64_tr_b16 {v(FW[f]+4*nt+2*rd,2)}, {v(vWc[nt])} offset:{kk*32*RB+rd*4*RB}")
        for mt in range(NTW, MT):
            L.append(f"ds_read_b128 {v(FX[f]+4*mt,4)}, {v(vXc[kk])} offset:{mt*2048}")
        return L

    def mfma_list(f):
        if 'nomfma' in EXP: return []
        L = []
        for nt in range(NTW):
            for mt in range(MT):
                L.append(f"v_mfma_f32_16x16x32_bf16 {v(acc(nt,mt),4)}, {v(FW[f]+4*nt,4)}, {v(FX[f]+4*mt,4)}, {v(acc(nt,mt),4)}")
        return L

    def reads(kk, f):
        for x in read_list(kk, f): a(x)

    def mfmas(f):
        for x in mfma_list(f): a(x)

    def inter(kk, fr, fm):
        R = read_list(kk, fr); Mm = mfma_list(fm)
        n = max(len(R), len(Mm))
        for i in range(n):
            if i < len(Mm): a(Mm[i])
            if i < len(R): a(R[i])

    stamp(1)
    a("s_barrier")
    stamp(2)
    set_cur()
    reads(0, 0)
    a("s_waitcnt lgkmcnt(0)")
    inter(1, 1, 0)
    a("s_waitcnt lgkmcnt(0)")
    a(f"s_mov_b32 s48, {NS-1}")
    loop = a.newlabel("L_cloop")
    a.label(loop)
    a("s_barrier")
    set_cur()
    inter(0, 0, 1)
    a("s_waitcnt lgkmcnt(0)")
    inter(1, 1, 0)
    a("s_waitcnt lgkmcnt(0)")
    a("s_sub_u32 s48, s48, 1")
    a("s_cmp_lg_u32 s48, 0")
    a(f"s_cbranch_scc1 {loop}")
    stamp(3)
    mfmas(1)
    a("s_barrier")
    vc = vT[0]
    a(f"v_and_b32 {v(t2)}, 15, v1")
    a("s_lshl_b32 s3, s44, 6")
    a(f"v_add_u32 {v(t2)}, s3, {v(t2)}")
    a(f"v_mul_u32_u24 {v(t2)}, {CROW}, {v(t2)}")
    a(f"v_lshrrev_b32 {v(t3)}, 4, v1")
    a(f"v_lshlrev_b32 {v(t3)}, 4, {v(t3)}")
    a(f"s_mul_i32 s3, s45, {BN*2}")
    a(f"v_add_u32 {v(t3)}, s3, {v(t3)}")
    a(f"v_add_u32 {v(vc)}, {v(t2)}, {v(t3)}")
    a("s_nop 4")
    for nt in range(NTW):
        for mt in range(MT):
            a(f"ds_write_b128 {v(vc)}, {v(acc(nt,mt),4)} offset:{mt*16*CROW + nt*64}")
    a("s_waitcnt lgkmcnt(0)")
    stamp(4)
    a("s_barrier")
    a(f"s_branch {lab_store}")

    a.label(lab_loader)
    if 'noprio' not in EXP: a("s_setprio 2")
    NPL = (BN // 16 + 3) // 4
    LSA = 40
    LCW = 44
    LSC = 48; LCC = 52
    LONE = 56
    LST = 60
    LCS = 68
    LSD = 84
    LWD = 100
    assert vT[7] < 40
    a(f"s_mul_i32 s3, s30, {PA*8}")
    a(f"v_lshrrev_b32 {v(t0)}, 3, v1")
    a(f"v_add_u32 {v(t0)}, s3, {v(t0)}")
    a(f"s_mul_i32 s3, s28, {BM}")
    for i in range(PA):
        a(f"v_add_u32 {v(t1)}, {8*i}, {v(t0)}")
        a(f"v_lshrrev_b32 {v(t2)}, 1, {v(t1)}")
        a(f"v_and_b32 {v(t2)}, 7, {v(t2)}")
        a(f"v_and_b32 {v(t3)}, 7, v1")
        a(f"v_xor_b32 {v(t2)}, {v(t2)}, {v(t3)}")
        if ln:
            a(f"v_lshlrev_b32 {v(LSA+i)}, 7, {v(t1)}")
            a(f"v_lshl_add_u32 {v(LSA+i)}, {v(t3)}, 4, {v(LSA+i)}")
        a(f"v_add_u32 {v(t1)}, s3, {v(t1)}")
        a(f"v_mul_u32_u24 {v(t1)}, {K*2}, {v(t1)}")
        a(f"v_lshl_add_u32 {v(vA[i])}, {v(t2)}, 4, {v(t1)}")
    CPR = RB // 16
    lg_cpr = int(math.log2(CPR))
    RPP = 1024 // RB
    PPB = RB // 16
    lg_ppb = int(math.log2(PPB))
    a(f"s_mul_i32 s3, s29, {BN*2}")
    for i in range(PB):
        a(f"s_mul_i32 s46, s30, {PB}")
        a(f"s_add_u32 s46, s46, {i}")
        a(f"s_lshr_b32 s47, s46, {lg_ppb}")
        a(f"s_and_b32 s46, s46, {PPB-1}")
        a(f"s_mul_i32 s46, s46, {RPP}")
        a(f"s_mul_i32 s47, s47, {RB}")
        a("s_add_u32 s47, s47, s3")
        a(f"v_lshrrev_b32 {v(t0)}, {lg_cpr}, v1")
        a(f"v_add_u32 {v(t0)}, s46, {v(t0)}")
        a(f"v_and_b32 {v(t1)}, {CPR-1}, v1")
        if RB == 256:
            a(f"v_and_b32 {v(t2)}, 3, {v(t0)}")
            a(f"v_bfe_u32 {v(t3)}, {v(t0)}, 3, 1")
            a(f"v_lshl_add_u32 {v(t2)}, {v(t3)}, 2, {v(t2)}")
        elif RB == 128:
            a(f"v_bfe_u32 {v(t2)}, {v(t0)}, 1, 1")
            a(f"v_bfe_u32 {v(t3)}, {v(t0)}, 3, 1")
            a(f"v_lshl_add_u32 {v(t2)}, {v(t3)}, 1, {v(t2)}")
        elif RB == 64:
            a(f"v_bfe_u32 {v(t2)}, {v(t0)}, 3, 1")
        else:
            a(f"v_mov_b32 {v(t2)}, 0")
        a(f"v_lshlrev_b32 {v(t2)}, 1, {v(t2)}")
        a(f"v_xor_b32 {v(t1)}, {v(t1)}, {v(t2)}")
        a(f"v_mul_u32_u24 {v(t0)}, {N*2}, {v(t0)}")
        a(f"v_lshl_add_u32 {v(t0)}, {v(t1)}, 4, {v(t0)}")
        a(f"v_add_u32 {v(vB[i])}, s47, {v(t0)}")
    a(f"s_mul_i32 s31, s30, {PA*1024}")
    a(f"s_mul_i32 s32, s30, {PB*1024}")
    a(f"s_add_u32 s32, s32, {ABYTES}")
    a("s_mov_b32 s40, 0")
    a("s_mov_b32 s41, 0")
    a("s_mov_b32 s43, 0")
    a("s_mov_b32 s42, 0")
    build_srds()

    def dma():
        if 'nodma' in EXP: return
        a("s_add_u32 s33, s43, s31")
        for i in range(PA):
            a(f"s_add_u32 m0, s33, {i*1024}")
            a("s_nop 0")
            a(f"buffer_load_dwordx4 {v(vA[i])}, s[4:7], s40 offen lds")
        a("s_add_u32 s33, s43, s32")
        for i in range(PB):
            a(f"s_add_u32 m0, s33, {i*1024}")
            a("s_nop 0")
            a(f"buffer_load_dwordx4 {v(vB[i])}, s[8:11], s41 offen lds")
        a(f"s_add_u32 s40, s40, {BK*2}")
        a(f"s_add_u32 s41, s41, {BK*N*2}")
        a(f"s_add_u32 s43, s43, {STAGE}")
        a(f"s_cmp_ge_u32 s43, {STAGE*NSTAGE}")
        a("s_cselect_b32 s43, 0, s43")

    stamp(1)
    for _ in range(NSTAGE - 1):
        dma()
    stamp(2)
    if ln:
        wfrag_addr_common()
        for i in range(NPL):
            a(f"s_mul_i32 s46, s30, {NPL}")
            a(f"s_add_u32 s46, s46, {i}")
            a(f"s_min_u32 s46, s46, {BN//16-1}")
            wfrag_addr(LCW + i)
        for i in range(4):
            a(f"v_mov_b32 {v(LONE+i)}, 0x3f803f80")
        for i in range(2 * PA):
            a(f"v_mov_b32 {v(LST+i)}, 0")
        for i in range(4 * NPL):
            a(f"v_mov_b32 {v(LCS+i)}, 0")

    def stats_reads():
        for i in range(PA):
            a(f"v_add_u32 {v(LSC+i)}, s42, {v(LSA+i)}")
        for i in range(NPL):
            a(f"v_add_u32 {v(LCC+i)}, s42, {v(LCW+i)}")
        a(f"s_add_u32 s42, s42, {STAGE}")
        a(f"s_cmp_ge_u32 s42, {STAGE*NSTAGE}")
        a("s_cselect_b32 s42, 0, s42")
        for i in range(PA):
            a(f"ds_read_b128 {v(LSD+4*i,4)}, {v(LSC+i)}")
        for i in range(NPL):
            for kk in range(2):
                for rd in range(2):
                    a(f"ds_read_b64_tr_b16 {v(LWD+8*i+4*kk+2*rd,2)}, {v(LCC+i)} offset:{kk*32*RB+rd*4*RB}")

    def stats_math():
        a("s_waitcnt lgkmcnt(0)")
        for i in range(NPL):
            for kk in range(2):
                a(f"v_mfma_f32_16x16x32_bf16 {v(LCS+4*i,4)}, {v(LWD+8*i+4*kk,4)}, {v(LONE,4)}, {v(LCS+4*i,4)}")
        for j in range(4):
            for i in range(PA):
                d = v(LSD + 4 * i + j)
                a(f"v_dot2_f32_bf16 {v(LST+2*i)}, {d}, {v(LONE)}, {v(LST+2*i)}")
                a(f"v_dot2_f32_bf16 {v(LST+2*i+1)}, {d}, {d}, {v(LST+2*i+1)}")

    nloop = NS - NSTAGE + 1
    a(f"s_mov_b32 s48, {nloop}")
    lloop = a.newlabel("L_lloop")
    a.label(lloop)
    a(f"s_waitcnt vmcnt({(NSTAGE-2)*P})")
    a("s_barrier")
    if ln: stats_reads()
    dma()
    if ln: stats_math()
    a("s_sub_u32 s48, s48, 1")
    a("s_cmp_lg_u32 s48, 0")
    a(f"s_cbranch_scc1 {lloop}")
    for j in range(NS - NSTAGE + 1, NS):
        a(f"s_waitcnt vmcnt({(NS-1-j)*P})")
        a("s_barrier")
        if ln:
            stats_reads()
            stats_math()
    stamp(3)
    if ln:
        a("s_nop 3")
        X0 = LSD
        for mode in ("quad_perm:[1,0,3,2]", "quad_perm:[2,3,0,1]", "row_half_mirror"):
            for k_ in range(2 * PA):
                a(f"v_add_f32_dpp {v(X0+k_)}, {v(LST+k_)}, {v(LST+k_)} {mode} row_mask:0xf bank_mask:0xf")
            a("s_nop 1")
            for k_ in range(2 * PA):
                a(f"v_mov_b32 {v(LST+k_)}, {v(X0+k_)}")
            a("s_nop 1")
        for i in range(PA):
            sm, sq = LST + 2 * i, LST + 2 * i + 1
            r1, r2 = X0 + 2 * i, X0 + 2 * i + 1
            a(f"v_mul_f32 {v(sm)}, {hex_f32(1.0/K)}, {v(sm)}")
            a(f"v_mul_f32 {v(sq)}, {hex_f32(1.0/K)}, {v(sq)}")
            a(f"v_fma_f32 {v(sq)}, -{v(sm)}, {v(sm)}, {v(sq)}")
            a(f"v_max_f32 {v(sq)}, 0, {v(sq)}")
            a(f"v_add_f32 {v(r1)}, {hex_f32(1e-5)}, {v(sq)}")
            a(f"v_rsq_f32 {v(r1)}, {v(r1)}")
            a("s_nop 0")
            if ln == 'double':
                a(f"v_mul_f32 {v(r2)}, {v(r1)}, {v(r1)}")
                a(f"v_mul_f32 {v(r2)}, {v(r2)}, {v(sq)}")
                a(f"v_add_f32 {v(r2)}, {hex_f32(1e-5)}, {v(r2)}")
                a(f"v_rsq_f32 {v(r2)}, {v(r2)}")
                a("s_nop 0")
                a(f"v_mul_f32 {v(r1)}, {v(r1)}, {v(r2)}")
            a(f"v_mul_f32 {v(r2)}, {v(sm)}, {v(r1)}")
            a(f"v_sub_f32 {v(r2)}, 0, {v(r2)}")
            a(f"v_lshrrev_b32 {v(LSC+i)}, 7, {v(LSA+i)}")
            a(f"v_lshlrev_b32 {v(LSC+i)}, 3, {v(LSC+i)}")
            a(f"v_add_u32 {v(LSC+i)}, {RTAB}, {v(LSC+i)}")
        a(f"v_lshrrev_b32 {v(t0)}, 4, v1")
        a(f"v_lshlrev_b32 {v(t0)}, 4, {v(t0)}")
        for i in range(NPL):
            a(f"s_mul_i32 s46, s30, {NPL}")
            a(f"s_add_u32 s46, s46, {i}")
            a(f"s_min_u32 s46, s46, {BN//16-1}")
            a("s_lshl_b32 s46, s46, 6")
            a(f"s_add_u32 s46, s46, {CTAB}")
            a(f"v_add_u32 {v(LCC+i)}, s46, {v(t0)}")
    a("s_barrier")
    if ln:
        for i in range(PA):
            a(f"ds_write_b64 {v(LSC+i)}, {v(LSD+2*i,2)}")
        for i in range(NPL):
            a(f"ds_write_b128 {v(LCC+i)}, {v(LCS+4*i,4)}")
        a("s_waitcnt lgkmcnt(0)")
    stamp(4)
    a("s_barrier")

    a.label(lab_store)
    CPRW = BN // 8
    NIT = BM * CPRW // 512
    assert NIT * 512 == BM * CPRW
    magic = ((1 << 32) + CPRW - 1) // CPRW
    a(f"s_mov_b32 s46, {magic}")
    a(f"s_mul_i32 s3, s49, {NIT*64}")
    a(f"v_add_u32 {v(t0)}, s3, v1")
    a(f"s_mul_i32 s3, s28, {BM}")
    a(f"s_mul_i32 s47, s29, {BN*2}")
    R0 = (vT[7] + 4) // 4 * 4
    RR = R0 + 8 * NIT
    RBI = RR + 4 * NIT
    RCS = RBI + 4 * NIT
    RRS = RCS + (8 * NIT if ln else 0)
    OFF = RRS + (2 * NIT if ln else 0)
    GT = (OFF + NIT + 3) // 4 * 4
    assert GT + 10 <= 256
    for it in range(NIT):
        a(f"v_add_u32 {v(t1)}, {it*64}, {v(t0)}")
        a(f"v_mul_hi_u32 {v(t2)}, {v(t1)}, s46")
        a(f"v_mul_u32_u24 {v(t3)}, {CPRW}, {v(t2)}")
        a(f"v_sub_u32 {v(t3)}, {v(t1)}, {v(t3)}")
        a(f"v_mul_u32_u24 {v(t1)}, {CROW}, {v(t2)}")
        a(f"v_lshl_add_u32 {v(t1)}, {v(t3)}, 5, {v(t1)}")
        a(f"ds_read_b128 {v(R0+8*it,4)}, {v(t1)}")
        a(f"ds_read_b128 {v(R0+8*it+4,4)}, {v(t1)} offset:16")
        if ln:
            a(f"v_lshlrev_b32 {v(t1)}, 3, {v(t2)}")
            a(f"v_add_u32 {v(t1)}, {RTAB}, {v(t1)}")
            a(f"ds_read_b64 {v(RRS+2*it,2)}, {v(t1)}")
            a(f"v_lshlrev_b32 {v(t1)}, 5, {v(t3)}")
            a(f"v_add_u32 {v(t1)}, {CTAB}, {v(t1)}")
            a(f"ds_read_b128 {v(RCS+8*it,4)}, {v(t1)}")
            a(f"ds_read_b128 {v(RCS+8*it+4,4)}, {v(t1)} offset:16")
        a(f"v_add_u32 {v(t2)}, s3, {v(t2)}")
        a(f"v_mul_u32_u24 {v(t2)}, {N*2}, {v(t2)}")
        a(f"v_lshlrev_b32 {v(t3)}, 4, {v(t3)}")
        a(f"v_add_u32 {v(t3)}, s47, {v(t3)}")
        a(f"v_add_u32 {v(OFF+it)}, {v(t3)}, {v(t2)}")
        if res_arg:
            a(f"buffer_load_dwordx4 {v(RR+4*it,4)}, {v(OFF+it)}, s[16:19], 0 offen")
        if bias_arg:
            a(f"buffer_load_dwordx4 {v(RBI+4*it,4)}, {v(t3)}, s[20:23], 0 offen")
    if epi == 'gelu':
        c2 = 2 * math.log2(math.e)
        k1 = struct.unpack("<I", struct.pack("<f", 0.7978845608 * c2))[0]
        k3 = struct.unpack("<I", struct.pack("<f", 0.7978845608 * 0.044715 * c2))[0]
        a(f"s_mov_b32 s52, {k3}"); a(f"s_mov_b32 s53, {k3}")
        a(f"v_mov_b32 {v(GT+8)}, {k1}"); a(f"v_mov_b32 {v(GT+9)}, {k1}")
        a("s_mov_b32 s56, 1.0"); a("s_mov_b32 s57, 1.0")
    a("s_waitcnt vmcnt(0) lgkmcnt(0)")
    stamp(5)
    for it in range(NIT):
        c0 = R0 + 8 * it
        if ln:
            for j in range(8):
                a(f"v_mul_f32 {v(RCS+8*it+j)}, {v(RCS+8*it+j)}, {v(RRS+2*it+1)}")
            for j in range(8):
                a(f"v_fma_f32 {v(c0+j)}, {v(c0+j)}, {v(RRS+2*it)}, {v(RCS+8*it+j)}")
        if bias_arg:
            for j in range(4):
                b = RBI + 4 * it + j
                a(f"v_lshlrev_b32 {v(GT+2*j)}, 16, {v(b)}")
                a(f"v_and_b32 {v(GT+2*j+1)}, 0xffff0000, {v(b)}")
            for j in range(4):
                a(f"v_pk_add_f32 {v(c0+2*j,2)}, {v(c0+2*j,2)}, {v(GT+2*j,2)}")
        if epi == 'gelu':
            for j in range(4):
                a(f"v_pk_mul_f32 {v(GT+2*j,2)}, {v(c0+2*j,2)}, {v(c0+2*j,2)}")
            for j in range(4):
                a(f"v_pk_fma_f32 {v(GT+2*j,2)}, {v(GT+2*j,2)}, s[52:53], {v(GT+8,2)}")
            for j in range(4):
                a(f"v_pk_mul_f32 {v(GT+2*j,2)}, {v(GT+2*j,2)}, {v(c0+2*j,2)}")
            for r in range(8):
                a(f"v_exp_f32 {v(GT+r)}, {v(GT+r)}")
            a("s_nop 0")
            for j in range(4):
                a(f"v_pk_add_f32 {v(GT+2*j,2)}, {v(GT+2*j,2)}, s[56:57]")
            for r in range(8):
                a(f"v_rcp_f32 {v(GT+r)}, {v(GT+r)}")
            a("s_nop 0")
            for j in range(4):
                cc = v(c0 + 2 * j, 2)
                a(f"v_pk_fma_f32 {cc}, {cc}, {v(GT+2*j,2)}, {cc} neg_lo:[1,0,0] neg_hi:[1,0,0]")
        for j in range(4):
            a(f"v_cvt_pk_bf16_f32 {v(c0+j)}, {v(c0+2*j)}, {v(c0+2*j+1)}")
        if res_arg:
            for j in range(4):
                d = c0 + j
                r = RR + 4 * it + j
                a(f"v_lshlrev_b32 {v(GT)}, 16, {v(d)}")
                a(f"v_lshlrev_b32 {v(GT+1)}, 16, {v(r)}")
                a(f"v_and_b32 {v(GT+2)}, 0xffff0000, {v(d)}")
                a(f"v_and_b32 {v(GT+3)}, 0xffff0000, {v(r)}")
                a(f"v_add_f32 {v(GT)}, {v(GT)}, {v(GT+1)}")
                a(f"v_add_f32 {v(GT+2)}, {v(GT+2)}, {v(GT+3)}")
                a(f"v_cvt_pk_bf16_f32 {v(d)}, {v(GT)}, {v(GT+2)}")
        a(f"buffer_store_dwordx4 {v(c0,4)}, {v(OFF+it)}, s[12:15], 0 offen")
    stamp(6)
    if 'stamp' in EXP: a("s_waitcnt vmcnt(0)")
    stamp(7)
    stamp_out()
    a.label(end)
    a("s_endpgm")
    return dict(name=name, grid=ntiles, block=512, lds=lds, desc=kernel_desc(name, max(nvgpr, GT + 10, 136)))


def gen_attn(a, name, pf=None):
    import struct
    NQB = S // 32
    ntask = H * NQB
    nwg = ntask // 4
    QKV_ROW = 3 * D * 2
    KLDS = 384 * 64
    lds = 2 * KLDS
    kernel_header(a, name)
    end = a.newlabel("L_end")
    npf = 0
    a(f"s_cmp_ge_u32 s2, {nwg}")
    a(f"s_cbranch_scc1 {end}")
    a(f"s_load_dwordx2 s[24:25], s[0:1], {ARG['ws']}")
    a("v_and_b32 v1, 63, v0")
    a("v_lshrrev_b32 v2, 6, v0")
    a("s_nop 0")
    a("v_readfirstlane_b32 s30, v2")
    a("s_nop 3")
    a("s_lshl_b32 s3, s2, 2")
    a("s_add_u32 s92, s3, s30")
    a("s_and_b32 s28, s2, 31")
    a("s_lshr_b32 s29, s2, 5")
    a("s_lshl_b32 s39, s29, 7")
    a("s_sub_u32 s39, s39, 256")
    a("s_lshl_b32 s3, s30, 5")
    a("s_add_u32 s32, s39, s3")
    a("s_add_u32 s31, s32, 256")
    a("s_lshl_b32 s33, s28, 6")
    a(f"s_add_u32 s35, s33, {2*D*2}")
    a(f"s_add_u32 s36, s33, {D*2}")
    a("v_and_b32 v2, 31, v1")
    a("v_lshrrev_b32 v3, 5, v1")
    a("v_add_u32 v4, s31, v2")
    a(f"v_mul_u32_u24 v4, {QKV_ROW}, v4")
    a("v_lshl_add_u32 v4, v3, 4, v4")
    a("v_add_u32 v4, s33, v4")
    a("s_waitcnt lgkmcnt(0)")
    srd(a, 4, 24, WS_QKV, S * 3 * D * 2)
    srd(a, 8, 24, WS_O, S * D * 2)
    a("v_lshrrev_b32 v5, 2, v1")
    a("v_and_b32 v6, 3, v1")
    a("v_bfe_u32 v7, v1, 4, 2")
    a("v_xor_b32 v7, v7, v6")
    a("s_mul_i32 s3, s30, 96")
    a("s_add_u32 s3, s3, s39")
    a("s_mul_i32 s34, s30, 6144")
    for p in range(6):
        a(f"v_add_u32 v16, {16*p}, v5")
        a("v_add_u32 v16, s3, v16")
        a("v_max_i32 v16, 0, v16")
        a(f"v_mul_u32_u24 v16, {QKV_ROW}, v16")
        a("v_lshl_add_u32 v17, v7, 4, v16")
        a("v_add_u32 v17, s36, v17")
        a(f"s_add_u32 m0, s34, {p*1024}")
        a("v_lshl_add_u32 v16, v6, 4, v16")
        a(f"buffer_load_dwordx4 v17, s[4:7], 0 offen lds")
        a("v_add_u32 v16, s35, v16")
        a(f"s_add_u32 m0, s34, {KLDS + p*1024}")
        a("s_nop 0")
        a(f"buffer_load_dwordx4 v16, s[4:7], 0 offen lds")
    a("buffer_load_dwordx4 v[8:11], v4, s[4:7], 0 offen")
    a("buffer_load_dwordx4 v[12:15], v4, s[4:7], 0 offen offset:32")
    KF = 16
    npl = tail_prefetch(a, 92, 1, pf, 7, 240) if pf else 0
    a("v_bfe_u32 v5, v1, 2, 2")
    a("v_xor_b32 v5, v5, v3")
    a("v_lshlrev_b32 v6, 6, v2")
    a("s_lshl_b32 s34, s30, 11")
    a("v_add_u32 v6, s34, v6")
    a("v_lshl_add_u32 v88, v5, 4, v6")
    a("v_xor_b32 v5, 2, v5")
    a("v_lshl_add_u32 v89, v5, 4, v6")
    a(f"s_add_u32 s34, s34, {KLDS}")
    a(f"s_waitcnt vmcnt({npl})")
    a("s_barrier")
    for t_ in range(9):
        a(f"ds_read_b128 {v(KF+8*t_,4)}, v88 offset:{2048*t_}")
        a(f"ds_read_b128 {v(KF+8*t_+4,4)}, v89 offset:{2048*t_}")
    SC = 96
    a("v_mov_b32 v7, 0xf149f2ca")
    for t in range(9):
        a(f"s_waitcnt lgkmcnt({min(15, 2*(8-t))})")
        if t < 8:
            lab_inv = a.newlabel("L_inv"); lab_done = a.newlabel("L_tdone")
            a(f"s_add_i32 s3, s32, {32*t}")
            a("s_cmp_lt_i32 s3, 0")
            a(f"s_cbranch_scc1 {lab_inv}")
        a(f"v_mfma_f32_32x32x16_bf16 {v(SC+16*t,16)}, {v(KF+8*t,4)}, v[8:11], 0")
        a(f"v_mfma_f32_32x32x16_bf16 {v(SC+16*t,16)}, {v(KF+8*t+4,4)}, v[12:15], {v(SC+16*t,16)}")
        if t < 8:
            a(f"s_branch {lab_done}")
            a.label(lab_inv)
            for r in range(16):
                a(f"v_mov_b32 v{SC+16*t+r}, v7")
            a.label(lab_done)
    a("v_lshlrev_b32 v5, 2, v3")
    a("v_sub_u32 v5, v2, v5")
    a("s_nop 7")
    a("s_nop 7")
    for r in range(16):
        c = (r & 3) + 8 * (r >> 2)
        a(f"v_cmp_gt_i32 vcc, {c}, v5")
        a(f"v_cmp_le_i32 s[36:37], {c}, v5")
        a("s_nop 0")
        a(f"v_cndmask_b32 v{SC+r}, v7, v{SC+r}, vcc")
        a(f"v_cndmask_b32 v{SC+128+r}, v7, v{SC+128+r}, s[36:37]")
    a(f"v_max3_f32 v4, v{SC}, v{SC+1}, v{SC+2}")
    a(f"v_max3_f32 v6, v{SC+3}, v{SC+4}, v{SC+5}")
    for i in range(6, 144, 4):
        a(f"v_max3_f32 v4, v4, v{SC+i}, v{SC+i+1}")
        if i + 3 < 144:
            a(f"v_max3_f32 v6, v6, v{SC+i+2}, v{SC+i+3}")
    a("v_max_f32 v4, v4, v6")
    a("v_xor_b32 v88, 32, v1")
    a("v_lshlrev_b32 v88, 2, v88")
    a("ds_bpermute_b32 v89, v88, v4")
    a("s_waitcnt lgkmcnt(0)")
    a("v_max_f32 v4, v4, v89")
    sc = (DH ** -0.5) * math.log2(math.e)
    sc_bits = struct.unpack("<I", struct.pack("<f", sc))[0]
    a(f"s_mov_b32 s38, {sc_bits}")
    a("v_mul_f32 v4, s38, v4")
    sums = [5, 6, 90, 91]
    for sreg in sums:
        a(f"v_mov_b32 v{sreg}, 0")
    for g in range(0, 144, 4):
        for j in range(4):
            a(f"v_fma_f32 v{SC+g+j}, v{SC+g+j}, s38, -v4")
        for j in range(4):
            a(f"v_exp_f32 v{SC+g+j}, v{SC+g+j}")
        if g >= 4:
            for j in range(4):
                a(f"v_add_f32 v{sums[j]}, v{sums[j]}, v{SC+g-4+j}")
            tt, jj = divmod(g - 4, 16)
            a(f"v_cvt_pk_bf16_f32 v{KF+8*tt+jj//2}, v{SC+g-4}, v{SC+g-3}")
            a(f"v_cvt_pk_bf16_f32 v{KF+8*tt+jj//2+1}, v{SC+g-2}, v{SC+g-1}")
    a("s_nop 0")
    g = 144
    for j in range(4):
        a(f"v_add_f32 v{sums[j]}, v{sums[j]}, v{SC+g-4+j}")
    tt, jj = divmod(g - 4, 16)
    a(f"v_cvt_pk_bf16_f32 v{KF+8*tt+jj//2}, v{SC+g-4}, v{SC+g-3}")
    a(f"v_cvt_pk_bf16_f32 v{KF+8*tt+jj//2+1}, v{SC+g-2}, v{SC+g-1}")
    a("v_add_f32 v5, v5, v6")
    a("v_add_f32 v90, v90, v91")
    a("v_add_f32 v5, v5, v90")
    a("ds_bpermute_b32 v89, v88, v5")
    a("v_bfe_u32 v6, v1, 2, 2")
    a("v_lshl_add_u32 v6, v3, 2, v6")
    a("v_lshlrev_b32 v6, 6, v6")
    a("v_bfe_u32 v7, v1, 4, 1")
    a("v_lshl_add_u32 v6, v7, 5, v6")
    a("v_and_b32 v7, 3, v1")
    a("v_lshl_add_u32 v6, v7, 3, v6")
    a("v_add_u32 v6, s34, v6")
    OA = SC
    VF = SC + 16
    a(f"s_waitcnt lgkmcnt(0)")
    a("v_add_f32 v5, v5, v89")
    a("v_rcp_f32 v5, v5")
    for t in range(9):
        for sidx in range(2):
            f = VF + 4 * (2 * t + sidx)
            base = (32 * t + 16 * sidx) * 64
            a(f"ds_read_b64_tr_b16 {v(f,2)}, v6 offset:{base}")
            a(f"ds_read_b64_tr_b16 {v(f+2,2)}, v6 offset:{base+8*64}")
    first = True
    for t in range(9):
        for sidx in range(2):
            f = VF + 4 * (2 * t + sidx)
            idx = 2 * t + sidx
            rem = 36 - 2 * (idx + 1)
            a(f"s_waitcnt lgkmcnt({min(rem,15)})")
            a(f"v_mfma_f32_32x32x16_bf16 {v(OA,16)}, {v(f,4)}, {v(KF+8*t+4*sidx,4)}, {'0' if first else v(OA,16)}")
            first = False
    a("v_add_u32 v7, s31, v2")
    a(f"v_lshlrev_b32 v7, 11, v7")
    a("v_lshl_add_u32 v7, v3, 3, v7")
    a("v_add_u32 v7, s33, v7")
    a("s_nop 7")
    a("s_nop 7")
    for g in range(4):
        for r in range(4):
            a(f"v_mul_f32 v{OA+4*g+r}, v{OA+4*g+r}, v5")
        a(f"v_cvt_pk_bf16_f32 v{OA+4*g}, v{OA+4*g}, v{OA+4*g+1}")
        a(f"v_cvt_pk_bf16_f32 v{OA+4*g+1}, v{OA+4*g+2}, v{OA+4*g+3}")
        a(f"buffer_store_dwordx2 {v(OA+4*g,2)}, v7, s[8:11], 0 offen offset:{16*g}")
    a.label(end)
    a("s_endpgm")
    return dict(name=name, grid=nwg + npf, block=256, lds=lds, desc=kernel_desc(name, 244))


def main():
    a = Asm()
    ks = []
    FUSE = 'nofuse' not in EXP
    if FUSE:
        ks.append(gen_gemm(a, "qkv_kernel", 3 * D, D, 192, 0, "wqkv", "plain", "ws", WS_QKV, NSTAGE=4, RA=8, RBN=4,
                           ln='single', a_arg='x'))
    else:
        ks.append(gen_ln(a, "ln1_kernel", "x", 0, WS_Y1, False, pf=[("wqkv", D*3*D*2), ("wo", D*D*2)]))
        ks.append(gen_gemm(a, "qkv_kernel", 3 * D, D, 192, WS_Y1, "wqkv", "plain", "ws", WS_QKV, NSTAGE=4, RA=8, RBN=4))
    ks.append(gen_attn(a, "attn_kernel", pf=[("w1", D*F*2), ("w2", F*D*2), ("wo", D*D*2)] if FUSE else [("w1", D*F*2), ("w2", F*D*2)]))
    ks.append(gen_gemm(a, "oproj_kernel", D, D, 64, WS_O, "wo", "plain", "ws", WS_H, res_arg="x", NSTAGE=6))
    if FUSE:
        ks.append(gen_gemm(a, "ffn1_kernel", F, D, 224, WS_H, "w1", "gelu", "ws", WS_H1, bias_arg="b1", RA=8, RBN=4,
                           ln='double'))
    else:
        ks.append(gen_ln(a, "ln2_kernel", "ws", WS_H, WS_Y2, True))
        ks.append(gen_gemm(a, "ffn1_kernel", F, D, 224, WS_Y2, "w1", "gelu", "ws", WS_H1, bias_arg="b1", RA=8, RBN=4))
    ks.append(gen_gemm(a, "ffn2_kernel", D, F, 64, WS_H1, "w2", "plain", "out", 0, res_arg="ws", res_off=WS_H,
                       bias_arg="b2", NSTAGE=6))
    hdr = []
    for k in ks:
        hdr.append(f"; @launch kernel={k['name']} grid=({k['grid']},1,1) block=({k['block']},1,1) lds={k['lds']}")
    txt = "\n".join(hdr) + "\n"
    txt += '.amdgcn_target "amdgcn-amd-amdhsa--gfx950"\n.text\n'
    txt += "\n".join(a.lines) + "\n"
    txt += '.section .rodata,"a"\n'
    for k in ks:
        txt += ".p2align 6\n" + k["desc"]
    open(OUT, "w").write(txt)


if __name__ == "__main__":
    main()
```

```python
import sys, math, os
EXP=os.environ.get('EXP','')

OUT = os.environ.get("OUTF","sequential_preLN__sliding_block__mixer_channel_mlp__prompt.s")

S = 2048; D = 1024; F = 3584; H = 32; DH = 32; WIN = 256
ARG = dict(x=0, wqkv=8, wo=16, bx=24, w1=32, b1=40, w2=48, b2=56, out=64, dbg=72, ws=80)
MB = 1 << 20
WS_Y1 = 0
WS_QKV = 4 * MB
WS_O = 16 * MB
WS_H = 20 * MB
WS_Y2 = 24 * MB
WS_H1 = 28 * MB
WS_ST = 0
WS_CS = 1 * MB
WS_SIZE = 256 * MB


class Asm:
    def __init__(self):
        self.lines = []
        self.nlab = 0

    def __call__(self, s):
        self.lines.append("    " + s)

    def label(self, l):
        self.lines.append(l + ":")

    def newlabel(self, base="L"):
        self.nlab += 1
        return f"{base}_{self.nlab}"

    def c(self, s):
        self.lines.append("    ; " + s)


def v(i, n=1):
    return f"v{i}" if n == 1 else f"v[{i}:{i+n-1}]"


def s(i, n=1):
    return f"s{i}" if n == 1 else f"s[{i}:{i+n-1}]"


def srd(a, d, base, off, nbytes):
    if off:
        a(f"s_add_u32 s{d}, s{base}, {off}")
        a(f"s_addc_u32 s{d+1}, s{base+1}, 0")
    else:
        a(f"s_mov_b32 s{d}, s{base}")
        a(f"s_mov_b32 s{d+1}, s{base+1}")
    a(f"s_and_b32 s{d+1}, s{d+1}, 0xffff")
    a(f"s_mov_b32 s{d+2}, {nbytes}")
    a(f"s_mov_b32 s{d+3}, 0x00020000")


def hex_f32(x):
    import struct
    return hex(struct.unpack('<I', struct.pack('<f', x))[0])


def kernel_header(a, name):
    a.lines.append(".p2align 8")
    a.lines.append(f".globl {name}")
    a.lines.append(f".type {name},@function")
    a.label(name)


def kernel_desc(name, nvgpr, nsgpr=102, accum=None):
    nv = ((nvgpr + 7) // 8) * 8
    acc = accum if accum is not None else ((nvgpr + 3) // 4) * 4
    return f""".amdhsa_kernel {name}
  .amdhsa_next_free_vgpr {nv if accum is None else nvgpr}
  .amdhsa_next_free_sgpr {nsgpr}
  .amdhsa_accum_offset {min(acc,256)}
  .amdhsa_group_segment_fixed_size 0
  .amdhsa_kernarg_size 88
  .amdhsa_user_sgpr_count 2
  .amdhsa_user_sgpr_kernarg_segment_ptr 1
  .amdhsa_system_sgpr_workgroup_id_x 1
.end_amdhsa_kernel
"""


def gen_prefetch(a, regions, end_label):
    CH = 32768
    counts = [nbytes // CH for _, nbytes in regions]
    for (_, nbytes), c in zip(regions, counts):
        assert c * CH == nbytes
    total = sum(counts)
    skip = a.newlabel("L_nopf")
    a(f"s_cmp_ge_u32 s2, {total}")
    a(f"s_cbranch_scc1 {skip}")
    base = 0
    for (arg, nbytes), c in zip(regions, counts):
        nxt = a.newlabel("L_pfn")
        a(f"s_cmp_ge_u32 s2, {base + c}")
        a(f"s_cbranch_scc1 {nxt}")
        a(f"s_load_dwordx2 s[4:5], s[0:1], {ARG[arg]}")
        a(f"s_sub_u32 s3, s2, {base}")
        a("s_lshl_b32 s3, s3, 15")
        a("v_lshlrev_b32 v1, 4, v0")
        a("v_add_u32 v1, s3, v1")
        a("s_waitcnt lgkmcnt(0)")
        srd(a, 8, 4, 0, nbytes)
        for j in range(8):
            a(f"v_add_u32 v2, {4096*j}, v1")
            a(f"buffer_load_dwordx4 {v(4+4*j,4)}, v2, s[8:11], 0 offen")
        a("s_waitcnt vmcnt(0)")
        a(f"s_branch {end_label}")
        a.label(nxt)
        base += c
    a.label(skip)
    a(f"s_sub_u32 s2, s2, {total}")
    return total


def tail_prefetch(a, task, lane, regions, vtmp, vdst):
    ntask = 2048
    total = sum(n for _, n in regions)
    per = total // ntask
    assert per * ntask == total and per % 1024 == 0
    nld = per // 1024
    base = 0
    done = a.newlabel("L_pfdone")
    for arg, nbytes in regions:
        cnt = nbytes // per
        assert cnt * per == nbytes
        nxt = a.newlabel("L_pfn")
        a(f"s_cmp_ge_u32 s{task}, {base + cnt}")
        a(f"s_cbranch_scc1 {nxt}")
        a(f"s_load_dwordx2 s[94:95], s[0:1], {ARG[arg]}")
        a(f"s_sub_u32 s93, s{task}, {base}")
        a(f"s_mul_i32 s93, s93, {per}")
        a(f"v_lshlrev_b32 {v(vtmp)}, 4, {v(lane)}")
        a(f"v_add_u32 {v(vtmp)}, s93, {v(vtmp)}")
        a("s_waitcnt lgkmcnt(0)")
        srd(a, 96, 94, 0, nbytes)
        for j in range(nld):
            if j and j % 4 == 0:
                a(f"v_add_u32 {v(vtmp)}, 4096, {v(vtmp)}")
            a(f"buffer_load_dwordx4 {v(vdst,4)}, {v(vtmp)}, s[96:99], 0 offen offset:{1024*(j%4)}")
        a(f"s_branch {done}")
        a.label(nxt)
        base += cnt
    a.label(done)
    return nld

def gen_ln(a, name, src_arg, src_off, dst_off, double, pf=None):
    nwg = S // 4
    kernel_header(a, name)
    end = a.newlabel("L_end")
    npf = 0
    a(f"s_cmp_ge_u32 s2, {nwg}")
    a(f"s_cbranch_scc1 {end}")
    a(f"s_load_dwordx2 s[4:5], s[0:1], {ARG[src_arg]}")
    a(f"s_load_dwordx2 s[6:7], s[0:1], {ARG['ws']}")
    a("v_lshrrev_b32 v1, 6, v0")
    a("v_and_b32 v2, 63, v0")
    a("s_lshl_b32 s3, s2, 2")
    a("v_add_u32 v1, s3, v1")
    a("v_lshlrev_b32 v3, 11, v1")
    a("v_lshl_add_u32 v3, v2, 5, v3")
    for i, m in enumerate([1, 2, 4, 8, 16, 32]):
        a(f"v_xor_b32 v{12+i}, {m}, v2")
        a(f"v_lshlrev_b32 v{12+i}, 2, v{12+i}")
    a("s_waitcnt lgkmcnt(0)")
    srd(a, 8, 4, src_off, S * D * 2)
    srd(a, 12, 6, dst_off, S * D * 2)
    a("buffer_load_dwordx4 v[4:7], v3, s[8:11], 0 offen")
    a("buffer_load_dwordx4 v[8:11], v3, s[8:11], 0 offen offset:16")
    npl = 0
    if pf:
        a("v_readfirstlane_b32 s92, v1")
        a("s_nop 3")
        npl = tail_prefetch(a, 92, 2, pf, 44, 48)
    a(f"s_waitcnt vmcnt({npl})")

    def unpack():
        for i in range(8):
            a(f"v_lshlrev_b32 v{20+2*i}, 16, v{4+i}")
            a(f"v_and_b32 v{21+2*i}, 0xffff0000, v{4+i}")

    def bfly():
        for i in range(6):
            a(f"ds_bpermute_b32 v41, v{12+i}, v40")
            a("s_waitcnt lgkmcnt(0)")
            a("v_add_f32 v40, v40, v41")

    def norm():
        a("v_add_f32 v40, v20, v21")
        for i in range(2, 16):
            a(f"v_add_f32 v40, v40, v{20+i}")
        bfly()
        a("v_mul_f32 v40, 0x3a800000, v40")
        for i in range(16):
            a(f"v_sub_f32 v{20+i}, v{20+i}, v40")
        a("v_mul_f32 v40, v20, v20")
        for i in range(1, 16):
            a(f"v_fmac_f32 v40, v{20+i}, v{20+i}")
        bfly()
        a("v_mov_b32 v42, 0x3727c5ac")
        a("v_fma_f32 v40, v40, v43, v42")
        a("v_rsq_f32 v40, v40")
        a("s_nop 0")
        for i in range(16):
            a(f"v_mul_f32 v{20+i}, v{20+i}, v40")
        for i in range(8):
            a(f"v_cvt_pk_bf16_f32 v{4+i}, v{20+2*i}, v{21+2*i}")

    a("v_mov_b32 v43, 0x3a800000")
    unpack()
    norm()
    if double:
        unpack()
        norm()
    a("buffer_store_dwordx4 v[4:7], v3, s[12:15], 0 offen")
    a("buffer_store_dwordx4 v[8:11], v3, s[12:15], 0 offen offset:16")
    a.label(end)
    a("s_endpgm")
    return dict(name=name, grid=nwg + npf, block=256, lds=0, desc=kernel_desc(name, 56))


def gen_gemm(a, name, N, K, BN, a_off, w_arg, epi, out_arg, out_off, res_arg=None, res_off=0,
             bias_arg=None, BM=128, NSTAGE=3, RA=4, RBN=8, ln=None, a_arg='ws', pre=False, stats_out=False):
    import struct
    M = S
    BK = 64
    NT_M = M // BM
    NT_N = N // BN
    ntiles = NT_M * NT_N
    MT = BM // 2 // 16
    NTW = BN // 2 // 16
    RB = {64: 128, 128: 256, 192: 128, 96: 64, 224: 448, 112: 32}[BN]
    ABYTES = BM * BK * 2
    BBYTES = BK * BN * 2
    STAGE = ABYTES + BBYTES
    PA = ABYTES // 1024 // 4
    PB = BBYTES // 1024 // 4
    assert PA * 4096 == ABYTES and PB * 4096 == BBYTES
    P = PA + PB
    NS = K // BK
    lds = STAGE * NSTAGE
    CROW = BN * 4 + 16
    RTAB = BM * CROW
    CTAB = RTAB + BM * 8
    assert CTAB + BN * 4 <= lds
    PPR = RB // 32
    lg_ppr = int(math.log2(PPR)) if RB != 448 else 0

    vA = list(range(2, 2 + PA))
    vB = list(range(2 + PA, 2 + PA + PB))
    nxt = 2 + PA + PB
    vXb = [nxt, nxt + 1]; nxt += 2
    vWb = list(range(nxt, nxt + NTW)); nxt += NTW
    vXc = [nxt, nxt + 1]; nxt += 2
    vWc = list(range(nxt, nxt + NTW)); nxt += NTW
    vT = list(range(nxt, nxt + 8)); nxt += 8
    nxt = (nxt + 3) // 4 * 4
    FX = [nxt, nxt + 4 * MT]; nxt += 8 * MT
    FW = [nxt, nxt + 4 * NTW]; nxt += 8 * NTW
    ACC = nxt; nxt += 4 * MT * NTW
    nvgpr = nxt
    assert nvgpr <= 256
    t0, t1, t2, t3 = vT[0], vT[1], vT[2], vT[3]

    def acc(nt, mt):
        return ACC + 4 * (nt * MT + mt)

    def stamp(i):
        if 'stamp' in EXP:
            a(f"s_memtime s[{60+2*i}:{61+2*i}]")
            if i >= 6: a("s_waitcnt lgkmcnt(0)")

    def stamp_out():
        if 'stamp' not in EXP: return
        a("s_waitcnt lgkmcnt(0)")
        srd(a, 80, 24, 200 * MB, 1 << 20)
        a("s_lshl_b32 s3, s2, 3")
        a("s_add_u32 s3, s3, s49")
        a("s_lshl_b32 s3, s3, 6")
        a("v_mov_b32 v2, s3")
        for i in range(8):
            a(f"v_mov_b32 v4, s{60+2*i}")
            a(f"v_mov_b32 v5, s{61+2*i}")
            a(f"buffer_store_dwordx2 v[4:5], v2, s[80:83], 0 offen offset:{8*i}")
            a("s_nop 1")

    def wfrag_addr_common():
        a(f"v_lshrrev_b32 {v(t1)}, 4, v1")
        a(f"v_bfe_u32 {v(t0)}, v1, 2, 2")
        a(f"v_lshl_add_u32 {v(t2)}, {v(t1)}, 3, {v(t0)}")
        if RB == 256:
            a(f"v_and_b32 {v(t3)}, 1, {v(t1)}")
            a(f"v_lshl_add_u32 {v(t3)}, {v(t3)}, 2, {v(t0)}")
        elif RB == 128:
            a(f"v_and_b32 {v(t3)}, 1, {v(t1)}")
            a(f"v_lshrrev_b32 {v(t0)}, 1, {v(t0)}")
            a(f"v_lshl_add_u32 {v(t3)}, {v(t3)}, 1, {v(t0)}")
        elif RB in (64, 448):
            a(f"v_and_b32 {v(t3)}, 1, {v(t1)}")
        else:
            a(f"v_mov_b32 {v(t3)}, 0")
        a(f"v_mul_u32_u24 {v(t2)}, {RB}, {v(t2)}")
        a(f"v_and_b32 {v(t0)}, 3, v1")
        a(f"v_lshl_add_u32 {v(t2)}, {v(t0)}, 3, {v(t2)}")
        a(f"v_add_u32 {v(t2)}, {ABYTES}, {v(t2)}")

    def wfrag_addr(dst):
        if RB == 448:
            a("s_mov_b32 s47, 0")
        elif PPR > 1:
            a(f"s_lshr_b32 s47, s46, {lg_ppr}")
            a(f"s_and_b32 s46, s46, {PPR-1}")
        else:
            a("s_mov_b32 s47, s46")
            a("s_mov_b32 s46, 0")
        a(f"s_mul_i32 s47, s47, {64*RB}")
        a(f"v_xor_b32 {v(t0)}, s46, {v(t3)}")
        a(f"v_lshl_add_u32 {v(t0)}, {v(t0)}, 5, {v(t2)}")
        a(f"v_add_u32 {v(dst)}, s47, {v(t0)}")

    kernel_header(a, name)
    end = a.newlabel("L_end")
    stamp(0)
    lab_loader = a.newlabel("L_loader")
    lab_store = a.newlabel("L_store")
    a(f"s_cmp_ge_u32 s2, {ntiles}")
    a(f"s_cbranch_scc1 {end}")
    a(f"s_load_dwordx2 s[24:25], s[0:1], {ARG['ws']}")
    a(f"s_load_dwordx2 s[58:59], s[0:1], {ARG[a_arg]}")
    a(f"s_load_dwordx2 s[26:27], s[0:1], {ARG[w_arg]}")
    a(f"s_load_dwordx2 s[34:35], s[0:1], {ARG[out_arg]}")
    if res_arg:
        a(f"s_load_dwordx2 s[36:37], s[0:1], {ARG[res_arg]}")
    if bias_arg:
        a(f"s_load_dwordx2 s[38:39], s[0:1], {ARG[bias_arg]}")
    assert ntiles == 256 and RA * RBN == 32 and NT_M % RA == 0 and NT_N % RBN == 0
    XB = NT_N // RBN
    a("s_and_b32 s3, s2, 7")
    a("s_lshr_b32 s46, s2, 3")
    a(f"s_lshr_b32 s28, s3, {int(math.log2(XB))}")
    a(f"s_and_b32 s29, s3, {XB-1}")
    a(f"s_mul_i32 s28, s28, {RA}")
    a(f"s_mul_i32 s29, s29, {RBN}")
    a(f"s_lshr_b32 s3, s46, {int(math.log2(RBN))}")
    a("s_add_u32 s28, s28, s3")
    a(f"s_and_b32 s3, s46, {RBN-1}")
    a("s_add_u32 s29, s29, s3")
    a("v_and_b32 v1, 63, v0")
    a(f"v_lshrrev_b32 {v(vT[0])}, 6, v0")
    a("s_nop 0")
    a(f"v_readfirstlane_b32 s49, {v(vT[0])}")
    a("s_nop 3")
    a("s_and_b32 s30, s49, 3")
    a("s_lshr_b32 s44, s30, 1")
    a("s_and_b32 s45, s30, 1")

    def build_srds():
        a("s_waitcnt lgkmcnt(0)")
        srd(a, 4, 58, a_off, M * K * 2)
        srd(a, 8, 26, 0, K * N * 2)
        srd(a, 12, 34, out_off, M * N * 2)
        if res_arg:
            srd(a, 16, 36, res_off, M * N * 2)
        if bias_arg:
            srd(a, 20, 38, 0, N * 2)
        if pre or stats_out:
            srd(a, 84, 24, WS_ST, S * 128)
        if pre:
            srd(a, 88, 24, WS_CS, N * 4)

    a("s_cmp_ge_u32 s49, 4")
    a(f"s_cbranch_scc1 {lab_loader}")

    a(f"v_and_b32 {v(t0)}, 15, v1")
    a("s_lshl_b32 s3, s44, 6")
    a(f"v_add_u32 {v(t0)}, s3, {v(t0)}")
    a(f"v_lshlrev_b32 {v(t0)}, 7, {v(t0)}")
    a(f"v_lshrrev_b32 {v(t1)}, 4, v1")
    a(f"v_bfe_u32 {v(t2)}, v1, 1, 3")
    a(f"v_xor_b32 {v(t3)}, {v(t1)}, {v(t2)}")
    a(f"v_lshl_add_u32 {v(vXb[0])}, {v(t3)}, 4, {v(t0)}")
    a(f"v_xor_b32 {v(t3)}, 4, {v(t3)}")
    a(f"v_lshl_add_u32 {v(vXb[1])}, {v(t3)}, 4, {v(t0)}")
    wfrag_addr_common()
    a(f"s_mul_i32 s3, s45, {NTW}")
    for nt in range(NTW):
        a(f"s_add_u32 s46, s3, {nt}")
        wfrag_addr(vWb[nt])
    for i in range(4 * MT * NTW):
        a(f"v_mov_b32 v{ACC+i}, 0")
    a("s_mov_b32 s42, 0")
    build_srds()

    def set_cur():
        for kk in range(2):
            a(f"v_add_u32 {v(vXc[kk])}, s42, {v(vXb[kk])}")
        for nt in range(NTW):
            a(f"v_add_u32 {v(vWc[nt])}, s42, {v(vWb[nt])}")
        a(f"s_add_u32 s42, s42, {STAGE}")
        a(f"s_cmp_ge_u32 s42, {STAGE*NSTAGE}")
        a("s_cselect_b32 s42, 0, s42")

    def read_list(kk, f):
        if 'noreads' in EXP: return []
        L = []
        for nt in range(NTW):
            if nt < MT:
                L.append(f"ds_read_b128 {v(FX[f]+4*nt,4)}, {v(vXc[kk])} offset:{nt*2048}")
            for rd in range(2):
                L.append(f"ds_read_b64_tr_b16 {v(FW[f]+4*nt+2*rd,2)}, {v(vWc[nt])} offset:{kk*32*RB+rd*4*RB}")
        for mt in range(NTW, MT):
            L.append(f"ds_read_b128 {v(FX[f]+4*mt,4)}, {v(vXc[kk])} offset:{mt*2048}")
        return L

    def mfma_list(f):
        if 'nomfma' in EXP: return []
        L = []
        for nt in range(NTW):
            for mt in range(MT):
                L.append(f"v_mfma_f32_16x16x32_bf16 {v(acc(nt,mt),4)}, {v(FW[f]+4*nt,4)}, {v(FX[f]+4*mt,4)}, {v(acc(nt,mt),4)}")
        return L

    def reads(kk, f):
        for x in read_list(kk, f): a(x)

    def mfmas(f):
        for x in mfma_list(f): a(x)

    def inter(kk, fr, fm):
        R = read_list(kk, fr); Mm = mfma_list(fm)
        n = max(len(R), len(Mm))
        for i in range(n):
            if i < len(Mm): a(Mm[i])
            if i < len(R): a(R[i])

    stamp(1)
    a("s_barrier")
    stamp(2)
    set_cur()
    reads(0, 0)
    a("s_waitcnt lgkmcnt(0)")
    inter(1, 1, 0)
    a("s_waitcnt lgkmcnt(0)")
    a(f"s_mov_b32 s48, {NS-1}")
    loop = a.newlabel("L_cloop")
    a.label(loop)
    a("s_barrier")
    set_cur()
    inter(0, 0, 1)
    a("s_waitcnt lgkmcnt(0)")
    inter(1, 1, 0)
    a("s_waitcnt lgkmcnt(0)")
    a("s_sub_u32 s48, s48, 1")
    a("s_cmp_lg_u32 s48, 0")
    a(f"s_cbranch_scc1 {loop}")
    stamp(3)
    mfmas(1)
    a("s_barrier")
    vc = vT[0]
    a(f"v_and_b32 {v(t2)}, 15, v1")
    a("s_lshl_b32 s3, s44, 6")
    a(f"v_add_u32 {v(t2)}, s3, {v(t2)}")
    a(f"v_mul_u32_u24 {v(t2)}, {CROW}, {v(t2)}")
    a(f"v_lshrrev_b32 {v(t3)}, 4, v1")
    a(f"v_lshlrev_b32 {v(t3)}, 4, {v(t3)}")
    a(f"s_mul_i32 s3, s45, {BN*2}")
    a(f"v_add_u32 {v(t3)}, s3, {v(t3)}")
    a(f"v_add_u32 {v(vc)}, {v(t2)}, {v(t3)}")
    a("s_nop 4")
    for nt in range(NTW):
        for mt in range(MT):
            a(f"ds_write_b128 {v(vc)}, {v(acc(nt,mt),4)} offset:{mt*16*CROW + nt*64}")
    a("s_waitcnt lgkmcnt(0)")
    stamp(4)
    a("s_barrier")
    a(f"s_branch {lab_store}")

    a.label(lab_loader)
    if 'noprio' not in EXP: a("s_setprio 2")
    NPL = (BN // 16 + 3) // 4
    LSA = 40
    LCW = 44
    LSC = 48; LCC = 52
    LONE = 56
    LST = 60
    LCS = 68
    LSD = 84
    LWD = 100
    assert vT[7] < 40
    a(f"s_mul_i32 s3, s30, {PA*8}")
    a(f"v_lshrrev_b32 {v(t0)}, 3, v1")
    a(f"v_add_u32 {v(t0)}, s3, {v(t0)}")
    a(f"s_mul_i32 s3, s28, {BM}")
    for i in range(PA):
        a(f"v_add_u32 {v(t1)}, {8*i}, {v(t0)}")
        a(f"v_lshrrev_b32 {v(t2)}, 1, {v(t1)}")
        a(f"v_and_b32 {v(t2)}, 7, {v(t2)}")
        a(f"v_and_b32 {v(t3)}, 7, v1")
        a(f"v_xor_b32 {v(t2)}, {v(t2)}, {v(t3)}")
        if ln and not pre:
            a(f"v_lshlrev_b32 {v(LSA+i)}, 7, {v(t1)}")
            a(f"v_lshl_add_u32 {v(LSA+i)}, {v(t3)}, 4, {v(LSA+i)}")
        a(f"v_add_u32 {v(t1)}, s3, {v(t1)}")
        a(f"v_mul_u32_u24 {v(t1)}, {K*2}, {v(t1)}")
        a(f"v_lshl_add_u32 {v(vA[i])}, {v(t2)}, 4, {v(t1)}")
    a(f"s_mul_i32 s3, s29, {BN*2}")
    if RB == 448:
        a(f"s_mov_b32 s47, {((1 << 32) + 27) // 28}")
        for i in range(PB):
            a(f"s_mul_i32 s46, s30, {PB*64}")
            a(f"s_add_u32 s46, s46, {i*64}")
            a(f"v_add_u32 {v(t1)}, s46, v1")
            a(f"v_mul_hi_u32 {v(t0)}, {v(t1)}, s47")
            a(f"v_mul_u32_u24 {v(t2)}, 28, {v(t0)}")
            a(f"v_sub_u32 {v(t1)}, {v(t1)}, {v(t2)}")
            a(f"v_bfe_u32 {v(t2)}, {v(t0)}, 3, 1")
            a(f"v_lshlrev_b32 {v(t2)}, 1, {v(t2)}")
            a(f"v_xor_b32 {v(t1)}, {v(t1)}, {v(t2)}")
            a(f"v_mul_u32_u24 {v(t0)}, {N*2}, {v(t0)}")
            a(f"v_lshl_add_u32 {v(t0)}, {v(t1)}, 4, {v(t0)}")
            a(f"v_add_u32 {v(vB[i])}, s3, {v(t0)}")
    else:
      CPR = RB // 16
      lg_cpr = int(math.log2(CPR))
      RPP = 1024 // RB
      PPB = RB // 16
      lg_ppb = int(math.log2(PPB))
      for i in range(PB):
        a(f"s_mul_i32 s46, s30, {PB}")
        a(f"s_add_u32 s46, s46, {i}")
        a(f"s_lshr_b32 s47, s46, {lg_ppb}")
        a(f"s_and_b32 s46, s46, {PPB-1}")
        a(f"s_mul_i32 s46, s46, {RPP}")
        a(f"s_mul_i32 s47, s47, {RB}")
        a("s_add_u32 s47, s47, s3")
        a(f"v_lshrrev_b32 {v(t0)}, {lg_cpr}, v1")
        a(f"v_add_u32 {v(t0)}, s46, {v(t0)}")
        a(f"v_and_b32 {v(t1)}, {CPR-1}, v1")
        if RB == 256:
            a(f"v_and_b32 {v(t2)}, 3, {v(t0)}")
            a(f"v_bfe_u32 {v(t3)}, {v(t0)}, 3, 1")
            a(f"v_lshl_add_u32 {v(t2)}, {v(t3)}, 2, {v(t2)}")
        elif RB == 128:
            a(f"v_bfe_u32 {v(t2)}, {v(t0)}, 1, 1")
            a(f"v_bfe_u32 {v(t3)}, {v(t0)}, 3, 1")
            a(f"v_lshl_add_u32 {v(t2)}, {v(t3)}, 1, {v(t2)}")
        elif RB == 64:
            a(f"v_bfe_u32 {v(t2)}, {v(t0)}, 3, 1")
        else:
            a(f"v_mov_b32 {v(t2)}, 0")
        a(f"v_lshlrev_b32 {v(t2)}, 1, {v(t2)}")
        a(f"v_xor_b32 {v(t1)}, {v(t1)}, {v(t2)}")
        a(f"v_mul_u32_u24 {v(t0)}, {N*2}, {v(t0)}")
        a(f"v_lshl_add_u32 {v(t0)}, {v(t1)}, 4, {v(t0)}")
        a(f"v_add_u32 {v(vB[i])}, s47, {v(t0)}")
    a(f"s_mul_i32 s31, s30, {PA*1024}")
    a(f"s_mul_i32 s32, s30, {PB*1024}")
    a(f"s_add_u32 s32, s32, {ABYTES}")
    a("s_mov_b32 s40, 0")
    a("s_mov_b32 s41, 0")
    a("s_mov_b32 s43, 0")
    a("s_mov_b32 s42, 0")
    build_srds()

    def dma():
        if 'nodma' in EXP: return
        a("s_add_u32 s33, s43, s31")
        for i in range(PA):
            a(f"s_add_u32 m0, s33, {i*1024}")
            a("s_nop 0")
            a(f"buffer_load_dwordx4 {v(vA[i])}, s[4:7], s40 offen lds")
        a("s_add_u32 s33, s43, s32")
        for i in range(PB):
            a(f"s_add_u32 m0, s33, {i*1024}")
            a("s_nop 0")
            a(f"buffer_load_dwordx4 {v(vB[i])}, s[8:11], s41 offen lds")
        a(f"s_add_u32 s40, s40, {BK*2}")
        a(f"s_add_u32 s41, s41, {BK*N*2}")
        a(f"s_add_u32 s43, s43, {STAGE}")
        a(f"s_cmp_ge_u32 s43, {STAGE*NSTAGE}")
        a("s_cselect_b32 s43, 0, s43")

    stamp(1)
    if pre:
        a(f"v_lshrrev_b32 {v(LSA)}, 1, v1")
        a("s_lshl_b32 s3, s30, 5")
        a(f"v_add_u32 {v(LSA)}, s3, {v(LSA)}")
        a(f"s_mul_i32 s3, s28, {BM}")
        a(f"v_add_u32 {v(t0)}, s3, {v(LSA)}")
        a(f"v_lshlrev_b32 {v(t0)}, 7, {v(t0)}")
        a(f"v_and_b32 {v(t1)}, 1, v1")
        a(f"v_lshl_add_u32 {v(t0)}, {v(t1)}, 6, {v(t0)}")
        for i in range(4):
            a(f"buffer_load_dwordx4 {v(LSD+4*i,4)}, {v(t0)}, s[84:87], 0 offen offset:{16*i}")
    for _ in range(NSTAGE - 1):
        dma()
    stamp(2)
    if ln and not pre:
        wfrag_addr_common()
        for i in range(NPL):
            a(f"s_mul_i32 s46, s30, {NPL}")
            a(f"s_add_u32 s46, s46, {i}")
            a(f"s_min_u32 s46, s46, {BN//16-1}")
            wfrag_addr(LCW + i)
        for i in range(4):
            a(f"v_mov_b32 {v(LONE+i)}, 0x3f803f80")
        for i in range(2 * PA):
            a(f"v_mov_b32 {v(LST+i)}, 0")
        for i in range(4 * NPL):
            a(f"v_mov_b32 {v(LCS+i)}, 0")

    def stats_reads():
        for i in range(PA):
            a(f"v_add_u32 {v(LSC+i)}, s42, {v(LSA+i)}")
        for i in range(NPL):
            a(f"v_add_u32 {v(LCC+i)}, s42, {v(LCW+i)}")
        a(f"s_add_u32 s42, s42, {STAGE}")
        a(f"s_cmp_ge_u32 s42, {STAGE*NSTAGE}")
        a("s_cselect_b32 s42, 0, s42")
        for i in range(PA):
            a(f"ds_read_b128 {v(LSD+4*i,4)}, {v(LSC+i)}")
        for i in range(NPL):
            for kk in range(2):
                for rd in range(2):
                    a(f"ds_read_b64_tr_b16 {v(LWD+8*i+4*kk+2*rd,2)}, {v(LCC+i)} offset:{kk*32*RB+rd*4*RB}")

    def stats_math():
        a("s_waitcnt lgkmcnt(0)")
        for i in range(NPL):
            for kk in range(2):
                a(f"v_mfma_f32_16x16x32_bf16 {v(LCS+4*i,4)}, {v(LWD+8*i+4*kk,4)}, {v(LONE,4)}, {v(LCS+4*i,4)}")
        for j in range(4):
            for i in range(PA):
                d = v(LSD + 4 * i + j)
                a(f"v_dot2_f32_bf16 {v(LST+2*i)}, {d}, {v(LONE)}, {v(LST+2*i)}")
                a(f"v_dot2_f32_bf16 {v(LST+2*i+1)}, {d}, {d}, {v(LST+2*i+1)}")

    nloop = NS - NSTAGE + 1
    a(f"s_mov_b32 s48, {nloop}")
    lloop = a.newlabel("L_lloop")
    a.label(lloop)
    a(f"s_waitcnt vmcnt({(NSTAGE-2)*P})")
    a("s_barrier")
    if ln and not pre: stats_reads()
    dma()
    if ln and not pre: stats_math()
    a("s_sub_u32 s48, s48, 1")
    a("s_cmp_lg_u32 s48, 0")
    a(f"s_cbranch_scc1 {lloop}")
    for j in range(NS - NSTAGE + 1, NS):
        a(f"s_waitcnt vmcnt({(NS-1-j)*P})")
        a("s_barrier")
        if ln and not pre:
            stats_reads()
            stats_math()
    stamp(3)
    if pre:
        for i in range(1, 8):
            a(f"v_add_f32 {v(LSD)}, {v(LSD)}, {v(LSD+2*i)}")
            a(f"v_add_f32 {v(LSD+1)}, {v(LSD+1)}, {v(LSD+2*i+1)}")
        a("s_nop 1")
        for k_ in range(2):
            a(f"v_add_f32_dpp {v(LST+k_)}, {v(LSD+k_)}, {v(LSD+k_)} quad_perm:[1,0,3,2] row_mask:0xf bank_mask:0xf")
        sm, sq, r1, r2 = LST, LST + 1, LSD, LSD + 1
        a(f"v_mul_f32 {v(sm)}, {hex_f32(1.0/K)}, {v(sm)}")
        a(f"v_mul_f32 {v(sq)}, {hex_f32(1.0/K)}, {v(sq)}")
        a(f"v_fma_f32 {v(sq)}, -{v(sm)}, {v(sm)}, {v(sq)}")
        a(f"v_max_f32 {v(sq)}, 0, {v(sq)}")
        a(f"v_add_f32 {v(r1)}, {hex_f32(1e-5)}, {v(sq)}")
        a(f"v_rsq_f32 {v(r1)}, {v(r1)}")
        a("s_nop 0")
        if ln == 'double':
            a(f"v_mul_f32 {v(r2)}, {v(r1)}, {v(r1)}")
            a(f"v_mul_f32 {v(r2)}, {v(r2)}, {v(sq)}")
            a(f"v_add_f32 {v(r2)}, {hex_f32(1e-5)}, {v(r2)}")
            a(f"v_rsq_f32 {v(r2)}, {v(r2)}")
            a("s_nop 0")
            a(f"v_mul_f32 {v(r1)}, {v(r1)}, {v(r2)}")
        a(f"v_mul_f32 {v(r2)}, {v(sm)}, {v(r1)}")
        a(f"v_sub_f32 {v(r2)}, 0, {v(r2)}")
        a(f"v_lshlrev_b32 {v(LSC)}, 3, {v(LSA)}")
        a(f"v_add_u32 {v(LSC)}, {RTAB}, {v(LSC)}")
    if ln and not pre:
        a("s_nop 3")
        X0 = LSD
        for mode in ("quad_perm:[1,0,3,2]", "quad_perm:[2,3,0,1]", "row_half_mirror"):
            for k_ in range(2 * PA):
                a(f"v_add_f32_dpp {v(X0+k_)}, {v(LST+k_)}, {v(LST+k_)} {mode} row_mask:0xf bank_mask:0xf")
            a("s_nop 1")
            for k_ in range(2 * PA):
                a(f"v_mov_b32 {v(LST+k_)}, {v(X0+k_)}")
            a("s_nop 1")
        for i in range(PA):
            sm, sq = LST + 2 * i, LST + 2 * i + 1
            r1, r2 = X0 + 2 * i, X0 + 2 * i + 1
            a(f"v_mul_f32 {v(sm)}, {hex_f32(1.0/K)}, {v(sm)}")
            a(f"v_mul_f32 {v(sq)}, {hex_f32(1.0/K)}, {v(sq)}")
            a(f"v_fma_f32 {v(sq)}, -{v(sm)}, {v(sm)}, {v(sq)}")
            a(f"v_max_f32 {v(sq)}, 0, {v(sq)}")
            a(f"v_add_f32 {v(r1)}, {hex_f32(1e-5)}, {v(sq)}")
            a(f"v_rsq_f32 {v(r1)}, {v(r1)}")
            a("s_nop 0")
            if ln == 'double':
                a(f"v_mul_f32 {v(r2)}, {v(r1)}, {v(r1)}")
                a(f"v_mul_f32 {v(r2)}, {v(r2)}, {v(sq)}")
                a(f"v_add_f32 {v(r2)}, {hex_f32(1e-5)}, {v(r2)}")
                a(f"v_rsq_f32 {v(r2)}, {v(r2)}")
                a("s_nop 0")
                a(f"v_mul_f32 {v(r1)}, {v(r1)}, {v(r2)}")
            a(f"v_mul_f32 {v(r2)}, {v(sm)}, {v(r1)}")
            a(f"v_sub_f32 {v(r2)}, 0, {v(r2)}")
            a(f"v_lshrrev_b32 {v(LSC+i)}, 7, {v(LSA+i)}")
            a(f"v_lshlrev_b32 {v(LSC+i)}, 3, {v(LSC+i)}")
            a(f"v_add_u32 {v(LSC+i)}, {RTAB}, {v(LSC+i)}")
        a(f"v_lshrrev_b32 {v(t0)}, 4, v1")
        a(f"v_lshlrev_b32 {v(t0)}, 4, {v(t0)}")
        for i in range(NPL):
            a(f"s_mul_i32 s46, s30, {NPL}")
            a(f"s_add_u32 s46, s46, {i}")
            a(f"s_min_u32 s46, s46, {BN//16-1}")
            a("s_lshl_b32 s46, s46, 6")
            a(f"s_add_u32 s46, s46, {CTAB}")
            a(f"v_add_u32 {v(LCC+i)}, s46, {v(t0)}")
    a("s_barrier")
    if pre:
        a(f"ds_write_b64 {v(LSC)}, {v(LSD,2)}")
        a("s_waitcnt lgkmcnt(0)")
    if ln and not pre:
        for i in range(PA):
            a(f"ds_write_b64 {v(LSC+i)}, {v(LSD+2*i,2)}")
        for i in range(NPL):
            a(f"ds_write_b128 {v(LCC+i)}, {v(LCS+4*i,4)}")
        a("s_waitcnt lgkmcnt(0)")
    stamp(4)
    a("s_barrier")

    a.label(lab_store)
    CPRW = BN // 8
    NIT = BM * CPRW // 512
    assert NIT * 512 == BM * CPRW
    magic = ((1 << 32) + CPRW - 1) // CPRW
    a(f"s_mov_b32 s46, {magic}")
    a(f"s_mul_i32 s3, s49, {NIT*64}")
    a(f"v_add_u32 {v(t0)}, s3, v1")
    a(f"s_mul_i32 s3, s28, {BM}")
    a(f"s_mul_i32 s47, s29, {BN*2}")
    R0 = (vT[7] + 4) // 4 * 4
    RR = R0 + 8 * NIT
    RBI = RR + 4 * NIT
    RCS = RBI + 4 * NIT
    RRS = RCS + (8 * NIT if ln else 0)
    OFF = RRS + (2 * NIT if ln else 0)
    SOF = OFF + NIT
    GT = (SOF + NIT + 3) // 4 * 4
    assert GT + 10 <= 256
    for it in range(NIT):
        a(f"v_add_u32 {v(t1)}, {it*64}, {v(t0)}")
        a(f"v_mul_hi_u32 {v(t2)}, {v(t1)}, s46")
        a(f"v_mul_u32_u24 {v(t3)}, {CPRW}, {v(t2)}")
        a(f"v_sub_u32 {v(t3)}, {v(t1)}, {v(t3)}")
        a(f"v_mul_u32_u24 {v(t1)}, {CROW}, {v(t2)}")
        a(f"v_lshl_add_u32 {v(t1)}, {v(t3)}, 5, {v(t1)}")
        a(f"ds_read_b128 {v(R0+8*it,4)}, {v(t1)}")
        a(f"ds_read_b128 {v(R0+8*it+4,4)}, {v(t1)} offset:16")
        if ln:
            a(f"v_lshlrev_b32 {v(t1)}, 3, {v(t2)}")
            a(f"v_add_u32 {v(t1)}, {RTAB}, {v(t1)}")
            a(f"ds_read_b64 {v(RRS+2*it,2)}, {v(t1)}")
            a(f"v_lshlrev_b32 {v(t1)}, 5, {v(t3)}")
            if pre:
                a(f"v_lshl_add_u32 {v(t1)}, s47, 1, {v(t1)}")
                a(f"buffer_load_dwordx4 {v(RCS+8*it,4)}, {v(t1)}, s[88:91], 0 offen")
                a(f"buffer_load_dwordx4 {v(RCS+8*it+4,4)}, {v(t1)}, s[88:91], 0 offen offset:16")
            else:
                a(f"v_add_u32 {v(t1)}, {CTAB}, {v(t1)}")
                a(f"ds_read_b128 {v(RCS+8*it,4)}, {v(t1)}")
                a(f"ds_read_b128 {v(RCS+8*it+4,4)}, {v(t1)} offset:16")
        a(f"v_add_u32 {v(t2)}, s3, {v(t2)}")
        if stats_out:
            a(f"v_lshlrev_b32 {v(SOF+it)}, 7, {v(t2)}")
            a(f"v_lshl_add_u32 {v(SOF+it)}, s29, 3, {v(SOF+it)}")
        a(f"v_mul_u32_u24 {v(t2)}, {N*2}, {v(t2)}")
        a(f"v_lshlrev_b32 {v(t3)}, 4, {v(t3)}")
        a(f"v_add_u32 {v(t3)}, s47, {v(t3)}")
        a(f"v_add_u32 {v(OFF+it)}, {v(t3)}, {v(t2)}")
        if res_arg:
            a(f"buffer_load_dwordx4 {v(RR+4*it,4)}, {v(OFF+it)}, s[16:19], 0 offen")
        if bias_arg:
            a(f"buffer_load_dwordx4 {v(RBI+4*it,4)}, {v(t3)}, s[20:23], 0 offen")
    if epi == 'gelu':
        c2 = 2 * math.log2(math.e)
        k1 = struct.unpack("<I", struct.pack("<f", 0.7978845608 * c2))[0]
        k3 = struct.unpack("<I", struct.pack("<f", 0.7978845608 * 0.044715 * c2))[0]
        a(f"s_mov_b32 s52, {k3}"); a(f"s_mov_b32 s53, {k3}")
        a(f"v_mov_b32 {v(GT+8)}, {k1}"); a(f"v_mov_b32 {v(GT+9)}, {k1}")
        a("s_mov_b32 s56, 1.0"); a("s_mov_b32 s57, 1.0")
    a("s_waitcnt vmcnt(0) lgkmcnt(0)")
    stamp(5)
    for it in range(NIT):
        c0 = R0 + 8 * it
        if ln:
            for j in range(8):
                a(f"v_mul_f32 {v(RCS+8*it+j)}, {v(RCS+8*it+j)}, {v(RRS+2*it+1)}")
            for j in range(8):
                a(f"v_fma_f32 {v(c0+j)}, {v(c0+j)}, {v(RRS+2*it)}, {v(RCS+8*it+j)}")
        if bias_arg:
            for j in range(4):
                b = RBI + 4 * it + j
                a(f"v_lshlrev_b32 {v(GT+2*j)}, 16, {v(b)}")
                a(f"v_and_b32 {v(GT+2*j+1)}, 0xffff0000, {v(b)}")
            for j in range(4):
                a(f"v_pk_add_f32 {v(c0+2*j,2)}, {v(c0+2*j,2)}, {v(GT+2*j,2)}")
        if epi == 'gelu':
            for j in range(4):
                a(f"v_pk_mul_f32 {v(GT+2*j,2)}, {v(c0+2*j,2)}, {v(c0+2*j,2)}")
            for j in range(4):
                a(f"v_pk_fma_f32 {v(GT+2*j,2)}, {v(GT+2*j,2)}, s[52:53], {v(GT+8,2)}")
            for j in range(4):
                a(f"v_pk_mul_f32 {v(GT+2*j,2)}, {v(GT+2*j,2)}, {v(c0+2*j,2)}")
            for r in range(8):
                a(f"v_exp_f32 {v(GT+r)}, {v(GT+r)}")
            a("s_nop 0")
            for j in range(4):
                a(f"v_pk_add_f32 {v(GT+2*j,2)}, {v(GT+2*j,2)}, s[56:57]")
            for r in range(8):
                a(f"v_rcp_f32 {v(GT+r)}, {v(GT+r)}")
            a("s_nop 0")
            for j in range(4):
                cc = v(c0 + 2 * j, 2)
                a(f"v_pk_fma_f32 {cc}, {cc}, {v(GT+2*j,2)}, {cc} neg_lo:[1,0,0] neg_hi:[1,0,0]")
        for j in range(4):
            a(f"v_cvt_pk_bf16_f32 {v(c0+j)}, {v(c0+2*j)}, {v(c0+2*j+1)}")
        if res_arg:
            for j in range(4):
                d = c0 + j
                r = RR + 4 * it + j
                a(f"v_lshlrev_b32 {v(GT)}, 16, {v(d)}")
                a(f"v_lshlrev_b32 {v(GT+1)}, 16, {v(r)}")
                a(f"v_and_b32 {v(GT+2)}, 0xffff0000, {v(d)}")
                a(f"v_and_b32 {v(GT+3)}, 0xffff0000, {v(r)}")
                a(f"v_add_f32 {v(GT)}, {v(GT)}, {v(GT+1)}")
                a(f"v_add_f32 {v(GT+2)}, {v(GT+2)}, {v(GT+3)}")
                a(f"v_cvt_pk_bf16_f32 {v(d)}, {v(GT)}, {v(GT+2)}")
        a(f"buffer_store_dwordx4 {v(c0,4)}, {v(OFF+it)}, s[12:15], 0 offen")
        if stats_out:
            assert CPRW == 8
            a(f"v_mov_b32 {v(GT+8)}, 0x3f803f80")
            a(f"v_mov_b32 {v(GT)}, 0")
            a(f"v_mov_b32 {v(GT+1)}, 0")
            for j in range(4):
                a(f"v_dot2_f32_bf16 {v(GT)}, {v(c0+j)}, {v(GT+8)}, {v(GT)}")
                a(f"v_dot2_f32_bf16 {v(GT+1)}, {v(c0+j)}, {v(c0+j)}, {v(GT+1)}")
            a("s_nop 3")
            for q_, mode in enumerate(("quad_perm:[1,0,3,2]", "quad_perm:[2,3,0,1]", "row_half_mirror")):
                src = GT + 2 * (q_ & 1); dst = GT + 2 * ((q_ + 1) & 1)
                for k_ in range(2):
                    a(f"v_add_f32_dpp {v(dst+k_)}, {v(src+k_)}, {v(src+k_)} {mode} row_mask:0xf bank_mask:0xf")
                a("s_nop 1")
            a("s_mov_b32 exec_lo, 0x01010101")
            a("s_mov_b32 exec_hi, 0x01010101")
            a(f"buffer_store_dwordx2 {v(GT+2,2)}, {v(SOF+it)}, s[84:87], 0 offen")
            a("s_mov_b64 exec, -1")
    stamp(6)
    if 'stamp' in EXP: a("s_waitcnt vmcnt(0)")
    stamp(7)
    stamp_out()
    a.label(end)
    a("s_endpgm")
    return dict(name=name, grid=ntiles, block=512, lds=lds, desc=kernel_desc(name, max(nvgpr, GT + 10, 136)))


def gen_attn(a, name, pf=None, colsum=False):
    import struct
    NQB = S // 32
    ntask = H * NQB
    nwg = ntask // 4
    QKV_ROW = 3 * D * 2
    KLDS = 384 * 64
    lds = 2 * KLDS
    kernel_header(a, name)
    end = a.newlabel("L_end")
    npf = F // 32 if colsum else 0
    a(f"s_cmp_ge_u32 s2, {nwg + npf}")
    a(f"s_cbranch_scc1 {end}")
    a(f"s_load_dwordx2 s[24:25], s[0:1], {ARG['ws']}")
    a("v_and_b32 v1, 63, v0")
    a("v_lshrrev_b32 v2, 6, v0")
    a("s_nop 0")
    a("v_readfirstlane_b32 s30, v2")
    a("s_nop 3")
    if colsum:
        lab_att = a.newlabel("L_att")
        a(f"s_cmp_lt_u32 s2, {nwg}")
        a(f"s_cbranch_scc1 {lab_att}")
        a(f"s_sub_u32 s2, s2, {nwg}")
        a(f"s_load_dwordx2 s[26:27], s[0:1], {ARG['w1']}")
        a("v_lshrrev_b32 v2, 2, v1")
        a("s_lshl_b32 s3, s30, 8")
        a("v_add_u32 v2, s3, v2")
        a(f"v_mul_u32_u24 v2, {F*2}, v2")
        a("v_and_b32 v3, 3, v1")
        a("v_lshl_add_u32 v2, v3, 4, v2")
        a("s_lshl_b32 s3, s2, 6")
        a("v_add_u32 v2, s3, v2")
        a("s_waitcnt lgkmcnt(0)")
        srd(a, 4, 26, 0, D * F * 2)
        srd(a, 8, 24, WS_CS, F * 4)
        for i in range(16):
            a(f"s_mov_b32 s3, {16*i*F*2}")
            a(f"buffer_load_dwordx4 {v(16+4*i,4)}, v2, s[4:7], s3 offen")
        for j in range(8):
            a(f"v_mov_b32 v{8+j}, 0")
        for i in range(16):
            a(f"s_waitcnt vmcnt({15-i})")
            for j in range(4):
                a(f"v_lshlrev_b32 v4, 16, v{16+4*i+j}")
                a(f"v_and_b32 v5, 0xffff0000, v{16+4*i+j}")
                a(f"v_add_f32 v{8+2*j}, v{8+2*j}, v4")
                a(f"v_add_f32 v{9+2*j}, v{9+2*j}, v5")
        a("s_nop 1")
        for mode in ("row_ror:4", "row_ror:8"):
            for j in range(8):
                a(f"v_add_f32_dpp v{16+j}, v{8+j}, v{8+j} {mode} row_mask:0xf bank_mask:0xf")
            a("s_nop 1")
            for j in range(8):
                a(f"v_mov_b32 v{8+j}, v{16+j}")
            a("s_nop 1")
        for x in (16, 32):
            a(f"v_xor_b32 v4, {x}, v1")
            a("v_lshlrev_b32 v4, 2, v4")
            for j in range(8):
                a(f"ds_bpermute_b32 v{16+j}, v4, v{8+j}")
            a("s_waitcnt lgkmcnt(0)")
            for j in range(8):
                a(f"v_add_f32 v{8+j}, v{8+j}, v{16+j}")
        a("v_lshlrev_b32 v4, 5, v3")
        a("s_lshl_b32 s3, s30, 7")
        a("v_add_u32 v4, s3, v4")
        a("ds_write_b128 v4, v[8:11]")
        a("ds_write_b128 v4, v[12:15] offset:16")
        a("s_waitcnt lgkmcnt(0)")
        a("s_barrier")
        a("s_cmp_lg_u32 s30, 0")
        a(f"s_cbranch_scc1 {end}")
        a("v_and_b32 v4, 31, v1")
        a("v_lshlrev_b32 v4, 2, v4")
        for w in range(4):
            a(f"ds_read_b32 v{8+w}, v4 offset:{128*w}")
        a("s_lshl_b32 s3, s2, 7")
        a("v_add_u32 v4, s3, v4")
        a("s_waitcnt lgkmcnt(0)")
        a("v_add_f32 v8, v8, v9")
        a("v_add_f32 v10, v10, v11")
        a("v_add_f32 v8, v8, v10")
        a("buffer_store_dword v8, v4, s[8:11], 0 offen")
        a(f"s_branch {end}")
        a.label(lab_att)
    a("s_lshl_b32 s3, s2, 2")
    a("s_add_u32 s92, s3, s30")
    a("s_and_b32 s28, s2, 31")
    a("s_lshr_b32 s29, s2, 5")
    a("s_lshl_b32 s39, s29, 7")
    a("s_sub_u32 s39, s39, 256")
    a("s_lshl_b32 s3, s30, 5")
    a("s_add_u32 s32, s39, s3")
    a("s_add_u32 s31, s32, 256")
    a("s_lshl_b32 s33, s28, 6")
    a(f"s_add_u32 s35, s33, {2*D*2}")
    a(f"s_add_u32 s36, s33, {D*2}")
    a("v_and_b32 v2, 31, v1")
    a("v_lshrrev_b32 v3, 5, v1")
    a("v_add_u32 v4, s31, v2")
    a(f"v_mul_u32_u24 v4, {QKV_ROW}, v4")
    a("v_lshl_add_u32 v4, v3, 4, v4")
    a("v_add_u32 v4, s33, v4")
    a("s_waitcnt lgkmcnt(0)")
    srd(a, 4, 24, WS_QKV, S * 3 * D * 2)
    srd(a, 8, 24, WS_O, S * D * 2)
    a("v_lshrrev_b32 v5, 2, v1")
    a("v_and_b32 v6, 3, v1")
    a("v_bfe_u32 v7, v1, 4, 2")
    a("v_xor_b32 v7, v7, v6")
    a("s_mul_i32 s3, s30, 96")
    a("s_add_u32 s3, s3, s39")
    a("s_mul_i32 s34, s30, 6144")
    for p in range(6):
        a(f"v_add_u32 v16, {16*p}, v5")
        a("v_add_u32 v16, s3, v16")
        a("v_max_i32 v16, 0, v16")
        a(f"v_mul_u32_u24 v16, {QKV_ROW}, v16")
        a("v_lshl_add_u32 v17, v7, 4, v16")
        a("v_add_u32 v17, s36, v17")
        a(f"s_add_u32 m0, s34, {p*1024}")
        a("v_lshl_add_u32 v16, v6, 4, v16")
        a(f"buffer_load_dwordx4 v17, s[4:7], 0 offen lds")
        a("v_add_u32 v16, s35, v16")
        a(f"s_add_u32 m0, s34, {KLDS + p*1024}")
        a("s_nop 0")
        a(f"buffer_load_dwordx4 v16, s[4:7], 0 offen lds")
    a("buffer_load_dwordx4 v[8:11], v4, s[4:7], 0 offen")
    a("buffer_load_dwordx4 v[12:15], v4, s[4:7], 0 offen offset:32")
    KF = 16
    npl = tail_prefetch(a, 92, 1, pf, 7, 240) if pf else 0
    a("v_bfe_u32 v5, v1, 2, 2")
    a("v_xor_b32 v5, v5, v3")
    a("v_lshlrev_b32 v6, 6, v2")
    a("s_lshl_b32 s34, s30, 11")
    a("v_add_u32 v6, s34, v6")
    a("v_lshl_add_u32 v88, v5, 4, v6")
    a("v_xor_b32 v5, 2, v5")
    a("v_lshl_add_u32 v89, v5, 4, v6")
    a(f"s_add_u32 s34, s34, {KLDS}")
    a(f"s_waitcnt vmcnt({npl})")
    a("s_barrier")
    for t_ in range(9):
        a(f"ds_read_b128 {v(KF+8*t_,4)}, v88 offset:{2048*t_}")
        a(f"ds_read_b128 {v(KF+8*t_+4,4)}, v89 offset:{2048*t_}")
    SC = 96
    a("v_mov_b32 v7, 0xf149f2ca")
    for t in range(9):
        a(f"s_waitcnt lgkmcnt({min(15, 2*(8-t))})")
        if t < 8:
            lab_inv = a.newlabel("L_inv"); lab_done = a.newlabel("L_tdone")
            a(f"s_add_i32 s3, s32, {32*t}")
            a("s_cmp_lt_i32 s3, 0")
            a(f"s_cbranch_scc1 {lab_inv}")
        a(f"v_mfma_f32_32x32x16_bf16 {v(SC+16*t,16)}, {v(KF+8*t,4)}, v[8:11], 0")
        a(f"v_mfma_f32_32x32x16_bf16 {v(SC+16*t,16)}, {v(KF+8*t+4,4)}, v[12:15], {v(SC+16*t,16)}")
        if t < 8:
            a(f"s_branch {lab_done}")
            a.label(lab_inv)
            for r in range(16):
                a(f"v_mov_b32 v{SC+16*t+r}, v7")
            a.label(lab_done)
    a("v_lshlrev_b32 v5, 2, v3")
    a("v_sub_u32 v5, v2, v5")
    a("s_nop 7")
    a("s_nop 7")
    for r in range(16):
        c = (r & 3) + 8 * (r >> 2)
        a(f"v_cmp_gt_i32 vcc, {c}, v5")
        a(f"v_cmp_le_i32 s[36:37], {c}, v5")
        a("s_nop 0")
        a(f"v_cndmask_b32 v{SC+r}, v7, v{SC+r}, vcc")
        a(f"v_cndmask_b32 v{SC+128+r}, v7, v{SC+128+r}, s[36:37]")
    a(f"v_max3_f32 v4, v{SC}, v{SC+1}, v{SC+2}")
    a(f"v_max3_f32 v6, v{SC+3}, v{SC+4}, v{SC+5}")
    for i in range(6, 144, 4):
        a(f"v_max3_f32 v4, v4, v{SC+i}, v{SC+i+1}")
        if i + 3 < 144:
            a(f"v_max3_f32 v6, v6, v{SC+i+2}, v{SC+i+3}")
    a("v_max_f32 v4, v4, v6")
    a("v_xor_b32 v88, 32, v1")
    a("v_lshlrev_b32 v88, 2, v88")
    a("ds_bpermute_b32 v89, v88, v4")
    a("s_waitcnt lgkmcnt(0)")
    a("v_max_f32 v4, v4, v89")
    sc = (DH ** -0.5) * math.log2(math.e)
    sc_bits = struct.unpack("<I", struct.pack("<f", sc))[0]
    a(f"s_mov_b32 s38, {sc_bits}")
    a("v_mul_f32 v4, s38, v4")
    sums = [5, 6, 90, 91]
    for sreg in sums:
        a(f"v_mov_b32 v{sreg}, 0")
    for g in range(0, 144, 4):
        for j in range(4):
            a(f"v_fma_f32 v{SC+g+j}, v{SC+g+j}, s38, -v4")
        for j in range(4):
            a(f"v_exp_f32 v{SC+g+j}, v{SC+g+j}")
        if g >= 4:
            for j in range(4):
                a(f"v_add_f32 v{sums[j]}, v{sums[j]}, v{SC+g-4+j}")
            tt, jj = divmod(g - 4, 16)
            a(f"v_cvt_pk_bf16_f32 v{KF+8*tt+jj//2}, v{SC+g-4}, v{SC+g-3}")
            a(f"v_cvt_pk_bf16_f32 v{KF+8*tt+jj//2+1}, v{SC+g-2}, v{SC+g-1}")
    a("s_nop 0")
    g = 144
    for j in range(4):
        a(f"v_add_f32 v{sums[j]}, v{sums[j]}, v{SC+g-4+j}")
    tt, jj = divmod(g - 4, 16)
    a(f"v_cvt_pk_bf16_f32 v{KF+8*tt+jj//2}, v{SC+g-4}, v{SC+g-3}")
    a(f"v_cvt_pk_bf16_f32 v{KF+8*tt+jj//2+1}, v{SC+g-2}, v{SC+g-1}")
    a("v_add_f32 v5, v5, v6")
    a("v_add_f32 v90, v90, v91")
    a("v_add_f32 v5, v5, v90")
    a("ds_bpermute_b32 v89, v88, v5")
    a("v_bfe_u32 v6, v1, 2, 2")
    a("v_lshl_add_u32 v6, v3, 2, v6")
    a("v_lshlrev_b32 v6, 6, v6")
    a("v_bfe_u32 v7, v1, 4, 1")
    a("v_lshl_add_u32 v6, v7, 5, v6")
    a("v_and_b32 v7, 3, v1")
    a("v_lshl_add_u32 v6, v7, 3, v6")
    a("v_add_u32 v6, s34, v6")
    OA = SC
    VF = SC + 16
    a(f"s_waitcnt lgkmcnt(0)")
    a("v_add_f32 v5, v5, v89")
    a("v_rcp_f32 v5, v5")
    for t in range(9):
        for sidx in range(2):
            f = VF + 4 * (2 * t + sidx)
            base = (32 * t + 16 * sidx) * 64
            a(f"ds_read_b64_tr_b16 {v(f,2)}, v6 offset:{base}")
            a(f"ds_read_b64_tr_b16 {v(f+2,2)}, v6 offset:{base+8*64}")
    first = True
    for t in range(9):
        for sidx in range(2):
            f = VF + 4 * (2 * t + sidx)
            idx = 2 * t + sidx
            rem = 36 - 2 * (idx + 1)
            a(f"s_waitcnt lgkmcnt({min(rem,15)})")
            a(f"v_mfma_f32_32x32x16_bf16 {v(OA,16)}, {v(f,4)}, {v(KF+8*t+4*sidx,4)}, {'0' if first else v(OA,16)}")
            first = False
    a("v_add_u32 v7, s31, v2")
    a(f"v_lshlrev_b32 v7, 11, v7")
    a("v_lshl_add_u32 v7, v3, 3, v7")
    a("v_add_u32 v7, s33, v7")
    a("s_nop 7")
    a("s_nop 7")
    for g in range(4):
        for r in range(4):
            a(f"v_mul_f32 v{OA+4*g+r}, v{OA+4*g+r}, v5")
        a(f"v_cvt_pk_bf16_f32 v{OA+4*g}, v{OA+4*g}, v{OA+4*g+1}")
        a(f"v_cvt_pk_bf16_f32 v{OA+4*g+1}, v{OA+4*g+2}, v{OA+4*g+3}")
        a(f"buffer_store_dwordx2 {v(OA+4*g,2)}, v7, s[8:11], 0 offen offset:{16*g}")
    a.label(end)
    a("s_endpgm")
    return dict(name=name, grid=nwg + npf, block=256, lds=lds, desc=kernel_desc(name, 244))


def main():
    a = Asm()
    ks = []
    FUSE = 'nofuse' not in EXP
    if FUSE:
        ks.append(gen_gemm(a, "qkv_kernel", 3 * D, D, 192, 0, "wqkv", "plain", "ws", WS_QKV, NSTAGE=4, RA=8, RBN=4,
                           ln='single', a_arg='x'))
    else:
        ks.append(gen_ln(a, "ln1_kernel", "x", 0, WS_Y1, False, pf=[("wqkv", D*3*D*2), ("wo", D*D*2)]))
        ks.append(gen_gemm(a, "qkv_kernel", 3 * D, D, 192, WS_Y1, "wqkv", "plain", "ws", WS_QKV, NSTAGE=4, RA=8, RBN=4))
    ks.append(gen_attn(a, "attn_kernel", pf=[("w1", D*F*2), ("w2", F*D*2), ("wo", D*D*2)] if FUSE else [("w1", D*F*2), ("w2", F*D*2)], colsum=FUSE))
    ks.append(gen_gemm(a, "oproj_kernel", D, D, 64, WS_O, "wo", "plain", "ws", WS_H, res_arg="x", NSTAGE=6, stats_out=FUSE))
    if FUSE:
        ks.append(gen_gemm(a, "ffn1_kernel", F, D, 224, WS_H, "w1", "gelu", "ws", WS_H1, bias_arg="b1", RA=8, RBN=4,
                           ln='double', pre=True))
    else:
        ks.append(gen_ln(a, "ln2_kernel", "ws", WS_H, WS_Y2, True))
        ks.append(gen_gemm(a, "ffn1_kernel", F, D, 224, WS_Y2, "w1", "gelu", "ws", WS_H1, bias_arg="b1", RA=8, RBN=4))
    ks.append(gen_gemm(a, "ffn2_kernel", D, F, 64, WS_H1, "w2", "plain", "out", 0, res_arg="ws", res_off=WS_H,
                       bias_arg="b2", NSTAGE=6))
    hdr = []
    for k in ks:
        hdr.append(f"; @launch kernel={k['name']} grid=({k['grid']},1,1) block=({k['block']},1,1) lds={k['lds']}")
    txt = "\n".join(hdr) + "\n"
    txt += '.amdgcn_target "amdgcn-amd-amdhsa--gfx950"\n.text\n'
    txt += "\n".join(a.lines) + "\n"
    txt += '.section .rodata,"a"\n'
    for k in ks:
        txt += ".p2align 6\n" + k["desc"]
    open(OUT, "w").write(txt)


if __name__ == "__main__":
    main()
```

```python
import sys, math, os
EXP=os.environ.get('EXP','')

OUT = os.environ.get("OUTF","sequential_preLN__sliding_block__mixer_channel_mlp__prompt.s")

S = 2048; D = 1024; F = 3584; H = 32; DH = 32; WIN = 256
ARG = dict(x=0, wqkv=8, wo=16, bx=24, w1=32, b1=40, w2=48, b2=56, out=64, dbg=72, ws=80)
MB = 1 << 20
WS_Y1 = 0
WS_QKV = 4 * MB
WS_O = 16 * MB
WS_H = 20 * MB
WS_Y2 = 24 * MB
WS_H1 = 28 * MB
WS_ST = 0
WS_CS = 1 * MB
WS_SIZE = 256 * MB


class Asm:
    def __init__(self):
        self.lines = []
        self.nlab = 0

    def __call__(self, s):
        self.lines.append("    " + s)

    def label(self, l):
        self.lines.append(l + ":")

    def newlabel(self, base="L"):
        self.nlab += 1
        return f"{base}_{self.nlab}"

    def c(self, s):
        self.lines.append("    ; " + s)


def v(i, n=1):
    return f"v{i}" if n == 1 else f"v[{i}:{i+n-1}]"


def s(i, n=1):
    return f"s{i}" if n == 1 else f"s[{i}:{i+n-1}]"


def srd(a, d, base, off, nbytes):
    if off:
        a(f"s_add_u32 s{d}, s{base}, {off}")
        a(f"s_addc_u32 s{d+1}, s{base+1}, 0")
    else:
        a(f"s_mov_b32 s{d}, s{base}")
        a(f"s_mov_b32 s{d+1}, s{base+1}")
    a(f"s_and_b32 s{d+1}, s{d+1}, 0xffff")
    a(f"s_mov_b32 s{d+2}, {nbytes}")
    a(f"s_mov_b32 s{d+3}, 0x00020000")


def hex_f32(x):
    import struct
    return hex(struct.unpack('<I', struct.pack('<f', x))[0])


def kernel_header(a, name):
    a.lines.append(".p2align 8")
    a.lines.append(f".globl {name}")
    a.lines.append(f".type {name},@function")
    a.label(name)


def kernel_desc(name, nvgpr, nsgpr=102, accum=None):
    nv = ((nvgpr + 7) // 8) * 8
    acc = accum if accum is not None else ((nvgpr + 3) // 4) * 4
    return f""".amdhsa_kernel {name}
  .amdhsa_next_free_vgpr {nv if accum is None else nvgpr}
  .amdhsa_next_free_sgpr {nsgpr}
  .amdhsa_accum_offset {min(acc,256)}
  .amdhsa_group_segment_fixed_size 0
  .amdhsa_kernarg_size 88
  .amdhsa_user_sgpr_count 2
  .amdhsa_user_sgpr_kernarg_segment_ptr 1
  .amdhsa_system_sgpr_workgroup_id_x 1
.end_amdhsa_kernel
"""


def gen_prefetch(a, regions, end_label):
    CH = 32768
    counts = [nbytes // CH for _, nbytes in regions]
    for (_, nbytes), c in zip(regions, counts):
        assert c * CH == nbytes
    total = sum(counts)
    skip = a.newlabel("L_nopf")
    a(f"s_cmp_ge_u32 s2, {total}")
    a(f"s_cbranch_scc1 {skip}")
    base = 0
    for (arg, nbytes), c in zip(regions, counts):
        nxt = a.newlabel("L_pfn")
        a(f"s_cmp_ge_u32 s2, {base + c}")
        a(f"s_cbranch_scc1 {nxt}")
        a(f"s_load_dwordx2 s[4:5], s[0:1], {ARG[arg]}")
        a(f"s_sub_u32 s3, s2, {base}")
        a("s_lshl_b32 s3, s3, 15")
        a("v_lshlrev_b32 v1, 4, v0")
        a("v_add_u32 v1, s3, v1")
        a("s_waitcnt lgkmcnt(0)")
        srd(a, 8, 4, 0, nbytes)
        for j in range(8):
            a(f"v_add_u32 v2, {4096*j}, v1")
            a(f"buffer_load_dwordx4 {v(4+4*j,4)}, v2, s[8:11], 0 offen")
        a("s_waitcnt vmcnt(0)")
        a(f"s_branch {end_label}")
        a.label(nxt)
        base += c
    a.label(skip)
    a(f"s_sub_u32 s2, s2, {total}")
    return total


def tail_prefetch(a, task, lane, regions, vtmp, vdst):
    ntask = 2048
    total = sum(n for _, n in regions)
    per = total // ntask
    assert per * ntask == total and per % 1024 == 0
    nld = per // 1024
    base = 0
    done = a.newlabel("L_pfdone")
    for arg, nbytes in regions:
        cnt = nbytes // per
        assert cnt * per == nbytes
        nxt = a.newlabel("L_pfn")
        a(f"s_cmp_ge_u32 s{task}, {base + cnt}")
        a(f"s_cbranch_scc1 {nxt}")
        a(f"s_load_dwordx2 s[94:95], s[0:1], {ARG[arg]}")
        a(f"s_sub_u32 s93, s{task}, {base}")
        a(f"s_mul_i32 s93, s93, {per}")
        a(f"v_lshlrev_b32 {v(vtmp)}, 4, {v(lane)}")
        a(f"v_add_u32 {v(vtmp)}, s93, {v(vtmp)}")
        a("s_waitcnt lgkmcnt(0)")
        srd(a, 96, 94, 0, nbytes)
        for j in range(nld):
            if j and j % 4 == 0:
                a(f"v_add_u32 {v(vtmp)}, 4096, {v(vtmp)}")
            a(f"buffer_load_dwordx4 {v(vdst,4)}, {v(vtmp)}, s[96:99], 0 offen offset:{1024*(j%4)}")
        a(f"s_branch {done}")
        a.label(nxt)
        base += cnt
    a.label(done)
    return nld

def gen_ln(a, name, src_arg, src_off, dst_off, double, pf=None):
    nwg = S // 4
    kernel_header(a, name)
    end = a.newlabel("L_end")
    npf = 0
    a(f"s_cmp_ge_u32 s2, {nwg}")
    a(f"s_cbranch_scc1 {end}")
    a(f"s_load_dwordx2 s[4:5], s[0:1], {ARG[src_arg]}")
    a(f"s_load_dwordx2 s[6:7], s[0:1], {ARG['ws']}")
    a("v_lshrrev_b32 v1, 6, v0")
    a("v_and_b32 v2, 63, v0")
    a("s_lshl_b32 s3, s2, 2")
    a("v_add_u32 v1, s3, v1")
    a("v_lshlrev_b32 v3, 11, v1")
    a("v_lshl_add_u32 v3, v2, 5, v3")
    for i, m in enumerate([1, 2, 4, 8, 16, 32]):
        a(f"v_xor_b32 v{12+i}, {m}, v2")
        a(f"v_lshlrev_b32 v{12+i}, 2, v{12+i}")
    a("s_waitcnt lgkmcnt(0)")
    srd(a, 8, 4, src_off, S * D * 2)
    srd(a, 12, 6, dst_off, S * D * 2)
    a("buffer_load_dwordx4 v[4:7], v3, s[8:11], 0 offen")
    a("buffer_load_dwordx4 v[8:11], v3, s[8:11], 0 offen offset:16")
    npl = 0
    if pf:
        a("v_readfirstlane_b32 s92, v1")
        a("s_nop 3")
        npl = tail_prefetch(a, 92, 2, pf, 44, 48)
    a(f"s_waitcnt vmcnt({npl})")

    def unpack():
        for i in range(8):
            a(f"v_lshlrev_b32 v{20+2*i}, 16, v{4+i}")
            a(f"v_and_b32 v{21+2*i}, 0xffff0000, v{4+i}")

    def bfly():
        for i in range(6):
            a(f"ds_bpermute_b32 v41, v{12+i}, v40")
            a("s_waitcnt lgkmcnt(0)")
            a("v_add_f32 v40, v40, v41")

    def norm():
        a("v_add_f32 v40, v20, v21")
        for i in range(2, 16):
            a(f"v_add_f32 v40, v40, v{20+i}")
        bfly()
        a("v_mul_f32 v40, 0x3a800000, v40")
        for i in range(16):
            a(f"v_sub_f32 v{20+i}, v{20+i}, v40")
        a("v_mul_f32 v40, v20, v20")
        for i in range(1, 16):
            a(f"v_fmac_f32 v40, v{20+i}, v{20+i}")
        bfly()
        a("v_mov_b32 v42, 0x3727c5ac")
        a("v_fma_f32 v40, v40, v43, v42")
        a("v_rsq_f32 v40, v40")
        a("s_nop 0")
        for i in range(16):
            a(f"v_mul_f32 v{20+i}, v{20+i}, v40")
        for i in range(8):
            a(f"v_cvt_pk_bf16_f32 v{4+i}, v{20+2*i}, v{21+2*i}")

    a("v_mov_b32 v43, 0x3a800000")
    unpack()
    norm()
    if double:
        unpack()
        norm()
    a("buffer_store_dwordx4 v[4:7], v3, s[12:15], 0 offen")
    a("buffer_store_dwordx4 v[8:11], v3, s[12:15], 0 offen offset:16")
    a.label(end)
    a("s_endpgm")
    return dict(name=name, grid=nwg + npf, block=256, lds=0, desc=kernel_desc(name, 56))


def gen_gemm(a, name, N, K, BN, a_off, w_arg, epi, out_arg, out_off, res_arg=None, res_off=0,
             bias_arg=None, BM=128, NSTAGE=3, RA=4, RBN=8, ln=None, a_arg='ws', pre=False, stats_out=False):
    import struct
    M = S
    BK = 64
    NT_M = M // BM
    NT_N = N // BN
    ntiles = NT_M * NT_N
    MT = BM // 2 // 16
    NTW = BN // 2 // 16
    RB = {64: 128, 128: 256, 192: 128, 96: 64, 224: 448, 112: 32}[BN]
    ABYTES = BM * BK * 2
    BBYTES = BK * BN * 2
    STAGE = ABYTES + BBYTES
    PA = ABYTES // 1024 // 4
    PB = BBYTES // 1024 // 4
    assert PA * 4096 == ABYTES and PB * 4096 == BBYTES
    P = PA + PB
    NS = K // BK
    lds = STAGE * NSTAGE
    CROW = BN * 2 + 16
    CSZ = BM * CROW
    LASTB = (NS - 1) % NSTAGE
    TBL = 2048 if (ln and not pre) else 0
    CBASE = 0 if LASTB * STAGE >= CSZ + TBL else (LASTB + 1) * STAGE
    assert CBASE + CSZ + TBL <= lds
    EPI = lds
    st_res = bool(res_arg)
    st_bias = pre
    if st_res: lds += BM * BN * 2
    if st_bias: lds += 3072
    assert lds <= 163840
    if pre:
        CTAB = EPI + 1024; RTAB = EPI + 2048
    else:
        RTAB = CBASE + CSZ; CTAB = RTAB + 1024
    NEX = (BM * BN * 2 // 4096 if st_res else 0)
    PPR = RB // 32
    lg_ppr = int(math.log2(PPR)) if RB != 448 else 0

    vA = list(range(2, 2 + PA))
    vB = list(range(2 + PA, 2 + PA + PB))
    nxt = 2 + PA + PB
    vXb = [nxt, nxt + 1]; nxt += 2
    vWb = list(range(nxt, nxt + NTW)); nxt += NTW
    vXc = [nxt, nxt + 1]; nxt += 2
    vWc = list(range(nxt, nxt + NTW)); nxt += NTW
    vT = list(range(nxt, nxt + 8)); nxt += 8
    nxt = (nxt + 3) // 4 * 4
    FX = [nxt, nxt + 4 * MT]; nxt += 8 * MT
    FW = [nxt, nxt + 4 * NTW]; nxt += 8 * NTW
    ACC = nxt; nxt += 4 * MT * NTW
    PBI = nxt
    if bias_arg and not pre: nxt += 2 * NTW
    nvgpr = nxt
    assert nvgpr <= 256
    t0, t1, t2, t3 = vT[0], vT[1], vT[2], vT[3]

    def acc(nt, mt):
        return ACC + 4 * (nt * MT + mt)

    def stamp(i):
        if 'stamp' in EXP:
            a(f"s_memtime s[{60+2*i}:{61+2*i}]")
            if i >= 6: a("s_waitcnt lgkmcnt(0)")

    def stamp_out():
        if 'stamp' not in EXP: return
        a("s_waitcnt lgkmcnt(0)")
        srd(a, 80, 24, 200 * MB, 1 << 20)
        a("s_lshl_b32 s3, s2, 3")
        a("s_add_u32 s3, s3, s49")
        a("s_lshl_b32 s3, s3, 6")
        a("v_mov_b32 v2, s3")
        for i in range(8):
            a(f"v_mov_b32 v4, s{60+2*i}")
            a(f"v_mov_b32 v5, s{61+2*i}")
            a(f"buffer_store_dwordx2 v[4:5], v2, s[80:83], 0 offen offset:{8*i}")
            a("s_nop 1")

    def wfrag_addr_common():
        a(f"v_lshrrev_b32 {v(t1)}, 4, v1")
        a(f"v_bfe_u32 {v(t0)}, v1, 2, 2")
        a(f"v_lshl_add_u32 {v(t2)}, {v(t1)}, 3, {v(t0)}")
        if RB == 256:
            a(f"v_and_b32 {v(t3)}, 1, {v(t1)}")
            a(f"v_lshl_add_u32 {v(t3)}, {v(t3)}, 2, {v(t0)}")
        elif RB == 128:
            a(f"v_and_b32 {v(t3)}, 1, {v(t1)}")
            a(f"v_lshrrev_b32 {v(t0)}, 1, {v(t0)}")
            a(f"v_lshl_add_u32 {v(t3)}, {v(t3)}, 1, {v(t0)}")
        elif RB in (64, 448):
            a(f"v_and_b32 {v(t3)}, 1, {v(t1)}")
        else:
            a(f"v_mov_b32 {v(t3)}, 0")
        a(f"v_mul_u32_u24 {v(t2)}, {RB}, {v(t2)}")
        a(f"v_and_b32 {v(t0)}, 3, v1")
        a(f"v_lshl_add_u32 {v(t2)}, {v(t0)}, 3, {v(t2)}")
        a(f"v_add_u32 {v(t2)}, {ABYTES}, {v(t2)}")

    def wfrag_addr(dst):
        if RB == 448:
            a("s_mov_b32 s47, 0")
        elif PPR > 1:
            a(f"s_lshr_b32 s47, s46, {lg_ppr}")
            a(f"s_and_b32 s46, s46, {PPR-1}")
        else:
            a("s_mov_b32 s47, s46")
            a("s_mov_b32 s46, 0")
        a(f"s_mul_i32 s47, s47, {64*RB}")
        a(f"v_xor_b32 {v(t0)}, s46, {v(t3)}")
        a(f"v_lshl_add_u32 {v(t0)}, {v(t0)}, 5, {v(t2)}")
        a(f"v_add_u32 {v(dst)}, s47, {v(t0)}")

    kernel_header(a, name)
    end = a.newlabel("L_end")
    stamp(0)
    lab_loader = a.newlabel("L_loader")
    lab_store = a.newlabel("L_store")
    a(f"s_cmp_ge_u32 s2, {ntiles}")
    a(f"s_cbranch_scc1 {end}")
    a(f"s_load_dwordx2 s[24:25], s[0:1], {ARG['ws']}")
    a(f"s_load_dwordx2 s[58:59], s[0:1], {ARG[a_arg]}")
    a(f"s_load_dwordx2 s[26:27], s[0:1], {ARG[w_arg]}")
    a(f"s_load_dwordx2 s[34:35], s[0:1], {ARG[out_arg]}")
    if res_arg:
        a(f"s_load_dwordx2 s[36:37], s[0:1], {ARG[res_arg]}")
    if bias_arg:
        a(f"s_load_dwordx2 s[38:39], s[0:1], {ARG[bias_arg]}")
    assert ntiles == 256 and RA * RBN == 32 and NT_M % RA == 0 and NT_N % RBN == 0
    XB = NT_N // RBN
    a("s_and_b32 s3, s2, 7")
    a("s_lshr_b32 s46, s2, 3")
    a(f"s_lshr_b32 s28, s3, {int(math.log2(XB))}")
    a(f"s_and_b32 s29, s3, {XB-1}")
    a(f"s_mul_i32 s28, s28, {RA}")
    a(f"s_mul_i32 s29, s29, {RBN}")
    a(f"s_lshr_b32 s3, s46, {int(math.log2(RBN))}")
    a("s_add_u32 s28, s28, s3")
    a(f"s_and_b32 s3, s46, {RBN-1}")
    a("s_add_u32 s29, s29, s3")
    a("v_and_b32 v1, 63, v0")
    a(f"v_lshrrev_b32 {v(vT[0])}, 6, v0")
    a("s_nop 0")
    a(f"v_readfirstlane_b32 s49, {v(vT[0])}")
    a("s_nop 3")
    a("s_and_b32 s30, s49, 3")
    a("s_lshr_b32 s44, s30, 1")
    a("s_and_b32 s45, s30, 1")

    def build_srds():
        a("s_waitcnt lgkmcnt(0)")
        srd(a, 4, 58, a_off, M * K * 2)
        srd(a, 8, 26, 0, K * N * 2)
        srd(a, 12, 34, out_off, M * N * 2)
        if res_arg:
            srd(a, 16, 36, res_off, M * N * 2)
        if bias_arg:
            srd(a, 20, 38, 0, N * 2)
        if pre or stats_out:
            srd(a, 84, 24, WS_ST, S * 128)
        if pre:
            srd(a, 88, 24, WS_CS, N * 4)

    a("s_cmp_ge_u32 s49, 4")
    a(f"s_cbranch_scc1 {lab_loader}")

    a(f"v_and_b32 {v(t0)}, 15, v1")
    a("s_lshl_b32 s3, s44, 6")
    a(f"v_add_u32 {v(t0)}, s3, {v(t0)}")
    a(f"v_lshlrev_b32 {v(t0)}, 7, {v(t0)}")
    a(f"v_lshrrev_b32 {v(t1)}, 4, v1")
    a(f"v_bfe_u32 {v(t2)}, v1, 1, 3")
    a(f"v_xor_b32 {v(t3)}, {v(t1)}, {v(t2)}")
    a(f"v_lshl_add_u32 {v(vXb[0])}, {v(t3)}, 4, {v(t0)}")
    a(f"v_xor_b32 {v(t3)}, 4, {v(t3)}")
    a(f"v_lshl_add_u32 {v(vXb[1])}, {v(t3)}, 4, {v(t0)}")
    wfrag_addr_common()
    a(f"s_mul_i32 s3, s45, {NTW}")
    for nt in range(NTW):
        a(f"s_add_u32 s46, s3, {nt}")
        wfrag_addr(vWb[nt])
    for i in range(4 * MT * NTW):
        a(f"v_mov_b32 v{ACC+i}, 0")
    a("s_mov_b32 s42, 0")
    build_srds()
    if bias_arg and not pre:
        a(f"v_lshrrev_b32 {v(t0)}, 4, v1")
        a(f"v_lshlrev_b32 {v(t0)}, 3, {v(t0)}")
        a(f"s_mul_i32 s3, s29, {BN*2}")
        a(f"s_mul_i32 s46, s45, {BN}")
        a("s_add_u32 s3, s3, s46")
        for nt in range(NTW):
            a(f"buffer_load_dwordx2 {v(PBI+2*nt,2)}, {v(t0)}, s[20:23], s3 offen offset:{32*nt}")

    def set_cur():
        for kk in range(2):
            a(f"v_add_u32 {v(vXc[kk])}, s42, {v(vXb[kk])}")
        for nt in range(NTW):
            a(f"v_add_u32 {v(vWc[nt])}, s42, {v(vWb[nt])}")
        a(f"s_add_u32 s42, s42, {STAGE}")
        a(f"s_cmp_ge_u32 s42, {STAGE*NSTAGE}")
        a("s_cselect_b32 s42, 0, s42")

    def read_list(kk, f):
        if 'noreads' in EXP: return []
        L = []
        for nt in range(NTW):
            if nt < MT:
                L.append(f"ds_read_b128 {v(FX[f]+4*nt,4)}, {v(vXc[kk])} offset:{nt*2048}")
            for rd in range(2):
                L.append(f"ds_read_b64_tr_b16 {v(FW[f]+4*nt+2*rd,2)}, {v(vWc[nt])} offset:{kk*32*RB+rd*4*RB}")
        for mt in range(NTW, MT):
            L.append(f"ds_read_b128 {v(FX[f]+4*mt,4)}, {v(vXc[kk])} offset:{mt*2048}")
        return L

    def mfma_list(f):
        if 'nomfma' in EXP: return []
        L = []
        for nt in range(NTW):
            for mt in range(MT):
                L.append(f"v_mfma_f32_16x16x32_bf16 {v(acc(nt,mt),4)}, {v(FW[f]+4*nt,4)}, {v(FX[f]+4*mt,4)}, {v(acc(nt,mt),4)}")
        return L

    def reads(kk, f):
        for x in read_list(kk, f): a(x)

    def mfmas(f):
        for x in mfma_list(f): a(x)

    def inter(kk, fr, fm):
        R = read_list(kk, fr); Mm = mfma_list(fm)
        n = max(len(R), len(Mm))
        for i in range(n):
            if i < len(Mm): a(Mm[i])
            if i < len(R): a(R[i])

    stamp(1)
    a("s_barrier")
    stamp(2)
    set_cur()
    reads(0, 0)
    a("s_waitcnt lgkmcnt(0)")
    inter(1, 1, 0)
    a("s_waitcnt lgkmcnt(0)")
    a(f"s_mov_b32 s48, {NS-1}")
    loop = a.newlabel("L_cloop")
    a.label(loop)
    a("s_barrier")
    set_cur()
    inter(0, 0, 1)
    a("s_waitcnt lgkmcnt(0)")
    inter(1, 1, 0)
    a("s_waitcnt lgkmcnt(0)")
    a("s_sub_u32 s48, s48, 1")
    a("s_cmp_lg_u32 s48, 0")
    a(f"s_cbranch_scc1 {loop}")
    stamp(3)
    mfmas(1)
    if ln and not pre:
        a("s_barrier")
    RT = FX[0]; CS = RT + 8; BR = CS + 4 * NTW; BF = BR + 2 * NTW; GE = BF + 4 * NTW
    assert GE + 10 <= ACC
    a(f"v_and_b32 {v(t2)}, 15, v1")
    a("s_lshl_b32 s3, s44, 6")
    a(f"v_add_u32 {v(t2)}, s3, {v(t2)}")
    a(f"v_lshrrev_b32 {v(t3)}, 4, v1")
    a(f"s_mul_i32 s3, s45, {NTW*4}")
    a(f"v_add_u32 {v(t3)}, s3, {v(t3)}")
    if ln:
        a(f"v_lshlrev_b32 {v(t0)}, 3, {v(t2)}")
        a(f"v_add_u32 {v(t0)}, {RTAB}, {v(t0)}")
        for mt in range(MT):
            a(f"ds_read_b64 {v(RT+2*mt,2)}, {v(t0)} offset:{128*mt}")
        a(f"v_lshlrev_b32 {v(t0)}, 4, {v(t3)}")
        a(f"v_add_u32 {v(t0)}, {CTAB}, {v(t0)}")
        for nt in range(NTW):
            a(f"ds_read_b128 {v(CS+4*nt,4)}, {v(t0)} offset:{64*nt}")
    if bias_arg and pre:
        a(f"v_lshlrev_b32 {v(t0)}, 3, {v(t3)}")
        a(f"v_add_u32 {v(t0)}, {EPI}, {v(t0)}")
        for nt in range(NTW):
            a(f"ds_read_b64 {v(BR+2*nt,2)}, {v(t0)} offset:{32*nt}")
    vc = vT[0]
    a(f"v_mul_u32_u24 {v(t2)}, {CROW}, {v(t2)}")
    a(f"v_lshl_add_u32 {v(vc)}, {v(t3)}, 3, {v(t2)}")
    if CBASE: a(f"v_add_u32 {v(vc)}, {CBASE}, {v(vc)}")
    if epi == 'gelu':
        c2 = 2 * math.log2(math.e)
        k1 = struct.unpack("<I", struct.pack("<f", 0.7978845608 * c2))[0]
        k3 = struct.unpack("<I", struct.pack("<f", 0.7978845608 * 0.044715 * c2))[0]
        a(f"s_mov_b32 s52, {k3}"); a(f"s_mov_b32 s53, {k3}")
        a(f"v_mov_b32 {v(GE+8)}, {k1}"); a(f"v_mov_b32 {v(GE+9)}, {k1}")
        a("s_mov_b32 s56, 1.0"); a("s_mov_b32 s57, 1.0")
    a("s_waitcnt vmcnt(0) lgkmcnt(0)")
    a("s_nop 7")
    if bias_arg:
        bsrc = BR if pre else PBI
        for nt in range(NTW):
            for j in range(2):
                a(f"v_lshlrev_b32 {v(BF+4*nt+2*j)}, 16, {v(bsrc+2*nt+j)}")
                a(f"v_and_b32 {v(BF+4*nt+2*j+1)}, 0xffff0000, {v(bsrc+2*nt+j)}")
    for nt in range(NTW):
        for mp in range(0, MT, 2):
            c0 = acc(nt, mp)
            for q in range(2):
                mt = mp + q
                for j in range(2):
                    cc = v(c0 + 4 * q + 2 * j, 2)
                    tt = v(GE + 4 * q + 2 * j, 2)
                    if ln:
                        if bias_arg:
                            a(f"v_pk_fma_f32 {tt}, {v(CS+4*nt+2*j,2)}, {v(RT+2*mt,2)}, {v(BF+4*nt+2*j,2)} op_sel:[0,1,0] op_sel_hi:[1,1,1]")
                        else:
                            a(f"v_pk_mul_f32 {tt}, {v(CS+4*nt+2*j,2)}, {v(RT+2*mt,2)} op_sel:[0,1] op_sel_hi:[1,1]")
                    elif bias_arg:
                        a(f"v_pk_add_f32 {cc}, {cc}, {v(BF+4*nt+2*j,2)}")
            if ln:
                for q in range(2):
                    mt = mp + q
                    for j in range(2):
                        cc = v(c0 + 4 * q + 2 * j, 2)
                        tt = v(GE + 4 * q + 2 * j, 2)
                        a(f"v_pk_fma_f32 {cc}, {cc}, {v(RT+2*mt,2)}, {tt} op_sel:[0,0,0] op_sel_hi:[1,0,1]")
            if epi == 'gelu':
                for j in range(4):
                    a(f"v_pk_mul_f32 {v(GE+2*j,2)}, {v(c0+2*j,2)}, {v(c0+2*j,2)}")
                for j in range(4):
                    a(f"v_pk_fma_f32 {v(GE+2*j,2)}, {v(GE+2*j,2)}, s[52:53], {v(GE+8,2)}")
                for j in range(4):
                    a(f"v_pk_mul_f32 {v(GE+2*j,2)}, {v(GE+2*j,2)}, {v(c0+2*j,2)}")
                for r in range(8):
                    a(f"v_exp_f32 {v(GE+r)}, {v(GE+r)}")
                a("s_nop 0")
                for j in range(4):
                    a(f"v_pk_add_f32 {v(GE+2*j,2)}, {v(GE+2*j,2)}, s[56:57]")
                for r in range(8):
                    a(f"v_rcp_f32 {v(GE+r)}, {v(GE+r)}")
                a("s_nop 0")
                for j in range(4):
                    cc = v(c0 + 2 * j, 2)
                    a(f"v_pk_fma_f32 {cc}, {cc}, {v(GE+2*j,2)}, {cc} neg_lo:[1,0,0] neg_hi:[1,0,0]")
            for j in range(4):
                a(f"v_cvt_pk_bf16_f32 {v(c0+j)}, {v(c0+2*j)}, {v(c0+2*j+1)}")
            for q in range(2):
                a(f"ds_write_b64 {v(vc)}, {v(c0+2*q,2)} offset:{(mp+q)*16*CROW + nt*32}")
    a("s_waitcnt lgkmcnt(0)")
    stamp(4)
    a("s_barrier")
    a(f"s_branch {lab_store}")

    a.label(lab_loader)
    if 'noprio' not in EXP: a("s_setprio 2")
    NPL = (BN // 16 + 3) // 4
    LSA = 40
    LCW = 44
    LSC = 48; LCC = 52
    LONE = 56
    LST = 60
    LCS = 68
    LSD = 84
    LWD = 100
    assert vT[7] < 40
    a(f"s_mul_i32 s3, s30, {PA*8}")
    a(f"v_lshrrev_b32 {v(t0)}, 3, v1")
    a(f"v_add_u32 {v(t0)}, s3, {v(t0)}")
    a(f"s_mul_i32 s3, s28, {BM}")
    for i in range(PA):
        a(f"v_add_u32 {v(t1)}, {8*i}, {v(t0)}")
        a(f"v_lshrrev_b32 {v(t2)}, 1, {v(t1)}")
        a(f"v_and_b32 {v(t2)}, 7, {v(t2)}")
        a(f"v_and_b32 {v(t3)}, 7, v1")
        a(f"v_xor_b32 {v(t2)}, {v(t2)}, {v(t3)}")
        if ln and not pre:
            a(f"v_lshlrev_b32 {v(LSA+i)}, 7, {v(t1)}")
            a(f"v_lshl_add_u32 {v(LSA+i)}, {v(t3)}, 4, {v(LSA+i)}")
        a(f"v_add_u32 {v(t1)}, s3, {v(t1)}")
        a(f"v_mul_u32_u24 {v(t1)}, {K*2}, {v(t1)}")
        a(f"v_lshl_add_u32 {v(vA[i])}, {v(t2)}, 4, {v(t1)}")
    a(f"s_mul_i32 s3, s29, {BN*2}")
    if RB == 448:
        a(f"s_mov_b32 s47, {((1 << 32) + 27) // 28}")
        for i in range(PB):
            a(f"s_mul_i32 s46, s30, {PB*64}")
            a(f"s_add_u32 s46, s46, {i*64}")
            a(f"v_add_u32 {v(t1)}, s46, v1")
            a(f"v_mul_hi_u32 {v(t0)}, {v(t1)}, s47")
            a(f"v_mul_u32_u24 {v(t2)}, 28, {v(t0)}")
            a(f"v_sub_u32 {v(t1)}, {v(t1)}, {v(t2)}")
            a(f"v_bfe_u32 {v(t2)}, {v(t0)}, 3, 1")
            a(f"v_lshlrev_b32 {v(t2)}, 1, {v(t2)}")
            a(f"v_xor_b32 {v(t1)}, {v(t1)}, {v(t2)}")
            a(f"v_mul_u32_u24 {v(t0)}, {N*2}, {v(t0)}")
            a(f"v_lshl_add_u32 {v(t0)}, {v(t1)}, 4, {v(t0)}")
            a(f"v_add_u32 {v(vB[i])}, s3, {v(t0)}")
    else:
      CPR = RB // 16
      lg_cpr = int(math.log2(CPR))
      RPP = 1024 // RB
      PPB = RB // 16
      lg_ppb = int(math.log2(PPB))
      for i in range(PB):
        a(f"s_mul_i32 s46, s30, {PB}")
        a(f"s_add_u32 s46, s46, {i}")
        a(f"s_lshr_b32 s47, s46, {lg_ppb}")
        a(f"s_and_b32 s46, s46, {PPB-1}")
        a(f"s_mul_i32 s46, s46, {RPP}")
        a(f"s_mul_i32 s47, s47, {RB}")
        a("s_add_u32 s47, s47, s3")
        a(f"v_lshrrev_b32 {v(t0)}, {lg_cpr}, v1")
        a(f"v_add_u32 {v(t0)}, s46, {v(t0)}")
        a(f"v_and_b32 {v(t1)}, {CPR-1}, v1")
        if RB == 256:
            a(f"v_and_b32 {v(t2)}, 3, {v(t0)}")
            a(f"v_bfe_u32 {v(t3)}, {v(t0)}, 3, 1")
            a(f"v_lshl_add_u32 {v(t2)}, {v(t3)}, 2, {v(t2)}")
        elif RB == 128:
            a(f"v_bfe_u32 {v(t2)}, {v(t0)}, 1, 1")
            a(f"v_bfe_u32 {v(t3)}, {v(t0)}, 3, 1")
            a(f"v_lshl_add_u32 {v(t2)}, {v(t3)}, 1, {v(t2)}")
        elif RB == 64:
            a(f"v_bfe_u32 {v(t2)}, {v(t0)}, 3, 1")
        else:
            a(f"v_mov_b32 {v(t2)}, 0")
        a(f"v_lshlrev_b32 {v(t2)}, 1, {v(t2)}")
        a(f"v_xor_b32 {v(t1)}, {v(t1)}, {v(t2)}")
        a(f"v_mul_u32_u24 {v(t0)}, {N*2}, {v(t0)}")
        a(f"v_lshl_add_u32 {v(t0)}, {v(t1)}, 4, {v(t0)}")
        a(f"v_add_u32 {v(vB[i])}, s47, {v(t0)}")
    a(f"s_mul_i32 s31, s30, {PA*1024}")
    a(f"s_mul_i32 s32, s30, {PB*1024}")
    a(f"s_add_u32 s32, s32, {ABYTES}")
    a("s_mov_b32 s40, 0")
    a("s_mov_b32 s41, 0")
    a("s_mov_b32 s43, 0")
    a("s_mov_b32 s42, 0")
    build_srds()

    def dma():
        if 'nodma' in EXP: return
        a("s_add_u32 s33, s43, s31")
        for i in range(PA):
            a(f"s_add_u32 m0, s33, {i*1024}")
            a("s_nop 0")
            a(f"buffer_load_dwordx4 {v(vA[i])}, s[4:7], s40 offen lds")
        a("s_add_u32 s33, s43, s32")
        for i in range(PB):
            a(f"s_add_u32 m0, s33, {i*1024}")
            a("s_nop 0")
            a(f"buffer_load_dwordx4 {v(vB[i])}, s[8:11], s41 offen lds")
        a(f"s_add_u32 s40, s40, {BK*2}")
        a(f"s_add_u32 s41, s41, {BK*N*2}")
        a(f"s_add_u32 s43, s43, {STAGE}")
        a(f"s_cmp_ge_u32 s43, {STAGE*NSTAGE}")
        a("s_cselect_b32 s43, 0, s43")

    stamp(1)
    if pre:
        a(f"v_lshrrev_b32 {v(LSA)}, 1, v1")
        a("s_lshl_b32 s3, s30, 5")
        a(f"v_add_u32 {v(LSA)}, s3, {v(LSA)}")
        a(f"s_mul_i32 s3, s28, {BM}")
        a(f"v_add_u32 {v(t0)}, s3, {v(LSA)}")
        a(f"v_lshlrev_b32 {v(t0)}, 7, {v(t0)}")
        a(f"v_and_b32 {v(t1)}, 1, v1")
        a(f"v_lshl_add_u32 {v(t0)}, {v(t1)}, 6, {v(t0)}")
        for i in range(4):
            a(f"buffer_load_dwordx4 {v(LSD+4*i,4)}, {v(t0)}, s[84:87], 0 offen offset:{16*i}")
    if st_bias:
        a(f"v_lshlrev_b32 {v(t0)}, 4, v1")
        a(f"s_mul_i32 s3, s29, {BN*2}")
        a(f"s_mov_b32 m0, {EPI}")
        a("s_nop 0")
        a(f"buffer_load_dwordx4 {v(t0)}, s[20:23], s3 offen lds")
        a(f"s_mul_i32 s3, s29, {BN*4}")
        a(f"s_mov_b32 m0, {EPI+1024}")
        a("s_nop 0")
        a(f"buffer_load_dwordx4 {v(t0)}, s[88:91], s3 offen lds")
    for _ in range(NSTAGE - 1):
        dma()
    stamp(2)
    if ln and not pre:
        wfrag_addr_common()
        for i in range(NPL):
            a(f"s_mul_i32 s46, s30, {NPL}")
            a(f"s_add_u32 s46, s46, {i}")
            a(f"s_min_u32 s46, s46, {BN//16-1}")
            wfrag_addr(LCW + i)
        for i in range(4):
            a(f"v_mov_b32 {v(LONE+i)}, 0x3f803f80")
        for i in range(2 * PA):
            a(f"v_mov_b32 {v(LST+i)}, 0")
        for i in range(4 * NPL):
            a(f"v_mov_b32 {v(LCS+i)}, 0")

    def stats_reads():
        for i in range(PA):
            a(f"v_add_u32 {v(LSC+i)}, s42, {v(LSA+i)}")
        for i in range(NPL):
            a(f"v_add_u32 {v(LCC+i)}, s42, {v(LCW+i)}")
        a(f"s_add_u32 s42, s42, {STAGE}")
        a(f"s_cmp_ge_u32 s42, {STAGE*NSTAGE}")
        a("s_cselect_b32 s42, 0, s42")
        for i in range(PA):
            a(f"ds_read_b128 {v(LSD+4*i,4)}, {v(LSC+i)}")
        for i in range(NPL):
            for kk in range(2):
                for rd in range(2):
                    a(f"ds_read_b64_tr_b16 {v(LWD+8*i+4*kk+2*rd,2)}, {v(LCC+i)} offset:{kk*32*RB+rd*4*RB}")

    def stats_math():
        a("s_waitcnt lgkmcnt(0)")
        for i in range(NPL):
            for kk in range(2):
                a(f"v_mfma_f32_16x16x32_bf16 {v(LCS+4*i,4)}, {v(LWD+8*i+4*kk,4)}, {v(LONE,4)}, {v(LCS+4*i,4)}")
        for j in range(4):
            for i in range(PA):
                d = v(LSD + 4 * i + j)
                a(f"v_dot2_f32_bf16 {v(LST+2*i)}, {d}, {v(LONE)}, {v(LST+2*i)}")
                a(f"v_dot2_f32_bf16 {v(LST+2*i+1)}, {d}, {d}, {v(LST+2*i+1)}")

    nloop = NS - NSTAGE + 1
    a(f"s_mov_b32 s48, {nloop}")
    lloop = a.newlabel("L_lloop")
    a.label(lloop)
    a(f"s_waitcnt vmcnt({(NSTAGE-2)*P})")
    a("s_barrier")
    if ln and not pre: stats_reads()
    dma()
    if ln and not pre: stats_math()
    a("s_sub_u32 s48, s48, 1")
    a("s_cmp_lg_u32 s48, 0")
    a(f"s_cbranch_scc1 {lloop}")
    if pre:
        for i in range(1, 8):
            a(f"v_add_f32 {v(LSD)}, {v(LSD)}, {v(LSD+2*i)}")
            a(f"v_add_f32 {v(LSD+1)}, {v(LSD+1)}, {v(LSD+2*i+1)}")
        a("s_nop 1")
        for k_ in range(2):
            a(f"v_add_f32_dpp {v(LST+k_)}, {v(LSD+k_)}, {v(LSD+k_)} quad_perm:[1,0,3,2] row_mask:0xf bank_mask:0xf")
        sm, sq, r1, r2 = LST, LST + 1, LSD, LSD + 1
        a(f"v_mul_f32 {v(sm)}, {hex_f32(1.0/K)}, {v(sm)}")
        a(f"v_mul_f32 {v(sq)}, {hex_f32(1.0/K)}, {v(sq)}")
        a(f"v_fma_f32 {v(sq)}, -{v(sm)}, {v(sm)}, {v(sq)}")
        a(f"v_max_f32 {v(sq)}, 0, {v(sq)}")
        a(f"v_add_f32 {v(r1)}, {hex_f32(1e-5)}, {v(sq)}")
        a(f"v_rsq_f32 {v(r1)}, {v(r1)}")
        a("s_nop 0")
        if ln == 'double':
            a(f"v_mul_f32 {v(r2)}, {v(r1)}, {v(r1)}")
            a(f"v_mul_f32 {v(r2)}, {v(r2)}, {v(sq)}")
            a(f"v_add_f32 {v(r2)}, {hex_f32(1e-5)}, {v(r2)}")
            a(f"v_rsq_f32 {v(r2)}, {v(r2)}")
            a("s_nop 0")
            a(f"v_mul_f32 {v(r1)}, {v(r1)}, {v(r2)}")
        a(f"v_mul_f32 {v(r2)}, {v(sm)}, {v(r1)}")
        a(f"v_sub_f32 {v(r2)}, 0, {v(r2)}")
        a(f"v_lshlrev_b32 {v(LSC)}, 3, {v(LSA)}")
        a(f"v_add_u32 {v(LSC)}, {RTAB}, {v(LSC)}")
        a(f"ds_write_b64 {v(LSC)}, {v(LSD,2)}")
        a("s_waitcnt lgkmcnt(0)")
    if st_res:
        npc = BM * BN * 2 // 4096
        rpp = 1024 // (BN * 2)
        lpr = BN * 2 // 16
        a(f"v_lshrrev_b32 {v(t0)}, {int(math.log2(lpr))}, v1")
        a(f"s_mul_i32 s3, s30, {npc*rpp}")
        a(f"s_mul_i32 s46, s28, {BM}")
        a("s_add_u32 s3, s3, s46")
        a(f"v_add_u32 {v(t0)}, s3, {v(t0)}")
        a(f"v_mul_u32_u24 {v(t0)}, {N*2}, {v(t0)}")
        a(f"v_and_b32 {v(t1)}, {lpr-1}, v1")
        a(f"v_lshl_add_u32 {v(t0)}, {v(t1)}, 4, {v(t0)}")
        a(f"s_mul_i32 s3, s29, {BN*2}")
        a(f"v_add_u32 {v(t0)}, s3, {v(t0)}")
        a(f"s_mul_i32 s33, s30, {npc*1024}")
        for i in range(npc):
            a(f"s_add_u32 m0, s33, {EPI + i*1024}")
            a(f"s_mov_b32 s3, {i*rpp*N*2}")
            a(f"buffer_load_dwordx4 {v(t0)}, s[16:19], s3 offen lds")
    for j in range(NS - NSTAGE + 1, NS):
        a(f"s_waitcnt vmcnt({(NS-1-j)*P + NEX})")
        a("s_barrier")
        if ln and not pre:
            stats_reads()
            stats_math()
    stamp(3)
    if ln and not pre:
        a("s_nop 3")
        X0 = LSD
        for mode in ("quad_perm:[1,0,3,2]", "quad_perm:[2,3,0,1]", "row_half_mirror"):
            for k_ in range(2 * PA):
                a(f"v_add_f32_dpp {v(X0+k_)}, {v(LST+k_)}, {v(LST+k_)} {mode} row_mask:0xf bank_mask:0xf")
            a("s_nop 1")
            for k_ in range(2 * PA):
                a(f"v_mov_b32 {v(LST+k_)}, {v(X0+k_)}")
            a("s_nop 1")
        for i in range(PA):
            sm, sq = LST + 2 * i, LST + 2 * i + 1
            r1, r2 = X0 + 2 * i, X0 + 2 * i + 1
            a(f"v_mul_f32 {v(sm)}, {hex_f32(1.0/K)}, {v(sm)}")
            a(f"v_mul_f32 {v(sq)}, {hex_f32(1.0/K)}, {v(sq)}")
            a(f"v_fma_f32 {v(sq)}, -{v(sm)}, {v(sm)}, {v(sq)}")
            a(f"v_max_f32 {v(sq)}, 0, {v(sq)}")
            a(f"v_add_f32 {v(r1)}, {hex_f32(1e-5)}, {v(sq)}")
            a(f"v_rsq_f32 {v(r1)}, {v(r1)}")
            a("s_nop 0")
            if ln == 'double':
                a(f"v_mul_f32 {v(r2)}, {v(r1)}, {v(r1)}")
                a(f"v_mul_f32 {v(r2)}, {v(r2)}, {v(sq)}")
                a(f"v_add_f32 {v(r2)}, {hex_f32(1e-5)}, {v(r2)}")
                a(f"v_rsq_f32 {v(r2)}, {v(r2)}")
                a("s_nop 0")
                a(f"v_mul_f32 {v(r1)}, {v(r1)}, {v(r2)}")
            a(f"v_mul_f32 {v(r2)}, {v(sm)}, {v(r1)}")
            a(f"v_sub_f32 {v(r2)}, 0, {v(r2)}")
            a(f"v_lshrrev_b32 {v(LSC+i)}, 7, {v(LSA+i)}")
            a(f"v_lshlrev_b32 {v(LSC+i)}, 3, {v(LSC+i)}")
            a(f"v_add_u32 {v(LSC+i)}, {RTAB}, {v(LSC+i)}")
        a(f"v_lshrrev_b32 {v(t0)}, 4, v1")
        a(f"v_lshlrev_b32 {v(t0)}, 4, {v(t0)}")
        for i in range(NPL):
            a(f"s_mul_i32 s46, s30, {NPL}")
            a(f"s_add_u32 s46, s46, {i}")
            a(f"s_min_u32 s46, s46, {BN//16-1}")
            a("s_lshl_b32 s46, s46, 6")
            a(f"s_add_u32 s46, s46, {CTAB}")
            a(f"v_add_u32 {v(LCC+i)}, s46, {v(t0)}")
    if ln and not pre:
        for i in range(PA):
            a(f"ds_write_b64 {v(LSC+i)}, {v(LSD+2*i,2)}")
        for i in range(NPL):
            a(f"ds_write_b128 {v(LCC+i)}, {v(LCS+4*i,4)}")
        a("s_waitcnt lgkmcnt(0)")
        a("s_barrier")
    if NEX: a("s_waitcnt vmcnt(0)")
    stamp(4)
    a("s_barrier")

    a.label(lab_store)
    CPRW = BN // 8
    NIT = BM * CPRW // 512
    assert NIT * 512 == BM * CPRW
    magic = ((1 << 32) + CPRW - 1) // CPRW
    a(f"s_mov_b32 s46, {magic}")
    a(f"s_mul_i32 s3, s49, {NIT*64}")
    a(f"v_add_u32 {v(t0)}, s3, v1")
    a(f"s_mul_i32 s3, s28, {BM}")
    a(f"s_mul_i32 s47, s29, {BN*2}")
    R0 = (vT[7] + 4) // 4 * 4
    RR = R0 + 4 * NIT
    OFF = RR + 4 * NIT
    SOF = OFF + NIT
    GT = (SOF + NIT + 3) // 4 * 4
    assert GT + 10 <= 256
    for it in range(NIT):
        a(f"v_add_u32 {v(t1)}, {it*64}, {v(t0)}")
        a(f"v_mul_hi_u32 {v(t2)}, {v(t1)}, s46")
        a(f"v_mul_u32_u24 {v(t3)}, {CPRW}, {v(t2)}")
        a(f"v_sub_u32 {v(t3)}, {v(t1)}, {v(t3)}")
        a(f"v_mul_u32_u24 {v(t1)}, {CROW}, {v(t2)}")
        a(f"v_lshl_add_u32 {v(t1)}, {v(t3)}, 4, {v(t1)}")
        if CBASE: a(f"v_add_u32 {v(t1)}, {CBASE}, {v(t1)}")
        a(f"ds_read_b128 {v(R0+4*it,4)}, {v(t1)}")
        a(f"v_add_u32 {v(t2)}, s3, {v(t2)}")
        if stats_out:
            a(f"v_lshlrev_b32 {v(SOF+it)}, 7, {v(t2)}")
            a(f"v_lshl_add_u32 {v(SOF+it)}, s29, 3, {v(SOF+it)}")
        a(f"v_mul_u32_u24 {v(t2)}, {N*2}, {v(t2)}")
        a(f"v_lshlrev_b32 {v(t3)}, 4, {v(t3)}")
        a(f"v_add_u32 {v(t3)}, s47, {v(t3)}")
        a(f"v_add_u32 {v(OFF+it)}, {v(t3)}, {v(t2)}")
        if res_arg:
            a(f"v_lshlrev_b32 {v(t1)}, 4, {v(t0)}")
            a(f"v_add_u32 {v(t1)}, {EPI + it*1024}, {v(t1)}")
            a(f"ds_read_b128 {v(RR+4*it,4)}, {v(t1)}")
    a("s_waitcnt lgkmcnt(0)")
    stamp(5)
    for it in range(NIT):
        c0 = R0 + 4 * it
        if res_arg:
            for j in range(4):
                d = c0 + j
                r = RR + 4 * it + j
                a(f"v_lshlrev_b32 {v(GT)}, 16, {v(d)}")
                a(f"v_lshlrev_b32 {v(GT+1)}, 16, {v(r)}")
                a(f"v_and_b32 {v(GT+2)}, 0xffff0000, {v(d)}")
                a(f"v_and_b32 {v(GT+3)}, 0xffff0000, {v(r)}")
                a(f"v_add_f32 {v(GT)}, {v(GT)}, {v(GT+1)}")
                a(f"v_add_f32 {v(GT+2)}, {v(GT+2)}, {v(GT+3)}")
                a(f"v_cvt_pk_bf16_f32 {v(d)}, {v(GT)}, {v(GT+2)}")
        a(f"buffer_store_dwordx4 {v(c0,4)}, {v(OFF+it)}, s[12:15], 0 offen")
        if stats_out:
            assert CPRW == 8
            a(f"v_mov_b32 {v(GT+8)}, 0x3f803f80")
            a(f"v_mov_b32 {v(GT)}, 0")
            a(f"v_mov_b32 {v(GT+1)}, 0")
            for j in range(4):
                a(f"v_dot2_f32_bf16 {v(GT)}, {v(c0+j)}, {v(GT+8)}, {v(GT)}")
                a(f"v_dot2_f32_bf16 {v(GT+1)}, {v(c0+j)}, {v(c0+j)}, {v(GT+1)}")
            a("s_nop 3")
            for q_, mode in enumerate(("quad_perm:[1,0,3,2]", "quad_perm:[2,3,0,1]", "row_half_mirror")):
                src = GT + 2 * (q_ & 1); dst = GT + 2 * ((q_ + 1) & 1)
                for k_ in range(2):
                    a(f"v_add_f32_dpp {v(dst+k_)}, {v(src+k_)}, {v(src+k_)} {mode} row_mask:0xf bank_mask:0xf")
                a("s_nop 1")
            a("s_mov_b32 exec_lo, 0x01010101")
            a("s_mov_b32 exec_hi, 0x01010101")
            a(f"buffer_store_dwordx2 {v(GT+2,2)}, {v(SOF+it)}, s[84:87], 0 offen")
            a("s_mov_b64 exec, -1")
    stamp(6)
    if 'stamp' in EXP: a("s_waitcnt vmcnt(0)")
    stamp(7)
    stamp_out()
    a.label(end)
    a("s_endpgm")
    return dict(name=name, grid=ntiles, block=512, lds=lds, desc=kernel_desc(name, max(nvgpr, GT + 10, 136)))


def gen_attn(a, name, pf=None, colsum=False):
    import struct
    NQB = S // 32
    ntask = H * NQB
    nwg = ntask // 4
    QKV_ROW = 3 * D * 2
    KLDS = 384 * 64
    lds = 2 * KLDS
    kernel_header(a, name)
    end = a.newlabel("L_end")
    npf = F // 32 if colsum else 0
    a(f"s_cmp_ge_u32 s2, {nwg + npf}")
    a(f"s_cbranch_scc1 {end}")
    a(f"s_load_dwordx2 s[24:25], s[0:1], {ARG['ws']}")
    a("v_and_b32 v1, 63, v0")
    a("v_lshrrev_b32 v2, 6, v0")
    a("s_nop 0")
    a("v_readfirstlane_b32 s30, v2")
    a("s_nop 3")
    if colsum:
        lab_att = a.newlabel("L_att")
        a(f"s_cmp_lt_u32 s2, {nwg}")
        a(f"s_cbranch_scc1 {lab_att}")
        a(f"s_sub_u32 s2, s2, {nwg}")
        a(f"s_load_dwordx2 s[26:27], s[0:1], {ARG['w1']}")
        a("v_lshrrev_b32 v2, 2, v1")
        a("s_lshl_b32 s3, s30, 8")
        a("v_add_u32 v2, s3, v2")
        a(f"v_mul_u32_u24 v2, {F*2}, v2")
        a("v_and_b32 v3, 3, v1")
        a("v_lshl_add_u32 v2, v3, 4, v2")
        a("s_lshl_b32 s3, s2, 6")
        a("v_add_u32 v2, s3, v2")
        a("s_waitcnt lgkmcnt(0)")
        srd(a, 4, 26, 0, D * F * 2)
        srd(a, 8, 24, WS_CS, F * 4)
        for i in range(16):
            a(f"s_mov_b32 s3, {16*i*F*2}")
            a(f"buffer_load_dwordx4 {v(16+4*i,4)}, v2, s[4:7], s3 offen")
        for j in range(8):
            a(f"v_mov_b32 v{8+j}, 0")
        for i in range(16):
            a(f"s_waitcnt vmcnt({15-i})")
            for j in range(4):
                a(f"v_lshlrev_b32 v4, 16, v{16+4*i+j}")
                a(f"v_and_b32 v5, 0xffff0000, v{16+4*i+j}")
                a(f"v_add_f32 v{8+2*j}, v{8+2*j}, v4")
                a(f"v_add_f32 v{9+2*j}, v{9+2*j}, v5")
        a("s_nop 1")
        for mode in ("row_ror:4", "row_ror:8"):
            for j in range(8):
                a(f"v_add_f32_dpp v{16+j}, v{8+j}, v{8+j} {mode} row_mask:0xf bank_mask:0xf")
            a("s_nop 1")
            for j in range(8):
                a(f"v_mov_b32 v{8+j}, v{16+j}")
            a("s_nop 1")
        for x in (16, 32):
            a(f"v_xor_b32 v4, {x}, v1")
            a("v_lshlrev_b32 v4, 2, v4")
            for j in range(8):
                a(f"ds_bpermute_b32 v{16+j}, v4, v{8+j}")
            a("s_waitcnt lgkmcnt(0)")
            for j in range(8):
                a(f"v_add_f32 v{8+j}, v{8+j}, v{16+j}")
        a("v_lshlrev_b32 v4, 5, v3")
        a("s_lshl_b32 s3, s30, 7")
        a("v_add_u32 v4, s3, v4")
        a("ds_write_b128 v4, v[8:11]")
        a("ds_write_b128 v4, v[12:15] offset:16")
        a("s_waitcnt lgkmcnt(0)")
        a("s_barrier")
        a("s_cmp_lg_u32 s30, 0")
        a(f"s_cbranch_scc1 {end}")
        a("v_and_b32 v4, 31, v1")
        a("v_lshlrev_b32 v4, 2, v4")
        for w in range(4):
            a(f"ds_read_b32 v{8+w}, v4 offset:{128*w}")
        a("s_lshl_b32 s3, s2, 7")
        a("v_add_u32 v4, s3, v4")
        a("s_waitcnt lgkmcnt(0)")
        a("v_add_f32 v8, v8, v9")
        a("v_add_f32 v10, v10, v11")
        a("v_add_f32 v8, v8, v10")
        a("buffer_store_dword v8, v4, s[8:11], 0 offen")
        a(f"s_branch {end}")
        a.label(lab_att)
    a("s_lshl_b32 s3, s2, 2")
    a("s_add_u32 s92, s3, s30")
    a("s_and_b32 s28, s2, 31")
    a("s_lshr_b32 s29, s2, 5")
    a("s_lshl_b32 s39, s29, 7")
    a("s_sub_u32 s39, s39, 256")
    a("s_lshl_b32 s3, s30, 5")
    a("s_add_u32 s32, s39, s3")
    a("s_add_u32 s31, s32, 256")
    a("s_lshl_b32 s33, s28, 6")
    a(f"s_add_u32 s35, s33, {2*D*2}")
    a(f"s_add_u32 s36, s33, {D*2}")
    a("v_and_b32 v2, 31, v1")
    a("v_lshrrev_b32 v3, 5, v1")
    a("v_add_u32 v4, s31, v2")
    a(f"v_mul_u32_u24 v4, {QKV_ROW}, v4")
    a("v_lshl_add_u32 v4, v3, 4, v4")
    a("v_add_u32 v4, s33, v4")
    a("s_waitcnt lgkmcnt(0)")
    srd(a, 4, 24, WS_QKV, S * 3 * D * 2)
    srd(a, 8, 24, WS_O, S * D * 2)
    a("v_lshrrev_b32 v5, 2, v1")
    a("v_and_b32 v6, 3, v1")
    a("v_bfe_u32 v7, v1, 4, 2")
    a("v_xor_b32 v7, v7, v6")
    a("s_mul_i32 s3, s30, 96")
    a("s_add_u32 s3, s3, s39")
    a("s_mul_i32 s34, s30, 6144")
    for p in range(6):
        a(f"v_add_u32 v16, {16*p}, v5")
        a("v_add_u32 v16, s3, v16")
        a("v_max_i32 v16, 0, v16")
        a(f"v_mul_u32_u24 v16, {QKV_ROW}, v16")
        a("v_lshl_add_u32 v17, v7, 4, v16")
        a("v_add_u32 v17, s36, v17")
        a(f"s_add_u32 m0, s34, {p*1024}")
        a("v_lshl_add_u32 v16, v6, 4, v16")
        a(f"buffer_load_dwordx4 v17, s[4:7], 0 offen lds")
        a("v_add_u32 v16, s35, v16")
        a(f"s_add_u32 m0, s34, {KLDS + p*1024}")
        a("s_nop 0")
        a(f"buffer_load_dwordx4 v16, s[4:7], 0 offen lds")
    a("buffer_load_dwordx4 v[8:11], v4, s[4:7], 0 offen")
    a("buffer_load_dwordx4 v[12:15], v4, s[4:7], 0 offen offset:32")
    KF = 16
    npl = tail_prefetch(a, 92, 1, pf, 7, 240) if pf else 0
    a("v_bfe_u32 v5, v1, 2, 2")
    a("v_xor_b32 v5, v5, v3")
    a("v_lshlrev_b32 v6, 6, v2")
    a("s_lshl_b32 s34, s30, 11")
    a("v_add_u32 v6, s34, v6")
    a("v_lshl_add_u32 v88, v5, 4, v6")
    a("v_xor_b32 v5, 2, v5")
    a("v_lshl_add_u32 v89, v5, 4, v6")
    a(f"s_add_u32 s34, s34, {KLDS}")
    a(f"s_waitcnt vmcnt({npl})")
    a("s_barrier")
    for t_ in range(9):
        a(f"ds_read_b128 {v(KF+8*t_,4)}, v88 offset:{2048*t_}")
        a(f"ds_read_b128 {v(KF+8*t_+4,4)}, v89 offset:{2048*t_}")
    SC = 96
    a("v_mov_b32 v7, 0xf149f2ca")
    for t in range(9):
        a(f"s_waitcnt lgkmcnt({min(15, 2*(8-t))})")
        if t < 8:
            lab_inv = a.newlabel("L_inv"); lab_done = a.newlabel("L_tdone")
            a(f"s_add_i32 s3, s32, {32*t}")
            a("s_cmp_lt_i32 s3, 0")
            a(f"s_cbranch_scc1 {lab_inv}")
        a(f"v_mfma_f32_32x32x16_bf16 {v(SC+16*t,16)}, {v(KF+8*t,4)}, v[8:11], 0")
        a(f"v_mfma_f32_32x32x16_bf16 {v(SC+16*t,16)}, {v(KF+8*t+4,4)}, v[12:15], {v(SC+16*t,16)}")
        if t < 8:
            a(f"s_branch {lab_done}")
            a.label(lab_inv)
            for r in range(16):
                a(f"v_mov_b32 v{SC+16*t+r}, v7")
            a.label(lab_done)
    a("v_lshlrev_b32 v5, 2, v3")
    a("v_sub_u32 v5, v2, v5")
    a("s_nop 7")
    a("s_nop 7")
    for r in range(16):
        c = (r & 3) + 8 * (r >> 2)
        a(f"v_cmp_gt_i32 vcc, {c}, v5")
        a(f"v_cmp_le_i32 s[36:37], {c}, v5")
        a("s_nop 0")
        a(f"v_cndmask_b32 v{SC+r}, v7, v{SC+r}, vcc")
        a(f"v_cndmask_b32 v{SC+128+r}, v7, v{SC+128+r}, s[36:37]")
    a(f"v_max3_f32 v4, v{SC}, v{SC+1}, v{SC+2}")
    a(f"v_max3_f32 v6, v{SC+3}, v{SC+4}, v{SC+5}")
    for i in range(6, 144, 4):
        a(f"v_max3_f32 v4, v4, v{SC+i}, v{SC+i+1}")
        if i + 3 < 144:
            a(f"v_max3_f32 v6, v6, v{SC+i+2}, v{SC+i+3}")
    a("v_max_f32 v4, v4, v6")
    a("v_xor_b32 v88, 32, v1")
    a("v_lshlrev_b32 v88, 2, v88")
    a("ds_bpermute_b32 v89, v88, v4")
    a("s_waitcnt lgkmcnt(0)")
    a("v_max_f32 v4, v4, v89")
    sc = (DH ** -0.5) * math.log2(math.e)
    sc_bits = struct.unpack("<I", struct.pack("<f", sc))[0]
    a(f"s_mov_b32 s38, {sc_bits}")
    a("v_mul_f32 v4, s38, v4")
    sums = [5, 6, 90, 91]
    for sreg in sums:
        a(f"v_mov_b32 v{sreg}, 0")
    for g in range(0, 144, 4):
        for j in range(4):
            a(f"v_fma_f32 v{SC+g+j}, v{SC+g+j}, s38, -v4")
        for j in range(4):
            a(f"v_exp_f32 v{SC+g+j}, v{SC+g+j}")
        if g >= 4:
            for j in range(4):
                a(f"v_add_f32 v{sums[j]}, v{sums[j]}, v{SC+g-4+j}")
            tt, jj = divmod(g - 4, 16)
            a(f"v_cvt_pk_bf16_f32 v{KF+8*tt+jj//2}, v{SC+g-4}, v{SC+g-3}")
            a(f"v_cvt_pk_bf16_f32 v{KF+8*tt+jj//2+1}, v{SC+g-2}, v{SC+g-1}")
    a("s_nop 0")
    g = 144
    for j in range(4):
        a(f"v_add_f32 v{sums[j]}, v{sums[j]}, v{SC+g-4+j}")
    tt, jj = divmod(g - 4, 16)
    a(f"v_cvt_pk_bf16_f32 v{KF+8*tt+jj//2}, v{SC+g-4}, v{SC+g-3}")
    a(f"v_cvt_pk_bf16_f32 v{KF+8*tt+jj//2+1}, v{SC+g-2}, v{SC+g-1}")
    a("v_add_f32 v5, v5, v6")
    a("v_add_f32 v90, v90, v91")
    a("v_add_f32 v5, v5, v90")
    a("ds_bpermute_b32 v89, v88, v5")
    a("v_bfe_u32 v6, v1, 2, 2")
    a("v_lshl_add_u32 v6, v3, 2, v6")
    a("v_lshlrev_b32 v6, 6, v6")
    a("v_bfe_u32 v7, v1, 4, 1")
    a("v_lshl_add_u32 v6, v7, 5, v6")
    a("v_and_b32 v7, 3, v1")
    a("v_lshl_add_u32 v6, v7, 3, v6")
    a("v_add_u32 v6, s34, v6")
    OA = SC
    VF = SC + 16
    a(f"s_waitcnt lgkmcnt(0)")
    a("v_add_f32 v5, v5, v89")
    a("v_rcp_f32 v5, v5")
    for t in range(9):
        for sidx in range(2):
            f = VF + 4 * (2 * t + sidx)
            base = (32 * t + 16 * sidx) * 64
            a(f"ds_read_b64_tr_b16 {v(f,2)}, v6 offset:{base}")
            a(f"ds_read_b64_tr_b16 {v(f+2,2)}, v6 offset:{base+8*64}")
    first = True
    for t in range(9):
        for sidx in range(2):
            f = VF + 4 * (2 * t + sidx)
            idx = 2 * t + sidx
            rem = 36 - 2 * (idx + 1)
            a(f"s_waitcnt lgkmcnt({min(rem,15)})")
            a(f"v_mfma_f32_32x32x16_bf16 {v(OA,16)}, {v(f,4)}, {v(KF+8*t+4*sidx,4)}, {'0' if first else v(OA,16)}")
            first = False
    a("v_add_u32 v7, s31, v2")
    a(f"v_lshlrev_b32 v7, 11, v7")
    a("v_lshl_add_u32 v7, v3, 3, v7")
    a("v_add_u32 v7, s33, v7")
    a("s_nop 7")
    a("s_nop 7")
    for g in range(4):
        for r in range(4):
            a(f"v_mul_f32 v{OA+4*g+r}, v{OA+4*g+r}, v5")
        a(f"v_cvt_pk_bf16_f32 v{OA+4*g}, v{OA+4*g}, v{OA+4*g+1}")
        a(f"v_cvt_pk_bf16_f32 v{OA+4*g+1}, v{OA+4*g+2}, v{OA+4*g+3}")
        a(f"buffer_store_dwordx2 {v(OA+4*g,2)}, v7, s[8:11], 0 offen offset:{16*g}")
    a.label(end)
    a("s_endpgm")
    return dict(name=name, grid=nwg + npf, block=256, lds=lds, desc=kernel_desc(name, 244))


def main():
    a = Asm()
    ks = []
    FUSE = 'nofuse' not in EXP
    if FUSE:
        ks.append(gen_gemm(a, "qkv_kernel", 3 * D, D, 192, 0, "wqkv", "plain", "ws", WS_QKV, NSTAGE=4, RA=8, RBN=4,
                           ln='single', a_arg='x'))
    else:
        ks.append(gen_ln(a, "ln1_kernel", "x", 0, WS_Y1, False, pf=[("wqkv", D*3*D*2), ("wo", D*D*2)]))
        ks.append(gen_gemm(a, "qkv_kernel", 3 * D, D, 192, WS_Y1, "wqkv", "plain", "ws", WS_QKV, NSTAGE=4, RA=8, RBN=4))
    ks.append(gen_attn(a, "attn_kernel", pf=[("w1", D*F*2), ("w2", F*D*2), ("wo", D*D*2)] if FUSE else [("w1", D*F*2), ("w2", F*D*2)], colsum=FUSE))
    ks.append(gen_gemm(a, "oproj_kernel", D, D, 64, WS_O, "wo", "plain", "ws", WS_H, res_arg="x", NSTAGE=6, stats_out=FUSE))
    if FUSE:
        ks.append(gen_gemm(a, "ffn1_kernel", F, D, 224, WS_H, "w1", "gelu", "ws", WS_H1, bias_arg="b1", RA=8, RBN=4,
                           ln='double', pre=True))
    else:
        ks.append(gen_ln(a, "ln2_kernel", "ws", WS_H, WS_Y2, True))
        ks.append(gen_gemm(a, "ffn1_kernel", F, D, 224, WS_Y2, "w1", "gelu", "ws", WS_H1, bias_arg="b1", RA=8, RBN=4))
    ks.append(gen_gemm(a, "ffn2_kernel", D, F, 64, WS_H1, "w2", "plain", "out", 0, res_arg="ws", res_off=WS_H,
                       bias_arg="b2", NSTAGE=6))
    hdr = []
    for k in ks:
        hdr.append(f"; @launch kernel={k['name']} grid=({k['grid']},1,1) block=({k['block']},1,1) lds={k['lds']}")
    txt = "\n".join(hdr) + "\n"
    txt += '.amdgcn_target "amdgcn-amd-amdhsa--gfx950"\n.text\n'
    txt += "\n".join(a.lines) + "\n"
    txt += '.section .rodata,"a"\n'
    for k in ks:
        txt += ".p2align 6\n" + k["desc"]
    open(OUT, "w").write(txt)


if __name__ == "__main__":
    main()
```

```python
import sys, math, os
EXP=os.environ.get('EXP','')
STMOD=os.environ.get('STMOD','sc0 sc1')
STALL=os.environ.get('STALL','')

OUT = os.environ.get("OUTF","sequential_preLN__sliding_block__mixer_channel_mlp__prompt.s")

S = 2048; D = 1024; F = 3584; H = 32; DH = 32; WIN = 256
ARG = dict(x=0, wqkv=8, wo=16, bx=24, w1=32, b1=40, w2=48, b2=56, out=64, dbg=72, ws=80)
MB = 1 << 20
WS_Y1 = 0
WS_QKV = 4 * MB
WS_O = 16 * MB
WS_H = 20 * MB
WS_Y2 = 24 * MB
WS_H1 = 28 * MB
WS_ST = 0
WS_CS = 1 * MB
WS_SIZE = 256 * MB
WS_FLAG = 1 * MB + 65536
WS_PART = 64 * MB
LDH1 = F * 2 + int(os.environ.get('PADH1', '0'))


class Asm:
    def __init__(self):
        self.lines = []
        self.nlab = 0

    def __call__(self, s):
        self.lines.append("    " + s)

    def label(self, l):
        self.lines.append(l + ":")

    def newlabel(self, base="L"):
        self.nlab += 1
        return f"{base}_{self.nlab}"

    def c(self, s):
        self.lines.append("    ; " + s)


def v(i, n=1):
    return f"v{i}" if n == 1 else f"v[{i}:{i+n-1}]"


def s(i, n=1):
    return f"s{i}" if n == 1 else f"s[{i}:{i+n-1}]"


def srd(a, d, base, off, nbytes):
    if off:
        a(f"s_add_u32 s{d}, s{base}, {off}")
        a(f"s_addc_u32 s{d+1}, s{base+1}, 0")
    else:
        a(f"s_mov_b32 s{d}, s{base}")
        a(f"s_mov_b32 s{d+1}, s{base+1}")
    a(f"s_and_b32 s{d+1}, s{d+1}, 0xffff")
    a(f"s_mov_b32 s{d+2}, {nbytes}")
    a(f"s_mov_b32 s{d+3}, 0x00020000")


def hex_f32(x):
    import struct
    return hex(struct.unpack('<I', struct.pack('<f', x))[0])


def kernel_header(a, name):
    a.lines.append(".p2align 8")
    a.lines.append(f".globl {name}")
    a.lines.append(f".type {name},@function")
    a.label(name)


def kernel_desc(name, nvgpr, nsgpr=102, accum=None):
    nv = ((nvgpr + 7) // 8) * 8
    acc = accum if accum is not None else ((nvgpr + 3) // 4) * 4
    return f""".amdhsa_kernel {name}
  .amdhsa_next_free_vgpr {nv if accum is None else nvgpr}
  .amdhsa_next_free_sgpr {nsgpr}
  .amdhsa_accum_offset {min(acc,256)}
  .amdhsa_group_segment_fixed_size 0
  .amdhsa_kernarg_size 88
  .amdhsa_user_sgpr_count 2
  .amdhsa_user_sgpr_kernarg_segment_ptr 1
  .amdhsa_system_sgpr_workgroup_id_x 1
.end_amdhsa_kernel
"""


def gen_prefetch(a, regions, end_label):
    CH = 32768
    counts = [nbytes // CH for _, nbytes in regions]
    for (_, nbytes), c in zip(regions, counts):
        assert c * CH == nbytes
    total = sum(counts)
    skip = a.newlabel("L_nopf")
    a(f"s_cmp_ge_u32 s2, {total}")
    a(f"s_cbranch_scc1 {skip}")
    base = 0
    for (arg, nbytes), c in zip(regions, counts):
        nxt = a.newlabel("L_pfn")
        a(f"s_cmp_ge_u32 s2, {base + c}")
        a(f"s_cbranch_scc1 {nxt}")
        a(f"s_load_dwordx2 s[4:5], s[0:1], {ARG[arg]}")
        a(f"s_sub_u32 s3, s2, {base}")
        a("s_lshl_b32 s3, s3, 15")
        a("v_lshlrev_b32 v1, 4, v0")
        a("v_add_u32 v1, s3, v1")
        a("s_waitcnt lgkmcnt(0)")
        srd(a, 8, 4, 0, nbytes)
        for j in range(8):
            a(f"v_add_u32 v2, {4096*j}, v1")
            a(f"buffer_load_dwordx4 {v(4+4*j,4)}, v2, s[8:11], 0 offen")
        a("s_waitcnt vmcnt(0)")
        a(f"s_branch {end_label}")
        a.label(nxt)
        base += c
    a.label(skip)
    a(f"s_sub_u32 s2, s2, {total}")
    return total


def tail_prefetch(a, task, lane, regions, vtmp, vdst):
    ntask = 2048
    total = sum(n for _, n in regions)
    per = total // ntask
    assert per * ntask == total and per % 1024 == 0
    nld = per // 1024
    base = 0
    done = a.newlabel("L_pfdone")
    for arg, nbytes in regions:
        cnt = nbytes // per
        assert cnt * per == nbytes
        nxt = a.newlabel("L_pfn")
        a(f"s_cmp_ge_u32 s{task}, {base + cnt}")
        a(f"s_cbranch_scc1 {nxt}")
        a(f"s_load_dwordx2 s[94:95], s[0:1], {ARG[arg]}")
        a(f"s_sub_u32 s93, s{task}, {base}")
        a(f"s_mul_i32 s93, s93, {per}")
        a(f"v_lshlrev_b32 {v(vtmp)}, 4, {v(lane)}")
        a(f"v_add_u32 {v(vtmp)}, s93, {v(vtmp)}")
        a("s_waitcnt lgkmcnt(0)")
        srd(a, 96, 94, 0, nbytes)
        for j in range(nld):
            if j and j % 4 == 0:
                a(f"v_add_u32 {v(vtmp)}, 4096, {v(vtmp)}")
            a(f"buffer_load_dwordx4 {v(vdst,4)}, {v(vtmp)}, s[96:99], 0 offen offset:{1024*(j%4)}")
        a(f"s_branch {done}")
        a.label(nxt)
        base += cnt
    a.label(done)
    return nld

def gen_ln(a, name, src_arg, src_off, dst_off, double, pf=None):
    nwg = S // 4
    kernel_header(a, name)
    end = a.newlabel("L_end")
    npf = 0
    a(f"s_cmp_ge_u32 s2, {nwg}")
    a(f"s_cbranch_scc1 {end}")
    a(f"s_load_dwordx2 s[4:5], s[0:1], {ARG[src_arg]}")
    a(f"s_load_dwordx2 s[6:7], s[0:1], {ARG['ws']}")
    a("v_lshrrev_b32 v1, 6, v0")
    a("v_and_b32 v2, 63, v0")
    a("s_lshl_b32 s3, s2, 2")
    a("v_add_u32 v1, s3, v1")
    a("v_lshlrev_b32 v3, 11, v1")
    a("v_lshl_add_u32 v3, v2, 5, v3")
    for i, m in enumerate([1, 2, 4, 8, 16, 32]):
        a(f"v_xor_b32 v{12+i}, {m}, v2")
        a(f"v_lshlrev_b32 v{12+i}, 2, v{12+i}")
    a("s_waitcnt lgkmcnt(0)")
    srd(a, 8, 4, src_off, S * D * 2)
    srd(a, 12, 6, dst_off, S * D * 2)
    a("buffer_load_dwordx4 v[4:7], v3, s[8:11], 0 offen")
    a("buffer_load_dwordx4 v[8:11], v3, s[8:11], 0 offen offset:16")
    npl = 0
    if pf:
        a("v_readfirstlane_b32 s92, v1")
        a("s_nop 3")
        npl = tail_prefetch(a, 92, 2, pf, 44, 48)
    a(f"s_waitcnt vmcnt({npl})")

    def unpack():
        for i in range(8):
            a(f"v_lshlrev_b32 v{20+2*i}, 16, v{4+i}")
            a(f"v_and_b32 v{21+2*i}, 0xffff0000, v{4+i}")

    def bfly():
        for i in range(6):
            a(f"ds_bpermute_b32 v41, v{12+i}, v40")
            a("s_waitcnt lgkmcnt(0)")
            a("v_add_f32 v40, v40, v41")

    def norm():
        a("v_add_f32 v40, v20, v21")
        for i in range(2, 16):
            a(f"v_add_f32 v40, v40, v{20+i}")
        bfly()
        a("v_mul_f32 v40, 0x3a800000, v40")
        for i in range(16):
            a(f"v_sub_f32 v{20+i}, v{20+i}, v40")
        a("v_mul_f32 v40, v20, v20")
        for i in range(1, 16):
            a(f"v_fmac_f32 v40, v{20+i}, v{20+i}")
        bfly()
        a("v_mov_b32 v42, 0x3727c5ac")
        a("v_fma_f32 v40, v40, v43, v42")
        a("v_rsq_f32 v40, v40")
        a("s_nop 0")
        for i in range(16):
            a(f"v_mul_f32 v{20+i}, v{20+i}, v40")
        for i in range(8):
            a(f"v_cvt_pk_bf16_f32 v{4+i}, v{20+2*i}, v{21+2*i}")

    a("v_mov_b32 v43, 0x3a800000")
    unpack()
    norm()
    if double:
        unpack()
        norm()
    a("buffer_store_dwordx4 v[4:7], v3, s[12:15], 0 offen")
    a("buffer_store_dwordx4 v[8:11], v3, s[12:15], 0 offen offset:16")
    a.label(end)
    a("s_endpgm")
    return dict(name=name, grid=nwg + npf, block=256, lds=0, desc=kernel_desc(name, 56))


def gen_gemm(a, name, N, K, BN, a_off, w_arg, epi, out_arg, out_off, res_arg=None, res_off=0,
             bias_arg=None, BM=128, NSTAGE=3, RA=4, RBN=8, ln=None, a_arg='ws', pre=False, stats_out=False, lda=None, ldo=None, splitk=None, zero_flags=False, l2pf=0):
    import struct
    M = S
    BK = 64
    lda = lda or K * 2
    ldo = ldo or N * 2
    NT_M = M // BM
    NT_N = N // BN
    ntiles = NT_M * NT_N
    MT = BM // 2 // 16
    NTW = BN // 2 // 16
    RB = {64: 128, 128: 128, 192: 128, 96: 64, 224: 448, 112: 32}[BN]
    ABYTES = BM * BK * 2
    BBYTES = BK * BN * 2
    STAGE = ABYTES + BBYTES
    PA = ABYTES // 1024 // 4
    PB = BBYTES // 1024 // 4
    assert PA * 4096 == ABYTES and PB * 4096 == BBYTES
    P = PA + PB
    NS = K // BK
    if splitk:
        NSLO, NSHI = splitk
        assert NSLO + NSHI == NS and (NSLO - NSHI) % NSTAGE == 0
        NS = NSHI
        ntiles *= 2
    lds = STAGE * NSTAGE
    CROW = BN * 2 + 16
    CSZ = BM * CROW
    LASTB = (NS - 1) % NSTAGE
    TBL = 2048 if (ln and not pre) else 0
    CBASE = 0 if LASTB * STAGE >= CSZ + TBL else (LASTB + 1) * STAGE
    assert CBASE + CSZ + TBL <= lds
    EPI = lds
    st_res = bool(res_arg) and not splitk
    if splitk:
        DONE = CBASE + CSZ
        assert DONE + 16 <= (LASTB * STAGE if CBASE == 0 else lds)
    st_bias = pre
    if st_res: lds += BM * BN * 2
    if st_bias: lds += 3072
    assert lds <= 163840
    if pre:
        CTAB = EPI + 1024; RTAB = EPI + 2048
    else:
        RTAB = CBASE + CSZ; CTAB = RTAB + 1024
    NEX = (BM * BN * 2 // 4096 if st_res else 0)
    PPR = RB // 32
    lg_ppr = int(math.log2(PPR)) if RB != 448 else 0

    vA = list(range(2, 2 + PA))
    vB = list(range(2 + PA, 2 + PA + PB))
    nxt = 2 + PA + PB
    vXb = [nxt, nxt + 1]; nxt += 2
    vWb = list(range(nxt, nxt + NTW)); nxt += NTW
    vXc = [nxt, nxt + 1]; nxt += 2
    vWc = list(range(nxt, nxt + NTW)); nxt += NTW
    vT = list(range(nxt, nxt + 8)); nxt += 8
    nxt = (nxt + 3) // 4 * 4
    FX = [nxt, nxt + 4 * MT]; nxt += 8 * MT
    FW = [nxt, nxt + 4 * NTW]; nxt += 8 * NTW
    ACC = nxt; nxt += 4 * MT * NTW
    PBI = nxt
    if bias_arg and not pre: nxt += 2 * NTW
    if l2pf:
        nxt = (nxt + 3) // 4 * 4
        PFD = nxt; PFV = nxt + 4; nxt += 5
    if splitk:
        PRT = nxt; nxt += 4 * MT * NTW
        PFL = nxt; PFA = nxt + 1; PPA = nxt + 2; nxt += 3
    nvgpr = nxt
    assert nvgpr <= 256
    t0, t1, t2, t3 = vT[0], vT[1], vT[2], vT[3]

    def acc(nt, mt):
        return ACC + 4 * (nt * MT + mt)

    def stamp(i):
        if 'stamp' in EXP:
            if 'rt' in EXP and i in (1, 6):
                a(f"s_memrealtime s[{60+2*i}:{61+2*i}]")
                a(f"s_memtime s[{62 if i == 1 else 70}+0:{63 if i == 1 else 71}]".replace("+0","")) if False else None
            else:
                a(f"s_memtime s[{60+2*i}:{61+2*i}]")
            if i >= 6: a("s_waitcnt lgkmcnt(0)")

    def stamp_out():
        if 'stamp' not in EXP: return
        a("s_waitcnt lgkmcnt(0)")
        srd(a, 80, 24, 200 * MB, 1 << 20)
        a("s_lshl_b32 s3, s2, 3")
        a("s_add_u32 s3, s3, s49")
        a("s_lshl_b32 s3, s3, 6")
        a("v_mov_b32 v2, s3")
        for i in range(8):
            a(f"v_mov_b32 v4, s{60+2*i}")
            a(f"v_mov_b32 v5, s{61+2*i}")
            a(f"buffer_store_dwordx2 v[4:5], v2, s[80:83], 0 offen offset:{8*i}")
            a("s_nop 1")

    def wfrag_addr_common():
        a(f"v_lshrrev_b32 {v(t1)}, 4, v1")
        a(f"v_bfe_u32 {v(t0)}, v1, 2, 2")
        a(f"v_lshl_add_u32 {v(t2)}, {v(t1)}, 3, {v(t0)}")
        if RB == 256:
            a(f"v_and_b32 {v(t3)}, 1, {v(t1)}")
            a(f"v_lshl_add_u32 {v(t3)}, {v(t3)}, 2, {v(t0)}")
        elif RB == 128:
            a(f"v_and_b32 {v(t3)}, 1, {v(t1)}")
            a(f"v_lshrrev_b32 {v(t0)}, 1, {v(t0)}")
            a(f"v_lshl_add_u32 {v(t3)}, {v(t3)}, 1, {v(t0)}")
        elif RB in (64, 448):
            a(f"v_and_b32 {v(t3)}, 1, {v(t1)}")
        else:
            a(f"v_mov_b32 {v(t3)}, 0")
        a(f"v_mul_u32_u24 {v(t2)}, {RB}, {v(t2)}")
        a(f"v_and_b32 {v(t0)}, 3, v1")
        a(f"v_lshl_add_u32 {v(t2)}, {v(t0)}, 3, {v(t2)}")
        a(f"v_add_u32 {v(t2)}, {ABYTES}, {v(t2)}")

    def wfrag_addr(dst):
        if RB == 448:
            a("s_mov_b32 s47, 0")
        elif PPR > 1:
            a(f"s_lshr_b32 s47, s46, {lg_ppr}")
            a(f"s_and_b32 s46, s46, {PPR-1}")
        else:
            a("s_mov_b32 s47, s46")
            a("s_mov_b32 s46, 0")
        a(f"s_mul_i32 s47, s47, {64*RB}")
        a(f"v_xor_b32 {v(t0)}, s46, {v(t3)}")
        a(f"v_lshl_add_u32 {v(t0)}, {v(t0)}, 5, {v(t2)}")
        a(f"v_add_u32 {v(dst)}, s47, {v(t0)}")

    kernel_header(a, name)
    end = a.newlabel("L_end")
    stamp(0)
    lab_loader = a.newlabel("L_loader")
    lab_store = a.newlabel("L_store")
    a(f"s_cmp_ge_u32 s2, {ntiles}")
    a(f"s_cbranch_scc1 {end}")
    a(f"s_load_dwordx2 s[24:25], s[0:1], {ARG['ws']}")
    a(f"s_load_dwordx2 s[58:59], s[0:1], {ARG[a_arg]}")
    a(f"s_load_dwordx2 s[26:27], s[0:1], {ARG[w_arg]}")
    a(f"s_load_dwordx2 s[34:35], s[0:1], {ARG[out_arg]}")
    if res_arg:
        a(f"s_load_dwordx2 s[36:37], s[0:1], {ARG[res_arg]}")
    if bias_arg:
        a(f"s_load_dwordx2 s[38:39], s[0:1], {ARG[bias_arg]}")
    assert ntiles == 256 and RA * RBN == (16 if splitk else 32) and NT_M % RA == 0 and NT_N % RBN == 0
    XB = NT_N // RBN
    a("s_and_b32 s3, s2, 7")
    a("s_lshr_b32 s46, s2, 3")
    if splitk:
        a("s_lshr_b32 s92, s46, 4")
        a("s_and_b32 s46, s46, 15")
        a("s_lshl_b32 s96, s3, 4")
        a("s_add_u32 s96, s96, s46")
        a("s_cmp_eq_u32 s92, 0")
        a(f"s_cselect_b32 s93, {NSLO}, {NSHI}")
        a("s_mov_b32 s94, 1")
    a(f"s_lshr_b32 s28, s3, {int(math.log2(XB))}")
    a(f"s_and_b32 s29, s3, {XB-1}")
    a(f"s_mul_i32 s28, s28, {RA}")
    a(f"s_mul_i32 s29, s29, {RBN}")
    a(f"s_lshr_b32 s3, s46, {int(math.log2(RBN))}")
    a("s_add_u32 s28, s28, s3")
    a(f"s_and_b32 s3, s46, {RBN-1}")
    a("s_add_u32 s29, s29, s3")
    a("v_and_b32 v1, 63, v0")
    a(f"v_lshrrev_b32 {v(vT[0])}, 6, v0")
    a("s_nop 0")
    a(f"v_readfirstlane_b32 s49, {v(vT[0])}")
    a("s_nop 3")
    a("s_and_b32 s30, s49, 3")
    a("s_lshr_b32 s44, s30, 1")
    a("s_and_b32 s45, s30, 1")

    def build_srds():
        a("s_waitcnt lgkmcnt(0)")
        srd(a, 4, 58, a_off, M * lda)
        srd(a, 8, 26, 0, K * N * 2)
        srd(a, 12, 34, out_off, M * ldo)
        if res_arg:
            srd(a, 16, 36, res_off, M * N * 2)
        if bias_arg:
            srd(a, 20, 38, 0, N * 2)
        if pre or stats_out:
            srd(a, 84, 24, WS_ST, S * 128)
        if pre:
            srd(a, 88, 24, WS_CS, N * 4)
        if splitk:
            srd(a, 84, 24, WS_PART, 128 * 65536)
            srd(a, 88, 24, WS_FLAG, 512)

    a("s_cmp_ge_u32 s49, 4")
    a(f"s_cbranch_scc1 {lab_loader}")

    a(f"v_and_b32 {v(t0)}, 15, v1")
    a("s_lshl_b32 s3, s44, 6")
    a(f"v_add_u32 {v(t0)}, s3, {v(t0)}")
    a(f"v_lshlrev_b32 {v(t0)}, 7, {v(t0)}")
    a(f"v_lshrrev_b32 {v(t1)}, 4, v1")
    a(f"v_bfe_u32 {v(t2)}, v1, 1, 3")
    a(f"v_xor_b32 {v(t3)}, {v(t1)}, {v(t2)}")
    a(f"v_lshl_add_u32 {v(vXb[0])}, {v(t3)}, 4, {v(t0)}")
    a(f"v_xor_b32 {v(t3)}, 4, {v(t3)}")
    a(f"v_lshl_add_u32 {v(vXb[1])}, {v(t3)}, 4, {v(t0)}")
    wfrag_addr_common()
    a(f"s_mul_i32 s3, s45, {NTW}")
    for nt in range(NTW):
        a(f"s_add_u32 s46, s3, {nt}")
        wfrag_addr(vWb[nt])
    for i in range(4 * MT * NTW):
        a(f"v_mov_b32 v{ACC+i}, 0")
    a("s_mov_b32 s42, 0")
    build_srds()
    if bias_arg and not pre:
        a(f"v_lshrrev_b32 {v(t0)}, 4, v1")
        a(f"v_lshlrev_b32 {v(t0)}, 3, {v(t0)}")
        a(f"s_mul_i32 s3, s29, {BN*2}")
        a(f"s_mul_i32 s46, s45, {BN}")
        a("s_add_u32 s3, s3, s46")
        for nt in range(NTW):
            a(f"buffer_load_dwordx2 {v(PBI+2*nt,2)}, {v(t0)}, s[20:23], s3 offen offset:{32*nt}")

    def set_cur():
        for kk in range(2):
            a(f"v_add_u32 {v(vXc[kk])}, s42, {v(vXb[kk])}")
        for nt in range(NTW):
            a(f"v_add_u32 {v(vWc[nt])}, s42, {v(vWb[nt])}")
        a(f"s_add_u32 s42, s42, {STAGE}")
        a(f"s_cmp_ge_u32 s42, {STAGE*NSTAGE}")
        a("s_cselect_b32 s42, 0, s42")

    def read_list(kk, f):
        if 'noreads' in EXP: return []
        L = []
        for nt in range(NTW):
            if nt < MT:
                L.append(f"ds_read_b128 {v(FX[f]+4*nt,4)}, {v(vXc[kk])} offset:{nt*2048}")
            for rd in range(2):
                L.append(f"ds_read_b64_tr_b16 {v(FW[f]+4*nt+2*rd,2)}, {v(vWc[nt])} offset:{kk*32*RB+rd*4*RB}")
        for mt in range(NTW, MT):
            L.append(f"ds_read_b128 {v(FX[f]+4*mt,4)}, {v(vXc[kk])} offset:{mt*2048}")
        return L

    def mfma_list(f):
        if 'nomfma' in EXP: return []
        L = []
        for nt in range(NTW):
            for mt in range(MT):
                L.append(f"v_mfma_f32_16x16x32_bf16 {v(acc(nt,mt),4)}, {v(FW[f]+4*nt,4)}, {v(FX[f]+4*mt,4)}, {v(acc(nt,mt),4)}")
        return L

    def reads(kk, f):
        for x in read_list(kk, f): a(x)

    def mfmas(f):
        for x in mfma_list(f): a(x)

    def inter(kk, fr, fm):
        R = read_list(kk, fr); Mm = mfma_list(fm)
        n = max(len(R), len(Mm))
        for i in range(n):
            if i < len(Mm): a(Mm[i])
            if i < len(R): a(R[i])

    if l2pf:
        NPA = RA * BM // 8
        NPW = BK * (RBN * BN * 2) // 1024
        WPR = RBN * BN * 2 // 1024
        assert NPA + NPW == 128 and WPR == 1
        lw = a.newlabel("L_pfw"); ld = a.newlabel("L_pfd")
        a("s_lshr_b32 s3, s2, 3")
        a("s_lshl_b32 s3, s3, 2")
        a("s_add_u32 s3, s3, s30")
        a(f"s_cmp_ge_u32 s3, {NPA}")
        a(f"s_cbranch_scc1 {lw}")
        a(f"s_lshr_b32 s46, s28, {int(math.log2(RA))}")
        a(f"s_mul_i32 s46, s46, {RA*BM}")
        a("s_lshl_b32 s3, s3, 3")
        a("s_add_u32 s3, s3, s46")
        a(f"v_lshrrev_b32 {v(PFV)}, 3, v1")
        a(f"v_add_u32 {v(PFV)}, s3, {v(PFV)}")
        a(f"v_mul_u32_u24 {v(PFV)}, {lda}, {v(PFV)}")
        a(f"v_and_b32 {v(t0)}, 7, v1")
        a(f"v_lshl_add_u32 {v(PFV)}, {v(t0)}, 4, {v(PFV)}")
        for i in range(4): a(f"s_mov_b32 s{84+i}, s{4+i}")
        a(f"s_mov_b32 s92, {l2pf*BK*2}")
        a(f"s_mov_b32 s93, {BK*2}")
        a(f"s_branch {ld}")
        a.label(lw)
        a(f"s_sub_u32 s3, s3, {NPA}")
        a(f"s_mul_i32 s3, s3, {N*2}")
        a(f"s_lshr_b32 s46, s29, {int(math.log2(RBN))}")
        a(f"s_mul_i32 s46, s46, {RBN*BN*2}")
        a("s_add_u32 s3, s3, s46")
        a(f"v_lshlrev_b32 {v(PFV)}, 4, v1")
        a(f"v_add_u32 {v(PFV)}, s3, {v(PFV)}")
        for i in range(4): a(f"s_mov_b32 s{84+i}, s{8+i}")
        a(f"s_mov_b32 s92, {l2pf*BK*N*2}")
        a(f"s_mov_b32 s93, {BK*N*2}")
        a.label(ld)
        a(f"s_mul_i32 s3, s93, {NSTAGE-1}")
        for j in range(NSTAGE - 1, l2pf):
            a(f"buffer_load_dwordx4 {v(PFD,4)}, {v(PFV)}, s[84:87], s3 offen")
            a("s_add_u32 s3, s3, s93")
    if splitk:
        a("s_xor_b32 s95, s92, 1")
        a(f"v_mov_b32 {v(PFL)}, 0")
        a("s_lshl_b32 s3, s96, 2")
        a(f"v_mov_b32 {v(PFA)}, s3")
        a("s_add_u32 s3, s3, s30")
        a("s_lshl_b32 s3, s3, 14")
        a(f"v_lshlrev_b32 {v(PPA)}, 4, v1")
        a(f"v_add_u32 {v(PPA)}, s3, {v(PPA)}")
    stamp(1)
    lab_cpass = a.newlabel("L_cpass")
    a.label(lab_cpass)
    a("s_barrier")
    stamp(2)
    set_cur()
    reads(0, 0)
    a("s_waitcnt lgkmcnt(0)")
    inter(1, 1, 0)
    a("s_waitcnt lgkmcnt(0)")
    if splitk: a("s_sub_u32 s48, s93, 1")
    else: a(f"s_mov_b32 s48, {NS-1}")
    loop = a.newlabel("L_cloop")
    a.label(loop)
    a("s_barrier")
    set_cur()
    inter(0, 0, 1)
    a("s_waitcnt lgkmcnt(0)")
    inter(1, 1, 0)
    if l2pf:
        a(f"buffer_load_dwordx4 {v(PFD,4)}, {v(PFV)}, s[84:87], s92 offen")
        a("s_add_u32 s92, s92, s93")
    if splitk:
        cskip = a.newlabel("L_cskip"); cpoll = a.newlabel("L_cpoll")
        a("s_cmp_lg_u32 s95, 0")
        a(f"s_cbranch_scc1 {cskip}")
        a(f"v_readfirstlane_b32 s3, {v(PFL)}")
        a("s_nop 3")
        a("s_cmp_eq_u32 s3, 0")
        a(f"s_cbranch_scc1 {cpoll}")
        a("s_mov_b32 s95, 1")
        for t_ in range(MT * NTW):
            a(f"s_mov_b32 s3, {1024*t_}")
            a(f"buffer_load_dwordx4 {v(PRT+4*t_,4)}, {v(PPA)}, s[84:87], s3 offen")
        a(f"s_branch {cskip}")
        a.label(cpoll)
        if 'forcefb' not in EXP: a(f"buffer_load_dword {v(PFL)}, {v(PFA)}, s[88:91], 0 offen sc0 sc1")
        a.label(cskip)
    a("s_waitcnt lgkmcnt(0)")
    a("s_sub_u32 s48, s48, 1")
    a("s_cmp_lg_u32 s48, 0")
    a(f"s_cbranch_scc1 {loop}")
    stamp(3)
    mfmas(1)
    if ln and not pre:
        a("s_barrier")
    if splitk:
        lab_hi = a.newlabel("L_hi"); lab_epi = a.newlabel("L_epi"); lab_fb = a.newlabel("L_fb")
        a("s_cmp_lg_u32 s92, 0")
        a(f"s_cbranch_scc1 {lab_hi}")
        a("s_nop 7")
        for t_ in range(MT * NTW):
            a(f"s_mov_b32 s3, {1024*t_}")
            a(f"buffer_store_dwordx4 {v(ACC+4*t_,4)}, {v(PPA)}, s[84:87], s3 offen sc0 sc1")
        a("s_waitcnt vmcnt(0)")
        a("s_barrier")
        a("s_cmp_lg_u32 s30, 0")
        a(f"s_cbranch_scc1 {end}")
        a(f"v_mov_b32 {v(t1)}, 1")
        a("s_mov_b64 exec, 1")
        a(f"buffer_store_dword {v(t1)}, {v(PFA)}, s[88:91], 0 offen sc0 sc1")
        a(f"s_branch {end}")
        a.label(lab_hi)
        a("s_lshl_b32 s3, s30, 2")
        a(f"s_add_u32 s3, s3, {DONE}")
        a(f"v_mov_b32 {v(t0)}, s3")
        a(f"v_mov_b32 {v(t1)}, s95")
        a(f"ds_write_b32 {v(t0)}, {v(t1)}")
        a("s_waitcnt lgkmcnt(0)")
        a("s_barrier")
        a("s_cmp_eq_u32 s94, 2")
        a(f"s_cbranch_scc1 {lab_epi}")
        a(f"v_mov_b32 {v(t1)}, {DONE}")
        a(f"ds_read_b128 {v(FX[0],4)}, {v(t1)}")
        a("s_waitcnt lgkmcnt(0)")
        a(f"v_and_b32 {v(FX[0])}, {v(FX[0])}, {v(FX[0]+1)}")
        a(f"v_and_b32 {v(FX[0]+2)}, {v(FX[0]+2)}, {v(FX[0]+3)}")
        a(f"v_and_b32 {v(FX[0])}, {v(FX[0])}, {v(FX[0]+2)}")
        a("s_nop 0")
        a(f"v_readfirstlane_b32 s3, {v(FX[0])}")
        a("s_nop 3")
        a("s_cmp_eq_u32 s3, 1")
        a(f"s_cbranch_scc0 {lab_fb}")
        a("s_waitcnt vmcnt(0)")
        for t_ in range(MT * NTW):
            for j in range(2):
                a(f"v_pk_add_f32 {v(ACC+4*t_+2*j,2)}, {v(ACC+4*t_+2*j,2)}, {v(PRT+4*t_+2*j,2)}")
        a(f"s_branch {lab_epi}")
        a.label(lab_fb)
        a("s_mov_b32 s94, 2")
        a("s_mov_b32 s95, 1")
        a(f"s_mov_b32 s93, {NSLO}")
        a("s_mov_b32 s42, 0")
        a("s_barrier")
        a(f"s_branch {lab_cpass}")
        a.label(lab_epi)
    RT = FX[0]; CS = RT + 8; BR = CS + 4 * NTW; BF = BR + 2 * NTW; GE = BF + 4 * NTW
    assert GE + 10 <= ACC
    a(f"v_and_b32 {v(t2)}, 15, v1")
    a("s_lshl_b32 s3, s44, 6")
    a(f"v_add_u32 {v(t2)}, s3, {v(t2)}")
    a(f"v_lshrrev_b32 {v(t3)}, 4, v1")
    a(f"s_mul_i32 s3, s45, {NTW*4}")
    a(f"v_add_u32 {v(t3)}, s3, {v(t3)}")
    if ln:
        a(f"v_lshlrev_b32 {v(t0)}, 3, {v(t2)}")
        a(f"v_add_u32 {v(t0)}, {RTAB}, {v(t0)}")
        for mt in range(MT):
            a(f"ds_read_b64 {v(RT+2*mt,2)}, {v(t0)} offset:{128*mt}")
        a(f"v_lshlrev_b32 {v(t0)}, 4, {v(t3)}")
        a(f"v_add_u32 {v(t0)}, {CTAB}, {v(t0)}")
        for nt in range(NTW):
            a(f"ds_read_b128 {v(CS+4*nt,4)}, {v(t0)} offset:{64*nt}")
    if bias_arg and pre:
        a(f"v_lshlrev_b32 {v(t0)}, 3, {v(t3)}")
        a(f"v_add_u32 {v(t0)}, {EPI}, {v(t0)}")
        for nt in range(NTW):
            a(f"ds_read_b64 {v(BR+2*nt,2)}, {v(t0)} offset:{32*nt}")
    vc = vT[0]
    a(f"v_mul_u32_u24 {v(t2)}, {CROW}, {v(t2)}")
    a(f"v_lshl_add_u32 {v(vc)}, {v(t3)}, 3, {v(t2)}")
    if CBASE: a(f"v_add_u32 {v(vc)}, {CBASE}, {v(vc)}")
    if epi == 'gelu':
        c2 = 2 * math.log2(math.e)
        k1 = struct.unpack("<I", struct.pack("<f", 0.7978845608 * c2))[0]
        k3 = struct.unpack("<I", struct.pack("<f", 0.7978845608 * 0.044715 * c2))[0]
        a(f"s_mov_b32 s52, {k3}"); a(f"s_mov_b32 s53, {k3}")
        a(f"v_mov_b32 {v(GE+8)}, {k1}"); a(f"v_mov_b32 {v(GE+9)}, {k1}")
        a("s_mov_b32 s56, 1.0"); a("s_mov_b32 s57, 1.0")
    a("s_waitcnt vmcnt(0) lgkmcnt(0)")
    a("s_nop 7")
    if bias_arg:
        bsrc = BR if pre else PBI
        for nt in range(NTW):
            for j in range(2):
                a(f"v_lshlrev_b32 {v(BF+4*nt+2*j)}, 16, {v(bsrc+2*nt+j)}")
                a(f"v_and_b32 {v(BF+4*nt+2*j+1)}, 0xffff0000, {v(bsrc+2*nt+j)}")
    for nt in range(NTW):
        for mp in range(0, MT, 2):
            c0 = acc(nt, mp)
            for q in range(2):
                mt = mp + q
                for j in range(2):
                    cc = v(c0 + 4 * q + 2 * j, 2)
                    tt = v(GE + 4 * q + 2 * j, 2)
                    if ln:
                        if bias_arg:
                            a(f"v_pk_fma_f32 {tt}, {v(CS+4*nt+2*j,2)}, {v(RT+2*mt,2)}, {v(BF+4*nt+2*j,2)} op_sel:[0,1,0] op_sel_hi:[1,1,1]")
                        else:
                            a(f"v_pk_mul_f32 {tt}, {v(CS+4*nt+2*j,2)}, {v(RT+2*mt,2)} op_sel:[0,1] op_sel_hi:[1,1]")
                    elif bias_arg:
                        a(f"v_pk_add_f32 {cc}, {cc}, {v(BF+4*nt+2*j,2)}")
            if ln:
                for q in range(2):
                    mt = mp + q
                    for j in range(2):
                        cc = v(c0 + 4 * q + 2 * j, 2)
                        tt = v(GE + 4 * q + 2 * j, 2)
                        a(f"v_pk_fma_f32 {cc}, {cc}, {v(RT+2*mt,2)}, {tt} op_sel:[0,0,0] op_sel_hi:[1,0,1]")
            if epi == 'gelu':
                for j in range(4):
                    a(f"v_pk_mul_f32 {v(GE+2*j,2)}, {v(c0+2*j,2)}, {v(c0+2*j,2)}")
                for j in range(4):
                    a(f"v_pk_fma_f32 {v(GE+2*j,2)}, {v(GE+2*j,2)}, s[52:53], {v(GE+8,2)}")
                for j in range(4):
                    a(f"v_pk_mul_f32 {v(GE+2*j,2)}, {v(GE+2*j,2)}, {v(c0+2*j,2)}")
                for r in range(8):
                    a(f"v_exp_f32 {v(GE+r)}, {v(GE+r)}")
                a("s_nop 0")
                for j in range(4):
                    a(f"v_pk_add_f32 {v(GE+2*j,2)}, {v(GE+2*j,2)}, s[56:57]")
                for r in range(8):
                    a(f"v_rcp_f32 {v(GE+r)}, {v(GE+r)}")
                a("s_nop 0")
                for j in range(4):
                    cc = v(c0 + 2 * j, 2)
                    a(f"v_pk_fma_f32 {cc}, {cc}, {v(GE+2*j,2)}, {cc} neg_lo:[1,0,0] neg_hi:[1,0,0]")
            for j in range(4):
                a(f"v_cvt_pk_bf16_f32 {v(c0+j)}, {v(c0+2*j)}, {v(c0+2*j+1)}")
            for q in range(2):
                a(f"ds_write_b64 {v(vc)}, {v(c0+2*q,2)} offset:{(mp+q)*16*CROW + nt*32}")
    a("s_waitcnt lgkmcnt(0)")
    stamp(4)
    a("s_barrier")
    a(f"s_branch {lab_store}")

    a.label(lab_loader)
    if 'noprio' not in EXP: a("s_setprio 2")
    NPL = (BN // 16 + 3) // 4
    LSA = 40
    LCW = 44
    LSC = 48; LCC = 52
    LONE = 56
    LST = 60
    LMS = 132
    LCS = 68
    LSD = 84
    LWD = 100
    assert vT[7] < 40
    a(f"s_mul_i32 s3, s30, {PA*8}")
    a(f"v_lshrrev_b32 {v(t0)}, 3, v1")
    a(f"v_add_u32 {v(t0)}, s3, {v(t0)}")
    a(f"s_mul_i32 s3, s28, {BM}")
    for i in range(PA):
        a(f"v_add_u32 {v(t1)}, {8*i}, {v(t0)}")
        a(f"v_lshrrev_b32 {v(t2)}, 1, {v(t1)}")
        a(f"v_and_b32 {v(t2)}, 7, {v(t2)}")
        a(f"v_and_b32 {v(t3)}, 7, v1")
        a(f"v_xor_b32 {v(t2)}, {v(t2)}, {v(t3)}")
        a(f"v_add_u32 {v(t1)}, s3, {v(t1)}")
        a(f"v_mul_u32_u24 {v(t1)}, {lda}, {v(t1)}")
        a(f"v_lshl_add_u32 {v(vA[i])}, {v(t2)}, 4, {v(t1)}")
    a(f"s_mul_i32 s3, s29, {BN*2}")
    if RB == 448:
        a(f"s_mov_b32 s47, {((1 << 32) + 27) // 28}")
        for i in range(PB):
            a(f"s_mul_i32 s46, s30, {PB*64}")
            a(f"s_add_u32 s46, s46, {i*64}")
            a(f"v_add_u32 {v(t1)}, s46, v1")
            a(f"v_mul_hi_u32 {v(t0)}, {v(t1)}, s47")
            a(f"v_mul_u32_u24 {v(t2)}, 28, {v(t0)}")
            a(f"v_sub_u32 {v(t1)}, {v(t1)}, {v(t2)}")
            a(f"v_bfe_u32 {v(t2)}, {v(t0)}, 3, 1")
            a(f"v_lshlrev_b32 {v(t2)}, 1, {v(t2)}")
            a(f"v_xor_b32 {v(t1)}, {v(t1)}, {v(t2)}")
            a(f"v_mul_u32_u24 {v(t0)}, {N*2}, {v(t0)}")
            a(f"v_lshl_add_u32 {v(t0)}, {v(t1)}, 4, {v(t0)}")
            a(f"v_add_u32 {v(vB[i])}, s3, {v(t0)}")
    else:
      CPR = RB // 16
      lg_cpr = int(math.log2(CPR))
      RPP = 1024 // RB
      PPB = RB // 16
      lg_ppb = int(math.log2(PPB))
      for i in range(PB):
        a(f"s_mul_i32 s46, s30, {PB}")
        a(f"s_add_u32 s46, s46, {i}")
        a(f"s_lshr_b32 s47, s46, {lg_ppb}")
        a(f"s_and_b32 s46, s46, {PPB-1}")
        a(f"s_mul_i32 s46, s46, {RPP}")
        a(f"s_mul_i32 s47, s47, {RB}")
        a("s_add_u32 s47, s47, s3")
        a(f"v_lshrrev_b32 {v(t0)}, {lg_cpr}, v1")
        a(f"v_add_u32 {v(t0)}, s46, {v(t0)}")
        a(f"v_and_b32 {v(t1)}, {CPR-1}, v1")
        if RB == 256:
            a(f"v_and_b32 {v(t2)}, 3, {v(t0)}")
            a(f"v_bfe_u32 {v(t3)}, {v(t0)}, 3, 1")
            a(f"v_lshl_add_u32 {v(t2)}, {v(t3)}, 2, {v(t2)}")
        elif RB == 128:
            a(f"v_bfe_u32 {v(t2)}, {v(t0)}, 1, 1")
            a(f"v_bfe_u32 {v(t3)}, {v(t0)}, 3, 1")
            a(f"v_lshl_add_u32 {v(t2)}, {v(t3)}, 1, {v(t2)}")
        elif RB == 64:
            a(f"v_bfe_u32 {v(t2)}, {v(t0)}, 3, 1")
        else:
            a(f"v_mov_b32 {v(t2)}, 0")
        a(f"v_lshlrev_b32 {v(t2)}, 1, {v(t2)}")
        a(f"v_xor_b32 {v(t1)}, {v(t1)}, {v(t2)}")
        a(f"v_mul_u32_u24 {v(t0)}, {N*2}, {v(t0)}")
        a(f"v_lshl_add_u32 {v(t0)}, {v(t1)}, 4, {v(t0)}")
        a(f"v_add_u32 {v(vB[i])}, s47, {v(t0)}")
    a(f"s_mul_i32 s31, s30, {PA*1024}")
    a(f"s_mul_i32 s32, s30, {PB*1024}")
    a(f"s_add_u32 s32, s32, {ABYTES}")
    a("s_mov_b32 s40, 0")
    a("s_mov_b32 s41, 0")
    a("s_mov_b32 s43, 0")
    a("s_mov_b32 s42, 0")
    build_srds()
    if zero_flags:
        lz = a.newlabel("L_nz")
        a("s_cmp_lg_u32 s2, 0")
        a(f"s_cbranch_scc1 {lz}")
        srd(a, 92, 24, WS_FLAG, 512)
        a(f"v_lshlrev_b32 {v(t0)}, 3, v1")
        a("v_mov_b32 v44, 0")
        a("v_mov_b32 v45, 0")
        a(f"buffer_store_dwordx2 v[44:45], {v(t0)}, s[92:95], 0 offen")
        a.label(lz)
    if splitk:
        a(f"s_mul_i32 s40, s92, {NSLO*BK*2}")
        a(f"s_mul_i32 s41, s92, {NSLO*BK*N*2}")
        lab_lpass = a.newlabel("L_lpass")
        a.label(lab_lpass)

    def dma():
        if 'nodma' in EXP: return
        a("s_add_u32 s33, s43, s31")
        for i in range(PA):
            a(f"s_add_u32 m0, s33, {i*1024}")
            a("s_nop 0")
            a(f"buffer_load_dwordx4 {v(vA[i])}, s[4:7], s40 offen lds")
        a("s_add_u32 s33, s43, s32")
        for i in range(PB):
            a(f"s_add_u32 m0, s33, {i*1024}")
            a("s_nop 0")
            a(f"buffer_load_dwordx4 {v(vB[i])}, s[8:11], s41 offen lds")
        a(f"s_add_u32 s40, s40, {BK*2}")
        a(f"s_add_u32 s41, s41, {BK*N*2}")
        a(f"s_add_u32 s43, s43, {STAGE}")
        a(f"s_cmp_ge_u32 s43, {STAGE*NSTAGE}")
        a("s_cselect_b32 s43, 0, s43")

    stamp(1)
    if pre:
        a(f"v_lshrrev_b32 {v(LSA)}, 1, v1")
        a("s_lshl_b32 s3, s30, 5")
        a(f"v_add_u32 {v(LSA)}, s3, {v(LSA)}")
        a(f"s_mul_i32 s3, s28, {BM}")
        a(f"v_add_u32 {v(t0)}, s3, {v(LSA)}")
        a(f"v_lshlrev_b32 {v(t0)}, 7, {v(t0)}")
        a(f"v_and_b32 {v(t1)}, 1, v1")
        a(f"v_lshl_add_u32 {v(t0)}, {v(t1)}, 6, {v(t0)}")
        for i in range(4):
            a(f"buffer_load_dwordx4 {v(LSD+4*i,4)}, {v(t0)}, s[84:87], 0 offen offset:{16*i}")
    if st_bias:
        a(f"v_lshlrev_b32 {v(t0)}, 4, v1")
        a(f"s_mul_i32 s3, s29, {BN*2}")
        a(f"s_mov_b32 m0, {EPI}")
        a("s_nop 0")
        a(f"buffer_load_dwordx4 {v(t0)}, s[20:23], s3 offen lds")
        a(f"s_mul_i32 s3, s29, {BN*4}")
        a(f"s_mov_b32 m0, {EPI+1024}")
        a("s_nop 0")
        a(f"buffer_load_dwordx4 {v(t0)}, s[88:91], s3 offen lds")
    for _ in range(NSTAGE - 1):
        dma()
    stamp(2)
    if ln and not pre:
        wfrag_addr_common()
        for i in range(NPL):
            a(f"s_mul_i32 s46, s30, {NPL}")
            a(f"s_add_u32 s46, s46, {i}")
            a(f"s_min_u32 s46, s46, {BN//16-1}")
            wfrag_addr(LCW + i)
        for i in range(4):
            a(f"v_mov_b32 {v(LONE+i)}, 0x3f803f80")
        for i in range(16):
            a(f"v_mov_b32 {v(LMS+i)}, 0")
        a(f"v_and_b32 {v(t0)}, 15, v1")
        a("s_lshl_b32 s3, s30, 5")
        a(f"v_add_u32 {v(t0)}, s3, {v(t0)}")
        a(f"v_lshlrev_b32 {v(t0)}, 7, {v(t0)}")
        a(f"v_lshrrev_b32 {v(t1)}, 4, v1")
        a(f"v_bfe_u32 {v(t2)}, v1, 1, 3")
        a(f"v_xor_b32 {v(t3)}, {v(t1)}, {v(t2)}")
        a(f"v_lshl_add_u32 {v(LSA)}, {v(t3)}, 4, {v(t0)}")
        a(f"v_xor_b32 {v(t3)}, 4, {v(t3)}")
        a(f"v_lshl_add_u32 {v(LSA+1)}, {v(t3)}, 4, {v(t0)}")
        for i in range(4 * NPL):
            a(f"v_mov_b32 {v(LCS+i)}, 0")

    def stats_reads():
        for i in range(2):
            a(f"v_add_u32 {v(LSC+i)}, s42, {v(LSA+i)}")
        for i in range(NPL):
            a(f"v_add_u32 {v(LCC+i)}, s42, {v(LCW+i)}")
        a(f"s_add_u32 s42, s42, {STAGE}")
        a(f"s_cmp_ge_u32 s42, {STAGE*NSTAGE}")
        a("s_cselect_b32 s42, 0, s42")
        for q in range(2):
            for kk in range(2):
                a(f"ds_read_b128 {v(LSD+8*q+4*kk,4)}, {v(LSC+kk)} offset:{2048*q}")
        for i in range(NPL):
            for kk in range(2):
                for rd in range(2):
                    a(f"ds_read_b64_tr_b16 {v(LWD+8*i+4*kk+2*rd,2)}, {v(LCC+i)} offset:{kk*32*RB+rd*4*RB}")

    def stats_math():
        a("s_waitcnt lgkmcnt(0)")
        for i in range(NPL):
            for kk in range(2):
                a(f"v_mfma_f32_16x16x32_bf16 {v(LCS+4*i,4)}, {v(LWD+8*i+4*kk,4)}, {v(LONE,4)}, {v(LCS+4*i,4)}")
        for kk in range(2):
            for q in range(2):
                d = v(LSD + 8 * q + 4 * kk, 4)
                a(f"v_mfma_f32_16x16x32_bf16 {v(LMS+8*q,4)}, {d}, {v(LONE,4)}, {v(LMS+8*q,4)}")
                a(f"v_mfma_f32_16x16x32_bf16 {v(LMS+8*q+4,4)}, {d}, {d}, {v(LMS+8*q+4,4)}")

    nloop = NS - NSTAGE + 1
    if splitk: a(f"s_sub_u32 s48, s93, {NSTAGE-1}")
    else: a(f"s_mov_b32 s48, {nloop}")
    lloop = a.newlabel("L_lloop")
    a.label(lloop)
    a(f"s_waitcnt vmcnt({(NSTAGE-2)*P})")
    a("s_barrier")
    if ln and not pre: stats_reads()
    dma()
    if ln and not pre: stats_math()
    a("s_sub_u32 s48, s48, 1")
    a("s_cmp_lg_u32 s48, 0")
    a(f"s_cbranch_scc1 {lloop}")
    if pre:
        for i in range(1, 8):
            a(f"v_add_f32 {v(LSD)}, {v(LSD)}, {v(LSD+2*i)}")
            a(f"v_add_f32 {v(LSD+1)}, {v(LSD+1)}, {v(LSD+2*i+1)}")
        a("s_nop 1")
        for k_ in range(2):
            a(f"v_add_f32_dpp {v(LST+k_)}, {v(LSD+k_)}, {v(LSD+k_)} quad_perm:[1,0,3,2] row_mask:0xf bank_mask:0xf")
        sm, sq, r1, r2 = LST, LST + 1, LSD, LSD + 1
        a(f"v_mul_f32 {v(sm)}, {hex_f32(1.0/K)}, {v(sm)}")
        a(f"v_mul_f32 {v(sq)}, {hex_f32(1.0/K)}, {v(sq)}")
        a(f"v_fma_f32 {v(sq)}, -{v(sm)}, {v(sm)}, {v(sq)}")
        a(f"v_max_f32 {v(sq)}, 0, {v(sq)}")
        a(f"v_add_f32 {v(r1)}, {hex_f32(1e-5)}, {v(sq)}")
        a(f"v_rsq_f32 {v(r1)}, {v(r1)}")
        a("s_nop 0")
        if ln == 'double':
            a(f"v_mul_f32 {v(r2)}, {v(r1)}, {v(r1)}")
            a(f"v_mul_f32 {v(r2)}, {v(r2)}, {v(sq)}")
            a(f"v_add_f32 {v(r2)}, {hex_f32(1e-5)}, {v(r2)}")
            a(f"v_rsq_f32 {v(r2)}, {v(r2)}")
            a("s_nop 0")
            a(f"v_mul_f32 {v(r1)}, {v(r1)}, {v(r2)}")
        a(f"v_mul_f32 {v(r2)}, {v(sm)}, {v(r1)}")
        a(f"v_sub_f32 {v(r2)}, 0, {v(r2)}")
        a(f"v_lshlrev_b32 {v(LSC)}, 3, {v(LSA)}")
        a(f"v_add_u32 {v(LSC)}, {RTAB}, {v(LSC)}")
        a(f"ds_write_b64 {v(LSC)}, {v(LSD,2)}")
        a("s_waitcnt lgkmcnt(0)")
    if st_res:
        npc = BM * BN * 2 // 4096
        rpp = 1024 // (BN * 2)
        lpr = BN * 2 // 16
        a(f"v_lshrrev_b32 {v(t0)}, {int(math.log2(lpr))}, v1")
        a(f"s_mul_i32 s3, s30, {npc*rpp}")
        a(f"s_mul_i32 s46, s28, {BM}")
        a("s_add_u32 s3, s3, s46")
        a(f"v_add_u32 {v(t0)}, s3, {v(t0)}")
        a(f"v_mul_u32_u24 {v(t0)}, {N*2}, {v(t0)}")
        a(f"v_and_b32 {v(t1)}, {lpr-1}, v1")
        a(f"v_lshl_add_u32 {v(t0)}, {v(t1)}, 4, {v(t0)}")
        a(f"s_mul_i32 s3, s29, {BN*2}")
        a(f"v_add_u32 {v(t0)}, s3, {v(t0)}")
        a(f"s_mul_i32 s33, s30, {npc*1024}")
        for i in range(npc):
            a(f"s_add_u32 m0, s33, {EPI + i*1024}")
            a(f"s_mov_b32 s3, {i*rpp*N*2}")
            a(f"buffer_load_dwordx4 {v(t0)}, s[16:19], s3 offen lds")
    for j in range(NS - NSTAGE + 1, NS):
        a(f"s_waitcnt vmcnt({(NS-1-j)*P + NEX})")
        a("s_barrier")
        if ln and not pre:
            stats_reads()
            stats_math()
    stamp(3)
    if ln and not pre:
        a("s_nop 7")
        a(f"v_and_b32 {v(t0)}, 3, v1")
        for r in range(1, 4):
            a(f"v_cmp_eq_u32 s[{48+2*r}:{49+2*r}], {r}, {v(t0)}")
        X0 = LSD
        for i in range(2):
            sm, sq = LST + 2 * i, LST + 2 * i + 1
            r1, r2 = X0 + 2 * i, X0 + 2 * i + 1
            for dst, src in ((sm, LMS + 8 * i), (sq, LMS + 8 * i + 4)):
                a(f"v_cndmask_b32 {v(dst)}, {v(src)}, {v(src+1)}, s[50:51]")
                a(f"v_cndmask_b32 {v(dst)}, {v(dst)}, {v(src+2)}, s[52:53]")
                a(f"v_cndmask_b32 {v(dst)}, {v(dst)}, {v(src+3)}, s[54:55]")
            a(f"v_mul_f32 {v(sm)}, {hex_f32(1.0/K)}, {v(sm)}")
            a(f"v_mul_f32 {v(sq)}, {hex_f32(1.0/K)}, {v(sq)}")
            a(f"v_fma_f32 {v(sq)}, -{v(sm)}, {v(sm)}, {v(sq)}")
            a(f"v_max_f32 {v(sq)}, 0, {v(sq)}")
            a(f"v_add_f32 {v(r1)}, {hex_f32(1e-5)}, {v(sq)}")
            a(f"v_rsq_f32 {v(r1)}, {v(r1)}")
            a("s_nop 0")
            assert ln == 'single'
            a(f"v_mul_f32 {v(r2)}, {v(sm)}, {v(r1)}")
            a(f"v_sub_f32 {v(r2)}, 0, {v(r2)}")
        a(f"v_lshrrev_b32 {v(LSC)}, 7, {v(LSA)}")
        a(f"v_lshlrev_b32 {v(LSC)}, 3, {v(LSC)}")
        a(f"v_add_u32 {v(LSC)}, {RTAB}, {v(LSC)}")
        a(f"v_lshrrev_b32 {v(t0)}, 4, v1")
        a(f"v_lshlrev_b32 {v(t0)}, 4, {v(t0)}")
        for i in range(NPL):
            a(f"s_mul_i32 s46, s30, {NPL}")
            a(f"s_add_u32 s46, s46, {i}")
            a(f"s_min_u32 s46, s46, {BN//16-1}")
            a("s_lshl_b32 s46, s46, 6")
            a(f"s_add_u32 s46, s46, {CTAB}")
            a(f"v_add_u32 {v(LCC+i)}, s46, {v(t0)}")
    if ln and not pre:
        a("s_mov_b32 exec_lo, 0x00f0000f")
        a("s_mov_b32 exec_hi, 0xf0000f00")
        for i in range(2):
            a(f"ds_write_b64 {v(LSC)}, {v(LSD+2*i,2)} offset:{128*i}")
        a("s_mov_b64 exec, -1")
        for i in range(NPL):
            a(f"ds_write_b128 {v(LCC+i)}, {v(LCS+4*i,4)}")
        a("s_waitcnt lgkmcnt(0)")
        a("s_barrier")
    if NEX: a("s_waitcnt vmcnt(0)")
    if splitk:
        lhi = a.newlabel("L_lhi"); lepi = a.newlabel("L_lepi")
        a("s_cmp_lg_u32 s92, 0")
        a(f"s_cbranch_scc1 {lhi}")
        a("s_barrier")
        a(f"s_branch {end}")
        a.label(lhi)
        a("s_barrier")
        a("s_cmp_eq_u32 s94, 2")
        a(f"s_cbranch_scc1 {lepi}")
        a(f"v_mov_b32 {v(t1)}, {DONE}")
        a(f"ds_read_b128 {v(44,4)}, {v(t1)}")
        a("s_waitcnt lgkmcnt(0)")
        a("v_and_b32 v44, v44, v45")
        a("v_and_b32 v46, v46, v47")
        a("v_and_b32 v44, v44, v46")
        a("s_nop 0")
        a("v_readfirstlane_b32 s3, v44")
        a("s_nop 3")
        a("s_cmp_eq_u32 s3, 1")
        a(f"s_cbranch_scc1 {lepi}")
        a("s_mov_b32 s94, 2")
        a(f"s_mov_b32 s93, {NSLO}")
        a("s_mov_b32 s40, 0"); a("s_mov_b32 s41, 0"); a("s_mov_b32 s43, 0")
        a("s_barrier")
        a(f"s_branch {lab_lpass}")
        a.label(lepi)
    stamp(4)
    a("s_barrier")

    a.label(lab_store)
    CPRW = BN // 8
    NIT = BM * CPRW // 512
    assert NIT * 512 == BM * CPRW
    magic = ((1 << 32) + CPRW - 1) // CPRW
    a(f"s_mov_b32 s46, {magic}")
    a(f"s_mul_i32 s3, s49, {NIT*64}")
    a(f"v_add_u32 {v(t0)}, s3, v1")
    a(f"s_mul_i32 s3, s28, {BM}")
    a(f"s_mul_i32 s47, s29, {BN*2}")
    R0 = (vT[7] + 4) // 4 * 4
    RR = R0 + 4 * NIT
    OFF = RR + 4 * NIT
    SOF = OFF + NIT
    GT = (SOF + NIT + 3) // 4 * 4
    assert GT + 10 <= 256
    for it in range(NIT):
        a(f"v_add_u32 {v(t1)}, {it*64}, {v(t0)}")
        a(f"v_mul_hi_u32 {v(t2)}, {v(t1)}, s46")
        a(f"v_mul_u32_u24 {v(t3)}, {CPRW}, {v(t2)}")
        a(f"v_sub_u32 {v(t3)}, {v(t1)}, {v(t3)}")
        a(f"v_mul_u32_u24 {v(t1)}, {CROW}, {v(t2)}")
        a(f"v_lshl_add_u32 {v(t1)}, {v(t3)}, 4, {v(t1)}")
        if CBASE: a(f"v_add_u32 {v(t1)}, {CBASE}, {v(t1)}")
        a(f"ds_read_b128 {v(R0+4*it,4)}, {v(t1)}")
        a(f"v_add_u32 {v(t2)}, s3, {v(t2)}")
        if stats_out:
            a(f"v_lshlrev_b32 {v(SOF+it)}, 7, {v(t2)}")
            a(f"v_lshl_add_u32 {v(SOF+it)}, s29, 3, {v(SOF+it)}")
        a(f"v_mul_u32_u24 {v(t2)}, {ldo}, {v(t2)}")
        a(f"v_lshlrev_b32 {v(t3)}, 4, {v(t3)}")
        a(f"v_add_u32 {v(t3)}, s47, {v(t3)}")
        a(f"v_add_u32 {v(OFF+it)}, {v(t3)}, {v(t2)}")
        if st_res:
            a(f"v_lshlrev_b32 {v(t1)}, 4, {v(t0)}")
            a(f"v_add_u32 {v(t1)}, {EPI + it*1024}, {v(t1)}")
            a(f"ds_read_b128 {v(RR+4*it,4)}, {v(t1)}")
        elif res_arg:
            a(f"buffer_load_dwordx4 {v(RR+4*it,4)}, {v(OFF+it)}, s[16:19], 0 offen")
    a("s_waitcnt vmcnt(0) lgkmcnt(0)")
    stamp(5)
    for it in range(NIT):
        c0 = R0 + 4 * it
        if res_arg:
            for j in range(4):
                d = c0 + j
                r = RR + 4 * it + j
                a(f"v_lshlrev_b32 {v(GT)}, 16, {v(d)}")
                a(f"v_lshlrev_b32 {v(GT+1)}, 16, {v(r)}")
                a(f"v_and_b32 {v(GT+2)}, 0xffff0000, {v(d)}")
                a(f"v_and_b32 {v(GT+3)}, 0xffff0000, {v(r)}")
                a(f"v_add_f32 {v(GT)}, {v(GT)}, {v(GT+1)}")
                a(f"v_add_f32 {v(GT+2)}, {v(GT+2)}, {v(GT+3)}")
                a(f"v_cvt_pk_bf16_f32 {v(d)}, {v(GT)}, {v(GT+2)}")
        a(f"buffer_store_dwordx4 {v(c0,4)}, {v(OFF+it)}, s[12:15], 0 offen {STMOD if (ln or STALL) else ''}")
        if stats_out:
            assert CPRW == 8
            a(f"v_mov_b32 {v(GT+8)}, 0x3f803f80")
            a(f"v_mov_b32 {v(GT)}, 0")
            a(f"v_mov_b32 {v(GT+1)}, 0")
            for j in range(4):
                a(f"v_dot2_f32_bf16 {v(GT)}, {v(c0+j)}, {v(GT+8)}, {v(GT)}")
                a(f"v_dot2_f32_bf16 {v(GT+1)}, {v(c0+j)}, {v(c0+j)}, {v(GT+1)}")
            a("s_nop 3")
            for q_, mode in enumerate(("quad_perm:[1,0,3,2]", "quad_perm:[2,3,0,1]", "row_half_mirror")):
                src = GT + 2 * (q_ & 1); dst = GT + 2 * ((q_ + 1) & 1)
                for k_ in range(2):
                    a(f"v_add_f32_dpp {v(dst+k_)}, {v(src+k_)}, {v(src+k_)} {mode} row_mask:0xf bank_mask:0xf")
                a("s_nop 1")
            a("s_mov_b32 exec_lo, 0x01010101")
            a("s_mov_b32 exec_hi, 0x01010101")
            a(f"buffer_store_dwordx2 {v(GT+2,2)}, {v(SOF+it)}, s[84:87], 0 offen")
            a("s_mov_b64 exec, -1")
    stamp(6)
    if 'stamp' in EXP: a("s_waitcnt vmcnt(0)")
    stamp(7)
    stamp_out()
    a.label(end)
    a("s_endpgm")
    return dict(name=name, grid=ntiles, block=512, lds=lds, desc=kernel_desc(name, max(nvgpr, GT + 10, 148)))


def gen_attn(a, name, pf=None, colsum=False):
    import struct
    NQB = S // 32
    ntask = H * NQB
    nwg = ntask // 4
    QKV_ROW = 3 * D * 2
    KLDS = 384 * 64
    lds = 2 * KLDS
    kernel_header(a, name)
    end = a.newlabel("L_end")
    npf = F // 32 if colsum else 0
    a(f"s_cmp_ge_u32 s2, {nwg + npf}")
    a(f"s_cbranch_scc1 {end}")
    a(f"s_load_dwordx2 s[24:25], s[0:1], {ARG['ws']}")
    a("v_and_b32 v1, 63, v0")
    a("v_lshrrev_b32 v2, 6, v0")
    a("s_nop 0")
    a("v_readfirstlane_b32 s30, v2")
    a("s_nop 3")
    if colsum:
        lab_att = a.newlabel("L_att")
        a(f"s_cmp_lt_u32 s2, {nwg}")
        a(f"s_cbranch_scc1 {lab_att}")
        a(f"s_sub_u32 s2, s2, {nwg}")
        a(f"s_load_dwordx2 s[26:27], s[0:1], {ARG['w1']}")
        a("v_lshrrev_b32 v2, 2, v1")
        a("s_lshl_b32 s3, s30, 8")
        a("v_add_u32 v2, s3, v2")
        a(f"v_mul_u32_u24 v2, {F*2}, v2")
        a("v_and_b32 v3, 3, v1")
        a("v_lshl_add_u32 v2, v3, 4, v2")
        a("s_lshl_b32 s3, s2, 6")
        a("v_add_u32 v2, s3, v2")
        a("s_waitcnt lgkmcnt(0)")
        srd(a, 4, 26, 0, D * F * 2)
        srd(a, 8, 24, WS_CS, F * 4)
        for i in range(16):
            a(f"s_mov_b32 s3, {16*i*F*2}")
            a(f"buffer_load_dwordx4 {v(16+4*i,4)}, v2, s[4:7], s3 offen")
        for j in range(8):
            a(f"v_mov_b32 v{8+j}, 0")
        for i in range(16):
            a(f"s_waitcnt vmcnt({15-i})")
            for j in range(4):
                a(f"v_lshlrev_b32 v4, 16, v{16+4*i+j}")
                a(f"v_and_b32 v5, 0xffff0000, v{16+4*i+j}")
                a(f"v_add_f32 v{8+2*j}, v{8+2*j}, v4")
                a(f"v_add_f32 v{9+2*j}, v{9+2*j}, v5")
        a("s_nop 1")
        for mode in ("row_ror:4", "row_ror:8"):
            for j in range(8):
                a(f"v_add_f32_dpp v{16+j}, v{8+j}, v{8+j} {mode} row_mask:0xf bank_mask:0xf")
            a("s_nop 1")
            for j in range(8):
                a(f"v_mov_b32 v{8+j}, v{16+j}")
            a("s_nop 1")
        for x in (16, 32):
            a(f"v_xor_b32 v4, {x}, v1")
            a("v_lshlrev_b32 v4, 2, v4")
            for j in range(8):
                a(f"ds_bpermute_b32 v{16+j}, v4, v{8+j}")
            a("s_waitcnt lgkmcnt(0)")
            for j in range(8):
                a(f"v_add_f32 v{8+j}, v{8+j}, v{16+j}")
        a("v_lshlrev_b32 v4, 5, v3")
        a("s_lshl_b32 s3, s30, 7")
        a("v_add_u32 v4, s3, v4")
        a("ds_write_b128 v4, v[8:11]")
        a("ds_write_b128 v4, v[12:15] offset:16")
        a("s_waitcnt lgkmcnt(0)")
        a("s_barrier")
        a("s_cmp_lg_u32 s30, 0")
        a(f"s_cbranch_scc1 {end}")
        a("v_and_b32 v4, 31, v1")
        a("v_lshlrev_b32 v4, 2, v4")
        for w in range(4):
            a(f"ds_read_b32 v{8+w}, v4 offset:{128*w}")
        a("s_lshl_b32 s3, s2, 7")
        a("v_add_u32 v4, s3, v4")
        a("s_waitcnt lgkmcnt(0)")
        a("v_add_f32 v8, v8, v9")
        a("v_add_f32 v10, v10, v11")
        a("v_add_f32 v8, v8, v10")
        a("buffer_store_dword v8, v4, s[8:11], 0 offen")
        a(f"s_branch {end}")
        a.label(lab_att)
    a("s_lshl_b32 s3, s2, 2")
    a("s_add_u32 s92, s3, s30")
    a("s_and_b32 s28, s2, 31")
    a("s_lshr_b32 s29, s2, 5")
    a("s_lshl_b32 s39, s29, 7")
    a("s_sub_u32 s39, s39, 256")
    a("s_lshl_b32 s3, s30, 5")
    a("s_add_u32 s32, s39, s3")
    a("s_add_u32 s31, s32, 256")
    a("s_lshl_b32 s33, s28, 6")
    a(f"s_add_u32 s35, s33, {2*D*2}")
    a(f"s_add_u32 s36, s33, {D*2}")
    a("v_and_b32 v2, 31, v1")
    a("v_lshrrev_b32 v3, 5, v1")
    a("v_add_u32 v4, s31, v2")
    a(f"v_mul_u32_u24 v4, {QKV_ROW}, v4")
    a("v_lshl_add_u32 v4, v3, 4, v4")
    a("v_add_u32 v4, s33, v4")
    a("s_waitcnt lgkmcnt(0)")
    srd(a, 4, 24, WS_QKV, S * 3 * D * 2)
    srd(a, 8, 24, WS_O, S * D * 2)
    a("v_lshrrev_b32 v5, 2, v1")
    a("v_and_b32 v6, 3, v1")
    a("v_bfe_u32 v7, v1, 4, 2")
    a("v_xor_b32 v7, v7, v6")
    a("s_mul_i32 s3, s30, 96")
    a("s_add_u32 s3, s3, s39")
    a("s_mul_i32 s34, s30, 6144")
    for p in range(6):
        a(f"v_add_u32 v16, {16*p}, v5")
        a("v_add_u32 v16, s3, v16")
        a("v_max_i32 v16, 0, v16")
        a(f"v_mul_u32_u24 v16, {QKV_ROW}, v16")
        a("v_lshl_add_u32 v17, v7, 4, v16")
        a("v_add_u32 v17, s36, v17")
        a(f"s_add_u32 m0, s34, {p*1024}")
        a("v_lshl_add_u32 v16, v6, 4, v16")
        a(f"buffer_load_dwordx4 v17, s[4:7], 0 offen lds")
        a("v_add_u32 v16, s35, v16")
        a(f"s_add_u32 m0, s34, {KLDS + p*1024}")
        a("s_nop 0")
        a(f"buffer_load_dwordx4 v16, s[4:7], 0 offen lds")
    a("buffer_load_dwordx4 v[8:11], v4, s[4:7], 0 offen")
    a("buffer_load_dwordx4 v[12:15], v4, s[4:7], 0 offen offset:32")
    KF = 16
    npl = tail_prefetch(a, 92, 1, pf, 7, 240) if pf else 0
    a("v_bfe_u32 v5, v1, 2, 2")
    a("v_xor_b32 v5, v5, v3")
    a("v_lshlrev_b32 v6, 6, v2")
    a("s_lshl_b32 s34, s30, 11")
    a("v_add_u32 v6, s34, v6")
    a("v_lshl_add_u32 v88, v5, 4, v6")
    a("v_xor_b32 v5, 2, v5")
    a("v_lshl_add_u32 v89, v5, 4, v6")
    a(f"s_add_u32 s34, s34, {KLDS}")
    a(f"s_waitcnt vmcnt({npl})")
    a("s_barrier")
    for t_ in range(9):
        a(f"ds_read_b128 {v(KF+8*t_,4)}, v88 offset:{2048*t_}")
        a(f"ds_read_b128 {v(KF+8*t_+4,4)}, v89 offset:{2048*t_}")
    SC = 96
    a("v_mov_b32 v7, 0xf149f2ca")
    for t in range(9):
        a(f"s_waitcnt lgkmcnt({min(15, 2*(8-t))})")
        if t < 8:
            lab_inv = a.newlabel("L_inv"); lab_done = a.newlabel("L_tdone")
            a(f"s_add_i32 s3, s32, {32*t}")
            a("s_cmp_lt_i32 s3, 0")
            a(f"s_cbranch_scc1 {lab_inv}")
        a(f"v_mfma_f32_32x32x16_bf16 {v(SC+16*t,16)}, {v(KF+8*t,4)}, v[8:11], 0")
        a(f"v_mfma_f32_32x32x16_bf16 {v(SC+16*t,16)}, {v(KF+8*t+4,4)}, v[12:15], {v(SC+16*t,16)}")
        if t < 8:
            a(f"s_branch {lab_done}")
            a.label(lab_inv)
            for r in range(16):
                a(f"v_mov_b32 v{SC+16*t+r}, v7")
            a.label(lab_done)
    a("v_lshlrev_b32 v5, 2, v3")
    a("v_sub_u32 v5, v2, v5")
    a("s_nop 7")
    a("s_nop 7")
    for r in range(16):
        c = (r & 3) + 8 * (r >> 2)
        a(f"v_cmp_gt_i32 vcc, {c}, v5")
        a(f"v_cmp_le_i32 s[36:37], {c}, v5")
        a("s_nop 0")
        a(f"v_cndmask_b32 v{SC+r}, v7, v{SC+r}, vcc")
        a(f"v_cndmask_b32 v{SC+128+r}, v7, v{SC+128+r}, s[36:37]")
    a(f"v_max3_f32 v4, v{SC}, v{SC+1}, v{SC+2}")
    a(f"v_max3_f32 v6, v{SC+3}, v{SC+4}, v{SC+5}")
    for i in range(6, 144, 4):
        a(f"v_max3_f32 v4, v4, v{SC+i}, v{SC+i+1}")
        if i + 3 < 144:
            a(f"v_max3_f32 v6, v6, v{SC+i+2}, v{SC+i+3}")
    a("v_max_f32 v4, v4, v6")
    a("v_xor_b32 v88, 32, v1")
    a("v_lshlrev_b32 v88, 2, v88")
    a("ds_bpermute_b32 v89, v88, v4")
    a("s_waitcnt lgkmcnt(0)")
    a("v_max_f32 v4, v4, v89")
    sc = (DH ** -0.5) * math.log2(math.e)
    sc_bits = struct.unpack("<I", struct.pack("<f", sc))[0]
    a(f"s_mov_b32 s38, {sc_bits}")
    a("v_mul_f32 v4, s38, v4")
    sums = [5, 6, 90, 91]
    for sreg in sums:
        a(f"v_mov_b32 v{sreg}, 0")
    for g in range(0, 144, 4):
        for j in range(4):
            a(f"v_fma_f32 v{SC+g+j}, v{SC+g+j}, s38, -v4")
        for j in range(4):
            a(f"v_exp_f32 v{SC+g+j}, v{SC+g+j}")
        if g >= 4:
            for j in range(4):
                a(f"v_add_f32 v{sums[j]}, v{sums[j]}, v{SC+g-4+j}")
            tt, jj = divmod(g - 4, 16)
            a(f"v_cvt_pk_bf16_f32 v{KF+8*tt+jj//2}, v{SC+g-4}, v{SC+g-3}")
            a(f"v_cvt_pk_bf16_f32 v{KF+8*tt+jj//2+1}, v{SC+g-2}, v{SC+g-1}")
    a("s_nop 0")
    g = 144
    for j in range(4):
        a(f"v_add_f32 v{sums[j]}, v{sums[j]}, v{SC+g-4+j}")
    tt, jj = divmod(g - 4, 16)
    a(f"v_cvt_pk_bf16_f32 v{KF+8*tt+jj//2}, v{SC+g-4}, v{SC+g-3}")
    a(f"v_cvt_pk_bf16_f32 v{KF+8*tt+jj//2+1}, v{SC+g-2}, v{SC+g-1}")
    a("v_add_f32 v5, v5, v6")
    a("v_add_f32 v90, v90, v91")
    a("v_add_f32 v5, v5, v90")
    a("ds_bpermute_b32 v89, v88, v5")
    a("v_bfe_u32 v6, v1, 2, 2")
    a("v_lshl_add_u32 v6, v3, 2, v6")
    a("v_lshlrev_b32 v6, 6, v6")
    a("v_bfe_u32 v7, v1, 4, 1")
    a("v_lshl_add_u32 v6, v7, 5, v6")
    a("v_and_b32 v7, 3, v1")
    a("v_lshl_add_u32 v6, v7, 3, v6")
    a("v_add_u32 v6, s34, v6")
    OA = SC
    VF = SC + 16
    a(f"s_waitcnt lgkmcnt(0)")
    a("v_add_f32 v5, v5, v89")
    a("v_rcp_f32 v5, v5")
    for t in range(9):
        for sidx in range(2):
            f = VF + 4 * (2 * t + sidx)
            base = (32 * t + 16 * sidx) * 64
            a(f"ds_read_b64_tr_b16 {v(f,2)}, v6 offset:{base}")
            a(f"ds_read_b64_tr_b16 {v(f+2,2)}, v6 offset:{base+8*64}")
    first = True
    for t in range(9):
        for sidx in range(2):
            f = VF + 4 * (2 * t + sidx)
            idx = 2 * t + sidx
            rem = 36 - 2 * (idx + 1)
            a(f"s_waitcnt lgkmcnt({min(rem,15)})")
            a(f"v_mfma_f32_32x32x16_bf16 {v(OA,16)}, {v(f,4)}, {v(KF+8*t+4*sidx,4)}, {'0' if first else v(OA,16)}")
            first = False
    a("v_add_u32 v7, s31, v2")
    a(f"v_lshlrev_b32 v7, 11, v7")
    a("v_lshl_add_u32 v7, v3, 3, v7")
    a("v_add_u32 v7, s33, v7")
    a("s_nop 7")
    a("s_nop 7")
    for g in range(4):
        for r in range(4):
            a(f"v_mul_f32 v{OA+4*g+r}, v{OA+4*g+r}, v5")
        a(f"v_cvt_pk_bf16_f32 v{OA+4*g}, v{OA+4*g}, v{OA+4*g+1}")
        a(f"v_cvt_pk_bf16_f32 v{OA+4*g+1}, v{OA+4*g+2}, v{OA+4*g+3}")
        a(f"buffer_store_dwordx2 {v(OA+4*g,2)}, v7, s[8:11], 0 offen offset:{16*g}")
    a.label(end)
    a("s_endpgm")
    return dict(name=name, grid=nwg + npf, block=256, lds=lds, desc=kernel_desc(name, 244))


def main():
    a = Asm()
    ks = []
    FUSE = 'nofuse' not in EXP
    SPLIT = 'split' in EXP
    L2PF = int(os.environ.get('L2PF', '0'))
    SKLO = int(os.environ.get('SKLO', '23'))
    if FUSE:
        ks.append(gen_gemm(a, "qkv_kernel", 3 * D, D, 192, 0, "wqkv", "plain", "ws", WS_QKV, NSTAGE=4, RA=8, RBN=4,
                           ln='single', a_arg='x'))
    else:
        ks.append(gen_ln(a, "ln1_kernel", "x", 0, WS_Y1, False, pf=[("wqkv", D*3*D*2), ("wo", D*D*2)]))
        ks.append(gen_gemm(a, "qkv_kernel", 3 * D, D, 192, WS_Y1, "wqkv", "plain", "ws", WS_QKV, NSTAGE=4, RA=8, RBN=4))
    ks.append(gen_attn(a, "attn_kernel", pf=[("w1", D*F*2), ("w2", F*D*2), ("wo", D*D*2)] if FUSE else [("w1", D*F*2), ("w2", F*D*2)], colsum=FUSE))
    ks.append(gen_gemm(a, "oproj_kernel", D, D, 64, WS_O, "wo", "plain", "ws", WS_H, res_arg="x", NSTAGE=6, stats_out=FUSE))
    if FUSE:
        ks.append(gen_gemm(a, "ffn1_kernel", F, D, 224, WS_H, "w1", "gelu", "ws", WS_H1, bias_arg="b1", RA=8, RBN=4,
                           ln='double', pre=True, ldo=LDH1, zero_flags=SPLIT))
    else:
        ks.append(gen_ln(a, "ln2_kernel", "ws", WS_H, WS_Y2, True))
        ks.append(gen_gemm(a, "ffn1_kernel", F, D, 224, WS_Y2, "w1", "gelu", "ws", WS_H1, bias_arg="b1", RA=8, RBN=4))
    if SPLIT:
        ks.append(gen_gemm(a, "ffn2_kernel", D, F, 128, WS_H1, "w2", "plain", "out", 0, res_arg="ws", res_off=WS_H,
                           bias_arg="b2", NSTAGE=5, lda=LDH1, RA=4, RBN=4, splitk=(SKLO, 56 - SKLO)))
    else:
        ks.append(gen_gemm(a, "ffn2_kernel", D, F, 64, WS_H1, "w2", "plain", "out", 0, res_arg="ws", res_off=WS_H,
                           bias_arg="b2", NSTAGE=6, lda=LDH1, l2pf=L2PF, RA=int(os.environ.get('F2RA','4')), RBN=32//int(os.environ.get('F2RA','4'))))
    hdr = []
    for k in ks:
        hdr.append(f"; @launch kernel={k['name']} grid=({k['grid']},1,1) block=({k['block']},1,1) lds={k['lds']}")
    txt = "\n".join(hdr) + "\n"
    txt += '.amdgcn_target "amdgcn-amd-amdhsa--gfx950"\n.text\n'
    txt += "\n".join(a.lines) + "\n"
    txt += '.section .rodata,"a"\n'
    for k in ks:
        txt += ".p2align 6\n" + k["desc"]
    open(OUT, "w").write(txt)


if __name__ == "__main__":
    main()
```

```python
import sys, math, os
EXP=os.environ.get('EXP','')
STMOD=os.environ.get('STMOD','sc0 sc1')
STALL=os.environ.get('STALL','')
RPM=int(os.environ.get('RPM','2'))

OUT = os.environ.get("OUTF","sequential_preLN__sliding_block__mixer_channel_mlp__prompt.s")

S = 2048; D = 1024; F = 3584; H = 32; DH = 32; WIN = 256
ARG = dict(x=0, wqkv=8, wo=16, bx=24, w1=32, b1=40, w2=48, b2=56, out=64, dbg=72, ws=80)
MB = 1 << 20
WS_Y1 = 0
WS_QKV = 4 * MB
WS_O = 16 * MB
WS_H = 20 * MB
WS_Y2 = 24 * MB
WS_H1 = 28 * MB
WS_ST = 0
WS_CS = 1 * MB
WS_SIZE = 256 * MB
WS_FLAG = 2 * MB
WS_PART = 64 * MB
LDH1 = F * 2 + int(os.environ.get('PADH1', '0'))


class Asm:
    def __init__(self):
        self.lines = []
        self.nlab = 0

    def __call__(self, s):
        self.lines.append("    " + s)

    def label(self, l):
        self.lines.append(l + ":")

    def newlabel(self, base="L"):
        self.nlab += 1
        return f"{base}_{self.nlab}"

    def c(self, s):
        self.lines.append("    ; " + s)


def v(i, n=1):
    return f"v{i}" if n == 1 else f"v[{i}:{i+n-1}]"


def s(i, n=1):
    return f"s{i}" if n == 1 else f"s[{i}:{i+n-1}]"


def srd(a, d, base, off, nbytes):
    if off:
        a(f"s_add_u32 s{d}, s{base}, {off}")
        a(f"s_addc_u32 s{d+1}, s{base+1}, 0")
    else:
        a(f"s_mov_b32 s{d}, s{base}")
        a(f"s_mov_b32 s{d+1}, s{base+1}")
    a(f"s_and_b32 s{d+1}, s{d+1}, 0xffff")
    a(f"s_mov_b32 s{d+2}, {nbytes}")
    a(f"s_mov_b32 s{d+3}, 0x00020000")


def hex_f32(x):
    import struct
    return hex(struct.unpack('<I', struct.pack('<f', x))[0])


def kernel_header(a, name):
    a.lines.append(".p2align 8")
    a.lines.append(f".globl {name}")
    a.lines.append(f".type {name},@function")
    a.label(name)


def kernel_desc(name, nvgpr, nsgpr=102, accum=None):
    nv = ((nvgpr + 7) // 8) * 8
    acc = accum if accum is not None else ((nvgpr + 3) // 4) * 4
    return f""".amdhsa_kernel {name}
  .amdhsa_next_free_vgpr {nv if accum is None else nvgpr}
  .amdhsa_next_free_sgpr {nsgpr}
  .amdhsa_accum_offset {min(acc,256)}
  .amdhsa_group_segment_fixed_size 0
  .amdhsa_kernarg_size 88
  .amdhsa_user_sgpr_count 2
  .amdhsa_user_sgpr_kernarg_segment_ptr 1
  .amdhsa_system_sgpr_workgroup_id_x 1
.end_amdhsa_kernel
"""


def gen_prefetch(a, regions, end_label):
    CH = 32768
    counts = [nbytes // CH for _, nbytes in regions]
    for (_, nbytes), c in zip(regions, counts):
        assert c * CH == nbytes
    total = sum(counts)
    skip = a.newlabel("L_nopf")
    a(f"s_cmp_ge_u32 s2, {total}")
    a(f"s_cbranch_scc1 {skip}")
    base = 0
    for (arg, nbytes), c in zip(regions, counts):
        nxt = a.newlabel("L_pfn")
        a(f"s_cmp_ge_u32 s2, {base + c}")
        a(f"s_cbranch_scc1 {nxt}")
        a(f"s_load_dwordx2 s[4:5], s[0:1], {ARG[arg]}")
        a(f"s_sub_u32 s3, s2, {base}")
        a("s_lshl_b32 s3, s3, 15")
        a("v_lshlrev_b32 v1, 4, v0")
        a("v_add_u32 v1, s3, v1")
        a("s_waitcnt lgkmcnt(0)")
        srd(a, 8, 4, 0, nbytes)
        for j in range(8):
            a(f"v_add_u32 v2, {4096*j}, v1")
            a(f"buffer_load_dwordx4 {v(4+4*j,4)}, v2, s[8:11], 0 offen")
        a("s_waitcnt vmcnt(0)")
        a(f"s_branch {end_label}")
        a.label(nxt)
        base += c
    a.label(skip)
    a(f"s_sub_u32 s2, s2, {total}")
    return total


def tail_prefetch(a, task, lane, regions, vtmp, vdst):
    ntask = 2048
    total = sum(n for _, n in regions)
    per = total // ntask
    assert per * ntask == total and per % 1024 == 0
    nld = per // 1024
    base = 0
    done = a.newlabel("L_pfdone")
    for arg, nbytes in regions:
        cnt = nbytes // per
        assert cnt * per == nbytes
        nxt = a.newlabel("L_pfn")
        a(f"s_cmp_ge_u32 s{task}, {base + cnt}")
        a(f"s_cbranch_scc1 {nxt}")
        a(f"s_load_dwordx2 s[94:95], s[0:1], {ARG[arg]}")
        a(f"s_sub_u32 s93, s{task}, {base}")
        a(f"s_mul_i32 s93, s93, {per}")
        a(f"v_lshlrev_b32 {v(vtmp)}, 4, {v(lane)}")
        a(f"v_add_u32 {v(vtmp)}, s93, {v(vtmp)}")
        a("s_waitcnt lgkmcnt(0)")
        srd(a, 96, 94, 0, nbytes)
        for j in range(nld):
            if j and j % 4 == 0:
                a(f"v_add_u32 {v(vtmp)}, 4096, {v(vtmp)}")
            a(f"buffer_load_dwordx4 {v(vdst,4)}, {v(vtmp)}, s[96:99], 0 offen offset:{1024*(j%4)}")
        a(f"s_branch {done}")
        a.label(nxt)
        base += cnt
    a.label(done)
    return nld

def gen_ln(a, name, src_arg, src_off, dst_off, double, pf=None):
    nwg = S // 4
    kernel_header(a, name)
    end = a.newlabel("L_end")
    npf = 0
    a(f"s_cmp_ge_u32 s2, {nwg}")
    a(f"s_cbranch_scc1 {end}")
    a(f"s_load_dwordx2 s[4:5], s[0:1], {ARG[src_arg]}")
    a(f"s_load_dwordx2 s[6:7], s[0:1], {ARG['ws']}")
    a("v_lshrrev_b32 v1, 6, v0")
    a("v_and_b32 v2, 63, v0")
    a("s_lshl_b32 s3, s2, 2")
    a("v_add_u32 v1, s3, v1")
    a("v_lshlrev_b32 v3, 11, v1")
    a("v_lshl_add_u32 v3, v2, 5, v3")
    for i, m in enumerate([1, 2, 4, 8, 16, 32]):
        a(f"v_xor_b32 v{12+i}, {m}, v2")
        a(f"v_lshlrev_b32 v{12+i}, 2, v{12+i}")
    a("s_waitcnt lgkmcnt(0)")
    srd(a, 8, 4, src_off, S * D * 2)
    srd(a, 12, 6, dst_off, S * D * 2)
    a("buffer_load_dwordx4 v[4:7], v3, s[8:11], 0 offen")
    a("buffer_load_dwordx4 v[8:11], v3, s[8:11], 0 offen offset:16")
    npl = 0
    if pf:
        a("v_readfirstlane_b32 s92, v1")
        a("s_nop 3")
        npl = tail_prefetch(a, 92, 2, pf, 44, 48)
    a(f"s_waitcnt vmcnt({npl})")

    def unpack():
        for i in range(8):
            a(f"v_lshlrev_b32 v{20+2*i}, 16, v{4+i}")
            a(f"v_and_b32 v{21+2*i}, 0xffff0000, v{4+i}")

    def bfly():
        for i in range(6):
            a(f"ds_bpermute_b32 v41, v{12+i}, v40")
            a("s_waitcnt lgkmcnt(0)")
            a("v_add_f32 v40, v40, v41")

    def norm():
        a("v_add_f32 v40, v20, v21")
        for i in range(2, 16):
            a(f"v_add_f32 v40, v40, v{20+i}")
        bfly()
        a("v_mul_f32 v40, 0x3a800000, v40")
        for i in range(16):
            a(f"v_sub_f32 v{20+i}, v{20+i}, v40")
        a("v_mul_f32 v40, v20, v20")
        for i in range(1, 16):
            a(f"v_fmac_f32 v40, v{20+i}, v{20+i}")
        bfly()
        a("v_mov_b32 v42, 0x3727c5ac")
        a("v_fma_f32 v40, v40, v43, v42")
        a("v_rsq_f32 v40, v40")
        a("s_nop 0")
        for i in range(16):
            a(f"v_mul_f32 v{20+i}, v{20+i}, v40")
        for i in range(8):
            a(f"v_cvt_pk_bf16_f32 v{4+i}, v{20+2*i}, v{21+2*i}")

    a("v_mov_b32 v43, 0x3a800000")
    unpack()
    norm()
    if double:
        unpack()
        norm()
    a("buffer_store_dwordx4 v[4:7], v3, s[12:15], 0 offen")
    a("buffer_store_dwordx4 v[8:11], v3, s[12:15], 0 offen offset:16")
    a.label(end)
    a("s_endpgm")
    return dict(name=name, grid=nwg + npf, block=256, lds=0, desc=kernel_desc(name, 56))


def gen_gemm(a, name, N, K, BN, a_off, w_arg, epi, out_arg, out_off, res_arg=None, res_off=0,
             bias_arg=None, BM=128, NSTAGE=3, RA=4, RBN=8, ln=None, a_arg='ws', pre=False, stats_out=False, lda=None, ldo=None, splitk=None, zero_flags=False, l2pf=0):
    import struct
    M = S
    BK = 64
    lda = lda or K * 2
    ldo = ldo or N * 2
    NT_M = M // BM
    NT_N = N // BN
    ntiles = NT_M * NT_N
    MT = BM // 2 // 16
    NTW = BN // 2 // 16
    RB = {64: 128, 128: 128, 192: 128, 96: 64, 224: 448, 112: 32}[BN]
    ABYTES = BM * BK * 2
    BBYTES = BK * BN * 2
    STAGE = ABYTES + BBYTES
    PA = ABYTES // 1024 // 4
    PB = BBYTES // 1024 // 4
    assert PA * 4096 == ABYTES and PB * 4096 == BBYTES
    P = PA + PB
    NS = K // BK
    if splitk:
        NSLO, NSHI = splitk
        assert NSLO + NSHI == NS and (NSLO - NSHI) % NSTAGE == 0
        NS = NSHI
        ntiles *= 2
    lds = STAGE * NSTAGE
    CROW = BN * 2 + 16
    CSZ = BM * CROW
    LASTB = (NS - 1) % NSTAGE
    TBL = 2048 if (ln and not pre) else 0
    CBASE = 0 if LASTB * STAGE >= CSZ + TBL else (LASTB + 1) * STAGE
    assert CBASE + CSZ + TBL <= lds
    EPI = lds
    st_res = bool(res_arg) and not splitk
    if splitk:
        DONE = CBASE + CSZ
        assert DONE + 16 <= (LASTB * STAGE if CBASE == 0 else lds)
    st_bias = pre
    if st_res: lds += BM * BN * 2
    if st_bias: lds += 3072 + 4096
    assert lds <= 163840
    if pre:
        CTAB = EPI + 1024; RTAB = EPI + 2048
    else:
        RTAB = CBASE + CSZ; CTAB = RTAB + 1024
    NEX = (BM * BN * 2 // 4096 if st_res else 0)
    PPR = RB // 32
    lg_ppr = int(math.log2(PPR)) if RB != 448 else 0

    vA = list(range(2, 2 + PA))
    vB = list(range(2 + PA, 2 + PA + PB))
    nxt = 2 + PA + PB
    vXb = [nxt, nxt + 1]; nxt += 2
    vWb = list(range(nxt, nxt + NTW)); nxt += NTW
    vXc = [nxt, nxt + 1]; nxt += 2
    vWc = list(range(nxt, nxt + NTW)); nxt += NTW
    vT = list(range(nxt, nxt + 8)); nxt += 8
    nxt = (nxt + 3) // 4 * 4
    FX = [nxt, nxt + 4 * MT]; nxt += 8 * MT
    FW = [nxt, nxt + 4 * NTW]; nxt += 8 * NTW
    ACC = nxt; nxt += 4 * MT * NTW
    PBI = nxt
    if bias_arg and not pre: nxt += 2 * NTW
    if l2pf:
        nxt = (nxt + 3) // 4 * 4
        PFD = nxt; PFV = nxt + 4; nxt += 5
    if splitk:
        PRT = nxt; nxt += 4 * MT * NTW
        PFL = nxt; PFA = nxt + 1; PPA = nxt + 2; nxt += 3
    nvgpr = nxt
    assert nvgpr <= 256
    t0, t1, t2, t3 = vT[0], vT[1], vT[2], vT[3]

    def acc(nt, mt):
        return ACC + 4 * (nt * MT + mt)

    def stamp(i):
        if 'stamp' in EXP:
            if 'rt' in EXP and i in (1, 6):
                a(f"s_memrealtime s[{60+2*i}:{61+2*i}]")
                a(f"s_memtime s[{62 if i == 1 else 70}+0:{63 if i == 1 else 71}]".replace("+0","")) if False else None
            else:
                a(f"s_memtime s[{60+2*i}:{61+2*i}]")
            if i >= 6: a("s_waitcnt lgkmcnt(0)")

    def stamp_out():
        if 'stamp' not in EXP: return
        a("s_waitcnt lgkmcnt(0)")
        srd(a, 80, 24, 200 * MB, 1 << 20)
        a("s_lshl_b32 s3, s2, 3")
        a("s_add_u32 s3, s3, s49")
        a("s_lshl_b32 s3, s3, 6")
        a("v_mov_b32 v2, s3")
        for i in range(8):
            a(f"v_mov_b32 v4, s{60+2*i}")
            a(f"v_mov_b32 v5, s{61+2*i}")
            a(f"buffer_store_dwordx2 v[4:5], v2, s[80:83], 0 offen offset:{8*i}")
            a("s_nop 1")

    def wfrag_addr_common():
        a(f"v_lshrrev_b32 {v(t1)}, 4, v1")
        a(f"v_bfe_u32 {v(t0)}, v1, 2, 2")
        a(f"v_lshl_add_u32 {v(t2)}, {v(t1)}, 3, {v(t0)}")
        if RB == 256:
            a(f"v_and_b32 {v(t3)}, 1, {v(t1)}")
            a(f"v_lshl_add_u32 {v(t3)}, {v(t3)}, 2, {v(t0)}")
        elif RB == 128:
            a(f"v_and_b32 {v(t3)}, 1, {v(t1)}")
            a(f"v_lshrrev_b32 {v(t0)}, 1, {v(t0)}")
            a(f"v_lshl_add_u32 {v(t3)}, {v(t3)}, 1, {v(t0)}")
        elif RB in (64, 448):
            a(f"v_and_b32 {v(t3)}, 1, {v(t1)}")
        else:
            a(f"v_mov_b32 {v(t3)}, 0")
        a(f"v_mul_u32_u24 {v(t2)}, {RB}, {v(t2)}")
        a(f"v_and_b32 {v(t0)}, 3, v1")
        a(f"v_lshl_add_u32 {v(t2)}, {v(t0)}, 3, {v(t2)}")
        a(f"v_add_u32 {v(t2)}, {ABYTES}, {v(t2)}")

    def wfrag_addr(dst):
        if RB == 448:
            a("s_mov_b32 s47, 0")
        elif PPR > 1:
            a(f"s_lshr_b32 s47, s46, {lg_ppr}")
            a(f"s_and_b32 s46, s46, {PPR-1}")
        else:
            a("s_mov_b32 s47, s46")
            a("s_mov_b32 s46, 0")
        a(f"s_mul_i32 s47, s47, {64*RB}")
        a(f"v_xor_b32 {v(t0)}, s46, {v(t3)}")
        a(f"v_lshl_add_u32 {v(t0)}, {v(t0)}, 5, {v(t2)}")
        a(f"v_add_u32 {v(dst)}, s47, {v(t0)}")

    kernel_header(a, name)
    end = a.newlabel("L_end")
    stamp(0)
    lab_loader = a.newlabel("L_loader")
    lab_store = a.newlabel("L_store")
    a(f"s_cmp_ge_u32 s2, {ntiles}")
    a(f"s_cbranch_scc1 {end}")
    a(f"s_load_dwordx2 s[24:25], s[0:1], {ARG['ws']}")
    a(f"s_load_dwordx2 s[58:59], s[0:1], {ARG[a_arg]}")
    a(f"s_load_dwordx2 s[26:27], s[0:1], {ARG[w_arg]}")
    a(f"s_load_dwordx2 s[34:35], s[0:1], {ARG[out_arg]}")
    if res_arg:
        a(f"s_load_dwordx2 s[36:37], s[0:1], {ARG[res_arg]}")
    if bias_arg:
        a(f"s_load_dwordx2 s[38:39], s[0:1], {ARG[bias_arg]}")
    assert ntiles == 256 and RA * RBN == (16 if splitk else 32) and NT_M % RA == 0 and NT_N % RBN == 0
    XB = NT_N // RBN
    a("s_and_b32 s3, s2, 7")
    a("s_lshr_b32 s46, s2, 3")
    if splitk:
        a("s_lshr_b32 s92, s46, 4")
        a("s_and_b32 s46, s46, 15")
        a("s_lshl_b32 s96, s3, 4")
        a("s_add_u32 s96, s96, s46")
        a("s_cmp_eq_u32 s92, 0")
        a(f"s_cselect_b32 s93, {NSLO}, {NSHI}")
        a("s_mov_b32 s94, 1")
    a(f"s_lshr_b32 s28, s3, {int(math.log2(XB))}")
    a(f"s_and_b32 s29, s3, {XB-1}")
    a(f"s_mul_i32 s28, s28, {RA}")
    a(f"s_mul_i32 s29, s29, {RBN}")
    a(f"s_lshr_b32 s3, s46, {int(math.log2(RBN))}")
    a("s_add_u32 s28, s28, s3")
    a(f"s_and_b32 s3, s46, {RBN-1}")
    a("s_add_u32 s29, s29, s3")
    a("v_and_b32 v1, 63, v0")
    a(f"v_lshrrev_b32 {v(vT[0])}, 6, v0")
    a("s_nop 0")
    a(f"v_readfirstlane_b32 s49, {v(vT[0])}")
    a("s_nop 3")
    a("s_and_b32 s30, s49, 3")
    a("s_lshr_b32 s44, s30, 1")
    a("s_and_b32 s45, s30, 1")

    def build_srds():
        a("s_waitcnt lgkmcnt(0)")
        srd(a, 4, 58, a_off, M * lda)
        srd(a, 8, 26, 0, K * N * 2)
        srd(a, 12, 34, out_off, M * ldo)
        if res_arg:
            srd(a, 16, 36, res_off, M * N * 2)
        if bias_arg:
            srd(a, 20, 38, 0, N * 2)
        if pre or stats_out:
            srd(a, 84, 24, WS_ST, S * 128)
        if pre:
            srd(a, 88, 24, WS_CS, 16 * N * 4)
        if splitk:
            srd(a, 84, 24, WS_PART, 128 * 65536)
            srd(a, 88, 24, WS_FLAG, 512)

    a("s_cmp_ge_u32 s49, 4")
    a(f"s_cbranch_scc1 {lab_loader}")

    a(f"v_and_b32 {v(t0)}, 15, v1")
    a("s_lshl_b32 s3, s44, 6")
    a(f"v_add_u32 {v(t0)}, s3, {v(t0)}")
    a(f"v_lshlrev_b32 {v(t0)}, 7, {v(t0)}")
    a(f"v_lshrrev_b32 {v(t1)}, 4, v1")
    a(f"v_bfe_u32 {v(t2)}, v1, 1, 3")
    a(f"v_xor_b32 {v(t3)}, {v(t1)}, {v(t2)}")
    a(f"v_lshl_add_u32 {v(vXb[0])}, {v(t3)}, 4, {v(t0)}")
    a(f"v_xor_b32 {v(t3)}, 4, {v(t3)}")
    a(f"v_lshl_add_u32 {v(vXb[1])}, {v(t3)}, 4, {v(t0)}")
    wfrag_addr_common()
    a(f"s_mul_i32 s3, s45, {NTW}")
    for nt in range(NTW):
        a(f"s_add_u32 s46, s3, {nt}")
        wfrag_addr(vWb[nt])
    for i in range(4 * MT * NTW):
        a(f"v_mov_b32 v{ACC+i}, 0")
    a("s_mov_b32 s42, 0")
    build_srds()
    if bias_arg and not pre:
        a(f"v_lshrrev_b32 {v(t0)}, 4, v1")
        a(f"v_lshlrev_b32 {v(t0)}, 3, {v(t0)}")
        a(f"s_mul_i32 s3, s29, {BN*2}")
        a(f"s_mul_i32 s46, s45, {BN}")
        a("s_add_u32 s3, s3, s46")
        for nt in range(NTW):
            a(f"buffer_load_dwordx2 {v(PBI+2*nt,2)}, {v(t0)}, s[20:23], s3 offen offset:{32*nt}")

    def set_cur():
        for kk in range(2):
            a(f"v_add_u32 {v(vXc[kk])}, s42, {v(vXb[kk])}")
        for nt in range(NTW):
            a(f"v_add_u32 {v(vWc[nt])}, s42, {v(vWb[nt])}")
        a(f"s_add_u32 s42, s42, {STAGE}")
        a(f"s_cmp_ge_u32 s42, {STAGE*NSTAGE}")
        a("s_cselect_b32 s42, 0, s42")

    def read_list(kk, f):
        if 'noreads' in EXP: return []
        L = []
        for nt in range(NTW):
            if nt < MT:
                L.append(f"ds_read_b128 {v(FX[f]+4*nt,4)}, {v(vXc[kk])} offset:{nt*2048}")
            for rd in range(2):
                L.append(f"ds_read_b64_tr_b16 {v(FW[f]+4*nt+2*rd,2)}, {v(vWc[nt])} offset:{kk*32*RB+rd*4*RB}")
        for mt in range(NTW, MT):
            L.append(f"ds_read_b128 {v(FX[f]+4*mt,4)}, {v(vXc[kk])} offset:{mt*2048}")
        return L

    def mfma_list(f):
        if 'nomfma' in EXP: return []
        L = []
        for nt in range(NTW):
            for mt in range(MT):
                L.append(f"v_mfma_f32_16x16x32_bf16 {v(acc(nt,mt),4)}, {v(FW[f]+4*nt,4)}, {v(FX[f]+4*mt,4)}, {v(acc(nt,mt),4)}")
        return L

    def reads(kk, f):
        for x in read_list(kk, f): a(x)

    def mfmas(f):
        for x in mfma_list(f): a(x)

    def inter(kk, fr, fm):
        R = read_list(kk, fr); Mm = mfma_list(fm)
        rpm = RPM if NTW <= 4 else 1
        ri = 0
        for i in range(len(Mm)):
            a(Mm[i])
            for _ in range(rpm):
                if ri < len(R): a(R[ri]); ri += 1
        while ri < len(R): a(R[ri]); ri += 1

    if l2pf:
        NPA = RA * BM // 8
        NPW = BK * (RBN * BN * 2) // 1024
        WPR = RBN * BN * 2 // 1024
        assert NPA + NPW == 128 and WPR == 1
        lw = a.newlabel("L_pfw"); ld = a.newlabel("L_pfd")
        a("s_lshr_b32 s3, s2, 3")
        a("s_lshl_b32 s3, s3, 2")
        a("s_add_u32 s3, s3, s30")
        a(f"s_cmp_ge_u32 s3, {NPA}")
        a(f"s_cbranch_scc1 {lw}")
        a(f"s_lshr_b32 s46, s28, {int(math.log2(RA))}")
        a(f"s_mul_i32 s46, s46, {RA*BM}")
        a("s_lshl_b32 s3, s3, 3")
        a("s_add_u32 s3, s3, s46")
        a(f"v_lshrrev_b32 {v(PFV)}, 3, v1")
        a(f"v_add_u32 {v(PFV)}, s3, {v(PFV)}")
        a(f"v_mul_u32_u24 {v(PFV)}, {lda}, {v(PFV)}")
        a(f"v_and_b32 {v(t0)}, 7, v1")
        a(f"v_lshl_add_u32 {v(PFV)}, {v(t0)}, 4, {v(PFV)}")
        for i in range(4): a(f"s_mov_b32 s{84+i}, s{4+i}")
        a(f"s_mov_b32 s92, {l2pf*BK*2}")
        a(f"s_mov_b32 s93, {BK*2}")
        a(f"s_branch {ld}")
        a.label(lw)
        a(f"s_sub_u32 s3, s3, {NPA}")
        a(f"s_mul_i32 s3, s3, {N*2}")
        a(f"s_lshr_b32 s46, s29, {int(math.log2(RBN))}")
        a(f"s_mul_i32 s46, s46, {RBN*BN*2}")
        a("s_add_u32 s3, s3, s46")
        a(f"v_lshlrev_b32 {v(PFV)}, 4, v1")
        a(f"v_add_u32 {v(PFV)}, s3, {v(PFV)}")
        for i in range(4): a(f"s_mov_b32 s{84+i}, s{8+i}")
        a(f"s_mov_b32 s92, {l2pf*BK*N*2}")
        a(f"s_mov_b32 s93, {BK*N*2}")
        a.label(ld)
        a(f"s_mul_i32 s3, s93, {NSTAGE-1}")
        for j in range(NSTAGE - 1, l2pf):
            a(f"buffer_load_dwordx4 {v(PFD,4)}, {v(PFV)}, s[84:87], s3 offen")
            a("s_add_u32 s3, s3, s93")
    if splitk:
        a("s_xor_b32 s95, s92, 1")
        a(f"v_mov_b32 {v(PFL)}, 0")
        a("s_lshl_b32 s3, s96, 2")
        a(f"v_mov_b32 {v(PFA)}, s3")
        a("s_add_u32 s3, s3, s30")
        a("s_lshl_b32 s3, s3, 14")
        a(f"v_lshlrev_b32 {v(PPA)}, 4, v1")
        a(f"v_add_u32 {v(PPA)}, s3, {v(PPA)}")
    stamp(1)
    lab_cpass = a.newlabel("L_cpass")
    a.label(lab_cpass)
    a("s_barrier")
    stamp(2)
    set_cur()
    reads(0, 0)
    a("s_waitcnt lgkmcnt(0)")
    inter(1, 1, 0)
    a("s_waitcnt lgkmcnt(0)")
    if splitk: a("s_sub_u32 s48, s93, 1")
    else: a(f"s_mov_b32 s48, {NS-1}")
    loop = a.newlabel("L_cloop")
    a.label(loop)
    a("s_barrier")
    set_cur()
    inter(0, 0, 1)
    a("s_waitcnt lgkmcnt(0)")
    inter(1, 1, 0)
    if l2pf:
        a(f"buffer_load_dwordx4 {v(PFD,4)}, {v(PFV)}, s[84:87], s92 offen")
        a("s_add_u32 s92, s92, s93")
    if splitk:
        cskip = a.newlabel("L_cskip"); cpoll = a.newlabel("L_cpoll")
        a("s_cmp_lg_u32 s95, 0")
        a(f"s_cbranch_scc1 {cskip}")
        a(f"v_readfirstlane_b32 s3, {v(PFL)}")
        a("s_nop 3")
        a("s_cmp_eq_u32 s3, 0")
        a(f"s_cbranch_scc1 {cpoll}")
        a("s_mov_b32 s95, 1")
        for t_ in range(MT * NTW):
            a(f"s_mov_b32 s3, {1024*t_}")
            a(f"buffer_load_dwordx4 {v(PRT+4*t_,4)}, {v(PPA)}, s[84:87], s3 offen")
        a(f"s_branch {cskip}")
        a.label(cpoll)
        if 'forcefb' not in EXP: a(f"buffer_load_dword {v(PFL)}, {v(PFA)}, s[88:91], 0 offen sc0 sc1")
        a.label(cskip)
    a("s_waitcnt lgkmcnt(0)")
    a("s_sub_u32 s48, s48, 1")
    a("s_cmp_lg_u32 s48, 0")
    a(f"s_cbranch_scc1 {loop}")
    stamp(3)
    mfmas(1)
    if ln and not pre:
        a("s_barrier")
    if splitk:
        lab_hi = a.newlabel("L_hi"); lab_epi = a.newlabel("L_epi"); lab_fb = a.newlabel("L_fb")
        a("s_cmp_lg_u32 s92, 0")
        a(f"s_cbranch_scc1 {lab_hi}")
        a("s_nop 7")
        for t_ in range(MT * NTW):
            a(f"s_mov_b32 s3, {1024*t_}")
            a(f"buffer_store_dwordx4 {v(ACC+4*t_,4)}, {v(PPA)}, s[84:87], s3 offen sc0 sc1")
        a("s_waitcnt vmcnt(0)")
        a("s_barrier")
        a("s_cmp_lg_u32 s30, 0")
        a(f"s_cbranch_scc1 {end}")
        a(f"v_mov_b32 {v(t1)}, 1")
        a("s_mov_b64 exec, 1")
        a(f"buffer_store_dword {v(t1)}, {v(PFA)}, s[88:91], 0 offen sc0 sc1")
        a(f"s_branch {end}")
        a.label(lab_hi)
        a("s_lshl_b32 s3, s30, 2")
        a(f"s_add_u32 s3, s3, {DONE}")
        a(f"v_mov_b32 {v(t0)}, s3")
        a(f"v_mov_b32 {v(t1)}, s95")
        a(f"ds_write_b32 {v(t0)}, {v(t1)}")
        a("s_waitcnt lgkmcnt(0)")
        a("s_barrier")
        a("s_cmp_eq_u32 s94, 2")
        a(f"s_cbranch_scc1 {lab_epi}")
        a(f"v_mov_b32 {v(t1)}, {DONE}")
        a(f"ds_read_b128 {v(FX[0],4)}, {v(t1)}")
        a("s_waitcnt lgkmcnt(0)")
        a(f"v_and_b32 {v(FX[0])}, {v(FX[0])}, {v(FX[0]+1)}")
        a(f"v_and_b32 {v(FX[0]+2)}, {v(FX[0]+2)}, {v(FX[0]+3)}")
        a(f"v_and_b32 {v(FX[0])}, {v(FX[0])}, {v(FX[0]+2)}")
        a("s_nop 0")
        a(f"v_readfirstlane_b32 s3, {v(FX[0])}")
        a("s_nop 3")
        a("s_cmp_eq_u32 s3, 1")
        a(f"s_cbranch_scc0 {lab_fb}")
        a("s_waitcnt vmcnt(0)")
        for t_ in range(MT * NTW):
            for j in range(2):
                a(f"v_pk_add_f32 {v(ACC+4*t_+2*j,2)}, {v(ACC+4*t_+2*j,2)}, {v(PRT+4*t_+2*j,2)}")
        a(f"s_branch {lab_epi}")
        a.label(lab_fb)
        a("s_mov_b32 s94, 2")
        a("s_mov_b32 s95, 1")
        a(f"s_mov_b32 s93, {NSLO}")
        a("s_mov_b32 s42, 0")
        a("s_barrier")
        a(f"s_branch {lab_cpass}")
        a.label(lab_epi)
    RT = FX[0]; CS = RT + 8; BR = CS + 4 * NTW; BF = BR + 2 * NTW; GE = BF + 4 * NTW
    assert GE + 10 <= ACC
    a(f"v_and_b32 {v(t2)}, 15, v1")
    a("s_lshl_b32 s3, s44, 6")
    a(f"v_add_u32 {v(t2)}, s3, {v(t2)}")
    a(f"v_lshrrev_b32 {v(t3)}, 4, v1")
    a(f"s_mul_i32 s3, s45, {NTW*4}")
    a(f"v_add_u32 {v(t3)}, s3, {v(t3)}")
    if ln:
        a(f"v_lshlrev_b32 {v(t0)}, 3, {v(t2)}")
        a(f"v_add_u32 {v(t0)}, {RTAB}, {v(t0)}")
        for mt in range(MT):
            a(f"ds_read_b64 {v(RT+2*mt,2)}, {v(t0)} offset:{128*mt}")
        a(f"v_lshlrev_b32 {v(t0)}, 4, {v(t3)}")
        a(f"v_add_u32 {v(t0)}, {CTAB}, {v(t0)}")
        for nt in range(NTW):
            a(f"ds_read_b128 {v(CS+4*nt,4)}, {v(t0)} offset:{64*nt}")
    if bias_arg and pre:
        a(f"v_lshlrev_b32 {v(t0)}, 3, {v(t3)}")
        a(f"v_add_u32 {v(t0)}, {EPI}, {v(t0)}")
        for nt in range(NTW):
            a(f"ds_read_b64 {v(BR+2*nt,2)}, {v(t0)} offset:{32*nt}")
    vc = vT[0]
    a(f"v_mul_u32_u24 {v(t2)}, {CROW}, {v(t2)}")
    a(f"v_lshl_add_u32 {v(vc)}, {v(t3)}, 3, {v(t2)}")
    if CBASE: a(f"v_add_u32 {v(vc)}, {CBASE}, {v(vc)}")
    if epi == 'gelu':
        c2 = 2 * math.log2(math.e)
        k1 = struct.unpack("<I", struct.pack("<f", 0.7978845608 * c2))[0]
        k3 = struct.unpack("<I", struct.pack("<f", 0.7978845608 * 0.044715 * c2))[0]
        a(f"s_mov_b32 s52, {k3}"); a(f"s_mov_b32 s53, {k3}")
        a(f"v_mov_b32 {v(GE+8)}, {k1}"); a(f"v_mov_b32 {v(GE+9)}, {k1}")
        a("s_mov_b32 s56, 1.0"); a("s_mov_b32 s57, 1.0")
    a("s_waitcnt vmcnt(0) lgkmcnt(0)")
    a("s_nop 7")
    if bias_arg:
        bsrc = BR if pre else PBI
        for nt in range(NTW):
            for j in range(2):
                a(f"v_lshlrev_b32 {v(BF+4*nt+2*j)}, 16, {v(bsrc+2*nt+j)}")
                a(f"v_and_b32 {v(BF+4*nt+2*j+1)}, 0xffff0000, {v(bsrc+2*nt+j)}")
    for nt in range(NTW):
        for mp in range(0, MT, 2):
            c0 = acc(nt, mp)
            for q in range(2):
                mt = mp + q
                for j in range(2):
                    cc = v(c0 + 4 * q + 2 * j, 2)
                    tt = v(GE + 4 * q + 2 * j, 2)
                    if ln:
                        if bias_arg:
                            a(f"v_pk_fma_f32 {tt}, {v(CS+4*nt+2*j,2)}, {v(RT+2*mt,2)}, {v(BF+4*nt+2*j,2)} op_sel:[0,1,0] op_sel_hi:[1,1,1]")
                        else:
                            a(f"v_pk_mul_f32 {tt}, {v(CS+4*nt+2*j,2)}, {v(RT+2*mt,2)} op_sel:[0,1] op_sel_hi:[1,1]")
                    elif bias_arg:
                        a(f"v_pk_add_f32 {cc}, {cc}, {v(BF+4*nt+2*j,2)}")
            if ln:
                for q in range(2):
                    mt = mp + q
                    for j in range(2):
                        cc = v(c0 + 4 * q + 2 * j, 2)
                        tt = v(GE + 4 * q + 2 * j, 2)
                        a(f"v_pk_fma_f32 {cc}, {cc}, {v(RT+2*mt,2)}, {tt} op_sel:[0,0,0] op_sel_hi:[1,0,1]")
            if epi == 'gelu':
                for j in range(4):
                    a(f"v_pk_mul_f32 {v(GE+2*j,2)}, {v(c0+2*j,2)}, {v(c0+2*j,2)}")
                for j in range(4):
                    a(f"v_pk_fma_f32 {v(GE+2*j,2)}, {v(GE+2*j,2)}, s[52:53], {v(GE+8,2)}")
                for j in range(4):
                    a(f"v_pk_mul_f32 {v(GE+2*j,2)}, {v(GE+2*j,2)}, {v(c0+2*j,2)}")
                for r in range(8):
                    a(f"v_exp_f32 {v(GE+r)}, {v(GE+r)}")
                a("s_nop 0")
                for j in range(4):
                    a(f"v_pk_add_f32 {v(GE+2*j,2)}, {v(GE+2*j,2)}, s[56:57]")
                for r in range(8):
                    a(f"v_rcp_f32 {v(GE+r)}, {v(GE+r)}")
                a("s_nop 0")
                for j in range(4):
                    cc = v(c0 + 2 * j, 2)
                    a(f"v_pk_fma_f32 {cc}, {cc}, {v(GE+2*j,2)}, {cc} neg_lo:[1,0,0] neg_hi:[1,0,0]")
            for j in range(4):
                a(f"v_cvt_pk_bf16_f32 {v(c0+j)}, {v(c0+2*j)}, {v(c0+2*j+1)}")
            for q in range(2):
                a(f"ds_write_b64 {v(vc)}, {v(c0+2*q,2)} offset:{(mp+q)*16*CROW + nt*32}")
    a("s_waitcnt lgkmcnt(0)")
    stamp(4)
    a("s_barrier")
    a(f"s_branch {lab_store}")

    a.label(lab_loader)
    if 'noprio' not in EXP: a("s_setprio 2")
    NPL = (BN // 16 + 3) // 4
    LSA = 40
    LCW = 44
    LSC = 48; LCC = 52
    LONE = 56
    LST = 60
    LMS = 132
    LCS = 68
    LSD = 84
    LWD = 100
    assert vT[7] < 40
    a(f"s_mul_i32 s3, s30, {PA*8}")
    a(f"v_lshrrev_b32 {v(t0)}, 3, v1")
    a(f"v_add_u32 {v(t0)}, s3, {v(t0)}")
    a(f"s_mul_i32 s3, s28, {BM}")
    for i in range(PA):
        a(f"v_add_u32 {v(t1)}, {8*i}, {v(t0)}")
        a(f"v_lshrrev_b32 {v(t2)}, 1, {v(t1)}")
        a(f"v_and_b32 {v(t2)}, 7, {v(t2)}")
        a(f"v_and_b32 {v(t3)}, 7, v1")
        a(f"v_xor_b32 {v(t2)}, {v(t2)}, {v(t3)}")
        a(f"v_add_u32 {v(t1)}, s3, {v(t1)}")
        a(f"v_mul_u32_u24 {v(t1)}, {lda}, {v(t1)}")
        a(f"v_lshl_add_u32 {v(vA[i])}, {v(t2)}, 4, {v(t1)}")
    a(f"s_mul_i32 s3, s29, {BN*2}")
    if RB == 448:
        a(f"s_mov_b32 s47, {((1 << 32) + 27) // 28}")
        for i in range(PB):
            a(f"s_mul_i32 s46, s30, {PB*64}")
            a(f"s_add_u32 s46, s46, {i*64}")
            a(f"v_add_u32 {v(t1)}, s46, v1")
            a(f"v_mul_hi_u32 {v(t0)}, {v(t1)}, s47")
            a(f"v_mul_u32_u24 {v(t2)}, 28, {v(t0)}")
            a(f"v_sub_u32 {v(t1)}, {v(t1)}, {v(t2)}")
            a(f"v_bfe_u32 {v(t2)}, {v(t0)}, 3, 1")
            a(f"v_lshlrev_b32 {v(t2)}, 1, {v(t2)}")
            a(f"v_xor_b32 {v(t1)}, {v(t1)}, {v(t2)}")
            a(f"v_mul_u32_u24 {v(t0)}, {N*2}, {v(t0)}")
            a(f"v_lshl_add_u32 {v(t0)}, {v(t1)}, 4, {v(t0)}")
            a(f"v_add_u32 {v(vB[i])}, s3, {v(t0)}")
    else:
      CPR = RB // 16
      lg_cpr = int(math.log2(CPR))
      RPP = 1024 // RB
      PPB = RB // 16
      lg_ppb = int(math.log2(PPB))
      for i in range(PB):
        a(f"s_mul_i32 s46, s30, {PB}")
        a(f"s_add_u32 s46, s46, {i}")
        a(f"s_lshr_b32 s47, s46, {lg_ppb}")
        a(f"s_and_b32 s46, s46, {PPB-1}")
        a(f"s_mul_i32 s46, s46, {RPP}")
        a(f"s_mul_i32 s47, s47, {RB}")
        a("s_add_u32 s47, s47, s3")
        a(f"v_lshrrev_b32 {v(t0)}, {lg_cpr}, v1")
        a(f"v_add_u32 {v(t0)}, s46, {v(t0)}")
        a(f"v_and_b32 {v(t1)}, {CPR-1}, v1")
        if RB == 256:
            a(f"v_and_b32 {v(t2)}, 3, {v(t0)}")
            a(f"v_bfe_u32 {v(t3)}, {v(t0)}, 3, 1")
            a(f"v_lshl_add_u32 {v(t2)}, {v(t3)}, 2, {v(t2)}")
        elif RB == 128:
            a(f"v_bfe_u32 {v(t2)}, {v(t0)}, 1, 1")
            a(f"v_bfe_u32 {v(t3)}, {v(t0)}, 3, 1")
            a(f"v_lshl_add_u32 {v(t2)}, {v(t3)}, 1, {v(t2)}")
        elif RB == 64:
            a(f"v_bfe_u32 {v(t2)}, {v(t0)}, 3, 1")
        else:
            a(f"v_mov_b32 {v(t2)}, 0")
        a(f"v_lshlrev_b32 {v(t2)}, 1, {v(t2)}")
        a(f"v_xor_b32 {v(t1)}, {v(t1)}, {v(t2)}")
        a(f"v_mul_u32_u24 {v(t0)}, {N*2}, {v(t0)}")
        a(f"v_lshl_add_u32 {v(t0)}, {v(t1)}, 4, {v(t0)}")
        a(f"v_add_u32 {v(vB[i])}, s47, {v(t0)}")
    a(f"s_mul_i32 s31, s30, {PA*1024}")
    a(f"s_mul_i32 s32, s30, {PB*1024}")
    a(f"s_add_u32 s32, s32, {ABYTES}")
    a("s_mov_b32 s40, 0")
    a("s_mov_b32 s41, 0")
    a("s_mov_b32 s43, 0")
    a("s_mov_b32 s42, 0")
    build_srds()
    if zero_flags:
        lz = a.newlabel("L_nz")
        a("s_cmp_lg_u32 s2, 0")
        a(f"s_cbranch_scc1 {lz}")
        srd(a, 92, 24, WS_FLAG, 512)
        a(f"v_lshlrev_b32 {v(t0)}, 3, v1")
        a("v_mov_b32 v44, 0")
        a("v_mov_b32 v45, 0")
        a(f"buffer_store_dwordx2 v[44:45], {v(t0)}, s[92:95], 0 offen")
        a.label(lz)
    if splitk:
        a(f"s_mul_i32 s40, s92, {NSLO*BK*2}")
        a(f"s_mul_i32 s41, s92, {NSLO*BK*N*2}")
        lab_lpass = a.newlabel("L_lpass")
        a.label(lab_lpass)

    def dma():
        if 'nodma' in EXP: return
        a("s_add_u32 s33, s43, s31")
        for i in range(PA):
            a(f"s_add_u32 m0, s33, {i*1024}")
            a("s_nop 0")
            a(f"buffer_load_dwordx4 {v(vA[i])}, s[4:7], s40 offen lds")
        a("s_add_u32 s33, s43, s32")
        for i in range(PB):
            a(f"s_add_u32 m0, s33, {i*1024}")
            a("s_nop 0")
            a(f"buffer_load_dwordx4 {v(vB[i])}, s[8:11], s41 offen lds")
        a(f"s_add_u32 s40, s40, {BK*2}")
        a(f"s_add_u32 s41, s41, {BK*N*2}")
        a(f"s_add_u32 s43, s43, {STAGE}")
        a(f"s_cmp_ge_u32 s43, {STAGE*NSTAGE}")
        a("s_cselect_b32 s43, 0, s43")

    stamp(1)
    if pre:
        a(f"v_lshrrev_b32 {v(LSA)}, 1, v1")
        a("s_lshl_b32 s3, s30, 5")
        a(f"v_add_u32 {v(LSA)}, s3, {v(LSA)}")
        a(f"s_mul_i32 s3, s28, {BM}")
        a(f"v_add_u32 {v(t0)}, s3, {v(LSA)}")
        a(f"v_lshlrev_b32 {v(t0)}, 7, {v(t0)}")
        a(f"v_and_b32 {v(t1)}, 1, v1")
        a(f"v_lshl_add_u32 {v(t0)}, {v(t1)}, 6, {v(t0)}")
        for i in range(4):
            a(f"buffer_load_dwordx4 {v(LSD+4*i,4)}, {v(t0)}, s[84:87], 0 offen offset:{16*i}")
    if st_bias:
        a(f"v_lshlrev_b32 {v(t0)}, 4, v1")
        a(f"s_mul_i32 s3, s29, {BN*2}")
        a(f"s_mov_b32 m0, {EPI}")
        a("s_nop 0")
        a(f"buffer_load_dwordx4 {v(t0)}, s[20:23], s3 offen lds")
        a(f"s_mul_i32 s3, s29, {BN*4}")
        a(f"s_mul_i32 s46, s30, {4*N*4}")
        a("s_add_u32 s3, s3, s46")
        for g_ in range(4):
            a(f"buffer_load_dwordx4 {v(LWD+4*g_,4)}, {v(t0)}, s[88:91], s3 offen")
            a(f"s_add_u32 s3, s3, {N*4}")
    for _ in range(NSTAGE - 1):
        dma()
    stamp(2)
    if ln and not pre:
        wfrag_addr_common()
        for i in range(NPL):
            a(f"s_mul_i32 s46, s30, {NPL}")
            a(f"s_add_u32 s46, s46, {i}")
            a(f"s_min_u32 s46, s46, {BN//16-1}")
            wfrag_addr(LCW + i)
        for i in range(4):
            a(f"v_mov_b32 {v(LONE+i)}, 0x3f803f80")
        for i in range(16):
            a(f"v_mov_b32 {v(LMS+i)}, 0")
        a(f"v_and_b32 {v(t0)}, 15, v1")
        a("s_lshl_b32 s3, s30, 5")
        a(f"v_add_u32 {v(t0)}, s3, {v(t0)}")
        a(f"v_lshlrev_b32 {v(t0)}, 7, {v(t0)}")
        a(f"v_lshrrev_b32 {v(t1)}, 4, v1")
        a(f"v_bfe_u32 {v(t2)}, v1, 1, 3")
        a(f"v_xor_b32 {v(t3)}, {v(t1)}, {v(t2)}")
        a(f"v_lshl_add_u32 {v(LSA)}, {v(t3)}, 4, {v(t0)}")
        a(f"v_xor_b32 {v(t3)}, 4, {v(t3)}")
        a(f"v_lshl_add_u32 {v(LSA+1)}, {v(t3)}, 4, {v(t0)}")
        for i in range(4 * NPL):
            a(f"v_mov_b32 {v(LCS+i)}, 0")

    def stats_reads():
        for i in range(2):
            a(f"v_add_u32 {v(LSC+i)}, s42, {v(LSA+i)}")
        for i in range(NPL):
            a(f"v_add_u32 {v(LCC+i)}, s42, {v(LCW+i)}")
        a(f"s_add_u32 s42, s42, {STAGE}")
        a(f"s_cmp_ge_u32 s42, {STAGE*NSTAGE}")
        a("s_cselect_b32 s42, 0, s42")
        for q in range(2):
            for kk in range(2):
                a(f"ds_read_b128 {v(LSD+8*q+4*kk,4)}, {v(LSC+kk)} offset:{2048*q}")
        for i in range(NPL):
            for kk in range(2):
                for rd in range(2):
                    a(f"ds_read_b64_tr_b16 {v(LWD+8*i+4*kk+2*rd,2)}, {v(LCC+i)} offset:{kk*32*RB+rd*4*RB}")

    def stats_math():
        a("s_waitcnt lgkmcnt(0)")
        for i in range(NPL):
            for kk in range(2):
                a(f"v_mfma_f32_16x16x32_bf16 {v(LCS+4*i,4)}, {v(LWD+8*i+4*kk,4)}, {v(LONE,4)}, {v(LCS+4*i,4)}")
        for kk in range(2):
            for q in range(2):
                d = v(LSD + 8 * q + 4 * kk, 4)
                a(f"v_mfma_f32_16x16x32_bf16 {v(LMS+8*q,4)}, {d}, {v(LONE,4)}, {v(LMS+8*q,4)}")
                a(f"v_mfma_f32_16x16x32_bf16 {v(LMS+8*q+4,4)}, {d}, {d}, {v(LMS+8*q+4,4)}")

    nloop = NS - NSTAGE + 1
    if splitk: a(f"s_sub_u32 s48, s93, {NSTAGE-1}")
    else: a(f"s_mov_b32 s48, {nloop}")
    lloop = a.newlabel("L_lloop")
    a.label(lloop)
    a(f"s_waitcnt vmcnt({(NSTAGE-2)*P})")
    a("s_barrier")
    if ln and not pre: stats_reads()
    dma()
    if ln and not pre: stats_math()
    a("s_sub_u32 s48, s48, 1")
    a("s_cmp_lg_u32 s48, 0")
    a(f"s_cbranch_scc1 {lloop}")
    if pre:
        for i in range(1, 8):
            a(f"v_add_f32 {v(LSD)}, {v(LSD)}, {v(LSD+2*i)}")
            a(f"v_add_f32 {v(LSD+1)}, {v(LSD+1)}, {v(LSD+2*i+1)}")
        a("s_nop 1")
        for k_ in range(2):
            a(f"v_add_f32_dpp {v(LST+k_)}, {v(LSD+k_)}, {v(LSD+k_)} quad_perm:[1,0,3,2] row_mask:0xf bank_mask:0xf")
        sm, sq, r1, r2 = LST, LST + 1, LSD, LSD + 1
        a(f"v_mul_f32 {v(sm)}, {hex_f32(1.0/K)}, {v(sm)}")
        a(f"v_mul_f32 {v(sq)}, {hex_f32(1.0/K)}, {v(sq)}")
        a(f"v_fma_f32 {v(sq)}, -{v(sm)}, {v(sm)}, {v(sq)}")
        a(f"v_max_f32 {v(sq)}, 0, {v(sq)}")
        a(f"v_add_f32 {v(r1)}, {hex_f32(1e-5)}, {v(sq)}")
        a(f"v_rsq_f32 {v(r1)}, {v(r1)}")
        a("s_nop 0")
        if ln == 'double':
            a(f"v_mul_f32 {v(r2)}, {v(r1)}, {v(r1)}")
            a(f"v_mul_f32 {v(r2)}, {v(r2)}, {v(sq)}")
            a(f"v_add_f32 {v(r2)}, {hex_f32(1e-5)}, {v(r2)}")
            a(f"v_rsq_f32 {v(r2)}, {v(r2)}")
            a("s_nop 0")
            a(f"v_mul_f32 {v(r1)}, {v(r1)}, {v(r2)}")
        a(f"v_mul_f32 {v(r2)}, {v(sm)}, {v(r1)}")
        a(f"v_sub_f32 {v(r2)}, 0, {v(r2)}")
        a(f"v_lshlrev_b32 {v(LSC)}, 3, {v(LSA)}")
        a(f"v_add_u32 {v(LSC)}, {RTAB}, {v(LSC)}")
        a(f"ds_write_b64 {v(LSC)}, {v(LSD,2)}")
        for g_ in range(1, 4):
            for j in range(2):
                a(f"v_pk_add_f32 {v(LWD+2*j,2)}, {v(LWD+2*j,2)}, {v(LWD+4*g_+2*j,2)}")
        a(f"v_lshlrev_b32 {v(t0)}, 4, v1")
        a(f"v_add_u32 {v(t0)}, {EPI+3072}, {v(t0)}")
        a("s_lshl_b32 s3, s30, 10")
        a(f"v_add_u32 {v(t1)}, s3, {v(t0)}")
        a(f"ds_write_b128 {v(t1)}, {v(LWD,4)}")
        a("s_waitcnt lgkmcnt(0)")
    if st_res:
        npc = BM * BN * 2 // 4096
        rpp = 1024 // (BN * 2)
        lpr = BN * 2 // 16
        a(f"v_lshrrev_b32 {v(t0)}, {int(math.log2(lpr))}, v1")
        a(f"s_mul_i32 s3, s30, {npc*rpp}")
        a(f"s_mul_i32 s46, s28, {BM}")
        a("s_add_u32 s3, s3, s46")
        a(f"v_add_u32 {v(t0)}, s3, {v(t0)}")
        a(f"v_mul_u32_u24 {v(t0)}, {N*2}, {v(t0)}")
        a(f"v_and_b32 {v(t1)}, {lpr-1}, v1")
        a(f"v_lshl_add_u32 {v(t0)}, {v(t1)}, 4, {v(t0)}")
        a(f"s_mul_i32 s3, s29, {BN*2}")
        a(f"v_add_u32 {v(t0)}, s3, {v(t0)}")
        a(f"s_mul_i32 s33, s30, {npc*1024}")
        for i in range(npc):
            a(f"s_add_u32 m0, s33, {EPI + i*1024}")
            a(f"s_mov_b32 s3, {i*rpp*N*2}")
            a(f"buffer_load_dwordx4 {v(t0)}, s[16:19], s3 offen lds")
    for j in range(NS - NSTAGE + 1, NS):
        a(f"s_waitcnt vmcnt({(NS-1-j)*P + NEX})")
        a("s_barrier")
        if pre and j == NS - NSTAGE + 1:
            assert NSTAGE >= 3
            lcs = a.newlabel("L_lcs")
            a("s_cmp_lg_u32 s30, 0")
            a(f"s_cbranch_scc1 {lcs}")
            for g_ in range(4):
                a(f"ds_read_b128 {v(LWD+4*g_,4)}, {v(t0)} offset:{1024*g_}")
            a("s_waitcnt lgkmcnt(0)")
            for g_ in range(1, 4):
                for j_ in range(2):
                    a(f"v_pk_add_f32 {v(LWD+2*j_,2)}, {v(LWD+2*j_,2)}, {v(LWD+4*g_+2*j_,2)}")
            a(f"v_subrev_u32 {v(t0)}, {EPI+3072-CTAB}, {v(t0)}")
            a(f"ds_write_b128 {v(t0)}, {v(LWD,4)}")
            a("s_waitcnt lgkmcnt(0)")
            a.label(lcs)
        if ln and not pre:
            stats_reads()
            stats_math()
    stamp(3)
    if ln and not pre:
        a("s_nop 7")
        a(f"v_and_b32 {v(t0)}, 3, v1")
        for r in range(1, 4):
            a(f"v_cmp_eq_u32 s[{48+2*r}:{49+2*r}], {r}, {v(t0)}")
        X0 = LSD
        for i in range(2):
            sm, sq = LST + 2 * i, LST + 2 * i + 1
            r1, r2 = X0 + 2 * i, X0 + 2 * i + 1
            for dst, src in ((sm, LMS + 8 * i), (sq, LMS + 8 * i + 4)):
                a(f"v_cndmask_b32 {v(dst)}, {v(src)}, {v(src+1)}, s[50:51]")
                a(f"v_cndmask_b32 {v(dst)}, {v(dst)}, {v(src+2)}, s[52:53]")
                a(f"v_cndmask_b32 {v(dst)}, {v(dst)}, {v(src+3)}, s[54:55]")
            a(f"v_mul_f32 {v(sm)}, {hex_f32(1.0/K)}, {v(sm)}")
            a(f"v_mul_f32 {v(sq)}, {hex_f32(1.0/K)}, {v(sq)}")
            a(f"v_fma_f32 {v(sq)}, -{v(sm)}, {v(sm)}, {v(sq)}")
            a(f"v_max_f32 {v(sq)}, 0, {v(sq)}")
            a(f"v_add_f32 {v(r1)}, {hex_f32(1e-5)}, {v(sq)}")
            a(f"v_rsq_f32 {v(r1)}, {v(r1)}")
            a("s_nop 0")
            assert ln == 'single'
            a(f"v_mul_f32 {v(r2)}, {v(sm)}, {v(r1)}")
            a(f"v_sub_f32 {v(r2)}, 0, {v(r2)}")
        a(f"v_lshrrev_b32 {v(LSC)}, 7, {v(LSA)}")
        a(f"v_lshlrev_b32 {v(LSC)}, 3, {v(LSC)}")
        a(f"v_add_u32 {v(LSC)}, {RTAB}, {v(LSC)}")
        a(f"v_lshrrev_b32 {v(t0)}, 4, v1")
        a(f"v_lshlrev_b32 {v(t0)}, 4, {v(t0)}")
        for i in range(NPL):
            a(f"s_mul_i32 s46, s30, {NPL}")
            a(f"s_add_u32 s46, s46, {i}")
            a(f"s_min_u32 s46, s46, {BN//16-1}")
            a("s_lshl_b32 s46, s46, 6")
            a(f"s_add_u32 s46, s46, {CTAB}")
            a(f"v_add_u32 {v(LCC+i)}, s46, {v(t0)}")
    if ln and not pre:
        a("s_mov_b32 exec_lo, 0x00f0000f")
        a("s_mov_b32 exec_hi, 0xf0000f00")
        for i in range(2):
            a(f"ds_write_b64 {v(LSC)}, {v(LSD+2*i,2)} offset:{128*i}")
        a("s_mov_b64 exec, -1")
        for i in range(NPL):
            a(f"ds_write_b128 {v(LCC+i)}, {v(LCS+4*i,4)}")
        a("s_waitcnt lgkmcnt(0)")
        a("s_barrier")
    if NEX: a("s_waitcnt vmcnt(0)")
    if splitk:
        lhi = a.newlabel("L_lhi"); lepi = a.newlabel("L_lepi")
        a("s_cmp_lg_u32 s92, 0")
        a(f"s_cbranch_scc1 {lhi}")
        a("s_barrier")
        a(f"s_branch {end}")
        a.label(lhi)
        a("s_barrier")
        a("s_cmp_eq_u32 s94, 2")
        a(f"s_cbranch_scc1 {lepi}")
        a(f"v_mov_b32 {v(t1)}, {DONE}")
        a(f"ds_read_b128 {v(44,4)}, {v(t1)}")
        a("s_waitcnt lgkmcnt(0)")
        a("v_and_b32 v44, v44, v45")
        a("v_and_b32 v46, v46, v47")
        a("v_and_b32 v44, v44, v46")
        a("s_nop 0")
        a("v_readfirstlane_b32 s3, v44")
        a("s_nop 3")
        a("s_cmp_eq_u32 s3, 1")
        a(f"s_cbranch_scc1 {lepi}")
        a("s_mov_b32 s94, 2")
        a(f"s_mov_b32 s93, {NSLO}")
        a("s_mov_b32 s40, 0"); a("s_mov_b32 s41, 0"); a("s_mov_b32 s43, 0")
        a("s_barrier")
        a(f"s_branch {lab_lpass}")
        a.label(lepi)
    stamp(4)
    a("s_barrier")

    a.label(lab_store)
    CPRW = BN // 8
    NIT = BM * CPRW // 512
    assert NIT * 512 == BM * CPRW
    magic = ((1 << 32) + CPRW - 1) // CPRW
    a(f"s_mov_b32 s46, {magic}")
    a(f"s_mul_i32 s3, s49, {NIT*64}")
    a(f"v_add_u32 {v(t0)}, s3, v1")
    a(f"s_mul_i32 s3, s28, {BM}")
    a(f"s_mul_i32 s47, s29, {BN*2}")
    R0 = (vT[7] + 4) // 4 * 4
    RR = R0 + 4 * NIT
    OFF = RR + 4 * NIT
    SOF = OFF + NIT
    GT = (SOF + NIT + 3) // 4 * 4
    assert GT + 10 <= 256
    for it in range(NIT):
        a(f"v_add_u32 {v(t1)}, {it*64}, {v(t0)}")
        a(f"v_mul_hi_u32 {v(t2)}, {v(t1)}, s46")
        a(f"v_mul_u32_u24 {v(t3)}, {CPRW}, {v(t2)}")
        a(f"v_sub_u32 {v(t3)}, {v(t1)}, {v(t3)}")
        a(f"v_mul_u32_u24 {v(t1)}, {CROW}, {v(t2)}")
        a(f"v_lshl_add_u32 {v(t1)}, {v(t3)}, 4, {v(t1)}")
        if CBASE: a(f"v_add_u32 {v(t1)}, {CBASE}, {v(t1)}")
        a(f"ds_read_b128 {v(R0+4*it,4)}, {v(t1)}")
        a(f"v_add_u32 {v(t2)}, s3, {v(t2)}")
        if stats_out:
            a(f"v_lshlrev_b32 {v(SOF+it)}, 7, {v(t2)}")
            a(f"v_lshl_add_u32 {v(SOF+it)}, s29, 3, {v(SOF+it)}")
        a(f"v_mul_u32_u24 {v(t2)}, {ldo}, {v(t2)}")
        a(f"v_lshlrev_b32 {v(t3)}, 4, {v(t3)}")
        a(f"v_add_u32 {v(t3)}, s47, {v(t3)}")
        a(f"v_add_u32 {v(OFF+it)}, {v(t3)}, {v(t2)}")
        if st_res:
            a(f"v_lshlrev_b32 {v(t1)}, 4, {v(t0)}")
            a(f"v_add_u32 {v(t1)}, {EPI + it*1024}, {v(t1)}")
            a(f"ds_read_b128 {v(RR+4*it,4)}, {v(t1)}")
        elif res_arg:
            a(f"buffer_load_dwordx4 {v(RR+4*it,4)}, {v(OFF+it)}, s[16:19], 0 offen")
    a("s_waitcnt vmcnt(0) lgkmcnt(0)")
    stamp(5)
    for it in range(NIT):
        c0 = R0 + 4 * it
        if res_arg:
            for j in range(4):
                d = c0 + j
                r = RR + 4 * it + j
                a(f"v_lshlrev_b32 {v(GT)}, 16, {v(d)}")
                a(f"v_lshlrev_b32 {v(GT+1)}, 16, {v(r)}")
                a(f"v_and_b32 {v(GT+2)}, 0xffff0000, {v(d)}")
                a(f"v_and_b32 {v(GT+3)}, 0xffff0000, {v(r)}")
                a(f"v_add_f32 {v(GT)}, {v(GT)}, {v(GT+1)}")
                a(f"v_add_f32 {v(GT+2)}, {v(GT+2)}, {v(GT+3)}")
                a(f"v_cvt_pk_bf16_f32 {v(d)}, {v(GT)}, {v(GT+2)}")
        a(f"buffer_store_dwordx4 {v(c0,4)}, {v(OFF+it)}, s[12:15], 0 offen {STMOD if (ln or STALL) else ''}")
        if stats_out:
            assert CPRW == 8
            a(f"v_mov_b32 {v(GT+8)}, 0x3f803f80")
            a(f"v_mov_b32 {v(GT)}, 0")
            a(f"v_mov_b32 {v(GT+1)}, 0")
            for j in range(4):
                a(f"v_dot2_f32_bf16 {v(GT)}, {v(c0+j)}, {v(GT+8)}, {v(GT)}")
                a(f"v_dot2_f32_bf16 {v(GT+1)}, {v(c0+j)}, {v(c0+j)}, {v(GT+1)}")
            a("s_nop 3")
            for q_, mode in enumerate(("quad_perm:[1,0,3,2]", "quad_perm:[2,3,0,1]", "row_half_mirror")):
                src = GT + 2 * (q_ & 1); dst = GT + 2 * ((q_ + 1) & 1)
                for k_ in range(2):
                    a(f"v_add_f32_dpp {v(dst+k_)}, {v(src+k_)}, {v(src+k_)} {mode} row_mask:0xf bank_mask:0xf")
                a("s_nop 1")
            a("s_mov_b32 exec_lo, 0x01010101")
            a("s_mov_b32 exec_hi, 0x01010101")
            a(f"buffer_store_dwordx2 {v(GT+2,2)}, {v(SOF+it)}, s[84:87], 0 offen")
            a("s_mov_b64 exec, -1")
    stamp(6)
    if 'stamp' in EXP: a("s_waitcnt vmcnt(0)")
    stamp(7)
    stamp_out()
    a.label(end)
    a("s_endpgm")
    return dict(name=name, grid=ntiles, block=512, lds=lds, desc=kernel_desc(name, max(nvgpr, GT + 10, 164)))


def gen_attn(a, name, pf=None, colsum=False):
    import struct
    NQB = S // 32
    ntask = H * NQB
    nwg = ntask // 4
    QKV_ROW = 3 * D * 2
    KLDS = 384 * 64
    lds = 2 * KLDS
    kernel_header(a, name)
    end = a.newlabel("L_end")
    npf = 0
    a(f"s_cmp_ge_u32 s2, {nwg + npf}")
    a(f"s_cbranch_scc1 {end}")
    a(f"s_load_dwordx2 s[24:25], s[0:1], {ARG['ws']}")
    a("v_and_b32 v1, 63, v0")
    a("v_lshrrev_b32 v2, 6, v0")
    a("s_nop 0")
    a("v_readfirstlane_b32 s30, v2")
    a("s_nop 3")
    a("s_lshl_b32 s3, s2, 2")
    a("s_add_u32 s92, s3, s30")
    a("s_and_b32 s28, s2, 31")
    a("s_lshr_b32 s29, s2, 5")
    a("s_lshl_b32 s39, s29, 7")
    a("s_sub_u32 s39, s39, 256")
    a("s_lshl_b32 s3, s30, 5")
    a("s_add_u32 s32, s39, s3")
    a("s_add_u32 s31, s32, 256")
    a("s_lshl_b32 s33, s28, 6")
    a(f"s_add_u32 s35, s33, {2*D*2}")
    a(f"s_add_u32 s36, s33, {D*2}")
    a("v_and_b32 v2, 31, v1")
    a("v_lshrrev_b32 v3, 5, v1")
    a("v_add_u32 v4, s31, v2")
    a(f"v_mul_u32_u24 v4, {QKV_ROW}, v4")
    a("v_lshl_add_u32 v4, v3, 4, v4")
    a("v_add_u32 v4, s33, v4")
    a("s_waitcnt lgkmcnt(0)")
    srd(a, 4, 24, WS_QKV, S * 3 * D * 2)
    srd(a, 8, 24, WS_O, S * D * 2)
    a("v_lshrrev_b32 v5, 2, v1")
    a("v_and_b32 v6, 3, v1")
    a("v_bfe_u32 v7, v1, 4, 2")
    a("v_xor_b32 v7, v7, v6")
    a("s_mul_i32 s3, s30, 96")
    a("s_add_u32 s3, s3, s39")
    a("s_mul_i32 s34, s30, 6144")
    for p in range(6):
        a(f"v_add_u32 v16, {16*p}, v5")
        a("v_add_u32 v16, s3, v16")
        a("v_max_i32 v16, 0, v16")
        a(f"v_mul_u32_u24 v16, {QKV_ROW}, v16")
        a("v_lshl_add_u32 v17, v7, 4, v16")
        a("v_add_u32 v17, s36, v17")
        a(f"s_add_u32 m0, s34, {p*1024}")
        a("v_lshl_add_u32 v16, v6, 4, v16")
        a(f"buffer_load_dwordx4 v17, s[4:7], 0 offen lds")
        a("v_add_u32 v16, s35, v16")
        a(f"s_add_u32 m0, s34, {KLDS + p*1024}")
        a("s_nop 0")
        a(f"buffer_load_dwordx4 v16, s[4:7], 0 offen lds")
    a("buffer_load_dwordx4 v[8:11], v4, s[4:7], 0 offen")
    a("buffer_load_dwordx4 v[12:15], v4, s[4:7], 0 offen offset:32")
    KF = 16
    if colsum:
        a(f"s_load_dwordx2 s[94:95], s[0:1], {ARG['w2']}")
        a(f"s_load_dwordx2 s[40:41], s[0:1], {ARG['wo']}")
        a(f"s_load_dwordx2 s[42:43], s[0:1], {ARG['w1']}")
        a("v_lshlrev_b32 v7, 4, v1")
        a(f"s_mul_i32 s93, s92, {F*D*2//2048}")
        a("s_lshl_b32 s3, s92, 10")
        a("v_add_u32 v16, s93, v7")
        a("v_add_u32 v17, s3, v7")
        a(f"s_mul_hi_u32 s44, s92, {((1 << 32) + 111) // 112}")
        a("s_mul_i32 s3, s44, 112")
        a("s_sub_u32 s45, s92, s3")
        a("s_lshl_b32 s3, s44, 6")
        a("v_lshrrev_b32 v18, 2, v1")
        a("v_add_u32 v18, s3, v18")
        a(f"v_mul_u32_u24 v18, {F*2}, v18")
        a("v_and_b32 v19, 3, v1")
        a("v_lshl_add_u32 v18, v19, 4, v18")
        a("s_lshl_b32 s3, s45, 6")
        a("v_add_u32 v18, s3, v18")
        a("s_waitcnt lgkmcnt(0)")
        srd(a, 96, 94, 0, F * D * 2)
        for j in range(4):
            a(f"buffer_load_dwordx4 v[240:243], v16, s[96:99], 0 offen offset:{1024*j}")
        srd(a, 96, 40, 0, D * D * 2)
        a("buffer_load_dwordx4 v[240:243], v17, s[96:99], 0 offen")
        srd(a, 96, 42, 0, D * F * 2)
        for j in range(4):
            a(f"s_mov_b32 s3, {16*j*F*2}")
            a(f"buffer_load_dwordx4 {v(240+4*j,4)}, v18, s[96:99], s3 offen")
        npl = 9
    else:
        npl = tail_prefetch(a, 92, 1, pf, 7, 240) if pf else 0
    a("v_bfe_u32 v5, v1, 2, 2")
    a("v_xor_b32 v5, v5, v3")
    a("v_lshlrev_b32 v6, 6, v2")
    a("s_lshl_b32 s34, s30, 11")
    a("v_add_u32 v6, s34, v6")
    a("v_lshl_add_u32 v88, v5, 4, v6")
    a("v_xor_b32 v5, 2, v5")
    a("v_lshl_add_u32 v89, v5, 4, v6")
    a(f"s_add_u32 s34, s34, {KLDS}")
    a(f"s_waitcnt vmcnt({npl})")
    a("s_barrier")
    for t_ in range(9):
        a(f"ds_read_b128 {v(KF+8*t_,4)}, v88 offset:{2048*t_}")
        a(f"ds_read_b128 {v(KF+8*t_+4,4)}, v89 offset:{2048*t_}")
    SC = 96
    a("v_mov_b32 v7, 0xf149f2ca")
    for t in range(9):
        a(f"s_waitcnt lgkmcnt({min(15, 2*(8-t))})")
        if t < 8:
            lab_inv = a.newlabel("L_inv"); lab_done = a.newlabel("L_tdone")
            a(f"s_add_i32 s3, s32, {32*t}")
            a("s_cmp_lt_i32 s3, 0")
            a(f"s_cbranch_scc1 {lab_inv}")
        a(f"v_mfma_f32_32x32x16_bf16 {v(SC+16*t,16)}, {v(KF+8*t,4)}, v[8:11], 0")
        a(f"v_mfma_f32_32x32x16_bf16 {v(SC+16*t,16)}, {v(KF+8*t+4,4)}, v[12:15], {v(SC+16*t,16)}")
        if t < 8:
            a(f"s_branch {lab_done}")
            a.label(lab_inv)
            for r in range(16):
                a(f"v_mov_b32 v{SC+16*t+r}, v7")
            a.label(lab_done)
    a("v_lshlrev_b32 v5, 2, v3")
    a("v_sub_u32 v5, v2, v5")
    a("s_nop 7")
    a("s_nop 7")
    for r in range(16):
        c = (r & 3) + 8 * (r >> 2)
        a(f"v_cmp_gt_i32 vcc, {c}, v5")
        a(f"v_cmp_le_i32 s[36:37], {c}, v5")
        a("s_nop 0")
        a(f"v_cndmask_b32 v{SC+r}, v7, v{SC+r}, vcc")
        a(f"v_cndmask_b32 v{SC+128+r}, v7, v{SC+128+r}, s[36:37]")
    a(f"v_max3_f32 v4, v{SC}, v{SC+1}, v{SC+2}")
    a(f"v_max3_f32 v6, v{SC+3}, v{SC+4}, v{SC+5}")
    for i in range(6, 144, 4):
        a(f"v_max3_f32 v4, v4, v{SC+i}, v{SC+i+1}")
        if i + 3 < 144:
            a(f"v_max3_f32 v6, v6, v{SC+i+2}, v{SC+i+3}")
    a("v_max_f32 v4, v4, v6")
    a("v_xor_b32 v88, 32, v1")
    a("v_lshlrev_b32 v88, 2, v88")
    a("ds_bpermute_b32 v89, v88, v4")
    a("s_waitcnt lgkmcnt(0)")
    a("v_max_f32 v4, v4, v89")
    sc = (DH ** -0.5) * math.log2(math.e)
    sc_bits = struct.unpack("<I", struct.pack("<f", sc))[0]
    a(f"s_mov_b32 s38, {sc_bits}")
    a("v_mul_f32 v4, s38, v4")
    sums = [5, 6, 90, 91]
    for sreg in sums:
        a(f"v_mov_b32 v{sreg}, 0")
    for g in range(0, 144, 4):
        for j in range(4):
            a(f"v_fma_f32 v{SC+g+j}, v{SC+g+j}, s38, -v4")
        for j in range(4):
            a(f"v_exp_f32 v{SC+g+j}, v{SC+g+j}")
        if g >= 4:
            for j in range(4):
                a(f"v_add_f32 v{sums[j]}, v{sums[j]}, v{SC+g-4+j}")
            tt, jj = divmod(g - 4, 16)
            a(f"v_cvt_pk_bf16_f32 v{KF+8*tt+jj//2}, v{SC+g-4}, v{SC+g-3}")
            a(f"v_cvt_pk_bf16_f32 v{KF+8*tt+jj//2+1}, v{SC+g-2}, v{SC+g-1}")
    a("s_nop 0")
    g = 144
    for j in range(4):
        a(f"v_add_f32 v{sums[j]}, v{sums[j]}, v{SC+g-4+j}")
    tt, jj = divmod(g - 4, 16)
    a(f"v_cvt_pk_bf16_f32 v{KF+8*tt+jj//2}, v{SC+g-4}, v{SC+g-3}")
    a(f"v_cvt_pk_bf16_f32 v{KF+8*tt+jj//2+1}, v{SC+g-2}, v{SC+g-1}")
    a("v_add_f32 v5, v5, v6")
    a("v_add_f32 v90, v90, v91")
    a("v_add_f32 v5, v5, v90")
    a("ds_bpermute_b32 v89, v88, v5")
    a("v_bfe_u32 v6, v1, 2, 2")
    a("v_lshl_add_u32 v6, v3, 2, v6")
    a("v_lshlrev_b32 v6, 6, v6")
    a("v_bfe_u32 v7, v1, 4, 1")
    a("v_lshl_add_u32 v6, v7, 5, v6")
    a("v_and_b32 v7, 3, v1")
    a("v_lshl_add_u32 v6, v7, 3, v6")
    a("v_add_u32 v6, s34, v6")
    OA = SC
    VF = SC + 16
    a(f"s_waitcnt lgkmcnt(0)")
    a("v_add_f32 v5, v5, v89")
    a("v_rcp_f32 v5, v5")
    for t in range(9):
        for sidx in range(2):
            f = VF + 4 * (2 * t + sidx)
            base = (32 * t + 16 * sidx) * 64
            a(f"ds_read_b64_tr_b16 {v(f,2)}, v6 offset:{base}")
            a(f"ds_read_b64_tr_b16 {v(f+2,2)}, v6 offset:{base+8*64}")
    first = True
    for t in range(9):
        for sidx in range(2):
            f = VF + 4 * (2 * t + sidx)
            idx = 2 * t + sidx
            rem = 36 - 2 * (idx + 1)
            a(f"s_waitcnt lgkmcnt({min(rem,15)})")
            a(f"v_mfma_f32_32x32x16_bf16 {v(OA,16)}, {v(f,4)}, {v(KF+8*t+4*sidx,4)}, {'0' if first else v(OA,16)}")
            first = False
    if colsum:
        lab_nc = a.newlabel("L_nocs")
        a("s_cmp_ge_u32 s44, 16")
        a(f"s_cbranch_scc1 {lab_nc}")
        CA = 184; CT = 192
        a("s_waitcnt vmcnt(0)")
        for j in range(4):
            a(f"v_lshlrev_b32 v{CA+2*j}, 16, v{240+j}")
            a(f"v_and_b32 v{CA+2*j+1}, 0xffff0000, v{240+j}")
        for i in range(1, 4):
            for j in range(4):
                a(f"v_lshlrev_b32 v{CT+2*j}, 16, v{240+4*i+j}")
                a(f"v_and_b32 v{CT+2*j+1}, 0xffff0000, v{240+4*i+j}")
            for j in range(4):
                a(f"v_pk_add_f32 {v(CA+2*j,2)}, {v(CA+2*j,2)}, {v(CT+2*j,2)}")
        a("s_nop 1")
        for mode in ("row_ror:4", "row_ror:8"):
            for j in range(8):
                a(f"v_add_f32_dpp v{CT+j}, v{CA+j}, v{CA+j} {mode} row_mask:0xf bank_mask:0xf")
            a("s_nop 1")
            for j in range(8):
                a(f"v_mov_b32 v{CA+j}, v{CT+j}")
            a("s_nop 1")
        for x in (16, 32):
            a(f"v_xor_b32 v200, {x}, v1")
            a("v_lshlrev_b32 v200, 2, v200")
            for j in range(8):
                a(f"ds_bpermute_b32 v{CT+j}, v200, v{CA+j}")
            a("s_waitcnt lgkmcnt(0)")
            for j in range(8):
                a(f"v_add_f32 v{CA+j}, v{CA+j}, v{CT+j}")
        srd(a, 96, 24, WS_CS, 16 * F * 4)
        a(f"s_mul_i32 s3, s44, {F*4}")
        a("s_lshl_b32 s45, s45, 7")
        a("s_add_u32 s3, s3, s45")
        a("v_lshlrev_b32 v200, 5, v1")
        a("s_mov_b64 exec, 15")
        a(f"buffer_store_dwordx4 {v(CA,4)}, v200, s[96:99], s3 offen")
        a(f"buffer_store_dwordx4 {v(CA+4,4)}, v200, s[96:99], s3 offen offset:16")
        a("s_mov_b64 exec, -1")
        a.label(lab_nc)
    a("v_add_u32 v7, s31, v2")
    a(f"v_lshlrev_b32 v7, 11, v7")
    a("v_lshl_add_u32 v7, v3, 3, v7")
    a("v_add_u32 v7, s33, v7")
    a("s_nop 7")
    a("s_nop 7")
    for g in range(4):
        for r in range(4):
            a(f"v_mul_f32 v{OA+4*g+r}, v{OA+4*g+r}, v5")
        a(f"v_cvt_pk_bf16_f32 v{OA+4*g}, v{OA+4*g}, v{OA+4*g+1}")
        a(f"v_cvt_pk_bf16_f32 v{OA+4*g+1}, v{OA+4*g+2}, v{OA+4*g+3}")
        a(f"buffer_store_dwordx2 {v(OA+4*g,2)}, v7, s[8:11], 0 offen offset:{16*g}")
    a.label(end)
    a("s_endpgm")
    return dict(name=name, grid=nwg + npf, block=256, lds=lds, desc=kernel_desc(name, 256 if colsum else 244))


def main():
    a = Asm()
    ks = []
    FUSE = 'nofuse' not in EXP
    SPLIT = 'split' in EXP
    L2PF = int(os.environ.get('L2PF', '0'))
    SKLO = int(os.environ.get('SKLO', '23'))
    if FUSE:
        ks.append(gen_gemm(a, "qkv_kernel", 3 * D, D, 192, 0, "wqkv", "plain", "ws", WS_QKV, NSTAGE=4, RA=8, RBN=4,
                           ln='single', a_arg='x'))
    else:
        ks.append(gen_ln(a, "ln1_kernel", "x", 0, WS_Y1, False, pf=[("wqkv", D*3*D*2), ("wo", D*D*2)]))
        ks.append(gen_gemm(a, "qkv_kernel", 3 * D, D, 192, WS_Y1, "wqkv", "plain", "ws", WS_QKV, NSTAGE=4, RA=8, RBN=4))
    ks.append(gen_attn(a, "attn_kernel", pf=[("w1", D*F*2), ("w2", F*D*2), ("wo", D*D*2)] if FUSE else [("w1", D*F*2), ("w2", F*D*2)], colsum=FUSE))
    ks.append(gen_gemm(a, "oproj_kernel", D, D, 64, WS_O, "wo", "plain", "ws", WS_H, res_arg="x", NSTAGE=6, stats_out=FUSE))
    if FUSE:
        ks.append(gen_gemm(a, "ffn1_kernel", F, D, 224, WS_H, "w1", "gelu", "ws", WS_H1, bias_arg="b1", RA=8, RBN=4,
                           ln='double', pre=True, ldo=LDH1, zero_flags=SPLIT))
    else:
        ks.append(gen_ln(a, "ln2_kernel", "ws", WS_H, WS_Y2, True))
        ks.append(gen_gemm(a, "ffn1_kernel", F, D, 224, WS_Y2, "w1", "gelu", "ws", WS_H1, bias_arg="b1", RA=8, RBN=4))
    if SPLIT:
        ks.append(gen_gemm(a, "ffn2_kernel", D, F, 128, WS_H1, "w2", "plain", "out", 0, res_arg="ws", res_off=WS_H,
                           bias_arg="b2", NSTAGE=5, lda=LDH1, RA=4, RBN=4, splitk=(SKLO, 56 - SKLO)))
    else:
        ks.append(gen_gemm(a, "ffn2_kernel", D, F, 64, WS_H1, "w2", "plain", "out", 0, res_arg="ws", res_off=WS_H,
                           bias_arg="b2", NSTAGE=6, lda=LDH1, l2pf=L2PF, RA=int(os.environ.get('F2RA','4')), RBN=32//int(os.environ.get('F2RA','4'))))
    hdr = []
    for k in ks:
        hdr.append(f"; @launch kernel={k['name']} grid=({k['grid']},1,1) block=({k['block']},1,1) lds={k['lds']}")
    txt = "\n".join(hdr) + "\n"
    txt += '.amdgcn_target "amdgcn-amd-amdhsa--gfx950"\n.text\n'
    txt += "\n".join(a.lines) + "\n"
    txt += '.section .rodata,"a"\n'
    for k in ks:
        txt += ".p2align 6\n" + k["desc"]
    open(OUT, "w").write(txt)


if __name__ == "__main__":
    main()
```

```python
import sys, math, os
EXP=os.environ.get('EXP','')
STMOD=os.environ.get('STMOD','sc0 sc1')
STALL=os.environ.get('STALL','')
RPM=int(os.environ.get('RPM','2'))

OUT = os.environ.get("OUTF","sequential_preLN__sliding_block__mixer_channel_mlp__prompt.s")

S = 2048; D = 1024; F = 3584; H = 32; DH = 32; WIN = 256
ARG = dict(x=0, wqkv=8, wo=16, bx=24, w1=32, b1=40, w2=48, b2=56, out=64, dbg=72, ws=80)
MB = 1 << 20
WS_Y1 = 0
WS_QKV = 4 * MB
WS_O = 16 * MB
WS_H = 20 * MB
WS_Y2 = 24 * MB
WS_H1 = 28 * MB
WS_ST = 0
WS_CS = 1 * MB
WS_SIZE = 256 * MB
WS_FLAG = 2 * MB
WS_PART = 64 * MB
LDH1 = F * 2 + int(os.environ.get('PADH1', '0'))


class Asm:
    def __init__(self):
        self.lines = []
        self.nlab = 0

    def __call__(self, s):
        self.lines.append("    " + s)

    def label(self, l):
        self.lines.append(l + ":")

    def newlabel(self, base="L"):
        self.nlab += 1
        return f"{base}_{self.nlab}"

    def c(self, s):
        self.lines.append("    ; " + s)


def v(i, n=1):
    return f"v{i}" if n == 1 else f"v[{i}:{i+n-1}]"


def s(i, n=1):
    return f"s{i}" if n == 1 else f"s[{i}:{i+n-1}]"


def srd(a, d, base, off, nbytes):
    if off:
        a(f"s_add_u32 s{d}, s{base}, {off}")
        a(f"s_addc_u32 s{d+1}, s{base+1}, 0")
    else:
        a(f"s_mov_b32 s{d}, s{base}")
        a(f"s_mov_b32 s{d+1}, s{base+1}")
    a(f"s_and_b32 s{d+1}, s{d+1}, 0xffff")
    a(f"s_mov_b32 s{d+2}, {nbytes}")
    a(f"s_mov_b32 s{d+3}, 0x00020000")


def hex_f32(x):
    import struct
    return hex(struct.unpack('<I', struct.pack('<f', x))[0])


def kernel_header(a, name):
    a.lines.append(".p2align 8")
    a.lines.append(f".globl {name}")
    a.lines.append(f".type {name},@function")
    a.label(name)


def kernel_desc(name, nvgpr, nsgpr=102, accum=None):
    nv = ((nvgpr + 7) // 8) * 8
    acc = accum if accum is not None else ((nvgpr + 3) // 4) * 4
    return f""".amdhsa_kernel {name}
  .amdhsa_next_free_vgpr {nv if accum is None else nvgpr}
  .amdhsa_next_free_sgpr {nsgpr}
  .amdhsa_accum_offset {min(acc,256)}
  .amdhsa_group_segment_fixed_size 0
  .amdhsa_kernarg_size 88
  .amdhsa_user_sgpr_count 2
  .amdhsa_user_sgpr_kernarg_segment_ptr 1
  .amdhsa_system_sgpr_workgroup_id_x 1
.end_amdhsa_kernel
"""


def gen_prefetch(a, regions, end_label):
    CH = 32768
    counts = [nbytes // CH for _, nbytes in regions]
    for (_, nbytes), c in zip(regions, counts):
        assert c * CH == nbytes
    total = sum(counts)
    skip = a.newlabel("L_nopf")
    a(f"s_cmp_ge_u32 s2, {total}")
    a(f"s_cbranch_scc1 {skip}")
    base = 0
    for (arg, nbytes), c in zip(regions, counts):
        nxt = a.newlabel("L_pfn")
        a(f"s_cmp_ge_u32 s2, {base + c}")
        a(f"s_cbranch_scc1 {nxt}")
        a(f"s_load_dwordx2 s[4:5], s[0:1], {ARG[arg]}")
        a(f"s_sub_u32 s3, s2, {base}")
        a("s_lshl_b32 s3, s3, 15")
        a("v_lshlrev_b32 v1, 4, v0")
        a("v_add_u32 v1, s3, v1")
        a("s_waitcnt lgkmcnt(0)")
        srd(a, 8, 4, 0, nbytes)
        for j in range(8):
            a(f"v_add_u32 v2, {4096*j}, v1")
            a(f"buffer_load_dwordx4 {v(4+4*j,4)}, v2, s[8:11], 0 offen")
        a("s_waitcnt vmcnt(0)")
        a(f"s_branch {end_label}")
        a.label(nxt)
        base += c
    a.label(skip)
    a(f"s_sub_u32 s2, s2, {total}")
    return total


def tail_prefetch(a, task, lane, regions, vtmp, vdst):
    ntask = 2048
    total = sum(n for _, n in regions)
    per = total // ntask
    assert per * ntask == total and per % 1024 == 0
    nld = per // 1024
    base = 0
    done = a.newlabel("L_pfdone")
    for arg, nbytes in regions:
        cnt = nbytes // per
        assert cnt * per == nbytes
        nxt = a.newlabel("L_pfn")
        a(f"s_cmp_ge_u32 s{task}, {base + cnt}")
        a(f"s_cbranch_scc1 {nxt}")
        a(f"s_load_dwordx2 s[94:95], s[0:1], {ARG[arg]}")
        a(f"s_sub_u32 s93, s{task}, {base}")
        a(f"s_mul_i32 s93, s93, {per}")
        a(f"v_lshlrev_b32 {v(vtmp)}, 4, {v(lane)}")
        a(f"v_add_u32 {v(vtmp)}, s93, {v(vtmp)}")
        a("s_waitcnt lgkmcnt(0)")
        srd(a, 96, 94, 0, nbytes)
        for j in range(nld):
            if j and j % 4 == 0:
                a(f"v_add_u32 {v(vtmp)}, 4096, {v(vtmp)}")
            a(f"buffer_load_dwordx4 {v(vdst,4)}, {v(vtmp)}, s[96:99], 0 offen offset:{1024*(j%4)}")
        a(f"s_branch {done}")
        a.label(nxt)
        base += cnt
    a.label(done)
    return nld

def gen_ln(a, name, src_arg, src_off, dst_off, double, pf=None):
    nwg = S // 4
    kernel_header(a, name)
    end = a.newlabel("L_end")
    npf = 0
    a(f"s_cmp_ge_u32 s2, {nwg}")
    a(f"s_cbranch_scc1 {end}")
    a(f"s_load_dwordx2 s[4:5], s[0:1], {ARG[src_arg]}")
    a(f"s_load_dwordx2 s[6:7], s[0:1], {ARG['ws']}")
    a("v_lshrrev_b32 v1, 6, v0")
    a("v_and_b32 v2, 63, v0")
    a("s_lshl_b32 s3, s2, 2")
    a("v_add_u32 v1, s3, v1")
    a("v_lshlrev_b32 v3, 11, v1")
    a("v_lshl_add_u32 v3, v2, 5, v3")
    for i, m in enumerate([1, 2, 4, 8, 16, 32]):
        a(f"v_xor_b32 v{12+i}, {m}, v2")
        a(f"v_lshlrev_b32 v{12+i}, 2, v{12+i}")
    a("s_waitcnt lgkmcnt(0)")
    srd(a, 8, 4, src_off, S * D * 2)
    srd(a, 12, 6, dst_off, S * D * 2)
    a("buffer_load_dwordx4 v[4:7], v3, s[8:11], 0 offen")
    a("buffer_load_dwordx4 v[8:11], v3, s[8:11], 0 offen offset:16")
    npl = 0
    if pf:
        a("v_readfirstlane_b32 s92, v1")
        a("s_nop 3")
        npl = tail_prefetch(a, 92, 2, pf, 44, 48)
    a(f"s_waitcnt vmcnt({npl})")

    def unpack():
        for i in range(8):
            a(f"v_lshlrev_b32 v{20+2*i}, 16, v{4+i}")
            a(f"v_and_b32 v{21+2*i}, 0xffff0000, v{4+i}")

    def bfly():
        for i in range(6):
            a(f"ds_bpermute_b32 v41, v{12+i}, v40")
            a("s_waitcnt lgkmcnt(0)")
            a("v_add_f32 v40, v40, v41")

    def norm():
        a("v_add_f32 v40, v20, v21")
        for i in range(2, 16):
            a(f"v_add_f32 v40, v40, v{20+i}")
        bfly()
        a("v_mul_f32 v40, 0x3a800000, v40")
        for i in range(16):
            a(f"v_sub_f32 v{20+i}, v{20+i}, v40")
        a("v_mul_f32 v40, v20, v20")
        for i in range(1, 16):
            a(f"v_fmac_f32 v40, v{20+i}, v{20+i}")
        bfly()
        a("v_mov_b32 v42, 0x3727c5ac")
        a("v_fma_f32 v40, v40, v43, v42")
        a("v_rsq_f32 v40, v40")
        a("s_nop 0")
        for i in range(16):
            a(f"v_mul_f32 v{20+i}, v{20+i}, v40")
        for i in range(8):
            a(f"v_cvt_pk_bf16_f32 v{4+i}, v{20+2*i}, v{21+2*i}")

    a("v_mov_b32 v43, 0x3a800000")
    unpack()
    norm()
    if double:
        unpack()
        norm()
    a("buffer_store_dwordx4 v[4:7], v3, s[12:15], 0 offen")
    a("buffer_store_dwordx4 v[8:11], v3, s[12:15], 0 offen offset:16")
    a.label(end)
    a("s_endpgm")
    return dict(name=name, grid=nwg + npf, block=256, lds=0, desc=kernel_desc(name, 56))


def gen_gemm(a, name, N, K, BN, a_off, w_arg, epi, out_arg, out_off, res_arg=None, res_off=0,
             bias_arg=None, BM=128, NSTAGE=3, RA=4, RBN=8, ln=None, a_arg='ws', pre=False, stats_out=False, lda=None, ldo=None, splitk=None, zero_flags=False, l2pf=0, wpf=None):
    import struct
    M = S
    BK = 64
    lda = lda or K * 2
    ldo = ldo or N * 2
    NT_M = M // BM
    NT_N = N // BN
    ntiles = NT_M * NT_N
    MT = BM // 2 // 16
    NTW = BN // 2 // 16
    RB = {64: 128, 128: 128, 192: 128, 96: 64, 224: 448, 112: 32}[BN]
    ABYTES = BM * BK * 2
    BBYTES = BK * BN * 2
    STAGE = ABYTES + BBYTES
    PA = ABYTES // 1024 // 4
    PB = BBYTES // 1024 // 4
    assert PA * 4096 == ABYTES and PB * 4096 == BBYTES
    P = PA + PB
    NS = K // BK
    if splitk:
        NSLO, NSHI = splitk
        assert NSLO + NSHI == NS and (NSLO - NSHI) % NSTAGE == 0
        NS = NSHI
        ntiles *= 2
    lds = STAGE * NSTAGE
    CROW = BN * 2 + 16
    CSZ = BM * CROW
    LASTB = (NS - 1) % NSTAGE
    TBL = 2048 if (ln and not pre) else 0
    CBASE = 0 if LASTB * STAGE >= CSZ + TBL else (LASTB + 1) * STAGE
    assert CBASE + CSZ + TBL <= lds
    EPI = lds
    st_res = bool(res_arg) and not splitk
    if splitk:
        DONE = CBASE + CSZ
        assert DONE + 16 <= (LASTB * STAGE if CBASE == 0 else lds)
    st_bias = pre
    if st_res: lds += BM * BN * 2
    if st_bias: lds += 3072 + 4096
    assert lds <= 163840
    if pre:
        CTAB = EPI + 1024; RTAB = EPI + 2048
    else:
        RTAB = CBASE + CSZ; CTAB = RTAB + 1024
    NEX = (BM * BN * 2 // 4096 if st_res else 0)
    PPR = RB // 32
    lg_ppr = int(math.log2(PPR)) if RB != 448 else 0

    vA = list(range(2, 2 + PA))
    vB = list(range(2 + PA, 2 + PA + PB))
    nxt = 2 + PA + PB
    vXb = [nxt, nxt + 1]; nxt += 2
    vWb = list(range(nxt, nxt + NTW)); nxt += NTW
    vXc = [nxt, nxt + 1]; nxt += 2
    vWc = list(range(nxt, nxt + NTW)); nxt += NTW
    vT = list(range(nxt, nxt + 8)); nxt += 8
    nxt = (nxt + 3) // 4 * 4
    FX = [nxt, nxt + 4 * MT]; nxt += 8 * MT
    FW = [nxt, nxt + 4 * NTW]; nxt += 8 * NTW
    ACC = nxt; nxt += 4 * MT * NTW
    PBI = nxt
    if bias_arg and not pre: nxt += 2 * NTW
    if l2pf or wpf:
        nxt = (nxt + 3) // 4 * 4
        PFD = nxt; PFV = nxt + 4; nxt += 5
    if splitk:
        PRT = nxt; nxt += 4 * MT * NTW
        PFL = nxt; PFA = nxt + 1; PPA = nxt + 2; nxt += 3
    nvgpr = nxt
    assert nvgpr <= 256
    t0, t1, t2, t3 = vT[0], vT[1], vT[2], vT[3]

    def acc(nt, mt):
        return ACC + 4 * (nt * MT + mt)

    def stamp(i):
        if 'stamp' in EXP:
            if 'rt' in EXP and i in (1, 6):
                a(f"s_memrealtime s[{60+2*i}:{61+2*i}]")
                a(f"s_memtime s[{62 if i == 1 else 70}+0:{63 if i == 1 else 71}]".replace("+0","")) if False else None
            else:
                a(f"s_memtime s[{60+2*i}:{61+2*i}]")
            if i >= 6: a("s_waitcnt lgkmcnt(0)")

    def stamp_out():
        if 'stamp' not in EXP: return
        a("s_waitcnt lgkmcnt(0)")
        srd(a, 80, 24, 200 * MB, 1 << 20)
        a("s_lshl_b32 s3, s2, 3")
        a("s_add_u32 s3, s3, s49")
        a("s_lshl_b32 s3, s3, 6")
        a("v_mov_b32 v2, s3")
        for i in range(8):
            a(f"v_mov_b32 v4, s{60+2*i}")
            a(f"v_mov_b32 v5, s{61+2*i}")
            a(f"buffer_store_dwordx2 v[4:5], v2, s[80:83], 0 offen offset:{8*i}")
            a("s_nop 1")

    def wfrag_addr_common():
        a(f"v_lshrrev_b32 {v(t1)}, 4, v1")
        a(f"v_bfe_u32 {v(t0)}, v1, 2, 2")
        a(f"v_lshl_add_u32 {v(t2)}, {v(t1)}, 3, {v(t0)}")
        if RB == 256:
            a(f"v_and_b32 {v(t3)}, 1, {v(t1)}")
            a(f"v_lshl_add_u32 {v(t3)}, {v(t3)}, 2, {v(t0)}")
        elif RB == 128:
            a(f"v_and_b32 {v(t3)}, 1, {v(t1)}")
            a(f"v_lshrrev_b32 {v(t0)}, 1, {v(t0)}")
            a(f"v_lshl_add_u32 {v(t3)}, {v(t3)}, 1, {v(t0)}")
        elif RB in (64, 448):
            a(f"v_and_b32 {v(t3)}, 1, {v(t1)}")
        else:
            a(f"v_mov_b32 {v(t3)}, 0")
        a(f"v_mul_u32_u24 {v(t2)}, {RB}, {v(t2)}")
        a(f"v_and_b32 {v(t0)}, 3, v1")
        a(f"v_lshl_add_u32 {v(t2)}, {v(t0)}, 3, {v(t2)}")
        a(f"v_add_u32 {v(t2)}, {ABYTES}, {v(t2)}")

    def wfrag_addr(dst):
        if RB == 448:
            a("s_mov_b32 s47, 0")
        elif PPR > 1:
            a(f"s_lshr_b32 s47, s46, {lg_ppr}")
            a(f"s_and_b32 s46, s46, {PPR-1}")
        else:
            a("s_mov_b32 s47, s46")
            a("s_mov_b32 s46, 0")
        a(f"s_mul_i32 s47, s47, {64*RB}")
        a(f"v_xor_b32 {v(t0)}, s46, {v(t3)}")
        a(f"v_lshl_add_u32 {v(t0)}, {v(t0)}, 5, {v(t2)}")
        a(f"v_add_u32 {v(dst)}, s47, {v(t0)}")

    kernel_header(a, name)
    end = a.newlabel("L_end")
    stamp(0)
    lab_loader = a.newlabel("L_loader")
    lab_store = a.newlabel("L_store")
    a(f"s_cmp_ge_u32 s2, {ntiles}")
    a(f"s_cbranch_scc1 {end}")
    a(f"s_load_dwordx2 s[24:25], s[0:1], {ARG['ws']}")
    a(f"s_load_dwordx2 s[58:59], s[0:1], {ARG[a_arg]}")
    a(f"s_load_dwordx2 s[26:27], s[0:1], {ARG[w_arg]}")
    a(f"s_load_dwordx2 s[34:35], s[0:1], {ARG[out_arg]}")
    if res_arg:
        a(f"s_load_dwordx2 s[36:37], s[0:1], {ARG[res_arg]}")
    if bias_arg:
        a(f"s_load_dwordx2 s[38:39], s[0:1], {ARG[bias_arg]}")
    assert ntiles == 256 and RA * RBN == (16 if splitk else 32) and NT_M % RA == 0 and NT_N % RBN == 0
    XB = NT_N // RBN
    a("s_and_b32 s3, s2, 7")
    a("s_lshr_b32 s46, s2, 3")
    if splitk:
        a("s_lshr_b32 s92, s46, 4")
        a("s_and_b32 s46, s46, 15")
        a("s_lshl_b32 s96, s3, 4")
        a("s_add_u32 s96, s96, s46")
        a("s_cmp_eq_u32 s92, 0")
        a(f"s_cselect_b32 s93, {NSLO}, {NSHI}")
        a("s_mov_b32 s94, 1")
    a(f"s_lshr_b32 s28, s3, {int(math.log2(XB))}")
    a(f"s_and_b32 s29, s3, {XB-1}")
    a(f"s_mul_i32 s28, s28, {RA}")
    a(f"s_mul_i32 s29, s29, {RBN}")
    a(f"s_lshr_b32 s3, s46, {int(math.log2(RBN))}")
    a("s_add_u32 s28, s28, s3")
    a(f"s_and_b32 s3, s46, {RBN-1}")
    a("s_add_u32 s29, s29, s3")
    a("v_and_b32 v1, 63, v0")
    a(f"v_lshrrev_b32 {v(vT[0])}, 6, v0")
    a("s_nop 0")
    a(f"v_readfirstlane_b32 s49, {v(vT[0])}")
    a("s_nop 3")
    a("s_and_b32 s30, s49, 3")
    a("s_lshr_b32 s44, s30, 1")
    a("s_and_b32 s45, s30, 1")

    def build_srds():
        a("s_waitcnt lgkmcnt(0)")
        srd(a, 4, 58, a_off, M * lda)
        srd(a, 8, 26, 0, K * N * 2)
        srd(a, 12, 34, out_off, M * ldo)
        if res_arg:
            srd(a, 16, 36, res_off, M * N * 2)
        if bias_arg:
            srd(a, 20, 38, 0, N * 2)
        if pre or stats_out:
            srd(a, 84, 24, WS_ST, S * 128)
        if pre:
            srd(a, 88, 24, WS_CS, 16 * N * 4)
        if splitk:
            srd(a, 84, 24, WS_PART, 128 * 65536)
            srd(a, 88, 24, WS_FLAG, 512)

    a("s_cmp_ge_u32 s49, 4")
    a(f"s_cbranch_scc1 {lab_loader}")

    a(f"v_and_b32 {v(t0)}, 15, v1")
    a("s_lshl_b32 s3, s44, 6")
    a(f"v_add_u32 {v(t0)}, s3, {v(t0)}")
    a(f"v_lshlrev_b32 {v(t0)}, 7, {v(t0)}")
    a(f"v_lshrrev_b32 {v(t1)}, 4, v1")
    a(f"v_bfe_u32 {v(t2)}, v1, 1, 3")
    a(f"v_xor_b32 {v(t3)}, {v(t1)}, {v(t2)}")
    a(f"v_lshl_add_u32 {v(vXb[0])}, {v(t3)}, 4, {v(t0)}")
    a(f"v_xor_b32 {v(t3)}, 4, {v(t3)}")
    a(f"v_lshl_add_u32 {v(vXb[1])}, {v(t3)}, 4, {v(t0)}")
    wfrag_addr_common()
    a(f"s_mul_i32 s3, s45, {NTW}")
    for nt in range(NTW):
        a(f"s_add_u32 s46, s3, {nt}")
        wfrag_addr(vWb[nt])
    for i in range(4 * MT * NTW):
        a(f"v_mov_b32 v{ACC+i}, 0")
    a("s_mov_b32 s42, 0")
    build_srds()
    if bias_arg and not pre:
        a(f"v_lshrrev_b32 {v(t0)}, 4, v1")
        a(f"v_lshlrev_b32 {v(t0)}, 3, {v(t0)}")
        a(f"s_mul_i32 s3, s29, {BN*2}")
        a(f"s_mul_i32 s46, s45, {BN}")
        a("s_add_u32 s3, s3, s46")
        for nt in range(NTW):
            a(f"buffer_load_dwordx2 {v(PBI+2*nt,2)}, {v(t0)}, s[20:23], s3 offen offset:{32*nt}")

    def set_cur():
        for kk in range(2):
            a(f"v_add_u32 {v(vXc[kk])}, s42, {v(vXb[kk])}")
        for nt in range(NTW):
            a(f"v_add_u32 {v(vWc[nt])}, s42, {v(vWb[nt])}")
        a(f"s_add_u32 s42, s42, {STAGE}")
        a(f"s_cmp_ge_u32 s42, {STAGE*NSTAGE}")
        a("s_cselect_b32 s42, 0, s42")

    def read_list(kk, f):
        if 'noreads' in EXP: return []
        L = []
        for nt in range(NTW):
            if nt < MT:
                L.append(f"ds_read_b128 {v(FX[f]+4*nt,4)}, {v(vXc[kk])} offset:{nt*2048}")
            for rd in range(2):
                L.append(f"ds_read_b64_tr_b16 {v(FW[f]+4*nt+2*rd,2)}, {v(vWc[nt])} offset:{kk*32*RB+rd*4*RB}")
        for mt in range(NTW, MT):
            L.append(f"ds_read_b128 {v(FX[f]+4*mt,4)}, {v(vXc[kk])} offset:{mt*2048}")
        return L

    def mfma_list(f):
        if 'nomfma' in EXP: return []
        L = []
        for nt in range(NTW):
            for mt in range(MT):
                L.append(f"v_mfma_f32_16x16x32_bf16 {v(acc(nt,mt),4)}, {v(FW[f]+4*nt,4)}, {v(FX[f]+4*mt,4)}, {v(acc(nt,mt),4)}")
        return L

    def reads(kk, f):
        for x in read_list(kk, f): a(x)

    def mfmas(f):
        for x in mfma_list(f): a(x)

    def inter(kk, fr, fm):
        R = read_list(kk, fr); Mm = mfma_list(fm)
        rpm = RPM if NTW <= 4 else 1
        ri = 0
        for i in range(len(Mm)):
            a(Mm[i])
            for _ in range(rpm):
                if ri < len(R): a(R[ri]); ri += 1
        while ri < len(R): a(R[ri]); ri += 1

    if wpf:
        a("s_lshl_b32 s3, s2, 2")
        a("s_add_u32 s3, s3, s30")
        for q, (arg, nbytes, hi) in enumerate(wpf):
            a(f"s_load_dwordx2 s[{94+2*q}:{95+2*q}], s[0:1], {ARG[arg]}")
            a(f"s_mul_i32 s{92+q}, s3, {nbytes//1024}")
        a("s_waitcnt lgkmcnt(0)")
        for q, (arg, nbytes, hi) in enumerate(wpf):
            assert nbytes % (1 << 20) == 0
            srd(a, 84 + 4 * q, 94 + 2 * q, 0, nbytes)
        a(f"v_lshlrev_b32 {v(PFV)}, 4, v1")
    if l2pf:
        NPA = RA * BM // 8
        NPW = BK * (RBN * BN * 2) // 1024
        WPR = RBN * BN * 2 // 1024
        assert NPA + NPW == 128 and WPR == 1
        lw = a.newlabel("L_pfw"); ld = a.newlabel("L_pfd")
        a("s_lshr_b32 s3, s2, 3")
        a("s_lshl_b32 s3, s3, 2")
        a("s_add_u32 s3, s3, s30")
        a(f"s_cmp_ge_u32 s3, {NPA}")
        a(f"s_cbranch_scc1 {lw}")
        a(f"s_lshr_b32 s46, s28, {int(math.log2(RA))}")
        a(f"s_mul_i32 s46, s46, {RA*BM}")
        a("s_lshl_b32 s3, s3, 3")
        a("s_add_u32 s3, s3, s46")
        a(f"v_lshrrev_b32 {v(PFV)}, 3, v1")
        a(f"v_add_u32 {v(PFV)}, s3, {v(PFV)}")
        a(f"v_mul_u32_u24 {v(PFV)}, {lda}, {v(PFV)}")
        a(f"v_and_b32 {v(t0)}, 7, v1")
        a(f"v_lshl_add_u32 {v(PFV)}, {v(t0)}, 4, {v(PFV)}")
        for i in range(4): a(f"s_mov_b32 s{84+i}, s{4+i}")
        a(f"s_mov_b32 s92, {l2pf*BK*2}")
        a(f"s_mov_b32 s93, {BK*2}")
        a(f"s_branch {ld}")
        a.label(lw)
        a(f"s_sub_u32 s3, s3, {NPA}")
        a(f"s_mul_i32 s3, s3, {N*2}")
        a(f"s_lshr_b32 s46, s29, {int(math.log2(RBN))}")
        a(f"s_mul_i32 s46, s46, {RBN*BN*2}")
        a("s_add_u32 s3, s3, s46")
        a(f"v_lshlrev_b32 {v(PFV)}, 4, v1")
        a(f"v_add_u32 {v(PFV)}, s3, {v(PFV)}")
        for i in range(4): a(f"s_mov_b32 s{84+i}, s{8+i}")
        a(f"s_mov_b32 s92, {l2pf*BK*N*2}")
        a(f"s_mov_b32 s93, {BK*N*2}")
        a.label(ld)
        a(f"s_mul_i32 s3, s93, {NSTAGE-1}")
        for j in range(NSTAGE - 1, l2pf):
            a(f"buffer_load_dwordx4 {v(PFD,4)}, {v(PFV)}, s[84:87], s3 offen")
            a("s_add_u32 s3, s3, s93")
    if splitk:
        a("s_xor_b32 s95, s92, 1")
        a(f"v_mov_b32 {v(PFL)}, 0")
        a("s_lshl_b32 s3, s96, 2")
        a(f"v_mov_b32 {v(PFA)}, s3")
        a("s_add_u32 s3, s3, s30")
        a("s_lshl_b32 s3, s3, 14")
        a(f"v_lshlrev_b32 {v(PPA)}, 4, v1")
        a(f"v_add_u32 {v(PPA)}, s3, {v(PPA)}")
    stamp(1)
    lab_cpass = a.newlabel("L_cpass")
    a.label(lab_cpass)
    a("s_barrier")
    stamp(2)
    set_cur()
    reads(0, 0)
    a("s_waitcnt lgkmcnt(0)")
    inter(1, 1, 0)
    a("s_waitcnt lgkmcnt(0)")
    if splitk: a("s_sub_u32 s48, s93, 1")
    else: a(f"s_mov_b32 s48, {NS-1}")
    loop = a.newlabel("L_cloop")
    a.label(loop)
    a("s_barrier")
    set_cur()
    inter(0, 0, 1)
    a("s_waitcnt lgkmcnt(0)")
    inter(1, 1, 0)
    if l2pf:
        a(f"buffer_load_dwordx4 {v(PFD,4)}, {v(PFV)}, s[84:87], s92 offen")
        a("s_add_u32 s92, s92, s93")
    if wpf:
        for q, (arg, nbytes, hi) in enumerate(wpf):
            n = nbytes >> 20
            lsk = a.newlabel("L_wpfs")
            a(f"s_sub_u32 s3, s48, {hi-n+1}")
            a(f"s_cmp_ge_u32 s3, {n}")
            a(f"s_cbranch_scc1 {lsk}")
            a(f"buffer_load_dwordx4 {v(PFD,4)}, {v(PFV)}, s[{84+4*q}:{87+4*q}], s{92+q} offen")
            a(f"s_add_u32 s{92+q}, s{92+q}, 1024")
            a.label(lsk)
    if splitk:
        cskip = a.newlabel("L_cskip"); cpoll = a.newlabel("L_cpoll")
        a("s_cmp_lg_u32 s95, 0")
        a(f"s_cbranch_scc1 {cskip}")
        a(f"v_readfirstlane_b32 s3, {v(PFL)}")
        a("s_nop 3")
        a("s_cmp_eq_u32 s3, 0")
        a(f"s_cbranch_scc1 {cpoll}")
        a("s_mov_b32 s95, 1")
        for t_ in range(MT * NTW):
            a(f"s_mov_b32 s3, {1024*t_}")
            a(f"buffer_load_dwordx4 {v(PRT+4*t_,4)}, {v(PPA)}, s[84:87], s3 offen")
        a(f"s_branch {cskip}")
        a.label(cpoll)
        if 'forcefb' not in EXP: a(f"buffer_load_dword {v(PFL)}, {v(PFA)}, s[88:91], 0 offen sc0 sc1")
        a.label(cskip)
    a("s_waitcnt lgkmcnt(0)")
    a("s_sub_u32 s48, s48, 1")
    a("s_cmp_lg_u32 s48, 0")
    a(f"s_cbranch_scc1 {loop}")
    stamp(3)
    mfmas(1)
    if ln and not pre:
        a("s_barrier")
    if splitk:
        lab_hi = a.newlabel("L_hi"); lab_epi = a.newlabel("L_epi"); lab_fb = a.newlabel("L_fb")
        a("s_cmp_lg_u32 s92, 0")
        a(f"s_cbranch_scc1 {lab_hi}")
        a("s_nop 7")
        for t_ in range(MT * NTW):
            a(f"s_mov_b32 s3, {1024*t_}")
            a(f"buffer_store_dwordx4 {v(ACC+4*t_,4)}, {v(PPA)}, s[84:87], s3 offen sc0 sc1")
        a("s_waitcnt vmcnt(0)")
        a("s_barrier")
        a("s_cmp_lg_u32 s30, 0")
        a(f"s_cbranch_scc1 {end}")
        a(f"v_mov_b32 {v(t1)}, 1")
        a("s_mov_b64 exec, 1")
        a(f"buffer_store_dword {v(t1)}, {v(PFA)}, s[88:91], 0 offen sc0 sc1")
        a(f"s_branch {end}")
        a.label(lab_hi)
        a("s_lshl_b32 s3, s30, 2")
        a(f"s_add_u32 s3, s3, {DONE}")
        a(f"v_mov_b32 {v(t0)}, s3")
        a(f"v_mov_b32 {v(t1)}, s95")
        a(f"ds_write_b32 {v(t0)}, {v(t1)}")
        a("s_waitcnt lgkmcnt(0)")
        a("s_barrier")
        a("s_cmp_eq_u32 s94, 2")
        a(f"s_cbranch_scc1 {lab_epi}")
        a(f"v_mov_b32 {v(t1)}, {DONE}")
        a(f"ds_read_b128 {v(FX[0],4)}, {v(t1)}")
        a("s_waitcnt lgkmcnt(0)")
        a(f"v_and_b32 {v(FX[0])}, {v(FX[0])}, {v(FX[0]+1)}")
        a(f"v_and_b32 {v(FX[0]+2)}, {v(FX[0]+2)}, {v(FX[0]+3)}")
        a(f"v_and_b32 {v(FX[0])}, {v(FX[0])}, {v(FX[0]+2)}")
        a("s_nop 0")
        a(f"v_readfirstlane_b32 s3, {v(FX[0])}")
        a("s_nop 3")
        a("s_cmp_eq_u32 s3, 1")
        a(f"s_cbranch_scc0 {lab_fb}")
        a("s_waitcnt vmcnt(0)")
        for t_ in range(MT * NTW):
            for j in range(2):
                a(f"v_pk_add_f32 {v(ACC+4*t_+2*j,2)}, {v(ACC+4*t_+2*j,2)}, {v(PRT+4*t_+2*j,2)}")
        a(f"s_branch {lab_epi}")
        a.label(lab_fb)
        a("s_mov_b32 s94, 2")
        a("s_mov_b32 s95, 1")
        a(f"s_mov_b32 s93, {NSLO}")
        a("s_mov_b32 s42, 0")
        a("s_barrier")
        a(f"s_branch {lab_cpass}")
        a.label(lab_epi)
    RT = FX[0]; CS = RT + 8; BR = CS + 4 * NTW; BF = BR + 2 * NTW; GE = BF + 4 * NTW
    assert GE + 10 <= ACC
    a(f"v_and_b32 {v(t2)}, 15, v1")
    a("s_lshl_b32 s3, s44, 6")
    a(f"v_add_u32 {v(t2)}, s3, {v(t2)}")
    a(f"v_lshrrev_b32 {v(t3)}, 4, v1")
    a(f"s_mul_i32 s3, s45, {NTW*4}")
    a(f"v_add_u32 {v(t3)}, s3, {v(t3)}")
    if ln:
        a(f"v_lshlrev_b32 {v(t0)}, 3, {v(t2)}")
        a(f"v_add_u32 {v(t0)}, {RTAB}, {v(t0)}")
        for mt in range(MT):
            a(f"ds_read_b64 {v(RT+2*mt,2)}, {v(t0)} offset:{128*mt}")
        a(f"v_lshlrev_b32 {v(t0)}, 4, {v(t3)}")
        a(f"v_add_u32 {v(t0)}, {CTAB}, {v(t0)}")
        for nt in range(NTW):
            a(f"ds_read_b128 {v(CS+4*nt,4)}, {v(t0)} offset:{64*nt}")
    if bias_arg and pre:
        a(f"v_lshlrev_b32 {v(t0)}, 3, {v(t3)}")
        a(f"v_add_u32 {v(t0)}, {EPI}, {v(t0)}")
        for nt in range(NTW):
            a(f"ds_read_b64 {v(BR+2*nt,2)}, {v(t0)} offset:{32*nt}")
    vc = vT[0]
    a(f"v_mul_u32_u24 {v(t2)}, {CROW}, {v(t2)}")
    a(f"v_lshl_add_u32 {v(vc)}, {v(t3)}, 3, {v(t2)}")
    if CBASE: a(f"v_add_u32 {v(vc)}, {CBASE}, {v(vc)}")
    if epi == 'gelu':
        c2 = 2 * math.log2(math.e)
        k1 = struct.unpack("<I", struct.pack("<f", 0.7978845608 * c2))[0]
        k3 = struct.unpack("<I", struct.pack("<f", 0.7978845608 * 0.044715 * c2))[0]
        a(f"s_mov_b32 s52, {k3}"); a(f"s_mov_b32 s53, {k3}")
        a(f"v_mov_b32 {v(GE+8)}, {k1}"); a(f"v_mov_b32 {v(GE+9)}, {k1}")
        a("s_mov_b32 s56, 1.0"); a("s_mov_b32 s57, 1.0")
    a("s_waitcnt vmcnt(0) lgkmcnt(0)" if (bias_arg and not pre) else "s_waitcnt lgkmcnt(0)")
    a("s_nop 7")
    if bias_arg:
        bsrc = BR if pre else PBI
        for nt in range(NTW):
            for j in range(2):
                a(f"v_lshlrev_b32 {v(BF+4*nt+2*j)}, 16, {v(bsrc+2*nt+j)}")
                a(f"v_and_b32 {v(BF+4*nt+2*j+1)}, 0xffff0000, {v(bsrc+2*nt+j)}")
    for nt in range(NTW):
        for mp in range(0, MT, 2):
            c0 = acc(nt, mp)
            for q in range(2):
                mt = mp + q
                for j in range(2):
                    cc = v(c0 + 4 * q + 2 * j, 2)
                    tt = v(GE + 4 * q + 2 * j, 2)
                    if ln:
                        if bias_arg:
                            a(f"v_pk_fma_f32 {tt}, {v(CS+4*nt+2*j,2)}, {v(RT+2*mt,2)}, {v(BF+4*nt+2*j,2)} op_sel:[0,1,0] op_sel_hi:[1,1,1]")
                        else:
                            a(f"v_pk_mul_f32 {tt}, {v(CS+4*nt+2*j,2)}, {v(RT+2*mt,2)} op_sel:[0,1] op_sel_hi:[1,1]")
                    elif bias_arg:
                        a(f"v_pk_add_f32 {cc}, {cc}, {v(BF+4*nt+2*j,2)}")
            if ln:
                for q in range(2):
                    mt = mp + q
                    for j in range(2):
                        cc = v(c0 + 4 * q + 2 * j, 2)
                        tt = v(GE + 4 * q + 2 * j, 2)
                        a(f"v_pk_fma_f32 {cc}, {cc}, {v(RT+2*mt,2)}, {tt} op_sel:[0,0,0] op_sel_hi:[1,0,1]")
            if epi == 'gelu':
                for j in range(4):
                    a(f"v_pk_mul_f32 {v(GE+2*j,2)}, {v(c0+2*j,2)}, {v(c0+2*j,2)}")
                for j in range(4):
                    a(f"v_pk_fma_f32 {v(GE+2*j,2)}, {v(GE+2*j,2)}, s[52:53], {v(GE+8,2)}")
                for j in range(4):
                    a(f"v_pk_mul_f32 {v(GE+2*j,2)}, {v(GE+2*j,2)}, {v(c0+2*j,2)}")
                for r in range(8):
                    a(f"v_exp_f32 {v(GE+r)}, {v(GE+r)}")
                a("s_nop 0")
                for j in range(4):
                    a(f"v_pk_add_f32 {v(GE+2*j,2)}, {v(GE+2*j,2)}, s[56:57]")
                for r in range(8):
                    a(f"v_rcp_f32 {v(GE+r)}, {v(GE+r)}")
                a("s_nop 0")
                for j in range(4):
                    cc = v(c0 + 2 * j, 2)
                    a(f"v_pk_fma_f32 {cc}, {cc}, {v(GE+2*j,2)}, {cc} neg_lo:[1,0,0] neg_hi:[1,0,0]")
            for j in range(4):
                a(f"v_cvt_pk_bf16_f32 {v(c0+j)}, {v(c0+2*j)}, {v(c0+2*j+1)}")
            for q in range(2):
                a(f"ds_write_b64 {v(vc)}, {v(c0+2*q,2)} offset:{(mp+q)*16*CROW + nt*32}")
    a("s_waitcnt lgkmcnt(0)")
    stamp(4)
    a("s_barrier")
    a(f"s_branch {lab_store}")

    a.label(lab_loader)
    if 'noprio' not in EXP: a("s_setprio 2")
    NPL = (BN // 16 + 3) // 4
    LSA = 40
    LCW = 44
    LSC = 48; LCC = 52
    LONE = 56
    LST = 60
    LMS = 132
    LCS = 68
    LSD = 84
    LWD = 100
    assert vT[7] < 40
    a(f"s_mul_i32 s3, s30, {PA*8}")
    a(f"v_lshrrev_b32 {v(t0)}, 3, v1")
    a(f"v_add_u32 {v(t0)}, s3, {v(t0)}")
    a(f"s_mul_i32 s3, s28, {BM}")
    for i in range(PA):
        a(f"v_add_u32 {v(t1)}, {8*i}, {v(t0)}")
        a(f"v_lshrrev_b32 {v(t2)}, 1, {v(t1)}")
        a(f"v_and_b32 {v(t2)}, 7, {v(t2)}")
        a(f"v_and_b32 {v(t3)}, 7, v1")
        a(f"v_xor_b32 {v(t2)}, {v(t2)}, {v(t3)}")
        a(f"v_add_u32 {v(t1)}, s3, {v(t1)}")
        a(f"v_mul_u32_u24 {v(t1)}, {lda}, {v(t1)}")
        a(f"v_lshl_add_u32 {v(vA[i])}, {v(t2)}, 4, {v(t1)}")
    a(f"s_mul_i32 s3, s29, {BN*2}")
    if RB == 448:
        a(f"s_mov_b32 s47, {((1 << 32) + 27) // 28}")
        for i in range(PB):
            a(f"s_mul_i32 s46, s30, {PB*64}")
            a(f"s_add_u32 s46, s46, {i*64}")
            a(f"v_add_u32 {v(t1)}, s46, v1")
            a(f"v_mul_hi_u32 {v(t0)}, {v(t1)}, s47")
            a(f"v_mul_u32_u24 {v(t2)}, 28, {v(t0)}")
            a(f"v_sub_u32 {v(t1)}, {v(t1)}, {v(t2)}")
            a(f"v_bfe_u32 {v(t2)}, {v(t0)}, 3, 1")
            a(f"v_lshlrev_b32 {v(t2)}, 1, {v(t2)}")
            a(f"v_xor_b32 {v(t1)}, {v(t1)}, {v(t2)}")
            a(f"v_mul_u32_u24 {v(t0)}, {N*2}, {v(t0)}")
            a(f"v_lshl_add_u32 {v(t0)}, {v(t1)}, 4, {v(t0)}")
            a(f"v_add_u32 {v(vB[i])}, s3, {v(t0)}")
    else:
      CPR = RB // 16
      lg_cpr = int(math.log2(CPR))
      RPP = 1024 // RB
      PPB = RB // 16
      lg_ppb = int(math.log2(PPB))
      for i in range(PB):
        a(f"s_mul_i32 s46, s30, {PB}")
        a(f"s_add_u32 s46, s46, {i}")
        a(f"s_lshr_b32 s47, s46, {lg_ppb}")
        a(f"s_and_b32 s46, s46, {PPB-1}")
        a(f"s_mul_i32 s46, s46, {RPP}")
        a(f"s_mul_i32 s47, s47, {RB}")
        a("s_add_u32 s47, s47, s3")
        a(f"v_lshrrev_b32 {v(t0)}, {lg_cpr}, v1")
        a(f"v_add_u32 {v(t0)}, s46, {v(t0)}")
        a(f"v_and_b32 {v(t1)}, {CPR-1}, v1")
        if RB == 256:
            a(f"v_and_b32 {v(t2)}, 3, {v(t0)}")
            a(f"v_bfe_u32 {v(t3)}, {v(t0)}, 3, 1")
            a(f"v_lshl_add_u32 {v(t2)}, {v(t3)}, 2, {v(t2)}")
        elif RB == 128:
            a(f"v_bfe_u32 {v(t2)}, {v(t0)}, 1, 1")
            a(f"v_bfe_u32 {v(t3)}, {v(t0)}, 3, 1")
            a(f"v_lshl_add_u32 {v(t2)}, {v(t3)}, 1, {v(t2)}")
        elif RB == 64:
            a(f"v_bfe_u32 {v(t2)}, {v(t0)}, 3, 1")
        else:
            a(f"v_mov_b32 {v(t2)}, 0")
        a(f"v_lshlrev_b32 {v(t2)}, 1, {v(t2)}")
        a(f"v_xor_b32 {v(t1)}, {v(t1)}, {v(t2)}")
        a(f"v_mul_u32_u24 {v(t0)}, {N*2}, {v(t0)}")
        a(f"v_lshl_add_u32 {v(t0)}, {v(t1)}, 4, {v(t0)}")
        a(f"v_add_u32 {v(vB[i])}, s47, {v(t0)}")
    a(f"s_mul_i32 s31, s30, {PA*1024}")
    a(f"s_mul_i32 s32, s30, {PB*1024}")
    a(f"s_add_u32 s32, s32, {ABYTES}")
    a("s_mov_b32 s40, 0")
    a("s_mov_b32 s41, 0")
    a("s_mov_b32 s43, 0")
    a("s_mov_b32 s42, 0")
    build_srds()
    if zero_flags:
        lz = a.newlabel("L_nz")
        a("s_cmp_lg_u32 s2, 0")
        a(f"s_cbranch_scc1 {lz}")
        srd(a, 92, 24, WS_FLAG, 512)
        a(f"v_lshlrev_b32 {v(t0)}, 3, v1")
        a("v_mov_b32 v44, 0")
        a("v_mov_b32 v45, 0")
        a(f"buffer_store_dwordx2 v[44:45], {v(t0)}, s[92:95], 0 offen")
        a.label(lz)
    if splitk:
        a(f"s_mul_i32 s40, s92, {NSLO*BK*2}")
        a(f"s_mul_i32 s41, s92, {NSLO*BK*N*2}")
        lab_lpass = a.newlabel("L_lpass")
        a.label(lab_lpass)

    def dma():
        if 'nodma' in EXP: return
        a("s_add_u32 s33, s43, s31")
        for i in range(PA):
            a(f"s_add_u32 m0, s33, {i*1024}")
            a("s_nop 0")
            a(f"buffer_load_dwordx4 {v(vA[i])}, s[4:7], s40 offen lds")
        a("s_add_u32 s33, s43, s32")
        for i in range(PB):
            a(f"s_add_u32 m0, s33, {i*1024}")
            a("s_nop 0")
            a(f"buffer_load_dwordx4 {v(vB[i])}, s[8:11], s41 offen lds")
        a(f"s_add_u32 s40, s40, {BK*2}")
        a(f"s_add_u32 s41, s41, {BK*N*2}")
        a(f"s_add_u32 s43, s43, {STAGE}")
        a(f"s_cmp_ge_u32 s43, {STAGE*NSTAGE}")
        a("s_cselect_b32 s43, 0, s43")

    stamp(1)
    if pre:
        a(f"v_lshrrev_b32 {v(LSA)}, 1, v1")
        a("s_lshl_b32 s3, s30, 5")
        a(f"v_add_u32 {v(LSA)}, s3, {v(LSA)}")
        a(f"s_mul_i32 s3, s28, {BM}")
        a(f"v_add_u32 {v(t0)}, s3, {v(LSA)}")
        a(f"v_lshlrev_b32 {v(t0)}, 7, {v(t0)}")
        a(f"v_and_b32 {v(t1)}, 1, v1")
        a(f"v_lshl_add_u32 {v(t0)}, {v(t1)}, 6, {v(t0)}")
        for i in range(4):
            a(f"buffer_load_dwordx4 {v(LSD+4*i,4)}, {v(t0)}, s[84:87], 0 offen offset:{16*i}")
    if st_bias:
        a(f"v_lshlrev_b32 {v(t0)}, 4, v1")
        a(f"s_mul_i32 s3, s29, {BN*2}")
        a(f"s_mov_b32 m0, {EPI}")
        a("s_nop 0")
        a(f"buffer_load_dwordx4 {v(t0)}, s[20:23], s3 offen lds")
        a(f"s_mul_i32 s3, s29, {BN*4}")
        a(f"s_mul_i32 s46, s30, {4*N*4}")
        a("s_add_u32 s3, s3, s46")
        for g_ in range(4):
            a(f"buffer_load_dwordx4 {v(LWD+4*g_,4)}, {v(t0)}, s[88:91], s3 offen")
            a(f"s_add_u32 s3, s3, {N*4}")
    for _ in range(NSTAGE - 1):
        dma()
    stamp(2)
    if ln and not pre:
        wfrag_addr_common()
        for i in range(NPL):
            a(f"s_mul_i32 s46, s30, {NPL}")
            a(f"s_add_u32 s46, s46, {i}")
            a(f"s_min_u32 s46, s46, {BN//16-1}")
            wfrag_addr(LCW + i)
        for i in range(4):
            a(f"v_mov_b32 {v(LONE+i)}, 0x3f803f80")
        for i in range(16):
            a(f"v_mov_b32 {v(LMS+i)}, 0")
        a(f"v_and_b32 {v(t0)}, 15, v1")
        a("s_lshl_b32 s3, s30, 5")
        a(f"v_add_u32 {v(t0)}, s3, {v(t0)}")
        a(f"v_lshlrev_b32 {v(t0)}, 7, {v(t0)}")
        a(f"v_lshrrev_b32 {v(t1)}, 4, v1")
        a(f"v_bfe_u32 {v(t2)}, v1, 1, 3")
        a(f"v_xor_b32 {v(t3)}, {v(t1)}, {v(t2)}")
        a(f"v_lshl_add_u32 {v(LSA)}, {v(t3)}, 4, {v(t0)}")
        a(f"v_xor_b32 {v(t3)}, 4, {v(t3)}")
        a(f"v_lshl_add_u32 {v(LSA+1)}, {v(t3)}, 4, {v(t0)}")
        for i in range(4 * NPL):
            a(f"v_mov_b32 {v(LCS+i)}, 0")

    def stats_reads():
        for i in range(2):
            a(f"v_add_u32 {v(LSC+i)}, s42, {v(LSA+i)}")
        for i in range(NPL):
            a(f"v_add_u32 {v(LCC+i)}, s42, {v(LCW+i)}")
        a(f"s_add_u32 s42, s42, {STAGE}")
        a(f"s_cmp_ge_u32 s42, {STAGE*NSTAGE}")
        a("s_cselect_b32 s42, 0, s42")
        for q in range(2):
            for kk in range(2):
                a(f"ds_read_b128 {v(LSD+8*q+4*kk,4)}, {v(LSC+kk)} offset:{2048*q}")
        for i in range(NPL):
            for kk in range(2):
                for rd in range(2):
                    a(f"ds_read_b64_tr_b16 {v(LWD+8*i+4*kk+2*rd,2)}, {v(LCC+i)} offset:{kk*32*RB+rd*4*RB}")

    def stats_math():
        a("s_waitcnt lgkmcnt(0)")
        for i in range(NPL):
            for kk in range(2):
                a(f"v_mfma_f32_16x16x32_bf16 {v(LCS+4*i,4)}, {v(LWD+8*i+4*kk,4)}, {v(LONE,4)}, {v(LCS+4*i,4)}")
        for kk in range(2):
            for q in range(2):
                d = v(LSD + 8 * q + 4 * kk, 4)
                a(f"v_mfma_f32_16x16x32_bf16 {v(LMS+8*q,4)}, {d}, {v(LONE,4)}, {v(LMS+8*q,4)}")
                a(f"v_mfma_f32_16x16x32_bf16 {v(LMS+8*q+4,4)}, {d}, {d}, {v(LMS+8*q+4,4)}")

    nloop = NS - NSTAGE + 1
    if splitk: a(f"s_sub_u32 s48, s93, {NSTAGE-1}")
    else: a(f"s_mov_b32 s48, {nloop}")
    lloop = a.newlabel("L_lloop")
    a.label(lloop)
    a(f"s_waitcnt vmcnt({(NSTAGE-2)*P})")
    a("s_barrier")
    if ln and not pre: stats_reads()
    dma()
    if ln and not pre: stats_math()
    a("s_sub_u32 s48, s48, 1")
    a("s_cmp_lg_u32 s48, 0")
    a(f"s_cbranch_scc1 {lloop}")
    if pre:
        for i in range(1, 8):
            a(f"v_add_f32 {v(LSD)}, {v(LSD)}, {v(LSD+2*i)}")
            a(f"v_add_f32 {v(LSD+1)}, {v(LSD+1)}, {v(LSD+2*i+1)}")
        a("s_nop 1")
        for k_ in range(2):
            a(f"v_add_f32_dpp {v(LST+k_)}, {v(LSD+k_)}, {v(LSD+k_)} quad_perm:[1,0,3,2] row_mask:0xf bank_mask:0xf")
        sm, sq, r1, r2 = LST, LST + 1, LSD, LSD + 1
        a(f"v_mul_f32 {v(sm)}, {hex_f32(1.0/K)}, {v(sm)}")
        a(f"v_mul_f32 {v(sq)}, {hex_f32(1.0/K)}, {v(sq)}")
        a(f"v_fma_f32 {v(sq)}, -{v(sm)}, {v(sm)}, {v(sq)}")
        a(f"v_max_f32 {v(sq)}, 0, {v(sq)}")
        a(f"v_add_f32 {v(r1)}, {hex_f32(1e-5)}, {v(sq)}")
        a(f"v_rsq_f32 {v(r1)}, {v(r1)}")
        a("s_nop 0")
        if ln == 'double':
            a(f"v_mul_f32 {v(r2)}, {v(r1)}, {v(r1)}")
            a(f"v_mul_f32 {v(r2)}, {v(r2)}, {v(sq)}")
            a(f"v_add_f32 {v(r2)}, {hex_f32(1e-5)}, {v(r2)}")
            a(f"v_rsq_f32 {v(r2)}, {v(r2)}")
            a("s_nop 0")
            a(f"v_mul_f32 {v(r1)}, {v(r1)}, {v(r2)}")
        a(f"v_mul_f32 {v(r2)}, {v(sm)}, {v(r1)}")
        a(f"v_sub_f32 {v(r2)}, 0, {v(r2)}")
        a(f"v_lshlrev_b32 {v(LSC)}, 3, {v(LSA)}")
        a(f"v_add_u32 {v(LSC)}, {RTAB}, {v(LSC)}")
        a(f"ds_write_b64 {v(LSC)}, {v(LSD,2)}")
        for g_ in range(1, 4):
            for j in range(2):
                a(f"v_pk_add_f32 {v(LWD+2*j,2)}, {v(LWD+2*j,2)}, {v(LWD+4*g_+2*j,2)}")
        a(f"v_lshlrev_b32 {v(t0)}, 4, v1")
        a(f"v_add_u32 {v(t0)}, {EPI+3072}, {v(t0)}")
        a("s_lshl_b32 s3, s30, 10")
        a(f"v_add_u32 {v(t1)}, s3, {v(t0)}")
        a(f"ds_write_b128 {v(t1)}, {v(LWD,4)}")
        a("s_waitcnt lgkmcnt(0)")
    if st_res:
        npc = BM * BN * 2 // 4096
        rpp = 1024 // (BN * 2)
        lpr = BN * 2 // 16
        a(f"v_lshrrev_b32 {v(t0)}, {int(math.log2(lpr))}, v1")
        a(f"s_mul_i32 s3, s30, {npc*rpp}")
        a(f"s_mul_i32 s46, s28, {BM}")
        a("s_add_u32 s3, s3, s46")
        a(f"v_add_u32 {v(t0)}, s3, {v(t0)}")
        a(f"v_mul_u32_u24 {v(t0)}, {N*2}, {v(t0)}")
        a(f"v_and_b32 {v(t1)}, {lpr-1}, v1")
        a(f"v_lshl_add_u32 {v(t0)}, {v(t1)}, 4, {v(t0)}")
        a(f"s_mul_i32 s3, s29, {BN*2}")
        a(f"v_add_u32 {v(t0)}, s3, {v(t0)}")
        a(f"s_mul_i32 s33, s30, {npc*1024}")
        for i in range(npc):
            a(f"s_add_u32 m0, s33, {EPI + i*1024}")
            a(f"s_mov_b32 s3, {i*rpp*N*2}")
            a(f"buffer_load_dwordx4 {v(t0)}, s[16:19], s3 offen lds")
    for j in range(NS - NSTAGE + 1, NS):
        a(f"s_waitcnt vmcnt({(NS-1-j)*P + NEX})")
        a("s_barrier")
        if pre and j == NS - NSTAGE + 1:
            assert NSTAGE >= 3
            lcs = a.newlabel("L_lcs")
            a("s_cmp_lg_u32 s30, 0")
            a(f"s_cbranch_scc1 {lcs}")
            for g_ in range(4):
                a(f"ds_read_b128 {v(LWD+4*g_,4)}, {v(t0)} offset:{1024*g_}")
            a("s_waitcnt lgkmcnt(0)")
            for g_ in range(1, 4):
                for j_ in range(2):
                    a(f"v_pk_add_f32 {v(LWD+2*j_,2)}, {v(LWD+2*j_,2)}, {v(LWD+4*g_+2*j_,2)}")
            a(f"v_subrev_u32 {v(t0)}, {EPI+3072-CTAB}, {v(t0)}")
            a(f"ds_write_b128 {v(t0)}, {v(LWD,4)}")
            a("s_waitcnt lgkmcnt(0)")
            a.label(lcs)
        if ln and not pre:
            stats_reads()
            stats_math()
    stamp(3)
    if ln and not pre:
        a("s_nop 7")
        a(f"v_and_b32 {v(t0)}, 3, v1")
        for r in range(1, 4):
            a(f"v_cmp_eq_u32 s[{48+2*r}:{49+2*r}], {r}, {v(t0)}")
        X0 = LSD
        for i in range(2):
            sm, sq = LST + 2 * i, LST + 2 * i + 1
            r1, r2 = X0 + 2 * i, X0 + 2 * i + 1
            for dst, src in ((sm, LMS + 8 * i), (sq, LMS + 8 * i + 4)):
                a(f"v_cndmask_b32 {v(dst)}, {v(src)}, {v(src+1)}, s[50:51]")
                a(f"v_cndmask_b32 {v(dst)}, {v(dst)}, {v(src+2)}, s[52:53]")
                a(f"v_cndmask_b32 {v(dst)}, {v(dst)}, {v(src+3)}, s[54:55]")
            a(f"v_mul_f32 {v(sm)}, {hex_f32(1.0/K)}, {v(sm)}")
            a(f"v_mul_f32 {v(sq)}, {hex_f32(1.0/K)}, {v(sq)}")
            a(f"v_fma_f32 {v(sq)}, -{v(sm)}, {v(sm)}, {v(sq)}")
            a(f"v_max_f32 {v(sq)}, 0, {v(sq)}")
            a(f"v_add_f32 {v(r1)}, {hex_f32(1e-5)}, {v(sq)}")
            a(f"v_rsq_f32 {v(r1)}, {v(r1)}")
            a("s_nop 0")
            assert ln == 'single'
            a(f"v_mul_f32 {v(r2)}, {v(sm)}, {v(r1)}")
            a(f"v_sub_f32 {v(r2)}, 0, {v(r2)}")
        a(f"v_lshrrev_b32 {v(LSC)}, 7, {v(LSA)}")
        a(f"v_lshlrev_b32 {v(LSC)}, 3, {v(LSC)}")
        a(f"v_add_u32 {v(LSC)}, {RTAB}, {v(LSC)}")
        a(f"v_lshrrev_b32 {v(t0)}, 4, v1")
        a(f"v_lshlrev_b32 {v(t0)}, 4, {v(t0)}")
        for i in range(NPL):
            a(f"s_mul_i32 s46, s30, {NPL}")
            a(f"s_add_u32 s46, s46, {i}")
            a(f"s_min_u32 s46, s46, {BN//16-1}")
            a("s_lshl_b32 s46, s46, 6")
            a(f"s_add_u32 s46, s46, {CTAB}")
            a(f"v_add_u32 {v(LCC+i)}, s46, {v(t0)}")
    if ln and not pre:
        a("s_mov_b32 exec_lo, 0x00f0000f")
        a("s_mov_b32 exec_hi, 0xf0000f00")
        for i in range(2):
            a(f"ds_write_b64 {v(LSC)}, {v(LSD+2*i,2)} offset:{128*i}")
        a("s_mov_b64 exec, -1")
        for i in range(NPL):
            a(f"ds_write_b128 {v(LCC+i)}, {v(LCS+4*i,4)}")
        a("s_waitcnt lgkmcnt(0)")
        a("s_barrier")
    if NEX: a("s_waitcnt vmcnt(0)")
    if splitk:
        lhi = a.newlabel("L_lhi"); lepi = a.newlabel("L_lepi")
        a("s_cmp_lg_u32 s92, 0")
        a(f"s_cbranch_scc1 {lhi}")
        a("s_barrier")
        a(f"s_branch {end}")
        a.label(lhi)
        a("s_barrier")
        a("s_cmp_eq_u32 s94, 2")
        a(f"s_cbranch_scc1 {lepi}")
        a(f"v_mov_b32 {v(t1)}, {DONE}")
        a(f"ds_read_b128 {v(44,4)}, {v(t1)}")
        a("s_waitcnt lgkmcnt(0)")
        a("v_and_b32 v44, v44, v45")
        a("v_and_b32 v46, v46, v47")
        a("v_and_b32 v44, v44, v46")
        a("s_nop 0")
        a("v_readfirstlane_b32 s3, v44")
        a("s_nop 3")
        a("s_cmp_eq_u32 s3, 1")
        a(f"s_cbranch_scc1 {lepi}")
        a("s_mov_b32 s94, 2")
        a(f"s_mov_b32 s93, {NSLO}")
        a("s_mov_b32 s40, 0"); a("s_mov_b32 s41, 0"); a("s_mov_b32 s43, 0")
        a("s_barrier")
        a(f"s_branch {lab_lpass}")
        a.label(lepi)
    stamp(4)
    a("s_barrier")

    a.label(lab_store)
    CPRW = BN // 8
    NIT = BM * CPRW // 512
    assert NIT * 512 == BM * CPRW
    magic = ((1 << 32) + CPRW - 1) // CPRW
    a(f"s_mov_b32 s46, {magic}")
    a(f"s_mul_i32 s3, s49, {NIT*64}")
    a(f"v_add_u32 {v(t0)}, s3, v1")
    a(f"s_mul_i32 s3, s28, {BM}")
    a(f"s_mul_i32 s47, s29, {BN*2}")
    R0 = (vT[7] + 4) // 4 * 4
    RR = R0 + 4 * NIT
    OFF = RR + 4 * NIT
    SOF = OFF + NIT
    GT = (SOF + NIT + 3) // 4 * 4
    assert GT + 10 <= 256
    for it in range(NIT):
        a(f"v_add_u32 {v(t1)}, {it*64}, {v(t0)}")
        a(f"v_mul_hi_u32 {v(t2)}, {v(t1)}, s46")
        a(f"v_mul_u32_u24 {v(t3)}, {CPRW}, {v(t2)}")
        a(f"v_sub_u32 {v(t3)}, {v(t1)}, {v(t3)}")
        a(f"v_mul_u32_u24 {v(t1)}, {CROW}, {v(t2)}")
        a(f"v_lshl_add_u32 {v(t1)}, {v(t3)}, 4, {v(t1)}")
        if CBASE: a(f"v_add_u32 {v(t1)}, {CBASE}, {v(t1)}")
        a(f"ds_read_b128 {v(R0+4*it,4)}, {v(t1)}")
        a(f"v_add_u32 {v(t2)}, s3, {v(t2)}")
        if stats_out:
            a(f"v_lshlrev_b32 {v(SOF+it)}, 7, {v(t2)}")
            a(f"v_lshl_add_u32 {v(SOF+it)}, s29, 3, {v(SOF+it)}")
        a(f"v_mul_u32_u24 {v(t2)}, {ldo}, {v(t2)}")
        a(f"v_lshlrev_b32 {v(t3)}, 4, {v(t3)}")
        a(f"v_add_u32 {v(t3)}, s47, {v(t3)}")
        a(f"v_add_u32 {v(OFF+it)}, {v(t3)}, {v(t2)}")
        if st_res:
            a(f"v_lshlrev_b32 {v(t1)}, 4, {v(t0)}")
            a(f"v_add_u32 {v(t1)}, {EPI + it*1024}, {v(t1)}")
            a(f"ds_read_b128 {v(RR+4*it,4)}, {v(t1)}")
        elif res_arg:
            a(f"buffer_load_dwordx4 {v(RR+4*it,4)}, {v(OFF+it)}, s[16:19], 0 offen")
    a("s_waitcnt vmcnt(0) lgkmcnt(0)" if (res_arg and not st_res) else "s_waitcnt lgkmcnt(0)")
    stamp(5)
    for it in range(NIT):
        c0 = R0 + 4 * it
        if res_arg:
            for j in range(4):
                d = c0 + j
                r = RR + 4 * it + j
                a(f"v_lshlrev_b32 {v(GT)}, 16, {v(d)}")
                a(f"v_lshlrev_b32 {v(GT+1)}, 16, {v(r)}")
                a(f"v_and_b32 {v(GT+2)}, 0xffff0000, {v(d)}")
                a(f"v_and_b32 {v(GT+3)}, 0xffff0000, {v(r)}")
                a(f"v_add_f32 {v(GT)}, {v(GT)}, {v(GT+1)}")
                a(f"v_add_f32 {v(GT+2)}, {v(GT+2)}, {v(GT+3)}")
                a(f"v_cvt_pk_bf16_f32 {v(d)}, {v(GT)}, {v(GT+2)}")
        a(f"buffer_store_dwordx4 {v(c0,4)}, {v(OFF+it)}, s[12:15], 0 offen {STMOD if (ln or STALL) else ''}")
        if stats_out:
            assert CPRW == 8
            a(f"v_mov_b32 {v(GT+8)}, 0x3f803f80")
            a(f"v_mov_b32 {v(GT)}, 0")
            a(f"v_mov_b32 {v(GT+1)}, 0")
            for j in range(4):
                a(f"v_dot2_f32_bf16 {v(GT)}, {v(c0+j)}, {v(GT+8)}, {v(GT)}")
                a(f"v_dot2_f32_bf16 {v(GT+1)}, {v(c0+j)}, {v(c0+j)}, {v(GT+1)}")
            a("s_nop 3")
            for q_, mode in enumerate(("quad_perm:[1,0,3,2]", "quad_perm:[2,3,0,1]", "row_half_mirror")):
                src = GT + 2 * (q_ & 1); dst = GT + 2 * ((q_ + 1) & 1)
                for k_ in range(2):
                    a(f"v_add_f32_dpp {v(dst+k_)}, {v(src+k_)}, {v(src+k_)} {mode} row_mask:0xf bank_mask:0xf")
                a("s_nop 1")
            a("s_mov_b32 exec_lo, 0x01010101")
            a("s_mov_b32 exec_hi, 0x01010101")
            a(f"buffer_store_dwordx2 {v(GT+2,2)}, {v(SOF+it)}, s[84:87], 0 offen")
            a("s_mov_b64 exec, -1")
    stamp(6)
    if 'stamp' in EXP: a("s_waitcnt vmcnt(0)")
    stamp(7)
    stamp_out()
    a.label(end)
    a("s_endpgm")
    return dict(name=name, grid=ntiles, block=512, lds=lds, desc=kernel_desc(name, max(nvgpr, GT + 10, 164)))


def gen_attn(a, name, pf=None, colsum=False):
    import struct
    NQB = S // 32
    ntask = H * NQB
    nwg = ntask // 4
    QKV_ROW = 3 * D * 2
    KLDS = 384 * 64
    lds = 2 * KLDS
    kernel_header(a, name)
    end = a.newlabel("L_end")
    npf = 0
    a(f"s_cmp_ge_u32 s2, {nwg + npf}")
    a(f"s_cbranch_scc1 {end}")
    a(f"s_load_dwordx2 s[24:25], s[0:1], {ARG['ws']}")
    a("v_and_b32 v1, 63, v0")
    a("v_lshrrev_b32 v2, 6, v0")
    a("s_nop 0")
    a("v_readfirstlane_b32 s30, v2")
    a("s_nop 3")
    a("s_lshl_b32 s3, s2, 2")
    a("s_add_u32 s92, s3, s30")
    a("s_and_b32 s28, s2, 31")
    a("s_lshr_b32 s29, s2, 5")
    a("s_lshl_b32 s39, s29, 7")
    a("s_sub_u32 s39, s39, 256")
    a("s_lshl_b32 s3, s30, 5")
    a("s_add_u32 s32, s39, s3")
    a("s_add_u32 s31, s32, 256")
    a("s_lshl_b32 s33, s28, 6")
    a(f"s_add_u32 s35, s33, {2*D*2}")
    a(f"s_add_u32 s36, s33, {D*2}")
    a("v_and_b32 v2, 31, v1")
    a("v_lshrrev_b32 v3, 5, v1")
    a("v_add_u32 v4, s31, v2")
    a(f"v_mul_u32_u24 v4, {QKV_ROW}, v4")
    a("v_lshl_add_u32 v4, v3, 4, v4")
    a("v_add_u32 v4, s33, v4")
    a("s_waitcnt lgkmcnt(0)")
    srd(a, 4, 24, WS_QKV, S * 3 * D * 2)
    srd(a, 8, 24, WS_O, S * D * 2)
    a("v_lshrrev_b32 v5, 2, v1")
    a("v_and_b32 v6, 3, v1")
    a("v_bfe_u32 v7, v1, 4, 2")
    a("v_xor_b32 v7, v7, v6")
    a("s_mul_i32 s3, s30, 96")
    a("s_add_u32 s3, s3, s39")
    a("s_mul_i32 s34, s30, 6144")
    for p in range(6):
        a(f"v_add_u32 v16, {16*p}, v5")
        a("v_add_u32 v16, s3, v16")
        a("v_max_i32 v16, 0, v16")
        a(f"v_mul_u32_u24 v16, {QKV_ROW}, v16")
        a("v_lshl_add_u32 v17, v7, 4, v16")
        a("v_add_u32 v17, s36, v17")
        a(f"s_add_u32 m0, s34, {p*1024}")
        a("v_lshl_add_u32 v16, v6, 4, v16")
        a(f"buffer_load_dwordx4 v17, s[4:7], 0 offen lds")
        a("v_add_u32 v16, s35, v16")
        a(f"s_add_u32 m0, s34, {KLDS + p*1024}")
        a("s_nop 0")
        a(f"buffer_load_dwordx4 v16, s[4:7], 0 offen lds")
    a("buffer_load_dwordx4 v[8:11], v4, s[4:7], 0 offen")
    a("buffer_load_dwordx4 v[12:15], v4, s[4:7], 0 offen offset:32")
    KF = 16
    if colsum:
        a(f"s_load_dwordx2 s[94:95], s[0:1], {ARG['w2']}")
        a(f"s_load_dwordx2 s[40:41], s[0:1], {ARG['wo']}")
        a(f"s_load_dwordx2 s[42:43], s[0:1], {ARG['w1']}")
        a("v_lshlrev_b32 v7, 4, v1")
        a(f"s_mul_i32 s93, s92, {F*D*2//2048}")
        a("s_lshl_b32 s3, s92, 10")
        a("v_add_u32 v16, s93, v7")
        a("v_add_u32 v17, s3, v7")
        a(f"s_mul_hi_u32 s44, s92, {((1 << 32) + 111) // 112}")
        a("s_mul_i32 s3, s44, 112")
        a("s_sub_u32 s45, s92, s3")
        a("s_lshl_b32 s3, s44, 6")
        a("v_lshrrev_b32 v18, 2, v1")
        a("v_add_u32 v18, s3, v18")
        a(f"v_mul_u32_u24 v18, {F*2}, v18")
        a("v_and_b32 v19, 3, v1")
        a("v_lshl_add_u32 v18, v19, 4, v18")
        a("s_lshl_b32 s3, s45, 6")
        a("v_add_u32 v18, s3, v18")
        a("s_waitcnt lgkmcnt(0)")
        npl = 4
        if 'nowpf' in EXP:
            srd(a, 96, 94, 0, F * D * 2)
            for j in range(4):
                a(f"buffer_load_dwordx4 v[240:243], v16, s[96:99], 0 offen offset:{1024*j}")
            srd(a, 96, 40, 0, D * D * 2)
            a("buffer_load_dwordx4 v[240:243], v17, s[96:99], 0 offen")
            npl = 9
        srd(a, 96, 42, 0, D * F * 2)
        for j in range(4):
            a(f"s_mov_b32 s3, {16*j*F*2}")
            a(f"buffer_load_dwordx4 {v(240+4*j,4)}, v18, s[96:99], s3 offen")
    else:
        npl = tail_prefetch(a, 92, 1, pf, 7, 240) if pf else 0
    a("v_bfe_u32 v5, v1, 2, 2")
    a("v_xor_b32 v5, v5, v3")
    a("v_lshlrev_b32 v6, 6, v2")
    a("s_lshl_b32 s34, s30, 11")
    a("v_add_u32 v6, s34, v6")
    a("v_lshl_add_u32 v88, v5, 4, v6")
    a("v_xor_b32 v5, 2, v5")
    a("v_lshl_add_u32 v89, v5, 4, v6")
    a(f"s_add_u32 s34, s34, {KLDS}")
    a(f"s_waitcnt vmcnt({npl})")
    a("s_barrier")
    for t_ in range(9):
        a(f"ds_read_b128 {v(KF+8*t_,4)}, v88 offset:{2048*t_}")
        a(f"ds_read_b128 {v(KF+8*t_+4,4)}, v89 offset:{2048*t_}")
    SC = 96
    a("v_mov_b32 v7, 0xf149f2ca")
    for t in range(9):
        a(f"s_waitcnt lgkmcnt({min(15, 2*(8-t))})")
        if t < 8:
            lab_inv = a.newlabel("L_inv"); lab_done = a.newlabel("L_tdone")
            a(f"s_add_i32 s3, s32, {32*t}")
            a("s_cmp_lt_i32 s3, 0")
            a(f"s_cbranch_scc1 {lab_inv}")
        a(f"v_mfma_f32_32x32x16_bf16 {v(SC+16*t,16)}, {v(KF+8*t,4)}, v[8:11], 0")
        a(f"v_mfma_f32_32x32x16_bf16 {v(SC+16*t,16)}, {v(KF+8*t+4,4)}, v[12:15], {v(SC+16*t,16)}")
        if t < 8:
            a(f"s_branch {lab_done}")
            a.label(lab_inv)
            for r in range(16):
                a(f"v_mov_b32 v{SC+16*t+r}, v7")
            a.label(lab_done)
    a("v_lshlrev_b32 v5, 2, v3")
    a("v_sub_u32 v5, v2, v5")
    a("s_nop 7")
    a("s_nop 7")
    for r in range(16):
        c = (r & 3) + 8 * (r >> 2)
        a(f"v_cmp_gt_i32 vcc, {c}, v5")
        a(f"v_cmp_le_i32 s[36:37], {c}, v5")
        a("s_nop 0")
        a(f"v_cndmask_b32 v{SC+r}, v7, v{SC+r}, vcc")
        a(f"v_cndmask_b32 v{SC+128+r}, v7, v{SC+128+r}, s[36:37]")
    a(f"v_max3_f32 v4, v{SC}, v{SC+1}, v{SC+2}")
    a(f"v_max3_f32 v6, v{SC+3}, v{SC+4}, v{SC+5}")
    for i in range(6, 144, 4):
        a(f"v_max3_f32 v4, v4, v{SC+i}, v{SC+i+1}")
        if i + 3 < 144:
            a(f"v_max3_f32 v6, v6, v{SC+i+2}, v{SC+i+3}")
    a("v_max_f32 v4, v4, v6")
    a("v_xor_b32 v88, 32, v1")
    a("v_lshlrev_b32 v88, 2, v88")
    a("ds_bpermute_b32 v89, v88, v4")
    a("s_waitcnt lgkmcnt(0)")
    a("v_max_f32 v4, v4, v89")
    sc = (DH ** -0.5) * math.log2(math.e)
    sc_bits = struct.unpack("<I", struct.pack("<f", sc))[0]
    a(f"s_mov_b32 s38, {sc_bits}")
    a("v_mul_f32 v4, s38, v4")
    sums = [5, 6, 90, 91]
    for sreg in sums:
        a(f"v_mov_b32 v{sreg}, 0")
    for g in range(0, 144, 4):
        for j in range(4):
            a(f"v_fma_f32 v{SC+g+j}, v{SC+g+j}, s38, -v4")
        for j in range(4):
            a(f"v_exp_f32 v{SC+g+j}, v{SC+g+j}")
        if g >= 4:
            for j in range(4):
                a(f"v_add_f32 v{sums[j]}, v{sums[j]}, v{SC+g-4+j}")
            tt, jj = divmod(g - 4, 16)
            a(f"v_cvt_pk_bf16_f32 v{KF+8*tt+jj//2}, v{SC+g-4}, v{SC+g-3}")
            a(f"v_cvt_pk_bf16_f32 v{KF+8*tt+jj//2+1}, v{SC+g-2}, v{SC+g-1}")
    a("s_nop 0")
    g = 144
    for j in range(4):
        a(f"v_add_f32 v{sums[j]}, v{sums[j]}, v{SC+g-4+j}")
    tt, jj = divmod(g - 4, 16)
    a(f"v_cvt_pk_bf16_f32 v{KF+8*tt+jj//2}, v{SC+g-4}, v{SC+g-3}")
    a(f"v_cvt_pk_bf16_f32 v{KF+8*tt+jj//2+1}, v{SC+g-2}, v{SC+g-1}")
    a("v_add_f32 v5, v5, v6")
    a("v_add_f32 v90, v90, v91")
    a("v_add_f32 v5, v5, v90")
    a("ds_bpermute_b32 v89, v88, v5")
    a("v_bfe_u32 v6, v1, 2, 2")
    a("v_lshl_add_u32 v6, v3, 2, v6")
    a("v_lshlrev_b32 v6, 6, v6")
    a("v_bfe_u32 v7, v1, 4, 1")
    a("v_lshl_add_u32 v6, v7, 5, v6")
    a("v_and_b32 v7, 3, v1")
    a("v_lshl_add_u32 v6, v7, 3, v6")
    a("v_add_u32 v6, s34, v6")
    OA = SC
    VF = SC + 16
    a(f"s_waitcnt lgkmcnt(0)")
    a("v_add_f32 v5, v5, v89")
    a("v_rcp_f32 v5, v5")
    for t in range(9):
        for sidx in range(2):
            f = VF + 4 * (2 * t + sidx)
            base = (32 * t + 16 * sidx) * 64
            a(f"ds_read_b64_tr_b16 {v(f,2)}, v6 offset:{base}")
            a(f"ds_read_b64_tr_b16 {v(f+2,2)}, v6 offset:{base+8*64}")
    first = True
    for t in range(9):
        for sidx in range(2):
            f = VF + 4 * (2 * t + sidx)
            idx = 2 * t + sidx
            rem = 36 - 2 * (idx + 1)
            a(f"s_waitcnt lgkmcnt({min(rem,15)})")
            a(f"v_mfma_f32_32x32x16_bf16 {v(OA,16)}, {v(f,4)}, {v(KF+8*t+4*sidx,4)}, {'0' if first else v(OA,16)}")
            first = False
    if colsum:
        lab_nc = a.newlabel("L_nocs")
        a("s_cmp_ge_u32 s44, 16")
        a(f"s_cbranch_scc1 {lab_nc}")
        CA = 184; CT = 192
        a("s_waitcnt vmcnt(0)")
        for j in range(4):
            a(f"v_lshlrev_b32 v{CA+2*j}, 16, v{240+j}")
            a(f"v_and_b32 v{CA+2*j+1}, 0xffff0000, v{240+j}")
        for i in range(1, 4):
            for j in range(4):
                a(f"v_lshlrev_b32 v{CT+2*j}, 16, v{240+4*i+j}")
                a(f"v_and_b32 v{CT+2*j+1}, 0xffff0000, v{240+4*i+j}")
            for j in range(4):
                a(f"v_pk_add_f32 {v(CA+2*j,2)}, {v(CA+2*j,2)}, {v(CT+2*j,2)}")
        a("s_nop 1")
        for mode in ("row_ror:4", "row_ror:8"):
            for j in range(8):
                a(f"v_add_f32_dpp v{CT+j}, v{CA+j}, v{CA+j} {mode} row_mask:0xf bank_mask:0xf")
            a("s_nop 1")
            for j in range(8):
                a(f"v_mov_b32 v{CA+j}, v{CT+j}")
            a("s_nop 1")
        for x in (16, 32):
            a(f"v_xor_b32 v200, {x}, v1")
            a("v_lshlrev_b32 v200, 2, v200")
            for j in range(8):
                a(f"ds_bpermute_b32 v{CT+j}, v200, v{CA+j}")
            a("s_waitcnt lgkmcnt(0)")
            for j in range(8):
                a(f"v_add_f32 v{CA+j}, v{CA+j}, v{CT+j}")
        srd(a, 96, 24, WS_CS, 16 * F * 4)
        a(f"s_mul_i32 s3, s44, {F*4}")
        a("s_lshl_b32 s45, s45, 7")
        a("s_add_u32 s3, s3, s45")
        a("v_lshlrev_b32 v200, 5, v1")
        a("s_mov_b64 exec, 15")
        a(f"buffer_store_dwordx4 {v(CA,4)}, v200, s[96:99], s3 offen")
        a(f"buffer_store_dwordx4 {v(CA+4,4)}, v200, s[96:99], s3 offen offset:16")
        a("s_mov_b64 exec, -1")
        a.label(lab_nc)
    a("v_add_u32 v7, s31, v2")
    a(f"v_lshlrev_b32 v7, 11, v7")
    a("v_lshl_add_u32 v7, v3, 3, v7")
    a("v_add_u32 v7, s33, v7")
    a("s_nop 7")
    a("s_nop 7")
    for g in range(4):
        for r in range(4):
            a(f"v_mul_f32 v{OA+4*g+r}, v{OA+4*g+r}, v5")
        a(f"v_cvt_pk_bf16_f32 v{OA+4*g}, v{OA+4*g}, v{OA+4*g+1}")
        a(f"v_cvt_pk_bf16_f32 v{OA+4*g+1}, v{OA+4*g+2}, v{OA+4*g+3}")
        a(f"buffer_store_dwordx2 {v(OA+4*g,2)}, v7, s[8:11], 0 offen offset:{16*g}")
    a.label(end)
    a("s_endpgm")
    return dict(name=name, grid=nwg + npf, block=256, lds=lds, desc=kernel_desc(name, 256 if colsum else 244))


def main():
    a = Asm()
    ks = []
    FUSE = 'nofuse' not in EXP
    SPLIT = 'split' in EXP
    L2PF = int(os.environ.get('L2PF', '0'))
    W1HI = int(os.environ.get('W1HI', '12'))
    W2HI = int(os.environ.get('W2HI', '12'))
    SKLO = int(os.environ.get('SKLO', '23'))
    if FUSE:
        ks.append(gen_gemm(a, "qkv_kernel", 3 * D, D, 192, 0, "wqkv", "plain", "ws", WS_QKV, NSTAGE=4, RA=8, RBN=4,
                           ln='single', a_arg='x',
                           wpf=[("w1", D*F*2, W1HI), ("wo", D*D*2, W1HI-7)]))
    else:
        ks.append(gen_ln(a, "ln1_kernel", "x", 0, WS_Y1, False, pf=[("wqkv", D*3*D*2), ("wo", D*D*2)]))
        ks.append(gen_gemm(a, "qkv_kernel", 3 * D, D, 192, WS_Y1, "wqkv", "plain", "ws", WS_QKV, NSTAGE=4, RA=8, RBN=4))
    ks.append(gen_attn(a, "attn_kernel", pf=[("w1", D*F*2), ("w2", F*D*2), ("wo", D*D*2)] if FUSE else [("w1", D*F*2), ("w2", F*D*2)], colsum=FUSE))
    ks.append(gen_gemm(a, "oproj_kernel", D, D, 64, WS_O, "wo", "plain", "ws", WS_H, res_arg="x", NSTAGE=6, stats_out=FUSE))
    if FUSE:
        ks.append(gen_gemm(a, "ffn1_kernel", F, D, 224, WS_H, "w1", "gelu", "ws", WS_H1, bias_arg="b1", RA=8, RBN=4,
                           ln='double', pre=True, ldo=LDH1, zero_flags=SPLIT, wpf=[("w2", F*D*2, W2HI)]))
    else:
        ks.append(gen_ln(a, "ln2_kernel", "ws", WS_H, WS_Y2, True))
        ks.append(gen_gemm(a, "ffn1_kernel", F, D, 224, WS_Y2, "w1", "gelu", "ws", WS_H1, bias_arg="b1", RA=8, RBN=4))
    if SPLIT:
        ks.append(gen_gemm(a, "ffn2_kernel", D, F, 128, WS_H1, "w2", "plain", "out", 0, res_arg="ws", res_off=WS_H,
                           bias_arg="b2", NSTAGE=5, lda=LDH1, RA=4, RBN=4, splitk=(SKLO, 56 - SKLO)))
    else:
        ks.append(gen_gemm(a, "ffn2_kernel", D, F, 64, WS_H1, "w2", "plain", "out", 0, res_arg="ws", res_off=WS_H,
                           bias_arg="b2", NSTAGE=6, lda=LDH1, l2pf=L2PF, RA=int(os.environ.get('F2RA','4')), RBN=32//int(os.environ.get('F2RA','4'))))
    hdr = []
    for k in ks:
        hdr.append(f"; @launch kernel={k['name']} grid=({k['grid']},1,1) block=({k['block']},1,1) lds={k['lds']}")
    txt = "\n".join(hdr) + "\n"
    txt += '.amdgcn_target "amdgcn-amd-amdhsa--gfx950"\n.text\n'
    txt += "\n".join(a.lines) + "\n"
    txt += '.section .rodata,"a"\n'
    for k in ks:
        txt += ".p2align 6\n" + k["desc"]
    open(OUT, "w").write(txt)


if __name__ == "__main__":
    main()
```

```python
import sys, math, os
EXP=os.environ.get('EXP','')
STMOD=os.environ.get('STMOD','sc0 sc1')
STALL=os.environ.get('STALL','')
RPM=int(os.environ.get('RPM','2'))

OUT = os.environ.get("OUTF","sequential_preLN__sliding_block__mixer_channel_mlp__prompt.s")

S = 2048; D = 1024; F = 3584; H = 32; DH = 32; WIN = 256
ARG = dict(x=0, wqkv=8, wo=16, bx=24, w1=32, b1=40, w2=48, b2=56, out=64, dbg=72, ws=80)
MB = 1 << 20
WS_Y1 = 0
WS_QKV = 4 * MB
WS_O = 16 * MB
WS_H = 20 * MB
WS_Y2 = 24 * MB
WS_H1 = 28 * MB
WS_ST = 0
WS_CS = 1 * MB
WS_SIZE = 256 * MB
WS_RS = 3 * MB
WS_CQ = 3 * MB + 65536
WS_FLAG = 2 * MB
WS_PART = 64 * MB
LDH1 = F * 2 + int(os.environ.get('PADH1', '0'))


class Asm:
    def __init__(self):
        self.lines = []
        self.nlab = 0

    def __call__(self, s):
        self.lines.append("    " + s)

    def label(self, l):
        self.lines.append(l + ":")

    def newlabel(self, base="L"):
        self.nlab += 1
        return f"{base}_{self.nlab}"

    def c(self, s):
        self.lines.append("    ; " + s)


def v(i, n=1):
    return f"v{i}" if n == 1 else f"v[{i}:{i+n-1}]"


def s(i, n=1):
    return f"s{i}" if n == 1 else f"s[{i}:{i+n-1}]"


def srd(a, d, base, off, nbytes):
    if off:
        a(f"s_add_u32 s{d}, s{base}, {off}")
        a(f"s_addc_u32 s{d+1}, s{base+1}, 0")
    else:
        a(f"s_mov_b32 s{d}, s{base}")
        a(f"s_mov_b32 s{d+1}, s{base+1}")
    a(f"s_and_b32 s{d+1}, s{d+1}, 0xffff")
    a(f"s_mov_b32 s{d+2}, {nbytes}")
    a(f"s_mov_b32 s{d+3}, 0x00020000")


def hex_f32(x):
    import struct
    return hex(struct.unpack('<I', struct.pack('<f', x))[0])


def kernel_header(a, name):
    a.lines.append(".p2align 8")
    a.lines.append(f".globl {name}")
    a.lines.append(f".type {name},@function")
    a.label(name)


def kernel_desc(name, nvgpr, nsgpr=102, accum=None):
    nv = ((nvgpr + 7) // 8) * 8
    acc = accum if accum is not None else ((nvgpr + 3) // 4) * 4
    return f""".amdhsa_kernel {name}
  .amdhsa_next_free_vgpr {nv if accum is None else nvgpr}
  .amdhsa_next_free_sgpr {nsgpr}
  .amdhsa_accum_offset {min(acc,256)}
  .amdhsa_group_segment_fixed_size 0
  .amdhsa_kernarg_size 88
  .amdhsa_user_sgpr_count 2
  .amdhsa_user_sgpr_kernarg_segment_ptr 1
  .amdhsa_system_sgpr_workgroup_id_x 1
.end_amdhsa_kernel
"""


def gen_prefetch(a, regions, end_label):
    CH = 32768
    counts = [nbytes // CH for _, nbytes in regions]
    for (_, nbytes), c in zip(regions, counts):
        assert c * CH == nbytes
    total = sum(counts)
    skip = a.newlabel("L_nopf")
    a(f"s_cmp_ge_u32 s2, {total}")
    a(f"s_cbranch_scc1 {skip}")
    base = 0
    for (arg, nbytes), c in zip(regions, counts):
        nxt = a.newlabel("L_pfn")
        a(f"s_cmp_ge_u32 s2, {base + c}")
        a(f"s_cbranch_scc1 {nxt}")
        a(f"s_load_dwordx2 s[4:5], s[0:1], {ARG[arg]}")
        a(f"s_sub_u32 s3, s2, {base}")
        a("s_lshl_b32 s3, s3, 15")
        a("v_lshlrev_b32 v1, 4, v0")
        a("v_add_u32 v1, s3, v1")
        a("s_waitcnt lgkmcnt(0)")
        srd(a, 8, 4, 0, nbytes)
        for j in range(8):
            a(f"v_add_u32 v2, {4096*j}, v1")
            a(f"buffer_load_dwordx4 {v(4+4*j,4)}, v2, s[8:11], 0 offen")
        a("s_waitcnt vmcnt(0)")
        a(f"s_branch {end_label}")
        a.label(nxt)
        base += c
    a.label(skip)
    a(f"s_sub_u32 s2, s2, {total}")
    return total


def tail_prefetch(a, task, lane, regions, vtmp, vdst):
    ntask = 2048
    total = sum(n for _, n in regions)
    per = total // ntask
    assert per * ntask == total and per % 1024 == 0
    nld = per // 1024
    base = 0
    done = a.newlabel("L_pfdone")
    for arg, nbytes in regions:
        cnt = nbytes // per
        assert cnt * per == nbytes
        nxt = a.newlabel("L_pfn")
        a(f"s_cmp_ge_u32 s{task}, {base + cnt}")
        a(f"s_cbranch_scc1 {nxt}")
        a(f"s_load_dwordx2 s[94:95], s[0:1], {ARG[arg]}")
        a(f"s_sub_u32 s93, s{task}, {base}")
        a(f"s_mul_i32 s93, s93, {per}")
        a(f"v_lshlrev_b32 {v(vtmp)}, 4, {v(lane)}")
        a(f"v_add_u32 {v(vtmp)}, s93, {v(vtmp)}")
        a("s_waitcnt lgkmcnt(0)")
        srd(a, 96, 94, 0, nbytes)
        for j in range(nld):
            if j and j % 4 == 0:
                a(f"v_add_u32 {v(vtmp)}, 4096, {v(vtmp)}")
            a(f"buffer_load_dwordx4 {v(vdst,4)}, {v(vtmp)}, s[96:99], 0 offen offset:{1024*(j%4)}")
        a(f"s_branch {done}")
        a.label(nxt)
        base += cnt
    a.label(done)
    return nld

def gen_ln(a, name, src_arg, src_off, dst_off, double, pf=None):
    nwg = S // 4
    kernel_header(a, name)
    end = a.newlabel("L_end")
    npf = 0
    a(f"s_cmp_ge_u32 s2, {nwg}")
    a(f"s_cbranch_scc1 {end}")
    a(f"s_load_dwordx2 s[4:5], s[0:1], {ARG[src_arg]}")
    a(f"s_load_dwordx2 s[6:7], s[0:1], {ARG['ws']}")
    a("v_lshrrev_b32 v1, 6, v0")
    a("v_and_b32 v2, 63, v0")
    a("s_lshl_b32 s3, s2, 2")
    a("v_add_u32 v1, s3, v1")
    a("v_lshlrev_b32 v3, 11, v1")
    a("v_lshl_add_u32 v3, v2, 5, v3")
    for i, m in enumerate([1, 2, 4, 8, 16, 32]):
        a(f"v_xor_b32 v{12+i}, {m}, v2")
        a(f"v_lshlrev_b32 v{12+i}, 2, v{12+i}")
    a("s_waitcnt lgkmcnt(0)")
    srd(a, 8, 4, src_off, S * D * 2)
    srd(a, 12, 6, dst_off, S * D * 2)
    a("buffer_load_dwordx4 v[4:7], v3, s[8:11], 0 offen")
    a("buffer_load_dwordx4 v[8:11], v3, s[8:11], 0 offen offset:16")
    npl = 0
    if pf:
        a("v_readfirstlane_b32 s92, v1")
        a("s_nop 3")
        npl = tail_prefetch(a, 92, 2, pf, 44, 48)
    a(f"s_waitcnt vmcnt({npl})")

    def unpack():
        for i in range(8):
            a(f"v_lshlrev_b32 v{20+2*i}, 16, v{4+i}")
            a(f"v_and_b32 v{21+2*i}, 0xffff0000, v{4+i}")

    def bfly():
        for i in range(6):
            a(f"ds_bpermute_b32 v41, v{12+i}, v40")
            a("s_waitcnt lgkmcnt(0)")
            a("v_add_f32 v40, v40, v41")

    def norm():
        a("v_add_f32 v40, v20, v21")
        for i in range(2, 16):
            a(f"v_add_f32 v40, v40, v{20+i}")
        bfly()
        a("v_mul_f32 v40, 0x3a800000, v40")
        for i in range(16):
            a(f"v_sub_f32 v{20+i}, v{20+i}, v40")
        a("v_mul_f32 v40, v20, v20")
        for i in range(1, 16):
            a(f"v_fmac_f32 v40, v{20+i}, v{20+i}")
        bfly()
        a("v_mov_b32 v42, 0x3727c5ac")
        a("v_fma_f32 v40, v40, v43, v42")
        a("v_rsq_f32 v40, v40")
        a("s_nop 0")
        for i in range(16):
            a(f"v_mul_f32 v{20+i}, v{20+i}, v40")
        for i in range(8):
            a(f"v_cvt_pk_bf16_f32 v{4+i}, v{20+2*i}, v{21+2*i}")

    a("v_mov_b32 v43, 0x3a800000")
    unpack()
    norm()
    if double:
        unpack()
        norm()
    a("buffer_store_dwordx4 v[4:7], v3, s[12:15], 0 offen")
    a("buffer_store_dwordx4 v[8:11], v3, s[12:15], 0 offen offset:16")
    a.label(end)
    a("s_endpgm")
    return dict(name=name, grid=nwg + npf, block=256, lds=0, desc=kernel_desc(name, 56))


def gen_gemm(a, name, N, K, BN, a_off, w_arg, epi, out_arg, out_off, res_arg=None, res_off=0,
             bias_arg=None, BM=128, NSTAGE=3, RA=4, RBN=8, ln=None, a_arg='ws', pre=False, stats_out=False, lda=None, ldo=None, splitk=None, zero_flags=False, l2pf=0, wpf=None, xstats=False):
    import struct
    M = S
    BK = 64
    lda = lda or K * 2
    ldo = ldo or N * 2
    NT_M = M // BM
    NT_N = N // BN
    ntiles = NT_M * NT_N
    MT = BM // 2 // 16
    NTW = BN // 2 // 16
    RB = {64: 128, 128: 128, 192: 128, 96: 64, 224: 448, 112: 32}[BN]
    ABYTES = BM * BK * 2
    BBYTES = BK * BN * 2
    STAGE = ABYTES + BBYTES
    PA = ABYTES // 1024 // 4
    PB = BBYTES // 1024 // 4
    assert PA * 4096 == ABYTES and PB * 4096 == BBYTES
    P = PA + PB
    NS = K // BK
    if splitk:
        NSLO, NSHI = splitk
        assert NSLO + NSHI == NS and (NSLO - NSHI) % NSTAGE == 0
        NS = NSHI
        ntiles *= 2
    lds = STAGE * NSTAGE
    CROW = BN * 2 + 16
    CSZ = BM * CROW
    LASTB = (NS - 1) % NSTAGE
    TBL = 2048 if (ln and not pre) else 0
    CBASE = 0 if LASTB * STAGE >= CSZ + TBL else (LASTB + 1) * STAGE
    assert CBASE + CSZ + TBL <= lds
    EPI = lds
    st_res = bool(res_arg) and not splitk
    if splitk:
        DONE = CBASE + CSZ
        assert DONE + 16 <= (LASTB * STAGE if CBASE == 0 else lds)
    st_bias = pre
    if st_res: lds += BM * BN * 2
    if st_bias: lds += 3072 + 4096
    assert lds <= 163840
    if pre:
        CTAB = EPI + 1024; RTAB = EPI + 2048
    else:
        RTAB = CBASE + CSZ; CTAB = RTAB + 1024
    NEX = (BM * BN * 2 // 4096 if st_res else 0)
    PPR = RB // 32
    lg_ppr = int(math.log2(PPR)) if RB != 448 else 0

    vA = list(range(2, 2 + PA))
    vB = list(range(2 + PA, 2 + PA + PB))
    nxt = 2 + PA + PB
    vXb = [nxt, nxt + 1]; nxt += 2
    vWb = list(range(nxt, nxt + NTW)); nxt += NTW
    vXc = [nxt, nxt + 1]; nxt += 2
    vWc = list(range(nxt, nxt + NTW)); nxt += NTW
    vT = list(range(nxt, nxt + 8)); nxt += 8
    nxt = (nxt + 3) // 4 * 4
    FX = [nxt, nxt + 4 * MT]; nxt += 8 * MT
    FW = [nxt, nxt + 4 * NTW]; nxt += 8 * NTW
    ACC = nxt; nxt += 4 * MT * NTW
    PBI = nxt
    if bias_arg and not pre: nxt += 2 * NTW
    if l2pf or wpf:
        nxt = (nxt + 3) // 4 * 4
        PFD = nxt; PFV = nxt + 4; nxt += 5
    if splitk:
        PRT = nxt; nxt += 4 * MT * NTW
        PFL = nxt; PFA = nxt + 1; PPA = nxt + 2; nxt += 3
    nvgpr = nxt
    assert nvgpr <= 256
    t0, t1, t2, t3 = vT[0], vT[1], vT[2], vT[3]

    def acc(nt, mt):
        return ACC + 4 * (nt * MT + mt)

    def stamp(i):
        if 'stamp' in EXP:
            if 'rt' in EXP and i in (1, 6):
                a(f"s_memrealtime s[{60+2*i}:{61+2*i}]")
                a(f"s_memtime s[{62 if i == 1 else 70}+0:{63 if i == 1 else 71}]".replace("+0","")) if False else None
            else:
                a(f"s_memtime s[{60+2*i}:{61+2*i}]")
            if i >= 6: a("s_waitcnt lgkmcnt(0)")

    def stamp_out():
        if 'stamp' not in EXP: return
        a("s_waitcnt lgkmcnt(0)")
        srd(a, 80, 24, 200 * MB, 1 << 20)
        a("s_lshl_b32 s3, s2, 3")
        a("s_add_u32 s3, s3, s49")
        a("s_lshl_b32 s3, s3, 6")
        a("v_mov_b32 v2, s3")
        for i in range(8):
            a(f"v_mov_b32 v4, s{60+2*i}")
            a(f"v_mov_b32 v5, s{61+2*i}")
            a(f"buffer_store_dwordx2 v[4:5], v2, s[80:83], 0 offen offset:{8*i}")
            a("s_nop 1")

    def wfrag_addr_common():
        a(f"v_lshrrev_b32 {v(t1)}, 4, v1")
        a(f"v_bfe_u32 {v(t0)}, v1, 2, 2")
        a(f"v_lshl_add_u32 {v(t2)}, {v(t1)}, 3, {v(t0)}")
        if RB == 256:
            a(f"v_and_b32 {v(t3)}, 1, {v(t1)}")
            a(f"v_lshl_add_u32 {v(t3)}, {v(t3)}, 2, {v(t0)}")
        elif RB == 128:
            a(f"v_and_b32 {v(t3)}, 1, {v(t1)}")
            a(f"v_lshrrev_b32 {v(t0)}, 1, {v(t0)}")
            a(f"v_lshl_add_u32 {v(t3)}, {v(t3)}, 1, {v(t0)}")
        elif RB in (64, 448):
            a(f"v_and_b32 {v(t3)}, 1, {v(t1)}")
        else:
            a(f"v_mov_b32 {v(t3)}, 0")
        a(f"v_mul_u32_u24 {v(t2)}, {RB}, {v(t2)}")
        a(f"v_and_b32 {v(t0)}, 3, v1")
        a(f"v_lshl_add_u32 {v(t2)}, {v(t0)}, 3, {v(t2)}")
        a(f"v_add_u32 {v(t2)}, {ABYTES}, {v(t2)}")

    def wfrag_addr(dst):
        if RB == 448:
            a("s_mov_b32 s47, 0")
        elif PPR > 1:
            a(f"s_lshr_b32 s47, s46, {lg_ppr}")
            a(f"s_and_b32 s46, s46, {PPR-1}")
        else:
            a("s_mov_b32 s47, s46")
            a("s_mov_b32 s46, 0")
        a(f"s_mul_i32 s47, s47, {64*RB}")
        a(f"v_xor_b32 {v(t0)}, s46, {v(t3)}")
        a(f"v_lshl_add_u32 {v(t0)}, {v(t0)}, 5, {v(t2)}")
        a(f"v_add_u32 {v(dst)}, s47, {v(t0)}")

    kernel_header(a, name)
    end = a.newlabel("L_end")
    stamp(0)
    lab_loader = a.newlabel("L_loader")
    lab_store = a.newlabel("L_store")
    a(f"s_cmp_ge_u32 s2, {ntiles}")
    a(f"s_cbranch_scc1 {end}")
    a(f"s_load_dwordx2 s[24:25], s[0:1], {ARG['ws']}")
    a(f"s_load_dwordx2 s[58:59], s[0:1], {ARG[a_arg]}")
    a(f"s_load_dwordx2 s[26:27], s[0:1], {ARG[w_arg]}")
    a(f"s_load_dwordx2 s[34:35], s[0:1], {ARG[out_arg]}")
    if res_arg:
        a(f"s_load_dwordx2 s[36:37], s[0:1], {ARG[res_arg]}")
    if bias_arg:
        a(f"s_load_dwordx2 s[38:39], s[0:1], {ARG[bias_arg]}")
    assert ntiles == 256 and RA * RBN == (16 if splitk else 32) and NT_M % RA == 0 and NT_N % RBN == 0
    XB = NT_N // RBN
    a("s_and_b32 s3, s2, 7")
    a("s_lshr_b32 s46, s2, 3")
    if splitk:
        a("s_lshr_b32 s92, s46, 4")
        a("s_and_b32 s46, s46, 15")
        a("s_lshl_b32 s96, s3, 4")
        a("s_add_u32 s96, s96, s46")
        a("s_cmp_eq_u32 s92, 0")
        a(f"s_cselect_b32 s93, {NSLO}, {NSHI}")
        a("s_mov_b32 s94, 1")
    a(f"s_lshr_b32 s28, s3, {int(math.log2(XB))}")
    a(f"s_and_b32 s29, s3, {XB-1}")
    a(f"s_mul_i32 s28, s28, {RA}")
    a(f"s_mul_i32 s29, s29, {RBN}")
    a(f"s_lshr_b32 s3, s46, {int(math.log2(RBN))}")
    a("s_add_u32 s28, s28, s3")
    a(f"s_and_b32 s3, s46, {RBN-1}")
    a("s_add_u32 s29, s29, s3")
    a("v_and_b32 v1, 63, v0")
    a(f"v_lshrrev_b32 {v(vT[0])}, 6, v0")
    a("s_nop 0")
    a(f"v_readfirstlane_b32 s49, {v(vT[0])}")
    a("s_nop 3")
    a("s_and_b32 s30, s49, 3")
    a("s_lshr_b32 s44, s30, 1")
    a("s_and_b32 s45, s30, 1")

    def build_srds():
        a("s_waitcnt lgkmcnt(0)")
        srd(a, 4, 58, a_off, M * lda)
        srd(a, 8, 26, 0, K * N * 2)
        srd(a, 12, 34, out_off, M * ldo)
        if res_arg:
            srd(a, 16, 36, res_off, M * N * 2)
        if bias_arg:
            srd(a, 20, 38, 0, N * 2)
        if pre or stats_out:
            srd(a, 84, 24, WS_ST, S * 128)
        if pre:
            srd(a, 88, 24, WS_CS, 16 * N * 4)
        if splitk:
            srd(a, 84, 24, WS_PART, 128 * 65536)
            srd(a, 88, 24, WS_FLAG, 512)

    a("s_cmp_ge_u32 s49, 4")
    a(f"s_cbranch_scc1 {lab_loader}")

    a(f"v_and_b32 {v(t0)}, 15, v1")
    a("s_lshl_b32 s3, s44, 6")
    a(f"v_add_u32 {v(t0)}, s3, {v(t0)}")
    a(f"v_lshlrev_b32 {v(t0)}, 7, {v(t0)}")
    a(f"v_lshrrev_b32 {v(t1)}, 4, v1")
    a(f"v_bfe_u32 {v(t2)}, v1, 1, 3")
    a(f"v_xor_b32 {v(t3)}, {v(t1)}, {v(t2)}")
    a(f"v_lshl_add_u32 {v(vXb[0])}, {v(t3)}, 4, {v(t0)}")
    a(f"v_xor_b32 {v(t3)}, 4, {v(t3)}")
    a(f"v_lshl_add_u32 {v(vXb[1])}, {v(t3)}, 4, {v(t0)}")
    wfrag_addr_common()
    a(f"s_mul_i32 s3, s45, {NTW}")
    for nt in range(NTW):
        a(f"s_add_u32 s46, s3, {nt}")
        wfrag_addr(vWb[nt])
    for i in range(4 * MT * NTW):
        a(f"v_mov_b32 v{ACC+i}, 0")
    a("s_mov_b32 s42, 0")
    build_srds()
    if bias_arg and not pre:
        a(f"v_lshrrev_b32 {v(t0)}, 4, v1")
        a(f"v_lshlrev_b32 {v(t0)}, 3, {v(t0)}")
        a(f"s_mul_i32 s3, s29, {BN*2}")
        a(f"s_mul_i32 s46, s45, {BN}")
        a("s_add_u32 s3, s3, s46")
        for nt in range(NTW):
            a(f"buffer_load_dwordx2 {v(PBI+2*nt,2)}, {v(t0)}, s[20:23], s3 offen offset:{32*nt}")

    def set_cur():
        for kk in range(2):
            a(f"v_add_u32 {v(vXc[kk])}, s42, {v(vXb[kk])}")
        for nt in range(NTW):
            a(f"v_add_u32 {v(vWc[nt])}, s42, {v(vWb[nt])}")
        a(f"s_add_u32 s42, s42, {STAGE}")
        a(f"s_cmp_ge_u32 s42, {STAGE*NSTAGE}")
        a("s_cselect_b32 s42, 0, s42")

    def read_list(kk, f):
        if 'noreads' in EXP: return []
        L = []
        for nt in range(NTW):
            if nt < MT:
                L.append(f"ds_read_b128 {v(FX[f]+4*nt,4)}, {v(vXc[kk])} offset:{nt*2048}")
            for rd in range(2):
                L.append(f"ds_read_b64_tr_b16 {v(FW[f]+4*nt+2*rd,2)}, {v(vWc[nt])} offset:{kk*32*RB+rd*4*RB}")
        for mt in range(NTW, MT):
            L.append(f"ds_read_b128 {v(FX[f]+4*mt,4)}, {v(vXc[kk])} offset:{mt*2048}")
        return L

    def mfma_list(f):
        if 'nomfma' in EXP: return []
        L = []
        for nt in range(NTW):
            for mt in range(MT):
                L.append(f"v_mfma_f32_16x16x32_bf16 {v(acc(nt,mt),4)}, {v(FW[f]+4*nt,4)}, {v(FX[f]+4*mt,4)}, {v(acc(nt,mt),4)}")
        return L

    def reads(kk, f):
        for x in read_list(kk, f): a(x)

    def mfmas(f):
        for x in mfma_list(f): a(x)

    def inter(kk, fr, fm):
        R = read_list(kk, fr); Mm = mfma_list(fm)
        rpm = RPM if NTW <= 4 else 1
        ri = 0
        for i in range(len(Mm)):
            a(Mm[i])
            for _ in range(rpm):
                if ri < len(R): a(R[ri]); ri += 1
        while ri < len(R): a(R[ri]); ri += 1

    if wpf:
        a("s_lshl_b32 s3, s2, 2")
        a("s_add_u32 s3, s3, s30")
        for q, (arg, nbytes, hi) in enumerate(wpf):
            a(f"s_load_dwordx2 s[{94+2*q}:{95+2*q}], s[0:1], {ARG[arg]}")
            a(f"s_mul_i32 s{92+q}, s3, {nbytes//1024}")
        a("s_waitcnt lgkmcnt(0)")
        for q, (arg, nbytes, hi) in enumerate(wpf):
            assert nbytes % (1 << 20) == 0
            srd(a, 84 + 4 * q, 94 + 2 * q, 0, nbytes)
        a(f"v_lshlrev_b32 {v(PFV)}, 4, v1")
    if l2pf:
        NPA = RA * BM // 8
        NPW = BK * (RBN * BN * 2) // 1024
        WPR = RBN * BN * 2 // 1024
        assert NPA + NPW == 128 and WPR == 1
        lw = a.newlabel("L_pfw"); ld = a.newlabel("L_pfd")
        a("s_lshr_b32 s3, s2, 3")
        a("s_lshl_b32 s3, s3, 2")
        a("s_add_u32 s3, s3, s30")
        a(f"s_cmp_ge_u32 s3, {NPA}")
        a(f"s_cbranch_scc1 {lw}")
        a(f"s_lshr_b32 s46, s28, {int(math.log2(RA))}")
        a(f"s_mul_i32 s46, s46, {RA*BM}")
        a("s_lshl_b32 s3, s3, 3")
        a("s_add_u32 s3, s3, s46")
        a(f"v_lshrrev_b32 {v(PFV)}, 3, v1")
        a(f"v_add_u32 {v(PFV)}, s3, {v(PFV)}")
        a(f"v_mul_u32_u24 {v(PFV)}, {lda}, {v(PFV)}")
        a(f"v_and_b32 {v(t0)}, 7, v1")
        a(f"v_lshl_add_u32 {v(PFV)}, {v(t0)}, 4, {v(PFV)}")
        for i in range(4): a(f"s_mov_b32 s{84+i}, s{4+i}")
        a(f"s_mov_b32 s92, {l2pf*BK*2}")
        a(f"s_mov_b32 s93, {BK*2}")
        a(f"s_branch {ld}")
        a.label(lw)
        a(f"s_sub_u32 s3, s3, {NPA}")
        a(f"s_mul_i32 s3, s3, {N*2}")
        a(f"s_lshr_b32 s46, s29, {int(math.log2(RBN))}")
        a(f"s_mul_i32 s46, s46, {RBN*BN*2}")
        a("s_add_u32 s3, s3, s46")
        a(f"v_lshlrev_b32 {v(PFV)}, 4, v1")
        a(f"v_add_u32 {v(PFV)}, s3, {v(PFV)}")
        for i in range(4): a(f"s_mov_b32 s{84+i}, s{8+i}")
        a(f"s_mov_b32 s92, {l2pf*BK*N*2}")
        a(f"s_mov_b32 s93, {BK*N*2}")
        a.label(ld)
        a(f"s_mul_i32 s3, s93, {NSTAGE-1}")
        for j in range(NSTAGE - 1, l2pf):
            a(f"buffer_load_dwordx4 {v(PFD,4)}, {v(PFV)}, s[84:87], s3 offen")
            a("s_add_u32 s3, s3, s93")
    if splitk:
        a("s_xor_b32 s95, s92, 1")
        a(f"v_mov_b32 {v(PFL)}, 0")
        a("s_lshl_b32 s3, s96, 2")
        a(f"v_mov_b32 {v(PFA)}, s3")
        a("s_add_u32 s3, s3, s30")
        a("s_lshl_b32 s3, s3, 14")
        a(f"v_lshlrev_b32 {v(PPA)}, 4, v1")
        a(f"v_add_u32 {v(PPA)}, s3, {v(PPA)}")
    stamp(1)
    lab_cpass = a.newlabel("L_cpass")
    a.label(lab_cpass)
    a("s_barrier")
    stamp(2)
    set_cur()
    reads(0, 0)
    a("s_waitcnt lgkmcnt(0)")
    inter(1, 1, 0)
    a("s_waitcnt lgkmcnt(0)")
    if splitk: a("s_sub_u32 s48, s93, 1")
    else: a(f"s_mov_b32 s48, {NS-1}")
    loop = a.newlabel("L_cloop")
    a.label(loop)
    a("s_barrier")
    set_cur()
    inter(0, 0, 1)
    a("s_waitcnt lgkmcnt(0)")
    inter(1, 1, 0)
    if l2pf:
        a(f"buffer_load_dwordx4 {v(PFD,4)}, {v(PFV)}, s[84:87], s92 offen")
        a("s_add_u32 s92, s92, s93")
    if wpf:
        for q, (arg, nbytes, hi) in enumerate(wpf):
            n = nbytes >> 20
            lsk = a.newlabel("L_wpfs")
            a(f"s_sub_u32 s3, s48, {hi-n+1}")
            a(f"s_cmp_ge_u32 s3, {n}")
            a(f"s_cbranch_scc1 {lsk}")
            a(f"buffer_load_dwordx4 {v(PFD,4)}, {v(PFV)}, s[{84+4*q}:{87+4*q}], s{92+q} offen")
            a(f"s_add_u32 s{92+q}, s{92+q}, 1024")
            a.label(lsk)
    if splitk:
        cskip = a.newlabel("L_cskip"); cpoll = a.newlabel("L_cpoll")
        a("s_cmp_lg_u32 s95, 0")
        a(f"s_cbranch_scc1 {cskip}")
        a(f"v_readfirstlane_b32 s3, {v(PFL)}")
        a("s_nop 3")
        a("s_cmp_eq_u32 s3, 0")
        a(f"s_cbranch_scc1 {cpoll}")
        a("s_mov_b32 s95, 1")
        for t_ in range(MT * NTW):
            a(f"s_mov_b32 s3, {1024*t_}")
            a(f"buffer_load_dwordx4 {v(PRT+4*t_,4)}, {v(PPA)}, s[84:87], s3 offen")
        a(f"s_branch {cskip}")
        a.label(cpoll)
        if 'forcefb' not in EXP: a(f"buffer_load_dword {v(PFL)}, {v(PFA)}, s[88:91], 0 offen sc0 sc1")
        a.label(cskip)
    a("s_waitcnt lgkmcnt(0)")
    a("s_sub_u32 s48, s48, 1")
    a("s_cmp_lg_u32 s48, 0")
    a(f"s_cbranch_scc1 {loop}")
    stamp(3)
    mfmas(1)
    if ln and not pre:
        a("s_barrier")
    if splitk:
        lab_hi = a.newlabel("L_hi"); lab_epi = a.newlabel("L_epi"); lab_fb = a.newlabel("L_fb")
        a("s_cmp_lg_u32 s92, 0")
        a(f"s_cbranch_scc1 {lab_hi}")
        a("s_nop 7")
        for t_ in range(MT * NTW):
            a(f"s_mov_b32 s3, {1024*t_}")
            a(f"buffer_store_dwordx4 {v(ACC+4*t_,4)}, {v(PPA)}, s[84:87], s3 offen sc0 sc1")
        a("s_waitcnt vmcnt(0)")
        a("s_barrier")
        a("s_cmp_lg_u32 s30, 0")
        a(f"s_cbranch_scc1 {end}")
        a(f"v_mov_b32 {v(t1)}, 1")
        a("s_mov_b64 exec, 1")
        a(f"buffer_store_dword {v(t1)}, {v(PFA)}, s[88:91], 0 offen sc0 sc1")
        a(f"s_branch {end}")
        a.label(lab_hi)
        a("s_lshl_b32 s3, s30, 2")
        a(f"s_add_u32 s3, s3, {DONE}")
        a(f"v_mov_b32 {v(t0)}, s3")
        a(f"v_mov_b32 {v(t1)}, s95")
        a(f"ds_write_b32 {v(t0)}, {v(t1)}")
        a("s_waitcnt lgkmcnt(0)")
        a("s_barrier")
        a("s_cmp_eq_u32 s94, 2")
        a(f"s_cbranch_scc1 {lab_epi}")
        a(f"v_mov_b32 {v(t1)}, {DONE}")
        a(f"ds_read_b128 {v(FX[0],4)}, {v(t1)}")
        a("s_waitcnt lgkmcnt(0)")
        a(f"v_and_b32 {v(FX[0])}, {v(FX[0])}, {v(FX[0]+1)}")
        a(f"v_and_b32 {v(FX[0]+2)}, {v(FX[0]+2)}, {v(FX[0]+3)}")
        a(f"v_and_b32 {v(FX[0])}, {v(FX[0])}, {v(FX[0]+2)}")
        a("s_nop 0")
        a(f"v_readfirstlane_b32 s3, {v(FX[0])}")
        a("s_nop 3")
        a("s_cmp_eq_u32 s3, 1")
        a(f"s_cbranch_scc0 {lab_fb}")
        a("s_waitcnt vmcnt(0)")
        for t_ in range(MT * NTW):
            for j in range(2):
                a(f"v_pk_add_f32 {v(ACC+4*t_+2*j,2)}, {v(ACC+4*t_+2*j,2)}, {v(PRT+4*t_+2*j,2)}")
        a(f"s_branch {lab_epi}")
        a.label(lab_fb)
        a("s_mov_b32 s94, 2")
        a("s_mov_b32 s95, 1")
        a(f"s_mov_b32 s93, {NSLO}")
        a("s_mov_b32 s42, 0")
        a("s_barrier")
        a(f"s_branch {lab_cpass}")
        a.label(lab_epi)
    RT = FX[0]; CS = RT + 8; BR = CS + 4 * NTW; BF = BR + 2 * NTW; GE = BF + 4 * NTW
    assert GE + 10 <= ACC
    a(f"v_and_b32 {v(t2)}, 15, v1")
    a("s_lshl_b32 s3, s44, 6")
    a(f"v_add_u32 {v(t2)}, s3, {v(t2)}")
    a(f"v_lshrrev_b32 {v(t3)}, 4, v1")
    a(f"s_mul_i32 s3, s45, {NTW*4}")
    a(f"v_add_u32 {v(t3)}, s3, {v(t3)}")
    if ln:
        a(f"v_lshlrev_b32 {v(t0)}, 3, {v(t2)}")
        a(f"v_add_u32 {v(t0)}, {RTAB}, {v(t0)}")
        for mt in range(MT):
            a(f"ds_read_b64 {v(RT+2*mt,2)}, {v(t0)} offset:{128*mt}")
        a(f"v_lshlrev_b32 {v(t0)}, 4, {v(t3)}")
        a(f"v_add_u32 {v(t0)}, {CTAB}, {v(t0)}")
        for nt in range(NTW):
            a(f"ds_read_b128 {v(CS+4*nt,4)}, {v(t0)} offset:{64*nt}")
    if bias_arg and pre:
        a(f"v_lshlrev_b32 {v(t0)}, 3, {v(t3)}")
        a(f"v_add_u32 {v(t0)}, {EPI}, {v(t0)}")
        for nt in range(NTW):
            a(f"ds_read_b64 {v(BR+2*nt,2)}, {v(t0)} offset:{32*nt}")
    vc = vT[0]
    a(f"v_mul_u32_u24 {v(t2)}, {CROW}, {v(t2)}")
    a(f"v_lshl_add_u32 {v(vc)}, {v(t3)}, 3, {v(t2)}")
    if CBASE: a(f"v_add_u32 {v(vc)}, {CBASE}, {v(vc)}")
    if epi == 'gelu':
        c2 = 2 * math.log2(math.e)
        k1 = struct.unpack("<I", struct.pack("<f", 0.7978845608 * c2))[0]
        k3 = struct.unpack("<I", struct.pack("<f", 0.7978845608 * 0.044715 * c2))[0]
        a(f"s_mov_b32 s52, {k3}"); a(f"s_mov_b32 s53, {k3}")
        a(f"v_mov_b32 {v(GE+8)}, {k1}"); a(f"v_mov_b32 {v(GE+9)}, {k1}")
        a("s_mov_b32 s56, 1.0"); a("s_mov_b32 s57, 1.0")
    a("s_waitcnt vmcnt(0) lgkmcnt(0)" if (bias_arg and not pre) else "s_waitcnt lgkmcnt(0)")
    a("s_nop 7")
    if bias_arg:
        bsrc = BR if pre else PBI
        for nt in range(NTW):
            for j in range(2):
                a(f"v_lshlrev_b32 {v(BF+4*nt+2*j)}, 16, {v(bsrc+2*nt+j)}")
                a(f"v_and_b32 {v(BF+4*nt+2*j+1)}, 0xffff0000, {v(bsrc+2*nt+j)}")
    for nt in range(NTW):
        for mp in range(0, MT, 2):
            c0 = acc(nt, mp)
            for q in range(2):
                mt = mp + q
                for j in range(2):
                    cc = v(c0 + 4 * q + 2 * j, 2)
                    tt = v(GE + 4 * q + 2 * j, 2)
                    if ln:
                        if bias_arg:
                            a(f"v_pk_fma_f32 {tt}, {v(CS+4*nt+2*j,2)}, {v(RT+2*mt,2)}, {v(BF+4*nt+2*j,2)} op_sel:[0,1,0] op_sel_hi:[1,1,1]")
                        else:
                            a(f"v_pk_mul_f32 {tt}, {v(CS+4*nt+2*j,2)}, {v(RT+2*mt,2)} op_sel:[0,1] op_sel_hi:[1,1]")
                    elif bias_arg:
                        a(f"v_pk_add_f32 {cc}, {cc}, {v(BF+4*nt+2*j,2)}")
            if ln:
                for q in range(2):
                    mt = mp + q
                    for j in range(2):
                        cc = v(c0 + 4 * q + 2 * j, 2)
                        tt = v(GE + 4 * q + 2 * j, 2)
                        a(f"v_pk_fma_f32 {cc}, {cc}, {v(RT+2*mt,2)}, {tt} op_sel:[0,0,0] op_sel_hi:[1,0,1]")
            if epi == 'gelu':
                for j in range(4):
                    a(f"v_pk_mul_f32 {v(GE+2*j,2)}, {v(c0+2*j,2)}, {v(c0+2*j,2)}")
                for j in range(4):
                    a(f"v_pk_fma_f32 {v(GE+2*j,2)}, {v(GE+2*j,2)}, s[52:53], {v(GE+8,2)}")
                for j in range(4):
                    a(f"v_pk_mul_f32 {v(GE+2*j,2)}, {v(GE+2*j,2)}, {v(c0+2*j,2)}")
                for r in range(8):
                    a(f"v_exp_f32 {v(GE+r)}, {v(GE+r)}")
                a("s_nop 0")
                for j in range(4):
                    a(f"v_pk_add_f32 {v(GE+2*j,2)}, {v(GE+2*j,2)}, s[56:57]")
                for r in range(8):
                    a(f"v_rcp_f32 {v(GE+r)}, {v(GE+r)}")
                a("s_nop 0")
                for j in range(4):
                    cc = v(c0 + 2 * j, 2)
                    a(f"v_pk_fma_f32 {cc}, {cc}, {v(GE+2*j,2)}, {cc} neg_lo:[1,0,0] neg_hi:[1,0,0]")
            for j in range(4):
                a(f"v_cvt_pk_bf16_f32 {v(c0+j)}, {v(c0+2*j)}, {v(c0+2*j+1)}")
            for q in range(2):
                a(f"ds_write_b64 {v(vc)}, {v(c0+2*q,2)} offset:{(mp+q)*16*CROW + nt*32}")
    a("s_waitcnt lgkmcnt(0)")
    stamp(4)
    a("s_barrier")
    a(f"s_branch {lab_store}")

    a.label(lab_loader)
    if 'noprio' not in EXP: a("s_setprio 2")
    NPL = (BN // 16 + 3) // 4
    LSA = 40
    LCW = 44
    LSC = 48; LCC = 52
    LONE = 56
    LST = 60
    LMS = 132
    LCS = 68
    LSD = 84
    LWD = 100
    assert vT[7] < 40
    a(f"s_mul_i32 s3, s30, {PA*8}")
    a(f"v_lshrrev_b32 {v(t0)}, 3, v1")
    a(f"v_add_u32 {v(t0)}, s3, {v(t0)}")
    a(f"s_mul_i32 s3, s28, {BM}")
    for i in range(PA):
        a(f"v_add_u32 {v(t1)}, {8*i}, {v(t0)}")
        a(f"v_lshrrev_b32 {v(t2)}, 1, {v(t1)}")
        a(f"v_and_b32 {v(t2)}, 7, {v(t2)}")
        a(f"v_and_b32 {v(t3)}, 7, v1")
        a(f"v_xor_b32 {v(t2)}, {v(t2)}, {v(t3)}")
        a(f"v_add_u32 {v(t1)}, s3, {v(t1)}")
        a(f"v_mul_u32_u24 {v(t1)}, {lda}, {v(t1)}")
        a(f"v_lshl_add_u32 {v(vA[i])}, {v(t2)}, 4, {v(t1)}")
    a(f"s_mul_i32 s3, s29, {BN*2}")
    if RB == 448:
        a(f"s_mov_b32 s47, {((1 << 32) + 27) // 28}")
        for i in range(PB):
            a(f"s_mul_i32 s46, s30, {PB*64}")
            a(f"s_add_u32 s46, s46, {i*64}")
            a(f"v_add_u32 {v(t1)}, s46, v1")
            a(f"v_mul_hi_u32 {v(t0)}, {v(t1)}, s47")
            a(f"v_mul_u32_u24 {v(t2)}, 28, {v(t0)}")
            a(f"v_sub_u32 {v(t1)}, {v(t1)}, {v(t2)}")
            a(f"v_bfe_u32 {v(t2)}, {v(t0)}, 3, 1")
            a(f"v_lshlrev_b32 {v(t2)}, 1, {v(t2)}")
            a(f"v_xor_b32 {v(t1)}, {v(t1)}, {v(t2)}")
            a(f"v_mul_u32_u24 {v(t0)}, {N*2}, {v(t0)}")
            a(f"v_lshl_add_u32 {v(t0)}, {v(t1)}, 4, {v(t0)}")
            a(f"v_add_u32 {v(vB[i])}, s3, {v(t0)}")
    else:
      CPR = RB // 16
      lg_cpr = int(math.log2(CPR))
      RPP = 1024 // RB
      PPB = RB // 16
      lg_ppb = int(math.log2(PPB))
      for i in range(PB):
        a(f"s_mul_i32 s46, s30, {PB}")
        a(f"s_add_u32 s46, s46, {i}")
        a(f"s_lshr_b32 s47, s46, {lg_ppb}")
        a(f"s_and_b32 s46, s46, {PPB-1}")
        a(f"s_mul_i32 s46, s46, {RPP}")
        a(f"s_mul_i32 s47, s47, {RB}")
        a("s_add_u32 s47, s47, s3")
        a(f"v_lshrrev_b32 {v(t0)}, {lg_cpr}, v1")
        a(f"v_add_u32 {v(t0)}, s46, {v(t0)}")
        a(f"v_and_b32 {v(t1)}, {CPR-1}, v1")
        if RB == 256:
            a(f"v_and_b32 {v(t2)}, 3, {v(t0)}")
            a(f"v_bfe_u32 {v(t3)}, {v(t0)}, 3, 1")
            a(f"v_lshl_add_u32 {v(t2)}, {v(t3)}, 2, {v(t2)}")
        elif RB == 128:
            a(f"v_bfe_u32 {v(t2)}, {v(t0)}, 1, 1")
            a(f"v_bfe_u32 {v(t3)}, {v(t0)}, 3, 1")
            a(f"v_lshl_add_u32 {v(t2)}, {v(t3)}, 1, {v(t2)}")
        elif RB == 64:
            a(f"v_bfe_u32 {v(t2)}, {v(t0)}, 3, 1")
        else:
            a(f"v_mov_b32 {v(t2)}, 0")
        a(f"v_lshlrev_b32 {v(t2)}, 1, {v(t2)}")
        a(f"v_xor_b32 {v(t1)}, {v(t1)}, {v(t2)}")
        a(f"v_mul_u32_u24 {v(t0)}, {N*2}, {v(t0)}")
        a(f"v_lshl_add_u32 {v(t0)}, {v(t1)}, 4, {v(t0)}")
        a(f"v_add_u32 {v(vB[i])}, s47, {v(t0)}")
    a(f"s_mul_i32 s31, s30, {PA*1024}")
    a(f"s_mul_i32 s32, s30, {PB*1024}")
    a(f"s_add_u32 s32, s32, {ABYTES}")
    a("s_mov_b32 s40, 0")
    a("s_mov_b32 s41, 0")
    a("s_mov_b32 s43, 0")
    a("s_mov_b32 s42, 0")
    build_srds()
    if zero_flags:
        lz = a.newlabel("L_nz")
        a("s_cmp_lg_u32 s2, 0")
        a(f"s_cbranch_scc1 {lz}")
        srd(a, 92, 24, WS_FLAG, 512)
        a(f"v_lshlrev_b32 {v(t0)}, 3, v1")
        a("v_mov_b32 v44, 0")
        a("v_mov_b32 v45, 0")
        a(f"buffer_store_dwordx2 v[44:45], {v(t0)}, s[92:95], 0 offen")
        a.label(lz)
    if splitk:
        a(f"s_mul_i32 s40, s92, {NSLO*BK*2}")
        a(f"s_mul_i32 s41, s92, {NSLO*BK*N*2}")
        lab_lpass = a.newlabel("L_lpass")
        a.label(lab_lpass)

    def dma():
        if 'nodma' in EXP: return
        a("s_add_u32 s33, s43, s31")
        for i in range(PA):
            a(f"s_add_u32 m0, s33, {i*1024}")
            a("s_nop 0")
            a(f"buffer_load_dwordx4 {v(vA[i])}, s[4:7], s40 offen lds")
        a("s_add_u32 s33, s43, s32")
        for i in range(PB):
            a(f"s_add_u32 m0, s33, {i*1024}")
            a("s_nop 0")
            a(f"buffer_load_dwordx4 {v(vB[i])}, s[8:11], s41 offen lds")
        a(f"s_add_u32 s40, s40, {BK*2}")
        a(f"s_add_u32 s41, s41, {BK*N*2}")
        a(f"s_add_u32 s43, s43, {STAGE}")
        a(f"s_cmp_ge_u32 s43, {STAGE*NSTAGE}")
        a("s_cselect_b32 s43, 0, s43")

    stamp(1)
    if pre:
        a(f"v_lshrrev_b32 {v(LSA)}, 1, v1")
        a("s_lshl_b32 s3, s30, 5")
        a(f"v_add_u32 {v(LSA)}, s3, {v(LSA)}")
        a(f"s_mul_i32 s3, s28, {BM}")
        a(f"v_add_u32 {v(t0)}, s3, {v(LSA)}")
        a(f"v_lshlrev_b32 {v(t0)}, 7, {v(t0)}")
        a(f"v_and_b32 {v(t1)}, 1, v1")
        a(f"v_lshl_add_u32 {v(t0)}, {v(t1)}, 6, {v(t0)}")
        for i in range(4):
            a(f"buffer_load_dwordx4 {v(LSD+4*i,4)}, {v(t0)}, s[84:87], 0 offen offset:{16*i}")
    if st_bias:
        a(f"v_lshlrev_b32 {v(t0)}, 4, v1")
        a(f"s_mul_i32 s3, s29, {BN*2}")
        a(f"s_mov_b32 m0, {EPI}")
        a("s_nop 0")
        a(f"buffer_load_dwordx4 {v(t0)}, s[20:23], s3 offen lds")
        a(f"s_mul_i32 s3, s29, {BN*4}")
        a(f"s_mul_i32 s46, s30, {4*N*4}")
        a("s_add_u32 s3, s3, s46")
        for g_ in range(4):
            a(f"buffer_load_dwordx4 {v(LWD+4*g_,4)}, {v(t0)}, s[88:91], s3 offen")
            a(f"s_add_u32 s3, s3, {N*4}")
    for _ in range(NSTAGE - 1):
        dma()
    stamp(2)
    if ln and not pre:
        wfrag_addr_common()
        for i in range(NPL):
            a(f"s_mul_i32 s46, s30, {NPL}")
            a(f"s_add_u32 s46, s46, {i}")
            a(f"s_min_u32 s46, s46, {BN//16-1}")
            wfrag_addr(LCW + i)
        for i in range(4):
            a(f"v_mov_b32 {v(LONE+i)}, 0x3f803f80")
        for i in range(16):
            a(f"v_mov_b32 {v(LMS+i)}, 0")
        a(f"v_and_b32 {v(t0)}, 15, v1")
        a("s_lshl_b32 s3, s30, 5")
        a(f"v_add_u32 {v(t0)}, s3, {v(t0)}")
        a(f"v_lshlrev_b32 {v(t0)}, 7, {v(t0)}")
        a(f"v_lshrrev_b32 {v(t1)}, 4, v1")
        a(f"v_bfe_u32 {v(t2)}, v1, 1, 3")
        a(f"v_xor_b32 {v(t3)}, {v(t1)}, {v(t2)}")
        a(f"v_lshl_add_u32 {v(LSA)}, {v(t3)}, 4, {v(t0)}")
        a(f"v_xor_b32 {v(t3)}, 4, {v(t3)}")
        a(f"v_lshl_add_u32 {v(LSA+1)}, {v(t3)}, 4, {v(t0)}")
        for i in range(4 * NPL):
            a(f"v_mov_b32 {v(LCS+i)}, 0")

    if xstats:
        lcol = a.newlabel("L_xcol"); lset = a.newlabel("L_xset")
        for i in range(4):
            a(f"v_mov_b32 {v(LONE+i)}, 0x3f803f80")
            a(f"v_mov_b32 {v(LMS+i)}, 0")
        a("s_bitcmp1_b32 s30, 0")
        a(f"s_cbranch_scc1 {lcol}")
        a(f"v_and_b32 {v(t0)}, 15, v1")
        a("s_and_b32 s3, s29, 7")
        a("s_lshl_b32 s3, s3, 4")
        a(f"v_add_u32 {v(t0)}, s3, {v(t0)}")
        a(f"v_lshlrev_b32 {v(t0)}, 7, {v(t0)}")
        a(f"v_lshrrev_b32 {v(t1)}, 4, v1")
        a(f"v_bfe_u32 {v(t2)}, v1, 1, 3")
        a(f"v_xor_b32 {v(t3)}, {v(t1)}, {v(t2)}")
        a(f"v_lshl_add_u32 {v(LSA)}, {v(t3)}, 4, {v(t0)}")
        a(f"v_xor_b32 {v(t3)}, 4, {v(t3)}")
        a(f"v_lshl_add_u32 {v(LSA+1)}, {v(t3)}, 4, {v(t0)}")
        a(f"s_branch {lset}")
        a.label(lcol)
        wfrag_addr_common()
        a(f"s_sub_u32 s46, s28, {BN//16}")
        a(f"s_cmp_lt_u32 s28, {BN//16}")
        a("s_cselect_b32 s46, s28, s46")
        a("s_mov_b32 s50, s46")
        wfrag_addr(LSA)
        a("s_lshr_b32 s3, s30, 1")
        a(f"s_mul_i32 s3, s3, {32*RB}")
        a(f"v_add_u32 {v(LSA)}, s3, {v(LSA)}")
        a(f"v_add_u32 {v(LSA+1)}, {4*RB}, {v(LSA)}")
        a.label(lset)

    def xs_reads():
        lc = a.newlabel("L_xrc"); ld_ = a.newlabel("L_xrd")
        for i in range(2):
            a(f"v_add_u32 {v(LSC+i)}, s42, {v(LSA+i)}")
        a(f"s_add_u32 s42, s42, {STAGE}")
        a(f"s_cmp_ge_u32 s42, {STAGE*NSTAGE}")
        a("s_cselect_b32 s42, 0, s42")
        a("s_bitcmp1_b32 s30, 0")
        a(f"s_cbranch_scc1 {lc}")
        for kk in range(2):
            a(f"ds_read_b128 {v(LSD+4*kk,4)}, {v(LSC+kk)}")
        a(f"s_branch {ld_}")
        a.label(lc)
        for rd in range(2):
            a(f"ds_read_b64_tr_b16 {v(LSD+2*rd,2)}, {v(LSC+rd)}")
        a.label(ld_)

    def xs_math():
        l2 = a.newlabel("L_xm2"); ld_ = a.newlabel("L_xmd")
        a("s_waitcnt lgkmcnt(0)")
        a("s_cmp_eq_u32 s30, 2")
        a(f"s_cbranch_scc1 {l2}")
        a(f"v_mfma_f32_16x16x32_bf16 {v(LMS,4)}, {v(LSD,4)}, {v(LONE,4)}, {v(LMS,4)}")
        a("s_cmp_lg_u32 s30, 0")
        a(f"s_cbranch_scc1 {ld_}")
        a(f"v_mfma_f32_16x16x32_bf16 {v(LMS,4)}, {v(LSD+4,4)}, {v(LONE,4)}, {v(LMS,4)}")
        a(f"s_branch {ld_}")
        a.label(l2)
        for kk in range(2):
            a(f"v_mfma_f32_16x16x32_bf16 {v(LMS,4)}, {v(LSD+4*kk,4)}, {v(LSD+4*kk,4)}, {v(LMS,4)}")
        a.label(ld_)

    def stats_reads():
        for i in range(2):
            a(f"v_add_u32 {v(LSC+i)}, s42, {v(LSA+i)}")
        for i in range(NPL):
            a(f"v_add_u32 {v(LCC+i)}, s42, {v(LCW+i)}")
        a(f"s_add_u32 s42, s42, {STAGE}")
        a(f"s_cmp_ge_u32 s42, {STAGE*NSTAGE}")
        a("s_cselect_b32 s42, 0, s42")
        for q in range(2):
            for kk in range(2):
                a(f"ds_read_b128 {v(LSD+8*q+4*kk,4)}, {v(LSC+kk)} offset:{2048*q}")
        for i in range(NPL):
            for kk in range(2):
                for rd in range(2):
                    a(f"ds_read_b64_tr_b16 {v(LWD+8*i+4*kk+2*rd,2)}, {v(LCC+i)} offset:{kk*32*RB+rd*4*RB}")

    def stats_math():
        a("s_waitcnt lgkmcnt(0)")
        for i in range(NPL):
            for kk in range(2):
                a(f"v_mfma_f32_16x16x32_bf16 {v(LCS+4*i,4)}, {v(LWD+8*i+4*kk,4)}, {v(LONE,4)}, {v(LCS+4*i,4)}")
        for kk in range(2):
            for q in range(2):
                d = v(LSD + 8 * q + 4 * kk, 4)
                a(f"v_mfma_f32_16x16x32_bf16 {v(LMS+8*q,4)}, {d}, {v(LONE,4)}, {v(LMS+8*q,4)}")
                a(f"v_mfma_f32_16x16x32_bf16 {v(LMS+8*q+4,4)}, {d}, {d}, {v(LMS+8*q+4,4)}")

    nloop = NS - NSTAGE + 1
    if splitk: a(f"s_sub_u32 s48, s93, {NSTAGE-1}")
    else: a(f"s_mov_b32 s48, {nloop}")
    lloop = a.newlabel("L_lloop")
    a.label(lloop)
    a(f"s_waitcnt vmcnt({(NSTAGE-2)*P})")
    a("s_barrier")
    if ln and not pre: stats_reads()
    if xstats: xs_reads()
    dma()
    if ln and not pre: stats_math()
    if xstats: xs_math()
    a("s_sub_u32 s48, s48, 1")
    a("s_cmp_lg_u32 s48, 0")
    a(f"s_cbranch_scc1 {lloop}")
    if pre:
        for i in range(1, 8):
            a(f"v_add_f32 {v(LSD)}, {v(LSD)}, {v(LSD+2*i)}")
            a(f"v_add_f32 {v(LSD+1)}, {v(LSD+1)}, {v(LSD+2*i+1)}")
        a("s_nop 1")
        for k_ in range(2):
            a(f"v_add_f32_dpp {v(LST+k_)}, {v(LSD+k_)}, {v(LSD+k_)} quad_perm:[1,0,3,2] row_mask:0xf bank_mask:0xf")
        sm, sq, r1, r2 = LST, LST + 1, LSD, LSD + 1
        a(f"v_mul_f32 {v(sm)}, {hex_f32(1.0/K)}, {v(sm)}")
        a(f"v_mul_f32 {v(sq)}, {hex_f32(1.0/K)}, {v(sq)}")
        a(f"v_fma_f32 {v(sq)}, -{v(sm)}, {v(sm)}, {v(sq)}")
        a(f"v_max_f32 {v(sq)}, 0, {v(sq)}")
        a(f"v_add_f32 {v(r1)}, {hex_f32(1e-5)}, {v(sq)}")
        a(f"v_rsq_f32 {v(r1)}, {v(r1)}")
        a("s_nop 0")
        if ln == 'double':
            a(f"v_mul_f32 {v(r2)}, {v(r1)}, {v(r1)}")
            a(f"v_mul_f32 {v(r2)}, {v(r2)}, {v(sq)}")
            a(f"v_add_f32 {v(r2)}, {hex_f32(1e-5)}, {v(r2)}")
            a(f"v_rsq_f32 {v(r2)}, {v(r2)}")
            a("s_nop 0")
            a(f"v_mul_f32 {v(r1)}, {v(r1)}, {v(r2)}")
        a(f"v_mul_f32 {v(r2)}, {v(sm)}, {v(r1)}")
        a(f"v_sub_f32 {v(r2)}, 0, {v(r2)}")
        a(f"v_lshlrev_b32 {v(LSC)}, 3, {v(LSA)}")
        a(f"v_add_u32 {v(LSC)}, {RTAB}, {v(LSC)}")
        a(f"ds_write_b64 {v(LSC)}, {v(LSD,2)}")
        for g_ in range(1, 4):
            for j in range(2):
                a(f"v_pk_add_f32 {v(LWD+2*j,2)}, {v(LWD+2*j,2)}, {v(LWD+4*g_+2*j,2)}")
        a(f"v_lshlrev_b32 {v(t0)}, 4, v1")
        a(f"v_add_u32 {v(t0)}, {EPI+3072}, {v(t0)}")
        a("s_lshl_b32 s3, s30, 10")
        a(f"v_add_u32 {v(t1)}, s3, {v(t0)}")
        a(f"ds_write_b128 {v(t1)}, {v(LWD,4)}")
        a("s_waitcnt lgkmcnt(0)")
    if st_res:
        npc = BM * BN * 2 // 4096
        rpp = 1024 // (BN * 2)
        lpr = BN * 2 // 16
        a(f"v_lshrrev_b32 {v(t0)}, {int(math.log2(lpr))}, v1")
        a(f"s_mul_i32 s3, s30, {npc*rpp}")
        a(f"s_mul_i32 s46, s28, {BM}")
        a("s_add_u32 s3, s3, s46")
        a(f"v_add_u32 {v(t0)}, s3, {v(t0)}")
        a(f"v_mul_u32_u24 {v(t0)}, {N*2}, {v(t0)}")
        a(f"v_and_b32 {v(t1)}, {lpr-1}, v1")
        a(f"v_lshl_add_u32 {v(t0)}, {v(t1)}, 4, {v(t0)}")
        a(f"s_mul_i32 s3, s29, {BN*2}")
        a(f"v_add_u32 {v(t0)}, s3, {v(t0)}")
        a(f"s_mul_i32 s33, s30, {npc*1024}")
        for i in range(npc):
            a(f"s_add_u32 m0, s33, {EPI + i*1024}")
            a(f"s_mov_b32 s3, {i*rpp*N*2}")
            a(f"buffer_load_dwordx4 {v(t0)}, s[16:19], s3 offen lds")
    for j in range(NS - NSTAGE + 1, NS):
        a(f"s_waitcnt vmcnt({(NS-1-j)*P + NEX})")
        a("s_barrier")
        if pre and j == NS - NSTAGE + 1:
            assert NSTAGE >= 3
            lcs = a.newlabel("L_lcs")
            a("s_cmp_lg_u32 s30, 0")
            a(f"s_cbranch_scc1 {lcs}")
            for g_ in range(4):
                a(f"ds_read_b128 {v(LWD+4*g_,4)}, {v(t0)} offset:{1024*g_}")
            a("s_waitcnt lgkmcnt(0)")
            for g_ in range(1, 4):
                for j_ in range(2):
                    a(f"v_pk_add_f32 {v(LWD+2*j_,2)}, {v(LWD+2*j_,2)}, {v(LWD+4*g_+2*j_,2)}")
            a(f"v_subrev_u32 {v(t0)}, {EPI+3072-CTAB}, {v(t0)}")
            a(f"ds_write_b128 {v(t0)}, {v(LWD,4)}")
            a("s_waitcnt lgkmcnt(0)")
            a.label(lcs)
        if ln and not pre:
            stats_reads()
            stats_math()
        if xstats:
            xs_reads()
            xs_math()
    stamp(3)
    if xstats:
        lc = a.newlabel("L_xfc"); ld_ = a.newlabel("L_xfd")
        a("s_nop 7")
        a("s_bitcmp1_b32 s30, 0")
        a(f"s_cbranch_scc1 {lc}")
        srd(a, 92, 24, WS_RS, S * 8)
        a(f"v_and_b32 {v(t0)}, 3, v1")
        for r in range(1, 4):
            a(f"v_cmp_eq_u32 s[{48+2*r}:{49+2*r}], {r}, {v(t0)}")
        a(f"v_cndmask_b32 {v(LST)}, {v(LMS)}, {v(LMS+1)}, s[50:51]")
        a(f"v_cndmask_b32 {v(LST)}, {v(LST)}, {v(LMS+2)}, s[52:53]")
        a(f"v_cndmask_b32 {v(LST)}, {v(LST)}, {v(LMS+3)}, s[54:55]")
        a(f"v_lshrrev_b32 {v(t0)}, 7, {v(LSA)}")
        a(f"s_mul_i32 s3, s28, {BM}")
        a(f"v_add_u32 {v(t0)}, s3, {v(t0)}")
        a(f"v_lshlrev_b32 {v(t0)}, 3, {v(t0)}")
        a("s_lshl_b32 s3, s30, 1")
        a("s_mov_b32 exec_lo, 0x00f0000f")
        a("s_mov_b32 exec_hi, 0xf0000f00")
        a(f"buffer_store_dword {v(LST)}, {v(t0)}, s[92:95], s3 offen")
        a(f"s_branch {ld_}")
        a.label(lc)
        srd(a, 92, 24, WS_CQ, 2 * N * 4)
        a(f"v_lshrrev_b32 {v(t0)}, 4, v1")
        a(f"v_lshlrev_b32 {v(t0)}, 4, {v(t0)}")
        a("s_lshr_b32 s3, s30, 1")
        a(f"s_mul_i32 s3, s3, {N*4}")
        a(f"s_mul_i32 s46, s29, {BN*4}")
        a("s_add_u32 s3, s3, s46")
        a("s_lshl_b32 s46, s50, 6")
        a("s_add_u32 s3, s3, s46")
        a("s_mov_b32 exec_lo, 0x00010001")
        a("s_mov_b32 exec_hi, 0x00010001")
        a(f"buffer_store_dwordx4 {v(LMS,4)}, {v(t0)}, s[92:95], s3 offen")
        a.label(ld_)
        a("s_mov_b64 exec, -1")
    if ln and not pre:
        a("s_nop 7")
        a(f"v_and_b32 {v(t0)}, 3, v1")
        for r in range(1, 4):
            a(f"v_cmp_eq_u32 s[{48+2*r}:{49+2*r}], {r}, {v(t0)}")
        X0 = LSD
        for i in range(2):
            sm, sq = LST + 2 * i, LST + 2 * i + 1
            r1, r2 = X0 + 2 * i, X0 + 2 * i + 1
            for dst, src in ((sm, LMS + 8 * i), (sq, LMS + 8 * i + 4)):
                a(f"v_cndmask_b32 {v(dst)}, {v(src)}, {v(src+1)}, s[50:51]")
                a(f"v_cndmask_b32 {v(dst)}, {v(dst)}, {v(src+2)}, s[52:53]")
                a(f"v_cndmask_b32 {v(dst)}, {v(dst)}, {v(src+3)}, s[54:55]")
            a(f"v_mul_f32 {v(sm)}, {hex_f32(1.0/K)}, {v(sm)}")
            a(f"v_mul_f32 {v(sq)}, {hex_f32(1.0/K)}, {v(sq)}")
            a(f"v_fma_f32 {v(sq)}, -{v(sm)}, {v(sm)}, {v(sq)}")
            a(f"v_max_f32 {v(sq)}, 0, {v(sq)}")
            a(f"v_add_f32 {v(r1)}, {hex_f32(1e-5)}, {v(sq)}")
            a(f"v_rsq_f32 {v(r1)}, {v(r1)}")
            a("s_nop 0")
            assert ln == 'single'
            a(f"v_mul_f32 {v(r2)}, {v(sm)}, {v(r1)}")
            a(f"v_sub_f32 {v(r2)}, 0, {v(r2)}")
        a(f"v_lshrrev_b32 {v(LSC)}, 7, {v(LSA)}")
        a(f"v_lshlrev_b32 {v(LSC)}, 3, {v(LSC)}")
        a(f"v_add_u32 {v(LSC)}, {RTAB}, {v(LSC)}")
        a(f"v_lshrrev_b32 {v(t0)}, 4, v1")
        a(f"v_lshlrev_b32 {v(t0)}, 4, {v(t0)}")
        for i in range(NPL):
            a(f"s_mul_i32 s46, s30, {NPL}")
            a(f"s_add_u32 s46, s46, {i}")
            a(f"s_min_u32 s46, s46, {BN//16-1}")
            a("s_lshl_b32 s46, s46, 6")
            a(f"s_add_u32 s46, s46, {CTAB}")
            a(f"v_add_u32 {v(LCC+i)}, s46, {v(t0)}")
    if ln and not pre:
        a("s_mov_b32 exec_lo, 0x00f0000f")
        a("s_mov_b32 exec_hi, 0xf0000f00")
        for i in range(2):
            a(f"ds_write_b64 {v(LSC)}, {v(LSD+2*i,2)} offset:{128*i}")
        a("s_mov_b64 exec, -1")
        for i in range(NPL):
            a(f"ds_write_b128 {v(LCC+i)}, {v(LCS+4*i,4)}")
        a("s_waitcnt lgkmcnt(0)")
        a("s_barrier")
    if NEX: a("s_waitcnt vmcnt(0)")
    if splitk:
        lhi = a.newlabel("L_lhi"); lepi = a.newlabel("L_lepi")
        a("s_cmp_lg_u32 s92, 0")
        a(f"s_cbranch_scc1 {lhi}")
        a("s_barrier")
        a(f"s_branch {end}")
        a.label(lhi)
        a("s_barrier")
        a("s_cmp_eq_u32 s94, 2")
        a(f"s_cbranch_scc1 {lepi}")
        a(f"v_mov_b32 {v(t1)}, {DONE}")
        a(f"ds_read_b128 {v(44,4)}, {v(t1)}")
        a("s_waitcnt lgkmcnt(0)")
        a("v_and_b32 v44, v44, v45")
        a("v_and_b32 v46, v46, v47")
        a("v_and_b32 v44, v44, v46")
        a("s_nop 0")
        a("v_readfirstlane_b32 s3, v44")
        a("s_nop 3")
        a("s_cmp_eq_u32 s3, 1")
        a(f"s_cbranch_scc1 {lepi}")
        a("s_mov_b32 s94, 2")
        a(f"s_mov_b32 s93, {NSLO}")
        a("s_mov_b32 s40, 0"); a("s_mov_b32 s41, 0"); a("s_mov_b32 s43, 0")
        a("s_barrier")
        a(f"s_branch {lab_lpass}")
        a.label(lepi)
    stamp(4)
    a("s_barrier")

    a.label(lab_store)
    CPRW = BN // 8
    NIT = BM * CPRW // 512
    assert NIT * 512 == BM * CPRW
    magic = ((1 << 32) + CPRW - 1) // CPRW
    a(f"s_mov_b32 s46, {magic}")
    a(f"s_mul_i32 s3, s49, {NIT*64}")
    a(f"v_add_u32 {v(t0)}, s3, v1")
    a(f"s_mul_i32 s3, s28, {BM}")
    a(f"s_mul_i32 s47, s29, {BN*2}")
    R0 = (vT[7] + 4) // 4 * 4
    RR = R0 + 4 * NIT
    OFF = RR + 4 * NIT
    SOF = OFF + NIT
    GT = (SOF + NIT + 3) // 4 * 4
    assert GT + 10 <= 256
    for it in range(NIT):
        a(f"v_add_u32 {v(t1)}, {it*64}, {v(t0)}")
        a(f"v_mul_hi_u32 {v(t2)}, {v(t1)}, s46")
        a(f"v_mul_u32_u24 {v(t3)}, {CPRW}, {v(t2)}")
        a(f"v_sub_u32 {v(t3)}, {v(t1)}, {v(t3)}")
        a(f"v_mul_u32_u24 {v(t1)}, {CROW}, {v(t2)}")
        a(f"v_lshl_add_u32 {v(t1)}, {v(t3)}, 4, {v(t1)}")
        if CBASE: a(f"v_add_u32 {v(t1)}, {CBASE}, {v(t1)}")
        a(f"ds_read_b128 {v(R0+4*it,4)}, {v(t1)}")
        a(f"v_add_u32 {v(t2)}, s3, {v(t2)}")
        if stats_out:
            a(f"v_lshlrev_b32 {v(SOF+it)}, 7, {v(t2)}")
            a(f"v_lshl_add_u32 {v(SOF+it)}, s29, 3, {v(SOF+it)}")
        a(f"v_mul_u32_u24 {v(t2)}, {ldo}, {v(t2)}")
        a(f"v_lshlrev_b32 {v(t3)}, 4, {v(t3)}")
        a(f"v_add_u32 {v(t3)}, s47, {v(t3)}")
        a(f"v_add_u32 {v(OFF+it)}, {v(t3)}, {v(t2)}")
        if st_res:
            a(f"v_lshlrev_b32 {v(t1)}, 4, {v(t0)}")
            a(f"v_add_u32 {v(t1)}, {EPI + it*1024}, {v(t1)}")
            a(f"ds_read_b128 {v(RR+4*it,4)}, {v(t1)}")
        elif res_arg:
            a(f"buffer_load_dwordx4 {v(RR+4*it,4)}, {v(OFF+it)}, s[16:19], 0 offen")
    a("s_waitcnt vmcnt(0) lgkmcnt(0)" if (res_arg and not st_res) else "s_waitcnt lgkmcnt(0)")
    stamp(5)
    for it in range(NIT):
        c0 = R0 + 4 * it
        if res_arg:
            for j in range(4):
                d = c0 + j
                r = RR + 4 * it + j
                a(f"v_lshlrev_b32 {v(GT)}, 16, {v(d)}")
                a(f"v_lshlrev_b32 {v(GT+1)}, 16, {v(r)}")
                a(f"v_and_b32 {v(GT+2)}, 0xffff0000, {v(d)}")
                a(f"v_and_b32 {v(GT+3)}, 0xffff0000, {v(r)}")
                a(f"v_add_f32 {v(GT)}, {v(GT)}, {v(GT+1)}")
                a(f"v_add_f32 {v(GT+2)}, {v(GT+2)}, {v(GT+3)}")
                a(f"v_cvt_pk_bf16_f32 {v(d)}, {v(GT)}, {v(GT+2)}")
        a(f"buffer_store_dwordx4 {v(c0,4)}, {v(OFF+it)}, s[12:15], 0 offen {STMOD if (ln or xstats or STALL) else ''}")
        if stats_out:
            assert CPRW == 8
            a(f"v_mov_b32 {v(GT+8)}, 0x3f803f80")
            a(f"v_mov_b32 {v(GT)}, 0")
            a(f"v_mov_b32 {v(GT+1)}, 0")
            for j in range(4):
                a(f"v_dot2_f32_bf16 {v(GT)}, {v(c0+j)}, {v(GT+8)}, {v(GT)}")
                a(f"v_dot2_f32_bf16 {v(GT+1)}, {v(c0+j)}, {v(c0+j)}, {v(GT+1)}")
            a("s_nop 3")
            for q_, mode in enumerate(("quad_perm:[1,0,3,2]", "quad_perm:[2,3,0,1]", "row_half_mirror")):
                src = GT + 2 * (q_ & 1); dst = GT + 2 * ((q_ + 1) & 1)
                for k_ in range(2):
                    a(f"v_add_f32_dpp {v(dst+k_)}, {v(src+k_)}, {v(src+k_)} {mode} row_mask:0xf bank_mask:0xf")
                a("s_nop 1")
            a("s_mov_b32 exec_lo, 0x01010101")
            a("s_mov_b32 exec_hi, 0x01010101")
            a(f"buffer_store_dwordx2 {v(GT+2,2)}, {v(SOF+it)}, s[84:87], 0 offen")
            a("s_mov_b64 exec, -1")
    stamp(6)
    if 'stamp' in EXP: a("s_waitcnt vmcnt(0)")
    stamp(7)
    stamp_out()
    a.label(end)
    a("s_endpgm")
    return dict(name=name, grid=ntiles, block=512, lds=lds, desc=kernel_desc(name, max(nvgpr, GT + 10, 164)))


def gen_attn(a, name, pf=None, colsum=False, xst=False):
    import struct
    NQB = S // 32
    ntask = H * NQB
    nwg = ntask // 4
    QKV_ROW = 3 * D * 2
    KLDS = 384 * 64
    lds = 2 * KLDS
    kernel_header(a, name)
    end = a.newlabel("L_end")
    npf = 0
    a(f"s_cmp_ge_u32 s2, {nwg + npf}")
    a(f"s_cbranch_scc1 {end}")
    a(f"s_load_dwordx2 s[24:25], s[0:1], {ARG['ws']}")
    a("v_and_b32 v1, 63, v0")
    a("v_lshrrev_b32 v2, 6, v0")
    a("s_nop 0")
    a("v_readfirstlane_b32 s30, v2")
    a("s_nop 3")
    a("s_lshl_b32 s3, s2, 2")
    a("s_add_u32 s92, s3, s30")
    a("s_and_b32 s28, s2, 31")
    a("s_lshr_b32 s29, s2, 5")
    a("s_lshl_b32 s39, s29, 7")
    a("s_sub_u32 s39, s39, 256")
    a("s_lshl_b32 s3, s30, 5")
    a("s_add_u32 s32, s39, s3")
    a("s_add_u32 s31, s32, 256")
    a("s_lshl_b32 s33, s28, 6")
    a(f"s_add_u32 s35, s33, {2*D*2}")
    a(f"s_add_u32 s36, s33, {D*2}")
    a("v_and_b32 v2, 31, v1")
    a("v_lshrrev_b32 v3, 5, v1")
    a("v_add_u32 v4, s31, v2")
    a(f"v_mul_u32_u24 v4, {QKV_ROW}, v4")
    a("v_lshl_add_u32 v4, v3, 4, v4")
    a("v_add_u32 v4, s33, v4")
    a("s_waitcnt lgkmcnt(0)")
    srd(a, 4, 24, WS_QKV, S * 3 * D * 2)
    srd(a, 8, 24, WS_O, S * D * 2)
    a("v_lshrrev_b32 v5, 2, v1")
    a("v_and_b32 v6, 3, v1")
    a("v_bfe_u32 v7, v1, 4, 2")
    a("v_xor_b32 v7, v7, v6")
    a("s_mul_i32 s3, s30, 96")
    a("s_add_u32 s3, s3, s39")
    a("s_mul_i32 s34, s30, 6144")
    if xst:
        srd(a, 12, 24, WS_RS, S * 8)
        srd(a, 16, 24, WS_CQ, 2 * 3 * D * 4)
        KD, VD, RSD, CKD, CVD, CQD = 96, 120, 144, 156, 172, 192
        for p in range(6):
            a(f"v_add_u32 v16, {16*p}, v5")
            a("v_add_u32 v16, s3, v16")
            a("v_max_i32 v16, 0, v16")
            a("v_lshlrev_b32 v18, 3, v16")
            a(f"v_mul_u32_u24 v16, {QKV_ROW}, v16")
            a("v_lshl_add_u32 v17, v7, 4, v16")
            a("v_lshl_add_u32 v16, v6, 4, v16")
            a(f"buffer_load_dwordx4 {v(KD+4*p,4)}, v17, s[4:7], s36 offen")
            a(f"buffer_load_dwordx4 {v(VD+4*p,4)}, v16, s[4:7], s35 offen")
            a(f"buffer_load_dwordx2 {v(RSD+2*p,2)}, v18, s[12:15], 0 offen")
        a("buffer_load_dwordx4 v[8:11], v4, s[4:7], 0 offen")
        a("buffer_load_dwordx4 v[12:15], v4, s[4:7], 0 offen offset:32")
        a("v_add_u32 v16, s31, v2")
        a("v_lshlrev_b32 v16, 3, v16")
        a("buffer_load_dwordx2 v[188:189], v16, s[12:15], 0 offen")
        a("s_lshl_b32 s37, s33, 1")
        a("v_lshlrev_b32 v16, 5, v7")
        a("v_lshlrev_b32 v17, 5, v6")
        a("v_lshlrev_b32 v18, 5, v3")
        for hf in range(2):
            a(f"s_add_u32 s3, s37, {D*4 + hf*3*D*4}")
            a(f"buffer_load_dwordx4 {v(CKD+8*hf,4)}, v16, s[16:19], s3 offen")
            a(f"buffer_load_dwordx4 {v(CKD+8*hf+4,4)}, v16, s[16:19], s3 offen offset:16")
            a(f"s_add_u32 s3, s37, {2*D*4 + hf*3*D*4}")
            a(f"buffer_load_dwordx4 {v(CVD+8*hf,4)}, v17, s[16:19], s3 offen")
            a(f"buffer_load_dwordx4 {v(CVD+8*hf+4,4)}, v17, s[16:19], s3 offen offset:16")
            a(f"s_add_u32 s3, s37, {hf*3*D*4}")
            for c_ in range(2):
                a(f"buffer_load_dwordx4 {v(CQD+16*hf+8*c_,4)}, v18, s[16:19], s3 offen offset:{64*c_}")
                a(f"buffer_load_dwordx4 {v(CQD+16*hf+8*c_+4,4)}, v18, s[16:19], s3 offen offset:{64*c_+16}")
    else:
      for p in range(6):
        a(f"v_add_u32 v16, {16*p}, v5")
        a("v_add_u32 v16, s3, v16")
        a("v_max_i32 v16, 0, v16")
        a(f"v_mul_u32_u24 v16, {QKV_ROW}, v16")
        a("v_lshl_add_u32 v17, v7, 4, v16")
        a("v_add_u32 v17, s36, v17")
        a(f"s_add_u32 m0, s34, {p*1024}")
        a("v_lshl_add_u32 v16, v6, 4, v16")
        a(f"buffer_load_dwordx4 v17, s[4:7], 0 offen lds")
        a("v_add_u32 v16, s35, v16")
        a(f"s_add_u32 m0, s34, {KLDS + p*1024}")
        a("s_nop 0")
        a(f"buffer_load_dwordx4 v16, s[4:7], 0 offen lds")
      a("buffer_load_dwordx4 v[8:11], v4, s[4:7], 0 offen")
      a("buffer_load_dwordx4 v[12:15], v4, s[4:7], 0 offen offset:32")
    KF = 16
    if colsum:
        a(f"s_load_dwordx2 s[94:95], s[0:1], {ARG['w2']}")
        a(f"s_load_dwordx2 s[40:41], s[0:1], {ARG['wo']}")
        a(f"s_load_dwordx2 s[42:43], s[0:1], {ARG['w1']}")
        a("v_lshlrev_b32 v7, 4, v1")
        a(f"s_mul_i32 s93, s92, {F*D*2//2048}")
        a("s_lshl_b32 s3, s92, 10")
        a("v_add_u32 v16, s93, v7")
        a("v_add_u32 v17, s3, v7")
        a(f"s_mul_hi_u32 s44, s92, {((1 << 32) + 111) // 112}")
        a("s_mul_i32 s3, s44, 112")
        a("s_sub_u32 s45, s92, s3")
        a("s_lshl_b32 s3, s44, 6")
        a("v_lshrrev_b32 v18, 2, v1")
        a("v_add_u32 v18, s3, v18")
        a(f"v_mul_u32_u24 v18, {F*2}, v18")
        a("v_and_b32 v19, 3, v1")
        a("v_lshl_add_u32 v18, v19, 4, v18")
        a("s_lshl_b32 s3, s45, 6")
        a("v_add_u32 v18, s3, v18")
        a("s_waitcnt lgkmcnt(0)")
        npl = 4
        if 'nowpf' in EXP:
            srd(a, 96, 94, 0, F * D * 2)
            for j in range(4):
                a(f"buffer_load_dwordx4 v[240:243], v16, s[96:99], 0 offen offset:{1024*j}")
            srd(a, 96, 40, 0, D * D * 2)
            a("buffer_load_dwordx4 v[240:243], v17, s[96:99], 0 offen")
            npl = 9
        srd(a, 96, 42, 0, D * F * 2)
        for j in range(4):
            a(f"s_mov_b32 s3, {16*j*F*2}")
            a(f"buffer_load_dwordx4 {v(240+4*j,4)}, v18, s[96:99], s3 offen")
    else:
        npl = tail_prefetch(a, 92, 1, pf, 7, 240) if pf else 0
    if xst:
        a("v_lshlrev_b32 v20, 4, v1")
        a("v_add_u32 v20, s34, v20")
        a(f"s_waitcnt vmcnt({npl})")
        for base, n in ((CKD, 8), (CVD, 8), (CQD, 16)):
            for j in range(0, n, 2):
                a(f"v_pk_add_f32 {v(base+j,2)}, {v(base+j,2)}, {v(base+n+j,2)}")
        for r in [RSD + 2 * p for p in range(6)] + [188]:
            a(f"v_mul_f32 v{r}, {hex_f32(1.0/D)}, v{r}")
            a(f"v_mul_f32 v{r+1}, {hex_f32(1.0/D)}, v{r+1}")
            a(f"v_fma_f32 v{r+1}, -v{r}, v{r}, v{r+1}")
            a(f"v_max_f32 v{r+1}, 0, v{r+1}")
            a(f"v_add_f32 v{r+1}, {hex_f32(1e-5)}, v{r+1}")
            a(f"v_rsq_f32 v21, v{r+1}")
            a("s_nop 0")
            a(f"v_mul_f32 v{r+1}, v{r}, v21")
            a(f"v_sub_f32 v{r+1}, 0, v{r+1}")
            a(f"v_mov_b32 v{r}, v21")

        def fix(d, ab, c):
            for j in range(4):
                a(f"v_pk_mul_f32 {v(24+2*j,2)}, {v(c+2*j,2)}, {v(ab,2)} op_sel:[0,1] op_sel_hi:[1,1]")
                a(f"v_lshlrev_b32 v{32+2*j}, 16, v{d+j}")
                a(f"v_and_b32 v{33+2*j}, 0xffff0000, v{d+j}")
            for j in range(4):
                a(f"v_pk_fma_f32 {v(32+2*j,2)}, {v(32+2*j,2)}, {v(ab,2)}, {v(24+2*j,2)} op_sel:[0,0,0] op_sel_hi:[1,0,1]")
            for j in range(4):
                a(f"v_cvt_pk_bf16_f32 v{d+j}, v{32+2*j}, v{33+2*j}")
        for p in range(6):
            fix(KD + 4 * p, RSD + 2 * p, CKD)
            a(f"ds_write_b128 v20, {v(KD+4*p,4)} offset:{1024*p}")
            fix(VD + 4 * p, RSD + 2 * p, CVD)
            a(f"ds_write_b128 v20, {v(VD+4*p,4)} offset:{KLDS+1024*p}")
        fix(8, 188, CQD)
        fix(12, 188, CQD + 8)
        a("s_waitcnt lgkmcnt(0)")
    a("v_bfe_u32 v5, v1, 2, 2")
    a("v_xor_b32 v5, v5, v3")
    a("v_lshlrev_b32 v6, 6, v2")
    a("s_lshl_b32 s34, s30, 11")
    a("v_add_u32 v6, s34, v6")
    a("v_lshl_add_u32 v88, v5, 4, v6")
    a("v_xor_b32 v5, 2, v5")
    a("v_lshl_add_u32 v89, v5, 4, v6")
    a(f"s_add_u32 s34, s34, {KLDS}")
    a(f"s_waitcnt vmcnt({npl})")
    a("s_barrier")
    for t_ in range(9):
        a(f"ds_read_b128 {v(KF+8*t_,4)}, v88 offset:{2048*t_}")
        a(f"ds_read_b128 {v(KF+8*t_+4,4)}, v89 offset:{2048*t_}")
    SC = 96
    a("v_mov_b32 v7, 0xf149f2ca")
    for t in range(9):
        a(f"s_waitcnt lgkmcnt({min(15, 2*(8-t))})")
        if t < 8:
            lab_inv = a.newlabel("L_inv"); lab_done = a.newlabel("L_tdone")
            a(f"s_add_i32 s3, s32, {32*t}")
            a("s_cmp_lt_i32 s3, 0")
            a(f"s_cbranch_scc1 {lab_inv}")
        a(f"v_mfma_f32_32x32x16_bf16 {v(SC+16*t,16)}, {v(KF+8*t,4)}, v[8:11], 0")
        a(f"v_mfma_f32_32x32x16_bf16 {v(SC+16*t,16)}, {v(KF+8*t+4,4)}, v[12:15], {v(SC+16*t,16)}")
        if t < 8:
            a(f"s_branch {lab_done}")
            a.label(lab_inv)
            for r in range(16):
                a(f"v_mov_b32 v{SC+16*t+r}, v7")
            a.label(lab_done)
    a("v_lshlrev_b32 v5, 2, v3")
    a("v_sub_u32 v5, v2, v5")
    a("s_nop 7")
    a("s_nop 7")
    for r in range(16):
        c = (r & 3) + 8 * (r >> 2)
        a(f"v_cmp_gt_i32 vcc, {c}, v5")
        a(f"v_cmp_le_i32 s[36:37], {c}, v5")
        a("s_nop 0")
        a(f"v_cndmask_b32 v{SC+r}, v7, v{SC+r}, vcc")
        a(f"v_cndmask_b32 v{SC+128+r}, v7, v{SC+128+r}, s[36:37]")
    a(f"v_max3_f32 v4, v{SC}, v{SC+1}, v{SC+2}")
    a(f"v_max3_f32 v6, v{SC+3}, v{SC+4}, v{SC+5}")
    for i in range(6, 144, 4):
        a(f"v_max3_f32 v4, v4, v{SC+i}, v{SC+i+1}")
        if i + 3 < 144:
            a(f"v_max3_f32 v6, v6, v{SC+i+2}, v{SC+i+3}")
    a("v_max_f32 v4, v4, v6")
    a("v_xor_b32 v88, 32, v1")
    a("v_lshlrev_b32 v88, 2, v88")
    a("ds_bpermute_b32 v89, v88, v4")
    a("s_waitcnt lgkmcnt(0)")
    a("v_max_f32 v4, v4, v89")
    sc = (DH ** -0.5) * math.log2(math.e)
    sc_bits = struct.unpack("<I", struct.pack("<f", sc))[0]
    a(f"s_mov_b32 s38, {sc_bits}")
    a("v_mul_f32 v4, s38, v4")
    sums = [5, 6, 90, 91]
    for sreg in sums:
        a(f"v_mov_b32 v{sreg}, 0")
    for g in range(0, 144, 4):
        for j in range(4):
            a(f"v_fma_f32 v{SC+g+j}, v{SC+g+j}, s38, -v4")
        for j in range(4):
            a(f"v_exp_f32 v{SC+g+j}, v{SC+g+j}")
        if g >= 4:
            for j in range(4):
                a(f"v_add_f32 v{sums[j]}, v{sums[j]}, v{SC+g-4+j}")
            tt, jj = divmod(g - 4, 16)
            a(f"v_cvt_pk_bf16_f32 v{KF+8*tt+jj//2}, v{SC+g-4}, v{SC+g-3}")
            a(f"v_cvt_pk_bf16_f32 v{KF+8*tt+jj//2+1}, v{SC+g-2}, v{SC+g-1}")
    a("s_nop 0")
    g = 144
    for j in range(4):
        a(f"v_add_f32 v{sums[j]}, v{sums[j]}, v{SC+g-4+j}")
    tt, jj = divmod(g - 4, 16)
    a(f"v_cvt_pk_bf16_f32 v{KF+8*tt+jj//2}, v{SC+g-4}, v{SC+g-3}")
    a(f"v_cvt_pk_bf16_f32 v{KF+8*tt+jj//2+1}, v{SC+g-2}, v{SC+g-1}")
    a("v_add_f32 v5, v5, v6")
    a("v_add_f32 v90, v90, v91")
    a("v_add_f32 v5, v5, v90")
    a("ds_bpermute_b32 v89, v88, v5")
    a("v_bfe_u32 v6, v1, 2, 2")
    a("v_lshl_add_u32 v6, v3, 2, v6")
    a("v_lshlrev_b32 v6, 6, v6")
    a("v_bfe_u32 v7, v1, 4, 1")
    a("v_lshl_add_u32 v6, v7, 5, v6")
    a("v_and_b32 v7, 3, v1")
    a("v_lshl_add_u32 v6, v7, 3, v6")
    a("v_add_u32 v6, s34, v6")
    OA = SC
    VF = SC + 16
    a(f"s_waitcnt lgkmcnt(0)")
    a("v_add_f32 v5, v5, v89")
    a("v_rcp_f32 v5, v5")
    for t in range(9):
        for sidx in range(2):
            f = VF + 4 * (2 * t + sidx)
            base = (32 * t + 16 * sidx) * 64
            a(f"ds_read_b64_tr_b16 {v(f,2)}, v6 offset:{base}")
            a(f"ds_read_b64_tr_b16 {v(f+2,2)}, v6 offset:{base+8*64}")
    first = True
    for t in range(9):
        for sidx in range(2):
            f = VF + 4 * (2 * t + sidx)
            idx = 2 * t + sidx
            rem = 36 - 2 * (idx + 1)
            a(f"s_waitcnt lgkmcnt({min(rem,15)})")
            a(f"v_mfma_f32_32x32x16_bf16 {v(OA,16)}, {v(f,4)}, {v(KF+8*t+4*sidx,4)}, {'0' if first else v(OA,16)}")
            first = False
    if colsum:
        lab_nc = a.newlabel("L_nocs")
        a("s_cmp_ge_u32 s44, 16")
        a(f"s_cbranch_scc1 {lab_nc}")
        CA = 184; CT = 192
        a("s_waitcnt vmcnt(0)")
        for j in range(4):
            a(f"v_lshlrev_b32 v{CA+2*j}, 16, v{240+j}")
            a(f"v_and_b32 v{CA+2*j+1}, 0xffff0000, v{240+j}")
        for i in range(1, 4):
            for j in range(4):
                a(f"v_lshlrev_b32 v{CT+2*j}, 16, v{240+4*i+j}")
                a(f"v_and_b32 v{CT+2*j+1}, 0xffff0000, v{240+4*i+j}")
            for j in range(4):
                a(f"v_pk_add_f32 {v(CA+2*j,2)}, {v(CA+2*j,2)}, {v(CT+2*j,2)}")
        a("s_nop 1")
        for mode in ("row_ror:4", "row_ror:8"):
            for j in range(8):
                a(f"v_add_f32_dpp v{CT+j}, v{CA+j}, v{CA+j} {mode} row_mask:0xf bank_mask:0xf")
            a("s_nop 1")
            for j in range(8):
                a(f"v_mov_b32 v{CA+j}, v{CT+j}")
            a("s_nop 1")
        for x in (16, 32):
            a(f"v_xor_b32 v200, {x}, v1")
            a("v_lshlrev_b32 v200, 2, v200")
            for j in range(8):
                a(f"ds_bpermute_b32 v{CT+j}, v200, v{CA+j}")
            a("s_waitcnt lgkmcnt(0)")
            for j in range(8):
                a(f"v_add_f32 v{CA+j}, v{CA+j}, v{CT+j}")
        srd(a, 96, 24, WS_CS, 16 * F * 4)
        a(f"s_mul_i32 s3, s44, {F*4}")
        a("s_lshl_b32 s45, s45, 7")
        a("s_add_u32 s3, s3, s45")
        a("v_lshlrev_b32 v200, 5, v1")
        a("s_mov_b64 exec, 15")
        a(f"buffer_store_dwordx4 {v(CA,4)}, v200, s[96:99], s3 offen")
        a(f"buffer_store_dwordx4 {v(CA+4,4)}, v200, s[96:99], s3 offen offset:16")
        a("s_mov_b64 exec, -1")
        a.label(lab_nc)
    a("v_add_u32 v7, s31, v2")
    a(f"v_lshlrev_b32 v7, 11, v7")
    a("v_lshl_add_u32 v7, v3, 3, v7")
    a("v_add_u32 v7, s33, v7")
    a("s_nop 7")
    a("s_nop 7")
    for g in range(4):
        for r in range(4):
            a(f"v_mul_f32 v{OA+4*g+r}, v{OA+4*g+r}, v5")
        a(f"v_cvt_pk_bf16_f32 v{OA+4*g}, v{OA+4*g}, v{OA+4*g+1}")
        a(f"v_cvt_pk_bf16_f32 v{OA+4*g+1}, v{OA+4*g+2}, v{OA+4*g+3}")
        a(f"buffer_store_dwordx2 {v(OA+4*g,2)}, v7, s[8:11], 0 offen offset:{16*g}")
    a.label(end)
    a("s_endpgm")
    return dict(name=name, grid=nwg + npf, block=256, lds=lds, desc=kernel_desc(name, 256 if colsum else 244))


def main():
    a = Asm()
    ks = []
    FUSE = 'nofuse' not in EXP
    SPLIT = 'split' in EXP
    L2PF = int(os.environ.get('L2PF', '0'))
    XST = 'noxst' not in EXP
    W1HI = int(os.environ.get('W1HI', '10'))
    W2HI = int(os.environ.get('W2HI', '10'))
    SKLO = int(os.environ.get('SKLO', '23'))
    if FUSE:
        ks.append(gen_gemm(a, "qkv_kernel", 3 * D, D, 192, 0, "wqkv", "plain", "ws", WS_QKV, NSTAGE=4, RA=8, RBN=4,
                           ln=None if XST else 'single', xstats=XST, a_arg='x',
                           wpf=[("w1", D*F*2, W1HI), ("wo", D*D*2, W1HI-7)]))
    else:
        ks.append(gen_ln(a, "ln1_kernel", "x", 0, WS_Y1, False, pf=[("wqkv", D*3*D*2), ("wo", D*D*2)]))
        ks.append(gen_gemm(a, "qkv_kernel", 3 * D, D, 192, WS_Y1, "wqkv", "plain", "ws", WS_QKV, NSTAGE=4, RA=8, RBN=4))
    ks.append(gen_attn(a, "attn_kernel", pf=[("w1", D*F*2), ("w2", F*D*2), ("wo", D*D*2)] if FUSE else [("w1", D*F*2), ("w2", F*D*2)], colsum=FUSE, xst=XST))
    ks.append(gen_gemm(a, "oproj_kernel", D, D, 64, WS_O, "wo", "plain", "ws", WS_H, res_arg="x", NSTAGE=6, stats_out=FUSE))
    if FUSE:
        ks.append(gen_gemm(a, "ffn1_kernel", F, D, 224, WS_H, "w1", "gelu", "ws", WS_H1, bias_arg="b1", RA=8, RBN=4,
                           ln='double', pre=True, ldo=LDH1, zero_flags=SPLIT, wpf=[("w2", F*D*2, W2HI)]))
    else:
        ks.append(gen_ln(a, "ln2_kernel", "ws", WS_H, WS_Y2, True))
        ks.append(gen_gemm(a, "ffn1_kernel", F, D, 224, WS_Y2, "w1", "gelu", "ws", WS_H1, bias_arg="b1", RA=8, RBN=4))
    if SPLIT:
        ks.append(gen_gemm(a, "ffn2_kernel", D, F, 128, WS_H1, "w2", "plain", "out", 0, res_arg="ws", res_off=WS_H,
                           bias_arg="b2", NSTAGE=5, lda=LDH1, RA=4, RBN=4, splitk=(SKLO, 56 - SKLO)))
    else:
        ks.append(gen_gemm(a, "ffn2_kernel", D, F, 64, WS_H1, "w2", "plain", "out", 0, res_arg="ws", res_off=WS_H,
                           bias_arg="b2", NSTAGE=6, lda=LDH1, l2pf=L2PF, RA=int(os.environ.get('F2RA','4')), RBN=32//int(os.environ.get('F2RA','4'))))
    hdr = []
    for k in ks:
        hdr.append(f"; @launch kernel={k['name']} grid=({k['grid']},1,1) block=({k['block']},1,1) lds={k['lds']}")
    txt = "\n".join(hdr) + "\n"
    txt += '.amdgcn_target "amdgcn-amd-amdhsa--gfx950"\n.text\n'
    txt += "\n".join(a.lines) + "\n"
    txt += '.section .rodata,"a"\n'
    for k in ks:
        txt += ".p2align 6\n" + k["desc"]
    open(OUT, "w").write(txt)


if __name__ == "__main__":
    main()
```

```python
import math, struct, os


def gen_qa(G, a, name, wpf=None):
    v, s, srd, hex_f32 = G.v, G.s, G.srd, G.hex_f32
    ARG, EXP = G.ARG, G.EXP
    S, D, F, DH = G.S, G.D, G.F, G.DH
    MB = 1 << 20
    WS_RS = 3 * MB
    KFO = 65536
    WS_KV = 4 * MB
    K = D; N = 3 * D
    BM, BN, BK, NSTAGE = 256, 96, 64, 3
    MT, NTW, RB = 4, 6, 64
    ABYTES = BM * BK * 2; BBYTES = BK * BN * 2; STAGE = ABYTES + BBYTES
    PA, PB = 8, 3
    P = PA + PB
    NS = K // BK
    lda = K * 2
    XQ, PK, PV, OQ, OK_, OV = 49152, 65536, 81920, 98304, 114688, 131072
    RTAB = 147456; CTAB = 149504; STG = 149888; STAT = 149952; NONCE = 149960; STAT2 = 150016
    lds = 163840
    NPOLL = int(os.environ.get('NPOLL', '48'))
    vXb = [2, 3]; vWb = list(range(4, 10)); vXc = [10, 11]; vWc = list(range(12, 18))
    vT = list(range(18, 26))
    FX = [28, 44]; FW = [60, 84]; ACC = 108; CSA = 204; ONE = 212; PFD = 216; PFV = 220
    QF = 224
    t0, t1, t2, t3 = vT[0], vT[1], vT[2], vT[3]
    vA = list(range(2, 10)); vB = list(range(10, 13))

    def acc(nt, mt):
        return ACC + 4 * (nt * MT + mt)

    def stamp(i):
        if 'stamp' in EXP:
            a(f"s_memtime s[{60+2*i}:{61+2*i}]")
            if i >= 4: a("s_waitcnt lgkmcnt(0)")

    def stamp_out():
        if 'stamp' not in EXP: return
        a("s_waitcnt lgkmcnt(0)")
        srd(a, 80, 24, 200 * MB, 1 << 20)
        a("s_lshl_b32 s3, s2, 3")
        a("s_add_u32 s3, s3, s49")
        a("s_lshl_b32 s3, s3, 6")
        a("v_mov_b32 v2, s3")
        for i in range(8):
            a(f"v_mov_b32 v4, s{60+2*i}")
            a(f"v_mov_b32 v5, s{61+2*i}")
            a(f"buffer_store_dwordx2 v[4:5], v2, s[80:83], 0 offen offset:{8*i}")
            a("s_nop 1")

    def stats_load(Dr, T, srow):
        a(f"v_lshlrev_b32 {v(T)}, 5, v1")
        a(f"s_lshl_b32 s3, s{srow}, 11")
        for r in range(2):
            for j in range(2):
                a(f"buffer_load_dwordx4 {v(Dr+8*r+4*j,4)}, {v(T)}, s[4:7], s3 offen offset:{2048*r+16*j}")

    def stats_math(Dr, T):
        A0 = T; A1 = T + 4; O1 = T + 8; AD = T + 9
        a(f"v_mov_b32 {v(O1)}, 0x3f803f80")
        for j in range(4):
            a(f"v_mov_b32 {v(A0+j)}, 0")
        for r in range(2):
            for j in range(8):
                d = v(Dr + 8 * r + j)
                a(f"v_dot2_f32_bf16 {v(A0+2*r)}, {d}, {v(O1)}, {v(A0+2*r)}")
                a(f"v_dot2_f32_bf16 {v(A0+2*r+1)}, {d}, {d}, {v(A0+2*r+1)}")
        a("s_nop 3")
        cur, oth = A0, A1
        for mode in ("quad_perm:[1,0,3,2]", "quad_perm:[2,3,0,1]", "row_half_mirror", "row_mirror"):
            for j in range(4):
                a(f"v_add_f32_dpp {v(oth+j)}, {v(cur+j)}, {v(cur+j)} {mode} row_mask:0xf bank_mask:0xf")
            a("s_nop 1")
            cur, oth = oth, cur
        assert cur == A0
        for x in (16, 32):
            a(f"v_xor_b32 {v(AD)}, {x}, v1")
            a(f"v_lshlrev_b32 {v(AD)}, 2, {v(AD)}")
            for j in range(4):
                a(f"ds_bpermute_b32 {v(A1+j)}, {v(AD)}, {v(A0+j)}")
            a("s_waitcnt lgkmcnt(0)")
            for j in range(4):
                a(f"v_add_f32 {v(A0+j)}, {v(A0+j)}, {v(A1+j)}")
        for r in range(2):
            sm, sq = A0 + 2 * r, A0 + 2 * r + 1
            a(f"v_mul_f32 {v(sm)}, {hex_f32(1.0/K)}, {v(sm)}")
            a(f"v_mul_f32 {v(sq)}, {hex_f32(1.0/K)}, {v(sq)}")
            a(f"v_fma_f32 {v(sq)}, -{v(sm)}, {v(sm)}, {v(sq)}")
            a(f"v_max_f32 {v(sq)}, 0, {v(sq)}")
            a(f"v_add_f32 {v(sq)}, {hex_f32(1e-5)}, {v(sq)}")
            a(f"v_rsq_f32 {v(sq)}, {v(sq)}")
            a("s_nop 0")
            a(f"v_mul_f32 {v(A1)}, {v(sm)}, {v(sq)}")
            a(f"v_mov_b32 {v(sm)}, {v(sq)}")
            a(f"v_sub_f32 {v(sq)}, 0, {v(A1)}")

    def local_stats(Dr, T):
        lp = a.newlabel("L_ls")
        a("s_lshl_b32 s46, s49, 5")
        a("s_add_u32 s47, s46, s98")
        a("s_mov_b32 s52, 16")
        a.label(lp)
        stats_load(Dr, T, 47)
        a("s_waitcnt vmcnt(0)")
        stats_math(Dr, T)
        a("s_lshl_b32 s3, s46, 3")
        a(f"s_add_u32 s3, s3, {RTAB}")
        a(f"v_mov_b32 {v(T+9)}, s3")
        a(f"ds_write_b128 {v(T+9)}, {v(T,4)}")
        a("s_add_u32 s46, s46, 2")
        a("s_add_u32 s47, s47, 2")
        a("s_sub_u32 s52, s52, 1")
        a("s_cmp_lg_u32 s52, 0")
        a(f"s_cbranch_scc1 {lp}")
        a("s_waitcnt lgkmcnt(0)")
        a("s_barrier")

    G.kernel_header(a, name)
    end = a.newlabel("L_end")
    stamp(0)
    lab_loader = a.newlabel("L_loader")
    lab_att = a.newlabel("L_att")
    a("s_cmp_ge_u32 s2, 256")
    a(f"s_cbranch_scc1 {end}")
    a(f"s_load_dwordx2 s[24:25], s[0:1], {ARG['ws']}")
    a(f"s_load_dwordx2 s[58:59], s[0:1], {ARG['x']}")
    a(f"s_load_dwordx2 s[26:27], s[0:1], {ARG['wqkv']}")
    a("s_memrealtime s[34:35]")
    a("s_and_b32 s3, s2, 7")
    a("s_lshr_b32 s46, s2, 3")
    a("s_and_b32 s29, s3, 3")
    a("s_lshl_b32 s29, s29, 3")
    a("s_and_b32 s47, s46, 7")
    a("s_add_u32 s29, s29, s47")
    a("s_lshr_b32 s28, s3, 2")
    a("s_lshl_b32 s28, s28, 2")
    a("s_lshr_b32 s47, s46, 3")
    a("s_add_u32 s28, s28, s47")
    a("s_lshl_b32 s99, s28, 5")
    a("s_add_u32 s99, s99, s29")
    a("s_lshl_b32 s98, s28, 8")
    a("v_and_b32 v1, 63, v0")
    a(f"v_lshrrev_b32 {v(t0)}, 6, v0")
    a("s_nop 0")
    a(f"v_readfirstlane_b32 s49, {v(t0)}")
    a("s_nop 3")
    a("s_and_b32 s30, s49, 3")
    a("s_mov_b32 s45, 1")
    a("s_mov_b32 s50, 0")
    a("s_mov_b32 s51, 0")
    a(f"s_mov_b32 s100, {OQ}")

    def build_srds():
        a("s_waitcnt lgkmcnt(0)")
        srd(a, 4, 58, 0, S * D * 2)
        srd(a, 8, 26, 0, K * N * 2)
        srd(a, 12, 24, G.WS_O, S * D * 2)
        srd(a, 16, 24, WS_KV, 256 * 32768)
        a("s_add_u32 s20, s34, 0x1000000")
        a("s_addc_u32 s21, s35, 0")
        srd(a, 36, 24, WS_RS, 131072)

    a("s_cmp_ge_u32 s49, 4")
    a(f"s_cbranch_scc1 {lab_loader}")

    build_srds()
    if wpf:
        a("s_lshl_b32 s3, s2, 2")
        a("s_add_u32 s3, s3, s30")
        for q, (arg, nbytes, hi) in enumerate(wpf):
            a(f"s_load_dwordx2 s[{94+2*q}:{95+2*q}], s[0:1], {ARG[arg]}")
            a(f"s_mul_i32 s{92+q}, s3, {nbytes//1024}")
        a("s_waitcnt lgkmcnt(0)")
        for q, (arg, nbytes, hi) in enumerate(wpf):
            srd(a, 84 + 4 * q, 94 + 2 * q, 0, nbytes)
    lab_cpass = a.newlabel("L_cpass")
    a.label(lab_cpass)
    a(f"v_lshlrev_b32 {v(PFV)}, 4, v1")
    a(f"v_and_b32 {v(t0)}, 15, v1")
    a("s_lshl_b32 s3, s30, 6")
    a(f"v_add_u32 {v(t0)}, s3, {v(t0)}")
    a(f"v_lshlrev_b32 {v(t0)}, 7, {v(t0)}")
    a(f"v_lshrrev_b32 {v(t1)}, 4, v1")
    a(f"v_bfe_u32 {v(t2)}, v1, 1, 3")
    a(f"v_xor_b32 {v(t3)}, {v(t1)}, {v(t2)}")
    a(f"v_lshl_add_u32 {v(vXb[0])}, {v(t3)}, 4, {v(t0)}")
    a(f"v_xor_b32 {v(t3)}, 4, {v(t3)}")
    a(f"v_lshl_add_u32 {v(vXb[1])}, {v(t3)}, 4, {v(t0)}")
    a(f"v_bfe_u32 {v(t0)}, v1, 2, 2")
    a(f"v_lshl_add_u32 {v(t2)}, {v(t1)}, 3, {v(t0)}")
    a(f"v_and_b32 {v(t3)}, 1, {v(t1)}")
    a(f"v_mul_u32_u24 {v(t2)}, {RB}, {v(t2)}")
    a(f"v_and_b32 {v(t0)}, 3, v1")
    a(f"v_lshl_add_u32 {v(t2)}, {v(t0)}, 3, {v(t2)}")
    a(f"v_add_u32 {v(t2)}, {ABYTES}, {v(t2)}")
    for nt in range(NTW):
        blk, p = nt >> 1, nt & 1
        a(f"v_xor_b32 {v(t0)}, {p}, {v(t3)}")
        a(f"v_lshl_add_u32 {v(t0)}, {v(t0)}, 5, {v(t2)}")
        a(f"v_add_u32 {v(vWb[nt])}, {blk*64*RB}, {v(t0)}")
    for i in range(4 * MT * NTW + 8):
        a(f"v_mov_b32 v{ACC+i}, 0")
    for i in range(4):
        a(f"v_mov_b32 {v(ONE+i)}, 0x3f803f80")
    a("s_mov_b32 s42, 0")

    def set_cur():
        for kk in range(2):
            a(f"v_add_u32 {v(vXc[kk])}, s42, {v(vXb[kk])}")
        for nt in range(NTW):
            a(f"v_add_u32 {v(vWc[nt])}, s42, {v(vWb[nt])}")
        a(f"s_add_u32 s42, s42, {STAGE}")
        a(f"s_cmp_ge_u32 s42, {STAGE*NSTAGE}")
        a("s_cselect_b32 s42, 0, s42")

    def read_list(kk, f):
        L = []
        for nt in range(NTW):
            if nt < MT:
                L.append(f"ds_read_b128 {v(FX[f]+4*nt,4)}, {v(vXc[kk])} offset:{nt*2048}")
            for rd in range(2):
                L.append(f"ds_read_b64_tr_b16 {v(FW[f]+4*nt+2*rd,2)}, {v(vWc[nt])} offset:{kk*32*RB+rd*4*RB}")
        return L

    def mfma_list(f):
        L = []
        for nt in range(NTW):
            for mt in range(MT):
                L.append(f"v_mfma_f32_16x16x32_bf16 {v(acc(nt,mt),4)}, {v(FW[f]+4*nt,4)}, {v(FX[f]+4*mt,4)}, {v(acc(nt,mt),4)}")
        return L

    def cs_block(f, wv=None):
        if 'nocs' in EXP: return
        if wv is not None:
            a(f"v_mfma_f32_16x16x32_bf16 {v(CSA,4)}, {v(FW[f]+4*wv,4)}, {v(ONE,4)}, {v(CSA,4)}")
            if wv < 2:
                a(f"v_mfma_f32_16x16x32_bf16 {v(CSA+4,4)}, {v(FW[f]+4*(wv+4),4)}, {v(ONE,4)}, {v(CSA+4,4)}")
            return
        done = a.newlabel("L_cs")
        for w in range(4):
            nx = a.newlabel("L_csn")
            if w < 3:
                a(f"s_cmp_lg_u32 s30, {w}")
                a(f"s_cbranch_scc1 {nx}")
            a(f"v_mfma_f32_16x16x32_bf16 {v(CSA,4)}, {v(FW[f]+4*w,4)}, {v(ONE,4)}, {v(CSA,4)}")
            if w < 2:
                a(f"v_mfma_f32_16x16x32_bf16 {v(CSA+4,4)}, {v(FW[f]+4*(w+4),4)}, {v(ONE,4)}, {v(CSA+4,4)}")
            if w < 3:
                a(f"s_branch {done}")
                a.label(nx)
        a.label(done)

    def inter(kk, fr, fm, wv=None):
        R = read_list(kk, fr); Mm = mfma_list(fm)
        ri = 0
        for i in range(len(Mm)):
            a(Mm[i])
            if ri < len(R): a(R[ri]); ri += 1
        while ri < len(R): a(R[ri]); ri += 1
        cs_block(fm, wv)

    stamp(1)
    a("s_barrier")
    stamp(2)
    set_cur()
    for x in read_list(0, 0): a(x)
    a("s_waitcnt lgkmcnt(0)")
    inter(1, 1, 0)
    a("s_waitcnt lgkmcnt(0)")
    a(f"s_mov_b32 s48, {NS-1}")
    loops = [a.newlabel("L_cloop") for _ in range(4)]
    ldone = a.newlabel("L_cdone")
    for w in range(1, 4):
        a(f"s_cmp_eq_u32 s30, {w}")
        a(f"s_cbranch_scc1 {loops[w]}")
    rare = []
    for w in range(4):
        a.label(loops[w])
        a("s_barrier")
        set_cur()
        inter(0, 0, 1, w)
        a("s_waitcnt lgkmcnt(0)")
        inter(1, 1, 0, w)
        lpub = a.newlabel("L_pub"); lback = a.newlabel("L_pubb")
        a("s_cmp_eq_u32 s48, 12")
        a(f"s_cbranch_scc1 {lpub}")
        a.label(lback)
        rare.append(('pub', w, lpub, lback))
        for q, (arg, nbytes, hi) in enumerate(wpf or []):
            n = nbytes >> 20
            lo_ = a.newlabel("L_wpf"); lb = a.newlabel("L_wpfb")
            a(f"s_sub_u32 s3, s48, {hi-n+1}")
            a(f"s_cmp_lt_u32 s3, {n}")
            a(f"s_cbranch_scc1 {lo_}")
            a.label(lb)
            rare.append(('wpf', q, lo_, lb))
        a("s_waitcnt lgkmcnt(0)")
        a("s_sub_u32 s48, s48, 1")
        a("s_cmp_lg_u32 s48, 0")
        a(f"s_cbranch_scc1 {loops[w]}")
        a(f"s_branch {ldone}")
    for kind, x, lab, lb in rare:
        a.label(lab)
        if kind == 'wpf':
            a(f"buffer_load_dwordx4 {v(PFD,4)}, {v(PFV)}, s[{84+4*x}:{87+4*x}], s{92+x} offen")
            a(f"s_add_u32 s{92+x}, s{92+x}, 1024")
        else:
            a("s_cmp_lg_u32 s45, 1")
            a(f"s_cbranch_scc1 {lb}")
            a("s_memrealtime s[22:23]")
            a(f"v_and_b32 {v(t1)}, 1, v1")
            a(f"v_lshlrev_b32 {v(t0)}, 3, {v(t1)}")
            a(f"v_add_u32 {v(t0)}, {STG + 16*x}, {v(t0)}")
            a(f"ds_read_b64 {v(PFD,2)}, {v(t0)}")
            a("s_lshl_b32 s3, s29, 3")
            a("s_add_u32 s3, s3, s98")
            a(f"s_add_u32 s3, s3, {2*x}")
            a("s_lshl_b32 s3, s3, 4")
            a(f"v_lshlrev_b32 {v(t0)}, 4, {v(t1)}")
            a("s_waitcnt lgkmcnt(0)")
            a(f"v_mov_b32 {v(PFD+2)}, s22")
            a(f"v_mov_b32 {v(PFD+3)}, s23")
            a("s_mov_b64 exec, 3")
            if 'nostatflag' not in EXP: a(f"buffer_store_dwordx4 {v(PFD,4)}, {v(t0)}, s[36:39], s3 offen sc0 sc1")
            a("s_mov_b64 exec, -1")
        a(f"s_branch {lb}")
    a.label(ldone)
    stamp(3)
    cs_block(1)
    for x in mfma_list(1): a(x)
    a(f"v_lshrrev_b32 {v(t0)}, 4, v1")
    a(f"v_lshlrev_b32 {v(t0)}, 4, {v(t0)}")
    a("s_lshl_b32 s3, s30, 6")
    a(f"s_add_u32 s3, s3, {CTAB}")
    a(f"v_add_u32 {v(t1)}, s3, {v(t0)}")
    a("s_mov_b32 exec_lo, 0x00010001")
    a("s_mov_b32 exec_hi, 0x00010001")
    a(f"ds_write_b128 {v(t1)}, {v(CSA,4)}")
    lcs = a.newlabel("L_cs2")
    a("s_cmp_ge_u32 s30, 2")
    a(f"s_cbranch_scc1 {lcs}")
    a(f"ds_write_b128 {v(t1)}, {v(CSA+4,4)} offset:256")
    a.label(lcs)
    a("s_mov_b64 exec, -1")
    a(f"v_add_u32 {v(t0)}, {CTAB}, {v(t0)}")
    a(f"v_mov_b32 {v(t1)}, {STAT}")
    a("s_waitcnt lgkmcnt(0)")
    a("s_barrier")
    RT = FX[0]; RQ = RT + 8; CS = RQ + 8; GE = CS + 24
    assert GE + 8 <= ACC
    a(f"ds_read_b32 {v(t2)}, {v(t1)}")
    for nt in range(NTW):
        a(f"ds_read_b128 {v(CS+4*nt,4)}, {v(t0)} offset:{64*nt}")
    a("s_waitcnt lgkmcnt(0)")
    a(f"v_readfirstlane_b32 s3, {v(t2)}")
    a("s_nop 3")
    lok = a.newlabel("L_stok")
    a("s_cmp_eq_u32 s3, 1")
    a(f"s_cbranch_scc1 {lok}")
    local_stats(GE + 8, GE + 24)
    a.label(lok)
    a(f"v_and_b32 {v(t2)}, 15, v1")
    a("s_lshl_b32 s3, s30, 6")
    a(f"v_add_u32 {v(t2)}, s3, {v(t2)}")
    a(f"v_lshlrev_b32 {v(t0)}, 3, {v(t2)}")
    a(f"v_add_u32 {v(t0)}, {RTAB}, {v(t0)}")
    for mt in range(MT):
        a(f"ds_read_b64 {v(RT+2*mt,2)}, {v(t0)} offset:{128*mt}")
    a(f"v_lshlrev_b32 {v(t2)}, 6, {v(t2)}")
    a(f"v_add_u32 {v(t2)}, s100, {v(t2)}")
    a(f"v_lshrrev_b32 {v(t3)}, 4, v1")
    DV = vT[4]; DQ0 = vT[5]; DQ1 = vT[6]
    a(f"v_lshl_add_u32 {v(DV)}, {v(t3)}, 3, {v(t2)}")
    a(f"v_lshrrev_b32 {v(t0)}, 1, {v(t3)}")
    a(f"v_bfe_u32 {v(t1)}, v1, 2, 2")
    a(f"v_xor_b32 {v(t0)}, {v(t0)}, {v(t1)}")
    a(f"v_lshl_add_u32 {v(t0)}, {v(t0)}, 4, {v(t2)}")
    a(f"v_and_b32 {v(t1)}, 1, {v(t3)}")
    a(f"v_lshl_add_u32 {v(DQ0)}, {v(t1)}, 3, {v(t0)}")
    a(f"v_xor_b32 {v(DQ1)}, 32, {v(DQ0)}")
    sc = (DH ** -0.5) * math.log2(math.e)
    a(f"s_mov_b32 s52, {hex_f32(sc)}")
    a("s_waitcnt lgkmcnt(0)")
    for i in range(8):
        a(f"v_mul_f32 {v(RQ+i)}, s52, {v(RT+i)}")
    for nt in range(NTW):
        R_ = RQ if nt < 2 else RT
        for mp in range(0, MT, 2):
            c0 = acc(nt, mp)
            for q in range(2):
                for j in range(2):
                    a(f"v_pk_mul_f32 {v(GE+4*q+2*j,2)}, {v(CS+4*nt+2*j,2)}, {v(R_+2*(mp+q),2)} op_sel:[0,1] op_sel_hi:[1,1]")
            for q in range(2):
                for j in range(2):
                    cc = v(c0 + 4 * q + 2 * j, 2)
                    a(f"v_pk_fma_f32 {cc}, {cc}, {v(R_+2*(mp+q),2)}, {v(GE+4*q+2*j,2)} op_sel:[0,0,0] op_sel_hi:[1,0,1]")
            for j in range(4):
                a(f"v_cvt_pk_bf16_f32 {v(c0+j)}, {v(c0+2*j)}, {v(c0+2*j+1)}")
            for q in range(2):
                sec = nt >> 1
                if sec == 2:
                    a(f"ds_write_b64 {v(DV)}, {v(c0+2*q,2)} offset:{(mp+q)*1024 + sec*16384 + 32*(nt&1)}")
                else:
                    a(f"ds_write_b64 {v(DQ1 if nt & 1 else DQ0)}, {v(c0+2*q,2)} offset:{(mp+q)*1024 + sec*16384}")
    a("s_waitcnt vmcnt(0) lgkmcnt(0)")
    stamp(4)
    a("s_barrier")
    a(f"s_branch {lab_att}")

    a.label(lab_loader)
    a("s_setprio 2")
    LSD = 40; LST = 56; LNO = 68; LTB = 72
    a("s_lshl_b32 s3, s30, 6")
    a(f"v_lshrrev_b32 {v(t0)}, 3, v1")
    a(f"v_add_u32 {v(t0)}, s3, {v(t0)}")
    for i in range(PA):
        a(f"v_add_u32 {v(t1)}, {8*i}, {v(t0)}")
        a(f"v_lshrrev_b32 {v(t2)}, 1, {v(t1)}")
        a(f"v_and_b32 {v(t2)}, 7, {v(t2)}")
        a(f"v_and_b32 {v(t3)}, 7, v1")
        a(f"v_xor_b32 {v(t2)}, {v(t2)}, {v(t3)}")
        a(f"v_add_u32 {v(t1)}, s98, {v(t1)}")
        a(f"v_mul_u32_u24 {v(t1)}, {lda}, {v(t1)}")
        a(f"v_lshl_add_u32 {v(vA[i])}, {v(t2)}, 4, {v(t1)}")
    a("s_lshl_b32 s3, s29, 6")
    for i in range(PB):
        a(f"s_mul_i32 s46, s30, {PB}")
        a(f"s_add_u32 s46, s46, {i}")
        a("s_lshr_b32 s47, s46, 2")
        a("s_and_b32 s46, s46, 3")
        a("s_lshl_b32 s46, s46, 4")
        a("s_lshl_b32 s47, s47, 11")
        a("s_add_u32 s47, s47, s3")
        a(f"v_lshrrev_b32 {v(t0)}, {3 if 'bfull' in EXP else 2}, v1")
        a(f"v_add_u32 {v(t0)}, s46, {v(t0)}")
        a(f"v_and_b32 {v(t1)}, {7 if 'bfull' in EXP else 3}, v1")
        if 'bfull' in EXP: a("s_and_b32 s47, s47, 0xffffff80")
        a(f"v_bfe_u32 {v(t2)}, {v(t0)}, 3, 1")
        a(f"v_lshlrev_b32 {v(t2)}, 1, {v(t2)}")
        a(f"v_xor_b32 {v(t1)}, {v(t1)}, {v(t2)}")
        a(f"v_mul_u32_u24 {v(t0)}, {N*2}, {v(t0)}")
        a(f"v_lshl_add_u32 {v(t0)}, {v(t1)}, 4, {v(t0)}")
        a(f"v_add_u32 {v(vB[i])}, s47, {v(t0)}")
    a(f"s_mul_i32 s31, s30, {PA*1024}")
    a(f"s_mul_i32 s32, s30, {PB*1024}")
    a(f"s_add_u32 s32, s32, {ABYTES}")
    build_srds()
    a("s_lshl_b32 s46, s29, 3")
    a("s_add_u32 s46, s46, s98")
    a("s_lshl_b32 s47, s30, 1")
    a("s_add_u32 s47, s47, s46")
    stats_load(LSD, LST, 47)
    lab_lpass = a.newlabel("L_lpass")
    a.label(lab_lpass)
    a("s_mov_b32 s40, 0")
    a("s_mov_b32 s41, 0")
    a("s_mov_b32 s43, 0")
    a("s_mov_b32 s53, 0")

    def dma():
        a("s_add_u32 s33, s43, s31")
        for i in range(PA):
            a(f"s_add_u32 m0, s33, {i*1024}")
            a("s_nop 0")
            a(f"buffer_load_dwordx4 {v(vA[i])}, s[4:7], s40 offen lds")
        a("s_add_u32 s33, s43, s32")
        for i in range(PB):
            a(f"s_add_u32 m0, s33, {i*1024}")
            a("s_nop 0")
            a(f"buffer_load_dwordx4 {v(vB[i])}, s[8:11], s41 offen lds")
        a(f"s_add_u32 s40, s40, {BK*2}")
        a(f"s_add_u32 s41, s41, {BK*N*2}")
        a(f"s_add_u32 s43, s43, {STAGE}")
        a(f"s_cmp_ge_u32 s43, {STAGE*NSTAGE}")
        a("s_cselect_b32 s43, 0, s43")

    stamp(1)
    for _ in range(NSTAGE - 1):
        dma()
    stamp(2)
    nloop = NS - NSTAGE + 1
    a(f"s_mov_b32 s48, {nloop}")
    lloop = a.newlabel("L_lloop")
    a.label(lloop)
    a(f"s_waitcnt vmcnt({(NSTAGE-2)*P})")
    a("s_barrier")
    l1 = a.newlabel("L_l1"); l2 = a.newlabel("L_l2"); l3 = a.newlabel("L_l3")
    a("s_cmp_lg_u32 s45, 1")
    a(f"s_cbranch_scc1 {l2}")
    a("s_cmp_lg_u32 s30, 0")
    a(f"s_cbranch_scc1 {l2}")
    a("s_cmp_lg_u32 s48, 2")
    a(f"s_cbranch_scc1 {l1}")
    a(f"v_lshlrev_b32 {v(t0)}, 4, v1")
    a("s_lshl_b32 s3, s28, 12")
    for j in range(4):
        a(f"buffer_load_dwordx4 {v(LTB+4*j,4)}, {v(t0)}, s[36:39], s3 offen offset:{1024*j} sc0 sc1")
    a.label(l1)
    a("s_cmp_lg_u32 s48, 1")
    a(f"s_cbranch_scc1 {l2}")
    a("s_mov_b64 s[54:55], exec")
    for j in range(4):
        a(f"v_cmp_lt_u64 vcc, s[34:35], {v(LTB+4*j+2,2)}")
        a(f"v_cmp_gt_u64 s[56:57], s[20:21], {v(LTB+4*j+2,2)}")
        a("s_nop 3")
        a("s_and_b64 s[54:55], s[54:55], vcc")
        a("s_and_b64 s[54:55], s[54:55], s[56:57]")
    a("s_cmp_lg_u64 s[54:55], exec")
    a(f"s_cbranch_scc1 {l2}")
    a("s_mov_b32 s53, 1")
    a(f"v_lshlrev_b32 {v(t0)}, 3, v1")
    a(f"v_add_u32 {v(t0)}, {RTAB}, {v(t0)}")
    for j in range(4):
        a(f"ds_write_b64 {v(t0)}, {v(LTB+4*j,2)} offset:{512*j}")
    a("s_waitcnt lgkmcnt(0)")
    a.label(l2)
    dma()
    a("s_cmp_lg_u32 s45, 1")
    a(f"s_cbranch_scc1 {l3}")
    a(f"s_cmp_lg_u32 s48, {nloop}")
    a(f"s_cbranch_scc1 {l3}")
    stats_math(LSD, LST)
    a("s_lshl_b32 s3, s30, 4")
    a(f"s_add_u32 s3, s3, {STG}")
    a(f"v_mov_b32 {v(LST+9)}, s3")
    a(f"ds_write_b128 {v(LST+9)}, {v(LST,4)}")
    a("s_waitcnt lgkmcnt(0)")
    a.label(l3)
    a("s_sub_u32 s48, s48, 1")
    a("s_cmp_lg_u32 s48, 0")
    a(f"s_cbranch_scc1 {lloop}")
    for j in range(NS - NSTAGE + 1, NS):
        a(f"s_waitcnt vmcnt({(NS-1-j)*P})")
        a("s_barrier")
    stamp(3)
    l4 = a.newlabel("L_l4")
    a(f"v_mov_b32 {v(t1)}, {STAT}")
    a("s_cmp_lg_u32 s30, 0")
    a(f"s_cbranch_scc1 {l4}")
    a(f"v_mov_b32 {v(t0)}, s53")
    a(f"ds_write_b32 {v(t1)}, {v(t0)}")
    for j in range(4):
        a(f"v_mov_b32 {v(LTB+j)}, 0")
    a(f"ds_write_b128 {v(t1)}, {v(LTB,4)} offset:{STAT2-STAT}")
    a("s_waitcnt lgkmcnt(0)")
    a.label(l4)
    a("s_barrier")
    a(f"ds_read_b32 {v(t2)}, {v(t1)}")
    a("s_waitcnt lgkmcnt(0)")
    a(f"v_readfirstlane_b32 s3, {v(t2)}")
    a("s_nop 3")
    lok = a.newlabel("L_stok")
    a("s_cmp_eq_u32 s3, 1")
    a(f"s_cbranch_scc1 {lok}")
    local_stats(LSD, LST)
    a.label(lok)
    stamp(4)
    a("s_barrier")

    a.label(lab_att)
    CM, MK1, MK2, SA, SB = 16, 32, 48, 64, 80
    KB_ = [96, 104]; VB_ = [112, 120]; PP = [128, 136]; OA = 144; SUM = 160
    W1P = 164; CA = 180; CT = 188; PUB = 200; VM = 216
    vK1 = [2, 3]; vV1 = 4; vK2 = [5, 6]; vV2 = 7; vQQ = 8; vHH = 9; vX32 = 10; vNEG = 11; vL16 = 12
    T0, T1, T2 = 13, 14, 15
    vNO = 217
    lab_start = a.newlabel("L_astart"); lab_reload = a.newlabel("L_reload"); lab_fin = a.newlabel("L_fin")
    a("s_setprio 0")
    a("s_sub_u32 s3, 11, s49")
    a("s_cmp_lt_u32 s49, 4")
    a("s_cselect_b32 s44, s49, s3")
    a(f"v_and_b32 {v(vQQ)}, 31, v1")
    a(f"v_lshrrev_b32 {v(vHH)}, 5, v1")
    a(f"v_lshlrev_b32 {v(vL16)}, 4, v1")
    a(f"v_xor_b32 {v(vX32)}, 32, v1")
    a(f"v_lshlrev_b32 {v(vX32)}, 2, {v(vX32)}")
    a(f"v_mov_b32 {v(vNEG)}, 0xf149f2ca")
    a(f"v_mov_b32 {v(VM)}, 0")
    a(f"v_bfe_u32 {v(T0)}, v1, 2, 2")
    a(f"v_xor_b32 {v(T0)}, {v(T0)}, {v(vHH)}")
    a(f"v_lshlrev_b32 {v(T1)}, 6, {v(vQQ)}")
    a(f"v_lshl_add_u32 {v(T0)}, {v(T0)}, 4, {v(T1)}")
    a("s_lshl_b32 s3, s44, 11")
    a(f"s_add_u32 s46, s3, {OK_ - 7*2048}")
    a(f"v_add_u32 {v(vK1[0])}, s46, {v(T0)}")
    a(f"v_xor_b32 {v(vK1[1])}, 32, {v(vK1[0])}")
    a(f"s_add_u32 s46, s3, {PK}")
    a(f"v_add_u32 {v(vK2[0])}, s46, {v(T0)}")
    a(f"v_xor_b32 {v(vK2[1])}, 32, {v(vK2[0])}")
    a(f"s_add_u32 s46, s3, {OQ}")
    a(f"v_add_u32 {v(T0)}, s46, {v(T0)}")
    a(f"v_bfe_u32 {v(T1)}, v1, 2, 2")
    a(f"v_lshl_add_u32 {v(T1)}, {v(vHH)}, 2, {v(T1)}")
    a(f"v_lshlrev_b32 {v(T1)}, 6, {v(T1)}")
    a(f"v_bfe_u32 {v(T2)}, v1, 4, 1")
    a(f"v_lshl_add_u32 {v(T1)}, {v(T2)}, 5, {v(T1)}")
    a(f"v_and_b32 {v(T2)}, 3, v1")
    a(f"v_lshl_add_u32 {v(T1)}, {v(T2)}, 3, {v(T1)}")
    a(f"s_add_u32 s46, s3, {OV - 7*2048}")
    a(f"v_add_u32 {v(vV1)}, s46, {v(T1)}")
    a(f"s_add_u32 s46, s3, {PV}")
    a(f"v_add_u32 {v(vV2)}, s46, {v(T1)}")
    a("s_cmp_lg_u32 s45, 1")
    a(f"s_cbranch_scc1 {lab_reload}")
    a("s_lshl_b32 s3, s49, 12")
    a(f"s_add_u32 s46, s3, {OK_}")
    a(f"v_add_u32 {v(T1)}, s46, {v(vL16)}")
    for j in range(4):
        a(f"ds_read_b128 {v(PUB+4*j,4)}, {v(T1)} offset:{1024*j}")
    a(f"ds_read_b128 {v(QF,4)}, {v(T0)}")
    a(f"v_xor_b32 {v(T0)}, 32, {v(T0)}")
    a(f"ds_read_b128 {v(QF+4,4)}, {v(T0)}")
    a("s_lshl_b32 s46, s99, 15")
    a("s_add_u32 s46, s46, s3")
    for j in range(4):
        a(f"s_waitcnt lgkmcnt({5-j})")
        a(f"buffer_store_dwordx4 {v(PUB+4*j,4)}, {v(vL16)}, s[16:19], s46 offen offset:{1024*j} sc0 sc1")
    a("s_mov_b32 s33, 0")

    def kvflag():
        ldone = a.newlabel("L_kvf")
        a("s_or_b32 s3, s33, s50")
        a("s_cmp_lg_u32 s3, 0")
        a(f"s_cbranch_scc1 {ldone}")
        a("s_mov_b32 s33, 1")
        a(f"s_load_dwordx2 s[54:55], s[0:1], {ARG['w1']}")
        a("s_memrealtime s[22:23]")
        a("s_lshl_b32 s3, s99, 7")
        a("s_lshl_b32 s46, s49, 3")
        a("s_add_u32 s3, s3, s46")
        a(f"s_add_u32 s3, s3, {KFO}")
        a(f"v_mov_b32 {v(T0)}, 0")
        a("s_waitcnt vmcnt(0) lgkmcnt(0)")
        a(f"v_mov_b32 {v(PUB)}, s22")
        a(f"v_mov_b32 {v(PUB+1)}, s23")
        a("s_mov_b64 exec, 1")
        if 'nokvflag' not in EXP: a(f"buffer_store_dwordx2 {v(PUB,2)}, {v(T0)}, s[36:39], s3 offen sc0 sc1")
        a("s_mov_b64 exec, -1")
        a("s_lshl_b32 s92, s99, 3")
        a("s_add_u32 s92, s92, s49")
        a(f"s_mul_hi_u32 s56, s92, {((1 << 32) + 111) // 112}")
        a("s_mul_i32 s3, s56, 112")
        a("s_sub_u32 s57, s92, s3")
        a("s_lshl_b32 s3, s56, 6")
        a(f"v_lshrrev_b32 {v(T1)}, 2, v1")
        a(f"v_add_u32 {v(T1)}, s3, {v(T1)}")
        a(f"v_mul_u32_u24 {v(T1)}, {F*2}, {v(T1)}")
        a(f"v_and_b32 {v(T2)}, 3, v1")
        a(f"v_lshl_add_u32 {v(T1)}, {v(T2)}, 4, {v(T1)}")
        a("s_lshl_b32 s3, s57, 6")
        a(f"v_add_u32 {v(T1)}, s3, {v(T1)}")
        a("s_waitcnt lgkmcnt(0)")
        srd(a, 76, 54, 0, D * F * 2)
        for j in range(4):
            a(f"s_mov_b32 s3, {16*j*F*2}")
            a(f"buffer_load_dwordx4 {v(W1P+4*j,4)}, {v(T1)}, s[76:79], s3 offen")
        a.label(ldone)

    a.label(lab_start)
    a(f"v_lshlrev_b32 {v(T0)}, 2, {v(vHH)}")
    a(f"v_sub_u32 {v(T0)}, {v(vQQ)}, {v(T0)}")
    for r in range(16):
        c = (r & 3) + 8 * (r >> 2)
        sp = 52 + 2 * (r & 1)
        a(f"v_cmp_le_i32 s[{sp}:{sp+1}], {c}, {v(T0)}")
        a(f"v_mov_b32 {v(CM+r)}, {v(VM)}")
        a(f"v_cndmask_b32 {v(MK1+r)}, {v(vNEG)}, {v(VM)}, s[{sp}:{sp+1}]")
        a(f"v_cndmask_b32 {v(MK2+r)}, {v(VM)}, {v(vNEG)}, s[{sp}:{sp+1}]")
    for r in range(16):
        a(f"v_mov_b32 {v(OA+r)}, 0")
    for r in range(4):
        a(f"v_mov_b32 {v(SUM+r)}, 0")

    def part(vK, vV, MK, off, last_cmp, lab_out, hook=None):
        SS = [SA, SB]

        def kread(i):
            for ks in range(2):
                a(f"ds_read_b128 {v(KB_[i&1]+4*ks,4)}, {v(vK[ks])} offset:{off(i)}")

        def smf(i, h):
            if h == 0:
                a(f"v_mfma_f32_32x32x16_bf16 {v(SS[i&1],16)}, {v(KB_[i&1],4)}, {v(QF,4)}, {v(MK if i == 0 else CM,16)}")
            else:
                a(f"v_mfma_f32_32x32x16_bf16 {v(SS[i&1],16)}, {v(KB_[i&1]+4,4)}, {v(QF+4,4)}, {v(SS[i&1],16)}")
        kread(0)
        kread(1)
        a("s_waitcnt lgkmcnt(2)")
        smf(0, 0); smf(0, 1)
        for i in range(8):
            Sx = SS[i & 1]; Px = PP[i & 1]; Vx = VB_[i & 1]

            def exps(g):
                for j in range(4):
                    a(f"v_exp_f32 {v(Sx+g+j)}, {v(Sx+g+j)}")

            def addcvt(g):
                for j in range(2):
                    a(f"v_pk_add_f32 {v(SUM+2*j,2)}, {v(SUM+2*j,2)}, {v(Sx+g+2*j,2)}")
                    a(f"v_cvt_pk_bf16_f32 {v(Px+g//2+j)}, {v(Sx+g+2*j)}, {v(Sx+g+1+2*j)}")

            def pv(sidx):
                a(f"v_mfma_f32_32x32x16_bf16 {v(OA,16)}, {v(Vx+4*sidx,4)}, {v(Px+4*sidx,4)}, {v(OA,16)}")
            for sidx in range(2):
                for rd in range(2):
                    a(f"ds_read_b64_tr_b16 {v(Vx+4*sidx+2*rd,2)}, {v(vV)} offset:{off(i) + (16*sidx+8*rd)*64}")
            if i < 7:
                a("s_waitcnt lgkmcnt(4)")
                smf(i + 1, 0)
            if i == 0:
                a("s_nop 7"); a("s_nop 7"); a("s_nop 7")
            exps(0)
            if i < 7:
                smf(i + 1, 1)
                if i < 6: kread(i + 2)
            exps(4); addcvt(0)
            exps(8); addcvt(4)
            a(f"s_waitcnt lgkmcnt({2 if i < 6 else 0})")
            pv(0)
            exps(12); addcvt(8)
            a("s_nop 0")
            addcvt(12)
            a("s_nop 1")
            pv(1)
            if i < 7:
                a(f"s_cmp_eq_u32 s44, {last_cmp(i)}")
                a(f"s_cbranch_scc1 {lab_out}")
            if hook and i == 2: hook()
        a.label(lab_out)
        a("s_waitcnt lgkmcnt(0)")

    part(vK1, vV1, MK1, lambda i: (7 - i) * 2048, lambda i: i, a.newlabel("L_p1e"), hook=kvflag)
    stamp(5)
    lab_p2 = a.newlabel("L_p2")
    a("s_cmp_lg_u32 s50, 0")
    a(f"s_cbranch_scc1 {lab_p2}")
    kvflag()
    a("s_waitcnt vmcnt(0)")
    lab_nc = a.newlabel("L_nocs")
    a("s_cmp_ge_u32 s56, 16")
    a(f"s_cbranch_scc1 {lab_nc}")
    for j in range(4):
        a(f"v_lshlrev_b32 v{CA+2*j}, 16, v{W1P+j}")
        a(f"v_and_b32 v{CA+2*j+1}, 0xffff0000, v{W1P+j}")
    for i in range(1, 4):
        for j in range(4):
            a(f"v_lshlrev_b32 v{CT+2*j}, 16, v{W1P+4*i+j}")
            a(f"v_and_b32 v{CT+2*j+1}, 0xffff0000, v{W1P+4*i+j}")
        for j in range(4):
            a(f"v_pk_add_f32 {v(CA+2*j,2)}, {v(CA+2*j,2)}, {v(CT+2*j,2)}")
    a("s_nop 1")
    for mode in ("row_ror:4", "row_ror:8"):
        for j in range(8):
            a(f"v_add_f32_dpp v{CT+j}, v{CA+j}, v{CA+j} {mode} row_mask:0xf bank_mask:0xf")
        a("s_nop 1")
        for j in range(8):
            a(f"v_mov_b32 v{CA+j}, v{CT+j}")
        a("s_nop 1")
    for x in (16, 32):
        a(f"v_xor_b32 {v(T0)}, {x}, v1")
        a(f"v_lshlrev_b32 {v(T0)}, 2, {v(T0)}")
        for j in range(8):
            a(f"ds_bpermute_b32 v{CT+j}, {v(T0)}, v{CA+j}")
        a("s_waitcnt lgkmcnt(0)")
        for j in range(8):
            a(f"v_add_f32 v{CA+j}, v{CA+j}, v{CT+j}")
    srd(a, 76, 24, G.WS_CS, 16 * F * 4)
    a(f"s_mul_i32 s3, s56, {F*4}")
    a("s_lshl_b32 s57, s57, 7")
    a("s_add_u32 s3, s3, s57")
    a(f"v_lshlrev_b32 {v(T0)}, 5, v1")
    a("s_mov_b64 exec, 15")
    a(f"buffer_store_dwordx4 {v(CA,4)}, {v(T0)}, s[76:79], s3 offen")
    a(f"buffer_store_dwordx4 {v(CA+4,4)}, {v(T0)}, s[76:79], s3 offen offset:16")
    a("s_mov_b64 exec, -1")
    a.label(lab_nc)
    a("s_mov_b32 s50, 1")
    a("s_cmp_eq_u32 s28, 0")
    a(f"s_cbranch_scc1 {lab_fin}")
    lp = a.newlabel("L_poll"); lpo = a.newlabel("L_pollok"); lpd = a.newlabel("L_polld"); lsp = a.newlabel("L_spin")
    a("s_cmp_ge_u32 s49, 4")
    a(f"s_cbranch_scc1 {lsp}")
    a("s_sub_u32 s46, s99, 32")
    a("s_lshl_b32 s47, s46, 7")
    a(f"s_add_u32 s47, s47, {KFO}")
    a(f"v_and_b32 {v(T0)}, 7, v1")
    a(f"v_lshlrev_b32 {v(T0)}, 3, {v(T0)}")
    a(f"s_mov_b32 s52, {NPOLL}")
    a.label(lp)
    a(f"buffer_load_dwordx2 {v(PUB,2)}, {v(T0)}, s[36:39], s47 offen sc0 sc1")
    a("s_waitcnt vmcnt(0)")
    a(f"v_cmp_lt_u64 vcc, s[34:35], {v(PUB,2)}")
    a(f"v_cmp_gt_u64 s[54:55], s[20:21], {v(PUB,2)}")
    a("s_nop 3")
    a("s_and_b64 vcc, vcc, s[54:55]")
    a("s_cmp_eq_u64 vcc, exec")
    a(f"s_cbranch_scc1 {lpo}")
    a("s_sub_u32 s52, s52, 1")
    a("s_cmp_lg_u32 s52, 0")
    a(f"s_cbranch_scc1 {lp}")
    a(f"v_mov_b32 {v(T1)}, 2")
    a(f"s_branch {lpd}")
    a.label(lpo)
    a("s_lshl_b32 s3, s49, 13")
    a("s_lshl_b32 s46, s46, 15")
    a("s_add_u32 s46, s46, s3")
    for j in range(8):
        a(f"s_add_u32 m0, s3, {PK + 1024*j}")
        a("s_nop 0")
        a(f"buffer_load_dwordx4 {v(vL16)}, s[16:19], s46 offen sc0 sc1 lds")
        a("s_add_u32 s46, s46, 1024")
    a(f"v_mov_b32 {v(T1)}, 1")
    a.label(lpd)
    a("s_lshl_b32 s3, s49, 2")
    a(f"s_add_u32 s3, s3, {STAT2}")
    a(f"v_mov_b32 {v(T0)}, s3")
    a("s_waitcnt vmcnt(0)")
    a(f"ds_write_b32 {v(T0)}, {v(T1)}")
    a.label(lsp)
    a(f"v_mov_b32 {v(T0)}, {STAT2}")
    a(f"ds_read_b128 {v(PUB,4)}, {v(T0)}")
    a("s_waitcnt lgkmcnt(0)")
    a(f"v_min_u32 {v(T1)}, {v(PUB)}, {v(PUB+1)}")
    a(f"v_min3_u32 {v(T1)}, {v(T1)}, {v(PUB+2)}, {v(PUB+3)}")
    a(f"v_max_u32 {v(T2)}, {v(PUB)}, {v(PUB+1)}")
    a(f"v_max3_u32 {v(T2)}, {v(T2)}, {v(PUB+2)}, {v(PUB+3)}")
    a("s_nop 0")
    a(f"v_readfirstlane_b32 s3, {v(T1)}")
    a(f"v_readfirstlane_b32 s46, {v(T2)}")
    a("s_nop 3")
    a("s_cmp_eq_u32 s3, 0")
    a("s_sleep 1")
    a(f"s_cbranch_scc1 {lsp}")
    a("s_cmp_eq_u32 s46, 1")
    a(f"s_cbranch_scc1 {lab_p2}")
    a("s_mov_b32 s45, 2")
    a("s_sub_u32 s98, s98, 256")
    a(f"s_mov_b32 s100, {XQ}")
    a("s_barrier")
    a("s_cmp_lt_u32 s49, 4")
    a(f"s_cbranch_scc1 {lab_cpass}")
    a("s_setprio 2")
    a(f"s_branch {a.newlabel('L_lre')}")
    lab_lre = f"L_lre_{a.nlab}"

    a.label(lab_reload)
    a("s_lshl_b32 s3, s49, 12")
    a("s_lshl_b32 s46, s99, 15")
    a("s_add_u32 s46, s46, s3")
    for j in range(4):
        a(f"s_add_u32 m0, s3, {OK_ + 1024*j}")
        a("s_nop 0")
        a(f"buffer_load_dwordx4 {v(vL16)}, s[16:19], s46 offen sc0 sc1 lds")
        a("s_add_u32 s46, s46, 1024")
    a("s_waitcnt vmcnt(0)")
    a("s_barrier")
    a(f"s_branch {lab_start}")

    a.label(lab_p2)
    a("s_cmp_eq_u32 s28, 0")
    a(f"s_cbranch_scc1 {lab_fin}")
    part(vK2, vV2, MK2, lambda i: i * 2048, lambda i: 7 - i, a.newlabel("L_p2e"))
    a.label(lab_fin)
    stamp(6)
    a(f"v_add_f32 {v(SUM)}, {v(SUM)}, {v(SUM+1)}")
    a(f"v_add_f32 {v(SUM+2)}, {v(SUM+2)}, {v(SUM+3)}")
    a(f"v_add_f32 {v(SUM)}, {v(SUM)}, {v(SUM+2)}")
    a(f"ds_bpermute_b32 {v(SUM+1)}, {v(vX32)}, {v(SUM)}")
    a("s_waitcnt lgkmcnt(0)")
    a(f"v_add_f32 {v(SUM)}, {v(SUM)}, {v(SUM+1)}")
    lab_out = a.newlabel("L_out")
    a("s_cmp_lg_u32 s51, 0")
    a(f"s_cbranch_scc1 {lab_out}")
    lo = 2.0 ** -40 if 'forcemax' not in EXP else 2.0 ** 39
    a(f"v_mov_b32 {v(T1)}, {hex_f32(lo)}")
    a(f"v_mov_b32 {v(T0)}, {hex_f32(2.0**40)}")
    a(f"v_cmp_lt_f32 s[52:53], {v(T1)}, {v(SUM)}")
    a(f"v_cmp_lt_f32 s[54:55], {v(SUM)}, {v(T0)}")
    a("s_nop 3")
    a("s_and_b64 s[52:53], s[52:53], s[54:55]")
    a("s_cmp_eq_u64 s[52:53], exec")
    a(f"s_cbranch_scc1 {lab_out}")
    a("s_mov_b32 s51, 1")
    a(f"v_mov_b32 {v(VM)}, {v(vNEG)}")

    def maxpart(vK, MK, first_off, step, cnt_expr):
        lp = a.newlabel("L_mx"); lpe = a.newlabel("L_mxe")
        a(f"v_add_u32 {v(T0)}, {first_off}, {v(vK[0])}")
        a(f"v_add_u32 {v(T1)}, {first_off}, {v(vK[1])}")
        cnt_expr()

        def tile(C):
            a(f"ds_read_b128 {v(KB_[0],4)}, {v(T0)}")
            a(f"ds_read_b128 {v(KB_[0]+4,4)}, {v(T1)}")
            a("s_waitcnt lgkmcnt(0)")
            a(f"v_mfma_f32_32x32x16_bf16 {v(SA,16)}, {v(KB_[0],4)}, {v(QF,4)}, {v(C,16)}")
            a(f"v_mfma_f32_32x32x16_bf16 {v(SA,16)}, {v(KB_[0]+4,4)}, {v(QF+4,4)}, {v(SA,16)}")
            a("s_nop 7"); a("s_nop 7"); a("s_nop 7")
            for r in range(0, 16, 2):
                a(f"v_max3_f32 {v(VM)}, {v(VM)}, {v(SA+r)}, {v(SA+r+1)}")
            a(f"v_add_u32 {v(T0)}, {step}, {v(T0)}")
            a(f"v_add_u32 {v(T1)}, {step}, {v(T1)}")
        tile(MK)
        a.label(lp)
        a("s_cmp_eq_u32 s52, 0")
        a(f"s_cbranch_scc1 {lpe}")
        tile(CM)
        a("s_sub_u32 s52, s52, 1")
        a(f"s_branch {lp}")
        a.label(lpe)

    maxpart(vK1, MK1, 7 * 2048, -2048, lambda: a("s_mov_b32 s52, s44"))
    lmx = a.newlabel("L_mxd")
    a("s_cmp_eq_u32 s28, 0")
    a(f"s_cbranch_scc1 {lmx}")
    maxpart(vK2, MK2, 0, 2048, lambda: a("s_sub_u32 s52, 7, s44"))
    a.label(lmx)
    a(f"ds_bpermute_b32 {v(T0)}, {v(vX32)}, {v(VM)}")
    a("s_waitcnt lgkmcnt(0)")
    a(f"v_max_f32 {v(VM)}, {v(VM)}, {v(T0)}")
    a(f"v_sub_f32 {v(VM)}, 0, {v(VM)}")
    a(f"s_branch {lab_start}")

    a.label(lab_out)
    a(f"v_rcp_f32 {v(SUM)}, {v(SUM)}")
    a("s_lshl_b32 s3, s28, 8")
    a("s_lshl_b32 s46, s44, 5")
    a("s_add_u32 s3, s3, s46")
    a(f"v_add_u32 {v(T0)}, s3, {v(vQQ)}")
    a(f"v_lshlrev_b32 {v(T0)}, 11, {v(T0)}")
    a(f"v_lshl_add_u32 {v(T0)}, {v(vHH)}, 3, {v(T0)}")
    a("s_lshl_b32 s3, s29, 6")
    a(f"v_add_u32 {v(T0)}, s3, {v(T0)}")
    a("s_nop 7")
    for g in range(4):
        for r in range(4):
            a(f"v_mul_f32 v{OA+4*g+r}, v{OA+4*g+r}, {v(SUM)}")
        a(f"v_cvt_pk_bf16_f32 v{OA+4*g}, v{OA+4*g}, v{OA+4*g+1}")
        a(f"v_cvt_pk_bf16_f32 v{OA+4*g+1}, v{OA+4*g+2}, v{OA+4*g+3}")
        a(f"buffer_store_dwordx2 {v(OA+4*g,2)}, {v(T0)}, s[12:15], 0 offen offset:{16*g}")
    if 'stamp' in EXP: a("s_waitcnt vmcnt(0)")
    stamp(7)
    stamp_out()
    a(f"s_branch {end}")

    a.label(lab_lre)
    a("s_lshl_b32 s3, s30, 6")
    a(f"v_lshrrev_b32 {v(t0)}, 3, v1")
    a(f"v_add_u32 {v(t0)}, s3, {v(t0)}")
    for i in range(PA):
        a(f"v_add_u32 {v(t1)}, {8*i}, {v(t0)}")
        a(f"v_lshrrev_b32 {v(t2)}, 1, {v(t1)}")
        a(f"v_and_b32 {v(t2)}, 7, {v(t2)}")
        a(f"v_and_b32 {v(t3)}, 7, v1")
        a(f"v_xor_b32 {v(t2)}, {v(t2)}, {v(t3)}")
        a(f"v_add_u32 {v(t1)}, s98, {v(t1)}")
        a(f"v_mul_u32_u24 {v(t1)}, {lda}, {v(t1)}")
        a(f"v_lshl_add_u32 {v(vA[i])}, {v(t2)}, 4, {v(t1)}")
    a("s_lshl_b32 s3, s29, 6")
    for i in range(PB):
        a(f"s_mul_i32 s46, s30, {PB}")
        a(f"s_add_u32 s46, s46, {i}")
        a("s_lshr_b32 s47, s46, 2")
        a("s_and_b32 s46, s46, 3")
        a("s_lshl_b32 s46, s46, 4")
        a("s_lshl_b32 s47, s47, 11")
        a("s_add_u32 s47, s47, s3")
        a(f"v_lshrrev_b32 {v(t0)}, 2, v1")
        a(f"v_add_u32 {v(t0)}, s46, {v(t0)}")
        a(f"v_and_b32 {v(t1)}, 3, v1")
        a(f"v_bfe_u32 {v(t2)}, {v(t0)}, 3, 1")
        a(f"v_lshlrev_b32 {v(t2)}, 1, {v(t2)}")
        a(f"v_xor_b32 {v(t1)}, {v(t1)}, {v(t2)}")
        a(f"v_mul_u32_u24 {v(t0)}, {N*2}, {v(t0)}")
        a(f"v_lshl_add_u32 {v(t0)}, {v(t1)}, 4, {v(t0)}")
        a(f"v_add_u32 {v(vB[i])}, s47, {v(t0)}")
    a(f"s_branch {lab_lpass}")
    a.label(end)
    a("s_endpgm")
    return dict(name=name, grid=256, block=512, lds=lds, desc=G.kernel_desc(name, 256))
```

```python
import sys, math, os
EXP=os.environ.get('EXP','')
STMOD=os.environ.get('STMOD','sc0 sc1')
STALL=os.environ.get('STALL','')
RPM=int(os.environ.get('RPM','2'))

OUT = os.environ.get("OUTF","sequential_preLN__sliding_block__mixer_channel_mlp__prompt.s")

S = 2048; D = 1024; F = 3584; H = 32; DH = 32; WIN = 256
ARG = dict(x=0, wqkv=8, wo=16, bx=24, w1=32, b1=40, w2=48, b2=56, out=64, dbg=72, ws=80)
MB = 1 << 20
WS_Y1 = 0
WS_QKV = 4 * MB
WS_O = 16 * MB
WS_H = 20 * MB
WS_Y2 = 24 * MB
WS_H1 = 28 * MB
WS_ST = 0
WS_CS = 1 * MB
WS_SIZE = 256 * MB
WS_FLAG = 2 * MB
WS_PART = 64 * MB
LDH1 = F * 2 + int(os.environ.get('PADH1', '0'))


class Asm:
    def __init__(self):
        self.lines = []
        self.nlab = 0

    def __call__(self, s):
        self.lines.append("    " + s)

    def label(self, l):
        self.lines.append(l + ":")

    def newlabel(self, base="L"):
        self.nlab += 1
        return f"{base}_{self.nlab}"

    def c(self, s):
        self.lines.append("    ; " + s)


def v(i, n=1):
    return f"v{i}" if n == 1 else f"v[{i}:{i+n-1}]"


def s(i, n=1):
    return f"s{i}" if n == 1 else f"s[{i}:{i+n-1}]"


def srd(a, d, base, off, nbytes):
    if off:
        a(f"s_add_u32 s{d}, s{base}, {off}")
        a(f"s_addc_u32 s{d+1}, s{base+1}, 0")
    else:
        a(f"s_mov_b32 s{d}, s{base}")
        a(f"s_mov_b32 s{d+1}, s{base+1}")
    a(f"s_and_b32 s{d+1}, s{d+1}, 0xffff")
    a(f"s_mov_b32 s{d+2}, {nbytes}")
    a(f"s_mov_b32 s{d+3}, 0x00020000")


def hex_f32(x):
    import struct
    return hex(struct.unpack('<I', struct.pack('<f', x))[0])


def kernel_header(a, name):
    a.lines.append(".p2align 8")
    a.lines.append(f".globl {name}")
    a.lines.append(f".type {name},@function")
    a.label(name)


def kernel_desc(name, nvgpr, nsgpr=102, accum=None):
    nv = ((nvgpr + 7) // 8) * 8
    acc = accum if accum is not None else ((nvgpr + 3) // 4) * 4
    return f""".amdhsa_kernel {name}
  .amdhsa_next_free_vgpr {nv if accum is None else nvgpr}
  .amdhsa_next_free_sgpr {nsgpr}
  .amdhsa_accum_offset {min(acc,256)}
  .amdhsa_group_segment_fixed_size 0
  .amdhsa_kernarg_size 88
  .amdhsa_user_sgpr_count 2
  .amdhsa_user_sgpr_kernarg_segment_ptr 1
  .amdhsa_system_sgpr_workgroup_id_x 1
.end_amdhsa_kernel
"""


def gen_prefetch(a, regions, end_label):
    CH = 32768
    counts = [nbytes // CH for _, nbytes in regions]
    for (_, nbytes), c in zip(regions, counts):
        assert c * CH == nbytes
    total = sum(counts)
    skip = a.newlabel("L_nopf")
    a(f"s_cmp_ge_u32 s2, {total}")
    a(f"s_cbranch_scc1 {skip}")
    base = 0
    for (arg, nbytes), c in zip(regions, counts):
        nxt = a.newlabel("L_pfn")
        a(f"s_cmp_ge_u32 s2, {base + c}")
        a(f"s_cbranch_scc1 {nxt}")
        a(f"s_load_dwordx2 s[4:5], s[0:1], {ARG[arg]}")
        a(f"s_sub_u32 s3, s2, {base}")
        a("s_lshl_b32 s3, s3, 15")
        a("v_lshlrev_b32 v1, 4, v0")
        a("v_add_u32 v1, s3, v1")
        a("s_waitcnt lgkmcnt(0)")
        srd(a, 8, 4, 0, nbytes)
        for j in range(8):
            a(f"v_add_u32 v2, {4096*j}, v1")
            a(f"buffer_load_dwordx4 {v(4+4*j,4)}, v2, s[8:11], 0 offen")
        a("s_waitcnt vmcnt(0)")
        a(f"s_branch {end_label}")
        a.label(nxt)
        base += c
    a.label(skip)
    a(f"s_sub_u32 s2, s2, {total}")
    return total


def tail_prefetch(a, task, lane, regions, vtmp, vdst):
    ntask = 2048
    total = sum(n for _, n in regions)
    per = total // ntask
    assert per * ntask == total and per % 1024 == 0
    nld = per // 1024
    base = 0
    done = a.newlabel("L_pfdone")
    for arg, nbytes in regions:
        cnt = nbytes // per
        assert cnt * per == nbytes
        nxt = a.newlabel("L_pfn")
        a(f"s_cmp_ge_u32 s{task}, {base + cnt}")
        a(f"s_cbranch_scc1 {nxt}")
        a(f"s_load_dwordx2 s[94:95], s[0:1], {ARG[arg]}")
        a(f"s_sub_u32 s93, s{task}, {base}")
        a(f"s_mul_i32 s93, s93, {per}")
        a(f"v_lshlrev_b32 {v(vtmp)}, 4, {v(lane)}")
        a(f"v_add_u32 {v(vtmp)}, s93, {v(vtmp)}")
        a("s_waitcnt lgkmcnt(0)")
        srd(a, 96, 94, 0, nbytes)
        for j in range(nld):
            if j and j % 4 == 0:
                a(f"v_add_u32 {v(vtmp)}, 4096, {v(vtmp)}")
            a(f"buffer_load_dwordx4 {v(vdst,4)}, {v(vtmp)}, s[96:99], 0 offen offset:{1024*(j%4)}")
        a(f"s_branch {done}")
        a.label(nxt)
        base += cnt
    a.label(done)
    return nld

def gen_ln(a, name, src_arg, src_off, dst_off, double, pf=None):
    nwg = S // 4
    kernel_header(a, name)
    end = a.newlabel("L_end")
    npf = 0
    a(f"s_cmp_ge_u32 s2, {nwg}")
    a(f"s_cbranch_scc1 {end}")
    a(f"s_load_dwordx2 s[4:5], s[0:1], {ARG[src_arg]}")
    a(f"s_load_dwordx2 s[6:7], s[0:1], {ARG['ws']}")
    a("v_lshrrev_b32 v1, 6, v0")
    a("v_and_b32 v2, 63, v0")
    a("s_lshl_b32 s3, s2, 2")
    a("v_add_u32 v1, s3, v1")
    a("v_lshlrev_b32 v3, 11, v1")
    a("v_lshl_add_u32 v3, v2, 5, v3")
    for i, m in enumerate([1, 2, 4, 8, 16, 32]):
        a(f"v_xor_b32 v{12+i}, {m}, v2")
        a(f"v_lshlrev_b32 v{12+i}, 2, v{12+i}")
    a("s_waitcnt lgkmcnt(0)")
    srd(a, 8, 4, src_off, S * D * 2)
    srd(a, 12, 6, dst_off, S * D * 2)
    a("buffer_load_dwordx4 v[4:7], v3, s[8:11], 0 offen")
    a("buffer_load_dwordx4 v[8:11], v3, s[8:11], 0 offen offset:16")
    npl = 0
    if pf:
        a("v_readfirstlane_b32 s92, v1")
        a("s_nop 3")
        npl = tail_prefetch(a, 92, 2, pf, 44, 48)
    a(f"s_waitcnt vmcnt({npl})")

    def unpack():
        for i in range(8):
            a(f"v_lshlrev_b32 v{20+2*i}, 16, v{4+i}")
            a(f"v_and_b32 v{21+2*i}, 0xffff0000, v{4+i}")

    def bfly():
        for i in range(6):
            a(f"ds_bpermute_b32 v41, v{12+i}, v40")
            a("s_waitcnt lgkmcnt(0)")
            a("v_add_f32 v40, v40, v41")

    def norm():
        a("v_add_f32 v40, v20, v21")
        for i in range(2, 16):
            a(f"v_add_f32 v40, v40, v{20+i}")
        bfly()
        a("v_mul_f32 v40, 0x3a800000, v40")
        for i in range(16):
            a(f"v_sub_f32 v{20+i}, v{20+i}, v40")
        a("v_mul_f32 v40, v20, v20")
        for i in range(1, 16):
            a(f"v_fmac_f32 v40, v{20+i}, v{20+i}")
        bfly()
        a("v_mov_b32 v42, 0x3727c5ac")
        a("v_fma_f32 v40, v40, v43, v42")
        a("v_rsq_f32 v40, v40")
        a("s_nop 0")
        for i in range(16):
            a(f"v_mul_f32 v{20+i}, v{20+i}, v40")
        for i in range(8):
            a(f"v_cvt_pk_bf16_f32 v{4+i}, v{20+2*i}, v{21+2*i}")

    a("v_mov_b32 v43, 0x3a800000")
    unpack()
    norm()
    if double:
        unpack()
        norm()
    a("buffer_store_dwordx4 v[4:7], v3, s[12:15], 0 offen")
    a("buffer_store_dwordx4 v[8:11], v3, s[12:15], 0 offen offset:16")
    a.label(end)
    a("s_endpgm")
    return dict(name=name, grid=nwg + npf, block=256, lds=0, desc=kernel_desc(name, 56))


def gen_gemm(a, name, N, K, BN, a_off, w_arg, epi, out_arg, out_off, res_arg=None, res_off=0,
             bias_arg=None, BM=128, NSTAGE=3, RA=4, RBN=8, ln=None, a_arg='ws', pre=False, stats_out=False, lda=None, ldo=None, splitk=None, zero_flags=False, l2pf=0, wpf=None):
    import struct
    M = S
    BK = 64
    lda = lda or K * 2
    ldo = ldo or N * 2
    NT_M = M // BM
    NT_N = N // BN
    ntiles = NT_M * NT_N
    MT = BM // 2 // 16
    NTW = BN // 2 // 16
    RB = {64: 128, 128: 128, 192: 128, 96: 64, 224: 448, 112: 32}[BN]
    ABYTES = BM * BK * 2
    BBYTES = BK * BN * 2
    STAGE = ABYTES + BBYTES
    PA = ABYTES // 1024 // 4
    PB = BBYTES // 1024 // 4
    assert PA * 4096 == ABYTES and PB * 4096 == BBYTES
    P = PA + PB
    NS = K // BK
    if splitk:
        NSLO, NSHI = splitk
        assert NSLO + NSHI == NS and (NSLO - NSHI) % NSTAGE == 0
        NS = NSHI
        ntiles *= 2
    lds = STAGE * NSTAGE
    CROW = BN * 2 + 16
    CSZ = BM * CROW
    LASTB = (NS - 1) % NSTAGE
    TBL = 2048 if (ln and not pre) else 0
    CBASE = 0 if LASTB * STAGE >= CSZ + TBL else (LASTB + 1) * STAGE
    assert CBASE + CSZ + TBL <= lds
    EPI = lds
    st_res = bool(res_arg) and not splitk
    if splitk:
        DONE = CBASE + CSZ
        assert DONE + 16 <= (LASTB * STAGE if CBASE == 0 else lds)
    st_bias = pre
    if st_res: lds += BM * BN * 2
    if st_bias: lds += 3072 + 4096
    assert lds <= 163840
    if pre:
        CTAB = EPI + 1024; RTAB = EPI + 2048
    else:
        RTAB = CBASE + CSZ; CTAB = RTAB + 1024
    NEX = (BM * BN * 2 // 4096 if st_res else 0)
    PPR = RB // 32
    lg_ppr = int(math.log2(PPR)) if RB != 448 else 0

    vA = list(range(2, 2 + PA))
    vB = list(range(2 + PA, 2 + PA + PB))
    nxt = 2 + PA + PB
    vXb = [nxt, nxt + 1]; nxt += 2
    vWb = list(range(nxt, nxt + NTW)); nxt += NTW
    vXc = [nxt, nxt + 1]; nxt += 2
    vWc = list(range(nxt, nxt + NTW)); nxt += NTW
    vT = list(range(nxt, nxt + 8)); nxt += 8
    nxt = (nxt + 3) // 4 * 4
    FX = [nxt, nxt + 4 * MT]; nxt += 8 * MT
    FW = [nxt, nxt + 4 * NTW]; nxt += 8 * NTW
    ACC = nxt; nxt += 4 * MT * NTW
    PBI = nxt
    if bias_arg and not pre: nxt += 2 * NTW
    if l2pf or wpf:
        nxt = (nxt + 3) // 4 * 4
        PFD = nxt; PFV = nxt + 4; nxt += 5
    if splitk:
        PRT = nxt; nxt += 4 * MT * NTW
        PFL = nxt; PFA = nxt + 1; PPA = nxt + 2; nxt += 3
    nvgpr = nxt
    assert nvgpr <= 256
    t0, t1, t2, t3 = vT[0], vT[1], vT[2], vT[3]

    def acc(nt, mt):
        return ACC + 4 * (nt * MT + mt)

    def stamp(i):
        if 'stamp' in EXP:
            if 'rt' in EXP and i in (1, 6):
                a(f"s_memrealtime s[{60+2*i}:{61+2*i}]")
                a(f"s_memtime s[{62 if i == 1 else 70}+0:{63 if i == 1 else 71}]".replace("+0","")) if False else None
            else:
                a(f"s_memtime s[{60+2*i}:{61+2*i}]")
            if i >= 6: a("s_waitcnt lgkmcnt(0)")

    def stamp_out():
        if 'stamp' not in EXP: return
        a("s_waitcnt lgkmcnt(0)")
        srd(a, 80, 24, 200 * MB, 1 << 20)
        a("s_lshl_b32 s3, s2, 3")
        a("s_add_u32 s3, s3, s49")
        a("s_lshl_b32 s3, s3, 6")
        a("v_mov_b32 v2, s3")
        for i in range(8):
            a(f"v_mov_b32 v4, s{60+2*i}")
            a(f"v_mov_b32 v5, s{61+2*i}")
            a(f"buffer_store_dwordx2 v[4:5], v2, s[80:83], 0 offen offset:{8*i}")
            a("s_nop 1")

    def wfrag_addr_common():
        a(f"v_lshrrev_b32 {v(t1)}, 4, v1")
        a(f"v_bfe_u32 {v(t0)}, v1, 2, 2")
        a(f"v_lshl_add_u32 {v(t2)}, {v(t1)}, 3, {v(t0)}")
        if RB == 256:
            a(f"v_and_b32 {v(t3)}, 1, {v(t1)}")
            a(f"v_lshl_add_u32 {v(t3)}, {v(t3)}, 2, {v(t0)}")
        elif RB == 128:
            a(f"v_and_b32 {v(t3)}, 1, {v(t1)}")
            a(f"v_lshrrev_b32 {v(t0)}, 1, {v(t0)}")
            a(f"v_lshl_add_u32 {v(t3)}, {v(t3)}, 1, {v(t0)}")
        elif RB in (64, 448):
            a(f"v_and_b32 {v(t3)}, 1, {v(t1)}")
        else:
            a(f"v_mov_b32 {v(t3)}, 0")
        a(f"v_mul_u32_u24 {v(t2)}, {RB}, {v(t2)}")
        a(f"v_and_b32 {v(t0)}, 3, v1")
        a(f"v_lshl_add_u32 {v(t2)}, {v(t0)}, 3, {v(t2)}")
        a(f"v_add_u32 {v(t2)}, {ABYTES}, {v(t2)}")

    def wfrag_addr(dst):
        if RB == 448:
            a("s_mov_b32 s47, 0")
        elif PPR > 1:
            a(f"s_lshr_b32 s47, s46, {lg_ppr}")
            a(f"s_and_b32 s46, s46, {PPR-1}")
        else:
            a("s_mov_b32 s47, s46")
            a("s_mov_b32 s46, 0")
        a(f"s_mul_i32 s47, s47, {64*RB}")
        a(f"v_xor_b32 {v(t0)}, s46, {v(t3)}")
        a(f"v_lshl_add_u32 {v(t0)}, {v(t0)}, 5, {v(t2)}")
        a(f"v_add_u32 {v(dst)}, s47, {v(t0)}")

    kernel_header(a, name)
    end = a.newlabel("L_end")
    stamp(0)
    lab_loader = a.newlabel("L_loader")
    lab_store = a.newlabel("L_store")
    a(f"s_cmp_ge_u32 s2, {ntiles}")
    a(f"s_cbranch_scc1 {end}")
    a(f"s_load_dwordx2 s[24:25], s[0:1], {ARG['ws']}")
    a(f"s_load_dwordx2 s[58:59], s[0:1], {ARG[a_arg]}")
    a(f"s_load_dwordx2 s[26:27], s[0:1], {ARG[w_arg]}")
    a(f"s_load_dwordx2 s[34:35], s[0:1], {ARG[out_arg]}")
    if res_arg:
        a(f"s_load_dwordx2 s[36:37], s[0:1], {ARG[res_arg]}")
    if bias_arg:
        a(f"s_load_dwordx2 s[38:39], s[0:1], {ARG[bias_arg]}")
    assert ntiles == 256 and RA * RBN == (16 if splitk else 32) and NT_M % RA == 0 and NT_N % RBN == 0
    XB = NT_N // RBN
    a("s_and_b32 s3, s2, 7")
    a("s_lshr_b32 s46, s2, 3")
    if splitk:
        a("s_lshr_b32 s92, s46, 4")
        a("s_and_b32 s46, s46, 15")
        a("s_lshl_b32 s96, s3, 4")
        a("s_add_u32 s96, s96, s46")
        a("s_cmp_eq_u32 s92, 0")
        a(f"s_cselect_b32 s93, {NSLO}, {NSHI}")
        a("s_mov_b32 s94, 1")
    a(f"s_lshr_b32 s28, s3, {int(math.log2(XB))}")
    a(f"s_and_b32 s29, s3, {XB-1}")
    a(f"s_mul_i32 s28, s28, {RA}")
    a(f"s_mul_i32 s29, s29, {RBN}")
    a(f"s_lshr_b32 s3, s46, {int(math.log2(RBN))}")
    a("s_add_u32 s28, s28, s3")
    a(f"s_and_b32 s3, s46, {RBN-1}")
    a("s_add_u32 s29, s29, s3")
    a("v_and_b32 v1, 63, v0")
    a(f"v_lshrrev_b32 {v(vT[0])}, 6, v0")
    a("s_nop 0")
    a(f"v_readfirstlane_b32 s49, {v(vT[0])}")
    a("s_nop 3")
    a("s_and_b32 s30, s49, 3")
    a("s_lshr_b32 s44, s30, 1")
    a("s_and_b32 s45, s30, 1")

    def build_srds():
        a("s_waitcnt lgkmcnt(0)")
        srd(a, 4, 58, a_off, M * lda)
        srd(a, 8, 26, 0, K * N * 2)
        srd(a, 12, 34, out_off, M * ldo)
        if res_arg:
            srd(a, 16, 36, res_off, M * N * 2)
        if bias_arg:
            srd(a, 20, 38, 0, N * 2)
        if pre or stats_out:
            srd(a, 84, 24, WS_ST, S * 128)
        if pre:
            srd(a, 88, 24, WS_CS, 16 * N * 4)
        if splitk:
            srd(a, 84, 24, WS_PART, 128 * 65536)
            srd(a, 88, 24, WS_FLAG, 512)

    a("s_cmp_ge_u32 s49, 4")
    a(f"s_cbranch_scc1 {lab_loader}")

    a(f"v_and_b32 {v(t0)}, 15, v1")
    a("s_lshl_b32 s3, s44, 6")
    a(f"v_add_u32 {v(t0)}, s3, {v(t0)}")
    a(f"v_lshlrev_b32 {v(t0)}, 7, {v(t0)}")
    a(f"v_lshrrev_b32 {v(t1)}, 4, v1")
    a(f"v_bfe_u32 {v(t2)}, v1, 1, 3")
    a(f"v_xor_b32 {v(t3)}, {v(t1)}, {v(t2)}")
    a(f"v_lshl_add_u32 {v(vXb[0])}, {v(t3)}, 4, {v(t0)}")
    a(f"v_xor_b32 {v(t3)}, 4, {v(t3)}")
    a(f"v_lshl_add_u32 {v(vXb[1])}, {v(t3)}, 4, {v(t0)}")
    wfrag_addr_common()
    a(f"s_mul_i32 s3, s45, {NTW}")
    for nt in range(NTW):
        a(f"s_add_u32 s46, s3, {nt}")
        wfrag_addr(vWb[nt])
    for i in range(4 * MT * NTW):
        a(f"v_mov_b32 v{ACC+i}, 0")
    a("s_mov_b32 s42, 0")
    build_srds()
    if bias_arg and not pre:
        a(f"v_lshrrev_b32 {v(t0)}, 4, v1")
        a(f"v_lshlrev_b32 {v(t0)}, 3, {v(t0)}")
        a(f"s_mul_i32 s3, s29, {BN*2}")
        a(f"s_mul_i32 s46, s45, {BN}")
        a("s_add_u32 s3, s3, s46")
        for nt in range(NTW):
            a(f"buffer_load_dwordx2 {v(PBI+2*nt,2)}, {v(t0)}, s[20:23], s3 offen offset:{32*nt}")

    def set_cur():
        for kk in range(2):
            a(f"v_add_u32 {v(vXc[kk])}, s42, {v(vXb[kk])}")
        for nt in range(NTW):
            a(f"v_add_u32 {v(vWc[nt])}, s42, {v(vWb[nt])}")
        a(f"s_add_u32 s42, s42, {STAGE}")
        a(f"s_cmp_ge_u32 s42, {STAGE*NSTAGE}")
        a("s_cselect_b32 s42, 0, s42")

    def read_list(kk, f):
        if 'noreads' in EXP: return []
        L = []
        for nt in range(NTW):
            if nt < MT:
                L.append(f"ds_read_b128 {v(FX[f]+4*nt,4)}, {v(vXc[kk])} offset:{nt*2048}")
            for rd in range(2):
                L.append(f"ds_read_b64_tr_b16 {v(FW[f]+4*nt+2*rd,2)}, {v(vWc[nt])} offset:{kk*32*RB+rd*4*RB}")
        for mt in range(NTW, MT):
            L.append(f"ds_read_b128 {v(FX[f]+4*mt,4)}, {v(vXc[kk])} offset:{mt*2048}")
        return L

    def mfma_list(f):
        if 'nomfma' in EXP: return []
        L = []
        for nt in range(NTW):
            for mt in range(MT):
                L.append(f"v_mfma_f32_16x16x32_bf16 {v(acc(nt,mt),4)}, {v(FW[f]+4*nt,4)}, {v(FX[f]+4*mt,4)}, {v(acc(nt,mt),4)}")
        return L

    def reads(kk, f):
        for x in read_list(kk, f): a(x)

    def mfmas(f):
        for x in mfma_list(f): a(x)

    def inter(kk, fr, fm):
        R = read_list(kk, fr); Mm = mfma_list(fm)
        rpm = RPM if NTW <= 4 else 1
        ri = 0
        for i in range(len(Mm)):
            a(Mm[i])
            for _ in range(rpm):
                if ri < len(R): a(R[ri]); ri += 1
        while ri < len(R): a(R[ri]); ri += 1

    if wpf:
        a("s_lshl_b32 s3, s2, 2")
        a("s_add_u32 s3, s3, s30")
        for q, (arg, nbytes, hi) in enumerate(wpf):
            a(f"s_load_dwordx2 s[{94+2*q}:{95+2*q}], s[0:1], {ARG[arg]}")
            a(f"s_mul_i32 s{92+q}, s3, {nbytes//1024}")
        a("s_waitcnt lgkmcnt(0)")
        for q, (arg, nbytes, hi) in enumerate(wpf):
            assert nbytes % (1 << 20) == 0
            srd(a, 84 + 4 * q, 94 + 2 * q, 0, nbytes)
        a(f"v_lshlrev_b32 {v(PFV)}, 4, v1")
    if l2pf:
        NPA = RA * BM // 8
        NPW = BK * (RBN * BN * 2) // 1024
        WPR = RBN * BN * 2 // 1024
        assert NPA + NPW == 128 and WPR == 1
        lw = a.newlabel("L_pfw"); ld = a.newlabel("L_pfd")
        a("s_lshr_b32 s3, s2, 3")
        a("s_lshl_b32 s3, s3, 2")
        a("s_add_u32 s3, s3, s30")
        a(f"s_cmp_ge_u32 s3, {NPA}")
        a(f"s_cbranch_scc1 {lw}")
        a(f"s_lshr_b32 s46, s28, {int(math.log2(RA))}")
        a(f"s_mul_i32 s46, s46, {RA*BM}")
        a("s_lshl_b32 s3, s3, 3")
        a("s_add_u32 s3, s3, s46")
        a(f"v_lshrrev_b32 {v(PFV)}, 3, v1")
        a(f"v_add_u32 {v(PFV)}, s3, {v(PFV)}")
        a(f"v_mul_u32_u24 {v(PFV)}, {lda}, {v(PFV)}")
        a(f"v_and_b32 {v(t0)}, 7, v1")
        a(f"v_lshl_add_u32 {v(PFV)}, {v(t0)}, 4, {v(PFV)}")
        for i in range(4): a(f"s_mov_b32 s{84+i}, s{4+i}")
        a(f"s_mov_b32 s92, {l2pf*BK*2}")
        a(f"s_mov_b32 s93, {BK*2}")
        a(f"s_branch {ld}")
        a.label(lw)
        a(f"s_sub_u32 s3, s3, {NPA}")
        a(f"s_mul_i32 s3, s3, {N*2}")
        a(f"s_lshr_b32 s46, s29, {int(math.log2(RBN))}")
        a(f"s_mul_i32 s46, s46, {RBN*BN*2}")
        a("s_add_u32 s3, s3, s46")
        a(f"v_lshlrev_b32 {v(PFV)}, 4, v1")
        a(f"v_add_u32 {v(PFV)}, s3, {v(PFV)}")
        for i in range(4): a(f"s_mov_b32 s{84+i}, s{8+i}")
        a(f"s_mov_b32 s92, {l2pf*BK*N*2}")
        a(f"s_mov_b32 s93, {BK*N*2}")
        a.label(ld)
        a(f"s_mul_i32 s3, s93, {NSTAGE-1}")
        for j in range(NSTAGE - 1, l2pf):
            a(f"buffer_load_dwordx4 {v(PFD,4)}, {v(PFV)}, s[84:87], s3 offen")
            a("s_add_u32 s3, s3, s93")
    if splitk:
        a("s_xor_b32 s95, s92, 1")
        a(f"v_mov_b32 {v(PFL)}, 0")
        a("s_lshl_b32 s3, s96, 2")
        a(f"v_mov_b32 {v(PFA)}, s3")
        a("s_add_u32 s3, s3, s30")
        a("s_lshl_b32 s3, s3, 14")
        a(f"v_lshlrev_b32 {v(PPA)}, 4, v1")
        a(f"v_add_u32 {v(PPA)}, s3, {v(PPA)}")
    stamp(1)
    lab_cpass = a.newlabel("L_cpass")
    a.label(lab_cpass)
    a("s_barrier")
    stamp(2)
    set_cur()
    reads(0, 0)
    a("s_waitcnt lgkmcnt(0)")
    inter(1, 1, 0)
    a("s_waitcnt lgkmcnt(0)")
    if splitk: a("s_sub_u32 s48, s93, 1")
    else: a(f"s_mov_b32 s48, {NS-1}")
    loop = a.newlabel("L_cloop")
    a.label(loop)
    a("s_barrier")
    set_cur()
    inter(0, 0, 1)
    a("s_waitcnt lgkmcnt(0)")
    inter(1, 1, 0)
    if l2pf:
        a(f"buffer_load_dwordx4 {v(PFD,4)}, {v(PFV)}, s[84:87], s92 offen")
        a("s_add_u32 s92, s92, s93")
    if wpf:
        for q, (arg, nbytes, hi) in enumerate(wpf):
            n = nbytes >> 20
            lsk = a.newlabel("L_wpfs")
            a(f"s_sub_u32 s3, s48, {hi-n+1}")
            a(f"s_cmp_ge_u32 s3, {n}")
            a(f"s_cbranch_scc1 {lsk}")
            a(f"buffer_load_dwordx4 {v(PFD,4)}, {v(PFV)}, s[{84+4*q}:{87+4*q}], s{92+q} offen")
            a(f"s_add_u32 s{92+q}, s{92+q}, 1024")
            a.label(lsk)
    if splitk:
        cskip = a.newlabel("L_cskip"); cpoll = a.newlabel("L_cpoll")
        a("s_cmp_lg_u32 s95, 0")
        a(f"s_cbranch_scc1 {cskip}")
        a(f"v_readfirstlane_b32 s3, {v(PFL)}")
        a("s_nop 3")
        a("s_cmp_eq_u32 s3, 0")
        a(f"s_cbranch_scc1 {cpoll}")
        a("s_mov_b32 s95, 1")
        for t_ in range(MT * NTW):
            a(f"s_mov_b32 s3, {1024*t_}")
            a(f"buffer_load_dwordx4 {v(PRT+4*t_,4)}, {v(PPA)}, s[84:87], s3 offen")
        a(f"s_branch {cskip}")
        a.label(cpoll)
        if 'forcefb' not in EXP: a(f"buffer_load_dword {v(PFL)}, {v(PFA)}, s[88:91], 0 offen sc0 sc1")
        a.label(cskip)
    a("s_waitcnt lgkmcnt(0)")
    a("s_sub_u32 s48, s48, 1")
    a("s_cmp_lg_u32 s48, 0")
    a(f"s_cbranch_scc1 {loop}")
    stamp(3)
    mfmas(1)
    if ln and not pre:
        a("s_barrier")
    if splitk:
        lab_hi = a.newlabel("L_hi"); lab_epi = a.newlabel("L_epi"); lab_fb = a.newlabel("L_fb")
        a("s_cmp_lg_u32 s92, 0")
        a(f"s_cbranch_scc1 {lab_hi}")
        a("s_nop 7")
        for t_ in range(MT * NTW):
            a(f"s_mov_b32 s3, {1024*t_}")
            a(f"buffer_store_dwordx4 {v(ACC+4*t_,4)}, {v(PPA)}, s[84:87], s3 offen sc0 sc1")
        a("s_waitcnt vmcnt(0)")
        a("s_barrier")
        a("s_cmp_lg_u32 s30, 0")
        a(f"s_cbranch_scc1 {end}")
        a(f"v_mov_b32 {v(t1)}, 1")
        a("s_mov_b64 exec, 1")
        a(f"buffer_store_dword {v(t1)}, {v(PFA)}, s[88:91], 0 offen sc0 sc1")
        a(f"s_branch {end}")
        a.label(lab_hi)
        a("s_lshl_b32 s3, s30, 2")
        a(f"s_add_u32 s3, s3, {DONE}")
        a(f"v_mov_b32 {v(t0)}, s3")
        a(f"v_mov_b32 {v(t1)}, s95")
        a(f"ds_write_b32 {v(t0)}, {v(t1)}")
        a("s_waitcnt lgkmcnt(0)")
        a("s_barrier")
        a("s_cmp_eq_u32 s94, 2")
        a(f"s_cbranch_scc1 {lab_epi}")
        a(f"v_mov_b32 {v(t1)}, {DONE}")
        a(f"ds_read_b128 {v(FX[0],4)}, {v(t1)}")
        a("s_waitcnt lgkmcnt(0)")
        a(f"v_and_b32 {v(FX[0])}, {v(FX[0])}, {v(FX[0]+1)}")
        a(f"v_and_b32 {v(FX[0]+2)}, {v(FX[0]+2)}, {v(FX[0]+3)}")
        a(f"v_and_b32 {v(FX[0])}, {v(FX[0])}, {v(FX[0]+2)}")
        a("s_nop 0")
        a(f"v_readfirstlane_b32 s3, {v(FX[0])}")
        a("s_nop 3")
        a("s_cmp_eq_u32 s3, 1")
        a(f"s_cbranch_scc0 {lab_fb}")
        a("s_waitcnt vmcnt(0)")
        for t_ in range(MT * NTW):
            for j in range(2):
                a(f"v_pk_add_f32 {v(ACC+4*t_+2*j,2)}, {v(ACC+4*t_+2*j,2)}, {v(PRT+4*t_+2*j,2)}")
        a(f"s_branch {lab_epi}")
        a.label(lab_fb)
        a("s_mov_b32 s94, 2")
        a("s_mov_b32 s95, 1")
        a(f"s_mov_b32 s93, {NSLO}")
        a("s_mov_b32 s42, 0")
        a("s_barrier")
        a(f"s_branch {lab_cpass}")
        a.label(lab_epi)
    RT = FX[0]; CS = RT + 8; BR = CS + 4 * NTW; BF = BR + 2 * NTW; GE = BF + 4 * NTW
    assert GE + 10 <= ACC
    a(f"v_and_b32 {v(t2)}, 15, v1")
    a("s_lshl_b32 s3, s44, 6")
    a(f"v_add_u32 {v(t2)}, s3, {v(t2)}")
    a(f"v_lshrrev_b32 {v(t3)}, 4, v1")
    a(f"s_mul_i32 s3, s45, {NTW*4}")
    a(f"v_add_u32 {v(t3)}, s3, {v(t3)}")
    if ln:
        a(f"v_lshlrev_b32 {v(t0)}, 3, {v(t2)}")
        a(f"v_add_u32 {v(t0)}, {RTAB}, {v(t0)}")
        for mt in range(MT):
            a(f"ds_read_b64 {v(RT+2*mt,2)}, {v(t0)} offset:{128*mt}")
        a(f"v_lshlrev_b32 {v(t0)}, 4, {v(t3)}")
        a(f"v_add_u32 {v(t0)}, {CTAB}, {v(t0)}")
        for nt in range(NTW):
            a(f"ds_read_b128 {v(CS+4*nt,4)}, {v(t0)} offset:{64*nt}")
    if bias_arg and pre:
        a(f"v_lshlrev_b32 {v(t0)}, 3, {v(t3)}")
        a(f"v_add_u32 {v(t0)}, {EPI}, {v(t0)}")
        for nt in range(NTW):
            a(f"ds_read_b64 {v(BR+2*nt,2)}, {v(t0)} offset:{32*nt}")
    vc = vT[0]
    a(f"v_mul_u32_u24 {v(t2)}, {CROW}, {v(t2)}")
    a(f"v_lshl_add_u32 {v(vc)}, {v(t3)}, 3, {v(t2)}")
    if CBASE: a(f"v_add_u32 {v(vc)}, {CBASE}, {v(vc)}")
    if epi == 'gelu':
        c2 = 2 * math.log2(math.e)
        k1 = struct.unpack("<I", struct.pack("<f", 0.7978845608 * c2))[0]
        k3 = struct.unpack("<I", struct.pack("<f", 0.7978845608 * 0.044715 * c2))[0]
        a(f"s_mov_b32 s52, {k3}"); a(f"s_mov_b32 s53, {k3}")
        a(f"v_mov_b32 {v(GE+8)}, {k1}"); a(f"v_mov_b32 {v(GE+9)}, {k1}")
        a("s_mov_b32 s56, 1.0"); a("s_mov_b32 s57, 1.0")
    a("s_waitcnt vmcnt(0) lgkmcnt(0)" if (bias_arg and not pre) else "s_waitcnt lgkmcnt(0)")
    a("s_nop 7")
    if bias_arg:
        bsrc = BR if pre else PBI
        for nt in range(NTW):
            for j in range(2):
                a(f"v_lshlrev_b32 {v(BF+4*nt+2*j)}, 16, {v(bsrc+2*nt+j)}")
                a(f"v_and_b32 {v(BF+4*nt+2*j+1)}, 0xffff0000, {v(bsrc+2*nt+j)}")
    for nt in range(NTW):
        for mp in range(0, MT, 2):
            c0 = acc(nt, mp)
            for q in range(2):
                mt = mp + q
                for j in range(2):
                    cc = v(c0 + 4 * q + 2 * j, 2)
                    tt = v(GE + 4 * q + 2 * j, 2)
                    if ln:
                        if bias_arg:
                            a(f"v_pk_fma_f32 {tt}, {v(CS+4*nt+2*j,2)}, {v(RT+2*mt,2)}, {v(BF+4*nt+2*j,2)} op_sel:[0,1,0] op_sel_hi:[1,1,1]")
                        else:
                            a(f"v_pk_mul_f32 {tt}, {v(CS+4*nt+2*j,2)}, {v(RT+2*mt,2)} op_sel:[0,1] op_sel_hi:[1,1]")
                    elif bias_arg:
                        a(f"v_pk_add_f32 {cc}, {cc}, {v(BF+4*nt+2*j,2)}")
            if ln:
                for q in range(2):
                    mt = mp + q
                    for j in range(2):
                        cc = v(c0 + 4 * q + 2 * j, 2)
                        tt = v(GE + 4 * q + 2 * j, 2)
                        a(f"v_pk_fma_f32 {cc}, {cc}, {v(RT+2*mt,2)}, {tt} op_sel:[0,0,0] op_sel_hi:[1,0,1]")
            if epi == 'gelu':
                for j in range(4):
                    a(f"v_pk_mul_f32 {v(GE+2*j,2)}, {v(c0+2*j,2)}, {v(c0+2*j,2)}")
                for j in range(4):
                    a(f"v_pk_fma_f32 {v(GE+2*j,2)}, {v(GE+2*j,2)}, s[52:53], {v(GE+8,2)}")
                for j in range(4):
                    a(f"v_pk_mul_f32 {v(GE+2*j,2)}, {v(GE+2*j,2)}, {v(c0+2*j,2)}")
                for r in range(8):
                    a(f"v_exp_f32 {v(GE+r)}, {v(GE+r)}")
                a("s_nop 0")
                for j in range(4):
                    a(f"v_pk_add_f32 {v(GE+2*j,2)}, {v(GE+2*j,2)}, s[56:57]")
                for r in range(8):
                    a(f"v_rcp_f32 {v(GE+r)}, {v(GE+r)}")
                a("s_nop 0")
                for j in range(4):
                    cc = v(c0 + 2 * j, 2)
                    a(f"v_pk_fma_f32 {cc}, {cc}, {v(GE+2*j,2)}, {cc} neg_lo:[1,0,0] neg_hi:[1,0,0]")
            for j in range(4):
                a(f"v_cvt_pk_bf16_f32 {v(c0+j)}, {v(c0+2*j)}, {v(c0+2*j+1)}")
            for q in range(2):
                a(f"ds_write_b64 {v(vc)}, {v(c0+2*q,2)} offset:{(mp+q)*16*CROW + nt*32}")
    a("s_waitcnt lgkmcnt(0)")
    stamp(4)
    a("s_barrier")
    a(f"s_branch {lab_store}")

    a.label(lab_loader)
    if 'noprio' not in EXP: a("s_setprio 2")
    NPL = (BN // 16 + 3) // 4
    LSA = 40
    LCW = 44
    LSC = 48; LCC = 52
    LONE = 56
    LST = 60
    LMS = 132
    LCS = 68
    LSD = 84
    LWD = 100
    assert vT[7] < 40
    a(f"s_mul_i32 s3, s30, {PA*8}")
    a(f"v_lshrrev_b32 {v(t0)}, 3, v1")
    a(f"v_add_u32 {v(t0)}, s3, {v(t0)}")
    a(f"s_mul_i32 s3, s28, {BM}")
    for i in range(PA):
        a(f"v_add_u32 {v(t1)}, {8*i}, {v(t0)}")
        a(f"v_lshrrev_b32 {v(t2)}, 1, {v(t1)}")
        a(f"v_and_b32 {v(t2)}, 7, {v(t2)}")
        a(f"v_and_b32 {v(t3)}, 7, v1")
        a(f"v_xor_b32 {v(t2)}, {v(t2)}, {v(t3)}")
        a(f"v_add_u32 {v(t1)}, s3, {v(t1)}")
        a(f"v_mul_u32_u24 {v(t1)}, {lda}, {v(t1)}")
        a(f"v_lshl_add_u32 {v(vA[i])}, {v(t2)}, 4, {v(t1)}")
    a(f"s_mul_i32 s3, s29, {BN*2}")
    if RB == 448:
        a(f"s_mov_b32 s47, {((1 << 32) + 27) // 28}")
        for i in range(PB):
            a(f"s_mul_i32 s46, s30, {PB*64}")
            a(f"s_add_u32 s46, s46, {i*64}")
            a(f"v_add_u32 {v(t1)}, s46, v1")
            a(f"v_mul_hi_u32 {v(t0)}, {v(t1)}, s47")
            a(f"v_mul_u32_u24 {v(t2)}, 28, {v(t0)}")
            a(f"v_sub_u32 {v(t1)}, {v(t1)}, {v(t2)}")
            a(f"v_bfe_u32 {v(t2)}, {v(t0)}, 3, 1")
            a(f"v_lshlrev_b32 {v(t2)}, 1, {v(t2)}")
            a(f"v_xor_b32 {v(t1)}, {v(t1)}, {v(t2)}")
            a(f"v_mul_u32_u24 {v(t0)}, {N*2}, {v(t0)}")
            a(f"v_lshl_add_u32 {v(t0)}, {v(t1)}, 4, {v(t0)}")
            a(f"v_add_u32 {v(vB[i])}, s3, {v(t0)}")
    else:
      CPR = RB // 16
      lg_cpr = int(math.log2(CPR))
      RPP = 1024 // RB
      PPB = RB // 16
      lg_ppb = int(math.log2(PPB))
      for i in range(PB):
        a(f"s_mul_i32 s46, s30, {PB}")
        a(f"s_add_u32 s46, s46, {i}")
        a(f"s_lshr_b32 s47, s46, {lg_ppb}")
        a(f"s_and_b32 s46, s46, {PPB-1}")
        a(f"s_mul_i32 s46, s46, {RPP}")
        a(f"s_mul_i32 s47, s47, {RB}")
        a("s_add_u32 s47, s47, s3")
        a(f"v_lshrrev_b32 {v(t0)}, {lg_cpr}, v1")
        a(f"v_add_u32 {v(t0)}, s46, {v(t0)}")
        a(f"v_and_b32 {v(t1)}, {CPR-1}, v1")
        if RB == 256:
            a(f"v_and_b32 {v(t2)}, 3, {v(t0)}")
            a(f"v_bfe_u32 {v(t3)}, {v(t0)}, 3, 1")
            a(f"v_lshl_add_u32 {v(t2)}, {v(t3)}, 2, {v(t2)}")
        elif RB == 128:
            a(f"v_bfe_u32 {v(t2)}, {v(t0)}, 1, 1")
            a(f"v_bfe_u32 {v(t3)}, {v(t0)}, 3, 1")
            a(f"v_lshl_add_u32 {v(t2)}, {v(t3)}, 1, {v(t2)}")
        elif RB == 64:
            a(f"v_bfe_u32 {v(t2)}, {v(t0)}, 3, 1")
        else:
            a(f"v_mov_b32 {v(t2)}, 0")
        a(f"v_lshlrev_b32 {v(t2)}, 1, {v(t2)}")
        a(f"v_xor_b32 {v(t1)}, {v(t1)}, {v(t2)}")
        a(f"v_mul_u32_u24 {v(t0)}, {N*2}, {v(t0)}")
        a(f"v_lshl_add_u32 {v(t0)}, {v(t1)}, 4, {v(t0)}")
        a(f"v_add_u32 {v(vB[i])}, s47, {v(t0)}")
    a(f"s_mul_i32 s31, s30, {PA*1024}")
    a(f"s_mul_i32 s32, s30, {PB*1024}")
    a(f"s_add_u32 s32, s32, {ABYTES}")
    a("s_mov_b32 s40, 0")
    a("s_mov_b32 s41, 0")
    a("s_mov_b32 s43, 0")
    a("s_mov_b32 s42, 0")
    build_srds()
    if zero_flags:
        lz = a.newlabel("L_nz")
        a("s_cmp_lg_u32 s2, 0")
        a(f"s_cbranch_scc1 {lz}")
        srd(a, 92, 24, WS_FLAG, 512)
        a(f"v_lshlrev_b32 {v(t0)}, 3, v1")
        a("v_mov_b32 v44, 0")
        a("v_mov_b32 v45, 0")
        a(f"buffer_store_dwordx2 v[44:45], {v(t0)}, s[92:95], 0 offen")
        a.label(lz)
    if splitk:
        a(f"s_mul_i32 s40, s92, {NSLO*BK*2}")
        a(f"s_mul_i32 s41, s92, {NSLO*BK*N*2}")
        lab_lpass = a.newlabel("L_lpass")
        a.label(lab_lpass)

    def dma():
        if 'nodma' in EXP: return
        a("s_add_u32 s33, s43, s31")
        for i in range(PA):
            a(f"s_add_u32 m0, s33, {i*1024}")
            a("s_nop 0")
            a(f"buffer_load_dwordx4 {v(vA[i])}, s[4:7], s40 offen lds")
        a("s_add_u32 s33, s43, s32")
        for i in range(PB):
            a(f"s_add_u32 m0, s33, {i*1024}")
            a("s_nop 0")
            a(f"buffer_load_dwordx4 {v(vB[i])}, s[8:11], s41 offen lds")
        a(f"s_add_u32 s40, s40, {BK*2}")
        a(f"s_add_u32 s41, s41, {BK*N*2}")
        a(f"s_add_u32 s43, s43, {STAGE}")
        a(f"s_cmp_ge_u32 s43, {STAGE*NSTAGE}")
        a("s_cselect_b32 s43, 0, s43")

    stamp(1)
    if pre:
        a(f"v_lshrrev_b32 {v(LSA)}, 1, v1")
        a("s_lshl_b32 s3, s30, 5")
        a(f"v_add_u32 {v(LSA)}, s3, {v(LSA)}")
        a(f"s_mul_i32 s3, s28, {BM}")
        a(f"v_add_u32 {v(t0)}, s3, {v(LSA)}")
        a(f"v_lshlrev_b32 {v(t0)}, 7, {v(t0)}")
        a(f"v_and_b32 {v(t1)}, 1, v1")
        a(f"v_lshl_add_u32 {v(t0)}, {v(t1)}, 6, {v(t0)}")
        for i in range(4):
            a(f"buffer_load_dwordx4 {v(LSD+4*i,4)}, {v(t0)}, s[84:87], 0 offen offset:{16*i}")
    if st_bias:
        a(f"v_lshlrev_b32 {v(t0)}, 4, v1")
        a(f"s_mul_i32 s3, s29, {BN*2}")
        a(f"s_mov_b32 m0, {EPI}")
        a("s_nop 0")
        a(f"buffer_load_dwordx4 {v(t0)}, s[20:23], s3 offen lds")
        a(f"s_mul_i32 s3, s29, {BN*4}")
        a(f"s_mul_i32 s46, s30, {4*N*4}")
        a("s_add_u32 s3, s3, s46")
        for g_ in range(4):
            a(f"buffer_load_dwordx4 {v(LWD+4*g_,4)}, {v(t0)}, s[88:91], s3 offen")
            a(f"s_add_u32 s3, s3, {N*4}")
    for _ in range(NSTAGE - 1):
        dma()
    stamp(2)
    if ln and not pre:
        wfrag_addr_common()
        for i in range(NPL):
            a(f"s_mul_i32 s46, s30, {NPL}")
            a(f"s_add_u32 s46, s46, {i}")
            a(f"s_min_u32 s46, s46, {BN//16-1}")
            wfrag_addr(LCW + i)
        for i in range(4):
            a(f"v_mov_b32 {v(LONE+i)}, 0x3f803f80")
        for i in range(16):
            a(f"v_mov_b32 {v(LMS+i)}, 0")
        a(f"v_and_b32 {v(t0)}, 15, v1")
        a("s_lshl_b32 s3, s30, 5")
        a(f"v_add_u32 {v(t0)}, s3, {v(t0)}")
        a(f"v_lshlrev_b32 {v(t0)}, 7, {v(t0)}")
        a(f"v_lshrrev_b32 {v(t1)}, 4, v1")
        a(f"v_bfe_u32 {v(t2)}, v1, 1, 3")
        a(f"v_xor_b32 {v(t3)}, {v(t1)}, {v(t2)}")
        a(f"v_lshl_add_u32 {v(LSA)}, {v(t3)}, 4, {v(t0)}")
        a(f"v_xor_b32 {v(t3)}, 4, {v(t3)}")
        a(f"v_lshl_add_u32 {v(LSA+1)}, {v(t3)}, 4, {v(t0)}")
        for i in range(4 * NPL):
            a(f"v_mov_b32 {v(LCS+i)}, 0")

    def stats_reads():
        for i in range(2):
            a(f"v_add_u32 {v(LSC+i)}, s42, {v(LSA+i)}")
        for i in range(NPL):
            a(f"v_add_u32 {v(LCC+i)}, s42, {v(LCW+i)}")
        a(f"s_add_u32 s42, s42, {STAGE}")
        a(f"s_cmp_ge_u32 s42, {STAGE*NSTAGE}")
        a("s_cselect_b32 s42, 0, s42")
        for q in range(2):
            for kk in range(2):
                a(f"ds_read_b128 {v(LSD+8*q+4*kk,4)}, {v(LSC+kk)} offset:{2048*q}")
        for i in range(NPL):
            for kk in range(2):
                for rd in range(2):
                    a(f"ds_read_b64_tr_b16 {v(LWD+8*i+4*kk+2*rd,2)}, {v(LCC+i)} offset:{kk*32*RB+rd*4*RB}")

    def stats_math():
        a("s_waitcnt lgkmcnt(0)")
        for i in range(NPL):
            for kk in range(2):
                a(f"v_mfma_f32_16x16x32_bf16 {v(LCS+4*i,4)}, {v(LWD+8*i+4*kk,4)}, {v(LONE,4)}, {v(LCS+4*i,4)}")
        for kk in range(2):
            for q in range(2):
                d = v(LSD + 8 * q + 4 * kk, 4)
                a(f"v_mfma_f32_16x16x32_bf16 {v(LMS+8*q,4)}, {d}, {v(LONE,4)}, {v(LMS+8*q,4)}")
                a(f"v_mfma_f32_16x16x32_bf16 {v(LMS+8*q+4,4)}, {d}, {d}, {v(LMS+8*q+4,4)}")

    nloop = NS - NSTAGE + 1
    if splitk: a(f"s_sub_u32 s48, s93, {NSTAGE-1}")
    else: a(f"s_mov_b32 s48, {nloop}")
    lloop = a.newlabel("L_lloop")
    a.label(lloop)
    a(f"s_waitcnt vmcnt({(NSTAGE-2)*P})")
    a("s_barrier")
    if ln and not pre: stats_reads()
    dma()
    if ln and not pre: stats_math()
    a("s_sub_u32 s48, s48, 1")
    a("s_cmp_lg_u32 s48, 0")
    a(f"s_cbranch_scc1 {lloop}")
    if pre:
        for i in range(1, 8):
            a(f"v_add_f32 {v(LSD)}, {v(LSD)}, {v(LSD+2*i)}")
            a(f"v_add_f32 {v(LSD+1)}, {v(LSD+1)}, {v(LSD+2*i+1)}")
        a("s_nop 1")
        for k_ in range(2):
            a(f"v_add_f32_dpp {v(LST+k_)}, {v(LSD+k_)}, {v(LSD+k_)} quad_perm:[1,0,3,2] row_mask:0xf bank_mask:0xf")
        sm, sq, r1, r2 = LST, LST + 1, LSD, LSD + 1
        a(f"v_mul_f32 {v(sm)}, {hex_f32(1.0/K)}, {v(sm)}")
        a(f"v_mul_f32 {v(sq)}, {hex_f32(1.0/K)}, {v(sq)}")
        a(f"v_fma_f32 {v(sq)}, -{v(sm)}, {v(sm)}, {v(sq)}")
        a(f"v_max_f32 {v(sq)}, 0, {v(sq)}")
        a(f"v_add_f32 {v(r1)}, {hex_f32(1e-5)}, {v(sq)}")
        a(f"v_rsq_f32 {v(r1)}, {v(r1)}")
        a("s_nop 0")
        if ln == 'double':
            a(f"v_mul_f32 {v(r2)}, {v(r1)}, {v(r1)}")
            a(f"v_mul_f32 {v(r2)}, {v(r2)}, {v(sq)}")
            a(f"v_add_f32 {v(r2)}, {hex_f32(1e-5)}, {v(r2)}")
            a(f"v_rsq_f32 {v(r2)}, {v(r2)}")
            a("s_nop 0")
            a(f"v_mul_f32 {v(r1)}, {v(r1)}, {v(r2)}")
        a(f"v_mul_f32 {v(r2)}, {v(sm)}, {v(r1)}")
        a(f"v_sub_f32 {v(r2)}, 0, {v(r2)}")
        a(f"v_lshlrev_b32 {v(LSC)}, 3, {v(LSA)}")
        a(f"v_add_u32 {v(LSC)}, {RTAB}, {v(LSC)}")
        a(f"ds_write_b64 {v(LSC)}, {v(LSD,2)}")
        for g_ in range(1, 4):
            for j in range(2):
                a(f"v_pk_add_f32 {v(LWD+2*j,2)}, {v(LWD+2*j,2)}, {v(LWD+4*g_+2*j,2)}")
        a(f"v_lshlrev_b32 {v(t0)}, 4, v1")
        a(f"v_add_u32 {v(t0)}, {EPI+3072}, {v(t0)}")
        a("s_lshl_b32 s3, s30, 10")
        a(f"v_add_u32 {v(t1)}, s3, {v(t0)}")
        a(f"ds_write_b128 {v(t1)}, {v(LWD,4)}")
        a("s_waitcnt lgkmcnt(0)")
    if st_res:
        npc = BM * BN * 2 // 4096
        rpp = 1024 // (BN * 2)
        lpr = BN * 2 // 16
        a(f"v_lshrrev_b32 {v(t0)}, {int(math.log2(lpr))}, v1")
        a(f"s_mul_i32 s3, s30, {npc*rpp}")
        a(f"s_mul_i32 s46, s28, {BM}")
        a("s_add_u32 s3, s3, s46")
        a(f"v_add_u32 {v(t0)}, s3, {v(t0)}")
        a(f"v_mul_u32_u24 {v(t0)}, {N*2}, {v(t0)}")
        a(f"v_and_b32 {v(t1)}, {lpr-1}, v1")
        a(f"v_lshl_add_u32 {v(t0)}, {v(t1)}, 4, {v(t0)}")
        a(f"s_mul_i32 s3, s29, {BN*2}")
        a(f"v_add_u32 {v(t0)}, s3, {v(t0)}")
        a(f"s_mul_i32 s33, s30, {npc*1024}")
        for i in range(npc):
            a(f"s_add_u32 m0, s33, {EPI + i*1024}")
            a(f"s_mov_b32 s3, {i*rpp*N*2}")
            a(f"buffer_load_dwordx4 {v(t0)}, s[16:19], s3 offen lds")
    for j in range(NS - NSTAGE + 1, NS):
        a(f"s_waitcnt vmcnt({(NS-1-j)*P + NEX})")
        a("s_barrier")
        if pre and j == NS - NSTAGE + 1:
            assert NSTAGE >= 3
            lcs = a.newlabel("L_lcs")
            a("s_cmp_lg_u32 s30, 0")
            a(f"s_cbranch_scc1 {lcs}")
            for g_ in range(4):
                a(f"ds_read_b128 {v(LWD+4*g_,4)}, {v(t0)} offset:{1024*g_}")
            a("s_waitcnt lgkmcnt(0)")
            for g_ in range(1, 4):
                for j_ in range(2):
                    a(f"v_pk_add_f32 {v(LWD+2*j_,2)}, {v(LWD+2*j_,2)}, {v(LWD+4*g_+2*j_,2)}")
            a(f"v_subrev_u32 {v(t0)}, {EPI+3072-CTAB}, {v(t0)}")
            a(f"ds_write_b128 {v(t0)}, {v(LWD,4)}")
            a("s_waitcnt lgkmcnt(0)")
            a.label(lcs)
        if ln and not pre:
            stats_reads()
            stats_math()
    stamp(3)
    if ln and not pre:
        a("s_nop 7")
        a(f"v_and_b32 {v(t0)}, 3, v1")
        for r in range(1, 4):
            a(f"v_cmp_eq_u32 s[{48+2*r}:{49+2*r}], {r}, {v(t0)}")
        X0 = LSD
        for i in range(2):
            sm, sq = LST + 2 * i, LST + 2 * i + 1
            r1, r2 = X0 + 2 * i, X0 + 2 * i + 1
            for dst, src in ((sm, LMS + 8 * i), (sq, LMS + 8 * i + 4)):
                a(f"v_cndmask_b32 {v(dst)}, {v(src)}, {v(src+1)}, s[50:51]")
                a(f"v_cndmask_b32 {v(dst)}, {v(dst)}, {v(src+2)}, s[52:53]")
                a(f"v_cndmask_b32 {v(dst)}, {v(dst)}, {v(src+3)}, s[54:55]")
            a(f"v_mul_f32 {v(sm)}, {hex_f32(1.0/K)}, {v(sm)}")
            a(f"v_mul_f32 {v(sq)}, {hex_f32(1.0/K)}, {v(sq)}")
            a(f"v_fma_f32 {v(sq)}, -{v(sm)}, {v(sm)}, {v(sq)}")
            a(f"v_max_f32 {v(sq)}, 0, {v(sq)}")
            a(f"v_add_f32 {v(r1)}, {hex_f32(1e-5)}, {v(sq)}")
            a(f"v_rsq_f32 {v(r1)}, {v(r1)}")
            a("s_nop 0")
            assert ln == 'single'
            a(f"v_mul_f32 {v(r2)}, {v(sm)}, {v(r1)}")
            a(f"v_sub_f32 {v(r2)}, 0, {v(r2)}")
        a(f"v_lshrrev_b32 {v(LSC)}, 7, {v(LSA)}")
        a(f"v_lshlrev_b32 {v(LSC)}, 3, {v(LSC)}")
        a(f"v_add_u32 {v(LSC)}, {RTAB}, {v(LSC)}")
        a(f"v_lshrrev_b32 {v(t0)}, 4, v1")
        a(f"v_lshlrev_b32 {v(t0)}, 4, {v(t0)}")
        for i in range(NPL):
            a(f"s_mul_i32 s46, s30, {NPL}")
            a(f"s_add_u32 s46, s46, {i}")
            a(f"s_min_u32 s46, s46, {BN//16-1}")
            a("s_lshl_b32 s46, s46, 6")
            a(f"s_add_u32 s46, s46, {CTAB}")
            a(f"v_add_u32 {v(LCC+i)}, s46, {v(t0)}")
    if ln and not pre:
        a("s_mov_b32 exec_lo, 0x00f0000f")
        a("s_mov_b32 exec_hi, 0xf0000f00")
        for i in range(2):
            a(f"ds_write_b64 {v(LSC)}, {v(LSD+2*i,2)} offset:{128*i}")
        a("s_mov_b64 exec, -1")
        for i in range(NPL):
            a(f"ds_write_b128 {v(LCC+i)}, {v(LCS+4*i,4)}")
        a("s_waitcnt lgkmcnt(0)")
        a("s_barrier")
    if NEX: a("s_waitcnt vmcnt(0)")
    if splitk:
        lhi = a.newlabel("L_lhi"); lepi = a.newlabel("L_lepi")
        a("s_cmp_lg_u32 s92, 0")
        a(f"s_cbranch_scc1 {lhi}")
        a("s_barrier")
        a(f"s_branch {end}")
        a.label(lhi)
        a("s_barrier")
        a("s_cmp_eq_u32 s94, 2")
        a(f"s_cbranch_scc1 {lepi}")
        a(f"v_mov_b32 {v(t1)}, {DONE}")
        a(f"ds_read_b128 {v(44,4)}, {v(t1)}")
        a("s_waitcnt lgkmcnt(0)")
        a("v_and_b32 v44, v44, v45")
        a("v_and_b32 v46, v46, v47")
        a("v_and_b32 v44, v44, v46")
        a("s_nop 0")
        a("v_readfirstlane_b32 s3, v44")
        a("s_nop 3")
        a("s_cmp_eq_u32 s3, 1")
        a(f"s_cbranch_scc1 {lepi}")
        a("s_mov_b32 s94, 2")
        a(f"s_mov_b32 s93, {NSLO}")
        a("s_mov_b32 s40, 0"); a("s_mov_b32 s41, 0"); a("s_mov_b32 s43, 0")
        a("s_barrier")
        a(f"s_branch {lab_lpass}")
        a.label(lepi)
    stamp(4)
    a("s_barrier")

    a.label(lab_store)
    CPRW = BN // 8
    NIT = BM * CPRW // 512
    assert NIT * 512 == BM * CPRW
    magic = ((1 << 32) + CPRW - 1) // CPRW
    a(f"s_mov_b32 s46, {magic}")
    a(f"s_mul_i32 s3, s49, {NIT*64}")
    a(f"v_add_u32 {v(t0)}, s3, v1")
    a(f"s_mul_i32 s3, s28, {BM}")
    a(f"s_mul_i32 s47, s29, {BN*2}")
    R0 = (vT[7] + 4) // 4 * 4
    RR = R0 + 4 * NIT
    OFF = RR + 4 * NIT
    SOF = OFF + NIT
    GT = (SOF + NIT + 3) // 4 * 4
    assert GT + 10 <= 256
    for it in range(NIT):
        a(f"v_add_u32 {v(t1)}, {it*64}, {v(t0)}")
        a(f"v_mul_hi_u32 {v(t2)}, {v(t1)}, s46")
        a(f"v_mul_u32_u24 {v(t3)}, {CPRW}, {v(t2)}")
        a(f"v_sub_u32 {v(t3)}, {v(t1)}, {v(t3)}")
        a(f"v_mul_u32_u24 {v(t1)}, {CROW}, {v(t2)}")
        a(f"v_lshl_add_u32 {v(t1)}, {v(t3)}, 4, {v(t1)}")
        if CBASE: a(f"v_add_u32 {v(t1)}, {CBASE}, {v(t1)}")
        a(f"ds_read_b128 {v(R0+4*it,4)}, {v(t1)}")
        a(f"v_add_u32 {v(t2)}, s3, {v(t2)}")
        if stats_out:
            a(f"v_lshlrev_b32 {v(SOF+it)}, 7, {v(t2)}")
            a(f"v_lshl_add_u32 {v(SOF+it)}, s29, 3, {v(SOF+it)}")
        a(f"v_mul_u32_u24 {v(t2)}, {ldo}, {v(t2)}")
        a(f"v_lshlrev_b32 {v(t3)}, 4, {v(t3)}")
        a(f"v_add_u32 {v(t3)}, s47, {v(t3)}")
        a(f"v_add_u32 {v(OFF+it)}, {v(t3)}, {v(t2)}")
        if st_res:
            a(f"v_lshlrev_b32 {v(t1)}, 4, {v(t0)}")
            a(f"v_add_u32 {v(t1)}, {EPI + it*1024}, {v(t1)}")
            a(f"ds_read_b128 {v(RR+4*it,4)}, {v(t1)}")
        elif res_arg:
            a(f"buffer_load_dwordx4 {v(RR+4*it,4)}, {v(OFF+it)}, s[16:19], 0 offen")
    a("s_waitcnt vmcnt(0) lgkmcnt(0)" if (res_arg and not st_res) else "s_waitcnt lgkmcnt(0)")
    stamp(5)
    for it in range(NIT):
        c0 = R0 + 4 * it
        if res_arg:
            for j in range(4):
                d = c0 + j
                r = RR + 4 * it + j
                a(f"v_lshlrev_b32 {v(GT)}, 16, {v(d)}")
                a(f"v_lshlrev_b32 {v(GT+1)}, 16, {v(r)}")
                a(f"v_and_b32 {v(GT+2)}, 0xffff0000, {v(d)}")
                a(f"v_and_b32 {v(GT+3)}, 0xffff0000, {v(r)}")
                a(f"v_add_f32 {v(GT)}, {v(GT)}, {v(GT+1)}")
                a(f"v_add_f32 {v(GT+2)}, {v(GT+2)}, {v(GT+3)}")
                a(f"v_cvt_pk_bf16_f32 {v(d)}, {v(GT)}, {v(GT+2)}")
        a(f"buffer_store_dwordx4 {v(c0,4)}, {v(OFF+it)}, s[12:15], 0 offen {STMOD if (ln or STALL) else ''}")
        if stats_out:
            assert CPRW == 8
            a(f"v_mov_b32 {v(GT+8)}, 0x3f803f80")
            a(f"v_mov_b32 {v(GT)}, 0")
            a(f"v_mov_b32 {v(GT+1)}, 0")
            for j in range(4):
                a(f"v_dot2_f32_bf16 {v(GT)}, {v(c0+j)}, {v(GT+8)}, {v(GT)}")
                a(f"v_dot2_f32_bf16 {v(GT+1)}, {v(c0+j)}, {v(c0+j)}, {v(GT+1)}")
            a("s_nop 3")
            for q_, mode in enumerate(("quad_perm:[1,0,3,2]", "quad_perm:[2,3,0,1]", "row_half_mirror")):
                src = GT + 2 * (q_ & 1); dst = GT + 2 * ((q_ + 1) & 1)
                for k_ in range(2):
                    a(f"v_add_f32_dpp {v(dst+k_)}, {v(src+k_)}, {v(src+k_)} {mode} row_mask:0xf bank_mask:0xf")
                a("s_nop 1")
            a("s_mov_b32 exec_lo, 0x01010101")
            a("s_mov_b32 exec_hi, 0x01010101")
            a(f"buffer_store_dwordx2 {v(GT+2,2)}, {v(SOF+it)}, s[84:87], 0 offen")
            a("s_mov_b64 exec, -1")
    stamp(6)
    if 'stamp' in EXP: a("s_waitcnt vmcnt(0)")
    stamp(7)
    stamp_out()
    a.label(end)
    a("s_endpgm")
    return dict(name=name, grid=ntiles, block=512, lds=lds, desc=kernel_desc(name, max(nvgpr, GT + 10, 164)))


def gen_attn(a, name, pf=None, colsum=False):
    import struct
    NQB = S // 32
    ntask = H * NQB
    nwg = ntask // 4
    QKV_ROW = 3 * D * 2
    KLDS = 384 * 64
    lds = 2 * KLDS
    kernel_header(a, name)
    end = a.newlabel("L_end")
    npf = 0
    a(f"s_cmp_ge_u32 s2, {nwg + npf}")
    a(f"s_cbranch_scc1 {end}")
    a(f"s_load_dwordx2 s[24:25], s[0:1], {ARG['ws']}")
    a("v_and_b32 v1, 63, v0")
    a("v_lshrrev_b32 v2, 6, v0")
    a("s_nop 0")
    a("v_readfirstlane_b32 s30, v2")
    a("s_nop 3")
    a("s_lshl_b32 s3, s2, 2")
    a("s_add_u32 s92, s3, s30")
    a("s_and_b32 s28, s2, 31")
    a("s_lshr_b32 s29, s2, 5")
    a("s_lshl_b32 s39, s29, 7")
    a("s_sub_u32 s39, s39, 256")
    a("s_lshl_b32 s3, s30, 5")
    a("s_add_u32 s32, s39, s3")
    a("s_add_u32 s31, s32, 256")
    a("s_lshl_b32 s33, s28, 6")
    a(f"s_add_u32 s35, s33, {2*D*2}")
    a(f"s_add_u32 s36, s33, {D*2}")
    a("v_and_b32 v2, 31, v1")
    a("v_lshrrev_b32 v3, 5, v1")
    a("v_add_u32 v4, s31, v2")
    a(f"v_mul_u32_u24 v4, {QKV_ROW}, v4")
    a("v_lshl_add_u32 v4, v3, 4, v4")
    a("v_add_u32 v4, s33, v4")
    a("s_waitcnt lgkmcnt(0)")
    srd(a, 4, 24, WS_QKV, S * 3 * D * 2)
    srd(a, 8, 24, WS_O, S * D * 2)
    a("v_lshrrev_b32 v5, 2, v1")
    a("v_and_b32 v6, 3, v1")
    a("v_bfe_u32 v7, v1, 4, 2")
    a("v_xor_b32 v7, v7, v6")
    a("s_mul_i32 s3, s30, 96")
    a("s_add_u32 s3, s3, s39")
    a("s_mul_i32 s34, s30, 6144")
    for p in range(6):
        a(f"v_add_u32 v16, {16*p}, v5")
        a("v_add_u32 v16, s3, v16")
        a("v_max_i32 v16, 0, v16")
        a(f"v_mul_u32_u24 v16, {QKV_ROW}, v16")
        a("v_lshl_add_u32 v17, v7, 4, v16")
        a("v_add_u32 v17, s36, v17")
        a(f"s_add_u32 m0, s34, {p*1024}")
        a("v_lshl_add_u32 v16, v6, 4, v16")
        a(f"buffer_load_dwordx4 v17, s[4:7], 0 offen lds")
        a("v_add_u32 v16, s35, v16")
        a(f"s_add_u32 m0, s34, {KLDS + p*1024}")
        a("s_nop 0")
        a(f"buffer_load_dwordx4 v16, s[4:7], 0 offen lds")
    a("buffer_load_dwordx4 v[8:11], v4, s[4:7], 0 offen")
    a("buffer_load_dwordx4 v[12:15], v4, s[4:7], 0 offen offset:32")
    KF = 16
    if colsum:
        a(f"s_load_dwordx2 s[94:95], s[0:1], {ARG['w2']}")
        a(f"s_load_dwordx2 s[40:41], s[0:1], {ARG['wo']}")
        a(f"s_load_dwordx2 s[42:43], s[0:1], {ARG['w1']}")
        a("v_lshlrev_b32 v7, 4, v1")
        a(f"s_mul_i32 s93, s92, {F*D*2//2048}")
        a("s_lshl_b32 s3, s92, 10")
        a("v_add_u32 v16, s93, v7")
        a("v_add_u32 v17, s3, v7")
        a(f"s_mul_hi_u32 s44, s92, {((1 << 32) + 111) // 112}")
        a("s_mul_i32 s3, s44, 112")
        a("s_sub_u32 s45, s92, s3")
        a("s_lshl_b32 s3, s44, 6")
        a("v_lshrrev_b32 v18, 2, v1")
        a("v_add_u32 v18, s3, v18")
        a(f"v_mul_u32_u24 v18, {F*2}, v18")
        a("v_and_b32 v19, 3, v1")
        a("v_lshl_add_u32 v18, v19, 4, v18")
        a("s_lshl_b32 s3, s45, 6")
        a("v_add_u32 v18, s3, v18")
        a("s_waitcnt lgkmcnt(0)")
        npl = 4
        if 'nowpf' in EXP:
            srd(a, 96, 94, 0, F * D * 2)
            for j in range(4):
                a(f"buffer_load_dwordx4 v[240:243], v16, s[96:99], 0 offen offset:{1024*j}")
            srd(a, 96, 40, 0, D * D * 2)
            a("buffer_load_dwordx4 v[240:243], v17, s[96:99], 0 offen")
            npl = 9
        srd(a, 96, 42, 0, D * F * 2)
        for j in range(4):
            a(f"s_mov_b32 s3, {16*j*F*2}")
            a(f"buffer_load_dwordx4 {v(240+4*j,4)}, v18, s[96:99], s3 offen")
    else:
        npl = tail_prefetch(a, 92, 1, pf, 7, 240) if pf else 0
    a("v_bfe_u32 v5, v1, 2, 2")
    a("v_xor_b32 v5, v5, v3")
    a("v_lshlrev_b32 v6, 6, v2")
    a("s_lshl_b32 s34, s30, 11")
    a("v_add_u32 v6, s34, v6")
    a("v_lshl_add_u32 v88, v5, 4, v6")
    a("v_xor_b32 v5, 2, v5")
    a("v_lshl_add_u32 v89, v5, 4, v6")
    a(f"s_add_u32 s34, s34, {KLDS}")
    a(f"s_waitcnt vmcnt({npl})")
    a("s_barrier")
    for t_ in range(9):
        a(f"ds_read_b128 {v(KF+8*t_,4)}, v88 offset:{2048*t_}")
        a(f"ds_read_b128 {v(KF+8*t_+4,4)}, v89 offset:{2048*t_}")
    SC = 96
    a("v_mov_b32 v7, 0xf149f2ca")
    for t in range(9):
        a(f"s_waitcnt lgkmcnt({min(15, 2*(8-t))})")
        if t < 8:
            lab_inv = a.newlabel("L_inv"); lab_done = a.newlabel("L_tdone")
            a(f"s_add_i32 s3, s32, {32*t}")
            a("s_cmp_lt_i32 s3, 0")
            a(f"s_cbranch_scc1 {lab_inv}")
        a(f"v_mfma_f32_32x32x16_bf16 {v(SC+16*t,16)}, {v(KF+8*t,4)}, v[8:11], 0")
        a(f"v_mfma_f32_32x32x16_bf16 {v(SC+16*t,16)}, {v(KF+8*t+4,4)}, v[12:15], {v(SC+16*t,16)}")
        if t < 8:
            a(f"s_branch {lab_done}")
            a.label(lab_inv)
            for r in range(16):
                a(f"v_mov_b32 v{SC+16*t+r}, v7")
            a.label(lab_done)
    a("v_lshlrev_b32 v5, 2, v3")
    a("v_sub_u32 v5, v2, v5")
    a("s_nop 7")
    a("s_nop 7")
    for r in range(16):
        c = (r & 3) + 8 * (r >> 2)
        a(f"v_cmp_gt_i32 vcc, {c}, v5")
        a(f"v_cmp_le_i32 s[36:37], {c}, v5")
        a("s_nop 0")
        a(f"v_cndmask_b32 v{SC+r}, v7, v{SC+r}, vcc")
        a(f"v_cndmask_b32 v{SC+128+r}, v7, v{SC+128+r}, s[36:37]")
    a(f"v_max3_f32 v4, v{SC}, v{SC+1}, v{SC+2}")
    a(f"v_max3_f32 v6, v{SC+3}, v{SC+4}, v{SC+5}")
    for i in range(6, 144, 4):
        a(f"v_max3_f32 v4, v4, v{SC+i}, v{SC+i+1}")
        if i + 3 < 144:
            a(f"v_max3_f32 v6, v6, v{SC+i+2}, v{SC+i+3}")
    a("v_max_f32 v4, v4, v6")
    a("v_xor_b32 v88, 32, v1")
    a("v_lshlrev_b32 v88, 2, v88")
    a("ds_bpermute_b32 v89, v88, v4")
    a("s_waitcnt lgkmcnt(0)")
    a("v_max_f32 v4, v4, v89")
    sc = (DH ** -0.5) * math.log2(math.e)
    sc_bits = struct.unpack("<I", struct.pack("<f", sc))[0]
    a(f"s_mov_b32 s38, {sc_bits}")
    a("v_mul_f32 v4, s38, v4")
    sums = [5, 6, 90, 91]
    for sreg in sums:
        a(f"v_mov_b32 v{sreg}, 0")
    for g in range(0, 144, 4):
        for j in range(4):
            a(f"v_fma_f32 v{SC+g+j}, v{SC+g+j}, s38, -v4")
        for j in range(4):
            a(f"v_exp_f32 v{SC+g+j}, v{SC+g+j}")
        if g >= 4:
            for j in range(4):
                a(f"v_add_f32 v{sums[j]}, v{sums[j]}, v{SC+g-4+j}")
            tt, jj = divmod(g - 4, 16)
            a(f"v_cvt_pk_bf16_f32 v{KF+8*tt+jj//2}, v{SC+g-4}, v{SC+g-3}")
            a(f"v_cvt_pk_bf16_f32 v{KF+8*tt+jj//2+1}, v{SC+g-2}, v{SC+g-1}")
    a("s_nop 0")
    g = 144
    for j in range(4):
        a(f"v_add_f32 v{sums[j]}, v{sums[j]}, v{SC+g-4+j}")
    tt, jj = divmod(g - 4, 16)
    a(f"v_cvt_pk_bf16_f32 v{KF+8*tt+jj//2}, v{SC+g-4}, v{SC+g-3}")
    a(f"v_cvt_pk_bf16_f32 v{KF+8*tt+jj//2+1}, v{SC+g-2}, v{SC+g-1}")
    a("v_add_f32 v5, v5, v6")
    a("v_add_f32 v90, v90, v91")
    a("v_add_f32 v5, v5, v90")
    a("ds_bpermute_b32 v89, v88, v5")
    a("v_bfe_u32 v6, v1, 2, 2")
    a("v_lshl_add_u32 v6, v3, 2, v6")
    a("v_lshlrev_b32 v6, 6, v6")
    a("v_bfe_u32 v7, v1, 4, 1")
    a("v_lshl_add_u32 v6, v7, 5, v6")
    a("v_and_b32 v7, 3, v1")
    a("v_lshl_add_u32 v6, v7, 3, v6")
    a("v_add_u32 v6, s34, v6")
    OA = SC
    VF = SC + 16
    a(f"s_waitcnt lgkmcnt(0)")
    a("v_add_f32 v5, v5, v89")
    a("v_rcp_f32 v5, v5")
    for t in range(9):
        for sidx in range(2):
            f = VF + 4 * (2 * t + sidx)
            base = (32 * t + 16 * sidx) * 64
            a(f"ds_read_b64_tr_b16 {v(f,2)}, v6 offset:{base}")
            a(f"ds_read_b64_tr_b16 {v(f+2,2)}, v6 offset:{base+8*64}")
    first = True
    for t in range(9):
        for sidx in range(2):
            f = VF + 4 * (2 * t + sidx)
            idx = 2 * t + sidx
            rem = 36 - 2 * (idx + 1)
            a(f"s_waitcnt lgkmcnt({min(rem,15)})")
            a(f"v_mfma_f32_32x32x16_bf16 {v(OA,16)}, {v(f,4)}, {v(KF+8*t+4*sidx,4)}, {'0' if first else v(OA,16)}")
            first = False
    if colsum:
        lab_nc = a.newlabel("L_nocs")
        a("s_cmp_ge_u32 s44, 16")
        a(f"s_cbranch_scc1 {lab_nc}")
        CA = 184; CT = 192
        a("s_waitcnt vmcnt(0)")
        for j in range(4):
            a(f"v_lshlrev_b32 v{CA+2*j}, 16, v{240+j}")
            a(f"v_and_b32 v{CA+2*j+1}, 0xffff0000, v{240+j}")
        for i in range(1, 4):
            for j in range(4):
                a(f"v_lshlrev_b32 v{CT+2*j}, 16, v{240+4*i+j}")
                a(f"v_and_b32 v{CT+2*j+1}, 0xffff0000, v{240+4*i+j}")
            for j in range(4):
                a(f"v_pk_add_f32 {v(CA+2*j,2)}, {v(CA+2*j,2)}, {v(CT+2*j,2)}")
        a("s_nop 1")
        for mode in ("row_ror:4", "row_ror:8"):
            for j in range(8):
                a(f"v_add_f32_dpp v{CT+j}, v{CA+j}, v{CA+j} {mode} row_mask:0xf bank_mask:0xf")
            a("s_nop 1")
            for j in range(8):
                a(f"v_mov_b32 v{CA+j}, v{CT+j}")
            a("s_nop 1")
        for x in (16, 32):
            a(f"v_xor_b32 v200, {x}, v1")
            a("v_lshlrev_b32 v200, 2, v200")
            for j in range(8):
                a(f"ds_bpermute_b32 v{CT+j}, v200, v{CA+j}")
            a("s_waitcnt lgkmcnt(0)")
            for j in range(8):
                a(f"v_add_f32 v{CA+j}, v{CA+j}, v{CT+j}")
        srd(a, 96, 24, WS_CS, 16 * F * 4)
        a(f"s_mul_i32 s3, s44, {F*4}")
        a("s_lshl_b32 s45, s45, 7")
        a("s_add_u32 s3, s3, s45")
        a("v_lshlrev_b32 v200, 5, v1")
        a("s_mov_b64 exec, 15")
        a(f"buffer_store_dwordx4 {v(CA,4)}, v200, s[96:99], s3 offen")
        a(f"buffer_store_dwordx4 {v(CA+4,4)}, v200, s[96:99], s3 offen offset:16")
        a("s_mov_b64 exec, -1")
        a.label(lab_nc)
    a("v_add_u32 v7, s31, v2")
    a(f"v_lshlrev_b32 v7, 11, v7")
    a("v_lshl_add_u32 v7, v3, 3, v7")
    a("v_add_u32 v7, s33, v7")
    a("s_nop 7")
    a("s_nop 7")
    for g in range(4):
        for r in range(4):
            a(f"v_mul_f32 v{OA+4*g+r}, v{OA+4*g+r}, v5")
        a(f"v_cvt_pk_bf16_f32 v{OA+4*g}, v{OA+4*g}, v{OA+4*g+1}")
        a(f"v_cvt_pk_bf16_f32 v{OA+4*g+1}, v{OA+4*g+2}, v{OA+4*g+3}")
        a(f"buffer_store_dwordx2 {v(OA+4*g,2)}, v7, s[8:11], 0 offen offset:{16*g}")
    a.label(end)
    a("s_endpgm")
    return dict(name=name, grid=nwg + npf, block=256, lds=lds, desc=kernel_desc(name, 256 if colsum else 244))


def main():
    a = Asm()
    ks = []
    FUSE = 'nofuse' not in EXP
    SPLIT = 'split' in EXP
    L2PF = int(os.environ.get('L2PF', '0'))
    W1HI = int(os.environ.get('W1HI', '10'))
    W2HI = int(os.environ.get('W2HI', '10'))
    SKLO = int(os.environ.get('SKLO', '23'))
    QA = 'noqa' not in EXP
    if QA:
        sys.path.insert(0, os.path.dirname(os.path.abspath(__file__)))
        import qa
        WOHI = int(os.environ.get('WOHI', '3'))
        ks.append(qa.gen_qa(sys.modules[__name__], a, "qa_kernel", wpf=[("wo", D*D*2, WOHI)]))
    elif FUSE:
        ks.append(gen_gemm(a, "qkv_kernel", 3 * D, D, 192, 0, "wqkv", "plain", "ws", WS_QKV, NSTAGE=4, RA=8, RBN=4,
                           ln='single', a_arg='x',
                           wpf=[("w1", D*F*2, W1HI), ("wo", D*D*2, W1HI-7)]))
    else:
        ks.append(gen_ln(a, "ln1_kernel", "x", 0, WS_Y1, False, pf=[("wqkv", D*3*D*2), ("wo", D*D*2)]))
        ks.append(gen_gemm(a, "qkv_kernel", 3 * D, D, 192, WS_Y1, "wqkv", "plain", "ws", WS_QKV, NSTAGE=4, RA=8, RBN=4))
    if not QA: ks.append(gen_attn(a, "attn_kernel", pf=[("w1", D*F*2), ("w2", F*D*2), ("wo", D*D*2)] if FUSE else [("w1", D*F*2), ("w2", F*D*2)], colsum=FUSE))
    ks.append(gen_gemm(a, "oproj_kernel", D, D, 64, WS_O, "wo", "plain", "ws", WS_H, res_arg="x", NSTAGE=6, stats_out=FUSE))
    if FUSE:
        ks.append(gen_gemm(a, "ffn1_kernel", F, D, 224, WS_H, "w1", "gelu", "ws", WS_H1, bias_arg="b1", RA=8, RBN=4,
                           ln='double', pre=True, ldo=LDH1, zero_flags=SPLIT, wpf=[("w2", F*D*2, W2HI)]))
    else:
        ks.append(gen_ln(a, "ln2_kernel", "ws", WS_H, WS_Y2, True))
        ks.append(gen_gemm(a, "ffn1_kernel", F, D, 224, WS_Y2, "w1", "gelu", "ws", WS_H1, bias_arg="b1", RA=8, RBN=4))
    if SPLIT:
        ks.append(gen_gemm(a, "ffn2_kernel", D, F, 128, WS_H1, "w2", "plain", "out", 0, res_arg="ws", res_off=WS_H,
                           bias_arg="b2", NSTAGE=5, lda=LDH1, RA=4, RBN=4, splitk=(SKLO, 56 - SKLO)))
    else:
        ks.append(gen_gemm(a, "ffn2_kernel", D, F, 64, WS_H1, "w2", "plain", "out", 0, res_arg="ws", res_off=WS_H,
                           bias_arg="b2", NSTAGE=6, lda=LDH1, l2pf=L2PF, RA=int(os.environ.get('F2RA','4')), RBN=32//int(os.environ.get('F2RA','4'))))
    hdr = []
    for k in ks:
        hdr.append(f"; @launch kernel={k['name']} grid=({k['grid']},1,1) block=({k['block']},1,1) lds={k['lds']}")
    txt = "\n".join(hdr) + "\n"
    txt += '.amdgcn_target "amdgcn-amd-amdhsa--gfx950"\n.text\n'
    txt += "\n".join(a.lines) + "\n"
    txt += '.section .rodata,"a"\n'
    for k in ks:
        txt += ".p2align 6\n" + k["desc"]
    open(OUT, "w").write(txt)


if __name__ == "__main__":
    main()
```

```python
import math, struct, os


def gen_qa(G, a, name, wpf=None):
    v, s, srd, hex_f32 = G.v, G.s, G.srd, G.hex_f32
    ARG, EXP = G.ARG, G.EXP
    S, D, F, DH = G.S, G.D, G.F, G.DH
    MB = 1 << 20
    WS_RS = 3 * MB
    KFO = 65536
    WS_KV = 4 * MB
    K = D; N = 3 * D
    BM, BN, BK, NSTAGE = 256, 96, 64, 3
    MT, NTW, RB = 4, 6, 64
    ABYTES = BM * BK * 2; BBYTES = BK * BN * 2; STAGE = ABYTES + BBYTES
    PA, PB = 8, 3
    P = PA + PB
    NS = K // BK
    lda = K * 2
    XQ, PK, PV, OQ, OK_, OV = 49152, 65536, 81920, 98304, 114688, 131072
    RTAB = 147456; CTAB = 149504; STG = 149888; STAT = 149952; NONCE = 149960; STAT2 = 150016
    lds = 163840
    NPOLL = int(os.environ.get('NPOLL', '48'))
    vXb = [2, 3]; vWb = list(range(4, 10)); vXc = [10, 11]; vWc = list(range(12, 18))
    vT = list(range(18, 26))
    FX = [28, 44]; FW = [60, 84]; ACC = 108; CSA = 204; ONE = 212; PFD = 216; PFV = 220
    QF = 224
    XPA, XPB = 221, 222
    DUM = 232
    LA = int(os.environ.get('XLA', '5'))
    t0, t1, t2, t3 = vT[0], vT[1], vT[2], vT[3]
    vA = list(range(2, 10)); vB = list(range(10, 13))

    def acc(nt, mt):
        return ACC + 4 * (nt * MT + mt)

    def stamp(i):
        if 'itst' in EXP and i in (4, 5, 6): return
        if 'stamp' in EXP:
            a(f"s_memtime s[{60+2*i}:{61+2*i}]")
            if i >= 4: a("s_waitcnt lgkmcnt(0)")

    def stamp_out():
        if 'stamp' not in EXP: return
        a("s_waitcnt lgkmcnt(0)")
        srd(a, 80, 24, 200 * MB, 1 << 20)
        a("s_lshl_b32 s3, s2, 3")
        a("s_add_u32 s3, s3, s49")
        a("s_lshl_b32 s3, s3, 6")
        a("v_mov_b32 v2, s3")
        a("s_lshl_b32 s3, s101, 4")
        a("s_or_b32 s61, s3, s45")
        a("s_lshl_b32 s3, s51, 8")
        a("s_or_b32 s61, s3, s61")
        for i in range(8):
            a(f"v_mov_b32 v4, s{60+2*i}")
            a(f"v_mov_b32 v5, s{61+2*i}")
            a(f"buffer_store_dwordx2 v[4:5], v2, s[80:83], 0 offen offset:{8*i}")
            a("s_nop 1")

    def stats_load(Dr, T, srow):
        a(f"v_lshlrev_b32 {v(T)}, 5, v1")
        a(f"s_lshl_b32 s3, s{srow}, 11")
        for r in range(2):
            for j in range(2):
                a(f"buffer_load_dwordx4 {v(Dr+8*r+4*j,4)}, {v(T)}, s[4:7], s3 offen offset:{2048*r+16*j}")

    def stats_math(Dr, T):
        A0 = T; A1 = T + 4; O1 = T + 8; AD = T + 9
        a(f"v_mov_b32 {v(O1)}, 0x3f803f80")
        for j in range(4):
            a(f"v_mov_b32 {v(A0+j)}, 0")
        for r in range(2):
            for j in range(8):
                d = v(Dr + 8 * r + j)
                a(f"v_dot2_f32_bf16 {v(A0+2*r)}, {d}, {v(O1)}, {v(A0+2*r)}")
                a(f"v_dot2_f32_bf16 {v(A0+2*r+1)}, {d}, {d}, {v(A0+2*r+1)}")
        a("s_nop 3")
        cur, oth = A0, A1
        for mode in ("quad_perm:[1,0,3,2]", "quad_perm:[2,3,0,1]", "row_half_mirror", "row_mirror"):
            for j in range(4):
                a(f"v_add_f32_dpp {v(oth+j)}, {v(cur+j)}, {v(cur+j)} {mode} row_mask:0xf bank_mask:0xf")
            a("s_nop 1")
            cur, oth = oth, cur
        assert cur == A0
        for x in (16, 32):
            a(f"v_xor_b32 {v(AD)}, {x}, v1")
            a(f"v_lshlrev_b32 {v(AD)}, 2, {v(AD)}")
            for j in range(4):
                a(f"ds_bpermute_b32 {v(A1+j)}, {v(AD)}, {v(A0+j)}")
            a("s_waitcnt lgkmcnt(0)")
            for j in range(4):
                a(f"v_add_f32 {v(A0+j)}, {v(A0+j)}, {v(A1+j)}")
        for r in range(2):
            sm, sq = A0 + 2 * r, A0 + 2 * r + 1
            a(f"v_mul_f32 {v(sm)}, {hex_f32(1.0/K)}, {v(sm)}")
            a(f"v_mul_f32 {v(sq)}, {hex_f32(1.0/K)}, {v(sq)}")
            a(f"v_fma_f32 {v(sq)}, -{v(sm)}, {v(sm)}, {v(sq)}")
            a(f"v_max_f32 {v(sq)}, 0, {v(sq)}")
            a(f"v_add_f32 {v(sq)}, {hex_f32(1e-5)}, {v(sq)}")
            a(f"v_rsq_f32 {v(sq)}, {v(sq)}")
            a("s_nop 0")
            a(f"v_mul_f32 {v(A1)}, {v(sm)}, {v(sq)}")
            a(f"v_mov_b32 {v(sm)}, {v(sq)}")
            a(f"v_sub_f32 {v(sq)}, 0, {v(A1)}")

    def local_stats(Dr, T):
        lp = a.newlabel("L_ls")
        a("s_mov_b32 s101, 1")
        a("s_lshl_b32 s46, s49, 5")
        a("s_add_u32 s47, s46, s98")
        a("s_mov_b32 s52, 16")
        a.label(lp)
        stats_load(Dr, T, 47)
        a("s_waitcnt vmcnt(0)")
        stats_math(Dr, T)
        a("s_lshl_b32 s3, s46, 3")
        a(f"s_add_u32 s3, s3, {RTAB}")
        a(f"v_mov_b32 {v(T+9)}, s3")
        a(f"ds_write_b128 {v(T+9)}, {v(T,4)}")
        a("s_add_u32 s46, s46, 2")
        a("s_add_u32 s47, s47, 2")
        a("s_sub_u32 s52, s52, 1")
        a("s_cmp_lg_u32 s52, 0")
        a(f"s_cbranch_scc1 {lp}")
        a("s_waitcnt lgkmcnt(0)")
        a("s_barrier")

    G.kernel_header(a, name)
    end = a.newlabel("L_end")
    stamp(0)
    lab_loader = a.newlabel("L_loader")
    lab_att = a.newlabel("L_att")
    a("s_cmp_ge_u32 s2, 256")
    a(f"s_cbranch_scc1 {end}")
    a(f"s_load_dwordx2 s[24:25], s[0:1], {ARG['ws']}")
    a(f"s_load_dwordx2 s[58:59], s[0:1], {ARG['x']}")
    a(f"s_load_dwordx2 s[26:27], s[0:1], {ARG['wqkv']}")
    a("s_memrealtime s[34:35]")
    a("s_and_b32 s3, s2, 7")
    a("s_lshr_b32 s46, s2, 3")
    a("s_and_b32 s29, s3, 3")
    a("s_lshl_b32 s29, s29, 3")
    a("s_and_b32 s47, s46, 7")
    a("s_add_u32 s29, s29, s47")
    a("s_lshr_b32 s28, s3, 2")
    a("s_lshl_b32 s28, s28, 2")
    a("s_lshr_b32 s47, s46, 3")
    a("s_add_u32 s28, s28, s47")
    a("s_lshl_b32 s99, s28, 5")
    a("s_add_u32 s99, s99, s29")
    a("s_lshl_b32 s98, s28, 8")
    a("v_and_b32 v1, 63, v0")
    a(f"v_lshrrev_b32 {v(t0)}, 6, v0")
    a("s_nop 0")
    a(f"v_readfirstlane_b32 s49, {v(t0)}")
    a("s_nop 3")
    a("s_and_b32 s30, s49, 3")
    a("s_mov_b32 s45, 1")
    a("s_mov_b32 s101, 0")
    a("s_mov_b32 s50, 0")
    a("s_mov_b32 s51, 0")
    a(f"s_mov_b32 s100, {OQ}")

    def build_srds():
        a("s_waitcnt lgkmcnt(0)")
        srd(a, 4, 58, 0, S * D * 2)
        srd(a, 8, 26, 0, K * N * 2)
        srd(a, 12, 24, G.WS_O, S * D * 2)
        srd(a, 16, 24, WS_KV, 256 * 32768)
        a("s_add_u32 s20, s34, 0x1000000")
        a("s_addc_u32 s21, s35, 0")
        srd(a, 36, 24, WS_RS, 131072)

    a("s_cmp_ge_u32 s49, 4")
    a(f"s_cbranch_scc1 {lab_loader}")

    build_srds()
    if wpf:
        a("s_lshl_b32 s3, s2, 2")
        a("s_add_u32 s3, s3, s30")
        for q, (arg, nbytes, hi) in enumerate(wpf):
            a(f"s_load_dwordx2 s[{94+2*q}:{95+2*q}], s[0:1], {ARG[arg]}")
            a(f"s_mul_i32 s{92+q}, s3, {nbytes//1024}")
        a("s_waitcnt lgkmcnt(0)")
        for q, (arg, nbytes, hi) in enumerate(wpf):
            srd(a, 84 + 4 * q, 94 + 2 * q, 0, nbytes)
    if 'cpf' in EXP:
        lh = a.newlabel("L_pc")
        a("s_getpc_b64 s[46:47]")
        a.label(lh)
        a(f"s_sub_u32 s46, s46, {lh}-{name}")
        a("s_subb_u32 s47, s47, 0")
        a("s_lshr_b32 s3, s2, 3")
        a("s_lshl_b32 s3, s3, 2")
        a("s_add_u32 s3, s3, s30")
        a("s_lshl_b32 s3, s3, 10")
        a(f"s_min_u32 s3, s3, {end}-{name}-1024")
        a(f"v_lshlrev_b32 {v(t0)}, 4, v1")
        a(f"v_add_u32 {v(t0)}, s3, {v(t0)}")
        a(f"global_load_dwordx4 {v(DUM,4)}, {v(t0)}, s[46:47]")
    a("s_lshr_b32 s3, s2, 3")
    a("s_lshl_b32 s3, s3, 2")
    a("s_add_u32 s3, s3, s30")
    a("s_lshr_b32 s46, s28, 2")
    a("s_lshl_b32 s46, s46, 10")
    a("s_lshl_b32 s47, s3, 3")
    a("s_add_u32 s46, s46, s47")
    a(f"v_lshrrev_b32 {v(t0)}, 3, v1")
    a(f"v_add_u32 {v(t0)}, s46, {v(t0)}")
    a(f"v_lshlrev_b32 {v(t0)}, 11, {v(t0)}")
    a(f"v_and_b32 {v(t1)}, 7, v1")
    a(f"v_lshl_add_u32 {v(XPA)}, {v(t1)}, 4, {v(t0)}")
    a("s_lshr_b32 s46, s3, 5")
    a("s_and_b32 s47, s3, 31")
    a("s_lshl_b32 s47, s47, 1")
    a(f"v_lshrrev_b32 {v(t0)}, 5, v1")
    a(f"v_add_u32 {v(t0)}, s47, {v(t0)}")
    a(f"v_mul_u32_u24 {v(t0)}, {N*2}, {v(t0)}")
    a(f"v_and_b32 {v(t1)}, 31, v1")
    a(f"v_lshl_add_u32 {v(t0)}, {v(t1)}, 4, {v(t0)}")
    a("s_lshl_b32 s46, s46, 11")
    a("s_lshr_b32 s47, s29, 3")
    a("s_lshl_b32 s47, s47, 9")
    a("s_add_u32 s46, s46, s47")
    a("s_cmp_ge_u32 s3, 96")
    a("s_cselect_b32 s46, 0x7f000000, s46")
    a(f"v_add_u32 {v(XPB)}, s46, {v(t0)}")
    a(f"s_mov_b32 s40, {2*BK*2}")
    a(f"s_mov_b32 s41, {2*BK*N*2}")

    def xpf():
        if LA == 0: return
        a(f"buffer_load_dwordx4 {v(DUM,4)}, {v(XPA)}, s[4:7], s40 offen")
        a(f"buffer_load_dwordx4 {v(DUM,4)}, {v(XPB)}, s[8:11], s41 offen")
        a(f"s_add_u32 s40, s40, {BK*2}")
        a(f"s_add_u32 s41, s41, {BK*N*2}")
        a(f"s_min_u32 s40, s40, {(NS-1)*BK*2}")
        a(f"s_min_u32 s41, s41, {(NS-1)*BK*N*2}")
    for _ in range(2, LA + 1):
        xpf()
    lab_cpass = a.newlabel("L_cpass")
    a.label(lab_cpass)
    a(f"v_lshlrev_b32 {v(PFV)}, 4, v1")
    a(f"v_and_b32 {v(t0)}, 15, v1")
    a("s_lshl_b32 s3, s30, 6")
    a(f"v_add_u32 {v(t0)}, s3, {v(t0)}")
    a(f"v_lshlrev_b32 {v(t0)}, 7, {v(t0)}")
    a(f"v_lshrrev_b32 {v(t1)}, 4, v1")
    a(f"v_bfe_u32 {v(t2)}, v1, 1, 3")
    a(f"v_xor_b32 {v(t3)}, {v(t1)}, {v(t2)}")
    a(f"v_lshl_add_u32 {v(vXb[0])}, {v(t3)}, 4, {v(t0)}")
    a(f"v_xor_b32 {v(t3)}, 4, {v(t3)}")
    a(f"v_lshl_add_u32 {v(vXb[1])}, {v(t3)}, 4, {v(t0)}")
    a(f"v_bfe_u32 {v(t0)}, v1, 2, 2")
    a(f"v_lshl_add_u32 {v(t2)}, {v(t1)}, 3, {v(t0)}")
    a(f"v_and_b32 {v(t3)}, 1, {v(t1)}")
    a(f"v_mul_u32_u24 {v(t2)}, {RB}, {v(t2)}")
    a(f"v_and_b32 {v(t0)}, 3, v1")
    a(f"v_lshl_add_u32 {v(t2)}, {v(t0)}, 3, {v(t2)}")
    a(f"v_add_u32 {v(t2)}, {ABYTES}, {v(t2)}")
    for nt in range(NTW):
        blk, p = nt >> 1, nt & 1
        a(f"v_xor_b32 {v(t0)}, {p}, {v(t3)}")
        a(f"v_lshl_add_u32 {v(t0)}, {v(t0)}, 5, {v(t2)}")
        a(f"v_add_u32 {v(vWb[nt])}, {blk*64*RB}, {v(t0)}")
    for i in range(4 * MT * NTW + 8):
        a(f"v_mov_b32 v{ACC+i}, 0")
    for i in range(4):
        a(f"v_mov_b32 {v(ONE+i)}, 0x3f803f80")
    a("s_mov_b32 s42, 0")

    def set_cur():
        for kk in range(2):
            a(f"v_add_u32 {v(vXc[kk])}, s42, {v(vXb[kk])}")
        for nt in range(NTW):
            a(f"v_add_u32 {v(vWc[nt])}, s42, {v(vWb[nt])}")
        a(f"s_add_u32 s42, s42, {STAGE}")
        a(f"s_cmp_ge_u32 s42, {STAGE*NSTAGE}")
        a("s_cselect_b32 s42, 0, s42")

    def read_list(kk, f):
        L = []
        for nt in range(NTW):
            if nt < MT:
                L.append(f"ds_read_b128 {v(FX[f]+4*nt,4)}, {v(vXc[kk])} offset:{nt*2048}")
            for rd in range(2):
                L.append(f"ds_read_b64_tr_b16 {v(FW[f]+4*nt+2*rd,2)}, {v(vWc[nt])} offset:{kk*32*RB+rd*4*RB}")
        return L

    def mfma_list(f):
        L = []
        for nt in range(NTW):
            for mt in range(MT):
                L.append(f"v_mfma_f32_16x16x32_bf16 {v(acc(nt,mt),4)}, {v(FW[f]+4*nt,4)}, {v(FX[f]+4*mt,4)}, {v(acc(nt,mt),4)}")
        return L

    def cs_block(f, wv=None):
        if 'nocs' in EXP: return
        if wv is not None:
            a(f"v_mfma_f32_16x16x32_bf16 {v(CSA,4)}, {v(FW[f]+4*wv,4)}, {v(ONE,4)}, {v(CSA,4)}")
            if wv < 2:
                a(f"v_mfma_f32_16x16x32_bf16 {v(CSA+4,4)}, {v(FW[f]+4*(wv+4),4)}, {v(ONE,4)}, {v(CSA+4,4)}")
            return
        done = a.newlabel("L_cs")
        for w in range(4):
            nx = a.newlabel("L_csn")
            if w < 3:
                a(f"s_cmp_lg_u32 s30, {w}")
                a(f"s_cbranch_scc1 {nx}")
            a(f"v_mfma_f32_16x16x32_bf16 {v(CSA,4)}, {v(FW[f]+4*w,4)}, {v(ONE,4)}, {v(CSA,4)}")
            if w < 2:
                a(f"v_mfma_f32_16x16x32_bf16 {v(CSA+4,4)}, {v(FW[f]+4*(w+4),4)}, {v(ONE,4)}, {v(CSA+4,4)}")
            if w < 3:
                a(f"s_branch {done}")
                a.label(nx)
        a.label(done)

    def inter(kk, fr, fm, wv=None):
        R = read_list(kk, fr); Mm = mfma_list(fm)
        ri = 0
        for i in range(len(Mm)):
            a(Mm[i])
            if ri < len(R): a(R[ri]); ri += 1
        while ri < len(R): a(R[ri]); ri += 1
        cs_block(fm, wv)

    stamp(1)
    a("s_barrier")
    stamp(2)
    set_cur()
    for x in read_list(0, 0): a(x)
    a("s_waitcnt lgkmcnt(0)")
    inter(1, 1, 0)
    a("s_waitcnt lgkmcnt(0)")
    a(f"s_mov_b32 s48, {NS-1}")
    loops = [a.newlabel("L_cloop") for _ in range(4)]
    ldone = a.newlabel("L_cdone")
    for w in range(1, 4):
        a(f"s_cmp_eq_u32 s30, {w}")
        a(f"s_cbranch_scc1 {loops[w]}")
    rare = []
    for w in range(4):
        a.label(loops[w])
        a("s_barrier")
        set_cur()
        inter(0, 0, 1, w)
        xpf()
        a("s_waitcnt lgkmcnt(0)")
        inter(1, 1, 0, w)
        lpub = a.newlabel("L_pub"); lback = a.newlabel("L_pubb")
        a("s_cmp_eq_u32 s48, 12")
        a(f"s_cbranch_scc1 {lpub}")
        a.label(lback)
        rare.append(('pub', w, lpub, lback))
        for q, (arg, nbytes, hi) in enumerate(wpf or []):
            n = nbytes >> 20
            lo_ = a.newlabel("L_wpf"); lb = a.newlabel("L_wpfb")
            a(f"s_sub_u32 s3, s48, {hi-n+1}")
            a(f"s_cmp_lt_u32 s3, {n}")
            a(f"s_cbranch_scc1 {lo_}")
            a.label(lb)
            rare.append(('wpf', q, lo_, lb))
        if 'itst' in EXP:
            for sl, it in ((4, 12), (5, 8), (6, 4)):
                lx = a.newlabel("L_it")
                a(f"s_cmp_lg_u32 s48, {it}")
                a(f"s_cbranch_scc1 {lx}")
                a(f"s_memtime s[{60+2*sl}:{61+2*sl}]")
                a.label(lx)
        a("s_waitcnt lgkmcnt(0)")
        a("s_sub_u32 s48, s48, 1")
        a("s_cmp_lg_u32 s48, 0")
        a(f"s_cbranch_scc1 {loops[w]}")
        a(f"s_branch {ldone}")
    for kind, x, lab, lb in rare:
        a.label(lab)
        if kind == 'wpf':
            a(f"buffer_load_dwordx4 {v(DUM,4)}, {v(PFV)}, s[{84+4*x}:{87+4*x}], s{92+x} offen")
            a(f"s_add_u32 s{92+x}, s{92+x}, 1024")
        else:
            a("s_cmp_lg_u32 s45, 1")
            a(f"s_cbranch_scc1 {lb}")
            a("s_memrealtime s[22:23]")
            a(f"v_and_b32 {v(t1)}, 1, v1")
            a(f"v_lshlrev_b32 {v(t0)}, 3, {v(t1)}")
            a(f"v_add_u32 {v(t0)}, {STG + 16*x}, {v(t0)}")
            a(f"ds_read_b64 {v(PFD,2)}, {v(t0)}")
            a("s_lshl_b32 s3, s29, 3")
            a("s_add_u32 s3, s3, s98")
            a(f"s_add_u32 s3, s3, {2*x}")
            a("s_lshl_b32 s3, s3, 4")
            a(f"v_lshlrev_b32 {v(t0)}, 4, {v(t1)}")
            a("s_waitcnt lgkmcnt(0)")
            a(f"v_mov_b32 {v(PFD+2)}, s22")
            a(f"v_mov_b32 {v(PFD+3)}, s23")
            a("s_mov_b64 exec, 3")
            if 'nostatflag' not in EXP: a(f"buffer_store_dwordx4 {v(PFD,4)}, {v(t0)}, s[36:39], s3 offen sc0 sc1")
            a("s_mov_b64 exec, -1")
        a(f"s_branch {lb}")
    a.label(ldone)
    stamp(3)
    cs_block(1)
    for x in mfma_list(1): a(x)
    a(f"v_lshrrev_b32 {v(t0)}, 4, v1")
    a(f"v_lshlrev_b32 {v(t0)}, 4, {v(t0)}")
    a("s_lshl_b32 s3, s30, 6")
    a(f"s_add_u32 s3, s3, {CTAB}")
    a(f"v_add_u32 {v(t1)}, s3, {v(t0)}")
    a("s_mov_b32 exec_lo, 0x00010001")
    a("s_mov_b32 exec_hi, 0x00010001")
    a(f"ds_write_b128 {v(t1)}, {v(CSA,4)}")
    lcs = a.newlabel("L_cs2")
    a("s_cmp_ge_u32 s30, 2")
    a(f"s_cbranch_scc1 {lcs}")
    a(f"ds_write_b128 {v(t1)}, {v(CSA+4,4)} offset:256")
    a.label(lcs)
    a("s_mov_b64 exec, -1")
    a(f"v_add_u32 {v(t0)}, {CTAB}, {v(t0)}")
    a(f"v_mov_b32 {v(t1)}, {STAT}")
    a("s_waitcnt lgkmcnt(0)")
    a("s_barrier")
    RT = FX[0]; RQ = RT + 8; CS = RQ + 8; GE = CS + 24
    assert GE + 8 <= ACC
    a(f"ds_read_b32 {v(t2)}, {v(t1)}")
    for nt in range(NTW):
        a(f"ds_read_b128 {v(CS+4*nt,4)}, {v(t0)} offset:{64*nt}")
    a("s_waitcnt lgkmcnt(0)")
    a(f"v_readfirstlane_b32 s3, {v(t2)}")
    a("s_nop 3")
    lok = a.newlabel("L_stok")
    a("s_cmp_eq_u32 s3, 1")
    a(f"s_cbranch_scc1 {lok}")
    local_stats(GE + 8, GE + 24)
    a.label(lok)
    a(f"v_and_b32 {v(t2)}, 15, v1")
    a("s_lshl_b32 s3, s30, 6")
    a(f"v_add_u32 {v(t2)}, s3, {v(t2)}")
    a(f"v_lshlrev_b32 {v(t0)}, 3, {v(t2)}")
    a(f"v_add_u32 {v(t0)}, {RTAB}, {v(t0)}")
    for mt in range(MT):
        a(f"ds_read_b64 {v(RT+2*mt,2)}, {v(t0)} offset:{128*mt}")
    a(f"v_lshlrev_b32 {v(t2)}, 6, {v(t2)}")
    a(f"v_add_u32 {v(t2)}, s100, {v(t2)}")
    a(f"v_lshrrev_b32 {v(t3)}, 4, v1")
    DV = vT[4]; DQ0 = vT[5]; DQ1 = vT[6]
    a(f"v_lshl_add_u32 {v(DV)}, {v(t3)}, 3, {v(t2)}")
    a(f"v_lshrrev_b32 {v(t0)}, 1, {v(t3)}")
    a(f"v_bfe_u32 {v(t1)}, v1, 2, 2")
    a(f"v_xor_b32 {v(t0)}, {v(t0)}, {v(t1)}")
    a(f"v_lshl_add_u32 {v(t0)}, {v(t0)}, 4, {v(t2)}")
    a(f"v_and_b32 {v(t1)}, 1, {v(t3)}")
    a(f"v_lshl_add_u32 {v(DQ0)}, {v(t1)}, 3, {v(t0)}")
    a(f"v_xor_b32 {v(DQ1)}, 32, {v(DQ0)}")
    sc = (DH ** -0.5) * math.log2(math.e)
    a(f"s_mov_b32 s52, {hex_f32(sc)}")
    a("s_waitcnt lgkmcnt(0)")
    for i in range(8):
        a(f"v_mul_f32 {v(RQ+i)}, s52, {v(RT+i)}")
    for nt in range(NTW):
        R_ = RQ if nt < 2 else RT
        for mp in range(0, MT, 2):
            c0 = acc(nt, mp)
            for q in range(2):
                for j in range(2):
                    a(f"v_pk_mul_f32 {v(GE+4*q+2*j,2)}, {v(CS+4*nt+2*j,2)}, {v(R_+2*(mp+q),2)} op_sel:[0,1] op_sel_hi:[1,1]")
            for q in range(2):
                for j in range(2):
                    cc = v(c0 + 4 * q + 2 * j, 2)
                    a(f"v_pk_fma_f32 {cc}, {cc}, {v(R_+2*(mp+q),2)}, {v(GE+4*q+2*j,2)} op_sel:[0,0,0] op_sel_hi:[1,0,1]")
            for j in range(4):
                a(f"v_cvt_pk_bf16_f32 {v(c0+j)}, {v(c0+2*j)}, {v(c0+2*j+1)}")
            for q in range(2):
                sec = nt >> 1
                if sec == 2:
                    a(f"ds_write_b64 {v(DV)}, {v(c0+2*q,2)} offset:{(mp+q)*1024 + sec*16384 + 32*(nt&1)}")
                else:
                    a(f"ds_write_b64 {v(DQ1 if nt & 1 else DQ0)}, {v(c0+2*q,2)} offset:{(mp+q)*1024 + sec*16384}")
    a("s_waitcnt vmcnt(0) lgkmcnt(0)")
    stamp(4)
    a("s_barrier")
    a(f"s_branch {lab_att}")

    a.label(lab_loader)
    a("s_setprio 2")
    LSD = 40; LST = 56; LNO = 68; LTB = 72
    a("s_lshl_b32 s3, s30, 6")
    a(f"v_lshrrev_b32 {v(t0)}, 3, v1")
    a(f"v_add_u32 {v(t0)}, s3, {v(t0)}")
    for i in range(PA):
        a(f"v_add_u32 {v(t1)}, {8*i}, {v(t0)}")
        a(f"v_lshrrev_b32 {v(t2)}, 1, {v(t1)}")
        a(f"v_and_b32 {v(t2)}, 7, {v(t2)}")
        a(f"v_and_b32 {v(t3)}, 7, v1")
        a(f"v_xor_b32 {v(t2)}, {v(t2)}, {v(t3)}")
        a(f"v_add_u32 {v(t1)}, s98, {v(t1)}")
        a(f"v_mul_u32_u24 {v(t1)}, {lda}, {v(t1)}")
        a(f"v_lshl_add_u32 {v(vA[i])}, {v(t2)}, 4, {v(t1)}")
    a("s_lshl_b32 s3, s29, 6")
    for i in range(PB):
        a(f"s_mul_i32 s46, s30, {PB}")
        a(f"s_add_u32 s46, s46, {i}")
        a("s_lshr_b32 s47, s46, 2")
        a("s_and_b32 s46, s46, 3")
        a("s_lshl_b32 s46, s46, 4")
        a("s_lshl_b32 s47, s47, 11")
        a("s_add_u32 s47, s47, s3")
        a(f"v_lshrrev_b32 {v(t0)}, {3 if 'bfull' in EXP else 2}, v1")
        a(f"v_add_u32 {v(t0)}, s46, {v(t0)}")
        a(f"v_and_b32 {v(t1)}, {7 if 'bfull' in EXP else 3}, v1")
        if 'bfull' in EXP: a("s_and_b32 s47, s47, 0xffffff80")
        a(f"v_bfe_u32 {v(t2)}, {v(t0)}, 3, 1")
        a(f"v_lshlrev_b32 {v(t2)}, 1, {v(t2)}")
        a(f"v_xor_b32 {v(t1)}, {v(t1)}, {v(t2)}")
        a(f"v_mul_u32_u24 {v(t0)}, {N*2}, {v(t0)}")
        a(f"v_lshl_add_u32 {v(t0)}, {v(t1)}, 4, {v(t0)}")
        a(f"v_add_u32 {v(vB[i])}, s47, {v(t0)}")
    a(f"s_mul_i32 s31, s30, {PA*1024}")
    a(f"s_mul_i32 s32, s30, {PB*1024}")
    a(f"s_add_u32 s32, s32, {ABYTES}")
    build_srds()
    a("s_lshl_b32 s46, s29, 3")
    a("s_add_u32 s46, s46, s98")
    a("s_lshl_b32 s47, s30, 1")
    a("s_add_u32 s47, s47, s46")
    stats_load(LSD, LST, 47)
    lab_lpass = a.newlabel("L_lpass")
    a.label(lab_lpass)
    a("s_mov_b32 s40, 0")
    a("s_mov_b32 s41, 0")
    a("s_mov_b32 s43, 0")
    a("s_mov_b32 s53, 0")

    def dma():
        a("s_add_u32 s33, s43, s31")
        for i in range(PA):
            a(f"s_add_u32 m0, s33, {i*1024}")
            a("s_nop 0")
            a(f"buffer_load_dwordx4 {v(vA[i])}, s[4:7], s40 offen lds")
        a("s_add_u32 s33, s43, s32")
        for i in range(PB):
            a(f"s_add_u32 m0, s33, {i*1024}")
            a("s_nop 0")
            a(f"buffer_load_dwordx4 {v(vB[i])}, s[8:11], s41 offen lds")
        a(f"s_add_u32 s40, s40, {BK*2}")
        a(f"s_add_u32 s41, s41, {BK*N*2}")
        a(f"s_add_u32 s43, s43, {STAGE}")
        a(f"s_cmp_ge_u32 s43, {STAGE*NSTAGE}")
        a("s_cselect_b32 s43, 0, s43")

    stamp(1)
    for _ in range(NSTAGE - 1):
        dma()
    stamp(2)
    nloop = NS - NSTAGE + 1
    a(f"s_mov_b32 s48, {nloop}")
    lloop = a.newlabel("L_lloop")
    a.label(lloop)
    a(f"s_waitcnt vmcnt({(NSTAGE-2)*P})")
    a("s_barrier")
    l1 = a.newlabel("L_l1"); l2 = a.newlabel("L_l2"); l3 = a.newlabel("L_l3")
    a("s_cmp_lg_u32 s45, 1")
    a(f"s_cbranch_scc1 {l2}")
    a("s_cmp_lg_u32 s30, 0")
    a(f"s_cbranch_scc1 {l2}")
    a("s_cmp_lg_u32 s48, 2")
    a(f"s_cbranch_scc1 {l1}")
    a(f"v_lshlrev_b32 {v(t0)}, 4, v1")
    a("s_lshl_b32 s3, s28, 12")
    for j in range(4):
        a(f"buffer_load_dwordx4 {v(LTB+4*j,4)}, {v(t0)}, s[36:39], s3 offen offset:{1024*j} sc0 sc1")
    a.label(l1)
    a("s_cmp_lg_u32 s48, 1")
    a(f"s_cbranch_scc1 {l2}")
    a("s_mov_b64 s[54:55], exec")
    for j in range(4):
        a(f"v_cmp_lt_u64 vcc, s[34:35], {v(LTB+4*j+2,2)}")
        a(f"v_cmp_gt_u64 s[56:57], s[20:21], {v(LTB+4*j+2,2)}")
        a("s_nop 3")
        a("s_and_b64 s[54:55], s[54:55], vcc")
        a("s_and_b64 s[54:55], s[54:55], s[56:57]")
    a("s_cmp_lg_u64 s[54:55], exec")
    a(f"s_cbranch_scc1 {l2}")
    a("s_mov_b32 s53, 1")
    a(f"v_lshlrev_b32 {v(t0)}, 3, v1")
    a(f"v_add_u32 {v(t0)}, {RTAB}, {v(t0)}")
    for j in range(4):
        a(f"ds_write_b64 {v(t0)}, {v(LTB+4*j,2)} offset:{512*j}")
    a("s_waitcnt lgkmcnt(0)")
    a.label(l2)
    dma()
    a("s_cmp_lg_u32 s45, 1")
    a(f"s_cbranch_scc1 {l3}")
    a(f"s_cmp_lg_u32 s48, {nloop}")
    a(f"s_cbranch_scc1 {l3}")
    stats_math(LSD, LST)
    a("s_lshl_b32 s3, s30, 4")
    a(f"s_add_u32 s3, s3, {STG}")
    a(f"v_mov_b32 {v(LST+9)}, s3")
    a(f"ds_write_b128 {v(LST+9)}, {v(LST,4)}")
    a("s_waitcnt lgkmcnt(0)")
    a.label(l3)
    a("s_sub_u32 s48, s48, 1")
    a("s_cmp_lg_u32 s48, 0")
    a(f"s_cbranch_scc1 {lloop}")
    for j in range(NS - NSTAGE + 1, NS):
        a(f"s_waitcnt vmcnt({(NS-1-j)*P})")
        a("s_barrier")
    stamp(3)
    l4 = a.newlabel("L_l4")
    a(f"v_mov_b32 {v(t1)}, {STAT}")
    a("s_cmp_lg_u32 s30, 0")
    a(f"s_cbranch_scc1 {l4}")
    a(f"v_mov_b32 {v(t0)}, s53")
    a(f"ds_write_b32 {v(t1)}, {v(t0)}")
    for j in range(4):
        a(f"v_mov_b32 {v(LTB+j)}, 0")
    a(f"ds_write_b128 {v(t1)}, {v(LTB,4)} offset:{STAT2-STAT}")
    a("s_waitcnt lgkmcnt(0)")
    a.label(l4)
    a("s_barrier")
    a(f"ds_read_b32 {v(t2)}, {v(t1)}")
    a("s_waitcnt lgkmcnt(0)")
    a(f"v_readfirstlane_b32 s3, {v(t2)}")
    a("s_nop 3")
    lok = a.newlabel("L_stok")
    a("s_cmp_eq_u32 s3, 1")
    a(f"s_cbranch_scc1 {lok}")
    local_stats(LSD, LST)
    a.label(lok)
    stamp(4)
    a("s_barrier")

    a.label(lab_att)
    CM, MK1, MK2, SA, SB = 16, 32, 48, 64, 80
    KB_ = [96, 104]; VB_ = [112, 120]; PP = [128, 136]; OA = 144; SUM = 160
    W1P = 164; CA = 180; CT = 188; PUB = 200; VM = 216
    vK1 = [2, 3]; vV1 = 4; vK2 = [5, 6]; vV2 = 7; vQQ = 8; vHH = 9; vX32 = 10; vNEG = 11; vL16 = 12
    T0, T1, T2 = 13, 14, 15
    vNO = 217
    lab_start = a.newlabel("L_astart"); lab_reload = a.newlabel("L_reload"); lab_fin = a.newlabel("L_fin")
    a("s_setprio 0")
    a("s_sub_u32 s3, 11, s49")
    a("s_cmp_lt_u32 s49, 4")
    a("s_cselect_b32 s44, s49, s3")
    a(f"v_and_b32 {v(vQQ)}, 31, v1")
    a(f"v_lshrrev_b32 {v(vHH)}, 5, v1")
    a(f"v_lshlrev_b32 {v(vL16)}, 4, v1")
    a(f"v_xor_b32 {v(vX32)}, 32, v1")
    a(f"v_lshlrev_b32 {v(vX32)}, 2, {v(vX32)}")
    a(f"v_mov_b32 {v(vNEG)}, 0xf149f2ca")
    a(f"v_mov_b32 {v(VM)}, 0")
    a(f"v_bfe_u32 {v(T0)}, v1, 2, 2")
    a(f"v_xor_b32 {v(T0)}, {v(T0)}, {v(vHH)}")
    a(f"v_lshlrev_b32 {v(T1)}, 6, {v(vQQ)}")
    a(f"v_lshl_add_u32 {v(T0)}, {v(T0)}, 4, {v(T1)}")
    a("s_lshl_b32 s3, s44, 11")
    a(f"s_add_u32 s46, s3, {OK_ - 7*2048}")
    a(f"v_add_u32 {v(vK1[0])}, s46, {v(T0)}")
    a(f"v_xor_b32 {v(vK1[1])}, 32, {v(vK1[0])}")
    a(f"s_add_u32 s46, s3, {PK}")
    a(f"v_add_u32 {v(vK2[0])}, s46, {v(T0)}")
    a(f"v_xor_b32 {v(vK2[1])}, 32, {v(vK2[0])}")
    a(f"s_add_u32 s46, s3, {OQ}")
    a(f"v_add_u32 {v(T0)}, s46, {v(T0)}")
    a(f"v_bfe_u32 {v(T1)}, v1, 2, 2")
    a(f"v_lshl_add_u32 {v(T1)}, {v(vHH)}, 2, {v(T1)}")
    a(f"v_lshlrev_b32 {v(T1)}, 6, {v(T1)}")
    a(f"v_bfe_u32 {v(T2)}, v1, 4, 1")
    a(f"v_lshl_add_u32 {v(T1)}, {v(T2)}, 5, {v(T1)}")
    a(f"v_and_b32 {v(T2)}, 3, v1")
    a(f"v_lshl_add_u32 {v(T1)}, {v(T2)}, 3, {v(T1)}")
    a(f"s_add_u32 s46, s3, {OV - 7*2048}")
    a(f"v_add_u32 {v(vV1)}, s46, {v(T1)}")
    a(f"s_add_u32 s46, s3, {PV}")
    a(f"v_add_u32 {v(vV2)}, s46, {v(T1)}")
    a("s_cmp_lg_u32 s45, 1")
    a(f"s_cbranch_scc1 {lab_reload}")
    a("s_lshl_b32 s3, s49, 12")
    a(f"s_add_u32 s46, s3, {OK_}")
    a(f"v_add_u32 {v(T1)}, s46, {v(vL16)}")
    for j in range(4):
        a(f"ds_read_b128 {v(PUB+4*j,4)}, {v(T1)} offset:{1024*j}")
    a(f"ds_read_b128 {v(QF,4)}, {v(T0)}")
    a(f"v_xor_b32 {v(T0)}, 32, {v(T0)}")
    a(f"ds_read_b128 {v(QF+4,4)}, {v(T0)}")
    a("s_lshl_b32 s46, s99, 15")
    a("s_add_u32 s46, s46, s3")
    for j in range(4):
        a(f"s_waitcnt lgkmcnt({5-j})")
        a(f"buffer_store_dwordx4 {v(PUB+4*j,4)}, {v(vL16)}, s[16:19], s46 offen offset:{1024*j} sc0 sc1")
    a("s_mov_b32 s33, 0")

    def kvflag():
        ldone = a.newlabel("L_kvf")
        a("s_or_b32 s3, s33, s50")
        a("s_cmp_lg_u32 s3, 0")
        a(f"s_cbranch_scc1 {ldone}")
        a("s_mov_b32 s33, 1")
        a(f"s_load_dwordx2 s[54:55], s[0:1], {ARG['w1']}")
        a("s_memrealtime s[22:23]")
        a("s_lshl_b32 s3, s99, 7")
        a("s_lshl_b32 s46, s49, 3")
        a("s_add_u32 s3, s3, s46")
        a(f"s_add_u32 s3, s3, {KFO}")
        a(f"v_mov_b32 {v(T0)}, 0")
        a("s_waitcnt vmcnt(0) lgkmcnt(0)")
        a(f"v_mov_b32 {v(PUB)}, s22")
        a(f"v_mov_b32 {v(PUB+1)}, s23")
        a("s_mov_b64 exec, 1")
        if 'nokvflag' not in EXP: a(f"buffer_store_dwordx2 {v(PUB,2)}, {v(T0)}, s[36:39], s3 offen sc0 sc1")
        a("s_mov_b64 exec, -1")
        a("s_lshl_b32 s92, s99, 3")
        a("s_add_u32 s92, s92, s49")
        a(f"s_mul_hi_u32 s56, s92, {((1 << 32) + 111) // 112}")
        a("s_mul_i32 s3, s56, 112")
        a("s_sub_u32 s57, s92, s3")
        a("s_lshl_b32 s3, s56, 6")
        a(f"v_lshrrev_b32 {v(T1)}, 2, v1")
        a(f"v_add_u32 {v(T1)}, s3, {v(T1)}")
        a(f"v_mul_u32_u24 {v(T1)}, {F*2}, {v(T1)}")
        a(f"v_and_b32 {v(T2)}, 3, v1")
        a(f"v_lshl_add_u32 {v(T1)}, {v(T2)}, 4, {v(T1)}")
        a("s_lshl_b32 s3, s57, 6")
        a(f"v_add_u32 {v(T1)}, s3, {v(T1)}")
        a("s_waitcnt lgkmcnt(0)")
        srd(a, 76, 54, 0, D * F * 2)
        for j in range(4):
            a(f"s_mov_b32 s3, {16*j*F*2}")
            a(f"buffer_load_dwordx4 {v(W1P+4*j,4)}, {v(T1)}, s[76:79], s3 offen")
        a.label(ldone)

    a.label(lab_start)
    a(f"v_lshlrev_b32 {v(T0)}, 2, {v(vHH)}")
    a(f"v_sub_u32 {v(T0)}, {v(vQQ)}, {v(T0)}")
    for r in range(16):
        c = (r & 3) + 8 * (r >> 2)
        sp = 52 + 2 * (r & 1)
        a(f"v_cmp_le_i32 s[{sp}:{sp+1}], {c}, {v(T0)}")
        a(f"v_mov_b32 {v(CM+r)}, {v(VM)}")
        a(f"v_cndmask_b32 {v(MK1+r)}, {v(vNEG)}, {v(VM)}, s[{sp}:{sp+1}]")
        a(f"v_cndmask_b32 {v(MK2+r)}, {v(VM)}, {v(vNEG)}, s[{sp}:{sp+1}]")
    for r in range(16):
        a(f"v_mov_b32 {v(OA+r)}, 0")
    for r in range(4):
        a(f"v_mov_b32 {v(SUM+r)}, 0")

    def part(vK, vV, MK, off, last_cmp, lab_out, hook=None):
        SS = [SA, SB]

        def kread(i):
            for ks in range(2):
                a(f"ds_read_b128 {v(KB_[i&1]+4*ks,4)}, {v(vK[ks])} offset:{off(i)}")

        def smf(i, h):
            if h == 0:
                a(f"v_mfma_f32_32x32x16_bf16 {v(SS[i&1],16)}, {v(KB_[i&1],4)}, {v(QF,4)}, {v(MK if i == 0 else CM,16)}")
            else:
                a(f"v_mfma_f32_32x32x16_bf16 {v(SS[i&1],16)}, {v(KB_[i&1]+4,4)}, {v(QF+4,4)}, {v(SS[i&1],16)}")
        kread(0)
        kread(1)
        a("s_waitcnt lgkmcnt(2)")
        smf(0, 0); smf(0, 1)
        for i in range(8):
            Sx = SS[i & 1]; Px = PP[i & 1]; Vx = VB_[i & 1]

            def exps(g):
                for j in range(4):
                    a(f"v_exp_f32 {v(Sx+g+j)}, {v(Sx+g+j)}")

            def addcvt(g):
                for j in range(2):
                    a(f"v_pk_add_f32 {v(SUM+2*j,2)}, {v(SUM+2*j,2)}, {v(Sx+g+2*j,2)}")
                    a(f"v_cvt_pk_bf16_f32 {v(Px+g//2+j)}, {v(Sx+g+2*j)}, {v(Sx+g+1+2*j)}")

            def pv(sidx):
                a(f"v_mfma_f32_32x32x16_bf16 {v(OA,16)}, {v(Vx+4*sidx,4)}, {v(Px+4*sidx,4)}, {v(OA,16)}")
            for sidx in range(2):
                for rd in range(2):
                    a(f"ds_read_b64_tr_b16 {v(Vx+4*sidx+2*rd,2)}, {v(vV)} offset:{off(i) + (16*sidx+8*rd)*64}")
            if i < 7:
                a("s_waitcnt lgkmcnt(4)")
                smf(i + 1, 0)
            if i == 0:
                a("s_nop 7"); a("s_nop 7"); a("s_nop 7")
            exps(0)
            if i < 7:
                smf(i + 1, 1)
                if i < 6: kread(i + 2)
            exps(4); addcvt(0)
            exps(8); addcvt(4)
            a(f"s_waitcnt lgkmcnt({2 if i < 6 else 0})")
            pv(0)
            exps(12); addcvt(8)
            a("s_nop 0")
            addcvt(12)
            a("s_nop 1")
            pv(1)
            if i < 7:
                a(f"s_cmp_eq_u32 s44, {last_cmp(i)}")
                a(f"s_cbranch_scc1 {lab_out}")
            if hook and i == 2: hook()
        a.label(lab_out)
        a("s_waitcnt lgkmcnt(0)")

    part(vK1, vV1, MK1, lambda i: (7 - i) * 2048, lambda i: i, a.newlabel("L_p1e"), hook=kvflag)
    stamp(5)
    lab_p2 = a.newlabel("L_p2")
    a("s_cmp_lg_u32 s50, 0")
    a(f"s_cbranch_scc1 {lab_p2}")
    kvflag()
    a("s_waitcnt vmcnt(0)")
    lab_nc = a.newlabel("L_nocs")
    a("s_cmp_ge_u32 s56, 16")
    a(f"s_cbranch_scc1 {lab_nc}")
    for j in range(4):
        a(f"v_lshlrev_b32 v{CA+2*j}, 16, v{W1P+j}")
        a(f"v_and_b32 v{CA+2*j+1}, 0xffff0000, v{W1P+j}")
    for i in range(1, 4):
        for j in range(4):
            a(f"v_lshlrev_b32 v{CT+2*j}, 16, v{W1P+4*i+j}")
            a(f"v_and_b32 v{CT+2*j+1}, 0xffff0000, v{W1P+4*i+j}")
        for j in range(4):
            a(f"v_pk_add_f32 {v(CA+2*j,2)}, {v(CA+2*j,2)}, {v(CT+2*j,2)}")
    a("s_nop 1")
    for mode in ("row_ror:4", "row_ror:8"):
        for j in range(8):
            a(f"v_add_f32_dpp v{CT+j}, v{CA+j}, v{CA+j} {mode} row_mask:0xf bank_mask:0xf")
        a("s_nop 1")
        for j in range(8):
            a(f"v_mov_b32 v{CA+j}, v{CT+j}")
        a("s_nop 1")
    for x in (16, 32):
        a(f"v_xor_b32 {v(T0)}, {x}, v1")
        a(f"v_lshlrev_b32 {v(T0)}, 2, {v(T0)}")
        for j in range(8):
            a(f"ds_bpermute_b32 v{CT+j}, {v(T0)}, v{CA+j}")
        a("s_waitcnt lgkmcnt(0)")
        for j in range(8):
            a(f"v_add_f32 v{CA+j}, v{CA+j}, v{CT+j}")
    srd(a, 76, 24, G.WS_CS, 16 * F * 4)
    a(f"s_mul_i32 s3, s56, {F*4}")
    a("s_lshl_b32 s57, s57, 7")
    a("s_add_u32 s3, s3, s57")
    a(f"v_lshlrev_b32 {v(T0)}, 5, v1")
    a("s_mov_b64 exec, 15")
    a(f"buffer_store_dwordx4 {v(CA,4)}, {v(T0)}, s[76:79], s3 offen")
    a(f"buffer_store_dwordx4 {v(CA+4,4)}, {v(T0)}, s[76:79], s3 offen offset:16")
    a("s_mov_b64 exec, -1")
    a.label(lab_nc)
    a("s_mov_b32 s50, 1")
    a("s_cmp_eq_u32 s28, 0")
    a(f"s_cbranch_scc1 {lab_fin}")
    lp = a.newlabel("L_poll"); lpo = a.newlabel("L_pollok"); lpd = a.newlabel("L_polld"); lsp = a.newlabel("L_spin")
    a("s_cmp_ge_u32 s49, 4")
    a(f"s_cbranch_scc1 {lsp}")
    a("s_sub_u32 s46, s99, 32")
    a("s_lshl_b32 s47, s46, 7")
    a(f"s_add_u32 s47, s47, {KFO}")
    a(f"v_and_b32 {v(T0)}, 7, v1")
    a(f"v_lshlrev_b32 {v(T0)}, 3, {v(T0)}")
    a(f"s_mov_b32 s52, {NPOLL}")
    a.label(lp)
    a(f"buffer_load_dwordx2 {v(PUB,2)}, {v(T0)}, s[36:39], s47 offen sc0 sc1")
    a("s_waitcnt vmcnt(0)")
    a(f"v_cmp_lt_u64 vcc, s[34:35], {v(PUB,2)}")
    a(f"v_cmp_gt_u64 s[54:55], s[20:21], {v(PUB,2)}")
    a("s_nop 3")
    a("s_and_b64 vcc, vcc, s[54:55]")
    a("s_cmp_eq_u64 vcc, exec")
    a(f"s_cbranch_scc1 {lpo}")
    a("s_sub_u32 s52, s52, 1")
    a("s_cmp_lg_u32 s52, 0")
    a(f"s_cbranch_scc1 {lp}")
    a(f"v_mov_b32 {v(T1)}, 2")
    a(f"s_branch {lpd}")
    a.label(lpo)
    a("s_lshl_b32 s3, s49, 13")
    a("s_lshl_b32 s46, s46, 15")
    a("s_add_u32 s46, s46, s3")
    for j in range(8):
        a(f"s_add_u32 m0, s3, {PK + 1024*j}")
        a("s_nop 0")
        a(f"buffer_load_dwordx4 {v(vL16)}, s[16:19], s46 offen sc0 sc1 lds")
        a("s_add_u32 s46, s46, 1024")
    a(f"v_mov_b32 {v(T1)}, 1")
    a.label(lpd)
    a("s_lshl_b32 s3, s49, 2")
    a(f"s_add_u32 s3, s3, {STAT2}")
    a(f"v_mov_b32 {v(T0)}, s3")
    a("s_waitcnt vmcnt(0)")
    a(f"ds_write_b32 {v(T0)}, {v(T1)}")
    a.label(lsp)
    a(f"v_mov_b32 {v(T0)}, {STAT2}")
    a(f"ds_read_b128 {v(PUB,4)}, {v(T0)}")
    a("s_waitcnt lgkmcnt(0)")
    a(f"v_min_u32 {v(T1)}, {v(PUB)}, {v(PUB+1)}")
    a(f"v_min3_u32 {v(T1)}, {v(T1)}, {v(PUB+2)}, {v(PUB+3)}")
    a(f"v_max_u32 {v(T2)}, {v(PUB)}, {v(PUB+1)}")
    a(f"v_max3_u32 {v(T2)}, {v(T2)}, {v(PUB+2)}, {v(PUB+3)}")
    a("s_nop 0")
    a(f"v_readfirstlane_b32 s3, {v(T1)}")
    a(f"v_readfirstlane_b32 s46, {v(T2)}")
    a("s_nop 3")
    a("s_cmp_eq_u32 s3, 0")
    a("s_sleep 1")
    a(f"s_cbranch_scc1 {lsp}")
    a("s_cmp_eq_u32 s46, 1")
    a(f"s_cbranch_scc1 {lab_p2}")
    a("s_mov_b32 s45, 2")
    a("s_sub_u32 s98, s98, 256")
    a(f"s_mov_b32 s100, {XQ}")
    a("s_barrier")
    a("s_cmp_lt_u32 s49, 4")
    a(f"s_cbranch_scc1 {lab_cpass}")
    a("s_setprio 2")
    a(f"s_branch {a.newlabel('L_lre')}")
    lab_lre = f"L_lre_{a.nlab}"

    a.label(lab_reload)
    a("s_lshl_b32 s3, s49, 12")
    a("s_lshl_b32 s46, s99, 15")
    a("s_add_u32 s46, s46, s3")
    for j in range(4):
        a(f"s_add_u32 m0, s3, {OK_ + 1024*j}")
        a("s_nop 0")
        a(f"buffer_load_dwordx4 {v(vL16)}, s[16:19], s46 offen sc0 sc1 lds")
        a("s_add_u32 s46, s46, 1024")
    a("s_waitcnt vmcnt(0)")
    a("s_barrier")
    a(f"s_branch {lab_start}")

    a.label(lab_p2)
    a("s_cmp_eq_u32 s28, 0")
    a(f"s_cbranch_scc1 {lab_fin}")
    part(vK2, vV2, MK2, lambda i: i * 2048, lambda i: 7 - i, a.newlabel("L_p2e"))
    a.label(lab_fin)
    stamp(6)
    a(f"v_add_f32 {v(SUM)}, {v(SUM)}, {v(SUM+1)}")
    a(f"v_add_f32 {v(SUM+2)}, {v(SUM+2)}, {v(SUM+3)}")
    a(f"v_add_f32 {v(SUM)}, {v(SUM)}, {v(SUM+2)}")
    a(f"ds_bpermute_b32 {v(SUM+1)}, {v(vX32)}, {v(SUM)}")
    a("s_waitcnt lgkmcnt(0)")
    a(f"v_add_f32 {v(SUM)}, {v(SUM)}, {v(SUM+1)}")
    lab_out = a.newlabel("L_out")
    a("s_cmp_lg_u32 s51, 0")
    a(f"s_cbranch_scc1 {lab_out}")
    lo = 2.0 ** -40 if 'forcemax' not in EXP else 2.0 ** 39
    a(f"v_mov_b32 {v(T1)}, {hex_f32(lo)}")
    a(f"v_mov_b32 {v(T0)}, {hex_f32(2.0**40)}")
    a(f"v_cmp_lt_f32 s[52:53], {v(T1)}, {v(SUM)}")
    a(f"v_cmp_lt_f32 s[54:55], {v(SUM)}, {v(T0)}")
    a("s_nop 3")
    a("s_and_b64 s[52:53], s[52:53], s[54:55]")
    a("s_cmp_eq_u64 s[52:53], exec")
    a(f"s_cbranch_scc1 {lab_out}")
    a("s_mov_b32 s51, 1")
    a(f"v_mov_b32 {v(VM)}, {v(vNEG)}")

    def maxpart(vK, MK, first_off, step, cnt_expr):
        lp = a.newlabel("L_mx"); lpe = a.newlabel("L_mxe")
        a(f"v_add_u32 {v(T0)}, {first_off}, {v(vK[0])}")
        a(f"v_add_u32 {v(T1)}, {first_off}, {v(vK[1])}")
        cnt_expr()

        def tile(C):
            a(f"ds_read_b128 {v(KB_[0],4)}, {v(T0)}")
            a(f"ds_read_b128 {v(KB_[0]+4,4)}, {v(T1)}")
            a("s_waitcnt lgkmcnt(0)")
            a(f"v_mfma_f32_32x32x16_bf16 {v(SA,16)}, {v(KB_[0],4)}, {v(QF,4)}, {v(C,16)}")
            a(f"v_mfma_f32_32x32x16_bf16 {v(SA,16)}, {v(KB_[0]+4,4)}, {v(QF+4,4)}, {v(SA,16)}")
            a("s_nop 7"); a("s_nop 7"); a("s_nop 7")
            for r in range(0, 16, 2):
                a(f"v_max3_f32 {v(VM)}, {v(VM)}, {v(SA+r)}, {v(SA+r+1)}")
            a(f"v_add_u32 {v(T0)}, {step}, {v(T0)}")
            a(f"v_add_u32 {v(T1)}, {step}, {v(T1)}")
        tile(MK)
        a.label(lp)
        a("s_cmp_eq_u32 s52, 0")
        a(f"s_cbranch_scc1 {lpe}")
        tile(CM)
        a("s_sub_u32 s52, s52, 1")
        a(f"s_branch {lp}")
        a.label(lpe)

    maxpart(vK1, MK1, 7 * 2048, -2048, lambda: a("s_mov_b32 s52, s44"))
    lmx = a.newlabel("L_mxd")
    a("s_cmp_eq_u32 s28, 0")
    a(f"s_cbranch_scc1 {lmx}")
    maxpart(vK2, MK2, 0, 2048, lambda: a("s_sub_u32 s52, 7, s44"))
    a.label(lmx)
    a(f"ds_bpermute_b32 {v(T0)}, {v(vX32)}, {v(VM)}")
    a("s_waitcnt lgkmcnt(0)")
    a(f"v_max_f32 {v(VM)}, {v(VM)}, {v(T0)}")
    a(f"v_sub_f32 {v(VM)}, 0, {v(VM)}")
    a(f"s_branch {lab_start}")

    a.label(lab_out)
    a(f"v_rcp_f32 {v(SUM)}, {v(SUM)}")
    a("s_lshl_b32 s3, s28, 8")
    a("s_lshl_b32 s46, s44, 5")
    a("s_add_u32 s3, s3, s46")
    a(f"v_add_u32 {v(T0)}, s3, {v(vQQ)}")
    a(f"v_lshlrev_b32 {v(T0)}, 11, {v(T0)}")
    a(f"v_lshl_add_u32 {v(T0)}, {v(vHH)}, 3, {v(T0)}")
    a("s_lshl_b32 s3, s29, 6")
    a(f"v_add_u32 {v(T0)}, s3, {v(T0)}")
    a("s_nop 7")
    for g in range(4):
        for r in range(4):
            a(f"v_mul_f32 v{OA+4*g+r}, v{OA+4*g+r}, {v(SUM)}")
        a(f"v_cvt_pk_bf16_f32 v{OA+4*g}, v{OA+4*g}, v{OA+4*g+1}")
        a(f"v_cvt_pk_bf16_f32 v{OA+4*g+1}, v{OA+4*g+2}, v{OA+4*g+3}")
        a(f"buffer_store_dwordx2 {v(OA+4*g,2)}, {v(T0)}, s[12:15], 0 offen offset:{16*g}")
    if 'stamp' in EXP: a("s_waitcnt vmcnt(0)")
    stamp(7)
    stamp_out()
    a(f"s_branch {end}")

    a.label(lab_lre)
    a("s_lshl_b32 s3, s30, 6")
    a(f"v_lshrrev_b32 {v(t0)}, 3, v1")
    a(f"v_add_u32 {v(t0)}, s3, {v(t0)}")
    for i in range(PA):
        a(f"v_add_u32 {v(t1)}, {8*i}, {v(t0)}")
        a(f"v_lshrrev_b32 {v(t2)}, 1, {v(t1)}")
        a(f"v_and_b32 {v(t2)}, 7, {v(t2)}")
        a(f"v_and_b32 {v(t3)}, 7, v1")
        a(f"v_xor_b32 {v(t2)}, {v(t2)}, {v(t3)}")
        a(f"v_add_u32 {v(t1)}, s98, {v(t1)}")
        a(f"v_mul_u32_u24 {v(t1)}, {lda}, {v(t1)}")
        a(f"v_lshl_add_u32 {v(vA[i])}, {v(t2)}, 4, {v(t1)}")
    a("s_lshl_b32 s3, s29, 6")
    for i in range(PB):
        a(f"s_mul_i32 s46, s30, {PB}")
        a(f"s_add_u32 s46, s46, {i}")
        a("s_lshr_b32 s47, s46, 2")
        a("s_and_b32 s46, s46, 3")
        a("s_lshl_b32 s46, s46, 4")
        a("s_lshl_b32 s47, s47, 11")
        a("s_add_u32 s47, s47, s3")
        a(f"v_lshrrev_b32 {v(t0)}, 2, v1")
        a(f"v_add_u32 {v(t0)}, s46, {v(t0)}")
        a(f"v_and_b32 {v(t1)}, 3, v1")
        a(f"v_bfe_u32 {v(t2)}, {v(t0)}, 3, 1")
        a(f"v_lshlrev_b32 {v(t2)}, 1, {v(t2)}")
        a(f"v_xor_b32 {v(t1)}, {v(t1)}, {v(t2)}")
        a(f"v_mul_u32_u24 {v(t0)}, {N*2}, {v(t0)}")
        a(f"v_lshl_add_u32 {v(t0)}, {v(t1)}, 4, {v(t0)}")
        a(f"v_add_u32 {v(vB[i])}, s47, {v(t0)}")
    a(f"s_branch {lab_lpass}")
    a.label(end)
    a("s_endpgm")
    return dict(name=name, grid=256, block=512, lds=lds, desc=G.kernel_desc(name, 256))
```

```python
import math, struct, os


def gen_qa(G, a, name, wpf=None):
    v, s, srd, hex_f32 = G.v, G.s, G.srd, G.hex_f32
    ARG, EXP = G.ARG, G.EXP
    S, D, F, DH = G.S, G.D, G.F, G.DH
    MB = 1 << 20
    WS_RS = 3 * MB
    KFO = 65536
    WS_KV = 4 * MB
    K = D; N = 3 * D
    BM, BN, BK, NSTAGE = 256, 96, 64, 3
    MT, NTW, RB = 4, 6, 64
    ABYTES = BM * BK * 2; BBYTES = BK * BN * 2; STAGE = ABYTES + BBYTES
    PA, PB = 8, 3
    P = PA + PB
    NS = K // BK
    lda = K * 2
    XQ, PK, PV, OQ, OK_, OV = 49152, 65536, 81920, 98304, 114688, 131072
    RTAB = 147456; CTAB = 149504; STG = 149888; STAT = 149952; NONCE = 149960; STAT2 = 150016
    lds = 163840
    NPOLL = int(os.environ.get('NPOLL', '48'))
    vXb = [2, 3]; vWb = list(range(4, 10)); vXc = [10, 11]; vWc = list(range(12, 18))
    vT = list(range(18, 26))
    FX = [28, 44]; FW = [60, 84]; ACC = 108; CSA = 204; ONE = 212; PFD = 216; PFV = 220
    QF = 224
    XPA, XPB = 221, 222
    DUM = 232
    LA = int(os.environ.get('XLA', '5'))
    QW2 = 'qw2' in EXP
    SIDEATT = os.environ.get('SIDEAT', 'x') == 'att'
    W1S = 164; W2S = [232, 236, 240, 244, 248, 252, 196]
    t0, t1, t2, t3 = vT[0], vT[1], vT[2], vT[3]
    vA = list(range(2, 10)); vB = list(range(10, 13))

    def acc(nt, mt):
        return ACC + 4 * (nt * MT + mt)

    def stamp(i):
        if 'itst' in EXP and i in (4, 5, 6): return
        if 'stamp' in EXP:
            a(f"s_memtime s[{60+2*i}:{61+2*i}]")
            if i >= 4: a("s_waitcnt lgkmcnt(0)")

    def stamp_out():
        if 'stamp' not in EXP: return
        a("s_waitcnt lgkmcnt(0)")
        srd(a, 80, 24, 200 * MB, 1 << 20)
        a("s_lshl_b32 s3, s2, 3")
        a("s_add_u32 s3, s3, s49")
        a("s_lshl_b32 s3, s3, 6")
        a("v_mov_b32 v2, s3")
        a("s_lshl_b32 s3, s101, 4")
        a("s_or_b32 s61, s3, s45")
        a("s_lshl_b32 s3, s51, 8")
        a("s_or_b32 s61, s3, s61")
        for i in range(8):
            a(f"v_mov_b32 v4, s{60+2*i}")
            a(f"v_mov_b32 v5, s{61+2*i}")
            a(f"buffer_store_dwordx2 v[4:5], v2, s[80:83], 0 offen offset:{8*i}")
            a("s_nop 1")

    def stats_load(Dr, T, srow):
        a(f"v_lshlrev_b32 {v(T)}, 5, v1")
        a(f"s_lshl_b32 s3, s{srow}, 11")
        for r in range(2):
            for j in range(2):
                a(f"buffer_load_dwordx4 {v(Dr+8*r+4*j,4)}, {v(T)}, s[4:7], s3 offen offset:{2048*r+16*j}")

    def stats_math(Dr, T):
        A0 = T; A1 = T + 4; O1 = T + 8; AD = T + 9
        a(f"v_mov_b32 {v(O1)}, 0x3f803f80")
        for j in range(4):
            a(f"v_mov_b32 {v(A0+j)}, 0")
        for r in range(2):
            for j in range(8):
                d = v(Dr + 8 * r + j)
                a(f"v_dot2_f32_bf16 {v(A0+2*r)}, {d}, {v(O1)}, {v(A0+2*r)}")
                a(f"v_dot2_f32_bf16 {v(A0+2*r+1)}, {d}, {d}, {v(A0+2*r+1)}")
        a("s_nop 3")
        cur, oth = A0, A1
        for mode in ("quad_perm:[1,0,3,2]", "quad_perm:[2,3,0,1]", "row_half_mirror", "row_mirror"):
            for j in range(4):
                a(f"v_add_f32_dpp {v(oth+j)}, {v(cur+j)}, {v(cur+j)} {mode} row_mask:0xf bank_mask:0xf")
            a("s_nop 1")
            cur, oth = oth, cur
        assert cur == A0
        for x in (16, 32):
            a(f"v_xor_b32 {v(AD)}, {x}, v1")
            a(f"v_lshlrev_b32 {v(AD)}, 2, {v(AD)}")
            for j in range(4):
                a(f"ds_bpermute_b32 {v(A1+j)}, {v(AD)}, {v(A0+j)}")
            a("s_waitcnt lgkmcnt(0)")
            for j in range(4):
                a(f"v_add_f32 {v(A0+j)}, {v(A0+j)}, {v(A1+j)}")
        for r in range(2):
            sm, sq = A0 + 2 * r, A0 + 2 * r + 1
            a(f"v_mul_f32 {v(sm)}, {hex_f32(1.0/K)}, {v(sm)}")
            a(f"v_mul_f32 {v(sq)}, {hex_f32(1.0/K)}, {v(sq)}")
            a(f"v_fma_f32 {v(sq)}, -{v(sm)}, {v(sm)}, {v(sq)}")
            a(f"v_max_f32 {v(sq)}, 0, {v(sq)}")
            a(f"v_add_f32 {v(sq)}, {hex_f32(1e-5)}, {v(sq)}")
            a(f"v_rsq_f32 {v(sq)}, {v(sq)}")
            a("s_nop 0")
            a(f"v_mul_f32 {v(A1)}, {v(sm)}, {v(sq)}")
            a(f"v_mov_b32 {v(sm)}, {v(sq)}")
            a(f"v_sub_f32 {v(sq)}, 0, {v(A1)}")

    def local_stats(Dr, T):
        lp = a.newlabel("L_ls")
        a("s_mov_b32 s101, 1")
        a("s_lshl_b32 s46, s49, 5")
        a("s_add_u32 s47, s46, s98")
        a("s_mov_b32 s52, 16")
        a.label(lp)
        stats_load(Dr, T, 47)
        a("s_waitcnt vmcnt(0)")
        stats_math(Dr, T)
        a("s_lshl_b32 s3, s46, 3")
        a(f"s_add_u32 s3, s3, {RTAB}")
        a(f"v_mov_b32 {v(T+9)}, s3")
        a(f"ds_write_b128 {v(T+9)}, {v(T,4)}")
        a("s_add_u32 s46, s46, 2")
        a("s_add_u32 s47, s47, 2")
        a("s_sub_u32 s52, s52, 1")
        a("s_cmp_lg_u32 s52, 0")
        a(f"s_cbranch_scc1 {lp}")
        a("s_waitcnt lgkmcnt(0)")
        a("s_barrier")

    G.kernel_header(a, name)
    end = a.newlabel("L_end")
    stamp(0)
    lab_loader = a.newlabel("L_loader")
    lab_att = a.newlabel("L_att")
    a("s_cmp_ge_u32 s2, 256")
    a(f"s_cbranch_scc1 {end}")
    a(f"s_load_dwordx2 s[24:25], s[0:1], {ARG['ws']}")
    a(f"s_load_dwordx2 s[58:59], s[0:1], {ARG['x']}")
    a(f"s_load_dwordx2 s[26:27], s[0:1], {ARG['wqkv']}")
    a("s_memrealtime s[34:35]")
    a("s_and_b32 s3, s2, 7")
    a("s_lshr_b32 s46, s2, 3")
    a("s_and_b32 s29, s3, 3")
    a("s_lshl_b32 s29, s29, 3")
    a("s_and_b32 s47, s46, 7")
    a("s_add_u32 s29, s29, s47")
    a("s_lshr_b32 s28, s3, 2")
    a("s_lshl_b32 s28, s28, 2")
    a("s_lshr_b32 s47, s46, 3")
    a("s_add_u32 s28, s28, s47")
    a("s_lshl_b32 s99, s28, 5")
    a("s_add_u32 s99, s99, s29")
    a("s_lshl_b32 s98, s28, 8")
    a("v_and_b32 v1, 63, v0")
    a(f"v_lshrrev_b32 {v(t0)}, 6, v0")
    a("s_nop 0")
    a(f"v_readfirstlane_b32 s49, {v(t0)}")
    a("s_nop 3")
    a("s_and_b32 s30, s49, 3")
    a("s_mov_b32 s45, 1")
    a("s_mov_b32 s101, 0")
    a("s_mov_b32 s50, 0")
    a("s_mov_b32 s51, 0")
    a(f"s_mov_b32 s100, {OQ}")

    def build_srds():
        a("s_waitcnt lgkmcnt(0)")
        srd(a, 4, 58, 0, S * D * 2)
        srd(a, 8, 26, 0, K * N * 2)
        srd(a, 12, 24, G.WS_O, S * D * 2)
        srd(a, 16, 24, WS_KV, 256 * 32768)
        a("s_add_u32 s20, s34, 0x1000000")
        a("s_addc_u32 s21, s35, 0")
        srd(a, 36, 24, WS_RS, 131072)

    a("s_cmp_ge_u32 s49, 4")
    a(f"s_cbranch_scc1 {lab_loader}")

    build_srds()
    a("s_lshl_b32 s3, s2, 2")
    a("s_add_u32 s93, s3, s30")
    for q, (arg, nbytes) in enumerate(wpf):
        a(f"s_load_dwordx2 s[{76+2*q}:{77+2*q}], s[0:1], {ARG[arg]}")
    a("s_waitcnt lgkmcnt(0)")
    def wsel(q):
        arg, nbytes = wpf[q]
        srd(a, 84, 76 + 2 * q, 0, nbytes)
        a(f"s_mul_i32 s92, s93, {nbytes//1024}")
    wsel(0)
    if 'qcpf' in EXP:
        lh = a.newlabel("L_pc")
        a("s_getpc_b64 s[46:47]")
        a.label(lh)
        a(f"s_sub_u32 s46, s46, {lh}-{name}")
        a("s_subb_u32 s47, s47, 0")
        a("s_lshr_b32 s3, s2, 3")
        a("s_lshl_b32 s3, s3, 2")
        a("s_add_u32 s3, s3, s30")
        a("s_lshl_b32 s3, s3, 10")
        a(f"s_min_u32 s3, s3, {end}-{name}-1024")
        a(f"v_lshlrev_b32 {v(t0)}, 4, v1")
        a(f"v_add_u32 {v(t0)}, s3, {v(t0)}")
        a(f"global_load_dwordx4 {v(DUM,4)}, {v(t0)}, s[46:47]")
    a("s_lshr_b32 s3, s2, 3")
    a("s_lshl_b32 s3, s3, 2")
    a("s_add_u32 s3, s3, s30")
    a("s_lshr_b32 s46, s28, 2")
    a("s_lshl_b32 s46, s46, 10")
    a("s_lshl_b32 s47, s3, 3")
    a("s_add_u32 s46, s46, s47")
    a(f"v_lshrrev_b32 {v(t0)}, 3, v1")
    a(f"v_add_u32 {v(t0)}, s46, {v(t0)}")
    a(f"v_lshlrev_b32 {v(t0)}, 11, {v(t0)}")
    a(f"v_and_b32 {v(t1)}, 7, v1")
    a(f"v_lshl_add_u32 {v(XPA)}, {v(t1)}, 4, {v(t0)}")
    a("s_lshr_b32 s46, s3, 5")
    a("s_and_b32 s47, s3, 31")
    a("s_lshl_b32 s47, s47, 1")
    a(f"v_lshrrev_b32 {v(t0)}, 5, v1")
    a(f"v_add_u32 {v(t0)}, s47, {v(t0)}")
    a(f"v_mul_u32_u24 {v(t0)}, {N*2}, {v(t0)}")
    a(f"v_and_b32 {v(t1)}, 31, v1")
    a(f"v_lshl_add_u32 {v(t0)}, {v(t1)}, 4, {v(t0)}")
    a("s_lshl_b32 s46, s46, 11")
    a("s_lshr_b32 s47, s29, 3")
    a("s_lshl_b32 s47, s47, 9")
    a("s_add_u32 s46, s46, s47")
    a("s_cmp_ge_u32 s3, 96")
    a("s_cselect_b32 s46, 0x7f000000, s46")
    a(f"v_add_u32 {v(XPB)}, s46, {v(t0)}")
    a(f"s_mov_b32 s40, {2*BK*2}")
    a(f"s_mov_b32 s41, {2*BK*N*2}")

    def xpf():
        if LA == 0: return
        a(f"buffer_load_dwordx4 {v(DUM,4)}, {v(XPA)}, s[4:7], s40 offen")
        a(f"buffer_load_dwordx4 {v(DUM,4)}, {v(XPB)}, s[8:11], s41 offen")
        a(f"s_add_u32 s40, s40, {BK*2}")
        a(f"s_add_u32 s41, s41, {BK*N*2}")
        a(f"s_min_u32 s40, s40, {(NS-1)*BK*2}")
        a(f"s_min_u32 s41, s41, {(NS-1)*BK*N*2}")
    for _ in range(2, LA + 1):
        xpf()
    lab_cpass = a.newlabel("L_cpass")
    a.label(lab_cpass)
    a(f"v_lshlrev_b32 {v(PFV)}, 4, v1")
    a(f"v_and_b32 {v(t0)}, 15, v1")
    a("s_lshl_b32 s3, s30, 6")
    a(f"v_add_u32 {v(t0)}, s3, {v(t0)}")
    a(f"v_lshlrev_b32 {v(t0)}, 7, {v(t0)}")
    a(f"v_lshrrev_b32 {v(t1)}, 4, v1")
    a(f"v_bfe_u32 {v(t2)}, v1, 1, 3")
    a(f"v_xor_b32 {v(t3)}, {v(t1)}, {v(t2)}")
    a(f"v_lshl_add_u32 {v(vXb[0])}, {v(t3)}, 4, {v(t0)}")
    a(f"v_xor_b32 {v(t3)}, 4, {v(t3)}")
    a(f"v_lshl_add_u32 {v(vXb[1])}, {v(t3)}, 4, {v(t0)}")
    a(f"v_bfe_u32 {v(t0)}, v1, 2, 2")
    a(f"v_lshl_add_u32 {v(t2)}, {v(t1)}, 3, {v(t0)}")
    a(f"v_and_b32 {v(t3)}, 1, {v(t1)}")
    a(f"v_mul_u32_u24 {v(t2)}, {RB}, {v(t2)}")
    a(f"v_and_b32 {v(t0)}, 3, v1")
    a(f"v_lshl_add_u32 {v(t2)}, {v(t0)}, 3, {v(t2)}")
    a(f"v_add_u32 {v(t2)}, {ABYTES}, {v(t2)}")
    for nt in range(NTW):
        blk, p = nt >> 1, nt & 1
        a(f"v_xor_b32 {v(t0)}, {p}, {v(t3)}")
        a(f"v_lshl_add_u32 {v(t0)}, {v(t0)}, 5, {v(t2)}")
        a(f"v_add_u32 {v(vWb[nt])}, {blk*64*RB}, {v(t0)}")
    for i in range(4 * MT * NTW + 8):
        a(f"v_mov_b32 v{ACC+i}, 0")
    for i in range(4):
        a(f"v_mov_b32 {v(ONE+i)}, 0x3f803f80")
    a("s_mov_b32 s42, 0")

    def set_cur():
        for kk in range(2):
            a(f"v_add_u32 {v(vXc[kk])}, s42, {v(vXb[kk])}")
        for nt in range(NTW):
            a(f"v_add_u32 {v(vWc[nt])}, s42, {v(vWb[nt])}")
        a(f"s_add_u32 s42, s42, {STAGE}")
        a(f"s_cmp_ge_u32 s42, {STAGE*NSTAGE}")
        a("s_cselect_b32 s42, 0, s42")

    def read_list(kk, f):
        L = []
        for nt in range(NTW):
            if nt < MT:
                L.append(f"ds_read_b128 {v(FX[f]+4*nt,4)}, {v(vXc[kk])} offset:{nt*2048}")
            for rd in range(2):
                L.append(f"ds_read_b64_tr_b16 {v(FW[f]+4*nt+2*rd,2)}, {v(vWc[nt])} offset:{kk*32*RB+rd*4*RB}")
        return L

    def mfma_list(f):
        L = []
        for nt in range(NTW):
            for mt in range(MT):
                L.append(f"v_mfma_f32_16x16x32_bf16 {v(acc(nt,mt),4)}, {v(FW[f]+4*nt,4)}, {v(FX[f]+4*mt,4)}, {v(acc(nt,mt),4)}")
        return L

    def cs_block(f, wv=None):
        if 'nocs' in EXP: return
        if wv is not None:
            a(f"v_mfma_f32_16x16x32_bf16 {v(CSA,4)}, {v(FW[f]+4*wv,4)}, {v(ONE,4)}, {v(CSA,4)}")
            if wv < 2:
                a(f"v_mfma_f32_16x16x32_bf16 {v(CSA+4,4)}, {v(FW[f]+4*(wv+4),4)}, {v(ONE,4)}, {v(CSA+4,4)}")
            return
        done = a.newlabel("L_cs")
        for w in range(4):
            nx = a.newlabel("L_csn")
            if w < 3:
                a(f"s_cmp_lg_u32 s30, {w}")
                a(f"s_cbranch_scc1 {nx}")
            a(f"v_mfma_f32_16x16x32_bf16 {v(CSA,4)}, {v(FW[f]+4*w,4)}, {v(ONE,4)}, {v(CSA,4)}")
            if w < 2:
                a(f"v_mfma_f32_16x16x32_bf16 {v(CSA+4,4)}, {v(FW[f]+4*(w+4),4)}, {v(ONE,4)}, {v(CSA+4,4)}")
            if w < 3:
                a(f"s_branch {done}")
                a.label(nx)
        a.label(done)

    def inter(kk, fr, fm, wv=None):
        R = read_list(kk, fr); Mm = mfma_list(fm)
        ri = 0
        for i in range(len(Mm)):
            a(Mm[i])
            if ri < len(R): a(R[ri]); ri += 1
        while ri < len(R): a(R[ri]); ri += 1
        cs_block(fm, wv)

    stamp(1)
    a("s_barrier")
    stamp(2)
    set_cur()
    for x in read_list(0, 0): a(x)
    a("s_waitcnt lgkmcnt(0)")
    inter(1, 1, 0)
    a("s_waitcnt lgkmcnt(0)")
    a(f"s_mov_b32 s48, {NS-1}")
    WOHI = int(os.environ.get('WOHI', '3'))
    EV = [(12, None)] + [(WOHI - i, 0) for i in range(wpf[0][1] >> 20)]
    a("s_mov_b32 s94, 12")
    loops = [a.newlabel("L_cloop") for _ in range(4)]
    ldone = a.newlabel("L_cdone")
    for w in range(1, 4):
        a(f"s_cmp_eq_u32 s30, {w}")
        a(f"s_cbranch_scc1 {loops[w]}")
    rare = []
    for w in range(4):
        a.label(loops[w])
        a("s_barrier")
        set_cur()
        inter(0, 0, 1, w)
        xpf()
        a("s_waitcnt lgkmcnt(0)")
        inter(1, 1, 0, w)
        lpub = a.newlabel("L_pub"); lback = a.newlabel("L_pubb")
        a("s_cmp_eq_u32 s48, s94")
        a(f"s_cbranch_scc1 {lpub}")
        a.label(lback)
        rare.append(('pub', w, lpub, lback))
        if 'itst' in EXP:
            for sl, it in ((4, 12), (5, 8), (6, 4)):
                lx = a.newlabel("L_it")
                a(f"s_cmp_lg_u32 s48, {it}")
                a(f"s_cbranch_scc1 {lx}")
                a(f"s_memtime s[{60+2*sl}:{61+2*sl}]")
                a.label(lx)
        a("s_waitcnt lgkmcnt(0)")
        a("s_sub_u32 s48, s48, 1")
        a("s_cmp_lg_u32 s48, 0")
        a(f"s_cbranch_scc1 {loops[w]}")
        a(f"s_branch {ldone}")
    for kind, x, lab, lb in rare:
        a.label(lab)
        for ev in range(1, len(EV)):
            nx = a.newlabel("L_ev")
            a(f"s_cmp_lg_u32 s48, {EV[ev][0]}")
            a(f"s_cbranch_scc1 {nx}")
            a(f"buffer_load_dwordx4 {v(DUM,4)}, {v(PFV)}, s[84:87], s92 offen")
            a("s_add_u32 s92, s92, 1024")
            a(f"s_mov_b32 s94, {EV[ev+1][0] if ev + 1 < len(EV) else 0}")
            a(f"s_branch {lb}")
            a.label(nx)
        a(f"s_mov_b32 s94, {EV[1][0]}")
        if True:
            a("s_cmp_lg_u32 s45, 1")
            a(f"s_cbranch_scc1 {lb}")
            a("s_memrealtime s[22:23]")
            a(f"v_and_b32 {v(t1)}, 1, v1")
            a(f"v_lshlrev_b32 {v(t0)}, 3, {v(t1)}")
            a(f"v_add_u32 {v(t0)}, {STG + 16*x}, {v(t0)}")
            a(f"ds_read_b64 {v(PFD,2)}, {v(t0)}")
            a("s_lshl_b32 s3, s29, 3")
            a("s_add_u32 s3, s3, s98")
            a(f"s_add_u32 s3, s3, {2*x}")
            a("s_lshl_b32 s3, s3, 4")
            a(f"v_lshlrev_b32 {v(t0)}, 4, {v(t1)}")
            a("s_waitcnt lgkmcnt(0)")
            a(f"v_mov_b32 {v(PFD+2)}, s22")
            a(f"v_mov_b32 {v(PFD+3)}, s23")
            a("s_mov_b64 exec, 3")
            if 'nostatflag' not in EXP: a(f"buffer_store_dwordx4 {v(PFD,4)}, {v(t0)}, s[36:39], s3 offen sc0 sc1")
            a("s_mov_b64 exec, -1")
        a(f"s_branch {lb}")
    a.label(ldone)
    stamp(3)
    cs_block(1)
    for x in mfma_list(1): a(x)
    a(f"v_lshrrev_b32 {v(t0)}, 4, v1")
    a(f"v_lshlrev_b32 {v(t0)}, 4, {v(t0)}")
    a("s_lshl_b32 s3, s30, 6")
    a(f"s_add_u32 s3, s3, {CTAB}")
    a(f"v_add_u32 {v(t1)}, s3, {v(t0)}")
    a("s_mov_b32 exec_lo, 0x00010001")
    a("s_mov_b32 exec_hi, 0x00010001")
    a(f"ds_write_b128 {v(t1)}, {v(CSA,4)}")
    lcs = a.newlabel("L_cs2")
    a("s_cmp_ge_u32 s30, 2")
    a(f"s_cbranch_scc1 {lcs}")
    a(f"ds_write_b128 {v(t1)}, {v(CSA+4,4)} offset:256")
    a.label(lcs)
    a("s_mov_b64 exec, -1")
    a(f"v_add_u32 {v(t0)}, {CTAB}, {v(t0)}")
    a(f"v_mov_b32 {v(t1)}, {STAT}")
    a("s_waitcnt lgkmcnt(0)")
    a("s_barrier")
    RT = FX[0]; RQ = RT + 8; CS = RQ + 8; GE = CS + 24
    assert GE + 8 <= ACC
    a(f"ds_read_b32 {v(t2)}, {v(t1)}")
    for nt in range(NTW):
        a(f"ds_read_b128 {v(CS+4*nt,4)}, {v(t0)} offset:{64*nt}")
    a("s_waitcnt lgkmcnt(0)")
    a(f"v_readfirstlane_b32 s3, {v(t2)}")
    a("s_nop 3")
    lok = a.newlabel("L_stok")
    a("s_cmp_eq_u32 s3, 1")
    a(f"s_cbranch_scc1 {lok}")
    local_stats(GE + 8, GE + 24)
    a.label(lok)
    a(f"v_and_b32 {v(t2)}, 15, v1")
    a("s_lshl_b32 s3, s30, 6")
    a(f"v_add_u32 {v(t2)}, s3, {v(t2)}")
    a(f"v_lshlrev_b32 {v(t0)}, 3, {v(t2)}")
    a(f"v_add_u32 {v(t0)}, {RTAB}, {v(t0)}")
    for mt in range(MT):
        a(f"ds_read_b64 {v(RT+2*mt,2)}, {v(t0)} offset:{128*mt}")
    a(f"v_lshlrev_b32 {v(t2)}, 6, {v(t2)}")
    a(f"v_add_u32 {v(t2)}, s100, {v(t2)}")
    a(f"v_lshrrev_b32 {v(t3)}, 4, v1")
    DV = vT[4]; DQ0 = vT[5]; DQ1 = vT[6]
    a(f"v_lshl_add_u32 {v(DV)}, {v(t3)}, 3, {v(t2)}")
    a(f"v_lshrrev_b32 {v(t0)}, 1, {v(t3)}")
    a(f"v_bfe_u32 {v(t1)}, v1, 2, 2")
    a(f"v_xor_b32 {v(t0)}, {v(t0)}, {v(t1)}")
    a(f"v_lshl_add_u32 {v(t0)}, {v(t0)}, 4, {v(t2)}")
    a(f"v_and_b32 {v(t1)}, 1, {v(t3)}")
    a(f"v_lshl_add_u32 {v(DQ0)}, {v(t1)}, 3, {v(t0)}")
    a(f"v_xor_b32 {v(DQ1)}, 32, {v(DQ0)}")
    sc = (DH ** -0.5) * math.log2(math.e)
    a(f"s_mov_b32 s52, {hex_f32(sc)}")
    a("s_waitcnt lgkmcnt(0)")
    for i in range(8):
        a(f"v_mul_f32 {v(RQ+i)}, s52, {v(RT+i)}")
    for nt in range(NTW):
        R_ = RQ if nt < 2 else RT
        for mp in range(0, MT, 2):
            c0 = acc(nt, mp)
            for q in range(2):
                for j in range(2):
                    a(f"v_pk_mul_f32 {v(GE+4*q+2*j,2)}, {v(CS+4*nt+2*j,2)}, {v(R_+2*(mp+q),2)} op_sel:[0,1] op_sel_hi:[1,1]")
            for q in range(2):
                for j in range(2):
                    cc = v(c0 + 4 * q + 2 * j, 2)
                    a(f"v_pk_fma_f32 {cc}, {cc}, {v(R_+2*(mp+q),2)}, {v(GE+4*q+2*j,2)} op_sel:[0,0,0] op_sel_hi:[1,0,1]")
            for j in range(4):
                a(f"v_cvt_pk_bf16_f32 {v(c0+j)}, {v(c0+2*j)}, {v(c0+2*j+1)}")
            for q in range(2):
                sec = nt >> 1
                if sec == 2:
                    a(f"ds_write_b64 {v(DV)}, {v(c0+2*q,2)} offset:{(mp+q)*1024 + sec*16384 + 32*(nt&1)}")
                else:
                    a(f"ds_write_b64 {v(DQ1 if nt & 1 else DQ0)}, {v(c0+2*q,2)} offset:{(mp+q)*1024 + sec*16384}")
    a("s_waitcnt vmcnt(0) lgkmcnt(0)")
    stamp(4)
    a("s_barrier")
    a(f"s_branch {lab_att}")

    a.label(lab_loader)
    a("s_setprio 2")
    a(f"s_load_dwordx2 s[94:95], s[0:1], {ARG['w1']}")
    a(f"s_load_dwordx2 s[96:97], s[0:1], {ARG['w2']}")
    LSD = 40; LST = 56; LNO = 68; LTB = 72
    a("s_lshl_b32 s3, s30, 6")
    a(f"v_lshrrev_b32 {v(t0)}, 3, v1")
    a(f"v_add_u32 {v(t0)}, s3, {v(t0)}")
    for i in range(PA):
        a(f"v_add_u32 {v(t1)}, {8*i}, {v(t0)}")
        a(f"v_lshrrev_b32 {v(t2)}, 1, {v(t1)}")
        a(f"v_and_b32 {v(t2)}, 7, {v(t2)}")
        a(f"v_and_b32 {v(t3)}, 7, v1")
        a(f"v_xor_b32 {v(t2)}, {v(t2)}, {v(t3)}")
        a(f"v_add_u32 {v(t1)}, s98, {v(t1)}")
        a(f"v_mul_u32_u24 {v(t1)}, {lda}, {v(t1)}")
        a(f"v_lshl_add_u32 {v(vA[i])}, {v(t2)}, 4, {v(t1)}")
    a("s_lshl_b32 s3, s29, 6")
    for i in range(PB):
        a(f"s_mul_i32 s46, s30, {PB}")
        a(f"s_add_u32 s46, s46, {i}")
        a("s_lshr_b32 s47, s46, 2")
        a("s_and_b32 s46, s46, 3")
        a("s_lshl_b32 s46, s46, 4")
        a("s_lshl_b32 s47, s47, 11")
        a("s_add_u32 s47, s47, s3")
        a(f"v_lshrrev_b32 {v(t0)}, {3 if 'bfull' in EXP else 2}, v1")
        a(f"v_add_u32 {v(t0)}, s46, {v(t0)}")
        a(f"v_and_b32 {v(t1)}, {7 if 'bfull' in EXP else 3}, v1")
        if 'bfull' in EXP: a("s_and_b32 s47, s47, 0xffffff80")
        a(f"v_bfe_u32 {v(t2)}, {v(t0)}, 3, 1")
        a(f"v_lshlrev_b32 {v(t2)}, 1, {v(t2)}")
        a(f"v_xor_b32 {v(t1)}, {v(t1)}, {v(t2)}")
        a(f"v_mul_u32_u24 {v(t0)}, {N*2}, {v(t0)}")
        a(f"v_lshl_add_u32 {v(t0)}, {v(t1)}, 4, {v(t0)}")
        a(f"v_add_u32 {v(vB[i])}, s47, {v(t0)}")
    a(f"s_mul_i32 s31, s30, {PA*1024}")
    a(f"s_mul_i32 s32, s30, {PB*1024}")
    a(f"s_add_u32 s32, s32, {ABYTES}")
    build_srds()
    a("s_lshl_b32 s46, s29, 3")
    a("s_add_u32 s46, s46, s98")
    a("s_lshl_b32 s47, s30, 1")
    a("s_add_u32 s47, s47, s46")
    stats_load(LSD, LST, 47)
    lab_lpass = a.newlabel("L_lpass")
    a.label(lab_lpass)
    a("s_mov_b32 s40, 0")
    a("s_mov_b32 s41, 0")
    a("s_mov_b32 s43, 0")
    a("s_mov_b32 s53, 0")

    def dma():
        a("s_add_u32 s33, s43, s31")
        for i in range(PA):
            a(f"s_add_u32 m0, s33, {i*1024}")
            a("s_nop 0")
            a(f"buffer_load_dwordx4 {v(vA[i])}, s[4:7], s40 offen lds")
        a("s_add_u32 s33, s43, s32")
        for i in range(PB):
            a(f"s_add_u32 m0, s33, {i*1024}")
            a("s_nop 0")
            a(f"buffer_load_dwordx4 {v(vB[i])}, s[8:11], s41 offen lds")
        a(f"s_add_u32 s40, s40, {BK*2}")
        a(f"s_add_u32 s41, s41, {BK*N*2}")
        a(f"s_add_u32 s43, s43, {STAGE}")
        a(f"s_cmp_ge_u32 s43, {STAGE*NSTAGE}")
        a("s_cselect_b32 s43, 0, s43")

    nloop = NS - NSTAGE + 1
    lab_l2p = a.newlabel("L_l2p"); lab_lend = a.newlabel("L_lend")
    a("s_cmp_lg_u32 s45, 1")
    a(f"s_cbranch_scc1 {lab_l2p}")
    stamp(1)
    Q = []
    def dmaq(j):
        dma(); Q.extend([('d', j)] * P)
    def waitq(*tags):
        last = max(i for i, x in enumerate(Q) if x in tags)
        a(f"s_waitcnt vmcnt({len(Q) - 1 - last})")
    for j in range(NSTAGE - 1):
        dmaq(j)
    stamp(2)
    SA1, SA2 = 218, 219
    a("s_lshl_b32 s92, s99, 2")
    a("s_add_u32 s92, s92, s30")
    srd(a, 76, 94, 0, D * F * 2)
    srd(a, 88, 96, 0, F * D * 2)
    a(f"v_lshrrev_b32 {v(t0)}, 3, v1")
    a(f"v_and_b32 {v(t1)}, 7, v1")
    a(f"v_lshlrev_b32 {v(t1)}, 4, {v(t1)}")
    a(f"v_lshl_add_u32 {v(SA2)}, {v(t0)}, 11, {v(t1)}")
    a("s_lshr_b32 s3, s92, 6")
    a("s_lshl_b32 s3, s3, 7")
    a("s_and_b32 s46, s92, 63")
    a(f"s_mul_i32 s46, s46, {56*D*2}")
    a("s_add_u32 s3, s3, s46")
    a(f"v_add_u32 {v(SA2)}, s3, {v(SA2)}")
    a("s_min_u32 s46, s92, 895")
    a(f"s_mul_hi_u32 s93, s46, {((1 << 32) + 55) // 56}")
    a("s_mul_i32 s3, s93, 56")
    a("s_sub_u32 s84, s46, s3")
    a(f"v_mul_u32_u24 {v(t0)}, {F*2}, {v(t0)}")
    a(f"v_add_u32 {v(SA1)}, {v(t0)}, {v(t1)}")
    a(f"s_mul_i32 s3, s93, {64*F*2}")
    a("s_lshl_b32 s46, s84, 7")
    a("s_add_u32 s3, s3, s46")
    a(f"v_add_u32 {v(SA1)}, s3, {v(SA1)}")
    side = [(W1S + 4 * j, SA1, 76, 8 * j * F * 2) for j in range(8)] + ([(W2S[j], SA2, 88, 8 * j * D * 2) for j in range(7)] if QW2 else [])
    SIDE0 = int(os.environ.get('SIDE0', '16')); SPI = int(os.environ.get('SPI', '1'))
    def sideq():
        if not side: return
        d, av, sr, off = side.pop(0)
        a(f"s_mov_b32 s3, {off}")
        a(f"buffer_load_dwordx4 {v(d,4)}, {v(av)}, s[{sr}:{sr+3}], s3 offen")
        Q.append('s')
    for j in range(NS):
        c = nloop - j
        waitq(('d', j), 't')
        a("s_barrier")
        if c == 2:
            l1 = a.newlabel("L_l1")
            a("s_cmp_lg_u32 s30, 0")
            a(f"s_cbranch_scc1 {l1}")
            a(f"v_lshlrev_b32 {v(t0)}, 4, v1")
            a("s_lshl_b32 s3, s28, 12")
            for jj in range(4):
                a(f"buffer_load_dwordx4 {v(LTB+4*jj,4)}, {v(t0)}, s[36:39], s3 offen offset:{1024*jj} sc0 sc1")
            a.label(l1)
            Q.append('t')
        if c == 1:
            l2 = a.newlabel("L_l2")
            a("s_cmp_lg_u32 s30, 0")
            a(f"s_cbranch_scc1 {l2}")
            a("s_mov_b64 s[54:55], exec")
            for jj in range(4):
                a(f"v_cmp_lt_u64 vcc, s[34:35], {v(LTB+4*jj+2,2)}")
                a(f"v_cmp_gt_u64 s[56:57], s[20:21], {v(LTB+4*jj+2,2)}")
                a("s_nop 3")
                a("s_and_b64 s[54:55], s[54:55], vcc")
                a("s_and_b64 s[54:55], s[54:55], s[56:57]")
            a("s_cmp_lg_u64 s[54:55], exec")
            a(f"s_cbranch_scc1 {l2}")
            a("s_mov_b32 s53, 1")
            a(f"v_lshlrev_b32 {v(t0)}, 3, v1")
            a(f"v_add_u32 {v(t0)}, {RTAB}, {v(t0)}")
            for jj in range(4):
                a(f"ds_write_b64 {v(t0)}, {v(LTB+4*jj,2)} offset:{512*jj}")
            a("s_waitcnt lgkmcnt(0)")
            a.label(l2)
        if j + NSTAGE - 1 < NS:
            dmaq(j + NSTAGE - 1)
        if j >= SIDE0:
            for _ in range(SPI): sideq()
        if j == 0:
            stats_math(LSD, LST)
            a("s_lshl_b32 s3, s30, 4")
            a(f"s_add_u32 s3, s3, {STG}")
            a(f"v_mov_b32 {v(LST+9)}, s3")
            a(f"ds_write_b128 {v(LST+9)}, {v(LST,4)}")
            a("s_waitcnt lgkmcnt(0)")
    while side and not SIDEATT: sideq()
    a(f"s_branch {lab_lend}")
    a.label(lab_l2p)
    for _ in range(NSTAGE - 1):
        dma()
    a(f"s_mov_b32 s48, {nloop}")
    lloop = a.newlabel("L_lloop")
    a.label(lloop)
    a(f"s_waitcnt vmcnt({(NSTAGE-2)*P})")
    a("s_barrier")
    dma()
    a("s_sub_u32 s48, s48, 1")
    a("s_cmp_lg_u32 s48, 0")
    a(f"s_cbranch_scc1 {lloop}")
    for j in range(NS - NSTAGE + 1, NS):
        a(f"s_waitcnt vmcnt({(NS-1-j)*P})")
        a("s_barrier")
    a.label(lab_lend)
    stamp(3)
    l4 = a.newlabel("L_l4")
    a(f"v_mov_b32 {v(t1)}, {STAT}")
    a("s_cmp_lg_u32 s30, 0")
    a(f"s_cbranch_scc1 {l4}")
    a(f"v_mov_b32 {v(t0)}, s53")
    a(f"ds_write_b32 {v(t1)}, {v(t0)}")
    for j in range(4):
        a(f"v_mov_b32 {v(LTB+j)}, 0")
    a(f"ds_write_b128 {v(t1)}, {v(LTB,4)} offset:{STAT2-STAT}")
    a("s_waitcnt lgkmcnt(0)")
    a.label(l4)
    a("s_barrier")
    a(f"ds_read_b32 {v(t2)}, {v(t1)}")
    a("s_waitcnt lgkmcnt(0)")
    a(f"v_readfirstlane_b32 s3, {v(t2)}")
    a("s_nop 3")
    lok = a.newlabel("L_stok")
    a("s_cmp_eq_u32 s3, 1")
    a(f"s_cbranch_scc1 {lok}")
    local_stats(LSD, LST)
    a.label(lok)
    stamp(4)
    a("s_barrier")

    a.label(lab_att)
    CM, MK1, MK2, SA, SB = 16, 32, 48, 64, 80
    KB_ = [96, 104]; VB_ = [112, 120]; PP = [128, 136]; OA = 144; SUM = 160
    CA = 64; CT = 72; PUB = 200; VM = 216
    vK1 = [2, 3]; vV1 = 4; vK2 = [5, 6]; vV2 = 7; vQQ = 8; vHH = 9; vX32 = 10; vNEG = 11; vL16 = 12
    T0, T1, T2 = 13, 14, 15
    vNO = 217
    lab_start = a.newlabel("L_astart"); lab_reload = a.newlabel("L_reload"); lab_fin = a.newlabel("L_fin")
    a("s_setprio 0")
    a("s_sub_u32 s3, 11, s49")
    a("s_cmp_lt_u32 s49, 4")
    a("s_cselect_b32 s44, s49, s3")
    a(f"v_and_b32 {v(vQQ)}, 31, v1")
    a(f"v_lshrrev_b32 {v(vHH)}, 5, v1")
    a(f"v_lshlrev_b32 {v(vL16)}, 4, v1")
    a(f"v_xor_b32 {v(vX32)}, 32, v1")
    a(f"v_lshlrev_b32 {v(vX32)}, 2, {v(vX32)}")
    a(f"v_mov_b32 {v(vNEG)}, 0xf149f2ca")
    a(f"v_mov_b32 {v(VM)}, 0")
    a(f"v_bfe_u32 {v(T0)}, v1, 2, 2")
    a(f"v_xor_b32 {v(T0)}, {v(T0)}, {v(vHH)}")
    a(f"v_lshlrev_b32 {v(T1)}, 6, {v(vQQ)}")
    a(f"v_lshl_add_u32 {v(T0)}, {v(T0)}, 4, {v(T1)}")
    a("s_lshl_b32 s3, s44, 11")
    a(f"s_add_u32 s46, s3, {OK_ - 7*2048}")
    a(f"v_add_u32 {v(vK1[0])}, s46, {v(T0)}")
    a(f"v_xor_b32 {v(vK1[1])}, 32, {v(vK1[0])}")
    a(f"s_add_u32 s46, s3, {PK}")
    a(f"v_add_u32 {v(vK2[0])}, s46, {v(T0)}")
    a(f"v_xor_b32 {v(vK2[1])}, 32, {v(vK2[0])}")
    a(f"s_add_u32 s46, s3, {OQ}")
    a(f"v_add_u32 {v(T0)}, s46, {v(T0)}")
    a(f"v_bfe_u32 {v(T1)}, v1, 2, 2")
    a(f"v_lshl_add_u32 {v(T1)}, {v(vHH)}, 2, {v(T1)}")
    a(f"v_lshlrev_b32 {v(T1)}, 6, {v(T1)}")
    a(f"v_bfe_u32 {v(T2)}, v1, 4, 1")
    a(f"v_lshl_add_u32 {v(T1)}, {v(T2)}, 5, {v(T1)}")
    a(f"v_and_b32 {v(T2)}, 3, v1")
    a(f"v_lshl_add_u32 {v(T1)}, {v(T2)}, 3, {v(T1)}")
    a(f"s_add_u32 s46, s3, {OV - 7*2048}")
    a(f"v_add_u32 {v(vV1)}, s46, {v(T1)}")
    a(f"s_add_u32 s46, s3, {PV}")
    a(f"v_add_u32 {v(vV2)}, s46, {v(T1)}")
    a("s_cmp_lg_u32 s45, 1")
    a(f"s_cbranch_scc1 {lab_reload}")
    a(f"ds_read_b128 {v(QF,4)}, {v(T0)}")
    a(f"v_xor_b32 {v(T0)}, 32, {v(T0)}")
    a(f"ds_read_b128 {v(QF+4,4)}, {v(T0)}")
    a("s_mov_b32 s33, 1")
    lab_pubw = a.newlabel("L_pubw")
    a("s_cmp_lt_u32 s49, 4")
    a(f"s_cbranch_scc1 {lab_pubw}")
    while side: sideq()
    a(f"s_branch {lab_start}")
    a.label(lab_pubw)
    a("s_lshl_b32 s3, s49, 13")
    a(f"s_add_u32 s46, s3, {OK_}")
    a(f"v_add_u32 {v(T1)}, s46, {v(vL16)}")
    for j in range(8):
        a(f"ds_read_b128 {v(W1S+4*j,4)}, {v(T1)} offset:{1024*j}")
    a("s_lshl_b32 s46, s99, 15")
    a("s_add_u32 s46, s46, s3")
    for j in range(8):
        if j == 4: a("s_add_u32 s46, s46, 4096")
        a(f"s_waitcnt lgkmcnt({7-j})")
        a(f"buffer_store_dwordx4 {v(W1S+4*j,4)}, {v(vL16)}, s[16:19], s46 offen offset:{1024*(j&3)} sc0 sc1")
    a("s_mov_b32 s33, 0")

    def kvflag():
        ldone = a.newlabel("L_kvf")
        a("s_or_b32 s3, s33, s50")
        a("s_cmp_lg_u32 s3, 0")
        a(f"s_cbranch_scc1 {ldone}")
        a("s_mov_b32 s33, 1")
        a("s_memrealtime s[22:23]")
        a("s_lshl_b32 s3, s99, 7")
        a("s_lshl_b32 s46, s49, 3")
        a("s_add_u32 s3, s3, s46")
        a(f"s_add_u32 s3, s3, {KFO}")
        a(f"v_mov_b32 {v(T0)}, 0")
        a("s_waitcnt vmcnt(0) lgkmcnt(0)")
        a(f"v_mov_b32 {v(PUB)}, s22")
        a(f"v_mov_b32 {v(PUB+1)}, s23")
        a("s_mov_b64 exec, 1")
        if 'nokvflag' not in EXP: a(f"buffer_store_dwordx2 {v(PUB,2)}, {v(T0)}, s[36:39], s3 offen sc0 sc1")
        a("s_mov_b64 exec, -1")
        a.label(ldone)

    a.label(lab_start)
    a(f"v_lshlrev_b32 {v(T0)}, 2, {v(vHH)}")
    a(f"v_sub_u32 {v(T0)}, {v(vQQ)}, {v(T0)}")
    for r in range(16):
        c = (r & 3) + 8 * (r >> 2)
        sp = 52 + 2 * (r & 1)
        a(f"v_cmp_le_i32 s[{sp}:{sp+1}], {c}, {v(T0)}")
        a(f"v_mov_b32 {v(CM+r)}, {v(VM)}")
        a(f"v_cndmask_b32 {v(MK1+r)}, {v(vNEG)}, {v(VM)}, s[{sp}:{sp+1}]")
        a(f"v_cndmask_b32 {v(MK2+r)}, {v(VM)}, {v(vNEG)}, s[{sp}:{sp+1}]")
    for r in range(16):
        a(f"v_mov_b32 {v(OA+r)}, 0")
    for r in range(4):
        a(f"v_mov_b32 {v(SUM+r)}, 0")

    def part(vK, vV, MK, off, last_cmp, lab_out, hook=None):
        SS = [SA, SB]

        def kread(i):
            for ks in range(2):
                a(f"ds_read_b128 {v(KB_[i&1]+4*ks,4)}, {v(vK[ks])} offset:{off(i)}")

        def smf(i, h):
            if h == 0:
                a(f"v_mfma_f32_32x32x16_bf16 {v(SS[i&1],16)}, {v(KB_[i&1],4)}, {v(QF,4)}, {v(MK if i == 0 else CM,16)}")
            else:
                a(f"v_mfma_f32_32x32x16_bf16 {v(SS[i&1],16)}, {v(KB_[i&1]+4,4)}, {v(QF+4,4)}, {v(SS[i&1],16)}")
        kread(0)
        kread(1)
        a("s_waitcnt lgkmcnt(2)")
        smf(0, 0); smf(0, 1)
        for i in range(8):
            Sx = SS[i & 1]; Px = PP[i & 1]; Vx = VB_[i & 1]

            def exps(g):
                for j in range(4):
                    a(f"v_exp_f32 {v(Sx+g+j)}, {v(Sx+g+j)}")

            def addcvt(g):
                for j in range(2):
                    a(f"v_pk_add_f32 {v(SUM+2*j,2)}, {v(SUM+2*j,2)}, {v(Sx+g+2*j,2)}")
                    a(f"v_cvt_pk_bf16_f32 {v(Px+g//2+j)}, {v(Sx+g+2*j)}, {v(Sx+g+1+2*j)}")

            def pv(sidx):
                a(f"v_mfma_f32_32x32x16_bf16 {v(OA,16)}, {v(Vx+4*sidx,4)}, {v(Px+4*sidx,4)}, {v(OA,16)}")
            for sidx in range(2):
                for rd in range(2):
                    a(f"ds_read_b64_tr_b16 {v(Vx+4*sidx+2*rd,2)}, {v(vV)} offset:{off(i) + (16*sidx+8*rd)*64}")
            if i < 7:
                a("s_waitcnt lgkmcnt(4)")
                smf(i + 1, 0)
            if i == 0:
                a("s_nop 7"); a("s_nop 7"); a("s_nop 7")
            exps(0)
            if i < 7:
                smf(i + 1, 1)
                if i < 6: kread(i + 2)
            exps(4); addcvt(0)
            exps(8); addcvt(4)
            a(f"s_waitcnt lgkmcnt({2 if i < 6 else 0})")
            pv(0)
            exps(12); addcvt(8)
            a("s_nop 0")
            addcvt(12)
            a("s_nop 1")
            pv(1)
            if i < 7:
                a(f"s_cmp_eq_u32 s44, {last_cmp(i)}")
                a(f"s_cbranch_scc1 {lab_out}")
            if hook and i == 2: hook()
        a.label(lab_out)
        a("s_waitcnt lgkmcnt(0)")

    part(vK1, vV1, MK1, lambda i: (7 - i) * 2048, lambda i: i, a.newlabel("L_p1e"), hook=kvflag)
    stamp(5)
    lab_p2 = a.newlabel("L_p2")
    a("s_cmp_lg_u32 s50, 0")
    a(f"s_cbranch_scc1 {lab_p2}")
    kvflag()
    lab_nc = a.newlabel("L_nocs")
    a("s_cmp_lt_u32 s49, 4")
    a(f"s_cbranch_scc1 {lab_nc}")
    srd(a, 88, 24, G.WS_W2T, F * D * 2)
    a("s_mul_i32 s3, s92, 7168")
    a("s_waitcnt vmcnt(0)")
    for j in range(7 if QW2 else 0):
        if j == 4: a("s_add_u32 s3, s3, 4096")
        a(f"buffer_store_dwordx4 {v(W2S[j],4)}, {v(vL16)}, s[88:91], s3 offen offset:{1024*(j&3)}")
    a("s_cmp_ge_u32 s92, 896")
    a(f"s_cbranch_scc1 {lab_nc}")
    for j in range(4):
        a(f"v_lshlrev_b32 v{CA+2*j}, 16, v{W1S+j}")
        a(f"v_and_b32 v{CA+2*j+1}, 0xffff0000, v{W1S+j}")
    for i in range(1, 8):
        for j in range(4):
            a(f"v_lshlrev_b32 v{CT+2*j}, 16, v{W1S+4*i+j}")
            a(f"v_and_b32 v{CT+2*j+1}, 0xffff0000, v{W1S+4*i+j}")
        for j in range(4):
            a(f"v_pk_add_f32 {v(CA+2*j,2)}, {v(CA+2*j,2)}, {v(CT+2*j,2)}")
    a("s_nop 1")
    for j in range(8):
        a(f"v_add_f32_dpp v{CT+j}, v{CA+j}, v{CA+j} row_ror:8 row_mask:0xf bank_mask:0xf")
    a(f"v_xor_b32 {v(T0)}, 16, v1")
    a(f"v_lshlrev_b32 {v(T0)}, 2, {v(T0)}")
    for j in range(8):
        a(f"ds_bpermute_b32 v{CA+j}, {v(T0)}, v{CT+j}")
    a("s_waitcnt lgkmcnt(0)")
    for j in range(8):
        a(f"v_add_f32 v{CT+j}, v{CA+j}, v{CT+j}")
    for j in range(8):
        a(f"ds_bpermute_b32 v{CA+j}, {v(vX32)}, v{CT+j}")
    a("s_waitcnt lgkmcnt(0)")
    for j in range(8):
        a(f"v_add_f32 v{CA+j}, v{CA+j}, v{CT+j}")
    srd(a, 76, 24, G.WS_CS, 16 * F * 4)
    a(f"s_mul_i32 s3, s93, {F*4}")
    a("s_lshl_b32 s46, s84, 8")
    a("s_add_u32 s3, s3, s46")
    a(f"v_lshlrev_b32 {v(T0)}, 5, v1")
    a("s_mov_b64 exec, 0xff")
    a(f"buffer_store_dwordx4 {v(CA,4)}, {v(T0)}, s[76:79], s3 offen")
    a(f"buffer_store_dwordx4 {v(CA+4,4)}, {v(T0)}, s[76:79], s3 offen offset:16")
    a("s_mov_b64 exec, -1")
    a.label(lab_nc)
    a("s_mov_b32 s50, 1")
    a("s_cmp_eq_u32 s28, 0")
    a(f"s_cbranch_scc1 {lab_fin}")
    lp = a.newlabel("L_poll"); lpo = a.newlabel("L_pollok"); lpd = a.newlabel("L_polld"); lsp = a.newlabel("L_spin")
    a("s_cmp_ge_u32 s49, 4")
    a(f"s_cbranch_scc1 {lsp}")
    a("s_sub_u32 s46, s99, 32")
    a("s_lshl_b32 s47, s46, 7")
    a(f"s_add_u32 s47, s47, {KFO}")
    a(f"v_and_b32 {v(T0)}, 3, v1")
    a(f"v_lshlrev_b32 {v(T0)}, 3, {v(T0)}")
    a(f"s_mov_b32 s52, {NPOLL}")
    a.label(lp)
    a(f"buffer_load_dwordx2 {v(PUB,2)}, {v(T0)}, s[36:39], s47 offen sc0 sc1")
    a("s_waitcnt vmcnt(0)")
    a(f"v_cmp_lt_u64 vcc, s[34:35], {v(PUB,2)}")
    a(f"v_cmp_gt_u64 s[54:55], s[20:21], {v(PUB,2)}")
    a("s_nop 3")
    a("s_and_b64 vcc, vcc, s[54:55]")
    a("s_cmp_eq_u64 vcc, exec")
    a(f"s_cbranch_scc1 {lpo}")
    a("s_sub_u32 s52, s52, 1")
    a("s_cmp_lg_u32 s52, 0")
    a(f"s_cbranch_scc1 {lp}")
    a(f"v_mov_b32 {v(T1)}, 2")
    a(f"s_branch {lpd}")
    a.label(lpo)
    a("s_lshl_b32 s3, s49, 13")
    a("s_lshl_b32 s46, s46, 15")
    a("s_add_u32 s46, s46, s3")
    for j in range(8):
        a(f"s_add_u32 m0, s3, {PK + 1024*j}")
        a("s_nop 0")
        a(f"buffer_load_dwordx4 {v(vL16)}, s[16:19], s46 offen sc0 sc1 lds")
        a("s_add_u32 s46, s46, 1024")
    a(f"v_mov_b32 {v(T1)}, 1")
    a.label(lpd)
    a("s_lshl_b32 s3, s49, 2")
    a(f"s_add_u32 s3, s3, {STAT2}")
    a(f"v_mov_b32 {v(T0)}, s3")
    a("s_waitcnt vmcnt(0)")
    a(f"ds_write_b32 {v(T0)}, {v(T1)}")
    a.label(lsp)
    a(f"v_mov_b32 {v(T0)}, {STAT2}")
    a(f"ds_read_b128 {v(PUB,4)}, {v(T0)}")
    a("s_waitcnt lgkmcnt(0)")
    a(f"v_min_u32 {v(T1)}, {v(PUB)}, {v(PUB+1)}")
    a(f"v_min3_u32 {v(T1)}, {v(T1)}, {v(PUB+2)}, {v(PUB+3)}")
    a(f"v_max_u32 {v(T2)}, {v(PUB)}, {v(PUB+1)}")
    a(f"v_max3_u32 {v(T2)}, {v(T2)}, {v(PUB+2)}, {v(PUB+3)}")
    a("s_nop 0")
    a(f"v_readfirstlane_b32 s3, {v(T1)}")
    a(f"v_readfirstlane_b32 s46, {v(T2)}")
    a("s_nop 3")
    a("s_cmp_eq_u32 s3, 0")
    a("s_sleep 1")
    a(f"s_cbranch_scc1 {lsp}")
    a("s_cmp_eq_u32 s46, 1")
    a(f"s_cbranch_scc1 {lab_p2}")
    a("s_mov_b32 s45, 2")
    a("s_sub_u32 s98, s98, 256")
    a(f"s_mov_b32 s100, {XQ}")
    a("s_barrier")
    a("s_cmp_lt_u32 s49, 4")
    a(f"s_cbranch_scc1 {lab_cpass}")
    a("s_setprio 2")
    a(f"s_branch {a.newlabel('L_lre')}")
    lab_lre = f"L_lre_{a.nlab}"

    a.label(lab_reload)
    a("s_lshl_b32 s3, s49, 12")
    a("s_lshl_b32 s46, s99, 15")
    a("s_add_u32 s46, s46, s3")
    for j in range(4):
        a(f"s_add_u32 m0, s3, {OK_ + 1024*j}")
        a("s_nop 0")
        a(f"buffer_load_dwordx4 {v(vL16)}, s[16:19], s46 offen sc0 sc1 lds")
        a("s_add_u32 s46, s46, 1024")
    a("s_waitcnt vmcnt(0)")
    a("s_barrier")
    a(f"s_branch {lab_start}")

    a.label(lab_p2)
    a("s_cmp_eq_u32 s28, 0")
    a(f"s_cbranch_scc1 {lab_fin}")
    part(vK2, vV2, MK2, lambda i: i * 2048, lambda i: 7 - i, a.newlabel("L_p2e"))
    a.label(lab_fin)
    stamp(6)
    a(f"v_add_f32 {v(SUM)}, {v(SUM)}, {v(SUM+1)}")
    a(f"v_add_f32 {v(SUM+2)}, {v(SUM+2)}, {v(SUM+3)}")
    a(f"v_add_f32 {v(SUM)}, {v(SUM)}, {v(SUM+2)}")
    a(f"ds_bpermute_b32 {v(SUM+1)}, {v(vX32)}, {v(SUM)}")
    a("s_waitcnt lgkmcnt(0)")
    a(f"v_add_f32 {v(SUM)}, {v(SUM)}, {v(SUM+1)}")
    lab_out = a.newlabel("L_out")
    a("s_cmp_lg_u32 s51, 0")
    a(f"s_cbranch_scc1 {lab_out}")
    lo = 2.0 ** -40 if 'forcemax' not in EXP else 2.0 ** 39
    a(f"v_mov_b32 {v(T1)}, {hex_f32(lo)}")
    a(f"v_mov_b32 {v(T0)}, {hex_f32(2.0**40)}")
    a(f"v_cmp_lt_f32 s[52:53], {v(T1)}, {v(SUM)}")
    a(f"v_cmp_lt_f32 s[54:55], {v(SUM)}, {v(T0)}")
    a("s_nop 3")
    a("s_and_b64 s[52:53], s[52:53], s[54:55]")
    a("s_cmp_eq_u64 s[52:53], exec")
    a(f"s_cbranch_scc1 {lab_out}")
    a("s_mov_b32 s51, 1")
    a(f"v_mov_b32 {v(VM)}, {v(vNEG)}")

    def maxpart(vK, MK, first_off, step, cnt_expr):
        lp = a.newlabel("L_mx"); lpe = a.newlabel("L_mxe")
        a(f"v_add_u32 {v(T0)}, {first_off}, {v(vK[0])}")
        a(f"v_add_u32 {v(T1)}, {first_off}, {v(vK[1])}")
        cnt_expr()

        def tile(C):
            a(f"ds_read_b128 {v(KB_[0],4)}, {v(T0)}")
            a(f"ds_read_b128 {v(KB_[0]+4,4)}, {v(T1)}")
            a("s_waitcnt lgkmcnt(0)")
            a(f"v_mfma_f32_32x32x16_bf16 {v(SA,16)}, {v(KB_[0],4)}, {v(QF,4)}, {v(C,16)}")
            a(f"v_mfma_f32_32x32x16_bf16 {v(SA,16)}, {v(KB_[0]+4,4)}, {v(QF+4,4)}, {v(SA,16)}")
            a("s_nop 7"); a("s_nop 7"); a("s_nop 7")
            for r in range(0, 16, 2):
                a(f"v_max3_f32 {v(VM)}, {v(VM)}, {v(SA+r)}, {v(SA+r+1)}")
            a(f"v_add_u32 {v(T0)}, {step}, {v(T0)}")
            a(f"v_add_u32 {v(T1)}, {step}, {v(T1)}")
        tile(MK)
        a.label(lp)
        a("s_cmp_eq_u32 s52, 0")
        a(f"s_cbranch_scc1 {lpe}")
        tile(CM)
        a("s_sub_u32 s52, s52, 1")
        a(f"s_branch {lp}")
        a.label(lpe)

    maxpart(vK1, MK1, 7 * 2048, -2048, lambda: a("s_mov_b32 s52, s44"))
    lmx = a.newlabel("L_mxd")
    a("s_cmp_eq_u32 s28, 0")
    a(f"s_cbranch_scc1 {lmx}")
    maxpart(vK2, MK2, 0, 2048, lambda: a("s_sub_u32 s52, 7, s44"))
    a.label(lmx)
    a(f"ds_bpermute_b32 {v(T0)}, {v(vX32)}, {v(VM)}")
    a("s_waitcnt lgkmcnt(0)")
    a(f"v_max_f32 {v(VM)}, {v(VM)}, {v(T0)}")
    a(f"v_sub_f32 {v(VM)}, 0, {v(VM)}")
    a(f"s_branch {lab_start}")

    a.label(lab_out)
    a(f"v_rcp_f32 {v(SUM)}, {v(SUM)}")
    a("s_lshl_b32 s3, s28, 8")
    a("s_lshl_b32 s46, s44, 5")
    a("s_add_u32 s3, s3, s46")
    a(f"v_add_u32 {v(T0)}, s3, {v(vQQ)}")
    a(f"v_lshlrev_b32 {v(T0)}, 11, {v(T0)}")
    a(f"v_lshl_add_u32 {v(T0)}, {v(vHH)}, 3, {v(T0)}")
    a("s_lshl_b32 s3, s29, 6")
    a(f"v_add_u32 {v(T0)}, s3, {v(T0)}")
    a("s_nop 7")
    for g in range(4):
        for r in range(4):
            a(f"v_mul_f32 v{OA+4*g+r}, v{OA+4*g+r}, {v(SUM)}")
        a(f"v_cvt_pk_bf16_f32 v{OA+4*g}, v{OA+4*g}, v{OA+4*g+1}")
        a(f"v_cvt_pk_bf16_f32 v{OA+4*g+1}, v{OA+4*g+2}, v{OA+4*g+3}")
        a(f"buffer_store_dwordx2 {v(OA+4*g,2)}, {v(T0)}, s[12:15], 0 offen offset:{16*g}")
    if 'stamp' in EXP: a("s_waitcnt vmcnt(0)")
    stamp(7)
    stamp_out()
    a(f"s_branch {end}")

    a.label(lab_lre)
    a("s_lshl_b32 s3, s30, 6")
    a(f"v_lshrrev_b32 {v(t0)}, 3, v1")
    a(f"v_add_u32 {v(t0)}, s3, {v(t0)}")
    for i in range(PA):
        a(f"v_add_u32 {v(t1)}, {8*i}, {v(t0)}")
        a(f"v_lshrrev_b32 {v(t2)}, 1, {v(t1)}")
        a(f"v_and_b32 {v(t2)}, 7, {v(t2)}")
        a(f"v_and_b32 {v(t3)}, 7, v1")
        a(f"v_xor_b32 {v(t2)}, {v(t2)}, {v(t3)}")
        a(f"v_add_u32 {v(t1)}, s98, {v(t1)}")
        a(f"v_mul_u32_u24 {v(t1)}, {lda}, {v(t1)}")
        a(f"v_lshl_add_u32 {v(vA[i])}, {v(t2)}, 4, {v(t1)}")
    a("s_lshl_b32 s3, s29, 6")
    for i in range(PB):
        a(f"s_mul_i32 s46, s30, {PB}")
        a(f"s_add_u32 s46, s46, {i}")
        a("s_lshr_b32 s47, s46, 2")
        a("s_and_b32 s46, s46, 3")
        a("s_lshl_b32 s46, s46, 4")
        a("s_lshl_b32 s47, s47, 11")
        a("s_add_u32 s47, s47, s3")
        a(f"v_lshrrev_b32 {v(t0)}, 2, v1")
        a(f"v_add_u32 {v(t0)}, s46, {v(t0)}")
        a(f"v_and_b32 {v(t1)}, 3, v1")
        a(f"v_bfe_u32 {v(t2)}, {v(t0)}, 3, 1")
        a(f"v_lshlrev_b32 {v(t2)}, 1, {v(t2)}")
        a(f"v_xor_b32 {v(t1)}, {v(t1)}, {v(t2)}")
        a(f"v_mul_u32_u24 {v(t0)}, {N*2}, {v(t0)}")
        a(f"v_lshl_add_u32 {v(t0)}, {v(t1)}, 4, {v(t0)}")
        a(f"v_add_u32 {v(vB[i])}, s47, {v(t0)}")
    a(f"s_branch {lab_lpass}")
    a.label(end)
    a("s_endpgm")
    return dict(name=name, grid=256, block=512, lds=lds, desc=G.kernel_desc(name, 256))
```

```python
import sys, math, os
EXP=os.environ.get('EXP','')
STMOD=os.environ.get('STMOD','sc0 sc1')
STALL=os.environ.get('STALL','')
RPM=int(os.environ.get('RPM','2'))

OUT = os.environ.get("OUTF","sequential_preLN__sliding_block__mixer_channel_mlp__prompt.s")

S = 2048; D = 1024; F = 3584; H = 32; DH = 32; WIN = 256
ARG = dict(x=0, wqkv=8, wo=16, bx=24, w1=32, b1=40, w2=48, b2=56, out=64, dbg=72, ws=80)
MB = 1 << 20
WS_Y1 = 0
WS_QKV = 4 * MB
WS_O = 16 * MB
WS_H = 20 * MB
WS_Y2 = 24 * MB
WS_H1 = 28 * MB
WS_ST = 0
WS_CS = 1 * MB
WS_SIZE = 256 * MB
WS_FLAG = 2 * MB
WS_W2T = 48 * MB
WS_PART = 64 * MB
LDH1 = F * 2 + int(os.environ.get('PADH1', '0'))


class Asm:
    def __init__(self):
        self.lines = []
        self.nlab = 0

    def __call__(self, s):
        self.lines.append("    " + s)

    def label(self, l):
        self.lines.append(l + ":")

    def newlabel(self, base="L"):
        self.nlab += 1
        return f"{base}_{self.nlab}"

    def c(self, s):
        self.lines.append("    ; " + s)

    def dry_begin(self, wave_sreg, idx_sreg, nw=4):
        self.dry = dict(ret=self.newlabel("L_dret"), disp=self.newlabel("L_ddisp"), done=self.newlabel("L_ddone"),
                        ent=[], idx=idx_sreg, nw=nw)
        self(f"s_mov_b32 s{idx_sreg}, s{wave_sreg}")
        self("s_mov_b64 exec, 0")
        self(f"s_branch {self.dry['disp']}")
        self.label(self.dry['done'])
        self("s_mov_b64 exec, -1")

    def dry_entry(self):
        l = self.newlabel("L_dent")
        self.label(l)
        self.dry['ent'].append(l)

    def dry_exit(self):
        self(f"s_cbranch_execz {self.dry['ret']}")

    def dry_mark(self):
        self.dry_exit(); self.dry_entry()

    def dry_dispatch(self):
        d = self.dry
        self.label(d['ret'])
        self(f"s_add_u32 s{d['idx']}, s{d['idx']}, {d['nw']}")
        self.label(d['disp'])
        for i, l in enumerate(d['ent']):
            self(f"s_cmp_eq_u32 s{d['idx']}, {i}")
            self(f"s_cbranch_scc1 {l}")
        self(f"s_branch {d['done']}")


def v(i, n=1):
    return f"v{i}" if n == 1 else f"v[{i}:{i+n-1}]"


def s(i, n=1):
    return f"s{i}" if n == 1 else f"s[{i}:{i+n-1}]"


def srd(a, d, base, off, nbytes):
    if off:
        a(f"s_add_u32 s{d}, s{base}, {off}")
        a(f"s_addc_u32 s{d+1}, s{base+1}, 0")
    else:
        a(f"s_mov_b32 s{d}, s{base}")
        a(f"s_mov_b32 s{d+1}, s{base+1}")
    a(f"s_and_b32 s{d+1}, s{d+1}, 0xffff")
    a(f"s_mov_b32 s{d+2}, {nbytes}")
    a(f"s_mov_b32 s{d+3}, 0x00020000")


def hex_f32(x):
    import struct
    return hex(struct.unpack('<I', struct.pack('<f', x))[0])


def kernel_header(a, name):
    a.lines.append(".p2align 8")
    a.lines.append(f".globl {name}")
    a.lines.append(f".type {name},@function")
    a.label(name)


def kernel_desc(name, nvgpr, nsgpr=102, accum=None):
    nv = ((nvgpr + 7) // 8) * 8
    acc = accum if accum is not None else ((nvgpr + 3) // 4) * 4
    return f""".amdhsa_kernel {name}
  .amdhsa_next_free_vgpr {nv if accum is None else nvgpr}
  .amdhsa_next_free_sgpr {nsgpr}
  .amdhsa_accum_offset {min(acc,256)}
  .amdhsa_group_segment_fixed_size 0
  .amdhsa_kernarg_size 88
  .amdhsa_user_sgpr_count 2
  .amdhsa_user_sgpr_kernarg_segment_ptr 1
  .amdhsa_system_sgpr_workgroup_id_x 1
.end_amdhsa_kernel
"""


def gen_prefetch(a, regions, end_label):
    CH = 32768
    counts = [nbytes // CH for _, nbytes in regions]
    for (_, nbytes), c in zip(regions, counts):
        assert c * CH == nbytes
    total = sum(counts)
    skip = a.newlabel("L_nopf")
    a(f"s_cmp_ge_u32 s2, {total}")
    a(f"s_cbranch_scc1 {skip}")
    base = 0
    for (arg, nbytes), c in zip(regions, counts):
        nxt = a.newlabel("L_pfn")
        a(f"s_cmp_ge_u32 s2, {base + c}")
        a(f"s_cbranch_scc1 {nxt}")
        a(f"s_load_dwordx2 s[4:5], s[0:1], {ARG[arg]}")
        a(f"s_sub_u32 s3, s2, {base}")
        a("s_lshl_b32 s3, s3, 15")
        a("v_lshlrev_b32 v1, 4, v0")
        a("v_add_u32 v1, s3, v1")
        a("s_waitcnt lgkmcnt(0)")
        srd(a, 8, 4, 0, nbytes)
        for j in range(8):
            a(f"v_add_u32 v2, {4096*j}, v1")
            a(f"buffer_load_dwordx4 {v(4+4*j,4)}, v2, s[8:11], 0 offen")
        a("s_waitcnt vmcnt(0)")
        a(f"s_branch {end_label}")
        a.label(nxt)
        base += c
    a.label(skip)
    a(f"s_sub_u32 s2, s2, {total}")
    return total


def tail_prefetch(a, task, lane, regions, vtmp, vdst):
    ntask = 2048
    total = sum(n for _, n in regions)
    per = total // ntask
    assert per * ntask == total and per % 1024 == 0
    nld = per // 1024
    base = 0
    done = a.newlabel("L_pfdone")
    for arg, nbytes in regions:
        cnt = nbytes // per
        assert cnt * per == nbytes
        nxt = a.newlabel("L_pfn")
        a(f"s_cmp_ge_u32 s{task}, {base + cnt}")
        a(f"s_cbranch_scc1 {nxt}")
        a(f"s_load_dwordx2 s[94:95], s[0:1], {ARG[arg]}")
        a(f"s_sub_u32 s93, s{task}, {base}")
        a(f"s_mul_i32 s93, s93, {per}")
        a(f"v_lshlrev_b32 {v(vtmp)}, 4, {v(lane)}")
        a(f"v_add_u32 {v(vtmp)}, s93, {v(vtmp)}")
        a("s_waitcnt lgkmcnt(0)")
        srd(a, 96, 94, 0, nbytes)
        for j in range(nld):
            if j and j % 4 == 0:
                a(f"v_add_u32 {v(vtmp)}, 4096, {v(vtmp)}")
            a(f"buffer_load_dwordx4 {v(vdst,4)}, {v(vtmp)}, s[96:99], 0 offen offset:{1024*(j%4)}")
        a(f"s_branch {done}")
        a.label(nxt)
        base += cnt
    a.label(done)
    return nld

def gen_ln(a, name, src_arg, src_off, dst_off, double, pf=None):
    nwg = S // 4
    kernel_header(a, name)
    end = a.newlabel("L_end")
    npf = 0
    a(f"s_cmp_ge_u32 s2, {nwg}")
    a(f"s_cbranch_scc1 {end}")
    a(f"s_load_dwordx2 s[4:5], s[0:1], {ARG[src_arg]}")
    a(f"s_load_dwordx2 s[6:7], s[0:1], {ARG['ws']}")
    a("v_lshrrev_b32 v1, 6, v0")
    a("v_and_b32 v2, 63, v0")
    a("s_lshl_b32 s3, s2, 2")
    a("v_add_u32 v1, s3, v1")
    a("v_lshlrev_b32 v3, 11, v1")
    a("v_lshl_add_u32 v3, v2, 5, v3")
    for i, m in enumerate([1, 2, 4, 8, 16, 32]):
        a(f"v_xor_b32 v{12+i}, {m}, v2")
        a(f"v_lshlrev_b32 v{12+i}, 2, v{12+i}")
    a("s_waitcnt lgkmcnt(0)")
    srd(a, 8, 4, src_off, S * D * 2)
    srd(a, 12, 6, dst_off, S * D * 2)
    a("buffer_load_dwordx4 v[4:7], v3, s[8:11], 0 offen")
    a("buffer_load_dwordx4 v[8:11], v3, s[8:11], 0 offen offset:16")
    npl = 0
    if pf:
        a("v_readfirstlane_b32 s92, v1")
        a("s_nop 3")
        npl = tail_prefetch(a, 92, 2, pf, 44, 48)
    a(f"s_waitcnt vmcnt({npl})")

    def unpack():
        for i in range(8):
            a(f"v_lshlrev_b32 v{20+2*i}, 16, v{4+i}")
            a(f"v_and_b32 v{21+2*i}, 0xffff0000, v{4+i}")

    def bfly():
        for i in range(6):
            a(f"ds_bpermute_b32 v41, v{12+i}, v40")
            a("s_waitcnt lgkmcnt(0)")
            a("v_add_f32 v40, v40, v41")

    def norm():
        a("v_add_f32 v40, v20, v21")
        for i in range(2, 16):
            a(f"v_add_f32 v40, v40, v{20+i}")
        bfly()
        a("v_mul_f32 v40, 0x3a800000, v40")
        for i in range(16):
            a(f"v_sub_f32 v{20+i}, v{20+i}, v40")
        a("v_mul_f32 v40, v20, v20")
        for i in range(1, 16):
            a(f"v_fmac_f32 v40, v{20+i}, v{20+i}")
        bfly()
        a("v_mov_b32 v42, 0x3727c5ac")
        a("v_fma_f32 v40, v40, v43, v42")
        a("v_rsq_f32 v40, v40")
        a("s_nop 0")
        for i in range(16):
            a(f"v_mul_f32 v{20+i}, v{20+i}, v40")
        for i in range(8):
            a(f"v_cvt_pk_bf16_f32 v{4+i}, v{20+2*i}, v{21+2*i}")

    a("v_mov_b32 v43, 0x3a800000")
    unpack()
    norm()
    if double:
        unpack()
        norm()
    a("buffer_store_dwordx4 v[4:7], v3, s[12:15], 0 offen")
    a("buffer_store_dwordx4 v[8:11], v3, s[12:15], 0 offen offset:16")
    a.label(end)
    a("s_endpgm")
    return dict(name=name, grid=nwg + npf, block=256, lds=0, desc=kernel_desc(name, 56))


def gen_gemm(a, name, N, K, BN, a_off, w_arg, epi, out_arg, out_off, res_arg=None, res_off=0,
             bias_arg=None, BM=128, NSTAGE=3, RA=4, RBN=8, ln=None, a_arg='ws', pre=False, stats_out=False, lda=None, ldo=None, splitk=None, zero_flags=False, l2pf=0, wpf=None, atile=False, w_off=None, otile=False, w2copy=False, dry=0, epi2=False):
    import struct
    M = S
    BK = 64
    lda = lda or K * 2
    ldo = ldo or N * 2
    ATILE = ('at_' + name.split('_')[0]) in EXP or atile
    BTILE = ('bt_' + name.split('_')[0]) in EXP or w_off is not None
    NT_M = M // BM
    NT_N = N // BN
    ntiles = NT_M * NT_N
    MT = BM // 2 // 16
    NTW = BN // 2 // 16
    RB = {64: 128, 128: 128, 192: 128, 96: 64, 224: 448, 112: 32}[BN]
    ABYTES = BM * BK * 2
    BBYTES = BK * BN * 2
    STAGE = ABYTES + BBYTES
    PA = ABYTES // 1024 // 4
    PB = BBYTES // 1024 // 4
    assert PA * 4096 == ABYTES and PB * 4096 == BBYTES
    P = PA + PB
    NS = K // BK
    if splitk:
        NSLO, NSHI = splitk
        assert NSLO + NSHI == NS and (NSLO - NSHI) % NSTAGE == 0
        NS = NSHI
        ntiles *= 2
    lds = STAGE * NSTAGE
    CROW = BN * 2 + 16
    CSZ = BM * CROW
    LASTB = (NS - 1) % NSTAGE
    TBL = 2048 if (ln and not pre) else 0
    CBASE = 0 if LASTB * STAGE >= CSZ + TBL else (LASTB + 1) * STAGE
    assert CBASE + CSZ + TBL <= lds
    EPI = lds
    st_res = bool(res_arg) and not splitk
    if splitk:
        DONE = CBASE + CSZ
        assert DONE + 16 <= (LASTB * STAGE if CBASE == 0 else lds)
    st_bias = pre
    if st_res: lds += BM * BN * 2
    if st_bias: lds += 3072 + 4096
    assert lds <= 163840
    if pre:
        CTAB = EPI + 1024; RTAB = EPI + 2048
    else:
        RTAB = CBASE + CSZ; CTAB = RTAB + 1024
    NEX = (BM * BN * 2 // 4096 if st_res else 0)
    PPR = RB // 32
    lg_ppr = int(math.log2(PPR)) if RB != 448 else 0

    vA = list(range(2, 2 + PA))
    vB = list(range(2 + PA, 2 + PA + PB))
    nxt = 2 + PA + PB
    vXb = [nxt, nxt + 1]; nxt += 2
    vWb = list(range(nxt, nxt + NTW)); nxt += NTW
    vXc = [nxt, nxt + 1]; nxt += 2
    vWc = list(range(nxt, nxt + NTW)); nxt += NTW
    vT = list(range(nxt, nxt + 8)); nxt += 8
    nxt = (nxt + 3) // 4 * 4
    FX = [nxt, nxt + 4 * MT]; nxt += 8 * MT
    FW = [nxt, nxt + 4 * NTW]; nxt += 8 * NTW
    ACC = nxt; nxt += 4 * MT * NTW
    PBI = nxt
    if bias_arg and not pre: nxt += 2 * NTW
    if l2pf or wpf:
        nxt = (nxt + 3) // 4 * 4
        PFD = nxt; PFV = nxt + 4; nxt += 5
    W2S = 136; W2A = 164
    if splitk:
        PRT = nxt; nxt += 4 * MT * NTW
        PFL = nxt; PFA = nxt + 1; PPA = nxt + 2; nxt += 3
    nvgpr = nxt
    assert nvgpr <= 256
    t0, t1, t2, t3 = vT[0], vT[1], vT[2], vT[3]

    def acc(nt, mt):
        return ACC + 4 * (nt * MT + mt)

    def stamp(i):
        if 'stamp' in EXP:
            if 'rt' in EXP and i in (1, 6):
                a(f"s_memrealtime s[{60+2*i}:{61+2*i}]")
                a(f"s_memtime s[{62 if i == 1 else 70}+0:{63 if i == 1 else 71}]".replace("+0","")) if False else None
            else:
                a(f"s_memtime s[{60+2*i}:{61+2*i}]")
            if i >= 6: a("s_waitcnt lgkmcnt(0)")

    def stamp_out():
        if 'stamp' not in EXP: return
        a("s_waitcnt lgkmcnt(0)")
        srd(a, 80, 24, 200 * MB, 1 << 20)
        a("s_lshl_b32 s3, s2, 3")
        a("s_add_u32 s3, s3, s49")
        a("s_lshl_b32 s3, s3, 6")
        a("v_mov_b32 v2, s3")
        for i in range(8):
            a(f"v_mov_b32 v4, s{60+2*i}")
            a(f"v_mov_b32 v5, s{61+2*i}")
            a(f"buffer_store_dwordx2 v[4:5], v2, s[80:83], 0 offen offset:{8*i}")
            a("s_nop 1")

    def wfrag_addr_common():
        a(f"v_lshrrev_b32 {v(t1)}, 4, v1")
        a(f"v_bfe_u32 {v(t0)}, v1, 2, 2")
        a(f"v_lshl_add_u32 {v(t2)}, {v(t1)}, 3, {v(t0)}")
        if RB == 256:
            a(f"v_and_b32 {v(t3)}, 1, {v(t1)}")
            a(f"v_lshl_add_u32 {v(t3)}, {v(t3)}, 2, {v(t0)}")
        elif RB == 128:
            a(f"v_and_b32 {v(t3)}, 1, {v(t1)}")
            a(f"v_lshrrev_b32 {v(t0)}, 1, {v(t0)}")
            a(f"v_lshl_add_u32 {v(t3)}, {v(t3)}, 1, {v(t0)}")
        elif RB in (64, 448):
            a(f"v_and_b32 {v(t3)}, 1, {v(t1)}")
        else:
            a(f"v_mov_b32 {v(t3)}, 0")
        a(f"v_mul_u32_u24 {v(t2)}, {RB}, {v(t2)}")
        a(f"v_and_b32 {v(t0)}, 3, v1")
        a(f"v_lshl_add_u32 {v(t2)}, {v(t0)}, 3, {v(t2)}")
        a(f"v_add_u32 {v(t2)}, {ABYTES}, {v(t2)}")

    def wfrag_addr(dst):
        if RB == 448:
            a("s_mov_b32 s47, 0")
        elif PPR > 1:
            a(f"s_lshr_b32 s47, s46, {lg_ppr}")
            a(f"s_and_b32 s46, s46, {PPR-1}")
        else:
            a("s_mov_b32 s47, s46")
            a("s_mov_b32 s46, 0")
        a(f"s_mul_i32 s47, s47, {64*RB}")
        a(f"v_xor_b32 {v(t0)}, s46, {v(t3)}")
        a(f"v_lshl_add_u32 {v(t0)}, {v(t0)}, 5, {v(t2)}")
        a(f"v_add_u32 {v(dst)}, s47, {v(t0)}")

    kernel_header(a, name)
    end = a.newlabel("L_end")
    stamp(0)
    lab_loader = a.newlabel("L_loader")
    lab_store = a.newlabel("L_store")
    a(f"s_cmp_ge_u32 s2, {ntiles}")
    a(f"s_cbranch_scc1 {end}")
    a(f"s_load_dwordx2 s[24:25], s[0:1], {ARG['ws']}")
    a(f"s_load_dwordx2 s[58:59], s[0:1], {ARG[a_arg]}")
    a(f"s_load_dwordx2 s[26:27], s[0:1], {ARG[w_arg]}")
    a(f"s_load_dwordx2 s[34:35], s[0:1], {ARG[out_arg]}")
    if res_arg:
        a(f"s_load_dwordx2 s[36:37], s[0:1], {ARG[res_arg]}")
    if bias_arg:
        a(f"s_load_dwordx2 s[38:39], s[0:1], {ARG[bias_arg]}")
    assert ntiles == 256 and RA * RBN == (16 if splitk else 32) and NT_M % RA == 0 and NT_N % RBN == 0
    XB = NT_N // RBN
    a("s_and_b32 s3, s2, 7")
    a("s_lshr_b32 s46, s2, 3")
    if splitk:
        a("s_lshr_b32 s92, s46, 4")
        a("s_and_b32 s46, s46, 15")
        a("s_lshl_b32 s96, s3, 4")
        a("s_add_u32 s96, s96, s46")
        a("s_cmp_eq_u32 s92, 0")
        a(f"s_cselect_b32 s93, {NSLO}, {NSHI}")
        a("s_mov_b32 s94, 1")
    a(f"s_lshr_b32 s28, s3, {int(math.log2(XB))}")
    a(f"s_and_b32 s29, s3, {XB-1}")
    a(f"s_mul_i32 s28, s28, {RA}")
    a(f"s_mul_i32 s29, s29, {RBN}")
    a(f"s_lshr_b32 s3, s46, {int(math.log2(RBN))}")
    a("s_add_u32 s28, s28, s3")
    a(f"s_and_b32 s3, s46, {RBN-1}")
    a("s_add_u32 s29, s29, s3")
    a("v_and_b32 v1, 63, v0")
    a(f"v_lshrrev_b32 {v(vT[0])}, 6, v0")
    a("s_nop 0")
    a(f"v_readfirstlane_b32 s49, {v(vT[0])}")
    a("s_nop 3")
    a("s_and_b32 s30, s49, 3")
    a("s_lshr_b32 s44, s30, 1")
    a("s_and_b32 s45, s30, 1")

    def build_srds():
        a("s_waitcnt lgkmcnt(0)")
        srd(a, 4, 58, a_off, M * lda)
        srd(a, 8, 26, w_off or 0, K * N * 2)
        srd(a, 12, 34, out_off, M * ldo)
        if res_arg:
            srd(a, 16, 36, res_off, M * N * 2)
        if bias_arg:
            srd(a, 20, 38, 0, N * 2)
        if pre or stats_out:
            srd(a, 84, 24, WS_ST, S * 128)
        if pre:
            srd(a, 88, 24, WS_CS, 16 * N * 4)
        if splitk:
            srd(a, 84, 24, WS_PART, 128 * 65536)
            srd(a, 88, 24, WS_FLAG, 512)

    a("s_cmp_ge_u32 s49, 4")
    a(f"s_cbranch_scc1 {lab_loader}")

    a(f"v_and_b32 {v(t0)}, 15, v1")
    a("s_lshl_b32 s3, s44, 6")
    a(f"v_add_u32 {v(t0)}, s3, {v(t0)}")
    a(f"v_lshlrev_b32 {v(t0)}, 7, {v(t0)}")
    a(f"v_lshrrev_b32 {v(t1)}, 4, v1")
    a(f"v_bfe_u32 {v(t2)}, v1, 1, 3")
    a(f"v_xor_b32 {v(t3)}, {v(t1)}, {v(t2)}")
    a(f"v_lshl_add_u32 {v(vXb[0])}, {v(t3)}, 4, {v(t0)}")
    a(f"v_xor_b32 {v(t3)}, 4, {v(t3)}")
    a(f"v_lshl_add_u32 {v(vXb[1])}, {v(t3)}, 4, {v(t0)}")
    wfrag_addr_common()
    a(f"s_mul_i32 s3, s45, {NTW}")
    for nt in range(NTW):
        a(f"s_add_u32 s46, s3, {nt}")
        wfrag_addr(vWb[nt])
    for i in range(4 * MT * NTW):
        a(f"v_mov_b32 v{ACC+i}, 0")
    a("s_mov_b32 s42, 0")
    build_srds()
    if bias_arg and not pre:
        a(f"v_lshrrev_b32 {v(t0)}, 4, v1")
        a(f"v_lshlrev_b32 {v(t0)}, 3, {v(t0)}")
        a(f"s_mul_i32 s3, s29, {BN*2}")
        a(f"s_mul_i32 s46, s45, {BN}")
        a("s_add_u32 s3, s3, s46")
        for nt in range(NTW):
            a(f"buffer_load_dwordx2 {v(PBI+2*nt,2)}, {v(t0)}, s[20:23], s3 offen offset:{32*nt}")

    def set_cur():
        for kk in range(2):
            a(f"v_add_u32 {v(vXc[kk])}, s42, {v(vXb[kk])}")
        for nt in range(NTW):
            a(f"v_add_u32 {v(vWc[nt])}, s42, {v(vWb[nt])}")
        a(f"s_add_u32 s42, s42, {STAGE}")
        a(f"s_cmp_ge_u32 s42, {STAGE*NSTAGE}")
        a("s_cselect_b32 s42, 0, s42")

    def read_list(kk, f):
        if 'noreads' in EXP: return []
        L = []
        for nt in range(NTW):
            if nt < MT:
                L.append(f"ds_read_b128 {v(FX[f]+4*nt,4)}, {v(vXc[kk])} offset:{nt*2048}")
            for rd in range(2):
                L.append(f"ds_read_b64_tr_b16 {v(FW[f]+4*nt+2*rd,2)}, {v(vWc[nt])} offset:{kk*32*RB+rd*4*RB}")
        for mt in range(NTW, MT):
            L.append(f"ds_read_b128 {v(FX[f]+4*mt,4)}, {v(vXc[kk])} offset:{mt*2048}")
        return L

    def mfma_list(f):
        if 'nomfma' in EXP: return []
        L = []
        for nt in range(NTW):
            for mt in range(MT):
                L.append(f"v_mfma_f32_16x16x32_bf16 {v(acc(nt,mt),4)}, {v(FW[f]+4*nt,4)}, {v(FX[f]+4*mt,4)}, {v(acc(nt,mt),4)}")
        return L

    def reads(kk, f):
        for x in read_list(kk, f): a(x)

    def mfmas(f):
        for x in mfma_list(f): a(x)

    def inter(kk, fr, fm):
        R = read_list(kk, fr); Mm = mfma_list(fm)
        rpm = RPM if NTW <= 4 else 1
        ri = 0
        for i in range(len(Mm)):
            a(Mm[i])
            for _ in range(rpm):
                if ri < len(R): a(R[ri]); ri += 1
        while ri < len(R): a(R[ri]); ri += 1

    if 'cpf' in EXP:
        lh = a.newlabel("L_pc")
        a("s_getpc_b64 s[46:47]")
        a.label(lh)
        a(f"v_lshlrev_b32 {v(t0)}, 4, v1")
        a("s_lshl_b32 s3, s30, 10")
        for j in range(int(os.environ.get('NCPF', '4'))):
            a(f"s_min_u32 s92, s3, {end}-{lh}-1024")
            a(f"v_add_u32 {v(t1)}, s92, {v(t0)}")
            a(f"global_load_dwordx4 {v(FX[0],4)}, {v(t1)}, s[46:47]")
            a("s_add_u32 s3, s3, 4096")
        a("s_waitcnt vmcnt(0)")
    if wpf:
        a("s_lshl_b32 s3, s2, 2")
        a("s_add_u32 s3, s3, s30")
        for q, (arg, nbytes, hi) in enumerate(wpf):
            a(f"s_load_dwordx2 s[{94+2*q}:{95+2*q}], s[0:1], {ARG[arg]}")
            a(f"s_mul_i32 s{92+q}, s3, {nbytes//1024}")
        a("s_waitcnt lgkmcnt(0)")
        for q, (arg, nbytes, hi) in enumerate(wpf):
            assert nbytes % (1 << 20) == 0
            srd(a, 84 + 4 * q, 94 + 2 * q, 0, nbytes)
        a(f"v_lshlrev_b32 {v(PFV)}, 4, v1")
    if l2pf:
        NPA = RA * BM // 8
        NPW = BK * (RBN * BN * 2) // 1024
        WPR = RBN * BN * 2 // 1024
        assert NPA + NPW == 128 and WPR == 1
        lw = a.newlabel("L_pfw"); ld = a.newlabel("L_pfd")
        a("s_lshr_b32 s3, s2, 3")
        a("s_lshl_b32 s3, s3, 2")
        a("s_add_u32 s3, s3, s30")
        a(f"s_cmp_ge_u32 s3, {NPA}")
        a(f"s_cbranch_scc1 {lw}")
        a(f"s_lshr_b32 s46, s28, {int(math.log2(RA))}")
        a(f"s_mul_i32 s46, s46, {RA*BM}")
        a("s_lshl_b32 s3, s3, 3")
        a("s_add_u32 s3, s3, s46")
        a(f"v_lshrrev_b32 {v(PFV)}, 3, v1")
        a(f"v_add_u32 {v(PFV)}, s3, {v(PFV)}")
        a(f"v_mul_u32_u24 {v(PFV)}, {lda}, {v(PFV)}")
        a(f"v_and_b32 {v(t0)}, 7, v1")
        a(f"v_lshl_add_u32 {v(PFV)}, {v(t0)}, 4, {v(PFV)}")
        for i in range(4): a(f"s_mov_b32 s{84+i}, s{4+i}")
        a(f"s_mov_b32 s92, {l2pf*BK*2}")
        a(f"s_mov_b32 s93, {BK*2}")
        a(f"s_branch {ld}")
        a.label(lw)
        a(f"s_sub_u32 s3, s3, {NPA}")
        a(f"s_mul_i32 s3, s3, {N*2}")
        a(f"s_lshr_b32 s46, s29, {int(math.log2(RBN))}")
        a(f"s_mul_i32 s46, s46, {RBN*BN*2}")
        a("s_add_u32 s3, s3, s46")
        a(f"v_lshlrev_b32 {v(PFV)}, 4, v1")
        a(f"v_add_u32 {v(PFV)}, s3, {v(PFV)}")
        for i in range(4): a(f"s_mov_b32 s{84+i}, s{8+i}")
        a(f"s_mov_b32 s92, {l2pf*BK*N*2}")
        a(f"s_mov_b32 s93, {BK*N*2}")
        a.label(ld)
        a(f"s_mul_i32 s3, s93, {NSTAGE-1}")
        for j in range(NSTAGE - 1, l2pf):
            a(f"buffer_load_dwordx4 {v(PFD,4)}, {v(PFV)}, s[84:87], s3 offen")
            a("s_add_u32 s3, s3, s93")
    if splitk:
        a("s_xor_b32 s95, s92, 1")
        a(f"v_mov_b32 {v(PFL)}, 0")
        a("s_lshl_b32 s3, s96, 2")
        a(f"v_mov_b32 {v(PFA)}, s3")
        a("s_add_u32 s3, s3, s30")
        a("s_lshl_b32 s3, s3, 14")
        a(f"v_lshlrev_b32 {v(PPA)}, 4, v1")
        a(f"v_add_u32 {v(PPA)}, s3, {v(PPA)}")
    DRY = dry and not splitk
    if DRY:
        a.dry_begin(30, 95)
    stamp(1)
    lab_cpass = a.newlabel("L_cpass")
    a.label(lab_cpass)
    a("s_barrier")
    stamp(2)
    set_cur()
    reads(0, 0)
    a("s_waitcnt lgkmcnt(0)")
    inter(1, 1, 0)
    a("s_waitcnt lgkmcnt(0)")
    if splitk: a("s_sub_u32 s48, s93, 1")
    else: a(f"s_mov_b32 s48, {NS-1}")
    loop = a.newlabel("L_cloop")
    a.label(loop)
    a("s_barrier")
    set_cur()
    inter(0, 0, 1)
    a("s_waitcnt lgkmcnt(0)")
    inter(1, 1, 0)
    if l2pf:
        a(f"buffer_load_dwordx4 {v(PFD,4)}, {v(PFV)}, s[84:87], s92 offen")
        a("s_add_u32 s92, s92, s93")
    if wpf:
        for q, (arg, nbytes, hi) in enumerate(wpf):
            n = nbytes >> 20
            lsk = a.newlabel("L_wpfs")
            if hi < 0:
                a("s_bitcmp1_b32 s48, 0")
            else:
                a(f"s_sub_u32 s3, s48, {hi-n+1}")
                a(f"s_cmp_ge_u32 s3, {n}")
            a(f"s_cbranch_scc1 {lsk}")
            a(f"buffer_load_dwordx4 {v(PFD,4)}, {v(PFV)}, s[{84+4*q}:{87+4*q}], s{92+q} offen")
            a(f"s_add_u32 s{92+q}, s{92+q}, 1024")
            a.label(lsk)
    if splitk:
        cskip = a.newlabel("L_cskip"); cpoll = a.newlabel("L_cpoll")
        a("s_cmp_lg_u32 s95, 0")
        a(f"s_cbranch_scc1 {cskip}")
        a(f"v_readfirstlane_b32 s3, {v(PFL)}")
        a("s_nop 3")
        a("s_cmp_eq_u32 s3, 0")
        a(f"s_cbranch_scc1 {cpoll}")
        a("s_mov_b32 s95, 1")
        for t_ in range(MT * NTW):
            a(f"s_mov_b32 s3, {1024*t_}")
            a(f"buffer_load_dwordx4 {v(PRT+4*t_,4)}, {v(PPA)}, s[84:87], s3 offen")
        a(f"s_branch {cskip}")
        a.label(cpoll)
        if 'forcefb' not in EXP: a(f"buffer_load_dword {v(PFL)}, {v(PFA)}, s[88:91], 0 offen sc0 sc1")
        a.label(cskip)
    a("s_waitcnt lgkmcnt(0)")
    a("s_sub_u32 s48, s48, 1")
    a("s_cmp_lg_u32 s48, 0")
    a(f"s_cbranch_scc1 {loop}")
    stamp(3)
    if epi2:
        FROW = BN * 4 + 16
        assert BM * FROW <= STAGE * NSTAGE and (FROW // 4) % 32 == 4
        a("s_barrier")
        ml = mfma_list(1)
        a(f"v_and_b32 {v(t2)}, 15, v1")
        a("s_lshl_b32 s3, s44, 6")
        a(f"v_add_u32 {v(t2)}, s3, {v(t2)}")
        a(f"v_mul_u32_u24 {v(t2)}, {FROW}, {v(t2)}")
        a(f"v_bfe_u32 {v(t3)}, v1, 4, 1")
        a(f"v_mul_u32_u24 {v(t3)}, {BN*2}, {v(t3)}")
        a(f"v_add_u32 {v(t2)}, {v(t2)}, {v(t3)}")
        a(f"v_lshrrev_b32 {v(t3)}, 5, v1")
        a(f"v_lshl_add_u32 {v(t2)}, {v(t3)}, 4, {v(t2)}")
        a(f"s_mul_i32 s3, s45, {NTW*32}")
        a(f"v_add_u32 {v(t2)}, s3, {v(t2)}")
        wl = [f"ds_write_b128 {v(t2)}, {v(acc(nt,mt),4)} offset:{mt*16*FROW + nt*32}" for nt in range(NTW) for mt in range(MT)]
        for i, x in enumerate(ml):
            a(x)
            if i >= 6: a(wl[i - 6])
        a("s_nop 7")
        a("s_nop 7")
        for x in wl[len(ml) - 6:]: a(x)
        a("s_waitcnt lgkmcnt(0)")
        stamp(4)
        a("s_barrier")
        a(f"s_branch {lab_store}")
    else:
        mfmas(1)
    if ln and not pre:
        a("s_barrier")
    if splitk:
        lab_hi = a.newlabel("L_hi"); lab_epi = a.newlabel("L_epi"); lab_fb = a.newlabel("L_fb")
        a("s_cmp_lg_u32 s92, 0")
        a(f"s_cbranch_scc1 {lab_hi}")
        a("s_nop 7")
        for t_ in range(MT * NTW):
            a(f"s_mov_b32 s3, {1024*t_}")
            a(f"buffer_store_dwordx4 {v(ACC+4*t_,4)}, {v(PPA)}, s[84:87], s3 offen sc0 sc1")
        a("s_waitcnt vmcnt(0)")
        a("s_barrier")
        a("s_cmp_lg_u32 s30, 0")
        a(f"s_cbranch_scc1 {end}")
        a(f"v_mov_b32 {v(t1)}, 1")
        a("s_mov_b64 exec, 1")
        a(f"buffer_store_dword {v(t1)}, {v(PFA)}, s[88:91], 0 offen sc0 sc1")
        a(f"s_branch {end}")
        a.label(lab_hi)
        a("s_lshl_b32 s3, s30, 2")
        a(f"s_add_u32 s3, s3, {DONE}")
        a(f"v_mov_b32 {v(t0)}, s3")
        a(f"v_mov_b32 {v(t1)}, s95")
        a(f"ds_write_b32 {v(t0)}, {v(t1)}")
        a("s_waitcnt lgkmcnt(0)")
        a("s_barrier")
        a("s_cmp_eq_u32 s94, 2")
        a(f"s_cbranch_scc1 {lab_epi}")
        a(f"v_mov_b32 {v(t1)}, {DONE}")
        a(f"ds_read_b128 {v(FX[0],4)}, {v(t1)}")
        a("s_waitcnt lgkmcnt(0)")
        a(f"v_and_b32 {v(FX[0])}, {v(FX[0])}, {v(FX[0]+1)}")
        a(f"v_and_b32 {v(FX[0]+2)}, {v(FX[0]+2)}, {v(FX[0]+3)}")
        a(f"v_and_b32 {v(FX[0])}, {v(FX[0])}, {v(FX[0]+2)}")
        a("s_nop 0")
        a(f"v_readfirstlane_b32 s3, {v(FX[0])}")
        a("s_nop 3")
        a("s_cmp_eq_u32 s3, 1")
        a(f"s_cbranch_scc0 {lab_fb}")
        a("s_waitcnt vmcnt(0)")
        for t_ in range(MT * NTW):
            for j in range(2):
                a(f"v_pk_add_f32 {v(ACC+4*t_+2*j,2)}, {v(ACC+4*t_+2*j,2)}, {v(PRT+4*t_+2*j,2)}")
        a(f"s_branch {lab_epi}")
        a.label(lab_fb)
        a("s_mov_b32 s94, 2")
        a("s_mov_b32 s95, 1")
        a(f"s_mov_b32 s93, {NSLO}")
        a("s_mov_b32 s42, 0")
        a("s_barrier")
        a(f"s_branch {lab_cpass}")
        a.label(lab_epi)
    cut0 = len(a.lines)
    if DRY: a.dry_entry()
    RT = FX[0]; CS = RT + 8; BR = CS + 4 * NTW; BF = BR + 2 * NTW; GE = BF + 4 * NTW
    assert GE + 10 <= ACC
    a(f"v_and_b32 {v(t2)}, 15, v1")
    a("s_lshl_b32 s3, s44, 6")
    a(f"v_add_u32 {v(t2)}, s3, {v(t2)}")
    a(f"v_lshrrev_b32 {v(t3)}, 4, v1")
    a(f"s_mul_i32 s3, s45, {NTW*4}")
    a(f"v_add_u32 {v(t3)}, s3, {v(t3)}")
    if ln:
        a(f"v_lshlrev_b32 {v(t0)}, 3, {v(t2)}")
        a(f"v_add_u32 {v(t0)}, {RTAB}, {v(t0)}")
        for mt in range(MT):
            a(f"ds_read_b64 {v(RT+2*mt,2)}, {v(t0)} offset:{128*mt}")
        a(f"v_lshlrev_b32 {v(t0)}, 4, {v(t3)}")
        a(f"v_add_u32 {v(t0)}, {CTAB}, {v(t0)}")
        for nt in range(NTW):
            a(f"ds_read_b128 {v(CS+4*nt,4)}, {v(t0)} offset:{64*nt}")
    if bias_arg and pre:
        a(f"v_lshlrev_b32 {v(t0)}, 3, {v(t3)}")
        a(f"v_add_u32 {v(t0)}, {EPI}, {v(t0)}")
        for nt in range(NTW):
            a(f"ds_read_b64 {v(BR+2*nt,2)}, {v(t0)} offset:{32*nt}")
    vc = vT[0]
    a(f"v_mul_u32_u24 {v(t2)}, {CROW}, {v(t2)}")
    a(f"v_lshl_add_u32 {v(vc)}, {v(t3)}, 3, {v(t2)}")
    if CBASE: a(f"v_add_u32 {v(vc)}, {CBASE}, {v(vc)}")
    if epi == 'gelu':
        c2 = 2 * math.log2(math.e)
        k1 = struct.unpack("<I", struct.pack("<f", 0.7978845608 * c2))[0]
        k3 = struct.unpack("<I", struct.pack("<f", 0.7978845608 * 0.044715 * c2))[0]
        a(f"s_mov_b32 s52, {k3}"); a(f"s_mov_b32 s53, {k3}")
        a(f"v_mov_b32 {v(GE+8)}, {k1}"); a(f"v_mov_b32 {v(GE+9)}, {k1}")
        a("s_mov_b32 s56, 1.0"); a("s_mov_b32 s57, 1.0")
    a("s_waitcnt vmcnt(0) lgkmcnt(0)" if (bias_arg and not pre) else "s_waitcnt lgkmcnt(0)")
    a("s_nop 7")
    if bias_arg:
        bsrc = BR if pre else PBI
        for nt in range(NTW):
            for j in range(2):
                a(f"v_lshlrev_b32 {v(BF+4*nt+2*j)}, 16, {v(bsrc+2*nt+j)}")
                a(f"v_and_b32 {v(BF+4*nt+2*j+1)}, 0xffff0000, {v(bsrc+2*nt+j)}")
    for nt in range(NTW):
        if DRY and nt in dry: a.dry_mark()
        for mp in range(0, MT, 2):
            c0 = acc(nt, mp)
            for q in range(2):
                mt = mp + q
                for j in range(2):
                    cc = v(c0 + 4 * q + 2 * j, 2)
                    tt = v(GE + 4 * q + 2 * j, 2)
                    if ln:
                        if bias_arg:
                            a(f"v_pk_fma_f32 {tt}, {v(CS+4*nt+2*j,2)}, {v(RT+2*mt,2)}, {v(BF+4*nt+2*j,2)} op_sel:[0,1,0] op_sel_hi:[1,1,1]")
                        else:
                            a(f"v_pk_mul_f32 {tt}, {v(CS+4*nt+2*j,2)}, {v(RT+2*mt,2)} op_sel:[0,1] op_sel_hi:[1,1]")
                    elif bias_arg:
                        a(f"v_pk_add_f32 {cc}, {cc}, {v(BF+4*nt+2*j,2)}")
            if ln:
                for q in range(2):
                    mt = mp + q
                    for j in range(2):
                        cc = v(c0 + 4 * q + 2 * j, 2)
                        tt = v(GE + 4 * q + 2 * j, 2)
                        a(f"v_pk_fma_f32 {cc}, {cc}, {v(RT+2*mt,2)}, {tt} op_sel:[0,0,0] op_sel_hi:[1,0,1]")
            if epi == 'gelu':
                for j in range(4):
                    a(f"v_pk_mul_f32 {v(GE+2*j,2)}, {v(c0+2*j,2)}, {v(c0+2*j,2)}")
                for j in range(4):
                    a(f"v_pk_fma_f32 {v(GE+2*j,2)}, {v(GE+2*j,2)}, s[52:53], {v(GE+8,2)}")
                for j in range(4):
                    a(f"v_pk_mul_f32 {v(GE+2*j,2)}, {v(GE+2*j,2)}, {v(c0+2*j,2)}")
                for r in range(8):
                    a(f"v_exp_f32 {v(GE+r)}, {v(GE+r)}")
                a("s_nop 0")
                for j in range(4):
                    a(f"v_pk_add_f32 {v(GE+2*j,2)}, {v(GE+2*j,2)}, s[56:57]")
                for r in range(8):
                    a(f"v_rcp_f32 {v(GE+r)}, {v(GE+r)}")
                a("s_nop 0")
                for j in range(4):
                    cc = v(c0 + 2 * j, 2)
                    a(f"v_pk_fma_f32 {cc}, {cc}, {v(GE+2*j,2)}, {cc} neg_lo:[1,0,0] neg_hi:[1,0,0]")
            for j in range(4):
                a(f"v_cvt_pk_bf16_f32 {v(c0+j)}, {v(c0+2*j)}, {v(c0+2*j+1)}")
            for q in range(2):
                a(f"ds_write_b64 {v(vc)}, {v(c0+2*q,2)} offset:{(mp+q)*16*CROW + nt*32}")
    if DRY: a(f"s_cbranch_execz {lab_store}")
    a("s_waitcnt lgkmcnt(0)")
    stamp(4)
    a("s_barrier")
    a(f"s_branch {lab_store}")
    if epi2: del a.lines[cut0:]

    a.label(lab_loader)
    if 'noprio' not in EXP: a("s_setprio 2")
    if w2copy: a(f"s_load_dwordx2 s[94:95], s[0:1], {ARG['w2']}")
    NPL = (BN // 16 + 3) // 4
    LSA = 40
    LCW = 44
    LSC = 48; LCC = 52
    LONE = 56
    LST = 60
    LMS = 132
    LCS = 68
    LSD = 84
    LWD = 100
    assert vT[7] < 40
    a(f"s_mul_i32 s3, s30, {PA*8}")
    a(f"v_lshrrev_b32 {v(t0)}, 3, v1")
    a(f"v_add_u32 {v(t0)}, s3, {v(t0)}")
    a(f"s_mul_i32 s3, s28, {BM}")
    for i in range(PA):
        a(f"v_add_u32 {v(t1)}, {8*i}, {v(t0)}")
        a(f"v_lshrrev_b32 {v(t2)}, 1, {v(t1)}")
        a(f"v_and_b32 {v(t2)}, 7, {v(t2)}")
        a(f"v_and_b32 {v(t3)}, 7, v1")
        a(f"v_xor_b32 {v(t2)}, {v(t2)}, {v(t3)}")
        if ATILE:
            a(f"v_lshlrev_b32 {v(t1)}, 7, {v(t1)}")
            a(f"s_mul_i32 s46, s3, {lda}")
            a(f"v_add_u32 {v(t1)}, s46, {v(t1)}")
        else:
            a(f"v_add_u32 {v(t1)}, s3, {v(t1)}")
            a(f"v_mul_u32_u24 {v(t1)}, {lda}, {v(t1)}")
        a(f"v_lshl_add_u32 {v(vA[i])}, {v(t2)}, 4, {v(t1)}")
    a(f"s_mul_i32 s3, s29, {BN*2*(K if BTILE else 1)}")
    NW2 = BN * 2 if BTILE else N * 2
    if RB == 448:
        a(f"s_mov_b32 s47, {((1 << 32) + 27) // 28}")
        for i in range(PB):
            a(f"s_mul_i32 s46, s30, {PB*64}")
            a(f"s_add_u32 s46, s46, {i*64}")
            a(f"v_add_u32 {v(t1)}, s46, v1")
            a(f"v_mul_hi_u32 {v(t0)}, {v(t1)}, s47")
            a(f"v_mul_u32_u24 {v(t2)}, 28, {v(t0)}")
            a(f"v_sub_u32 {v(t1)}, {v(t1)}, {v(t2)}")
            a(f"v_bfe_u32 {v(t2)}, {v(t0)}, 3, 1")
            a(f"v_lshlrev_b32 {v(t2)}, 1, {v(t2)}")
            a(f"v_xor_b32 {v(t1)}, {v(t1)}, {v(t2)}")
            a(f"v_mul_u32_u24 {v(t0)}, {NW2}, {v(t0)}")
            a(f"v_lshl_add_u32 {v(t0)}, {v(t1)}, 4, {v(t0)}")
            a(f"v_add_u32 {v(vB[i])}, s3, {v(t0)}")
    else:
      CPR = RB // 16
      lg_cpr = int(math.log2(CPR))
      RPP = 1024 // RB
      PPB = RB // 16
      lg_ppb = int(math.log2(PPB))
      for i in range(PB):
        a(f"s_mul_i32 s46, s30, {PB}")
        a(f"s_add_u32 s46, s46, {i}")
        a(f"s_lshr_b32 s47, s46, {lg_ppb}")
        a(f"s_and_b32 s46, s46, {PPB-1}")
        a(f"s_mul_i32 s46, s46, {RPP}")
        a(f"s_mul_i32 s47, s47, {RB}")
        a("s_add_u32 s47, s47, s3")
        a(f"v_lshrrev_b32 {v(t0)}, {lg_cpr}, v1")
        a(f"v_add_u32 {v(t0)}, s46, {v(t0)}")
        a(f"v_and_b32 {v(t1)}, {CPR-1}, v1")
        if RB == 256:
            a(f"v_and_b32 {v(t2)}, 3, {v(t0)}")
            a(f"v_bfe_u32 {v(t3)}, {v(t0)}, 3, 1")
            a(f"v_lshl_add_u32 {v(t2)}, {v(t3)}, 2, {v(t2)}")
        elif RB == 128:
            a(f"v_bfe_u32 {v(t2)}, {v(t0)}, 1, 1")
            a(f"v_bfe_u32 {v(t3)}, {v(t0)}, 3, 1")
            a(f"v_lshl_add_u32 {v(t2)}, {v(t3)}, 1, {v(t2)}")
        elif RB == 64:
            a(f"v_bfe_u32 {v(t2)}, {v(t0)}, 3, 1")
        else:
            a(f"v_mov_b32 {v(t2)}, 0")
        a(f"v_lshlrev_b32 {v(t2)}, 1, {v(t2)}")
        a(f"v_xor_b32 {v(t1)}, {v(t1)}, {v(t2)}")
        a(f"v_mul_u32_u24 {v(t0)}, {NW2}, {v(t0)}")
        a(f"v_lshl_add_u32 {v(t0)}, {v(t1)}, 4, {v(t0)}")
        a(f"v_add_u32 {v(vB[i])}, s47, {v(t0)}")
    a(f"s_mul_i32 s31, s30, {PA*1024}")
    a(f"s_mul_i32 s32, s30, {PB*1024}")
    a(f"s_add_u32 s32, s32, {ABYTES}")
    a("s_mov_b32 s40, 0")
    a("s_mov_b32 s41, 0")
    a("s_mov_b32 s43, 0")
    a("s_mov_b32 s42, 0")
    build_srds()
    if zero_flags:
        lz = a.newlabel("L_nz")
        a("s_cmp_lg_u32 s2, 0")
        a(f"s_cbranch_scc1 {lz}")
        srd(a, 92, 24, WS_FLAG, 512)
        a(f"v_lshlrev_b32 {v(t0)}, 3, v1")
        a("v_mov_b32 v44, 0")
        a("v_mov_b32 v45, 0")
        a(f"buffer_store_dwordx2 v[44:45], {v(t0)}, s[92:95], 0 offen")
        a.label(lz)
    if splitk:
        a(f"s_mul_i32 s40, s92, {NSLO*BK*2*(BM if ATILE else 1)}")
        a(f"s_mul_i32 s41, s92, {NSLO*BK*NW2}")
        lab_lpass = a.newlabel("L_lpass")
        a.label(lab_lpass)

    def dma():
        if 'nodma' in EXP: return
        a("s_add_u32 s33, s43, s31")
        for i in range(PA):
            a(f"s_add_u32 m0, s33, {i*1024}")
            a("s_nop 0")
            a(f"buffer_load_dwordx4 {v(vA[i])}, s[4:7], s40 offen lds")
        a("s_add_u32 s33, s43, s32")
        for i in range(PB):
            a(f"s_add_u32 m0, s33, {i*1024}")
            a("s_nop 0")
            a(f"buffer_load_dwordx4 {v(vB[i])}, s[8:11], s41 offen lds")
        a(f"s_add_u32 s40, s40, {BK*2*(BM if ATILE else 1)}")
        a(f"s_add_u32 s41, s41, {BK*NW2}")
        if 'kwrap' in EXP:
            KW = int(os.environ.get('KW', '8'))
            a(f"s_cmp_ge_u32 s40, {KW*BK*2}")
            a("s_cselect_b32 s40, 0, s40")
            a("s_cselect_b32 s41, 0, s41")
        a(f"s_add_u32 s43, s43, {STAGE}")
        a(f"s_cmp_ge_u32 s43, {STAGE*NSTAGE}")
        a("s_cselect_b32 s43, 0, s43")

    stamp(1)
    if pre:
        a(f"v_lshrrev_b32 {v(LSA)}, 1, v1")
        a("s_lshl_b32 s3, s30, 5")
        a(f"v_add_u32 {v(LSA)}, s3, {v(LSA)}")
        a(f"s_mul_i32 s3, s28, {BM}")
        a(f"v_add_u32 {v(t0)}, s3, {v(LSA)}")
        a(f"v_lshlrev_b32 {v(t0)}, 7, {v(t0)}")
        a(f"v_and_b32 {v(t1)}, 1, v1")
        a(f"v_lshl_add_u32 {v(t0)}, {v(t1)}, 6, {v(t0)}")
        for i in range(4):
            a(f"buffer_load_dwordx4 {v(LSD+4*i,4)}, {v(t0)}, s[84:87], 0 offen offset:{16*i}")
    if st_bias:
        a(f"v_lshlrev_b32 {v(t0)}, 4, v1")
        a(f"s_mul_i32 s3, s29, {BN*2}")
        a(f"s_mov_b32 m0, {EPI}")
        a("s_nop 0")
        a(f"buffer_load_dwordx4 {v(t0)}, s[20:23], s3 offen lds")
        a(f"s_mul_i32 s3, s29, {BN*4}")
        a(f"s_mul_i32 s46, s30, {4*N*4}")
        a("s_add_u32 s3, s3, s46")
        for g_ in range(4):
            a(f"buffer_load_dwordx4 {v(LWD+4*g_,4)}, {v(t0)}, s[88:91], s3 offen")
            a(f"s_add_u32 s3, s3, {N*4}")
    for _ in range(NSTAGE - 1):
        dma()
    stamp(2)
    if ln and not pre:
        wfrag_addr_common()
        for i in range(NPL):
            a(f"s_mul_i32 s46, s30, {NPL}")
            a(f"s_add_u32 s46, s46, {i}")
            a(f"s_min_u32 s46, s46, {BN//16-1}")
            wfrag_addr(LCW + i)
        for i in range(4):
            a(f"v_mov_b32 {v(LONE+i)}, 0x3f803f80")
        for i in range(16):
            a(f"v_mov_b32 {v(LMS+i)}, 0")
        a(f"v_and_b32 {v(t0)}, 15, v1")
        a("s_lshl_b32 s3, s30, 5")
        a(f"v_add_u32 {v(t0)}, s3, {v(t0)}")
        a(f"v_lshlrev_b32 {v(t0)}, 7, {v(t0)}")
        a(f"v_lshrrev_b32 {v(t1)}, 4, v1")
        a(f"v_bfe_u32 {v(t2)}, v1, 1, 3")
        a(f"v_xor_b32 {v(t3)}, {v(t1)}, {v(t2)}")
        a(f"v_lshl_add_u32 {v(LSA)}, {v(t3)}, 4, {v(t0)}")
        a(f"v_xor_b32 {v(t3)}, 4, {v(t3)}")
        a(f"v_lshl_add_u32 {v(LSA+1)}, {v(t3)}, 4, {v(t0)}")
        for i in range(4 * NPL):
            a(f"v_mov_b32 {v(LCS+i)}, 0")

    def stats_reads():
        for i in range(2):
            a(f"v_add_u32 {v(LSC+i)}, s42, {v(LSA+i)}")
        for i in range(NPL):
            a(f"v_add_u32 {v(LCC+i)}, s42, {v(LCW+i)}")
        a(f"s_add_u32 s42, s42, {STAGE}")
        a(f"s_cmp_ge_u32 s42, {STAGE*NSTAGE}")
        a("s_cselect_b32 s42, 0, s42")
        for q in range(2):
            for kk in range(2):
                a(f"ds_read_b128 {v(LSD+8*q+4*kk,4)}, {v(LSC+kk)} offset:{2048*q}")
        for i in range(NPL):
            for kk in range(2):
                for rd in range(2):
                    a(f"ds_read_b64_tr_b16 {v(LWD+8*i+4*kk+2*rd,2)}, {v(LCC+i)} offset:{kk*32*RB+rd*4*RB}")

    def stats_math():
        a("s_waitcnt lgkmcnt(0)")
        for i in range(NPL):
            for kk in range(2):
                a(f"v_mfma_f32_16x16x32_bf16 {v(LCS+4*i,4)}, {v(LWD+8*i+4*kk,4)}, {v(LONE,4)}, {v(LCS+4*i,4)}")
        for kk in range(2):
            for q in range(2):
                d = v(LSD + 8 * q + 4 * kk, 4)
                a(f"v_mfma_f32_16x16x32_bf16 {v(LMS+8*q,4)}, {d}, {v(LONE,4)}, {v(LMS+8*q,4)}")
                a(f"v_mfma_f32_16x16x32_bf16 {v(LMS+8*q+4,4)}, {d}, {d}, {v(LMS+8*q+4,4)}")

    nloop = NS - NSTAGE + 1
    if splitk: a(f"s_sub_u32 s48, s93, {NSTAGE-1}")
    else: a(f"s_mov_b32 s48, {nloop}")
    lloop = a.newlabel("L_lloop")
    a.label(lloop)
    a(f"s_waitcnt vmcnt({(NSTAGE-2)*P})")
    a("s_barrier")
    if ln and not pre: stats_reads()
    dma()
    if ln and not pre: stats_math()
    a("s_sub_u32 s48, s48, 1")
    a("s_cmp_lg_u32 s48, 0")
    a(f"s_cbranch_scc1 {lloop}")
    if pre:
        for i in range(1, 8):
            a(f"v_add_f32 {v(LSD)}, {v(LSD)}, {v(LSD+2*i)}")
            a(f"v_add_f32 {v(LSD+1)}, {v(LSD+1)}, {v(LSD+2*i+1)}")
        a("s_nop 1")
        for k_ in range(2):
            a(f"v_add_f32_dpp {v(LST+k_)}, {v(LSD+k_)}, {v(LSD+k_)} quad_perm:[1,0,3,2] row_mask:0xf bank_mask:0xf")
        sm, sq, r1, r2 = LST, LST + 1, LSD, LSD + 1
        a(f"v_mul_f32 {v(sm)}, {hex_f32(1.0/K)}, {v(sm)}")
        a(f"v_mul_f32 {v(sq)}, {hex_f32(1.0/K)}, {v(sq)}")
        a(f"v_fma_f32 {v(sq)}, -{v(sm)}, {v(sm)}, {v(sq)}")
        a(f"v_max_f32 {v(sq)}, 0, {v(sq)}")
        a(f"v_add_f32 {v(r1)}, {hex_f32(1e-5)}, {v(sq)}")
        a(f"v_rsq_f32 {v(r1)}, {v(r1)}")
        a("s_nop 0")
        if ln == 'double':
            a(f"v_mul_f32 {v(r2)}, {v(r1)}, {v(r1)}")
            a(f"v_mul_f32 {v(r2)}, {v(r2)}, {v(sq)}")
            a(f"v_add_f32 {v(r2)}, {hex_f32(1e-5)}, {v(r2)}")
            a(f"v_rsq_f32 {v(r2)}, {v(r2)}")
            a("s_nop 0")
            a(f"v_mul_f32 {v(r1)}, {v(r1)}, {v(r2)}")
        a(f"v_mul_f32 {v(r2)}, {v(sm)}, {v(r1)}")
        a(f"v_sub_f32 {v(r2)}, 0, {v(r2)}")
        a(f"v_lshlrev_b32 {v(LSC)}, 3, {v(LSA)}")
        a(f"v_add_u32 {v(LSC)}, {RTAB}, {v(LSC)}")
        a(f"ds_write_b64 {v(LSC)}, {v(LSD,2)}")
        for g_ in range(1, 4):
            for j in range(2):
                a(f"v_pk_add_f32 {v(LWD+2*j,2)}, {v(LWD+2*j,2)}, {v(LWD+4*g_+2*j,2)}")
        a(f"v_lshlrev_b32 {v(t0)}, 4, v1")
        a(f"v_add_u32 {v(t0)}, {EPI+3072}, {v(t0)}")
        a("s_lshl_b32 s3, s30, 10")
        a(f"v_add_u32 {v(t1)}, s3, {v(t0)}")
        a(f"ds_write_b128 {v(t1)}, {v(LWD,4)}")
        a("s_waitcnt lgkmcnt(0)")
    if st_res:
        npc = BM * BN * 2 // 4096
        rpp = 1024 // (BN * 2)
        lpr = BN * 2 // 16
        a(f"v_lshrrev_b32 {v(t0)}, {int(math.log2(lpr))}, v1")
        a(f"s_mul_i32 s3, s30, {npc*rpp}")
        a(f"s_mul_i32 s46, s28, {BM}")
        a("s_add_u32 s3, s3, s46")
        a(f"v_add_u32 {v(t0)}, s3, {v(t0)}")
        a(f"v_mul_u32_u24 {v(t0)}, {N*2}, {v(t0)}")
        a(f"v_and_b32 {v(t1)}, {lpr-1}, v1")
        a(f"v_lshl_add_u32 {v(t0)}, {v(t1)}, 4, {v(t0)}")
        a(f"s_mul_i32 s3, s29, {BN*2}")
        a(f"v_add_u32 {v(t0)}, s3, {v(t0)}")
        a(f"s_mul_i32 s33, s30, {npc*1024}")
        for i in range(npc):
            a(f"s_add_u32 m0, s33, {EPI + i*1024}")
            a(f"s_mov_b32 s3, {i*rpp*N*2}")
            a(f"buffer_load_dwordx4 {v(t0)}, s[16:19], s3 offen lds")
    for j in range(NS - NSTAGE + 1, NS):
        a(f"s_waitcnt vmcnt({(NS-1-j)*P + NEX})")
        a("s_barrier")
        if pre and j == NS - NSTAGE + 1:
            assert NSTAGE >= 3
            lcs = a.newlabel("L_lcs")
            a("s_cmp_lg_u32 s30, 0")
            a(f"s_cbranch_scc1 {lcs}")
            for g_ in range(4):
                a(f"ds_read_b128 {v(LWD+4*g_,4)}, {v(t0)} offset:{1024*g_}")
            a("s_waitcnt lgkmcnt(0)")
            for g_ in range(1, 4):
                for j_ in range(2):
                    a(f"v_pk_add_f32 {v(LWD+2*j_,2)}, {v(LWD+2*j_,2)}, {v(LWD+4*g_+2*j_,2)}")
            a(f"v_subrev_u32 {v(t0)}, {EPI+3072-CTAB}, {v(t0)}")
            a(f"ds_write_b128 {v(t0)}, {v(LWD,4)}")
            a("s_waitcnt lgkmcnt(0)")
            a.label(lcs)
        if ln and not pre:
            stats_reads()
            stats_math()
    stamp(3)
    if epi2: a("s_barrier")
    if w2copy:
        a("s_lshl_b32 s92, s2, 2")
        a("s_add_u32 s92, s92, s30")
        a(f"v_lshrrev_b32 {v(t0)}, 3, v1")
        a(f"v_and_b32 {v(t1)}, 7, v1")
        a(f"v_lshlrev_b32 {v(t1)}, 4, {v(t1)}")
        a(f"v_lshl_add_u32 {v(W2A)}, {v(t0)}, 11, {v(t1)}")
        a("s_lshr_b32 s3, s92, 6")
        a("s_lshl_b32 s3, s3, 7")
        a("s_and_b32 s46, s92, 63")
        a(f"s_mul_i32 s46, s46, {56*D*2}")
        a("s_add_u32 s3, s3, s46")
        srd(a, 88, 94, 0, F * D * 2)
        for j in range(7):
            a(f"buffer_load_dwordx4 {v(W2S+4*j,4)}, {v(W2A)}, s[88:91], s3 offen")
            a(f"s_add_u32 s3, s3, {8*D*2}")
        def w2store(extra):
            srd(a, 88, 24, WS_W2T, F * D * 2)
            a("s_mul_i32 s3, s92, 7168")
            a(f"v_lshlrev_b32 {v(W2A)}, 4, v1")
            for j in range(7):
                if j == 4: a("s_add_u32 s3, s3, 4096")
                a(f"s_waitcnt vmcnt({6+extra})")
                a(f"buffer_store_dwordx4 {v(W2S+4*j,4)}, {v(W2A)}, s[88:91], s3 offen offset:{1024*(j&3)}")
        if not epi2: w2store(0)
    if ln and not pre:
        a("s_nop 7")
        a(f"v_and_b32 {v(t0)}, 3, v1")
        for r in range(1, 4):
            a(f"v_cmp_eq_u32 s[{48+2*r}:{49+2*r}], {r}, {v(t0)}")
        X0 = LSD
        for i in range(2):
            sm, sq = LST + 2 * i, LST + 2 * i + 1
            r1, r2 = X0 + 2 * i, X0 + 2 * i + 1
            for dst, src in ((sm, LMS + 8 * i), (sq, LMS + 8 * i + 4)):
                a(f"v_cndmask_b32 {v(dst)}, {v(src)}, {v(src+1)}, s[50:51]")
                a(f"v_cndmask_b32 {v(dst)}, {v(dst)}, {v(src+2)}, s[52:53]")
                a(f"v_cndmask_b32 {v(dst)}, {v(dst)}, {v(src+3)}, s[54:55]")
            a(f"v_mul_f32 {v(sm)}, {hex_f32(1.0/K)}, {v(sm)}")
            a(f"v_mul_f32 {v(sq)}, {hex_f32(1.0/K)}, {v(sq)}")
            a(f"v_fma_f32 {v(sq)}, -{v(sm)}, {v(sm)}, {v(sq)}")
            a(f"v_max_f32 {v(sq)}, 0, {v(sq)}")
            a(f"v_add_f32 {v(r1)}, {hex_f32(1e-5)}, {v(sq)}")
            a(f"v_rsq_f32 {v(r1)}, {v(r1)}")
            a("s_nop 0")
            assert ln == 'single'
            a(f"v_mul_f32 {v(r2)}, {v(sm)}, {v(r1)}")
            a(f"v_sub_f32 {v(r2)}, 0, {v(r2)}")
        a(f"v_lshrrev_b32 {v(LSC)}, 7, {v(LSA)}")
        a(f"v_lshlrev_b32 {v(LSC)}, 3, {v(LSC)}")
        a(f"v_add_u32 {v(LSC)}, {RTAB}, {v(LSC)}")
        a(f"v_lshrrev_b32 {v(t0)}, 4, v1")
        a(f"v_lshlrev_b32 {v(t0)}, 4, {v(t0)}")
        for i in range(NPL):
            a(f"s_mul_i32 s46, s30, {NPL}")
            a(f"s_add_u32 s46, s46, {i}")
            a(f"s_min_u32 s46, s46, {BN//16-1}")
            a("s_lshl_b32 s46, s46, 6")
            a(f"s_add_u32 s46, s46, {CTAB}")
            a(f"v_add_u32 {v(LCC+i)}, s46, {v(t0)}")
    if ln and not pre:
        a("s_mov_b32 exec_lo, 0x00f0000f")
        a("s_mov_b32 exec_hi, 0xf0000f00")
        for i in range(2):
            a(f"ds_write_b64 {v(LSC)}, {v(LSD+2*i,2)} offset:{128*i}")
        a("s_mov_b64 exec, -1")
        for i in range(NPL):
            a(f"ds_write_b128 {v(LCC+i)}, {v(LCS+4*i,4)}")
        a("s_waitcnt lgkmcnt(0)")
        a("s_barrier")
    if NEX: a("s_waitcnt vmcnt(0)")
    if splitk:
        lhi = a.newlabel("L_lhi"); lepi = a.newlabel("L_lepi")
        a("s_cmp_lg_u32 s92, 0")
        a(f"s_cbranch_scc1 {lhi}")
        a("s_barrier")
        a(f"s_branch {end}")
        a.label(lhi)
        a("s_barrier")
        a("s_cmp_eq_u32 s94, 2")
        a(f"s_cbranch_scc1 {lepi}")
        a(f"v_mov_b32 {v(t1)}, {DONE}")
        a(f"ds_read_b128 {v(44,4)}, {v(t1)}")
        a("s_waitcnt lgkmcnt(0)")
        a("v_and_b32 v44, v44, v45")
        a("v_and_b32 v46, v46, v47")
        a("v_and_b32 v44, v44, v46")
        a("s_nop 0")
        a("v_readfirstlane_b32 s3, v44")
        a("s_nop 3")
        a("s_cmp_eq_u32 s3, 1")
        a(f"s_cbranch_scc1 {lepi}")
        a("s_mov_b32 s94, 2")
        a(f"s_mov_b32 s93, {NSLO}")
        a("s_mov_b32 s40, 0"); a("s_mov_b32 s41, 0"); a("s_mov_b32 s43, 0")
        a("s_barrier")
        a(f"s_branch {lab_lpass}")
        a.label(lepi)
    stamp(4)
    a("s_barrier")

    a.label(lab_store)
    if epi2:
        CPRW = BN // 8
        assert CPRW == 28 and otile
        vL, vR, vO = 2, 3, 4
        CSr, BFr, Dr, RCr, Gr, Or, K1 = 8, 16, [24, 32], [40, 42], 44, [52, 56], 60
        c2 = 2 * math.log2(math.e)
        k1 = struct.unpack("<I", struct.pack("<f", -0.7978845608 * c2))[0]
        k3 = struct.unpack("<I", struct.pack("<f", -0.7978845608 * 0.044715 * c2))[0]
        a("s_setprio 0")
        a(f"v_cmp_le_u32 s[46:47], {CPRW}, v1")
        a(f"v_mov_b32 v5, 0")
        a(f"v_cndmask_b32 v5, v5, 1, s[46:47]")
        a(f"v_mul_u32_u24 v6, {CPRW}, v5")
        a(f"v_sub_u32 v6, v1, v6")
        a("s_lshl_b32 s3, s49, 1")
        a("v_add_u32 v5, s3, v5")
        a("s_mov_b32 exec_hi, 0x00ffffff")
        a(f"v_lshlrev_b32 v7, 5, v6")
        a(f"v_add_u32 v7, {CTAB}, v7")
        a(f"ds_read_b128 {v(CSr,4)}, v7")
        a(f"ds_read_b128 {v(CSr+4,4)}, v7 offset:16")
        a(f"v_lshlrev_b32 v7, 4, v6")
        a(f"v_add_u32 v62, {EPI}, v7")
        a(f"ds_read_b128 {v(Gr,4)}, v62")
        a(f"v_mul_u32_u24 {v(vL)}, {FROW}, v5")
        a(f"v_add_u32 {v(vL)}, {v(vL)}, v7")
        a(f"v_lshlrev_b32 {v(vR)}, 3, v5")
        a(f"v_add_u32 {v(vR)}, {RTAB}, {v(vR)}")

        def rd(b):
            a(f"ds_read_b128 {v(Dr[b],4)}, {v(vL)}")
            a(f"ds_read_b128 {v(Dr[b]+4,4)}, {v(vL)} offset:{BN*2}")
            a(f"ds_read_b64 {v(RCr[b],2)}, {v(vR)}")
            a(f"v_add_u32 {v(vL)}, {16*FROW}, {v(vL)}")
            a(f"v_add_u32 {v(vR)}, 128, {v(vR)}")
        rd(0)
        a(f"s_mul_i32 s3, s29, {CPRW}")
        a("v_add_u32 v6, s3, v6")
        a("v_lshrrev_b32 v7, 3, v6")
        a("v_lshlrev_b32 v7, 14, v7")
        a("v_lshl_add_u32 v7, v5, 7, v7")
        a("v_and_b32 v6, 7, v6")
        a(f"v_lshl_add_u32 {v(vO)}, v6, 4, v7")
        a(f"s_mul_i32 s50, s28, {BM*ldo}")
        a(f"s_mov_b32 s52, {k3}"); a(f"s_mov_b32 s53, {k3}")
        a(f"v_mov_b32 {v(K1)}, {k1}"); a(f"v_mov_b32 {v(K1+1)}, {k1}")
        a("s_mov_b32 s56, 1.0"); a("s_mov_b32 s57, 1.0")
        a("s_waitcnt lgkmcnt(3)")
        for j in range(4):
            a(f"v_lshlrev_b32 {v(BFr+2*j)}, 16, {v(Gr+j)}")
            a(f"v_and_b32 {v(BFr+2*j+1)}, 0xffff0000, {v(Gr+j)}")
        stamp(5)
        a(f"s_mov_b32 s48, {BM//32}")
        lp = a.newlabel("L_ep")
        a.label(lp)
        for b in range(2):
            rd(1 - b)
            a("s_waitcnt lgkmcnt(3)")
            d = Dr[b]; rc = v(RCr[b], 2)
            for j in range(4):
                a(f"v_pk_fma_f32 {v(Gr+2*j,2)}, {v(CSr+2*j,2)}, {rc}, {v(BFr+2*j,2)} op_sel:[0,1,0] op_sel_hi:[1,1,1]")
            for j in range(4):
                a(f"v_pk_fma_f32 {v(d+2*j,2)}, {v(d+2*j,2)}, {rc}, {v(Gr+2*j,2)} op_sel:[0,0,0] op_sel_hi:[1,0,1]")
            for j in range(4):
                a(f"v_pk_mul_f32 {v(Gr+2*j,2)}, {v(d+2*j,2)}, {v(d+2*j,2)}")
            for j in range(4):
                a(f"v_pk_fma_f32 {v(Gr+2*j,2)}, {v(Gr+2*j,2)}, s[52:53], {v(K1,2)}")
            for j in range(4):
                a(f"v_pk_mul_f32 {v(Gr+2*j,2)}, {v(Gr+2*j,2)}, {v(d+2*j,2)}")
            for r in range(8):
                a(f"v_exp_f32 {v(Gr+r)}, {v(Gr+r)}")
            a("s_nop 0")
            for j in range(4):
                a(f"v_pk_add_f32 {v(Gr+2*j,2)}, {v(Gr+2*j,2)}, s[56:57]")
            for r in range(8):
                a(f"v_rcp_f32 {v(Gr+r)}, {v(Gr+r)}")
            a("s_nop 0")
            for j in range(4):
                a(f"v_pk_mul_f32 {v(d+2*j,2)}, {v(d+2*j,2)}, {v(Gr+2*j,2)}")
            for j in range(4):
                a(f"v_cvt_pk_bf16_f32 {v(Or[b]+j)}, {v(d+2*j)}, {v(d+2*j+1)}")
            a(f"buffer_store_dwordx4 {v(Or[b],4)}, {v(vO)}, s[12:15], s50 offen {STMOD}")
            a("s_add_u32 s50, s50, 2048")
        a("s_sub_u32 s48, s48, 1")
        a("s_cmp_lg_u32 s48, 0")
        a(f"s_cbranch_scc1 {lp}")
        a("s_mov_b64 exec, -1")
        a("s_waitcnt lgkmcnt(0)")
        if w2copy:
            lw = a.newlabel("L_nw2")
            a("s_cmp_lt_u32 s49, 4")
            a(f"s_cbranch_scc1 {lw}")
            w2store(BM // 16)
            a.label(lw)
        stamp(6)
        if 'stamp' in EXP: a("s_waitcnt vmcnt(0)")
        stamp(7)
        stamp_out()
        a.label(end)
        a("s_endpgm")
        return dict(name=name, grid=ntiles, block=512, lds=lds, desc=kernel_desc(name, max(nvgpr, 168)))
    CPRW = BN // 8
    NIT = BM * CPRW // 512
    assert NIT * 512 == BM * CPRW
    magic = ((1 << 32) + CPRW - 1) // CPRW
    a(f"s_mov_b32 s46, {magic}")
    a(f"s_mul_i32 s3, s49, {NIT*64}")
    a(f"v_add_u32 {v(t0)}, s3, v1")
    a(f"s_mul_i32 s3, s28, {BM*ldo if otile else BM}")
    a(f"s_mul_i32 s47, s29, {CPRW if otile else BN*2}")
    R0 = (vT[7] + 4) // 4 * 4
    RR = R0 + 4 * NIT
    OFF = RR + 4 * NIT
    SOF = OFF + NIT
    GT = (SOF + NIT + 3) // 4 * 4
    assert GT + 10 <= 256
    for it in range(NIT):
        a(f"v_add_u32 {v(t1)}, {it*64}, {v(t0)}")
        a(f"v_mul_hi_u32 {v(t2)}, {v(t1)}, s46")
        a(f"v_mul_u32_u24 {v(t3)}, {CPRW}, {v(t2)}")
        a(f"v_sub_u32 {v(t3)}, {v(t1)}, {v(t3)}")
        a(f"v_mul_u32_u24 {v(t1)}, {CROW}, {v(t2)}")
        a(f"v_lshl_add_u32 {v(t1)}, {v(t3)}, 4, {v(t1)}")
        if CBASE: a(f"v_add_u32 {v(t1)}, {CBASE}, {v(t1)}")
        a(f"ds_read_b128 {v(R0+4*it,4)}, {v(t1)}")
        if not otile: a(f"v_add_u32 {v(t2)}, s3, {v(t2)}")
        if stats_out:
            a(f"v_lshlrev_b32 {v(SOF+it)}, 7, {v(t2)}")
            a(f"v_lshl_add_u32 {v(SOF+it)}, s29, 3, {v(SOF+it)}")
        if otile:
            a(f"v_add_u32 {v(t3)}, s47, {v(t3)}")
            a(f"v_lshrrev_b32 {v(t1)}, 3, {v(t3)}")
            a(f"v_lshlrev_b32 {v(t1)}, 14, {v(t1)}")
            a(f"v_lshl_add_u32 {v(t1)}, {v(t2)}, 7, {v(t1)}")
            a(f"v_and_b32 {v(t3)}, 7, {v(t3)}")
            a(f"v_lshl_add_u32 {v(t1)}, {v(t3)}, 4, {v(t1)}")
            a(f"v_add_u32 {v(OFF+it)}, s3, {v(t1)}")
        else:
            a(f"v_mul_u32_u24 {v(t2)}, {ldo}, {v(t2)}")
            a(f"v_lshlrev_b32 {v(t3)}, 4, {v(t3)}")
            a(f"v_add_u32 {v(t3)}, s47, {v(t3)}")
            a(f"v_add_u32 {v(OFF+it)}, {v(t3)}, {v(t2)}")
        if st_res:
            a(f"v_lshlrev_b32 {v(t1)}, 4, {v(t0)}")
            a(f"v_add_u32 {v(t1)}, {EPI + it*1024}, {v(t1)}")
            a(f"ds_read_b128 {v(RR+4*it,4)}, {v(t1)}")
        elif res_arg:
            a(f"buffer_load_dwordx4 {v(RR+4*it,4)}, {v(OFF+it)}, s[16:19], 0 offen")
    a("s_waitcnt vmcnt(0) lgkmcnt(0)" if (res_arg and not st_res) else "s_waitcnt lgkmcnt(0)")
    if DRY: a.dry_exit()
    stamp(5)
    for it in range(NIT):
        c0 = R0 + 4 * it
        if res_arg:
            for j in range(4):
                d = c0 + j
                r = RR + 4 * it + j
                a(f"v_lshlrev_b32 {v(GT)}, 16, {v(d)}")
                a(f"v_lshlrev_b32 {v(GT+1)}, 16, {v(r)}")
                a(f"v_and_b32 {v(GT+2)}, 0xffff0000, {v(d)}")
                a(f"v_and_b32 {v(GT+3)}, 0xffff0000, {v(r)}")
                a(f"v_add_f32 {v(GT)}, {v(GT)}, {v(GT+1)}")
                a(f"v_add_f32 {v(GT+2)}, {v(GT+2)}, {v(GT+3)}")
                a(f"v_cvt_pk_bf16_f32 {v(d)}, {v(GT)}, {v(GT+2)}")
        a(f"buffer_store_dwordx4 {v(c0,4)}, {v(OFF+it)}, s[12:15], 0 offen {STMOD if (ln or STALL) else ''}")
        if stats_out:
            assert CPRW == 8
            a(f"v_mov_b32 {v(GT+8)}, 0x3f803f80")
            a(f"v_mov_b32 {v(GT)}, 0")
            a(f"v_mov_b32 {v(GT+1)}, 0")
            for j in range(4):
                a(f"v_dot2_f32_bf16 {v(GT)}, {v(c0+j)}, {v(GT+8)}, {v(GT)}")
                a(f"v_dot2_f32_bf16 {v(GT+1)}, {v(c0+j)}, {v(c0+j)}, {v(GT+1)}")
            a("s_nop 3")
            for q_, mode in enumerate(("quad_perm:[1,0,3,2]", "quad_perm:[2,3,0,1]", "row_half_mirror")):
                src = GT + 2 * (q_ & 1); dst = GT + 2 * ((q_ + 1) & 1)
                for k_ in range(2):
                    a(f"v_add_f32_dpp {v(dst+k_)}, {v(src+k_)}, {v(src+k_)} {mode} row_mask:0xf bank_mask:0xf")
                a("s_nop 1")
            a("s_mov_b32 exec_lo, 0x01010101")
            a("s_mov_b32 exec_hi, 0x01010101")
            a(f"buffer_store_dwordx2 {v(GT+2,2)}, {v(SOF+it)}, s[84:87], 0 offen")
            a("s_mov_b64 exec, -1")
    stamp(6)
    if 'stamp' in EXP: a("s_waitcnt vmcnt(0)")
    stamp(7)
    stamp_out()
    a.label(end)
    a("s_endpgm")
    if DRY: a.dry_dispatch()
    return dict(name=name, grid=ntiles, block=512, lds=lds, desc=kernel_desc(name, max(nvgpr, GT + 10, 168)))


def gen_attn(a, name, pf=None, colsum=False):
    import struct
    NQB = S // 32
    ntask = H * NQB
    nwg = ntask // 4
    QKV_ROW = 3 * D * 2
    KLDS = 384 * 64
    lds = 2 * KLDS
    kernel_header(a, name)
    end = a.newlabel("L_end")
    npf = 0
    a(f"s_cmp_ge_u32 s2, {nwg + npf}")
    a(f"s_cbranch_scc1 {end}")
    a(f"s_load_dwordx2 s[24:25], s[0:1], {ARG['ws']}")
    a("v_and_b32 v1, 63, v0")
    a("v_lshrrev_b32 v2, 6, v0")
    a("s_nop 0")
    a("v_readfirstlane_b32 s30, v2")
    a("s_nop 3")
    a("s_lshl_b32 s3, s2, 2")
    a("s_add_u32 s92, s3, s30")
    a("s_and_b32 s28, s2, 31")
    a("s_lshr_b32 s29, s2, 5")
    a("s_lshl_b32 s39, s29, 7")
    a("s_sub_u32 s39, s39, 256")
    a("s_lshl_b32 s3, s30, 5")
    a("s_add_u32 s32, s39, s3")
    a("s_add_u32 s31, s32, 256")
    a("s_lshl_b32 s33, s28, 6")
    a(f"s_add_u32 s35, s33, {2*D*2}")
    a(f"s_add_u32 s36, s33, {D*2}")
    a("v_and_b32 v2, 31, v1")
    a("v_lshrrev_b32 v3, 5, v1")
    a("v_add_u32 v4, s31, v2")
    a(f"v_mul_u32_u24 v4, {QKV_ROW}, v4")
    a("v_lshl_add_u32 v4, v3, 4, v4")
    a("v_add_u32 v4, s33, v4")
    a("s_waitcnt lgkmcnt(0)")
    srd(a, 4, 24, WS_QKV, S * 3 * D * 2)
    srd(a, 8, 24, WS_O, S * D * 2)
    a("v_lshrrev_b32 v5, 2, v1")
    a("v_and_b32 v6, 3, v1")
    a("v_bfe_u32 v7, v1, 4, 2")
    a("v_xor_b32 v7, v7, v6")
    a("s_mul_i32 s3, s30, 96")
    a("s_add_u32 s3, s3, s39")
    a("s_mul_i32 s34, s30, 6144")
    for p in range(6):
        a(f"v_add_u32 v16, {16*p}, v5")
        a("v_add_u32 v16, s3, v16")
        a("v_max_i32 v16, 0, v16")
        a(f"v_mul_u32_u24 v16, {QKV_ROW}, v16")
        a("v_lshl_add_u32 v17, v7, 4, v16")
        a("v_add_u32 v17, s36, v17")
        a(f"s_add_u32 m0, s34, {p*1024}")
        a("v_lshl_add_u32 v16, v6, 4, v16")
        a(f"buffer_load_dwordx4 v17, s[4:7], 0 offen lds")
        a("v_add_u32 v16, s35, v16")
        a(f"s_add_u32 m0, s34, {KLDS + p*1024}")
        a("s_nop 0")
        a(f"buffer_load_dwordx4 v16, s[4:7], 0 offen lds")
    a("buffer_load_dwordx4 v[8:11], v4, s[4:7], 0 offen")
    a("buffer_load_dwordx4 v[12:15], v4, s[4:7], 0 offen offset:32")
    KF = 16
    if colsum:
        a(f"s_load_dwordx2 s[94:95], s[0:1], {ARG['w2']}")
        a(f"s_load_dwordx2 s[40:41], s[0:1], {ARG['wo']}")
        a(f"s_load_dwordx2 s[42:43], s[0:1], {ARG['w1']}")
        a("v_lshlrev_b32 v7, 4, v1")
        a(f"s_mul_i32 s93, s92, {F*D*2//2048}")
        a("s_lshl_b32 s3, s92, 10")
        a("v_add_u32 v16, s93, v7")
        a("v_add_u32 v17, s3, v7")
        a(f"s_mul_hi_u32 s44, s92, {((1 << 32) + 111) // 112}")
        a("s_mul_i32 s3, s44, 112")
        a("s_sub_u32 s45, s92, s3")
        a("s_lshl_b32 s3, s44, 6")
        a("v_lshrrev_b32 v18, 2, v1")
        a("v_add_u32 v18, s3, v18")
        a(f"v_mul_u32_u24 v18, {F*2}, v18")
        a("v_and_b32 v19, 3, v1")
        a("v_lshl_add_u32 v18, v19, 4, v18")
        a("s_lshl_b32 s3, s45, 6")
        a("v_add_u32 v18, s3, v18")
        a("s_waitcnt lgkmcnt(0)")
        npl = 4
        if 'nowpf' in EXP:
            srd(a, 96, 94, 0, F * D * 2)
            for j in range(4):
                a(f"buffer_load_dwordx4 v[240:243], v16, s[96:99], 0 offen offset:{1024*j}")
            srd(a, 96, 40, 0, D * D * 2)
            a("buffer_load_dwordx4 v[240:243], v17, s[96:99], 0 offen")
            npl = 9
        srd(a, 96, 42, 0, D * F * 2)
        for j in range(4):
            a(f"s_mov_b32 s3, {16*j*F*2}")
            a(f"buffer_load_dwordx4 {v(240+4*j,4)}, v18, s[96:99], s3 offen")
    else:
        npl = tail_prefetch(a, 92, 1, pf, 7, 240) if pf else 0
    a("v_bfe_u32 v5, v1, 2, 2")
    a("v_xor_b32 v5, v5, v3")
    a("v_lshlrev_b32 v6, 6, v2")
    a("s_lshl_b32 s34, s30, 11")
    a("v_add_u32 v6, s34, v6")
    a("v_lshl_add_u32 v88, v5, 4, v6")
    a("v_xor_b32 v5, 2, v5")
    a("v_lshl_add_u32 v89, v5, 4, v6")
    a(f"s_add_u32 s34, s34, {KLDS}")
    a(f"s_waitcnt vmcnt({npl})")
    a("s_barrier")
    for t_ in range(9):
        a(f"ds_read_b128 {v(KF+8*t_,4)}, v88 offset:{2048*t_}")
        a(f"ds_read_b128 {v(KF+8*t_+4,4)}, v89 offset:{2048*t_}")
    SC = 96
    a("v_mov_b32 v7, 0xf149f2ca")
    for t in range(9):
        a(f"s_waitcnt lgkmcnt({min(15, 2*(8-t))})")
        if t < 8:
            lab_inv = a.newlabel("L_inv"); lab_done = a.newlabel("L_tdone")
            a(f"s_add_i32 s3, s32, {32*t}")
            a("s_cmp_lt_i32 s3, 0")
            a(f"s_cbranch_scc1 {lab_inv}")
        a(f"v_mfma_f32_32x32x16_bf16 {v(SC+16*t,16)}, {v(KF+8*t,4)}, v[8:11], 0")
        a(f"v_mfma_f32_32x32x16_bf16 {v(SC+16*t,16)}, {v(KF+8*t+4,4)}, v[12:15], {v(SC+16*t,16)}")
        if t < 8:
            a(f"s_branch {lab_done}")
            a.label(lab_inv)
            for r in range(16):
                a(f"v_mov_b32 v{SC+16*t+r}, v7")
            a.label(lab_done)
    a("v_lshlrev_b32 v5, 2, v3")
    a("v_sub_u32 v5, v2, v5")
    a("s_nop 7")
    a("s_nop 7")
    for r in range(16):
        c = (r & 3) + 8 * (r >> 2)
        a(f"v_cmp_gt_i32 vcc, {c}, v5")
        a(f"v_cmp_le_i32 s[36:37], {c}, v5")
        a("s_nop 0")
        a(f"v_cndmask_b32 v{SC+r}, v7, v{SC+r}, vcc")
        a(f"v_cndmask_b32 v{SC+128+r}, v7, v{SC+128+r}, s[36:37]")
    a(f"v_max3_f32 v4, v{SC}, v{SC+1}, v{SC+2}")
    a(f"v_max3_f32 v6, v{SC+3}, v{SC+4}, v{SC+5}")
    for i in range(6, 144, 4):
        a(f"v_max3_f32 v4, v4, v{SC+i}, v{SC+i+1}")
        if i + 3 < 144:
            a(f"v_max3_f32 v6, v6, v{SC+i+2}, v{SC+i+3}")
    a("v_max_f32 v4, v4, v6")
    a("v_xor_b32 v88, 32, v1")
    a("v_lshlrev_b32 v88, 2, v88")
    a("ds_bpermute_b32 v89, v88, v4")
    a("s_waitcnt lgkmcnt(0)")
    a("v_max_f32 v4, v4, v89")
    sc = (DH ** -0.5) * math.log2(math.e)
    sc_bits = struct.unpack("<I", struct.pack("<f", sc))[0]
    a(f"s_mov_b32 s38, {sc_bits}")
    a("v_mul_f32 v4, s38, v4")
    sums = [5, 6, 90, 91]
    for sreg in sums:
        a(f"v_mov_b32 v{sreg}, 0")
    for g in range(0, 144, 4):
        for j in range(4):
            a(f"v_fma_f32 v{SC+g+j}, v{SC+g+j}, s38, -v4")
        for j in range(4):
            a(f"v_exp_f32 v{SC+g+j}, v{SC+g+j}")
        if g >= 4:
            for j in range(4):
                a(f"v_add_f32 v{sums[j]}, v{sums[j]}, v{SC+g-4+j}")
            tt, jj = divmod(g - 4, 16)
            a(f"v_cvt_pk_bf16_f32 v{KF+8*tt+jj//2}, v{SC+g-4}, v{SC+g-3}")
            a(f"v_cvt_pk_bf16_f32 v{KF+8*tt+jj//2+1}, v{SC+g-2}, v{SC+g-1}")
    a("s_nop 0")
    g = 144
    for j in range(4):
        a(f"v_add_f32 v{sums[j]}, v{sums[j]}, v{SC+g-4+j}")
    tt, jj = divmod(g - 4, 16)
    a(f"v_cvt_pk_bf16_f32 v{KF+8*tt+jj//2}, v{SC+g-4}, v{SC+g-3}")
    a(f"v_cvt_pk_bf16_f32 v{KF+8*tt+jj//2+1}, v{SC+g-2}, v{SC+g-1}")
    a("v_add_f32 v5, v5, v6")
    a("v_add_f32 v90, v90, v91")
    a("v_add_f32 v5, v5, v90")
    a("ds_bpermute_b32 v89, v88, v5")
    a("v_bfe_u32 v6, v1, 2, 2")
    a("v_lshl_add_u32 v6, v3, 2, v6")
    a("v_lshlrev_b32 v6, 6, v6")
    a("v_bfe_u32 v7, v1, 4, 1")
    a("v_lshl_add_u32 v6, v7, 5, v6")
    a("v_and_b32 v7, 3, v1")
    a("v_lshl_add_u32 v6, v7, 3, v6")
    a("v_add_u32 v6, s34, v6")
    OA = SC
    VF = SC + 16
    a(f"s_waitcnt lgkmcnt(0)")
    a("v_add_f32 v5, v5, v89")
    a("v_rcp_f32 v5, v5")
    for t in range(9):
        for sidx in range(2):
            f = VF + 4 * (2 * t + sidx)
            base = (32 * t + 16 * sidx) * 64
            a(f"ds_read_b64_tr_b16 {v(f,2)}, v6 offset:{base}")
            a(f"ds_read_b64_tr_b16 {v(f+2,2)}, v6 offset:{base+8*64}")
    first = True
    for t in range(9):
        for sidx in range(2):
            f = VF + 4 * (2 * t + sidx)
            idx = 2 * t + sidx
            rem = 36 - 2 * (idx + 1)
            a(f"s_waitcnt lgkmcnt({min(rem,15)})")
            a(f"v_mfma_f32_32x32x16_bf16 {v(OA,16)}, {v(f,4)}, {v(KF+8*t+4*sidx,4)}, {'0' if first else v(OA,16)}")
            first = False
    if colsum:
        lab_nc = a.newlabel("L_nocs")
        a("s_cmp_ge_u32 s44, 16")
        a(f"s_cbranch_scc1 {lab_nc}")
        CA = 184; CT = 192
        a("s_waitcnt vmcnt(0)")
        for j in range(4):
            a(f"v_lshlrev_b32 v{CA+2*j}, 16, v{240+j}")
            a(f"v_and_b32 v{CA+2*j+1}, 0xffff0000, v{240+j}")
        for i in range(1, 4):
            for j in range(4):
                a(f"v_lshlrev_b32 v{CT+2*j}, 16, v{240+4*i+j}")
                a(f"v_and_b32 v{CT+2*j+1}, 0xffff0000, v{240+4*i+j}")
            for j in range(4):
                a(f"v_pk_add_f32 {v(CA+2*j,2)}, {v(CA+2*j,2)}, {v(CT+2*j,2)}")
        a("s_nop 1")
        for mode in ("row_ror:4", "row_ror:8"):
            for j in range(8):
                a(f"v_add_f32_dpp v{CT+j}, v{CA+j}, v{CA+j} {mode} row_mask:0xf bank_mask:0xf")
            a("s_nop 1")
            for j in range(8):
                a(f"v_mov_b32 v{CA+j}, v{CT+j}")
            a("s_nop 1")
        for x in (16, 32):
            a(f"v_xor_b32 v200, {x}, v1")
            a("v_lshlrev_b32 v200, 2, v200")
            for j in range(8):
                a(f"ds_bpermute_b32 v{CT+j}, v200, v{CA+j}")
            a("s_waitcnt lgkmcnt(0)")
            for j in range(8):
                a(f"v_add_f32 v{CA+j}, v{CA+j}, v{CT+j}")
        srd(a, 96, 24, WS_CS, 16 * F * 4)
        a(f"s_mul_i32 s3, s44, {F*4}")
        a("s_lshl_b32 s45, s45, 7")
        a("s_add_u32 s3, s3, s45")
        a("v_lshlrev_b32 v200, 5, v1")
        a("s_mov_b64 exec, 15")
        a(f"buffer_store_dwordx4 {v(CA,4)}, v200, s[96:99], s3 offen")
        a(f"buffer_store_dwordx4 {v(CA+4,4)}, v200, s[96:99], s3 offen offset:16")
        a("s_mov_b64 exec, -1")
        a.label(lab_nc)
    a("v_add_u32 v7, s31, v2")
    a(f"v_lshlrev_b32 v7, 11, v7")
    a("v_lshl_add_u32 v7, v3, 3, v7")
    a("v_add_u32 v7, s33, v7")
    a("s_nop 7")
    a("s_nop 7")
    for g in range(4):
        for r in range(4):
            a(f"v_mul_f32 v{OA+4*g+r}, v{OA+4*g+r}, v5")
        a(f"v_cvt_pk_bf16_f32 v{OA+4*g}, v{OA+4*g}, v{OA+4*g+1}")
        a(f"v_cvt_pk_bf16_f32 v{OA+4*g+1}, v{OA+4*g+2}, v{OA+4*g+3}")
        a(f"buffer_store_dwordx2 {v(OA+4*g,2)}, v7, s[8:11], 0 offen offset:{16*g}")
    a.label(end)
    a("s_endpgm")
    return dict(name=name, grid=nwg + npf, block=256, lds=lds, desc=kernel_desc(name, 256 if colsum else 244))


def main():
    a = Asm()
    ks = []
    FUSE = 'nofuse' not in EXP
    SPLIT = 'split' in EXP
    L2PF = int(os.environ.get('L2PF', '0'))
    W1HI = int(os.environ.get('W1HI', '10'))
    W2HI = int(os.environ.get('W2HI', '-1'))
    SKLO = int(os.environ.get('SKLO', '23'))
    QA = 'noqa' not in EXP
    if QA:
        sys.path.insert(0, os.path.dirname(os.path.abspath(__file__)))
        import qa
        WOHI = int(os.environ.get('WOHI', '3'))
        ks.append(qa.gen_qa(sys.modules[__name__], a, "qa_kernel", wpf=[("wo", D*D*2)]))
    elif FUSE:
        ks.append(gen_gemm(a, "qkv_kernel", 3 * D, D, 192, 0, "wqkv", "plain", "ws", WS_QKV, NSTAGE=4, RA=8, RBN=4,
                           ln='single', a_arg='x',
                           wpf=[("w1", D*F*2, W1HI), ("wo", D*D*2, W1HI-7)]))
    else:
        ks.append(gen_ln(a, "ln1_kernel", "x", 0, WS_Y1, False, pf=[("wqkv", D*3*D*2), ("wo", D*D*2)]))
        ks.append(gen_gemm(a, "qkv_kernel", 3 * D, D, 192, WS_Y1, "wqkv", "plain", "ws", WS_QKV, NSTAGE=4, RA=8, RBN=4))
    if not QA: ks.append(gen_attn(a, "attn_kernel", pf=[("w1", D*F*2), ("w2", F*D*2), ("wo", D*D*2)] if FUSE else [("w1", D*F*2), ("w2", F*D*2)], colsum=FUSE))
    ks.append(gen_gemm(a, "oproj_kernel", D, D, 64, WS_O, "wo", "plain", "ws", WS_H, res_arg="x", NSTAGE=6, stats_out=FUSE))
    if FUSE:
        ks.append(gen_gemm(a, "ffn1_kernel", F, D, 224, WS_H, "w1", "gelu", "ws", WS_H1, bias_arg="b1", RA=8, RBN=4,
                           ln='double', pre=True, ldo=LDH1, zero_flags=SPLIT, wpf=[("w2", F*D*2, W2HI)] if W2HI else None, otile=QA, w2copy=QA and 'qw2' not in EXP, epi2='oldepi' not in EXP))
    else:
        ks.append(gen_ln(a, "ln2_kernel", "ws", WS_H, WS_Y2, True))
        ks.append(gen_gemm(a, "ffn1_kernel", F, D, 224, WS_Y2, "w1", "gelu", "ws", WS_H1, bias_arg="b1", RA=8, RBN=4))
    if SPLIT:
        ks.append(gen_gemm(a, "ffn2_kernel", D, F, 128, WS_H1, "w2", "plain", "out", 0, res_arg="ws", res_off=WS_H,
                           bias_arg="b2", NSTAGE=5, lda=LDH1, RA=4, RBN=4, splitk=(SKLO, 56 - SKLO)))
    else:
        ks.append(gen_gemm(a, "ffn2_kernel", D, F, 64, WS_H1, "ws" if QA else "w2", "plain", "out", 0, res_arg="ws", res_off=WS_H,
                           atile=QA, w_off=WS_W2T if QA else None,
                           bias_arg="b2", NSTAGE=6, lda=LDH1, l2pf=L2PF, RA=int(os.environ.get('F2RA','4')), RBN=32//int(os.environ.get('F2RA','4'))))
    hdr = []
    for k in ks:
        hdr.append(f"; @launch kernel={k['name']} grid=({k['grid']},1,1) block=({k['block']},1,1) lds={k['lds']}")
    txt = "\n".join(hdr) + "\n"
    txt += '.amdgcn_target "amdgcn-amd-amdhsa--gfx950"\n.text\n'
    txt += "\n".join(a.lines) + "\n"
    txt += '.section .rodata,"a"\n'
    for k in ks:
        txt += ".p2align 6\n" + k["desc"]
    open(OUT, "w").write(txt)


if __name__ == "__main__":
    main()
```

```python
import sys, math, os
EXP=os.environ.get('EXP','')
STMOD=os.environ.get('STMOD','sc0 sc1')
STALL=os.environ.get('STALL','')
RPM=int(os.environ.get('RPM','2'))

OUT = os.environ.get("OUTF","sequential_preLN__sliding_block__mixer_channel_mlp__prompt.s")

S = 2048; D = 1024; F = 3584; H = 32; DH = 32; WIN = 256
ARG = dict(x=0, wqkv=8, wo=16, bx=24, w1=32, b1=40, w2=48, b2=56, out=64, dbg=72, ws=80)
MB = 1 << 20
WS_Y1 = 0
WS_QKV = 4 * MB
WS_O = 16 * MB
WS_H = 20 * MB
WS_Y2 = 24 * MB
WS_H1 = 28 * MB
WS_ST = 0
WS_CS = 1 * MB
WS_SIZE = 256 * MB
WS_FLAG = 2 * MB
WS_W2T = 48 * MB
WS_PART = 64 * MB
LDH1 = F * 2 + int(os.environ.get('PADH1', '0'))


class Asm:
    def __init__(self):
        self.lines = []
        self.nlab = 0

    def __call__(self, s):
        self.lines.append("    " + s)

    def label(self, l):
        self.lines.append(l + ":")

    def newlabel(self, base="L"):
        self.nlab += 1
        return f"{base}_{self.nlab}"

    def c(self, s):
        self.lines.append("    ; " + s)

    def dry_begin(self, wave_sreg, idx_sreg, nw=4):
        self.dry = dict(ret=self.newlabel("L_dret"), disp=self.newlabel("L_ddisp"), done=self.newlabel("L_ddone"),
                        ent=[], idx=idx_sreg, nw=nw)
        self(f"s_mov_b32 s{idx_sreg}, s{wave_sreg}")
        self("s_mov_b64 exec, 0")
        self(f"s_branch {self.dry['disp']}")
        self.label(self.dry['done'])
        self("s_mov_b64 exec, -1")

    def dry_entry(self):
        l = self.newlabel("L_dent")
        self.label(l)
        self.dry['ent'].append(l)

    def dry_exit(self):
        self(f"s_cbranch_execz {self.dry['ret']}")

    def dry_mark(self):
        self.dry_exit(); self.dry_entry()

    def dry_dispatch(self):
        d = self.dry
        self.label(d['ret'])
        self(f"s_add_u32 s{d['idx']}, s{d['idx']}, {d['nw']}")
        self.label(d['disp'])
        for i, l in enumerate(d['ent']):
            self(f"s_cmp_eq_u32 s{d['idx']}, {i}")
            self(f"s_cbranch_scc1 {l}")
        self(f"s_branch {d['done']}")


def v(i, n=1):
    return f"v{i}" if n == 1 else f"v[{i}:{i+n-1}]"


def s(i, n=1):
    return f"s{i}" if n == 1 else f"s[{i}:{i+n-1}]"


def srd(a, d, base, off, nbytes):
    if off:
        a(f"s_add_u32 s{d}, s{base}, {off}")
        a(f"s_addc_u32 s{d+1}, s{base+1}, 0")
    else:
        a(f"s_mov_b32 s{d}, s{base}")
        a(f"s_mov_b32 s{d+1}, s{base+1}")
    a(f"s_and_b32 s{d+1}, s{d+1}, 0xffff")
    a(f"s_mov_b32 s{d+2}, {nbytes}")
    a(f"s_mov_b32 s{d+3}, 0x00020000")


def hex_f32(x):
    import struct
    return hex(struct.unpack('<I', struct.pack('<f', x))[0])


def kernel_header(a, name):
    a.lines.append(".p2align 8")
    a.lines.append(f".globl {name}")
    a.lines.append(f".type {name},@function")
    a.label(name)


def kernel_desc(name, nvgpr, nsgpr=102, accum=None):
    nv = ((nvgpr + 7) // 8) * 8
    acc = accum if accum is not None else ((nvgpr + 3) // 4) * 4
    return f""".amdhsa_kernel {name}
  .amdhsa_next_free_vgpr {nv if accum is None else nvgpr}
  .amdhsa_next_free_sgpr {nsgpr}
  .amdhsa_accum_offset {min(acc,256)}
  .amdhsa_group_segment_fixed_size 0
  .amdhsa_kernarg_size 88
  .amdhsa_user_sgpr_count 2
  .amdhsa_user_sgpr_kernarg_segment_ptr 1
  .amdhsa_system_sgpr_workgroup_id_x 1
.end_amdhsa_kernel
"""


def gen_prefetch(a, regions, end_label):
    CH = 32768
    counts = [nbytes // CH for _, nbytes in regions]
    for (_, nbytes), c in zip(regions, counts):
        assert c * CH == nbytes
    total = sum(counts)
    skip = a.newlabel("L_nopf")
    a(f"s_cmp_ge_u32 s2, {total}")
    a(f"s_cbranch_scc1 {skip}")
    base = 0
    for (arg, nbytes), c in zip(regions, counts):
        nxt = a.newlabel("L_pfn")
        a(f"s_cmp_ge_u32 s2, {base + c}")
        a(f"s_cbranch_scc1 {nxt}")
        a(f"s_load_dwordx2 s[4:5], s[0:1], {ARG[arg]}")
        a(f"s_sub_u32 s3, s2, {base}")
        a("s_lshl_b32 s3, s3, 15")
        a("v_lshlrev_b32 v1, 4, v0")
        a("v_add_u32 v1, s3, v1")
        a("s_waitcnt lgkmcnt(0)")
        srd(a, 8, 4, 0, nbytes)
        for j in range(8):
            a(f"v_add_u32 v2, {4096*j}, v1")
            a(f"buffer_load_dwordx4 {v(4+4*j,4)}, v2, s[8:11], 0 offen")
        a("s_waitcnt vmcnt(0)")
        a(f"s_branch {end_label}")
        a.label(nxt)
        base += c
    a.label(skip)
    a(f"s_sub_u32 s2, s2, {total}")
    return total


def tail_prefetch(a, task, lane, regions, vtmp, vdst):
    ntask = 2048
    total = sum(n for _, n in regions)
    per = total // ntask
    assert per * ntask == total and per % 1024 == 0
    nld = per // 1024
    base = 0
    done = a.newlabel("L_pfdone")
    for arg, nbytes in regions:
        cnt = nbytes // per
        assert cnt * per == nbytes
        nxt = a.newlabel("L_pfn")
        a(f"s_cmp_ge_u32 s{task}, {base + cnt}")
        a(f"s_cbranch_scc1 {nxt}")
        a(f"s_load_dwordx2 s[94:95], s[0:1], {ARG[arg]}")
        a(f"s_sub_u32 s93, s{task}, {base}")
        a(f"s_mul_i32 s93, s93, {per}")
        a(f"v_lshlrev_b32 {v(vtmp)}, 4, {v(lane)}")
        a(f"v_add_u32 {v(vtmp)}, s93, {v(vtmp)}")
        a("s_waitcnt lgkmcnt(0)")
        srd(a, 96, 94, 0, nbytes)
        for j in range(nld):
            if j and j % 4 == 0:
                a(f"v_add_u32 {v(vtmp)}, 4096, {v(vtmp)}")
            a(f"buffer_load_dwordx4 {v(vdst,4)}, {v(vtmp)}, s[96:99], 0 offen offset:{1024*(j%4)}")
        a(f"s_branch {done}")
        a.label(nxt)
        base += cnt
    a.label(done)
    return nld

def gen_ln(a, name, src_arg, src_off, dst_off, double, pf=None):
    nwg = S // 4
    kernel_header(a, name)
    end = a.newlabel("L_end")
    npf = 0
    a(f"s_cmp_ge_u32 s2, {nwg}")
    a(f"s_cbranch_scc1 {end}")
    a(f"s_load_dwordx2 s[4:5], s[0:1], {ARG[src_arg]}")
    a(f"s_load_dwordx2 s[6:7], s[0:1], {ARG['ws']}")
    a("v_lshrrev_b32 v1, 6, v0")
    a("v_and_b32 v2, 63, v0")
    a("s_lshl_b32 s3, s2, 2")
    a("v_add_u32 v1, s3, v1")
    a("v_lshlrev_b32 v3, 11, v1")
    a("v_lshl_add_u32 v3, v2, 5, v3")
    for i, m in enumerate([1, 2, 4, 8, 16, 32]):
        a(f"v_xor_b32 v{12+i}, {m}, v2")
        a(f"v_lshlrev_b32 v{12+i}, 2, v{12+i}")
    a("s_waitcnt lgkmcnt(0)")
    srd(a, 8, 4, src_off, S * D * 2)
    srd(a, 12, 6, dst_off, S * D * 2)
    a("buffer_load_dwordx4 v[4:7], v3, s[8:11], 0 offen")
    a("buffer_load_dwordx4 v[8:11], v3, s[8:11], 0 offen offset:16")
    npl = 0
    if pf:
        a("v_readfirstlane_b32 s92, v1")
        a("s_nop 3")
        npl = tail_prefetch(a, 92, 2, pf, 44, 48)
    a(f"s_waitcnt vmcnt({npl})")

    def unpack():
        for i in range(8):
            a(f"v_lshlrev_b32 v{20+2*i}, 16, v{4+i}")
            a(f"v_and_b32 v{21+2*i}, 0xffff0000, v{4+i}")

    def bfly():
        for i in range(6):
            a(f"ds_bpermute_b32 v41, v{12+i}, v40")
            a("s_waitcnt lgkmcnt(0)")
            a("v_add_f32 v40, v40, v41")

    def norm():
        a("v_add_f32 v40, v20, v21")
        for i in range(2, 16):
            a(f"v_add_f32 v40, v40, v{20+i}")
        bfly()
        a("v_mul_f32 v40, 0x3a800000, v40")
        for i in range(16):
            a(f"v_sub_f32 v{20+i}, v{20+i}, v40")
        a("v_mul_f32 v40, v20, v20")
        for i in range(1, 16):
            a(f"v_fmac_f32 v40, v{20+i}, v{20+i}")
        bfly()
        a("v_mov_b32 v42, 0x3727c5ac")
        a("v_fma_f32 v40, v40, v43, v42")
        a("v_rsq_f32 v40, v40")
        a("s_nop 0")
        for i in range(16):
            a(f"v_mul_f32 v{20+i}, v{20+i}, v40")
        for i in range(8):
            a(f"v_cvt_pk_bf16_f32 v{4+i}, v{20+2*i}, v{21+2*i}")

    a("v_mov_b32 v43, 0x3a800000")
    unpack()
    norm()
    if double:
        unpack()
        norm()
    a("buffer_store_dwordx4 v[4:7], v3, s[12:15], 0 offen")
    a("buffer_store_dwordx4 v[8:11], v3, s[12:15], 0 offen offset:16")
    a.label(end)
    a("s_endpgm")
    return dict(name=name, grid=nwg + npf, block=256, lds=0, desc=kernel_desc(name, 56))


def gen_gemm(a, name, N, K, BN, a_off, w_arg, epi, out_arg, out_off, res_arg=None, res_off=0,
             bias_arg=None, BM=128, NSTAGE=3, RA=4, RBN=8, ln=None, a_arg='ws', pre=False, stats_out=False, lda=None, ldo=None, splitk=None, zero_flags=False, l2pf=0, wpf=None, atile=False, w_off=None, otile=False, w2copy=False, dry=0, epi2=False):
    import struct
    M = S
    BK = 64
    lda = lda or K * 2
    ldo = ldo or N * 2
    ATILE = ('at_' + name.split('_')[0]) in EXP or atile
    BTILE = ('bt_' + name.split('_')[0]) in EXP or w_off is not None
    NT_M = M // BM
    NT_N = N // BN
    ntiles = NT_M * NT_N
    MT = BM // 2 // 16
    NTW = BN // 2 // 16
    RB = {64: 128, 128: 128, 192: 128, 96: 64, 224: 448, 112: 32}[BN]
    ABYTES = BM * BK * 2
    BBYTES = BK * BN * 2
    STAGE = ABYTES + BBYTES
    PA = ABYTES // 1024 // 4
    PB = BBYTES // 1024 // 4
    assert PA * 4096 == ABYTES and PB * 4096 == BBYTES
    P = PA + PB
    NS = K // BK
    if splitk:
        NSLO, NSHI = splitk
        assert NSLO + NSHI == NS and (NSLO - NSHI) % NSTAGE == 0
        NS = NSHI
        ntiles *= 2
    lds = STAGE * NSTAGE
    CROW = BN * 2 + 16
    CSZ = BM * CROW
    LASTB = (NS - 1) % NSTAGE
    TBL = 2048 if (ln and not pre) else 0
    CBASE = 0 if LASTB * STAGE >= CSZ + TBL else (LASTB + 1) * STAGE
    assert CBASE + CSZ + TBL <= lds
    EPI = lds
    st_res = bool(res_arg) and not splitk
    if splitk:
        DONE = CBASE + CSZ
        assert DONE + 16 <= (LASTB * STAGE if CBASE == 0 else lds)
    st_bias = pre
    if st_res: lds += BM * BN * 2
    if st_bias: lds += 3072 + 4096
    assert lds <= 163840
    if pre:
        CTAB = EPI + 1024; RTAB = EPI + 2048
    else:
        RTAB = CBASE + CSZ; CTAB = RTAB + 1024
    NEX = (BM * BN * 2 // 4096 if st_res else 0)
    PPR = RB // 32
    lg_ppr = int(math.log2(PPR)) if RB != 448 else 0

    vA = list(range(2, 2 + PA))
    vB = list(range(2 + PA, 2 + PA + PB))
    nxt = 2 + PA + PB
    vXb = [nxt, nxt + 1]; nxt += 2
    vWb = list(range(nxt, nxt + NTW)); nxt += NTW
    vXc = [nxt, nxt + 1]; nxt += 2
    vWc = list(range(nxt, nxt + NTW)); nxt += NTW
    vT = list(range(nxt, nxt + 8)); nxt += 8
    nxt = (nxt + 3) // 4 * 4
    FX = [nxt, nxt + 4 * MT]; nxt += 8 * MT
    FW = [nxt, nxt + 4 * NTW]; nxt += 8 * NTW
    ACC = nxt; nxt += 4 * MT * NTW
    PBI = nxt
    if bias_arg and not pre: nxt += 2 * NTW
    if l2pf or wpf:
        nxt = (nxt + 3) // 4 * 4
        PFD = nxt; PFV = nxt + 4; nxt += 5
    W2S = 136; W2A = 164
    if splitk:
        PRT = nxt; nxt += 4 * MT * NTW
        PFL = nxt; PFA = nxt + 1; PPA = nxt + 2; nxt += 3
    nvgpr = nxt
    assert nvgpr <= 256
    t0, t1, t2, t3 = vT[0], vT[1], vT[2], vT[3]

    def acc(nt, mt):
        return ACC + 4 * (nt * MT + mt)

    def stamp(i):
        if 'stamp' in EXP:
            if 'rt' in EXP and i in (1, 6):
                a(f"s_memrealtime s[{60+2*i}:{61+2*i}]")
                a(f"s_memtime s[{62 if i == 1 else 70}+0:{63 if i == 1 else 71}]".replace("+0","")) if False else None
            else:
                a(f"s_memtime s[{60+2*i}:{61+2*i}]")
            if i >= 6: a("s_waitcnt lgkmcnt(0)")

    def stamp_out():
        if 'stamp' not in EXP: return
        a("s_waitcnt lgkmcnt(0)")
        srd(a, 80, 24, 200 * MB, 1 << 20)
        a("s_lshl_b32 s3, s2, 3")
        a("s_add_u32 s3, s3, s49")
        a("s_lshl_b32 s3, s3, 6")
        a("v_mov_b32 v2, s3")
        for i in range(8):
            a(f"v_mov_b32 v4, s{60+2*i}")
            a(f"v_mov_b32 v5, s{61+2*i}")
            a(f"buffer_store_dwordx2 v[4:5], v2, s[80:83], 0 offen offset:{8*i}")
            a("s_nop 1")

    def wfrag_addr_common():
        a(f"v_lshrrev_b32 {v(t1)}, 4, v1")
        a(f"v_bfe_u32 {v(t0)}, v1, 2, 2")
        a(f"v_lshl_add_u32 {v(t2)}, {v(t1)}, 3, {v(t0)}")
        if RB == 256:
            a(f"v_and_b32 {v(t3)}, 1, {v(t1)}")
            a(f"v_lshl_add_u32 {v(t3)}, {v(t3)}, 2, {v(t0)}")
        elif RB == 128:
            a(f"v_and_b32 {v(t3)}, 1, {v(t1)}")
            a(f"v_lshrrev_b32 {v(t0)}, 1, {v(t0)}")
            a(f"v_lshl_add_u32 {v(t3)}, {v(t3)}, 1, {v(t0)}")
        elif RB in (64, 448):
            a(f"v_and_b32 {v(t3)}, 1, {v(t1)}")
        else:
            a(f"v_mov_b32 {v(t3)}, 0")
        a(f"v_mul_u32_u24 {v(t2)}, {RB}, {v(t2)}")
        a(f"v_and_b32 {v(t0)}, 3, v1")
        a(f"v_lshl_add_u32 {v(t2)}, {v(t0)}, 3, {v(t2)}")
        a(f"v_add_u32 {v(t2)}, {ABYTES}, {v(t2)}")

    def wfrag_addr(dst):
        if RB == 448:
            a("s_mov_b32 s47, 0")
        elif PPR > 1:
            a(f"s_lshr_b32 s47, s46, {lg_ppr}")
            a(f"s_and_b32 s46, s46, {PPR-1}")
        else:
            a("s_mov_b32 s47, s46")
            a("s_mov_b32 s46, 0")
        a(f"s_mul_i32 s47, s47, {64*RB}")
        a(f"v_xor_b32 {v(t0)}, s46, {v(t3)}")
        a(f"v_lshl_add_u32 {v(t0)}, {v(t0)}, 5, {v(t2)}")
        a(f"v_add_u32 {v(dst)}, s47, {v(t0)}")

    kernel_header(a, name)
    end = a.newlabel("L_end")
    stamp(0)
    lab_loader = a.newlabel("L_loader")
    lab_store = a.newlabel("L_store")
    a(f"s_cmp_ge_u32 s2, {ntiles}")
    a(f"s_cbranch_scc1 {end}")
    a(f"s_load_dwordx2 s[24:25], s[0:1], {ARG['ws']}")
    a(f"s_load_dwordx2 s[58:59], s[0:1], {ARG[a_arg]}")
    a(f"s_load_dwordx2 s[26:27], s[0:1], {ARG[w_arg]}")
    a(f"s_load_dwordx2 s[34:35], s[0:1], {ARG[out_arg]}")
    if res_arg:
        a(f"s_load_dwordx2 s[36:37], s[0:1], {ARG[res_arg]}")
    if bias_arg:
        a(f"s_load_dwordx2 s[38:39], s[0:1], {ARG[bias_arg]}")
    assert ntiles == 256 and RA * RBN == (16 if splitk else 32) and NT_M % RA == 0 and NT_N % RBN == 0
    XB = NT_N // RBN
    a("s_and_b32 s3, s2, 7")
    a("s_lshr_b32 s46, s2, 3")
    if splitk:
        a("s_lshr_b32 s92, s46, 4")
        a("s_and_b32 s46, s46, 15")
        a("s_lshl_b32 s96, s3, 4")
        a("s_add_u32 s96, s96, s46")
        a("s_cmp_eq_u32 s92, 0")
        a(f"s_cselect_b32 s93, {NSLO}, {NSHI}")
        a("s_mov_b32 s94, 1")
    a(f"s_lshr_b32 s28, s3, {int(math.log2(XB))}")
    a(f"s_and_b32 s29, s3, {XB-1}")
    a(f"s_mul_i32 s28, s28, {RA}")
    a(f"s_mul_i32 s29, s29, {RBN}")
    a(f"s_lshr_b32 s3, s46, {int(math.log2(RBN))}")
    a("s_add_u32 s28, s28, s3")
    a(f"s_and_b32 s3, s46, {RBN-1}")
    a("s_add_u32 s29, s29, s3")
    a("v_and_b32 v1, 63, v0")
    a(f"v_lshrrev_b32 {v(vT[0])}, 6, v0")
    a("s_nop 0")
    a(f"v_readfirstlane_b32 s49, {v(vT[0])}")
    a("s_nop 3")
    a("s_and_b32 s30, s49, 3")
    a("s_lshr_b32 s44, s30, 1")
    a("s_and_b32 s45, s30, 1")

    def build_srds():
        a("s_waitcnt lgkmcnt(0)")
        srd(a, 4, 58, a_off, M * lda)
        srd(a, 8, 26, w_off or 0, K * N * 2)
        srd(a, 12, 34, out_off, M * ldo)
        if res_arg:
            srd(a, 16, 36, res_off, M * N * 2)
        if bias_arg:
            srd(a, 20, 38, 0, N * 2)
        if pre or stats_out:
            srd(a, 84, 24, WS_ST, S * 128)
        if pre:
            srd(a, 88, 24, WS_CS, 16 * N * 4)
        if splitk:
            srd(a, 84, 24, WS_PART, 128 * 65536)
            srd(a, 88, 24, WS_FLAG, 512)

    a("s_cmp_ge_u32 s49, 4")
    a(f"s_cbranch_scc1 {lab_loader}")

    a(f"v_and_b32 {v(t0)}, 15, v1")
    a("s_lshl_b32 s3, s44, 6")
    a(f"v_add_u32 {v(t0)}, s3, {v(t0)}")
    a(f"v_lshlrev_b32 {v(t0)}, 7, {v(t0)}")
    a(f"v_lshrrev_b32 {v(t1)}, 4, v1")
    a(f"v_bfe_u32 {v(t2)}, v1, 1, 3")
    a(f"v_xor_b32 {v(t3)}, {v(t1)}, {v(t2)}")
    a(f"v_lshl_add_u32 {v(vXb[0])}, {v(t3)}, 4, {v(t0)}")
    a(f"v_xor_b32 {v(t3)}, 4, {v(t3)}")
    a(f"v_lshl_add_u32 {v(vXb[1])}, {v(t3)}, 4, {v(t0)}")
    wfrag_addr_common()
    a(f"s_mul_i32 s3, s45, {NTW}")
    for nt in range(NTW):
        a(f"s_add_u32 s46, s3, {nt}")
        wfrag_addr(vWb[nt])
    for i in range(4 * MT * NTW):
        a(f"v_mov_b32 v{ACC+i}, 0")
    a("s_mov_b32 s42, 0")
    build_srds()
    if bias_arg and not pre:
        a(f"v_lshrrev_b32 {v(t0)}, 4, v1")
        a(f"v_lshlrev_b32 {v(t0)}, 3, {v(t0)}")
        a(f"s_mul_i32 s3, s29, {BN*2}")
        a(f"s_mul_i32 s46, s45, {BN}")
        a("s_add_u32 s3, s3, s46")
        for nt in range(NTW):
            a(f"buffer_load_dwordx2 {v(PBI+2*nt,2)}, {v(t0)}, s[20:23], s3 offen offset:{32*nt}")

    def set_cur():
        for kk in range(2):
            a(f"v_add_u32 {v(vXc[kk])}, s42, {v(vXb[kk])}")
        for nt in range(NTW):
            a(f"v_add_u32 {v(vWc[nt])}, s42, {v(vWb[nt])}")
        a(f"s_add_u32 s42, s42, {STAGE}")
        a(f"s_cmp_ge_u32 s42, {STAGE*NSTAGE}")
        a("s_cselect_b32 s42, 0, s42")

    def read_list(kk, f):
        if 'noreads' in EXP: return []
        L = []
        for nt in range(NTW):
            if nt < MT:
                L.append(f"ds_read_b128 {v(FX[f]+4*nt,4)}, {v(vXc[kk])} offset:{nt*2048}")
            for rd in range(2):
                L.append(f"ds_read_b64_tr_b16 {v(FW[f]+4*nt+2*rd,2)}, {v(vWc[nt])} offset:{kk*32*RB+rd*4*RB}")
        for mt in range(NTW, MT):
            L.append(f"ds_read_b128 {v(FX[f]+4*mt,4)}, {v(vXc[kk])} offset:{mt*2048}")
        return L

    def mfma_list(f):
        if 'nomfma' in EXP: return []
        L = []
        for nt in range(NTW):
            for mt in range(MT):
                L.append(f"v_mfma_f32_16x16x32_bf16 {v(acc(nt,mt),4)}, {v(FW[f]+4*nt,4)}, {v(FX[f]+4*mt,4)}, {v(acc(nt,mt),4)}")
        return L

    def reads(kk, f):
        for x in read_list(kk, f): a(x)

    def mfmas(f):
        for x in mfma_list(f): a(x)

    def inter(kk, fr, fm):
        R = read_list(kk, fr); Mm = mfma_list(fm)
        rpm = RPM if NTW <= 4 else 1
        ri = 0
        for i in range(len(Mm)):
            a(Mm[i])
            for _ in range(rpm):
                if ri < len(R): a(R[ri]); ri += 1
        while ri < len(R): a(R[ri]); ri += 1

    if 'cpf' in EXP:
        lh = a.newlabel("L_pc")
        a("s_getpc_b64 s[46:47]")
        a.label(lh)
        a(f"v_lshlrev_b32 {v(t0)}, 4, v1")
        a("s_lshl_b32 s3, s30, 10")
        for j in range(int(os.environ.get('NCPF', '4'))):
            a(f"s_min_u32 s92, s3, {end}-{lh}-1024")
            a(f"v_add_u32 {v(t1)}, s92, {v(t0)}")
            a(f"global_load_dwordx4 {v(FX[0],4)}, {v(t1)}, s[46:47]")
            a("s_add_u32 s3, s3, 4096")
        a("s_waitcnt vmcnt(0)")
    if wpf:
        a("s_lshl_b32 s3, s2, 2")
        a("s_add_u32 s3, s3, s30")
        for q, (arg, nbytes, hi) in enumerate(wpf):
            a(f"s_load_dwordx2 s[{94+2*q}:{95+2*q}], s[0:1], {ARG[arg]}")
            a(f"s_mul_i32 s{92+q}, s3, {nbytes//1024}")
        a("s_waitcnt lgkmcnt(0)")
        for q, (arg, nbytes, hi) in enumerate(wpf):
            assert nbytes % (1 << 20) == 0
            srd(a, 84 + 4 * q, 94 + 2 * q, 0, nbytes)
        a(f"v_lshlrev_b32 {v(PFV)}, 4, v1")
    if l2pf:
        NPA = RA * BM // 8
        NPW = BK * (RBN * BN * 2) // 1024
        WPR = RBN * BN * 2 // 1024
        assert NPA + NPW == 128 and WPR == 1
        lw = a.newlabel("L_pfw"); ld = a.newlabel("L_pfd")
        a("s_lshr_b32 s3, s2, 3")
        a("s_lshl_b32 s3, s3, 2")
        a("s_add_u32 s3, s3, s30")
        a(f"s_cmp_ge_u32 s3, {NPA}")
        a(f"s_cbranch_scc1 {lw}")
        a(f"s_lshr_b32 s46, s28, {int(math.log2(RA))}")
        a(f"s_mul_i32 s46, s46, {RA*BM}")
        a("s_lshl_b32 s3, s3, 3")
        a("s_add_u32 s3, s3, s46")
        a(f"v_lshrrev_b32 {v(PFV)}, 3, v1")
        a(f"v_add_u32 {v(PFV)}, s3, {v(PFV)}")
        a(f"v_mul_u32_u24 {v(PFV)}, {lda}, {v(PFV)}")
        a(f"v_and_b32 {v(t0)}, 7, v1")
        a(f"v_lshl_add_u32 {v(PFV)}, {v(t0)}, 4, {v(PFV)}")
        for i in range(4): a(f"s_mov_b32 s{84+i}, s{4+i}")
        a(f"s_mov_b32 s92, {l2pf*BK*2}")
        a(f"s_mov_b32 s93, {BK*2}")
        a(f"s_branch {ld}")
        a.label(lw)
        a(f"s_sub_u32 s3, s3, {NPA}")
        a(f"s_mul_i32 s3, s3, {N*2}")
        a(f"s_lshr_b32 s46, s29, {int(math.log2(RBN))}")
        a(f"s_mul_i32 s46, s46, {RBN*BN*2}")
        a("s_add_u32 s3, s3, s46")
        a(f"v_lshlrev_b32 {v(PFV)}, 4, v1")
        a(f"v_add_u32 {v(PFV)}, s3, {v(PFV)}")
        for i in range(4): a(f"s_mov_b32 s{84+i}, s{8+i}")
        a(f"s_mov_b32 s92, {l2pf*BK*N*2}")
        a(f"s_mov_b32 s93, {BK*N*2}")
        a.label(ld)
        a(f"s_mul_i32 s3, s93, {NSTAGE-1}")
        for j in range(NSTAGE - 1, l2pf):
            a(f"buffer_load_dwordx4 {v(PFD,4)}, {v(PFV)}, s[84:87], s3 offen")
            a("s_add_u32 s3, s3, s93")
    if splitk:
        a("s_xor_b32 s95, s92, 1")
        a(f"v_mov_b32 {v(PFL)}, 0")
        a("s_lshl_b32 s3, s96, 2")
        a(f"v_mov_b32 {v(PFA)}, s3")
        a("s_add_u32 s3, s3, s30")
        a("s_lshl_b32 s3, s3, 14")
        a(f"v_lshlrev_b32 {v(PPA)}, 4, v1")
        a(f"v_add_u32 {v(PPA)}, s3, {v(PPA)}")
    DRY = dry and not splitk
    if DRY:
        a.dry_begin(30, 95)
    stamp(1)
    lab_cpass = a.newlabel("L_cpass")
    a.label(lab_cpass)
    a("s_barrier")
    stamp(2)
    set_cur()
    reads(0, 0)
    a("s_waitcnt lgkmcnt(0)")
    inter(1, 1, 0)
    a("s_waitcnt lgkmcnt(0)")
    if splitk: a("s_sub_u32 s48, s93, 1")
    else: a(f"s_mov_b32 s48, {NS-1}")
    loop = a.newlabel("L_cloop")
    a.label(loop)
    a("s_barrier")
    set_cur()
    inter(0, 0, 1)
    a("s_waitcnt lgkmcnt(0)")
    inter(1, 1, 0)
    if l2pf:
        a(f"buffer_load_dwordx4 {v(PFD,4)}, {v(PFV)}, s[84:87], s92 offen")
        a("s_add_u32 s92, s92, s93")
    if wpf:
        for q, (arg, nbytes, hi) in enumerate(wpf):
            n = nbytes >> 20
            lsk = a.newlabel("L_wpfs")
            if hi < 0:
                a("s_bitcmp1_b32 s48, 0")
            else:
                a(f"s_sub_u32 s3, s48, {hi-n+1}")
                a(f"s_cmp_ge_u32 s3, {n}")
            a(f"s_cbranch_scc1 {lsk}")
            a(f"buffer_load_dwordx4 {v(PFD,4)}, {v(PFV)}, s[{84+4*q}:{87+4*q}], s{92+q} offen")
            a(f"s_add_u32 s{92+q}, s{92+q}, 1024")
            a.label(lsk)
    if splitk:
        cskip = a.newlabel("L_cskip"); cpoll = a.newlabel("L_cpoll")
        a("s_cmp_lg_u32 s95, 0")
        a(f"s_cbranch_scc1 {cskip}")
        a(f"v_readfirstlane_b32 s3, {v(PFL)}")
        a("s_nop 3")
        a("s_cmp_eq_u32 s3, 0")
        a(f"s_cbranch_scc1 {cpoll}")
        a("s_mov_b32 s95, 1")
        for t_ in range(MT * NTW):
            a(f"s_mov_b32 s3, {1024*t_}")
            a(f"buffer_load_dwordx4 {v(PRT+4*t_,4)}, {v(PPA)}, s[84:87], s3 offen")
        a(f"s_branch {cskip}")
        a.label(cpoll)
        if 'forcefb' not in EXP: a(f"buffer_load_dword {v(PFL)}, {v(PFA)}, s[88:91], 0 offen sc0 sc1")
        a.label(cskip)
    a("s_waitcnt lgkmcnt(0)")
    a("s_sub_u32 s48, s48, 1")
    a("s_cmp_lg_u32 s48, 0")
    a(f"s_cbranch_scc1 {loop}")
    stamp(3)
    if epi2:
        FROW = BN * 4 + 16
        assert BM * FROW <= STAGE * NSTAGE and (FROW // 4) % 32 == 4
        a("s_barrier")
        ml = mfma_list(1)
        a(f"v_and_b32 {v(t2)}, 15, v1")
        a("s_lshl_b32 s3, s44, 6")
        a(f"v_add_u32 {v(t2)}, s3, {v(t2)}")
        a(f"v_mul_u32_u24 {v(t2)}, {FROW}, {v(t2)}")
        a(f"v_bfe_u32 {v(t3)}, v1, 4, 1")
        a(f"v_mul_u32_u24 {v(t3)}, {BN*2}, {v(t3)}")
        a(f"v_add_u32 {v(t2)}, {v(t2)}, {v(t3)}")
        a(f"v_lshrrev_b32 {v(t3)}, 5, v1")
        a(f"v_lshl_add_u32 {v(t2)}, {v(t3)}, 4, {v(t2)}")
        a(f"s_mul_i32 s3, s45, {NTW*32}")
        a(f"v_add_u32 {v(t2)}, s3, {v(t2)}")
        wl = [f"ds_write_b128 {v(t2)}, {v(acc(nt,mt),4)} offset:{mt*16*FROW + nt*32}" for nt in range(NTW) for mt in range(MT)]
        for i, x in enumerate(ml):
            a(x)
            if i >= 6: a(wl[i - 6])
        a("s_nop 7")
        a("s_nop 7")
        for x in wl[len(ml) - 6:]: a(x)
        a("s_waitcnt lgkmcnt(0)")
        stamp(4)
        a("s_barrier")
        a(f"s_branch {lab_store}")
    else:
        mfmas(1)
    if ln and not pre:
        a("s_barrier")
    if splitk:
        lab_hi = a.newlabel("L_hi"); lab_epi = a.newlabel("L_epi"); lab_fb = a.newlabel("L_fb")
        a("s_cmp_lg_u32 s92, 0")
        a(f"s_cbranch_scc1 {lab_hi}")
        a("s_nop 7")
        for t_ in range(MT * NTW):
            a(f"s_mov_b32 s3, {1024*t_}")
            a(f"buffer_store_dwordx4 {v(ACC+4*t_,4)}, {v(PPA)}, s[84:87], s3 offen sc0 sc1")
        a("s_waitcnt vmcnt(0)")
        a("s_barrier")
        a("s_cmp_lg_u32 s30, 0")
        a(f"s_cbranch_scc1 {end}")
        a(f"v_mov_b32 {v(t1)}, 1")
        a("s_mov_b64 exec, 1")
        a(f"buffer_store_dword {v(t1)}, {v(PFA)}, s[88:91], 0 offen sc0 sc1")
        a(f"s_branch {end}")
        a.label(lab_hi)
        a("s_lshl_b32 s3, s30, 2")
        a(f"s_add_u32 s3, s3, {DONE}")
        a(f"v_mov_b32 {v(t0)}, s3")
        a(f"v_mov_b32 {v(t1)}, s95")
        a(f"ds_write_b32 {v(t0)}, {v(t1)}")
        a("s_waitcnt lgkmcnt(0)")
        a("s_barrier")
        a("s_cmp_eq_u32 s94, 2")
        a(f"s_cbranch_scc1 {lab_epi}")
        a(f"v_mov_b32 {v(t1)}, {DONE}")
        a(f"ds_read_b128 {v(FX[0],4)}, {v(t1)}")
        a("s_waitcnt lgkmcnt(0)")
        a(f"v_and_b32 {v(FX[0])}, {v(FX[0])}, {v(FX[0]+1)}")
        a(f"v_and_b32 {v(FX[0]+2)}, {v(FX[0]+2)}, {v(FX[0]+3)}")
        a(f"v_and_b32 {v(FX[0])}, {v(FX[0])}, {v(FX[0]+2)}")
        a("s_nop 0")
        a(f"v_readfirstlane_b32 s3, {v(FX[0])}")
        a("s_nop 3")
        a("s_cmp_eq_u32 s3, 1")
        a(f"s_cbranch_scc0 {lab_fb}")
        a("s_waitcnt vmcnt(0)")
        for t_ in range(MT * NTW):
            for j in range(2):
                a(f"v_pk_add_f32 {v(ACC+4*t_+2*j,2)}, {v(ACC+4*t_+2*j,2)}, {v(PRT+4*t_+2*j,2)}")
        a(f"s_branch {lab_epi}")
        a.label(lab_fb)
        a("s_mov_b32 s94, 2")
        a("s_mov_b32 s95, 1")
        a(f"s_mov_b32 s93, {NSLO}")
        a("s_mov_b32 s42, 0")
        a("s_barrier")
        a(f"s_branch {lab_cpass}")
        a.label(lab_epi)
    cut0 = len(a.lines)
    if DRY: a.dry_entry()
    RT = FX[0]; CS = RT + 8; BR = CS + 4 * NTW; BF = BR + 2 * NTW; GE = BF + 4 * NTW
    assert GE + 10 <= ACC
    a(f"v_and_b32 {v(t2)}, 15, v1")
    a("s_lshl_b32 s3, s44, 6")
    a(f"v_add_u32 {v(t2)}, s3, {v(t2)}")
    a(f"v_lshrrev_b32 {v(t3)}, 4, v1")
    a(f"s_mul_i32 s3, s45, {NTW*4}")
    a(f"v_add_u32 {v(t3)}, s3, {v(t3)}")
    if ln:
        a(f"v_lshlrev_b32 {v(t0)}, 3, {v(t2)}")
        a(f"v_add_u32 {v(t0)}, {RTAB}, {v(t0)}")
        for mt in range(MT):
            a(f"ds_read_b64 {v(RT+2*mt,2)}, {v(t0)} offset:{128*mt}")
        a(f"v_lshlrev_b32 {v(t0)}, 4, {v(t3)}")
        a(f"v_add_u32 {v(t0)}, {CTAB}, {v(t0)}")
        for nt in range(NTW):
            a(f"ds_read_b128 {v(CS+4*nt,4)}, {v(t0)} offset:{64*nt}")
    if bias_arg and pre:
        a(f"v_lshlrev_b32 {v(t0)}, 3, {v(t3)}")
        a(f"v_add_u32 {v(t0)}, {EPI}, {v(t0)}")
        for nt in range(NTW):
            a(f"ds_read_b64 {v(BR+2*nt,2)}, {v(t0)} offset:{32*nt}")
    vc = vT[0]
    a(f"v_mul_u32_u24 {v(t2)}, {CROW}, {v(t2)}")
    a(f"v_lshl_add_u32 {v(vc)}, {v(t3)}, 3, {v(t2)}")
    if CBASE: a(f"v_add_u32 {v(vc)}, {CBASE}, {v(vc)}")
    if epi == 'gelu':
        c2 = 2 * math.log2(math.e)
        k1 = struct.unpack("<I", struct.pack("<f", 0.7978845608 * c2))[0]
        k3 = struct.unpack("<I", struct.pack("<f", 0.7978845608 * 0.044715 * c2))[0]
        a(f"s_mov_b32 s52, {k3}"); a(f"s_mov_b32 s53, {k3}")
        a(f"v_mov_b32 {v(GE+8)}, {k1}"); a(f"v_mov_b32 {v(GE+9)}, {k1}")
        a("s_mov_b32 s56, 1.0"); a("s_mov_b32 s57, 1.0")
    a("s_waitcnt vmcnt(0) lgkmcnt(0)" if (bias_arg and not pre) else "s_waitcnt lgkmcnt(0)")
    a("s_nop 7")
    if bias_arg:
        bsrc = BR if pre else PBI
        for nt in range(NTW):
            for j in range(2):
                a(f"v_lshlrev_b32 {v(BF+4*nt+2*j)}, 16, {v(bsrc+2*nt+j)}")
                a(f"v_and_b32 {v(BF+4*nt+2*j+1)}, 0xffff0000, {v(bsrc+2*nt+j)}")
    for nt in range(NTW):
        if DRY and nt in dry: a.dry_mark()
        for mp in range(0, MT, 2):
            c0 = acc(nt, mp)
            for q in range(2):
                mt = mp + q
                for j in range(2):
                    cc = v(c0 + 4 * q + 2 * j, 2)
                    tt = v(GE + 4 * q + 2 * j, 2)
                    if ln:
                        if bias_arg:
                            a(f"v_pk_fma_f32 {tt}, {v(CS+4*nt+2*j,2)}, {v(RT+2*mt,2)}, {v(BF+4*nt+2*j,2)} op_sel:[0,1,0] op_sel_hi:[1,1,1]")
                        else:
                            a(f"v_pk_mul_f32 {tt}, {v(CS+4*nt+2*j,2)}, {v(RT+2*mt,2)} op_sel:[0,1] op_sel_hi:[1,1]")
                    elif bias_arg:
                        a(f"v_pk_add_f32 {cc}, {cc}, {v(BF+4*nt+2*j,2)}")
            if ln:
                for q in range(2):
                    mt = mp + q
                    for j in range(2):
                        cc = v(c0 + 4 * q + 2 * j, 2)
                        tt = v(GE + 4 * q + 2 * j, 2)
                        a(f"v_pk_fma_f32 {cc}, {cc}, {v(RT+2*mt,2)}, {tt} op_sel:[0,0,0] op_sel_hi:[1,0,1]")
            if epi == 'gelu':
                for j in range(4):
                    a(f"v_pk_mul_f32 {v(GE+2*j,2)}, {v(c0+2*j,2)}, {v(c0+2*j,2)}")
                for j in range(4):
                    a(f"v_pk_fma_f32 {v(GE+2*j,2)}, {v(GE+2*j,2)}, s[52:53], {v(GE+8,2)}")
                for j in range(4):
                    a(f"v_pk_mul_f32 {v(GE+2*j,2)}, {v(GE+2*j,2)}, {v(c0+2*j,2)}")
                for r in range(8):
                    a(f"v_exp_f32 {v(GE+r)}, {v(GE+r)}")
                a("s_nop 0")
                for j in range(4):
                    a(f"v_pk_add_f32 {v(GE+2*j,2)}, {v(GE+2*j,2)}, s[56:57]")
                for r in range(8):
                    a(f"v_rcp_f32 {v(GE+r)}, {v(GE+r)}")
                a("s_nop 0")
                for j in range(4):
                    cc = v(c0 + 2 * j, 2)
                    a(f"v_pk_fma_f32 {cc}, {cc}, {v(GE+2*j,2)}, {cc} neg_lo:[1,0,0] neg_hi:[1,0,0]")
            for j in range(4):
                a(f"v_cvt_pk_bf16_f32 {v(c0+j)}, {v(c0+2*j)}, {v(c0+2*j+1)}")
            for q in range(2):
                a(f"ds_write_b64 {v(vc)}, {v(c0+2*q,2)} offset:{(mp+q)*16*CROW + nt*32}")
    if DRY: a(f"s_cbranch_execz {lab_store}")
    a("s_waitcnt lgkmcnt(0)")
    stamp(4)
    a("s_barrier")
    a(f"s_branch {lab_store}")
    if epi2: del a.lines[cut0:]

    a.label(lab_loader)
    if 'noprio' not in EXP: a("s_setprio 2")
    if w2copy: a(f"s_load_dwordx2 s[94:95], s[0:1], {ARG['w2']}")
    NPL = (BN // 16 + 3) // 4
    LSA = 40
    LCW = 44
    LSC = 48; LCC = 52
    LONE = 56
    LST = 60
    LMS = 132
    LCS = 68
    LSD = 84
    LWD = 100
    assert vT[7] < 40
    a(f"s_mul_i32 s3, s30, {PA*8}")
    a(f"v_lshrrev_b32 {v(t0)}, 3, v1")
    a(f"v_add_u32 {v(t0)}, s3, {v(t0)}")
    a(f"s_mul_i32 s3, s28, {BM}")
    for i in range(PA):
        a(f"v_add_u32 {v(t1)}, {8*i}, {v(t0)}")
        a(f"v_lshrrev_b32 {v(t2)}, 1, {v(t1)}")
        a(f"v_and_b32 {v(t2)}, 7, {v(t2)}")
        a(f"v_and_b32 {v(t3)}, 7, v1")
        a(f"v_xor_b32 {v(t2)}, {v(t2)}, {v(t3)}")
        if ATILE:
            a(f"v_lshlrev_b32 {v(t1)}, 7, {v(t1)}")
            a(f"s_mul_i32 s46, s3, {lda}")
            a(f"v_add_u32 {v(t1)}, s46, {v(t1)}")
        else:
            a(f"v_add_u32 {v(t1)}, s3, {v(t1)}")
            a(f"v_mul_u32_u24 {v(t1)}, {lda}, {v(t1)}")
        a(f"v_lshl_add_u32 {v(vA[i])}, {v(t2)}, 4, {v(t1)}")
    a(f"s_mul_i32 s3, s29, {BN*2*(K if BTILE else 1)}")
    NW2 = BN * 2 if BTILE else N * 2
    if RB == 448:
        a(f"s_mov_b32 s47, {((1 << 32) + 27) // 28}")
        for i in range(PB):
            a(f"s_mul_i32 s46, s30, {PB*64}")
            a(f"s_add_u32 s46, s46, {i*64}")
            a(f"v_add_u32 {v(t1)}, s46, v1")
            a(f"v_mul_hi_u32 {v(t0)}, {v(t1)}, s47")
            a(f"v_mul_u32_u24 {v(t2)}, 28, {v(t0)}")
            a(f"v_sub_u32 {v(t1)}, {v(t1)}, {v(t2)}")
            a(f"v_bfe_u32 {v(t2)}, {v(t0)}, 3, 1")
            a(f"v_lshlrev_b32 {v(t2)}, 1, {v(t2)}")
            a(f"v_xor_b32 {v(t1)}, {v(t1)}, {v(t2)}")
            a(f"v_mul_u32_u24 {v(t0)}, {NW2}, {v(t0)}")
            a(f"v_lshl_add_u32 {v(t0)}, {v(t1)}, 4, {v(t0)}")
            a(f"v_add_u32 {v(vB[i])}, s3, {v(t0)}")
    else:
      CPR = RB // 16
      lg_cpr = int(math.log2(CPR))
      RPP = 1024 // RB
      PPB = RB // 16
      lg_ppb = int(math.log2(PPB))
      for i in range(PB):
        a(f"s_mul_i32 s46, s30, {PB}")
        a(f"s_add_u32 s46, s46, {i}")
        a(f"s_lshr_b32 s47, s46, {lg_ppb}")
        a(f"s_and_b32 s46, s46, {PPB-1}")
        a(f"s_mul_i32 s46, s46, {RPP}")
        a(f"s_mul_i32 s47, s47, {RB}")
        a("s_add_u32 s47, s47, s3")
        a(f"v_lshrrev_b32 {v(t0)}, {lg_cpr}, v1")
        a(f"v_add_u32 {v(t0)}, s46, {v(t0)}")
        a(f"v_and_b32 {v(t1)}, {CPR-1}, v1")
        if RB == 256:
            a(f"v_and_b32 {v(t2)}, 3, {v(t0)}")
            a(f"v_bfe_u32 {v(t3)}, {v(t0)}, 3, 1")
            a(f"v_lshl_add_u32 {v(t2)}, {v(t3)}, 2, {v(t2)}")
        elif RB == 128:
            a(f"v_bfe_u32 {v(t2)}, {v(t0)}, 1, 1")
            a(f"v_bfe_u32 {v(t3)}, {v(t0)}, 3, 1")
            a(f"v_lshl_add_u32 {v(t2)}, {v(t3)}, 1, {v(t2)}")
        elif RB == 64:
            a(f"v_bfe_u32 {v(t2)}, {v(t0)}, 3, 1")
        else:
            a(f"v_mov_b32 {v(t2)}, 0")
        a(f"v_lshlrev_b32 {v(t2)}, 1, {v(t2)}")
        a(f"v_xor_b32 {v(t1)}, {v(t1)}, {v(t2)}")
        a(f"v_mul_u32_u24 {v(t0)}, {NW2}, {v(t0)}")
        a(f"v_lshl_add_u32 {v(t0)}, {v(t1)}, 4, {v(t0)}")
        a(f"v_add_u32 {v(vB[i])}, s47, {v(t0)}")
    a(f"s_mul_i32 s31, s30, {PA*1024}")
    a(f"s_mul_i32 s32, s30, {PB*1024}")
    a(f"s_add_u32 s32, s32, {ABYTES}")
    a("s_mov_b32 s40, 0")
    a("s_mov_b32 s41, 0")
    a("s_mov_b32 s43, 0")
    a("s_mov_b32 s42, 0")
    build_srds()
    if zero_flags:
        lz = a.newlabel("L_nz")
        a("s_cmp_lg_u32 s2, 0")
        a(f"s_cbranch_scc1 {lz}")
        srd(a, 92, 24, WS_FLAG, 512)
        a(f"v_lshlrev_b32 {v(t0)}, 3, v1")
        a("v_mov_b32 v44, 0")
        a("v_mov_b32 v45, 0")
        a(f"buffer_store_dwordx2 v[44:45], {v(t0)}, s[92:95], 0 offen")
        a.label(lz)
    if splitk:
        a(f"s_mul_i32 s40, s92, {NSLO*BK*2*(BM if ATILE else 1)}")
        a(f"s_mul_i32 s41, s92, {NSLO*BK*NW2}")
        lab_lpass = a.newlabel("L_lpass")
        a.label(lab_lpass)

    def dma():
        if 'nodma' in EXP: return
        a("s_add_u32 s33, s43, s31")
        for i in range(PA):
            a(f"s_add_u32 m0, s33, {i*1024}")
            a("s_nop 0")
            a(f"buffer_load_dwordx4 {v(vA[i])}, s[4:7], s40 offen lds")
        a("s_add_u32 s33, s43, s32")
        for i in range(PB):
            a(f"s_add_u32 m0, s33, {i*1024}")
            a("s_nop 0")
            a(f"buffer_load_dwordx4 {v(vB[i])}, s[8:11], s41 offen lds")
        a(f"s_add_u32 s40, s40, {BK*2*(BM if ATILE else 1)}")
        a(f"s_add_u32 s41, s41, {BK*NW2}")
        if 'kwrap' in EXP:
            KW = int(os.environ.get('KW', '8'))
            a(f"s_cmp_ge_u32 s40, {KW*BK*2}")
            a("s_cselect_b32 s40, 0, s40")
            a("s_cselect_b32 s41, 0, s41")
        a(f"s_add_u32 s43, s43, {STAGE}")
        a(f"s_cmp_ge_u32 s43, {STAGE*NSTAGE}")
        a("s_cselect_b32 s43, 0, s43")

    stamp(1)
    if pre:
        a(f"v_lshrrev_b32 {v(LSA)}, 1, v1")
        a("s_lshl_b32 s3, s30, 5")
        a(f"v_add_u32 {v(LSA)}, s3, {v(LSA)}")
        a(f"s_mul_i32 s3, s28, {BM}")
        a(f"v_add_u32 {v(t0)}, s3, {v(LSA)}")
        a(f"v_lshlrev_b32 {v(t0)}, 7, {v(t0)}")
        a(f"v_and_b32 {v(t1)}, 1, v1")
        a(f"v_lshl_add_u32 {v(t0)}, {v(t1)}, 6, {v(t0)}")
        for i in range(4):
            a(f"buffer_load_dwordx4 {v(LSD+4*i,4)}, {v(t0)}, s[84:87], 0 offen offset:{16*i}")
    if st_bias:
        a(f"v_lshlrev_b32 {v(t0)}, 4, v1")
        a(f"s_mul_i32 s3, s29, {BN*2}")
        a(f"s_mov_b32 m0, {EPI}")
        a("s_nop 0")
        a(f"buffer_load_dwordx4 {v(t0)}, s[20:23], s3 offen lds")
        a(f"s_mul_i32 s3, s29, {BN*4}")
        a(f"s_mul_i32 s46, s30, {4*N*4}")
        a("s_add_u32 s3, s3, s46")
        for g_ in range(4):
            a(f"buffer_load_dwordx4 {v(LWD+4*g_,4)}, {v(t0)}, s[88:91], s3 offen")
            a(f"s_add_u32 s3, s3, {N*4}")
    for _ in range(NSTAGE - 1):
        dma()
    stamp(2)
    if ln and not pre:
        wfrag_addr_common()
        for i in range(NPL):
            a(f"s_mul_i32 s46, s30, {NPL}")
            a(f"s_add_u32 s46, s46, {i}")
            a(f"s_min_u32 s46, s46, {BN//16-1}")
            wfrag_addr(LCW + i)
        for i in range(4):
            a(f"v_mov_b32 {v(LONE+i)}, 0x3f803f80")
        for i in range(16):
            a(f"v_mov_b32 {v(LMS+i)}, 0")
        a(f"v_and_b32 {v(t0)}, 15, v1")
        a("s_lshl_b32 s3, s30, 5")
        a(f"v_add_u32 {v(t0)}, s3, {v(t0)}")
        a(f"v_lshlrev_b32 {v(t0)}, 7, {v(t0)}")
        a(f"v_lshrrev_b32 {v(t1)}, 4, v1")
        a(f"v_bfe_u32 {v(t2)}, v1, 1, 3")
        a(f"v_xor_b32 {v(t3)}, {v(t1)}, {v(t2)}")
        a(f"v_lshl_add_u32 {v(LSA)}, {v(t3)}, 4, {v(t0)}")
        a(f"v_xor_b32 {v(t3)}, 4, {v(t3)}")
        a(f"v_lshl_add_u32 {v(LSA+1)}, {v(t3)}, 4, {v(t0)}")
        for i in range(4 * NPL):
            a(f"v_mov_b32 {v(LCS+i)}, 0")

    def stats_reads():
        for i in range(2):
            a(f"v_add_u32 {v(LSC+i)}, s42, {v(LSA+i)}")
        for i in range(NPL):
            a(f"v_add_u32 {v(LCC+i)}, s42, {v(LCW+i)}")
        a(f"s_add_u32 s42, s42, {STAGE}")
        a(f"s_cmp_ge_u32 s42, {STAGE*NSTAGE}")
        a("s_cselect_b32 s42, 0, s42")
        for q in range(2):
            for kk in range(2):
                a(f"ds_read_b128 {v(LSD+8*q+4*kk,4)}, {v(LSC+kk)} offset:{2048*q}")
        for i in range(NPL):
            for kk in range(2):
                for rd in range(2):
                    a(f"ds_read_b64_tr_b16 {v(LWD+8*i+4*kk+2*rd,2)}, {v(LCC+i)} offset:{kk*32*RB+rd*4*RB}")

    def stats_math():
        a("s_waitcnt lgkmcnt(0)")
        for i in range(NPL):
            for kk in range(2):
                a(f"v_mfma_f32_16x16x32_bf16 {v(LCS+4*i,4)}, {v(LWD+8*i+4*kk,4)}, {v(LONE,4)}, {v(LCS+4*i,4)}")
        for kk in range(2):
            for q in range(2):
                d = v(LSD + 8 * q + 4 * kk, 4)
                a(f"v_mfma_f32_16x16x32_bf16 {v(LMS+8*q,4)}, {d}, {v(LONE,4)}, {v(LMS+8*q,4)}")
                a(f"v_mfma_f32_16x16x32_bf16 {v(LMS+8*q+4,4)}, {d}, {d}, {v(LMS+8*q+4,4)}")

    nloop = NS - NSTAGE + 1
    if splitk: a(f"s_sub_u32 s48, s93, {NSTAGE-1}")
    else: a(f"s_mov_b32 s48, {nloop}")
    lloop = a.newlabel("L_lloop")
    a.label(lloop)
    a(f"s_waitcnt vmcnt({(NSTAGE-2)*P})")
    a("s_barrier")
    if ln and not pre: stats_reads()
    dma()
    if ln and not pre: stats_math()
    a("s_sub_u32 s48, s48, 1")
    a("s_cmp_lg_u32 s48, 0")
    a(f"s_cbranch_scc1 {lloop}")
    if pre:
        for i in range(1, 8):
            a(f"v_add_f32 {v(LSD)}, {v(LSD)}, {v(LSD+2*i)}")
            a(f"v_add_f32 {v(LSD+1)}, {v(LSD+1)}, {v(LSD+2*i+1)}")
        a("s_nop 1")
        for k_ in range(2):
            a(f"v_add_f32_dpp {v(LST+k_)}, {v(LSD+k_)}, {v(LSD+k_)} quad_perm:[1,0,3,2] row_mask:0xf bank_mask:0xf")
        sm, sq, r1, r2 = LST, LST + 1, LSD, LSD + 1
        a(f"v_mul_f32 {v(sm)}, {hex_f32(1.0/K)}, {v(sm)}")
        a(f"v_mul_f32 {v(sq)}, {hex_f32(1.0/K)}, {v(sq)}")
        a(f"v_fma_f32 {v(sq)}, -{v(sm)}, {v(sm)}, {v(sq)}")
        a(f"v_max_f32 {v(sq)}, 0, {v(sq)}")
        a(f"v_add_f32 {v(r1)}, {hex_f32(1e-5)}, {v(sq)}")
        a(f"v_rsq_f32 {v(r1)}, {v(r1)}")
        a("s_nop 0")
        if ln == 'double':
            a(f"v_mul_f32 {v(r2)}, {v(r1)}, {v(r1)}")
            a(f"v_mul_f32 {v(r2)}, {v(r2)}, {v(sq)}")
            a(f"v_add_f32 {v(r2)}, {hex_f32(1e-5)}, {v(r2)}")
            a(f"v_rsq_f32 {v(r2)}, {v(r2)}")
            a("s_nop 0")
            a(f"v_mul_f32 {v(r1)}, {v(r1)}, {v(r2)}")
        a(f"v_mul_f32 {v(r2)}, {v(sm)}, {v(r1)}")
        a(f"v_sub_f32 {v(r2)}, 0, {v(r2)}")
        a(f"v_lshlrev_b32 {v(LSC)}, 3, {v(LSA)}")
        a(f"v_add_u32 {v(LSC)}, {RTAB}, {v(LSC)}")
        a(f"ds_write_b64 {v(LSC)}, {v(LSD,2)}")
        for g_ in range(1, 4):
            for j in range(2):
                a(f"v_pk_add_f32 {v(LWD+2*j,2)}, {v(LWD+2*j,2)}, {v(LWD+4*g_+2*j,2)}")
        a(f"v_lshlrev_b32 {v(t0)}, 4, v1")
        a(f"v_add_u32 {v(t0)}, {EPI+3072}, {v(t0)}")
        a("s_lshl_b32 s3, s30, 10")
        a(f"v_add_u32 {v(t1)}, s3, {v(t0)}")
        a(f"ds_write_b128 {v(t1)}, {v(LWD,4)}")
        a("s_waitcnt lgkmcnt(0)")
    if st_res:
        npc = BM * BN * 2 // 4096
        rpp = 1024 // (BN * 2)
        lpr = BN * 2 // 16
        a(f"v_lshrrev_b32 {v(t0)}, {int(math.log2(lpr))}, v1")
        a(f"s_mul_i32 s3, s30, {npc*rpp}")
        a(f"s_mul_i32 s46, s28, {BM}")
        a("s_add_u32 s3, s3, s46")
        a(f"v_add_u32 {v(t0)}, s3, {v(t0)}")
        a(f"v_mul_u32_u24 {v(t0)}, {N*2}, {v(t0)}")
        a(f"v_and_b32 {v(t1)}, {lpr-1}, v1")
        a(f"v_lshl_add_u32 {v(t0)}, {v(t1)}, 4, {v(t0)}")
        a(f"s_mul_i32 s3, s29, {BN*2}")
        a(f"v_add_u32 {v(t0)}, s3, {v(t0)}")
        a(f"s_mul_i32 s33, s30, {npc*1024}")
        for i in range(npc):
            a(f"s_add_u32 m0, s33, {EPI + i*1024}")
            a(f"s_mov_b32 s3, {i*rpp*N*2}")
            a(f"buffer_load_dwordx4 {v(t0)}, s[16:19], s3 offen lds")
    for j in range(NS - NSTAGE + 1, NS):
        a(f"s_waitcnt vmcnt({(NS-1-j)*P + NEX})")
        a("s_barrier")
        if pre and j == NS - NSTAGE + 1:
            assert NSTAGE >= 3
            lcs = a.newlabel("L_lcs")
            a("s_cmp_lg_u32 s30, 0")
            a(f"s_cbranch_scc1 {lcs}")
            for g_ in range(4):
                a(f"ds_read_b128 {v(LWD+4*g_,4)}, {v(t0)} offset:{1024*g_}")
            a("s_waitcnt lgkmcnt(0)")
            for g_ in range(1, 4):
                for j_ in range(2):
                    a(f"v_pk_add_f32 {v(LWD+2*j_,2)}, {v(LWD+2*j_,2)}, {v(LWD+4*g_+2*j_,2)}")
            a(f"v_subrev_u32 {v(t0)}, {EPI+3072-CTAB}, {v(t0)}")
            a(f"ds_write_b128 {v(t0)}, {v(LWD,4)}")
            a("s_waitcnt lgkmcnt(0)")
            a.label(lcs)
        if ln and not pre:
            stats_reads()
            stats_math()
    stamp(3)
    if epi2: a("s_barrier")
    if w2copy:
        a("s_lshl_b32 s92, s2, 2")
        a("s_add_u32 s92, s92, s30")
        a(f"v_lshrrev_b32 {v(t0)}, 3, v1")
        a(f"v_and_b32 {v(t1)}, 7, v1")
        a(f"v_lshlrev_b32 {v(t1)}, 4, {v(t1)}")
        a(f"v_lshl_add_u32 {v(W2A)}, {v(t0)}, 11, {v(t1)}")
        a("s_lshr_b32 s3, s92, 6")
        a("s_lshl_b32 s3, s3, 7")
        a("s_and_b32 s46, s92, 63")
        a(f"s_mul_i32 s46, s46, {56*D*2}")
        a("s_add_u32 s3, s3, s46")
        srd(a, 88, 94, 0, F * D * 2)
        for j in range(7):
            a(f"buffer_load_dwordx4 {v(W2S+4*j,4)}, {v(W2A)}, s[88:91], s3 offen")
            a(f"s_add_u32 s3, s3, {8*D*2}")
        def w2store(extra):
            srd(a, 88, 24, WS_W2T, F * D * 2)
            a("s_mul_i32 s3, s92, 7168")
            a(f"v_lshlrev_b32 {v(W2A)}, 4, v1")
            for j in range(7):
                if j == 4: a("s_add_u32 s3, s3, 4096")
                a(f"s_waitcnt vmcnt({6+extra})")
                a(f"buffer_store_dwordx4 {v(W2S+4*j,4)}, {v(W2A)}, s[88:91], s3 offen offset:{1024*(j&3)}")
        if not epi2: w2store(0)
    if ln and not pre:
        a("s_nop 7")
        a(f"v_and_b32 {v(t0)}, 3, v1")
        for r in range(1, 4):
            a(f"v_cmp_eq_u32 s[{48+2*r}:{49+2*r}], {r}, {v(t0)}")
        X0 = LSD
        for i in range(2):
            sm, sq = LST + 2 * i, LST + 2 * i + 1
            r1, r2 = X0 + 2 * i, X0 + 2 * i + 1
            for dst, src in ((sm, LMS + 8 * i), (sq, LMS + 8 * i + 4)):
                a(f"v_cndmask_b32 {v(dst)}, {v(src)}, {v(src+1)}, s[50:51]")
                a(f"v_cndmask_b32 {v(dst)}, {v(dst)}, {v(src+2)}, s[52:53]")
                a(f"v_cndmask_b32 {v(dst)}, {v(dst)}, {v(src+3)}, s[54:55]")
            a(f"v_mul_f32 {v(sm)}, {hex_f32(1.0/K)}, {v(sm)}")
            a(f"v_mul_f32 {v(sq)}, {hex_f32(1.0/K)}, {v(sq)}")
            a(f"v_fma_f32 {v(sq)}, -{v(sm)}, {v(sm)}, {v(sq)}")
            a(f"v_max_f32 {v(sq)}, 0, {v(sq)}")
            a(f"v_add_f32 {v(r1)}, {hex_f32(1e-5)}, {v(sq)}")
            a(f"v_rsq_f32 {v(r1)}, {v(r1)}")
            a("s_nop 0")
            assert ln == 'single'
            a(f"v_mul_f32 {v(r2)}, {v(sm)}, {v(r1)}")
            a(f"v_sub_f32 {v(r2)}, 0, {v(r2)}")
        a(f"v_lshrrev_b32 {v(LSC)}, 7, {v(LSA)}")
        a(f"v_lshlrev_b32 {v(LSC)}, 3, {v(LSC)}")
        a(f"v_add_u32 {v(LSC)}, {RTAB}, {v(LSC)}")
        a(f"v_lshrrev_b32 {v(t0)}, 4, v1")
        a(f"v_lshlrev_b32 {v(t0)}, 4, {v(t0)}")
        for i in range(NPL):
            a(f"s_mul_i32 s46, s30, {NPL}")
            a(f"s_add_u32 s46, s46, {i}")
            a(f"s_min_u32 s46, s46, {BN//16-1}")
            a("s_lshl_b32 s46, s46, 6")
            a(f"s_add_u32 s46, s46, {CTAB}")
            a(f"v_add_u32 {v(LCC+i)}, s46, {v(t0)}")
    if ln and not pre:
        a("s_mov_b32 exec_lo, 0x00f0000f")
        a("s_mov_b32 exec_hi, 0xf0000f00")
        for i in range(2):
            a(f"ds_write_b64 {v(LSC)}, {v(LSD+2*i,2)} offset:{128*i}")
        a("s_mov_b64 exec, -1")
        for i in range(NPL):
            a(f"ds_write_b128 {v(LCC+i)}, {v(LCS+4*i,4)}")
        a("s_waitcnt lgkmcnt(0)")
        a("s_barrier")
    if NEX: a("s_waitcnt vmcnt(0)")
    if splitk:
        lhi = a.newlabel("L_lhi"); lepi = a.newlabel("L_lepi")
        a("s_cmp_lg_u32 s92, 0")
        a(f"s_cbranch_scc1 {lhi}")
        a("s_barrier")
        a(f"s_branch {end}")
        a.label(lhi)
        a("s_barrier")
        a("s_cmp_eq_u32 s94, 2")
        a(f"s_cbranch_scc1 {lepi}")
        a(f"v_mov_b32 {v(t1)}, {DONE}")
        a(f"ds_read_b128 {v(44,4)}, {v(t1)}")
        a("s_waitcnt lgkmcnt(0)")
        a("v_and_b32 v44, v44, v45")
        a("v_and_b32 v46, v46, v47")
        a("v_and_b32 v44, v44, v46")
        a("s_nop 0")
        a("v_readfirstlane_b32 s3, v44")
        a("s_nop 3")
        a("s_cmp_eq_u32 s3, 1")
        a(f"s_cbranch_scc1 {lepi}")
        a("s_mov_b32 s94, 2")
        a(f"s_mov_b32 s93, {NSLO}")
        a("s_mov_b32 s40, 0"); a("s_mov_b32 s41, 0"); a("s_mov_b32 s43, 0")
        a("s_barrier")
        a(f"s_branch {lab_lpass}")
        a.label(lepi)
    stamp(4)
    a("s_barrier")

    a.label(lab_store)
    if epi2:
        CPRW = BN // 8
        assert CPRW == 28 and otile
        vL, vR, vO = 2, 3, 4
        CSr, BFr, Dr, RCr, Gr, Or, K1 = 8, 16, [24, 32], [40, 42], 44, [52, 56], 60
        c2 = 2 * math.log2(math.e)
        k1 = struct.unpack("<I", struct.pack("<f", -0.7978845608 * c2))[0]
        k3 = struct.unpack("<I", struct.pack("<f", -0.7978845608 * 0.044715 * c2))[0]
        a("s_setprio 0")
        a(f"v_cmp_le_u32 s[46:47], {CPRW}, v1")
        a(f"v_mov_b32 v5, 0")
        a(f"v_cndmask_b32 v5, v5, 1, s[46:47]")
        a(f"v_mul_u32_u24 v6, {CPRW}, v5")
        a(f"v_sub_u32 v6, v1, v6")
        a("s_lshl_b32 s3, s49, 1")
        a("v_add_u32 v5, s3, v5")
        a("s_mov_b32 exec_hi, 0x00ffffff")
        a(f"v_lshlrev_b32 v7, 5, v6")
        a(f"v_add_u32 v7, {CTAB}, v7")
        a(f"ds_read_b128 {v(CSr,4)}, v7")
        a(f"ds_read_b128 {v(CSr+4,4)}, v7 offset:16")
        a(f"v_lshlrev_b32 v7, 4, v6")
        a(f"v_add_u32 v62, {EPI}, v7")
        a(f"ds_read_b128 {v(Gr,4)}, v62")
        a(f"v_mul_u32_u24 {v(vL)}, {FROW}, v5")
        a(f"v_add_u32 {v(vL)}, {v(vL)}, v7")
        a(f"v_lshlrev_b32 {v(vR)}, 3, v5")
        a(f"v_add_u32 {v(vR)}, {RTAB}, {v(vR)}")

        def rd(b):
            a(f"ds_read_b128 {v(Dr[b],4)}, {v(vL)}")
            a(f"ds_read_b128 {v(Dr[b]+4,4)}, {v(vL)} offset:{BN*2}")
            a(f"ds_read_b64 {v(RCr[b],2)}, {v(vR)}")
            a(f"v_add_u32 {v(vL)}, {16*FROW}, {v(vL)}")
            a(f"v_add_u32 {v(vR)}, 128, {v(vR)}")
        rd(0)
        a(f"s_mul_i32 s3, s29, {CPRW}")
        a("v_add_u32 v6, s3, v6")
        a("v_lshrrev_b32 v7, 3, v6")
        a("v_lshlrev_b32 v7, 14, v7")
        a("v_lshl_add_u32 v7, v5, 7, v7")
        a("v_and_b32 v6, 7, v6")
        a(f"v_lshl_add_u32 {v(vO)}, v6, 4, v7")
        a(f"s_mul_i32 s50, s28, {BM*ldo}")
        a(f"s_mov_b32 s52, {k3}"); a(f"s_mov_b32 s53, {k3}")
        a(f"v_mov_b32 {v(K1)}, {k1}"); a(f"v_mov_b32 {v(K1+1)}, {k1}")
        a("s_mov_b32 s56, 1.0"); a("s_mov_b32 s57, 1.0")
        a("s_waitcnt lgkmcnt(3)")
        for j in range(4):
            a(f"v_lshlrev_b32 {v(BFr+2*j)}, 16, {v(Gr+j)}")
            a(f"v_and_b32 {v(BFr+2*j+1)}, 0xffff0000, {v(Gr+j)}")
        stamp(5)
        a(f"s_mov_b32 s48, {BM//32}")
        lp = a.newlabel("L_ep")
        a.label(lp)
        for b in range(2):
            rd(1 - b)
            a("s_waitcnt lgkmcnt(3)")
            d = Dr[b]; rc = v(RCr[b], 2)
            for j in range(4):
                a(f"v_pk_fma_f32 {v(Gr+2*j,2)}, {v(CSr+2*j,2)}, {rc}, {v(BFr+2*j,2)} op_sel:[0,1,0] op_sel_hi:[1,1,1]")
            for j in range(4):
                a(f"v_pk_fma_f32 {v(d+2*j,2)}, {v(d+2*j,2)}, {rc}, {v(Gr+2*j,2)} op_sel:[0,0,0] op_sel_hi:[1,0,1]")
            for j in range(4):
                a(f"v_pk_mul_f32 {v(Gr+2*j,2)}, {v(d+2*j,2)}, {v(d+2*j,2)}")
            for j in range(4):
                a(f"v_pk_fma_f32 {v(Gr+2*j,2)}, {v(Gr+2*j,2)}, s[52:53], {v(K1,2)}")
            for j in range(4):
                a(f"v_pk_mul_f32 {v(Gr+2*j,2)}, {v(Gr+2*j,2)}, {v(d+2*j,2)}")
            for r in range(8):
                a(f"v_exp_f32 {v(Gr+r)}, {v(Gr+r)}")
            a("s_nop 0")
            for j in range(4):
                a(f"v_pk_add_f32 {v(Gr+2*j,2)}, {v(Gr+2*j,2)}, s[56:57]")
            for r in range(8):
                a(f"v_rcp_f32 {v(Gr+r)}, {v(Gr+r)}")
            a("s_nop 0")
            for j in range(4):
                a(f"v_pk_mul_f32 {v(d+2*j,2)}, {v(d+2*j,2)}, {v(Gr+2*j,2)}")
            for j in range(4):
                a(f"v_cvt_pk_bf16_f32 {v(Or[b]+j)}, {v(d+2*j)}, {v(d+2*j+1)}")
            a(f"buffer_store_dwordx4 {v(Or[b],4)}, {v(vO)}, s[12:15], s50 offen {STMOD}")
            a("s_add_u32 s50, s50, 2048")
        a("s_sub_u32 s48, s48, 1")
        a("s_cmp_lg_u32 s48, 0")
        a(f"s_cbranch_scc1 {lp}")
        a("s_mov_b64 exec, -1")
        a("s_waitcnt lgkmcnt(0)")
        if w2copy:
            lw = a.newlabel("L_nw2")
            a("s_cmp_lt_u32 s49, 4")
            a(f"s_cbranch_scc1 {lw}")
            w2store(BM // 16)
            a.label(lw)
        stamp(6)
        if 'stamp' in EXP: a("s_waitcnt vmcnt(0)")
        stamp(7)
        stamp_out()
        a.label(end)
        a("s_endpgm")
        return dict(name=name, grid=ntiles, block=512, lds=lds, desc=kernel_desc(name, max(nvgpr, 168)))
    CPRW = BN // 8
    NIT = BM * CPRW // 512
    assert NIT * 512 == BM * CPRW
    magic = ((1 << 32) + CPRW - 1) // CPRW
    a(f"s_mov_b32 s46, {magic}")
    a(f"s_mul_i32 s3, s49, {NIT*64}")
    a(f"v_add_u32 {v(t0)}, s3, v1")
    a(f"s_mul_i32 s3, s28, {BM*ldo if otile else BM}")
    a(f"s_mul_i32 s47, s29, {CPRW if otile else BN*2}")
    R0 = (vT[7] + 4) // 4 * 4
    RR = R0 + 4 * NIT
    OFF = RR + 4 * NIT
    SOF = OFF + NIT
    GT = (SOF + NIT + 3) // 4 * 4
    assert GT + 10 <= 256
    for it in range(NIT):
        a(f"v_add_u32 {v(t1)}, {it*64}, {v(t0)}")
        a(f"v_mul_hi_u32 {v(t2)}, {v(t1)}, s46")
        a(f"v_mul_u32_u24 {v(t3)}, {CPRW}, {v(t2)}")
        a(f"v_sub_u32 {v(t3)}, {v(t1)}, {v(t3)}")
        a(f"v_mul_u32_u24 {v(t1)}, {CROW}, {v(t2)}")
        a(f"v_lshl_add_u32 {v(t1)}, {v(t3)}, 4, {v(t1)}")
        if CBASE: a(f"v_add_u32 {v(t1)}, {CBASE}, {v(t1)}")
        a(f"ds_read_b128 {v(R0+4*it,4)}, {v(t1)}")
        if not otile: a(f"v_add_u32 {v(t2)}, s3, {v(t2)}")
        if stats_out:
            a(f"v_lshlrev_b32 {v(SOF+it)}, 7, {v(t2)}")
            a(f"v_lshl_add_u32 {v(SOF+it)}, s29, 3, {v(SOF+it)}")
        if otile:
            a(f"v_add_u32 {v(t3)}, s47, {v(t3)}")
            a(f"v_lshrrev_b32 {v(t1)}, 3, {v(t3)}")
            a(f"v_lshlrev_b32 {v(t1)}, 14, {v(t1)}")
            a(f"v_lshl_add_u32 {v(t1)}, {v(t2)}, 7, {v(t1)}")
            a(f"v_and_b32 {v(t3)}, 7, {v(t3)}")
            a(f"v_lshl_add_u32 {v(t1)}, {v(t3)}, 4, {v(t1)}")
            a(f"v_add_u32 {v(OFF+it)}, s3, {v(t1)}")
        else:
            a(f"v_mul_u32_u24 {v(t2)}, {ldo}, {v(t2)}")
            a(f"v_lshlrev_b32 {v(t3)}, 4, {v(t3)}")
            a(f"v_add_u32 {v(t3)}, s47, {v(t3)}")
            a(f"v_add_u32 {v(OFF+it)}, {v(t3)}, {v(t2)}")
        if st_res:
            a(f"v_lshlrev_b32 {v(t1)}, 4, {v(t0)}")
            a(f"v_add_u32 {v(t1)}, {EPI + it*1024}, {v(t1)}")
            a(f"ds_read_b128 {v(RR+4*it,4)}, {v(t1)}")
        elif res_arg:
            a(f"buffer_load_dwordx4 {v(RR+4*it,4)}, {v(OFF+it)}, s[16:19], 0 offen")
    a("s_waitcnt vmcnt(0) lgkmcnt(0)" if (res_arg and not st_res) else "s_waitcnt lgkmcnt(0)")
    if DRY: a.dry_exit()
    stamp(5)
    for it in range(NIT):
        c0 = R0 + 4 * it
        if res_arg:
            for j in range(4):
                d = c0 + j
                r = RR + 4 * it + j
                a(f"v_lshlrev_b32 {v(GT)}, 16, {v(d)}")
                a(f"v_lshlrev_b32 {v(GT+1)}, 16, {v(r)}")
                a(f"v_and_b32 {v(GT+2)}, 0xffff0000, {v(d)}")
                a(f"v_and_b32 {v(GT+3)}, 0xffff0000, {v(r)}")
                a(f"v_add_f32 {v(GT)}, {v(GT)}, {v(GT+1)}")
                a(f"v_add_f32 {v(GT+2)}, {v(GT+2)}, {v(GT+3)}")
                a(f"v_cvt_pk_bf16_f32 {v(d)}, {v(GT)}, {v(GT+2)}")
        a(f"buffer_store_dwordx4 {v(c0,4)}, {v(OFF+it)}, s[12:15], 0 offen {STMOD if (ln or STALL) else ''}")
        if stats_out:
            assert CPRW == 8
            a(f"v_mov_b32 {v(GT+8)}, 0x3f803f80")
            a(f"v_mov_b32 {v(GT)}, 0")
            a(f"v_mov_b32 {v(GT+1)}, 0")
            for j in range(4):
                a(f"v_dot2_f32_bf16 {v(GT)}, {v(c0+j)}, {v(GT+8)}, {v(GT)}")
                a(f"v_dot2_f32_bf16 {v(GT+1)}, {v(c0+j)}, {v(c0+j)}, {v(GT+1)}")
            a("s_nop 3")
            for q_, mode in enumerate(("quad_perm:[1,0,3,2]", "quad_perm:[2,3,0,1]", "row_half_mirror")):
                src = GT + 2 * (q_ & 1); dst = GT + 2 * ((q_ + 1) & 1)
                for k_ in range(2):
                    a(f"v_add_f32_dpp {v(dst+k_)}, {v(src+k_)}, {v(src+k_)} {mode} row_mask:0xf bank_mask:0xf")
                a("s_nop 1")
            a("s_mov_b32 exec_lo, 0x01010101")
            a("s_mov_b32 exec_hi, 0x01010101")
            a(f"buffer_store_dwordx2 {v(GT+2,2)}, {v(SOF+it)}, s[84:87], 0 offen")
            a("s_mov_b64 exec, -1")
    stamp(6)
    if 'stamp' in EXP: a("s_waitcnt vmcnt(0)")
    stamp(7)
    stamp_out()
    a.label(end)
    a("s_endpgm")
    if DRY: a.dry_dispatch()
    return dict(name=name, grid=ntiles, block=512, lds=lds, desc=kernel_desc(name, max(nvgpr, GT + 10, 168)))


def gen_attn(a, name, pf=None, colsum=False):
    import struct
    NQB = S // 32
    ntask = H * NQB
    nwg = ntask // 4
    QKV_ROW = 3 * D * 2
    KLDS = 384 * 64
    lds = 2 * KLDS
    kernel_header(a, name)
    end = a.newlabel("L_end")
    npf = 0
    a(f"s_cmp_ge_u32 s2, {nwg + npf}")
    a(f"s_cbranch_scc1 {end}")
    a(f"s_load_dwordx2 s[24:25], s[0:1], {ARG['ws']}")
    a("v_and_b32 v1, 63, v0")
    a("v_lshrrev_b32 v2, 6, v0")
    a("s_nop 0")
    a("v_readfirstlane_b32 s30, v2")
    a("s_nop 3")
    a("s_lshl_b32 s3, s2, 2")
    a("s_add_u32 s92, s3, s30")
    a("s_and_b32 s28, s2, 31")
    a("s_lshr_b32 s29, s2, 5")
    a("s_lshl_b32 s39, s29, 7")
    a("s_sub_u32 s39, s39, 256")
    a("s_lshl_b32 s3, s30, 5")
    a("s_add_u32 s32, s39, s3")
    a("s_add_u32 s31, s32, 256")
    a("s_lshl_b32 s33, s28, 6")
    a(f"s_add_u32 s35, s33, {2*D*2}")
    a(f"s_add_u32 s36, s33, {D*2}")
    a("v_and_b32 v2, 31, v1")
    a("v_lshrrev_b32 v3, 5, v1")
    a("v_add_u32 v4, s31, v2")
    a(f"v_mul_u32_u24 v4, {QKV_ROW}, v4")
    a("v_lshl_add_u32 v4, v3, 4, v4")
    a("v_add_u32 v4, s33, v4")
    a("s_waitcnt lgkmcnt(0)")
    srd(a, 4, 24, WS_QKV, S * 3 * D * 2)
    srd(a, 8, 24, WS_O, S * D * 2)
    a("v_lshrrev_b32 v5, 2, v1")
    a("v_and_b32 v6, 3, v1")
    a("v_bfe_u32 v7, v1, 4, 2")
    a("v_xor_b32 v7, v7, v6")
    a("s_mul_i32 s3, s30, 96")
    a("s_add_u32 s3, s3, s39")
    a("s_mul_i32 s34, s30, 6144")
    for p in range(6):
        a(f"v_add_u32 v16, {16*p}, v5")
        a("v_add_u32 v16, s3, v16")
        a("v_max_i32 v16, 0, v16")
        a(f"v_mul_u32_u24 v16, {QKV_ROW}, v16")
        a("v_lshl_add_u32 v17, v7, 4, v16")
        a("v_add_u32 v17, s36, v17")
        a(f"s_add_u32 m0, s34, {p*1024}")
        a("v_lshl_add_u32 v16, v6, 4, v16")
        a(f"buffer_load_dwordx4 v17, s[4:7], 0 offen lds")
        a("v_add_u32 v16, s35, v16")
        a(f"s_add_u32 m0, s34, {KLDS + p*1024}")
        a("s_nop 0")
        a(f"buffer_load_dwordx4 v16, s[4:7], 0 offen lds")
    a("buffer_load_dwordx4 v[8:11], v4, s[4:7], 0 offen")
    a("buffer_load_dwordx4 v[12:15], v4, s[4:7], 0 offen offset:32")
    KF = 16
    if colsum:
        a(f"s_load_dwordx2 s[94:95], s[0:1], {ARG['w2']}")
        a(f"s_load_dwordx2 s[40:41], s[0:1], {ARG['wo']}")
        a(f"s_load_dwordx2 s[42:43], s[0:1], {ARG['w1']}")
        a("v_lshlrev_b32 v7, 4, v1")
        a(f"s_mul_i32 s93, s92, {F*D*2//2048}")
        a("s_lshl_b32 s3, s92, 10")
        a("v_add_u32 v16, s93, v7")
        a("v_add_u32 v17, s3, v7")
        a(f"s_mul_hi_u32 s44, s92, {((1 << 32) + 111) // 112}")
        a("s_mul_i32 s3, s44, 112")
        a("s_sub_u32 s45, s92, s3")
        a("s_lshl_b32 s3, s44, 6")
        a("v_lshrrev_b32 v18, 2, v1")
        a("v_add_u32 v18, s3, v18")
        a(f"v_mul_u32_u24 v18, {F*2}, v18")
        a("v_and_b32 v19, 3, v1")
        a("v_lshl_add_u32 v18, v19, 4, v18")
        a("s_lshl_b32 s3, s45, 6")
        a("v_add_u32 v18, s3, v18")
        a("s_waitcnt lgkmcnt(0)")
        npl = 4
        if 'nowpf' in EXP:
            srd(a, 96, 94, 0, F * D * 2)
            for j in range(4):
                a(f"buffer_load_dwordx4 v[240:243], v16, s[96:99], 0 offen offset:{1024*j}")
            srd(a, 96, 40, 0, D * D * 2)
            a("buffer_load_dwordx4 v[240:243], v17, s[96:99], 0 offen")
            npl = 9
        srd(a, 96, 42, 0, D * F * 2)
        for j in range(4):
            a(f"s_mov_b32 s3, {16*j*F*2}")
            a(f"buffer_load_dwordx4 {v(240+4*j,4)}, v18, s[96:99], s3 offen")
    else:
        npl = tail_prefetch(a, 92, 1, pf, 7, 240) if pf else 0
    a("v_bfe_u32 v5, v1, 2, 2")
    a("v_xor_b32 v5, v5, v3")
    a("v_lshlrev_b32 v6, 6, v2")
    a("s_lshl_b32 s34, s30, 11")
    a("v_add_u32 v6, s34, v6")
    a("v_lshl_add_u32 v88, v5, 4, v6")
    a("v_xor_b32 v5, 2, v5")
    a("v_lshl_add_u32 v89, v5, 4, v6")
    a(f"s_add_u32 s34, s34, {KLDS}")
    a(f"s_waitcnt vmcnt({npl})")
    a("s_barrier")
    for t_ in range(9):
        a(f"ds_read_b128 {v(KF+8*t_,4)}, v88 offset:{2048*t_}")
        a(f"ds_read_b128 {v(KF+8*t_+4,4)}, v89 offset:{2048*t_}")
    SC = 96
    a("v_mov_b32 v7, 0xf149f2ca")
    for t in range(9):
        a(f"s_waitcnt lgkmcnt({min(15, 2*(8-t))})")
        if t < 8:
            lab_inv = a.newlabel("L_inv"); lab_done = a.newlabel("L_tdone")
            a(f"s_add_i32 s3, s32, {32*t}")
            a("s_cmp_lt_i32 s3, 0")
            a(f"s_cbranch_scc1 {lab_inv}")
        a(f"v_mfma_f32_32x32x16_bf16 {v(SC+16*t,16)}, {v(KF+8*t,4)}, v[8:11], 0")
        a(f"v_mfma_f32_32x32x16_bf16 {v(SC+16*t,16)}, {v(KF+8*t+4,4)}, v[12:15], {v(SC+16*t,16)}")
        if t < 8:
            a(f"s_branch {lab_done}")
            a.label(lab_inv)
            for r in range(16):
                a(f"v_mov_b32 v{SC+16*t+r}, v7")
            a.label(lab_done)
    a("v_lshlrev_b32 v5, 2, v3")
    a("v_sub_u32 v5, v2, v5")
    a("s_nop 7")
    a("s_nop 7")
    for r in range(16):
        c = (r & 3) + 8 * (r >> 2)
        a(f"v_cmp_gt_i32 vcc, {c}, v5")
        a(f"v_cmp_le_i32 s[36:37], {c}, v5")
        a("s_nop 0")
        a(f"v_cndmask_b32 v{SC+r}, v7, v{SC+r}, vcc")
        a(f"v_cndmask_b32 v{SC+128+r}, v7, v{SC+128+r}, s[36:37]")
    a(f"v_max3_f32 v4, v{SC}, v{SC+1}, v{SC+2}")
    a(f"v_max3_f32 v6, v{SC+3}, v{SC+4}, v{SC+5}")
    for i in range(6, 144, 4):
        a(f"v_max3_f32 v4, v4, v{SC+i}, v{SC+i+1}")
        if i + 3 < 144:
            a(f"v_max3_f32 v6, v6, v{SC+i+2}, v{SC+i+3}")
    a("v_max_f32 v4, v4, v6")
    a("v_xor_b32 v88, 32, v1")
    a("v_lshlrev_b32 v88, 2, v88")
    a("ds_bpermute_b32 v89, v88, v4")
    a("s_waitcnt lgkmcnt(0)")
    a("v_max_f32 v4, v4, v89")
    sc = (DH ** -0.5) * math.log2(math.e)
    sc_bits = struct.unpack("<I", struct.pack("<f", sc))[0]
    a(f"s_mov_b32 s38, {sc_bits}")
    a("v_mul_f32 v4, s38, v4")
    sums = [5, 6, 90, 91]
    for sreg in sums:
        a(f"v_mov_b32 v{sreg}, 0")
    for g in range(0, 144, 4):
        for j in range(4):
            a(f"v_fma_f32 v{SC+g+j}, v{SC+g+j}, s38, -v4")
        for j in range(4):
            a(f"v_exp_f32 v{SC+g+j}, v{SC+g+j}")
        if g >= 4:
            for j in range(4):
                a(f"v_add_f32 v{sums[j]}, v{sums[j]}, v{SC+g-4+j}")
            tt, jj = divmod(g - 4, 16)
            a(f"v_cvt_pk_bf16_f32 v{KF+8*tt+jj//2}, v{SC+g-4}, v{SC+g-3}")
            a(f"v_cvt_pk_bf16_f32 v{KF+8*tt+jj//2+1}, v{SC+g-2}, v{SC+g-1}")
    a("s_nop 0")
    g = 144
    for j in range(4):
        a(f"v_add_f32 v{sums[j]}, v{sums[j]}, v{SC+g-4+j}")
    tt, jj = divmod(g - 4, 16)
    a(f"v_cvt_pk_bf16_f32 v{KF+8*tt+jj//2}, v{SC+g-4}, v{SC+g-3}")
    a(f"v_cvt_pk_bf16_f32 v{KF+8*tt+jj//2+1}, v{SC+g-2}, v{SC+g-1}")
    a("v_add_f32 v5, v5, v6")
    a("v_add_f32 v90, v90, v91")
    a("v_add_f32 v5, v5, v90")
    a("ds_bpermute_b32 v89, v88, v5")
    a("v_bfe_u32 v6, v1, 2, 2")
    a("v_lshl_add_u32 v6, v3, 2, v6")
    a("v_lshlrev_b32 v6, 6, v6")
    a("v_bfe_u32 v7, v1, 4, 1")
    a("v_lshl_add_u32 v6, v7, 5, v6")
    a("v_and_b32 v7, 3, v1")
    a("v_lshl_add_u32 v6, v7, 3, v6")
    a("v_add_u32 v6, s34, v6")
    OA = SC
    VF = SC + 16
    a(f"s_waitcnt lgkmcnt(0)")
    a("v_add_f32 v5, v5, v89")
    a("v_rcp_f32 v5, v5")
    for t in range(9):
        for sidx in range(2):
            f = VF + 4 * (2 * t + sidx)
            base = (32 * t + 16 * sidx) * 64
            a(f"ds_read_b64_tr_b16 {v(f,2)}, v6 offset:{base}")
            a(f"ds_read_b64_tr_b16 {v(f+2,2)}, v6 offset:{base+8*64}")
    first = True
    for t in range(9):
        for sidx in range(2):
            f = VF + 4 * (2 * t + sidx)
            idx = 2 * t + sidx
            rem = 36 - 2 * (idx + 1)
            a(f"s_waitcnt lgkmcnt({min(rem,15)})")
            a(f"v_mfma_f32_32x32x16_bf16 {v(OA,16)}, {v(f,4)}, {v(KF+8*t+4*sidx,4)}, {'0' if first else v(OA,16)}")
            first = False
    if colsum:
        lab_nc = a.newlabel("L_nocs")
        a("s_cmp_ge_u32 s44, 16")
        a(f"s_cbranch_scc1 {lab_nc}")
        CA = 184; CT = 192
        a("s_waitcnt vmcnt(0)")
        for j in range(4):
            a(f"v_lshlrev_b32 v{CA+2*j}, 16, v{240+j}")
            a(f"v_and_b32 v{CA+2*j+1}, 0xffff0000, v{240+j}")
        for i in range(1, 4):
            for j in range(4):
                a(f"v_lshlrev_b32 v{CT+2*j}, 16, v{240+4*i+j}")
                a(f"v_and_b32 v{CT+2*j+1}, 0xffff0000, v{240+4*i+j}")
            for j in range(4):
                a(f"v_pk_add_f32 {v(CA+2*j,2)}, {v(CA+2*j,2)}, {v(CT+2*j,2)}")
        a("s_nop 1")
        for mode in ("row_ror:4", "row_ror:8"):
            for j in range(8):
                a(f"v_add_f32_dpp v{CT+j}, v{CA+j}, v{CA+j} {mode} row_mask:0xf bank_mask:0xf")
            a("s_nop 1")
            for j in range(8):
                a(f"v_mov_b32 v{CA+j}, v{CT+j}")
            a("s_nop 1")
        for x in (16, 32):
            a(f"v_xor_b32 v200, {x}, v1")
            a("v_lshlrev_b32 v200, 2, v200")
            for j in range(8):
                a(f"ds_bpermute_b32 v{CT+j}, v200, v{CA+j}")
            a("s_waitcnt lgkmcnt(0)")
            for j in range(8):
                a(f"v_add_f32 v{CA+j}, v{CA+j}, v{CT+j}")
        srd(a, 96, 24, WS_CS, 16 * F * 4)
        a(f"s_mul_i32 s3, s44, {F*4}")
        a("s_lshl_b32 s45, s45, 7")
        a("s_add_u32 s3, s3, s45")
        a("v_lshlrev_b32 v200, 5, v1")
        a("s_mov_b64 exec, 15")
        a(f"buffer_store_dwordx4 {v(CA,4)}, v200, s[96:99], s3 offen")
        a(f"buffer_store_dwordx4 {v(CA+4,4)}, v200, s[96:99], s3 offen offset:16")
        a("s_mov_b64 exec, -1")
        a.label(lab_nc)
    a("v_add_u32 v7, s31, v2")
    a(f"v_lshlrev_b32 v7, 11, v7")
    a("v_lshl_add_u32 v7, v3, 3, v7")
    a("v_add_u32 v7, s33, v7")
    a("s_nop 7")
    a("s_nop 7")
    for g in range(4):
        for r in range(4):
            a(f"v_mul_f32 v{OA+4*g+r}, v{OA+4*g+r}, v5")
        a(f"v_cvt_pk_bf16_f32 v{OA+4*g}, v{OA+4*g}, v{OA+4*g+1}")
        a(f"v_cvt_pk_bf16_f32 v{OA+4*g+1}, v{OA+4*g+2}, v{OA+4*g+3}")
        a(f"buffer_store_dwordx2 {v(OA+4*g,2)}, v7, s[8:11], 0 offen offset:{16*g}")
    a.label(end)
    a("s_endpgm")
    return dict(name=name, grid=nwg + npf, block=256, lds=lds, desc=kernel_desc(name, 256 if colsum else 244))


def main():
    a = Asm()
    ks = []
    FUSE = 'nofuse' not in EXP
    SPLIT = 'split' in EXP
    L2PF = int(os.environ.get('L2PF', '0'))
    W1HI = int(os.environ.get('W1HI', '10'))
    W2HI = int(os.environ.get('W2HI', '-1'))
    SKLO = int(os.environ.get('SKLO', '23'))
    QA = 'noqa' not in EXP
    W2T = QA and 'now2t' not in EXP
    if QA:
        sys.path.insert(0, os.path.dirname(os.path.abspath(__file__)))
        import qa
        WOHI = int(os.environ.get('WOHI', '3'))
        ks.append(qa.gen_qa(sys.modules[__name__], a, "qa_kernel", wpf=[("wo", D*D*2)]))
    elif FUSE:
        ks.append(gen_gemm(a, "qkv_kernel", 3 * D, D, 192, 0, "wqkv", "plain", "ws", WS_QKV, NSTAGE=4, RA=8, RBN=4,
                           ln='single', a_arg='x',
                           wpf=[("w1", D*F*2, W1HI), ("wo", D*D*2, W1HI-7)]))
    else:
        ks.append(gen_ln(a, "ln1_kernel", "x", 0, WS_Y1, False, pf=[("wqkv", D*3*D*2), ("wo", D*D*2)]))
        ks.append(gen_gemm(a, "qkv_kernel", 3 * D, D, 192, WS_Y1, "wqkv", "plain", "ws", WS_QKV, NSTAGE=4, RA=8, RBN=4))
    if not QA: ks.append(gen_attn(a, "attn_kernel", pf=[("w1", D*F*2), ("w2", F*D*2), ("wo", D*D*2)] if FUSE else [("w1", D*F*2), ("w2", F*D*2)], colsum=FUSE))
    ks.append(gen_gemm(a, "oproj_kernel", D, D, 64, WS_O, "wo", "plain", "ws", WS_H, res_arg="x", NSTAGE=6, stats_out=FUSE))
    if FUSE:
        ks.append(gen_gemm(a, "ffn1_kernel", F, D, 224, WS_H, "w1", "gelu", "ws", WS_H1, bias_arg="b1", RA=8, RBN=4,
                           ln='double', pre=True, ldo=LDH1, zero_flags=SPLIT, wpf=[("w2", F*D*2, W2HI)] if W2HI else None, otile=QA, w2copy=QA and 'qw2' not in EXP and 'now2t' not in EXP, epi2='oldepi' not in EXP))
    else:
        ks.append(gen_ln(a, "ln2_kernel", "ws", WS_H, WS_Y2, True))
        ks.append(gen_gemm(a, "ffn1_kernel", F, D, 224, WS_Y2, "w1", "gelu", "ws", WS_H1, bias_arg="b1", RA=8, RBN=4))
    if SPLIT:
        ks.append(gen_gemm(a, "ffn2_kernel", D, F, 128, WS_H1, "w2", "plain", "out", 0, res_arg="ws", res_off=WS_H,
                           bias_arg="b2", NSTAGE=5, lda=LDH1, RA=4, RBN=4, splitk=(SKLO, 56 - SKLO)))
    else:
        ks.append(gen_gemm(a, "ffn2_kernel", D, F, 64, WS_H1, "ws" if W2T else "w2", "plain", "out", 0, res_arg="ws", res_off=WS_H,
                           atile=QA, w_off=WS_W2T if W2T else None,
                           bias_arg="b2", NSTAGE=6, lda=LDH1, l2pf=L2PF, RA=int(os.environ.get('F2RA','4')), RBN=32//int(os.environ.get('F2RA','4'))))
    hdr = []
    for k in ks:
        hdr.append(f"; @launch kernel={k['name']} grid=({k['grid']},1,1) block=({k['block']},1,1) lds={k['lds']}")
    txt = "\n".join(hdr) + "\n"
    txt += '.amdgcn_target "amdgcn-amd-amdhsa--gfx950"\n.text\n'
    txt += "\n".join(a.lines) + "\n"
    txt += '.section .rodata,"a"\n'
    for k in ks:
        txt += ".p2align 6\n" + k["desc"]
    open(OUT, "w").write(txt)


if __name__ == "__main__":
    main()
```

```python
import math, struct, os


def gen_qa(G, a, name, wpf=None):
    v, s, srd, hex_f32 = G.v, G.s, G.srd, G.hex_f32
    ARG, EXP = G.ARG, G.EXP
    S, D, F, DH = G.S, G.D, G.F, G.DH
    MB = 1 << 20
    WS_RS = 3 * MB
    KFO = 65536
    WS_KV = 4 * MB
    K = D; N = 3 * D
    BM, BN, BK, NSTAGE = 256, 96, 64, 3
    MT, NTW, RB = 4, 6, 64
    ABYTES = BM * BK * 2; BBYTES = BK * BN * 2; STAGE = ABYTES + BBYTES
    PA, PB = 8, 3
    P = PA + PB
    NS = K // BK
    lda = K * 2
    XQ, PK, PV, OQ, OK_, OV = 49152, 65536, 81920, 98304, 114688, 131072
    RTAB = 147456; CTAB = 149504; STG = 149888; STAT = 149952; NONCE = 149960; STAT2 = 150016
    lds = 163840
    NPOLL = int(os.environ.get('NPOLL', '48'))
    vXb = [2, 3]; vWb = list(range(4, 10)); vXc = [10, 11]; vWc = list(range(12, 18))
    vT = list(range(18, 26))
    FX = [28, 44]; FW = [60, 84]; ACC = 108; CSA = 204; ONE = 212; PFD = 216; PFV = 220
    QF = 224
    XPA, XPB = 221, 222
    DUM = 232
    LA = int(os.environ.get('XLA', '5'))
    QW2 = 'qw2' in EXP
    SIDEATT = os.environ.get('SIDEAT', 'x') == 'att'
    W1S = 164; W2S = [232, 236, 240, 244, 248, 252, 196]
    t0, t1, t2, t3 = vT[0], vT[1], vT[2], vT[3]
    vA = list(range(2, 10)); vB = list(range(10, 13))

    def acc(nt, mt):
        return ACC + 4 * (nt * MT + mt)

    def stamp(i):
        if 'itst' in EXP and i in (4, 5, 6): return
        if 'stamp' in EXP:
            a(f"s_memtime s[{60+2*i}:{61+2*i}]")
            if i >= 4: a("s_waitcnt lgkmcnt(0)")

    def stamp_out():
        if 'stamp' not in EXP: return
        a("s_waitcnt lgkmcnt(0)")
        srd(a, 80, 24, 200 * MB, 1 << 20)
        a("s_lshl_b32 s3, s2, 3")
        a("s_add_u32 s3, s3, s49")
        a("s_lshl_b32 s3, s3, 6")
        a("v_mov_b32 v2, s3")
        a("s_lshl_b32 s3, s101, 4")
        a("s_or_b32 s61, s3, s45")
        a("s_lshl_b32 s3, s51, 8")
        a("s_or_b32 s61, s3, s61")
        for i in range(8):
            a(f"v_mov_b32 v4, s{60+2*i}")
            a(f"v_mov_b32 v5, s{61+2*i}")
            a(f"buffer_store_dwordx2 v[4:5], v2, s[80:83], 0 offen offset:{8*i}")
            a("s_nop 1")

    def stats_load(Dr, T, srow):
        a(f"v_lshlrev_b32 {v(T)}, 5, v1")
        a(f"s_lshl_b32 s3, s{srow}, 11")
        for r in range(2):
            for j in range(2):
                a(f"buffer_load_dwordx4 {v(Dr+8*r+4*j,4)}, {v(T)}, s[4:7], s3 offen offset:{2048*r+16*j}")

    def stats_math(Dr, T):
        A0 = T; A1 = T + 4; O1 = T + 8; AD = T + 9
        a(f"v_mov_b32 {v(O1)}, 0x3f803f80")
        for j in range(4):
            a(f"v_mov_b32 {v(A0+j)}, 0")
        for r in range(2):
            for j in range(8):
                d = v(Dr + 8 * r + j)
                a(f"v_dot2_f32_bf16 {v(A0+2*r)}, {d}, {v(O1)}, {v(A0+2*r)}")
                a(f"v_dot2_f32_bf16 {v(A0+2*r+1)}, {d}, {d}, {v(A0+2*r+1)}")
        a("s_nop 3")
        cur, oth = A0, A1
        for mode in ("quad_perm:[1,0,3,2]", "quad_perm:[2,3,0,1]", "row_half_mirror", "row_mirror"):
            for j in range(4):
                a(f"v_add_f32_dpp {v(oth+j)}, {v(cur+j)}, {v(cur+j)} {mode} row_mask:0xf bank_mask:0xf")
            a("s_nop 1")
            cur, oth = oth, cur
        assert cur == A0
        for x in (16, 32):
            a(f"v_xor_b32 {v(AD)}, {x}, v1")
            a(f"v_lshlrev_b32 {v(AD)}, 2, {v(AD)}")
            for j in range(4):
                a(f"ds_bpermute_b32 {v(A1+j)}, {v(AD)}, {v(A0+j)}")
            a("s_waitcnt lgkmcnt(0)")
            for j in range(4):
                a(f"v_add_f32 {v(A0+j)}, {v(A0+j)}, {v(A1+j)}")
        for r in range(2):
            sm, sq = A0 + 2 * r, A0 + 2 * r + 1
            a(f"v_mul_f32 {v(sm)}, {hex_f32(1.0/K)}, {v(sm)}")
            a(f"v_mul_f32 {v(sq)}, {hex_f32(1.0/K)}, {v(sq)}")
            a(f"v_fma_f32 {v(sq)}, -{v(sm)}, {v(sm)}, {v(sq)}")
            a(f"v_max_f32 {v(sq)}, 0, {v(sq)}")
            a(f"v_add_f32 {v(sq)}, {hex_f32(1e-5)}, {v(sq)}")
            a(f"v_rsq_f32 {v(sq)}, {v(sq)}")
            a("s_nop 0")
            a(f"v_mul_f32 {v(A1)}, {v(sm)}, {v(sq)}")
            a(f"v_mov_b32 {v(sm)}, {v(sq)}")
            a(f"v_sub_f32 {v(sq)}, 0, {v(A1)}")

    def local_stats(Dr, T):
        lp = a.newlabel("L_ls")
        a("s_mov_b32 s101, 1")
        a("s_lshl_b32 s46, s49, 5")
        a("s_add_u32 s47, s46, s98")
        a("s_mov_b32 s52, 16")
        a.label(lp)
        stats_load(Dr, T, 47)
        a("s_waitcnt vmcnt(0)")
        stats_math(Dr, T)
        a("s_lshl_b32 s3, s46, 3")
        a(f"s_add_u32 s3, s3, {RTAB}")
        a(f"v_mov_b32 {v(T+9)}, s3")
        a(f"ds_write_b128 {v(T+9)}, {v(T,4)}")
        a("s_add_u32 s46, s46, 2")
        a("s_add_u32 s47, s47, 2")
        a("s_sub_u32 s52, s52, 1")
        a("s_cmp_lg_u32 s52, 0")
        a(f"s_cbranch_scc1 {lp}")
        a("s_waitcnt lgkmcnt(0)")
        a("s_barrier")

    G.kernel_header(a, name)
    end = a.newlabel("L_end")
    stamp(0)
    lab_loader = a.newlabel("L_loader")
    lab_att = a.newlabel("L_att")
    a("s_cmp_ge_u32 s2, 256")
    a(f"s_cbranch_scc1 {end}")
    a(f"s_load_dwordx2 s[24:25], s[0:1], {ARG['ws']}")
    a(f"s_load_dwordx2 s[58:59], s[0:1], {ARG['x']}")
    a(f"s_load_dwordx2 s[26:27], s[0:1], {ARG['wqkv']}")
    a("s_memrealtime s[34:35]")
    a("s_and_b32 s3, s2, 7")
    a("s_lshr_b32 s46, s2, 3")
    a("s_and_b32 s29, s3, 3")
    a("s_lshl_b32 s29, s29, 3")
    a("s_and_b32 s47, s46, 7")
    a("s_add_u32 s29, s29, s47")
    a("s_lshr_b32 s28, s3, 2")
    a("s_lshl_b32 s28, s28, 2")
    a("s_lshr_b32 s47, s46, 3")
    a("s_add_u32 s28, s28, s47")
    a("s_lshl_b32 s99, s28, 5")
    a("s_add_u32 s99, s99, s29")
    a("s_lshl_b32 s98, s28, 8")
    a("v_and_b32 v1, 63, v0")
    a(f"v_lshrrev_b32 {v(t0)}, 6, v0")
    a("s_nop 0")
    a(f"v_readfirstlane_b32 s49, {v(t0)}")
    a("s_nop 3")
    a("s_and_b32 s30, s49, 3")
    a("s_mov_b32 s45, 1")
    a("s_mov_b32 s101, 0")
    a("s_mov_b32 s50, 0")
    a("s_mov_b32 s51, 0")
    a(f"s_mov_b32 s100, {OQ}")

    def build_srds():
        a("s_waitcnt lgkmcnt(0)")
        srd(a, 4, 58, 0, S * D * 2)
        srd(a, 8, 26, 0, K * N * 2)
        srd(a, 12, 24, G.WS_O, S * D * 2)
        srd(a, 16, 24, WS_KV, 256 * 32768)
        a("s_add_u32 s20, s34, 0x1000000")
        a("s_addc_u32 s21, s35, 0")
        srd(a, 36, 24, WS_RS, 131072)

    a("s_cmp_ge_u32 s49, 4")
    a(f"s_cbranch_scc1 {lab_loader}")

    build_srds()
    a("s_lshl_b32 s3, s2, 2")
    a("s_add_u32 s93, s3, s30")
    for q, (arg, nbytes) in enumerate(wpf):
        a(f"s_load_dwordx2 s[{76+2*q}:{77+2*q}], s[0:1], {ARG[arg]}")
    a("s_waitcnt lgkmcnt(0)")
    def wsel(q):
        arg, nbytes = wpf[q]
        srd(a, 84, 76 + 2 * q, 0, nbytes)
        a(f"s_mul_i32 s92, s93, {nbytes//1024}")
    wsel(0)
    if 'qcpf' in EXP:
        lh = a.newlabel("L_pc")
        a("s_getpc_b64 s[46:47]")
        a.label(lh)
        a(f"s_sub_u32 s46, s46, {lh}-{name}")
        a("s_subb_u32 s47, s47, 0")
        a("s_lshr_b32 s3, s2, 3")
        a("s_lshl_b32 s3, s3, 2")
        a("s_add_u32 s3, s3, s30")
        a("s_lshl_b32 s3, s3, 10")
        a(f"s_min_u32 s3, s3, {end}-{name}-1024")
        a(f"v_lshlrev_b32 {v(t0)}, 4, v1")
        a(f"v_add_u32 {v(t0)}, s3, {v(t0)}")
        a(f"global_load_dwordx4 {v(DUM,4)}, {v(t0)}, s[46:47]")
    SPF = 'oldxla' not in EXP
    if SPF:
        a("s_lshr_b32 s3, s2, 3")
        a("s_lshl_b32 s3, s3, 2")
        a("s_add_u32 s3, s3, s30")
        a(f"v_lshrrev_b32 {v(t0)}, 2, v1")
        a(f"v_and_b32 {v(t1)}, 3, v1")
        a(f"v_lshlrev_b32 {v(t1)}, 7, {v(t1)}")
        a("s_lshr_b32 s46, s28, 2")
        a("s_lshl_b32 s46, s46, 10")
        a("s_lshl_b32 s47, s3, 4")
        a("s_add_u32 s46, s46, s47")
        a("s_lshl_b32 s40, s46, 11")
        a("s_sub_u32 s46, s3, 64")
        a("s_lshr_b32 s47, s46, 4")
        a("s_and_b32 s46, s46, 15")
        a(f"s_mul_i32 s46, s46, {16*N*2}")
        a("s_lshl_b32 s47, s47, 11")
        a("s_add_u32 s46, s46, s47")
        a("s_lshr_b32 s47, s29, 3")
        a("s_lshl_b32 s47, s47, 9")
        a("s_add_u32 s46, s46, s47")
        a("s_cmp_ge_u32 s3, 112")
        a("s_cselect_b32 s46, 0x60000000, s46")
        a(f"s_mov_b32 s41, {256*N*2}")
        a(f"s_mov_b32 s47, {N*2}")
        a("s_cmp_lt_u32 s3, 64")
        a("s_cselect_b32 s40, s40, s46")
        a("s_cselect_b32 s41, 512, s41")
        a("s_cselect_b32 s47, 2048, s47")
        for i in range(4):
            a(f"s_cselect_b32 s{88+i}, s{4+i}, s{8+i}")
        a(f"v_mul_u32_u24 {v(t0)}, s47, {v(t0)}")
        a(f"v_add_u32 {v(XPA)}, {v(t0)}, {v(t1)}")

        def spf():
            a(f"buffer_load_dword {v(DUM)}, {v(XPA)}, s[88:91], s40 offen")
            a("s_add_u32 s40, s40, s41")

        def xpf(): pass
        SPE = eval(os.environ.get('SPE', '(99,99,15,11,7)'))
        if len(SPE) == 5:
            a("s_cselect_b32 exec_lo, 0xcccccccc, -1")
            a("s_cselect_b32 exec_hi, 0xcccccccc, -1")
            a("s_lshr_b32 s3, s41, 1")
            a("s_sub_u32 s40, s40, s3")
        for i, e in enumerate(SPE):
            if e == 99: spf()
            if i == 0 and len(SPE) == 5: a("s_mov_b64 exec, -1")
    else:
        SPE = ()
        a("s_lshr_b32 s3, s2, 3")
        a("s_lshl_b32 s3, s3, 2")
        a("s_add_u32 s3, s3, s30")
        a("s_lshr_b32 s46, s28, 2")
        a("s_lshl_b32 s46, s46, 10")
        a("s_lshl_b32 s47, s3, 3")
        a("s_add_u32 s46, s46, s47")
        a(f"v_lshrrev_b32 {v(t0)}, 3, v1")
        a(f"v_add_u32 {v(t0)}, s46, {v(t0)}")
        a(f"v_lshlrev_b32 {v(t0)}, 11, {v(t0)}")
        a(f"v_and_b32 {v(t1)}, 7, v1")
        a(f"v_lshl_add_u32 {v(XPA)}, {v(t1)}, 4, {v(t0)}")
        a("s_lshr_b32 s46, s3, 5")
        a("s_and_b32 s47, s3, 31")
        a("s_lshl_b32 s47, s47, 1")
        a(f"v_lshrrev_b32 {v(t0)}, 5, v1")
        a(f"v_add_u32 {v(t0)}, s47, {v(t0)}")
        a(f"v_mul_u32_u24 {v(t0)}, {N*2}, {v(t0)}")
        a(f"v_and_b32 {v(t1)}, 31, v1")
        a(f"v_lshl_add_u32 {v(t0)}, {v(t1)}, 4, {v(t0)}")
        a("s_lshl_b32 s46, s46, 11")
        a("s_lshr_b32 s47, s29, 3")
        a("s_lshl_b32 s47, s47, 9")
        a("s_add_u32 s46, s46, s47")
        a("s_cmp_ge_u32 s3, 96")
        a("s_cselect_b32 s46, 0x7f000000, s46")
        a(f"v_add_u32 {v(XPB)}, s46, {v(t0)}")
        a(f"s_mov_b32 s40, {2*BK*2}")
        a(f"s_mov_b32 s41, {2*BK*N*2}")

        def xpf():
            if LA == 0: return
            a(f"buffer_load_dwordx4 {v(DUM,4)}, {v(XPA)}, s[4:7], s40 offen")
            a(f"buffer_load_dwordx4 {v(DUM,4)}, {v(XPB)}, s[8:11], s41 offen")
            a(f"s_add_u32 s40, s40, {BK*2}")
            a(f"s_add_u32 s41, s41, {BK*N*2}")
            a(f"s_min_u32 s40, s40, {(NS-1)*BK*2}")
            a(f"s_min_u32 s41, s41, {(NS-1)*BK*N*2}")
        for _ in range(2, LA + 1):
            xpf()
    lab_cpass = a.newlabel("L_cpass")
    a.label(lab_cpass)
    a(f"v_lshlrev_b32 {v(PFV)}, 4, v1")
    a(f"v_and_b32 {v(t0)}, 15, v1")
    a("s_lshl_b32 s3, s30, 6")
    a(f"v_add_u32 {v(t0)}, s3, {v(t0)}")
    a(f"v_lshlrev_b32 {v(t0)}, 7, {v(t0)}")
    a(f"v_lshrrev_b32 {v(t1)}, 4, v1")
    a(f"v_bfe_u32 {v(t2)}, v1, 1, 3")
    a(f"v_xor_b32 {v(t3)}, {v(t1)}, {v(t2)}")
    a(f"v_lshl_add_u32 {v(vXb[0])}, {v(t3)}, 4, {v(t0)}")
    a(f"v_xor_b32 {v(t3)}, 4, {v(t3)}")
    a(f"v_lshl_add_u32 {v(vXb[1])}, {v(t3)}, 4, {v(t0)}")
    a(f"v_bfe_u32 {v(t0)}, v1, 2, 2")
    a(f"v_lshl_add_u32 {v(t2)}, {v(t1)}, 3, {v(t0)}")
    a(f"v_and_b32 {v(t3)}, 1, {v(t1)}")
    a(f"v_mul_u32_u24 {v(t2)}, {RB}, {v(t2)}")
    a(f"v_and_b32 {v(t0)}, 3, v1")
    a(f"v_lshl_add_u32 {v(t2)}, {v(t0)}, 3, {v(t2)}")
    a(f"v_add_u32 {v(t2)}, {ABYTES}, {v(t2)}")
    for nt in range(NTW):
        blk, p = nt >> 1, nt & 1
        a(f"v_xor_b32 {v(t0)}, {p}, {v(t3)}")
        a(f"v_lshl_add_u32 {v(t0)}, {v(t0)}, 5, {v(t2)}")
        a(f"v_add_u32 {v(vWb[nt])}, {blk*64*RB}, {v(t0)}")
    for i in range(4 * MT * NTW + 8):
        a(f"v_mov_b32 v{ACC+i}, 0")
    for i in range(4):
        a(f"v_mov_b32 {v(ONE+i)}, 0x3f803f80")
    a("s_mov_b32 s42, 0")

    def set_cur():
        for kk in range(2):
            a(f"v_add_u32 {v(vXc[kk])}, s42, {v(vXb[kk])}")
        for nt in range(NTW):
            a(f"v_add_u32 {v(vWc[nt])}, s42, {v(vWb[nt])}")
        a(f"s_add_u32 s42, s42, {STAGE}")
        a(f"s_cmp_ge_u32 s42, {STAGE*NSTAGE}")
        a("s_cselect_b32 s42, 0, s42")

    def read_list(kk, f):
        L = []
        for nt in range(NTW):
            if nt < MT:
                L.append(f"ds_read_b128 {v(FX[f]+4*nt,4)}, {v(vXc[kk])} offset:{nt*2048}")
            for rd in range(2):
                L.append(f"ds_read_b64_tr_b16 {v(FW[f]+4*nt+2*rd,2)}, {v(vWc[nt])} offset:{kk*32*RB+rd*4*RB}")
        return L

    def mfma_list(f):
        L = []
        for nt in range(NTW):
            for mt in range(MT):
                L.append(f"v_mfma_f32_16x16x32_bf16 {v(acc(nt,mt),4)}, {v(FW[f]+4*nt,4)}, {v(FX[f]+4*mt,4)}, {v(acc(nt,mt),4)}")
        return L

    def cs_block(f, wv=None):
        if 'nocs' in EXP: return
        if wv is not None:
            a(f"v_mfma_f32_16x16x32_bf16 {v(CSA,4)}, {v(FW[f]+4*wv,4)}, {v(ONE,4)}, {v(CSA,4)}")
            if wv < 2:
                a(f"v_mfma_f32_16x16x32_bf16 {v(CSA+4,4)}, {v(FW[f]+4*(wv+4),4)}, {v(ONE,4)}, {v(CSA+4,4)}")
            return
        done = a.newlabel("L_cs")
        for w in range(4):
            nx = a.newlabel("L_csn")
            if w < 3:
                a(f"s_cmp_lg_u32 s30, {w}")
                a(f"s_cbranch_scc1 {nx}")
            a(f"v_mfma_f32_16x16x32_bf16 {v(CSA,4)}, {v(FW[f]+4*w,4)}, {v(ONE,4)}, {v(CSA,4)}")
            if w < 2:
                a(f"v_mfma_f32_16x16x32_bf16 {v(CSA+4,4)}, {v(FW[f]+4*(w+4),4)}, {v(ONE,4)}, {v(CSA+4,4)}")
            if w < 3:
                a(f"s_branch {done}")
                a.label(nx)
        a.label(done)

    def inter(kk, fr, fm, wv=None):
        R = read_list(kk, fr); Mm = mfma_list(fm)
        ri = 0
        for i in range(len(Mm)):
            a(Mm[i])
            if ri < len(R): a(R[ri]); ri += 1
        while ri < len(R): a(R[ri]); ri += 1
        cs_block(fm, wv)

    for e in SPE:
        if e == 98: spf()
    stamp(1)
    a("s_barrier")
    stamp(2)
    for e in SPE:
        if e == 97: spf()
    set_cur()
    for x in read_list(0, 0): a(x)
    a("s_waitcnt lgkmcnt(0)")
    inter(1, 1, 0)
    a("s_waitcnt lgkmcnt(0)")
    a(f"s_mov_b32 s48, {NS-1}")
    WOHI = int(os.environ.get('WOHI', '3'))
    EV = [(12, 'pub')] + [(WOHI - i, 'wo') for i in range(wpf[0][1] >> 20)] + [(e, 'spf') for e in SPE if e < 90]
    EV.sort(key=lambda e: -e[0])
    assert len(set(e[0] for e in EV)) == len(EV)
    a(f"s_mov_b32 s94, {EV[0][0]}")
    loops = [a.newlabel("L_cloop") for _ in range(4)]
    ldone = a.newlabel("L_cdone")
    for w in range(1, 4):
        a(f"s_cmp_eq_u32 s30, {w}")
        a(f"s_cbranch_scc1 {loops[w]}")
    rare = []
    for w in range(4):
        a.label(loops[w])
        a("s_barrier")
        set_cur()
        inter(0, 0, 1, w)
        xpf()
        a("s_waitcnt lgkmcnt(0)")
        inter(1, 1, 0, w)
        lpub = a.newlabel("L_pub"); lback = a.newlabel("L_pubb")
        a("s_cmp_eq_u32 s48, s94")
        a(f"s_cbranch_scc1 {lpub}")
        a.label(lback)
        rare.append(('pub', w, lpub, lback))
        if 'itst' in EXP:
            for sl, it in ((4, 12), (5, 8), (6, 4)):
                lx = a.newlabel("L_it")
                a(f"s_cmp_lg_u32 s48, {it}")
                a(f"s_cbranch_scc1 {lx}")
                a(f"s_memtime s[{60+2*sl}:{61+2*sl}]")
                a.label(lx)
        a("s_waitcnt lgkmcnt(0)")
        a("s_sub_u32 s48, s48, 1")
        a("s_cmp_lg_u32 s48, 0")
        a(f"s_cbranch_scc1 {loops[w]}")
        a(f"s_branch {ldone}")
    for kind, x, lab, lb in rare:
        a.label(lab)
        for ev in range(len(EV)):
            nxt_ = EV[ev+1][0] if ev + 1 < len(EV) else 0
            if EV[ev][1] == 'pub':
                pub_next = nxt_
                continue
            nx = a.newlabel("L_ev")
            a(f"s_cmp_lg_u32 s48, {EV[ev][0]}")
            a(f"s_cbranch_scc1 {nx}")
            if EV[ev][1] == 'wo':
                a(f"buffer_load_dwordx4 {v(DUM,4)}, {v(PFV)}, s[84:87], s92 offen")
                a("s_add_u32 s92, s92, 1024")
            else:
                spf()
            a(f"s_mov_b32 s94, {nxt_}")
            a(f"s_branch {lb}")
            a.label(nx)
        a(f"s_mov_b32 s94, {pub_next}")
        if True:
            a("s_cmp_lg_u32 s45, 1")
            a(f"s_cbranch_scc1 {lb}")
            a("s_memrealtime s[22:23]")
            a(f"v_and_b32 {v(t1)}, 1, v1")
            a(f"v_lshlrev_b32 {v(t0)}, 3, {v(t1)}")
            a(f"v_add_u32 {v(t0)}, {STG + 16*x}, {v(t0)}")
            a(f"ds_read_b64 {v(PFD,2)}, {v(t0)}")
            a("s_lshl_b32 s3, s29, 3")
            a("s_add_u32 s3, s3, s98")
            a(f"s_add_u32 s3, s3, {2*x}")
            a("s_lshl_b32 s3, s3, 4")
            a(f"v_lshlrev_b32 {v(t0)}, 4, {v(t1)}")
            a("s_waitcnt lgkmcnt(0)")
            a(f"v_mov_b32 {v(PFD+2)}, s22")
            a(f"v_mov_b32 {v(PFD+3)}, s23")
            a("s_mov_b64 exec, 3")
            if 'nostatflag' not in EXP: a(f"buffer_store_dwordx4 {v(PFD,4)}, {v(t0)}, s[36:39], s3 offen sc0 sc1")
            a("s_mov_b64 exec, -1")
        a(f"s_branch {lb}")
    a.label(ldone)
    stamp(3)
    cs_block(1)
    for x in mfma_list(1): a(x)
    a(f"v_lshrrev_b32 {v(t0)}, 4, v1")
    a(f"v_lshlrev_b32 {v(t0)}, 4, {v(t0)}")
    a("s_lshl_b32 s3, s30, 6")
    a(f"s_add_u32 s3, s3, {CTAB}")
    a(f"v_add_u32 {v(t1)}, s3, {v(t0)}")
    a("s_mov_b32 exec_lo, 0x00010001")
    a("s_mov_b32 exec_hi, 0x00010001")
    a(f"ds_write_b128 {v(t1)}, {v(CSA,4)}")
    lcs = a.newlabel("L_cs2")
    a("s_cmp_ge_u32 s30, 2")
    a(f"s_cbranch_scc1 {lcs}")
    a(f"ds_write_b128 {v(t1)}, {v(CSA+4,4)} offset:256")
    a.label(lcs)
    a("s_mov_b64 exec, -1")
    a(f"v_add_u32 {v(t0)}, {CTAB}, {v(t0)}")
    a(f"v_mov_b32 {v(t1)}, {STAT}")
    a("s_waitcnt lgkmcnt(0)")
    a("s_barrier")
    RT = FX[0]; RQ = RT + 8; CS = RQ + 8; GE = CS + 24
    assert GE + 8 <= ACC
    a(f"ds_read_b32 {v(t2)}, {v(t1)}")
    for nt in range(NTW):
        a(f"ds_read_b128 {v(CS+4*nt,4)}, {v(t0)} offset:{64*nt}")
    a("s_waitcnt lgkmcnt(0)")
    a(f"v_readfirstlane_b32 s3, {v(t2)}")
    a("s_nop 3")
    lok = a.newlabel("L_stok")
    a("s_cmp_eq_u32 s3, 1")
    a(f"s_cbranch_scc1 {lok}")
    local_stats(GE + 8, GE + 24)
    a.label(lok)
    a(f"v_and_b32 {v(t2)}, 15, v1")
    a("s_lshl_b32 s3, s30, 6")
    a(f"v_add_u32 {v(t2)}, s3, {v(t2)}")
    a(f"v_lshlrev_b32 {v(t0)}, 3, {v(t2)}")
    a(f"v_add_u32 {v(t0)}, {RTAB}, {v(t0)}")
    for mt in range(MT):
        a(f"ds_read_b64 {v(RT+2*mt,2)}, {v(t0)} offset:{128*mt}")
    a(f"v_lshlrev_b32 {v(t2)}, 6, {v(t2)}")
    a(f"v_add_u32 {v(t2)}, s100, {v(t2)}")
    a(f"v_lshrrev_b32 {v(t3)}, 4, v1")
    DV = vT[4]; DQ0 = vT[5]; DQ1 = vT[6]
    a(f"v_lshl_add_u32 {v(DV)}, {v(t3)}, 3, {v(t2)}")
    a(f"v_lshrrev_b32 {v(t0)}, 1, {v(t3)}")
    a(f"v_bfe_u32 {v(t1)}, v1, 2, 2")
    a(f"v_xor_b32 {v(t0)}, {v(t0)}, {v(t1)}")
    a(f"v_lshl_add_u32 {v(t0)}, {v(t0)}, 4, {v(t2)}")
    a(f"v_and_b32 {v(t1)}, 1, {v(t3)}")
    a(f"v_lshl_add_u32 {v(DQ0)}, {v(t1)}, 3, {v(t0)}")
    a(f"v_xor_b32 {v(DQ1)}, 32, {v(DQ0)}")
    sc = (DH ** -0.5) * math.log2(math.e)
    a(f"s_mov_b32 s52, {hex_f32(sc)}")
    a("s_waitcnt lgkmcnt(0)")
    for i in range(8):
        a(f"v_mul_f32 {v(RQ+i)}, s52, {v(RT+i)}")
    for nt in range(NTW):
        R_ = RQ if nt < 2 else RT
        for mp in range(0, MT, 2):
            c0 = acc(nt, mp)
            for q in range(2):
                for j in range(2):
                    a(f"v_pk_mul_f32 {v(GE+4*q+2*j,2)}, {v(CS+4*nt+2*j,2)}, {v(R_+2*(mp+q),2)} op_sel:[0,1] op_sel_hi:[1,1]")
            for q in range(2):
                for j in range(2):
                    cc = v(c0 + 4 * q + 2 * j, 2)
                    a(f"v_pk_fma_f32 {cc}, {cc}, {v(R_+2*(mp+q),2)}, {v(GE+4*q+2*j,2)} op_sel:[0,0,0] op_sel_hi:[1,0,1]")
            for j in range(4):
                a(f"v_cvt_pk_bf16_f32 {v(c0+j)}, {v(c0+2*j)}, {v(c0+2*j+1)}")
            for q in range(2):
                sec = nt >> 1
                if sec == 2:
                    a(f"ds_write_b64 {v(DV)}, {v(c0+2*q,2)} offset:{(mp+q)*1024 + sec*16384 + 32*(nt&1)}")
                else:
                    a(f"ds_write_b64 {v(DQ1 if nt & 1 else DQ0)}, {v(c0+2*q,2)} offset:{(mp+q)*1024 + sec*16384}")
    a("s_waitcnt vmcnt(0) lgkmcnt(0)")
    stamp(4)
    a("s_barrier")
    a(f"s_branch {lab_att}")

    a.label(lab_loader)
    a("s_setprio 2")
    a(f"s_load_dwordx2 s[94:95], s[0:1], {ARG['w1']}")
    a(f"s_load_dwordx2 s[96:97], s[0:1], {ARG['w2']}")
    LSD = 40; LST = 56; LNO = 68; LTB = 72
    a("s_lshl_b32 s3, s30, 6")
    a(f"v_lshrrev_b32 {v(t0)}, 3, v1")
    a(f"v_add_u32 {v(t0)}, s3, {v(t0)}")
    for i in range(PA):
        a(f"v_add_u32 {v(t1)}, {8*i}, {v(t0)}")
        a(f"v_lshrrev_b32 {v(t2)}, 1, {v(t1)}")
        a(f"v_and_b32 {v(t2)}, 7, {v(t2)}")
        a(f"v_and_b32 {v(t3)}, 7, v1")
        a(f"v_xor_b32 {v(t2)}, {v(t2)}, {v(t3)}")
        a(f"v_add_u32 {v(t1)}, s98, {v(t1)}")
        a(f"v_mul_u32_u24 {v(t1)}, {lda}, {v(t1)}")
        a(f"v_lshl_add_u32 {v(vA[i])}, {v(t2)}, 4, {v(t1)}")
    a("s_lshl_b32 s3, s29, 6")
    for i in range(PB):
        a(f"s_mul_i32 s46, s30, {PB}")
        a(f"s_add_u32 s46, s46, {i}")
        a("s_lshr_b32 s47, s46, 2")
        a("s_and_b32 s46, s46, 3")
        a("s_lshl_b32 s46, s46, 4")
        a("s_lshl_b32 s47, s47, 11")
        a("s_add_u32 s47, s47, s3")
        a(f"v_lshrrev_b32 {v(t0)}, {3 if 'bfull' in EXP else 2}, v1")
        a(f"v_add_u32 {v(t0)}, s46, {v(t0)}")
        a(f"v_and_b32 {v(t1)}, {7 if 'bfull' in EXP else 3}, v1")
        if 'bfull' in EXP: a("s_and_b32 s47, s47, 0xffffff80")
        a(f"v_bfe_u32 {v(t2)}, {v(t0)}, 3, 1")
        a(f"v_lshlrev_b32 {v(t2)}, 1, {v(t2)}")
        a(f"v_xor_b32 {v(t1)}, {v(t1)}, {v(t2)}")
        a(f"v_mul_u32_u24 {v(t0)}, {N*2}, {v(t0)}")
        a(f"v_lshl_add_u32 {v(t0)}, {v(t1)}, 4, {v(t0)}")
        a(f"v_add_u32 {v(vB[i])}, s47, {v(t0)}")
    a(f"s_mul_i32 s31, s30, {PA*1024}")
    a(f"s_mul_i32 s32, s30, {PB*1024}")
    a(f"s_add_u32 s32, s32, {ABYTES}")
    build_srds()
    a("s_lshl_b32 s46, s29, 3")
    a("s_add_u32 s46, s46, s98")
    a("s_lshl_b32 s47, s30, 1")
    a("s_add_u32 s47, s47, s46")
    stats_load(LSD, LST, 47)
    lab_lpass = a.newlabel("L_lpass")
    a.label(lab_lpass)
    a("s_mov_b32 s40, 0")
    a("s_mov_b32 s41, 0")
    a("s_mov_b32 s43, 0")
    a("s_mov_b32 s53, 0")

    def dma():
        a("s_add_u32 s33, s43, s31")
        for i in range(PA):
            a(f"s_add_u32 m0, s33, {i*1024}")
            a("s_nop 0")
            a(f"buffer_load_dwordx4 {v(vA[i])}, s[4:7], s40 offen lds")
        a("s_add_u32 s33, s43, s32")
        for i in range(PB):
            a(f"s_add_u32 m0, s33, {i*1024}")
            a("s_nop 0")
            a(f"buffer_load_dwordx4 {v(vB[i])}, s[8:11], s41 offen lds")
        a(f"s_add_u32 s40, s40, {BK*2}")
        a(f"s_add_u32 s41, s41, {BK*N*2}")
        a(f"s_add_u32 s43, s43, {STAGE}")
        a(f"s_cmp_ge_u32 s43, {STAGE*NSTAGE}")
        a("s_cselect_b32 s43, 0, s43")

    nloop = NS - NSTAGE + 1
    lab_l2p = a.newlabel("L_l2p"); lab_lend = a.newlabel("L_lend")
    a("s_cmp_lg_u32 s45, 1")
    a(f"s_cbranch_scc1 {lab_l2p}")
    stamp(1)
    Q = []
    def dmaq(j):
        dma(); Q.extend([('d', j)] * P)
    def waitq(*tags):
        last = max(i for i, x in enumerate(Q) if x in tags)
        a(f"s_waitcnt vmcnt({len(Q) - 1 - last})")
    for j in range(NSTAGE - 1):
        dmaq(j)
    stamp(2)
    SA1, SA2 = 218, 219
    a("s_lshl_b32 s92, s99, 2")
    a("s_add_u32 s92, s92, s30")
    srd(a, 76, 94, 0, D * F * 2)
    srd(a, 88, 96, 0, F * D * 2)
    a(f"v_lshrrev_b32 {v(t0)}, 3, v1")
    a(f"v_and_b32 {v(t1)}, 7, v1")
    a(f"v_lshlrev_b32 {v(t1)}, 4, {v(t1)}")
    a(f"v_lshl_add_u32 {v(SA2)}, {v(t0)}, 11, {v(t1)}")
    a("s_lshr_b32 s3, s92, 6")
    a("s_lshl_b32 s3, s3, 7")
    a("s_and_b32 s46, s92, 63")
    a(f"s_mul_i32 s46, s46, {56*D*2}")
    a("s_add_u32 s3, s3, s46")
    a(f"v_add_u32 {v(SA2)}, s3, {v(SA2)}")
    a("s_min_u32 s46, s92, 895")
    a(f"s_mul_hi_u32 s93, s46, {((1 << 32) + 55) // 56}")
    a("s_mul_i32 s3, s93, 56")
    a("s_sub_u32 s84, s46, s3")
    a(f"v_mul_u32_u24 {v(t0)}, {F*2}, {v(t0)}")
    a(f"v_add_u32 {v(SA1)}, {v(t0)}, {v(t1)}")
    a(f"s_mul_i32 s3, s93, {64*F*2}")
    a("s_lshl_b32 s46, s84, 7")
    a("s_add_u32 s3, s3, s46")
    a(f"v_add_u32 {v(SA1)}, s3, {v(SA1)}")
    side = [(W1S + 4 * j, SA1, 76, 8 * j * F * 2) for j in range(8)] + ([(W2S[j], SA2, 88, 8 * j * D * 2) for j in range(7)] if QW2 else [])
    SIDE0 = int(os.environ.get('SIDE0', '16')); SPI = int(os.environ.get('SPI', '1'))
    def sideq():
        if not side: return
        d, av, sr, off = side.pop(0)
        a(f"s_mov_b32 s3, {off}")
        a(f"buffer_load_dwordx4 {v(d,4)}, {v(av)}, s[{sr}:{sr+3}], s3 offen")
        Q.append('s')
    for j in range(NS):
        c = nloop - j
        waitq(('d', j), 't')
        a("s_barrier")
        if c == 2:
            l1 = a.newlabel("L_l1")
            a("s_cmp_lg_u32 s30, 0")
            a(f"s_cbranch_scc1 {l1}")
            a(f"v_lshlrev_b32 {v(t0)}, 4, v1")
            a("s_lshl_b32 s3, s28, 12")
            for jj in range(4):
                a(f"buffer_load_dwordx4 {v(LTB+4*jj,4)}, {v(t0)}, s[36:39], s3 offen offset:{1024*jj} sc0 sc1")
            a.label(l1)
            Q.append('t')
        if c == 1:
            l2 = a.newlabel("L_l2")
            a("s_cmp_lg_u32 s30, 0")
            a(f"s_cbranch_scc1 {l2}")
            a("s_mov_b64 s[54:55], exec")
            for jj in range(4):
                a(f"v_cmp_lt_u64 vcc, s[34:35], {v(LTB+4*jj+2,2)}")
                a(f"v_cmp_gt_u64 s[56:57], s[20:21], {v(LTB+4*jj+2,2)}")
                a("s_nop 3")
                a("s_and_b64 s[54:55], s[54:55], vcc")
                a("s_and_b64 s[54:55], s[54:55], s[56:57]")
            a("s_cmp_lg_u64 s[54:55], exec")
            a(f"s_cbranch_scc1 {l2}")
            a("s_mov_b32 s53, 1")
            a(f"v_lshlrev_b32 {v(t0)}, 3, v1")
            a(f"v_add_u32 {v(t0)}, {RTAB}, {v(t0)}")
            for jj in range(4):
                a(f"ds_write_b64 {v(t0)}, {v(LTB+4*jj,2)} offset:{512*jj}")
            a("s_waitcnt lgkmcnt(0)")
            a.label(l2)
        if j + NSTAGE - 1 < NS:
            dmaq(j + NSTAGE - 1)
        if j >= SIDE0:
            for _ in range(SPI): sideq()
        if j == 0:
            stats_math(LSD, LST)
            a("s_lshl_b32 s3, s30, 4")
            a(f"s_add_u32 s3, s3, {STG}")
            a(f"v_mov_b32 {v(LST+9)}, s3")
            a(f"ds_write_b128 {v(LST+9)}, {v(LST,4)}")
            a("s_waitcnt lgkmcnt(0)")
    while side and not SIDEATT: sideq()
    a(f"s_branch {lab_lend}")
    a.label(lab_l2p)
    for _ in range(NSTAGE - 1):
        dma()
    a(f"s_mov_b32 s48, {nloop}")
    lloop = a.newlabel("L_lloop")
    a.label(lloop)
    a(f"s_waitcnt vmcnt({(NSTAGE-2)*P})")
    a("s_barrier")
    dma()
    a("s_sub_u32 s48, s48, 1")
    a("s_cmp_lg_u32 s48, 0")
    a(f"s_cbranch_scc1 {lloop}")
    for j in range(NS - NSTAGE + 1, NS):
        a(f"s_waitcnt vmcnt({(NS-1-j)*P})")
        a("s_barrier")
    a.label(lab_lend)
    stamp(3)
    l4 = a.newlabel("L_l4")
    a(f"v_mov_b32 {v(t1)}, {STAT}")
    a("s_cmp_lg_u32 s30, 0")
    a(f"s_cbranch_scc1 {l4}")
    a(f"v_mov_b32 {v(t0)}, s53")
    a(f"ds_write_b32 {v(t1)}, {v(t0)}")
    for j in range(4):
        a(f"v_mov_b32 {v(LTB+j)}, 0")
    a(f"ds_write_b128 {v(t1)}, {v(LTB,4)} offset:{STAT2-STAT}")
    a("s_waitcnt lgkmcnt(0)")
    a.label(l4)
    a("s_barrier")
    a(f"ds_read_b32 {v(t2)}, {v(t1)}")
    a("s_waitcnt lgkmcnt(0)")
    a(f"v_readfirstlane_b32 s3, {v(t2)}")
    a("s_nop 3")
    lok = a.newlabel("L_stok")
    a("s_cmp_eq_u32 s3, 1")
    a(f"s_cbranch_scc1 {lok}")
    local_stats(LSD, LST)
    a.label(lok)
    stamp(4)
    a("s_barrier")

    a.label(lab_att)
    CM, MK1, MK2, SA, SB = 16, 32, 48, 64, 80
    KB_ = [96, 104]; VB_ = [112, 120]; PP = [128, 136]; OA = 144; SUM = 160
    CA = 64; CT = 72; PUB = 200; VM = 216
    vK1 = [2, 3]; vV1 = 4; vK2 = [5, 6]; vV2 = 7; vQQ = 8; vHH = 9; vX32 = 10; vNEG = 11; vL16 = 12
    T0, T1, T2 = 13, 14, 15
    vNO = 217
    lab_start = a.newlabel("L_astart"); lab_reload = a.newlabel("L_reload"); lab_fin = a.newlabel("L_fin")
    a("s_setprio 0")
    a("s_sub_u32 s3, 11, s49")
    a("s_cmp_lt_u32 s49, 4")
    a("s_cselect_b32 s44, s49, s3")
    a(f"v_and_b32 {v(vQQ)}, 31, v1")
    a(f"v_lshrrev_b32 {v(vHH)}, 5, v1")
    a(f"v_lshlrev_b32 {v(vL16)}, 4, v1")
    a(f"v_xor_b32 {v(vX32)}, 32, v1")
    a(f"v_lshlrev_b32 {v(vX32)}, 2, {v(vX32)}")
    a(f"v_mov_b32 {v(vNEG)}, 0xf149f2ca")
    a(f"v_mov_b32 {v(VM)}, 0")
    a(f"v_bfe_u32 {v(T0)}, v1, 2, 2")
    a(f"v_xor_b32 {v(T0)}, {v(T0)}, {v(vHH)}")
    a(f"v_lshlrev_b32 {v(T1)}, 6, {v(vQQ)}")
    a(f"v_lshl_add_u32 {v(T0)}, {v(T0)}, 4, {v(T1)}")
    a("s_lshl_b32 s3, s44, 11")
    a(f"s_add_u32 s46, s3, {OK_ - 7*2048}")
    a(f"v_add_u32 {v(vK1[0])}, s46, {v(T0)}")
    a(f"v_xor_b32 {v(vK1[1])}, 32, {v(vK1[0])}")
    a(f"s_add_u32 s46, s3, {PK}")
    a(f"v_add_u32 {v(vK2[0])}, s46, {v(T0)}")
    a(f"v_xor_b32 {v(vK2[1])}, 32, {v(vK2[0])}")
    a(f"s_add_u32 s46, s3, {OQ}")
    a(f"v_add_u32 {v(T0)}, s46, {v(T0)}")
    a(f"v_bfe_u32 {v(T1)}, v1, 2, 2")
    a(f"v_lshl_add_u32 {v(T1)}, {v(vHH)}, 2, {v(T1)}")
    a(f"v_lshlrev_b32 {v(T1)}, 6, {v(T1)}")
    a(f"v_bfe_u32 {v(T2)}, v1, 4, 1")
    a(f"v_lshl_add_u32 {v(T1)}, {v(T2)}, 5, {v(T1)}")
    a(f"v_and_b32 {v(T2)}, 3, v1")
    a(f"v_lshl_add_u32 {v(T1)}, {v(T2)}, 3, {v(T1)}")
    a(f"s_add_u32 s46, s3, {OV - 7*2048}")
    a(f"v_add_u32 {v(vV1)}, s46, {v(T1)}")
    a(f"s_add_u32 s46, s3, {PV}")
    a(f"v_add_u32 {v(vV2)}, s46, {v(T1)}")
    a("s_cmp_lg_u32 s45, 1")
    a(f"s_cbranch_scc1 {lab_reload}")
    a(f"ds_read_b128 {v(QF,4)}, {v(T0)}")
    a(f"v_xor_b32 {v(T0)}, 32, {v(T0)}")
    a(f"ds_read_b128 {v(QF+4,4)}, {v(T0)}")
    a("s_mov_b32 s33, 1")
    lab_pubw = a.newlabel("L_pubw")
    a("s_cmp_lt_u32 s49, 4")
    a(f"s_cbranch_scc1 {lab_pubw}")
    while side: sideq()
    a(f"s_branch {lab_start}")
    a.label(lab_pubw)
    a("s_lshl_b32 s3, s49, 13")
    a(f"s_add_u32 s46, s3, {OK_}")
    a(f"v_add_u32 {v(T1)}, s46, {v(vL16)}")
    for j in range(8):
        a(f"ds_read_b128 {v(W1S+4*j,4)}, {v(T1)} offset:{1024*j}")
    a("s_lshl_b32 s46, s99, 15")
    a("s_add_u32 s46, s46, s3")
    for j in range(8):
        if j == 4: a("s_add_u32 s46, s46, 4096")
        a(f"s_waitcnt lgkmcnt({7-j})")
        a(f"buffer_store_dwordx4 {v(W1S+4*j,4)}, {v(vL16)}, s[16:19], s46 offen offset:{1024*(j&3)} sc0 sc1")
    a("s_mov_b32 s33, 0")

    def kvflag():
        ldone = a.newlabel("L_kvf")
        a("s_or_b32 s3, s33, s50")
        a("s_cmp_lg_u32 s3, 0")
        a(f"s_cbranch_scc1 {ldone}")
        a("s_mov_b32 s33, 1")
        a("s_memrealtime s[22:23]")
        a("s_lshl_b32 s3, s99, 7")
        a("s_lshl_b32 s46, s49, 3")
        a("s_add_u32 s3, s3, s46")
        a(f"s_add_u32 s3, s3, {KFO}")
        a(f"v_mov_b32 {v(T0)}, 0")
        a("s_waitcnt vmcnt(0) lgkmcnt(0)")
        a(f"v_mov_b32 {v(PUB)}, s22")
        a(f"v_mov_b32 {v(PUB+1)}, s23")
        a("s_mov_b64 exec, 1")
        if 'nokvflag' not in EXP: a(f"buffer_store_dwordx2 {v(PUB,2)}, {v(T0)}, s[36:39], s3 offen sc0 sc1")
        a("s_mov_b64 exec, -1")
        a.label(ldone)

    a.label(lab_start)
    a(f"v_lshlrev_b32 {v(T0)}, 2, {v(vHH)}")
    a(f"v_sub_u32 {v(T0)}, {v(vQQ)}, {v(T0)}")
    for r in range(16):
        c = (r & 3) + 8 * (r >> 2)
        sp = 52 + 2 * (r & 1)
        a(f"v_cmp_le_i32 s[{sp}:{sp+1}], {c}, {v(T0)}")
        a(f"v_mov_b32 {v(CM+r)}, {v(VM)}")
        a(f"v_cndmask_b32 {v(MK1+r)}, {v(vNEG)}, {v(VM)}, s[{sp}:{sp+1}]")
        a(f"v_cndmask_b32 {v(MK2+r)}, {v(VM)}, {v(vNEG)}, s[{sp}:{sp+1}]")
    for r in range(16):
        a(f"v_mov_b32 {v(OA+r)}, 0")
    for r in range(4):
        a(f"v_mov_b32 {v(SUM+r)}, 0")

    def part(vK, vV, MK, off, last_cmp, lab_out, hook=None):
        SS = [SA, SB]

        def kread(i):
            for ks in range(2):
                a(f"ds_read_b128 {v(KB_[i&1]+4*ks,4)}, {v(vK[ks])} offset:{off(i)}")

        def smf(i, h):
            if h == 0:
                a(f"v_mfma_f32_32x32x16_bf16 {v(SS[i&1],16)}, {v(KB_[i&1],4)}, {v(QF,4)}, {v(MK if i == 0 else CM,16)}")
            else:
                a(f"v_mfma_f32_32x32x16_bf16 {v(SS[i&1],16)}, {v(KB_[i&1]+4,4)}, {v(QF+4,4)}, {v(SS[i&1],16)}")
        kread(0)
        kread(1)
        a("s_waitcnt lgkmcnt(2)")
        smf(0, 0); smf(0, 1)
        for i in range(8):
            Sx = SS[i & 1]; Px = PP[i & 1]; Vx = VB_[i & 1]

            def exps(g):
                for j in range(4):
                    a(f"v_exp_f32 {v(Sx+g+j)}, {v(Sx+g+j)}")

            def addcvt(g):
                for j in range(2):
                    a(f"v_pk_add_f32 {v(SUM+2*j,2)}, {v(SUM+2*j,2)}, {v(Sx+g+2*j,2)}")
                    a(f"v_cvt_pk_bf16_f32 {v(Px+g//2+j)}, {v(Sx+g+2*j)}, {v(Sx+g+1+2*j)}")

            def pv(sidx):
                a(f"v_mfma_f32_32x32x16_bf16 {v(OA,16)}, {v(Vx+4*sidx,4)}, {v(Px+4*sidx,4)}, {v(OA,16)}")
            for sidx in range(2):
                for rd in range(2):
                    a(f"ds_read_b64_tr_b16 {v(Vx+4*sidx+2*rd,2)}, {v(vV)} offset:{off(i) + (16*sidx+8*rd)*64}")
            if i < 7:
                a("s_waitcnt lgkmcnt(4)")
                smf(i + 1, 0)
            if i == 0:
                a("s_nop 7"); a("s_nop 7"); a("s_nop 7")
            exps(0)
            if i < 7:
                smf(i + 1, 1)
                if i < 6: kread(i + 2)
            exps(4); addcvt(0)
            exps(8); addcvt(4)
            a(f"s_waitcnt lgkmcnt({2 if i < 6 else 0})")
            pv(0)
            exps(12); addcvt(8)
            a("s_nop 0")
            addcvt(12)
            a("s_nop 1")
            pv(1)
            if i < 7:
                a(f"s_cmp_eq_u32 s44, {last_cmp(i)}")
                a(f"s_cbranch_scc1 {lab_out}")
            if hook and i == 2: hook()
        a.label(lab_out)
        a("s_waitcnt lgkmcnt(0)")

    part(vK1, vV1, MK1, lambda i: (7 - i) * 2048, lambda i: i, a.newlabel("L_p1e"), hook=kvflag)
    stamp(5)
    lab_p2 = a.newlabel("L_p2")
    a("s_cmp_lg_u32 s50, 0")
    a(f"s_cbranch_scc1 {lab_p2}")
    kvflag()
    lab_nc = a.newlabel("L_nocs")
    a("s_cmp_lt_u32 s49, 4")
    a(f"s_cbranch_scc1 {lab_nc}")
    srd(a, 88, 24, G.WS_W2T, F * D * 2)
    a("s_mul_i32 s3, s92, 7168")
    a("s_waitcnt vmcnt(0)")
    for j in range(7 if QW2 else 0):
        if j == 4: a("s_add_u32 s3, s3, 4096")
        a(f"buffer_store_dwordx4 {v(W2S[j],4)}, {v(vL16)}, s[88:91], s3 offen offset:{1024*(j&3)}")
    a("s_cmp_ge_u32 s92, 896")
    a(f"s_cbranch_scc1 {lab_nc}")
    for j in range(4):
        a(f"v_lshlrev_b32 v{CA+2*j}, 16, v{W1S+j}")
        a(f"v_and_b32 v{CA+2*j+1}, 0xffff0000, v{W1S+j}")
    for i in range(1, 8):
        for j in range(4):
            a(f"v_lshlrev_b32 v{CT+2*j}, 16, v{W1S+4*i+j}")
            a(f"v_and_b32 v{CT+2*j+1}, 0xffff0000, v{W1S+4*i+j}")
        for j in range(4):
            a(f"v_pk_add_f32 {v(CA+2*j,2)}, {v(CA+2*j,2)}, {v(CT+2*j,2)}")
    a("s_nop 1")
    for j in range(8):
        a(f"v_add_f32_dpp v{CT+j}, v{CA+j}, v{CA+j} row_ror:8 row_mask:0xf bank_mask:0xf")
    a(f"v_xor_b32 {v(T0)}, 16, v1")
    a(f"v_lshlrev_b32 {v(T0)}, 2, {v(T0)}")
    for j in range(8):
        a(f"ds_bpermute_b32 v{CA+j}, {v(T0)}, v{CT+j}")
    a("s_waitcnt lgkmcnt(0)")
    for j in range(8):
        a(f"v_add_f32 v{CT+j}, v{CA+j}, v{CT+j}")
    for j in range(8):
        a(f"ds_bpermute_b32 v{CA+j}, {v(vX32)}, v{CT+j}")
    a("s_waitcnt lgkmcnt(0)")
    for j in range(8):
        a(f"v_add_f32 v{CA+j}, v{CA+j}, v{CT+j}")
    srd(a, 76, 24, G.WS_CS, 16 * F * 4)
    a(f"s_mul_i32 s3, s93, {F*4}")
    a("s_lshl_b32 s46, s84, 8")
    a("s_add_u32 s3, s3, s46")
    a(f"v_lshlrev_b32 {v(T0)}, 5, v1")
    a("s_mov_b64 exec, 0xff")
    a(f"buffer_store_dwordx4 {v(CA,4)}, {v(T0)}, s[76:79], s3 offen")
    a(f"buffer_store_dwordx4 {v(CA+4,4)}, {v(T0)}, s[76:79], s3 offen offset:16")
    a("s_mov_b64 exec, -1")
    a.label(lab_nc)
    a("s_mov_b32 s50, 1")
    a("s_cmp_eq_u32 s28, 0")
    a(f"s_cbranch_scc1 {lab_p2}")
    lp = a.newlabel("L_poll"); lpo = a.newlabel("L_pollok"); lpd = a.newlabel("L_polld"); lsp = a.newlabel("L_spin")
    a("s_cmp_ge_u32 s49, 4")
    a(f"s_cbranch_scc1 {lsp}")
    a("s_sub_u32 s46, s99, 32")
    a("s_lshl_b32 s47, s46, 7")
    a(f"s_add_u32 s47, s47, {KFO}")
    a(f"v_and_b32 {v(T0)}, 3, v1")
    a(f"v_lshlrev_b32 {v(T0)}, 3, {v(T0)}")
    a(f"s_mov_b32 s52, {NPOLL}")
    a.label(lp)
    a(f"buffer_load_dwordx2 {v(PUB,2)}, {v(T0)}, s[36:39], s47 offen sc0 sc1")
    a("s_waitcnt vmcnt(0)")
    a(f"v_cmp_lt_u64 vcc, s[34:35], {v(PUB,2)}")
    a(f"v_cmp_gt_u64 s[54:55], s[20:21], {v(PUB,2)}")
    a("s_nop 3")
    a("s_and_b64 vcc, vcc, s[54:55]")
    a("s_cmp_eq_u64 vcc, exec")
    a(f"s_cbranch_scc1 {lpo}")
    a("s_sub_u32 s52, s52, 1")
    a("s_cmp_lg_u32 s52, 0")
    a(f"s_cbranch_scc1 {lp}")
    a(f"v_mov_b32 {v(T1)}, 2")
    a(f"s_branch {lpd}")
    a.label(lpo)
    a("s_lshl_b32 s3, s49, 13")
    a("s_lshl_b32 s46, s46, 15")
    a("s_add_u32 s46, s46, s3")
    for j in range(8):
        a(f"s_add_u32 m0, s3, {PK + 1024*j}")
        a("s_nop 0")
        a(f"buffer_load_dwordx4 {v(vL16)}, s[16:19], s46 offen sc0 sc1 lds")
        a("s_add_u32 s46, s46, 1024")
    a(f"v_mov_b32 {v(T1)}, 1")
    a.label(lpd)
    a("s_lshl_b32 s3, s49, 2")
    a(f"s_add_u32 s3, s3, {STAT2}")
    a(f"v_mov_b32 {v(T0)}, s3")
    a("s_waitcnt vmcnt(0)")
    a(f"ds_write_b32 {v(T0)}, {v(T1)}")
    a.label(lsp)
    a(f"v_mov_b32 {v(T0)}, {STAT2}")
    a(f"ds_read_b128 {v(PUB,4)}, {v(T0)}")
    a("s_waitcnt lgkmcnt(0)")
    a(f"v_min_u32 {v(T1)}, {v(PUB)}, {v(PUB+1)}")
    a(f"v_min3_u32 {v(T1)}, {v(T1)}, {v(PUB+2)}, {v(PUB+3)}")
    a(f"v_max_u32 {v(T2)}, {v(PUB)}, {v(PUB+1)}")
    a(f"v_max3_u32 {v(T2)}, {v(T2)}, {v(PUB+2)}, {v(PUB+3)}")
    a("s_nop 0")
    a(f"v_readfirstlane_b32 s3, {v(T1)}")
    a(f"v_readfirstlane_b32 s46, {v(T2)}")
    a("s_nop 3")
    a("s_cmp_eq_u32 s3, 0")
    a("s_sleep 1")
    a(f"s_cbranch_scc1 {lsp}")
    a("s_cmp_eq_u32 s46, 1")
    a(f"s_cbranch_scc1 {lab_p2}")
    a("s_mov_b32 s45, 2")
    a("s_sub_u32 s98, s98, 256")
    a(f"s_mov_b32 s100, {XQ}")
    a("s_barrier")
    a("s_cmp_lt_u32 s49, 4")
    a(f"s_cbranch_scc1 {lab_cpass}")
    a("s_setprio 2")
    a(f"s_branch {a.newlabel('L_lre')}")
    lab_lre = f"L_lre_{a.nlab}"

    a.label(lab_reload)
    a("s_lshl_b32 s3, s49, 12")
    a("s_lshl_b32 s46, s99, 15")
    a("s_add_u32 s46, s46, s3")
    for j in range(4):
        a(f"s_add_u32 m0, s3, {OK_ + 1024*j}")
        a("s_nop 0")
        a(f"buffer_load_dwordx4 {v(vL16)}, s[16:19], s46 offen sc0 sc1 lds")
        a("s_add_u32 s46, s46, 1024")
    a("s_waitcnt vmcnt(0)")
    a("s_barrier")
    a(f"s_branch {lab_start}")

    a.label(lab_p2)
    if 'qpf2' in EXP:
        lq = a.newlabel("L_qpf")
        a("s_cmp_eq_u32 s33, 2")
        a(f"s_cbranch_scc1 {lq}")
        a("s_mov_b32 s33, 2")
        a(f"s_load_dwordx2 s[54:55], s[0:1], {ARG['w2']}")
        a("s_lshl_b32 s3, s99, 3")
        a("s_add_u32 s3, s3, s49")
        a("s_mul_i32 s3, s3, 3584")
        a(f"v_lshlrev_b32 {v(T0)}, 7, v1")
        a("s_waitcnt lgkmcnt(0)")
        srd(a, 88, 54, 0, F * D * 2)
        a("s_mov_b64 exec, 0xfffffff")
        a(f"buffer_load_dword v255, {v(T0)}, s[88:91], s3 offen")
        a("s_mov_b64 exec, -1")
        a.label(lq)
    a("s_cmp_eq_u32 s28, 0")
    a(f"s_cbranch_scc1 {lab_fin}")
    part(vK2, vV2, MK2, lambda i: i * 2048, lambda i: 7 - i, a.newlabel("L_p2e"))
    a.label(lab_fin)
    stamp(6)
    a(f"v_add_f32 {v(SUM)}, {v(SUM)}, {v(SUM+1)}")
    a(f"v_add_f32 {v(SUM+2)}, {v(SUM+2)}, {v(SUM+3)}")
    a(f"v_add_f32 {v(SUM)}, {v(SUM)}, {v(SUM+2)}")
    a(f"ds_bpermute_b32 {v(SUM+1)}, {v(vX32)}, {v(SUM)}")
    a("s_waitcnt lgkmcnt(0)")
    a(f"v_add_f32 {v(SUM)}, {v(SUM)}, {v(SUM+1)}")
    lab_out = a.newlabel("L_out")
    a("s_cmp_lg_u32 s51, 0")
    a(f"s_cbranch_scc1 {lab_out}")
    lo = 2.0 ** -40 if 'forcemax' not in EXP else 2.0 ** 39
    a(f"v_mov_b32 {v(T1)}, {hex_f32(lo)}")
    a(f"v_mov_b32 {v(T0)}, {hex_f32(2.0**40)}")
    a(f"v_cmp_lt_f32 s[52:53], {v(T1)}, {v(SUM)}")
    a(f"v_cmp_lt_f32 s[54:55], {v(SUM)}, {v(T0)}")
    a("s_nop 3")
    a("s_and_b64 s[52:53], s[52:53], s[54:55]")
    a("s_cmp_eq_u64 s[52:53], exec")
    a(f"s_cbranch_scc1 {lab_out}")
    a("s_mov_b32 s51, 1")
    a(f"v_mov_b32 {v(VM)}, {v(vNEG)}")

    def maxpart(vK, MK, first_off, step, cnt_expr):
        lp = a.newlabel("L_mx"); lpe = a.newlabel("L_mxe")
        a(f"v_add_u32 {v(T0)}, {first_off}, {v(vK[0])}")
        a(f"v_add_u32 {v(T1)}, {first_off}, {v(vK[1])}")
        cnt_expr()

        def tile(C):
            a(f"ds_read_b128 {v(KB_[0],4)}, {v(T0)}")
            a(f"ds_read_b128 {v(KB_[0]+4,4)}, {v(T1)}")
            a("s_waitcnt lgkmcnt(0)")
            a(f"v_mfma_f32_32x32x16_bf16 {v(SA,16)}, {v(KB_[0],4)}, {v(QF,4)}, {v(C,16)}")
            a(f"v_mfma_f32_32x32x16_bf16 {v(SA,16)}, {v(KB_[0]+4,4)}, {v(QF+4,4)}, {v(SA,16)}")
            a("s_nop 7"); a("s_nop 7"); a("s_nop 7")
            for r in range(0, 16, 2):
                a(f"v_max3_f32 {v(VM)}, {v(VM)}, {v(SA+r)}, {v(SA+r+1)}")
            a(f"v_add_u32 {v(T0)}, {step}, {v(T0)}")
            a(f"v_add_u32 {v(T1)}, {step}, {v(T1)}")
        tile(MK)
        a.label(lp)
        a("s_cmp_eq_u32 s52, 0")
        a(f"s_cbranch_scc1 {lpe}")
        tile(CM)
        a("s_sub_u32 s52, s52, 1")
        a(f"s_branch {lp}")
        a.label(lpe)

    maxpart(vK1, MK1, 7 * 2048, -2048, lambda: a("s_mov_b32 s52, s44"))
    lmx = a.newlabel("L_mxd")
    a("s_cmp_eq_u32 s28, 0")
    a(f"s_cbranch_scc1 {lmx}")
    maxpart(vK2, MK2, 0, 2048, lambda: a("s_sub_u32 s52, 7, s44"))
    a.label(lmx)
    a(f"ds_bpermute_b32 {v(T0)}, {v(vX32)}, {v(VM)}")
    a("s_waitcnt lgkmcnt(0)")
    a(f"v_max_f32 {v(VM)}, {v(VM)}, {v(T0)}")
    a(f"v_sub_f32 {v(VM)}, 0, {v(VM)}")
    a(f"s_branch {lab_start}")

    a.label(lab_out)
    a(f"v_rcp_f32 {v(SUM)}, {v(SUM)}")
    a("s_lshl_b32 s3, s28, 8")
    a("s_lshl_b32 s46, s44, 5")
    a("s_add_u32 s3, s3, s46")
    a(f"v_add_u32 {v(T0)}, s3, {v(vQQ)}")
    a(f"v_lshlrev_b32 {v(T0)}, 11, {v(T0)}")
    a(f"v_lshl_add_u32 {v(T0)}, {v(vHH)}, 3, {v(T0)}")
    a("s_lshl_b32 s3, s29, 6")
    a(f"v_add_u32 {v(T0)}, s3, {v(T0)}")
    a("s_nop 7")
    for g in range(4):
        for r in range(4):
            a(f"v_mul_f32 v{OA+4*g+r}, v{OA+4*g+r}, {v(SUM)}")
        a(f"v_cvt_pk_bf16_f32 v{OA+4*g}, v{OA+4*g}, v{OA+4*g+1}")
        a(f"v_cvt_pk_bf16_f32 v{OA+4*g+1}, v{OA+4*g+2}, v{OA+4*g+3}")
        a(f"buffer_store_dwordx2 {v(OA+4*g,2)}, {v(T0)}, s[12:15], 0 offen offset:{16*g}")
    if 'stamp' in EXP: a("s_waitcnt vmcnt(0)")
    stamp(7)
    stamp_out()
    a(f"s_branch {end}")

    a.label(lab_lre)
    a("s_lshl_b32 s3, s30, 6")
    a(f"v_lshrrev_b32 {v(t0)}, 3, v1")
    a(f"v_add_u32 {v(t0)}, s3, {v(t0)}")
    for i in range(PA):
        a(f"v_add_u32 {v(t1)}, {8*i}, {v(t0)}")
        a(f"v_lshrrev_b32 {v(t2)}, 1, {v(t1)}")
        a(f"v_and_b32 {v(t2)}, 7, {v(t2)}")
        a(f"v_and_b32 {v(t3)}, 7, v1")
        a(f"v_xor_b32 {v(t2)}, {v(t2)}, {v(t3)}")
        a(f"v_add_u32 {v(t1)}, s98, {v(t1)}")
        a(f"v_mul_u32_u24 {v(t1)}, {lda}, {v(t1)}")
        a(f"v_lshl_add_u32 {v(vA[i])}, {v(t2)}, 4, {v(t1)}")
    a("s_lshl_b32 s3, s29, 6")
    for i in range(PB):
        a(f"s_mul_i32 s46, s30, {PB}")
        a(f"s_add_u32 s46, s46, {i}")
        a("s_lshr_b32 s47, s46, 2")
        a("s_and_b32 s46, s46, 3")
        a("s_lshl_b32 s46, s46, 4")
        a("s_lshl_b32 s47, s47, 11")
        a("s_add_u32 s47, s47, s3")
        a(f"v_lshrrev_b32 {v(t0)}, 2, v1")
        a(f"v_add_u32 {v(t0)}, s46, {v(t0)}")
        a(f"v_and_b32 {v(t1)}, 3, v1")
        a(f"v_bfe_u32 {v(t2)}, {v(t0)}, 3, 1")
        a(f"v_lshlrev_b32 {v(t2)}, 1, {v(t2)}")
        a(f"v_xor_b32 {v(t1)}, {v(t1)}, {v(t2)}")
        a(f"v_mul_u32_u24 {v(t0)}, {N*2}, {v(t0)}")
        a(f"v_lshl_add_u32 {v(t0)}, {v(t1)}, 4, {v(t0)}")
        a(f"v_add_u32 {v(vB[i])}, s47, {v(t0)}")
    a(f"s_branch {lab_lpass}")
    a.label(end)
    a("s_endpgm")
    return dict(name=name, grid=256, block=512, lds=lds, desc=G.kernel_desc(name, 256))
```

```python
import sys, math, os
EXP=os.environ.get('EXP','')
STMOD=os.environ.get('STMOD','sc0 sc1')
STALL=os.environ.get('STALL','')
RPM=int(os.environ.get('RPM','2'))
PFS=int(os.environ.get('PFS','4'))

OUT = os.environ.get("OUTF","sequential_preLN__sliding_block__mixer_channel_mlp__prompt.s")

S = 2048; D = 1024; F = 3584; H = 32; DH = 32; WIN = 256
ARG = dict(x=0, wqkv=8, wo=16, bx=24, w1=32, b1=40, w2=48, b2=56, out=64, dbg=72, ws=80)
MB = 1 << 20
WS_Y1 = 0
WS_QKV = 4 * MB
WS_O = 16 * MB
WS_H = 20 * MB
WS_Y2 = 24 * MB
WS_H1 = 28 * MB
WS_ST = 0
WS_CS = 1 * MB
WS_SIZE = 256 * MB
WS_FLAG = 2 * MB
WS_W2T = 48 * MB
WS_PART = 64 * MB
LDH1 = F * 2 + int(os.environ.get('PADH1', '0'))


class Asm:
    def __init__(self):
        self.lines = []
        self.nlab = 0

    def __call__(self, s):
        self.lines.append("    " + s)

    def label(self, l):
        self.lines.append(l + ":")

    def newlabel(self, base="L"):
        self.nlab += 1
        return f"{base}_{self.nlab}"

    def c(self, s):
        self.lines.append("    ; " + s)

    def dry_begin(self, wave_sreg, idx_sreg, nw=4):
        self.dry = dict(ret=self.newlabel("L_dret"), disp=self.newlabel("L_ddisp"), done=self.newlabel("L_ddone"),
                        ent=[], idx=idx_sreg, nw=nw)
        self(f"s_mov_b32 s{idx_sreg}, s{wave_sreg}")
        self("s_mov_b64 exec, 0")
        self(f"s_branch {self.dry['disp']}")
        self.label(self.dry['done'])
        self("s_mov_b64 exec, -1")

    def dry_entry(self):
        l = self.newlabel("L_dent")
        self.label(l)
        self.dry['ent'].append(l)

    def dry_exit(self):
        self(f"s_cbranch_execz {self.dry['ret']}")

    def dry_mark(self):
        self.dry_exit(); self.dry_entry()

    def dry_dispatch(self):
        d = self.dry
        self.label(d['ret'])
        self(f"s_add_u32 s{d['idx']}, s{d['idx']}, {d['nw']}")
        self.label(d['disp'])
        for i, l in enumerate(d['ent']):
            self(f"s_cmp_eq_u32 s{d['idx']}, {i}")
            self(f"s_cbranch_scc1 {l}")
        self(f"s_branch {d['done']}")


def v(i, n=1):
    return f"v{i}" if n == 1 else f"v[{i}:{i+n-1}]"


def s(i, n=1):
    return f"s{i}" if n == 1 else f"s[{i}:{i+n-1}]"


def srd(a, d, base, off, nbytes):
    if off:
        a(f"s_add_u32 s{d}, s{base}, {off}")
        a(f"s_addc_u32 s{d+1}, s{base+1}, 0")
    else:
        a(f"s_mov_b32 s{d}, s{base}")
        a(f"s_mov_b32 s{d+1}, s{base+1}")
    a(f"s_and_b32 s{d+1}, s{d+1}, 0xffff")
    a(f"s_mov_b32 s{d+2}, {nbytes}")
    a(f"s_mov_b32 s{d+3}, 0x00020000")


def hex_f32(x):
    import struct
    return hex(struct.unpack('<I', struct.pack('<f', x))[0])


def kernel_header(a, name):
    a.lines.append(".p2align 8")
    a.lines.append(f".globl {name}")
    a.lines.append(f".type {name},@function")
    a.label(name)


def kernel_desc(name, nvgpr, nsgpr=102, accum=None):
    nv = ((nvgpr + 7) // 8) * 8
    acc = accum if accum is not None else ((nvgpr + 3) // 4) * 4
    return f""".amdhsa_kernel {name}
  .amdhsa_next_free_vgpr {nv if accum is None else nvgpr}
  .amdhsa_next_free_sgpr {nsgpr}
  .amdhsa_accum_offset {min(acc,256)}
  .amdhsa_group_segment_fixed_size 0
  .amdhsa_kernarg_size 88
  .amdhsa_user_sgpr_count 2
  .amdhsa_user_sgpr_kernarg_segment_ptr 1
  .amdhsa_system_sgpr_workgroup_id_x 1
.end_amdhsa_kernel
"""


def gen_prefetch(a, regions, end_label):
    CH = 32768
    counts = [nbytes // CH for _, nbytes in regions]
    for (_, nbytes), c in zip(regions, counts):
        assert c * CH == nbytes
    total = sum(counts)
    skip = a.newlabel("L_nopf")
    a(f"s_cmp_ge_u32 s2, {total}")
    a(f"s_cbranch_scc1 {skip}")
    base = 0
    for (arg, nbytes), c in zip(regions, counts):
        nxt = a.newlabel("L_pfn")
        a(f"s_cmp_ge_u32 s2, {base + c}")
        a(f"s_cbranch_scc1 {nxt}")
        a(f"s_load_dwordx2 s[4:5], s[0:1], {ARG[arg]}")
        a(f"s_sub_u32 s3, s2, {base}")
        a("s_lshl_b32 s3, s3, 15")
        a("v_lshlrev_b32 v1, 4, v0")
        a("v_add_u32 v1, s3, v1")
        a("s_waitcnt lgkmcnt(0)")
        srd(a, 8, 4, 0, nbytes)
        for j in range(8):
            a(f"v_add_u32 v2, {4096*j}, v1")
            a(f"buffer_load_dwordx4 {v(4+4*j,4)}, v2, s[8:11], 0 offen")
        a("s_waitcnt vmcnt(0)")
        a(f"s_branch {end_label}")
        a.label(nxt)
        base += c
    a.label(skip)
    a(f"s_sub_u32 s2, s2, {total}")
    return total


def tail_prefetch(a, task, lane, regions, vtmp, vdst):
    ntask = 2048
    total = sum(n for _, n in regions)
    per = total // ntask
    assert per * ntask == total and per % 1024 == 0
    nld = per // 1024
    base = 0
    done = a.newlabel("L_pfdone")
    for arg, nbytes in regions:
        cnt = nbytes // per
        assert cnt * per == nbytes
        nxt = a.newlabel("L_pfn")
        a(f"s_cmp_ge_u32 s{task}, {base + cnt}")
        a(f"s_cbranch_scc1 {nxt}")
        a(f"s_load_dwordx2 s[94:95], s[0:1], {ARG[arg]}")
        a(f"s_sub_u32 s93, s{task}, {base}")
        a(f"s_mul_i32 s93, s93, {per}")
        a(f"v_lshlrev_b32 {v(vtmp)}, 4, {v(lane)}")
        a(f"v_add_u32 {v(vtmp)}, s93, {v(vtmp)}")
        a("s_waitcnt lgkmcnt(0)")
        srd(a, 96, 94, 0, nbytes)
        for j in range(nld):
            if j and j % 4 == 0:
                a(f"v_add_u32 {v(vtmp)}, 4096, {v(vtmp)}")
            a(f"buffer_load_dwordx4 {v(vdst,4)}, {v(vtmp)}, s[96:99], 0 offen offset:{1024*(j%4)}")
        a(f"s_branch {done}")
        a.label(nxt)
        base += cnt
    a.label(done)
    return nld

def gen_ln(a, name, src_arg, src_off, dst_off, double, pf=None):
    nwg = S // 4
    kernel_header(a, name)
    end = a.newlabel("L_end")
    npf = 0
    a(f"s_cmp_ge_u32 s2, {nwg}")
    a(f"s_cbranch_scc1 {end}")
    a(f"s_load_dwordx2 s[4:5], s[0:1], {ARG[src_arg]}")
    a(f"s_load_dwordx2 s[6:7], s[0:1], {ARG['ws']}")
    a("v_lshrrev_b32 v1, 6, v0")
    a("v_and_b32 v2, 63, v0")
    a("s_lshl_b32 s3, s2, 2")
    a("v_add_u32 v1, s3, v1")
    a("v_lshlrev_b32 v3, 11, v1")
    a("v_lshl_add_u32 v3, v2, 5, v3")
    for i, m in enumerate([1, 2, 4, 8, 16, 32]):
        a(f"v_xor_b32 v{12+i}, {m}, v2")
        a(f"v_lshlrev_b32 v{12+i}, 2, v{12+i}")
    a("s_waitcnt lgkmcnt(0)")
    srd(a, 8, 4, src_off, S * D * 2)
    srd(a, 12, 6, dst_off, S * D * 2)
    a("buffer_load_dwordx4 v[4:7], v3, s[8:11], 0 offen")
    a("buffer_load_dwordx4 v[8:11], v3, s[8:11], 0 offen offset:16")
    npl = 0
    if pf:
        a("v_readfirstlane_b32 s92, v1")
        a("s_nop 3")
        npl = tail_prefetch(a, 92, 2, pf, 44, 48)
    a(f"s_waitcnt vmcnt({npl})")

    def unpack():
        for i in range(8):
            a(f"v_lshlrev_b32 v{20+2*i}, 16, v{4+i}")
            a(f"v_and_b32 v{21+2*i}, 0xffff0000, v{4+i}")

    def bfly():
        for i in range(6):
            a(f"ds_bpermute_b32 v41, v{12+i}, v40")
            a("s_waitcnt lgkmcnt(0)")
            a("v_add_f32 v40, v40, v41")

    def norm():
        a("v_add_f32 v40, v20, v21")
        for i in range(2, 16):
            a(f"v_add_f32 v40, v40, v{20+i}")
        bfly()
        a("v_mul_f32 v40, 0x3a800000, v40")
        for i in range(16):
            a(f"v_sub_f32 v{20+i}, v{20+i}, v40")
        a("v_mul_f32 v40, v20, v20")
        for i in range(1, 16):
            a(f"v_fmac_f32 v40, v{20+i}, v{20+i}")
        bfly()
        a("v_mov_b32 v42, 0x3727c5ac")
        a("v_fma_f32 v40, v40, v43, v42")
        a("v_rsq_f32 v40, v40")
        a("s_nop 0")
        for i in range(16):
            a(f"v_mul_f32 v{20+i}, v{20+i}, v40")
        for i in range(8):
            a(f"v_cvt_pk_bf16_f32 v{4+i}, v{20+2*i}, v{21+2*i}")

    a("v_mov_b32 v43, 0x3a800000")
    unpack()
    norm()
    if double:
        unpack()
        norm()
    a("buffer_store_dwordx4 v[4:7], v3, s[12:15], 0 offen")
    a("buffer_store_dwordx4 v[8:11], v3, s[12:15], 0 offen offset:16")
    a.label(end)
    a("s_endpgm")
    return dict(name=name, grid=nwg + npf, block=256, lds=0, desc=kernel_desc(name, 56))


def gen_gemm(a, name, N, K, BN, a_off, w_arg, epi, out_arg, out_off, res_arg=None, res_off=0,
             bias_arg=None, BM=128, NSTAGE=3, RA=4, RBN=8, ln=None, a_arg='ws', pre=False, stats_out=False, lda=None, ldo=None, splitk=None, zero_flags=False, l2pf=0, wpf=None, atile=False, w_off=None, otile=False, w2copy=False, dry=0, epi2=False, spf=None):
    import struct
    M = S
    BK = 64
    lda = lda or K * 2
    ldo = ldo or N * 2
    ATILE = ('at_' + name.split('_')[0]) in EXP or atile
    BTILE = ('bt_' + name.split('_')[0]) in EXP or w_off is not None
    NT_M = M // BM
    NT_N = N // BN
    ntiles = NT_M * NT_N
    MT = BM // 2 // 16
    NTW = BN // 2 // 16
    RB = {64: 128, 128: 128, 192: 128, 96: 64, 224: 448, 112: 32}[BN]
    ABYTES = BM * BK * 2
    BBYTES = BK * BN * 2
    STAGE = ABYTES + BBYTES
    PA = ABYTES // 1024 // 4
    PB = BBYTES // 1024 // 4
    assert PA * 4096 == ABYTES and PB * 4096 == BBYTES
    P = PA + PB
    NS = K // BK
    if splitk:
        NSLO, NSHI = splitk
        assert NSLO + NSHI == NS and (NSLO - NSHI) % NSTAGE == 0
        NS = NSHI
        ntiles *= 2
    lds = STAGE * NSTAGE
    CROW = BN * 2 + 16
    CSZ = BM * CROW
    LASTB = (NS - 1) % NSTAGE
    TBL = 2048 if (ln and not pre) else 0
    CBASE = 0 if LASTB * STAGE >= CSZ + TBL else (LASTB + 1) * STAGE
    assert CBASE + CSZ + TBL <= lds
    EPI = lds
    st_res = bool(res_arg) and not splitk
    if splitk:
        DONE = CBASE + CSZ
        assert DONE + 16 <= (LASTB * STAGE if CBASE == 0 else lds)
    st_bias = pre
    if st_res: lds += BM * BN * 2
    if st_bias: lds += 3072 + 4096
    assert lds <= 163840
    if pre:
        CTAB = EPI + 1024; RTAB = EPI + 2048
    else:
        RTAB = CBASE + CSZ; CTAB = RTAB + 1024
    NEX = (BM * BN * 2 // 4096 if st_res else 0)
    PPR = RB // 32
    lg_ppr = int(math.log2(PPR)) if RB != 448 else 0

    vA = list(range(2, 2 + PA))
    vB = list(range(2 + PA, 2 + PA + PB))
    nxt = 2 + PA + PB
    vXb = [nxt, nxt + 1]; nxt += 2
    vWb = list(range(nxt, nxt + NTW)); nxt += NTW
    vXc = [nxt, nxt + 1]; nxt += 2
    vWc = list(range(nxt, nxt + NTW)); nxt += NTW
    vT = list(range(nxt, nxt + 8)); nxt += 8
    nxt = (nxt + 3) // 4 * 4
    FX = [nxt, nxt + 4 * MT]; nxt += 8 * MT
    FW = [nxt, nxt + 4 * NTW]; nxt += 8 * NTW
    ACC = nxt; nxt += 4 * MT * NTW
    PBI = nxt
    if bias_arg and not pre: nxt += 2 * NTW
    if l2pf or wpf or spf:
        nxt = (nxt + 3) // 4 * 4
        PFD = nxt; PFV = nxt + 4; nxt += 5
    W2S = 136; W2A = 164
    if splitk:
        PRT = nxt; nxt += 4 * MT * NTW
        PFL = nxt; PFA = nxt + 1; PPA = nxt + 2; nxt += 3
    nvgpr = nxt
    assert nvgpr <= 256
    t0, t1, t2, t3 = vT[0], vT[1], vT[2], vT[3]

    def acc(nt, mt):
        return ACC + 4 * (nt * MT + mt)

    def stamp(i):
        if 'stamp' in EXP:
            if 'rt' in EXP and i in (1, 6):
                a(f"s_memrealtime s[{60+2*i}:{61+2*i}]")
                a(f"s_memtime s[{62 if i == 1 else 70}+0:{63 if i == 1 else 71}]".replace("+0","")) if False else None
            else:
                a(f"s_memtime s[{60+2*i}:{61+2*i}]")
            if i >= 6: a("s_waitcnt lgkmcnt(0)")

    def stamp_out():
        if 'stamp' not in EXP: return
        a("s_waitcnt lgkmcnt(0)")
        srd(a, 80, 24, 200 * MB, 1 << 20)
        a("s_lshl_b32 s3, s2, 3")
        a("s_add_u32 s3, s3, s49")
        a("s_lshl_b32 s3, s3, 6")
        a("v_mov_b32 v2, s3")
        for i in range(8):
            a(f"v_mov_b32 v4, s{60+2*i}")
            a(f"v_mov_b32 v5, s{61+2*i}")
            a(f"buffer_store_dwordx2 v[4:5], v2, s[80:83], 0 offen offset:{8*i}")
            a("s_nop 1")

    def wfrag_addr_common():
        a(f"v_lshrrev_b32 {v(t1)}, 4, v1")
        a(f"v_bfe_u32 {v(t0)}, v1, 2, 2")
        a(f"v_lshl_add_u32 {v(t2)}, {v(t1)}, 3, {v(t0)}")
        if RB == 256:
            a(f"v_and_b32 {v(t3)}, 1, {v(t1)}")
            a(f"v_lshl_add_u32 {v(t3)}, {v(t3)}, 2, {v(t0)}")
        elif RB == 128:
            a(f"v_and_b32 {v(t3)}, 1, {v(t1)}")
            a(f"v_lshrrev_b32 {v(t0)}, 1, {v(t0)}")
            a(f"v_lshl_add_u32 {v(t3)}, {v(t3)}, 1, {v(t0)}")
        elif RB in (64, 448):
            a(f"v_and_b32 {v(t3)}, 1, {v(t1)}")
        else:
            a(f"v_mov_b32 {v(t3)}, 0")
        a(f"v_mul_u32_u24 {v(t2)}, {RB}, {v(t2)}")
        a(f"v_and_b32 {v(t0)}, 3, v1")
        a(f"v_lshl_add_u32 {v(t2)}, {v(t0)}, 3, {v(t2)}")
        a(f"v_add_u32 {v(t2)}, {ABYTES}, {v(t2)}")

    def wfrag_addr(dst):
        if RB == 448:
            a("s_mov_b32 s47, 0")
        elif PPR > 1:
            a(f"s_lshr_b32 s47, s46, {lg_ppr}")
            a(f"s_and_b32 s46, s46, {PPR-1}")
        else:
            a("s_mov_b32 s47, s46")
            a("s_mov_b32 s46, 0")
        a(f"s_mul_i32 s47, s47, {64*RB}")
        a(f"v_xor_b32 {v(t0)}, s46, {v(t3)}")
        a(f"v_lshl_add_u32 {v(t0)}, {v(t0)}, 5, {v(t2)}")
        a(f"v_add_u32 {v(dst)}, s47, {v(t0)}")

    kernel_header(a, name)
    end = a.newlabel("L_end")
    stamp(0)
    lab_loader = a.newlabel("L_loader")
    lab_store = a.newlabel("L_store")
    a(f"s_cmp_ge_u32 s2, {ntiles}")
    a(f"s_cbranch_scc1 {end}")
    a(f"s_load_dwordx2 s[24:25], s[0:1], {ARG['ws']}")
    a(f"s_load_dwordx2 s[58:59], s[0:1], {ARG[a_arg]}")
    a(f"s_load_dwordx2 s[26:27], s[0:1], {ARG[w_arg]}")
    a(f"s_load_dwordx2 s[34:35], s[0:1], {ARG[out_arg]}")
    if res_arg:
        a(f"s_load_dwordx2 s[36:37], s[0:1], {ARG[res_arg]}")
    if bias_arg:
        a(f"s_load_dwordx2 s[38:39], s[0:1], {ARG[bias_arg]}")
    assert ntiles == 256 and RA * RBN == (16 if splitk else 32) and NT_M % RA == 0 and NT_N % RBN == 0
    XB = NT_N // RBN
    a("s_and_b32 s3, s2, 7")
    a("s_lshr_b32 s46, s2, 3")
    if splitk:
        a("s_lshr_b32 s92, s46, 4")
        a("s_and_b32 s46, s46, 15")
        a("s_lshl_b32 s96, s3, 4")
        a("s_add_u32 s96, s96, s46")
        a("s_cmp_eq_u32 s92, 0")
        a(f"s_cselect_b32 s93, {NSLO}, {NSHI}")
        a("s_mov_b32 s94, 1")
    a(f"s_lshr_b32 s28, s3, {int(math.log2(XB))}")
    a(f"s_and_b32 s29, s3, {XB-1}")
    a(f"s_mul_i32 s28, s28, {RA}")
    a(f"s_mul_i32 s29, s29, {RBN}")
    a(f"s_lshr_b32 s3, s46, {int(math.log2(RBN))}")
    a("s_add_u32 s28, s28, s3")
    a(f"s_and_b32 s3, s46, {RBN-1}")
    a("s_add_u32 s29, s29, s3")
    a("v_and_b32 v1, 63, v0")
    a(f"v_lshrrev_b32 {v(vT[0])}, 6, v0")
    a("s_nop 0")
    a(f"v_readfirstlane_b32 s49, {v(vT[0])}")
    a("s_nop 3")
    a("s_and_b32 s30, s49, 3")
    a("s_lshr_b32 s44, s30, 1")
    a("s_and_b32 s45, s30, 1")

    def build_srds():
        a("s_waitcnt lgkmcnt(0)")
        srd(a, 4, 58, a_off, M * lda)
        srd(a, 8, 26, w_off or 0, K * N * 2)
        srd(a, 12, 34, out_off, M * ldo)
        if res_arg:
            srd(a, 16, 36, res_off, M * N * 2)
        if bias_arg:
            srd(a, 20, 38, 0, N * 2)
        if pre or stats_out:
            srd(a, 84, 24, WS_ST, S * 128)
        if pre:
            srd(a, 88, 24, WS_CS, 16 * N * 4)
        if splitk:
            srd(a, 84, 24, WS_PART, 128 * 65536)
            srd(a, 88, 24, WS_FLAG, 512)

    a("s_cmp_ge_u32 s49, 4")
    a(f"s_cbranch_scc1 {lab_loader}")

    a(f"v_and_b32 {v(t0)}, 15, v1")
    a("s_lshl_b32 s3, s44, 6")
    a(f"v_add_u32 {v(t0)}, s3, {v(t0)}")
    a(f"v_lshlrev_b32 {v(t0)}, 7, {v(t0)}")
    a(f"v_lshrrev_b32 {v(t1)}, 4, v1")
    a(f"v_bfe_u32 {v(t2)}, v1, 1, 3")
    a(f"v_xor_b32 {v(t3)}, {v(t1)}, {v(t2)}")
    a(f"v_lshl_add_u32 {v(vXb[0])}, {v(t3)}, 4, {v(t0)}")
    a(f"v_xor_b32 {v(t3)}, 4, {v(t3)}")
    a(f"v_lshl_add_u32 {v(vXb[1])}, {v(t3)}, 4, {v(t0)}")
    wfrag_addr_common()
    a(f"s_mul_i32 s3, s45, {NTW}")
    for nt in range(NTW):
        a(f"s_add_u32 s46, s3, {nt}")
        wfrag_addr(vWb[nt])
    for i in range(4 * MT * NTW):
        a(f"v_mov_b32 v{ACC+i}, 0")
    a("s_mov_b32 s42, 0")
    build_srds()
    if bias_arg and not pre:
        a(f"v_lshrrev_b32 {v(t0)}, 4, v1")
        a(f"v_lshlrev_b32 {v(t0)}, 3, {v(t0)}")
        a(f"s_mul_i32 s3, s29, {BN*2}")
        a(f"s_mul_i32 s46, s45, {BN}")
        a("s_add_u32 s3, s3, s46")
        for nt in range(NTW):
            a(f"buffer_load_dwordx2 {v(PBI+2*nt,2)}, {v(t0)}, s[20:23], s3 offen offset:{32*nt}")

    def set_cur():
        for kk in range(2):
            a(f"v_add_u32 {v(vXc[kk])}, s42, {v(vXb[kk])}")
        for nt in range(NTW):
            a(f"v_add_u32 {v(vWc[nt])}, s42, {v(vWb[nt])}")
        a(f"s_add_u32 s42, s42, {STAGE}")
        a(f"s_cmp_ge_u32 s42, {STAGE*NSTAGE}")
        a("s_cselect_b32 s42, 0, s42")

    def read_list(kk, f):
        if 'noreads' in EXP: return []
        L = []
        for nt in range(NTW):
            if nt < MT:
                L.append(f"ds_read_b128 {v(FX[f]+4*nt,4)}, {v(vXc[kk])} offset:{nt*2048}")
            for rd in range(2):
                L.append(f"ds_read_b64_tr_b16 {v(FW[f]+4*nt+2*rd,2)}, {v(vWc[nt])} offset:{kk*32*RB+rd*4*RB}")
        for mt in range(NTW, MT):
            L.append(f"ds_read_b128 {v(FX[f]+4*mt,4)}, {v(vXc[kk])} offset:{mt*2048}")
        return L

    def mfma_list(f):
        if 'nomfma' in EXP: return []
        L = []
        for nt in range(NTW):
            for mt in range(MT):
                L.append(f"v_mfma_f32_16x16x32_bf16 {v(acc(nt,mt),4)}, {v(FW[f]+4*nt,4)}, {v(FX[f]+4*mt,4)}, {v(acc(nt,mt),4)}")
        return L

    def reads(kk, f):
        for x in read_list(kk, f): a(x)

    def mfmas(f):
        for x in mfma_list(f): a(x)

    def inter(kk, fr, fm):
        R = read_list(kk, fr); Mm = mfma_list(fm)
        rpm = RPM if NTW <= 4 else 1
        ri = 0
        for i in range(len(Mm)):
            a(Mm[i])
            for _ in range(rpm):
                if ri < len(R): a(R[ri]); ri += 1
        while ri < len(R): a(R[ri]); ri += 1

    if 'cpf' in EXP:
        lh = a.newlabel("L_pc")
        a("s_getpc_b64 s[46:47]")
        a.label(lh)
        a(f"v_lshlrev_b32 {v(t0)}, 4, v1")
        a("s_lshl_b32 s3, s30, 10")
        for j in range(int(os.environ.get('NCPF', '4'))):
            a(f"s_min_u32 s92, s3, {end}-{lh}-1024")
            a(f"v_add_u32 {v(t1)}, s92, {v(t0)}")
            a(f"global_load_dwordx4 {v(FX[0],4)}, {v(t1)}, s[46:47]")
            a("s_add_u32 s3, s3, 4096")
        a("s_waitcnt vmcnt(0)")
    if wpf:
        a("s_lshl_b32 s3, s2, 2")
        a("s_add_u32 s3, s3, s30")
        for q, (arg, nbytes, hi) in enumerate(wpf):
            a(f"s_load_dwordx2 s[{94+2*q}:{95+2*q}], s[0:1], {ARG[arg]}")
            a(f"s_mul_i32 s{92+q}, s3, {nbytes//1024}")
        a("s_waitcnt lgkmcnt(0)")
        for q, (arg, nbytes, hi) in enumerate(wpf):
            assert nbytes % (1 << 20) == 0
            srd(a, 84 + 4 * q, 94 + 2 * q, 0, nbytes)
        a(f"v_lshlrev_b32 {v(PFV)}, {PFS}, v1")
    if spf:
        assert RA * BM == 512 and RBN * BN == 512
        a("s_lshr_b32 s3, s2, 3")
        a("s_lshl_b32 s3, s3, 2")
        a("s_add_u32 s3, s3, s30")
        a(f"s_lshr_b32 s46, s28, {int(math.log2(RA))}")
        if ATILE:
            a(f"s_mul_i32 s46, s46, {RA*BM*lda}")
            a("s_lshr_b32 s47, s3, 4")
            a(f"s_mul_i32 s47, s47, {BM*lda}")
            a("s_add_u32 s46, s46, s47")
            a("s_and_b32 s47, s3, 15")
            a("s_lshl_b32 s47, s47, 13")
            a("s_add_u32 s96, s46, s47")
            astep, arow = 8 * BM * 128, 1024
        else:
            a(f"s_mul_i32 s46, s46, {RA*BM}")
            a("s_lshl_b32 s47, s3, 3")
            a("s_add_u32 s46, s46, s47")
            a(f"s_mul_i32 s96, s46, {lda}")
            astep, arow = 1024, lda
        a("s_sub_u32 s46, s3, 64")
        a(f"s_mul_i32 s46, s46, {8*N*2}")
        a(f"s_lshr_b32 s47, s29, {int(math.log2(RBN))}")
        a("s_lshl_b32 s47, s47, 10")
        a("s_add_u32 s46, s46, s47")
        a(f"s_mov_b32 s97, {512*N*2}")
        a(f"s_mov_b32 s47, {N*2}")
        a("s_cmp_lt_u32 s3, 64")
        a("s_cselect_b32 s96, s96, s46")
        a(f"s_cselect_b32 s97, {astep}, s97")
        a(f"s_cselect_b32 s47, {arow}, s47")
        for i in range(4):
            a(f"s_cselect_b32 s{76+i}, s{4+i}, s{8+i}")
        a(f"v_lshrrev_b32 {v(t0)}, 3, v1")
        a(f"v_and_b32 {v(t1)}, 7, v1")
        a(f"v_mul_u32_u24 {v(t0)}, s47, {v(t0)}")
        a(f"v_lshl_add_u32 {v(PFD+1)}, {v(t1)}, 7, {v(t0)}")

        def spf1():
            a(f"buffer_load_dword {v(PFD)}, {v(PFD+1)}, s[76:79], s96 offen")
            a("s_add_u32 s96, s96, s97")
        for _ in range(spf[0]): spf1()
    if l2pf:
        NPA = RA * BM // 8
        NPW = BK * (RBN * BN * 2) // 1024
        WPR = RBN * BN * 2 // 1024
        assert NPA + NPW == 128 and WPR == 1
        lw = a.newlabel("L_pfw"); ld = a.newlabel("L_pfd")
        a("s_lshr_b32 s3, s2, 3")
        a("s_lshl_b32 s3, s3, 2")
        a("s_add_u32 s3, s3, s30")
        a(f"s_cmp_ge_u32 s3, {NPA}")
        a(f"s_cbranch_scc1 {lw}")
        a(f"s_lshr_b32 s46, s28, {int(math.log2(RA))}")
        a(f"s_mul_i32 s46, s46, {RA*BM}")
        a("s_lshl_b32 s3, s3, 3")
        a("s_add_u32 s3, s3, s46")
        a(f"v_lshrrev_b32 {v(PFV)}, 3, v1")
        a(f"v_add_u32 {v(PFV)}, s3, {v(PFV)}")
        a(f"v_mul_u32_u24 {v(PFV)}, {lda}, {v(PFV)}")
        a(f"v_and_b32 {v(t0)}, 7, v1")
        a(f"v_lshl_add_u32 {v(PFV)}, {v(t0)}, 4, {v(PFV)}")
        for i in range(4): a(f"s_mov_b32 s{84+i}, s{4+i}")
        a(f"s_mov_b32 s92, {l2pf*BK*2}")
        a(f"s_mov_b32 s93, {BK*2}")
        a(f"s_branch {ld}")
        a.label(lw)
        a(f"s_sub_u32 s3, s3, {NPA}")
        a(f"s_mul_i32 s3, s3, {N*2}")
        a(f"s_lshr_b32 s46, s29, {int(math.log2(RBN))}")
        a(f"s_mul_i32 s46, s46, {RBN*BN*2}")
        a("s_add_u32 s3, s3, s46")
        a(f"v_lshlrev_b32 {v(PFV)}, 4, v1")
        a(f"v_add_u32 {v(PFV)}, s3, {v(PFV)}")
        for i in range(4): a(f"s_mov_b32 s{84+i}, s{8+i}")
        a(f"s_mov_b32 s92, {l2pf*BK*N*2}")
        a(f"s_mov_b32 s93, {BK*N*2}")
        a.label(ld)
        a(f"s_mul_i32 s3, s93, {NSTAGE-1}")
        for j in range(NSTAGE - 1, l2pf):
            a(f"buffer_load_dwordx4 {v(PFD,4)}, {v(PFV)}, s[84:87], s3 offen")
            a("s_add_u32 s3, s3, s93")
    if splitk:
        a("s_xor_b32 s95, s92, 1")
        a(f"v_mov_b32 {v(PFL)}, 0")
        a("s_lshl_b32 s3, s96, 2")
        a(f"v_mov_b32 {v(PFA)}, s3")
        a("s_add_u32 s3, s3, s30")
        a("s_lshl_b32 s3, s3, 14")
        a(f"v_lshlrev_b32 {v(PPA)}, 4, v1")
        a(f"v_add_u32 {v(PPA)}, s3, {v(PPA)}")
    DRY = dry and not splitk
    if DRY:
        a.dry_begin(30, 95)
    stamp(1)
    lab_cpass = a.newlabel("L_cpass")
    a.label(lab_cpass)
    a("s_barrier")
    stamp(2)
    set_cur()
    reads(0, 0)
    a("s_waitcnt lgkmcnt(0)")
    inter(1, 1, 0)
    a("s_waitcnt lgkmcnt(0)")
    if splitk: a("s_sub_u32 s48, s93, 1")
    else: a(f"s_mov_b32 s48, {NS-1}")
    loop = a.newlabel("L_cloop")
    a.label(loop)
    a("s_barrier")
    set_cur()
    inter(0, 0, 1)
    a("s_waitcnt lgkmcnt(0)")
    inter(1, 1, 0)
    if l2pf:
        a(f"buffer_load_dwordx4 {v(PFD,4)}, {v(PFV)}, s[84:87], s92 offen")
        a("s_add_u32 s92, s92, s93")
    if spf and NS > 8 * spf[0]:
        lsp = a.newlabel("L_spf"); lspb = a.newlabel("L_spfb")
        a("s_and_b32 s3, s48, 7")
        a(f"s_cmp_eq_u32 s3, {spf[1]}")
        a(f"s_cbranch_scc1 {lsp}")
        a.label(lspb)
    if wpf:
        for q, (arg, nbytes, hi) in enumerate(wpf):
            n = (nbytes >> 20) if PFS == 4 else -(-(nbytes >> 10) // (64 << PFS))
            lsk = a.newlabel("L_wpfs")
            if hi < 0:
                a("s_bitcmp1_b32 s48, 0")
            else:
                a(f"s_sub_u32 s3, s48, {hi-n+1}")
                a(f"s_cmp_ge_u32 s3, {n}")
            a(f"s_cbranch_scc1 {lsk}")
            if PFS == 4:
                a(f"buffer_load_dwordx4 {v(PFD,4)}, {v(PFV)}, s[{84+4*q}:{87+4*q}], s{92+q} offen")
            else:
                a(f"buffer_load_dword {v(PFD)}, {v(PFV)}, s[{84+4*q}:{87+4*q}], s{92+q} offen")
            a(f"s_add_u32 s{92+q}, s{92+q}, {64 << PFS}")
            a.label(lsk)
    if splitk:
        cskip = a.newlabel("L_cskip"); cpoll = a.newlabel("L_cpoll")
        a("s_cmp_lg_u32 s95, 0")
        a(f"s_cbranch_scc1 {cskip}")
        a(f"v_readfirstlane_b32 s3, {v(PFL)}")
        a("s_nop 3")
        a("s_cmp_eq_u32 s3, 0")
        a(f"s_cbranch_scc1 {cpoll}")
        a("s_mov_b32 s95, 1")
        for t_ in range(MT * NTW):
            a(f"s_mov_b32 s3, {1024*t_}")
            a(f"buffer_load_dwordx4 {v(PRT+4*t_,4)}, {v(PPA)}, s[84:87], s3 offen")
        a(f"s_branch {cskip}")
        a.label(cpoll)
        if 'forcefb' not in EXP: a(f"buffer_load_dword {v(PFL)}, {v(PFA)}, s[88:91], 0 offen sc0 sc1")
        a.label(cskip)
    a("s_waitcnt lgkmcnt(0)")
    a("s_sub_u32 s48, s48, 1")
    a("s_cmp_lg_u32 s48, 0")
    a(f"s_cbranch_scc1 {loop}")
    stamp(3)
    if epi2:
        FROW = BN * 4 + 16
        assert BM * FROW <= STAGE * NSTAGE and (FROW // 4) % 32 == 4
        a("s_barrier")
        ml = mfma_list(1)
        a(f"v_and_b32 {v(t2)}, 15, v1")
        a("s_lshl_b32 s3, s44, 6")
        a(f"v_add_u32 {v(t2)}, s3, {v(t2)}")
        a(f"v_mul_u32_u24 {v(t2)}, {FROW}, {v(t2)}")
        a(f"v_bfe_u32 {v(t3)}, v1, 4, 1")
        a(f"v_mul_u32_u24 {v(t3)}, {BN*2}, {v(t3)}")
        a(f"v_add_u32 {v(t2)}, {v(t2)}, {v(t3)}")
        a(f"v_lshrrev_b32 {v(t3)}, 5, v1")
        a(f"v_lshl_add_u32 {v(t2)}, {v(t3)}, 4, {v(t2)}")
        a(f"s_mul_i32 s3, s45, {NTW*32}")
        a(f"v_add_u32 {v(t2)}, s3, {v(t2)}")
        wl = [f"ds_write_b128 {v(t2)}, {v(acc(nt,mt),4)} offset:{mt*16*FROW + nt*32}" for nt in range(NTW) for mt in range(MT)]
        for i, x in enumerate(ml):
            a(x)
            if i >= 6: a(wl[i - 6])
        a("s_nop 7")
        a("s_nop 7")
        for x in wl[len(ml) - 6:]: a(x)
        a("s_waitcnt lgkmcnt(0)")
        stamp(4)
        a("s_barrier")
        a(f"s_branch {lab_store}")
    else:
        mfmas(1)
    if ln and not pre:
        a("s_barrier")
    if splitk:
        lab_hi = a.newlabel("L_hi"); lab_epi = a.newlabel("L_epi"); lab_fb = a.newlabel("L_fb")
        a("s_cmp_lg_u32 s92, 0")
        a(f"s_cbranch_scc1 {lab_hi}")
        a("s_nop 7")
        for t_ in range(MT * NTW):
            a(f"s_mov_b32 s3, {1024*t_}")
            a(f"buffer_store_dwordx4 {v(ACC+4*t_,4)}, {v(PPA)}, s[84:87], s3 offen sc0 sc1")
        a("s_waitcnt vmcnt(0)")
        a("s_barrier")
        a("s_cmp_lg_u32 s30, 0")
        a(f"s_cbranch_scc1 {end}")
        a(f"v_mov_b32 {v(t1)}, 1")
        a("s_mov_b64 exec, 1")
        a(f"buffer_store_dword {v(t1)}, {v(PFA)}, s[88:91], 0 offen sc0 sc1")
        a(f"s_branch {end}")
        a.label(lab_hi)
        a("s_lshl_b32 s3, s30, 2")
        a(f"s_add_u32 s3, s3, {DONE}")
        a(f"v_mov_b32 {v(t0)}, s3")
        a(f"v_mov_b32 {v(t1)}, s95")
        a(f"ds_write_b32 {v(t0)}, {v(t1)}")
        a("s_waitcnt lgkmcnt(0)")
        a("s_barrier")
        a("s_cmp_eq_u32 s94, 2")
        a(f"s_cbranch_scc1 {lab_epi}")
        a(f"v_mov_b32 {v(t1)}, {DONE}")
        a(f"ds_read_b128 {v(FX[0],4)}, {v(t1)}")
        a("s_waitcnt lgkmcnt(0)")
        a(f"v_and_b32 {v(FX[0])}, {v(FX[0])}, {v(FX[0]+1)}")
        a(f"v_and_b32 {v(FX[0]+2)}, {v(FX[0]+2)}, {v(FX[0]+3)}")
        a(f"v_and_b32 {v(FX[0])}, {v(FX[0])}, {v(FX[0]+2)}")
        a("s_nop 0")
        a(f"v_readfirstlane_b32 s3, {v(FX[0])}")
        a("s_nop 3")
        a("s_cmp_eq_u32 s3, 1")
        a(f"s_cbranch_scc0 {lab_fb}")
        a("s_waitcnt vmcnt(0)")
        for t_ in range(MT * NTW):
            for j in range(2):
                a(f"v_pk_add_f32 {v(ACC+4*t_+2*j,2)}, {v(ACC+4*t_+2*j,2)}, {v(PRT+4*t_+2*j,2)}")
        a(f"s_branch {lab_epi}")
        a.label(lab_fb)
        a("s_mov_b32 s94, 2")
        a("s_mov_b32 s95, 1")
        a(f"s_mov_b32 s93, {NSLO}")
        a("s_mov_b32 s42, 0")
        a("s_barrier")
        a(f"s_branch {lab_cpass}")
        a.label(lab_epi)
    cut0 = len(a.lines)
    if DRY: a.dry_entry()
    RT = FX[0]; CS = RT + 8; BR = CS + 4 * NTW; BF = BR + 2 * NTW; GE = BF + 4 * NTW
    assert GE + 10 <= ACC
    a(f"v_and_b32 {v(t2)}, 15, v1")
    a("s_lshl_b32 s3, s44, 6")
    a(f"v_add_u32 {v(t2)}, s3, {v(t2)}")
    a(f"v_lshrrev_b32 {v(t3)}, 4, v1")
    a(f"s_mul_i32 s3, s45, {NTW*4}")
    a(f"v_add_u32 {v(t3)}, s3, {v(t3)}")
    if ln:
        a(f"v_lshlrev_b32 {v(t0)}, 3, {v(t2)}")
        a(f"v_add_u32 {v(t0)}, {RTAB}, {v(t0)}")
        for mt in range(MT):
            a(f"ds_read_b64 {v(RT+2*mt,2)}, {v(t0)} offset:{128*mt}")
        a(f"v_lshlrev_b32 {v(t0)}, 4, {v(t3)}")
        a(f"v_add_u32 {v(t0)}, {CTAB}, {v(t0)}")
        for nt in range(NTW):
            a(f"ds_read_b128 {v(CS+4*nt,4)}, {v(t0)} offset:{64*nt}")
    if bias_arg and pre:
        a(f"v_lshlrev_b32 {v(t0)}, 3, {v(t3)}")
        a(f"v_add_u32 {v(t0)}, {EPI}, {v(t0)}")
        for nt in range(NTW):
            a(f"ds_read_b64 {v(BR+2*nt,2)}, {v(t0)} offset:{32*nt}")
    vc = vT[0]
    a(f"v_mul_u32_u24 {v(t2)}, {CROW}, {v(t2)}")
    a(f"v_lshl_add_u32 {v(vc)}, {v(t3)}, 3, {v(t2)}")
    if CBASE: a(f"v_add_u32 {v(vc)}, {CBASE}, {v(vc)}")
    if epi == 'gelu':
        c2 = 2 * math.log2(math.e)
        k1 = struct.unpack("<I", struct.pack("<f", 0.7978845608 * c2))[0]
        k3 = struct.unpack("<I", struct.pack("<f", 0.7978845608 * 0.044715 * c2))[0]
        a(f"s_mov_b32 s52, {k3}"); a(f"s_mov_b32 s53, {k3}")
        a(f"v_mov_b32 {v(GE+8)}, {k1}"); a(f"v_mov_b32 {v(GE+9)}, {k1}")
        a("s_mov_b32 s56, 1.0"); a("s_mov_b32 s57, 1.0")
    a("s_waitcnt vmcnt(0) lgkmcnt(0)" if (bias_arg and not pre) else "s_waitcnt lgkmcnt(0)")
    a("s_nop 7")
    if bias_arg:
        bsrc = BR if pre else PBI
        for nt in range(NTW):
            for j in range(2):
                a(f"v_lshlrev_b32 {v(BF+4*nt+2*j)}, 16, {v(bsrc+2*nt+j)}")
                a(f"v_and_b32 {v(BF+4*nt+2*j+1)}, 0xffff0000, {v(bsrc+2*nt+j)}")
    for nt in range(NTW):
        if DRY and nt in dry: a.dry_mark()
        for mp in range(0, MT, 2):
            c0 = acc(nt, mp)
            for q in range(2):
                mt = mp + q
                for j in range(2):
                    cc = v(c0 + 4 * q + 2 * j, 2)
                    tt = v(GE + 4 * q + 2 * j, 2)
                    if ln:
                        if bias_arg:
                            a(f"v_pk_fma_f32 {tt}, {v(CS+4*nt+2*j,2)}, {v(RT+2*mt,2)}, {v(BF+4*nt+2*j,2)} op_sel:[0,1,0] op_sel_hi:[1,1,1]")
                        else:
                            a(f"v_pk_mul_f32 {tt}, {v(CS+4*nt+2*j,2)}, {v(RT+2*mt,2)} op_sel:[0,1] op_sel_hi:[1,1]")
                    elif bias_arg:
                        a(f"v_pk_add_f32 {cc}, {cc}, {v(BF+4*nt+2*j,2)}")
            if ln:
                for q in range(2):
                    mt = mp + q
                    for j in range(2):
                        cc = v(c0 + 4 * q + 2 * j, 2)
                        tt = v(GE + 4 * q + 2 * j, 2)
                        a(f"v_pk_fma_f32 {cc}, {cc}, {v(RT+2*mt,2)}, {tt} op_sel:[0,0,0] op_sel_hi:[1,0,1]")
            if epi == 'gelu':
                for j in range(4):
                    a(f"v_pk_mul_f32 {v(GE+2*j,2)}, {v(c0+2*j,2)}, {v(c0+2*j,2)}")
                for j in range(4):
                    a(f"v_pk_fma_f32 {v(GE+2*j,2)}, {v(GE+2*j,2)}, s[52:53], {v(GE+8,2)}")
                for j in range(4):
                    a(f"v_pk_mul_f32 {v(GE+2*j,2)}, {v(GE+2*j,2)}, {v(c0+2*j,2)}")
                for r in range(8):
                    a(f"v_exp_f32 {v(GE+r)}, {v(GE+r)}")
                a("s_nop 0")
                for j in range(4):
                    a(f"v_pk_add_f32 {v(GE+2*j,2)}, {v(GE+2*j,2)}, s[56:57]")
                for r in range(8):
                    a(f"v_rcp_f32 {v(GE+r)}, {v(GE+r)}")
                a("s_nop 0")
                for j in range(4):
                    cc = v(c0 + 2 * j, 2)
                    a(f"v_pk_fma_f32 {cc}, {cc}, {v(GE+2*j,2)}, {cc} neg_lo:[1,0,0] neg_hi:[1,0,0]")
            for j in range(4):
                a(f"v_cvt_pk_bf16_f32 {v(c0+j)}, {v(c0+2*j)}, {v(c0+2*j+1)}")
            for q in range(2):
                a(f"ds_write_b64 {v(vc)}, {v(c0+2*q,2)} offset:{(mp+q)*16*CROW + nt*32}")
    if DRY: a(f"s_cbranch_execz {lab_store}")
    a("s_waitcnt lgkmcnt(0)")
    stamp(4)
    a("s_barrier")
    a(f"s_branch {lab_store}")
    if epi2: del a.lines[cut0:]

    if spf and NS > 8 * spf[0]:
        a.label(lsp)
        spf1()
        a(f"s_branch {lspb}")
    a.label(lab_loader)
    if 'noprio' not in EXP: a("s_setprio 2")
    if w2copy: a(f"s_load_dwordx2 s[94:95], s[0:1], {ARG['w2']}")
    NPL = (BN // 16 + 3) // 4
    LSA = 40
    LCW = 44
    LSC = 48; LCC = 52
    LONE = 56
    LST = 60
    LMS = 132
    LCS = 68
    LSD = 84
    LWD = 100
    assert vT[7] < 40
    a(f"s_mul_i32 s3, s30, {PA*8}")
    a(f"v_lshrrev_b32 {v(t0)}, 3, v1")
    a(f"v_add_u32 {v(t0)}, s3, {v(t0)}")
    a(f"s_mul_i32 s3, s28, {BM}")
    for i in range(PA):
        a(f"v_add_u32 {v(t1)}, {8*i}, {v(t0)}")
        a(f"v_lshrrev_b32 {v(t2)}, 1, {v(t1)}")
        a(f"v_and_b32 {v(t2)}, 7, {v(t2)}")
        a(f"v_and_b32 {v(t3)}, 7, v1")
        a(f"v_xor_b32 {v(t2)}, {v(t2)}, {v(t3)}")
        if ATILE:
            a(f"v_lshlrev_b32 {v(t1)}, 7, {v(t1)}")
            a(f"s_mul_i32 s46, s3, {lda}")
            a(f"v_add_u32 {v(t1)}, s46, {v(t1)}")
        else:
            a(f"v_add_u32 {v(t1)}, s3, {v(t1)}")
            a(f"v_mul_u32_u24 {v(t1)}, {lda}, {v(t1)}")
        a(f"v_lshl_add_u32 {v(vA[i])}, {v(t2)}, 4, {v(t1)}")
    a(f"s_mul_i32 s3, s29, {BN*2*(K if BTILE else 1)}")
    NW2 = BN * 2 if BTILE else N * 2
    if RB == 448:
        a(f"s_mov_b32 s47, {((1 << 32) + 27) // 28}")
        for i in range(PB):
            a(f"s_mul_i32 s46, s30, {PB*64}")
            a(f"s_add_u32 s46, s46, {i*64}")
            a(f"v_add_u32 {v(t1)}, s46, v1")
            a(f"v_mul_hi_u32 {v(t0)}, {v(t1)}, s47")
            a(f"v_mul_u32_u24 {v(t2)}, 28, {v(t0)}")
            a(f"v_sub_u32 {v(t1)}, {v(t1)}, {v(t2)}")
            a(f"v_bfe_u32 {v(t2)}, {v(t0)}, 3, 1")
            a(f"v_lshlrev_b32 {v(t2)}, 1, {v(t2)}")
            a(f"v_xor_b32 {v(t1)}, {v(t1)}, {v(t2)}")
            a(f"v_mul_u32_u24 {v(t0)}, {NW2}, {v(t0)}")
            a(f"v_lshl_add_u32 {v(t0)}, {v(t1)}, 4, {v(t0)}")
            a(f"v_add_u32 {v(vB[i])}, s3, {v(t0)}")
    else:
      CPR = RB // 16
      lg_cpr = int(math.log2(CPR))
      RPP = 1024 // RB
      PPB = RB // 16
      lg_ppb = int(math.log2(PPB))
      for i in range(PB):
        a(f"s_mul_i32 s46, s30, {PB}")
        a(f"s_add_u32 s46, s46, {i}")
        a(f"s_lshr_b32 s47, s46, {lg_ppb}")
        a(f"s_and_b32 s46, s46, {PPB-1}")
        a(f"s_mul_i32 s46, s46, {RPP}")
        a(f"s_mul_i32 s47, s47, {RB}")
        a("s_add_u32 s47, s47, s3")
        a(f"v_lshrrev_b32 {v(t0)}, {lg_cpr}, v1")
        a(f"v_add_u32 {v(t0)}, s46, {v(t0)}")
        a(f"v_and_b32 {v(t1)}, {CPR-1}, v1")
        if RB == 256:
            a(f"v_and_b32 {v(t2)}, 3, {v(t0)}")
            a(f"v_bfe_u32 {v(t3)}, {v(t0)}, 3, 1")
            a(f"v_lshl_add_u32 {v(t2)}, {v(t3)}, 2, {v(t2)}")
        elif RB == 128:
            a(f"v_bfe_u32 {v(t2)}, {v(t0)}, 1, 1")
            a(f"v_bfe_u32 {v(t3)}, {v(t0)}, 3, 1")
            a(f"v_lshl_add_u32 {v(t2)}, {v(t3)}, 1, {v(t2)}")
        elif RB == 64:
            a(f"v_bfe_u32 {v(t2)}, {v(t0)}, 3, 1")
        else:
            a(f"v_mov_b32 {v(t2)}, 0")
        a(f"v_lshlrev_b32 {v(t2)}, 1, {v(t2)}")
        a(f"v_xor_b32 {v(t1)}, {v(t1)}, {v(t2)}")
        a(f"v_mul_u32_u24 {v(t0)}, {NW2}, {v(t0)}")
        a(f"v_lshl_add_u32 {v(t0)}, {v(t1)}, 4, {v(t0)}")
        a(f"v_add_u32 {v(vB[i])}, s47, {v(t0)}")
    a(f"s_mul_i32 s31, s30, {PA*1024}")
    a(f"s_mul_i32 s32, s30, {PB*1024}")
    a(f"s_add_u32 s32, s32, {ABYTES}")
    a("s_mov_b32 s40, 0")
    a("s_mov_b32 s41, 0")
    a("s_mov_b32 s43, 0")
    a("s_mov_b32 s42, 0")
    build_srds()
    if zero_flags:
        lz = a.newlabel("L_nz")
        a("s_cmp_lg_u32 s2, 0")
        a(f"s_cbranch_scc1 {lz}")
        srd(a, 92, 24, WS_FLAG, 512)
        a(f"v_lshlrev_b32 {v(t0)}, 3, v1")
        a("v_mov_b32 v44, 0")
        a("v_mov_b32 v45, 0")
        a(f"buffer_store_dwordx2 v[44:45], {v(t0)}, s[92:95], 0 offen")
        a.label(lz)
    if splitk:
        a(f"s_mul_i32 s40, s92, {NSLO*BK*2*(BM if ATILE else 1)}")
        a(f"s_mul_i32 s41, s92, {NSLO*BK*NW2}")
        lab_lpass = a.newlabel("L_lpass")
        a.label(lab_lpass)

    def dma():
        if 'nodma' in EXP: return
        a("s_add_u32 s33, s43, s31")
        for i in range(PA):
            a(f"s_add_u32 m0, s33, {i*1024}")
            a("s_nop 0")
            a(f"buffer_load_dwordx4 {v(vA[i])}, s[4:7], s40 offen lds")
        a("s_add_u32 s33, s43, s32")
        for i in range(PB):
            a(f"s_add_u32 m0, s33, {i*1024}")
            a("s_nop 0")
            a(f"buffer_load_dwordx4 {v(vB[i])}, s[8:11], s41 offen lds")
        a(f"s_add_u32 s40, s40, {BK*2*(BM if ATILE else 1)}")
        a(f"s_add_u32 s41, s41, {BK*NW2}")
        if 'kwrap' in EXP:
            KW = int(os.environ.get('KW', '8'))
            a(f"s_cmp_ge_u32 s40, {KW*BK*2}")
            a("s_cselect_b32 s40, 0, s40")
            a("s_cselect_b32 s41, 0, s41")
        a(f"s_add_u32 s43, s43, {STAGE}")
        a(f"s_cmp_ge_u32 s43, {STAGE*NSTAGE}")
        a("s_cselect_b32 s43, 0, s43")

    stamp(1)
    if pre:
        a(f"v_lshrrev_b32 {v(LSA)}, 1, v1")
        a("s_lshl_b32 s3, s30, 5")
        a(f"v_add_u32 {v(LSA)}, s3, {v(LSA)}")
        a(f"s_mul_i32 s3, s28, {BM}")
        a(f"v_add_u32 {v(t0)}, s3, {v(LSA)}")
        a(f"v_lshlrev_b32 {v(t0)}, 7, {v(t0)}")
        a(f"v_and_b32 {v(t1)}, 1, v1")
        a(f"v_lshl_add_u32 {v(t0)}, {v(t1)}, 6, {v(t0)}")
        for i in range(4):
            a(f"buffer_load_dwordx4 {v(LSD+4*i,4)}, {v(t0)}, s[84:87], 0 offen offset:{16*i}")
    if st_bias:
        a(f"v_lshlrev_b32 {v(t0)}, 4, v1")
        a(f"s_mul_i32 s3, s29, {BN*2}")
        a(f"s_mov_b32 m0, {EPI}")
        a("s_nop 0")
        a(f"buffer_load_dwordx4 {v(t0)}, s[20:23], s3 offen lds")
        a(f"s_mul_i32 s3, s29, {BN*4}")
        a(f"s_mul_i32 s46, s30, {4*N*4}")
        a("s_add_u32 s3, s3, s46")
        for g_ in range(4):
            a(f"buffer_load_dwordx4 {v(LWD+4*g_,4)}, {v(t0)}, s[88:91], s3 offen")
            a(f"s_add_u32 s3, s3, {N*4}")
    for _ in range(NSTAGE - 1):
        dma()
    stamp(2)
    if ln and not pre:
        wfrag_addr_common()
        for i in range(NPL):
            a(f"s_mul_i32 s46, s30, {NPL}")
            a(f"s_add_u32 s46, s46, {i}")
            a(f"s_min_u32 s46, s46, {BN//16-1}")
            wfrag_addr(LCW + i)
        for i in range(4):
            a(f"v_mov_b32 {v(LONE+i)}, 0x3f803f80")
        for i in range(16):
            a(f"v_mov_b32 {v(LMS+i)}, 0")
        a(f"v_and_b32 {v(t0)}, 15, v1")
        a("s_lshl_b32 s3, s30, 5")
        a(f"v_add_u32 {v(t0)}, s3, {v(t0)}")
        a(f"v_lshlrev_b32 {v(t0)}, 7, {v(t0)}")
        a(f"v_lshrrev_b32 {v(t1)}, 4, v1")
        a(f"v_bfe_u32 {v(t2)}, v1, 1, 3")
        a(f"v_xor_b32 {v(t3)}, {v(t1)}, {v(t2)}")
        a(f"v_lshl_add_u32 {v(LSA)}, {v(t3)}, 4, {v(t0)}")
        a(f"v_xor_b32 {v(t3)}, 4, {v(t3)}")
        a(f"v_lshl_add_u32 {v(LSA+1)}, {v(t3)}, 4, {v(t0)}")
        for i in range(4 * NPL):
            a(f"v_mov_b32 {v(LCS+i)}, 0")

    def stats_reads():
        for i in range(2):
            a(f"v_add_u32 {v(LSC+i)}, s42, {v(LSA+i)}")
        for i in range(NPL):
            a(f"v_add_u32 {v(LCC+i)}, s42, {v(LCW+i)}")
        a(f"s_add_u32 s42, s42, {STAGE}")
        a(f"s_cmp_ge_u32 s42, {STAGE*NSTAGE}")
        a("s_cselect_b32 s42, 0, s42")
        for q in range(2):
            for kk in range(2):
                a(f"ds_read_b128 {v(LSD+8*q+4*kk,4)}, {v(LSC+kk)} offset:{2048*q}")
        for i in range(NPL):
            for kk in range(2):
                for rd in range(2):
                    a(f"ds_read_b64_tr_b16 {v(LWD+8*i+4*kk+2*rd,2)}, {v(LCC+i)} offset:{kk*32*RB+rd*4*RB}")

    def stats_math():
        a("s_waitcnt lgkmcnt(0)")
        for i in range(NPL):
            for kk in range(2):
                a(f"v_mfma_f32_16x16x32_bf16 {v(LCS+4*i,4)}, {v(LWD+8*i+4*kk,4)}, {v(LONE,4)}, {v(LCS+4*i,4)}")
        for kk in range(2):
            for q in range(2):
                d = v(LSD + 8 * q + 4 * kk, 4)
                a(f"v_mfma_f32_16x16x32_bf16 {v(LMS+8*q,4)}, {d}, {v(LONE,4)}, {v(LMS+8*q,4)}")
                a(f"v_mfma_f32_16x16x32_bf16 {v(LMS+8*q+4,4)}, {d}, {d}, {v(LMS+8*q+4,4)}")

    nloop = NS - NSTAGE + 1
    if splitk: a(f"s_sub_u32 s48, s93, {NSTAGE-1}")
    else: a(f"s_mov_b32 s48, {nloop}")
    lloop = a.newlabel("L_lloop")
    a.label(lloop)
    a(f"s_waitcnt vmcnt({(NSTAGE-2)*P})")
    a("s_barrier")
    if ln and not pre: stats_reads()
    dma()
    if ln and not pre: stats_math()
    a("s_sub_u32 s48, s48, 1")
    a("s_cmp_lg_u32 s48, 0")
    a(f"s_cbranch_scc1 {lloop}")
    if pre:
        for i in range(1, 8):
            a(f"v_add_f32 {v(LSD)}, {v(LSD)}, {v(LSD+2*i)}")
            a(f"v_add_f32 {v(LSD+1)}, {v(LSD+1)}, {v(LSD+2*i+1)}")
        a("s_nop 1")
        for k_ in range(2):
            a(f"v_add_f32_dpp {v(LST+k_)}, {v(LSD+k_)}, {v(LSD+k_)} quad_perm:[1,0,3,2] row_mask:0xf bank_mask:0xf")
        sm, sq, r1, r2 = LST, LST + 1, LSD, LSD + 1
        a(f"v_mul_f32 {v(sm)}, {hex_f32(1.0/K)}, {v(sm)}")
        a(f"v_mul_f32 {v(sq)}, {hex_f32(1.0/K)}, {v(sq)}")
        a(f"v_fma_f32 {v(sq)}, -{v(sm)}, {v(sm)}, {v(sq)}")
        a(f"v_max_f32 {v(sq)}, 0, {v(sq)}")
        a(f"v_add_f32 {v(r1)}, {hex_f32(1e-5)}, {v(sq)}")
        a(f"v_rsq_f32 {v(r1)}, {v(r1)}")
        a("s_nop 0")
        if ln == 'double':
            a(f"v_mul_f32 {v(r2)}, {v(r1)}, {v(r1)}")
            a(f"v_mul_f32 {v(r2)}, {v(r2)}, {v(sq)}")
            a(f"v_add_f32 {v(r2)}, {hex_f32(1e-5)}, {v(r2)}")
            a(f"v_rsq_f32 {v(r2)}, {v(r2)}")
            a("s_nop 0")
            a(f"v_mul_f32 {v(r1)}, {v(r1)}, {v(r2)}")
        a(f"v_mul_f32 {v(r2)}, {v(sm)}, {v(r1)}")
        a(f"v_sub_f32 {v(r2)}, 0, {v(r2)}")
        a(f"v_lshlrev_b32 {v(LSC)}, 3, {v(LSA)}")
        a(f"v_add_u32 {v(LSC)}, {RTAB}, {v(LSC)}")
        a(f"ds_write_b64 {v(LSC)}, {v(LSD,2)}")
        for g_ in range(1, 4):
            for j in range(2):
                a(f"v_pk_add_f32 {v(LWD+2*j,2)}, {v(LWD+2*j,2)}, {v(LWD+4*g_+2*j,2)}")
        a(f"v_lshlrev_b32 {v(t0)}, 4, v1")
        a(f"v_add_u32 {v(t0)}, {EPI+3072}, {v(t0)}")
        a("s_lshl_b32 s3, s30, 10")
        a(f"v_add_u32 {v(t1)}, s3, {v(t0)}")
        a(f"ds_write_b128 {v(t1)}, {v(LWD,4)}")
        a("s_waitcnt lgkmcnt(0)")
    if st_res:
        npc = BM * BN * 2 // 4096
        rpp = 1024 // (BN * 2)
        lpr = BN * 2 // 16
        a(f"v_lshrrev_b32 {v(t0)}, {int(math.log2(lpr))}, v1")
        a(f"s_mul_i32 s3, s30, {npc*rpp}")
        a(f"s_mul_i32 s46, s28, {BM}")
        a("s_add_u32 s3, s3, s46")
        a(f"v_add_u32 {v(t0)}, s3, {v(t0)}")
        a(f"v_mul_u32_u24 {v(t0)}, {N*2}, {v(t0)}")
        a(f"v_and_b32 {v(t1)}, {lpr-1}, v1")
        a(f"v_lshl_add_u32 {v(t0)}, {v(t1)}, 4, {v(t0)}")
        a(f"s_mul_i32 s3, s29, {BN*2}")
        a(f"v_add_u32 {v(t0)}, s3, {v(t0)}")
        a(f"s_mul_i32 s33, s30, {npc*1024}")
        for i in range(npc):
            a(f"s_add_u32 m0, s33, {EPI + i*1024}")
            a(f"s_mov_b32 s3, {i*rpp*N*2}")
            a(f"buffer_load_dwordx4 {v(t0)}, s[16:19], s3 offen lds")
    for j in range(NS - NSTAGE + 1, NS):
        a(f"s_waitcnt vmcnt({(NS-1-j)*P + NEX})")
        a("s_barrier")
        if pre and j == NS - NSTAGE + 1:
            assert NSTAGE >= 3
            lcs = a.newlabel("L_lcs")
            a("s_cmp_lg_u32 s30, 0")
            a(f"s_cbranch_scc1 {lcs}")
            for g_ in range(4):
                a(f"ds_read_b128 {v(LWD+4*g_,4)}, {v(t0)} offset:{1024*g_}")
            a("s_waitcnt lgkmcnt(0)")
            for g_ in range(1, 4):
                for j_ in range(2):
                    a(f"v_pk_add_f32 {v(LWD+2*j_,2)}, {v(LWD+2*j_,2)}, {v(LWD+4*g_+2*j_,2)}")
            a(f"v_subrev_u32 {v(t0)}, {EPI+3072-CTAB}, {v(t0)}")
            a(f"ds_write_b128 {v(t0)}, {v(LWD,4)}")
            a("s_waitcnt lgkmcnt(0)")
            a.label(lcs)
        if ln and not pre:
            stats_reads()
            stats_math()
    stamp(3)
    if epi2: a("s_barrier")
    if w2copy:
        a("s_lshl_b32 s92, s2, 2")
        a("s_add_u32 s92, s92, s30")
        a(f"v_lshrrev_b32 {v(t0)}, 3, v1")
        a(f"v_and_b32 {v(t1)}, 7, v1")
        a(f"v_lshlrev_b32 {v(t1)}, 4, {v(t1)}")
        a(f"v_lshl_add_u32 {v(W2A)}, {v(t0)}, 11, {v(t1)}")
        a("s_lshr_b32 s3, s92, 6")
        a("s_lshl_b32 s3, s3, 7")
        a("s_and_b32 s46, s92, 63")
        a(f"s_mul_i32 s46, s46, {56*D*2}")
        a("s_add_u32 s3, s3, s46")
        srd(a, 88, 94, 0, F * D * 2)
        for j in range(7):
            a(f"buffer_load_dwordx4 {v(W2S+4*j,4)}, {v(W2A)}, s[88:91], s3 offen")
            a(f"s_add_u32 s3, s3, {8*D*2}")
        def w2store(extra):
            srd(a, 88, 24, WS_W2T, F * D * 2)
            a("s_mul_i32 s3, s92, 7168")
            a(f"v_lshlrev_b32 {v(W2A)}, 4, v1")
            for j in range(7):
                if j == 4: a("s_add_u32 s3, s3, 4096")
                a(f"s_waitcnt vmcnt({6+extra})")
                a(f"buffer_store_dwordx4 {v(W2S+4*j,4)}, {v(W2A)}, s[88:91], s3 offen offset:{1024*(j&3)}")
        if not epi2: w2store(0)
    if ln and not pre:
        a("s_nop 7")
        a(f"v_and_b32 {v(t0)}, 3, v1")
        for r in range(1, 4):
            a(f"v_cmp_eq_u32 s[{48+2*r}:{49+2*r}], {r}, {v(t0)}")
        X0 = LSD
        for i in range(2):
            sm, sq = LST + 2 * i, LST + 2 * i + 1
            r1, r2 = X0 + 2 * i, X0 + 2 * i + 1
            for dst, src in ((sm, LMS + 8 * i), (sq, LMS + 8 * i + 4)):
                a(f"v_cndmask_b32 {v(dst)}, {v(src)}, {v(src+1)}, s[50:51]")
                a(f"v_cndmask_b32 {v(dst)}, {v(dst)}, {v(src+2)}, s[52:53]")
                a(f"v_cndmask_b32 {v(dst)}, {v(dst)}, {v(src+3)}, s[54:55]")
            a(f"v_mul_f32 {v(sm)}, {hex_f32(1.0/K)}, {v(sm)}")
            a(f"v_mul_f32 {v(sq)}, {hex_f32(1.0/K)}, {v(sq)}")
            a(f"v_fma_f32 {v(sq)}, -{v(sm)}, {v(sm)}, {v(sq)}")
            a(f"v_max_f32 {v(sq)}, 0, {v(sq)}")
            a(f"v_add_f32 {v(r1)}, {hex_f32(1e-5)}, {v(sq)}")
            a(f"v_rsq_f32 {v(r1)}, {v(r1)}")
            a("s_nop 0")
            assert ln == 'single'
            a(f"v_mul_f32 {v(r2)}, {v(sm)}, {v(r1)}")
            a(f"v_sub_f32 {v(r2)}, 0, {v(r2)}")
        a(f"v_lshrrev_b32 {v(LSC)}, 7, {v(LSA)}")
        a(f"v_lshlrev_b32 {v(LSC)}, 3, {v(LSC)}")
        a(f"v_add_u32 {v(LSC)}, {RTAB}, {v(LSC)}")
        a(f"v_lshrrev_b32 {v(t0)}, 4, v1")
        a(f"v_lshlrev_b32 {v(t0)}, 4, {v(t0)}")
        for i in range(NPL):
            a(f"s_mul_i32 s46, s30, {NPL}")
            a(f"s_add_u32 s46, s46, {i}")
            a(f"s_min_u32 s46, s46, {BN//16-1}")
            a("s_lshl_b32 s46, s46, 6")
            a(f"s_add_u32 s46, s46, {CTAB}")
            a(f"v_add_u32 {v(LCC+i)}, s46, {v(t0)}")
    if ln and not pre:
        a("s_mov_b32 exec_lo, 0x00f0000f")
        a("s_mov_b32 exec_hi, 0xf0000f00")
        for i in range(2):
            a(f"ds_write_b64 {v(LSC)}, {v(LSD+2*i,2)} offset:{128*i}")
        a("s_mov_b64 exec, -1")
        for i in range(NPL):
            a(f"ds_write_b128 {v(LCC+i)}, {v(LCS+4*i,4)}")
        a("s_waitcnt lgkmcnt(0)")
        a("s_barrier")
    if NEX: a("s_waitcnt vmcnt(0)")
    if splitk:
        lhi = a.newlabel("L_lhi"); lepi = a.newlabel("L_lepi")
        a("s_cmp_lg_u32 s92, 0")
        a(f"s_cbranch_scc1 {lhi}")
        a("s_barrier")
        a(f"s_branch {end}")
        a.label(lhi)
        a("s_barrier")
        a("s_cmp_eq_u32 s94, 2")
        a(f"s_cbranch_scc1 {lepi}")
        a(f"v_mov_b32 {v(t1)}, {DONE}")
        a(f"ds_read_b128 {v(44,4)}, {v(t1)}")
        a("s_waitcnt lgkmcnt(0)")
        a("v_and_b32 v44, v44, v45")
        a("v_and_b32 v46, v46, v47")
        a("v_and_b32 v44, v44, v46")
        a("s_nop 0")
        a("v_readfirstlane_b32 s3, v44")
        a("s_nop 3")
        a("s_cmp_eq_u32 s3, 1")
        a(f"s_cbranch_scc1 {lepi}")
        a("s_mov_b32 s94, 2")
        a(f"s_mov_b32 s93, {NSLO}")
        a("s_mov_b32 s40, 0"); a("s_mov_b32 s41, 0"); a("s_mov_b32 s43, 0")
        a("s_barrier")
        a(f"s_branch {lab_lpass}")
        a.label(lepi)
    stamp(4)
    a("s_barrier")

    a.label(lab_store)
    if epi2:
        CPRW = BN // 8
        assert CPRW == 28 and otile
        vL, vR, vO = 2, 3, 4
        CSr, BFr, Dr, RCr, Gr, Or, K1 = 8, 16, [24, 32], [40, 42], 44, [52, 56], 60
        c2 = 2 * math.log2(math.e)
        k1 = struct.unpack("<I", struct.pack("<f", -0.7978845608 * c2))[0]
        k3 = struct.unpack("<I", struct.pack("<f", -0.7978845608 * 0.044715 * c2))[0]
        a("s_setprio 0")
        a(f"v_cmp_le_u32 s[46:47], {CPRW}, v1")
        a(f"v_mov_b32 v5, 0")
        a(f"v_cndmask_b32 v5, v5, 1, s[46:47]")
        a(f"v_mul_u32_u24 v6, {CPRW}, v5")
        a(f"v_sub_u32 v6, v1, v6")
        a("s_lshl_b32 s3, s49, 1")
        a("v_add_u32 v5, s3, v5")
        a("s_mov_b32 exec_hi, 0x00ffffff")
        a(f"v_lshlrev_b32 v7, 5, v6")
        a(f"v_add_u32 v7, {CTAB}, v7")
        a(f"ds_read_b128 {v(CSr,4)}, v7")
        a(f"ds_read_b128 {v(CSr+4,4)}, v7 offset:16")
        a(f"v_lshlrev_b32 v7, 4, v6")
        a(f"v_add_u32 v62, {EPI}, v7")
        a(f"ds_read_b128 {v(Gr,4)}, v62")
        a(f"v_mul_u32_u24 {v(vL)}, {FROW}, v5")
        a(f"v_add_u32 {v(vL)}, {v(vL)}, v7")
        a(f"v_lshlrev_b32 {v(vR)}, 3, v5")
        a(f"v_add_u32 {v(vR)}, {RTAB}, {v(vR)}")

        def rd(b):
            a(f"ds_read_b128 {v(Dr[b],4)}, {v(vL)}")
            a(f"ds_read_b128 {v(Dr[b]+4,4)}, {v(vL)} offset:{BN*2}")
            a(f"ds_read_b64 {v(RCr[b],2)}, {v(vR)}")
            a(f"v_add_u32 {v(vL)}, {16*FROW}, {v(vL)}")
            a(f"v_add_u32 {v(vR)}, 128, {v(vR)}")
        rd(0)
        a(f"s_mul_i32 s3, s29, {CPRW}")
        a("v_add_u32 v6, s3, v6")
        a("v_lshrrev_b32 v7, 3, v6")
        a("v_lshlrev_b32 v7, 14, v7")
        a("v_lshl_add_u32 v7, v5, 7, v7")
        a("v_and_b32 v6, 7, v6")
        a(f"v_lshl_add_u32 {v(vO)}, v6, 4, v7")
        a(f"s_mul_i32 s50, s28, {BM*ldo}")
        a(f"s_mov_b32 s52, {k3}"); a(f"s_mov_b32 s53, {k3}")
        a(f"v_mov_b32 {v(K1)}, {k1}"); a(f"v_mov_b32 {v(K1+1)}, {k1}")
        a("s_mov_b32 s56, 1.0"); a("s_mov_b32 s57, 1.0")
        a("s_waitcnt lgkmcnt(3)")
        for j in range(4):
            a(f"v_lshlrev_b32 {v(BFr+2*j)}, 16, {v(Gr+j)}")
            a(f"v_and_b32 {v(BFr+2*j+1)}, 0xffff0000, {v(Gr+j)}")
        stamp(5)
        a(f"s_mov_b32 s48, {BM//32}")
        lp = a.newlabel("L_ep")
        a.label(lp)
        for b in range(2):
            rd(1 - b)
            a("s_waitcnt lgkmcnt(3)")
            d = Dr[b]; rc = v(RCr[b], 2)
            for j in range(4):
                a(f"v_pk_fma_f32 {v(Gr+2*j,2)}, {v(CSr+2*j,2)}, {rc}, {v(BFr+2*j,2)} op_sel:[0,1,0] op_sel_hi:[1,1,1]")
            for j in range(4):
                a(f"v_pk_fma_f32 {v(d+2*j,2)}, {v(d+2*j,2)}, {rc}, {v(Gr+2*j,2)} op_sel:[0,0,0] op_sel_hi:[1,0,1]")
            for j in range(4):
                a(f"v_pk_mul_f32 {v(Gr+2*j,2)}, {v(d+2*j,2)}, {v(d+2*j,2)}")
            for j in range(4):
                a(f"v_pk_fma_f32 {v(Gr+2*j,2)}, {v(Gr+2*j,2)}, s[52:53], {v(K1,2)}")
            for j in range(4):
                a(f"v_pk_mul_f32 {v(Gr+2*j,2)}, {v(Gr+2*j,2)}, {v(d+2*j,2)}")
            for r in range(8):
                a(f"v_exp_f32 {v(Gr+r)}, {v(Gr+r)}")
            a("s_nop 0")
            for j in range(4):
                a(f"v_pk_add_f32 {v(Gr+2*j,2)}, {v(Gr+2*j,2)}, s[56:57]")
            for r in range(8):
                a(f"v_rcp_f32 {v(Gr+r)}, {v(Gr+r)}")
            a("s_nop 0")
            for j in range(4):
                a(f"v_pk_mul_f32 {v(d+2*j,2)}, {v(d+2*j,2)}, {v(Gr+2*j,2)}")
            for j in range(4):
                a(f"v_cvt_pk_bf16_f32 {v(Or[b]+j)}, {v(d+2*j)}, {v(d+2*j+1)}")
            a(f"buffer_store_dwordx4 {v(Or[b],4)}, {v(vO)}, s[12:15], s50 offen {STMOD}")
            a("s_add_u32 s50, s50, 2048")
        a("s_sub_u32 s48, s48, 1")
        a("s_cmp_lg_u32 s48, 0")
        a(f"s_cbranch_scc1 {lp}")
        a("s_mov_b64 exec, -1")
        a("s_waitcnt lgkmcnt(0)")
        if w2copy:
            lw = a.newlabel("L_nw2")
            a("s_cmp_lt_u32 s49, 4")
            a(f"s_cbranch_scc1 {lw}")
            w2store(BM // 16)
            a.label(lw)
        stamp(6)
        if 'stamp' in EXP: a("s_waitcnt vmcnt(0)")
        stamp(7)
        stamp_out()
        a.label(end)
        a("s_endpgm")
        return dict(name=name, grid=ntiles, block=512, lds=lds, desc=kernel_desc(name, max(nvgpr, 168)))
    CPRW = BN // 8
    NIT = BM * CPRW // 512
    assert NIT * 512 == BM * CPRW
    magic = ((1 << 32) + CPRW - 1) // CPRW
    a(f"s_mov_b32 s46, {magic}")
    a(f"s_mul_i32 s3, s49, {NIT*64}")
    a(f"v_add_u32 {v(t0)}, s3, v1")
    a(f"s_mul_i32 s3, s28, {BM*ldo if otile else BM}")
    a(f"s_mul_i32 s47, s29, {CPRW if otile else BN*2}")
    R0 = (vT[7] + 4) // 4 * 4
    RR = R0 + 4 * NIT
    OFF = RR + 4 * NIT
    SOF = OFF + NIT
    GT = (SOF + NIT + 3) // 4 * 4
    assert GT + 10 <= 256
    for it in range(NIT):
        a(f"v_add_u32 {v(t1)}, {it*64}, {v(t0)}")
        a(f"v_mul_hi_u32 {v(t2)}, {v(t1)}, s46")
        a(f"v_mul_u32_u24 {v(t3)}, {CPRW}, {v(t2)}")
        a(f"v_sub_u32 {v(t3)}, {v(t1)}, {v(t3)}")
        a(f"v_mul_u32_u24 {v(t1)}, {CROW}, {v(t2)}")
        a(f"v_lshl_add_u32 {v(t1)}, {v(t3)}, 4, {v(t1)}")
        if CBASE: a(f"v_add_u32 {v(t1)}, {CBASE}, {v(t1)}")
        a(f"ds_read_b128 {v(R0+4*it,4)}, {v(t1)}")
        if not otile: a(f"v_add_u32 {v(t2)}, s3, {v(t2)}")
        if stats_out:
            a(f"v_lshlrev_b32 {v(SOF+it)}, 7, {v(t2)}")
            a(f"v_lshl_add_u32 {v(SOF+it)}, s29, 3, {v(SOF+it)}")
        if otile:
            a(f"v_add_u32 {v(t3)}, s47, {v(t3)}")
            a(f"v_lshrrev_b32 {v(t1)}, 3, {v(t3)}")
            a(f"v_lshlrev_b32 {v(t1)}, 14, {v(t1)}")
            a(f"v_lshl_add_u32 {v(t1)}, {v(t2)}, 7, {v(t1)}")
            a(f"v_and_b32 {v(t3)}, 7, {v(t3)}")
            a(f"v_lshl_add_u32 {v(t1)}, {v(t3)}, 4, {v(t1)}")
            a(f"v_add_u32 {v(OFF+it)}, s3, {v(t1)}")
        else:
            a(f"v_mul_u32_u24 {v(t2)}, {ldo}, {v(t2)}")
            a(f"v_lshlrev_b32 {v(t3)}, 4, {v(t3)}")
            a(f"v_add_u32 {v(t3)}, s47, {v(t3)}")
            a(f"v_add_u32 {v(OFF+it)}, {v(t3)}, {v(t2)}")
        if st_res:
            a(f"v_lshlrev_b32 {v(t1)}, 4, {v(t0)}")
            a(f"v_add_u32 {v(t1)}, {EPI + it*1024}, {v(t1)}")
            a(f"ds_read_b128 {v(RR+4*it,4)}, {v(t1)}")
        elif res_arg:
            a(f"buffer_load_dwordx4 {v(RR+4*it,4)}, {v(OFF+it)}, s[16:19], 0 offen")
    a("s_waitcnt vmcnt(0) lgkmcnt(0)" if (res_arg and not st_res) else "s_waitcnt lgkmcnt(0)")
    if DRY: a.dry_exit()
    stamp(5)
    for it in range(NIT):
        c0 = R0 + 4 * it
        if res_arg:
            for j in range(4):
                d = c0 + j
                r = RR + 4 * it + j
                a(f"v_lshlrev_b32 {v(GT)}, 16, {v(d)}")
                a(f"v_lshlrev_b32 {v(GT+1)}, 16, {v(r)}")
                a(f"v_and_b32 {v(GT+2)}, 0xffff0000, {v(d)}")
                a(f"v_and_b32 {v(GT+3)}, 0xffff0000, {v(r)}")
                a(f"v_add_f32 {v(GT)}, {v(GT)}, {v(GT+1)}")
                a(f"v_add_f32 {v(GT+2)}, {v(GT+2)}, {v(GT+3)}")
                a(f"v_cvt_pk_bf16_f32 {v(d)}, {v(GT)}, {v(GT+2)}")
        a(f"buffer_store_dwordx4 {v(c0,4)}, {v(OFF+it)}, s[12:15], 0 offen {STMOD if (ln or STALL) else ''}")
        if stats_out:
            assert CPRW == 8
            a(f"v_mov_b32 {v(GT+8)}, 0x3f803f80")
            a(f"v_mov_b32 {v(GT)}, 0")
            a(f"v_mov_b32 {v(GT+1)}, 0")
            for j in range(4):
                a(f"v_dot2_f32_bf16 {v(GT)}, {v(c0+j)}, {v(GT+8)}, {v(GT)}")
                a(f"v_dot2_f32_bf16 {v(GT+1)}, {v(c0+j)}, {v(c0+j)}, {v(GT+1)}")
            a("s_nop 3")
            for q_, mode in enumerate(("quad_perm:[1,0,3,2]", "quad_perm:[2,3,0,1]", "row_half_mirror")):
                src = GT + 2 * (q_ & 1); dst = GT + 2 * ((q_ + 1) & 1)
                for k_ in range(2):
                    a(f"v_add_f32_dpp {v(dst+k_)}, {v(src+k_)}, {v(src+k_)} {mode} row_mask:0xf bank_mask:0xf")
                a("s_nop 1")
            a("s_mov_b32 exec_lo, 0x01010101")
            a("s_mov_b32 exec_hi, 0x01010101")
            a(f"buffer_store_dwordx2 {v(GT+2,2)}, {v(SOF+it)}, s[84:87], 0 offen")
            a("s_mov_b64 exec, -1")
    stamp(6)
    if 'stamp' in EXP: a("s_waitcnt vmcnt(0)")
    stamp(7)
    stamp_out()
    a.label(end)
    a("s_endpgm")
    if DRY: a.dry_dispatch()
    return dict(name=name, grid=ntiles, block=512, lds=lds, desc=kernel_desc(name, max(nvgpr, GT + 10, 168)))


def gen_attn(a, name, pf=None, colsum=False):
    import struct
    NQB = S // 32
    ntask = H * NQB
    nwg = ntask // 4
    QKV_ROW = 3 * D * 2
    KLDS = 384 * 64
    lds = 2 * KLDS
    kernel_header(a, name)
    end = a.newlabel("L_end")
    npf = 0
    a(f"s_cmp_ge_u32 s2, {nwg + npf}")
    a(f"s_cbranch_scc1 {end}")
    a(f"s_load_dwordx2 s[24:25], s[0:1], {ARG['ws']}")
    a("v_and_b32 v1, 63, v0")
    a("v_lshrrev_b32 v2, 6, v0")
    a("s_nop 0")
    a("v_readfirstlane_b32 s30, v2")
    a("s_nop 3")
    a("s_lshl_b32 s3, s2, 2")
    a("s_add_u32 s92, s3, s30")
    a("s_and_b32 s28, s2, 31")
    a("s_lshr_b32 s29, s2, 5")
    a("s_lshl_b32 s39, s29, 7")
    a("s_sub_u32 s39, s39, 256")
    a("s_lshl_b32 s3, s30, 5")
    a("s_add_u32 s32, s39, s3")
    a("s_add_u32 s31, s32, 256")
    a("s_lshl_b32 s33, s28, 6")
    a(f"s_add_u32 s35, s33, {2*D*2}")
    a(f"s_add_u32 s36, s33, {D*2}")
    a("v_and_b32 v2, 31, v1")
    a("v_lshrrev_b32 v3, 5, v1")
    a("v_add_u32 v4, s31, v2")
    a(f"v_mul_u32_u24 v4, {QKV_ROW}, v4")
    a("v_lshl_add_u32 v4, v3, 4, v4")
    a("v_add_u32 v4, s33, v4")
    a("s_waitcnt lgkmcnt(0)")
    srd(a, 4, 24, WS_QKV, S * 3 * D * 2)
    srd(a, 8, 24, WS_O, S * D * 2)
    a("v_lshrrev_b32 v5, 2, v1")
    a("v_and_b32 v6, 3, v1")
    a("v_bfe_u32 v7, v1, 4, 2")
    a("v_xor_b32 v7, v7, v6")
    a("s_mul_i32 s3, s30, 96")
    a("s_add_u32 s3, s3, s39")
    a("s_mul_i32 s34, s30, 6144")
    for p in range(6):
        a(f"v_add_u32 v16, {16*p}, v5")
        a("v_add_u32 v16, s3, v16")
        a("v_max_i32 v16, 0, v16")
        a(f"v_mul_u32_u24 v16, {QKV_ROW}, v16")
        a("v_lshl_add_u32 v17, v7, 4, v16")
        a("v_add_u32 v17, s36, v17")
        a(f"s_add_u32 m0, s34, {p*1024}")
        a("v_lshl_add_u32 v16, v6, 4, v16")
        a(f"buffer_load_dwordx4 v17, s[4:7], 0 offen lds")
        a("v_add_u32 v16, s35, v16")
        a(f"s_add_u32 m0, s34, {KLDS + p*1024}")
        a("s_nop 0")
        a(f"buffer_load_dwordx4 v16, s[4:7], 0 offen lds")
    a("buffer_load_dwordx4 v[8:11], v4, s[4:7], 0 offen")
    a("buffer_load_dwordx4 v[12:15], v4, s[4:7], 0 offen offset:32")
    KF = 16
    if colsum:
        a(f"s_load_dwordx2 s[94:95], s[0:1], {ARG['w2']}")
        a(f"s_load_dwordx2 s[40:41], s[0:1], {ARG['wo']}")
        a(f"s_load_dwordx2 s[42:43], s[0:1], {ARG['w1']}")
        a("v_lshlrev_b32 v7, 4, v1")
        a(f"s_mul_i32 s93, s92, {F*D*2//2048}")
        a("s_lshl_b32 s3, s92, 10")
        a("v_add_u32 v16, s93, v7")
        a("v_add_u32 v17, s3, v7")
        a(f"s_mul_hi_u32 s44, s92, {((1 << 32) + 111) // 112}")
        a("s_mul_i32 s3, s44, 112")
        a("s_sub_u32 s45, s92, s3")
        a("s_lshl_b32 s3, s44, 6")
        a("v_lshrrev_b32 v18, 2, v1")
        a("v_add_u32 v18, s3, v18")
        a(f"v_mul_u32_u24 v18, {F*2}, v18")
        a("v_and_b32 v19, 3, v1")
        a("v_lshl_add_u32 v18, v19, 4, v18")
        a("s_lshl_b32 s3, s45, 6")
        a("v_add_u32 v18, s3, v18")
        a("s_waitcnt lgkmcnt(0)")
        npl = 4
        if 'nowpf' in EXP:
            srd(a, 96, 94, 0, F * D * 2)
            for j in range(4):
                a(f"buffer_load_dwordx4 v[240:243], v16, s[96:99], 0 offen offset:{1024*j}")
            srd(a, 96, 40, 0, D * D * 2)
            a("buffer_load_dwordx4 v[240:243], v17, s[96:99], 0 offen")
            npl = 9
        srd(a, 96, 42, 0, D * F * 2)
        for j in range(4):
            a(f"s_mov_b32 s3, {16*j*F*2}")
            a(f"buffer_load_dwordx4 {v(240+4*j,4)}, v18, s[96:99], s3 offen")
    else:
        npl = tail_prefetch(a, 92, 1, pf, 7, 240) if pf else 0
    a("v_bfe_u32 v5, v1, 2, 2")
    a("v_xor_b32 v5, v5, v3")
    a("v_lshlrev_b32 v6, 6, v2")
    a("s_lshl_b32 s34, s30, 11")
    a("v_add_u32 v6, s34, v6")
    a("v_lshl_add_u32 v88, v5, 4, v6")
    a("v_xor_b32 v5, 2, v5")
    a("v_lshl_add_u32 v89, v5, 4, v6")
    a(f"s_add_u32 s34, s34, {KLDS}")
    a(f"s_waitcnt vmcnt({npl})")
    a("s_barrier")
    for t_ in range(9):
        a(f"ds_read_b128 {v(KF+8*t_,4)}, v88 offset:{2048*t_}")
        a(f"ds_read_b128 {v(KF+8*t_+4,4)}, v89 offset:{2048*t_}")
    SC = 96
    a("v_mov_b32 v7, 0xf149f2ca")
    for t in range(9):
        a(f"s_waitcnt lgkmcnt({min(15, 2*(8-t))})")
        if t < 8:
            lab_inv = a.newlabel("L_inv"); lab_done = a.newlabel("L_tdone")
            a(f"s_add_i32 s3, s32, {32*t}")
            a("s_cmp_lt_i32 s3, 0")
            a(f"s_cbranch_scc1 {lab_inv}")
        a(f"v_mfma_f32_32x32x16_bf16 {v(SC+16*t,16)}, {v(KF+8*t,4)}, v[8:11], 0")
        a(f"v_mfma_f32_32x32x16_bf16 {v(SC+16*t,16)}, {v(KF+8*t+4,4)}, v[12:15], {v(SC+16*t,16)}")
        if t < 8:
            a(f"s_branch {lab_done}")
            a.label(lab_inv)
            for r in range(16):
                a(f"v_mov_b32 v{SC+16*t+r}, v7")
            a.label(lab_done)
    a("v_lshlrev_b32 v5, 2, v3")
    a("v_sub_u32 v5, v2, v5")
    a("s_nop 7")
    a("s_nop 7")
    for r in range(16):
        c = (r & 3) + 8 * (r >> 2)
        a(f"v_cmp_gt_i32 vcc, {c}, v5")
        a(f"v_cmp_le_i32 s[36:37], {c}, v5")
        a("s_nop 0")
        a(f"v_cndmask_b32 v{SC+r}, v7, v{SC+r}, vcc")
        a(f"v_cndmask_b32 v{SC+128+r}, v7, v{SC+128+r}, s[36:37]")
    a(f"v_max3_f32 v4, v{SC}, v{SC+1}, v{SC+2}")
    a(f"v_max3_f32 v6, v{SC+3}, v{SC+4}, v{SC+5}")
    for i in range(6, 144, 4):
        a(f"v_max3_f32 v4, v4, v{SC+i}, v{SC+i+1}")
        if i + 3 < 144:
            a(f"v_max3_f32 v6, v6, v{SC+i+2}, v{SC+i+3}")
    a("v_max_f32 v4, v4, v6")
    a("v_xor_b32 v88, 32, v1")
    a("v_lshlrev_b32 v88, 2, v88")
    a("ds_bpermute_b32 v89, v88, v4")
    a("s_waitcnt lgkmcnt(0)")
    a("v_max_f32 v4, v4, v89")
    sc = (DH ** -0.5) * math.log2(math.e)
    sc_bits = struct.unpack("<I", struct.pack("<f", sc))[0]
    a(f"s_mov_b32 s38, {sc_bits}")
    a("v_mul_f32 v4, s38, v4")
    sums = [5, 6, 90, 91]
    for sreg in sums:
        a(f"v_mov_b32 v{sreg}, 0")
    for g in range(0, 144, 4):
        for j in range(4):
            a(f"v_fma_f32 v{SC+g+j}, v{SC+g+j}, s38, -v4")
        for j in range(4):
            a(f"v_exp_f32 v{SC+g+j}, v{SC+g+j}")
        if g >= 4:
            for j in range(4):
                a(f"v_add_f32 v{sums[j]}, v{sums[j]}, v{SC+g-4+j}")
            tt, jj = divmod(g - 4, 16)
            a(f"v_cvt_pk_bf16_f32 v{KF+8*tt+jj//2}, v{SC+g-4}, v{SC+g-3}")
            a(f"v_cvt_pk_bf16_f32 v{KF+8*tt+jj//2+1}, v{SC+g-2}, v{SC+g-1}")
    a("s_nop 0")
    g = 144
    for j in range(4):
        a(f"v_add_f32 v{sums[j]}, v{sums[j]}, v{SC+g-4+j}")
    tt, jj = divmod(g - 4, 16)
    a(f"v_cvt_pk_bf16_f32 v{KF+8*tt+jj//2}, v{SC+g-4}, v{SC+g-3}")
    a(f"v_cvt_pk_bf16_f32 v{KF+8*tt+jj//2+1}, v{SC+g-2}, v{SC+g-1}")
    a("v_add_f32 v5, v5, v6")
    a("v_add_f32 v90, v90, v91")
    a("v_add_f32 v5, v5, v90")
    a("ds_bpermute_b32 v89, v88, v5")
    a("v_bfe_u32 v6, v1, 2, 2")
    a("v_lshl_add_u32 v6, v3, 2, v6")
    a("v_lshlrev_b32 v6, 6, v6")
    a("v_bfe_u32 v7, v1, 4, 1")
    a("v_lshl_add_u32 v6, v7, 5, v6")
    a("v_and_b32 v7, 3, v1")
    a("v_lshl_add_u32 v6, v7, 3, v6")
    a("v_add_u32 v6, s34, v6")
    OA = SC
    VF = SC + 16
    a(f"s_waitcnt lgkmcnt(0)")
    a("v_add_f32 v5, v5, v89")
    a("v_rcp_f32 v5, v5")
    for t in range(9):
        for sidx in range(2):
            f = VF + 4 * (2 * t + sidx)
            base = (32 * t + 16 * sidx) * 64
            a(f"ds_read_b64_tr_b16 {v(f,2)}, v6 offset:{base}")
            a(f"ds_read_b64_tr_b16 {v(f+2,2)}, v6 offset:{base+8*64}")
    first = True
    for t in range(9):
        for sidx in range(2):
            f = VF + 4 * (2 * t + sidx)
            idx = 2 * t + sidx
            rem = 36 - 2 * (idx + 1)
            a(f"s_waitcnt lgkmcnt({min(rem,15)})")
            a(f"v_mfma_f32_32x32x16_bf16 {v(OA,16)}, {v(f,4)}, {v(KF+8*t+4*sidx,4)}, {'0' if first else v(OA,16)}")
            first = False
    if colsum:
        lab_nc = a.newlabel("L_nocs")
        a("s_cmp_ge_u32 s44, 16")
        a(f"s_cbranch_scc1 {lab_nc}")
        CA = 184; CT = 192
        a("s_waitcnt vmcnt(0)")
        for j in range(4):
            a(f"v_lshlrev_b32 v{CA+2*j}, 16, v{240+j}")
            a(f"v_and_b32 v{CA+2*j+1}, 0xffff0000, v{240+j}")
        for i in range(1, 4):
            for j in range(4):
                a(f"v_lshlrev_b32 v{CT+2*j}, 16, v{240+4*i+j}")
                a(f"v_and_b32 v{CT+2*j+1}, 0xffff0000, v{240+4*i+j}")
            for j in range(4):
                a(f"v_pk_add_f32 {v(CA+2*j,2)}, {v(CA+2*j,2)}, {v(CT+2*j,2)}")
        a("s_nop 1")
        for mode in ("row_ror:4", "row_ror:8"):
            for j in range(8):
                a(f"v_add_f32_dpp v{CT+j}, v{CA+j}, v{CA+j} {mode} row_mask:0xf bank_mask:0xf")
            a("s_nop 1")
            for j in range(8):
                a(f"v_mov_b32 v{CA+j}, v{CT+j}")
            a("s_nop 1")
        for x in (16, 32):
            a(f"v_xor_b32 v200, {x}, v1")
            a("v_lshlrev_b32 v200, 2, v200")
            for j in range(8):
                a(f"ds_bpermute_b32 v{CT+j}, v200, v{CA+j}")
            a("s_waitcnt lgkmcnt(0)")
            for j in range(8):
                a(f"v_add_f32 v{CA+j}, v{CA+j}, v{CT+j}")
        srd(a, 96, 24, WS_CS, 16 * F * 4)
        a(f"s_mul_i32 s3, s44, {F*4}")
        a("s_lshl_b32 s45, s45, 7")
        a("s_add_u32 s3, s3, s45")
        a("v_lshlrev_b32 v200, 5, v1")
        a("s_mov_b64 exec, 15")
        a(f"buffer_store_dwordx4 {v(CA,4)}, v200, s[96:99], s3 offen")
        a(f"buffer_store_dwordx4 {v(CA+4,4)}, v200, s[96:99], s3 offen offset:16")
        a("s_mov_b64 exec, -1")
        a.label(lab_nc)
    a("v_add_u32 v7, s31, v2")
    a(f"v_lshlrev_b32 v7, 11, v7")
    a("v_lshl_add_u32 v7, v3, 3, v7")
    a("v_add_u32 v7, s33, v7")
    a("s_nop 7")
    a("s_nop 7")
    for g in range(4):
        for r in range(4):
            a(f"v_mul_f32 v{OA+4*g+r}, v{OA+4*g+r}, v5")
        a(f"v_cvt_pk_bf16_f32 v{OA+4*g}, v{OA+4*g}, v{OA+4*g+1}")
        a(f"v_cvt_pk_bf16_f32 v{OA+4*g+1}, v{OA+4*g+2}, v{OA+4*g+3}")
        a(f"buffer_store_dwordx2 {v(OA+4*g,2)}, v7, s[8:11], 0 offen offset:{16*g}")
    a.label(end)
    a("s_endpgm")
    return dict(name=name, grid=nwg + npf, block=256, lds=lds, desc=kernel_desc(name, 256 if colsum else 244))


def main():
    a = Asm()
    ks = []
    FUSE = 'nofuse' not in EXP
    SPLIT = 'split' in EXP
    L2PF = int(os.environ.get('L2PF', '0'))
    W1HI = int(os.environ.get('W1HI', '10'))
    W2HI = int(os.environ.get('W2HI', '-1'))
    SKLO = int(os.environ.get('SKLO', '23'))
    QA = 'noqa' not in EXP
    W2T = QA and 'w2t' in EXP
    if QA:
        sys.path.insert(0, os.path.dirname(os.path.abspath(__file__)))
        import qa
        WOHI = int(os.environ.get('WOHI', '3'))
        ks.append(qa.gen_qa(sys.modules[__name__], a, "qa_kernel", wpf=[("wo", D*D*2)]))
    elif FUSE:
        ks.append(gen_gemm(a, "qkv_kernel", 3 * D, D, 192, 0, "wqkv", "plain", "ws", WS_QKV, NSTAGE=4, RA=8, RBN=4,
                           ln='single', a_arg='x',
                           wpf=[("w1", D*F*2, W1HI), ("wo", D*D*2, W1HI-7)]))
    else:
        ks.append(gen_ln(a, "ln1_kernel", "x", 0, WS_Y1, False, pf=[("wqkv", D*3*D*2), ("wo", D*D*2)]))
        ks.append(gen_gemm(a, "qkv_kernel", 3 * D, D, 192, WS_Y1, "wqkv", "plain", "ws", WS_QKV, NSTAGE=4, RA=8, RBN=4))
    if not QA: ks.append(gen_attn(a, "attn_kernel", pf=[("w1", D*F*2), ("w2", F*D*2), ("wo", D*D*2)] if FUSE else [("w1", D*F*2), ("w2", F*D*2)], colsum=FUSE))
    ks.append(gen_gemm(a, "oproj_kernel", D, D, 64, WS_O, "wo", "plain", "ws", WS_H, res_arg="x", NSTAGE=6, stats_out=FUSE, spf=eval(os.environ.get('SPFO', 'None'))))
    if FUSE:
        ks.append(gen_gemm(a, "ffn1_kernel", F, D, 224, WS_H, "w1", "gelu", "ws", WS_H1, bias_arg="b1", RA=8, RBN=4,
                           ln='double', pre=True, ldo=LDH1, zero_flags=SPLIT, wpf=[("w2", F*D*2, W2HI)] if W2HI else None, otile=QA, w2copy=W2T and 'qw2' not in EXP, epi2='oldepi' not in EXP))
    else:
        ks.append(gen_ln(a, "ln2_kernel", "ws", WS_H, WS_Y2, True))
        ks.append(gen_gemm(a, "ffn1_kernel", F, D, 224, WS_Y2, "w1", "gelu", "ws", WS_H1, bias_arg="b1", RA=8, RBN=4))
    if SPLIT:
        ks.append(gen_gemm(a, "ffn2_kernel", D, F, 128, WS_H1, "w2", "plain", "out", 0, res_arg="ws", res_off=WS_H,
                           bias_arg="b2", NSTAGE=5, lda=LDH1, RA=4, RBN=4, splitk=(SKLO, 56 - SKLO)))
    else:
        ks.append(gen_gemm(a, "ffn2_kernel", D, F, 64, WS_H1, "ws" if W2T else "w2", "plain", "out", 0, res_arg="ws", res_off=WS_H,
                           atile=QA, w_off=WS_W2T if W2T else None,
                           bias_arg="b2", NSTAGE=6, lda=LDH1, l2pf=L2PF, spf=eval(os.environ.get('SPF2', 'None')), RA=int(os.environ.get('F2RA','4')), RBN=32//int(os.environ.get('F2RA','4'))))
    hdr = []
    for k in ks:
        hdr.append(f"; @launch kernel={k['name']} grid=({k['grid']},1,1) block=({k['block']},1,1) lds={k['lds']}")
    txt = "\n".join(hdr) + "\n"
    txt += '.amdgcn_target "amdgcn-amd-amdhsa--gfx950"\n.text\n'
    txt += "\n".join(a.lines) + "\n"
    txt += '.section .rodata,"a"\n'
    for k in ks:
        txt += ".p2align 6\n" + k["desc"]
    open(OUT, "w").write(txt)


if __name__ == "__main__":
    main()
```

```python
import math, struct, os


def gen_qa(G, a, name, wpf=None):
    v, s, srd, hex_f32 = G.v, G.s, G.srd, G.hex_f32
    ARG, EXP = G.ARG, G.EXP
    S, D, F, DH = G.S, G.D, G.F, G.DH
    MB = 1 << 20
    WS_RS = 3 * MB
    KFO = 65536
    WS_KV = 4 * MB
    K = D; N = 3 * D
    BM, BN, BK, NSTAGE = 256, 96, 64, 3
    MT, NTW, RB = 4, 6, 64
    ABYTES = BM * BK * 2; BBYTES = BK * BN * 2; STAGE = ABYTES + BBYTES
    PA, PB = 8, 3
    P = PA + PB
    NS = K // BK
    lda = K * 2
    XQ, PK, PV, OQ, OK_, OV = 49152, 65536, 81920, 98304, 114688, 131072
    RTAB = 147456; CTAB = 149504; STG = 149888; STAT = 149952; NONCE = 149960; STAT2 = 150016
    lds = 163840
    NPOLL = int(os.environ.get('NPOLL', '48'))
    vXb = [2, 3]; vWb = list(range(4, 10)); vXc = [10, 11]; vWc = list(range(12, 18))
    vT = list(range(18, 26))
    FX = [28, 44]; FW = [60, 84]; ACC = 108; CSA = 204; ONE = 212; PFD = 216; PFV = 220
    QF = 224
    XPA, XPB = 221, 222
    DUM = 232
    LA = int(os.environ.get('XLA', '5'))
    QW2 = 'qw2' in EXP
    SIDEATT = os.environ.get('SIDEAT', 'x') == 'att'
    W1S = 164; W2S = [232, 236, 240, 244, 248, 252, 196]
    t0, t1, t2, t3 = vT[0], vT[1], vT[2], vT[3]
    vA = list(range(2, 10)); vB = list(range(10, 13))

    def acc(nt, mt):
        return ACC + 4 * (nt * MT + mt)

    def stamp(i):
        if 'itst' in EXP and i in (4, 5, 6): return
        if 'stamp' in EXP:
            a(f"s_memtime s[{60+2*i}:{61+2*i}]")
            if i >= 4: a("s_waitcnt lgkmcnt(0)")

    def stamp_out():
        if 'stamp' not in EXP: return
        a("s_waitcnt lgkmcnt(0)")
        srd(a, 80, 24, 200 * MB, 1 << 20)
        a("s_lshl_b32 s3, s2, 3")
        a("s_add_u32 s3, s3, s49")
        a("s_lshl_b32 s3, s3, 6")
        a("v_mov_b32 v2, s3")
        a("s_lshl_b32 s3, s101, 4")
        a("s_or_b32 s61, s3, s45")
        a("s_lshl_b32 s3, s51, 8")
        a("s_or_b32 s61, s3, s61")
        for i in range(8):
            a(f"v_mov_b32 v4, s{60+2*i}")
            a(f"v_mov_b32 v5, s{61+2*i}")
            a(f"buffer_store_dwordx2 v[4:5], v2, s[80:83], 0 offen offset:{8*i}")
            a("s_nop 1")

    def stats_load(Dr, T, srow):
        a(f"v_lshlrev_b32 {v(T)}, 5, v1")
        a(f"s_lshl_b32 s3, s{srow}, 11")
        for r in range(2):
            for j in range(2):
                a(f"buffer_load_dwordx4 {v(Dr+8*r+4*j,4)}, {v(T)}, s[4:7], s3 offen offset:{2048*r+16*j}")

    def stats_math(Dr, T):
        A0 = T; A1 = T + 4; O1 = T + 8; AD = T + 9
        a(f"v_mov_b32 {v(O1)}, 0x3f803f80")
        for j in range(4):
            a(f"v_mov_b32 {v(A0+j)}, 0")
        for r in range(2):
            for j in range(8):
                d = v(Dr + 8 * r + j)
                a(f"v_dot2_f32_bf16 {v(A0+2*r)}, {d}, {v(O1)}, {v(A0+2*r)}")
                a(f"v_dot2_f32_bf16 {v(A0+2*r+1)}, {d}, {d}, {v(A0+2*r+1)}")
        a("s_nop 3")
        cur, oth = A0, A1
        for mode in ("quad_perm:[1,0,3,2]", "quad_perm:[2,3,0,1]", "row_half_mirror", "row_mirror"):
            for j in range(4):
                a(f"v_add_f32_dpp {v(oth+j)}, {v(cur+j)}, {v(cur+j)} {mode} row_mask:0xf bank_mask:0xf")
            a("s_nop 1")
            cur, oth = oth, cur
        assert cur == A0
        for x in (16, 32):
            a(f"v_xor_b32 {v(AD)}, {x}, v1")
            a(f"v_lshlrev_b32 {v(AD)}, 2, {v(AD)}")
            for j in range(4):
                a(f"ds_bpermute_b32 {v(A1+j)}, {v(AD)}, {v(A0+j)}")
            a("s_waitcnt lgkmcnt(0)")
            for j in range(4):
                a(f"v_add_f32 {v(A0+j)}, {v(A0+j)}, {v(A1+j)}")
        for r in range(2):
            sm, sq = A0 + 2 * r, A0 + 2 * r + 1
            a(f"v_mul_f32 {v(sm)}, {hex_f32(1.0/K)}, {v(sm)}")
            a(f"v_mul_f32 {v(sq)}, {hex_f32(1.0/K)}, {v(sq)}")
            a(f"v_fma_f32 {v(sq)}, -{v(sm)}, {v(sm)}, {v(sq)}")
            a(f"v_max_f32 {v(sq)}, 0, {v(sq)}")
            a(f"v_add_f32 {v(sq)}, {hex_f32(1e-5)}, {v(sq)}")
            a(f"v_rsq_f32 {v(sq)}, {v(sq)}")
            a("s_nop 0")
            a(f"v_mul_f32 {v(A1)}, {v(sm)}, {v(sq)}")
            a(f"v_mov_b32 {v(sm)}, {v(sq)}")
            a(f"v_sub_f32 {v(sq)}, 0, {v(A1)}")

    def local_stats(Dr, T):
        lp = a.newlabel("L_ls")
        a("s_mov_b32 s101, 1")
        a("s_lshl_b32 s46, s49, 5")
        a("s_add_u32 s47, s46, s98")
        a("s_mov_b32 s52, 16")
        a.label(lp)
        stats_load(Dr, T, 47)
        a("s_waitcnt vmcnt(0)")
        stats_math(Dr, T)
        a("s_lshl_b32 s3, s46, 3")
        a(f"s_add_u32 s3, s3, {RTAB}")
        a(f"v_mov_b32 {v(T+9)}, s3")
        a(f"ds_write_b128 {v(T+9)}, {v(T,4)}")
        a("s_add_u32 s46, s46, 2")
        a("s_add_u32 s47, s47, 2")
        a("s_sub_u32 s52, s52, 1")
        a("s_cmp_lg_u32 s52, 0")
        a(f"s_cbranch_scc1 {lp}")
        a("s_waitcnt lgkmcnt(0)")
        a("s_barrier")

    G.kernel_header(a, name)
    end = a.newlabel("L_end")
    stamp(0)
    lab_loader = a.newlabel("L_loader")
    lab_att = a.newlabel("L_att")
    a("s_cmp_ge_u32 s2, 256")
    a(f"s_cbranch_scc1 {end}")
    a(f"s_load_dwordx2 s[24:25], s[0:1], {ARG['ws']}")
    a(f"s_load_dwordx2 s[58:59], s[0:1], {ARG['x']}")
    a(f"s_load_dwordx2 s[26:27], s[0:1], {ARG['wqkv']}")
    a("s_memrealtime s[34:35]")
    a("s_and_b32 s3, s2, 7")
    a("s_lshr_b32 s46, s2, 3")
    a("s_and_b32 s29, s3, 3")
    a("s_lshl_b32 s29, s29, 3")
    a("s_and_b32 s47, s46, 7")
    a("s_add_u32 s29, s29, s47")
    a("s_lshr_b32 s28, s3, 2")
    a("s_lshl_b32 s28, s28, 2")
    a("s_lshr_b32 s47, s46, 3")
    a("s_add_u32 s28, s28, s47")
    a("s_lshl_b32 s99, s28, 5")
    a("s_add_u32 s99, s99, s29")
    a("s_lshl_b32 s98, s28, 8")
    a("v_and_b32 v1, 63, v0")
    a(f"v_lshrrev_b32 {v(t0)}, 6, v0")
    a("s_nop 0")
    a(f"v_readfirstlane_b32 s49, {v(t0)}")
    a("s_nop 3")
    a("s_and_b32 s30, s49, 3")
    a("s_mov_b32 s45, 1")
    a("s_mov_b32 s101, 0")
    a("s_mov_b32 s50, 0")
    a("s_mov_b32 s51, 0")
    a(f"s_mov_b32 s100, {OQ}")

    def build_srds():
        a("s_waitcnt lgkmcnt(0)")
        srd(a, 4, 58, 0, S * D * 2)
        srd(a, 8, 26, 0, K * N * 2)
        srd(a, 12, 24, G.WS_O, S * D * 2 * (G.TX if G.OT else 1))
        srd(a, 16, 24, WS_KV, 256 * 32768)
        a("s_add_u32 s20, s34, 0x1000000")
        a("s_addc_u32 s21, s35, 0")
        srd(a, 36, 24, WS_RS, 131072)

    a("s_cmp_ge_u32 s49, 4")
    a(f"s_cbranch_scc1 {lab_loader}")

    build_srds()
    a("s_lshl_b32 s3, s2, 2")
    a("s_add_u32 s93, s3, s30")
    for q, (arg, nbytes) in enumerate(wpf):
        a(f"s_load_dwordx2 s[{76+2*q}:{77+2*q}], s[0:1], {ARG[arg]}")
    a("s_waitcnt lgkmcnt(0)")
    def wsel(q):
        arg, nbytes = wpf[q]
        srd(a, 84, 76 + 2 * q, 0, nbytes)
        a(f"s_mul_i32 s92, s93, {nbytes//1024}")
    wsel(0)
    if 'qcpf' in EXP:
        lh = a.newlabel("L_pc")
        a("s_getpc_b64 s[46:47]")
        a.label(lh)
        a(f"s_sub_u32 s46, s46, {lh}-{name}")
        a("s_subb_u32 s47, s47, 0")
        a("s_lshr_b32 s3, s2, 3")
        a("s_lshl_b32 s3, s3, 2")
        a("s_add_u32 s3, s3, s30")
        a("s_lshl_b32 s3, s3, 10")
        a(f"s_min_u32 s3, s3, {end}-{name}-1024")
        a(f"v_lshlrev_b32 {v(t0)}, 4, v1")
        a(f"v_add_u32 {v(t0)}, s3, {v(t0)}")
        a(f"global_load_dwordx4 {v(DUM,4)}, {v(t0)}, s[46:47]")
    SPF = 'oldxla' not in EXP
    if SPF:
        a("s_lshr_b32 s3, s2, 3")
        a("s_lshl_b32 s3, s3, 2")
        a("s_add_u32 s3, s3, s30")
        a(f"v_lshrrev_b32 {v(t0)}, 2, v1")
        a(f"v_and_b32 {v(t1)}, 3, v1")
        a(f"v_lshlrev_b32 {v(t1)}, 7, {v(t1)}")
        a("s_lshr_b32 s46, s28, 2")
        a("s_lshl_b32 s46, s46, 10")
        a("s_lshl_b32 s47, s3, 4")
        a("s_add_u32 s46, s46, s47")
        a("s_lshl_b32 s40, s46, 11")
        a("s_sub_u32 s46, s3, 64")
        a("s_lshr_b32 s47, s46, 4")
        a("s_and_b32 s46, s46, 15")
        a(f"s_mul_i32 s46, s46, {16*N*2}")
        a("s_lshl_b32 s47, s47, 11")
        a("s_add_u32 s46, s46, s47")
        a("s_lshr_b32 s47, s29, 3")
        a("s_lshl_b32 s47, s47, 9")
        a("s_add_u32 s46, s46, s47")
        a("s_cmp_ge_u32 s3, 112")
        a("s_cselect_b32 s46, 0x60000000, s46")
        a(f"s_mov_b32 s41, {256*N*2}")
        a(f"s_mov_b32 s47, {N*2}")
        a("s_cmp_lt_u32 s3, 64")
        a("s_cselect_b32 s40, s40, s46")
        a("s_cselect_b32 s41, 512, s41")
        a("s_cselect_b32 s47, 2048, s47")
        for i in range(4):
            a(f"s_cselect_b32 s{88+i}, s{4+i}, s{8+i}")
        a(f"v_mul_u32_u24 {v(t0)}, s47, {v(t0)}")
        a(f"v_add_u32 {v(XPA)}, {v(t0)}, {v(t1)}")

        def spf():
            a(f"buffer_load_dword {v(DUM)}, {v(XPA)}, s[88:91], s40 offen")
            a("s_add_u32 s40, s40, s41")

        def xpf(): pass
        SPE = eval(os.environ.get('SPE', '(99,99,15,11,7)'))
        if len(SPE) == 5:
            a("s_cselect_b32 exec_lo, 0xcccccccc, -1")
            a("s_cselect_b32 exec_hi, 0xcccccccc, -1")
            a("s_lshr_b32 s3, s41, 1")
            a("s_sub_u32 s40, s40, s3")
        for i, e in enumerate(SPE):
            if e == 99: spf()
            if i == 0 and len(SPE) == 5: a("s_mov_b64 exec, -1")
    else:
        SPE = ()
        a("s_lshr_b32 s3, s2, 3")
        a("s_lshl_b32 s3, s3, 2")
        a("s_add_u32 s3, s3, s30")
        a("s_lshr_b32 s46, s28, 2")
        a("s_lshl_b32 s46, s46, 10")
        a("s_lshl_b32 s47, s3, 3")
        a("s_add_u32 s46, s46, s47")
        a(f"v_lshrrev_b32 {v(t0)}, 3, v1")
        a(f"v_add_u32 {v(t0)}, s46, {v(t0)}")
        a(f"v_lshlrev_b32 {v(t0)}, 11, {v(t0)}")
        a(f"v_and_b32 {v(t1)}, 7, v1")
        a(f"v_lshl_add_u32 {v(XPA)}, {v(t1)}, 4, {v(t0)}")
        a("s_lshr_b32 s46, s3, 5")
        a("s_and_b32 s47, s3, 31")
        a("s_lshl_b32 s47, s47, 1")
        a(f"v_lshrrev_b32 {v(t0)}, 5, v1")
        a(f"v_add_u32 {v(t0)}, s47, {v(t0)}")
        a(f"v_mul_u32_u24 {v(t0)}, {N*2}, {v(t0)}")
        a(f"v_and_b32 {v(t1)}, 31, v1")
        a(f"v_lshl_add_u32 {v(t0)}, {v(t1)}, 4, {v(t0)}")
        a("s_lshl_b32 s46, s46, 11")
        a("s_lshr_b32 s47, s29, 3")
        a("s_lshl_b32 s47, s47, 9")
        a("s_add_u32 s46, s46, s47")
        a("s_cmp_ge_u32 s3, 96")
        a("s_cselect_b32 s46, 0x7f000000, s46")
        a(f"v_add_u32 {v(XPB)}, s46, {v(t0)}")
        a(f"s_mov_b32 s40, {2*BK*2}")
        a(f"s_mov_b32 s41, {2*BK*N*2}")

        def xpf():
            if LA == 0: return
            a(f"buffer_load_dwordx4 {v(DUM,4)}, {v(XPA)}, s[4:7], s40 offen")
            a(f"buffer_load_dwordx4 {v(DUM,4)}, {v(XPB)}, s[8:11], s41 offen")
            a(f"s_add_u32 s40, s40, {BK*2}")
            a(f"s_add_u32 s41, s41, {BK*N*2}")
            a(f"s_min_u32 s40, s40, {(NS-1)*BK*2}")
            a(f"s_min_u32 s41, s41, {(NS-1)*BK*N*2}")
        for _ in range(2, LA + 1):
            xpf()
    lab_cpass = a.newlabel("L_cpass")
    a.label(lab_cpass)
    a(f"v_lshlrev_b32 {v(PFV)}, 4, v1")
    a(f"v_and_b32 {v(t0)}, 15, v1")
    a("s_lshl_b32 s3, s30, 6")
    a(f"v_add_u32 {v(t0)}, s3, {v(t0)}")
    a(f"v_lshlrev_b32 {v(t0)}, 7, {v(t0)}")
    a(f"v_lshrrev_b32 {v(t1)}, 4, v1")
    a(f"v_bfe_u32 {v(t2)}, v1, 1, 3")
    a(f"v_xor_b32 {v(t3)}, {v(t1)}, {v(t2)}")
    a(f"v_lshl_add_u32 {v(vXb[0])}, {v(t3)}, 4, {v(t0)}")
    a(f"v_xor_b32 {v(t3)}, 4, {v(t3)}")
    a(f"v_lshl_add_u32 {v(vXb[1])}, {v(t3)}, 4, {v(t0)}")
    a(f"v_bfe_u32 {v(t0)}, v1, 2, 2")
    a(f"v_lshl_add_u32 {v(t2)}, {v(t1)}, 3, {v(t0)}")
    a(f"v_and_b32 {v(t3)}, 1, {v(t1)}")
    a(f"v_mul_u32_u24 {v(t2)}, {RB}, {v(t2)}")
    a(f"v_and_b32 {v(t0)}, 3, v1")
    a(f"v_lshl_add_u32 {v(t2)}, {v(t0)}, 3, {v(t2)}")
    a(f"v_add_u32 {v(t2)}, {ABYTES}, {v(t2)}")
    for nt in range(NTW):
        blk, p = nt >> 1, nt & 1
        a(f"v_xor_b32 {v(t0)}, {p}, {v(t3)}")
        a(f"v_lshl_add_u32 {v(t0)}, {v(t0)}, 5, {v(t2)}")
        a(f"v_add_u32 {v(vWb[nt])}, {blk*64*RB}, {v(t0)}")
    for i in range(4 * MT * NTW + 8):
        a(f"v_mov_b32 v{ACC+i}, 0")
    for i in range(4):
        a(f"v_mov_b32 {v(ONE+i)}, 0x3f803f80")
    a("s_mov_b32 s42, 0")

    def set_cur():
        for kk in range(2):
            a(f"v_add_u32 {v(vXc[kk])}, s42, {v(vXb[kk])}")
        for nt in range(NTW):
            a(f"v_add_u32 {v(vWc[nt])}, s42, {v(vWb[nt])}")
        a(f"s_add_u32 s42, s42, {STAGE}")
        a(f"s_cmp_ge_u32 s42, {STAGE*NSTAGE}")
        a("s_cselect_b32 s42, 0, s42")

    def read_list(kk, f):
        L = []
        for nt in range(NTW):
            if nt < MT:
                L.append(f"ds_read_b128 {v(FX[f]+4*nt,4)}, {v(vXc[kk])} offset:{nt*2048}")
            for rd in range(2):
                L.append(f"ds_read_b64_tr_b16 {v(FW[f]+4*nt+2*rd,2)}, {v(vWc[nt])} offset:{kk*32*RB+rd*4*RB}")
        return L

    def mfma_list(f):
        L = []
        for nt in range(NTW):
            for mt in range(MT):
                L.append(f"v_mfma_f32_16x16x32_bf16 {v(acc(nt,mt),4)}, {v(FW[f]+4*nt,4)}, {v(FX[f]+4*mt,4)}, {v(acc(nt,mt),4)}")
        return L

    def cs_block(f, wv=None):
        if 'nocs' in EXP: return
        if wv is not None:
            a(f"v_mfma_f32_16x16x32_bf16 {v(CSA,4)}, {v(FW[f]+4*wv,4)}, {v(ONE,4)}, {v(CSA,4)}")
            if wv < 2:
                a(f"v_mfma_f32_16x16x32_bf16 {v(CSA+4,4)}, {v(FW[f]+4*(wv+4),4)}, {v(ONE,4)}, {v(CSA+4,4)}")
            return
        done = a.newlabel("L_cs")
        for w in range(4):
            nx = a.newlabel("L_csn")
            if w < 3:
                a(f"s_cmp_lg_u32 s30, {w}")
                a(f"s_cbranch_scc1 {nx}")
            a(f"v_mfma_f32_16x16x32_bf16 {v(CSA,4)}, {v(FW[f]+4*w,4)}, {v(ONE,4)}, {v(CSA,4)}")
            if w < 2:
                a(f"v_mfma_f32_16x16x32_bf16 {v(CSA+4,4)}, {v(FW[f]+4*(w+4),4)}, {v(ONE,4)}, {v(CSA+4,4)}")
            if w < 3:
                a(f"s_branch {done}")
                a.label(nx)
        a.label(done)

    def inter(kk, fr, fm, wv=None):
        R = read_list(kk, fr); Mm = mfma_list(fm)
        ri = 0
        for i in range(len(Mm)):
            a(Mm[i])
            if ri < len(R): a(R[ri]); ri += 1
        while ri < len(R): a(R[ri]); ri += 1
        cs_block(fm, wv)

    for e in SPE:
        if e == 98: spf()
    stamp(1)
    a("s_barrier")
    stamp(2)
    for e in SPE:
        if e == 97: spf()
    set_cur()
    for x in read_list(0, 0): a(x)
    a("s_waitcnt lgkmcnt(0)")
    inter(1, 1, 0)
    a("s_waitcnt lgkmcnt(0)")
    a(f"s_mov_b32 s48, {NS-1}")
    WOHI = int(os.environ.get('WOHI', '3'))
    EV = [(12, 'pub')] + [(WOHI - i, 'wo') for i in range(wpf[0][1] >> 20)] + [(e, 'spf') for e in SPE if e < 90]
    EV.sort(key=lambda e: -e[0])
    assert len(set(e[0] for e in EV)) == len(EV)
    a(f"s_mov_b32 s94, {EV[0][0]}")
    loops = [a.newlabel("L_cloop") for _ in range(4)]
    ldone = a.newlabel("L_cdone")
    for w in range(1, 4):
        a(f"s_cmp_eq_u32 s30, {w}")
        a(f"s_cbranch_scc1 {loops[w]}")
    rare = []
    for w in range(4):
        a.label(loops[w])
        a("s_barrier")
        set_cur()
        inter(0, 0, 1, w)
        xpf()
        a("s_waitcnt lgkmcnt(0)")
        inter(1, 1, 0, w)
        lpub = a.newlabel("L_pub"); lback = a.newlabel("L_pubb")
        a("s_cmp_eq_u32 s48, s94")
        a(f"s_cbranch_scc1 {lpub}")
        a.label(lback)
        rare.append(('pub', w, lpub, lback))
        if 'itst' in EXP:
            for sl, it in ((4, 12), (5, 8), (6, 4)):
                lx = a.newlabel("L_it")
                a(f"s_cmp_lg_u32 s48, {it}")
                a(f"s_cbranch_scc1 {lx}")
                a(f"s_memtime s[{60+2*sl}:{61+2*sl}]")
                a.label(lx)
        a("s_waitcnt lgkmcnt(0)")
        a("s_sub_u32 s48, s48, 1")
        a("s_cmp_lg_u32 s48, 0")
        a(f"s_cbranch_scc1 {loops[w]}")
        a(f"s_branch {ldone}")
    for kind, x, lab, lb in rare:
        a.label(lab)
        for ev in range(len(EV)):
            nxt_ = EV[ev+1][0] if ev + 1 < len(EV) else 0
            if EV[ev][1] == 'pub':
                pub_next = nxt_
                continue
            nx = a.newlabel("L_ev")
            a(f"s_cmp_lg_u32 s48, {EV[ev][0]}")
            a(f"s_cbranch_scc1 {nx}")
            if EV[ev][1] == 'wo':
                a(f"buffer_load_dwordx4 {v(DUM,4)}, {v(PFV)}, s[84:87], s92 offen")
                a("s_add_u32 s92, s92, 1024")
            else:
                spf()
            a(f"s_mov_b32 s94, {nxt_}")
            a(f"s_branch {lb}")
            a.label(nx)
        a(f"s_mov_b32 s94, {pub_next}")
        if True:
            a("s_cmp_lg_u32 s45, 1")
            a(f"s_cbranch_scc1 {lb}")
            a("s_memrealtime s[22:23]")
            a(f"v_and_b32 {v(t1)}, 1, v1")
            a(f"v_lshlrev_b32 {v(t0)}, 3, {v(t1)}")
            a(f"v_add_u32 {v(t0)}, {STG + 16*x}, {v(t0)}")
            a(f"ds_read_b64 {v(PFD,2)}, {v(t0)}")
            a("s_lshl_b32 s3, s29, 3")
            a("s_add_u32 s3, s3, s98")
            a(f"s_add_u32 s3, s3, {2*x}")
            a("s_lshl_b32 s3, s3, 4")
            a(f"v_lshlrev_b32 {v(t0)}, 4, {v(t1)}")
            a("s_waitcnt lgkmcnt(0)")
            a(f"v_mov_b32 {v(PFD+2)}, s22")
            a(f"v_mov_b32 {v(PFD+3)}, s23")
            a("s_mov_b64 exec, 3")
            if 'nostatflag' not in EXP: a(f"buffer_store_dwordx4 {v(PFD,4)}, {v(t0)}, s[36:39], s3 offen sc0 sc1")
            a("s_mov_b64 exec, -1")
        a(f"s_branch {lb}")
    a.label(ldone)
    stamp(3)
    cs_block(1)
    for x in mfma_list(1): a(x)
    a(f"v_lshrrev_b32 {v(t0)}, 4, v1")
    a(f"v_lshlrev_b32 {v(t0)}, 4, {v(t0)}")
    a("s_lshl_b32 s3, s30, 6")
    a(f"s_add_u32 s3, s3, {CTAB}")
    a(f"v_add_u32 {v(t1)}, s3, {v(t0)}")
    a("s_mov_b32 exec_lo, 0x00010001")
    a("s_mov_b32 exec_hi, 0x00010001")
    a(f"ds_write_b128 {v(t1)}, {v(CSA,4)}")
    lcs = a.newlabel("L_cs2")
    a("s_cmp_ge_u32 s30, 2")
    a(f"s_cbranch_scc1 {lcs}")
    a(f"ds_write_b128 {v(t1)}, {v(CSA+4,4)} offset:256")
    a.label(lcs)
    a("s_mov_b64 exec, -1")
    a(f"v_add_u32 {v(t0)}, {CTAB}, {v(t0)}")
    a(f"v_mov_b32 {v(t1)}, {STAT}")
    a("s_waitcnt lgkmcnt(0)")
    a("s_barrier")
    RT = FX[0]; RQ = RT + 8; CS = RQ + 8; GE = CS + 24
    assert GE + 8 <= ACC
    a(f"ds_read_b32 {v(t2)}, {v(t1)}")
    for nt in range(NTW):
        a(f"ds_read_b128 {v(CS+4*nt,4)}, {v(t0)} offset:{64*nt}")
    a("s_waitcnt lgkmcnt(0)")
    a(f"v_readfirstlane_b32 s3, {v(t2)}")
    a("s_nop 3")
    lok = a.newlabel("L_stok")
    a("s_cmp_eq_u32 s3, 1")
    a(f"s_cbranch_scc1 {lok}")
    local_stats(GE + 8, GE + 24)
    a.label(lok)
    a(f"v_and_b32 {v(t2)}, 15, v1")
    a("s_lshl_b32 s3, s30, 6")
    a(f"v_add_u32 {v(t2)}, s3, {v(t2)}")
    a(f"v_lshlrev_b32 {v(t0)}, 3, {v(t2)}")
    a(f"v_add_u32 {v(t0)}, {RTAB}, {v(t0)}")
    for mt in range(MT):
        a(f"ds_read_b64 {v(RT+2*mt,2)}, {v(t0)} offset:{128*mt}")
    a(f"v_lshlrev_b32 {v(t2)}, 6, {v(t2)}")
    a(f"v_add_u32 {v(t2)}, s100, {v(t2)}")
    a(f"v_lshrrev_b32 {v(t3)}, 4, v1")
    DV = vT[4]; DQ0 = vT[5]; DQ1 = vT[6]
    a(f"v_lshl_add_u32 {v(DV)}, {v(t3)}, 3, {v(t2)}")
    a(f"v_lshrrev_b32 {v(t0)}, 1, {v(t3)}")
    a(f"v_bfe_u32 {v(t1)}, v1, 2, 2")
    a(f"v_xor_b32 {v(t0)}, {v(t0)}, {v(t1)}")
    a(f"v_lshl_add_u32 {v(t0)}, {v(t0)}, 4, {v(t2)}")
    a(f"v_and_b32 {v(t1)}, 1, {v(t3)}")
    a(f"v_lshl_add_u32 {v(DQ0)}, {v(t1)}, 3, {v(t0)}")
    a(f"v_xor_b32 {v(DQ1)}, 32, {v(DQ0)}")
    sc = (DH ** -0.5) * math.log2(math.e)
    a(f"s_mov_b32 s52, {hex_f32(sc)}")
    a("s_waitcnt lgkmcnt(0)")
    for i in range(8):
        a(f"v_mul_f32 {v(RQ+i)}, s52, {v(RT+i)}")
    for nt in range(NTW):
        R_ = RQ if nt < 2 else RT
        for mp in range(0, MT, 2):
            c0 = acc(nt, mp)
            for q in range(2):
                for j in range(2):
                    a(f"v_pk_mul_f32 {v(GE+4*q+2*j,2)}, {v(CS+4*nt+2*j,2)}, {v(R_+2*(mp+q),2)} op_sel:[0,1] op_sel_hi:[1,1]")
            for q in range(2):
                for j in range(2):
                    cc = v(c0 + 4 * q + 2 * j, 2)
                    a(f"v_pk_fma_f32 {cc}, {cc}, {v(R_+2*(mp+q),2)}, {v(GE+4*q+2*j,2)} op_sel:[0,0,0] op_sel_hi:[1,0,1]")
            for j in range(4):
                a(f"v_cvt_pk_bf16_f32 {v(c0+j)}, {v(c0+2*j)}, {v(c0+2*j+1)}")
            for q in range(2):
                sec = nt >> 1
                if sec == 2:
                    a(f"ds_write_b64 {v(DV)}, {v(c0+2*q,2)} offset:{(mp+q)*1024 + sec*16384 + 32*(nt&1)}")
                else:
                    a(f"ds_write_b64 {v(DQ1 if nt & 1 else DQ0)}, {v(c0+2*q,2)} offset:{(mp+q)*1024 + sec*16384}")
    a("s_waitcnt vmcnt(0) lgkmcnt(0)")
    stamp(4)
    a("s_barrier")
    a(f"s_branch {lab_att}")

    a.label(lab_loader)
    a("s_setprio 2")
    a(f"s_load_dwordx2 s[94:95], s[0:1], {ARG['w1']}")
    a(f"s_load_dwordx2 s[96:97], s[0:1], {ARG['wo' if G.C3 else 'w2']}")
    assert not (G.C3 and QW2)
    LSD = 40; LST = 56; LNO = 68; LTB = 72
    a("s_lshl_b32 s3, s30, 6")
    a(f"v_lshrrev_b32 {v(t0)}, 3, v1")
    a(f"v_add_u32 {v(t0)}, s3, {v(t0)}")
    for i in range(PA):
        a(f"v_add_u32 {v(t1)}, {8*i}, {v(t0)}")
        a(f"v_lshrrev_b32 {v(t2)}, 1, {v(t1)}")
        a(f"v_and_b32 {v(t2)}, 7, {v(t2)}")
        a(f"v_and_b32 {v(t3)}, 7, v1")
        a(f"v_xor_b32 {v(t2)}, {v(t2)}, {v(t3)}")
        a(f"v_add_u32 {v(t1)}, s98, {v(t1)}")
        a(f"v_mul_u32_u24 {v(t1)}, {lda}, {v(t1)}")
        a(f"v_lshl_add_u32 {v(vA[i])}, {v(t2)}, 4, {v(t1)}")
    a("s_lshl_b32 s3, s29, 6")
    for i in range(PB):
        a(f"s_mul_i32 s46, s30, {PB}")
        a(f"s_add_u32 s46, s46, {i}")
        a("s_lshr_b32 s47, s46, 2")
        a("s_and_b32 s46, s46, 3")
        a("s_lshl_b32 s46, s46, 4")
        a("s_lshl_b32 s47, s47, 11")
        a("s_add_u32 s47, s47, s3")
        a(f"v_lshrrev_b32 {v(t0)}, {3 if 'bfull' in EXP else 2}, v1")
        a(f"v_add_u32 {v(t0)}, s46, {v(t0)}")
        a(f"v_and_b32 {v(t1)}, {7 if 'bfull' in EXP else 3}, v1")
        if 'bfull' in EXP: a("s_and_b32 s47, s47, 0xffffff80")
        a(f"v_bfe_u32 {v(t2)}, {v(t0)}, 3, 1")
        a(f"v_lshlrev_b32 {v(t2)}, 1, {v(t2)}")
        a(f"v_xor_b32 {v(t1)}, {v(t1)}, {v(t2)}")
        a(f"v_mul_u32_u24 {v(t0)}, {N*2}, {v(t0)}")
        a(f"v_lshl_add_u32 {v(t0)}, {v(t1)}, 4, {v(t0)}")
        a(f"v_add_u32 {v(vB[i])}, s47, {v(t0)}")
    a(f"s_mul_i32 s31, s30, {PA*1024}")
    a(f"s_mul_i32 s32, s30, {PB*1024}")
    a(f"s_add_u32 s32, s32, {ABYTES}")
    build_srds()
    a("s_lshl_b32 s46, s29, 3")
    a("s_add_u32 s46, s46, s98")
    a("s_lshl_b32 s47, s30, 1")
    a("s_add_u32 s47, s47, s46")
    stats_load(LSD, LST, 47)
    lab_lpass = a.newlabel("L_lpass")
    a.label(lab_lpass)
    a("s_mov_b32 s40, 0")
    a("s_mov_b32 s41, 0")
    a("s_mov_b32 s43, 0")
    a("s_mov_b32 s53, 0")

    def dma():
        a("s_add_u32 s33, s43, s31")
        for i in range(PA):
            a(f"s_add_u32 m0, s33, {i*1024}")
            a("s_nop 0")
            a(f"buffer_load_dwordx4 {v(vA[i])}, s[4:7], s40 offen lds")
        a("s_add_u32 s33, s43, s32")
        for i in range(PB):
            a(f"s_add_u32 m0, s33, {i*1024}")
            a("s_nop 0")
            a(f"buffer_load_dwordx4 {v(vB[i])}, s[8:11], s41 offen lds")
        a(f"s_add_u32 s40, s40, {BK*2}")
        a(f"s_add_u32 s41, s41, {BK*N*2}")
        a(f"s_add_u32 s43, s43, {STAGE}")
        a(f"s_cmp_ge_u32 s43, {STAGE*NSTAGE}")
        a("s_cselect_b32 s43, 0, s43")

    nloop = NS - NSTAGE + 1
    lab_l2p = a.newlabel("L_l2p"); lab_lend = a.newlabel("L_lend")
    a("s_cmp_lg_u32 s45, 1")
    a(f"s_cbranch_scc1 {lab_l2p}")
    stamp(1)
    Q = []
    def dmaq(j):
        dma(); Q.extend([('d', j)] * P)
    def waitq(*tags):
        last = max(i for i, x in enumerate(Q) if x in tags)
        a(f"s_waitcnt vmcnt({len(Q) - 1 - last})")
    for j in range(NSTAGE - 1):
        dmaq(j)
    stamp(2)
    SA1, SA2 = 218, 219
    a("s_lshl_b32 s92, s99, 2")
    a("s_add_u32 s92, s92, s30")
    srd(a, 76, 94, 0, D * F * 2)
    srd(a, 88, 96, 0, D * D * 2 if G.C3 else F * D * 2)
    a(f"v_lshrrev_b32 {v(t0)}, 3, v1")
    a(f"v_and_b32 {v(t1)}, 7, v1")
    a(f"v_lshlrev_b32 {v(t1)}, 4, {v(t1)}")
    a(f"v_lshl_add_u32 {v(SA2)}, {v(t0)}, 11, {v(t1)}")
    a("s_lshr_b32 s3, s92, 6")
    a("s_lshl_b32 s3, s3, 7")
    a("s_and_b32 s46, s92, 63")
    a(f"s_mul_i32 s46, s46, {56*D*2}")
    a("s_add_u32 s3, s3, s46")
    a(f"v_add_u32 {v(SA2)}, s3, {v(SA2)}")
    a("s_min_u32 s46, s92, 895")
    a(f"s_mul_hi_u32 s93, s46, {((1 << 32) + 55) // 56}")
    a("s_mul_i32 s3, s93, 56")
    a("s_sub_u32 s84, s46, s3")
    a(f"v_mul_u32_u24 {v(t0)}, {F*2}, {v(t0)}")
    a(f"v_add_u32 {v(SA1)}, {v(t0)}, {v(t1)}")
    a(f"s_mul_i32 s3, s93, {64*F*2}")
    a("s_lshl_b32 s46, s84, 7")
    a("s_add_u32 s3, s3, s46")
    a(f"v_add_u32 {v(SA1)}, s3, {v(SA1)}")
    side = [(W1S + 4 * j, SA1, 76, 8 * j * F * 2) for j in range(8)] + ([(W2S[j], SA2, 88, 8 * j * D * 2) for j in range(7)] if QW2 else [])
    SIDE0 = int(os.environ.get('SIDE0', '16')); SPI = int(os.environ.get('SPI', '1'))
    def sideq():
        if not side: return
        d, av, sr, off = side.pop(0)
        a(f"s_mov_b32 s3, {off}")
        a(f"buffer_load_dwordx4 {v(d,4)}, {v(av)}, s[{sr}:{sr+3}], s3 offen")
        Q.append('s')
    for j in range(NS):
        c = nloop - j
        waitq(('d', j), 't')
        a("s_barrier")
        if c == 2:
            l1 = a.newlabel("L_l1")
            a("s_cmp_lg_u32 s30, 0")
            a(f"s_cbranch_scc1 {l1}")
            a(f"v_lshlrev_b32 {v(t0)}, 4, v1")
            a("s_lshl_b32 s3, s28, 12")
            for jj in range(4):
                a(f"buffer_load_dwordx4 {v(LTB+4*jj,4)}, {v(t0)}, s[36:39], s3 offen offset:{1024*jj} sc0 sc1")
            a.label(l1)
            Q.append('t')
        if c == 1:
            l2 = a.newlabel("L_l2")
            a("s_cmp_lg_u32 s30, 0")
            a(f"s_cbranch_scc1 {l2}")
            a("s_mov_b64 s[54:55], exec")
            for jj in range(4):
                a(f"v_cmp_lt_u64 vcc, s[34:35], {v(LTB+4*jj+2,2)}")
                a(f"v_cmp_gt_u64 s[56:57], s[20:21], {v(LTB+4*jj+2,2)}")
                a("s_nop 3")
                a("s_and_b64 s[54:55], s[54:55], vcc")
                a("s_and_b64 s[54:55], s[54:55], s[56:57]")
            a("s_cmp_lg_u64 s[54:55], exec")
            a(f"s_cbranch_scc1 {l2}")
            a("s_mov_b32 s53, 1")
            a(f"v_lshlrev_b32 {v(t0)}, 3, v1")
            a(f"v_add_u32 {v(t0)}, {RTAB}, {v(t0)}")
            for jj in range(4):
                a(f"ds_write_b64 {v(t0)}, {v(LTB+4*jj,2)} offset:{512*jj}")
            a("s_waitcnt lgkmcnt(0)")
            a.label(l2)
        if j + NSTAGE - 1 < NS:
            dmaq(j + NSTAGE - 1)
        if j >= SIDE0:
            for _ in range(SPI): sideq()
        if j == 0:
            stats_math(LSD, LST)
            a("s_lshl_b32 s3, s30, 4")
            a(f"s_add_u32 s3, s3, {STG}")
            a(f"v_mov_b32 {v(LST+9)}, s3")
            a(f"ds_write_b128 {v(LST+9)}, {v(LST,4)}")
            a("s_waitcnt lgkmcnt(0)")
    while side and not SIDEATT: sideq()
    if G.C3:
        a(f"v_lshrrev_b32 {v(t0)}, 3, v1")
        a(f"v_and_b32 {v(t1)}, 7, v1")
        a(f"v_lshlrev_b32 {v(t1)}, 4, {v(t1)}")
        a(f"v_lshl_add_u32 {v(SA2)}, {v(t0)}, 10, {v(t1)}")
        a("s_lshl_b32 s3, s92, 11")
        a("s_mov_b64 exec, 0xffff")
        a(f"buffer_load_dwordx4 {v(W2S[0],4)}, {v(SA2)}, s[88:91], s3 offen offset:384")
        a("s_mov_b64 exec, -1")
        a(f"v_lshl_add_u32 {v(SA2)}, {v(t0)}, 18, {v(t1)}")
    a(f"s_branch {lab_lend}")
    a.label(lab_l2p)
    for _ in range(NSTAGE - 1):
        dma()
    a(f"s_mov_b32 s48, {nloop}")
    lloop = a.newlabel("L_lloop")
    a.label(lloop)
    a(f"s_waitcnt vmcnt({(NSTAGE-2)*P})")
    a("s_barrier")
    dma()
    a("s_sub_u32 s48, s48, 1")
    a("s_cmp_lg_u32 s48, 0")
    a(f"s_cbranch_scc1 {lloop}")
    for j in range(NS - NSTAGE + 1, NS):
        a(f"s_waitcnt vmcnt({(NS-1-j)*P})")
        a("s_barrier")
    a.label(lab_lend)
    stamp(3)
    l4 = a.newlabel("L_l4")
    a(f"v_mov_b32 {v(t1)}, {STAT}")
    a("s_cmp_lg_u32 s30, 0")
    a(f"s_cbranch_scc1 {l4}")
    a(f"v_mov_b32 {v(t0)}, s53")
    a(f"ds_write_b32 {v(t1)}, {v(t0)}")
    for j in range(4):
        a(f"v_mov_b32 {v(LTB+j)}, 0")
    a(f"ds_write_b128 {v(t1)}, {v(LTB,4)} offset:{STAT2-STAT}")
    a("s_waitcnt lgkmcnt(0)")
    a.label(l4)
    a("s_barrier")
    a(f"ds_read_b32 {v(t2)}, {v(t1)}")
    a("s_waitcnt lgkmcnt(0)")
    a(f"v_readfirstlane_b32 s3, {v(t2)}")
    a("s_nop 3")
    lok = a.newlabel("L_stok")
    a("s_cmp_eq_u32 s3, 1")
    a(f"s_cbranch_scc1 {lok}")
    local_stats(LSD, LST)
    a.label(lok)
    stamp(4)
    a("s_barrier")

    a.label(lab_att)
    CM, MK1, MK2, SA, SB = 16, 32, 48, 64, 80
    KB_ = [96, 104]; VB_ = [112, 120]; PP = [128, 136]; OA = 144; SUM = 160
    CA = 64; CT = 72; PUB = 200; VM = 216
    vK1 = [2, 3]; vV1 = 4; vK2 = [5, 6]; vV2 = 7; vQQ = 8; vHH = 9; vX32 = 10; vNEG = 11; vL16 = 12
    T0, T1, T2 = 13, 14, 15
    vNO = 217
    lab_start = a.newlabel("L_astart"); lab_reload = a.newlabel("L_reload"); lab_fin = a.newlabel("L_fin")
    a("s_setprio 0")
    a("s_sub_u32 s3, 11, s49")
    a("s_cmp_lt_u32 s49, 4")
    a("s_cselect_b32 s44, s49, s3")
    a(f"v_and_b32 {v(vQQ)}, 31, v1")
    a(f"v_lshrrev_b32 {v(vHH)}, 5, v1")
    a(f"v_lshlrev_b32 {v(vL16)}, 4, v1")
    a(f"v_xor_b32 {v(vX32)}, 32, v1")
    a(f"v_lshlrev_b32 {v(vX32)}, 2, {v(vX32)}")
    a(f"v_mov_b32 {v(vNEG)}, 0xf149f2ca")
    a(f"v_mov_b32 {v(VM)}, 0")
    a(f"v_bfe_u32 {v(T0)}, v1, 2, 2")
    a(f"v_xor_b32 {v(T0)}, {v(T0)}, {v(vHH)}")
    a(f"v_lshlrev_b32 {v(T1)}, 6, {v(vQQ)}")
    a(f"v_lshl_add_u32 {v(T0)}, {v(T0)}, 4, {v(T1)}")
    a("s_lshl_b32 s3, s44, 11")
    a(f"s_add_u32 s46, s3, {OK_ - 7*2048}")
    a(f"v_add_u32 {v(vK1[0])}, s46, {v(T0)}")
    a(f"v_xor_b32 {v(vK1[1])}, 32, {v(vK1[0])}")
    a(f"s_add_u32 s46, s3, {PK}")
    a(f"v_add_u32 {v(vK2[0])}, s46, {v(T0)}")
    a(f"v_xor_b32 {v(vK2[1])}, 32, {v(vK2[0])}")
    a(f"s_add_u32 s46, s3, {OQ}")
    a(f"v_add_u32 {v(T0)}, s46, {v(T0)}")
    a(f"v_bfe_u32 {v(T1)}, v1, 2, 2")
    a(f"v_lshl_add_u32 {v(T1)}, {v(vHH)}, 2, {v(T1)}")
    a(f"v_lshlrev_b32 {v(T1)}, 6, {v(T1)}")
    a(f"v_bfe_u32 {v(T2)}, v1, 4, 1")
    a(f"v_lshl_add_u32 {v(T1)}, {v(T2)}, 5, {v(T1)}")
    a(f"v_and_b32 {v(T2)}, 3, v1")
    a(f"v_lshl_add_u32 {v(T1)}, {v(T2)}, 3, {v(T1)}")
    a(f"s_add_u32 s46, s3, {OV - 7*2048}")
    a(f"v_add_u32 {v(vV1)}, s46, {v(T1)}")
    a(f"s_add_u32 s46, s3, {PV}")
    a(f"v_add_u32 {v(vV2)}, s46, {v(T1)}")
    a("s_cmp_lg_u32 s45, 1")
    a(f"s_cbranch_scc1 {lab_reload}")
    a(f"ds_read_b128 {v(QF,4)}, {v(T0)}")
    a(f"v_xor_b32 {v(T0)}, 32, {v(T0)}")
    a(f"ds_read_b128 {v(QF+4,4)}, {v(T0)}")
    a("s_mov_b32 s33, 1")
    lab_pubw = a.newlabel("L_pubw")
    a("s_cmp_lt_u32 s49, 4")
    a(f"s_cbranch_scc1 {lab_pubw}")
    while side: sideq()
    a(f"s_branch {lab_start}")
    a.label(lab_pubw)
    a("s_lshl_b32 s3, s49, 13")
    a(f"s_add_u32 s46, s3, {OK_}")
    a(f"v_add_u32 {v(T1)}, s46, {v(vL16)}")
    for j in range(8):
        a(f"ds_read_b128 {v(W1S+4*j,4)}, {v(T1)} offset:{1024*j}")
    a("s_lshl_b32 s46, s99, 15")
    a("s_add_u32 s46, s46, s3")
    for j in range(8):
        if j == 4: a("s_add_u32 s46, s46, 4096")
        a(f"s_waitcnt lgkmcnt({7-j})")
        a(f"buffer_store_dwordx4 {v(W1S+4*j,4)}, {v(vL16)}, s[16:19], s46 offen offset:{1024*(j&3)} sc0 sc1")
    a("s_mov_b32 s33, 0")

    def kvflag():
        ldone = a.newlabel("L_kvf")
        a("s_or_b32 s3, s33, s50")
        a("s_cmp_lg_u32 s3, 0")
        a(f"s_cbranch_scc1 {ldone}")
        a("s_mov_b32 s33, 1")
        a("s_memrealtime s[22:23]")
        a("s_lshl_b32 s3, s99, 7")
        a("s_lshl_b32 s46, s49, 3")
        a("s_add_u32 s3, s3, s46")
        a(f"s_add_u32 s3, s3, {KFO}")
        a(f"v_mov_b32 {v(T0)}, 0")
        a("s_waitcnt vmcnt(0) lgkmcnt(0)")
        a(f"v_mov_b32 {v(PUB)}, s22")
        a(f"v_mov_b32 {v(PUB+1)}, s23")
        a("s_mov_b64 exec, 1")
        if 'nokvflag' not in EXP: a(f"buffer_store_dwordx2 {v(PUB,2)}, {v(T0)}, s[36:39], s3 offen sc0 sc1")
        a("s_mov_b64 exec, -1")
        a.label(ldone)

    a.label(lab_start)
    a(f"v_lshlrev_b32 {v(T0)}, 2, {v(vHH)}")
    a(f"v_sub_u32 {v(T0)}, {v(vQQ)}, {v(T0)}")
    for r in range(16):
        c = (r & 3) + 8 * (r >> 2)
        sp = 52 + 2 * (r & 1)
        a(f"v_cmp_le_i32 s[{sp}:{sp+1}], {c}, {v(T0)}")
        a(f"v_mov_b32 {v(CM+r)}, {v(VM)}")
        a(f"v_cndmask_b32 {v(MK1+r)}, {v(vNEG)}, {v(VM)}, s[{sp}:{sp+1}]")
        a(f"v_cndmask_b32 {v(MK2+r)}, {v(VM)}, {v(vNEG)}, s[{sp}:{sp+1}]")
    for r in range(16):
        a(f"v_mov_b32 {v(OA+r)}, 0")
    for r in range(4):
        a(f"v_mov_b32 {v(SUM+r)}, 0")

    def part(vK, vV, MK, off, last_cmp, lab_out, hook=None):
        SS = [SA, SB]

        def kread(i):
            for ks in range(2):
                a(f"ds_read_b128 {v(KB_[i&1]+4*ks,4)}, {v(vK[ks])} offset:{off(i)}")

        def smf(i, h):
            if h == 0:
                a(f"v_mfma_f32_32x32x16_bf16 {v(SS[i&1],16)}, {v(KB_[i&1],4)}, {v(QF,4)}, {v(MK if i == 0 else CM,16)}")
            else:
                a(f"v_mfma_f32_32x32x16_bf16 {v(SS[i&1],16)}, {v(KB_[i&1]+4,4)}, {v(QF+4,4)}, {v(SS[i&1],16)}")
        kread(0)
        kread(1)
        a("s_waitcnt lgkmcnt(2)")
        smf(0, 0); smf(0, 1)
        for i in range(8):
            Sx = SS[i & 1]; Px = PP[i & 1]; Vx = VB_[i & 1]

            def exps(g):
                for j in range(4):
                    a(f"v_exp_f32 {v(Sx+g+j)}, {v(Sx+g+j)}")

            def addcvt(g):
                for j in range(2):
                    a(f"v_pk_add_f32 {v(SUM+2*j,2)}, {v(SUM+2*j,2)}, {v(Sx+g+2*j,2)}")
                    a(f"v_cvt_pk_bf16_f32 {v(Px+g//2+j)}, {v(Sx+g+2*j)}, {v(Sx+g+1+2*j)}")

            def pv(sidx):
                a(f"v_mfma_f32_32x32x16_bf16 {v(OA,16)}, {v(Vx+4*sidx,4)}, {v(Px+4*sidx,4)}, {v(OA,16)}")
            for sidx in range(2):
                for rd in range(2):
                    a(f"ds_read_b64_tr_b16 {v(Vx+4*sidx+2*rd,2)}, {v(vV)} offset:{off(i) + (16*sidx+8*rd)*64}")
            if i < 7:
                a("s_waitcnt lgkmcnt(4)")
                smf(i + 1, 0)
            if i == 0:
                a("s_nop 7"); a("s_nop 7"); a("s_nop 7")
            exps(0)
            if i < 7:
                smf(i + 1, 1)
                if i < 6: kread(i + 2)
            exps(4); addcvt(0)
            exps(8); addcvt(4)
            a(f"s_waitcnt lgkmcnt({2 if i < 6 else 0})")
            pv(0)
            exps(12); addcvt(8)
            a("s_nop 0")
            addcvt(12)
            a("s_nop 1")
            pv(1)
            if i < 7:
                a(f"s_cmp_eq_u32 s44, {last_cmp(i)}")
                a(f"s_cbranch_scc1 {lab_out}")
            if hook and i == 2: hook()
        a.label(lab_out)
        a("s_waitcnt lgkmcnt(0)")

    part(vK1, vV1, MK1, lambda i: (7 - i) * 2048, lambda i: i, a.newlabel("L_p1e"), hook=kvflag)
    stamp(5)
    lab_p2 = a.newlabel("L_p2")
    a("s_cmp_lg_u32 s50, 0")
    a(f"s_cbranch_scc1 {lab_p2}")
    kvflag()
    lab_nc = a.newlabel("L_nocs")
    a("s_cmp_lt_u32 s49, 4")
    a(f"s_cbranch_scc1 {lab_nc}")
    if G.C3:
        srd(a, 88, 24, G.WS_WOC, 2 * D * 256)
        a("s_lshl_b32 s3, s92, 8")
        a("s_waitcnt vmcnt(0)")
        a("s_mov_b64 exec, 0xffff")
        a(f"buffer_store_dwordx4 {v(W2S[0],4)}, {v(SA2)}, s[88:91], s3 offen")
        a("s_mov_b64 exec, -1")
    else:
        srd(a, 88, 24, G.WS_W2T, F * D * 2)
        a("s_mul_i32 s3, s92, 7168")
        a("s_waitcnt vmcnt(0)")
    for j in range(7 if QW2 else 0):
        if j == 4: a("s_add_u32 s3, s3, 4096")
        a(f"buffer_store_dwordx4 {v(W2S[j],4)}, {v(vL16)}, s[88:91], s3 offen offset:{1024*(j&3)}")
    a("s_cmp_ge_u32 s92, 896")
    a(f"s_cbranch_scc1 {lab_nc}")
    for j in range(4):
        a(f"v_lshlrev_b32 v{CA+2*j}, 16, v{W1S+j}")
        a(f"v_and_b32 v{CA+2*j+1}, 0xffff0000, v{W1S+j}")
    for i in range(1, 8):
        for j in range(4):
            a(f"v_lshlrev_b32 v{CT+2*j}, 16, v{W1S+4*i+j}")
            a(f"v_and_b32 v{CT+2*j+1}, 0xffff0000, v{W1S+4*i+j}")
        for j in range(4):
            a(f"v_pk_add_f32 {v(CA+2*j,2)}, {v(CA+2*j,2)}, {v(CT+2*j,2)}")
    a("s_nop 1")
    for j in range(8):
        a(f"v_add_f32_dpp v{CT+j}, v{CA+j}, v{CA+j} row_ror:8 row_mask:0xf bank_mask:0xf")
    a(f"v_xor_b32 {v(T0)}, 16, v1")
    a(f"v_lshlrev_b32 {v(T0)}, 2, {v(T0)}")
    for j in range(8):
        a(f"ds_bpermute_b32 v{CA+j}, {v(T0)}, v{CT+j}")
    a("s_waitcnt lgkmcnt(0)")
    for j in range(8):
        a(f"v_add_f32 v{CT+j}, v{CA+j}, v{CT+j}")
    for j in range(8):
        a(f"ds_bpermute_b32 v{CA+j}, {v(vX32)}, v{CT+j}")
    a("s_waitcnt lgkmcnt(0)")
    for j in range(8):
        a(f"v_add_f32 v{CA+j}, v{CA+j}, v{CT+j}")
    srd(a, 76, 24, G.WS_CS, 16 * F * 4)
    a(f"s_mul_i32 s3, s93, {F*4}")
    a("s_lshl_b32 s46, s84, 8")
    a("s_add_u32 s3, s3, s46")
    a(f"v_lshlrev_b32 {v(T0)}, 5, v1")
    a("s_mov_b64 exec, 0xff")
    a(f"buffer_store_dwordx4 {v(CA,4)}, {v(T0)}, s[76:79], s3 offen")
    a(f"buffer_store_dwordx4 {v(CA+4,4)}, {v(T0)}, s[76:79], s3 offen offset:16")
    a("s_mov_b64 exec, -1")
    a.label(lab_nc)
    a("s_mov_b32 s50, 1")
    a("s_cmp_eq_u32 s28, 0")
    a(f"s_cbranch_scc1 {lab_p2}")
    lp = a.newlabel("L_poll"); lpo = a.newlabel("L_pollok"); lpd = a.newlabel("L_polld"); lsp = a.newlabel("L_spin")
    a("s_cmp_ge_u32 s49, 4")
    a(f"s_cbranch_scc1 {lsp}")
    a("s_sub_u32 s46, s99, 32")
    a("s_lshl_b32 s47, s46, 7")
    a(f"s_add_u32 s47, s47, {KFO}")
    a(f"v_and_b32 {v(T0)}, 3, v1")
    a(f"v_lshlrev_b32 {v(T0)}, 3, {v(T0)}")
    a(f"s_mov_b32 s52, {NPOLL}")
    a.label(lp)
    a(f"buffer_load_dwordx2 {v(PUB,2)}, {v(T0)}, s[36:39], s47 offen sc0 sc1")
    a("s_waitcnt vmcnt(0)")
    a(f"v_cmp_lt_u64 vcc, s[34:35], {v(PUB,2)}")
    a(f"v_cmp_gt_u64 s[54:55], s[20:21], {v(PUB,2)}")
    a("s_nop 3")
    a("s_and_b64 vcc, vcc, s[54:55]")
    a("s_cmp_eq_u64 vcc, exec")
    a(f"s_cbranch_scc1 {lpo}")
    a("s_sub_u32 s52, s52, 1")
    a("s_cmp_lg_u32 s52, 0")
    a(f"s_cbranch_scc1 {lp}")
    a(f"v_mov_b32 {v(T1)}, 2")
    a(f"s_branch {lpd}")
    a.label(lpo)
    a("s_lshl_b32 s3, s49, 13")
    a("s_lshl_b32 s46, s46, 15")
    a("s_add_u32 s46, s46, s3")
    for j in range(8):
        a(f"s_add_u32 m0, s3, {PK + 1024*j}")
        a("s_nop 0")
        a(f"buffer_load_dwordx4 {v(vL16)}, s[16:19], s46 offen sc0 sc1 lds")
        a("s_add_u32 s46, s46, 1024")
    a(f"v_mov_b32 {v(T1)}, 1")
    a.label(lpd)
    a("s_lshl_b32 s3, s49, 2")
    a(f"s_add_u32 s3, s3, {STAT2}")
    a(f"v_mov_b32 {v(T0)}, s3")
    a("s_waitcnt vmcnt(0)")
    a(f"ds_write_b32 {v(T0)}, {v(T1)}")
    a.label(lsp)
    a(f"v_mov_b32 {v(T0)}, {STAT2}")
    a(f"ds_read_b128 {v(PUB,4)}, {v(T0)}")
    a("s_waitcnt lgkmcnt(0)")
    a(f"v_min_u32 {v(T1)}, {v(PUB)}, {v(PUB+1)}")
    a(f"v_min3_u32 {v(T1)}, {v(T1)}, {v(PUB+2)}, {v(PUB+3)}")
    a(f"v_max_u32 {v(T2)}, {v(PUB)}, {v(PUB+1)}")
    a(f"v_max3_u32 {v(T2)}, {v(T2)}, {v(PUB+2)}, {v(PUB+3)}")
    a("s_nop 0")
    a(f"v_readfirstlane_b32 s3, {v(T1)}")
    a(f"v_readfirstlane_b32 s46, {v(T2)}")
    a("s_nop 3")
    a("s_cmp_eq_u32 s3, 0")
    a("s_sleep 1")
    a(f"s_cbranch_scc1 {lsp}")
    a("s_cmp_eq_u32 s46, 1")
    a(f"s_cbranch_scc1 {lab_p2}")
    a("s_mov_b32 s45, 2")
    a("s_sub_u32 s98, s98, 256")
    a(f"s_mov_b32 s100, {XQ}")
    a("s_barrier")
    a("s_cmp_lt_u32 s49, 4")
    a(f"s_cbranch_scc1 {lab_cpass}")
    a("s_setprio 2")
    a(f"s_branch {a.newlabel('L_lre')}")
    lab_lre = f"L_lre_{a.nlab}"

    a.label(lab_reload)
    a("s_lshl_b32 s3, s49, 12")
    a("s_lshl_b32 s46, s99, 15")
    a("s_add_u32 s46, s46, s3")
    for j in range(4):
        a(f"s_add_u32 m0, s3, {OK_ + 1024*j}")
        a("s_nop 0")
        a(f"buffer_load_dwordx4 {v(vL16)}, s[16:19], s46 offen sc0 sc1 lds")
        a("s_add_u32 s46, s46, 1024")
    a("s_waitcnt vmcnt(0)")
    a("s_barrier")
    a(f"s_branch {lab_start}")

    a.label(lab_p2)
    if 'qpf2' in EXP:
        lq = a.newlabel("L_qpf")
        a("s_cmp_eq_u32 s33, 2")
        a(f"s_cbranch_scc1 {lq}")
        a("s_mov_b32 s33, 2")
        a(f"s_load_dwordx2 s[54:55], s[0:1], {ARG['w2']}")
        a("s_lshl_b32 s3, s99, 3")
        a("s_add_u32 s3, s3, s49")
        a("s_mul_i32 s3, s3, 3584")
        a(f"v_lshlrev_b32 {v(T0)}, 7, v1")
        a("s_waitcnt lgkmcnt(0)")
        srd(a, 88, 54, 0, F * D * 2)
        a("s_mov_b64 exec, 0xfffffff")
        a(f"buffer_load_dword v255, {v(T0)}, s[88:91], s3 offen")
        a("s_mov_b64 exec, -1")
        a.label(lq)
    a("s_cmp_eq_u32 s28, 0")
    a(f"s_cbranch_scc1 {lab_fin}")
    part(vK2, vV2, MK2, lambda i: i * 2048, lambda i: 7 - i, a.newlabel("L_p2e"))
    a.label(lab_fin)
    stamp(6)
    a(f"v_add_f32 {v(SUM)}, {v(SUM)}, {v(SUM+1)}")
    a(f"v_add_f32 {v(SUM+2)}, {v(SUM+2)}, {v(SUM+3)}")
    a(f"v_add_f32 {v(SUM)}, {v(SUM)}, {v(SUM+2)}")
    a(f"ds_bpermute_b32 {v(SUM+1)}, {v(vX32)}, {v(SUM)}")
    a("s_waitcnt lgkmcnt(0)")
    a(f"v_add_f32 {v(SUM)}, {v(SUM)}, {v(SUM+1)}")
    lab_out = a.newlabel("L_out")
    a("s_cmp_lg_u32 s51, 0")
    a(f"s_cbranch_scc1 {lab_out}")
    lo = 2.0 ** -40 if 'forcemax' not in EXP else 2.0 ** 39
    a(f"v_mov_b32 {v(T1)}, {hex_f32(lo)}")
    a(f"v_mov_b32 {v(T0)}, {hex_f32(2.0**40)}")
    a(f"v_cmp_lt_f32 s[52:53], {v(T1)}, {v(SUM)}")
    a(f"v_cmp_lt_f32 s[54:55], {v(SUM)}, {v(T0)}")
    a("s_nop 3")
    a("s_and_b64 s[52:53], s[52:53], s[54:55]")
    a("s_cmp_eq_u64 s[52:53], exec")
    a(f"s_cbranch_scc1 {lab_out}")
    a("s_mov_b32 s51, 1")
    a(f"v_mov_b32 {v(VM)}, {v(vNEG)}")

    def maxpart(vK, MK, first_off, step, cnt_expr):
        lp = a.newlabel("L_mx"); lpe = a.newlabel("L_mxe")
        a(f"v_add_u32 {v(T0)}, {first_off}, {v(vK[0])}")
        a(f"v_add_u32 {v(T1)}, {first_off}, {v(vK[1])}")
        cnt_expr()

        def tile(C):
            a(f"ds_read_b128 {v(KB_[0],4)}, {v(T0)}")
            a(f"ds_read_b128 {v(KB_[0]+4,4)}, {v(T1)}")
            a("s_waitcnt lgkmcnt(0)")
            a(f"v_mfma_f32_32x32x16_bf16 {v(SA,16)}, {v(KB_[0],4)}, {v(QF,4)}, {v(C,16)}")
            a(f"v_mfma_f32_32x32x16_bf16 {v(SA,16)}, {v(KB_[0]+4,4)}, {v(QF+4,4)}, {v(SA,16)}")
            a("s_nop 7"); a("s_nop 7"); a("s_nop 7")
            for r in range(0, 16, 2):
                a(f"v_max3_f32 {v(VM)}, {v(VM)}, {v(SA+r)}, {v(SA+r+1)}")
            a(f"v_add_u32 {v(T0)}, {step}, {v(T0)}")
            a(f"v_add_u32 {v(T1)}, {step}, {v(T1)}")
        tile(MK)
        a.label(lp)
        a("s_cmp_eq_u32 s52, 0")
        a(f"s_cbranch_scc1 {lpe}")
        tile(CM)
        a("s_sub_u32 s52, s52, 1")
        a(f"s_branch {lp}")
        a.label(lpe)

    maxpart(vK1, MK1, 7 * 2048, -2048, lambda: a("s_mov_b32 s52, s44"))
    lmx = a.newlabel("L_mxd")
    a("s_cmp_eq_u32 s28, 0")
    a(f"s_cbranch_scc1 {lmx}")
    maxpart(vK2, MK2, 0, 2048, lambda: a("s_sub_u32 s52, 7, s44"))
    a.label(lmx)
    a(f"ds_bpermute_b32 {v(T0)}, {v(vX32)}, {v(VM)}")
    a("s_waitcnt lgkmcnt(0)")
    a(f"v_max_f32 {v(VM)}, {v(VM)}, {v(T0)}")
    a(f"v_sub_f32 {v(VM)}, 0, {v(VM)}")
    a(f"s_branch {lab_start}")

    a.label(lab_out)
    a(f"v_rcp_f32 {v(SUM)}, {v(SUM)}")
    if G.OT:
        a("s_lshl_b32 s3, s28, 1")
        a("s_lshr_b32 s46, s44, 2")
        a("s_add_u32 s3, s3, s46")
        a("s_lshl_b32 s3, s3, 4")
        a("s_lshr_b32 s46, s29, 1")
        a("s_add_u32 s3, s3, s46")
        a("s_lshl_b32 s3, s3, 2")
        a("s_and_b32 s46, s44, 3")
        a("s_add_u32 s3, s3, s46")
        a(f"s_lshl_b32 s3, s3, {5+G.TSH}")
        a("s_and_b32 s46, s29, 1")
        a("s_lshl_b32 s46, s46, 6")
        a("s_add_u32 s3, s3, s46")
        a(f"v_lshlrev_b32 {v(T0)}, {G.TSH}, {v(vQQ)}")
        a(f"v_lshl_add_u32 {v(T0)}, {v(vHH)}, 3, {v(T0)}")
        a(f"v_add_u32 {v(T0)}, s3, {v(T0)}")
    else:
        a("s_lshl_b32 s3, s28, 8")
        a("s_lshl_b32 s46, s44, 5")
        a("s_add_u32 s3, s3, s46")
        a(f"v_add_u32 {v(T0)}, s3, {v(vQQ)}")
        a(f"v_lshlrev_b32 {v(T0)}, 11, {v(T0)}")
        a(f"v_lshl_add_u32 {v(T0)}, {v(vHH)}, 3, {v(T0)}")
        a("s_lshl_b32 s3, s29, 6")
        a(f"v_add_u32 {v(T0)}, s3, {v(T0)}")
    a("s_nop 7")
    for g in range(4):
        for r in range(4):
            a(f"v_mul_f32 v{OA+4*g+r}, v{OA+4*g+r}, {v(SUM)}")
        a(f"v_cvt_pk_bf16_f32 v{OA+4*g}, v{OA+4*g}, v{OA+4*g+1}")
        a(f"v_cvt_pk_bf16_f32 v{OA+4*g+1}, v{OA+4*g+2}, v{OA+4*g+3}")
        a(f"buffer_store_dwordx2 {v(OA+4*g,2)}, {v(T0)}, s[12:15], 0 offen offset:{16*g}")
    if 'stamp' in EXP: a("s_waitcnt vmcnt(0)")
    stamp(7)
    stamp_out()
    a(f"s_branch {end}")

    a.label(lab_lre)
    a("s_lshl_b32 s3, s30, 6")
    a(f"v_lshrrev_b32 {v(t0)}, 3, v1")
    a(f"v_add_u32 {v(t0)}, s3, {v(t0)}")
    for i in range(PA):
        a(f"v_add_u32 {v(t1)}, {8*i}, {v(t0)}")
        a(f"v_lshrrev_b32 {v(t2)}, 1, {v(t1)}")
        a(f"v_and_b32 {v(t2)}, 7, {v(t2)}")
        a(f"v_and_b32 {v(t3)}, 7, v1")
        a(f"v_xor_b32 {v(t2)}, {v(t2)}, {v(t3)}")
        a(f"v_add_u32 {v(t1)}, s98, {v(t1)}")
        a(f"v_mul_u32_u24 {v(t1)}, {lda}, {v(t1)}")
        a(f"v_lshl_add_u32 {v(vA[i])}, {v(t2)}, 4, {v(t1)}")
    a("s_lshl_b32 s3, s29, 6")
    for i in range(PB):
        a(f"s_mul_i32 s46, s30, {PB}")
        a(f"s_add_u32 s46, s46, {i}")
        a("s_lshr_b32 s47, s46, 2")
        a("s_and_b32 s46, s46, 3")
        a("s_lshl_b32 s46, s46, 4")
        a("s_lshl_b32 s47, s47, 11")
        a("s_add_u32 s47, s47, s3")
        a(f"v_lshrrev_b32 {v(t0)}, 2, v1")
        a(f"v_add_u32 {v(t0)}, s46, {v(t0)}")
        a(f"v_and_b32 {v(t1)}, 3, v1")
        a(f"v_bfe_u32 {v(t2)}, {v(t0)}, 3, 1")
        a(f"v_lshlrev_b32 {v(t2)}, 1, {v(t2)}")
        a(f"v_xor_b32 {v(t1)}, {v(t1)}, {v(t2)}")
        a(f"v_mul_u32_u24 {v(t0)}, {N*2}, {v(t0)}")
        a(f"v_lshl_add_u32 {v(t0)}, {v(t1)}, 4, {v(t0)}")
        a(f"v_add_u32 {v(vB[i])}, s47, {v(t0)}")
    a(f"s_branch {lab_lpass}")
    a.label(end)
    a("s_endpgm")
    return dict(name=name, grid=256, block=512, lds=lds, desc=G.kernel_desc(name, 256))
```

```python
import sys, math, os
EXP=os.environ.get('EXP','')
STMOD=os.environ.get('STMOD','sc0 sc1')
STALL=os.environ.get('STALL','')
RPM=int(os.environ.get('RPM','2'))
PFS=int(os.environ.get('PFS','4'))

OUT = os.environ.get("OUTF","sequential_preLN__sliding_block__mixer_channel_mlp__prompt.s")

S = 2048; D = 1024; F = 3584; H = 32; DH = 32; WIN = 256
ARG = dict(x=0, wqkv=8, wo=16, bx=24, w1=32, b1=40, w2=48, b2=56, out=64, dbg=72, ws=80)
MB = 1 << 20
WS_Y1 = 0
WS_QKV = 4 * MB
TP = int(os.environ.get('TP', '256')); TX = TP // 128; TSH = 7 + TX.bit_length() - 1
OT = 'noot' not in EXP
C3 = 'noc3' not in EXP
WS_O = 16 * MB
WS_H = 24 * MB
WS_Y2 = 24 * MB
WS_H1 = 32 * MB
WS_W2C = 62 * MB
WS_WOC = 64 * MB
WS_ST = 0
WS_CS = 1 * MB
WS_SIZE = 256 * MB
WS_FLAG = 2 * MB
WS_W2T = 72 * MB
WS_PART = 80 * MB
LDH1 = F * 2 * TX


class Asm:
    def __init__(self):
        self.lines = []
        self.nlab = 0

    def __call__(self, s):
        self.lines.append("    " + s)

    def label(self, l):
        self.lines.append(l + ":")

    def newlabel(self, base="L"):
        self.nlab += 1
        return f"{base}_{self.nlab}"

    def c(self, s):
        self.lines.append("    ; " + s)

    def dry_begin(self, wave_sreg, idx_sreg, nw=4):
        self.dry = dict(ret=self.newlabel("L_dret"), disp=self.newlabel("L_ddisp"), done=self.newlabel("L_ddone"),
                        ent=[], idx=idx_sreg, nw=nw)
        self(f"s_mov_b32 s{idx_sreg}, s{wave_sreg}")
        self("s_mov_b64 exec, 0")
        self(f"s_branch {self.dry['disp']}")
        self.label(self.dry['done'])
        self("s_mov_b64 exec, -1")

    def dry_entry(self):
        l = self.newlabel("L_dent")
        self.label(l)
        self.dry['ent'].append(l)

    def dry_exit(self):
        self(f"s_cbranch_execz {self.dry['ret']}")

    def dry_mark(self):
        self.dry_exit(); self.dry_entry()

    def dry_dispatch(self):
        d = self.dry
        self.label(d['ret'])
        self(f"s_add_u32 s{d['idx']}, s{d['idx']}, {d['nw']}")
        self.label(d['disp'])
        for i, l in enumerate(d['ent']):
            self(f"s_cmp_eq_u32 s{d['idx']}, {i}")
            self(f"s_cbranch_scc1 {l}")
        self(f"s_branch {d['done']}")


def v(i, n=1):
    return f"v{i}" if n == 1 else f"v[{i}:{i+n-1}]"


def s(i, n=1):
    return f"s{i}" if n == 1 else f"s[{i}:{i+n-1}]"


def srd(a, d, base, off, nbytes):
    if off:
        a(f"s_add_u32 s{d}, s{base}, {off}")
        a(f"s_addc_u32 s{d+1}, s{base+1}, 0")
    else:
        a(f"s_mov_b32 s{d}, s{base}")
        a(f"s_mov_b32 s{d+1}, s{base+1}")
    a(f"s_and_b32 s{d+1}, s{d+1}, 0xffff")
    a(f"s_mov_b32 s{d+2}, {nbytes}")
    a(f"s_mov_b32 s{d+3}, 0x00020000")


def hex_f32(x):
    import struct
    return hex(struct.unpack('<I', struct.pack('<f', x))[0])


def kernel_header(a, name):
    a.lines.append(".p2align 8")
    a.lines.append(f".globl {name}")
    a.lines.append(f".type {name},@function")
    a.label(name)


def kernel_desc(name, nvgpr, nsgpr=102, accum=None):
    nv = ((nvgpr + 7) // 8) * 8
    acc = accum if accum is not None else ((nvgpr + 3) // 4) * 4
    return f""".amdhsa_kernel {name}
  .amdhsa_next_free_vgpr {nv if accum is None else nvgpr}
  .amdhsa_next_free_sgpr {nsgpr}
  .amdhsa_accum_offset {min(acc,256)}
  .amdhsa_group_segment_fixed_size 0
  .amdhsa_kernarg_size 88
  .amdhsa_user_sgpr_count 2
  .amdhsa_user_sgpr_kernarg_segment_ptr 1
  .amdhsa_system_sgpr_workgroup_id_x 1
.end_amdhsa_kernel
"""


def gen_prefetch(a, regions, end_label):
    CH = 32768
    counts = [nbytes // CH for _, nbytes in regions]
    for (_, nbytes), c in zip(regions, counts):
        assert c * CH == nbytes
    total = sum(counts)
    skip = a.newlabel("L_nopf")
    a(f"s_cmp_ge_u32 s2, {total}")
    a(f"s_cbranch_scc1 {skip}")
    base = 0
    for (arg, nbytes), c in zip(regions, counts):
        nxt = a.newlabel("L_pfn")
        a(f"s_cmp_ge_u32 s2, {base + c}")
        a(f"s_cbranch_scc1 {nxt}")
        a(f"s_load_dwordx2 s[4:5], s[0:1], {ARG[arg]}")
        a(f"s_sub_u32 s3, s2, {base}")
        a("s_lshl_b32 s3, s3, 15")
        a("v_lshlrev_b32 v1, 4, v0")
        a("v_add_u32 v1, s3, v1")
        a("s_waitcnt lgkmcnt(0)")
        srd(a, 8, 4, 0, nbytes)
        for j in range(8):
            a(f"v_add_u32 v2, {4096*j}, v1")
            a(f"buffer_load_dwordx4 {v(4+4*j,4)}, v2, s[8:11], 0 offen")
        a("s_waitcnt vmcnt(0)")
        a(f"s_branch {end_label}")
        a.label(nxt)
        base += c
    a.label(skip)
    a(f"s_sub_u32 s2, s2, {total}")
    return total


def tail_prefetch(a, task, lane, regions, vtmp, vdst):
    ntask = 2048
    total = sum(n for _, n in regions)
    per = total // ntask
    assert per * ntask == total and per % 1024 == 0
    nld = per // 1024
    base = 0
    done = a.newlabel("L_pfdone")
    for arg, nbytes in regions:
        cnt = nbytes // per
        assert cnt * per == nbytes
        nxt = a.newlabel("L_pfn")
        a(f"s_cmp_ge_u32 s{task}, {base + cnt}")
        a(f"s_cbranch_scc1 {nxt}")
        a(f"s_load_dwordx2 s[94:95], s[0:1], {ARG[arg]}")
        a(f"s_sub_u32 s93, s{task}, {base}")
        a(f"s_mul_i32 s93, s93, {per}")
        a(f"v_lshlrev_b32 {v(vtmp)}, 4, {v(lane)}")
        a(f"v_add_u32 {v(vtmp)}, s93, {v(vtmp)}")
        a("s_waitcnt lgkmcnt(0)")
        srd(a, 96, 94, 0, nbytes)
        for j in range(nld):
            if j and j % 4 == 0:
                a(f"v_add_u32 {v(vtmp)}, 4096, {v(vtmp)}")
            a(f"buffer_load_dwordx4 {v(vdst,4)}, {v(vtmp)}, s[96:99], 0 offen offset:{1024*(j%4)}")
        a(f"s_branch {done}")
        a.label(nxt)
        base += cnt
    a.label(done)
    return nld

def gen_ln(a, name, src_arg, src_off, dst_off, double, pf=None):
    nwg = S // 4
    kernel_header(a, name)
    end = a.newlabel("L_end")
    npf = 0
    a(f"s_cmp_ge_u32 s2, {nwg}")
    a(f"s_cbranch_scc1 {end}")
    a(f"s_load_dwordx2 s[4:5], s[0:1], {ARG[src_arg]}")
    a(f"s_load_dwordx2 s[6:7], s[0:1], {ARG['ws']}")
    a("v_lshrrev_b32 v1, 6, v0")
    a("v_and_b32 v2, 63, v0")
    a("s_lshl_b32 s3, s2, 2")
    a("v_add_u32 v1, s3, v1")
    a("v_lshlrev_b32 v3, 11, v1")
    a("v_lshl_add_u32 v3, v2, 5, v3")
    for i, m in enumerate([1, 2, 4, 8, 16, 32]):
        a(f"v_xor_b32 v{12+i}, {m}, v2")
        a(f"v_lshlrev_b32 v{12+i}, 2, v{12+i}")
    a("s_waitcnt lgkmcnt(0)")
    srd(a, 8, 4, src_off, S * D * 2)
    srd(a, 12, 6, dst_off, S * D * 2)
    a("buffer_load_dwordx4 v[4:7], v3, s[8:11], 0 offen")
    a("buffer_load_dwordx4 v[8:11], v3, s[8:11], 0 offen offset:16")
    npl = 0
    if pf:
        a("v_readfirstlane_b32 s92, v1")
        a("s_nop 3")
        npl = tail_prefetch(a, 92, 2, pf, 44, 48)
    a(f"s_waitcnt vmcnt({npl})")

    def unpack():
        for i in range(8):
            a(f"v_lshlrev_b32 v{20+2*i}, 16, v{4+i}")
            a(f"v_and_b32 v{21+2*i}, 0xffff0000, v{4+i}")

    def bfly():
        for i in range(6):
            a(f"ds_bpermute_b32 v41, v{12+i}, v40")
            a("s_waitcnt lgkmcnt(0)")
            a("v_add_f32 v40, v40, v41")

    def norm():
        a("v_add_f32 v40, v20, v21")
        for i in range(2, 16):
            a(f"v_add_f32 v40, v40, v{20+i}")
        bfly()
        a("v_mul_f32 v40, 0x3a800000, v40")
        for i in range(16):
            a(f"v_sub_f32 v{20+i}, v{20+i}, v40")
        a("v_mul_f32 v40, v20, v20")
        for i in range(1, 16):
            a(f"v_fmac_f32 v40, v{20+i}, v{20+i}")
        bfly()
        a("v_mov_b32 v42, 0x3727c5ac")
        a("v_fma_f32 v40, v40, v43, v42")
        a("v_rsq_f32 v40, v40")
        a("s_nop 0")
        for i in range(16):
            a(f"v_mul_f32 v{20+i}, v{20+i}, v40")
        for i in range(8):
            a(f"v_cvt_pk_bf16_f32 v{4+i}, v{20+2*i}, v{21+2*i}")

    a("v_mov_b32 v43, 0x3a800000")
    unpack()
    norm()
    if double:
        unpack()
        norm()
    a("buffer_store_dwordx4 v[4:7], v3, s[12:15], 0 offen")
    a("buffer_store_dwordx4 v[8:11], v3, s[12:15], 0 offen offset:16")
    a.label(end)
    a("s_endpgm")
    return dict(name=name, grid=nwg + npf, block=256, lds=0, desc=kernel_desc(name, 56))


def gen_gemm(a, name, N, K, BN, a_off, w_arg, epi, out_arg, out_off, res_arg=None, res_off=0,
             bias_arg=None, BM=128, NSTAGE=3, RA=4, RBN=8, ln=None, a_arg='ws', pre=False, stats_out=False, lda=None, ldo=None, splitk=None, zero_flags=False, l2pf=0, wpf=None, atile=False, w_off=None, otile=False, w2copy=False, dry=0, epi2=False, spf=None, rtile=False, c3src=None, c3=None):
    import struct
    M = S
    BK = 64
    lda = lda or K * 2
    ldo = ldo or N * 2
    ATILE = ('at_' + name.split('_')[0]) in EXP or atile
    BTILE = ('bt_' + name.split('_')[0]) in EXP or w_off is not None
    ASTEP = BM * TP if ATILE else BK * 2
    NT_M = M // BM
    NT_N = N // BN
    ntiles = NT_M * NT_N
    MT = BM // 2 // 16
    NTW = BN // 2 // 16
    RB = {64: 128, 128: 128, 192: 128, 96: 64, 224: 448, 112: 32}[BN]
    ABYTES = BM * BK * 2
    BBYTES = BK * BN * 2
    STAGE = ABYTES + BBYTES
    PA = ABYTES // 1024 // 4
    PB = BBYTES // 1024 // 4
    assert PA * 4096 == ABYTES and PB * 4096 == BBYTES
    P = PA + PB
    NS = K // BK
    if splitk:
        NSLO, NSHI = splitk
        assert NSLO + NSHI == NS and (NSLO - NSHI) % NSTAGE == 0
        NS = NSHI
        ntiles *= 2
    lds = STAGE * NSTAGE
    CROW = BN * 2 + 16
    CSZ = BM * CROW
    LASTB = (NS - 1) % NSTAGE
    TBL = 2048 if (ln and not pre) else 0
    CBASE = 0 if LASTB * STAGE >= CSZ + TBL else (LASTB + 1) * STAGE
    assert CBASE + CSZ + TBL <= lds
    EPI = lds
    st_res = bool(res_arg) and not splitk
    if splitk:
        DONE = CBASE + CSZ
        assert DONE + 16 <= (LASTB * STAGE if CBASE == 0 else lds)
    st_bias = pre
    if st_res: lds += BM * BN * 2
    if st_bias: lds += 3072 + 4096
    assert lds <= 163840
    if pre:
        CTAB = EPI + 1024; RTAB = EPI + 2048
    else:
        RTAB = CBASE + CSZ; CTAB = RTAB + 1024
    NEX = (BM * BN * 2 // 4096 if st_res else 0)
    PPR = RB // 32
    lg_ppr = int(math.log2(PPR)) if RB != 448 else 0

    vA = list(range(2, 2 + PA))
    vB = list(range(2 + PA, 2 + PA + PB))
    nxt = 2 + PA + PB
    vXb = [nxt, nxt + 1]; nxt += 2
    vWb = list(range(nxt, nxt + NTW)); nxt += NTW
    vXc = [nxt, nxt + 1]; nxt += 2
    vWc = list(range(nxt, nxt + NTW)); nxt += NTW
    vT = list(range(nxt, nxt + 8)); nxt += 8
    nxt = (nxt + 3) // 4 * 4
    FX = [nxt, nxt + 4 * MT]; nxt += 8 * MT
    FW = [nxt, nxt + 4 * NTW]; nxt += 8 * NTW
    ACC = nxt; nxt += 4 * MT * NTW
    PBI = nxt
    if bias_arg and not pre: nxt += 2 * NTW
    if l2pf or wpf or spf:
        nxt = (nxt + 3) // 4 * 4
        PFD = nxt; PFV = nxt + 4; nxt += 5
    W2S = 136; W2A = 164
    if splitk:
        PRT = nxt; nxt += 4 * MT * NTW
        PFL = nxt; PFA = nxt + 1; PPA = nxt + 2; nxt += 3
    nvgpr = nxt
    assert nvgpr <= 256
    t0, t1, t2, t3 = vT[0], vT[1], vT[2], vT[3]

    def acc(nt, mt):
        return ACC + 4 * (nt * MT + mt)

    def stamp(i):
        if 'stamp' in EXP:
            if 'rt' in EXP and i in (1, 6):
                a(f"s_memrealtime s[{60+2*i}:{61+2*i}]")
                a(f"s_memtime s[{62 if i == 1 else 70}+0:{63 if i == 1 else 71}]".replace("+0","")) if False else None
            else:
                a(f"s_memtime s[{60+2*i}:{61+2*i}]")
            if i >= 6: a("s_waitcnt lgkmcnt(0)")

    def stamp_out():
        if 'stamp' not in EXP: return
        a("s_waitcnt lgkmcnt(0)")
        srd(a, 80, 24, 200 * MB, 1 << 20)
        a("s_lshl_b32 s3, s2, 3")
        a("s_add_u32 s3, s3, s49")
        a("s_lshl_b32 s3, s3, 6")
        a("v_mov_b32 v2, s3")
        for i in range(8):
            a(f"v_mov_b32 v4, s{60+2*i}")
            a(f"v_mov_b32 v5, s{61+2*i}")
            a(f"buffer_store_dwordx2 v[4:5], v2, s[80:83], 0 offen offset:{8*i}")
            a("s_nop 1")

    def wfrag_addr_common():
        a(f"v_lshrrev_b32 {v(t1)}, 4, v1")
        a(f"v_bfe_u32 {v(t0)}, v1, 2, 2")
        a(f"v_lshl_add_u32 {v(t2)}, {v(t1)}, 3, {v(t0)}")
        if RB == 256:
            a(f"v_and_b32 {v(t3)}, 1, {v(t1)}")
            a(f"v_lshl_add_u32 {v(t3)}, {v(t3)}, 2, {v(t0)}")
        elif RB == 128:
            a(f"v_and_b32 {v(t3)}, 1, {v(t1)}")
            a(f"v_lshrrev_b32 {v(t0)}, 1, {v(t0)}")
            a(f"v_lshl_add_u32 {v(t3)}, {v(t3)}, 1, {v(t0)}")
        elif RB in (64, 448):
            a(f"v_and_b32 {v(t3)}, 1, {v(t1)}")
        else:
            a(f"v_mov_b32 {v(t3)}, 0")
        a(f"v_mul_u32_u24 {v(t2)}, {RB}, {v(t2)}")
        a(f"v_and_b32 {v(t0)}, 3, v1")
        a(f"v_lshl_add_u32 {v(t2)}, {v(t0)}, 3, {v(t2)}")
        a(f"v_add_u32 {v(t2)}, {ABYTES}, {v(t2)}")

    def wfrag_addr(dst):
        if RB == 448:
            a("s_mov_b32 s47, 0")
        elif PPR > 1:
            a(f"s_lshr_b32 s47, s46, {lg_ppr}")
            a(f"s_and_b32 s46, s46, {PPR-1}")
        else:
            a("s_mov_b32 s47, s46")
            a("s_mov_b32 s46, 0")
        a(f"s_mul_i32 s47, s47, {64*RB}")
        a(f"v_xor_b32 {v(t0)}, s46, {v(t3)}")
        a(f"v_lshl_add_u32 {v(t0)}, {v(t0)}, 5, {v(t2)}")
        a(f"v_add_u32 {v(dst)}, s47, {v(t0)}")

    kernel_header(a, name)
    end = a.newlabel("L_end")
    stamp(0)
    lab_loader = a.newlabel("L_loader")
    lab_store = a.newlabel("L_store")
    a(f"s_cmp_ge_u32 s2, {ntiles}")
    a(f"s_cbranch_scc1 {end}")
    a(f"s_load_dwordx2 s[24:25], s[0:1], {ARG['ws']}")
    a(f"s_load_dwordx2 s[58:59], s[0:1], {ARG[a_arg]}")
    a(f"s_load_dwordx2 s[26:27], s[0:1], {ARG[w_arg]}")
    a(f"s_load_dwordx2 s[34:35], s[0:1], {ARG[out_arg]}")
    if res_arg:
        a(f"s_load_dwordx2 s[36:37], s[0:1], {ARG[res_arg]}")
    if bias_arg:
        a(f"s_load_dwordx2 s[38:39], s[0:1], {ARG[bias_arg]}")
    XSPL = bool(splitk) and RA * RBN == 32
    assert ntiles == 256 and RA * RBN == (16 if splitk and not XSPL else 32) and NT_M % RA == 0 and NT_N % RBN == 0
    XB = NT_N // RBN
    a("s_and_b32 s3, s2, 7")
    a("s_lshr_b32 s46, s2, 3")
    if splitk:
        if XSPL:
            a("s_and_b32 s92, s3, 1")
            a("s_lshr_b32 s3, s3, 1")
            a("s_lshl_b32 s96, s3, 5")
        else:
            a("s_lshr_b32 s92, s46, 4")
            a("s_and_b32 s46, s46, 15")
            a("s_lshl_b32 s96, s3, 4")
        a("s_add_u32 s96, s96, s46")
        a("s_cmp_eq_u32 s92, 0")
        a(f"s_cselect_b32 s93, {NSLO}, {NSHI}")
        a("s_mov_b32 s94, 1")
    a(f"s_lshr_b32 s28, s3, {int(math.log2(XB))}")
    a(f"s_and_b32 s29, s3, {XB-1}")
    a(f"s_mul_i32 s28, s28, {RA}")
    a(f"s_mul_i32 s29, s29, {RBN}")
    a(f"s_lshr_b32 s3, s46, {int(math.log2(RBN))}")
    a("s_add_u32 s28, s28, s3")
    NROT = int(os.environ.get('NROT', '0'))
    if NROT: a(f"s_add_u32 s46, s46, {NROT}")
    a(f"s_and_b32 s3, s46, {RBN-1}")
    a("s_add_u32 s29, s29, s3")
    a("v_and_b32 v1, 63, v0")
    a(f"v_lshrrev_b32 {v(vT[0])}, 6, v0")
    a("s_nop 0")
    a(f"v_readfirstlane_b32 s49, {v(vT[0])}")
    a("s_nop 3")
    a("s_and_b32 s30, s49, 3")
    a("s_lshr_b32 s44, s30, 1")
    a("s_and_b32 s45, s30, 1")

    def build_srds(rest=False):
        if not rest:
            a("s_waitcnt lgkmcnt(0)")
            srd(a, 4, 58, a_off, M * lda)
            srd(a, 8, 26, w_off or 0, K * N * 2)
        srd(a, 12, 34, out_off, M * ldo)
        if res_arg:
            srd(a, 16, 36, res_off, M * N * 2 * (TX if rtile else 1))
        if bias_arg:
            srd(a, 20, 38, 0, N * 2)
        if pre or stats_out:
            srd(a, 84, 24, WS_ST, S * 128)
        if pre:
            srd(a, 88, 24, WS_CS, 16 * N * 4)
        if splitk:
            srd(a, 84, 24, WS_PART, 128 * 65536)
            srd(a, 88, 24, WS_FLAG, 512)

    FS = 'nofs' not in EXP and not splitk and not zero_flags and RB in (128, 448) and BN in (64, 224) and 'nodma' not in EXP
    if FS:
        lab_comp = a.newlabel("L_comp")
        a("s_cmp_lt_u32 s49, 4")
        a(f"s_cbranch_scc1 {lab_comp}")
        pos_ins = len(a.lines)
        a.label(lab_comp)
    else:
        a("s_cmp_ge_u32 s49, 4")
        a(f"s_cbranch_scc1 {lab_loader}")

    a(f"v_and_b32 {v(t0)}, 15, v1")
    a("s_lshl_b32 s3, s44, 6")
    a(f"v_add_u32 {v(t0)}, s3, {v(t0)}")
    a(f"v_lshlrev_b32 {v(t0)}, 7, {v(t0)}")
    a(f"v_lshrrev_b32 {v(t1)}, 4, v1")
    a(f"v_bfe_u32 {v(t2)}, v1, 1, 3")
    a(f"v_xor_b32 {v(t3)}, {v(t1)}, {v(t2)}")
    a(f"v_lshl_add_u32 {v(vXb[0])}, {v(t3)}, 4, {v(t0)}")
    a(f"v_xor_b32 {v(t3)}, 4, {v(t3)}")
    a(f"v_lshl_add_u32 {v(vXb[1])}, {v(t3)}, 4, {v(t0)}")
    wfrag_addr_common()
    a(f"s_mul_i32 s3, s45, {NTW}")
    for nt in range(NTW):
        a(f"s_add_u32 s46, s3, {nt}")
        wfrag_addr(vWb[nt])
    for i in range(4 * MT * NTW):
        a(f"v_mov_b32 v{ACC+i}, 0")
    a("s_mov_b32 s42, 0")
    build_srds()
    if bias_arg and not pre:
        a(f"v_lshrrev_b32 {v(t0)}, 4, v1")
        a(f"v_lshlrev_b32 {v(t0)}, 3, {v(t0)}")
        a(f"s_mul_i32 s3, s29, {BN*2}")
        a(f"s_mul_i32 s46, s45, {BN}")
        a("s_add_u32 s3, s3, s46")
        for nt in range(NTW):
            a(f"buffer_load_dwordx2 {v(PBI+2*nt,2)}, {v(t0)}, s[20:23], s3 offen offset:{32*nt}")

    def set_cur():
        for kk in range(2):
            a(f"v_add_u32 {v(vXc[kk])}, s42, {v(vXb[kk])}")
        for nt in range(NTW):
            a(f"v_add_u32 {v(vWc[nt])}, s42, {v(vWb[nt])}")
        a(f"s_add_u32 s42, s42, {STAGE}")
        a(f"s_cmp_ge_u32 s42, {STAGE*NSTAGE}")
        a("s_cselect_b32 s42, 0, s42")

    def read_list(kk, f):
        if 'noreads' in EXP: return []
        L = []
        for nt in range(NTW):
            if nt < MT:
                L.append(f"ds_read_b128 {v(FX[f]+4*nt,4)}, {v(vXc[kk])} offset:{nt*2048}")
            for rd in range(2):
                L.append(f"ds_read_b64_tr_b16 {v(FW[f]+4*nt+2*rd,2)}, {v(vWc[nt])} offset:{kk*32*RB+rd*4*RB}")
        for mt in range(NTW, MT):
            L.append(f"ds_read_b128 {v(FX[f]+4*mt,4)}, {v(vXc[kk])} offset:{mt*2048}")
        return L

    def mfma_list(f):
        if 'nomfma' in EXP: return []
        L = []
        for nt in range(NTW):
            for mt in range(MT):
                L.append(f"v_mfma_f32_16x16x32_bf16 {v(acc(nt,mt),4)}, {v(FW[f]+4*nt,4)}, {v(FX[f]+4*mt,4)}, {v(acc(nt,mt),4)}")
        return L

    def reads(kk, f):
        for x in read_list(kk, f): a(x)

    def mfmas(f):
        for x in mfma_list(f): a(x)

    def inter(kk, fr, fm):
        R = read_list(kk, fr); Mm = mfma_list(fm)
        rpm = RPM if NTW <= 4 else 1
        ri = 0
        for i in range(len(Mm)):
            a(Mm[i])
            for _ in range(rpm):
                if ri < len(R): a(R[ri]); ri += 1
        while ri < len(R): a(R[ri]); ri += 1

    if 'cpf' in EXP:
        lh = a.newlabel("L_pc")
        a("s_getpc_b64 s[46:47]")
        a.label(lh)
        a(f"v_lshlrev_b32 {v(t0)}, 4, v1")
        a("s_lshl_b32 s3, s30, 10")
        for j in range(int(os.environ.get('NCPF', '4'))):
            a(f"s_min_u32 s92, s3, {end}-{lh}-1024")
            a(f"v_add_u32 {v(t1)}, s92, {v(t0)}")
            a(f"global_load_dwordx4 {v(FX[0],4)}, {v(t1)}, s[46:47]")
            a("s_add_u32 s3, s3, 4096")
        a("s_waitcnt vmcnt(0)")
    if wpf:
        a("s_lshl_b32 s3, s2, 2")
        a("s_add_u32 s3, s3, s30")
        for q, (arg, nbytes, hi) in enumerate(wpf):
            a(f"s_load_dwordx2 s[{94+2*q}:{95+2*q}], s[0:1], {ARG[arg]}")
            a(f"s_mul_i32 s{92+q}, s3, {nbytes//1024}")
        a("s_waitcnt lgkmcnt(0)")
        for q, (arg, nbytes, hi) in enumerate(wpf):
            assert nbytes % (1 << 20) == 0
            srd(a, 84 + 4 * q, 94 + 2 * q, 0, nbytes)
        a(f"v_lshlrev_b32 {v(PFV)}, {PFS}, v1")
    if c3src:
        c_arg, c_rows, c_off = c3src
        assert c_rows * 2 == 7 * 1024 and wpf[0][0] == c_arg and PFS == 4
        a("s_mul_i32 s3, s3, 7")
        a("v_lshrrev_b32 v2, 3, v1")
        a("v_and_b32 v4, 7, v1")
        a("v_lshlrev_b32 v4, 4, v4")
        a("v_lshl_add_u32 v3, v2, 10, v4")
        a("v_add_u32 v2, s3, v2")
        a("v_and_b32 v5, 1, v2")
        a(f"v_mul_u32_u24 v5, {c_rows*256}, v5")
        a("v_lshrrev_b32 v2, 1, v2")
        a("v_lshl_add_u32 v2, v2, 8, v4")
        a("v_add_u32 v2, v2, v5")
    if spf:
        assert RA * BM == 512 and RBN * BN == 512
        a("s_lshr_b32 s3, s2, 3")
        a("s_lshl_b32 s3, s3, 2")
        a("s_add_u32 s3, s3, s30")
        a(f"s_lshr_b32 s46, s28, {int(math.log2(RA))}")
        if ATILE:
            a(f"s_mul_i32 s46, s46, {RA*BM*lda}")
            a("s_lshr_b32 s47, s3, 4")
            a(f"s_mul_i32 s47, s47, {BM*lda}")
            a("s_add_u32 s46, s46, s47")
            a("s_and_b32 s47, s3, 15")
            a("s_lshl_b32 s47, s47, 13")
            a("s_add_u32 s96, s46, s47")
            astep, arow = 8 * BM * 128, 1024
        else:
            a(f"s_mul_i32 s46, s46, {RA*BM}")
            a("s_lshl_b32 s47, s3, 3")
            a("s_add_u32 s46, s46, s47")
            a(f"s_mul_i32 s96, s46, {lda}")
            astep, arow = 1024, lda
        a("s_sub_u32 s46, s3, 64")
        a(f"s_mul_i32 s46, s46, {8*N*2}")
        a(f"s_lshr_b32 s47, s29, {int(math.log2(RBN))}")
        a("s_lshl_b32 s47, s47, 10")
        a("s_add_u32 s46, s46, s47")
        a(f"s_mov_b32 s97, {512*N*2}")
        a(f"s_mov_b32 s47, {N*2}")
        a("s_cmp_lt_u32 s3, 64")
        a("s_cselect_b32 s96, s96, s46")
        a(f"s_cselect_b32 s97, {astep}, s97")
        a(f"s_cselect_b32 s47, {arow}, s47")
        for i in range(4):
            a(f"s_cselect_b32 s{76+i}, s{4+i}, s{8+i}")
        a(f"v_lshrrev_b32 {v(t0)}, 3, v1")
        a(f"v_and_b32 {v(t1)}, 7, v1")
        a(f"v_mul_u32_u24 {v(t0)}, s47, {v(t0)}")
        a(f"v_lshl_add_u32 {v(PFD+1)}, {v(t1)}, 7, {v(t0)}")

        def spf1():
            a(f"buffer_load_dword {v(PFD)}, {v(PFD+1)}, s[76:79], s96 offen")
            a("s_add_u32 s96, s96, s97")
        for _ in range(spf[0]): spf1()
    if l2pf:
        NPA = RA * BM // 8
        NPW = BK * (RBN * BN * 2) // 1024
        WPR = RBN * BN * 2 // 1024
        assert NPA + NPW == 128 and WPR == 1
        lw = a.newlabel("L_pfw"); ld = a.newlabel("L_pfd")
        a("s_lshr_b32 s3, s2, 3")
        a("s_lshl_b32 s3, s3, 2")
        a("s_add_u32 s3, s3, s30")
        a(f"s_cmp_ge_u32 s3, {NPA}")
        a(f"s_cbranch_scc1 {lw}")
        a(f"s_lshr_b32 s46, s28, {int(math.log2(RA))}")
        a(f"s_mul_i32 s46, s46, {RA*BM}")
        a("s_lshl_b32 s3, s3, 3")
        a("s_add_u32 s3, s3, s46")
        a(f"v_lshrrev_b32 {v(PFV)}, 3, v1")
        a(f"v_add_u32 {v(PFV)}, s3, {v(PFV)}")
        a(f"v_mul_u32_u24 {v(PFV)}, {lda}, {v(PFV)}")
        a(f"v_and_b32 {v(t0)}, 7, v1")
        a(f"v_lshl_add_u32 {v(PFV)}, {v(t0)}, 4, {v(PFV)}")
        for i in range(4): a(f"s_mov_b32 s{84+i}, s{4+i}")
        a(f"s_mov_b32 s92, {l2pf*BK*2}")
        a(f"s_mov_b32 s93, {BK*2}")
        a(f"s_branch {ld}")
        a.label(lw)
        a(f"s_sub_u32 s3, s3, {NPA}")
        a(f"s_mul_i32 s3, s3, {N*2}")
        a(f"s_lshr_b32 s46, s29, {int(math.log2(RBN))}")
        a(f"s_mul_i32 s46, s46, {RBN*BN*2}")
        a("s_add_u32 s3, s3, s46")
        a(f"v_lshlrev_b32 {v(PFV)}, 4, v1")
        a(f"v_add_u32 {v(PFV)}, s3, {v(PFV)}")
        for i in range(4): a(f"s_mov_b32 s{84+i}, s{8+i}")
        a(f"s_mov_b32 s92, {l2pf*BK*N*2}")
        a(f"s_mov_b32 s93, {BK*N*2}")
        a.label(ld)
        a(f"s_mul_i32 s3, s93, {NSTAGE-1}")
        for j in range(NSTAGE - 1, l2pf):
            a(f"buffer_load_dwordx4 {v(PFD,4)}, {v(PFV)}, s[84:87], s3 offen")
            a("s_add_u32 s3, s3, s93")
    if splitk:
        a("s_xor_b32 s95, s92, 1")
        a(f"v_mov_b32 {v(PFL)}, 0")
        a("s_lshl_b32 s3, s96, 2")
        a(f"v_mov_b32 {v(PFA)}, s3")
        a("s_add_u32 s3, s3, s30")
        a("s_lshl_b32 s3, s3, 14")
        a(f"v_lshlrev_b32 {v(PPA)}, 4, v1")
        a(f"v_add_u32 {v(PPA)}, s3, {v(PPA)}")
    DRY = dry and not splitk
    if DRY:
        a.dry_begin(30, 95)
    stamp(1)
    lab_cpass = a.newlabel("L_cpass")
    a.label(lab_cpass)
    a("s_barrier")
    stamp(2)
    set_cur()
    reads(0, 0)
    a("s_waitcnt lgkmcnt(0)")
    inter(1, 1, 0)
    a("s_waitcnt lgkmcnt(0)")
    if splitk: a("s_sub_u32 s48, s93, 1")
    else: a(f"s_mov_b32 s48, {NS-1}")
    if c3src:
        a("s_mov_b32 exec_hi, 0x00ffffff")
        a("buffer_load_dwordx4 v[4:7], v3, s[84:87], s92 offen offset:384")
        a("s_mov_b32 exec_hi, -1")
    loop = a.newlabel("L_cloop")
    a.label(loop)
    a("s_barrier")
    set_cur()
    inter(0, 0, 1)
    a("s_waitcnt lgkmcnt(0)")
    inter(1, 1, 0)
    if l2pf:
        a(f"buffer_load_dwordx4 {v(PFD,4)}, {v(PFV)}, s[84:87], s92 offen")
        a("s_add_u32 s92, s92, s93")
    if spf and NS > 8 * spf[0]:
        lsp = a.newlabel("L_spf"); lspb = a.newlabel("L_spfb")
        a("s_and_b32 s3, s48, 7")
        a(f"s_cmp_eq_u32 s3, {spf[1]}")
        a(f"s_cbranch_scc1 {lsp}")
        a.label(lspb)
    if wpf:
        for q, (arg, nbytes, hi) in enumerate(wpf):
            n = (nbytes >> 20) if PFS == 4 else -(-(nbytes >> 10) // (64 << PFS))
            lsk = a.newlabel("L_wpfs")
            if hi < 0:
                a("s_bitcmp1_b32 s48, 0")
            else:
                a(f"s_sub_u32 s3, s48, {hi-n+1}")
                a(f"s_cmp_ge_u32 s3, {n}")
            a(f"s_cbranch_scc1 {lsk}")
            if PFS == 4:
                a(f"buffer_load_dwordx4 {v(PFD,4)}, {v(PFV)}, s[{84+4*q}:{87+4*q}], s{92+q} offen")
            else:
                a(f"buffer_load_dword {v(PFD)}, {v(PFV)}, s[{84+4*q}:{87+4*q}], s{92+q} offen")
            a(f"s_add_u32 s{92+q}, s{92+q}, {64 << PFS}")
            a.label(lsk)
    if splitk:
        cskip = a.newlabel("L_cskip"); cpoll = a.newlabel("L_cpoll")
        a("s_cmp_lg_u32 s95, 0")
        a(f"s_cbranch_scc1 {cskip}")
        a(f"v_readfirstlane_b32 s3, {v(PFL)}")
        a("s_nop 3")
        a("s_cmp_eq_u32 s3, 0")
        a(f"s_cbranch_scc1 {cpoll}")
        a("s_mov_b32 s95, 1")
        for t_ in range(MT * NTW):
            a(f"s_mov_b32 s3, {1024*t_}")
            a(f"buffer_load_dwordx4 {v(PRT+4*t_,4)}, {v(PPA)}, s[84:87], s3 offen")
        a(f"s_branch {cskip}")
        a.label(cpoll)
        if 'forcefb' not in EXP: a(f"buffer_load_dword {v(PFL)}, {v(PFA)}, s[88:91], 0 offen sc0 sc1")
        a.label(cskip)
    a("s_waitcnt lgkmcnt(0)")
    a("s_sub_u32 s48, s48, 1")
    a("s_cmp_lg_u32 s48, 0")
    a(f"s_cbranch_scc1 {loop}")
    stamp(3)
    if c3src:
        srd(a, 76, 24, c_off, 2 * c_rows * 256)
        a("s_waitcnt vmcnt(7)")
        a("s_mov_b32 exec_hi, 0x00ffffff")
        a("buffer_store_dwordx4 v[4:7], v2, s[76:79], 0 offen")
        a("s_mov_b32 exec_hi, -1")
    if epi2:
        FROW = BN * 4 + 16
        assert BM * FROW <= STAGE * NSTAGE and (FROW // 4) % 32 == 4
        a("s_barrier")
        ml = mfma_list(1)
        a(f"v_and_b32 {v(t2)}, 15, v1")
        a("s_lshl_b32 s3, s44, 6")
        a(f"v_add_u32 {v(t2)}, s3, {v(t2)}")
        a(f"v_mul_u32_u24 {v(t2)}, {FROW}, {v(t2)}")
        a(f"v_bfe_u32 {v(t3)}, v1, 4, 1")
        a(f"v_mul_u32_u24 {v(t3)}, {BN*2}, {v(t3)}")
        a(f"v_add_u32 {v(t2)}, {v(t2)}, {v(t3)}")
        a(f"v_lshrrev_b32 {v(t3)}, 5, v1")
        a(f"v_lshl_add_u32 {v(t2)}, {v(t3)}, 4, {v(t2)}")
        a(f"s_mul_i32 s3, s45, {NTW*32}")
        a(f"v_add_u32 {v(t2)}, s3, {v(t2)}")
        wl = [f"ds_write_b128 {v(t2)}, {v(acc(nt,mt),4)} offset:{mt*16*FROW + nt*32}" for nt in range(NTW) for mt in range(MT)]
        for i, x in enumerate(ml):
            a(x)
            if i >= 6: a(wl[i - 6])
        a("s_nop 7")
        a("s_nop 7")
        for x in wl[len(ml) - 6:]: a(x)
        a("s_waitcnt lgkmcnt(0)")
        stamp(4)
        a("s_barrier")
        a(f"s_branch {lab_store}")
    else:
        mfmas(1)
    if ln and not pre:
        a("s_barrier")
    if splitk:
        lab_hi = a.newlabel("L_hi"); lab_epi = a.newlabel("L_epi"); lab_fb = a.newlabel("L_fb")
        a("s_cmp_lg_u32 s92, 0")
        a(f"s_cbranch_scc1 {lab_hi}")
        a("s_nop 7")
        for t_ in range(MT * NTW):
            a(f"s_mov_b32 s3, {1024*t_}")
            a(f"buffer_store_dwordx4 {v(ACC+4*t_,4)}, {v(PPA)}, s[84:87], s3 offen sc0 sc1")
        a("s_waitcnt vmcnt(0)")
        a("s_barrier")
        a("s_cmp_lg_u32 s30, 0")
        a(f"s_cbranch_scc1 {end}")
        a(f"v_mov_b32 {v(t1)}, 1")
        a("s_mov_b64 exec, 1")
        a(f"buffer_store_dword {v(t1)}, {v(PFA)}, s[88:91], 0 offen sc0 sc1")
        a(f"s_branch {end}")
        a.label(lab_hi)
        a("s_lshl_b32 s3, s30, 2")
        a(f"s_add_u32 s3, s3, {DONE}")
        a(f"v_mov_b32 {v(t0)}, s3")
        a(f"v_mov_b32 {v(t1)}, s95")
        a(f"ds_write_b32 {v(t0)}, {v(t1)}")
        a("s_waitcnt lgkmcnt(0)")
        a("s_barrier")
        a("s_cmp_eq_u32 s94, 2")
        a(f"s_cbranch_scc1 {lab_epi}")
        a(f"v_mov_b32 {v(t1)}, {DONE}")
        a(f"ds_read_b128 {v(FX[0],4)}, {v(t1)}")
        a("s_waitcnt lgkmcnt(0)")
        a(f"v_and_b32 {v(FX[0])}, {v(FX[0])}, {v(FX[0]+1)}")
        a(f"v_and_b32 {v(FX[0]+2)}, {v(FX[0]+2)}, {v(FX[0]+3)}")
        a(f"v_and_b32 {v(FX[0])}, {v(FX[0])}, {v(FX[0]+2)}")
        a("s_nop 0")
        a(f"v_readfirstlane_b32 s3, {v(FX[0])}")
        a("s_nop 3")
        a("s_cmp_eq_u32 s3, 1")
        a(f"s_cbranch_scc0 {lab_fb}")
        a("s_waitcnt vmcnt(0)")
        for t_ in range(MT * NTW):
            for j in range(2):
                a(f"v_pk_add_f32 {v(ACC+4*t_+2*j,2)}, {v(ACC+4*t_+2*j,2)}, {v(PRT+4*t_+2*j,2)}")
        a(f"s_branch {lab_epi}")
        a.label(lab_fb)
        a("s_mov_b32 s94, 2")
        a("s_mov_b32 s95, 1")
        a(f"s_mov_b32 s93, {NSLO}")
        a("s_mov_b32 s42, 0")
        a("s_barrier")
        a(f"s_branch {lab_cpass}")
        a.label(lab_epi)
    cut0 = len(a.lines)
    if DRY: a.dry_entry()
    RT = FX[0]; CS = RT + 8; BR = CS + 4 * NTW; BF = BR + 2 * NTW; GE = BF + 4 * NTW
    assert GE + 10 <= ACC
    a(f"v_and_b32 {v(t2)}, 15, v1")
    a("s_lshl_b32 s3, s44, 6")
    a(f"v_add_u32 {v(t2)}, s3, {v(t2)}")
    a(f"v_lshrrev_b32 {v(t3)}, 4, v1")
    a(f"s_mul_i32 s3, s45, {NTW*4}")
    a(f"v_add_u32 {v(t3)}, s3, {v(t3)}")
    if ln:
        a(f"v_lshlrev_b32 {v(t0)}, 3, {v(t2)}")
        a(f"v_add_u32 {v(t0)}, {RTAB}, {v(t0)}")
        for mt in range(MT):
            a(f"ds_read_b64 {v(RT+2*mt,2)}, {v(t0)} offset:{128*mt}")
        a(f"v_lshlrev_b32 {v(t0)}, 4, {v(t3)}")
        a(f"v_add_u32 {v(t0)}, {CTAB}, {v(t0)}")
        for nt in range(NTW):
            a(f"ds_read_b128 {v(CS+4*nt,4)}, {v(t0)} offset:{64*nt}")
    if bias_arg and pre:
        a(f"v_lshlrev_b32 {v(t0)}, 3, {v(t3)}")
        a(f"v_add_u32 {v(t0)}, {EPI}, {v(t0)}")
        for nt in range(NTW):
            a(f"ds_read_b64 {v(BR+2*nt,2)}, {v(t0)} offset:{32*nt}")
    vc = vT[0]
    a(f"v_mul_u32_u24 {v(t2)}, {CROW}, {v(t2)}")
    a(f"v_lshl_add_u32 {v(vc)}, {v(t3)}, 3, {v(t2)}")
    if CBASE: a(f"v_add_u32 {v(vc)}, {CBASE}, {v(vc)}")
    if epi == 'gelu':
        c2 = 2 * math.log2(math.e)
        k1 = struct.unpack("<I", struct.pack("<f", 0.7978845608 * c2))[0]
        k3 = struct.unpack("<I", struct.pack("<f", 0.7978845608 * 0.044715 * c2))[0]
        a(f"s_mov_b32 s52, {k3}"); a(f"s_mov_b32 s53, {k3}")
        a(f"v_mov_b32 {v(GE+8)}, {k1}"); a(f"v_mov_b32 {v(GE+9)}, {k1}")
        a("s_mov_b32 s56, 1.0"); a("s_mov_b32 s57, 1.0")
    a("s_waitcnt vmcnt(0) lgkmcnt(0)" if (bias_arg and not pre) else "s_waitcnt lgkmcnt(0)")
    a("s_nop 7")
    if bias_arg:
        bsrc = BR if pre else PBI
        for nt in range(NTW):
            for j in range(2):
                a(f"v_lshlrev_b32 {v(BF+4*nt+2*j)}, 16, {v(bsrc+2*nt+j)}")
                a(f"v_and_b32 {v(BF+4*nt+2*j+1)}, 0xffff0000, {v(bsrc+2*nt+j)}")
    for nt in range(NTW):
        if DRY and nt in dry: a.dry_mark()
        for mp in range(0, MT, 2):
            c0 = acc(nt, mp)
            for q in range(2):
                mt = mp + q
                for j in range(2):
                    cc = v(c0 + 4 * q + 2 * j, 2)
                    tt = v(GE + 4 * q + 2 * j, 2)
                    if ln:
                        if bias_arg:
                            a(f"v_pk_fma_f32 {tt}, {v(CS+4*nt+2*j,2)}, {v(RT+2*mt,2)}, {v(BF+4*nt+2*j,2)} op_sel:[0,1,0] op_sel_hi:[1,1,1]")
                        else:
                            a(f"v_pk_mul_f32 {tt}, {v(CS+4*nt+2*j,2)}, {v(RT+2*mt,2)} op_sel:[0,1] op_sel_hi:[1,1]")
                    elif bias_arg:
                        a(f"v_pk_add_f32 {cc}, {cc}, {v(BF+4*nt+2*j,2)}")
            if ln:
                for q in range(2):
                    mt = mp + q
                    for j in range(2):
                        cc = v(c0 + 4 * q + 2 * j, 2)
                        tt = v(GE + 4 * q + 2 * j, 2)
                        a(f"v_pk_fma_f32 {cc}, {cc}, {v(RT+2*mt,2)}, {tt} op_sel:[0,0,0] op_sel_hi:[1,0,1]")
            if epi == 'gelu':
                for j in range(4):
                    a(f"v_pk_mul_f32 {v(GE+2*j,2)}, {v(c0+2*j,2)}, {v(c0+2*j,2)}")
                for j in range(4):
                    a(f"v_pk_fma_f32 {v(GE+2*j,2)}, {v(GE+2*j,2)}, s[52:53], {v(GE+8,2)}")
                for j in range(4):
                    a(f"v_pk_mul_f32 {v(GE+2*j,2)}, {v(GE+2*j,2)}, {v(c0+2*j,2)}")
                for r in range(8):
                    a(f"v_exp_f32 {v(GE+r)}, {v(GE+r)}")
                a("s_nop 0")
                for j in range(4):
                    a(f"v_pk_add_f32 {v(GE+2*j,2)}, {v(GE+2*j,2)}, s[56:57]")
                for r in range(8):
                    a(f"v_rcp_f32 {v(GE+r)}, {v(GE+r)}")
                a("s_nop 0")
                for j in range(4):
                    cc = v(c0 + 2 * j, 2)
                    a(f"v_pk_fma_f32 {cc}, {cc}, {v(GE+2*j,2)}, {cc} neg_lo:[1,0,0] neg_hi:[1,0,0]")
            for j in range(4):
                a(f"v_cvt_pk_bf16_f32 {v(c0+j)}, {v(c0+2*j)}, {v(c0+2*j+1)}")
            for q in range(2):
                a(f"ds_write_b64 {v(vc)}, {v(c0+2*q,2)} offset:{(mp+q)*16*CROW + nt*32}")
    if DRY: a(f"s_cbranch_execz {lab_store}")
    a("s_waitcnt lgkmcnt(0)")
    stamp(4)
    a("s_barrier")
    a(f"s_branch {lab_store}")
    if epi2: del a.lines[cut0:]

    if spf and NS > 8 * spf[0]:
        a.label(lsp)
        spf1()
        a(f"s_branch {lspb}")
    pos_l0 = len(a.lines)
    a.label(lab_loader)
    if 'noprio' not in EXP: a("s_setprio 2")
    if w2copy: a(f"s_load_dwordx2 s[94:95], s[0:1], {ARG['w2']}")
    NPL = (BN // 16 + 3) // 4
    LSA = 40
    LCW = 44
    LSC = 48; LCC = 52
    LONE = 56
    LST = 60
    LMS = 132
    LCS = 68
    LSD = 84
    LWD = 100
    assert vT[7] < 40
    NW2 = BN * 2 if BTILE else N * 2
    if FS:
        rs = TP if ATILE else lda
        a(f"v_lshrrev_b32 {v(t0)}, 3, v1")
        a(f"v_lshrrev_b32 {v(t1)}, 4, v1")
        a(f"v_and_b32 {v(t2)}, 7, v1")
        a(f"v_xor_b32 {v(t1)}, {v(t1)}, {v(t2)}")
        a(f"v_mul_u32_u24 {v(t3)}, {rs}, {v(t0)}")
        a(f"v_lshl_add_u32 {v(t3)}, {v(t1)}, 4, {v(t3)}")
        a(f"s_mul_i32 s3, s28, {BM*lda}")
        a(f"s_mul_i32 s46, s30, {PA*8*rs}")
        a("s_add_u32 s3, s3, s46")
        a(f"v_add_u32 {v(vA[0])}, s3, {v(t3)}")
        a(f"v_xor_b32 {v(t3)}, 64, {v(vA[0])}")
        a(f"v_add_u32 {v(vA[1])}, {8*rs}, {v(t3)}")
        for i in range(2, PA):
            a(f"v_add_u32 {v(vA[i])}, {16*rs}, {v(vA[i-2])}")
        a(f"s_mul_i32 s31, s30, {PA*1024}")
        a("s_waitcnt lgkmcnt(0)")
        srd(a, 4, 58, a_off, M * lda)
        stamp(1)
        for i in range(PA):
            a(f"s_add_u32 m0, s31, {i*1024}")
            if i == 0: a(f"s_mul_i32 s32, s30, {PB*1024}")
            elif i == 1: a(f"s_add_u32 s32, s32, {ABYTES}")
            elif i == 2: a(f"s_mul_i32 s3, s29, {BN*2*(K if BTILE else 1)}")
            elif i == 3: a(f"s_mul_i32 s46, s30, {16*NW2}")
            else: a("s_nop 0")
            a(f"buffer_load_dwordx4 {v(vA[i])}, s[4:7], 0 offen lds")
        a("s_add_u32 s3, s3, s46")
        srd(a, 8, 26, w_off or 0, K * N * 2)
        if c3 is not None:
            srd(a, 50, 24, c3, 2 * K * 256)
            a("s_lshr_b32 s47, s29, 3")
            a(f"s_mul_i32 s47, s47, {K*256}")
            a(f"s_mul_i32 s46, s30, {16*256}")
            a("s_add_u32 s47, s47, s46")
            a("s_and_b32 s46, s29, 7")
            a("s_cmp_eq_u32 s46, 3")
            a("s_cselect_b32 s3, s47, s3")
            for i in range(3): a(f"s_cselect_b32 s{8+i}, s{50+i}, s{8+i}")
            assert NW2 == 2048
            a("s_cselect_b32 s55, 8, 11")
            a("s_lshl_b32 s54, 1, s55")
            a("s_lshl_b32 s46, 8, s55")
            a("s_lshl_b32 s55, 64, s55")
        if RB == 448:
            a(f"s_mov_b32 s47, {((1 << 32) + 27) // 28}")
            for i in range(PB):
                a(f"v_add_u32 {v(t1)}, {i*64}, v1")
                a(f"v_mul_hi_u32 {v(t0)}, {v(t1)}, s47")
                a(f"v_mul_u32_u24 {v(t2)}, 28, {v(t0)}")
                a(f"v_sub_u32 {v(t1)}, {v(t1)}, {v(t2)}")
                a(f"v_bfe_u32 {v(t2)}, {v(t0)}, 3, 1")
                a(f"v_lshlrev_b32 {v(t2)}, 1, {v(t2)}")
                a(f"v_xor_b32 {v(t1)}, {v(t1)}, {v(t2)}")
                a(f"v_mul_u32_u24 {v(t0)}, {NW2}, {v(t0)}")
                a(f"v_lshl_add_u32 {v(t0)}, {v(t1)}, 4, {v(t0)}")
                a(f"s_add_u32 m0, s32, {i*1024}")
                a(f"v_add_u32 {v(vB[i])}, s3, {v(t0)}")
                a(f"buffer_load_dwordx4 {v(vB[i])}, s[8:11], 0 offen lds")
        else:
            assert PB == 2
            a(f"v_bfe_u32 {v(t1)}, v1, 4, 1")
            a(f"v_lshlrev_b32 {v(t1)}, 1, {v(t1)}")
            a(f"v_xor_b32 {v(t1)}, {v(t1)}, {v(t2)}")
            a(f"v_mul_u32_u24 {v(t0)}, {'s54' if c3 is not None else NW2}, {v(t0)}")
            a(f"v_lshl_add_u32 {v(t0)}, {v(t1)}, 4, {v(t0)}")
            a("s_mov_b32 m0, s32")
            a(f"v_add_u32 {v(vB[0])}, s3, {v(t0)}")
            a(f"buffer_load_dwordx4 {v(vB[0])}, s[8:11], 0 offen lds")
            a(f"v_xor_b32 {v(t0)}, 64, {v(vB[0])}")
            a("s_add_u32 m0, s32, 1024")
            a(f"v_add_u32 {v(vB[1])}, {'s46' if c3 is not None else 8*NW2}, {v(t0)}")
            a(f"buffer_load_dwordx4 {v(vB[1])}, s[8:11], 0 offen lds")
        a(f"s_mov_b32 s40, {ASTEP}")
        a(f"s_mov_b32 s41, {'s55' if c3 is not None else BK*NW2}")
        a(f"s_mov_b32 s43, {STAGE}")
        a("s_mov_b32 s42, 0")
    cut1 = len(a.lines)
    a(f"s_mul_i32 s3, s30, {PA*8}")
    a(f"v_lshrrev_b32 {v(t0)}, 3, v1")
    a(f"v_add_u32 {v(t0)}, s3, {v(t0)}")
    a(f"s_mul_i32 s3, s28, {BM}")
    for i in range(PA):
        a(f"v_add_u32 {v(t1)}, {8*i}, {v(t0)}")
        a(f"v_lshrrev_b32 {v(t2)}, 1, {v(t1)}")
        a(f"v_and_b32 {v(t2)}, 7, {v(t2)}")
        a(f"v_and_b32 {v(t3)}, 7, v1")
        a(f"v_xor_b32 {v(t2)}, {v(t2)}, {v(t3)}")
        if ATILE:
            a(f"v_lshlrev_b32 {v(t1)}, {TSH}, {v(t1)}")
            a(f"s_mul_i32 s46, s3, {lda}")
            a(f"v_add_u32 {v(t1)}, s46, {v(t1)}")
        else:
            a(f"v_add_u32 {v(t1)}, s3, {v(t1)}")
            a(f"v_mul_u32_u24 {v(t1)}, {lda}, {v(t1)}")
        a(f"v_lshl_add_u32 {v(vA[i])}, {v(t2)}, 4, {v(t1)}")
    a(f"s_mul_i32 s3, s29, {BN*2*(K if BTILE else 1)}")
    NW2 = BN * 2 if BTILE else N * 2
    if RB == 448:
        a(f"s_mov_b32 s47, {((1 << 32) + 27) // 28}")
        for i in range(PB):
            a(f"s_mul_i32 s46, s30, {PB*64}")
            a(f"s_add_u32 s46, s46, {i*64}")
            a(f"v_add_u32 {v(t1)}, s46, v1")
            a(f"v_mul_hi_u32 {v(t0)}, {v(t1)}, s47")
            a(f"v_mul_u32_u24 {v(t2)}, 28, {v(t0)}")
            a(f"v_sub_u32 {v(t1)}, {v(t1)}, {v(t2)}")
            a(f"v_bfe_u32 {v(t2)}, {v(t0)}, 3, 1")
            a(f"v_lshlrev_b32 {v(t2)}, 1, {v(t2)}")
            a(f"v_xor_b32 {v(t1)}, {v(t1)}, {v(t2)}")
            a(f"v_mul_u32_u24 {v(t0)}, {NW2}, {v(t0)}")
            a(f"v_lshl_add_u32 {v(t0)}, {v(t1)}, 4, {v(t0)}")
            a(f"v_add_u32 {v(vB[i])}, s3, {v(t0)}")
    else:
      CPR = RB // 16
      lg_cpr = int(math.log2(CPR))
      RPP = 1024 // RB
      PPB = RB // 16
      lg_ppb = int(math.log2(PPB))
      for i in range(PB):
        a(f"s_mul_i32 s46, s30, {PB}")
        a(f"s_add_u32 s46, s46, {i}")
        a(f"s_lshr_b32 s47, s46, {lg_ppb}")
        a(f"s_and_b32 s46, s46, {PPB-1}")
        a(f"s_mul_i32 s46, s46, {RPP}")
        a(f"s_mul_i32 s47, s47, {RB}")
        a("s_add_u32 s47, s47, s3")
        a(f"v_lshrrev_b32 {v(t0)}, {lg_cpr}, v1")
        a(f"v_add_u32 {v(t0)}, s46, {v(t0)}")
        a(f"v_and_b32 {v(t1)}, {CPR-1}, v1")
        if RB == 256:
            a(f"v_and_b32 {v(t2)}, 3, {v(t0)}")
            a(f"v_bfe_u32 {v(t3)}, {v(t0)}, 3, 1")
            a(f"v_lshl_add_u32 {v(t2)}, {v(t3)}, 2, {v(t2)}")
        elif RB == 128:
            a(f"v_bfe_u32 {v(t2)}, {v(t0)}, 1, 1")
            a(f"v_bfe_u32 {v(t3)}, {v(t0)}, 3, 1")
            a(f"v_lshl_add_u32 {v(t2)}, {v(t3)}, 1, {v(t2)}")
        elif RB == 64:
            a(f"v_bfe_u32 {v(t2)}, {v(t0)}, 3, 1")
        else:
            a(f"v_mov_b32 {v(t2)}, 0")
        a(f"v_lshlrev_b32 {v(t2)}, 1, {v(t2)}")
        a(f"v_xor_b32 {v(t1)}, {v(t1)}, {v(t2)}")
        a(f"v_mul_u32_u24 {v(t0)}, {NW2}, {v(t0)}")
        a(f"v_lshl_add_u32 {v(t0)}, {v(t1)}, 4, {v(t0)}")
        a(f"v_add_u32 {v(vB[i])}, s47, {v(t0)}")
    a(f"s_mul_i32 s31, s30, {PA*1024}")
    a(f"s_mul_i32 s32, s30, {PB*1024}")
    a(f"s_add_u32 s32, s32, {ABYTES}")
    a("s_mov_b32 s40, 0")
    a("s_mov_b32 s41, 0")
    a("s_mov_b32 s43, 0")
    a("s_mov_b32 s42, 0")
    if FS: del a.lines[cut1:]
    assert FS or c3 is None
    if not (FS and not pre): build_srds(FS)
    if zero_flags:
        lz = a.newlabel("L_nz")
        a("s_cmp_lg_u32 s2, 0")
        a(f"s_cbranch_scc1 {lz}")
        srd(a, 92, 24, WS_FLAG, 512)
        a(f"v_lshlrev_b32 {v(t0)}, 3, v1")
        a("v_mov_b32 v44, 0")
        a("v_mov_b32 v45, 0")
        a(f"buffer_store_dwordx2 v[44:45], {v(t0)}, s[92:95], 0 offen")
        a.label(lz)
    if splitk:
        a(f"s_mul_i32 s40, s92, {NSLO*ASTEP}")
        a(f"s_mul_i32 s41, s92, {NSLO*BK*NW2}")
        lab_lpass = a.newlabel("L_lpass")
        a.label(lab_lpass)

    def dma():
        if 'nodma' in EXP: return
        a("s_add_u32 s33, s43, s31")
        for i in range(PA):
            a(f"s_add_u32 m0, s33, {i*1024}")
            a("s_nop 0")
            a(f"buffer_load_dwordx4 {v(vA[i])}, s[4:7], s40 offen lds")
        a("s_add_u32 s33, s43, s32")
        for i in range(PB):
            a(f"s_add_u32 m0, s33, {i*1024}")
            a("s_nop 0")
            a(f"buffer_load_dwordx4 {v(vB[i])}, s[8:11], s41 offen lds")
        a(f"s_add_u32 s40, s40, {ASTEP}")
        a(f"s_add_u32 s41, s41, {'s55' if c3 is not None else BK*NW2}")
        if 'kwrap' in EXP:
            KW = int(os.environ.get('KW', '8'))
            a(f"s_cmp_ge_u32 s40, {KW*BK*2}")
            a("s_cselect_b32 s40, 0, s40")
            a("s_cselect_b32 s41, 0, s41")
        a(f"s_add_u32 s43, s43, {STAGE}")
        a(f"s_cmp_ge_u32 s43, {STAGE*NSTAGE}")
        a("s_cselect_b32 s43, 0, s43")

    if not FS: stamp(1)
    if pre:
        a(f"v_lshrrev_b32 {v(LSA)}, 1, v1")
        a("s_lshl_b32 s3, s30, 5")
        a(f"v_add_u32 {v(LSA)}, s3, {v(LSA)}")
        a(f"s_mul_i32 s3, s28, {BM}")
        a(f"v_add_u32 {v(t0)}, s3, {v(LSA)}")
        a(f"v_lshlrev_b32 {v(t0)}, 7, {v(t0)}")
        a(f"v_and_b32 {v(t1)}, 1, v1")
        a(f"v_lshl_add_u32 {v(t0)}, {v(t1)}, 6, {v(t0)}")
        for i in range(4):
            a(f"buffer_load_dwordx4 {v(LSD+4*i,4)}, {v(t0)}, s[84:87], 0 offen offset:{16*i}")
    if st_bias:
        a(f"v_lshlrev_b32 {v(t0)}, 4, v1")
        a(f"s_mul_i32 s3, s29, {BN*2}")
        a(f"s_mov_b32 m0, {EPI}")
        a("s_nop 0")
        a(f"buffer_load_dwordx4 {v(t0)}, s[20:23], s3 offen lds")
        a(f"s_mul_i32 s3, s29, {BN*4}")
        a(f"s_mul_i32 s46, s30, {4*N*4}")
        a("s_add_u32 s3, s3, s46")
        for g_ in range(4):
            a(f"buffer_load_dwordx4 {v(LWD+4*g_,4)}, {v(t0)}, s[88:91], s3 offen")
            a(f"s_add_u32 s3, s3, {N*4}")
    for _ in range(NSTAGE - 1 - (1 if FS else 0)):
        dma()
    if FS and not pre: build_srds(True)
    stamp(2)
    if ln and not pre:
        wfrag_addr_common()
        for i in range(NPL):
            a(f"s_mul_i32 s46, s30, {NPL}")
            a(f"s_add_u32 s46, s46, {i}")
            a(f"s_min_u32 s46, s46, {BN//16-1}")
            wfrag_addr(LCW + i)
        for i in range(4):
            a(f"v_mov_b32 {v(LONE+i)}, 0x3f803f80")
        for i in range(16):
            a(f"v_mov_b32 {v(LMS+i)}, 0")
        a(f"v_and_b32 {v(t0)}, 15, v1")
        a("s_lshl_b32 s3, s30, 5")
        a(f"v_add_u32 {v(t0)}, s3, {v(t0)}")
        a(f"v_lshlrev_b32 {v(t0)}, 7, {v(t0)}")
        a(f"v_lshrrev_b32 {v(t1)}, 4, v1")
        a(f"v_bfe_u32 {v(t2)}, v1, 1, 3")
        a(f"v_xor_b32 {v(t3)}, {v(t1)}, {v(t2)}")
        a(f"v_lshl_add_u32 {v(LSA)}, {v(t3)}, 4, {v(t0)}")
        a(f"v_xor_b32 {v(t3)}, 4, {v(t3)}")
        a(f"v_lshl_add_u32 {v(LSA+1)}, {v(t3)}, 4, {v(t0)}")
        for i in range(4 * NPL):
            a(f"v_mov_b32 {v(LCS+i)}, 0")

    def stats_reads():
        for i in range(2):
            a(f"v_add_u32 {v(LSC+i)}, s42, {v(LSA+i)}")
        for i in range(NPL):
            a(f"v_add_u32 {v(LCC+i)}, s42, {v(LCW+i)}")
        a(f"s_add_u32 s42, s42, {STAGE}")
        a(f"s_cmp_ge_u32 s42, {STAGE*NSTAGE}")
        a("s_cselect_b32 s42, 0, s42")
        for q in range(2):
            for kk in range(2):
                a(f"ds_read_b128 {v(LSD+8*q+4*kk,4)}, {v(LSC+kk)} offset:{2048*q}")
        for i in range(NPL):
            for kk in range(2):
                for rd in range(2):
                    a(f"ds_read_b64_tr_b16 {v(LWD+8*i+4*kk+2*rd,2)}, {v(LCC+i)} offset:{kk*32*RB+rd*4*RB}")

    def stats_math():
        a("s_waitcnt lgkmcnt(0)")
        for i in range(NPL):
            for kk in range(2):
                a(f"v_mfma_f32_16x16x32_bf16 {v(LCS+4*i,4)}, {v(LWD+8*i+4*kk,4)}, {v(LONE,4)}, {v(LCS+4*i,4)}")
        for kk in range(2):
            for q in range(2):
                d = v(LSD + 8 * q + 4 * kk, 4)
                a(f"v_mfma_f32_16x16x32_bf16 {v(LMS+8*q,4)}, {d}, {v(LONE,4)}, {v(LMS+8*q,4)}")
                a(f"v_mfma_f32_16x16x32_bf16 {v(LMS+8*q+4,4)}, {d}, {d}, {v(LMS+8*q+4,4)}")

    nloop = NS - NSTAGE + 1
    if splitk: a(f"s_sub_u32 s48, s93, {NSTAGE-1}")
    else: a(f"s_mov_b32 s48, {nloop}")
    lloop = a.newlabel("L_lloop")
    a.label(lloop)
    a(f"s_waitcnt vmcnt({(NSTAGE-2)*P})")
    a("s_barrier")
    if ln and not pre: stats_reads()
    dma()
    if ln and not pre: stats_math()
    a("s_sub_u32 s48, s48, 1")
    a("s_cmp_lg_u32 s48, 0")
    a(f"s_cbranch_scc1 {lloop}")
    if pre:
        for i in range(1, 8):
            a(f"v_add_f32 {v(LSD)}, {v(LSD)}, {v(LSD+2*i)}")
            a(f"v_add_f32 {v(LSD+1)}, {v(LSD+1)}, {v(LSD+2*i+1)}")
        a("s_nop 1")
        for k_ in range(2):
            a(f"v_add_f32_dpp {v(LST+k_)}, {v(LSD+k_)}, {v(LSD+k_)} quad_perm:[1,0,3,2] row_mask:0xf bank_mask:0xf")
        sm, sq, r1, r2 = LST, LST + 1, LSD, LSD + 1
        a(f"v_mul_f32 {v(sm)}, {hex_f32(1.0/K)}, {v(sm)}")
        a(f"v_mul_f32 {v(sq)}, {hex_f32(1.0/K)}, {v(sq)}")
        a(f"v_fma_f32 {v(sq)}, -{v(sm)}, {v(sm)}, {v(sq)}")
        a(f"v_max_f32 {v(sq)}, 0, {v(sq)}")
        a(f"v_add_f32 {v(r1)}, {hex_f32(1e-5)}, {v(sq)}")
        a(f"v_rsq_f32 {v(r1)}, {v(r1)}")
        a("s_nop 0")
        if ln == 'double':
            a(f"v_mul_f32 {v(r2)}, {v(r1)}, {v(r1)}")
            a(f"v_mul_f32 {v(r2)}, {v(r2)}, {v(sq)}")
            a(f"v_add_f32 {v(r2)}, {hex_f32(1e-5)}, {v(r2)}")
            a(f"v_rsq_f32 {v(r2)}, {v(r2)}")
            a("s_nop 0")
            a(f"v_mul_f32 {v(r1)}, {v(r1)}, {v(r2)}")
        a(f"v_mul_f32 {v(r2)}, {v(sm)}, {v(r1)}")
        a(f"v_sub_f32 {v(r2)}, 0, {v(r2)}")
        a(f"v_lshlrev_b32 {v(LSC)}, 3, {v(LSA)}")
        a(f"v_add_u32 {v(LSC)}, {RTAB}, {v(LSC)}")
        a(f"ds_write_b64 {v(LSC)}, {v(LSD,2)}")
        for g_ in range(1, 4):
            for j in range(2):
                a(f"v_pk_add_f32 {v(LWD+2*j,2)}, {v(LWD+2*j,2)}, {v(LWD+4*g_+2*j,2)}")
        a(f"v_lshlrev_b32 {v(t0)}, 4, v1")
        a(f"v_add_u32 {v(t0)}, {EPI+3072}, {v(t0)}")
        a("s_lshl_b32 s3, s30, 10")
        a(f"v_add_u32 {v(t1)}, s3, {v(t0)}")
        a(f"ds_write_b128 {v(t1)}, {v(LWD,4)}")
        a("s_waitcnt lgkmcnt(0)")
    if st_res:
        npc = BM * BN * 2 // 4096
        rpp = 1024 // (BN * 2)
        lpr = BN * 2 // 16
        a(f"v_lshrrev_b32 {v(t0)}, {int(math.log2(lpr))}, v1")
        RP = TP if rtile else N * 2
        a(f"s_mul_i32 s3, s30, {npc*rpp}")
        if not rtile:
            a(f"s_mul_i32 s46, s28, {BM}")
            a("s_add_u32 s3, s3, s46")
        a(f"v_add_u32 {v(t0)}, s3, {v(t0)}")
        a(f"v_mul_u32_u24 {v(t0)}, {RP}, {v(t0)}")
        a(f"v_and_b32 {v(t1)}, {lpr-1}, v1")
        a(f"v_lshl_add_u32 {v(t0)}, {v(t1)}, 4, {v(t0)}")
        if rtile:
            assert BN == 64
            a(f"s_mul_i32 s3, s29, {BM*TP}")
            a(f"s_mul_i32 s46, s28, {BM*N*2*TX}")
            a("s_add_u32 s3, s3, s46")
        else:
            a(f"s_mul_i32 s3, s29, {BN*2}")
        a(f"v_add_u32 {v(t0)}, s3, {v(t0)}")
        a(f"s_mul_i32 s33, s30, {npc*1024}")
        for i in range(npc):
            a(f"s_add_u32 m0, s33, {EPI + i*1024}")
            a(f"s_mov_b32 s3, {i*rpp*RP}")
            a(f"buffer_load_dwordx4 {v(t0)}, s[16:19], s3 offen lds")
    for j in range(NS - NSTAGE + 1, NS):
        a(f"s_waitcnt vmcnt({(NS-1-j)*P + NEX})")
        a("s_barrier")
        if pre and j == NS - NSTAGE + 1:
            assert NSTAGE >= 3
            lcs = a.newlabel("L_lcs")
            a("s_cmp_lg_u32 s30, 0")
            a(f"s_cbranch_scc1 {lcs}")
            for g_ in range(4):
                a(f"ds_read_b128 {v(LWD+4*g_,4)}, {v(t0)} offset:{1024*g_}")
            a("s_waitcnt lgkmcnt(0)")
            for g_ in range(1, 4):
                for j_ in range(2):
                    a(f"v_pk_add_f32 {v(LWD+2*j_,2)}, {v(LWD+2*j_,2)}, {v(LWD+4*g_+2*j_,2)}")
            a(f"v_subrev_u32 {v(t0)}, {EPI+3072-CTAB}, {v(t0)}")
            a(f"ds_write_b128 {v(t0)}, {v(LWD,4)}")
            a("s_waitcnt lgkmcnt(0)")
            a.label(lcs)
        if ln and not pre:
            stats_reads()
            stats_math()
    stamp(3)
    if epi2: a("s_barrier")
    if w2copy:
        a("s_lshl_b32 s92, s2, 2")
        a("s_add_u32 s92, s92, s30")
        a(f"v_lshrrev_b32 {v(t0)}, 3, v1")
        a(f"v_and_b32 {v(t1)}, 7, v1")
        a(f"v_lshlrev_b32 {v(t1)}, 4, {v(t1)}")
        a(f"v_lshl_add_u32 {v(W2A)}, {v(t0)}, 11, {v(t1)}")
        a("s_lshr_b32 s3, s92, 6")
        a("s_lshl_b32 s3, s3, 7")
        a("s_and_b32 s46, s92, 63")
        a(f"s_mul_i32 s46, s46, {56*D*2}")
        a("s_add_u32 s3, s3, s46")
        srd(a, 88, 94, 0, F * D * 2)
        for j in range(7):
            a(f"buffer_load_dwordx4 {v(W2S+4*j,4)}, {v(W2A)}, s[88:91], s3 offen")
            a(f"s_add_u32 s3, s3, {8*D*2}")
        def w2store(extra):
            srd(a, 88, 24, WS_W2T, F * D * 2)
            a("s_mul_i32 s3, s92, 7168")
            a(f"v_lshlrev_b32 {v(W2A)}, 4, v1")
            for j in range(7):
                if j == 4: a("s_add_u32 s3, s3, 4096")
                a(f"s_waitcnt vmcnt({6+extra})")
                a(f"buffer_store_dwordx4 {v(W2S+4*j,4)}, {v(W2A)}, s[88:91], s3 offen offset:{1024*(j&3)}")
        if not epi2: w2store(0)
    if ln and not pre:
        a("s_nop 7")
        a(f"v_and_b32 {v(t0)}, 3, v1")
        for r in range(1, 4):
            a(f"v_cmp_eq_u32 s[{48+2*r}:{49+2*r}], {r}, {v(t0)}")
        X0 = LSD
        for i in range(2):
            sm, sq = LST + 2 * i, LST + 2 * i + 1
            r1, r2 = X0 + 2 * i, X0 + 2 * i + 1
            for dst, src in ((sm, LMS + 8 * i), (sq, LMS + 8 * i + 4)):
                a(f"v_cndmask_b32 {v(dst)}, {v(src)}, {v(src+1)}, s[50:51]")
                a(f"v_cndmask_b32 {v(dst)}, {v(dst)}, {v(src+2)}, s[52:53]")
                a(f"v_cndmask_b32 {v(dst)}, {v(dst)}, {v(src+3)}, s[54:55]")
            a(f"v_mul_f32 {v(sm)}, {hex_f32(1.0/K)}, {v(sm)}")
            a(f"v_mul_f32 {v(sq)}, {hex_f32(1.0/K)}, {v(sq)}")
            a(f"v_fma_f32 {v(sq)}, -{v(sm)}, {v(sm)}, {v(sq)}")
            a(f"v_max_f32 {v(sq)}, 0, {v(sq)}")
            a(f"v_add_f32 {v(r1)}, {hex_f32(1e-5)}, {v(sq)}")
            a(f"v_rsq_f32 {v(r1)}, {v(r1)}")
            a("s_nop 0")
            assert ln == 'single'
            a(f"v_mul_f32 {v(r2)}, {v(sm)}, {v(r1)}")
            a(f"v_sub_f32 {v(r2)}, 0, {v(r2)}")
        a(f"v_lshrrev_b32 {v(LSC)}, 7, {v(LSA)}")
        a(f"v_lshlrev_b32 {v(LSC)}, 3, {v(LSC)}")
        a(f"v_add_u32 {v(LSC)}, {RTAB}, {v(LSC)}")
        a(f"v_lshrrev_b32 {v(t0)}, 4, v1")
        a(f"v_lshlrev_b32 {v(t0)}, 4, {v(t0)}")
        for i in range(NPL):
            a(f"s_mul_i32 s46, s30, {NPL}")
            a(f"s_add_u32 s46, s46, {i}")
            a(f"s_min_u32 s46, s46, {BN//16-1}")
            a("s_lshl_b32 s46, s46, 6")
            a(f"s_add_u32 s46, s46, {CTAB}")
            a(f"v_add_u32 {v(LCC+i)}, s46, {v(t0)}")
    if ln and not pre:
        a("s_mov_b32 exec_lo, 0x00f0000f")
        a("s_mov_b32 exec_hi, 0xf0000f00")
        for i in range(2):
            a(f"ds_write_b64 {v(LSC)}, {v(LSD+2*i,2)} offset:{128*i}")
        a("s_mov_b64 exec, -1")
        for i in range(NPL):
            a(f"ds_write_b128 {v(LCC+i)}, {v(LCS+4*i,4)}")
        a("s_waitcnt lgkmcnt(0)")
        a("s_barrier")
    if NEX: a("s_waitcnt vmcnt(0)")
    if splitk:
        lhi = a.newlabel("L_lhi"); lepi = a.newlabel("L_lepi")
        a("s_cmp_lg_u32 s92, 0")
        a(f"s_cbranch_scc1 {lhi}")
        a("s_barrier")
        a(f"s_branch {end}")
        a.label(lhi)
        a("s_barrier")
        a("s_cmp_eq_u32 s94, 2")
        a(f"s_cbranch_scc1 {lepi}")
        a(f"v_mov_b32 {v(t1)}, {DONE}")
        a(f"ds_read_b128 {v(44,4)}, {v(t1)}")
        a("s_waitcnt lgkmcnt(0)")
        a("v_and_b32 v44, v44, v45")
        a("v_and_b32 v46, v46, v47")
        a("v_and_b32 v44, v44, v46")
        a("s_nop 0")
        a("v_readfirstlane_b32 s3, v44")
        a("s_nop 3")
        a("s_cmp_eq_u32 s3, 1")
        a(f"s_cbranch_scc1 {lepi}")
        a("s_mov_b32 s94, 2")
        a(f"s_mov_b32 s93, {NSLO}")
        a("s_mov_b32 s40, 0"); a("s_mov_b32 s41, 0"); a("s_mov_b32 s43, 0")
        a("s_barrier")
        a(f"s_branch {lab_lpass}")
        a.label(lepi)
    stamp(4)
    a("s_barrier")

    if FS:
        a(f"s_branch {lab_store}")
        seg = a.lines[pos_l0:]
        del a.lines[pos_l0:]
        a.lines[pos_ins:pos_ins] = seg
    a.label(lab_store)
    if epi2:
        CPRW = BN // 8
        assert CPRW == 28 and otile
        vL, vR, vO = 2, 3, 4
        CSr, BFr, Dr, RCr, Gr, Or, K1 = 8, 16, [24, 32], [40, 42], 44, [52, 56], 60
        c2 = 2 * math.log2(math.e)
        k1 = struct.unpack("<I", struct.pack("<f", -0.7978845608 * c2))[0]
        k3 = struct.unpack("<I", struct.pack("<f", -0.7978845608 * 0.044715 * c2))[0]
        a("s_setprio 0")
        a(f"v_cmp_le_u32 s[46:47], {CPRW}, v1")
        a(f"v_mov_b32 v5, 0")
        a(f"v_cndmask_b32 v5, v5, 1, s[46:47]")
        a(f"v_mul_u32_u24 v6, {CPRW}, v5")
        a(f"v_sub_u32 v6, v1, v6")
        a("s_lshl_b32 s3, s49, 1")
        a("v_add_u32 v5, s3, v5")
        a("s_mov_b32 exec_hi, 0x00ffffff")
        a(f"v_lshlrev_b32 v7, 5, v6")
        a(f"v_add_u32 v7, {CTAB}, v7")
        a(f"ds_read_b128 {v(CSr,4)}, v7")
        a(f"ds_read_b128 {v(CSr+4,4)}, v7 offset:16")
        a(f"v_lshlrev_b32 v7, 4, v6")
        a(f"v_add_u32 v62, {EPI}, v7")
        a(f"ds_read_b128 {v(Gr,4)}, v62")
        a(f"v_mul_u32_u24 {v(vL)}, {FROW}, v5")
        a(f"v_add_u32 {v(vL)}, {v(vL)}, v7")
        a(f"v_lshlrev_b32 {v(vR)}, 3, v5")
        a(f"v_add_u32 {v(vR)}, {RTAB}, {v(vR)}")

        def rd(b):
            a(f"ds_read_b128 {v(Dr[b],4)}, {v(vL)}")
            a(f"ds_read_b128 {v(Dr[b]+4,4)}, {v(vL)} offset:{BN*2}")
            a(f"ds_read_b64 {v(RCr[b],2)}, {v(vR)}")
            a(f"v_add_u32 {v(vL)}, {16*FROW}, {v(vL)}")
            a(f"v_add_u32 {v(vR)}, 128, {v(vR)}")
        rd(0)
        a(f"s_mul_i32 s3, s29, {CPRW}")
        a("v_add_u32 v6, s3, v6")
        a("v_lshrrev_b32 v7, 3, v6")
        a(f"v_lshlrev_b32 v7, {TSH+7}, v7")
        a(f"v_lshl_add_u32 v7, v5, {TSH}, v7")
        a("v_and_b32 v6, 7, v6")
        a(f"v_lshl_add_u32 {v(vO)}, v6, 4, v7")
        a(f"s_mul_i32 s50, s28, {BM*ldo}")
        a(f"s_mov_b32 s52, {k3}"); a(f"s_mov_b32 s53, {k3}")
        a(f"v_mov_b32 {v(K1)}, {k1}"); a(f"v_mov_b32 {v(K1+1)}, {k1}")
        a("s_mov_b32 s56, 1.0"); a("s_mov_b32 s57, 1.0")
        a("s_waitcnt lgkmcnt(3)")
        for j in range(4):
            a(f"v_lshlrev_b32 {v(BFr+2*j)}, 16, {v(Gr+j)}")
            a(f"v_and_b32 {v(BFr+2*j+1)}, 0xffff0000, {v(Gr+j)}")
        stamp(5)
        a(f"s_mov_b32 s48, {BM//32}")
        lp = a.newlabel("L_ep")
        a.label(lp)
        for b in range(2):
            rd(1 - b)
            a("s_waitcnt lgkmcnt(3)")
            d = Dr[b]; rc = v(RCr[b], 2)
            for j in range(4):
                a(f"v_pk_fma_f32 {v(Gr+2*j,2)}, {v(CSr+2*j,2)}, {rc}, {v(BFr+2*j,2)} op_sel:[0,1,0] op_sel_hi:[1,1,1]")
            for j in range(4):
                a(f"v_pk_fma_f32 {v(d+2*j,2)}, {v(d+2*j,2)}, {rc}, {v(Gr+2*j,2)} op_sel:[0,0,0] op_sel_hi:[1,0,1]")
            for j in range(4):
                a(f"v_pk_mul_f32 {v(Gr+2*j,2)}, {v(d+2*j,2)}, {v(d+2*j,2)}")
            for j in range(4):
                a(f"v_pk_fma_f32 {v(Gr+2*j,2)}, {v(Gr+2*j,2)}, s[52:53], {v(K1,2)}")
            for j in range(4):
                a(f"v_pk_mul_f32 {v(Gr+2*j,2)}, {v(Gr+2*j,2)}, {v(d+2*j,2)}")
            for r in range(8):
                a(f"v_exp_f32 {v(Gr+r)}, {v(Gr+r)}")
            a("s_nop 0")
            for j in range(4):
                a(f"v_pk_add_f32 {v(Gr+2*j,2)}, {v(Gr+2*j,2)}, s[56:57]")
            for r in range(8):
                a(f"v_rcp_f32 {v(Gr+r)}, {v(Gr+r)}")
            a("s_nop 0")
            for j in range(4):
                a(f"v_pk_mul_f32 {v(d+2*j,2)}, {v(d+2*j,2)}, {v(Gr+2*j,2)}")
            for j in range(4):
                a(f"v_cvt_pk_bf16_f32 {v(Or[b]+j)}, {v(d+2*j)}, {v(d+2*j+1)}")
            a(f"buffer_store_dwordx4 {v(Or[b],4)}, {v(vO)}, s[12:15], s50 offen {STMOD}")
            a(f"s_add_u32 s50, s50, {16*TP}")
        a("s_sub_u32 s48, s48, 1")
        a("s_cmp_lg_u32 s48, 0")
        a(f"s_cbranch_scc1 {lp}")
        a("s_mov_b64 exec, -1")
        a("s_waitcnt lgkmcnt(0)")
        if w2copy:
            lw = a.newlabel("L_nw2")
            a("s_cmp_lt_u32 s49, 4")
            a(f"s_cbranch_scc1 {lw}")
            w2store(BM // 16)
            a.label(lw)
        stamp(6)
        if 'stamp' in EXP: a("s_waitcnt vmcnt(0)")
        stamp(7)
        stamp_out()
        a.label(end)
        a("s_endpgm")
        return dict(name=name, grid=ntiles, block=512, lds=lds, desc=kernel_desc(name, max(nvgpr, 168)))
    CPRW = BN // 8
    NIT = BM * CPRW // 512
    assert NIT * 512 == BM * CPRW
    magic = ((1 << 32) + CPRW - 1) // CPRW
    a(f"s_mov_b32 s46, {magic}")
    a(f"s_mul_i32 s3, s49, {NIT*64}")
    a(f"v_add_u32 {v(t0)}, s3, v1")
    a(f"s_mul_i32 s3, s28, {BM*ldo if otile else BM}")
    a(f"s_mul_i32 s47, s29, {CPRW if otile else BN*2}")
    if otile and stats_out:
        a(f"s_mul_i32 s50, s28, {BM*128}")
        a("s_lshl_b32 s51, s29, 3")
        a("s_add_u32 s50, s50, s51")
    R0 = (vT[7] + 4) // 4 * 4
    RR = R0 + 4 * NIT
    OFF = RR + 4 * NIT
    SOF = OFF + NIT
    GT = (SOF + NIT + 3) // 4 * 4
    assert GT + 10 <= 256
    for it in range(NIT):
        a(f"v_add_u32 {v(t1)}, {it*64}, {v(t0)}")
        a(f"v_mul_hi_u32 {v(t2)}, {v(t1)}, s46")
        a(f"v_mul_u32_u24 {v(t3)}, {CPRW}, {v(t2)}")
        a(f"v_sub_u32 {v(t3)}, {v(t1)}, {v(t3)}")
        a(f"v_mul_u32_u24 {v(t1)}, {CROW}, {v(t2)}")
        a(f"v_lshl_add_u32 {v(t1)}, {v(t3)}, 4, {v(t1)}")
        if CBASE: a(f"v_add_u32 {v(t1)}, {CBASE}, {v(t1)}")
        a(f"ds_read_b128 {v(R0+4*it,4)}, {v(t1)}")
        if not otile: a(f"v_add_u32 {v(t2)}, s3, {v(t2)}")
        if stats_out:
            if otile:
                a(f"v_lshl_add_u32 {v(SOF+it)}, {v(t2)}, 7, s50")
            else:
                a(f"v_lshlrev_b32 {v(SOF+it)}, 7, {v(t2)}")
                a(f"v_lshl_add_u32 {v(SOF+it)}, s29, 3, {v(SOF+it)}")
        if otile:
            a(f"v_add_u32 {v(t3)}, s47, {v(t3)}")
            a(f"v_lshrrev_b32 {v(t1)}, 3, {v(t3)}")
            a(f"v_lshlrev_b32 {v(t1)}, {TSH+7}, {v(t1)}")
            a(f"v_lshl_add_u32 {v(t1)}, {v(t2)}, {TSH}, {v(t1)}")
            a(f"v_and_b32 {v(t3)}, 7, {v(t3)}")
            a(f"v_lshl_add_u32 {v(t1)}, {v(t3)}, 4, {v(t1)}")
            a(f"v_add_u32 {v(OFF+it)}, s3, {v(t1)}")
        else:
            a(f"v_mul_u32_u24 {v(t2)}, {ldo}, {v(t2)}")
            a(f"v_lshlrev_b32 {v(t3)}, 4, {v(t3)}")
            a(f"v_add_u32 {v(t3)}, s47, {v(t3)}")
            a(f"v_add_u32 {v(OFF+it)}, {v(t3)}, {v(t2)}")
        if st_res:
            a(f"v_lshlrev_b32 {v(t1)}, 4, {v(t0)}")
            a(f"v_add_u32 {v(t1)}, {EPI + it*1024}, {v(t1)}")
            a(f"ds_read_b128 {v(RR+4*it,4)}, {v(t1)}")
        elif res_arg:
            a(f"buffer_load_dwordx4 {v(RR+4*it,4)}, {v(OFF+it)}, s[16:19], 0 offen")
    a("s_waitcnt vmcnt(0) lgkmcnt(0)" if (res_arg and not st_res) else "s_waitcnt lgkmcnt(0)")
    if DRY: a.dry_exit()
    stamp(5)
    for it in range(NIT):
        c0 = R0 + 4 * it
        if res_arg:
            for j in range(4):
                d = c0 + j
                r = RR + 4 * it + j
                a(f"v_lshlrev_b32 {v(GT)}, 16, {v(d)}")
                a(f"v_lshlrev_b32 {v(GT+1)}, 16, {v(r)}")
                a(f"v_and_b32 {v(GT+2)}, 0xffff0000, {v(d)}")
                a(f"v_and_b32 {v(GT+3)}, 0xffff0000, {v(r)}")
                a(f"v_add_f32 {v(GT)}, {v(GT)}, {v(GT+1)}")
                a(f"v_add_f32 {v(GT+2)}, {v(GT+2)}, {v(GT+3)}")
                a(f"v_cvt_pk_bf16_f32 {v(d)}, {v(GT)}, {v(GT+2)}")
        a(f"buffer_store_dwordx4 {v(c0,4)}, {v(OFF+it)}, s[12:15], 0 offen {STMOD if (ln or STALL) else ''}")
        if stats_out:
            assert CPRW == 8
            a(f"v_mov_b32 {v(GT+8)}, 0x3f803f80")
            a(f"v_mov_b32 {v(GT)}, 0")
            a(f"v_mov_b32 {v(GT+1)}, 0")
            for j in range(4):
                a(f"v_dot2_f32_bf16 {v(GT)}, {v(c0+j)}, {v(GT+8)}, {v(GT)}")
                a(f"v_dot2_f32_bf16 {v(GT+1)}, {v(c0+j)}, {v(c0+j)}, {v(GT+1)}")
            a("s_nop 3")
            for q_, mode in enumerate(("quad_perm:[1,0,3,2]", "quad_perm:[2,3,0,1]", "row_half_mirror")):
                src = GT + 2 * (q_ & 1); dst = GT + 2 * ((q_ + 1) & 1)
                for k_ in range(2):
                    a(f"v_add_f32_dpp {v(dst+k_)}, {v(src+k_)}, {v(src+k_)} {mode} row_mask:0xf bank_mask:0xf")
                a("s_nop 1")
            a("s_mov_b32 exec_lo, 0x01010101")
            a("s_mov_b32 exec_hi, 0x01010101")
            a(f"buffer_store_dwordx2 {v(GT+2,2)}, {v(SOF+it)}, s[84:87], 0 offen")
            a("s_mov_b64 exec, -1")
    stamp(6)
    if 'stamp' in EXP: a("s_waitcnt vmcnt(0)")
    stamp(7)
    stamp_out()
    a.label(end)
    a("s_endpgm")
    if DRY: a.dry_dispatch()
    return dict(name=name, grid=ntiles, block=512, lds=lds, desc=kernel_desc(name, max(nvgpr, GT + 10, 168)))


def gen_attn(a, name, pf=None, colsum=False):
    import struct
    NQB = S // 32
    ntask = H * NQB
    nwg = ntask // 4
    QKV_ROW = 3 * D * 2
    KLDS = 384 * 64
    lds = 2 * KLDS
    kernel_header(a, name)
    end = a.newlabel("L_end")
    npf = 0
    a(f"s_cmp_ge_u32 s2, {nwg + npf}")
    a(f"s_cbranch_scc1 {end}")
    a(f"s_load_dwordx2 s[24:25], s[0:1], {ARG['ws']}")
    a("v_and_b32 v1, 63, v0")
    a("v_lshrrev_b32 v2, 6, v0")
    a("s_nop 0")
    a("v_readfirstlane_b32 s30, v2")
    a("s_nop 3")
    a("s_lshl_b32 s3, s2, 2")
    a("s_add_u32 s92, s3, s30")
    a("s_and_b32 s28, s2, 31")
    a("s_lshr_b32 s29, s2, 5")
    a("s_lshl_b32 s39, s29, 7")
    a("s_sub_u32 s39, s39, 256")
    a("s_lshl_b32 s3, s30, 5")
    a("s_add_u32 s32, s39, s3")
    a("s_add_u32 s31, s32, 256")
    a("s_lshl_b32 s33, s28, 6")
    a(f"s_add_u32 s35, s33, {2*D*2}")
    a(f"s_add_u32 s36, s33, {D*2}")
    a("v_and_b32 v2, 31, v1")
    a("v_lshrrev_b32 v3, 5, v1")
    a("v_add_u32 v4, s31, v2")
    a(f"v_mul_u32_u24 v4, {QKV_ROW}, v4")
    a("v_lshl_add_u32 v4, v3, 4, v4")
    a("v_add_u32 v4, s33, v4")
    a("s_waitcnt lgkmcnt(0)")
    srd(a, 4, 24, WS_QKV, S * 3 * D * 2)
    srd(a, 8, 24, WS_O, S * D * 2)
    a("v_lshrrev_b32 v5, 2, v1")
    a("v_and_b32 v6, 3, v1")
    a("v_bfe_u32 v7, v1, 4, 2")
    a("v_xor_b32 v7, v7, v6")
    a("s_mul_i32 s3, s30, 96")
    a("s_add_u32 s3, s3, s39")
    a("s_mul_i32 s34, s30, 6144")
    for p in range(6):
        a(f"v_add_u32 v16, {16*p}, v5")
        a("v_add_u32 v16, s3, v16")
        a("v_max_i32 v16, 0, v16")
        a(f"v_mul_u32_u24 v16, {QKV_ROW}, v16")
        a("v_lshl_add_u32 v17, v7, 4, v16")
        a("v_add_u32 v17, s36, v17")
        a(f"s_add_u32 m0, s34, {p*1024}")
        a("v_lshl_add_u32 v16, v6, 4, v16")
        a(f"buffer_load_dwordx4 v17, s[4:7], 0 offen lds")
        a("v_add_u32 v16, s35, v16")
        a(f"s_add_u32 m0, s34, {KLDS + p*1024}")
        a("s_nop 0")
        a(f"buffer_load_dwordx4 v16, s[4:7], 0 offen lds")
    a("buffer_load_dwordx4 v[8:11], v4, s[4:7], 0 offen")
    a("buffer_load_dwordx4 v[12:15], v4, s[4:7], 0 offen offset:32")
    KF = 16
    if colsum:
        a(f"s_load_dwordx2 s[94:95], s[0:1], {ARG['w2']}")
        a(f"s_load_dwordx2 s[40:41], s[0:1], {ARG['wo']}")
        a(f"s_load_dwordx2 s[42:43], s[0:1], {ARG['w1']}")
        a("v_lshlrev_b32 v7, 4, v1")
        a(f"s_mul_i32 s93, s92, {F*D*2//2048}")
        a("s_lshl_b32 s3, s92, 10")
        a("v_add_u32 v16, s93, v7")
        a("v_add_u32 v17, s3, v7")
        a(f"s_mul_hi_u32 s44, s92, {((1 << 32) + 111) // 112}")
        a("s_mul_i32 s3, s44, 112")
        a("s_sub_u32 s45, s92, s3")
        a("s_lshl_b32 s3, s44, 6")
        a("v_lshrrev_b32 v18, 2, v1")
        a("v_add_u32 v18, s3, v18")
        a(f"v_mul_u32_u24 v18, {F*2}, v18")
        a("v_and_b32 v19, 3, v1")
        a("v_lshl_add_u32 v18, v19, 4, v18")
        a("s_lshl_b32 s3, s45, 6")
        a("v_add_u32 v18, s3, v18")
        a("s_waitcnt lgkmcnt(0)")
        npl = 4
        if 'nowpf' in EXP:
            srd(a, 96, 94, 0, F * D * 2)
            for j in range(4):
                a(f"buffer_load_dwordx4 v[240:243], v16, s[96:99], 0 offen offset:{1024*j}")
            srd(a, 96, 40, 0, D * D * 2)
            a("buffer_load_dwordx4 v[240:243], v17, s[96:99], 0 offen")
            npl = 9
        srd(a, 96, 42, 0, D * F * 2)
        for j in range(4):
            a(f"s_mov_b32 s3, {16*j*F*2}")
            a(f"buffer_load_dwordx4 {v(240+4*j,4)}, v18, s[96:99], s3 offen")
    else:
        npl = tail_prefetch(a, 92, 1, pf, 7, 240) if pf else 0
    a("v_bfe_u32 v5, v1, 2, 2")
    a("v_xor_b32 v5, v5, v3")
    a("v_lshlrev_b32 v6, 6, v2")
    a("s_lshl_b32 s34, s30, 11")
    a("v_add_u32 v6, s34, v6")
    a("v_lshl_add_u32 v88, v5, 4, v6")
    a("v_xor_b32 v5, 2, v5")
    a("v_lshl_add_u32 v89, v5, 4, v6")
    a(f"s_add_u32 s34, s34, {KLDS}")
    a(f"s_waitcnt vmcnt({npl})")
    a("s_barrier")
    for t_ in range(9):
        a(f"ds_read_b128 {v(KF+8*t_,4)}, v88 offset:{2048*t_}")
        a(f"ds_read_b128 {v(KF+8*t_+4,4)}, v89 offset:{2048*t_}")
    SC = 96
    a("v_mov_b32 v7, 0xf149f2ca")
    for t in range(9):
        a(f"s_waitcnt lgkmcnt({min(15, 2*(8-t))})")
        if t < 8:
            lab_inv = a.newlabel("L_inv"); lab_done = a.newlabel("L_tdone")
            a(f"s_add_i32 s3, s32, {32*t}")
            a("s_cmp_lt_i32 s3, 0")
            a(f"s_cbranch_scc1 {lab_inv}")
        a(f"v_mfma_f32_32x32x16_bf16 {v(SC+16*t,16)}, {v(KF+8*t,4)}, v[8:11], 0")
        a(f"v_mfma_f32_32x32x16_bf16 {v(SC+16*t,16)}, {v(KF+8*t+4,4)}, v[12:15], {v(SC+16*t,16)}")
        if t < 8:
            a(f"s_branch {lab_done}")
            a.label(lab_inv)
            for r in range(16):
                a(f"v_mov_b32 v{SC+16*t+r}, v7")
            a.label(lab_done)
    a("v_lshlrev_b32 v5, 2, v3")
    a("v_sub_u32 v5, v2, v5")
    a("s_nop 7")
    a("s_nop 7")
    for r in range(16):
        c = (r & 3) + 8 * (r >> 2)
        a(f"v_cmp_gt_i32 vcc, {c}, v5")
        a(f"v_cmp_le_i32 s[36:37], {c}, v5")
        a("s_nop 0")
        a(f"v_cndmask_b32 v{SC+r}, v7, v{SC+r}, vcc")
        a(f"v_cndmask_b32 v{SC+128+r}, v7, v{SC+128+r}, s[36:37]")
    a(f"v_max3_f32 v4, v{SC}, v{SC+1}, v{SC+2}")
    a(f"v_max3_f32 v6, v{SC+3}, v{SC+4}, v{SC+5}")
    for i in range(6, 144, 4):
        a(f"v_max3_f32 v4, v4, v{SC+i}, v{SC+i+1}")
        if i + 3 < 144:
            a(f"v_max3_f32 v6, v6, v{SC+i+2}, v{SC+i+3}")
    a("v_max_f32 v4, v4, v6")
    a("v_xor_b32 v88, 32, v1")
    a("v_lshlrev_b32 v88, 2, v88")
    a("ds_bpermute_b32 v89, v88, v4")
    a("s_waitcnt lgkmcnt(0)")
    a("v_max_f32 v4, v4, v89")
    sc = (DH ** -0.5) * math.log2(math.e)
    sc_bits = struct.unpack("<I", struct.pack("<f", sc))[0]
    a(f"s_mov_b32 s38, {sc_bits}")
    a("v_mul_f32 v4, s38, v4")
    sums = [5, 6, 90, 91]
    for sreg in sums:
        a(f"v_mov_b32 v{sreg}, 0")
    for g in range(0, 144, 4):
        for j in range(4):
            a(f"v_fma_f32 v{SC+g+j}, v{SC+g+j}, s38, -v4")
        for j in range(4):
            a(f"v_exp_f32 v{SC+g+j}, v{SC+g+j}")
        if g >= 4:
            for j in range(4):
                a(f"v_add_f32 v{sums[j]}, v{sums[j]}, v{SC+g-4+j}")
            tt, jj = divmod(g - 4, 16)
            a(f"v_cvt_pk_bf16_f32 v{KF+8*tt+jj//2}, v{SC+g-4}, v{SC+g-3}")
            a(f"v_cvt_pk_bf16_f32 v{KF+8*tt+jj//2+1}, v{SC+g-2}, v{SC+g-1}")
    a("s_nop 0")
    g = 144
    for j in range(4):
        a(f"v_add_f32 v{sums[j]}, v{sums[j]}, v{SC+g-4+j}")
    tt, jj = divmod(g - 4, 16)
    a(f"v_cvt_pk_bf16_f32 v{KF+8*tt+jj//2}, v{SC+g-4}, v{SC+g-3}")
    a(f"v_cvt_pk_bf16_f32 v{KF+8*tt+jj//2+1}, v{SC+g-2}, v{SC+g-1}")
    a("v_add_f32 v5, v5, v6")
    a("v_add_f32 v90, v90, v91")
    a("v_add_f32 v5, v5, v90")
    a("ds_bpermute_b32 v89, v88, v5")
    a("v_bfe_u32 v6, v1, 2, 2")
    a("v_lshl_add_u32 v6, v3, 2, v6")
    a("v_lshlrev_b32 v6, 6, v6")
    a("v_bfe_u32 v7, v1, 4, 1")
    a("v_lshl_add_u32 v6, v7, 5, v6")
    a("v_and_b32 v7, 3, v1")
    a("v_lshl_add_u32 v6, v7, 3, v6")
    a("v_add_u32 v6, s34, v6")
    OA = SC
    VF = SC + 16
    a(f"s_waitcnt lgkmcnt(0)")
    a("v_add_f32 v5, v5, v89")
    a("v_rcp_f32 v5, v5")
    for t in range(9):
        for sidx in range(2):
            f = VF + 4 * (2 * t + sidx)
            base = (32 * t + 16 * sidx) * 64
            a(f"ds_read_b64_tr_b16 {v(f,2)}, v6 offset:{base}")
            a(f"ds_read_b64_tr_b16 {v(f+2,2)}, v6 offset:{base+8*64}")
    first = True
    for t in range(9):
        for sidx in range(2):
            f = VF + 4 * (2 * t + sidx)
            idx = 2 * t + sidx
            rem = 36 - 2 * (idx + 1)
            a(f"s_waitcnt lgkmcnt({min(rem,15)})")
            a(f"v_mfma_f32_32x32x16_bf16 {v(OA,16)}, {v(f,4)}, {v(KF+8*t+4*sidx,4)}, {'0' if first else v(OA,16)}")
            first = False
    if colsum:
        lab_nc = a.newlabel("L_nocs")
        a("s_cmp_ge_u32 s44, 16")
        a(f"s_cbranch_scc1 {lab_nc}")
        CA = 184; CT = 192
        a("s_waitcnt vmcnt(0)")
        for j in range(4):
            a(f"v_lshlrev_b32 v{CA+2*j}, 16, v{240+j}")
            a(f"v_and_b32 v{CA+2*j+1}, 0xffff0000, v{240+j}")
        for i in range(1, 4):
            for j in range(4):
                a(f"v_lshlrev_b32 v{CT+2*j}, 16, v{240+4*i+j}")
                a(f"v_and_b32 v{CT+2*j+1}, 0xffff0000, v{240+4*i+j}")
            for j in range(4):
                a(f"v_pk_add_f32 {v(CA+2*j,2)}, {v(CA+2*j,2)}, {v(CT+2*j,2)}")
        a("s_nop 1")
        for mode in ("row_ror:4", "row_ror:8"):
            for j in range(8):
                a(f"v_add_f32_dpp v{CT+j}, v{CA+j}, v{CA+j} {mode} row_mask:0xf bank_mask:0xf")
            a("s_nop 1")
            for j in range(8):
                a(f"v_mov_b32 v{CA+j}, v{CT+j}")
            a("s_nop 1")
        for x in (16, 32):
            a(f"v_xor_b32 v200, {x}, v1")
            a("v_lshlrev_b32 v200, 2, v200")
            for j in range(8):
                a(f"ds_bpermute_b32 v{CT+j}, v200, v{CA+j}")
            a("s_waitcnt lgkmcnt(0)")
            for j in range(8):
                a(f"v_add_f32 v{CA+j}, v{CA+j}, v{CT+j}")
        srd(a, 96, 24, WS_CS, 16 * F * 4)
        a(f"s_mul_i32 s3, s44, {F*4}")
        a("s_lshl_b32 s45, s45, 7")
        a("s_add_u32 s3, s3, s45")
        a("v_lshlrev_b32 v200, 5, v1")
        a("s_mov_b64 exec, 15")
        a(f"buffer_store_dwordx4 {v(CA,4)}, v200, s[96:99], s3 offen")
        a(f"buffer_store_dwordx4 {v(CA+4,4)}, v200, s[96:99], s3 offen offset:16")
        a("s_mov_b64 exec, -1")
        a.label(lab_nc)
    a("v_add_u32 v7, s31, v2")
    a(f"v_lshlrev_b32 v7, 11, v7")
    a("v_lshl_add_u32 v7, v3, 3, v7")
    a("v_add_u32 v7, s33, v7")
    a("s_nop 7")
    a("s_nop 7")
    for g in range(4):
        for r in range(4):
            a(f"v_mul_f32 v{OA+4*g+r}, v{OA+4*g+r}, v5")
        a(f"v_cvt_pk_bf16_f32 v{OA+4*g}, v{OA+4*g}, v{OA+4*g+1}")
        a(f"v_cvt_pk_bf16_f32 v{OA+4*g+1}, v{OA+4*g+2}, v{OA+4*g+3}")
        a(f"buffer_store_dwordx2 {v(OA+4*g,2)}, v7, s[8:11], 0 offen offset:{16*g}")
    a.label(end)
    a("s_endpgm")
    return dict(name=name, grid=nwg + npf, block=256, lds=lds, desc=kernel_desc(name, 256 if colsum else 244))


def main():
    a = Asm()
    ks = []
    FUSE = 'nofuse' not in EXP
    SPLIT = 'split' in EXP
    L2PF = int(os.environ.get('L2PF', '0'))
    W1HI = int(os.environ.get('W1HI', '10'))
    W2HI = int(os.environ.get('W2HI', '-1'))
    SKLO = int(os.environ.get('SKLO', '23'))
    QA = 'noqa' not in EXP
    W2T = QA and 'w2t' in EXP
    if QA:
        sys.path.insert(0, os.path.dirname(os.path.abspath(__file__)))
        import qa
        WOHI = int(os.environ.get('WOHI', '3'))
        ks.append(qa.gen_qa(sys.modules[__name__], a, "qa_kernel", wpf=[("wo", D*D*2)]))
    elif FUSE:
        ks.append(gen_gemm(a, "qkv_kernel", 3 * D, D, 192, 0, "wqkv", "plain", "ws", WS_QKV, NSTAGE=4, RA=8, RBN=4,
                           ln='single', a_arg='x',
                           wpf=[("w1", D*F*2, W1HI), ("wo", D*D*2, W1HI-7)]))
    else:
        ks.append(gen_ln(a, "ln1_kernel", "x", 0, WS_Y1, False, pf=[("wqkv", D*3*D*2), ("wo", D*D*2)]))
        ks.append(gen_gemm(a, "qkv_kernel", 3 * D, D, 192, WS_Y1, "wqkv", "plain", "ws", WS_QKV, NSTAGE=4, RA=8, RBN=4))
    if not QA: ks.append(gen_attn(a, "attn_kernel", pf=[("w1", D*F*2), ("w2", F*D*2), ("wo", D*D*2)] if FUSE else [("w1", D*F*2), ("w2", F*D*2)], colsum=FUSE))
    ks.append(gen_gemm(a, "oproj_kernel", D, D, 64, WS_O, "wo", "plain", "ws", WS_H, res_arg="x", NSTAGE=6, stats_out=FUSE, spf=eval(os.environ.get('SPFO', 'None')),
                       atile=OT, lda=D*2*TX if OT else None, otile=OT, ldo=D*2*TX if OT else None, c3=WS_WOC if C3 else None))
    if FUSE:
        ks.append(gen_gemm(a, "ffn1_kernel", F, D, 224, WS_H, "w1", "gelu", "ws", WS_H1, bias_arg="b1", RA=8, RBN=4,
                           ln='double', pre=True, ldo=LDH1, zero_flags=SPLIT, wpf=[("w2", F*D*2, W2HI)] if W2HI else None, otile=QA, w2copy=W2T and 'qw2' not in EXP, epi2='oldepi' not in EXP,
                           atile=OT, lda=D*2*TX if OT else None, c3src=("w2", F, WS_W2C) if C3 else None))
    else:
        ks.append(gen_ln(a, "ln2_kernel", "ws", WS_H, WS_Y2, True))
        ks.append(gen_gemm(a, "ffn1_kernel", F, D, 224, WS_Y2, "w1", "gelu", "ws", WS_H1, bias_arg="b1", RA=8, RBN=4))
    if SPLIT:
        ks.append(gen_gemm(a, "ffn2_kernel", D, F, 128, WS_H1, "w2", "plain", "out", 0, res_arg="ws", res_off=WS_H,
                           bias_arg="b2", NSTAGE=5, lda=LDH1, RA=int(os.environ.get('SRA','8')), RBN=4, splitk=(SKLO, 56 - SKLO), atile=QA))
    else:
        ks.append(gen_gemm(a, "ffn2_kernel", D, F, 64, WS_H1, "ws" if W2T else "w2", "plain", "out", 0, res_arg="ws", res_off=WS_H,
                           atile=QA, w_off=WS_W2T if W2T else None, rtile=OT, c3=WS_W2C if C3 else None,
                           bias_arg="b2", NSTAGE=6, lda=LDH1, l2pf=L2PF, spf=eval(os.environ.get('SPF2', 'None')), RA=int(os.environ.get('F2RA','4')), RBN=32//int(os.environ.get('F2RA','4'))))
    hdr = []
    for k in ks:
        hdr.append(f"; @launch kernel={k['name']} grid=({k['grid']},1,1) block=({k['block']},1,1) lds={k['lds']}")
    txt = "\n".join(hdr) + "\n"
    txt += '.amdgcn_target "amdgcn-amd-amdhsa--gfx950"\n.text\n'
    txt += "\n".join(a.lines) + "\n"
    txt += '.section .rodata,"a"\n'
    for k in ks:
        txt += ".p2align 6\n" + k["desc"]
    open(OUT, "w").write(txt)


if __name__ == "__main__":
    main()
```

```python
import math, struct, os


def gen_qa(G, a, name, wpf=None):
    v, s, srd, hex_f32 = G.v, G.s, G.srd, G.hex_f32
    ARG, EXP = G.ARG, G.EXP
    S, D, F, DH = G.S, G.D, G.F, G.DH
    MB = 1 << 20
    WS_RS = 3 * MB
    KFO = 65536
    WS_KV = 4 * MB
    K = D; N = 3 * D
    BM, BN, BK, NSTAGE = 256, 96, 64, 3
    MT, NTW, RB = 4, 6, 64
    ABYTES = BM * BK * 2; BBYTES = BK * BN * 2; STAGE = ABYTES + BBYTES
    PA, PB = 8, 3
    P = PA + PB
    NS = K // BK
    lda = K * 2
    XQ, PK, PV, OQ, OK_, OV = 49152, 65536, 81920, 98304, 114688, 131072
    RTAB = 147456; CTAB = 149504; STG = 149888; STAT = 149952; NONCE = 149960; STAT2 = 150016
    lds = 163840
    NPOLL = int(os.environ.get('NPOLL', '48'))
    vXb = [2, 3]; vWb = list(range(4, 10)); vXc = [10, 11]; vWc = list(range(12, 18))
    vT = list(range(18, 26))
    FX = [28, 44]; FW = [60, 84]; ACC = 108; CSA = 204; ONE = 212; PFD = 216; PFV = 220
    QF = 224
    XPA, XPB = 221, 222
    DUM = 232
    LA = int(os.environ.get('XLA', '5'))
    QW2 = 'qw2' in EXP
    SIDEATT = os.environ.get('SIDEAT', 'x') == 'att'
    W1S = 164; W2S = [232, 236, 240, 244, 248, 252, 196]
    t0, t1, t2, t3 = vT[0], vT[1], vT[2], vT[3]
    vA = list(range(2, 10)); vB = list(range(10, 13))

    def acc(nt, mt):
        return ACC + 4 * (nt * MT + mt)

    def stamp(i):
        if 'itst' in EXP and i in (4, 5, 6): return
        if 'stamp' in EXP:
            a(f"s_memtime s[{60+2*i}:{61+2*i}]")
            if i >= 4: a("s_waitcnt lgkmcnt(0)")

    def stamp_out():
        if 'stamp' not in EXP: return
        a("s_waitcnt lgkmcnt(0)")
        srd(a, 80, 24, 200 * MB, 1 << 20)
        a("s_lshl_b32 s3, s2, 3")
        a("s_add_u32 s3, s3, s49")
        a("s_lshl_b32 s3, s3, 6")
        a("v_mov_b32 v2, s3")
        a("s_lshl_b32 s3, s101, 4")
        a("s_or_b32 s61, s3, s45")
        a("s_lshl_b32 s3, s51, 8")
        a("s_or_b32 s61, s3, s61")
        for i in range(8):
            a(f"v_mov_b32 v4, s{60+2*i}")
            a(f"v_mov_b32 v5, s{61+2*i}")
            a(f"buffer_store_dwordx2 v[4:5], v2, s[80:83], 0 offen offset:{8*i}")
            a("s_nop 1")

    def stats_load(Dr, T, srow):
        a(f"v_lshlrev_b32 {v(T)}, 5, v1")
        a(f"s_lshl_b32 s3, s{srow}, 11")
        for r in range(2):
            for j in range(2):
                a(f"buffer_load_dwordx4 {v(Dr+8*r+4*j,4)}, {v(T)}, s[4:7], s3 offen offset:{2048*r+16*j}")

    def stats_math(Dr, T):
        A0 = T; A1 = T + 4; O1 = T + 8; AD = T + 9
        a(f"v_mov_b32 {v(O1)}, 0x3f803f80")
        for j in range(4):
            a(f"v_mov_b32 {v(A0+j)}, 0")
        for r in range(2):
            for j in range(8):
                d = v(Dr + 8 * r + j)
                a(f"v_dot2_f32_bf16 {v(A0+2*r)}, {d}, {v(O1)}, {v(A0+2*r)}")
                a(f"v_dot2_f32_bf16 {v(A0+2*r+1)}, {d}, {d}, {v(A0+2*r+1)}")
        a("s_nop 3")
        cur, oth = A0, A1
        for mode in ("quad_perm:[1,0,3,2]", "quad_perm:[2,3,0,1]", "row_half_mirror", "row_mirror"):
            for j in range(4):
                a(f"v_add_f32_dpp {v(oth+j)}, {v(cur+j)}, {v(cur+j)} {mode} row_mask:0xf bank_mask:0xf")
            a("s_nop 1")
            cur, oth = oth, cur
        assert cur == A0
        for x in (16, 32):
            a(f"v_xor_b32 {v(AD)}, {x}, v1")
            a(f"v_lshlrev_b32 {v(AD)}, 2, {v(AD)}")
            for j in range(4):
                a(f"ds_bpermute_b32 {v(A1+j)}, {v(AD)}, {v(A0+j)}")
            a("s_waitcnt lgkmcnt(0)")
            for j in range(4):
                a(f"v_add_f32 {v(A0+j)}, {v(A0+j)}, {v(A1+j)}")
        for r in range(2):
            sm, sq = A0 + 2 * r, A0 + 2 * r + 1
            a(f"v_mul_f32 {v(sm)}, {hex_f32(1.0/K)}, {v(sm)}")
            a(f"v_mul_f32 {v(sq)}, {hex_f32(1.0/K)}, {v(sq)}")
            a(f"v_fma_f32 {v(sq)}, -{v(sm)}, {v(sm)}, {v(sq)}")
            a(f"v_max_f32 {v(sq)}, 0, {v(sq)}")
            a(f"v_add_f32 {v(sq)}, {hex_f32(1e-5)}, {v(sq)}")
            a(f"v_rsq_f32 {v(sq)}, {v(sq)}")
            a("s_nop 0")
            a(f"v_mul_f32 {v(A1)}, {v(sm)}, {v(sq)}")
            a(f"v_mov_b32 {v(sm)}, {v(sq)}")
            a(f"v_sub_f32 {v(sq)}, 0, {v(A1)}")

    def local_stats(Dr, T):
        lp = a.newlabel("L_ls")
        a("s_mov_b32 s101, 1")
        a("s_lshl_b32 s46, s49, 5")
        a("s_add_u32 s47, s46, s98")
        a("s_mov_b32 s52, 16")
        a.label(lp)
        stats_load(Dr, T, 47)
        a("s_waitcnt vmcnt(0)")
        stats_math(Dr, T)
        a("s_lshl_b32 s3, s46, 3")
        a(f"s_add_u32 s3, s3, {RTAB}")
        a(f"v_mov_b32 {v(T+9)}, s3")
        a(f"ds_write_b128 {v(T+9)}, {v(T,4)}")
        a("s_add_u32 s46, s46, 2")
        a("s_add_u32 s47, s47, 2")
        a("s_sub_u32 s52, s52, 1")
        a("s_cmp_lg_u32 s52, 0")
        a(f"s_cbranch_scc1 {lp}")
        a("s_waitcnt lgkmcnt(0)")
        a("s_barrier")

    G.kernel_header(a, name)
    end = a.newlabel("L_end")
    stamp(0)
    lab_loader = a.newlabel("L_loader")
    lab_att = a.newlabel("L_att")
    a("s_cmp_ge_u32 s2, 256")
    a(f"s_cbranch_scc1 {end}")
    a(f"s_load_dwordx2 s[24:25], s[0:1], {ARG['ws']}")
    a(f"s_load_dwordx2 s[58:59], s[0:1], {ARG['x']}")
    a(f"s_load_dwordx2 s[26:27], s[0:1], {ARG['wqkv']}")
    a("s_memrealtime s[34:35]")
    a("s_and_b32 s3, s2, 7")
    a("s_lshr_b32 s46, s2, 3")
    a("s_and_b32 s29, s3, 3")
    a("s_lshl_b32 s29, s29, 3")
    a("s_and_b32 s47, s46, 7")
    a("s_add_u32 s29, s29, s47")
    a("s_lshr_b32 s28, s3, 2")
    a("s_lshl_b32 s28, s28, 2")
    a("s_lshr_b32 s47, s46, 3")
    a("s_add_u32 s28, s28, s47")
    a("s_lshl_b32 s99, s28, 5")
    a("s_add_u32 s99, s99, s29")
    a("s_lshl_b32 s98, s28, 8")
    a("v_and_b32 v1, 63, v0")
    a(f"v_lshrrev_b32 {v(t0)}, 6, v0")
    a("s_nop 0")
    a(f"v_readfirstlane_b32 s49, {v(t0)}")
    a("s_nop 3")
    a("s_and_b32 s30, s49, 3")
    a("s_mov_b32 s45, 1")
    a("s_mov_b32 s101, 0")
    a("s_mov_b32 s50, 0")
    a("s_mov_b32 s51, 0")
    a(f"s_mov_b32 s100, {OQ}")

    def build_srds():
        a("s_waitcnt lgkmcnt(0)")
        srd(a, 4, 58, 0, S * D * 2)
        srd(a, 8, 26, 0, K * N * 2)
        srd(a, 12, 24, G.WS_O, S * D * 2 * (G.TX if G.OT else 1))
        srd(a, 16, 24, WS_KV, 256 * 32768)
        a("s_add_u32 s20, s34, 0x1000000")
        a("s_addc_u32 s21, s35, 0")
        srd(a, 36, 24, WS_RS, 131072)

    a("s_cmp_ge_u32 s49, 4")
    a(f"s_cbranch_scc1 {lab_loader}")

    build_srds()
    a("s_lshl_b32 s3, s2, 2")
    a("s_add_u32 s93, s3, s30")
    for q, (arg, nbytes) in enumerate(wpf):
        a(f"s_load_dwordx2 s[{76+2*q}:{77+2*q}], s[0:1], {ARG[arg]}")
    a("s_waitcnt lgkmcnt(0)")
    def wsel(q):
        arg, nbytes = wpf[q]
        srd(a, 84, 76 + 2 * q, 0, nbytes)
        a(f"s_mul_i32 s92, s93, {nbytes//1024}")
    wsel(0)
    if 'qcpf' in EXP:
        lh = a.newlabel("L_pc")
        a("s_getpc_b64 s[46:47]")
        a.label(lh)
        a(f"s_sub_u32 s46, s46, {lh}-{name}")
        a("s_subb_u32 s47, s47, 0")
        a("s_lshr_b32 s3, s2, 3")
        a("s_lshl_b32 s3, s3, 2")
        a("s_add_u32 s3, s3, s30")
        a("s_lshl_b32 s3, s3, 10")
        a(f"s_min_u32 s3, s3, {end}-{name}-1024")
        a(f"v_lshlrev_b32 {v(t0)}, 4, v1")
        a(f"v_add_u32 {v(t0)}, s3, {v(t0)}")
        a(f"global_load_dwordx4 {v(DUM,4)}, {v(t0)}, s[46:47]")
    SPF = 'oldxla' not in EXP
    if SPF:
        a("s_lshr_b32 s3, s2, 3")
        a("s_lshl_b32 s3, s3, 2")
        a("s_add_u32 s3, s3, s30")
        a(f"v_lshrrev_b32 {v(t0)}, 2, v1")
        a(f"v_and_b32 {v(t1)}, 3, v1")
        a(f"v_lshlrev_b32 {v(t1)}, 7, {v(t1)}")
        a("s_lshr_b32 s46, s28, 2")
        a("s_lshl_b32 s46, s46, 10")
        a("s_lshl_b32 s47, s3, 4")
        a("s_add_u32 s46, s46, s47")
        a("s_lshl_b32 s40, s46, 11")
        a("s_sub_u32 s46, s3, 64")
        a("s_lshr_b32 s47, s46, 4")
        a("s_and_b32 s46, s46, 15")
        a(f"s_mul_i32 s46, s46, {16*N*2}")
        a("s_lshl_b32 s47, s47, 11")
        a("s_add_u32 s46, s46, s47")
        a("s_lshr_b32 s47, s29, 3")
        a("s_lshl_b32 s47, s47, 9")
        a("s_add_u32 s46, s46, s47")
        a("s_cmp_ge_u32 s3, 112")
        a("s_cselect_b32 s46, 0x60000000, s46")
        a(f"s_mov_b32 s41, {256*N*2}")
        a(f"s_mov_b32 s47, {N*2}")
        a("s_cmp_lt_u32 s3, 64")
        a("s_cselect_b32 s40, s40, s46")
        a("s_cselect_b32 s41, 512, s41")
        a("s_cselect_b32 s47, 2048, s47")
        for i in range(4):
            a(f"s_cselect_b32 s{88+i}, s{4+i}, s{8+i}")
        a(f"v_mul_u32_u24 {v(t0)}, s47, {v(t0)}")
        a(f"v_add_u32 {v(XPA)}, {v(t0)}, {v(t1)}")

        def spf():
            a(f"buffer_load_dword {v(DUM)}, {v(XPA)}, s[88:91], s40 offen")
            a("s_add_u32 s40, s40, s41")

        def xpf(): pass
        SPE = eval(os.environ.get('SPE', '(99,99,15,11,7)'))
        if len(SPE) == 5:
            a("s_cselect_b32 exec_lo, 0xcccccccc, -1")
            a("s_cselect_b32 exec_hi, 0xcccccccc, -1")
            a("s_lshr_b32 s3, s41, 1")
            a("s_sub_u32 s40, s40, s3")
        for i, e in enumerate(SPE):
            if e == 99: spf()
            if i == 0 and len(SPE) == 5: a("s_mov_b64 exec, -1")
    else:
        SPE = ()
        a("s_lshr_b32 s3, s2, 3")
        a("s_lshl_b32 s3, s3, 2")
        a("s_add_u32 s3, s3, s30")
        a("s_lshr_b32 s46, s28, 2")
        a("s_lshl_b32 s46, s46, 10")
        a("s_lshl_b32 s47, s3, 3")
        a("s_add_u32 s46, s46, s47")
        a(f"v_lshrrev_b32 {v(t0)}, 3, v1")
        a(f"v_add_u32 {v(t0)}, s46, {v(t0)}")
        a(f"v_lshlrev_b32 {v(t0)}, 11, {v(t0)}")
        a(f"v_and_b32 {v(t1)}, 7, v1")
        a(f"v_lshl_add_u32 {v(XPA)}, {v(t1)}, 4, {v(t0)}")
        a("s_lshr_b32 s46, s3, 5")
        a("s_and_b32 s47, s3, 31")
        a("s_lshl_b32 s47, s47, 1")
        a(f"v_lshrrev_b32 {v(t0)}, 5, v1")
        a(f"v_add_u32 {v(t0)}, s47, {v(t0)}")
        a(f"v_mul_u32_u24 {v(t0)}, {N*2}, {v(t0)}")
        a(f"v_and_b32 {v(t1)}, 31, v1")
        a(f"v_lshl_add_u32 {v(t0)}, {v(t1)}, 4, {v(t0)}")
        a("s_lshl_b32 s46, s46, 11")
        a("s_lshr_b32 s47, s29, 3")
        a("s_lshl_b32 s47, s47, 9")
        a("s_add_u32 s46, s46, s47")
        a("s_cmp_ge_u32 s3, 96")
        a("s_cselect_b32 s46, 0x7f000000, s46")
        a(f"v_add_u32 {v(XPB)}, s46, {v(t0)}")
        a(f"s_mov_b32 s40, {2*BK*2}")
        a(f"s_mov_b32 s41, {2*BK*N*2}")

        def xpf():
            if LA == 0: return
            a(f"buffer_load_dwordx4 {v(DUM,4)}, {v(XPA)}, s[4:7], s40 offen")
            a(f"buffer_load_dwordx4 {v(DUM,4)}, {v(XPB)}, s[8:11], s41 offen")
            a(f"s_add_u32 s40, s40, {BK*2}")
            a(f"s_add_u32 s41, s41, {BK*N*2}")
            a(f"s_min_u32 s40, s40, {(NS-1)*BK*2}")
            a(f"s_min_u32 s41, s41, {(NS-1)*BK*N*2}")
        for _ in range(2, LA + 1):
            xpf()
    lab_cpass = a.newlabel("L_cpass")
    a.label(lab_cpass)
    a(f"v_lshlrev_b32 {v(PFV)}, 4, v1")
    a(f"v_and_b32 {v(t0)}, 15, v1")
    a("s_lshl_b32 s3, s30, 6")
    a(f"v_add_u32 {v(t0)}, s3, {v(t0)}")
    a(f"v_lshlrev_b32 {v(t0)}, 7, {v(t0)}")
    a(f"v_lshrrev_b32 {v(t1)}, 4, v1")
    a(f"v_bfe_u32 {v(t2)}, v1, 1, 3")
    a(f"v_xor_b32 {v(t3)}, {v(t1)}, {v(t2)}")
    a(f"v_lshl_add_u32 {v(vXb[0])}, {v(t3)}, 4, {v(t0)}")
    a(f"v_xor_b32 {v(t3)}, 4, {v(t3)}")
    a(f"v_lshl_add_u32 {v(vXb[1])}, {v(t3)}, 4, {v(t0)}")
    a(f"v_bfe_u32 {v(t0)}, v1, 2, 2")
    a(f"v_lshl_add_u32 {v(t2)}, {v(t1)}, 3, {v(t0)}")
    a(f"v_and_b32 {v(t3)}, 1, {v(t1)}")
    a(f"v_mul_u32_u24 {v(t2)}, {RB}, {v(t2)}")
    a(f"v_and_b32 {v(t0)}, 3, v1")
    a(f"v_lshl_add_u32 {v(t2)}, {v(t0)}, 3, {v(t2)}")
    a(f"v_add_u32 {v(t2)}, {ABYTES}, {v(t2)}")
    for nt in range(NTW):
        blk, p = nt >> 1, nt & 1
        a(f"v_xor_b32 {v(t0)}, {p}, {v(t3)}")
        a(f"v_lshl_add_u32 {v(t0)}, {v(t0)}, 5, {v(t2)}")
        a(f"v_add_u32 {v(vWb[nt])}, {blk*64*RB}, {v(t0)}")
    for i in range(4 * MT * NTW + 8):
        a(f"v_mov_b32 v{ACC+i}, 0")
    for i in range(4):
        a(f"v_mov_b32 {v(ONE+i)}, 0x3f803f80")
    a("s_mov_b32 s42, 0")

    def set_cur():
        for kk in range(2):
            a(f"v_add_u32 {v(vXc[kk])}, s42, {v(vXb[kk])}")
        for nt in range(NTW):
            a(f"v_add_u32 {v(vWc[nt])}, s42, {v(vWb[nt])}")
        a(f"s_add_u32 s42, s42, {STAGE}")
        a(f"s_cmp_ge_u32 s42, {STAGE*NSTAGE}")
        a("s_cselect_b32 s42, 0, s42")

    def read_list(kk, f):
        L = []
        for nt in range(NTW):
            if nt < MT:
                L.append(f"ds_read_b128 {v(FX[f]+4*nt,4)}, {v(vXc[kk])} offset:{nt*2048}")
            for rd in range(2):
                L.append(f"ds_read_b64_tr_b16 {v(FW[f]+4*nt+2*rd,2)}, {v(vWc[nt])} offset:{kk*32*RB+rd*4*RB}")
        return L

    def mfma_list(f):
        L = []
        for nt in range(NTW):
            for mt in range(MT):
                L.append(f"v_mfma_f32_16x16x32_bf16 {v(acc(nt,mt),4)}, {v(FW[f]+4*nt,4)}, {v(FX[f]+4*mt,4)}, {v(acc(nt,mt),4)}")
        return L

    def cs_block(f, wv=None):
        if 'nocs' in EXP: return
        if wv is not None:
            a(f"v_mfma_f32_16x16x32_bf16 {v(CSA,4)}, {v(FW[f]+4*wv,4)}, {v(ONE,4)}, {v(CSA,4)}")
            if wv < 2:
                a(f"v_mfma_f32_16x16x32_bf16 {v(CSA+4,4)}, {v(FW[f]+4*(wv+4),4)}, {v(ONE,4)}, {v(CSA+4,4)}")
            return
        done = a.newlabel("L_cs")
        for w in range(4):
            nx = a.newlabel("L_csn")
            if w < 3:
                a(f"s_cmp_lg_u32 s30, {w}")
                a(f"s_cbranch_scc1 {nx}")
            a(f"v_mfma_f32_16x16x32_bf16 {v(CSA,4)}, {v(FW[f]+4*w,4)}, {v(ONE,4)}, {v(CSA,4)}")
            if w < 2:
                a(f"v_mfma_f32_16x16x32_bf16 {v(CSA+4,4)}, {v(FW[f]+4*(w+4),4)}, {v(ONE,4)}, {v(CSA+4,4)}")
            if w < 3:
                a(f"s_branch {done}")
                a.label(nx)
        a.label(done)

    def inter(kk, fr, fm, wv=None):
        R = read_list(kk, fr); Mm = mfma_list(fm)
        ri = 0
        for i in range(len(Mm)):
            a(Mm[i])
            if ri < len(R): a(R[ri]); ri += 1
        while ri < len(R): a(R[ri]); ri += 1
        cs_block(fm, wv)

    for e in SPE:
        if e == 98: spf()
    stamp(1)
    a("s_barrier")
    stamp(2)
    for e in SPE:
        if e == 97: spf()
    set_cur()
    for x in read_list(0, 0): a(x)
    a("s_waitcnt lgkmcnt(0)")
    inter(1, 1, 0)
    a("s_waitcnt lgkmcnt(0)")
    a(f"s_mov_b32 s48, {NS-1}")
    WOHI = int(os.environ.get('WOHI', '3'))
    EV = [(12, 'pub')] + [(WOHI - i, 'wo') for i in range(wpf[0][1] >> 20)] + [(e, 'spf') for e in SPE if e < 90]
    EV.sort(key=lambda e: -e[0])
    assert len(set(e[0] for e in EV)) == len(EV)
    a(f"s_mov_b32 s94, {EV[0][0]}")
    loops = [a.newlabel("L_cloop") for _ in range(4)]
    ldone = a.newlabel("L_cdone")
    for w in range(1, 4):
        a(f"s_cmp_eq_u32 s30, {w}")
        a(f"s_cbranch_scc1 {loops[w]}")
    rare = []
    for w in range(4):
        a.label(loops[w])
        a("s_barrier")
        set_cur()
        inter(0, 0, 1, w)
        xpf()
        a("s_waitcnt lgkmcnt(0)")
        inter(1, 1, 0, w)
        lpub = a.newlabel("L_pub"); lback = a.newlabel("L_pubb")
        a("s_cmp_eq_u32 s48, s94")
        a(f"s_cbranch_scc1 {lpub}")
        a.label(lback)
        rare.append(('pub', w, lpub, lback))
        if 'itst' in EXP:
            for sl, it in ((4, 12), (5, 8), (6, 4)):
                lx = a.newlabel("L_it")
                a(f"s_cmp_lg_u32 s48, {it}")
                a(f"s_cbranch_scc1 {lx}")
                a(f"s_memtime s[{60+2*sl}:{61+2*sl}]")
                a.label(lx)
        a("s_waitcnt lgkmcnt(0)")
        a("s_sub_u32 s48, s48, 1")
        a("s_cmp_lg_u32 s48, 0")
        a(f"s_cbranch_scc1 {loops[w]}")
        a(f"s_branch {ldone}")
    for kind, x, lab, lb in rare:
        a.label(lab)
        for ev in range(len(EV)):
            nxt_ = EV[ev+1][0] if ev + 1 < len(EV) else 0
            if EV[ev][1] == 'pub':
                pub_next = nxt_
                continue
            nx = a.newlabel("L_ev")
            a(f"s_cmp_lg_u32 s48, {EV[ev][0]}")
            a(f"s_cbranch_scc1 {nx}")
            if EV[ev][1] == 'wo':
                a(f"buffer_load_dwordx4 {v(DUM,4)}, {v(PFV)}, s[84:87], s92 offen")
                a("s_add_u32 s92, s92, 1024")
            else:
                spf()
            a(f"s_mov_b32 s94, {nxt_}")
            a(f"s_branch {lb}")
            a.label(nx)
        a(f"s_mov_b32 s94, {pub_next}")
        if True:
            a("s_cmp_lg_u32 s45, 1")
            a(f"s_cbranch_scc1 {lb}")
            a("s_memrealtime s[22:23]")
            a(f"v_and_b32 {v(t1)}, 1, v1")
            a(f"v_lshlrev_b32 {v(t0)}, 3, {v(t1)}")
            a(f"v_add_u32 {v(t0)}, {STG + 16*x}, {v(t0)}")
            a(f"ds_read_b64 {v(PFD,2)}, {v(t0)}")
            a("s_lshl_b32 s3, s29, 3")
            a("s_add_u32 s3, s3, s98")
            a(f"s_add_u32 s3, s3, {2*x}")
            a("s_lshl_b32 s3, s3, 4")
            a(f"v_lshlrev_b32 {v(t0)}, 4, {v(t1)}")
            a("s_waitcnt lgkmcnt(0)")
            a(f"v_mov_b32 {v(PFD+2)}, s22")
            a(f"v_mov_b32 {v(PFD+3)}, s23")
            a("s_mov_b64 exec, 3")
            if 'nostatflag' not in EXP: a(f"buffer_store_dwordx4 {v(PFD,4)}, {v(t0)}, s[36:39], s3 offen sc0 sc1")
            a("s_mov_b64 exec, -1")
        a(f"s_branch {lb}")
    a.label(ldone)
    stamp(3)
    cs_block(1)
    for x in mfma_list(1): a(x)
    a(f"v_lshrrev_b32 {v(t0)}, 4, v1")
    a(f"v_lshlrev_b32 {v(t0)}, 4, {v(t0)}")
    a("s_lshl_b32 s3, s30, 6")
    a(f"s_add_u32 s3, s3, {CTAB}")
    a(f"v_add_u32 {v(t1)}, s3, {v(t0)}")
    a("s_mov_b32 exec_lo, 0x00010001")
    a("s_mov_b32 exec_hi, 0x00010001")
    a(f"ds_write_b128 {v(t1)}, {v(CSA,4)}")
    lcs = a.newlabel("L_cs2")
    a("s_cmp_ge_u32 s30, 2")
    a(f"s_cbranch_scc1 {lcs}")
    a(f"ds_write_b128 {v(t1)}, {v(CSA+4,4)} offset:256")
    a.label(lcs)
    a("s_mov_b64 exec, -1")
    a(f"v_add_u32 {v(t0)}, {CTAB}, {v(t0)}")
    a(f"v_mov_b32 {v(t1)}, {STAT}")
    a("s_waitcnt lgkmcnt(0)")
    a("s_barrier")
    RT = FX[0]; RQ = RT + 8; CS = RQ + 8; GE = CS + 24
    assert GE + 8 <= ACC
    a(f"ds_read_b32 {v(t2)}, {v(t1)}")
    for nt in range(NTW):
        a(f"ds_read_b128 {v(CS+4*nt,4)}, {v(t0)} offset:{64*nt}")
    a("s_waitcnt lgkmcnt(0)")
    a(f"v_readfirstlane_b32 s3, {v(t2)}")
    a("s_nop 3")
    lok = a.newlabel("L_stok")
    a("s_cmp_eq_u32 s3, 1")
    a(f"s_cbranch_scc1 {lok}")
    local_stats(GE + 8, GE + 24)
    a.label(lok)
    a(f"v_and_b32 {v(t2)}, 15, v1")
    a("s_lshl_b32 s3, s30, 6")
    a(f"v_add_u32 {v(t2)}, s3, {v(t2)}")
    a(f"v_lshlrev_b32 {v(t0)}, 3, {v(t2)}")
    a(f"v_add_u32 {v(t0)}, {RTAB}, {v(t0)}")
    for mt in range(MT):
        a(f"ds_read_b64 {v(RT+2*mt,2)}, {v(t0)} offset:{128*mt}")
    a(f"v_lshlrev_b32 {v(t2)}, 6, {v(t2)}")
    a(f"v_add_u32 {v(t2)}, s100, {v(t2)}")
    a(f"v_lshrrev_b32 {v(t3)}, 4, v1")
    DV = vT[4]; DQ0 = vT[5]; DQ1 = vT[6]
    a(f"v_lshl_add_u32 {v(DV)}, {v(t3)}, 3, {v(t2)}")
    a(f"v_lshrrev_b32 {v(t0)}, 1, {v(t3)}")
    a(f"v_bfe_u32 {v(t1)}, v1, 2, 2")
    a(f"v_xor_b32 {v(t0)}, {v(t0)}, {v(t1)}")
    a(f"v_lshl_add_u32 {v(t0)}, {v(t0)}, 4, {v(t2)}")
    a(f"v_and_b32 {v(t1)}, 1, {v(t3)}")
    a(f"v_lshl_add_u32 {v(DQ0)}, {v(t1)}, 3, {v(t0)}")
    a(f"v_xor_b32 {v(DQ1)}, 32, {v(DQ0)}")
    sc = (DH ** -0.5) * math.log2(math.e)
    a(f"s_mov_b32 s52, {hex_f32(sc)}")
    a("s_waitcnt lgkmcnt(0)")
    for i in range(8):
        a(f"v_mul_f32 {v(RQ+i)}, s52, {v(RT+i)}")
    for nt in range(NTW):
        R_ = RQ if nt < 2 else RT
        for mp in range(0, MT, 2):
            c0 = acc(nt, mp)
            for q in range(2):
                for j in range(2):
                    a(f"v_pk_mul_f32 {v(GE+4*q+2*j,2)}, {v(CS+4*nt+2*j,2)}, {v(R_+2*(mp+q),2)} op_sel:[0,1] op_sel_hi:[1,1]")
            for q in range(2):
                for j in range(2):
                    cc = v(c0 + 4 * q + 2 * j, 2)
                    a(f"v_pk_fma_f32 {cc}, {cc}, {v(R_+2*(mp+q),2)}, {v(GE+4*q+2*j,2)} op_sel:[0,0,0] op_sel_hi:[1,0,1]")
            for j in range(4):
                a(f"v_cvt_pk_bf16_f32 {v(c0+j)}, {v(c0+2*j)}, {v(c0+2*j+1)}")
            for q in range(2):
                sec = nt >> 1
                if sec == 2:
                    a(f"ds_write_b64 {v(DV)}, {v(c0+2*q,2)} offset:{(mp+q)*1024 + sec*16384 + 32*(nt&1)}")
                else:
                    a(f"ds_write_b64 {v(DQ1 if nt & 1 else DQ0)}, {v(c0+2*q,2)} offset:{(mp+q)*1024 + sec*16384}")
    a("s_waitcnt vmcnt(0) lgkmcnt(0)")
    stamp(4)
    a("s_barrier")
    a(f"s_branch {lab_att}")

    a.label(lab_loader)
    a("s_setprio 2")
    a(f"s_load_dwordx2 s[94:95], s[0:1], {ARG['w1']}")
    a(f"s_load_dwordx2 s[96:97], s[0:1], {ARG['wo' if G.C3 else 'w2']}")
    assert not (G.C3 and QW2)
    LSD = 40; LST = 56; LNO = 68; LTB = 72
    a("s_lshl_b32 s3, s30, 6")
    a(f"v_lshrrev_b32 {v(t0)}, 3, v1")
    a(f"v_add_u32 {v(t0)}, s3, {v(t0)}")
    for i in range(PA):
        a(f"v_add_u32 {v(t1)}, {8*i}, {v(t0)}")
        a(f"v_lshrrev_b32 {v(t2)}, 1, {v(t1)}")
        a(f"v_and_b32 {v(t2)}, 7, {v(t2)}")
        a(f"v_and_b32 {v(t3)}, 7, v1")
        a(f"v_xor_b32 {v(t2)}, {v(t2)}, {v(t3)}")
        a(f"v_add_u32 {v(t1)}, s98, {v(t1)}")
        a(f"v_mul_u32_u24 {v(t1)}, {lda}, {v(t1)}")
        a(f"v_lshl_add_u32 {v(vA[i])}, {v(t2)}, 4, {v(t1)}")
    a("s_lshl_b32 s3, s29, 6")
    for i in range(PB):
        a(f"s_mul_i32 s46, s30, {PB}")
        a(f"s_add_u32 s46, s46, {i}")
        a("s_lshr_b32 s47, s46, 2")
        a("s_and_b32 s46, s46, 3")
        a("s_lshl_b32 s46, s46, 4")
        a("s_lshl_b32 s47, s47, 11")
        a("s_add_u32 s47, s47, s3")
        a(f"v_lshrrev_b32 {v(t0)}, {3 if 'bfull' in EXP else 2}, v1")
        a(f"v_add_u32 {v(t0)}, s46, {v(t0)}")
        a(f"v_and_b32 {v(t1)}, {7 if 'bfull' in EXP else 3}, v1")
        if 'bfull' in EXP: a("s_and_b32 s47, s47, 0xffffff80")
        a(f"v_bfe_u32 {v(t2)}, {v(t0)}, 3, 1")
        a(f"v_lshlrev_b32 {v(t2)}, 1, {v(t2)}")
        a(f"v_xor_b32 {v(t1)}, {v(t1)}, {v(t2)}")
        a(f"v_mul_u32_u24 {v(t0)}, {N*2}, {v(t0)}")
        a(f"v_lshl_add_u32 {v(t0)}, {v(t1)}, 4, {v(t0)}")
        a(f"v_add_u32 {v(vB[i])}, s47, {v(t0)}")
    a(f"s_mul_i32 s31, s30, {PA*1024}")
    a(f"s_mul_i32 s32, s30, {PB*1024}")
    a(f"s_add_u32 s32, s32, {ABYTES}")
    build_srds()
    a("s_lshl_b32 s46, s29, 3")
    a("s_add_u32 s46, s46, s98")
    a("s_lshl_b32 s47, s30, 1")
    a("s_add_u32 s47, s47, s46")
    stats_load(LSD, LST, 47)
    lab_lpass = a.newlabel("L_lpass")
    a.label(lab_lpass)
    a("s_mov_b32 s40, 0")
    a("s_mov_b32 s41, 0")
    a("s_mov_b32 s43, 0")
    a("s_mov_b32 s53, 0")

    def dma():
        a("s_add_u32 s33, s43, s31")
        for i in range(PA):
            a(f"s_add_u32 m0, s33, {i*1024}")
            a("s_nop 0")
            a(f"buffer_load_dwordx4 {v(vA[i])}, s[4:7], s40 offen lds")
        a("s_add_u32 s33, s43, s32")
        for i in range(PB):
            a(f"s_add_u32 m0, s33, {i*1024}")
            a("s_nop 0")
            a(f"buffer_load_dwordx4 {v(vB[i])}, s[8:11], s41 offen lds")
        a(f"s_add_u32 s40, s40, {BK*2}")
        a(f"s_add_u32 s41, s41, {BK*N*2}")
        a(f"s_add_u32 s43, s43, {STAGE}")
        a(f"s_cmp_ge_u32 s43, {STAGE*NSTAGE}")
        a("s_cselect_b32 s43, 0, s43")

    nloop = NS - NSTAGE + 1
    lab_l2p = a.newlabel("L_l2p"); lab_lend = a.newlabel("L_lend")
    a("s_cmp_lg_u32 s45, 1")
    a(f"s_cbranch_scc1 {lab_l2p}")
    stamp(1)
    Q = []
    def dmaq(j):
        dma(); Q.extend([('d', j)] * P)
    def waitq(*tags):
        last = max(i for i, x in enumerate(Q) if x in tags)
        a(f"s_waitcnt vmcnt({len(Q) - 1 - last})")
    for j in range(NSTAGE - 1):
        dmaq(j)
    stamp(2)
    SA1, SA2 = 218, 219
    a("s_lshl_b32 s92, s99, 2")
    a("s_add_u32 s92, s92, s30")
    srd(a, 76, 94, 0, D * F * 2)
    srd(a, 88, 96, 0, D * D * 2 if G.C3 else F * D * 2)
    a(f"v_lshrrev_b32 {v(t0)}, 3, v1")
    a(f"v_and_b32 {v(t1)}, 7, v1")
    a(f"v_lshlrev_b32 {v(t1)}, 4, {v(t1)}")
    a(f"v_lshl_add_u32 {v(SA2)}, {v(t0)}, 11, {v(t1)}")
    a("s_lshr_b32 s3, s92, 6")
    a("s_lshl_b32 s3, s3, 7")
    a("s_and_b32 s46, s92, 63")
    a(f"s_mul_i32 s46, s46, {56*D*2}")
    a("s_add_u32 s3, s3, s46")
    a(f"v_add_u32 {v(SA2)}, s3, {v(SA2)}")
    a("s_min_u32 s46, s92, 895")
    a(f"s_mul_hi_u32 s93, s46, {((1 << 32) + 55) // 56}")
    a("s_mul_i32 s3, s93, 56")
    a("s_sub_u32 s84, s46, s3")
    a(f"v_mul_u32_u24 {v(t0)}, {F*2}, {v(t0)}")
    a(f"v_add_u32 {v(SA1)}, {v(t0)}, {v(t1)}")
    a(f"s_mul_i32 s3, s93, {64*F*2}")
    a("s_lshl_b32 s46, s84, 7")
    a("s_add_u32 s3, s3, s46")
    a(f"v_add_u32 {v(SA1)}, s3, {v(SA1)}")
    side = [(W1S + 4 * j, SA1, 76, 8 * j * F * 2) for j in range(8)] + ([(W2S[j], SA2, 88, 8 * j * D * 2) for j in range(7)] if QW2 else [])
    SIDE0 = int(os.environ.get('SIDE0', '16')); SPI = int(os.environ.get('SPI', '1'))
    def sideq():
        if not side: return
        d, av, sr, off = side.pop(0)
        a(f"s_mov_b32 s3, {off}")
        a(f"buffer_load_dwordx4 {v(d,4)}, {v(av)}, s[{sr}:{sr+3}], s3 offen")
        Q.append('s')
    for j in range(NS):
        c = nloop - j
        waitq(('d', j), 't')
        a("s_barrier")
        if c == 2:
            l1 = a.newlabel("L_l1")
            a("s_cmp_lg_u32 s30, 0")
            a(f"s_cbranch_scc1 {l1}")
            a(f"v_lshlrev_b32 {v(t0)}, 4, v1")
            a("s_lshl_b32 s3, s28, 12")
            for jj in range(4):
                a(f"buffer_load_dwordx4 {v(LTB+4*jj,4)}, {v(t0)}, s[36:39], s3 offen offset:{1024*jj} sc0 sc1")
            a.label(l1)
            Q.append('t')
        if c == 1:
            l2 = a.newlabel("L_l2")
            a("s_cmp_lg_u32 s30, 0")
            a(f"s_cbranch_scc1 {l2}")
            a("s_mov_b64 s[54:55], exec")
            for jj in range(4):
                a(f"v_cmp_lt_u64 vcc, s[34:35], {v(LTB+4*jj+2,2)}")
                a(f"v_cmp_gt_u64 s[56:57], s[20:21], {v(LTB+4*jj+2,2)}")
                a("s_nop 3")
                a("s_and_b64 s[54:55], s[54:55], vcc")
                a("s_and_b64 s[54:55], s[54:55], s[56:57]")
            a("s_cmp_lg_u64 s[54:55], exec")
            a(f"s_cbranch_scc1 {l2}")
            a("s_mov_b32 s53, 1")
            a(f"v_lshlrev_b32 {v(t0)}, 3, v1")
            a(f"v_add_u32 {v(t0)}, {RTAB}, {v(t0)}")
            for jj in range(4):
                a(f"ds_write_b64 {v(t0)}, {v(LTB+4*jj,2)} offset:{512*jj}")
            a("s_waitcnt lgkmcnt(0)")
            a.label(l2)
        if j + NSTAGE - 1 < NS:
            dmaq(j + NSTAGE - 1)
        if j >= SIDE0:
            for _ in range(SPI): sideq()
        if j == 0:
            stats_math(LSD, LST)
            a("s_lshl_b32 s3, s30, 4")
            a(f"s_add_u32 s3, s3, {STG}")
            a(f"v_mov_b32 {v(LST+9)}, s3")
            a(f"ds_write_b128 {v(LST+9)}, {v(LST,4)}")
            a("s_waitcnt lgkmcnt(0)")
    while side and not SIDEATT: sideq()
    if G.C3:
        a(f"v_lshrrev_b32 {v(t0)}, 3, v1")
        a(f"v_and_b32 {v(t1)}, 7, v1")
        a(f"v_lshlrev_b32 {v(t1)}, 4, {v(t1)}")
        a(f"v_lshl_add_u32 {v(SA2)}, {v(t0)}, 10, {v(t1)}")
        a("s_lshl_b32 s3, s92, 11")
        a("s_mov_b64 exec, 0xffff")
        a(f"buffer_load_dwordx4 {v(W2S[0],4)}, {v(SA2)}, s[88:91], s3 offen offset:384")
        a("s_mov_b64 exec, -1")
        if G.QC3:
            a(f"s_load_dwordx2 s[96:97], s[0:1], {ARG['w2']}")
            a("s_mul_i32 s3, s92, 7168")
            a("s_waitcnt lgkmcnt(0)")
            srd(a, 88, 96, 0, F * D * 2)
            a("s_mov_b32 exec_hi, 0x00ffffff")
            a(f"buffer_load_dwordx4 {v(W2S[1],4)}, {v(SA2)}, s[88:91], s3 offen offset:384")
            a("s_mov_b32 exec_hi, -1")
            a("s_mul_i32 s3, s92, 7")
            a(f"v_add_u32 {v(t2)}, s3, {v(t0)}")
            a(f"v_and_b32 {v(t3)}, 1, {v(t2)}")
            a(f"v_mul_u32_u24 {v(t3)}, {F*256}, {v(t3)}")
            a(f"v_lshrrev_b32 {v(t2)}, 1, {v(t2)}")
            a(f"v_lshl_add_u32 {v(t2)}, {v(t2)}, 8, {v(t1)}")
            a(f"v_add_u32 {v(W2S[2])}, {v(t2)}, {v(t3)}")
        a(f"v_lshl_add_u32 {v(SA2)}, {v(t0)}, 18, {v(t1)}")
    a(f"s_branch {lab_lend}")
    a.label(lab_l2p)
    for _ in range(NSTAGE - 1):
        dma()
    a(f"s_mov_b32 s48, {nloop}")
    lloop = a.newlabel("L_lloop")
    a.label(lloop)
    a(f"s_waitcnt vmcnt({(NSTAGE-2)*P})")
    a("s_barrier")
    dma()
    a("s_sub_u32 s48, s48, 1")
    a("s_cmp_lg_u32 s48, 0")
    a(f"s_cbranch_scc1 {lloop}")
    for j in range(NS - NSTAGE + 1, NS):
        a(f"s_waitcnt vmcnt({(NS-1-j)*P})")
        a("s_barrier")
    a.label(lab_lend)
    stamp(3)
    l4 = a.newlabel("L_l4")
    a(f"v_mov_b32 {v(t1)}, {STAT}")
    a("s_cmp_lg_u32 s30, 0")
    a(f"s_cbranch_scc1 {l4}")
    a(f"v_mov_b32 {v(t0)}, s53")
    a(f"ds_write_b32 {v(t1)}, {v(t0)}")
    for j in range(4):
        a(f"v_mov_b32 {v(LTB+j)}, 0")
    a(f"ds_write_b128 {v(t1)}, {v(LTB,4)} offset:{STAT2-STAT}")
    a("s_waitcnt lgkmcnt(0)")
    a.label(l4)
    a("s_barrier")
    a(f"ds_read_b32 {v(t2)}, {v(t1)}")
    a("s_waitcnt lgkmcnt(0)")
    a(f"v_readfirstlane_b32 s3, {v(t2)}")
    a("s_nop 3")
    lok = a.newlabel("L_stok")
    a("s_cmp_eq_u32 s3, 1")
    a(f"s_cbranch_scc1 {lok}")
    local_stats(LSD, LST)
    a.label(lok)
    stamp(4)
    a("s_barrier")

    a.label(lab_att)
    CM, MK1, MK2, SA, SB = 16, 32, 48, 64, 80
    KB_ = [96, 104]; VB_ = [112, 120]; PP = [128, 136]; OA = 144; SUM = 160
    CA = 64; CT = 72; PUB = 200; VM = 216
    vK1 = [2, 3]; vV1 = 4; vK2 = [5, 6]; vV2 = 7; vQQ = 8; vHH = 9; vX32 = 10; vNEG = 11; vL16 = 12
    T0, T1, T2 = 13, 14, 15
    vNO = 217
    lab_start = a.newlabel("L_astart"); lab_reload = a.newlabel("L_reload"); lab_fin = a.newlabel("L_fin")
    a("s_setprio 0")
    a("s_sub_u32 s3, 11, s49")
    a("s_cmp_lt_u32 s49, 4")
    a("s_cselect_b32 s44, s49, s3")
    a(f"v_and_b32 {v(vQQ)}, 31, v1")
    a(f"v_lshrrev_b32 {v(vHH)}, 5, v1")
    a(f"v_lshlrev_b32 {v(vL16)}, 4, v1")
    a(f"v_xor_b32 {v(vX32)}, 32, v1")
    a(f"v_lshlrev_b32 {v(vX32)}, 2, {v(vX32)}")
    a(f"v_mov_b32 {v(vNEG)}, 0xf149f2ca")
    a(f"v_mov_b32 {v(VM)}, 0")
    a(f"v_bfe_u32 {v(T0)}, v1, 2, 2")
    a(f"v_xor_b32 {v(T0)}, {v(T0)}, {v(vHH)}")
    a(f"v_lshlrev_b32 {v(T1)}, 6, {v(vQQ)}")
    a(f"v_lshl_add_u32 {v(T0)}, {v(T0)}, 4, {v(T1)}")
    a("s_lshl_b32 s3, s44, 11")
    a(f"s_add_u32 s46, s3, {OK_ - 7*2048}")
    a(f"v_add_u32 {v(vK1[0])}, s46, {v(T0)}")
    a(f"v_xor_b32 {v(vK1[1])}, 32, {v(vK1[0])}")
    a(f"s_add_u32 s46, s3, {PK}")
    a(f"v_add_u32 {v(vK2[0])}, s46, {v(T0)}")
    a(f"v_xor_b32 {v(vK2[1])}, 32, {v(vK2[0])}")
    a(f"s_add_u32 s46, s3, {OQ}")
    a(f"v_add_u32 {v(T0)}, s46, {v(T0)}")
    a(f"v_bfe_u32 {v(T1)}, v1, 2, 2")
    a(f"v_lshl_add_u32 {v(T1)}, {v(vHH)}, 2, {v(T1)}")
    a(f"v_lshlrev_b32 {v(T1)}, 6, {v(T1)}")
    a(f"v_bfe_u32 {v(T2)}, v1, 4, 1")
    a(f"v_lshl_add_u32 {v(T1)}, {v(T2)}, 5, {v(T1)}")
    a(f"v_and_b32 {v(T2)}, 3, v1")
    a(f"v_lshl_add_u32 {v(T1)}, {v(T2)}, 3, {v(T1)}")
    a(f"s_add_u32 s46, s3, {OV - 7*2048}")
    a(f"v_add_u32 {v(vV1)}, s46, {v(T1)}")
    a(f"s_add_u32 s46, s3, {PV}")
    a(f"v_add_u32 {v(vV2)}, s46, {v(T1)}")
    a("s_cmp_lg_u32 s45, 1")
    a(f"s_cbranch_scc1 {lab_reload}")
    a(f"ds_read_b128 {v(QF,4)}, {v(T0)}")
    a(f"v_xor_b32 {v(T0)}, 32, {v(T0)}")
    a(f"ds_read_b128 {v(QF+4,4)}, {v(T0)}")
    a("s_mov_b32 s33, 1")
    lab_pubw = a.newlabel("L_pubw")
    a("s_cmp_lt_u32 s49, 4")
    a(f"s_cbranch_scc1 {lab_pubw}")
    while side: sideq()
    a(f"s_branch {lab_start}")
    a.label(lab_pubw)
    a("s_lshl_b32 s3, s49, 13")
    a(f"s_add_u32 s46, s3, {OK_}")
    a(f"v_add_u32 {v(T1)}, s46, {v(vL16)}")
    for j in range(8):
        a(f"ds_read_b128 {v(W1S+4*j,4)}, {v(T1)} offset:{1024*j}")
    a("s_lshl_b32 s46, s99, 15")
    a("s_add_u32 s46, s46, s3")
    for j in range(8):
        if j == 4: a("s_add_u32 s46, s46, 4096")
        a(f"s_waitcnt lgkmcnt({7-j})")
        a(f"buffer_store_dwordx4 {v(W1S+4*j,4)}, {v(vL16)}, s[16:19], s46 offen offset:{1024*(j&3)} sc0 sc1")
    a("s_mov_b32 s33, 0")

    def kvflag():
        ldone = a.newlabel("L_kvf")
        a("s_or_b32 s3, s33, s50")
        a("s_cmp_lg_u32 s3, 0")
        a(f"s_cbranch_scc1 {ldone}")
        a("s_mov_b32 s33, 1")
        a("s_memrealtime s[22:23]")
        a("s_lshl_b32 s3, s99, 7")
        a("s_lshl_b32 s46, s49, 3")
        a("s_add_u32 s3, s3, s46")
        a(f"s_add_u32 s3, s3, {KFO}")
        a(f"v_mov_b32 {v(T0)}, 0")
        a("s_waitcnt vmcnt(0) lgkmcnt(0)")
        a(f"v_mov_b32 {v(PUB)}, s22")
        a(f"v_mov_b32 {v(PUB+1)}, s23")
        a("s_mov_b64 exec, 1")
        if 'nokvflag' not in EXP: a(f"buffer_store_dwordx2 {v(PUB,2)}, {v(T0)}, s[36:39], s3 offen sc0 sc1")
        a("s_mov_b64 exec, -1")
        a.label(ldone)

    a.label(lab_start)
    a(f"v_lshlrev_b32 {v(T0)}, 2, {v(vHH)}")
    a(f"v_sub_u32 {v(T0)}, {v(vQQ)}, {v(T0)}")
    for r in range(16):
        c = (r & 3) + 8 * (r >> 2)
        sp = 52 + 2 * (r & 1)
        a(f"v_cmp_le_i32 s[{sp}:{sp+1}], {c}, {v(T0)}")
        a(f"v_mov_b32 {v(CM+r)}, {v(VM)}")
        a(f"v_cndmask_b32 {v(MK1+r)}, {v(vNEG)}, {v(VM)}, s[{sp}:{sp+1}]")
        a(f"v_cndmask_b32 {v(MK2+r)}, {v(VM)}, {v(vNEG)}, s[{sp}:{sp+1}]")
    for r in range(16):
        a(f"v_mov_b32 {v(OA+r)}, 0")
    for r in range(4):
        a(f"v_mov_b32 {v(SUM+r)}, 0")

    def part(vK, vV, MK, off, last_cmp, lab_out, hook=None):
        SS = [SA, SB]

        def kread(i):
            for ks in range(2):
                a(f"ds_read_b128 {v(KB_[i&1]+4*ks,4)}, {v(vK[ks])} offset:{off(i)}")

        def smf(i, h):
            if h == 0:
                a(f"v_mfma_f32_32x32x16_bf16 {v(SS[i&1],16)}, {v(KB_[i&1],4)}, {v(QF,4)}, {v(MK if i == 0 else CM,16)}")
            else:
                a(f"v_mfma_f32_32x32x16_bf16 {v(SS[i&1],16)}, {v(KB_[i&1]+4,4)}, {v(QF+4,4)}, {v(SS[i&1],16)}")
        kread(0)
        kread(1)
        a("s_waitcnt lgkmcnt(2)")
        smf(0, 0); smf(0, 1)
        for i in range(8):
            Sx = SS[i & 1]; Px = PP[i & 1]; Vx = VB_[i & 1]

            def exps(g):
                for j in range(4):
                    a(f"v_exp_f32 {v(Sx+g+j)}, {v(Sx+g+j)}")

            def addcvt(g):
                for j in range(2):
                    a(f"v_pk_add_f32 {v(SUM+2*j,2)}, {v(SUM+2*j,2)}, {v(Sx+g+2*j,2)}")
                    a(f"v_cvt_pk_bf16_f32 {v(Px+g//2+j)}, {v(Sx+g+2*j)}, {v(Sx+g+1+2*j)}")

            def pv(sidx):
                a(f"v_mfma_f32_32x32x16_bf16 {v(OA,16)}, {v(Vx+4*sidx,4)}, {v(Px+4*sidx,4)}, {v(OA,16)}")
            for sidx in range(2):
                for rd in range(2):
                    a(f"ds_read_b64_tr_b16 {v(Vx+4*sidx+2*rd,2)}, {v(vV)} offset:{off(i) + (16*sidx+8*rd)*64}")
            if i < 7:
                a("s_waitcnt lgkmcnt(4)")
                smf(i + 1, 0)
            if i == 0:
                a("s_nop 7"); a("s_nop 7"); a("s_nop 7")
            exps(0)
            if i < 7:
                smf(i + 1, 1)
                if i < 6: kread(i + 2)
            exps(4); addcvt(0)
            exps(8); addcvt(4)
            a(f"s_waitcnt lgkmcnt({2 if i < 6 else 0})")
            pv(0)
            exps(12); addcvt(8)
            a("s_nop 0")
            addcvt(12)
            a("s_nop 1")
            pv(1)
            if i < 7:
                a(f"s_cmp_eq_u32 s44, {last_cmp(i)}")
                a(f"s_cbranch_scc1 {lab_out}")
            if hook and i == 2: hook()
        a.label(lab_out)
        a("s_waitcnt lgkmcnt(0)")

    part(vK1, vV1, MK1, lambda i: (7 - i) * 2048, lambda i: i, a.newlabel("L_p1e"), hook=kvflag)
    stamp(5)
    lab_p2 = a.newlabel("L_p2")
    a("s_cmp_lg_u32 s50, 0")
    a(f"s_cbranch_scc1 {lab_p2}")
    kvflag()
    lab_nc = a.newlabel("L_nocs")
    a("s_cmp_lt_u32 s49, 4")
    a(f"s_cbranch_scc1 {lab_nc}")
    if G.C3:
        srd(a, 88, 24, G.WS_WOC, 2 * D * 256)
        a("s_lshl_b32 s3, s92, 8")
        a("s_waitcnt vmcnt(0)")
        a("s_mov_b64 exec, 0xffff")
        a(f"buffer_store_dwordx4 {v(W2S[0],4)}, {v(SA2)}, s[88:91], s3 offen")
        a("s_mov_b64 exec, -1")
        if G.QC3:
            srd(a, 88, 24, G.WS_W2C, 2 * F * 256)
            a("s_mov_b32 exec_hi, 0x00ffffff")
            a(f"buffer_store_dwordx4 {v(W2S[1],4)}, {v(W2S[2])}, s[88:91], 0 offen")
            a("s_mov_b32 exec_hi, -1")
    else:
        srd(a, 88, 24, G.WS_W2T, F * D * 2)
        a("s_mul_i32 s3, s92, 7168")
        a("s_waitcnt vmcnt(0)")
    for j in range(7 if QW2 else 0):
        if j == 4: a("s_add_u32 s3, s3, 4096")
        a(f"buffer_store_dwordx4 {v(W2S[j],4)}, {v(vL16)}, s[88:91], s3 offen offset:{1024*(j&3)}")
    a("s_cmp_ge_u32 s92, 896")
    a(f"s_cbranch_scc1 {lab_nc}")
    if G.W1T:
        srd(a, 88, 24, G.WS_W1T, 16 * 512 * 1024)
        a(f"v_and_b32 {v(T0)}, 7, v1")
        a("s_lshl_b32 s3, s84, 3")
        a(f"v_add_u32 {v(T0)}, s3, {v(T0)}")
        a(f"s_mov_b32 s3, {((1 << 32) + 27) // 28}")
        a(f"v_mul_hi_u32 {v(T1)}, {v(T0)}, s3")
        a(f"v_mul_u32_u24 {v(T2)}, 28, {v(T1)}")
        a(f"v_sub_u32 {v(T0)}, {v(T0)}, {v(T2)}")
        a(f"v_bfe_u32 {v(T2)}, v1, 3, 1")
        a(f"v_mad_u32_u24 {v(T0)}, {v(T2)}, 28, {v(T0)}")
        a(f"v_cmp_le_u32 vcc, 24, {v(T0)}")
        a(f"v_add_u32 {v(T2)}, 8, {v(T0)}")
        a(f"v_cndmask_b32 {v(T0)}, {v(T0)}, {v(T2)}, vcc")
        a(f"v_lshlrev_b32 {v(T1)}, 19, {v(T1)}")
        a(f"v_lshl_add_u32 {v(T0)}, {v(T0)}, 4, {v(T1)}")
        a(f"v_lshrrev_b32 {v(T1)}, 4, v1")
        a(f"v_lshl_add_u32 {v(T0)}, {v(T1)}, 10, {v(T0)}")
        a("s_lshl_b32 s3, s93, 15")
        for j in range(8):
            a(f"buffer_store_dwordx4 {v(W1S+4*j,4)}, {v(T0)}, s[88:91], s3 offen {os.environ.get('W1ST','sc0 sc1')}")
            a("s_add_u32 s3, s3, 4096")
    for j in range(4):
        a(f"v_lshlrev_b32 v{CA+2*j}, 16, v{W1S+j}")
        a(f"v_and_b32 v{CA+2*j+1}, 0xffff0000, v{W1S+j}")
    for i in range(1, 8):
        for j in range(4):
            a(f"v_lshlrev_b32 v{CT+2*j}, 16, v{W1S+4*i+j}")
            a(f"v_and_b32 v{CT+2*j+1}, 0xffff0000, v{W1S+4*i+j}")
        for j in range(4):
            a(f"v_pk_add_f32 {v(CA+2*j,2)}, {v(CA+2*j,2)}, {v(CT+2*j,2)}")
    a("s_nop 1")
    for j in range(8):
        a(f"v_add_f32_dpp v{CT+j}, v{CA+j}, v{CA+j} row_ror:8 row_mask:0xf bank_mask:0xf")
    a(f"v_xor_b32 {v(T0)}, 16, v1")
    a(f"v_lshlrev_b32 {v(T0)}, 2, {v(T0)}")
    for j in range(8):
        a(f"ds_bpermute_b32 v{CA+j}, {v(T0)}, v{CT+j}")
    a("s_waitcnt lgkmcnt(0)")
    for j in range(8):
        a(f"v_add_f32 v{CT+j}, v{CA+j}, v{CT+j}")
    for j in range(8):
        a(f"ds_bpermute_b32 v{CA+j}, {v(vX32)}, v{CT+j}")
    a("s_waitcnt lgkmcnt(0)")
    for j in range(8):
        a(f"v_add_f32 v{CA+j}, v{CA+j}, v{CT+j}")
    srd(a, 76, 24, G.WS_CS, 16 * F * 4)
    a(f"s_mul_i32 s3, s93, {F*4}")
    a("s_lshl_b32 s46, s84, 8")
    a("s_add_u32 s3, s3, s46")
    a(f"v_lshlrev_b32 {v(T0)}, 5, v1")
    a("s_mov_b64 exec, 0xff")
    a(f"buffer_store_dwordx4 {v(CA,4)}, {v(T0)}, s[76:79], s3 offen")
    a(f"buffer_store_dwordx4 {v(CA+4,4)}, {v(T0)}, s[76:79], s3 offen offset:16")
    a("s_mov_b64 exec, -1")
    a.label(lab_nc)
    a("s_mov_b32 s50, 1")
    a("s_cmp_eq_u32 s28, 0")
    a(f"s_cbranch_scc1 {lab_p2}")
    lp = a.newlabel("L_poll"); lpo = a.newlabel("L_pollok"); lpd = a.newlabel("L_polld"); lsp = a.newlabel("L_spin")
    a("s_cmp_ge_u32 s49, 4")
    a(f"s_cbranch_scc1 {lsp}")
    a("s_sub_u32 s46, s99, 32")
    a("s_lshl_b32 s47, s46, 7")
    a(f"s_add_u32 s47, s47, {KFO}")
    a(f"v_and_b32 {v(T0)}, 3, v1")
    a(f"v_lshlrev_b32 {v(T0)}, 3, {v(T0)}")
    a(f"s_mov_b32 s52, {NPOLL}")
    a.label(lp)
    a(f"buffer_load_dwordx2 {v(PUB,2)}, {v(T0)}, s[36:39], s47 offen sc0 sc1")
    a("s_waitcnt vmcnt(0)")
    a(f"v_cmp_lt_u64 vcc, s[34:35], {v(PUB,2)}")
    a(f"v_cmp_gt_u64 s[54:55], s[20:21], {v(PUB,2)}")
    a("s_nop 3")
    a("s_and_b64 vcc, vcc, s[54:55]")
    a("s_cmp_eq_u64 vcc, exec")
    a(f"s_cbranch_scc1 {lpo}")
    a("s_sub_u32 s52, s52, 1")
    a("s_cmp_lg_u32 s52, 0")
    a(f"s_cbranch_scc1 {lp}")
    a(f"v_mov_b32 {v(T1)}, 2")
    a(f"s_branch {lpd}")
    a.label(lpo)
    a("s_lshl_b32 s3, s49, 13")
    a("s_lshl_b32 s46, s46, 15")
    a("s_add_u32 s46, s46, s3")
    for j in range(8):
        a(f"s_add_u32 m0, s3, {PK + 1024*j}")
        a("s_nop 0")
        a(f"buffer_load_dwordx4 {v(vL16)}, s[16:19], s46 offen sc0 sc1 lds")
        a("s_add_u32 s46, s46, 1024")
    a(f"v_mov_b32 {v(T1)}, 1")
    a.label(lpd)
    a("s_lshl_b32 s3, s49, 2")
    a(f"s_add_u32 s3, s3, {STAT2}")
    a(f"v_mov_b32 {v(T0)}, s3")
    a("s_waitcnt vmcnt(0)")
    a(f"ds_write_b32 {v(T0)}, {v(T1)}")
    a.label(lsp)
    a(f"v_mov_b32 {v(T0)}, {STAT2}")
    a(f"ds_read_b128 {v(PUB,4)}, {v(T0)}")
    a("s_waitcnt lgkmcnt(0)")
    a(f"v_min_u32 {v(T1)}, {v(PUB)}, {v(PUB+1)}")
    a(f"v_min3_u32 {v(T1)}, {v(T1)}, {v(PUB+2)}, {v(PUB+3)}")
    a(f"v_max_u32 {v(T2)}, {v(PUB)}, {v(PUB+1)}")
    a(f"v_max3_u32 {v(T2)}, {v(T2)}, {v(PUB+2)}, {v(PUB+3)}")
    a("s_nop 0")
    a(f"v_readfirstlane_b32 s3, {v(T1)}")
    a(f"v_readfirstlane_b32 s46, {v(T2)}")
    a("s_nop 3")
    a("s_cmp_eq_u32 s3, 0")
    a("s_sleep 1")
    a(f"s_cbranch_scc1 {lsp}")
    a("s_cmp_eq_u32 s46, 1")
    a(f"s_cbranch_scc1 {lab_p2}")
    a("s_mov_b32 s45, 2")
    a("s_sub_u32 s98, s98, 256")
    a(f"s_mov_b32 s100, {XQ}")
    a("s_barrier")
    a("s_cmp_lt_u32 s49, 4")
    a(f"s_cbranch_scc1 {lab_cpass}")
    a("s_setprio 2")
    a(f"s_branch {a.newlabel('L_lre')}")
    lab_lre = f"L_lre_{a.nlab}"

    a.label(lab_reload)
    a("s_lshl_b32 s3, s49, 12")
    a("s_lshl_b32 s46, s99, 15")
    a("s_add_u32 s46, s46, s3")
    for j in range(4):
        a(f"s_add_u32 m0, s3, {OK_ + 1024*j}")
        a("s_nop 0")
        a(f"buffer_load_dwordx4 {v(vL16)}, s[16:19], s46 offen sc0 sc1 lds")
        a("s_add_u32 s46, s46, 1024")
    a("s_waitcnt vmcnt(0)")
    a("s_barrier")
    a(f"s_branch {lab_start}")

    a.label(lab_p2)
    if 'qpf2' in EXP:
        lq = a.newlabel("L_qpf")
        a("s_cmp_eq_u32 s33, 2")
        a(f"s_cbranch_scc1 {lq}")
        a("s_mov_b32 s33, 2")
        a(f"s_load_dwordx2 s[54:55], s[0:1], {ARG['w2']}")
        a("s_lshl_b32 s3, s99, 3")
        a("s_add_u32 s3, s3, s49")
        a("s_mul_i32 s3, s3, 3584")
        a(f"v_lshlrev_b32 {v(T0)}, 7, v1")
        a("s_waitcnt lgkmcnt(0)")
        srd(a, 88, 54, 0, F * D * 2)
        a("s_mov_b64 exec, 0xfffffff")
        a(f"buffer_load_dword v255, {v(T0)}, s[88:91], s3 offen")
        a("s_mov_b64 exec, -1")
        a.label(lq)
    a("s_cmp_eq_u32 s28, 0")
    a(f"s_cbranch_scc1 {lab_fin}")
    part(vK2, vV2, MK2, lambda i: i * 2048, lambda i: 7 - i, a.newlabel("L_p2e"))
    a.label(lab_fin)
    stamp(6)
    a(f"v_add_f32 {v(SUM)}, {v(SUM)}, {v(SUM+1)}")
    a(f"v_add_f32 {v(SUM+2)}, {v(SUM+2)}, {v(SUM+3)}")
    a(f"v_add_f32 {v(SUM)}, {v(SUM)}, {v(SUM+2)}")
    a(f"ds_bpermute_b32 {v(SUM+1)}, {v(vX32)}, {v(SUM)}")
    a("s_waitcnt lgkmcnt(0)")
    a(f"v_add_f32 {v(SUM)}, {v(SUM)}, {v(SUM+1)}")
    lab_out = a.newlabel("L_out")
    a("s_cmp_lg_u32 s51, 0")
    a(f"s_cbranch_scc1 {lab_out}")
    lo = 2.0 ** -40 if 'forcemax' not in EXP else 2.0 ** 39
    a(f"v_mov_b32 {v(T1)}, {hex_f32(lo)}")
    a(f"v_mov_b32 {v(T0)}, {hex_f32(2.0**40)}")
    a(f"v_cmp_lt_f32 s[52:53], {v(T1)}, {v(SUM)}")
    a(f"v_cmp_lt_f32 s[54:55], {v(SUM)}, {v(T0)}")
    a("s_nop 3")
    a("s_and_b64 s[52:53], s[52:53], s[54:55]")
    a("s_cmp_eq_u64 s[52:53], exec")
    a(f"s_cbranch_scc1 {lab_out}")
    a("s_mov_b32 s51, 1")
    a(f"v_mov_b32 {v(VM)}, {v(vNEG)}")

    def maxpart(vK, MK, first_off, step, cnt_expr):
        lp = a.newlabel("L_mx"); lpe = a.newlabel("L_mxe")
        a(f"v_add_u32 {v(T0)}, {first_off}, {v(vK[0])}")
        a(f"v_add_u32 {v(T1)}, {first_off}, {v(vK[1])}")
        cnt_expr()

        def tile(C):
            a(f"ds_read_b128 {v(KB_[0],4)}, {v(T0)}")
            a(f"ds_read_b128 {v(KB_[0]+4,4)}, {v(T1)}")
            a("s_waitcnt lgkmcnt(0)")
            a(f"v_mfma_f32_32x32x16_bf16 {v(SA,16)}, {v(KB_[0],4)}, {v(QF,4)}, {v(C,16)}")
            a(f"v_mfma_f32_32x32x16_bf16 {v(SA,16)}, {v(KB_[0]+4,4)}, {v(QF+4,4)}, {v(SA,16)}")
            a("s_nop 7"); a("s_nop 7"); a("s_nop 7")
            for r in range(0, 16, 2):
                a(f"v_max3_f32 {v(VM)}, {v(VM)}, {v(SA+r)}, {v(SA+r+1)}")
            a(f"v_add_u32 {v(T0)}, {step}, {v(T0)}")
            a(f"v_add_u32 {v(T1)}, {step}, {v(T1)}")
        tile(MK)
        a.label(lp)
        a("s_cmp_eq_u32 s52, 0")
        a(f"s_cbranch_scc1 {lpe}")
        tile(CM)
        a("s_sub_u32 s52, s52, 1")
        a(f"s_branch {lp}")
        a.label(lpe)

    maxpart(vK1, MK1, 7 * 2048, -2048, lambda: a("s_mov_b32 s52, s44"))
    lmx = a.newlabel("L_mxd")
    a("s_cmp_eq_u32 s28, 0")
    a(f"s_cbranch_scc1 {lmx}")
    maxpart(vK2, MK2, 0, 2048, lambda: a("s_sub_u32 s52, 7, s44"))
    a.label(lmx)
    a(f"ds_bpermute_b32 {v(T0)}, {v(vX32)}, {v(VM)}")
    a("s_waitcnt lgkmcnt(0)")
    a(f"v_max_f32 {v(VM)}, {v(VM)}, {v(T0)}")
    a(f"v_sub_f32 {v(VM)}, 0, {v(VM)}")
    a(f"s_branch {lab_start}")

    a.label(lab_out)
    a(f"v_rcp_f32 {v(SUM)}, {v(SUM)}")
    if G.OT:
        a("s_lshl_b32 s3, s28, 1")
        a("s_lshr_b32 s46, s44, 2")
        a("s_add_u32 s3, s3, s46")
        a("s_lshl_b32 s3, s3, 4")
        a("s_lshr_b32 s46, s29, 1")
        a("s_add_u32 s3, s3, s46")
        a("s_lshl_b32 s3, s3, 2")
        a("s_and_b32 s46, s44, 3")
        a("s_add_u32 s3, s3, s46")
        a(f"s_lshl_b32 s3, s3, {5+G.TSH}")
        a("s_and_b32 s46, s29, 1")
        a("s_lshl_b32 s46, s46, 6")
        a("s_add_u32 s3, s3, s46")
        a(f"v_lshlrev_b32 {v(T0)}, {G.TSH}, {v(vQQ)}")
        a(f"v_lshl_add_u32 {v(T0)}, {v(vHH)}, 3, {v(T0)}")
        a(f"v_add_u32 {v(T0)}, s3, {v(T0)}")
    else:
        a("s_lshl_b32 s3, s28, 8")
        a("s_lshl_b32 s46, s44, 5")
        a("s_add_u32 s3, s3, s46")
        a(f"v_add_u32 {v(T0)}, s3, {v(vQQ)}")
        a(f"v_lshlrev_b32 {v(T0)}, 11, {v(T0)}")
        a(f"v_lshl_add_u32 {v(T0)}, {v(vHH)}, 3, {v(T0)}")
        a("s_lshl_b32 s3, s29, 6")
        a(f"v_add_u32 {v(T0)}, s3, {v(T0)}")
    a("s_nop 7")
    for g in range(4):
        for r in range(4):
            a(f"v_mul_f32 v{OA+4*g+r}, v{OA+4*g+r}, {v(SUM)}")
        a(f"v_cvt_pk_bf16_f32 v{OA+4*g}, v{OA+4*g}, v{OA+4*g+1}")
        a(f"v_cvt_pk_bf16_f32 v{OA+4*g+1}, v{OA+4*g+2}, v{OA+4*g+3}")
        a(f"buffer_store_dwordx2 {v(OA+4*g,2)}, {v(T0)}, s[12:15], 0 offen offset:{16*g}")
    if 'stamp' in EXP: a("s_waitcnt vmcnt(0)")
    stamp(7)
    stamp_out()
    a(f"s_branch {end}")

    a.label(lab_lre)
    a("s_lshl_b32 s3, s30, 6")
    a(f"v_lshrrev_b32 {v(t0)}, 3, v1")
    a(f"v_add_u32 {v(t0)}, s3, {v(t0)}")
    for i in range(PA):
        a(f"v_add_u32 {v(t1)}, {8*i}, {v(t0)}")
        a(f"v_lshrrev_b32 {v(t2)}, 1, {v(t1)}")
        a(f"v_and_b32 {v(t2)}, 7, {v(t2)}")
        a(f"v_and_b32 {v(t3)}, 7, v1")
        a(f"v_xor_b32 {v(t2)}, {v(t2)}, {v(t3)}")
        a(f"v_add_u32 {v(t1)}, s98, {v(t1)}")
        a(f"v_mul_u32_u24 {v(t1)}, {lda}, {v(t1)}")
        a(f"v_lshl_add_u32 {v(vA[i])}, {v(t2)}, 4, {v(t1)}")
    a("s_lshl_b32 s3, s29, 6")
    for i in range(PB):
        a(f"s_mul_i32 s46, s30, {PB}")
        a(f"s_add_u32 s46, s46, {i}")
        a("s_lshr_b32 s47, s46, 2")
        a("s_and_b32 s46, s46, 3")
        a("s_lshl_b32 s46, s46, 4")
        a("s_lshl_b32 s47, s47, 11")
        a("s_add_u32 s47, s47, s3")
        a(f"v_lshrrev_b32 {v(t0)}, 2, v1")
        a(f"v_add_u32 {v(t0)}, s46, {v(t0)}")
        a(f"v_and_b32 {v(t1)}, 3, v1")
        a(f"v_bfe_u32 {v(t2)}, {v(t0)}, 3, 1")
        a(f"v_lshlrev_b32 {v(t2)}, 1, {v(t2)}")
        a(f"v_xor_b32 {v(t1)}, {v(t1)}, {v(t2)}")
        a(f"v_mul_u32_u24 {v(t0)}, {N*2}, {v(t0)}")
        a(f"v_lshl_add_u32 {v(t0)}, {v(t1)}, 4, {v(t0)}")
        a(f"v_add_u32 {v(vB[i])}, s47, {v(t0)}")
    a(f"s_branch {lab_lpass}")
    a.label(end)
    a("s_endpgm")
    return dict(name=name, grid=256, block=512, lds=lds, desc=G.kernel_desc(name, 256))
```

```python
import sys, math, os
EXP=os.environ.get('EXP','')
STMOD=os.environ.get('STMOD','sc0 sc1')
STALL=os.environ.get('STALL','')
RPM=int(os.environ.get('RPM','2'))
PFS=int(os.environ.get('PFS','4'))

OUT = os.environ.get("OUTF","sequential_preLN__sliding_block__mixer_channel_mlp__prompt.s")

S = 2048; D = 1024; F = 3584; H = 32; DH = 32; WIN = 256
ARG = dict(x=0, wqkv=8, wo=16, bx=24, w1=32, b1=40, w2=48, b2=56, out=64, dbg=72, ws=80)
MB = 1 << 20
WS_Y1 = 0
WS_QKV = 4 * MB
TP = int(os.environ.get('TP', '128')); TX = TP // 128; TSH = 7 + TX.bit_length() - 1
OT = 'noot' not in EXP
C3 = 'noc3' not in EXP
QC3 = 'qc3' in EXP
WS_O = 16 * MB
WS_H = 24 * MB
WS_Y2 = 24 * MB
WS_H1 = 32 * MB
WS_W2C = 62 * MB
WS_WOC = 64 * MB
WS_ST = 0
WS_CS = 1 * MB
WS_SIZE = 256 * MB
WS_FLAG = 2 * MB
WS_W2T = 72 * MB
WS_W1T = 88 * MB
W1T = 'w1t' in EXP
WS_PART = 80 * MB
LDH1 = F * 2 * TX


class Asm:
    def __init__(self):
        self.lines = []
        self.nlab = 0

    def __call__(self, s):
        self.lines.append("    " + s)

    def label(self, l):
        self.lines.append(l + ":")

    def newlabel(self, base="L"):
        self.nlab += 1
        return f"{base}_{self.nlab}"

    def c(self, s):
        self.lines.append("    ; " + s)

    def dry_begin(self, wave_sreg, idx_sreg, nw=4):
        self.dry = dict(ret=self.newlabel("L_dret"), disp=self.newlabel("L_ddisp"), done=self.newlabel("L_ddone"),
                        ent=[], idx=idx_sreg, nw=nw)
        self(f"s_mov_b32 s{idx_sreg}, s{wave_sreg}")
        self("s_mov_b64 exec, 0")
        self(f"s_branch {self.dry['disp']}")
        self.label(self.dry['done'])
        self("s_mov_b64 exec, -1")

    def dry_entry(self):
        l = self.newlabel("L_dent")
        self.label(l)
        self.dry['ent'].append(l)

    def dry_exit(self):
        self(f"s_cbranch_execz {self.dry['ret']}")

    def dry_mark(self):
        self.dry_exit(); self.dry_entry()

    def dry_dispatch(self):
        d = self.dry
        self.label(d['ret'])
        self(f"s_add_u32 s{d['idx']}, s{d['idx']}, {d['nw']}")
        self.label(d['disp'])
        for i, l in enumerate(d['ent']):
            self(f"s_cmp_eq_u32 s{d['idx']}, {i}")
            self(f"s_cbranch_scc1 {l}")
        self(f"s_branch {d['done']}")


def v(i, n=1):
    return f"v{i}" if n == 1 else f"v[{i}:{i+n-1}]"


def s(i, n=1):
    return f"s{i}" if n == 1 else f"s[{i}:{i+n-1}]"


def srd(a, d, base, off, nbytes):
    if off:
        a(f"s_add_u32 s{d}, s{base}, {off}")
        a(f"s_addc_u32 s{d+1}, s{base+1}, 0")
    else:
        a(f"s_mov_b32 s{d}, s{base}")
        a(f"s_mov_b32 s{d+1}, s{base+1}")
    a(f"s_and_b32 s{d+1}, s{d+1}, 0xffff")
    a(f"s_mov_b32 s{d+2}, {nbytes}")
    a(f"s_mov_b32 s{d+3}, 0x00020000")


def hex_f32(x):
    import struct
    return hex(struct.unpack('<I', struct.pack('<f', x))[0])


def kernel_header(a, name):
    a.lines.append(".p2align 8")
    a.lines.append(f".globl {name}")
    a.lines.append(f".type {name},@function")
    a.label(name)


def kernel_desc(name, nvgpr, nsgpr=102, accum=None):
    nv = ((nvgpr + 7) // 8) * 8
    acc = accum if accum is not None else ((nvgpr + 3) // 4) * 4
    return f""".amdhsa_kernel {name}
  .amdhsa_next_free_vgpr {nv if accum is None else nvgpr}
  .amdhsa_next_free_sgpr {nsgpr}
  .amdhsa_accum_offset {min(acc,256)}
  .amdhsa_group_segment_fixed_size 0
  .amdhsa_kernarg_size 88
  .amdhsa_user_sgpr_count 2
  .amdhsa_user_sgpr_kernarg_segment_ptr 1
  .amdhsa_system_sgpr_workgroup_id_x 1
.end_amdhsa_kernel
"""


def gen_prefetch(a, regions, end_label):
    CH = 32768
    counts = [nbytes // CH for _, nbytes in regions]
    for (_, nbytes), c in zip(regions, counts):
        assert c * CH == nbytes
    total = sum(counts)
    skip = a.newlabel("L_nopf")
    a(f"s_cmp_ge_u32 s2, {total}")
    a(f"s_cbranch_scc1 {skip}")
    base = 0
    for (arg, nbytes), c in zip(regions, counts):
        nxt = a.newlabel("L_pfn")
        a(f"s_cmp_ge_u32 s2, {base + c}")
        a(f"s_cbranch_scc1 {nxt}")
        a(f"s_load_dwordx2 s[4:5], s[0:1], {ARG[arg]}")
        a(f"s_sub_u32 s3, s2, {base}")
        a("s_lshl_b32 s3, s3, 15")
        a("v_lshlrev_b32 v1, 4, v0")
        a("v_add_u32 v1, s3, v1")
        a("s_waitcnt lgkmcnt(0)")
        srd(a, 8, 4, 0, nbytes)
        for j in range(8):
            a(f"v_add_u32 v2, {4096*j}, v1")
            a(f"buffer_load_dwordx4 {v(4+4*j,4)}, v2, s[8:11], 0 offen")
        a("s_waitcnt vmcnt(0)")
        a(f"s_branch {end_label}")
        a.label(nxt)
        base += c
    a.label(skip)
    a(f"s_sub_u32 s2, s2, {total}")
    return total


def tail_prefetch(a, task, lane, regions, vtmp, vdst):
    ntask = 2048
    total = sum(n for _, n in regions)
    per = total // ntask
    assert per * ntask == total and per % 1024 == 0
    nld = per // 1024
    base = 0
    done = a.newlabel("L_pfdone")
    for arg, nbytes in regions:
        cnt = nbytes // per
        assert cnt * per == nbytes
        nxt = a.newlabel("L_pfn")
        a(f"s_cmp_ge_u32 s{task}, {base + cnt}")
        a(f"s_cbranch_scc1 {nxt}")
        a(f"s_load_dwordx2 s[94:95], s[0:1], {ARG[arg]}")
        a(f"s_sub_u32 s93, s{task}, {base}")
        a(f"s_mul_i32 s93, s93, {per}")
        a(f"v_lshlrev_b32 {v(vtmp)}, 4, {v(lane)}")
        a(f"v_add_u32 {v(vtmp)}, s93, {v(vtmp)}")
        a("s_waitcnt lgkmcnt(0)")
        srd(a, 96, 94, 0, nbytes)
        for j in range(nld):
            if j and j % 4 == 0:
                a(f"v_add_u32 {v(vtmp)}, 4096, {v(vtmp)}")
            a(f"buffer_load_dwordx4 {v(vdst,4)}, {v(vtmp)}, s[96:99], 0 offen offset:{1024*(j%4)}")
        a(f"s_branch {done}")
        a.label(nxt)
        base += cnt
    a.label(done)
    return nld

def gen_ln(a, name, src_arg, src_off, dst_off, double, pf=None):
    nwg = S // 4
    kernel_header(a, name)
    end = a.newlabel("L_end")
    npf = 0
    a(f"s_cmp_ge_u32 s2, {nwg}")
    a(f"s_cbranch_scc1 {end}")
    a(f"s_load_dwordx2 s[4:5], s[0:1], {ARG[src_arg]}")
    a(f"s_load_dwordx2 s[6:7], s[0:1], {ARG['ws']}")
    a("v_lshrrev_b32 v1, 6, v0")
    a("v_and_b32 v2, 63, v0")
    a("s_lshl_b32 s3, s2, 2")
    a("v_add_u32 v1, s3, v1")
    a("v_lshlrev_b32 v3, 11, v1")
    a("v_lshl_add_u32 v3, v2, 5, v3")
    for i, m in enumerate([1, 2, 4, 8, 16, 32]):
        a(f"v_xor_b32 v{12+i}, {m}, v2")
        a(f"v_lshlrev_b32 v{12+i}, 2, v{12+i}")
    a("s_waitcnt lgkmcnt(0)")
    srd(a, 8, 4, src_off, S * D * 2)
    srd(a, 12, 6, dst_off, S * D * 2)
    a("buffer_load_dwordx4 v[4:7], v3, s[8:11], 0 offen")
    a("buffer_load_dwordx4 v[8:11], v3, s[8:11], 0 offen offset:16")
    npl = 0
    if pf:
        a("v_readfirstlane_b32 s92, v1")
        a("s_nop 3")
        npl = tail_prefetch(a, 92, 2, pf, 44, 48)
    a(f"s_waitcnt vmcnt({npl})")

    def unpack():
        for i in range(8):
            a(f"v_lshlrev_b32 v{20+2*i}, 16, v{4+i}")
            a(f"v_and_b32 v{21+2*i}, 0xffff0000, v{4+i}")

    def bfly():
        for i in range(6):
            a(f"ds_bpermute_b32 v41, v{12+i}, v40")
            a("s_waitcnt lgkmcnt(0)")
            a("v_add_f32 v40, v40, v41")

    def norm():
        a("v_add_f32 v40, v20, v21")
        for i in range(2, 16):
            a(f"v_add_f32 v40, v40, v{20+i}")
        bfly()
        a("v_mul_f32 v40, 0x3a800000, v40")
        for i in range(16):
            a(f"v_sub_f32 v{20+i}, v{20+i}, v40")
        a("v_mul_f32 v40, v20, v20")
        for i in range(1, 16):
            a(f"v_fmac_f32 v40, v{20+i}, v{20+i}")
        bfly()
        a("v_mov_b32 v42, 0x3727c5ac")
        a("v_fma_f32 v40, v40, v43, v42")
        a("v_rsq_f32 v40, v40")
        a("s_nop 0")
        for i in range(16):
            a(f"v_mul_f32 v{20+i}, v{20+i}, v40")
        for i in range(8):
            a(f"v_cvt_pk_bf16_f32 v{4+i}, v{20+2*i}, v{21+2*i}")

    a("v_mov_b32 v43, 0x3a800000")
    unpack()
    norm()
    if double:
        unpack()
        norm()
    a("buffer_store_dwordx4 v[4:7], v3, s[12:15], 0 offen")
    a("buffer_store_dwordx4 v[8:11], v3, s[12:15], 0 offen offset:16")
    a.label(end)
    a("s_endpgm")
    return dict(name=name, grid=nwg + npf, block=256, lds=0, desc=kernel_desc(name, 56))


def gen_gemm(a, name, N, K, BN, a_off, w_arg, epi, out_arg, out_off, res_arg=None, res_off=0,
             bias_arg=None, BM=128, NSTAGE=3, RA=4, RBN=8, ln=None, a_arg='ws', pre=False, stats_out=False, lda=None, ldo=None, splitk=None, zero_flags=False, l2pf=0, wpf=None, atile=False, w_off=None, otile=False, w2copy=False, dry=0, epi2=False, spf=None, rtile=False, c3src=None, c3=None, sp2=None, sp3=None, wt7=False, flags=False, sp4=None, endpf=None):
    import struct
    M = S
    BK = 64
    lda = lda or K * 2
    ldo = ldo or N * 2
    ATILE = ('at_' + name.split('_')[0]) in EXP or atile
    BTILE = ('bt_' + name.split('_')[0]) in EXP or w_off is not None
    ASTEP = BM * TP if ATILE else BK * 2
    NT_M = M // BM
    NT_N = N // BN
    ntiles = NT_M * NT_N
    MT = BM // 2 // 16
    NTW = BN // 2 // 16
    RB = {64: 128, 128: 128, 192: 128, 96: 64, 224: 448, 112: 32}[BN]
    ABYTES = BM * BK * 2
    BBYTES = BK * BN * 2
    STAGE = ABYTES + BBYTES
    PA = ABYTES // 1024 // 4
    PB = BBYTES // 1024 // 4
    assert PA * 4096 == ABYTES and PB * 4096 == BBYTES
    P = PA + PB
    NS = K // BK
    if splitk:
        NSLO, NSHI = splitk
        assert NSLO + NSHI == NS and (NSLO - NSHI) % NSTAGE == 0
        NS = NSHI
        ntiles *= 2
    lds = STAGE * NSTAGE
    CROW = BN * 2 + 16
    CSZ = BM * CROW
    LASTB = (NS - 1) % NSTAGE
    TBL = 2048 if (ln and not pre) else 0
    CBASE = 0 if LASTB * STAGE >= CSZ + TBL else (LASTB + 1) * STAGE
    assert CBASE + CSZ + TBL <= lds
    EPI = lds
    st_res = bool(res_arg) and not splitk
    if splitk:
        DONE = CBASE + CSZ
        assert DONE + 16 <= (LASTB * STAGE if CBASE == 0 else lds)
    st_bias = pre
    if st_res: lds += BM * BN * 2
    if st_bias: lds += 3072 + 4096
    FL = flags and not splitk and not (ln and not pre)
    if FL:
        FLG = lds; lds += 2048
    assert lds <= 163840
    if pre:
        CTAB = EPI + 1024; RTAB = EPI + 2048
    else:
        RTAB = CBASE + CSZ; CTAB = RTAB + 1024
    NEX = (BM * BN * 2 // 4096 if st_res else 0)
    PPR = RB // 32
    lg_ppr = int(math.log2(PPR)) if RB != 448 else 0

    vA = list(range(2, 2 + PA))
    vB = list(range(2 + PA, 2 + PA + PB))
    nxt = 2 + PA + PB
    vXb = [nxt, nxt + 1]; nxt += 2
    vWb = list(range(nxt, nxt + NTW)); nxt += NTW
    vXc = [nxt, nxt + 1]; nxt += 2
    vWc = list(range(nxt, nxt + NTW)); nxt += NTW
    vT = list(range(nxt, nxt + 8)); nxt += 8
    nxt = (nxt + 3) // 4 * 4
    FX = [nxt, nxt + 4 * MT]; nxt += 8 * MT
    FW = [nxt, nxt + 4 * NTW]; nxt += 8 * NTW
    ACC = nxt; nxt += 4 * MT * NTW
    PBI = nxt
    if bias_arg and not pre: nxt += 2 * NTW
    if l2pf or wpf or spf or sp2:
        nxt = (nxt + 3) // 4 * 4
        PFD = nxt; PFV = nxt + 4; nxt += 5
    W2S = 136; W2A = 164
    if splitk:
        PRT = nxt; nxt += 4 * MT * NTW
        PFL = nxt; PFA = nxt + 1; PPA = nxt + 2; nxt += 3
    nvgpr = nxt
    assert nvgpr <= 256
    t0, t1, t2, t3 = vT[0], vT[1], vT[2], vT[3]

    def acc(nt, mt):
        return ACC + 4 * (nt * MT + mt)

    def stamp(i):
        if 'stamp' in EXP:
            if 'rt' in EXP and i in (1, 6):
                a(f"s_memrealtime s[{60+2*i}:{61+2*i}]")
                a(f"s_memtime s[{62 if i == 1 else 70}+0:{63 if i == 1 else 71}]".replace("+0","")) if False else None
            else:
                a(f"s_memtime s[{60+2*i}:{61+2*i}]")
            if i >= 6: a("s_waitcnt lgkmcnt(0)")

    def stamp_out():
        if 'stamp' not in EXP: return
        a("s_waitcnt lgkmcnt(0)")
        srd(a, 80, 24, 200 * MB, 1 << 20)
        a("s_lshl_b32 s3, s2, 3")
        a("s_add_u32 s3, s3, s49")
        a("s_lshl_b32 s3, s3, 6")
        a("v_mov_b32 v2, s3")
        for i in range(8):
            a(f"v_mov_b32 v4, s{60+2*i}")
            a(f"v_mov_b32 v5, s{61+2*i}")
            a(f"buffer_store_dwordx2 v[4:5], v2, s[80:83], 0 offen offset:{8*i}")
            a("s_nop 1")

    def wfrag_addr_common():
        a(f"v_lshrrev_b32 {v(t1)}, 4, v1")
        a(f"v_bfe_u32 {v(t0)}, v1, 2, 2")
        a(f"v_lshl_add_u32 {v(t2)}, {v(t1)}, 3, {v(t0)}")
        if RB == 256:
            a(f"v_and_b32 {v(t3)}, 1, {v(t1)}")
            a(f"v_lshl_add_u32 {v(t3)}, {v(t3)}, 2, {v(t0)}")
        elif RB == 128:
            a(f"v_and_b32 {v(t3)}, 1, {v(t1)}")
            a(f"v_lshrrev_b32 {v(t0)}, 1, {v(t0)}")
            a(f"v_lshl_add_u32 {v(t3)}, {v(t3)}, 1, {v(t0)}")
        elif RB in (64, 448):
            a(f"v_and_b32 {v(t3)}, 1, {v(t1)}")
        else:
            a(f"v_mov_b32 {v(t3)}, 0")
        a(f"v_mul_u32_u24 {v(t2)}, {RB}, {v(t2)}")
        a(f"v_and_b32 {v(t0)}, 3, v1")
        a(f"v_lshl_add_u32 {v(t2)}, {v(t0)}, 3, {v(t2)}")
        a(f"v_add_u32 {v(t2)}, {ABYTES}, {v(t2)}")

    def wfrag_addr(dst):
        if RB == 448:
            a("s_mov_b32 s47, 0")
        elif PPR > 1:
            a(f"s_lshr_b32 s47, s46, {lg_ppr}")
            a(f"s_and_b32 s46, s46, {PPR-1}")
        else:
            a("s_mov_b32 s47, s46")
            a("s_mov_b32 s46, 0")
        a(f"s_mul_i32 s47, s47, {64*RB}")
        a(f"v_xor_b32 {v(t0)}, s46, {v(t3)}")
        a(f"v_lshl_add_u32 {v(t0)}, {v(t0)}, 5, {v(t2)}")
        a(f"v_add_u32 {v(dst)}, s47, {v(t0)}")

    kernel_header(a, name)
    end = a.newlabel("L_end")
    stamp(0)
    lab_loader = a.newlabel("L_loader")
    lab_store = a.newlabel("L_store")
    a(f"s_cmp_ge_u32 s2, {ntiles}")
    a(f"s_cbranch_scc1 {end}")
    a(f"s_load_dwordx2 s[24:25], s[0:1], {ARG['ws']}")
    a(f"s_load_dwordx2 s[58:59], s[0:1], {ARG[a_arg]}")
    a(f"s_load_dwordx2 s[26:27], s[0:1], {ARG[w_arg]}")
    a(f"s_load_dwordx2 s[34:35], s[0:1], {ARG[out_arg]}")
    if res_arg:
        a(f"s_load_dwordx2 s[36:37], s[0:1], {ARG[res_arg]}")
    if bias_arg:
        a(f"s_load_dwordx2 s[38:39], s[0:1], {ARG[bias_arg]}")
    XSPL = bool(splitk) and RA * RBN == 32
    assert ntiles == 256 and RA * RBN == (16 if splitk and not XSPL else 32) and NT_M % RA == 0 and NT_N % RBN == 0
    XB = NT_N // RBN
    a("s_and_b32 s3, s2, 7")
    a("s_lshr_b32 s46, s2, 3")
    if splitk:
        if XSPL:
            a("s_and_b32 s92, s3, 1")
            a("s_lshr_b32 s3, s3, 1")
            a("s_lshl_b32 s96, s3, 5")
        else:
            a("s_lshr_b32 s92, s46, 4")
            a("s_and_b32 s46, s46, 15")
            a("s_lshl_b32 s96, s3, 4")
        a("s_add_u32 s96, s96, s46")
        a("s_cmp_eq_u32 s92, 0")
        a(f"s_cselect_b32 s93, {NSLO}, {NSHI}")
        a("s_mov_b32 s94, 1")
    a(f"s_lshr_b32 s28, s3, {int(math.log2(XB))}")
    a(f"s_and_b32 s29, s3, {XB-1}")
    a(f"s_mul_i32 s28, s28, {RA}")
    a(f"s_mul_i32 s29, s29, {RBN}")
    a(f"s_lshr_b32 s3, s46, {int(math.log2(RBN))}")
    a("s_add_u32 s28, s28, s3")
    NROT = int(os.environ.get('NROT', '0'))
    if NROT: a(f"s_add_u32 s46, s46, {NROT}")
    a(f"s_and_b32 s3, s46, {RBN-1}")
    a("s_add_u32 s29, s29, s3")
    a("v_and_b32 v1, 63, v0")
    a(f"v_lshrrev_b32 {v(vT[0])}, 6, v0")
    a("s_nop 0")
    a(f"v_readfirstlane_b32 s49, {v(vT[0])}")
    a("s_nop 3")
    a("s_and_b32 s30, s49, 3")
    a("s_lshr_b32 s44, s30, 1")
    a("s_and_b32 s45, s30, 1")

    WBYTES = NT_N * (K // 2) * 1024 if wt7 else K * N * 2
    def build_srds(rest=False):
        if not rest:
            a("s_waitcnt lgkmcnt(0)")
            srd(a, 4, 58, a_off, M * lda)
            srd(a, 8, 26, w_off or 0, WBYTES)
        srd(a, 12, 34, out_off, M * ldo)
        if res_arg:
            srd(a, 16, 36, res_off, M * N * 2 * (TX if rtile else 1))
        if bias_arg:
            srd(a, 20, 38, 0, N * 2)
        if pre or stats_out:
            srd(a, 84, 24, WS_ST, S * 128)
        if pre:
            srd(a, 88, 24, WS_CS, 16 * N * 4)
        if splitk:
            srd(a, 84, 24, WS_PART, 128 * 65536)
            srd(a, 88, 24, WS_FLAG, 512)

    FS = 'nofs' not in EXP and not splitk and not zero_flags and RB in (128, 448) and BN in (64, 224) and 'nodma' not in EXP
    if FS:
        lab_comp = a.newlabel("L_comp")
        a("s_cmp_lt_u32 s49, 4")
        a(f"s_cbranch_scc1 {lab_comp}")
        pos_ins = len(a.lines)
        a.label(lab_comp)
    else:
        a("s_cmp_ge_u32 s49, 4")
        a(f"s_cbranch_scc1 {lab_loader}")

    a(f"v_and_b32 {v(t0)}, 15, v1")
    a("s_lshl_b32 s3, s44, 6")
    a(f"v_add_u32 {v(t0)}, s3, {v(t0)}")
    a(f"v_lshlrev_b32 {v(t0)}, 7, {v(t0)}")
    a(f"v_lshrrev_b32 {v(t1)}, 4, v1")
    a(f"v_bfe_u32 {v(t2)}, v1, 1, 3")
    a(f"v_xor_b32 {v(t3)}, {v(t1)}, {v(t2)}")
    a(f"v_lshl_add_u32 {v(vXb[0])}, {v(t3)}, 4, {v(t0)}")
    a(f"v_xor_b32 {v(t3)}, 4, {v(t3)}")
    a(f"v_lshl_add_u32 {v(vXb[1])}, {v(t3)}, 4, {v(t0)}")
    wfrag_addr_common()
    a(f"s_mul_i32 s3, s45, {NTW}")
    for nt in range(NTW):
        a(f"s_add_u32 s46, s3, {nt}")
        wfrag_addr(vWb[nt])
    for i in range(4 * MT * NTW):
        a(f"v_mov_b32 v{ACC+i}, 0")
    a("s_mov_b32 s42, 0")
    build_srds()
    if bias_arg and not pre:
        a(f"v_lshrrev_b32 {v(t0)}, 4, v1")
        a(f"v_lshlrev_b32 {v(t0)}, 3, {v(t0)}")
        a(f"s_mul_i32 s3, s29, {BN*2}")
        a(f"s_mul_i32 s46, s45, {BN}")
        a("s_add_u32 s3, s3, s46")
        for nt in range(NTW):
            a(f"buffer_load_dwordx2 {v(PBI+2*nt,2)}, {v(t0)}, s[20:23], s3 offen offset:{32*nt}")

    def set_cur():
        for kk in range(2):
            a(f"v_add_u32 {v(vXc[kk])}, s42, {v(vXb[kk])}")
        for nt in range(NTW):
            a(f"v_add_u32 {v(vWc[nt])}, s42, {v(vWb[nt])}")
        a(f"s_add_u32 s42, s42, {STAGE}")
        a(f"s_cmp_ge_u32 s42, {STAGE*NSTAGE}")
        a("s_cselect_b32 s42, 0, s42")

    def read_list(kk, f):
        if 'noreads' in EXP: return []
        L = []
        for nt in range(NTW):
            if nt < MT:
                L.append(f"ds_read_b128 {v(FX[f]+4*nt,4)}, {v(vXc[kk])} offset:{nt*2048}")
            for rd in range(2):
                L.append(f"ds_read_b64_tr_b16 {v(FW[f]+4*nt+2*rd,2)}, {v(vWc[nt])} offset:{kk*32*RB+rd*4*RB}")
        for mt in range(NTW, MT):
            L.append(f"ds_read_b128 {v(FX[f]+4*mt,4)}, {v(vXc[kk])} offset:{mt*2048}")
        return L

    def mfma_list(f):
        if 'nomfma' in EXP: return []
        L = []
        for nt in range(NTW):
            for mt in range(MT):
                L.append(f"v_mfma_f32_16x16x32_bf16 {v(acc(nt,mt),4)}, {v(FW[f]+4*nt,4)}, {v(FX[f]+4*mt,4)}, {v(acc(nt,mt),4)}")
        return L

    def reads(kk, f):
        for x in read_list(kk, f): a(x)

    def mfmas(f):
        for x in mfma_list(f): a(x)

    def inter(kk, fr, fm):
        R = read_list(kk, fr); Mm = mfma_list(fm)
        rpm = RPM if NTW <= 4 else 1
        ri = 0
        for i in range(len(Mm)):
            a(Mm[i])
            for _ in range(rpm):
                if ri < len(R): a(R[ri]); ri += 1
        while ri < len(R): a(R[ri]); ri += 1

    SLC = int(os.environ.get('SLC', '1')); SLL = int(os.environ.get('SLL', '1'))
    vRA, vCA, vCV, vFT = vT[4], vT[5], vT[6], vT[7]
    slow = []
    SH = not FL and not splitk and 'nosh' not in EXP
    def blockS(extra=None, tail=()):
        R = read_list(1, 1); Mm = mfma_list(0)
        rpm = RPM if NTW <= 4 else 1
        cur = [f"v_add_u32 {v(vXc[kk])}, s42, {v(vXb[kk])}" for kk in range(2)] + [f"v_add_u32 {v(vWc[nt])}, s42, {v(vWb[nt])}" for nt in range(NTW)]
        cur += [f"s_add_u32 s42, s42, {STAGE}", f"s_cmp_ge_u32 s42, {STAGE*NSTAGE}", "s_cselect_b32 s42, 0, s42"]
        ri = 0; ex_done = False; tail = list(tail)
        for i in range(len(Mm)):
            a(Mm[i])
            k_ = 0
            while k_ < rpm and ri < len(R): a(R[ri]); ri += 1; k_ += 1
            if ri == len(R) and k_ == 0:
                if cur:
                    for _ in range(3):
                        if cur: a(cur.pop(0))
                elif not ex_done:
                    if extra: extra()
                    ex_done = True
                    for x in tail: a(x)
        while ri < len(R): a(R[ri]); ri += 1
        for x in cur: a(x)
        if not ex_done:
            if extra: extra()
            for x in tail: a(x)
        a("s_waitcnt lgkmcnt(0)")
    def blockB(extra=None):
        R = read_list(1, 1); Mm = mfma_list(0)
        rpm = RPM if NTW <= 4 else 1
        HB = int(os.environ.get('FLHB', '4')) if len(Mm) > 16 else int(os.environ.get('FLHS', '2'))
        FP = int(os.environ.get('FLFP', '8')) if len(Mm) > 16 else 0
        cur = [f"v_add_u32 {v(vXc[kk])}, s42, {v(vXb[kk])}" for kk in range(2)] + [f"v_add_u32 {v(vWc[nt])}, s42, {v(vWb[nt])}" for nt in range(NTW)]
        cur += [f"s_add_u32 s42, s42, {STAGE}", f"s_cmp_ge_u32 s42, {STAGE*NSTAGE}", "s_cselect_b32 s42, 0, s42"]
        fr = f"ds_read_b32 {v(vFT)}, {v(vRA)}"
        ri = 0; done_fr = False
        n1 = len(Mm) - HB
        for i in range(n1):
            a(Mm[i])
            k_ = 0
            while k_ < rpm and ri < len(R): a(R[ri]); ri += 1; k_ += 1
            if ri == len(R) and k_ < rpm or (ri == len(R) and k_ == 0):
                if not done_fr and i >= n1 - 1 - FP: a(fr); done_fr = True
                for _ in range(3):
                    if cur: a(cur.pop(0))
        while ri < len(R): a(R[ri]); ri += 1
        if not done_fr: a(fr)
        for x in cur: a(x)
        if extra: extra()
        a(f"v_add_u32 {v(vCV)}, 1, {v(vCV)}")
        a("s_waitcnt lgkmcnt(0)")
        rest = Mm[n1:]
        lsl = a.newlabel("L_fslow"); lbk = a.newlabel("L_fback")
        seq = [[f"ds_write_b32 {v(vCA)}, {v(vCV)}", f"v_cmp_ge_u32 vcc, {v(vCV)}, {v(vFT)}"]]
        for g_ in seq:
            if rest: a(rest.pop(0))
            for x in g_: a(x)
        for x in rest: a(x)
        a(f"s_cbranch_vccnz {lsl}")
        a.label(lbk)
        slow.append((lsl, lbk))

    if 'cpf' in EXP:
        lh = a.newlabel("L_pc")
        a("s_getpc_b64 s[46:47]")
        a.label(lh)
        a(f"v_lshlrev_b32 {v(t0)}, 4, v1")
        a("s_lshl_b32 s3, s30, 10")
        for j in range(int(os.environ.get('NCPF', '4'))):
            a(f"s_min_u32 s92, s3, {end}-{lh}-1024")
            a(f"v_add_u32 {v(t1)}, s92, {v(t0)}")
            a(f"global_load_dwordx4 {v(FX[0],4)}, {v(t1)}, s[46:47]")
            a("s_add_u32 s3, s3, 4096")
        a("s_waitcnt vmcnt(0)")
    if wpf:
        a("s_lshl_b32 s3, s2, 2")
        a("s_add_u32 s3, s3, s30")
        for q, (arg, nbytes, hi) in enumerate(wpf):
            a(f"s_load_dwordx2 s[{94+2*q}:{95+2*q}], s[0:1], {ARG[arg]}")
            a(f"s_mul_i32 s{92+q}, s3, {nbytes//1024}")
        a("s_waitcnt lgkmcnt(0)")
        for q, (arg, nbytes, hi) in enumerate(wpf):
            assert nbytes % (1 << 20) == 0
            srd(a, 84 + 4 * q, 94 + 2 * q, 0, nbytes)
        a(f"v_lshlrev_b32 {v(PFV)}, {PFS}, v1")
    if c3src:
        c_arg, c_rows, c_off = c3src
        assert c_rows * 2 == 7 * 1024 and wpf[0][0] == c_arg and PFS == 4 and wpf[0][2] < 0 and NS == 16 and len(wpf) == 1
        a("s_mul_i32 s3, s3, 7")
        a("v_lshrrev_b32 v2, 3, v1")
        a("v_and_b32 v4, 7, v1")
        a("v_lshlrev_b32 v4, 4, v4")
        a("v_lshl_add_u32 v3, v2, 10, v4")
        a("v_add_u32 v2, s3, v2")
        a("v_and_b32 v5, 1, v2")
        a(f"v_mul_u32_u24 v5, {c_rows*256}, v5")
        a("v_lshrrev_b32 v2, 1, v2")
        a("v_lshl_add_u32 v2, v2, 8, v4")
        a("v_add_u32 v2, v2, v5")
    if spf:
        assert RA * BM == 512 and RBN * BN == 512
        a("s_lshr_b32 s3, s2, 3")
        a("s_lshl_b32 s3, s3, 2")
        a("s_add_u32 s3, s3, s30")
        a(f"s_lshr_b32 s46, s28, {int(math.log2(RA))}")
        if ATILE:
            a(f"s_mul_i32 s46, s46, {RA*BM*lda}")
            a("s_lshr_b32 s47, s3, 4")
            a(f"s_mul_i32 s47, s47, {BM*lda}")
            a("s_add_u32 s46, s46, s47")
            a("s_and_b32 s47, s3, 15")
            a("s_lshl_b32 s47, s47, 13")
            a("s_add_u32 s96, s46, s47")
            astep, arow = 8 * BM * 128, 1024
        else:
            a(f"s_mul_i32 s46, s46, {RA*BM}")
            a("s_lshl_b32 s47, s3, 3")
            a("s_add_u32 s46, s46, s47")
            a(f"s_mul_i32 s96, s46, {lda}")
            astep, arow = 1024, lda
        a("s_sub_u32 s46, s3, 64")
        a(f"s_mul_i32 s46, s46, {8*N*2}")
        a(f"s_lshr_b32 s47, s29, {int(math.log2(RBN))}")
        a("s_lshl_b32 s47, s47, 10")
        a("s_add_u32 s46, s46, s47")
        a(f"s_mov_b32 s97, {512*N*2}")
        a(f"s_mov_b32 s47, {N*2}")
        a("s_cmp_lt_u32 s3, 64")
        a("s_cselect_b32 s96, s96, s46")
        a(f"s_cselect_b32 s97, {astep}, s97")
        a(f"s_cselect_b32 s47, {arow}, s47")
        for i in range(4):
            a(f"s_cselect_b32 s{76+i}, s{4+i}, s{8+i}")
        a(f"v_lshrrev_b32 {v(t0)}, 3, v1")
        a(f"v_and_b32 {v(t1)}, 7, v1")
        a(f"v_mul_u32_u24 {v(t0)}, s47, {v(t0)}")
        a(f"v_lshl_add_u32 {v(PFD+1)}, {v(t1)}, 7, {v(t0)}")

        def spf1():
            a(f"buffer_load_dword {v(PFD)}, {v(PFD+1)}, s[76:79], s96 offen")
            a("s_add_u32 s96, s96, s97")
        for _ in range(spf[0]): spf1()
    if sp2:
        assert RA * BM == 512 and RBN * BN == 512 and ATILE
        W0 = sp2; DD = W0 + 7
        a("s_lshr_b32 s3, s2, 3")
        a("s_lshl_b32 s3, s3, 2")
        a("s_add_u32 s3, s3, s30")
        a(f"s_sub_u32 s98, s3, {W0}")
        a("s_and_b32 s98, s98, 7")
        a(f"s_add_u32 s99, s98, {W0}")
        a("s_lshr_b32 s3, s3, 3")
        a(f"s_and_b32 s46, s28, {-RA & 0xffffffff}")
        a("s_lshr_b32 s47, s3, 1")
        a("s_add_u32 s46, s46, s47")
        a(f"s_mul_i32 s46, s46, {BM*lda}")
        a("s_and_b32 s47, s3, 1")
        a(f"s_mul_i32 s47, s47, {64*TP}")
        a("s_add_u32 s46, s46, s47")
        a(f"s_mul_i32 s47, s99, {ASTEP}")
        a("s_add_u32 s96, s46, s47")
        a("s_sub_u32 s46, s3, 8")
        a("s_lshl_b32 s46, s46, 3")
        a("s_lshl_b32 s47, s99, 6")
        a("s_add_u32 s46, s46, s47")
        a(f"s_mul_i32 s46, s46, {N*2}")
        a(f"s_lshr_b32 s47, s29, {int(math.log2(RBN))}")
        a("s_lshl_b32 s47, s47, 10")
        a("s_add_u32 s46, s46, s47")
        a(f"s_mov_b32 s97, {512*N*2}")
        a(f"s_mov_b32 s47, {N*2}")
        a("s_mov_b32 s93, 7")
        a("s_cmp_lt_u32 s3, 8")
        a("s_cselect_b32 s96, s96, s46")
        a(f"s_cselect_b32 s97, {8*ASTEP}, s97")
        a(f"s_cselect_b32 s47, {8*TP}, s47")
        a(f"s_cselect_b32 s93, {TSH}, s93")
        for i in range(4):
            a(f"s_cselect_b32 s{76+i}, s{4+i}, s{8+i}")
        a(f"v_lshrrev_b32 {v(t0)}, 3, v1")
        a(f"v_and_b32 {v(t1)}, 7, v1")
        a(f"v_mul_u32_u24 {v(t0)}, s47, {v(t0)}")
        a(f"v_lshlrev_b32 {v(t1)}, s93, {v(t1)}")
        a(f"v_add_u32 {v(PFD+1)}, {v(t1)}, {v(t0)}")
        a(f"s_sub_u32 s98, {NS + DD - 8}, s99")

        def spf1():
            a(f"buffer_load_dword {v(PFD)}, {v(PFD+1)}, s[76:79], s96 offen")
            a("s_add_u32 s96, s96, s97")
        if 'sp2late' not in EXP: spf1()
    if sp4:
        assert RA == 8 and RBN * BN * 2 == 1792 and ATILE and TP == 128 and not wt7
        K0, NINI, PHS = sp4
        a("s_lshr_b32 s3, s2, 3")
        a("s_lshl_b32 s3, s3, 2")
        a("s_add_u32 s3, s3, s30")
        a(f"s_and_b32 s46, s28, {-RA & 0xffffffff}")
        a("s_lshr_b32 s47, s3, 3")
        a("s_add_u32 s46, s46, s47")
        a(f"s_mul_i32 s46, s46, {BM*lda}")
        a("s_and_b32 s47, s3, 7")
        a("s_lshl_b32 s47, s47, 13")
        a("s_add_u32 s46, s46, s47")
        a(f"s_add_u32 s96, s46, {K0*ASTEP}")
        a(f"v_lshlrev_b32 {v(t0)}, 7, v1")
        a("s_sub_u32 s46, s3, 64")
        a("s_lshl_b32 s46, s46, 6")
        a(f"v_add_u32 {v(t1)}, s46, v1")
        a(f"s_mov_b32 s47, {((1 << 32) + 13) // 14}")
        a(f"v_mul_hi_u32 {v(t2)}, {v(t1)}, s47")
        a(f"v_mul_u32_u24 {v(t3)}, 14, {v(t2)}")
        a(f"v_sub_u32 {v(t1)}, {v(t1)}, {v(t3)}")
        a(f"v_mul_u32_u24 {v(t2)}, {N*2}, {v(t2)}")
        a(f"v_lshl_add_u32 {v(t1)}, {v(t1)}, 7, {v(t2)}")
        a(f"s_lshr_b32 s47, s29, {int(math.log2(RBN))}")
        a("s_mul_i32 s47, s47, 1792")
        a(f"s_add_u32 s47, s47, {K0*64*N*2}")
        a("s_cmp_ge_u32 s3, 120")
        a("s_cselect_b32 s47, 0x60000000, s47")
        a(f"s_mov_b32 s97, {256*N*2}")
        a("s_cmp_lt_u32 s3, 64")
        a("s_cselect_b64 vcc, -1, 0")
        a("s_cselect_b32 s96, s96, s47")
        a(f"s_cselect_b32 s97, {4*ASTEP}, s97")
        for i in range(4):
            a(f"s_cselect_b32 s{76+i}, s{4+i}, s{8+i}")
        a(f"v_cndmask_b32 v8, {v(t1)}, {v(t0)}, vcc")

        def spf1():
            a(f"buffer_load_dword {v(PFD)}, v8, s[76:79], s96 offen")
            a("s_add_u32 s96, s96, s97")
        for _ in range(NINI): spf1()
        NPH = -(-(NS - K0) // 4) - NINI
    if l2pf:
        NPA = RA * BM // 8
        NPW = BK * (RBN * BN * 2) // 1024
        WPR = RBN * BN * 2 // 1024
        assert NPA + NPW == 128 and WPR == 1
        lw = a.newlabel("L_pfw"); ld = a.newlabel("L_pfd")
        a("s_lshr_b32 s3, s2, 3")
        a("s_lshl_b32 s3, s3, 2")
        a("s_add_u32 s3, s3, s30")
        a(f"s_cmp_ge_u32 s3, {NPA}")
        a(f"s_cbranch_scc1 {lw}")
        a(f"s_lshr_b32 s46, s28, {int(math.log2(RA))}")
        a(f"s_mul_i32 s46, s46, {RA*BM}")
        a("s_lshl_b32 s3, s3, 3")
        a("s_add_u32 s3, s3, s46")
        a(f"v_lshrrev_b32 {v(PFV)}, 3, v1")
        a(f"v_add_u32 {v(PFV)}, s3, {v(PFV)}")
        a(f"v_mul_u32_u24 {v(PFV)}, {lda}, {v(PFV)}")
        a(f"v_and_b32 {v(t0)}, 7, v1")
        a(f"v_lshl_add_u32 {v(PFV)}, {v(t0)}, 4, {v(PFV)}")
        for i in range(4): a(f"s_mov_b32 s{84+i}, s{4+i}")
        a(f"s_mov_b32 s92, {l2pf*BK*2}")
        a(f"s_mov_b32 s93, {BK*2}")
        a(f"s_branch {ld}")
        a.label(lw)
        a(f"s_sub_u32 s3, s3, {NPA}")
        a(f"s_mul_i32 s3, s3, {N*2}")
        a(f"s_lshr_b32 s46, s29, {int(math.log2(RBN))}")
        a(f"s_mul_i32 s46, s46, {RBN*BN*2}")
        a("s_add_u32 s3, s3, s46")
        a(f"v_lshlrev_b32 {v(PFV)}, 4, v1")
        a(f"v_add_u32 {v(PFV)}, s3, {v(PFV)}")
        for i in range(4): a(f"s_mov_b32 s{84+i}, s{8+i}")
        a(f"s_mov_b32 s92, {l2pf*BK*N*2}")
        a(f"s_mov_b32 s93, {BK*N*2}")
        a.label(ld)
        a(f"s_mul_i32 s3, s93, {NSTAGE-1}")
        for j in range(NSTAGE - 1, l2pf):
            a(f"buffer_load_dwordx4 {v(PFD,4)}, {v(PFV)}, s[84:87], s3 offen")
            a("s_add_u32 s3, s3, s93")
    if splitk:
        a("s_xor_b32 s95, s92, 1")
        a(f"v_mov_b32 {v(PFL)}, 0")
        a("s_lshl_b32 s3, s96, 2")
        a(f"v_mov_b32 {v(PFA)}, s3")
        a("s_add_u32 s3, s3, s30")
        a("s_lshl_b32 s3, s3, 14")
        a(f"v_lshlrev_b32 {v(PPA)}, 4, v1")
        a(f"v_add_u32 {v(PPA)}, s3, {v(PPA)}")
    DRY = dry and not splitk
    if DRY:
        a.dry_begin(30, 95)
    if FL:
        a(f"v_and_b32 {v(vRA)}, 3, v1")
        a(f"v_lshlrev_b32 {v(vRA)}, 8, {v(vRA)}")
        a(f"v_lshl_add_u32 {v(vRA)}, v1, 2, {v(vRA)}")
        a(f"v_add_u32 {v(vRA)}, {FLG}, {v(vRA)}")
        a("s_lshl_b32 s3, s30, 8")
        a(f"s_add_u32 s3, s3, {FLG+1024}")
        a(f"v_lshl_add_u32 {v(vCA)}, v1, 2, s3")
        a(f"v_mov_b32 {v(vCV)}, 0")
        a(f"ds_write_b32 {v(vCA)}, {v(vCV)}")
        set_cur()
        a("s_waitcnt lgkmcnt(0)")
    if SH: set_cur()
    stamp(1)
    lab_cpass = a.newlabel("L_cpass")
    a.label(lab_cpass)
    a("s_barrier")
    stamp(2)
    if not FL and not SH: set_cur()
    reads(0, 0)
    a("s_waitcnt lgkmcnt(0)")
    if FL: blockB()
    elif SH: blockS()
    else:
        inter(1, 1, 0)
        a("s_waitcnt lgkmcnt(0)")
    if splitk: a("s_sub_u32 s48, s93, 1")
    else: a(f"s_mov_b32 s48, {NS-1}")
    if sp2 and 'sp2late' in EXP: spf1()
    if c3src:
        a("s_mov_b32 exec_hi, 0x00ffffff")
        a("buffer_load_dwordx4 v[4:7], v3, s[84:87], s92 offen offset:384")
        a("s_mov_b32 exec_hi, -1")
    loop = a.newlabel("L_cloop")
    a.label(loop)
    if not FL:
        a("s_barrier")
        if not SH: set_cur()
    inter(0, 0, 1)
    a("s_waitcnt lgkmcnt(0)")
    if not FL and not SH: inter(1, 1, 0)
    cutx = len(a.lines)
    if l2pf:
        a(f"buffer_load_dwordx4 {v(PFD,4)}, {v(PFV)}, s[84:87], s92 offen")
        a("s_add_u32 s92, s92, s93")
    if spf and NS > 8 * spf[0]:
        lsp = a.newlabel("L_spf"); lspb = a.newlabel("L_spfb")
        a("s_and_b32 s3, s48, 7")
        a(f"s_cmp_eq_u32 s3, {spf[1]}")
        a(f"s_cbranch_scc1 {lsp}")
        a.label(lspb)
    if sp4:
        lsp = a.newlabel("L_spf"); lspb = a.newlabel("L_spfb")
        a("s_and_b32 s3, s48, 3")
        a(f"s_cmp_eq_u32 s3, {PHS & 3}")
        a(f"s_cbranch_scc1 {lsp}")
        a.label(lspb)
    if sp2:
        lsp = a.newlabel("L_spf"); lspb = a.newlabel("L_spfb")
        a("s_cmp_eq_u32 s48, s98")
        a(f"s_cbranch_scc1 {lsp}")
        a.label(lspb)
    if wpf:
        for q, (arg, nbytes, hi) in enumerate(wpf):
            n = (nbytes >> 20) if PFS == 4 else -(-(nbytes >> 10) // (64 << PFS))
            lsk = a.newlabel("L_wpfs")
            if hi < 0:
                a("s_bitcmp1_b32 s48, 0")
            else:
                a(f"s_sub_u32 s3, s48, {hi-n+1}")
                a(f"s_cmp_ge_u32 s3, {n}")
            a(f"s_cbranch_scc1 {lsk}")
            if PFS == 4:
                a(f"buffer_load_dwordx4 {v(PFD,4)}, {v(PFV)}, s[{84+4*q}:{87+4*q}], s{92+q} offen")
            else:
                a(f"buffer_load_dword {v(PFD)}, {v(PFV)}, s[{84+4*q}:{87+4*q}], s{92+q} offen")
            a(f"s_add_u32 s{92+q}, s{92+q}, {64 << PFS}")
            a.label(lsk)
    if splitk:
        cskip = a.newlabel("L_cskip"); cpoll = a.newlabel("L_cpoll")
        a("s_cmp_lg_u32 s95, 0")
        a(f"s_cbranch_scc1 {cskip}")
        a(f"v_readfirstlane_b32 s3, {v(PFL)}")
        a("s_nop 3")
        a("s_cmp_eq_u32 s3, 0")
        a(f"s_cbranch_scc1 {cpoll}")
        a("s_mov_b32 s95, 1")
        for t_ in range(MT * NTW):
            a(f"s_mov_b32 s3, {1024*t_}")
            a(f"buffer_load_dwordx4 {v(PRT+4*t_,4)}, {v(PPA)}, s[84:87], s3 offen")
        a(f"s_branch {cskip}")
        a.label(cpoll)
        if 'forcefb' not in EXP: a(f"buffer_load_dword {v(PFL)}, {v(PFA)}, s[88:91], 0 offen sc0 sc1")
        a.label(cskip)
    if FL:
        ex = a.lines[cutx:]; del a.lines[cutx:]
        blockB(lambda: a.lines.extend(ex))
    elif SH:
        ex = a.lines[cutx:]; del a.lines[cutx:]
        blockS(lambda: a.lines.extend(ex), ["s_sub_u32 s48, s48, 1", "s_cmp_lg_u32 s48, 0"])
    else: a("s_waitcnt lgkmcnt(0)")
    if not SH:
        a("s_sub_u32 s48, s48, 1")
        a("s_cmp_lg_u32 s48, 0")
    a(f"s_cbranch_scc1 {loop}")
    stamp(3)
    if FL and not epi2: a("s_barrier")
    if c3src:
        srd(a, 76, 24, c_off, 2 * c_rows * 256)
        a("s_waitcnt vmcnt(7)")
        a("s_mov_b32 exec_hi, 0x00ffffff")
        a("buffer_store_dwordx4 v[4:7], v2, s[76:79], 0 offen")
        a("s_mov_b32 exec_hi, -1")
    if epi2:
        FROW = BN * 4 + 16
        assert BM * FROW <= STAGE * NSTAGE and (FROW // 4) % 32 == 4
        a("s_barrier")
        ml = mfma_list(1)
        a(f"v_and_b32 {v(t2)}, 15, v1")
        a("s_lshl_b32 s3, s44, 6")
        a(f"v_add_u32 {v(t2)}, s3, {v(t2)}")
        a(f"v_mul_u32_u24 {v(t2)}, {FROW}, {v(t2)}")
        a(f"v_bfe_u32 {v(t3)}, v1, 4, 1")
        a(f"v_mul_u32_u24 {v(t3)}, {BN*2}, {v(t3)}")
        a(f"v_add_u32 {v(t2)}, {v(t2)}, {v(t3)}")
        a(f"v_lshrrev_b32 {v(t3)}, 5, v1")
        a(f"v_lshl_add_u32 {v(t2)}, {v(t3)}, 4, {v(t2)}")
        a(f"s_mul_i32 s3, s45, {NTW*32}")
        a(f"v_add_u32 {v(t2)}, s3, {v(t2)}")
        wl = [f"ds_write_b128 {v(t2)}, {v(acc(nt,mt),4)} offset:{mt*16*FROW + nt*32}" for nt in range(NTW) for mt in range(MT)]
        for i, x in enumerate(ml):
            a(x)
            if i >= 6: a(wl[i - 6])
        a("s_nop 7")
        a("s_nop 7")
        for x in wl[len(ml) - 6:]: a(x)
        a("s_waitcnt lgkmcnt(0)")
        stamp(4)
        a("s_barrier")
        a(f"s_branch {lab_store}")
    else:
        mfmas(1)
    if ln and not pre:
        a("s_barrier")
    if splitk:
        lab_hi = a.newlabel("L_hi"); lab_epi = a.newlabel("L_epi"); lab_fb = a.newlabel("L_fb")
        a("s_cmp_lg_u32 s92, 0")
        a(f"s_cbranch_scc1 {lab_hi}")
        a("s_nop 7")
        for t_ in range(MT * NTW):
            a(f"s_mov_b32 s3, {1024*t_}")
            a(f"buffer_store_dwordx4 {v(ACC+4*t_,4)}, {v(PPA)}, s[84:87], s3 offen sc0 sc1")
        a("s_waitcnt vmcnt(0)")
        a("s_barrier")
        a("s_cmp_lg_u32 s30, 0")
        a(f"s_cbranch_scc1 {end}")
        a(f"v_mov_b32 {v(t1)}, 1")
        a("s_mov_b64 exec, 1")
        a(f"buffer_store_dword {v(t1)}, {v(PFA)}, s[88:91], 0 offen sc0 sc1")
        a(f"s_branch {end}")
        a.label(lab_hi)
        a("s_lshl_b32 s3, s30, 2")
        a(f"s_add_u32 s3, s3, {DONE}")
        a(f"v_mov_b32 {v(t0)}, s3")
        a(f"v_mov_b32 {v(t1)}, s95")
        a(f"ds_write_b32 {v(t0)}, {v(t1)}")
        a("s_waitcnt lgkmcnt(0)")
        a("s_barrier")
        a("s_cmp_eq_u32 s94, 2")
        a(f"s_cbranch_scc1 {lab_epi}")
        a(f"v_mov_b32 {v(t1)}, {DONE}")
        a(f"ds_read_b128 {v(FX[0],4)}, {v(t1)}")
        a("s_waitcnt lgkmcnt(0)")
        a(f"v_and_b32 {v(FX[0])}, {v(FX[0])}, {v(FX[0]+1)}")
        a(f"v_and_b32 {v(FX[0]+2)}, {v(FX[0]+2)}, {v(FX[0]+3)}")
        a(f"v_and_b32 {v(FX[0])}, {v(FX[0])}, {v(FX[0]+2)}")
        a("s_nop 0")
        a(f"v_readfirstlane_b32 s3, {v(FX[0])}")
        a("s_nop 3")
        a("s_cmp_eq_u32 s3, 1")
        a(f"s_cbranch_scc0 {lab_fb}")
        a("s_waitcnt vmcnt(0)")
        for t_ in range(MT * NTW):
            for j in range(2):
                a(f"v_pk_add_f32 {v(ACC+4*t_+2*j,2)}, {v(ACC+4*t_+2*j,2)}, {v(PRT+4*t_+2*j,2)}")
        a(f"s_branch {lab_epi}")
        a.label(lab_fb)
        a("s_mov_b32 s94, 2")
        a("s_mov_b32 s95, 1")
        a(f"s_mov_b32 s93, {NSLO}")
        a("s_mov_b32 s42, 0")
        a("s_barrier")
        a(f"s_branch {lab_cpass}")
        a.label(lab_epi)
    cut0 = len(a.lines)
    if DRY: a.dry_entry()
    RT = FX[0]; CS = RT + 8; BR = CS + 4 * NTW; BF = BR + 2 * NTW; GE = BF + 4 * NTW
    assert GE + 10 <= ACC
    a(f"v_and_b32 {v(t2)}, 15, v1")
    a("s_lshl_b32 s3, s44, 6")
    a(f"v_add_u32 {v(t2)}, s3, {v(t2)}")
    a(f"v_lshrrev_b32 {v(t3)}, 4, v1")
    a(f"s_mul_i32 s3, s45, {NTW*4}")
    a(f"v_add_u32 {v(t3)}, s3, {v(t3)}")
    if ln:
        a(f"v_lshlrev_b32 {v(t0)}, 3, {v(t2)}")
        a(f"v_add_u32 {v(t0)}, {RTAB}, {v(t0)}")
        for mt in range(MT):
            a(f"ds_read_b64 {v(RT+2*mt,2)}, {v(t0)} offset:{128*mt}")
        a(f"v_lshlrev_b32 {v(t0)}, 4, {v(t3)}")
        a(f"v_add_u32 {v(t0)}, {CTAB}, {v(t0)}")
        for nt in range(NTW):
            a(f"ds_read_b128 {v(CS+4*nt,4)}, {v(t0)} offset:{64*nt}")
    if bias_arg and pre:
        a(f"v_lshlrev_b32 {v(t0)}, 3, {v(t3)}")
        a(f"v_add_u32 {v(t0)}, {EPI}, {v(t0)}")
        for nt in range(NTW):
            a(f"ds_read_b64 {v(BR+2*nt,2)}, {v(t0)} offset:{32*nt}")
    vc = vT[0]
    a(f"v_mul_u32_u24 {v(t2)}, {CROW}, {v(t2)}")
    a(f"v_lshl_add_u32 {v(vc)}, {v(t3)}, 3, {v(t2)}")
    if CBASE: a(f"v_add_u32 {v(vc)}, {CBASE}, {v(vc)}")
    if epi == 'gelu':
        c2 = 2 * math.log2(math.e)
        k1 = struct.unpack("<I", struct.pack("<f", 0.7978845608 * c2))[0]
        k3 = struct.unpack("<I", struct.pack("<f", 0.7978845608 * 0.044715 * c2))[0]
        a(f"s_mov_b32 s52, {k3}"); a(f"s_mov_b32 s53, {k3}")
        a(f"v_mov_b32 {v(GE+8)}, {k1}"); a(f"v_mov_b32 {v(GE+9)}, {k1}")
        a("s_mov_b32 s56, 1.0"); a("s_mov_b32 s57, 1.0")
    a("s_waitcnt vmcnt(0) lgkmcnt(0)" if (bias_arg and not pre) else "s_waitcnt lgkmcnt(0)")
    a("s_nop 7")
    if bias_arg:
        bsrc = BR if pre else PBI
        for nt in range(NTW):
            for j in range(2):
                a(f"v_lshlrev_b32 {v(BF+4*nt+2*j)}, 16, {v(bsrc+2*nt+j)}")
                a(f"v_and_b32 {v(BF+4*nt+2*j+1)}, 0xffff0000, {v(bsrc+2*nt+j)}")
    for nt in range(NTW):
        if DRY and nt in dry: a.dry_mark()
        for mp in range(0, MT, 2):
            c0 = acc(nt, mp)
            for q in range(2):
                mt = mp + q
                for j in range(2):
                    cc = v(c0 + 4 * q + 2 * j, 2)
                    tt = v(GE + 4 * q + 2 * j, 2)
                    if ln:
                        if bias_arg:
                            a(f"v_pk_fma_f32 {tt}, {v(CS+4*nt+2*j,2)}, {v(RT+2*mt,2)}, {v(BF+4*nt+2*j,2)} op_sel:[0,1,0] op_sel_hi:[1,1,1]")
                        else:
                            a(f"v_pk_mul_f32 {tt}, {v(CS+4*nt+2*j,2)}, {v(RT+2*mt,2)} op_sel:[0,1] op_sel_hi:[1,1]")
                    elif bias_arg:
                        a(f"v_pk_add_f32 {cc}, {cc}, {v(BF+4*nt+2*j,2)}")
            if ln:
                for q in range(2):
                    mt = mp + q
                    for j in range(2):
                        cc = v(c0 + 4 * q + 2 * j, 2)
                        tt = v(GE + 4 * q + 2 * j, 2)
                        a(f"v_pk_fma_f32 {cc}, {cc}, {v(RT+2*mt,2)}, {tt} op_sel:[0,0,0] op_sel_hi:[1,0,1]")
            if epi == 'gelu':
                for j in range(4):
                    a(f"v_pk_mul_f32 {v(GE+2*j,2)}, {v(c0+2*j,2)}, {v(c0+2*j,2)}")
                for j in range(4):
                    a(f"v_pk_fma_f32 {v(GE+2*j,2)}, {v(GE+2*j,2)}, s[52:53], {v(GE+8,2)}")
                for j in range(4):
                    a(f"v_pk_mul_f32 {v(GE+2*j,2)}, {v(GE+2*j,2)}, {v(c0+2*j,2)}")
                for r in range(8):
                    a(f"v_exp_f32 {v(GE+r)}, {v(GE+r)}")
                a("s_nop 0")
                for j in range(4):
                    a(f"v_pk_add_f32 {v(GE+2*j,2)}, {v(GE+2*j,2)}, s[56:57]")
                for r in range(8):
                    a(f"v_rcp_f32 {v(GE+r)}, {v(GE+r)}")
                a("s_nop 0")
                for j in range(4):
                    cc = v(c0 + 2 * j, 2)
                    a(f"v_pk_fma_f32 {cc}, {cc}, {v(GE+2*j,2)}, {cc} neg_lo:[1,0,0] neg_hi:[1,0,0]")
            for j in range(4):
                a(f"v_cvt_pk_bf16_f32 {v(c0+j)}, {v(c0+2*j)}, {v(c0+2*j+1)}")
            for q in range(2):
                a(f"ds_write_b64 {v(vc)}, {v(c0+2*q,2)} offset:{(mp+q)*16*CROW + nt*32}")
    if DRY: a(f"s_cbranch_execz {lab_store}")
    a("s_waitcnt lgkmcnt(0)")
    stamp(4)
    a("s_barrier")
    a(f"s_branch {lab_store}")
    if epi2: del a.lines[cut0:]

    if spf and NS > 8 * spf[0]:
        a.label(lsp)
        spf1()
        a(f"s_branch {lspb}")
    if sp4:
        a.label(lsp)
        a(f"s_sub_u32 s3, {PHS}, s48")
        a(f"s_cmp_ge_u32 s3, {4*NPH}")
        a(f"s_cbranch_scc1 {lspb}")
        spf1()
        a(f"s_branch {lspb}")
    if sp2:
        a.label(lsp)
        a("s_sub_u32 s98, s98, 8")
        a(f"s_cmp_le_u32 s48, {DD}")
        a(f"s_cbranch_scc1 {lspb}")
        spf1()
        a(f"s_branch {lspb}")
    for lsl, lbk in slow:
        a.label(lsl)
        if SLC: a(f"s_sleep {SLC}")
        a(f"ds_read_b32 {v(vFT)}, {v(vRA)}")
        a("s_waitcnt lgkmcnt(0)")
        a(f"v_cmp_ge_u32 vcc, {v(vCV)}, {v(vFT)}")
        a(f"s_cbranch_vccnz {lsl}")
        a(f"s_branch {lbk}")
    pos_l0 = len(a.lines)
    a.label(lab_loader)
    if 'noprio' not in EXP: a("s_setprio 2")
    if w2copy: a(f"s_load_dwordx2 s[94:95], s[0:1], {ARG['w2']}")
    NPL = (BN // 16 + 3) // 4
    LSA = 40
    LCW = 44
    LSC = 48; LCC = 52
    LONE = 56
    LST = 60
    LMS = 132
    LCS = 68
    LSD = 84
    LWD = 100
    assert vT[7] < 40
    NW2 = BN * 2 if BTILE else N * 2
    if FS:
        rs = TP if ATILE else lda
        a(f"v_lshrrev_b32 {v(t0)}, 3, v1")
        a(f"v_lshrrev_b32 {v(t1)}, 4, v1")
        a(f"v_and_b32 {v(t2)}, 7, v1")
        a(f"v_xor_b32 {v(t1)}, {v(t1)}, {v(t2)}")
        a(f"v_mul_u32_u24 {v(t3)}, {rs}, {v(t0)}")
        a(f"v_lshl_add_u32 {v(t3)}, {v(t1)}, 4, {v(t3)}")
        a(f"s_mul_i32 s3, s28, {BM*lda}")
        a(f"s_mul_i32 s46, s30, {PA*8*rs}")
        a("s_add_u32 s3, s3, s46")
        a(f"v_add_u32 {v(vA[0])}, s3, {v(t3)}")
        a(f"v_xor_b32 {v(t3)}, 64, {v(vA[0])}")
        a(f"v_add_u32 {v(vA[1])}, {8*rs}, {v(t3)}")
        for i in range(2, PA):
            a(f"v_add_u32 {v(vA[i])}, {16*rs}, {v(vA[i-2])}")
        a(f"s_mul_i32 s31, s30, {PA*1024}")
        a("s_waitcnt lgkmcnt(0)")
        srd(a, 4, 58, a_off, M * lda)
        stamp(1)
        for i in range(PA):
            a(f"s_add_u32 m0, s31, {i*1024}")
            if i == 0: a(f"s_mul_i32 s32, s30, {PB*1024}")
            elif i == 1: a(f"s_add_u32 s32, s32, {ABYTES}")
            elif i == 2: a(f"s_mul_i32 s3, s29, {(K//2)*1024 if wt7 else BN*2*(K if BTILE else 1)}")
            elif i == 3: a(f"s_mul_i32 s46, s30, {8192 if wt7 else 16*NW2}")
            else: a("s_nop 0")
            a(f"buffer_load_dwordx4 {v(vA[i])}, s[4:7], 0 offen lds")
        a("s_add_u32 s3, s3, s46")
        srd(a, 8, 26, w_off or 0, WBYTES)
        if c3 is not None:
            srd(a, 50, 24, c3, 2 * K * 256)
            a("s_lshr_b32 s47, s29, 3")
            a(f"s_mul_i32 s47, s47, {K*256}")
            a(f"s_mul_i32 s46, s30, {16*256}")
            a("s_add_u32 s47, s47, s46")
            a("s_and_b32 s46, s29, 7")
            a("s_cmp_eq_u32 s46, 3")
            a("s_cselect_b32 s3, s47, s3")
            for i in range(3): a(f"s_cselect_b32 s{8+i}, s{50+i}, s{8+i}")
            assert NW2 == 2048
            a("s_cselect_b32 s55, 8, 11")
            a("s_lshl_b32 s54, 1, s55")
            a("s_lshl_b32 s46, 8, s55")
            a("s_lshl_b32 s55, 64, s55")
        if RB == 448:
            a(f"s_mov_b32 s47, {((1 << 32) + 27) // 28}")
            for i in range(PB):
                a(f"v_add_u32 {v(t1)}, {i*64}, v1")
                a(f"v_mul_hi_u32 {v(t0)}, {v(t1)}, s47")
                a(f"v_mul_u32_u24 {v(t2)}, 28, {v(t0)}")
                a(f"v_sub_u32 {v(t1)}, {v(t1)}, {v(t2)}")
                a(f"v_bfe_u32 {v(t2)}, {v(t0)}, 3, 1")
                a(f"v_lshlrev_b32 {v(t2)}, 1, {v(t2)}")
                a(f"v_xor_b32 {v(t1)}, {v(t1)}, {v(t2)}")
                if wt7:
                    a(f"v_and_b32 {v(t2)}, 1, {v(t0)}")
                    a(f"v_mad_u32_u24 {v(t1)}, {v(t2)}, 28, {v(t1)}")
                    a(f"v_cmp_le_u32 vcc, 24, {v(t1)}")
                    a(f"v_lshrrev_b32 {v(t0)}, 1, {v(t0)}")
                    a(f"v_lshlrev_b32 {v(t0)}, 10, {v(t0)}")
                    a(f"v_add_u32 {v(t2)}, 8, {v(t1)}")
                    a(f"v_cndmask_b32 {v(t1)}, {v(t1)}, {v(t2)}, vcc")
                else:
                    a(f"v_mul_u32_u24 {v(t0)}, {NW2}, {v(t0)}")
                a(f"v_lshl_add_u32 {v(t0)}, {v(t1)}, 4, {v(t0)}")
                a(f"s_add_u32 m0, s32, {i*1024}")
                a(f"v_add_u32 {v(vB[i])}, s3, {v(t0)}")
                a(f"buffer_load_dwordx4 {v(vB[i])}, s[8:11], 0 offen lds")
        else:
            assert PB == 2
            a(f"v_bfe_u32 {v(t1)}, v1, 4, 1")
            a(f"v_lshlrev_b32 {v(t1)}, 1, {v(t1)}")
            a(f"v_xor_b32 {v(t1)}, {v(t1)}, {v(t2)}")
            a(f"v_mul_u32_u24 {v(t0)}, {'s54' if c3 is not None else NW2}, {v(t0)}")
            a(f"v_lshl_add_u32 {v(t0)}, {v(t1)}, 4, {v(t0)}")
            a("s_mov_b32 m0, s32")
            a(f"v_add_u32 {v(vB[0])}, s3, {v(t0)}")
            a(f"buffer_load_dwordx4 {v(vB[0])}, s[8:11], 0 offen lds")
            a(f"v_xor_b32 {v(t0)}, 64, {v(vB[0])}")
            a("s_add_u32 m0, s32, 1024")
            a(f"v_add_u32 {v(vB[1])}, {'s46' if c3 is not None else 8*NW2}, {v(t0)}")
            a(f"buffer_load_dwordx4 {v(vB[1])}, s[8:11], 0 offen lds")
        a(f"s_mov_b32 s40, {ASTEP}")
        a(f"s_mov_b32 s41, {'s55' if c3 is not None else 32768 if wt7 else BK*NW2}")
        a(f"s_mov_b32 s43, {STAGE}")
        a("s_mov_b32 s42, 0")
    cut1 = len(a.lines)
    a(f"s_mul_i32 s3, s30, {PA*8}")
    a(f"v_lshrrev_b32 {v(t0)}, 3, v1")
    a(f"v_add_u32 {v(t0)}, s3, {v(t0)}")
    a(f"s_mul_i32 s3, s28, {BM}")
    for i in range(PA):
        a(f"v_add_u32 {v(t1)}, {8*i}, {v(t0)}")
        a(f"v_lshrrev_b32 {v(t2)}, 1, {v(t1)}")
        a(f"v_and_b32 {v(t2)}, 7, {v(t2)}")
        a(f"v_and_b32 {v(t3)}, 7, v1")
        a(f"v_xor_b32 {v(t2)}, {v(t2)}, {v(t3)}")
        if ATILE:
            a(f"v_lshlrev_b32 {v(t1)}, {TSH}, {v(t1)}")
            a(f"s_mul_i32 s46, s3, {lda}")
            a(f"v_add_u32 {v(t1)}, s46, {v(t1)}")
        else:
            a(f"v_add_u32 {v(t1)}, s3, {v(t1)}")
            a(f"v_mul_u32_u24 {v(t1)}, {lda}, {v(t1)}")
        a(f"v_lshl_add_u32 {v(vA[i])}, {v(t2)}, 4, {v(t1)}")
    a(f"s_mul_i32 s3, s29, {BN*2*(K if BTILE else 1)}")
    NW2 = BN * 2 if BTILE else N * 2
    if RB == 448:
        a(f"s_mov_b32 s47, {((1 << 32) + 27) // 28}")
        for i in range(PB):
            a(f"s_mul_i32 s46, s30, {PB*64}")
            a(f"s_add_u32 s46, s46, {i*64}")
            a(f"v_add_u32 {v(t1)}, s46, v1")
            a(f"v_mul_hi_u32 {v(t0)}, {v(t1)}, s47")
            a(f"v_mul_u32_u24 {v(t2)}, 28, {v(t0)}")
            a(f"v_sub_u32 {v(t1)}, {v(t1)}, {v(t2)}")
            a(f"v_bfe_u32 {v(t2)}, {v(t0)}, 3, 1")
            a(f"v_lshlrev_b32 {v(t2)}, 1, {v(t2)}")
            a(f"v_xor_b32 {v(t1)}, {v(t1)}, {v(t2)}")
            a(f"v_mul_u32_u24 {v(t0)}, {NW2}, {v(t0)}")
            a(f"v_lshl_add_u32 {v(t0)}, {v(t1)}, 4, {v(t0)}")
            a(f"v_add_u32 {v(vB[i])}, s3, {v(t0)}")
    else:
      CPR = RB // 16
      lg_cpr = int(math.log2(CPR))
      RPP = 1024 // RB
      PPB = RB // 16
      lg_ppb = int(math.log2(PPB))
      for i in range(PB):
        a(f"s_mul_i32 s46, s30, {PB}")
        a(f"s_add_u32 s46, s46, {i}")
        a(f"s_lshr_b32 s47, s46, {lg_ppb}")
        a(f"s_and_b32 s46, s46, {PPB-1}")
        a(f"s_mul_i32 s46, s46, {RPP}")
        a(f"s_mul_i32 s47, s47, {RB}")
        a("s_add_u32 s47, s47, s3")
        a(f"v_lshrrev_b32 {v(t0)}, {lg_cpr}, v1")
        a(f"v_add_u32 {v(t0)}, s46, {v(t0)}")
        a(f"v_and_b32 {v(t1)}, {CPR-1}, v1")
        if RB == 256:
            a(f"v_and_b32 {v(t2)}, 3, {v(t0)}")
            a(f"v_bfe_u32 {v(t3)}, {v(t0)}, 3, 1")
            a(f"v_lshl_add_u32 {v(t2)}, {v(t3)}, 2, {v(t2)}")
        elif RB == 128:
            a(f"v_bfe_u32 {v(t2)}, {v(t0)}, 1, 1")
            a(f"v_bfe_u32 {v(t3)}, {v(t0)}, 3, 1")
            a(f"v_lshl_add_u32 {v(t2)}, {v(t3)}, 1, {v(t2)}")
        elif RB == 64:
            a(f"v_bfe_u32 {v(t2)}, {v(t0)}, 3, 1")
        else:
            a(f"v_mov_b32 {v(t2)}, 0")
        a(f"v_lshlrev_b32 {v(t2)}, 1, {v(t2)}")
        a(f"v_xor_b32 {v(t1)}, {v(t1)}, {v(t2)}")
        a(f"v_mul_u32_u24 {v(t0)}, {NW2}, {v(t0)}")
        a(f"v_lshl_add_u32 {v(t0)}, {v(t1)}, 4, {v(t0)}")
        a(f"v_add_u32 {v(vB[i])}, s47, {v(t0)}")
    a(f"s_mul_i32 s31, s30, {PA*1024}")
    a(f"s_mul_i32 s32, s30, {PB*1024}")
    a(f"s_add_u32 s32, s32, {ABYTES}")
    a("s_mov_b32 s40, 0")
    a("s_mov_b32 s41, 0")
    a("s_mov_b32 s43, 0")
    a("s_mov_b32 s42, 0")
    if FS: del a.lines[cut1:]
    assert FS or (c3 is None and not wt7)
    if not (FS and not pre): build_srds(FS)
    if zero_flags:
        lz = a.newlabel("L_nz")
        a("s_cmp_lg_u32 s2, 0")
        a(f"s_cbranch_scc1 {lz}")
        srd(a, 92, 24, WS_FLAG, 512)
        a(f"v_lshlrev_b32 {v(t0)}, 3, v1")
        a("v_mov_b32 v44, 0")
        a("v_mov_b32 v45, 0")
        a(f"buffer_store_dwordx2 v[44:45], {v(t0)}, s[92:95], 0 offen")
        a.label(lz)
    if splitk:
        a(f"s_mul_i32 s40, s92, {NSLO*ASTEP}")
        a(f"s_mul_i32 s41, s92, {NSLO*BK*NW2}")
        lab_lpass = a.newlabel("L_lpass")
        a.label(lab_lpass)

    def dma():
        if 'nodma' in EXP: return
        a("s_add_u32 s33, s43, s31")
        for i in range(PA):
            a(f"s_add_u32 m0, s33, {i*1024}")
            a("s_nop 0")
            a(f"buffer_load_dwordx4 {v(vA[i])}, s[4:7], s40 offen lds")
        a("s_add_u32 s33, s43, s32")
        for i in range(PB):
            a(f"s_add_u32 m0, s33, {i*1024}")
            a("s_nop 0")
            a(f"buffer_load_dwordx4 {v(vB[i])}, s[8:11], s41 offen lds")
        a(f"s_add_u32 s40, s40, {ASTEP}")
        a(f"s_add_u32 s41, s41, {'s55' if c3 is not None else 32768 if wt7 else BK*NW2}")
        if 'kwrap' in EXP:
            KW = int(os.environ.get('KW', '8'))
            a(f"s_cmp_ge_u32 s40, {KW*ASTEP}")
            a("s_cselect_b32 s40, 0, s40")
            a("s_cselect_b32 s41, 0, s41")
        a(f"s_add_u32 s43, s43, {STAGE}")
        a(f"s_cmp_ge_u32 s43, {STAGE*NSTAGE}")
        a("s_cselect_b32 s43, 0, s43")

    if not FS: stamp(1)
    if pre:
        a(f"v_lshrrev_b32 {v(LSA)}, 1, v1")
        a("s_lshl_b32 s3, s30, 5")
        a(f"v_add_u32 {v(LSA)}, s3, {v(LSA)}")
        a(f"s_mul_i32 s3, s28, {BM}")
        a(f"v_add_u32 {v(t0)}, s3, {v(LSA)}")
        a(f"v_lshlrev_b32 {v(t0)}, 7, {v(t0)}")
        a(f"v_and_b32 {v(t1)}, 1, v1")
        a(f"v_lshl_add_u32 {v(t0)}, {v(t1)}, 6, {v(t0)}")
        for i in range(4):
            a(f"buffer_load_dwordx4 {v(LSD+4*i,4)}, {v(t0)}, s[84:87], 0 offen offset:{16*i}")
    if st_bias:
        a(f"v_lshlrev_b32 {v(t0)}, 4, v1")
        a(f"s_mul_i32 s3, s29, {BN*2}")
        a(f"s_mov_b32 m0, {EPI}")
        a("s_nop 0")
        a(f"buffer_load_dwordx4 {v(t0)}, s[20:23], s3 offen lds")
        a(f"s_mul_i32 s3, s29, {BN*4}")
        a(f"s_mul_i32 s46, s30, {4*N*4}")
        a("s_add_u32 s3, s3, s46")
        for g_ in range(4):
            a(f"buffer_load_dwordx4 {v(LWD+4*g_,4)}, {v(t0)}, s[88:91], s3 offen")
            a(f"s_add_u32 s3, s3, {N*4}")
    for _ in range(NSTAGE - 1 - (1 if FS else 0)):
        dma()
    if FS and not pre: build_srds(True)
    if sp3:
        assert RA * BM == 512 and RBN * BN == 512 and ATILE and TP == 128 and c3 is not None
        D0 = NSTAGE - 1 + sp3
        a("s_lshr_b32 s3, s2, 3")
        a("s_lshl_b32 s3, s3, 2")
        a("s_add_u32 s3, s3, s30")
        a(f"s_and_b32 s46, s28, {-RA & 0xffffffff}")
        a("s_lshr_b32 s47, s3, 4")
        a("s_add_u32 s46, s46, s47")
        a(f"s_mul_i32 s46, s46, {BM*lda}")
        a("s_and_b32 s47, s3, 15")
        a("s_lshl_b32 s47, s47, 10")
        a("s_add_u32 s46, s46, s47")
        a(f"s_add_u32 s96, s46, {D0*ASTEP}")
        a("s_add_u32 s98, s96, 384")
        a(f"s_add_u32 s46, s3, {D0*64-64}")
        a(f"s_lshr_b32 s47, s29, {int(math.log2(RBN))}")
        a(f"s_mul_i32 s99, s47, {K*256}")
        a("s_lshl_b32 s97, s46, 8")
        a("s_add_u32 s99, s99, s97")
        a("s_lshl_b32 s47, s47, 10")
        a("s_lshl_b32 s46, s46, 11")
        a("s_add_u32 s46, s46, s47")
        srd(a, 76, 26, 0, K * N * 2)
        a("s_cmp_lt_u32 s3, 64")
        a("s_cselect_b32 s96, s96, s46")
        a("s_cselect_b32 s98, s98, s99")
        a("s_cselect_b32 s97, 14, 17")
        a("s_cselect_b32 s99, 14, 14")
        for i in range(4):
            a(f"s_cselect_b32 s{76+i}, s{4+i}, s{76+i}")
            a(f"s_cselect_b32 s{92+i}, s{4+i}, s{50+i}")
        a("s_lshl_b32 s97, 1, s97")
        a("s_lshl_b32 s99, 1, s99")
        assert ASTEP == 1 << 14
    stamp(2)
    if ln and not pre:
        wfrag_addr_common()
        for i in range(NPL):
            a(f"s_mul_i32 s46, s30, {NPL}")
            a(f"s_add_u32 s46, s46, {i}")
            a(f"s_min_u32 s46, s46, {BN//16-1}")
            wfrag_addr(LCW + i)
        for i in range(4):
            a(f"v_mov_b32 {v(LONE+i)}, 0x3f803f80")
        for i in range(16):
            a(f"v_mov_b32 {v(LMS+i)}, 0")
        a(f"v_and_b32 {v(t0)}, 15, v1")
        a("s_lshl_b32 s3, s30, 5")
        a(f"v_add_u32 {v(t0)}, s3, {v(t0)}")
        a(f"v_lshlrev_b32 {v(t0)}, 7, {v(t0)}")
        a(f"v_lshrrev_b32 {v(t1)}, 4, v1")
        a(f"v_bfe_u32 {v(t2)}, v1, 1, 3")
        a(f"v_xor_b32 {v(t3)}, {v(t1)}, {v(t2)}")
        a(f"v_lshl_add_u32 {v(LSA)}, {v(t3)}, 4, {v(t0)}")
        a(f"v_xor_b32 {v(t3)}, 4, {v(t3)}")
        a(f"v_lshl_add_u32 {v(LSA+1)}, {v(t3)}, 4, {v(t0)}")
        for i in range(4 * NPL):
            a(f"v_mov_b32 {v(LCS+i)}, 0")

    def stats_reads():
        for i in range(2):
            a(f"v_add_u32 {v(LSC+i)}, s42, {v(LSA+i)}")
        for i in range(NPL):
            a(f"v_add_u32 {v(LCC+i)}, s42, {v(LCW+i)}")
        a(f"s_add_u32 s42, s42, {STAGE}")
        a(f"s_cmp_ge_u32 s42, {STAGE*NSTAGE}")
        a("s_cselect_b32 s42, 0, s42")
        for q in range(2):
            for kk in range(2):
                a(f"ds_read_b128 {v(LSD+8*q+4*kk,4)}, {v(LSC+kk)} offset:{2048*q}")
        for i in range(NPL):
            for kk in range(2):
                for rd in range(2):
                    a(f"ds_read_b64_tr_b16 {v(LWD+8*i+4*kk+2*rd,2)}, {v(LCC+i)} offset:{kk*32*RB+rd*4*RB}")

    def stats_math():
        a("s_waitcnt lgkmcnt(0)")
        for i in range(NPL):
            for kk in range(2):
                a(f"v_mfma_f32_16x16x32_bf16 {v(LCS+4*i,4)}, {v(LWD+8*i+4*kk,4)}, {v(LONE,4)}, {v(LCS+4*i,4)}")
        for kk in range(2):
            for q in range(2):
                d = v(LSD + 8 * q + 4 * kk, 4)
                a(f"v_mfma_f32_16x16x32_bf16 {v(LMS+8*q,4)}, {d}, {v(LONE,4)}, {v(LMS+8*q,4)}")
                a(f"v_mfma_f32_16x16x32_bf16 {v(LMS+8*q+4,4)}, {d}, {d}, {v(LMS+8*q+4,4)}")

    nloop = NS - NSTAGE + 1
    if splitk: a(f"s_sub_u32 s48, s93, {NSTAGE-1}")
    else: a(f"s_mov_b32 s48, {nloop}")
    lloop = a.newlabel("L_lloop")
    LF, LRA, LCA, LCV, LFT = 44, 52, 53, 54, 55
    if FL:
        lfirst = a.newlabel("L_lfirst")
        a("s_lshl_b32 s3, s30, 8")
        a(f"s_add_u32 s3, s3, {FLG}")
        a(f"v_lshl_add_u32 {v(LRA)}, v1, 2, s3")
        a(f"v_and_b32 {v(LCA)}, 3, v1")
        a(f"v_lshlrev_b32 {v(LCA)}, 8, {v(LCA)}")
        a(f"v_lshl_add_u32 {v(LCA)}, v1, 2, {v(LCA)}")
        a(f"v_add_u32 {v(LCA)}, {FLG+1024}, {v(LCA)}")
        a(f"v_mov_b32 {v(LCV)}, 1")
        a(f"ds_write_b32 {v(LRA)}, {v(LCV)}")
        a(f"s_waitcnt vmcnt({(NSTAGE-2)*P}) lgkmcnt(0)")
        a("s_barrier")
        a(f"s_branch {lfirst}")
        a.label(lloop)
        a(f"v_add_u32 {v(LFT)}, 1, {v(LCV)}")
        a(f"s_waitcnt vmcnt({(NSTAGE-2)*P})")
        a(f"ds_write_b32 {v(LRA)}, {v(LFT)}")
        lpl = a.newlabel("L_lpoll"); lp1 = a.newlabel("L_lpoll1")
        a(f"s_branch {lp1}")
        a.label(lpl)
        if SLL: a(f"s_sleep {SLL}")
        a.label(lp1)
        a(f"ds_read_b32 {v(LF)}, {v(LCA)}")
        a("s_waitcnt lgkmcnt(0)")
        a(f"v_cmp_gt_u32 vcc, {v(LCV)}, {v(LF)}")
        a(f"s_cbranch_vccnz {lpl}")
        a(f"v_mov_b32 {v(LCV)}, {v(LFT)}")
        a.label(lfirst)
    else:
        a.label(lloop)
        a(f"s_waitcnt vmcnt({(NSTAGE-2)*P})")
        a("s_barrier")
    if ln and not pre: stats_reads()
    dma()
    if sp3:
        lsk = a.newlabel("L_sp3")
        a(f"s_cmp_le_u32 s48, {sp3}")
        a(f"s_cbranch_scc1 {lsk}")
        for i in range(8):
            if i == 3: a("s_buffer_load_dwordx2 s[100:101], s[92:95], s98 offset:60")
            else: a(f"s_buffer_load_dwordx2 s[100:101], s[76:79], s96 offset:{128*i+60}")
        a("s_add_u32 s96, s96, s97")
        a("s_add_u32 s98, s98, s99")
        a.label(lsk)
    if ln and not pre: stats_math()
    a("s_sub_u32 s48, s48, 1")
    a("s_cmp_lg_u32 s48, 0")
    a(f"s_cbranch_scc1 {lloop}")
    if endpf:
        e_arg, e_bytes, e_lo, e_n = endpf
        a(f"s_load_dwordx2 s[94:95], s[0:1], {ARG[e_arg]}")
        a("s_lshl_b32 s3, s2, 2")
        a("s_add_u32 s3, s3, s30")
        a(f"s_mul_i32 s3, s3, {e_n*128}")
        if e_lo: a(f"s_add_u32 s3, s3, {e_lo}")
        a(f"v_lshlrev_b32 {v(W2A)}, 7, v1")
        a("s_waitcnt lgkmcnt(0)")
        srd(a, 76, 94, 0, e_bytes)
        a(f"s_mov_b64 exec, {hex((1 << e_n) - 1)}" if e_n <= 32 else f"s_mov_b32 exec_hi, {hex((1 << (e_n - 32)) - 1)}")
        a(f"buffer_load_dword {v(W2S)}, {v(W2A)}, s[76:79], s3 offen")
        a("s_mov_b64 exec, -1")
        NEX += 1
    if pre:
        for i in range(1, 8):
            a(f"v_add_f32 {v(LSD)}, {v(LSD)}, {v(LSD+2*i)}")
            a(f"v_add_f32 {v(LSD+1)}, {v(LSD+1)}, {v(LSD+2*i+1)}")
        a("s_nop 1")
        for k_ in range(2):
            a(f"v_add_f32_dpp {v(LST+k_)}, {v(LSD+k_)}, {v(LSD+k_)} quad_perm:[1,0,3,2] row_mask:0xf bank_mask:0xf")
        sm, sq, r1, r2 = LST, LST + 1, LSD, LSD + 1
        a(f"v_mul_f32 {v(sm)}, {hex_f32(1.0/K)}, {v(sm)}")
        a(f"v_mul_f32 {v(sq)}, {hex_f32(1.0/K)}, {v(sq)}")
        a(f"v_fma_f32 {v(sq)}, -{v(sm)}, {v(sm)}, {v(sq)}")
        a(f"v_max_f32 {v(sq)}, 0, {v(sq)}")
        a(f"v_add_f32 {v(r1)}, {hex_f32(1e-5)}, {v(sq)}")
        a(f"v_rsq_f32 {v(r1)}, {v(r1)}")
        a("s_nop 0")
        if ln == 'double':
            a(f"v_mul_f32 {v(r2)}, {v(r1)}, {v(r1)}")
            a(f"v_mul_f32 {v(r2)}, {v(r2)}, {v(sq)}")
            a(f"v_add_f32 {v(r2)}, {hex_f32(1e-5)}, {v(r2)}")
            a(f"v_rsq_f32 {v(r2)}, {v(r2)}")
            a("s_nop 0")
            a(f"v_mul_f32 {v(r1)}, {v(r1)}, {v(r2)}")
        a(f"v_mul_f32 {v(r2)}, {v(sm)}, {v(r1)}")
        a(f"v_sub_f32 {v(r2)}, 0, {v(r2)}")
        a(f"v_lshlrev_b32 {v(LSC)}, 3, {v(LSA)}")
        a(f"v_add_u32 {v(LSC)}, {RTAB}, {v(LSC)}")
        a(f"ds_write_b64 {v(LSC)}, {v(LSD,2)}")
        for g_ in range(1, 4):
            for j in range(2):
                a(f"v_pk_add_f32 {v(LWD+2*j,2)}, {v(LWD+2*j,2)}, {v(LWD+4*g_+2*j,2)}")
        a(f"v_lshlrev_b32 {v(t0)}, 4, v1")
        a(f"v_add_u32 {v(t0)}, {EPI+3072}, {v(t0)}")
        a("s_lshl_b32 s3, s30, 10")
        a(f"v_add_u32 {v(t1)}, s3, {v(t0)}")
        a(f"ds_write_b128 {v(t1)}, {v(LWD,4)}")
        a("s_waitcnt lgkmcnt(0)")
    if st_res:
        npc = BM * BN * 2 // 4096
        rpp = 1024 // (BN * 2)
        lpr = BN * 2 // 16
        a(f"v_lshrrev_b32 {v(t0)}, {int(math.log2(lpr))}, v1")
        RP = TP if rtile else N * 2
        a(f"s_mul_i32 s3, s30, {npc*rpp}")
        if not rtile:
            a(f"s_mul_i32 s46, s28, {BM}")
            a("s_add_u32 s3, s3, s46")
        a(f"v_add_u32 {v(t0)}, s3, {v(t0)}")
        a(f"v_mul_u32_u24 {v(t0)}, {RP}, {v(t0)}")
        a(f"v_and_b32 {v(t1)}, {lpr-1}, v1")
        a(f"v_lshl_add_u32 {v(t0)}, {v(t1)}, 4, {v(t0)}")
        if rtile:
            assert BN == 64
            a(f"s_mul_i32 s3, s29, {BM*TP}")
            a(f"s_mul_i32 s46, s28, {BM*N*2*TX}")
            a("s_add_u32 s3, s3, s46")
        else:
            a(f"s_mul_i32 s3, s29, {BN*2}")
        a(f"v_add_u32 {v(t0)}, s3, {v(t0)}")
        a(f"s_mul_i32 s33, s30, {npc*1024}")
        for i in range(npc):
            a(f"s_add_u32 m0, s33, {EPI + i*1024}")
            a(f"s_mov_b32 s3, {i*rpp*RP}")
            a(f"buffer_load_dwordx4 {v(t0)}, s[16:19], s3 offen lds")
    for j in range(NS - NSTAGE + 1, NS):
        if FL: a(f"v_mov_b32 {v(LCV)}, {j+1 if j < NS-1 else NS+1}")
        a(f"s_waitcnt vmcnt({(NS-1-j)*P + NEX})")
        if FL:
            a(f"ds_write_b32 {v(LRA)}, {v(LCV)}")
            a("s_nop 1")
            if j == NS - 1:
                stamp(3)
                a("s_barrier")
        else: a("s_barrier")
        if pre and j == (NS - 1 if FL else NS - NSTAGE + 1):
            assert NSTAGE >= 3
            lcs = a.newlabel("L_lcs")
            a("s_cmp_lg_u32 s30, 0")
            a(f"s_cbranch_scc1 {lcs}")
            for g_ in range(4):
                a(f"ds_read_b128 {v(LWD+4*g_,4)}, {v(t0)} offset:{1024*g_}")
            a("s_waitcnt lgkmcnt(0)")
            for g_ in range(1, 4):
                for j_ in range(2):
                    a(f"v_pk_add_f32 {v(LWD+2*j_,2)}, {v(LWD+2*j_,2)}, {v(LWD+4*g_+2*j_,2)}")
            a(f"v_subrev_u32 {v(t0)}, {EPI+3072-CTAB}, {v(t0)}")
            a(f"ds_write_b128 {v(t0)}, {v(LWD,4)}")
            a("s_waitcnt lgkmcnt(0)")
            a.label(lcs)
        if ln and not pre:
            stats_reads()
            stats_math()
    if not FL: stamp(3)
    if epi2 and not FL: a("s_barrier")
    if w2copy:
        a("s_lshl_b32 s92, s2, 2")
        a("s_add_u32 s92, s92, s30")
        a(f"v_lshrrev_b32 {v(t0)}, 3, v1")
        a(f"v_and_b32 {v(t1)}, 7, v1")
        a(f"v_lshlrev_b32 {v(t1)}, 4, {v(t1)}")
        a(f"v_lshl_add_u32 {v(W2A)}, {v(t0)}, 11, {v(t1)}")
        a("s_lshr_b32 s3, s92, 6")
        a("s_lshl_b32 s3, s3, 7")
        a("s_and_b32 s46, s92, 63")
        a(f"s_mul_i32 s46, s46, {56*D*2}")
        a("s_add_u32 s3, s3, s46")
        srd(a, 88, 94, 0, F * D * 2)
        for j in range(7):
            a(f"buffer_load_dwordx4 {v(W2S+4*j,4)}, {v(W2A)}, s[88:91], s3 offen")
            a(f"s_add_u32 s3, s3, {8*D*2}")
        def w2store(extra):
            srd(a, 88, 24, WS_W2T, F * D * 2)
            a("s_mul_i32 s3, s92, 7168")
            a(f"v_lshlrev_b32 {v(W2A)}, 4, v1")
            for j in range(7):
                if j == 4: a("s_add_u32 s3, s3, 4096")
                a(f"s_waitcnt vmcnt({6+extra})")
                a(f"buffer_store_dwordx4 {v(W2S+4*j,4)}, {v(W2A)}, s[88:91], s3 offen offset:{1024*(j&3)}")
        if not epi2: w2store(0)
    if ln and not pre:
        a("s_nop 7")
        a(f"v_and_b32 {v(t0)}, 3, v1")
        for r in range(1, 4):
            a(f"v_cmp_eq_u32 s[{48+2*r}:{49+2*r}], {r}, {v(t0)}")
        X0 = LSD
        for i in range(2):
            sm, sq = LST + 2 * i, LST + 2 * i + 1
            r1, r2 = X0 + 2 * i, X0 + 2 * i + 1
            for dst, src in ((sm, LMS + 8 * i), (sq, LMS + 8 * i + 4)):
                a(f"v_cndmask_b32 {v(dst)}, {v(src)}, {v(src+1)}, s[50:51]")
                a(f"v_cndmask_b32 {v(dst)}, {v(dst)}, {v(src+2)}, s[52:53]")
                a(f"v_cndmask_b32 {v(dst)}, {v(dst)}, {v(src+3)}, s[54:55]")
            a(f"v_mul_f32 {v(sm)}, {hex_f32(1.0/K)}, {v(sm)}")
            a(f"v_mul_f32 {v(sq)}, {hex_f32(1.0/K)}, {v(sq)}")
            a(f"v_fma_f32 {v(sq)}, -{v(sm)}, {v(sm)}, {v(sq)}")
            a(f"v_max_f32 {v(sq)}, 0, {v(sq)}")
            a(f"v_add_f32 {v(r1)}, {hex_f32(1e-5)}, {v(sq)}")
            a(f"v_rsq_f32 {v(r1)}, {v(r1)}")
            a("s_nop 0")
            assert ln == 'single'
            a(f"v_mul_f32 {v(r2)}, {v(sm)}, {v(r1)}")
            a(f"v_sub_f32 {v(r2)}, 0, {v(r2)}")
        a(f"v_lshrrev_b32 {v(LSC)}, 7, {v(LSA)}")
        a(f"v_lshlrev_b32 {v(LSC)}, 3, {v(LSC)}")
        a(f"v_add_u32 {v(LSC)}, {RTAB}, {v(LSC)}")
        a(f"v_lshrrev_b32 {v(t0)}, 4, v1")
        a(f"v_lshlrev_b32 {v(t0)}, 4, {v(t0)}")
        for i in range(NPL):
            a(f"s_mul_i32 s46, s30, {NPL}")
            a(f"s_add_u32 s46, s46, {i}")
            a(f"s_min_u32 s46, s46, {BN//16-1}")
            a("s_lshl_b32 s46, s46, 6")
            a(f"s_add_u32 s46, s46, {CTAB}")
            a(f"v_add_u32 {v(LCC+i)}, s46, {v(t0)}")
    if ln and not pre:
        a("s_mov_b32 exec_lo, 0x00f0000f")
        a("s_mov_b32 exec_hi, 0xf0000f00")
        for i in range(2):
            a(f"ds_write_b64 {v(LSC)}, {v(LSD+2*i,2)} offset:{128*i}")
        a("s_mov_b64 exec, -1")
        for i in range(NPL):
            a(f"ds_write_b128 {v(LCC+i)}, {v(LCS+4*i,4)}")
        a("s_waitcnt lgkmcnt(0)")
        a("s_barrier")
    if st_res: a("s_waitcnt vmcnt(0)")
    if splitk:
        lhi = a.newlabel("L_lhi"); lepi = a.newlabel("L_lepi")
        a("s_cmp_lg_u32 s92, 0")
        a(f"s_cbranch_scc1 {lhi}")
        a("s_barrier")
        a(f"s_branch {end}")
        a.label(lhi)
        a("s_barrier")
        a("s_cmp_eq_u32 s94, 2")
        a(f"s_cbranch_scc1 {lepi}")
        a(f"v_mov_b32 {v(t1)}, {DONE}")
        a(f"ds_read_b128 {v(44,4)}, {v(t1)}")
        a("s_waitcnt lgkmcnt(0)")
        a("v_and_b32 v44, v44, v45")
        a("v_and_b32 v46, v46, v47")
        a("v_and_b32 v44, v44, v46")
        a("s_nop 0")
        a("v_readfirstlane_b32 s3, v44")
        a("s_nop 3")
        a("s_cmp_eq_u32 s3, 1")
        a(f"s_cbranch_scc1 {lepi}")
        a("s_mov_b32 s94, 2")
        a(f"s_mov_b32 s93, {NSLO}")
        a("s_mov_b32 s40, 0"); a("s_mov_b32 s41, 0"); a("s_mov_b32 s43, 0")
        a("s_barrier")
        a(f"s_branch {lab_lpass}")
        a.label(lepi)
    stamp(4)
    a("s_barrier")

    if FS:
        a(f"s_branch {lab_store}")
        seg = a.lines[pos_l0:]
        del a.lines[pos_l0:]
        a.lines[pos_ins:pos_ins] = seg
    a.label(lab_store)
    if epi2:
        CPRW = BN // 8
        assert CPRW == 28 and otile
        vL, vR, vO = 2, 3, 4
        CSr, BFr, Dr, RCr, Gr, Or, K1 = 8, 16, [24, 32], [40, 42], 44, [52, 56], 60
        c2 = 2 * math.log2(math.e)
        k1 = struct.unpack("<I", struct.pack("<f", -0.7978845608 * c2))[0]
        k3 = struct.unpack("<I", struct.pack("<f", -0.7978845608 * 0.044715 * c2))[0]
        a("s_setprio 0")
        a(f"v_cmp_le_u32 s[46:47], {CPRW}, v1")
        a(f"v_mov_b32 v5, 0")
        a(f"v_cndmask_b32 v5, v5, 1, s[46:47]")
        a(f"v_mul_u32_u24 v6, {CPRW}, v5")
        a(f"v_sub_u32 v6, v1, v6")
        a("s_lshl_b32 s3, s49, 1")
        a("v_add_u32 v5, s3, v5")
        a("s_mov_b32 exec_hi, 0x00ffffff")
        a(f"v_lshlrev_b32 v7, 5, v6")
        a(f"v_add_u32 v7, {CTAB}, v7")
        a(f"ds_read_b128 {v(CSr,4)}, v7")
        a(f"ds_read_b128 {v(CSr+4,4)}, v7 offset:16")
        a(f"v_lshlrev_b32 v7, 4, v6")
        a(f"v_add_u32 v62, {EPI}, v7")
        a(f"ds_read_b128 {v(Gr,4)}, v62")
        a(f"v_mul_u32_u24 {v(vL)}, {FROW}, v5")
        a(f"v_add_u32 {v(vL)}, {v(vL)}, v7")
        a(f"v_lshlrev_b32 {v(vR)}, 3, v5")
        a(f"v_add_u32 {v(vR)}, {RTAB}, {v(vR)}")

        def rd(b):
            a(f"ds_read_b128 {v(Dr[b],4)}, {v(vL)}")
            a(f"ds_read_b128 {v(Dr[b]+4,4)}, {v(vL)} offset:{BN*2}")
            a(f"ds_read_b64 {v(RCr[b],2)}, {v(vR)}")
            a(f"v_add_u32 {v(vL)}, {16*FROW}, {v(vL)}")
            a(f"v_add_u32 {v(vR)}, 128, {v(vR)}")
        rd(0)
        a(f"s_mul_i32 s3, s29, {CPRW}")
        a("v_add_u32 v6, s3, v6")
        a("v_lshrrev_b32 v7, 3, v6")
        a(f"v_lshlrev_b32 v7, {TSH+7}, v7")
        a(f"v_lshl_add_u32 v7, v5, {TSH}, v7")
        a("v_and_b32 v6, 7, v6")
        a(f"v_lshl_add_u32 {v(vO)}, v6, 4, v7")
        a(f"s_mul_i32 s50, s28, {BM*ldo}")
        a(f"s_mov_b32 s52, {k3}"); a(f"s_mov_b32 s53, {k3}")
        a(f"v_mov_b32 {v(K1)}, {k1}"); a(f"v_mov_b32 {v(K1+1)}, {k1}")
        a("s_mov_b32 s56, 1.0"); a("s_mov_b32 s57, 1.0")
        a("s_waitcnt lgkmcnt(3)")
        for j in range(4):
            a(f"v_lshlrev_b32 {v(BFr+2*j)}, 16, {v(Gr+j)}")
            a(f"v_and_b32 {v(BFr+2*j+1)}, 0xffff0000, {v(Gr+j)}")
        stamp(5)
        a(f"s_mov_b32 s48, {BM//32}")
        lp = a.newlabel("L_ep")
        a.label(lp)
        for b in range(2):
            rd(1 - b)
            a("s_waitcnt lgkmcnt(3)")
            d = Dr[b]; rc = v(RCr[b], 2)
            for j in range(4):
                a(f"v_pk_fma_f32 {v(Gr+2*j,2)}, {v(CSr+2*j,2)}, {rc}, {v(BFr+2*j,2)} op_sel:[0,1,0] op_sel_hi:[1,1,1]")
            for j in range(4):
                a(f"v_pk_fma_f32 {v(d+2*j,2)}, {v(d+2*j,2)}, {rc}, {v(Gr+2*j,2)} op_sel:[0,0,0] op_sel_hi:[1,0,1]")
            for j in range(4):
                a(f"v_pk_mul_f32 {v(Gr+2*j,2)}, {v(d+2*j,2)}, {v(d+2*j,2)}")
            for j in range(4):
                a(f"v_pk_fma_f32 {v(Gr+2*j,2)}, {v(Gr+2*j,2)}, s[52:53], {v(K1,2)}")
            for j in range(4):
                a(f"v_pk_mul_f32 {v(Gr+2*j,2)}, {v(Gr+2*j,2)}, {v(d+2*j,2)}")
            for r in range(8):
                a(f"v_exp_f32 {v(Gr+r)}, {v(Gr+r)}")
            a("s_nop 0")
            for j in range(4):
                a(f"v_pk_add_f32 {v(Gr+2*j,2)}, {v(Gr+2*j,2)}, s[56:57]")
            for r in range(8):
                a(f"v_rcp_f32 {v(Gr+r)}, {v(Gr+r)}")
            a("s_nop 0")
            for j in range(4):
                a(f"v_pk_mul_f32 {v(d+2*j,2)}, {v(d+2*j,2)}, {v(Gr+2*j,2)}")
            for j in range(4):
                a(f"v_cvt_pk_bf16_f32 {v(Or[b]+j)}, {v(d+2*j)}, {v(d+2*j+1)}")
            a(f"buffer_store_dwordx4 {v(Or[b],4)}, {v(vO)}, s[12:15], s50 offen {STMOD}")
            a(f"s_add_u32 s50, s50, {16*TP}")
        a("s_sub_u32 s48, s48, 1")
        a("s_cmp_lg_u32 s48, 0")
        a(f"s_cbranch_scc1 {lp}")
        a("s_mov_b64 exec, -1")
        a("s_waitcnt lgkmcnt(0)")
        if w2copy:
            lw = a.newlabel("L_nw2")
            a("s_cmp_lt_u32 s49, 4")
            a(f"s_cbranch_scc1 {lw}")
            w2store(BM // 16)
            a.label(lw)
        stamp(6)
        if 'stamp' in EXP: a("s_waitcnt vmcnt(0)")
        stamp(7)
        stamp_out()
        a.label(end)
        a("s_endpgm")
        return dict(name=name, grid=ntiles, block=512, lds=lds, desc=kernel_desc(name, max(nvgpr, 168)))
    CPRW = BN // 8
    NIT = BM * CPRW // 512
    assert NIT * 512 == BM * CPRW
    magic = ((1 << 32) + CPRW - 1) // CPRW
    a(f"s_mov_b32 s46, {magic}")
    a(f"s_mul_i32 s3, s49, {NIT*64}")
    a(f"v_add_u32 {v(t0)}, s3, v1")
    a(f"s_mul_i32 s3, s28, {BM*ldo if otile else BM}")
    a(f"s_mul_i32 s47, s29, {CPRW if otile else BN*2}")
    if otile and stats_out:
        a(f"s_mul_i32 s50, s28, {BM*128}")
        a("s_lshl_b32 s51, s29, 3")
        a("s_add_u32 s50, s50, s51")
    R0 = (vT[7] + 4) // 4 * 4
    RR = R0 + 4 * NIT
    OFF = RR + 4 * NIT
    SOF = OFF + NIT
    GT = (SOF + NIT + 3) // 4 * 4
    assert GT + 10 <= 256
    for it in range(NIT):
        a(f"v_add_u32 {v(t1)}, {it*64}, {v(t0)}")
        a(f"v_mul_hi_u32 {v(t2)}, {v(t1)}, s46")
        a(f"v_mul_u32_u24 {v(t3)}, {CPRW}, {v(t2)}")
        a(f"v_sub_u32 {v(t3)}, {v(t1)}, {v(t3)}")
        a(f"v_mul_u32_u24 {v(t1)}, {CROW}, {v(t2)}")
        a(f"v_lshl_add_u32 {v(t1)}, {v(t3)}, 4, {v(t1)}")
        if CBASE: a(f"v_add_u32 {v(t1)}, {CBASE}, {v(t1)}")
        a(f"ds_read_b128 {v(R0+4*it,4)}, {v(t1)}")
        if not otile: a(f"v_add_u32 {v(t2)}, s3, {v(t2)}")
        if stats_out:
            if otile:
                a(f"v_lshl_add_u32 {v(SOF+it)}, {v(t2)}, 7, s50")
            else:
                a(f"v_lshlrev_b32 {v(SOF+it)}, 7, {v(t2)}")
                a(f"v_lshl_add_u32 {v(SOF+it)}, s29, 3, {v(SOF+it)}")
        if otile:
            a(f"v_add_u32 {v(t3)}, s47, {v(t3)}")
            a(f"v_lshrrev_b32 {v(t1)}, 3, {v(t3)}")
            a(f"v_lshlrev_b32 {v(t1)}, {TSH+7}, {v(t1)}")
            a(f"v_lshl_add_u32 {v(t1)}, {v(t2)}, {TSH}, {v(t1)}")
            a(f"v_and_b32 {v(t3)}, 7, {v(t3)}")
            a(f"v_lshl_add_u32 {v(t1)}, {v(t3)}, 4, {v(t1)}")
            a(f"v_add_u32 {v(OFF+it)}, s3, {v(t1)}")
        else:
            a(f"v_mul_u32_u24 {v(t2)}, {ldo}, {v(t2)}")
            a(f"v_lshlrev_b32 {v(t3)}, 4, {v(t3)}")
            a(f"v_add_u32 {v(t3)}, s47, {v(t3)}")
            a(f"v_add_u32 {v(OFF+it)}, {v(t3)}, {v(t2)}")
        if st_res:
            a(f"v_lshlrev_b32 {v(t1)}, 4, {v(t0)}")
            a(f"v_add_u32 {v(t1)}, {EPI + it*1024}, {v(t1)}")
            a(f"ds_read_b128 {v(RR+4*it,4)}, {v(t1)}")
        elif res_arg:
            a(f"buffer_load_dwordx4 {v(RR+4*it,4)}, {v(OFF+it)}, s[16:19], 0 offen")
    a("s_waitcnt vmcnt(0) lgkmcnt(0)" if (res_arg and not st_res) else "s_waitcnt lgkmcnt(0)")
    if DRY: a.dry_exit()
    stamp(5)
    for it in range(NIT):
        c0 = R0 + 4 * it
        if res_arg:
            for j in range(4):
                d = c0 + j
                r = RR + 4 * it + j
                a(f"v_lshlrev_b32 {v(GT)}, 16, {v(d)}")
                a(f"v_lshlrev_b32 {v(GT+1)}, 16, {v(r)}")
                a(f"v_and_b32 {v(GT+2)}, 0xffff0000, {v(d)}")
                a(f"v_and_b32 {v(GT+3)}, 0xffff0000, {v(r)}")
                a(f"v_add_f32 {v(GT)}, {v(GT)}, {v(GT+1)}")
                a(f"v_add_f32 {v(GT+2)}, {v(GT+2)}, {v(GT+3)}")
                a(f"v_cvt_pk_bf16_f32 {v(d)}, {v(GT)}, {v(GT+2)}")
        a(f"buffer_store_dwordx4 {v(c0,4)}, {v(OFF+it)}, s[12:15], 0 offen {STMOD if (ln or STALL) else ''}")
        if stats_out:
            assert CPRW == 8
            a(f"v_mov_b32 {v(GT+8)}, 0x3f803f80")
            a(f"v_mov_b32 {v(GT)}, 0")
            a(f"v_mov_b32 {v(GT+1)}, 0")
            for j in range(4):
                a(f"v_dot2_f32_bf16 {v(GT)}, {v(c0+j)}, {v(GT+8)}, {v(GT)}")
                a(f"v_dot2_f32_bf16 {v(GT+1)}, {v(c0+j)}, {v(c0+j)}, {v(GT+1)}")
            a("s_nop 3")
            for q_, mode in enumerate(("quad_perm:[1,0,3,2]", "quad_perm:[2,3,0,1]", "row_half_mirror")):
                src = GT + 2 * (q_ & 1); dst = GT + 2 * ((q_ + 1) & 1)
                for k_ in range(2):
                    a(f"v_add_f32_dpp {v(dst+k_)}, {v(src+k_)}, {v(src+k_)} {mode} row_mask:0xf bank_mask:0xf")
                a("s_nop 1")
            a("s_mov_b32 exec_lo, 0x01010101")
            a("s_mov_b32 exec_hi, 0x01010101")
            a(f"buffer_store_dwordx2 {v(GT+2,2)}, {v(SOF+it)}, s[84:87], 0 offen")
            a("s_mov_b64 exec, -1")
    stamp(6)
    if 'stamp' in EXP: a("s_waitcnt vmcnt(0)")
    stamp(7)
    stamp_out()
    a.label(end)
    a("s_endpgm")
    if DRY: a.dry_dispatch()
    return dict(name=name, grid=ntiles, block=512, lds=lds, desc=kernel_desc(name, max(nvgpr, GT + 10, 168)))


def gen_attn(a, name, pf=None, colsum=False):
    import struct
    NQB = S // 32
    ntask = H * NQB
    nwg = ntask // 4
    QKV_ROW = 3 * D * 2
    KLDS = 384 * 64
    lds = 2 * KLDS
    kernel_header(a, name)
    end = a.newlabel("L_end")
    npf = 0
    a(f"s_cmp_ge_u32 s2, {nwg + npf}")
    a(f"s_cbranch_scc1 {end}")
    a(f"s_load_dwordx2 s[24:25], s[0:1], {ARG['ws']}")
    a("v_and_b32 v1, 63, v0")
    a("v_lshrrev_b32 v2, 6, v0")
    a("s_nop 0")
    a("v_readfirstlane_b32 s30, v2")
    a("s_nop 3")
    a("s_lshl_b32 s3, s2, 2")
    a("s_add_u32 s92, s3, s30")
    a("s_and_b32 s28, s2, 31")
    a("s_lshr_b32 s29, s2, 5")
    a("s_lshl_b32 s39, s29, 7")
    a("s_sub_u32 s39, s39, 256")
    a("s_lshl_b32 s3, s30, 5")
    a("s_add_u32 s32, s39, s3")
    a("s_add_u32 s31, s32, 256")
    a("s_lshl_b32 s33, s28, 6")
    a(f"s_add_u32 s35, s33, {2*D*2}")
    a(f"s_add_u32 s36, s33, {D*2}")
    a("v_and_b32 v2, 31, v1")
    a("v_lshrrev_b32 v3, 5, v1")
    a("v_add_u32 v4, s31, v2")
    a(f"v_mul_u32_u24 v4, {QKV_ROW}, v4")
    a("v_lshl_add_u32 v4, v3, 4, v4")
    a("v_add_u32 v4, s33, v4")
    a("s_waitcnt lgkmcnt(0)")
    srd(a, 4, 24, WS_QKV, S * 3 * D * 2)
    srd(a, 8, 24, WS_O, S * D * 2)
    a("v_lshrrev_b32 v5, 2, v1")
    a("v_and_b32 v6, 3, v1")
    a("v_bfe_u32 v7, v1, 4, 2")
    a("v_xor_b32 v7, v7, v6")
    a("s_mul_i32 s3, s30, 96")
    a("s_add_u32 s3, s3, s39")
    a("s_mul_i32 s34, s30, 6144")
    for p in range(6):
        a(f"v_add_u32 v16, {16*p}, v5")
        a("v_add_u32 v16, s3, v16")
        a("v_max_i32 v16, 0, v16")
        a(f"v_mul_u32_u24 v16, {QKV_ROW}, v16")
        a("v_lshl_add_u32 v17, v7, 4, v16")
        a("v_add_u32 v17, s36, v17")
        a(f"s_add_u32 m0, s34, {p*1024}")
        a("v_lshl_add_u32 v16, v6, 4, v16")
        a(f"buffer_load_dwordx4 v17, s[4:7], 0 offen lds")
        a("v_add_u32 v16, s35, v16")
        a(f"s_add_u32 m0, s34, {KLDS + p*1024}")
        a("s_nop 0")
        a(f"buffer_load_dwordx4 v16, s[4:7], 0 offen lds")
    a("buffer_load_dwordx4 v[8:11], v4, s[4:7], 0 offen")
    a("buffer_load_dwordx4 v[12:15], v4, s[4:7], 0 offen offset:32")
    KF = 16
    if colsum:
        a(f"s_load_dwordx2 s[94:95], s[0:1], {ARG['w2']}")
        a(f"s_load_dwordx2 s[40:41], s[0:1], {ARG['wo']}")
        a(f"s_load_dwordx2 s[42:43], s[0:1], {ARG['w1']}")
        a("v_lshlrev_b32 v7, 4, v1")
        a(f"s_mul_i32 s93, s92, {F*D*2//2048}")
        a("s_lshl_b32 s3, s92, 10")
        a("v_add_u32 v16, s93, v7")
        a("v_add_u32 v17, s3, v7")
        a(f"s_mul_hi_u32 s44, s92, {((1 << 32) + 111) // 112}")
        a("s_mul_i32 s3, s44, 112")
        a("s_sub_u32 s45, s92, s3")
        a("s_lshl_b32 s3, s44, 6")
        a("v_lshrrev_b32 v18, 2, v1")
        a("v_add_u32 v18, s3, v18")
        a(f"v_mul_u32_u24 v18, {F*2}, v18")
        a("v_and_b32 v19, 3, v1")
        a("v_lshl_add_u32 v18, v19, 4, v18")
        a("s_lshl_b32 s3, s45, 6")
        a("v_add_u32 v18, s3, v18")
        a("s_waitcnt lgkmcnt(0)")
        npl = 4
        if 'nowpf' in EXP:
            srd(a, 96, 94, 0, F * D * 2)
            for j in range(4):
                a(f"buffer_load_dwordx4 v[240:243], v16, s[96:99], 0 offen offset:{1024*j}")
            srd(a, 96, 40, 0, D * D * 2)
            a("buffer_load_dwordx4 v[240:243], v17, s[96:99], 0 offen")
            npl = 9
        srd(a, 96, 42, 0, D * F * 2)
        for j in range(4):
            a(f"s_mov_b32 s3, {16*j*F*2}")
            a(f"buffer_load_dwordx4 {v(240+4*j,4)}, v18, s[96:99], s3 offen")
    else:
        npl = tail_prefetch(a, 92, 1, pf, 7, 240) if pf else 0
    a("v_bfe_u32 v5, v1, 2, 2")
    a("v_xor_b32 v5, v5, v3")
    a("v_lshlrev_b32 v6, 6, v2")
    a("s_lshl_b32 s34, s30, 11")
    a("v_add_u32 v6, s34, v6")
    a("v_lshl_add_u32 v88, v5, 4, v6")
    a("v_xor_b32 v5, 2, v5")
    a("v_lshl_add_u32 v89, v5, 4, v6")
    a(f"s_add_u32 s34, s34, {KLDS}")
    a(f"s_waitcnt vmcnt({npl})")
    a("s_barrier")
    for t_ in range(9):
        a(f"ds_read_b128 {v(KF+8*t_,4)}, v88 offset:{2048*t_}")
        a(f"ds_read_b128 {v(KF+8*t_+4,4)}, v89 offset:{2048*t_}")
    SC = 96
    a("v_mov_b32 v7, 0xf149f2ca")
    for t in range(9):
        a(f"s_waitcnt lgkmcnt({min(15, 2*(8-t))})")
        if t < 8:
            lab_inv = a.newlabel("L_inv"); lab_done = a.newlabel("L_tdone")
            a(f"s_add_i32 s3, s32, {32*t}")
            a("s_cmp_lt_i32 s3, 0")
            a(f"s_cbranch_scc1 {lab_inv}")
        a(f"v_mfma_f32_32x32x16_bf16 {v(SC+16*t,16)}, {v(KF+8*t,4)}, v[8:11], 0")
        a(f"v_mfma_f32_32x32x16_bf16 {v(SC+16*t,16)}, {v(KF+8*t+4,4)}, v[12:15], {v(SC+16*t,16)}")
        if t < 8:
            a(f"s_branch {lab_done}")
            a.label(lab_inv)
            for r in range(16):
                a(f"v_mov_b32 v{SC+16*t+r}, v7")
            a.label(lab_done)
    a("v_lshlrev_b32 v5, 2, v3")
    a("v_sub_u32 v5, v2, v5")
    a("s_nop 7")
    a("s_nop 7")
    for r in range(16):
        c = (r & 3) + 8 * (r >> 2)
        a(f"v_cmp_gt_i32 vcc, {c}, v5")
        a(f"v_cmp_le_i32 s[36:37], {c}, v5")
        a("s_nop 0")
        a(f"v_cndmask_b32 v{SC+r}, v7, v{SC+r}, vcc")
        a(f"v_cndmask_b32 v{SC+128+r}, v7, v{SC+128+r}, s[36:37]")
    a(f"v_max3_f32 v4, v{SC}, v{SC+1}, v{SC+2}")
    a(f"v_max3_f32 v6, v{SC+3}, v{SC+4}, v{SC+5}")
    for i in range(6, 144, 4):
        a(f"v_max3_f32 v4, v4, v{SC+i}, v{SC+i+1}")
        if i + 3 < 144:
            a(f"v_max3_f32 v6, v6, v{SC+i+2}, v{SC+i+3}")
    a("v_max_f32 v4, v4, v6")
    a("v_xor_b32 v88, 32, v1")
    a("v_lshlrev_b32 v88, 2, v88")
    a("ds_bpermute_b32 v89, v88, v4")
    a("s_waitcnt lgkmcnt(0)")
    a("v_max_f32 v4, v4, v89")
    sc = (DH ** -0.5) * math.log2(math.e)
    sc_bits = struct.unpack("<I", struct.pack("<f", sc))[0]
    a(f"s_mov_b32 s38, {sc_bits}")
    a("v_mul_f32 v4, s38, v4")
    sums = [5, 6, 90, 91]
    for sreg in sums:
        a(f"v_mov_b32 v{sreg}, 0")
    for g in range(0, 144, 4):
        for j in range(4):
            a(f"v_fma_f32 v{SC+g+j}, v{SC+g+j}, s38, -v4")
        for j in range(4):
            a(f"v_exp_f32 v{SC+g+j}, v{SC+g+j}")
        if g >= 4:
            for j in range(4):
                a(f"v_add_f32 v{sums[j]}, v{sums[j]}, v{SC+g-4+j}")
            tt, jj = divmod(g - 4, 16)
            a(f"v_cvt_pk_bf16_f32 v{KF+8*tt+jj//2}, v{SC+g-4}, v{SC+g-3}")
            a(f"v_cvt_pk_bf16_f32 v{KF+8*tt+jj//2+1}, v{SC+g-2}, v{SC+g-1}")
    a("s_nop 0")
    g = 144
    for j in range(4):
        a(f"v_add_f32 v{sums[j]}, v{sums[j]}, v{SC+g-4+j}")
    tt, jj = divmod(g - 4, 16)
    a(f"v_cvt_pk_bf16_f32 v{KF+8*tt+jj//2}, v{SC+g-4}, v{SC+g-3}")
    a(f"v_cvt_pk_bf16_f32 v{KF+8*tt+jj//2+1}, v{SC+g-2}, v{SC+g-1}")
    a("v_add_f32 v5, v5, v6")
    a("v_add_f32 v90, v90, v91")
    a("v_add_f32 v5, v5, v90")
    a("ds_bpermute_b32 v89, v88, v5")
    a("v_bfe_u32 v6, v1, 2, 2")
    a("v_lshl_add_u32 v6, v3, 2, v6")
    a("v_lshlrev_b32 v6, 6, v6")
    a("v_bfe_u32 v7, v1, 4, 1")
    a("v_lshl_add_u32 v6, v7, 5, v6")
    a("v_and_b32 v7, 3, v1")
    a("v_lshl_add_u32 v6, v7, 3, v6")
    a("v_add_u32 v6, s34, v6")
    OA = SC
    VF = SC + 16
    a(f"s_waitcnt lgkmcnt(0)")
    a("v_add_f32 v5, v5, v89")
    a("v_rcp_f32 v5, v5")
    for t in range(9):
        for sidx in range(2):
            f = VF + 4 * (2 * t + sidx)
            base = (32 * t + 16 * sidx) * 64
            a(f"ds_read_b64_tr_b16 {v(f,2)}, v6 offset:{base}")
            a(f"ds_read_b64_tr_b16 {v(f+2,2)}, v6 offset:{base+8*64}")
    first = True
    for t in range(9):
        for sidx in range(2):
            f = VF + 4 * (2 * t + sidx)
            idx = 2 * t + sidx
            rem = 36 - 2 * (idx + 1)
            a(f"s_waitcnt lgkmcnt({min(rem,15)})")
            a(f"v_mfma_f32_32x32x16_bf16 {v(OA,16)}, {v(f,4)}, {v(KF+8*t+4*sidx,4)}, {'0' if first else v(OA,16)}")
            first = False
    if colsum:
        lab_nc = a.newlabel("L_nocs")
        a("s_cmp_ge_u32 s44, 16")
        a(f"s_cbranch_scc1 {lab_nc}")
        CA = 184; CT = 192
        a("s_waitcnt vmcnt(0)")
        for j in range(4):
            a(f"v_lshlrev_b32 v{CA+2*j}, 16, v{240+j}")
            a(f"v_and_b32 v{CA+2*j+1}, 0xffff0000, v{240+j}")
        for i in range(1, 4):
            for j in range(4):
                a(f"v_lshlrev_b32 v{CT+2*j}, 16, v{240+4*i+j}")
                a(f"v_and_b32 v{CT+2*j+1}, 0xffff0000, v{240+4*i+j}")
            for j in range(4):
                a(f"v_pk_add_f32 {v(CA+2*j,2)}, {v(CA+2*j,2)}, {v(CT+2*j,2)}")
        a("s_nop 1")
        for mode in ("row_ror:4", "row_ror:8"):
            for j in range(8):
                a(f"v_add_f32_dpp v{CT+j}, v{CA+j}, v{CA+j} {mode} row_mask:0xf bank_mask:0xf")
            a("s_nop 1")
            for j in range(8):
                a(f"v_mov_b32 v{CA+j}, v{CT+j}")
            a("s_nop 1")
        for x in (16, 32):
            a(f"v_xor_b32 v200, {x}, v1")
            a("v_lshlrev_b32 v200, 2, v200")
            for j in range(8):
                a(f"ds_bpermute_b32 v{CT+j}, v200, v{CA+j}")
            a("s_waitcnt lgkmcnt(0)")
            for j in range(8):
                a(f"v_add_f32 v{CA+j}, v{CA+j}, v{CT+j}")
        srd(a, 96, 24, WS_CS, 16 * F * 4)
        a(f"s_mul_i32 s3, s44, {F*4}")
        a("s_lshl_b32 s45, s45, 7")
        a("s_add_u32 s3, s3, s45")
        a("v_lshlrev_b32 v200, 5, v1")
        a("s_mov_b64 exec, 15")
        a(f"buffer_store_dwordx4 {v(CA,4)}, v200, s[96:99], s3 offen")
        a(f"buffer_store_dwordx4 {v(CA+4,4)}, v200, s[96:99], s3 offen offset:16")
        a("s_mov_b64 exec, -1")
        a.label(lab_nc)
    a("v_add_u32 v7, s31, v2")
    a(f"v_lshlrev_b32 v7, 11, v7")
    a("v_lshl_add_u32 v7, v3, 3, v7")
    a("v_add_u32 v7, s33, v7")
    a("s_nop 7")
    a("s_nop 7")
    for g in range(4):
        for r in range(4):
            a(f"v_mul_f32 v{OA+4*g+r}, v{OA+4*g+r}, v5")
        a(f"v_cvt_pk_bf16_f32 v{OA+4*g}, v{OA+4*g}, v{OA+4*g+1}")
        a(f"v_cvt_pk_bf16_f32 v{OA+4*g+1}, v{OA+4*g+2}, v{OA+4*g+3}")
        a(f"buffer_store_dwordx2 {v(OA+4*g,2)}, v7, s[8:11], 0 offen offset:{16*g}")
    a.label(end)
    a("s_endpgm")
    return dict(name=name, grid=nwg + npf, block=256, lds=lds, desc=kernel_desc(name, 256 if colsum else 244))


def main():
    a = Asm()
    ks = []
    FLK = os.environ.get('FLK', 'x')
    NS2 = int(os.environ.get('NS2', '5'))
    FUSE = 'nofuse' not in EXP
    SPLIT = 'split' in EXP
    L2PF = int(os.environ.get('L2PF', '0'))
    W1HI = int(os.environ.get('W1HI', '10'))
    W2HI = int(os.environ.get('W2HI', '-1'))
    SKLO = int(os.environ.get('SKLO', '23'))
    QA = 'noqa' not in EXP
    W2T = QA and 'w2t' in EXP
    if QA:
        sys.path.insert(0, os.path.dirname(os.path.abspath(__file__)))
        import qa
        WOHI = int(os.environ.get('WOHI', '3'))
        ks.append(qa.gen_qa(sys.modules[__name__], a, "qa_kernel", wpf=[("wo", D*D*2)]))
    elif FUSE:
        ks.append(gen_gemm(a, "qkv_kernel", 3 * D, D, 192, 0, "wqkv", "plain", "ws", WS_QKV, NSTAGE=4, RA=8, RBN=4,
                           ln='single', a_arg='x',
                           wpf=[("w1", D*F*2, W1HI), ("wo", D*D*2, W1HI-7)]))
    else:
        ks.append(gen_ln(a, "ln1_kernel", "x", 0, WS_Y1, False, pf=[("wqkv", D*3*D*2), ("wo", D*D*2)]))
        ks.append(gen_gemm(a, "qkv_kernel", 3 * D, D, 192, WS_Y1, "wqkv", "plain", "ws", WS_QKV, NSTAGE=4, RA=8, RBN=4))
    if not QA: ks.append(gen_attn(a, "attn_kernel", pf=[("w1", D*F*2), ("w2", F*D*2), ("wo", D*D*2)] if FUSE else [("w1", D*F*2), ("w2", F*D*2)], colsum=FUSE))
    ks.append(gen_gemm(a, "oproj_kernel", D, D, 64, WS_O, "wo", "plain", "ws", WS_H, res_arg="x", NSTAGE=NS2, flags='o' in FLK, stats_out=FUSE, spf=eval(os.environ.get('SPFO', 'None')),
                       atile=OT, lda=D*2*TX if OT else None, otile=OT, ldo=D*2*TX if OT else None, c3=WS_WOC if C3 else None, sp2=eval(os.environ.get('SP2O', 'None')), sp3=eval(os.environ.get('SP3O', 'None'))))
    if FUSE:
        ks.append(gen_gemm(a, "ffn1_kernel", F, D, 224, WS_H, "ws" if W1T else "w1", "gelu", "ws", WS_H1, bias_arg="b1", RA=8, RBN=4,
                           w_off=WS_W1T if W1T else None, wt7=W1T, flags='1' in FLK, sp4=eval(os.environ.get('SP4', 'None')), ln='double', pre=True, ldo=LDH1, zero_flags=SPLIT, wpf=[("w2", F*D*2, W2HI)] if W2HI else None, otile=QA, w2copy=W2T and 'qw2' not in EXP, epi2='oldepi' not in EXP,
                           atile=OT, lda=D*2*TX if OT else None, c3src=("w2", F, WS_W2C) if C3 and not QC3 else None,
                           endpf=("w2", F*D*2, 0, 56) if 'endpf' in EXP else None))
    else:
        ks.append(gen_ln(a, "ln2_kernel", "ws", WS_H, WS_Y2, True))
        ks.append(gen_gemm(a, "ffn1_kernel", F, D, 224, WS_Y2, "w1", "gelu", "ws", WS_H1, bias_arg="b1", RA=8, RBN=4))
    if SPLIT:
        ks.append(gen_gemm(a, "ffn2_kernel", D, F, 128, WS_H1, "w2", "plain", "out", 0, res_arg="ws", res_off=WS_H,
                           bias_arg="b2", NSTAGE=5, lda=LDH1, RA=int(os.environ.get('SRA','8')), RBN=4, splitk=(SKLO, 56 - SKLO), atile=QA))
    else:
        ks.append(gen_gemm(a, "ffn2_kernel", D, F, 64, WS_H1, "ws" if W2T else "w2", "plain", "out", 0, res_arg="ws", res_off=WS_H,
                           atile=QA, w_off=WS_W2T if W2T else None, rtile=OT, c3=WS_W2C if C3 else None, sp2=eval(os.environ.get('SP2', 'None')), sp3=eval(os.environ.get('SP3', 'None')),
                           bias_arg="b2", NSTAGE=NS2, flags='2' in FLK, lda=LDH1, l2pf=L2PF, spf=eval(os.environ.get('SPF2', 'None')), RA=int(os.environ.get('F2RA','4')), RBN=32//int(os.environ.get('F2RA','4'))))
    hdr = []
    for k in ks:
        hdr.append(f"; @launch kernel={k['name']} grid=({k['grid']},1,1) block=({k['block']},1,1) lds={k['lds']}")
    txt = "\n".join(hdr) + "\n"
    txt += '.amdgcn_target "amdgcn-amd-amdhsa--gfx950"\n.text\n'
    txt += "\n".join(a.lines) + "\n"
    txt += '.section .rodata,"a"\n'
    for k in ks:
        txt += ".p2align 6\n" + k["desc"]
    open(OUT, "w").write(txt)


if __name__ == "__main__":
    main()
```

```python
import math, struct, os


def gen_qa(G, a, name, wpf=None):
    v, s, srd, hex_f32 = G.v, G.s, G.srd, G.hex_f32
    ARG, EXP = G.ARG, G.EXP
    S, D, F, DH = G.S, G.D, G.F, G.DH
    MB = 1 << 20
    WT = 'sc0 sc1' if G.FZ else ''
    WS_RS = 3 * MB
    KFO = 65536
    WS_KV = 4 * MB
    K = D; N = 3 * D
    BM, BN, BK, NSTAGE = 256, 96, 64, 3
    MT, NTW, RB = 4, 6, 64
    ABYTES = BM * BK * 2; BBYTES = BK * BN * 2; STAGE = ABYTES + BBYTES
    PA, PB = 8, 3
    P = PA + PB
    NS = K // BK
    lda = K * 2
    XQ, PK, PV, OQ, OK_, OV = 49152, 65536, 81920, 98304, 114688, 131072
    RTAB = 147456; CTAB = 149504; STG = 149888; STAT = 149952; NONCE = 149960; STAT2 = 150016
    lds = 163840
    NPOLL = int(os.environ.get('NPOLL', '48'))
    vXb = [2, 3]; vWb = list(range(4, 10)); vXc = [10, 11]; vWc = list(range(12, 18))
    vT = list(range(18, 26))
    FX = [28, 44]; FW = [60, 84]; ACC = 108; CSA = 204; ONE = 212; PFD = 216; PFV = 220
    QF = 224
    XPA, XPB = 221, 222
    DUM = 232
    LA = int(os.environ.get('XLA', '5'))
    QW2 = 'qw2' in EXP
    SIDEATT = os.environ.get('SIDEAT', 'x') == 'att'
    W1S = 164; W2S = [232, 236, 240, 244, 248, 252, 196]
    t0, t1, t2, t3 = vT[0], vT[1], vT[2], vT[3]
    vA = list(range(2, 10)); vB = list(range(10, 13))

    def acc(nt, mt):
        return ACC + 4 * (nt * MT + mt)

    def stamp(i):
        if 'itst' in EXP and i in (4, 5, 6): return
        if 'stamp' in EXP:
            a(f"s_mem{'real' if ('rt2' in EXP and i in (0, 7)) or G.FZ else ''}time s[{60+2*i}:{61+2*i}]")
            if i >= 4: a("s_waitcnt lgkmcnt(0)")

    def stamp_out():
        if 'stamp' not in EXP: return
        a("s_waitcnt lgkmcnt(0)")
        srd(a, 80, 24, 200 * MB, 1 << 20)
        a("s_lshl_b32 s3, s2, 3")
        a("s_add_u32 s3, s3, s49")
        a("s_lshl_b32 s3, s3, 6")
        a("v_mov_b32 v2, s3")
        a("s_lshl_b32 s3, s101, 4")
        a("s_or_b32 s61, s3, s45")
        a("s_lshl_b32 s3, s51, 8")
        a("s_or_b32 s61, s3, s61")
        for i in range(8):
            a(f"v_mov_b32 v4, s{60+2*i}")
            a(f"v_mov_b32 v5, s{61+2*i}")
            a(f"buffer_store_dwordx2 v[4:5], v2, s[80:83], 0 offen offset:{8*i}")
            a("s_nop 1")

    def stats_load(Dr, T, srow):
        a(f"v_lshlrev_b32 {v(T)}, 5, v1")
        a(f"s_lshl_b32 s3, s{srow}, 11")
        for r in range(2):
            for j in range(2):
                a(f"buffer_load_dwordx4 {v(Dr+8*r+4*j,4)}, {v(T)}, s[4:7], s3 offen offset:{2048*r+16*j}")

    def stats_math(Dr, T):
        A0 = T; A1 = T + 4; O1 = T + 8; AD = T + 9
        a(f"v_mov_b32 {v(O1)}, 0x3f803f80")
        for j in range(4):
            a(f"v_mov_b32 {v(A0+j)}, 0")
        for r in range(2):
            for j in range(8):
                d = v(Dr + 8 * r + j)
                a(f"v_dot2_f32_bf16 {v(A0+2*r)}, {d}, {v(O1)}, {v(A0+2*r)}")
                a(f"v_dot2_f32_bf16 {v(A0+2*r+1)}, {d}, {d}, {v(A0+2*r+1)}")
        a("s_nop 3")
        cur, oth = A0, A1
        for mode in ("quad_perm:[1,0,3,2]", "quad_perm:[2,3,0,1]", "row_half_mirror", "row_mirror"):
            for j in range(4):
                a(f"v_add_f32_dpp {v(oth+j)}, {v(cur+j)}, {v(cur+j)} {mode} row_mask:0xf bank_mask:0xf")
            a("s_nop 1")
            cur, oth = oth, cur
        assert cur == A0
        for x in (16, 32):
            a(f"v_xor_b32 {v(AD)}, {x}, v1")
            a(f"v_lshlrev_b32 {v(AD)}, 2, {v(AD)}")
            for j in range(4):
                a(f"ds_bpermute_b32 {v(A1+j)}, {v(AD)}, {v(A0+j)}")
            a("s_waitcnt lgkmcnt(0)")
            for j in range(4):
                a(f"v_add_f32 {v(A0+j)}, {v(A0+j)}, {v(A1+j)}")
        for r in range(2):
            sm, sq = A0 + 2 * r, A0 + 2 * r + 1
            a(f"v_mul_f32 {v(sm)}, {hex_f32(1.0/K)}, {v(sm)}")
            a(f"v_mul_f32 {v(sq)}, {hex_f32(1.0/K)}, {v(sq)}")
            a(f"v_fma_f32 {v(sq)}, -{v(sm)}, {v(sm)}, {v(sq)}")
            a(f"v_max_f32 {v(sq)}, 0, {v(sq)}")
            a(f"v_add_f32 {v(sq)}, {hex_f32(1e-5)}, {v(sq)}")
            a(f"v_rsq_f32 {v(sq)}, {v(sq)}")
            a("s_nop 0")
            a(f"v_mul_f32 {v(A1)}, {v(sm)}, {v(sq)}")
            a(f"v_mov_b32 {v(sm)}, {v(sq)}")
            a(f"v_sub_f32 {v(sq)}, 0, {v(A1)}")

    def local_stats(Dr, T):
        lp = a.newlabel("L_ls")
        a("s_mov_b32 s101, 1")
        a("s_lshl_b32 s46, s49, 5")
        a("s_add_u32 s47, s46, s98")
        a("s_mov_b32 s52, 16")
        a.label(lp)
        stats_load(Dr, T, 47)
        a("s_waitcnt vmcnt(0)")
        stats_math(Dr, T)
        a("s_lshl_b32 s3, s46, 3")
        a(f"s_add_u32 s3, s3, {RTAB}")
        a(f"v_mov_b32 {v(T+9)}, s3")
        a(f"ds_write_b128 {v(T+9)}, {v(T,4)}")
        a("s_add_u32 s46, s46, 2")
        a("s_add_u32 s47, s47, 2")
        a("s_sub_u32 s52, s52, 1")
        a("s_cmp_lg_u32 s52, 0")
        a(f"s_cbranch_scc1 {lp}")
        a("s_waitcnt lgkmcnt(0)")
        a("s_barrier")

    G.kernel_header(a, name)
    end = a.newlabel("L_end")
    stamp(0)
    lab_loader = a.newlabel("L_loader")
    lab_att = a.newlabel("L_att")
    a("s_cmp_ge_u32 s2, 256")
    a(f"s_cbranch_scc1 {end}")
    if 'qtop' in EXP:
        lh = a.newlabel("L_pc")
        a("s_getpc_b64 s[46:47]")
        a.label(lh)
        a("v_lshrrev_b32 v2, 5, v0")
        a("v_and_b32 v3, 1, v0")
        a("s_lshr_b32 s3, s2, 3")
        a("s_lshl_b32 s3, s3, 4")
        a("v_add3_u32 v2, v2, v3, s3")
        a("v_lshlrev_b32 v2, 7, v2")
        a(f"v_min_u32 v2, {'L_code_end' if G.FZ else end}-{lh}-4, v2")
        a("s_mov_b64 exec, 3")
        a("global_load_dword v254, v2, s[46:47]")
        a("s_mov_b64 exec, -1")
    a(f"s_load_dwordx2 s[24:25], s[0:1], {ARG['ws']}")
    a(f"s_load_dwordx2 s[58:59], s[0:1], {ARG['x']}")
    a(f"s_load_dwordx2 s[26:27], s[0:1], {ARG['wqkv']}")
    a("s_memrealtime s[34:35]")
    a("s_and_b32 s3, s2, 7")
    a("s_lshr_b32 s46, s2, 3")
    a("s_and_b32 s29, s3, 3")
    a("s_lshl_b32 s29, s29, 3")
    a("s_and_b32 s47, s46, 7")
    a("s_add_u32 s29, s29, s47")
    a("s_lshr_b32 s28, s3, 2")
    a("s_lshl_b32 s28, s28, 2")
    a("s_lshr_b32 s47, s46, 3")
    a("s_add_u32 s28, s28, s47")
    a("s_lshl_b32 s99, s28, 5")
    a("s_add_u32 s99, s99, s29")
    a("s_lshl_b32 s98, s28, 8")
    a("v_and_b32 v1, 63, v0")
    a(f"v_lshrrev_b32 {v(t0)}, 6, v0")
    a("s_nop 0")
    a(f"v_readfirstlane_b32 s49, {v(t0)}")
    a("s_nop 3")
    a("s_and_b32 s30, s49, 3")
    a("s_mov_b32 s45, 1")
    a("s_mov_b32 s101, 0")
    a("s_mov_b32 s50, 0")
    a("s_mov_b32 s51, 0")
    a(f"s_mov_b32 s100, {OQ}")

    def build_srds():
        a("s_waitcnt lgkmcnt(0)")
        srd(a, 4, 58, 0, S * D * 2)
        srd(a, 8, 26, 0, K * N * 2)
        srd(a, 12, 24, G.WS_O, S * D * 2 * (G.TX if G.OT else 1))
        srd(a, 16, 24, WS_KV, 256 * 32768)
        a("s_add_u32 s20, s34, 0x1000000")
        a("s_addc_u32 s21, s35, 0")
        srd(a, 36, 24, WS_RS, 131072)
        if G.FZ:
            a("v_mov_b32 v219, 0")
            a("v_mov_b32 v240, 0")
            a("v_writelane_b32 v255, s34, 1")
            a("v_writelane_b32 v255, s35, 2")

    a("s_cmp_ge_u32 s49, 4")
    a(f"s_cbranch_scc1 {lab_loader}")

    build_srds()
    a("s_lshl_b32 s3, s2, 2")
    a("s_add_u32 s93, s3, s30")
    for q, (arg, nbytes) in enumerate(wpf):
        a(f"s_load_dwordx2 s[{76+2*q}:{77+2*q}], s[0:1], {ARG[arg]}")
    a("s_waitcnt lgkmcnt(0)")
    def wsel(q):
        arg, nbytes = wpf[q]
        srd(a, 84, 76 + 2 * q, 0, nbytes)
        a(f"s_mul_i32 s92, s93, {nbytes//1024}")
    wsel(0)
    if 'qpre' in EXP:
        lh = a.newlabel("L_pc")
        a("s_getpc_b64 s[46:47]")
        a.label(lh)
        a(f"s_sub_u32 s46, s46, {lh}-{name}")
        a("s_subb_u32 s47, s47, 0")
        a("s_lshr_b32 s3, s2, 3")
        a("s_lshl_b32 s3, s3, 2")
        a("s_add_u32 s3, s3, s30")
        a("s_lshl_b32 s3, s3, 10")
        a(f"s_min_u32 s3, s3, {end}-{name}-1024")
        a(f"v_lshlrev_b32 {v(t0)}, 4, v1")
        a(f"v_add_u32 {v(t0)}, s3, {v(t0)}")
        a(f"global_load_dwordx4 {v(DUM,4)}, {v(t0)}, s[46:47]")
    SPF = 'oldxla' not in EXP
    if SPF:
        a("s_lshr_b32 s3, s2, 3")
        a("s_lshl_b32 s3, s3, 2")
        a("s_add_u32 s3, s3, s30")
        a(f"v_lshrrev_b32 {v(t0)}, 2, v1")
        a(f"v_and_b32 {v(t1)}, 3, v1")
        a(f"v_lshlrev_b32 {v(t1)}, 7, {v(t1)}")
        a("s_lshr_b32 s46, s28, 2")
        a("s_lshl_b32 s46, s46, 10")
        a("s_lshl_b32 s47, s3, 4")
        a("s_add_u32 s46, s46, s47")
        a("s_lshl_b32 s40, s46, 11")
        a("s_sub_u32 s46, s3, 64")
        a("s_lshr_b32 s47, s46, 4")
        a("s_and_b32 s46, s46, 15")
        a(f"s_mul_i32 s46, s46, {16*N*2}")
        a("s_lshl_b32 s47, s47, 11")
        a("s_add_u32 s46, s46, s47")
        a("s_lshr_b32 s47, s29, 3")
        a("s_lshl_b32 s47, s47, 9")
        a("s_add_u32 s46, s46, s47")
        a("s_cmp_ge_u32 s3, 112")
        a("s_cselect_b32 s46, 0x60000000, s46")
        a(f"s_mov_b32 s41, {256*N*2}")
        a(f"s_mov_b32 s47, {N*2}")
        a("s_cmp_lt_u32 s3, 64")
        a("s_cselect_b32 s40, s40, s46")
        a("s_cselect_b32 s41, 512, s41")
        a("s_cselect_b32 s47, 2048, s47")
        for i in range(4):
            a(f"s_cselect_b32 s{88+i}, s{4+i}, s{8+i}")
        a(f"v_mul_u32_u24 {v(t0)}, s47, {v(t0)}")
        a(f"v_add_u32 {v(XPA)}, {v(t0)}, {v(t1)}")

        def spf():
            a(f"buffer_load_dword {v(DUM)}, {v(XPA)}, s[88:91], s40 offen")
            a("s_add_u32 s40, s40, s41")

        def xpf(): pass
        SPE = eval(os.environ.get('SPE', '(99,99,15,11,7)'))
        if len(SPE) == 5:
            a("s_cselect_b32 exec_lo, 0xcccccccc, -1")
            a("s_cselect_b32 exec_hi, 0xcccccccc, -1")
            a("s_lshr_b32 s3, s41, 1")
            a("s_sub_u32 s40, s40, s3")
        for i, e in enumerate(SPE):
            if e == 99: spf()
            if i == 0 and len(SPE) == 5: a("s_mov_b64 exec, -1")
    else:
        SPE = ()
        a("s_lshr_b32 s3, s2, 3")
        a("s_lshl_b32 s3, s3, 2")
        a("s_add_u32 s3, s3, s30")
        a("s_lshr_b32 s46, s28, 2")
        a("s_lshl_b32 s46, s46, 10")
        a("s_lshl_b32 s47, s3, 3")
        a("s_add_u32 s46, s46, s47")
        a(f"v_lshrrev_b32 {v(t0)}, 3, v1")
        a(f"v_add_u32 {v(t0)}, s46, {v(t0)}")
        a(f"v_lshlrev_b32 {v(t0)}, 11, {v(t0)}")
        a(f"v_and_b32 {v(t1)}, 7, v1")
        a(f"v_lshl_add_u32 {v(XPA)}, {v(t1)}, 4, {v(t0)}")
        a("s_lshr_b32 s46, s3, 5")
        a("s_and_b32 s47, s3, 31")
        a("s_lshl_b32 s47, s47, 1")
        a(f"v_lshrrev_b32 {v(t0)}, 5, v1")
        a(f"v_add_u32 {v(t0)}, s47, {v(t0)}")
        a(f"v_mul_u32_u24 {v(t0)}, {N*2}, {v(t0)}")
        a(f"v_and_b32 {v(t1)}, 31, v1")
        a(f"v_lshl_add_u32 {v(t0)}, {v(t1)}, 4, {v(t0)}")
        a("s_lshl_b32 s46, s46, 11")
        a("s_lshr_b32 s47, s29, 3")
        a("s_lshl_b32 s47, s47, 9")
        a("s_add_u32 s46, s46, s47")
        a("s_cmp_ge_u32 s3, 96")
        a("s_cselect_b32 s46, 0x7f000000, s46")
        a(f"v_add_u32 {v(XPB)}, s46, {v(t0)}")
        a(f"s_mov_b32 s40, {2*BK*2}")
        a(f"s_mov_b32 s41, {2*BK*N*2}")

        def xpf():
            if LA == 0: return
            a(f"buffer_load_dwordx4 {v(DUM,4)}, {v(XPA)}, s[4:7], s40 offen")
            a(f"buffer_load_dwordx4 {v(DUM,4)}, {v(XPB)}, s[8:11], s41 offen")
            a(f"s_add_u32 s40, s40, {BK*2}")
            a(f"s_add_u32 s41, s41, {BK*N*2}")
            a(f"s_min_u32 s40, s40, {(NS-1)*BK*2}")
            a(f"s_min_u32 s41, s41, {(NS-1)*BK*N*2}")
        for _ in range(2, LA + 1):
            xpf()
    lab_cpass = a.newlabel("L_cpass")
    a.label(lab_cpass)
    a(f"v_lshlrev_b32 {v(PFV)}, 4, v1")
    a(f"v_and_b32 {v(t0)}, 15, v1")
    a("s_lshl_b32 s3, s30, 6")
    a(f"v_add_u32 {v(t0)}, s3, {v(t0)}")
    a(f"v_lshlrev_b32 {v(t0)}, 7, {v(t0)}")
    a(f"v_lshrrev_b32 {v(t1)}, 4, v1")
    a(f"v_bfe_u32 {v(t2)}, v1, 1, 3")
    a(f"v_xor_b32 {v(t3)}, {v(t1)}, {v(t2)}")
    a(f"v_lshl_add_u32 {v(vXb[0])}, {v(t3)}, 4, {v(t0)}")
    a(f"v_xor_b32 {v(t3)}, 4, {v(t3)}")
    a(f"v_lshl_add_u32 {v(vXb[1])}, {v(t3)}, 4, {v(t0)}")
    a(f"v_bfe_u32 {v(t0)}, v1, 2, 2")
    a(f"v_lshl_add_u32 {v(t2)}, {v(t1)}, 3, {v(t0)}")
    a(f"v_and_b32 {v(t3)}, 1, {v(t1)}")
    a(f"v_mul_u32_u24 {v(t2)}, {RB}, {v(t2)}")
    a(f"v_and_b32 {v(t0)}, 3, v1")
    a(f"v_lshl_add_u32 {v(t2)}, {v(t0)}, 3, {v(t2)}")
    a(f"v_add_u32 {v(t2)}, {ABYTES}, {v(t2)}")
    for nt in range(NTW):
        blk, p = nt >> 1, nt & 1
        a(f"v_xor_b32 {v(t0)}, {p}, {v(t3)}")
        a(f"v_lshl_add_u32 {v(t0)}, {v(t0)}, 5, {v(t2)}")
        a(f"v_add_u32 {v(vWb[nt])}, {blk*64*RB}, {v(t0)}")
    for i in range(4 * MT * NTW + 8):
        a(f"v_mov_b32 v{ACC+i}, 0")
    for i in range(4):
        a(f"v_mov_b32 {v(ONE+i)}, 0x3f803f80")
    a("s_mov_b32 s42, 0")

    def set_cur():
        for kk in range(2):
            a(f"v_add_u32 {v(vXc[kk])}, s42, {v(vXb[kk])}")
        for nt in range(NTW):
            a(f"v_add_u32 {v(vWc[nt])}, s42, {v(vWb[nt])}")
        a(f"s_add_u32 s42, s42, {STAGE}")
        a(f"s_cmp_ge_u32 s42, {STAGE*NSTAGE}")
        a("s_cselect_b32 s42, 0, s42")

    def read_list(kk, f):
        L = []
        for nt in range(NTW):
            if nt < MT:
                L.append(f"ds_read_b128 {v(FX[f]+4*nt,4)}, {v(vXc[kk])} offset:{nt*2048}")
            for rd in range(2):
                L.append(f"ds_read_b64_tr_b16 {v(FW[f]+4*nt+2*rd,2)}, {v(vWc[nt])} offset:{kk*32*RB+rd*4*RB}")
        return L

    def mfma_list(f):
        L = []
        for nt in range(NTW):
            for mt in range(MT):
                L.append(f"v_mfma_f32_16x16x32_bf16 {v(acc(nt,mt),4)}, {v(FW[f]+4*nt,4)}, {v(FX[f]+4*mt,4)}, {v(acc(nt,mt),4)}")
        return L

    def cs_block(f, wv=None):
        if 'nocs' in EXP: return
        if wv is not None:
            a(f"v_mfma_f32_16x16x32_bf16 {v(CSA,4)}, {v(FW[f]+4*wv,4)}, {v(ONE,4)}, {v(CSA,4)}")
            if wv < 2:
                a(f"v_mfma_f32_16x16x32_bf16 {v(CSA+4,4)}, {v(FW[f]+4*(wv+4),4)}, {v(ONE,4)}, {v(CSA+4,4)}")
            return
        done = a.newlabel("L_cs")
        for w in range(4):
            nx = a.newlabel("L_csn")
            if w < 3:
                a(f"s_cmp_lg_u32 s30, {w}")
                a(f"s_cbranch_scc1 {nx}")
            a(f"v_mfma_f32_16x16x32_bf16 {v(CSA,4)}, {v(FW[f]+4*w,4)}, {v(ONE,4)}, {v(CSA,4)}")
            if w < 2:
                a(f"v_mfma_f32_16x16x32_bf16 {v(CSA+4,4)}, {v(FW[f]+4*(w+4),4)}, {v(ONE,4)}, {v(CSA+4,4)}")
            if w < 3:
                a(f"s_branch {done}")
                a.label(nx)
        a.label(done)

    def inter(kk, fr, fm, wv=None):
        R = read_list(kk, fr); Mm = mfma_list(fm)
        ri = 0
        for i in range(len(Mm)):
            a(Mm[i])
            if ri < len(R): a(R[ri]); ri += 1
        while ri < len(R): a(R[ri]); ri += 1
        cs_block(fm, wv)

    for e in SPE:
        if e == 98: spf()
    stamp(1)
    a("s_barrier")
    stamp(2)
    for e in SPE:
        if e == 97: spf()
    set_cur()
    for x in read_list(0, 0): a(x)
    a("s_waitcnt lgkmcnt(0)")
    inter(1, 1, 0)
    a("s_waitcnt lgkmcnt(0)")
    a(f"s_mov_b32 s48, {NS-1}")
    WOHI = int(os.environ.get('WOHI', '3'))
    EV = [(12, 'pub')] + [(WOHI - i, 'wo') for i in range(wpf[0][1] >> 20)] + [(e, 'spf') for e in SPE if e < 90]
    EV.sort(key=lambda e: -e[0])
    assert len(set(e[0] for e in EV)) == len(EV)
    a(f"s_mov_b32 s94, {EV[0][0]}")
    loops = [a.newlabel("L_cloop") for _ in range(4)]
    ldone = a.newlabel("L_cdone")
    for w in range(1, 4):
        a(f"s_cmp_eq_u32 s30, {w}")
        a(f"s_cbranch_scc1 {loops[w]}")
    rare = []
    for w in range(4):
        a.label(loops[w])
        a("s_barrier")
        set_cur()
        inter(0, 0, 1, w)
        xpf()
        a("s_waitcnt lgkmcnt(0)")
        inter(1, 1, 0, w)
        lpub = a.newlabel("L_pub"); lback = a.newlabel("L_pubb")
        a("s_cmp_eq_u32 s48, s94")
        a(f"s_cbranch_scc1 {lpub}")
        a.label(lback)
        rare.append(('pub', w, lpub, lback))
        if 'itst' in EXP:
            for sl, it in ((4, 12), (5, 8), (6, 4)):
                lx = a.newlabel("L_it")
                a(f"s_cmp_lg_u32 s48, {it}")
                a(f"s_cbranch_scc1 {lx}")
                a(f"s_memtime s[{60+2*sl}:{61+2*sl}]")
                a.label(lx)
        a("s_waitcnt lgkmcnt(0)")
        a("s_sub_u32 s48, s48, 1")
        a("s_cmp_lg_u32 s48, 0")
        a(f"s_cbranch_scc1 {loops[w]}")
        a(f"s_branch {ldone}")
    for kind, x, lab, lb in rare:
        a.label(lab)
        for ev in range(len(EV)):
            nxt_ = EV[ev+1][0] if ev + 1 < len(EV) else 0
            if EV[ev][1] == 'pub':
                pub_next = nxt_
                continue
            nx = a.newlabel("L_ev")
            a(f"s_cmp_lg_u32 s48, {EV[ev][0]}")
            a(f"s_cbranch_scc1 {nx}")
            if EV[ev][1] == 'wo':
                a(f"buffer_load_dwordx4 {v(DUM,4)}, {v(PFV)}, s[84:87], s92 offen")
                a("s_add_u32 s92, s92, 1024")
            else:
                spf()
            a(f"s_mov_b32 s94, {nxt_}")
            a(f"s_branch {lb}")
            a.label(nx)
        a(f"s_mov_b32 s94, {pub_next}")
        if True:
            a("s_cmp_lg_u32 s45, 1")
            a(f"s_cbranch_scc1 {lb}")
            a("s_memrealtime s[22:23]")
            a(f"v_and_b32 {v(t1)}, 1, v1")
            a(f"v_lshlrev_b32 {v(t0)}, 3, {v(t1)}")
            a(f"v_add_u32 {v(t0)}, {STG + 16*x}, {v(t0)}")
            a(f"ds_read_b64 {v(PFD,2)}, {v(t0)}")
            a("s_lshl_b32 s3, s29, 3")
            a("s_add_u32 s3, s3, s98")
            a(f"s_add_u32 s3, s3, {2*x}")
            a("s_lshl_b32 s3, s3, 4")
            a(f"v_lshlrev_b32 {v(t0)}, 4, {v(t1)}")
            a("s_waitcnt lgkmcnt(0)")
            a(f"v_mov_b32 {v(PFD+2)}, s22")
            a(f"v_mov_b32 {v(PFD+3)}, s23")
            a("s_mov_b64 exec, 3")
            if 'nostatflag' not in EXP: a(f"buffer_store_dwordx4 {v(PFD,4)}, {v(t0)}, s[36:39], s3 offen sc0 sc1")
            a("s_mov_b64 exec, -1")
        a(f"s_branch {lb}")
    a.label(ldone)
    stamp(3)
    cs_block(1)
    for x in mfma_list(1): a(x)
    a(f"v_lshrrev_b32 {v(t0)}, 4, v1")
    a(f"v_lshlrev_b32 {v(t0)}, 4, {v(t0)}")
    a("s_lshl_b32 s3, s30, 6")
    a(f"s_add_u32 s3, s3, {CTAB}")
    a(f"v_add_u32 {v(t1)}, s3, {v(t0)}")
    a("s_mov_b32 exec_lo, 0x00010001")
    a("s_mov_b32 exec_hi, 0x00010001")
    a(f"ds_write_b128 {v(t1)}, {v(CSA,4)}")
    lcs = a.newlabel("L_cs2")
    a("s_cmp_ge_u32 s30, 2")
    a(f"s_cbranch_scc1 {lcs}")
    a(f"ds_write_b128 {v(t1)}, {v(CSA+4,4)} offset:256")
    a.label(lcs)
    a("s_mov_b64 exec, -1")
    a(f"v_add_u32 {v(t0)}, {CTAB}, {v(t0)}")
    a(f"v_mov_b32 {v(t1)}, {STAT}")
    a("s_waitcnt lgkmcnt(0)")
    a("s_barrier")
    RT = FX[0]; RQ = RT + 8; CS = RQ + 8; GE = CS + 24
    assert GE + 8 <= ACC
    a(f"ds_read_b32 {v(t2)}, {v(t1)}")
    for nt in range(NTW):
        a(f"ds_read_b128 {v(CS+4*nt,4)}, {v(t0)} offset:{64*nt}")
    a("s_waitcnt lgkmcnt(0)")
    a(f"v_readfirstlane_b32 s3, {v(t2)}")
    a("s_nop 3")
    lok = a.newlabel("L_stok")
    a("s_cmp_eq_u32 s3, 1")
    a(f"s_cbranch_scc1 {lok}")
    local_stats(GE + 8, GE + 24)
    a.label(lok)
    a(f"v_and_b32 {v(t2)}, 15, v1")
    a("s_lshl_b32 s3, s30, 6")
    a(f"v_add_u32 {v(t2)}, s3, {v(t2)}")
    a(f"v_lshlrev_b32 {v(t0)}, 3, {v(t2)}")
    a(f"v_add_u32 {v(t0)}, {RTAB}, {v(t0)}")
    for mt in range(MT):
        a(f"ds_read_b64 {v(RT+2*mt,2)}, {v(t0)} offset:{128*mt}")
    a(f"v_lshlrev_b32 {v(t2)}, 6, {v(t2)}")
    a(f"v_add_u32 {v(t2)}, s100, {v(t2)}")
    a(f"v_lshrrev_b32 {v(t3)}, 4, v1")
    DV = vT[4]; DQ0 = vT[5]; DQ1 = vT[6]
    a(f"v_lshl_add_u32 {v(DV)}, {v(t3)}, 3, {v(t2)}")
    a(f"v_lshrrev_b32 {v(t0)}, 1, {v(t3)}")
    a(f"v_bfe_u32 {v(t1)}, v1, 2, 2")
    a(f"v_xor_b32 {v(t0)}, {v(t0)}, {v(t1)}")
    a(f"v_lshl_add_u32 {v(t0)}, {v(t0)}, 4, {v(t2)}")
    a(f"v_and_b32 {v(t1)}, 1, {v(t3)}")
    a(f"v_lshl_add_u32 {v(DQ0)}, {v(t1)}, 3, {v(t0)}")
    a(f"v_xor_b32 {v(DQ1)}, 32, {v(DQ0)}")
    sc = (DH ** -0.5) * math.log2(math.e)
    a(f"s_mov_b32 s52, {hex_f32(sc)}")
    a("s_waitcnt lgkmcnt(0)")
    for i in range(8):
        a(f"v_mul_f32 {v(RQ+i)}, s52, {v(RT+i)}")
    for nt in range(NTW):
        R_ = RQ if nt < 2 else RT
        for mp in range(0, MT, 2):
            c0 = acc(nt, mp)
            for q in range(2):
                for j in range(2):
                    a(f"v_pk_mul_f32 {v(GE+4*q+2*j,2)}, {v(CS+4*nt+2*j,2)}, {v(R_+2*(mp+q),2)} op_sel:[0,1] op_sel_hi:[1,1]")
            for q in range(2):
                for j in range(2):
                    cc = v(c0 + 4 * q + 2 * j, 2)
                    a(f"v_pk_fma_f32 {cc}, {cc}, {v(R_+2*(mp+q),2)}, {v(GE+4*q+2*j,2)} op_sel:[0,0,0] op_sel_hi:[1,0,1]")
            for j in range(4):
                a(f"v_cvt_pk_bf16_f32 {v(c0+j)}, {v(c0+2*j)}, {v(c0+2*j+1)}")
            for q in range(2):
                sec = nt >> 1
                if sec == 2:
                    a(f"ds_write_b64 {v(DV)}, {v(c0+2*q,2)} offset:{(mp+q)*1024 + sec*16384 + 32*(nt&1)}")
                else:
                    a(f"ds_write_b64 {v(DQ1 if nt & 1 else DQ0)}, {v(c0+2*q,2)} offset:{(mp+q)*1024 + sec*16384}")
    a("s_waitcnt vmcnt(0) lgkmcnt(0)")
    stamp(4)
    a("s_barrier")
    a(f"s_branch {lab_att}")

    a.label(lab_loader)
    a("s_setprio 2")
    a(f"s_load_dwordx2 s[94:95], s[0:1], {ARG['w1']}")
    a(f"s_load_dwordx2 s[96:97], s[0:1], {ARG['wo' if G.C3 else 'w2']}")
    assert not (G.C3 and QW2)
    LSD = 40; LST = 56; LNO = 68; LTB = 72
    a("s_lshl_b32 s3, s30, 6")
    a(f"v_lshrrev_b32 {v(t0)}, 3, v1")
    a(f"v_add_u32 {v(t0)}, s3, {v(t0)}")
    for i in range(PA):
        a(f"v_add_u32 {v(t1)}, {8*i}, {v(t0)}")
        a(f"v_lshrrev_b32 {v(t2)}, 1, {v(t1)}")
        a(f"v_and_b32 {v(t2)}, 7, {v(t2)}")
        a(f"v_and_b32 {v(t3)}, 7, v1")
        a(f"v_xor_b32 {v(t2)}, {v(t2)}, {v(t3)}")
        a(f"v_add_u32 {v(t1)}, s98, {v(t1)}")
        a(f"v_mul_u32_u24 {v(t1)}, {lda}, {v(t1)}")
        a(f"v_lshl_add_u32 {v(vA[i])}, {v(t2)}, 4, {v(t1)}")
    a("s_lshl_b32 s3, s29, 6")
    for i in range(PB):
        a(f"s_mul_i32 s46, s30, {PB}")
        a(f"s_add_u32 s46, s46, {i}")
        a("s_lshr_b32 s47, s46, 2")
        a("s_and_b32 s46, s46, 3")
        a("s_lshl_b32 s46, s46, 4")
        a("s_lshl_b32 s47, s47, 11")
        a("s_add_u32 s47, s47, s3")
        a(f"v_lshrrev_b32 {v(t0)}, {3 if 'bfull' in EXP else 2}, v1")
        a(f"v_add_u32 {v(t0)}, s46, {v(t0)}")
        a(f"v_and_b32 {v(t1)}, {7 if 'bfull' in EXP else 3}, v1")
        if 'bfull' in EXP: a("s_and_b32 s47, s47, 0xffffff80")
        a(f"v_bfe_u32 {v(t2)}, {v(t0)}, 3, 1")
        a(f"v_lshlrev_b32 {v(t2)}, 1, {v(t2)}")
        a(f"v_xor_b32 {v(t1)}, {v(t1)}, {v(t2)}")
        a(f"v_mul_u32_u24 {v(t0)}, {N*2}, {v(t0)}")
        a(f"v_lshl_add_u32 {v(t0)}, {v(t1)}, 4, {v(t0)}")
        a(f"v_add_u32 {v(vB[i])}, s47, {v(t0)}")
    a(f"s_mul_i32 s31, s30, {PA*1024}")
    a(f"s_mul_i32 s32, s30, {PB*1024}")
    a(f"s_add_u32 s32, s32, {ABYTES}")
    build_srds()
    a("s_lshl_b32 s46, s29, 3")
    a("s_add_u32 s46, s46, s98")
    a("s_lshl_b32 s47, s30, 1")
    a("s_add_u32 s47, s47, s46")
    stats_load(LSD, LST, 47)
    lab_lpass = a.newlabel("L_lpass")
    a.label(lab_lpass)
    a("s_mov_b32 s40, 0")
    a("s_mov_b32 s41, 0")
    a("s_mov_b32 s43, 0")
    a("s_mov_b32 s53, 0")

    def dma():
        a("s_add_u32 s33, s43, s31")
        for i in range(PA):
            a(f"s_add_u32 m0, s33, {i*1024}")
            a("s_nop 0")
            a(f"buffer_load_dwordx4 {v(vA[i])}, s[4:7], s40 offen lds")
        a("s_add_u32 s33, s43, s32")
        for i in range(PB):
            a(f"s_add_u32 m0, s33, {i*1024}")
            a("s_nop 0")
            a(f"buffer_load_dwordx4 {v(vB[i])}, s[8:11], s41 offen lds")
        a(f"s_add_u32 s40, s40, {BK*2}")
        a(f"s_add_u32 s41, s41, {BK*N*2}")
        a(f"s_add_u32 s43, s43, {STAGE}")
        a(f"s_cmp_ge_u32 s43, {STAGE*NSTAGE}")
        a("s_cselect_b32 s43, 0, s43")

    nloop = NS - NSTAGE + 1
    lab_l2p = a.newlabel("L_l2p"); lab_lend = a.newlabel("L_lend")
    a("s_cmp_lg_u32 s45, 1")
    a(f"s_cbranch_scc1 {lab_l2p}")
    stamp(1)
    Q = []
    def dmaq(j):
        dma(); Q.extend([('d', j)] * P)
    def waitq(*tags):
        last = max(i for i, x in enumerate(Q) if x in tags)
        a(f"s_waitcnt vmcnt({len(Q) - 1 - last})")
    for j in range(NSTAGE - 1):
        dmaq(j)
    stamp(2)
    SA1, SA2 = 218, 219
    a("s_lshl_b32 s92, s99, 2")
    a("s_add_u32 s92, s92, s30")
    srd(a, 76, 94, 0, D * F * 2)
    srd(a, 88, 96, 0, D * D * 2 if G.C3 else F * D * 2)
    a(f"v_lshrrev_b32 {v(t0)}, 3, v1")
    a(f"v_and_b32 {v(t1)}, 7, v1")
    a(f"v_lshlrev_b32 {v(t1)}, 4, {v(t1)}")
    a(f"v_lshl_add_u32 {v(SA2)}, {v(t0)}, 11, {v(t1)}")
    a("s_lshr_b32 s3, s92, 6")
    a("s_lshl_b32 s3, s3, 7")
    a("s_and_b32 s46, s92, 63")
    a(f"s_mul_i32 s46, s46, {56*D*2}")
    a("s_add_u32 s3, s3, s46")
    a(f"v_add_u32 {v(SA2)}, s3, {v(SA2)}")
    a("s_min_u32 s46, s92, 895")
    a(f"s_mul_hi_u32 s93, s46, {((1 << 32) + 55) // 56}")
    a("s_mul_i32 s3, s93, 56")
    a("s_sub_u32 s84, s46, s3")
    a(f"v_mul_u32_u24 {v(t0)}, {F*2}, {v(t0)}")
    a(f"v_add_u32 {v(SA1)}, {v(t0)}, {v(t1)}")
    a(f"s_mul_i32 s3, s93, {64*F*2}")
    a("s_lshl_b32 s46, s84, 7")
    a("s_add_u32 s3, s3, s46")
    a(f"v_add_u32 {v(SA1)}, s3, {v(SA1)}")
    side = [(W1S + 4 * j, SA1, 76, 8 * j * F * 2) for j in range(8)] + ([(W2S[j], SA2, 88, 8 * j * D * 2) for j in range(7)] if QW2 else [])
    SIDE0 = int(os.environ.get('SIDE0', '16')); SPI = int(os.environ.get('SPI', '1'))
    def sideq():
        if not side: return
        d, av, sr, off = side.pop(0)
        a(f"s_mov_b32 s3, {off}")
        a(f"buffer_load_dwordx4 {v(d,4)}, {v(av)}, s[{sr}:{sr+3}], s3 offen")
        Q.append('s')
    for j in range(NS):
        c = nloop - j
        waitq(('d', j), 't')
        a("s_barrier")
        if c == 2:
            l1 = a.newlabel("L_l1")
            a("s_cmp_lg_u32 s30, 0")
            a(f"s_cbranch_scc1 {l1}")
            a(f"v_lshlrev_b32 {v(t0)}, 4, v1")
            a("s_lshl_b32 s3, s28, 12")
            for jj in range(4):
                a(f"buffer_load_dwordx4 {v(LTB+4*jj,4)}, {v(t0)}, s[36:39], s3 offen offset:{1024*jj} sc0 sc1")
            a.label(l1)
            Q.append('t')
        if c == 1:
            l2 = a.newlabel("L_l2")
            a("s_cmp_lg_u32 s30, 0")
            a(f"s_cbranch_scc1 {l2}")
            a("s_mov_b64 s[54:55], exec")
            for jj in range(4):
                a(f"v_cmp_lt_u64 vcc, s[34:35], {v(LTB+4*jj+2,2)}")
                a(f"v_cmp_gt_u64 s[56:57], s[20:21], {v(LTB+4*jj+2,2)}")
                a("s_nop 3")
                a("s_and_b64 s[54:55], s[54:55], vcc")
                a("s_and_b64 s[54:55], s[54:55], s[56:57]")
            a("s_cmp_lg_u64 s[54:55], exec")
            a(f"s_cbranch_scc1 {l2}")
            a("s_mov_b32 s53, 1")
            a(f"v_lshlrev_b32 {v(t0)}, 3, v1")
            a(f"v_add_u32 {v(t0)}, {RTAB}, {v(t0)}")
            for jj in range(4):
                a(f"ds_write_b64 {v(t0)}, {v(LTB+4*jj,2)} offset:{512*jj}")
            a("s_waitcnt lgkmcnt(0)")
            a.label(l2)
        if j + NSTAGE - 1 < NS:
            dmaq(j + NSTAGE - 1)
        if j >= SIDE0:
            for _ in range(SPI): sideq()
        if j == 0:
            stats_math(LSD, LST)
            a("s_lshl_b32 s3, s30, 4")
            a(f"s_add_u32 s3, s3, {STG}")
            a(f"v_mov_b32 {v(LST+9)}, s3")
            a(f"ds_write_b128 {v(LST+9)}, {v(LST,4)}")
            a("s_waitcnt lgkmcnt(0)")
    while side and not SIDEATT: sideq()
    if G.C3:
        a(f"v_lshrrev_b32 {v(t0)}, 3, v1")
        a(f"v_and_b32 {v(t1)}, 7, v1")
        a(f"v_lshlrev_b32 {v(t1)}, 4, {v(t1)}")
        a(f"v_lshl_add_u32 {v(SA2)}, {v(t0)}, 10, {v(t1)}")
        a("s_lshl_b32 s3, s92, 11")
        a("s_mov_b64 exec, 0xffff")
        a(f"buffer_load_dwordx4 {v(W2S[0],4)}, {v(SA2)}, s[88:91], s3 offen offset:384")
        a("s_mov_b64 exec, -1")
        if G.QC3:
            a(f"s_load_dwordx2 s[96:97], s[0:1], {ARG['w2']}")
            a("s_mul_i32 s3, s92, 7168")
            a("s_waitcnt lgkmcnt(0)")
            srd(a, 88, 96, 0, F * D * 2)
            a("s_mov_b32 exec_hi, 0x00ffffff")
            a(f"buffer_load_dwordx4 {v(W2S[1],4)}, {v(SA2)}, s[88:91], s3 offen offset:384")
            a("s_mov_b32 exec_hi, -1")
            a("s_mul_i32 s3, s92, 7")
            a(f"v_add_u32 {v(t2)}, s3, {v(t0)}")
            a(f"v_and_b32 {v(t3)}, 1, {v(t2)}")
            a(f"v_mul_u32_u24 {v(t3)}, {F*256}, {v(t3)}")
            a(f"v_lshrrev_b32 {v(t2)}, 1, {v(t2)}")
            a(f"v_lshl_add_u32 {v(t2)}, {v(t2)}, 8, {v(t1)}")
            a(f"v_add_u32 {v(W2S[2])}, {v(t2)}, {v(t3)}")
        a(f"v_lshl_add_u32 {v(SA2)}, {v(t0)}, 18, {v(t1)}")
    a(f"s_branch {lab_lend}")
    a.label(lab_l2p)
    for _ in range(NSTAGE - 1):
        dma()
    a(f"s_mov_b32 s48, {nloop}")
    lloop = a.newlabel("L_lloop")
    a.label(lloop)
    a(f"s_waitcnt vmcnt({(NSTAGE-2)*P})")
    a("s_barrier")
    dma()
    a("s_sub_u32 s48, s48, 1")
    a("s_cmp_lg_u32 s48, 0")
    a(f"s_cbranch_scc1 {lloop}")
    for j in range(NS - NSTAGE + 1, NS):
        a(f"s_waitcnt vmcnt({(NS-1-j)*P})")
        a("s_barrier")
    a.label(lab_lend)
    stamp(3)
    l4 = a.newlabel("L_l4")
    a(f"v_mov_b32 {v(t1)}, {STAT}")
    a("s_cmp_lg_u32 s30, 0")
    a(f"s_cbranch_scc1 {l4}")
    a(f"v_mov_b32 {v(t0)}, s53")
    a(f"ds_write_b32 {v(t1)}, {v(t0)}")
    for j in range(4):
        a(f"v_mov_b32 {v(LTB+j)}, 0")
    a(f"ds_write_b128 {v(t1)}, {v(LTB,4)} offset:{STAT2-STAT}")
    a("s_waitcnt lgkmcnt(0)")
    a.label(l4)
    a("s_barrier")
    a(f"ds_read_b32 {v(t2)}, {v(t1)}")
    a("s_waitcnt lgkmcnt(0)")
    a(f"v_readfirstlane_b32 s3, {v(t2)}")
    a("s_nop 3")
    lok = a.newlabel("L_stok")
    a("s_cmp_eq_u32 s3, 1")
    a(f"s_cbranch_scc1 {lok}")
    local_stats(LSD, LST)
    a.label(lok)
    stamp(4)
    a("s_barrier")

    a.label(lab_att)
    CM, MK1, MK2, SA, SB = 16, 32, 48, 64, 80
    KB_ = [96, 104]; VB_ = [112, 120]; PP = [128, 136]; OA = 144; SUM = 160
    CA = 64; CT = 72; PUB = 200; VM = 216
    vK1 = [2, 3]; vV1 = 4; vK2 = [5, 6]; vV2 = 7; vQQ = 8; vHH = 9; vX32 = 10; vNEG = 11; vL16 = 12
    T0, T1, T2 = 13, 14, 15
    vNO = 217
    lab_start = a.newlabel("L_astart"); lab_reload = a.newlabel("L_reload"); lab_fin = a.newlabel("L_fin")
    a("s_setprio 0")
    a("s_sub_u32 s3, 11, s49")
    a("s_cmp_lt_u32 s49, 4")
    a("s_cselect_b32 s44, s49, s3")
    a(f"v_and_b32 {v(vQQ)}, 31, v1")
    a(f"v_lshrrev_b32 {v(vHH)}, 5, v1")
    a(f"v_lshlrev_b32 {v(vL16)}, 4, v1")
    a(f"v_xor_b32 {v(vX32)}, 32, v1")
    a(f"v_lshlrev_b32 {v(vX32)}, 2, {v(vX32)}")
    a(f"v_mov_b32 {v(vNEG)}, 0xf149f2ca")
    a(f"v_mov_b32 {v(VM)}, 0")
    a(f"v_bfe_u32 {v(T0)}, v1, 2, 2")
    a(f"v_xor_b32 {v(T0)}, {v(T0)}, {v(vHH)}")
    a(f"v_lshlrev_b32 {v(T1)}, 6, {v(vQQ)}")
    a(f"v_lshl_add_u32 {v(T0)}, {v(T0)}, 4, {v(T1)}")
    a("s_lshl_b32 s3, s44, 11")
    a(f"s_add_u32 s46, s3, {OK_ - 7*2048}")
    a(f"v_add_u32 {v(vK1[0])}, s46, {v(T0)}")
    a(f"v_xor_b32 {v(vK1[1])}, 32, {v(vK1[0])}")
    a(f"s_add_u32 s46, s3, {PK}")
    a(f"v_add_u32 {v(vK2[0])}, s46, {v(T0)}")
    a(f"v_xor_b32 {v(vK2[1])}, 32, {v(vK2[0])}")
    a(f"s_add_u32 s46, s3, {OQ}")
    a(f"v_add_u32 {v(T0)}, s46, {v(T0)}")
    a(f"v_bfe_u32 {v(T1)}, v1, 2, 2")
    a(f"v_lshl_add_u32 {v(T1)}, {v(vHH)}, 2, {v(T1)}")
    a(f"v_lshlrev_b32 {v(T1)}, 6, {v(T1)}")
    a(f"v_bfe_u32 {v(T2)}, v1, 4, 1")
    a(f"v_lshl_add_u32 {v(T1)}, {v(T2)}, 5, {v(T1)}")
    a(f"v_and_b32 {v(T2)}, 3, v1")
    a(f"v_lshl_add_u32 {v(T1)}, {v(T2)}, 3, {v(T1)}")
    a(f"s_add_u32 s46, s3, {OV - 7*2048}")
    a(f"v_add_u32 {v(vV1)}, s46, {v(T1)}")
    a(f"s_add_u32 s46, s3, {PV}")
    a(f"v_add_u32 {v(vV2)}, s46, {v(T1)}")
    a("s_cmp_lg_u32 s45, 1")
    a(f"s_cbranch_scc1 {lab_reload}")
    a(f"ds_read_b128 {v(QF,4)}, {v(T0)}")
    a(f"v_xor_b32 {v(T0)}, 32, {v(T0)}")
    a(f"ds_read_b128 {v(QF+4,4)}, {v(T0)}")
    a("s_mov_b32 s33, 1")
    lab_pubw = a.newlabel("L_pubw")
    a("s_cmp_lt_u32 s49, 4")
    a(f"s_cbranch_scc1 {lab_pubw}")
    while side: sideq()
    a(f"s_branch {lab_start}")
    a.label(lab_pubw)
    a("s_lshl_b32 s3, s49, 13")
    a(f"s_add_u32 s46, s3, {OK_}")
    a(f"v_add_u32 {v(T1)}, s46, {v(vL16)}")
    for j in range(8):
        a(f"ds_read_b128 {v(W1S+4*j,4)}, {v(T1)} offset:{1024*j}")
    a("s_lshl_b32 s46, s99, 15")
    a("s_add_u32 s46, s46, s3")
    for j in range(8):
        if j == 4: a("s_add_u32 s46, s46, 4096")
        a(f"s_waitcnt lgkmcnt({7-j})")
        a(f"buffer_store_dwordx4 {v(W1S+4*j,4)}, {v(vL16)}, s[16:19], s46 offen offset:{1024*(j&3)} sc0 sc1")
    a("s_mov_b32 s33, 0")

    def kvflag():
        ldone = a.newlabel("L_kvf")
        a("s_or_b32 s3, s33, s50")
        a("s_cmp_lg_u32 s3, 0")
        a(f"s_cbranch_scc1 {ldone}")
        a("s_mov_b32 s33, 1")
        a("s_memrealtime s[22:23]")
        a("s_lshl_b32 s3, s99, 7")
        a("s_lshl_b32 s46, s49, 3")
        a("s_add_u32 s3, s3, s46")
        a(f"s_add_u32 s3, s3, {KFO}")
        a(f"v_mov_b32 {v(T0)}, 0")
        a("s_waitcnt vmcnt(0) lgkmcnt(0)")
        a(f"v_mov_b32 {v(PUB)}, s22")
        a(f"v_mov_b32 {v(PUB+1)}, s23")
        a("s_mov_b64 exec, 1")
        if 'nokvflag' not in EXP: a(f"buffer_store_dwordx2 {v(PUB,2)}, {v(T0)}, s[36:39], s3 offen sc0 sc1")
        a("s_mov_b64 exec, -1")
        a.label(ldone)

    a.label(lab_start)
    a(f"v_lshlrev_b32 {v(T0)}, 2, {v(vHH)}")
    a(f"v_sub_u32 {v(T0)}, {v(vQQ)}, {v(T0)}")
    for r in range(16):
        c = (r & 3) + 8 * (r >> 2)
        sp = 52 + 2 * (r & 1)
        a(f"v_cmp_le_i32 s[{sp}:{sp+1}], {c}, {v(T0)}")
        a(f"v_mov_b32 {v(CM+r)}, {v(VM)}")
        a(f"v_cndmask_b32 {v(MK1+r)}, {v(vNEG)}, {v(VM)}, s[{sp}:{sp+1}]")
        a(f"v_cndmask_b32 {v(MK2+r)}, {v(VM)}, {v(vNEG)}, s[{sp}:{sp+1}]")
    for r in range(16):
        a(f"v_mov_b32 {v(OA+r)}, 0")
    for r in range(4):
        a(f"v_mov_b32 {v(SUM+r)}, 0")

    def part(vK, vV, MK, off, last_cmp, lab_out, hook=None):
        SS = [SA, SB]

        def kread(i):
            for ks in range(2):
                a(f"ds_read_b128 {v(KB_[i&1]+4*ks,4)}, {v(vK[ks])} offset:{off(i)}")

        def smf(i, h):
            if h == 0:
                a(f"v_mfma_f32_32x32x16_bf16 {v(SS[i&1],16)}, {v(KB_[i&1],4)}, {v(QF,4)}, {v(MK if i == 0 else CM,16)}")
            else:
                a(f"v_mfma_f32_32x32x16_bf16 {v(SS[i&1],16)}, {v(KB_[i&1]+4,4)}, {v(QF+4,4)}, {v(SS[i&1],16)}")
        kread(0)
        kread(1)
        a("s_waitcnt lgkmcnt(2)")
        smf(0, 0); smf(0, 1)
        for i in range(8):
            Sx = SS[i & 1]; Px = PP[i & 1]; Vx = VB_[i & 1]

            def exps(g):
                for j in range(4):
                    a(f"v_exp_f32 {v(Sx+g+j)}, {v(Sx+g+j)}")

            def addcvt(g):
                for j in range(2):
                    a(f"v_pk_add_f32 {v(SUM+2*j,2)}, {v(SUM+2*j,2)}, {v(Sx+g+2*j,2)}")
                    a(f"v_cvt_pk_bf16_f32 {v(Px+g//2+j)}, {v(Sx+g+2*j)}, {v(Sx+g+1+2*j)}")

            def pv(sidx):
                a(f"v_mfma_f32_32x32x16_bf16 {v(OA,16)}, {v(Vx+4*sidx,4)}, {v(Px+4*sidx,4)}, {v(OA,16)}")
            for sidx in range(2):
                for rd in range(2):
                    a(f"ds_read_b64_tr_b16 {v(Vx+4*sidx+2*rd,2)}, {v(vV)} offset:{off(i) + (16*sidx+8*rd)*64}")
            if i < 7:
                a("s_waitcnt lgkmcnt(4)")
                smf(i + 1, 0)
            if i == 0:
                a("s_nop 7"); a("s_nop 7"); a("s_nop 7")
            exps(0)
            if i < 7:
                smf(i + 1, 1)
                if i < 6: kread(i + 2)
            exps(4); addcvt(0)
            exps(8); addcvt(4)
            a(f"s_waitcnt lgkmcnt({2 if i < 6 else 0})")
            pv(0)
            exps(12); addcvt(8)
            a("s_nop 0")
            addcvt(12)
            a("s_nop 1")
            pv(1)
            if i < 7:
                a(f"s_cmp_eq_u32 s44, {last_cmp(i)}")
                a(f"s_cbranch_scc1 {lab_out}")
            if hook and i == 2: hook()
        a.label(lab_out)
        a("s_waitcnt lgkmcnt(0)")

    part(vK1, vV1, MK1, lambda i: (7 - i) * 2048, lambda i: i, a.newlabel("L_p1e"), hook=kvflag)
    stamp(5)
    lab_p2 = a.newlabel("L_p2")
    a("s_cmp_lg_u32 s50, 0")
    a(f"s_cbranch_scc1 {lab_p2}")
    kvflag()
    lab_nc = a.newlabel("L_nocs")
    a("s_cmp_lt_u32 s49, 4")
    a(f"s_cbranch_scc1 {lab_nc}")
    if G.C3:
        srd(a, 88, 24, G.WS_WOC, 2 * D * 256)
        a("s_lshl_b32 s3, s92, 8")
        a("s_waitcnt vmcnt(0)")
        a("s_mov_b64 exec, 0xffff")
        a(f"buffer_store_dwordx4 {v(W2S[0],4)}, {v(SA2)}, s[88:91], s3 offen {WT}")
        a("s_mov_b64 exec, -1")
        if G.QC3:
            srd(a, 88, 24, G.WS_W2C, 2 * F * 256)
            a("s_mov_b32 exec_hi, 0x00ffffff")
            a(f"buffer_store_dwordx4 {v(W2S[1],4)}, {v(W2S[2])}, s[88:91], 0 offen {WT}")
            a("s_mov_b32 exec_hi, -1")
    else:
        srd(a, 88, 24, G.WS_W2T, F * D * 2)
        a("s_mul_i32 s3, s92, 7168")
        a("s_waitcnt vmcnt(0)")
    for j in range(7 if QW2 else 0):
        if j == 4: a("s_add_u32 s3, s3, 4096")
        a(f"buffer_store_dwordx4 {v(W2S[j],4)}, {v(vL16)}, s[88:91], s3 offen offset:{1024*(j&3)}")
    a("s_cmp_ge_u32 s92, 896")
    a(f"s_cbranch_scc1 {lab_nc}")
    if G.W1T:
        srd(a, 88, 24, G.WS_W1T, 16 * 512 * 1024)
        a(f"v_and_b32 {v(T0)}, 7, v1")
        a("s_lshl_b32 s3, s84, 3")
        a(f"v_add_u32 {v(T0)}, s3, {v(T0)}")
        a(f"s_mov_b32 s3, {((1 << 32) + 27) // 28}")
        a(f"v_mul_hi_u32 {v(T1)}, {v(T0)}, s3")
        a(f"v_mul_u32_u24 {v(T2)}, 28, {v(T1)}")
        a(f"v_sub_u32 {v(T0)}, {v(T0)}, {v(T2)}")
        a(f"v_bfe_u32 {v(T2)}, v1, 3, 1")
        a(f"v_mad_u32_u24 {v(T0)}, {v(T2)}, 28, {v(T0)}")
        a(f"v_cmp_le_u32 vcc, 24, {v(T0)}")
        a(f"v_add_u32 {v(T2)}, 8, {v(T0)}")
        a(f"v_cndmask_b32 {v(T0)}, {v(T0)}, {v(T2)}, vcc")
        a(f"v_lshlrev_b32 {v(T1)}, 19, {v(T1)}")
        a(f"v_lshl_add_u32 {v(T0)}, {v(T0)}, 4, {v(T1)}")
        a(f"v_lshrrev_b32 {v(T1)}, 4, v1")
        a(f"v_lshl_add_u32 {v(T0)}, {v(T1)}, 10, {v(T0)}")
        a("s_lshl_b32 s3, s93, 15")
        for j in range(8):
            a(f"buffer_store_dwordx4 {v(W1S+4*j,4)}, {v(T0)}, s[88:91], s3 offen {os.environ.get('W1ST','sc0 sc1')}")
            a("s_add_u32 s3, s3, 4096")
    for j in range(4):
        a(f"v_lshlrev_b32 v{CA+2*j}, 16, v{W1S+j}")
        a(f"v_and_b32 v{CA+2*j+1}, 0xffff0000, v{W1S+j}")
    for i in range(1, 8):
        for j in range(4):
            a(f"v_lshlrev_b32 v{CT+2*j}, 16, v{W1S+4*i+j}")
            a(f"v_and_b32 v{CT+2*j+1}, 0xffff0000, v{W1S+4*i+j}")
        for j in range(4):
            a(f"v_pk_add_f32 {v(CA+2*j,2)}, {v(CA+2*j,2)}, {v(CT+2*j,2)}")
    a("s_nop 1")
    for j in range(8):
        a(f"v_add_f32_dpp v{CT+j}, v{CA+j}, v{CA+j} row_ror:8 row_mask:0xf bank_mask:0xf")
    a(f"v_xor_b32 {v(T0)}, 16, v1")
    a(f"v_lshlrev_b32 {v(T0)}, 2, {v(T0)}")
    for j in range(8):
        a(f"ds_bpermute_b32 v{CA+j}, {v(T0)}, v{CT+j}")
    a("s_waitcnt lgkmcnt(0)")
    for j in range(8):
        a(f"v_add_f32 v{CT+j}, v{CA+j}, v{CT+j}")
    for j in range(8):
        a(f"ds_bpermute_b32 v{CA+j}, {v(vX32)}, v{CT+j}")
    a("s_waitcnt lgkmcnt(0)")
    for j in range(8):
        a(f"v_add_f32 v{CA+j}, v{CA+j}, v{CT+j}")
    srd(a, 76, 24, G.WS_CS, 16 * F * 4)
    a(f"s_mul_i32 s3, s93, {F*4}")
    a("s_lshl_b32 s46, s84, 8")
    a("s_add_u32 s3, s3, s46")
    a(f"v_lshlrev_b32 {v(T0)}, 5, v1")
    a("s_mov_b64 exec, 0xff")
    a(f"buffer_store_dwordx4 {v(CA,4)}, {v(T0)}, s[76:79], s3 offen {WT}")
    a(f"buffer_store_dwordx4 {v(CA+4,4)}, {v(T0)}, s[76:79], s3 offen offset:16 {WT}")
    a("s_mov_b64 exec, -1")
    a.label(lab_nc)
    a("s_mov_b32 s50, 1")
    a("s_cmp_eq_u32 s28, 0")
    a(f"s_cbranch_scc1 {lab_p2}")
    lp = a.newlabel("L_poll"); lpo = a.newlabel("L_pollok"); lpd = a.newlabel("L_polld"); lsp = a.newlabel("L_spin")
    a("s_cmp_ge_u32 s49, 4")
    a(f"s_cbranch_scc1 {lsp}")
    a("s_sub_u32 s46, s99, 32")
    a("s_lshl_b32 s47, s46, 7")
    a(f"s_add_u32 s47, s47, {KFO}")
    a(f"v_and_b32 {v(T0)}, 3, v1")
    a(f"v_lshlrev_b32 {v(T0)}, 3, {v(T0)}")
    a(f"s_mov_b32 s52, {NPOLL}")
    a.label(lp)
    a(f"buffer_load_dwordx2 {v(PUB,2)}, {v(T0)}, s[36:39], s47 offen sc0 sc1")
    a("s_waitcnt vmcnt(0)")
    a(f"v_cmp_lt_u64 vcc, s[34:35], {v(PUB,2)}")
    a(f"v_cmp_gt_u64 s[54:55], s[20:21], {v(PUB,2)}")
    a("s_nop 3")
    a("s_and_b64 vcc, vcc, s[54:55]")
    a("s_cmp_eq_u64 vcc, exec")
    a(f"s_cbranch_scc1 {lpo}")
    a("s_sub_u32 s52, s52, 1")
    a("s_cmp_lg_u32 s52, 0")
    a(f"s_cbranch_scc1 {lp}")
    a(f"v_mov_b32 {v(T1)}, 2")
    a(f"s_branch {lpd}")
    a.label(lpo)
    a("s_lshl_b32 s3, s49, 13")
    a("s_lshl_b32 s46, s46, 15")
    a("s_add_u32 s46, s46, s3")
    for j in range(8):
        a(f"s_add_u32 m0, s3, {PK + 1024*j}")
        a("s_nop 0")
        a(f"buffer_load_dwordx4 {v(vL16)}, s[16:19], s46 offen sc0 sc1 lds")
        a("s_add_u32 s46, s46, 1024")
    a(f"v_mov_b32 {v(T1)}, 1")
    a.label(lpd)
    a("s_lshl_b32 s3, s49, 2")
    a(f"s_add_u32 s3, s3, {STAT2}")
    a(f"v_mov_b32 {v(T0)}, s3")
    a("s_waitcnt vmcnt(0)")
    a(f"ds_write_b32 {v(T0)}, {v(T1)}")
    a.label(lsp)
    a(f"v_mov_b32 {v(T0)}, {STAT2}")
    a(f"ds_read_b128 {v(PUB,4)}, {v(T0)}")
    a("s_waitcnt lgkmcnt(0)")
    a(f"v_min_u32 {v(T1)}, {v(PUB)}, {v(PUB+1)}")
    a(f"v_min3_u32 {v(T1)}, {v(T1)}, {v(PUB+2)}, {v(PUB+3)}")
    a(f"v_max_u32 {v(T2)}, {v(PUB)}, {v(PUB+1)}")
    a(f"v_max3_u32 {v(T2)}, {v(T2)}, {v(PUB+2)}, {v(PUB+3)}")
    a("s_nop 0")
    a(f"v_readfirstlane_b32 s3, {v(T1)}")
    a(f"v_readfirstlane_b32 s46, {v(T2)}")
    a("s_nop 3")
    a("s_cmp_eq_u32 s3, 0")
    a("s_sleep 1")
    a(f"s_cbranch_scc1 {lsp}")
    a("s_cmp_eq_u32 s46, 1")
    a(f"s_cbranch_scc1 {lab_p2}")
    a("s_mov_b32 s45, 2")
    a("s_sub_u32 s98, s98, 256")
    a(f"s_mov_b32 s100, {XQ}")
    a("s_barrier")
    a("s_cmp_lt_u32 s49, 4")
    a(f"s_cbranch_scc1 {lab_cpass}")
    a("s_setprio 2")
    a(f"s_branch {a.newlabel('L_lre')}")
    lab_lre = f"L_lre_{a.nlab}"

    a.label(lab_reload)
    a("s_lshl_b32 s3, s49, 12")
    a("s_lshl_b32 s46, s99, 15")
    a("s_add_u32 s46, s46, s3")
    for j in range(4):
        a(f"s_add_u32 m0, s3, {OK_ + 1024*j}")
        a("s_nop 0")
        a(f"buffer_load_dwordx4 {v(vL16)}, s[16:19], s46 offen sc0 sc1 lds")
        a("s_add_u32 s46, s46, 1024")
    a("s_waitcnt vmcnt(0)")
    a("s_barrier")
    a(f"s_branch {lab_start}")

    a.label(lab_p2)
    if G.FZ and 'fpre' in EXP:
        G.code_pf(a, lab_fin, 1, 49, T0, 1)
    if 'qpf2' in EXP:
        lq = a.newlabel("L_qpf")
        a("s_cmp_eq_u32 s33, 2")
        a(f"s_cbranch_scc1 {lq}")
        a("s_mov_b32 s33, 2")
        a(f"s_load_dwordx2 s[54:55], s[0:1], {ARG['w2']}")
        a("s_lshl_b32 s3, s99, 3")
        a("s_add_u32 s3, s3, s49")
        a("s_mul_i32 s3, s3, 3584")
        a(f"v_lshlrev_b32 {v(T0)}, 7, v1")
        a("s_waitcnt lgkmcnt(0)")
        srd(a, 88, 54, 0, F * D * 2)
        a("s_mov_b64 exec, 0xfffffff")
        a(f"buffer_load_dword v255, {v(T0)}, s[88:91], s3 offen")
        a("s_mov_b64 exec, -1")
        a.label(lq)
    a("s_cmp_eq_u32 s28, 0")
    a(f"s_cbranch_scc1 {lab_fin}")
    part(vK2, vV2, MK2, lambda i: i * 2048, lambda i: 7 - i, a.newlabel("L_p2e"))
    a.label(lab_fin)
    stamp(6)
    a(f"v_add_f32 {v(SUM)}, {v(SUM)}, {v(SUM+1)}")
    a(f"v_add_f32 {v(SUM+2)}, {v(SUM+2)}, {v(SUM+3)}")
    a(f"v_add_f32 {v(SUM)}, {v(SUM)}, {v(SUM+2)}")
    a(f"ds_bpermute_b32 {v(SUM+1)}, {v(vX32)}, {v(SUM)}")
    a("s_waitcnt lgkmcnt(0)")
    a(f"v_add_f32 {v(SUM)}, {v(SUM)}, {v(SUM+1)}")
    lab_out = a.newlabel("L_out")
    a("s_cmp_lg_u32 s51, 0")
    a(f"s_cbranch_scc1 {lab_out}")
    lo = 2.0 ** -40 if 'forcemax' not in EXP else 2.0 ** 39
    a(f"v_mov_b32 {v(T1)}, {hex_f32(lo)}")
    a(f"v_mov_b32 {v(T0)}, {hex_f32(2.0**40)}")
    a(f"v_cmp_lt_f32 s[52:53], {v(T1)}, {v(SUM)}")
    a(f"v_cmp_lt_f32 s[54:55], {v(SUM)}, {v(T0)}")
    a("s_nop 3")
    a("s_and_b64 s[52:53], s[52:53], s[54:55]")
    a("s_cmp_eq_u64 s[52:53], exec")
    a(f"s_cbranch_scc1 {lab_out}")
    a("s_mov_b32 s51, 1")
    a(f"v_mov_b32 {v(VM)}, {v(vNEG)}")

    def maxpart(vK, MK, first_off, step, cnt_expr):
        lp = a.newlabel("L_mx"); lpe = a.newlabel("L_mxe")
        a(f"v_add_u32 {v(T0)}, {first_off}, {v(vK[0])}")
        a(f"v_add_u32 {v(T1)}, {first_off}, {v(vK[1])}")
        cnt_expr()

        def tile(C):
            a(f"ds_read_b128 {v(KB_[0],4)}, {v(T0)}")
            a(f"ds_read_b128 {v(KB_[0]+4,4)}, {v(T1)}")
            a("s_waitcnt lgkmcnt(0)")
            a(f"v_mfma_f32_32x32x16_bf16 {v(SA,16)}, {v(KB_[0],4)}, {v(QF,4)}, {v(C,16)}")
            a(f"v_mfma_f32_32x32x16_bf16 {v(SA,16)}, {v(KB_[0]+4,4)}, {v(QF+4,4)}, {v(SA,16)}")
            a("s_nop 7"); a("s_nop 7"); a("s_nop 7")
            for r in range(0, 16, 2):
                a(f"v_max3_f32 {v(VM)}, {v(VM)}, {v(SA+r)}, {v(SA+r+1)}")
            a(f"v_add_u32 {v(T0)}, {step}, {v(T0)}")
            a(f"v_add_u32 {v(T1)}, {step}, {v(T1)}")
        tile(MK)
        a.label(lp)
        a("s_cmp_eq_u32 s52, 0")
        a(f"s_cbranch_scc1 {lpe}")
        tile(CM)
        a("s_sub_u32 s52, s52, 1")
        a(f"s_branch {lp}")
        a.label(lpe)

    maxpart(vK1, MK1, 7 * 2048, -2048, lambda: a("s_mov_b32 s52, s44"))
    lmx = a.newlabel("L_mxd")
    a("s_cmp_eq_u32 s28, 0")
    a(f"s_cbranch_scc1 {lmx}")
    maxpart(vK2, MK2, 0, 2048, lambda: a("s_sub_u32 s52, 7, s44"))
    a.label(lmx)
    a(f"ds_bpermute_b32 {v(T0)}, {v(vX32)}, {v(VM)}")
    a("s_waitcnt lgkmcnt(0)")
    a(f"v_max_f32 {v(VM)}, {v(VM)}, {v(T0)}")
    a(f"v_sub_f32 {v(VM)}, 0, {v(VM)}")
    a(f"s_branch {lab_start}")

    a.label(lab_out)
    a(f"v_rcp_f32 {v(SUM)}, {v(SUM)}")
    if G.NL:
        a("s_lshl_b32 s3, s28, 1")
        a("s_lshr_b32 s46, s44, 2")
        a("s_add_u32 s3, s3, s46")
        a("s_lshl_b32 s3, s3, 5")
        a("s_add_u32 s3, s3, s29")
        a("s_lshl_b32 s3, s3, 2")
        a("s_and_b32 s46, s44, 3")
        a("s_add_u32 s3, s3, s46")
        a("s_lshl_b32 s100, s99, 7")
        a("s_lshl_b32 s3, s3, 11")
    elif G.OT:
        a("s_lshl_b32 s3, s28, 1")
        a("s_lshr_b32 s46, s44, 2")
        a("s_add_u32 s3, s3, s46")
        a("s_lshl_b32 s3, s3, 4")
        a("s_lshr_b32 s46, s29, 1")
        a("s_add_u32 s3, s3, s46")
        a("s_lshl_b32 s3, s3, 2")
        a("s_and_b32 s46, s44, 3")
        a("s_add_u32 s3, s3, s46")
        a(f"s_lshl_b32 s3, s3, {5+G.TSH}")
        a("s_and_b32 s46, s29, 1")
        a("s_lshl_b32 s46, s46, 6")
        a("s_add_u32 s3, s3, s46")
        a(f"v_lshlrev_b32 {v(T0)}, {G.TSH}, {v(vQQ)}")
        a(f"v_lshl_add_u32 {v(T0)}, {v(vHH)}, 3, {v(T0)}")
        a(f"v_add_u32 {v(T0)}, s3, {v(T0)}")
    else:
        a("s_lshl_b32 s3, s28, 8")
        a("s_lshl_b32 s46, s44, 5")
        a("s_add_u32 s3, s3, s46")
        a(f"v_add_u32 {v(T0)}, s3, {v(vQQ)}")
        a(f"v_lshlrev_b32 {v(T0)}, 11, {v(T0)}")
        a(f"v_lshl_add_u32 {v(T0)}, {v(vHH)}, 3, {v(T0)}")
        a("s_lshl_b32 s3, s29, 6")
        a(f"v_add_u32 {v(T0)}, s3, {v(T0)}")
    a("s_nop 7")
    for j in range(2 if G.NL else 0):
        for r in range(8):
            a(f"v_mul_f32 v{OA+8*j+r}, v{OA+8*j+r}, {v(SUM)}")
        for r in range(4):
            a(f"v_cvt_pk_bf16_f32 v{OA+8*j+r}, v{OA+8*j+2*r}, v{OA+8*j+2*r+1}")
        a(f"buffer_store_dwordx4 {v(OA+8*j,4)}, {v(vL16)}, s[12:15], s3 offen offset:{1024*j} {'sc0 sc1' if G.FZ else ''}")
    for g in range(0 if G.NL else 4):
        for r in range(4):
            a(f"v_mul_f32 v{OA+4*g+r}, v{OA+4*g+r}, {v(SUM)}")
        a(f"v_cvt_pk_bf16_f32 v{OA+4*g}, v{OA+4*g}, v{OA+4*g+1}")
        a(f"v_cvt_pk_bf16_f32 v{OA+4*g+1}, v{OA+4*g+2}, v{OA+4*g+3}")
        a(f"buffer_store_dwordx2 {v(OA+4*g,2)}, {v(T0)}, s[12:15], 0 offen offset:{16*g}")
    if 'stamp' in EXP and not G.FZ: a("s_waitcnt vmcnt(0)")
    stamp(7)
    stamp_out()
    if G.FZ: G.publish(a, 'P_oproj')
    else: a(f"s_branch {end}")

    a.label(lab_lre)
    a("s_lshl_b32 s3, s30, 6")
    a(f"v_lshrrev_b32 {v(t0)}, 3, v1")
    a(f"v_add_u32 {v(t0)}, s3, {v(t0)}")
    for i in range(PA):
        a(f"v_add_u32 {v(t1)}, {8*i}, {v(t0)}")
        a(f"v_lshrrev_b32 {v(t2)}, 1, {v(t1)}")
        a(f"v_and_b32 {v(t2)}, 7, {v(t2)}")
        a(f"v_and_b32 {v(t3)}, 7, v1")
        a(f"v_xor_b32 {v(t2)}, {v(t2)}, {v(t3)}")
        a(f"v_add_u32 {v(t1)}, s98, {v(t1)}")
        a(f"v_mul_u32_u24 {v(t1)}, {lda}, {v(t1)}")
        a(f"v_lshl_add_u32 {v(vA[i])}, {v(t2)}, 4, {v(t1)}")
    a("s_lshl_b32 s3, s29, 6")
    for i in range(PB):
        a(f"s_mul_i32 s46, s30, {PB}")
        a(f"s_add_u32 s46, s46, {i}")
        a("s_lshr_b32 s47, s46, 2")
        a("s_and_b32 s46, s46, 3")
        a("s_lshl_b32 s46, s46, 4")
        a("s_lshl_b32 s47, s47, 11")
        a("s_add_u32 s47, s47, s3")
        a(f"v_lshrrev_b32 {v(t0)}, 2, v1")
        a(f"v_add_u32 {v(t0)}, s46, {v(t0)}")
        a(f"v_and_b32 {v(t1)}, 3, v1")
        a(f"v_bfe_u32 {v(t2)}, {v(t0)}, 3, 1")
        a(f"v_lshlrev_b32 {v(t2)}, 1, {v(t2)}")
        a(f"v_xor_b32 {v(t1)}, {v(t1)}, {v(t2)}")
        a(f"v_mul_u32_u24 {v(t0)}, {N*2}, {v(t0)}")
        a(f"v_lshl_add_u32 {v(t0)}, {v(t1)}, 4, {v(t0)}")
        a(f"v_add_u32 {v(vB[i])}, s47, {v(t0)}")
    a(f"s_branch {lab_lpass}")
    a.label(end)
    a("s_endpgm")
    return dict(name=name, grid=256, block=512, lds=lds, desc=G.kernel_desc(name, 256))
```

```python
import sys, math, os
EXP=os.environ.get('EXP','')
STMOD=os.environ.get('STMOD','sc0 sc1')
STALL=os.environ.get('STALL','')
RPM=int(os.environ.get('RPM','2'))
PFS=int(os.environ.get('PFS','4'))

OUT = os.environ.get("OUTF","sequential_preLN__sliding_block__mixer_channel_mlp__prompt.s")

S = 2048; D = 1024; F = 3584; H = 32; DH = 32; WIN = 256
ARG = dict(x=0, wqkv=8, wo=16, bx=24, w1=32, b1=40, w2=48, b2=56, out=64, dbg=72, ws=80)
MB = 1 << 20
WS_Y1 = 0
WS_QKV = 4 * MB
TP = int(os.environ.get('TP', '128')); TX = TP // 128; TSH = 7 + TX.bit_length() - 1
OT = 'noot' not in EXP
C3 = 'noc3' not in EXP
QC3 = 'qc3' in EXP
FZ = 'fz' in EXP
NL = 'nl' in EXP or FZ
WS_O = 16 * MB
WS_H = 24 * MB
WS_Y2 = 24 * MB
WS_H1 = 32 * MB
WS_W2C = 62 * MB
WS_WOC = 64 * MB
WS_ST = 0
WS_CS = 1 * MB
WS_SIZE = 256 * MB
WS_FLAG = 2 * MB
WS_W2T = 72 * MB
WS_W1T = 88 * MB
W1T = 'w1t' in EXP
WS_FL = 3 * MB + 262144
WS_PART = 80 * MB
LDH1 = F * 2 * TX


class Asm:
    def __init__(self):
        self.lines = []
        self.nlab = 0

    def __call__(self, s):
        self.lines.append("    " + s)

    def label(self, l):
        self.lines.append(l + ":")

    def newlabel(self, base="L"):
        self.nlab += 1
        return f"{base}_{self.nlab}"

    def c(self, s):
        self.lines.append("    ; " + s)

    def dry_begin(self, wave_sreg, idx_sreg, nw=4):
        self.dry = dict(ret=self.newlabel("L_dret"), disp=self.newlabel("L_ddisp"), done=self.newlabel("L_ddone"),
                        ent=[], idx=idx_sreg, nw=nw)
        self(f"s_mov_b32 s{idx_sreg}, s{wave_sreg}")
        self("s_mov_b64 exec, 0")
        self(f"s_branch {self.dry['disp']}")
        self.label(self.dry['done'])
        self("s_mov_b64 exec, -1")

    def dry_entry(self):
        l = self.newlabel("L_dent")
        self.label(l)
        self.dry['ent'].append(l)

    def dry_exit(self):
        self(f"s_cbranch_execz {self.dry['ret']}")

    def dry_mark(self):
        self.dry_exit(); self.dry_entry()

    def dry_dispatch(self):
        d = self.dry
        self.label(d['ret'])
        self(f"s_add_u32 s{d['idx']}, s{d['idx']}, {d['nw']}")
        self.label(d['disp'])
        for i, l in enumerate(d['ent']):
            self(f"s_cmp_eq_u32 s{d['idx']}, {i}")
            self(f"s_cbranch_scc1 {l}")
        self(f"s_branch {d['done']}")


def v(i, n=1):
    return f"v{i}" if n == 1 else f"v[{i}:{i+n-1}]"


def s(i, n=1):
    return f"s{i}" if n == 1 else f"s[{i}:{i+n-1}]"


def srd(a, d, base, off, nbytes):
    if off:
        a(f"s_add_u32 s{d}, s{base}, {off}")
        a(f"s_addc_u32 s{d+1}, s{base+1}, 0")
    else:
        a(f"s_mov_b32 s{d}, s{base}")
        a(f"s_mov_b32 s{d+1}, s{base+1}")
    a(f"s_and_b32 s{d+1}, s{d+1}, 0xffff")
    a(f"s_mov_b32 s{d+2}, {nbytes}")
    a(f"s_mov_b32 s{d+3}, 0x00020000")


def publish(a, nxt):
    x = 246
    a("s_memrealtime s[96:97]")
    srd(a, 76, 24, WS_FL, 98304)
    a(f"v_lshlrev_b32 {v(x+4)}, 4, v1")
    a("s_waitcnt lgkmcnt(0)")
    for j in range(4):
        a(f"v_mov_b32 {v(x+j)}, s{96+(j&1)}")
    a("s_cmp_lg_u32 s49, 0")
    a("s_waitcnt vmcnt(0)")
    a("s_barrier")
    a(f"s_cbranch_scc1 {nxt}")
    a("s_mov_b64 exec, 0xff")
    a(f"buffer_store_dwordx4 {v(x,4)}, {v(x+4)}, s[76:79], s100 offen sc0 sc1")
    a("s_mov_b64 exec, -1")
    a(f"s_branch {nxt}")


def code_pf(a, lab_from, nwaves, wave_sreg, vt, first=0):
    lh = a.newlabel("L_pc"); ls = a.newlabel("L_pcs")
    a(f"s_sub_u32 s3, s{wave_sreg}, {first}")
    a(f"s_cmp_ge_u32 s3, {nwaves}")
    a(f"s_cbranch_scc1 {ls}")
    a("s_getpc_b64 s[46:47]")
    a.label(lh)
    if lab_from:
        a(f"s_add_u32 s46, s46, {lab_from}-{lh}")
        a("s_addc_u32 s47, s47, 0")
    else: lab_from = lh
    a("s_lshl_b32 s3, s3, 13")
    a(f"v_lshl_add_u32 {v(vt)}, v1, 7, s3")
    a(f"v_min_u32 {v(vt)}, L_code_end-{lab_from}-4, {v(vt)}")
    a(f"global_load_dword v254, {v(vt)}, s[46:47]")
    a.label(ls)


def hex_f32(x):
    import struct
    return hex(struct.unpack('<I', struct.pack('<f', x))[0])


def kernel_header(a, name):
    a.lines.append(".p2align 8")
    a.lines.append(f".globl {name}")
    a.lines.append(f".type {name},@function")
    a.label(name)


def kernel_desc(name, nvgpr, nsgpr=102, accum=None):
    nv = ((nvgpr + 7) // 8) * 8
    acc = accum if accum is not None else ((nvgpr + 3) // 4) * 4
    return f""".amdhsa_kernel {name}
  .amdhsa_next_free_vgpr {nv if accum is None else nvgpr}
  .amdhsa_next_free_sgpr {nsgpr}
  .amdhsa_accum_offset {min(acc,256)}
  .amdhsa_group_segment_fixed_size 0
  .amdhsa_kernarg_size 88
  .amdhsa_user_sgpr_count 2
  .amdhsa_user_sgpr_kernarg_segment_ptr 1
  .amdhsa_system_sgpr_workgroup_id_x 1
.end_amdhsa_kernel
"""


def gen_prefetch(a, regions, end_label):
    CH = 32768
    counts = [nbytes // CH for _, nbytes in regions]
    for (_, nbytes), c in zip(regions, counts):
        assert c * CH == nbytes
    total = sum(counts)
    skip = a.newlabel("L_nopf")
    a(f"s_cmp_ge_u32 s2, {total}")
    a(f"s_cbranch_scc1 {skip}")
    base = 0
    for (arg, nbytes), c in zip(regions, counts):
        nxt = a.newlabel("L_pfn")
        a(f"s_cmp_ge_u32 s2, {base + c}")
        a(f"s_cbranch_scc1 {nxt}")
        a(f"s_load_dwordx2 s[4:5], s[0:1], {ARG[arg]}")
        a(f"s_sub_u32 s3, s2, {base}")
        a("s_lshl_b32 s3, s3, 15")
        a("v_lshlrev_b32 v1, 4, v0")
        a("v_add_u32 v1, s3, v1")
        a("s_waitcnt lgkmcnt(0)")
        srd(a, 8, 4, 0, nbytes)
        for j in range(8):
            a(f"v_add_u32 v2, {4096*j}, v1")
            a(f"buffer_load_dwordx4 {v(4+4*j,4)}, v2, s[8:11], 0 offen")
        a("s_waitcnt vmcnt(0)")
        a(f"s_branch {end_label}")
        a.label(nxt)
        base += c
    a.label(skip)
    a(f"s_sub_u32 s2, s2, {total}")
    return total


def tail_prefetch(a, task, lane, regions, vtmp, vdst):
    ntask = 2048
    total = sum(n for _, n in regions)
    per = total // ntask
    assert per * ntask == total and per % 1024 == 0
    nld = per // 1024
    base = 0
    done = a.newlabel("L_pfdone")
    for arg, nbytes in regions:
        cnt = nbytes // per
        assert cnt * per == nbytes
        nxt = a.newlabel("L_pfn")
        a(f"s_cmp_ge_u32 s{task}, {base + cnt}")
        a(f"s_cbranch_scc1 {nxt}")
        a(f"s_load_dwordx2 s[94:95], s[0:1], {ARG[arg]}")
        a(f"s_sub_u32 s93, s{task}, {base}")
        a(f"s_mul_i32 s93, s93, {per}")
        a(f"v_lshlrev_b32 {v(vtmp)}, 4, {v(lane)}")
        a(f"v_add_u32 {v(vtmp)}, s93, {v(vtmp)}")
        a("s_waitcnt lgkmcnt(0)")
        srd(a, 96, 94, 0, nbytes)
        for j in range(nld):
            if j and j % 4 == 0:
                a(f"v_add_u32 {v(vtmp)}, 4096, {v(vtmp)}")
            a(f"buffer_load_dwordx4 {v(vdst,4)}, {v(vtmp)}, s[96:99], 0 offen offset:{1024*(j%4)}")
        a(f"s_branch {done}")
        a.label(nxt)
        base += cnt
    a.label(done)
    return nld

def gen_ln(a, name, src_arg, src_off, dst_off, double, pf=None):
    nwg = S // 4
    kernel_header(a, name)
    end = a.newlabel("L_end")
    npf = 0
    a(f"s_cmp_ge_u32 s2, {nwg}")
    a(f"s_cbranch_scc1 {end}")
    a(f"s_load_dwordx2 s[4:5], s[0:1], {ARG[src_arg]}")
    a(f"s_load_dwordx2 s[6:7], s[0:1], {ARG['ws']}")
    a("v_lshrrev_b32 v1, 6, v0")
    a("v_and_b32 v2, 63, v0")
    a("s_lshl_b32 s3, s2, 2")
    a("v_add_u32 v1, s3, v1")
    a("v_lshlrev_b32 v3, 11, v1")
    a("v_lshl_add_u32 v3, v2, 5, v3")
    for i, m in enumerate([1, 2, 4, 8, 16, 32]):
        a(f"v_xor_b32 v{12+i}, {m}, v2")
        a(f"v_lshlrev_b32 v{12+i}, 2, v{12+i}")
    a("s_waitcnt lgkmcnt(0)")
    srd(a, 8, 4, src_off, S * D * 2)
    srd(a, 12, 6, dst_off, S * D * 2)
    a("buffer_load_dwordx4 v[4:7], v3, s[8:11], 0 offen")
    a("buffer_load_dwordx4 v[8:11], v3, s[8:11], 0 offen offset:16")
    npl = 0
    if pf:
        a("v_readfirstlane_b32 s92, v1")
        a("s_nop 3")
        npl = tail_prefetch(a, 92, 2, pf, 44, 48)
    a(f"s_waitcnt vmcnt({npl})")

    def unpack():
        for i in range(8):
            a(f"v_lshlrev_b32 v{20+2*i}, 16, v{4+i}")
            a(f"v_and_b32 v{21+2*i}, 0xffff0000, v{4+i}")

    def bfly():
        for i in range(6):
            a(f"ds_bpermute_b32 v41, v{12+i}, v40")
            a("s_waitcnt lgkmcnt(0)")
            a("v_add_f32 v40, v40, v41")

    def norm():
        a("v_add_f32 v40, v20, v21")
        for i in range(2, 16):
            a(f"v_add_f32 v40, v40, v{20+i}")
        bfly()
        a("v_mul_f32 v40, 0x3a800000, v40")
        for i in range(16):
            a(f"v_sub_f32 v{20+i}, v{20+i}, v40")
        a("v_mul_f32 v40, v20, v20")
        for i in range(1, 16):
            a(f"v_fmac_f32 v40, v{20+i}, v{20+i}")
        bfly()
        a("v_mov_b32 v42, 0x3727c5ac")
        a("v_fma_f32 v40, v40, v43, v42")
        a("v_rsq_f32 v40, v40")
        a("s_nop 0")
        for i in range(16):
            a(f"v_mul_f32 v{20+i}, v{20+i}, v40")
        for i in range(8):
            a(f"v_cvt_pk_bf16_f32 v{4+i}, v{20+2*i}, v{21+2*i}")

    a("v_mov_b32 v43, 0x3a800000")
    unpack()
    norm()
    if double:
        unpack()
        norm()
    a("buffer_store_dwordx4 v[4:7], v3, s[12:15], 0 offen")
    a("buffer_store_dwordx4 v[8:11], v3, s[12:15], 0 offen offset:16")
    a.label(end)
    a("s_endpgm")
    return dict(name=name, grid=nwg + npf, block=256, lds=0, desc=kernel_desc(name, 56))


def gen_gemm(a, name, N, K, BN, a_off, w_arg, epi, out_arg, out_off, res_arg=None, res_off=0,
             bias_arg=None, BM=128, NSTAGE=3, RA=4, RBN=8, ln=None, a_arg='ws', pre=False, stats_out=False, lda=None, ldo=None, splitk=None, zero_flags=False, l2pf=0, wpf=None, atile=False, w_off=None, otile=False, w2copy=False, dry=0, epi2=False, spf=None, rtile=False, c3src=None, c3=None, sp2=None, sp3=None, wt7=False, flags=False, sp4=None, endpf=None, alay=None, fz=None):
    import struct
    M = S
    BK = 64
    lda = lda or K * 2
    ldo = ldo or N * 2
    ATILE = ('at_' + name.split('_')[0]) in EXP or atile
    BTILE = ('bt_' + name.split('_')[0]) in EXP or w_off is not None
    ASTEP = BM * TP if ATILE else BK * 2
    NT_M = M // BM
    NT_N = N // BN
    ntiles = NT_M * NT_N
    MT = BM // 2 // 16
    NTW = BN // 2 // 16
    RB = {64: 128, 128: 128, 192: 128, 96: 64, 224: 448, 112: 32}[BN]
    ABYTES = BM * BK * 2
    BBYTES = BK * BN * 2
    STAGE = ABYTES + BBYTES
    PA = ABYTES // 1024 // 4
    PB = BBYTES // 1024 // 4
    assert PA * 4096 == ABYTES and PB * 4096 == BBYTES
    P = PA + PB
    NS = K // BK
    if splitk:
        NSLO, NSHI = splitk
        assert NSLO + NSHI == NS and (NSLO - NSHI) % NSTAGE == 0
        NS = NSHI
        ntiles *= 2
    lds = STAGE * NSTAGE
    CROW = BN * 2 + 16
    CSZ = BM * CROW
    LASTB = (NS - 1) % NSTAGE
    TBL = 2048 if (ln and not pre) else 0
    CBASE = 0 if LASTB * STAGE >= CSZ + TBL else (LASTB + 1) * STAGE
    assert CBASE + CSZ + TBL <= lds
    EPI = lds
    st_res = bool(res_arg) and not splitk
    if splitk:
        DONE = CBASE + CSZ
        assert DONE + 16 <= (LASTB * STAGE if CBASE == 0 else lds)
    st_bias = pre
    if st_res: lds += BM * BN * 2
    if st_bias: lds += 3072 + 4096
    FL = flags and not splitk and not (ln and not pre)
    if FL:
        FLG = lds; lds += 2048
    assert lds <= 163840
    if pre:
        CTAB = EPI + 1024; RTAB = EPI + 2048
    else:
        RTAB = CBASE + CSZ; CTAB = RTAB + 1024
    NEX = (BM * BN * 2 // 4096 if st_res else 0)
    PPR = RB // 32
    lg_ppr = int(math.log2(PPR)) if RB != 448 else 0

    vA = list(range(2, 2 + PA))
    vB = list(range(2 + PA, 2 + PA + PB))
    nxt = 2 + PA + PB
    vXb = [nxt, nxt + 1]; nxt += 2
    vWb = list(range(nxt, nxt + NTW)); nxt += NTW
    vXc = [nxt, nxt + 1]; nxt += 2
    vWc = list(range(nxt, nxt + NTW)); nxt += NTW
    vT = list(range(nxt, nxt + 8)); nxt += 8
    nxt = (nxt + 3) // 4 * 4
    FX = [nxt, nxt + 4 * MT]; nxt += 8 * MT
    FW = [nxt, nxt + 4 * NTW]; nxt += 8 * NTW
    ACC = nxt; nxt += 4 * MT * NTW
    PBI = nxt
    if bias_arg and not pre: nxt += 2 * NTW
    if l2pf or wpf or spf or sp2:
        nxt = (nxt + 3) // 4 * 4
        PFD = nxt; PFV = nxt + 4; nxt += 5
    W2S = 136; W2A = 164
    if splitk:
        PRT = nxt; nxt += 4 * MT * NTW
        PFL = nxt; PFA = nxt + 1; PPA = nxt + 2; nxt += 3
    nvgpr = nxt
    assert nvgpr <= 256
    t0, t1, t2, t3 = vT[0], vT[1], vT[2], vT[3]

    def acc(nt, mt):
        return ACC + 4 * (nt * MT + mt)

    def stamp(i, force=False):
        if 'bst' in EXP and i in (4, 5, 6) and not force: return
        if 'bst' not in EXP and force: return
        if 'stamp' in EXP:
            if ('rt2' in EXP and i in (0, 7)) or fz:
                a(f"s_memrealtime s[{60+2*i}:{61+2*i}]")
            elif 'rt' in EXP and 'rt2' not in EXP and i in (1, 6):
                a(f"s_memrealtime s[{60+2*i}:{61+2*i}]")
                a(f"s_memtime s[{62 if i == 1 else 70}+0:{63 if i == 1 else 71}]".replace("+0","")) if False else None
            else:
                a(f"s_memtime s[{60+2*i}:{61+2*i}]")
            if i >= 6: a("s_waitcnt lgkmcnt(0)")

    def stamp_out():
        if 'stamp' not in EXP: return
        a("s_waitcnt lgkmcnt(0)")
        srd(a, 80, 24, (200 + ({'o':1,'1':2,'2':3}[name[0] if name[0]=='o' else name[3]] if 'rt2' in EXP or fz else 0)) * MB, 1 << 20)
        a("s_lshl_b32 s3, s2, 3")
        a("s_add_u32 s3, s3, s49")
        a("s_lshl_b32 s3, s3, 6")
        a("v_mov_b32 v2, s3")
        for i in range(8):
            a(f"v_mov_b32 v4, s{60+2*i}")
            a(f"v_mov_b32 v5, s{61+2*i}")
            a(f"buffer_store_dwordx2 v[4:5], v2, s[80:83], 0 offen offset:{8*i}")
            a("s_nop 1")

    def wfrag_addr_common():
        a(f"v_lshrrev_b32 {v(t1)}, 4, v1")
        a(f"v_bfe_u32 {v(t0)}, v1, 2, 2")
        a(f"v_lshl_add_u32 {v(t2)}, {v(t1)}, 3, {v(t0)}")
        if RB == 256:
            a(f"v_and_b32 {v(t3)}, 1, {v(t1)}")
            a(f"v_lshl_add_u32 {v(t3)}, {v(t3)}, 2, {v(t0)}")
        elif RB == 128:
            a(f"v_and_b32 {v(t3)}, 1, {v(t1)}")
            a(f"v_lshrrev_b32 {v(t0)}, 1, {v(t0)}")
            a(f"v_lshl_add_u32 {v(t3)}, {v(t3)}, 1, {v(t0)}")
        elif RB in (64, 448):
            a(f"v_and_b32 {v(t3)}, 1, {v(t1)}")
        else:
            a(f"v_mov_b32 {v(t3)}, 0")
        a(f"v_mul_u32_u24 {v(t2)}, {RB}, {v(t2)}")
        a(f"v_and_b32 {v(t0)}, 3, v1")
        a(f"v_lshl_add_u32 {v(t2)}, {v(t0)}, 3, {v(t2)}")
        a(f"v_add_u32 {v(t2)}, {ABYTES}, {v(t2)}")

    def wfrag_addr(dst):
        if RB == 448:
            a("s_mov_b32 s47, 0")
        elif PPR > 1:
            a(f"s_lshr_b32 s47, s46, {lg_ppr}")
            a(f"s_and_b32 s46, s46, {PPR-1}")
        else:
            a("s_mov_b32 s47, s46")
            a("s_mov_b32 s46, 0")
        a(f"s_mul_i32 s47, s47, {64*RB}")
        a(f"v_xor_b32 {v(t0)}, s46, {v(t3)}")
        a(f"v_lshl_add_u32 {v(t0)}, {v(t0)}, 5, {v(t2)}")
        a(f"v_add_u32 {v(dst)}, s47, {v(t0)}")

    def poll(x):
        lp = a.newlabel("L_fpoll"); ld = a.newlabel("L_fpolld")
        a("s_cmp_lg_u32 s49, 0")
        a(f"s_cbranch_scc1 {ld}")
        nd = 32 if fz['ph'] == 1 else 16
        a(f"s_mov_b64 exec, {hex((1 << nd) - 1)}")
        a("v_readlane_b32 s96, v255, 1")
        a("v_readlane_b32 s97, v255, 2")
        a(f"v_lshlrev_b32 {v(x+4)}, 7, v1")
        if fz['ph'] == 1:
            a("s_lshr_b32 s3, s28, 1")
            a("s_lshl_b32 s3, s3, 12")
        else:
            a("s_lshl_b32 s3, s28, 11")
            a(f"s_add_u32 s3, s3, {32768*(fz['ph']-1)}")
        a("s_add_u32 s98, s96, 0x1000000")
        a("s_addc_u32 s99, s97, 0")
        a(f"s_mov_b32 s101, {int(os.environ.get('FZPOLL', '400'))}")
        a.label(lp)
        a(f"buffer_load_dwordx2 {v(x+6,2)}, {v(x+4)}, s[76:79], s3 offen sc0 sc1")
        a("s_waitcnt vmcnt(0)")
        a(f"v_cmp_lt_u64 vcc, s[96:97], {v(x+6,2)}")
        a(f"v_cmp_gt_u64 s[46:47], s[98:99], {v(x+6,2)}")
        a("s_nop 1")
        a("s_and_b64 s[46:47], s[46:47], vcc")
        a("s_sub_u32 s101, s101, 1")
        a("s_cselect_b64 s[46:47], exec, s[46:47]")
        a("s_cmp_lg_u64 s[46:47], exec")
        a(f"s_cbranch_scc1 {lp}")
        a("s_mov_b64 exec, -1")
        stamp(1)
        a("s_barrier")
        a.label(ld)

    def phase_end():
        if fz and fz['next']:
            a("s_lshl_b32 s3, s28, 4")
            a("s_add_u32 s3, s3, s29")
            a("s_lshl_b32 s3, s3, 7")
            a(f"s_add_u32 s100, s3, {32768*fz['ph']}")
            publish(a, fz['next'])

    end = a.newlabel("L_end")
    if fz:
        a.lines.append(".p2align 6")
        a.label(fz['entry'])
    else:
        kernel_header(a, name)
    stamp(0)
    lab_loader = a.newlabel("L_loader")
    lab_store = a.newlabel("L_store")
    if fz:
        a("s_setprio 0")
    else:
        a(f"s_cmp_ge_u32 s2, {ntiles}")
        a(f"s_cbranch_scc1 {end}")
    a(f"s_load_dwordx2 s[24:25], s[0:1], {ARG['ws']}")
    a(f"s_load_dwordx2 s[58:59], s[0:1], {ARG[a_arg]}")
    a(f"s_load_dwordx2 s[26:27], s[0:1], {ARG[w_arg]}")
    a(f"s_load_dwordx2 s[34:35], s[0:1], {ARG[out_arg]}")
    if res_arg:
        a(f"s_load_dwordx2 s[36:37], s[0:1], {ARG[res_arg]}")
    if bias_arg:
        a(f"s_load_dwordx2 s[38:39], s[0:1], {ARG[bias_arg]}")
    XSPL = bool(splitk) and RA * RBN == 32
    assert ntiles == 256 and RA * RBN == (16 if splitk and not XSPL else 32) and NT_M % RA == 0 and NT_N % RBN == 0
    XB = NT_N // RBN
    a("s_and_b32 s3, s2, 7")
    a("s_lshr_b32 s46, s2, 3")
    if splitk:
        if XSPL:
            a("s_and_b32 s92, s3, 1")
            a("s_lshr_b32 s3, s3, 1")
            a("s_lshl_b32 s96, s3, 5")
        else:
            a("s_lshr_b32 s92, s46, 4")
            a("s_and_b32 s46, s46, 15")
            a("s_lshl_b32 s96, s3, 4")
        a("s_add_u32 s96, s96, s46")
        a("s_cmp_eq_u32 s92, 0")
        a(f"s_cselect_b32 s93, {NSLO}, {NSHI}")
        a("s_mov_b32 s94, 1")
    a(f"s_lshr_b32 s28, s3, {int(math.log2(XB))}")
    a(f"s_and_b32 s29, s3, {XB-1}")
    a(f"s_mul_i32 s28, s28, {RA}")
    a(f"s_mul_i32 s29, s29, {RBN}")
    a(f"s_lshr_b32 s3, s46, {int(math.log2(RBN))}")
    a("s_add_u32 s28, s28, s3")
    NROT = int(os.environ.get('NROT', '0'))
    if NROT: a(f"s_add_u32 s46, s46, {NROT}")
    a(f"s_and_b32 s3, s46, {RBN-1}")
    a("s_add_u32 s29, s29, s3")
    a("v_and_b32 v1, 63, v0")
    a(f"v_lshrrev_b32 {v(vT[0])}, 6, v0")
    a("s_nop 0")
    a(f"v_readfirstlane_b32 s49, {v(vT[0])}")
    a("s_nop 3")
    a("s_and_b32 s30, s49, 3")
    a("s_lshr_b32 s44, s30, 1")
    a("s_and_b32 s45, s30, 1")
    if fz: poll(246)

    WBYTES = NT_N * (K // 2) * 1024 if wt7 else K * N * 2
    def build_srds(rest=False):
        if not rest:
            a("s_waitcnt lgkmcnt(0)")
            srd(a, 4, 58, a_off, M * lda)
            srd(a, 8, 26, w_off or 0, WBYTES)
        srd(a, 12, 34, out_off, M * ldo)
        if res_arg:
            srd(a, 16, 36, res_off, M * N * 2 * (TX if rtile else 1))
        if bias_arg:
            srd(a, 20, 38, 0, N * 2)
        if pre or stats_out:
            srd(a, 84, 24, WS_ST, S * 128)
        if pre:
            srd(a, 88, 24, WS_CS, 16 * N * 4)
        if splitk:
            srd(a, 84, 24, WS_PART, 128 * 65536)
            srd(a, 88, 24, WS_FLAG, 512)

    FS = 'nofs' not in EXP and not splitk and not zero_flags and RB in (128, 448) and BN in (64, 224) and 'nodma' not in EXP
    if FS:
        lab_comp = a.newlabel("L_comp")
        a("s_cmp_lt_u32 s49, 4")
        a(f"s_cbranch_scc1 {lab_comp}")
        pos_ins = len(a.lines)
        a.label(lab_comp)
    else:
        a("s_cmp_ge_u32 s49, 4")
        a(f"s_cbranch_scc1 {lab_loader}")

    a(f"v_and_b32 {v(t0)}, 15, v1")
    if alay == 'o':
        a("s_lshl_b32 s3, s44, 12")
        a(f"v_lshl_add_u32 {v(t0)}, {v(t0)}, 4, s3")
        a(f"v_lshrrev_b32 {v(t1)}, 4, v1")
        a(f"v_lshl_add_u32 {v(vXb[0])}, {v(t1)}, 9, {v(t0)}")
        a(f"v_add_u32 {v(vXb[1])}, 0x2000, {v(vXb[0])}")
    else:
        a("s_lshl_b32 s3, s44, 6")
        a(f"v_add_u32 {v(t0)}, s3, {v(t0)}")
        a(f"v_lshlrev_b32 {v(t0)}, 7, {v(t0)}")
        a(f"v_lshrrev_b32 {v(t1)}, 4, v1")
        a(f"v_bfe_u32 {v(t2)}, v1, 1, 3")
        a(f"v_xor_b32 {v(t3)}, {v(t1)}, {v(t2)}")
        a(f"v_lshl_add_u32 {v(vXb[0])}, {v(t3)}, 4, {v(t0)}")
        a(f"v_xor_b32 {v(t3)}, 4, {v(t3)}")
        a(f"v_lshl_add_u32 {v(vXb[1])}, {v(t3)}, 4, {v(t0)}")
    xoff = (lambda mt: (mt >> 1) * 2048 + (mt & 1) * 256) if alay == 'o' else (lambda mt: mt * 2048)
    wfrag_addr_common()
    a(f"s_mul_i32 s3, s45, {NTW}")
    for nt in range(NTW):
        a(f"s_add_u32 s46, s3, {nt}")
        wfrag_addr(vWb[nt])
    for i in range(4 * MT * NTW):
        a(f"v_mov_b32 v{ACC+i}, 0")
    a("s_mov_b32 s42, 0")
    build_srds()
    if bias_arg and not pre:
        a(f"v_lshrrev_b32 {v(t0)}, 4, v1")
        a(f"v_lshlrev_b32 {v(t0)}, 3, {v(t0)}")
        a(f"s_mul_i32 s3, s29, {BN*2}")
        a(f"s_mul_i32 s46, s45, {BN}")
        a("s_add_u32 s3, s3, s46")
        for nt in range(NTW):
            a(f"buffer_load_dwordx2 {v(PBI+2*nt,2)}, {v(t0)}, s[20:23], s3 offen offset:{32*nt}")

    def set_cur():
        for kk in range(2):
            a(f"v_add_u32 {v(vXc[kk])}, s42, {v(vXb[kk])}")
        for nt in range(NTW):
            a(f"v_add_u32 {v(vWc[nt])}, s42, {v(vWb[nt])}")
        a(f"s_add_u32 s42, s42, {STAGE}")
        a(f"s_cmp_ge_u32 s42, {STAGE*NSTAGE}")
        a("s_cselect_b32 s42, 0, s42")

    def read_list(kk, f):
        if 'noreads' in EXP: return []
        L = []
        for nt in range(NTW):
            if nt < MT:
                L.append(f"ds_read_b128 {v(FX[f]+4*nt,4)}, {v(vXc[kk])} offset:{xoff(nt)}")
            for rd in range(2):
                L.append(f"ds_read_b64_tr_b16 {v(FW[f]+4*nt+2*rd,2)}, {v(vWc[nt])} offset:{kk*32*RB+rd*4*RB}")
        for mt in range(NTW, MT):
            L.append(f"ds_read_b128 {v(FX[f]+4*mt,4)}, {v(vXc[kk])} offset:{xoff(mt)}")
        return L

    def mfma_list(f):
        if 'nomfma' in EXP: return []
        L = []
        for nt in range(NTW):
            for mt in range(MT):
                L.append(f"v_mfma_f32_16x16x32_bf16 {v(acc(nt,mt),4)}, {v(FW[f]+4*nt,4)}, {v(FX[f]+4*mt,4)}, {v(acc(nt,mt),4)}")
        return L

    def reads(kk, f):
        for x in read_list(kk, f): a(x)

    def mfmas(f):
        for x in mfma_list(f): a(x)

    def inter(kk, fr, fm):
        R = read_list(kk, fr); Mm = mfma_list(fm)
        rpm = RPM if NTW <= 4 else 1
        ri = 0
        for i in range(len(Mm)):
            a(Mm[i])
            for _ in range(rpm):
                if ri < len(R): a(R[ri]); ri += 1
        while ri < len(R): a(R[ri]); ri += 1

    SLC = int(os.environ.get('SLC', '1')); SLL = int(os.environ.get('SLL', '1'))
    vRA, vCA, vCV, vFT = vT[4], vT[5], vT[6], vT[7]
    slow = []
    SH = not FL and not splitk and 'nosh' not in EXP
    def blockS(extra=None, tail=()):
        R = read_list(1, 1); Mm = mfma_list(0)
        rpm = RPM if NTW <= 4 else 1
        cur = [f"v_add_u32 {v(vXc[kk])}, s42, {v(vXb[kk])}" for kk in range(2)] + [f"v_add_u32 {v(vWc[nt])}, s42, {v(vWb[nt])}" for nt in range(NTW)]
        cur += [f"s_add_u32 s42, s42, {STAGE}", f"s_cmp_ge_u32 s42, {STAGE*NSTAGE}", "s_cselect_b32 s42, 0, s42"]
        ri = 0; ex_done = False; tail = list(tail)
        for i in range(len(Mm)):
            a(Mm[i])
            k_ = 0
            while k_ < rpm and ri < len(R): a(R[ri]); ri += 1; k_ += 1
            if ri == len(R) and k_ == 0:
                if cur:
                    for _ in range(3):
                        if cur: a(cur.pop(0))
                elif not ex_done:
                    if extra: extra()
                    ex_done = True
                    for x in tail: a(x)
        while ri < len(R): a(R[ri]); ri += 1
        for x in cur: a(x)
        if not ex_done:
            if extra: extra()
            for x in tail: a(x)
        a("s_waitcnt lgkmcnt(0)")
    def blockB(extra=None):
        R = read_list(1, 1); Mm = mfma_list(0)
        rpm = RPM if NTW <= 4 else 1
        HB = int(os.environ.get('FLHB', '4')) if len(Mm) > 16 else int(os.environ.get('FLHS', '2'))
        FP = int(os.environ.get('FLFP', '8')) if len(Mm) > 16 else 0
        cur = [f"v_add_u32 {v(vXc[kk])}, s42, {v(vXb[kk])}" for kk in range(2)] + [f"v_add_u32 {v(vWc[nt])}, s42, {v(vWb[nt])}" for nt in range(NTW)]
        cur += [f"s_add_u32 s42, s42, {STAGE}", f"s_cmp_ge_u32 s42, {STAGE*NSTAGE}", "s_cselect_b32 s42, 0, s42"]
        fr = f"ds_read_b32 {v(vFT)}, {v(vRA)}"
        ri = 0; done_fr = False
        n1 = len(Mm) - HB
        for i in range(n1):
            a(Mm[i])
            k_ = 0
            while k_ < rpm and ri < len(R): a(R[ri]); ri += 1; k_ += 1
            if ri == len(R) and k_ < rpm or (ri == len(R) and k_ == 0):
                if not done_fr and i >= n1 - 1 - FP: a(fr); done_fr = True
                for _ in range(3):
                    if cur: a(cur.pop(0))
        while ri < len(R): a(R[ri]); ri += 1
        if not done_fr: a(fr)
        for x in cur: a(x)
        if extra: extra()
        a(f"v_add_u32 {v(vCV)}, 1, {v(vCV)}")
        a("s_waitcnt lgkmcnt(0)")
        rest = Mm[n1:]
        lsl = a.newlabel("L_fslow"); lbk = a.newlabel("L_fback")
        seq = [[f"ds_write_b32 {v(vCA)}, {v(vCV)}", f"v_cmp_ge_u32 vcc, {v(vCV)}, {v(vFT)}"]]
        for g_ in seq:
            if rest: a(rest.pop(0))
            for x in g_: a(x)
        for x in rest: a(x)
        a(f"s_cbranch_vccnz {lsl}")
        a.label(lbk)
        slow.append((lsl, lbk))

    if 'cpf' in EXP:
        lh = a.newlabel("L_pc")
        a("s_getpc_b64 s[46:47]")
        a.label(lh)
        a(f"v_lshlrev_b32 {v(t0)}, 4, v1")
        a("s_lshl_b32 s3, s30, 10")
        for j in range(int(os.environ.get('NCPF', '4'))):
            a(f"s_min_u32 s92, s3, {end}-{lh}-1024")
            a(f"v_add_u32 {v(t1)}, s92, {v(t0)}")
            a(f"global_load_dwordx4 {v(FX[0],4)}, {v(t1)}, s[46:47]")
            a("s_add_u32 s3, s3, 4096")
        a("s_waitcnt vmcnt(0)")
    if wpf:
        a("s_lshl_b32 s3, s2, 2")
        a("s_add_u32 s3, s3, s30")
        for q, (arg, nbytes, hi) in enumerate(wpf):
            a(f"s_load_dwordx2 s[{94+2*q}:{95+2*q}], s[0:1], {ARG[arg]}")
            a(f"s_mul_i32 s{92+q}, s3, {nbytes//1024}")
        a("s_waitcnt lgkmcnt(0)")
        for q, (arg, nbytes, hi) in enumerate(wpf):
            assert nbytes % (1 << 20) == 0
            srd(a, 84 + 4 * q, 94 + 2 * q, 0, nbytes)
        a(f"v_lshlrev_b32 {v(PFV)}, {PFS}, v1")
    if c3src:
        c_arg, c_rows, c_off = c3src
        assert c_rows * 2 == 7 * 1024 and wpf[0][0] == c_arg and PFS == 4 and wpf[0][2] < 0 and NS == 16 and len(wpf) == 1
        a("s_mul_i32 s3, s3, 7")
        a("v_lshrrev_b32 v2, 3, v1")
        a("v_and_b32 v4, 7, v1")
        a("v_lshlrev_b32 v4, 4, v4")
        a("v_lshl_add_u32 v3, v2, 10, v4")
        a("v_add_u32 v2, s3, v2")
        a("v_and_b32 v5, 1, v2")
        a(f"v_mul_u32_u24 v5, {c_rows*256}, v5")
        a("v_lshrrev_b32 v2, 1, v2")
        a("v_lshl_add_u32 v2, v2, 8, v4")
        a("v_add_u32 v2, v2, v5")
    if spf:
        assert RA * BM == 512 and RBN * BN == 512
        a("s_lshr_b32 s3, s2, 3")
        a("s_lshl_b32 s3, s3, 2")
        a("s_add_u32 s3, s3, s30")
        a(f"s_lshr_b32 s46, s28, {int(math.log2(RA))}")
        if ATILE:
            a(f"s_mul_i32 s46, s46, {RA*BM*lda}")
            a("s_lshr_b32 s47, s3, 4")
            a(f"s_mul_i32 s47, s47, {BM*lda}")
            a("s_add_u32 s46, s46, s47")
            a("s_and_b32 s47, s3, 15")
            a("s_lshl_b32 s47, s47, 13")
            a("s_add_u32 s96, s46, s47")
            astep, arow = 8 * BM * 128, 1024
        else:
            a(f"s_mul_i32 s46, s46, {RA*BM}")
            a("s_lshl_b32 s47, s3, 3")
            a("s_add_u32 s46, s46, s47")
            a(f"s_mul_i32 s96, s46, {lda}")
            astep, arow = 1024, lda
        a("s_sub_u32 s46, s3, 64")
        a(f"s_mul_i32 s46, s46, {8*N*2}")
        a(f"s_lshr_b32 s47, s29, {int(math.log2(RBN))}")
        a("s_lshl_b32 s47, s47, 10")
        a("s_add_u32 s46, s46, s47")
        a(f"s_mov_b32 s97, {512*N*2}")
        a(f"s_mov_b32 s47, {N*2}")
        a("s_cmp_lt_u32 s3, 64")
        a("s_cselect_b32 s96, s96, s46")
        a(f"s_cselect_b32 s97, {astep}, s97")
        a(f"s_cselect_b32 s47, {arow}, s47")
        for i in range(4):
            a(f"s_cselect_b32 s{76+i}, s{4+i}, s{8+i}")
        a(f"v_lshrrev_b32 {v(t0)}, 3, v1")
        a(f"v_and_b32 {v(t1)}, 7, v1")
        a(f"v_mul_u32_u24 {v(t0)}, s47, {v(t0)}")
        a(f"v_lshl_add_u32 {v(PFD+1)}, {v(t1)}, 7, {v(t0)}")

        def spf1():
            a(f"buffer_load_dword {v(PFD)}, {v(PFD+1)}, s[76:79], s96 offen")
            a("s_add_u32 s96, s96, s97")
        for _ in range(spf[0]): spf1()
    if sp2:
        assert RA * BM == 512 and RBN * BN == 512 and ATILE
        W0 = sp2; DD = W0 + 7
        a("s_lshr_b32 s3, s2, 3")
        a("s_lshl_b32 s3, s3, 2")
        a("s_add_u32 s3, s3, s30")
        a(f"s_sub_u32 s98, s3, {W0}")
        a("s_and_b32 s98, s98, 7")
        a(f"s_add_u32 s99, s98, {W0}")
        a("s_lshr_b32 s3, s3, 3")
        a(f"s_and_b32 s46, s28, {-RA & 0xffffffff}")
        a("s_lshr_b32 s47, s3, 1")
        a("s_add_u32 s46, s46, s47")
        a(f"s_mul_i32 s46, s46, {BM*lda}")
        a("s_and_b32 s47, s3, 1")
        a(f"s_mul_i32 s47, s47, {64*TP}")
        a("s_add_u32 s46, s46, s47")
        a(f"s_mul_i32 s47, s99, {ASTEP}")
        a("s_add_u32 s96, s46, s47")
        a("s_sub_u32 s46, s3, 8")
        a("s_lshl_b32 s46, s46, 3")
        a("s_lshl_b32 s47, s99, 6")
        a("s_add_u32 s46, s46, s47")
        a(f"s_mul_i32 s46, s46, {N*2}")
        a(f"s_lshr_b32 s47, s29, {int(math.log2(RBN))}")
        a("s_lshl_b32 s47, s47, 10")
        a("s_add_u32 s46, s46, s47")
        a(f"s_mov_b32 s97, {512*N*2}")
        a(f"s_mov_b32 s47, {N*2}")
        a("s_mov_b32 s93, 7")
        a("s_cmp_lt_u32 s3, 8")
        a("s_cselect_b32 s96, s96, s46")
        a(f"s_cselect_b32 s97, {8*ASTEP}, s97")
        a(f"s_cselect_b32 s47, {8*TP}, s47")
        a(f"s_cselect_b32 s93, {TSH}, s93")
        for i in range(4):
            a(f"s_cselect_b32 s{76+i}, s{4+i}, s{8+i}")
        a(f"v_lshrrev_b32 {v(t0)}, 3, v1")
        a(f"v_and_b32 {v(t1)}, 7, v1")
        a(f"v_mul_u32_u24 {v(t0)}, s47, {v(t0)}")
        a(f"v_lshlrev_b32 {v(t1)}, s93, {v(t1)}")
        a(f"v_add_u32 {v(PFD+1)}, {v(t1)}, {v(t0)}")
        a(f"s_sub_u32 s98, {NS + DD - 8}, s99")

        def spf1():
            a(f"buffer_load_dword {v(PFD)}, {v(PFD+1)}, s[76:79], s96 offen")
            a("s_add_u32 s96, s96, s97")
        if 'sp2late' not in EXP: spf1()
    if sp4:
        assert RA == 8 and RBN * BN * 2 == 1792 and ATILE and TP == 128 and not wt7
        K0, NINI, PHS = sp4
        a("s_lshr_b32 s3, s2, 3")
        a("s_lshl_b32 s3, s3, 2")
        a("s_add_u32 s3, s3, s30")
        a(f"s_and_b32 s46, s28, {-RA & 0xffffffff}")
        a("s_lshr_b32 s47, s3, 3")
        a("s_add_u32 s46, s46, s47")
        a(f"s_mul_i32 s46, s46, {BM*lda}")
        a("s_and_b32 s47, s3, 7")
        a("s_lshl_b32 s47, s47, 13")
        a("s_add_u32 s46, s46, s47")
        a(f"s_add_u32 s96, s46, {K0*ASTEP}")
        a(f"v_lshlrev_b32 {v(t0)}, 7, v1")
        a("s_sub_u32 s46, s3, 64")
        a("s_lshl_b32 s46, s46, 6")
        a(f"v_add_u32 {v(t1)}, s46, v1")
        a(f"s_mov_b32 s47, {((1 << 32) + 13) // 14}")
        a(f"v_mul_hi_u32 {v(t2)}, {v(t1)}, s47")
        a(f"v_mul_u32_u24 {v(t3)}, 14, {v(t2)}")
        a(f"v_sub_u32 {v(t1)}, {v(t1)}, {v(t3)}")
        a(f"v_mul_u32_u24 {v(t2)}, {N*2}, {v(t2)}")
        a(f"v_lshl_add_u32 {v(t1)}, {v(t1)}, 7, {v(t2)}")
        a(f"s_lshr_b32 s47, s29, {int(math.log2(RBN))}")
        a("s_mul_i32 s47, s47, 1792")
        a(f"s_add_u32 s47, s47, {K0*64*N*2}")
        a("s_cmp_ge_u32 s3, 120")
        a("s_cselect_b32 s47, 0x60000000, s47")
        a(f"s_mov_b32 s97, {256*N*2}")
        a("s_cmp_lt_u32 s3, 64")
        a("s_cselect_b64 vcc, -1, 0")
        a("s_cselect_b32 s96, s96, s47")
        a(f"s_cselect_b32 s97, {4*ASTEP}, s97")
        for i in range(4):
            a(f"s_cselect_b32 s{76+i}, s{4+i}, s{8+i}")
        a(f"v_cndmask_b32 v8, {v(t1)}, {v(t0)}, vcc")

        def spf1():
            a(f"buffer_load_dword {v(PFD)}, v8, s[76:79], s96 offen")
            a("s_add_u32 s96, s96, s97")
        for _ in range(NINI): spf1()
        NPH = -(-(NS - K0) // 4) - NINI
    if l2pf:
        NPA = RA * BM // 8
        NPW = BK * (RBN * BN * 2) // 1024
        WPR = RBN * BN * 2 // 1024
        assert NPA + NPW == 128 and WPR == 1
        lw = a.newlabel("L_pfw"); ld = a.newlabel("L_pfd")
        a("s_lshr_b32 s3, s2, 3")
        a("s_lshl_b32 s3, s3, 2")
        a("s_add_u32 s3, s3, s30")
        a(f"s_cmp_ge_u32 s3, {NPA}")
        a(f"s_cbranch_scc1 {lw}")
        a(f"s_lshr_b32 s46, s28, {int(math.log2(RA))}")
        a(f"s_mul_i32 s46, s46, {RA*BM}")
        a("s_lshl_b32 s3, s3, 3")
        a("s_add_u32 s3, s3, s46")
        a(f"v_lshrrev_b32 {v(PFV)}, 3, v1")
        a(f"v_add_u32 {v(PFV)}, s3, {v(PFV)}")
        a(f"v_mul_u32_u24 {v(PFV)}, {lda}, {v(PFV)}")
        a(f"v_and_b32 {v(t0)}, 7, v1")
        a(f"v_lshl_add_u32 {v(PFV)}, {v(t0)}, 4, {v(PFV)}")
        for i in range(4): a(f"s_mov_b32 s{84+i}, s{4+i}")
        a(f"s_mov_b32 s92, {l2pf*BK*2}")
        a(f"s_mov_b32 s93, {BK*2}")
        a(f"s_branch {ld}")
        a.label(lw)
        a(f"s_sub_u32 s3, s3, {NPA}")
        a(f"s_mul_i32 s3, s3, {N*2}")
        a(f"s_lshr_b32 s46, s29, {int(math.log2(RBN))}")
        a(f"s_mul_i32 s46, s46, {RBN*BN*2}")
        a("s_add_u32 s3, s3, s46")
        a(f"v_lshlrev_b32 {v(PFV)}, 4, v1")
        a(f"v_add_u32 {v(PFV)}, s3, {v(PFV)}")
        for i in range(4): a(f"s_mov_b32 s{84+i}, s{8+i}")
        a(f"s_mov_b32 s92, {l2pf*BK*N*2}")
        a(f"s_mov_b32 s93, {BK*N*2}")
        a.label(ld)
        a(f"s_mul_i32 s3, s93, {NSTAGE-1}")
        for j in range(NSTAGE - 1, l2pf):
            a(f"buffer_load_dwordx4 {v(PFD,4)}, {v(PFV)}, s[84:87], s3 offen")
            a("s_add_u32 s3, s3, s93")
    if splitk:
        a("s_xor_b32 s95, s92, 1")
        a(f"v_mov_b32 {v(PFL)}, 0")
        a("s_lshl_b32 s3, s96, 2")
        a(f"v_mov_b32 {v(PFA)}, s3")
        a("s_add_u32 s3, s3, s30")
        a("s_lshl_b32 s3, s3, 14")
        a(f"v_lshlrev_b32 {v(PPA)}, 4, v1")
        a(f"v_add_u32 {v(PPA)}, s3, {v(PPA)}")
    DRY = dry and not splitk
    if DRY:
        a.dry_begin(30, 95)
    if FL:
        a(f"v_and_b32 {v(vRA)}, 3, v1")
        a(f"v_lshlrev_b32 {v(vRA)}, 8, {v(vRA)}")
        a(f"v_lshl_add_u32 {v(vRA)}, v1, 2, {v(vRA)}")
        a(f"v_add_u32 {v(vRA)}, {FLG}, {v(vRA)}")
        a("s_lshl_b32 s3, s30, 8")
        a(f"s_add_u32 s3, s3, {FLG+1024}")
        a(f"v_lshl_add_u32 {v(vCA)}, v1, 2, s3")
        a(f"v_mov_b32 {v(vCV)}, 0")
        a(f"ds_write_b32 {v(vCA)}, {v(vCV)}")
        set_cur()
        a("s_waitcnt lgkmcnt(0)")
    if SH: set_cur()
    if fz and 'fpre' in EXP:
        code_pf(a, None, 2 if fz['next'] else 1, 49, t0, 1)
    if fz:
        lt2 = a.newlabel("L_t2")
        a("s_cmp_eq_u32 s49, 0")
        a(f"s_cbranch_scc1 {lt2}")
        stamp(1)
        a("s_barrier")
        a.label(lt2)
    else: stamp(1)
    lab_cpass = a.newlabel("L_cpass")
    a.label(lab_cpass)
    a("s_barrier")
    stamp(2)
    if not FL and not SH: set_cur()
    reads(0, 0)
    a("s_waitcnt lgkmcnt(0)")
    if FL: blockB()
    elif SH: blockS()
    else:
        inter(1, 1, 0)
        a("s_waitcnt lgkmcnt(0)")
    if splitk: a("s_sub_u32 s48, s93, 1")
    else: a(f"s_mov_b32 s48, {NS-1}")
    if sp2 and 'sp2late' in EXP: spf1()
    if c3src:
        a("s_mov_b32 exec_hi, 0x00ffffff")
        a("buffer_load_dwordx4 v[4:7], v3, s[84:87], s92 offen offset:384")
        a("s_mov_b32 exec_hi, -1")
    loop = a.newlabel("L_cloop")
    a.label(loop)
    if not FL:
        a("s_barrier")
        if not SH: set_cur()
    inter(0, 0, 1)
    a("s_waitcnt lgkmcnt(0)")
    if not FL and not SH: inter(1, 1, 0)
    cutx = len(a.lines)
    if l2pf:
        a(f"buffer_load_dwordx4 {v(PFD,4)}, {v(PFV)}, s[84:87], s92 offen")
        a("s_add_u32 s92, s92, s93")
    if spf and NS > 8 * spf[0]:
        lsp = a.newlabel("L_spf"); lspb = a.newlabel("L_spfb")
        a("s_and_b32 s3, s48, 7")
        a(f"s_cmp_eq_u32 s3, {spf[1]}")
        a(f"s_cbranch_scc1 {lsp}")
        a.label(lspb)
    if sp4:
        lsp = a.newlabel("L_spf"); lspb = a.newlabel("L_spfb")
        a("s_and_b32 s3, s48, 3")
        a(f"s_cmp_eq_u32 s3, {PHS & 3}")
        a(f"s_cbranch_scc1 {lsp}")
        a.label(lspb)
    if sp2:
        lsp = a.newlabel("L_spf"); lspb = a.newlabel("L_spfb")
        a("s_cmp_eq_u32 s48, s98")
        a(f"s_cbranch_scc1 {lsp}")
        a.label(lspb)
    if wpf:
        for q, (arg, nbytes, hi) in enumerate(wpf):
            n = (nbytes >> 20) if PFS == 4 else -(-(nbytes >> 10) // (64 << PFS))
            lsk = a.newlabel("L_wpfs")
            if hi < 0:
                a("s_bitcmp1_b32 s48, 0")
            else:
                a(f"s_sub_u32 s3, s48, {hi-n+1}")
                a(f"s_cmp_ge_u32 s3, {n}")
            a(f"s_cbranch_scc1 {lsk}")
            if PFS == 4:
                a(f"buffer_load_dwordx4 {v(PFD,4)}, {v(PFV)}, s[{84+4*q}:{87+4*q}], s{92+q} offen")
            else:
                a(f"buffer_load_dword {v(PFD)}, {v(PFV)}, s[{84+4*q}:{87+4*q}], s{92+q} offen")
            a(f"s_add_u32 s{92+q}, s{92+q}, {64 << PFS}")
            a.label(lsk)
    if splitk:
        cskip = a.newlabel("L_cskip"); cpoll = a.newlabel("L_cpoll")
        a("s_cmp_lg_u32 s95, 0")
        a(f"s_cbranch_scc1 {cskip}")
        a(f"v_readfirstlane_b32 s3, {v(PFL)}")
        a("s_nop 3")
        a("s_cmp_eq_u32 s3, 0")
        a(f"s_cbranch_scc1 {cpoll}")
        a("s_mov_b32 s95, 1")
        for t_ in range(MT * NTW):
            a(f"s_mov_b32 s3, {1024*t_}")
            a(f"buffer_load_dwordx4 {v(PRT+4*t_,4)}, {v(PPA)}, s[84:87], s3 offen")
        a(f"s_branch {cskip}")
        a.label(cpoll)
        if 'forcefb' not in EXP: a(f"buffer_load_dword {v(PFL)}, {v(PFA)}, s[88:91], 0 offen sc0 sc1")
        a.label(cskip)
    if FL:
        ex = a.lines[cutx:]; del a.lines[cutx:]
        blockB(lambda: a.lines.extend(ex))
    elif SH:
        ex = a.lines[cutx:]; del a.lines[cutx:]
        blockS(lambda: a.lines.extend(ex), ["s_sub_u32 s48, s48, 1", "s_cmp_lg_u32 s48, 0"])
    else: a("s_waitcnt lgkmcnt(0)")
    if not SH:
        a("s_sub_u32 s48, s48, 1")
        a("s_cmp_lg_u32 s48, 0")
    a(f"s_cbranch_scc1 {loop}")
    stamp(3)
    if FL and not epi2: a("s_barrier")
    if c3src:
        srd(a, 76, 24, c_off, 2 * c_rows * 256)
        a("s_waitcnt vmcnt(7)")
        a("s_mov_b32 exec_hi, 0x00ffffff")
        a("buffer_store_dwordx4 v[4:7], v2, s[76:79], 0 offen")
        a("s_mov_b32 exec_hi, -1")
    if epi2:
        FROW = BN * 4 + 16
        assert BM * FROW <= STAGE * NSTAGE and (FROW // 4) % 32 == 4
        a("s_barrier")
        ml = mfma_list(1)
        a(f"v_and_b32 {v(t2)}, 15, v1")
        a("s_lshl_b32 s3, s44, 6")
        a(f"v_add_u32 {v(t2)}, s3, {v(t2)}")
        a(f"v_mul_u32_u24 {v(t2)}, {FROW}, {v(t2)}")
        a(f"v_bfe_u32 {v(t3)}, v1, 4, 1")
        a(f"v_mul_u32_u24 {v(t3)}, {BN*2}, {v(t3)}")
        a(f"v_add_u32 {v(t2)}, {v(t2)}, {v(t3)}")
        a(f"v_lshrrev_b32 {v(t3)}, 5, v1")
        a(f"v_lshl_add_u32 {v(t2)}, {v(t3)}, 4, {v(t2)}")
        a(f"s_mul_i32 s3, s45, {NTW*32}")
        a(f"v_add_u32 {v(t2)}, s3, {v(t2)}")
        wl = [f"ds_write_b128 {v(t2)}, {v(acc(nt,mt),4)} offset:{mt*16*FROW + nt*32}" for nt in range(NTW) for mt in range(MT)]
        for i, x in enumerate(ml):
            a(x)
            if i >= 6: a(wl[i - 6])
        a("s_nop 7")
        a("s_nop 7")
        for x in wl[len(ml) - 6:]: a(x)
        a("s_waitcnt lgkmcnt(0)")
        stamp(4)
        a("s_barrier")
        a(f"s_branch {lab_store}")
    else:
        mfmas(1)
    if ln and not pre:
        a("s_barrier")
    if splitk:
        lab_hi = a.newlabel("L_hi"); lab_epi = a.newlabel("L_epi"); lab_fb = a.newlabel("L_fb")
        a("s_cmp_lg_u32 s92, 0")
        a(f"s_cbranch_scc1 {lab_hi}")
        a("s_nop 7")
        for t_ in range(MT * NTW):
            a(f"s_mov_b32 s3, {1024*t_}")
            a(f"buffer_store_dwordx4 {v(ACC+4*t_,4)}, {v(PPA)}, s[84:87], s3 offen sc0 sc1")
        a("s_waitcnt vmcnt(0)")
        a("s_barrier")
        a("s_cmp_lg_u32 s30, 0")
        a(f"s_cbranch_scc1 {end}")
        a(f"v_mov_b32 {v(t1)}, 1")
        a("s_mov_b64 exec, 1")
        a(f"buffer_store_dword {v(t1)}, {v(PFA)}, s[88:91], 0 offen sc0 sc1")
        a(f"s_branch {end}")
        a.label(lab_hi)
        a("s_lshl_b32 s3, s30, 2")
        a(f"s_add_u32 s3, s3, {DONE}")
        a(f"v_mov_b32 {v(t0)}, s3")
        a(f"v_mov_b32 {v(t1)}, s95")
        a(f"ds_write_b32 {v(t0)}, {v(t1)}")
        a("s_waitcnt lgkmcnt(0)")
        a("s_barrier")
        a("s_cmp_eq_u32 s94, 2")
        a(f"s_cbranch_scc1 {lab_epi}")
        a(f"v_mov_b32 {v(t1)}, {DONE}")
        a(f"ds_read_b128 {v(FX[0],4)}, {v(t1)}")
        a("s_waitcnt lgkmcnt(0)")
        a(f"v_and_b32 {v(FX[0])}, {v(FX[0])}, {v(FX[0]+1)}")
        a(f"v_and_b32 {v(FX[0]+2)}, {v(FX[0]+2)}, {v(FX[0]+3)}")
        a(f"v_and_b32 {v(FX[0])}, {v(FX[0])}, {v(FX[0]+2)}")
        a("s_nop 0")
        a(f"v_readfirstlane_b32 s3, {v(FX[0])}")
        a("s_nop 3")
        a("s_cmp_eq_u32 s3, 1")
        a(f"s_cbranch_scc0 {lab_fb}")
        a("s_waitcnt vmcnt(0)")
        for t_ in range(MT * NTW):
            for j in range(2):
                a(f"v_pk_add_f32 {v(ACC+4*t_+2*j,2)}, {v(ACC+4*t_+2*j,2)}, {v(PRT+4*t_+2*j,2)}")
        a(f"s_branch {lab_epi}")
        a.label(lab_fb)
        a("s_mov_b32 s94, 2")
        a("s_mov_b32 s95, 1")
        a(f"s_mov_b32 s93, {NSLO}")
        a("s_mov_b32 s42, 0")
        a("s_barrier")
        a(f"s_branch {lab_cpass}")
        a.label(lab_epi)
    cut0 = len(a.lines)
    if DRY: a.dry_entry()
    RT = FX[0]; CS = RT + 8; BR = CS + 4 * NTW; BF = BR + 2 * NTW; GE = BF + 4 * NTW
    assert GE + 10 <= ACC
    if alay == 'g32':
        a(f"v_bfe_u32 {v(t2)}, v1, 1, 3")
        a(f"v_and_b32 {v(t3)}, 1, v1")
        a(f"v_lshl_add_u32 {v(t2)}, {v(t3)}, 3, {v(t2)}")
    else:
        a(f"v_and_b32 {v(t2)}, 15, v1")
    a("s_lshl_b32 s3, s44, 6")
    a(f"v_add_u32 {v(t2)}, s3, {v(t2)}")
    a(f"v_lshrrev_b32 {v(t3)}, 4, v1")
    a(f"s_mul_i32 s3, s45, {NTW*4}")
    a(f"v_add_u32 {v(t3)}, s3, {v(t3)}")
    if ln:
        a(f"v_lshlrev_b32 {v(t0)}, 3, {v(t2)}")
        a(f"v_add_u32 {v(t0)}, {RTAB}, {v(t0)}")
        for mt in range(MT):
            a(f"ds_read_b64 {v(RT+2*mt,2)}, {v(t0)} offset:{128*mt}")
        a(f"v_lshlrev_b32 {v(t0)}, 4, {v(t3)}")
        a(f"v_add_u32 {v(t0)}, {CTAB}, {v(t0)}")
        for nt in range(NTW):
            a(f"ds_read_b128 {v(CS+4*nt,4)}, {v(t0)} offset:{64*nt}")
    if bias_arg and pre:
        a(f"v_lshlrev_b32 {v(t0)}, 3, {v(t3)}")
        a(f"v_add_u32 {v(t0)}, {EPI}, {v(t0)}")
        for nt in range(NTW):
            a(f"ds_read_b64 {v(BR+2*nt,2)}, {v(t0)} offset:{32*nt}")
    vc = vT[0]
    a(f"v_mul_u32_u24 {v(t2)}, {CROW}, {v(t2)}")
    a(f"v_lshl_add_u32 {v(vc)}, {v(t3)}, 3, {v(t2)}")
    if CBASE: a(f"v_add_u32 {v(vc)}, {CBASE}, {v(vc)}")
    if epi == 'gelu':
        c2 = 2 * math.log2(math.e)
        k1 = struct.unpack("<I", struct.pack("<f", 0.7978845608 * c2))[0]
        k3 = struct.unpack("<I", struct.pack("<f", 0.7978845608 * 0.044715 * c2))[0]
        a(f"s_mov_b32 s52, {k3}"); a(f"s_mov_b32 s53, {k3}")
        a(f"v_mov_b32 {v(GE+8)}, {k1}"); a(f"v_mov_b32 {v(GE+9)}, {k1}")
        a("s_mov_b32 s56, 1.0"); a("s_mov_b32 s57, 1.0")
    a("s_waitcnt vmcnt(0) lgkmcnt(0)" if (bias_arg and not pre) else "s_waitcnt lgkmcnt(0)")
    a("s_nop 7")
    if bias_arg:
        bsrc = BR if pre else PBI
        for nt in range(NTW):
            for j in range(2):
                a(f"v_lshlrev_b32 {v(BF+4*nt+2*j)}, 16, {v(bsrc+2*nt+j)}")
                a(f"v_and_b32 {v(BF+4*nt+2*j+1)}, 0xffff0000, {v(bsrc+2*nt+j)}")
    for nt in range(NTW):
        if DRY and nt in dry: a.dry_mark()
        for mp in range(0, MT, 2):
            c0 = acc(nt, mp)
            for q in range(2):
                mt = mp + q
                for j in range(2):
                    cc = v(c0 + 4 * q + 2 * j, 2)
                    tt = v(GE + 4 * q + 2 * j, 2)
                    if ln:
                        if bias_arg:
                            a(f"v_pk_fma_f32 {tt}, {v(CS+4*nt+2*j,2)}, {v(RT+2*mt,2)}, {v(BF+4*nt+2*j,2)} op_sel:[0,1,0] op_sel_hi:[1,1,1]")
                        else:
                            a(f"v_pk_mul_f32 {tt}, {v(CS+4*nt+2*j,2)}, {v(RT+2*mt,2)} op_sel:[0,1] op_sel_hi:[1,1]")
                    elif bias_arg:
                        a(f"v_pk_add_f32 {cc}, {cc}, {v(BF+4*nt+2*j,2)}")
            if ln:
                for q in range(2):
                    mt = mp + q
                    for j in range(2):
                        cc = v(c0 + 4 * q + 2 * j, 2)
                        tt = v(GE + 4 * q + 2 * j, 2)
                        a(f"v_pk_fma_f32 {cc}, {cc}, {v(RT+2*mt,2)}, {tt} op_sel:[0,0,0] op_sel_hi:[1,0,1]")
            if epi == 'gelu':
                for j in range(4):
                    a(f"v_pk_mul_f32 {v(GE+2*j,2)}, {v(c0+2*j,2)}, {v(c0+2*j,2)}")
                for j in range(4):
                    a(f"v_pk_fma_f32 {v(GE+2*j,2)}, {v(GE+2*j,2)}, s[52:53], {v(GE+8,2)}")
                for j in range(4):
                    a(f"v_pk_mul_f32 {v(GE+2*j,2)}, {v(GE+2*j,2)}, {v(c0+2*j,2)}")
                for r in range(8):
                    a(f"v_exp_f32 {v(GE+r)}, {v(GE+r)}")
                a("s_nop 0")
                for j in range(4):
                    a(f"v_pk_add_f32 {v(GE+2*j,2)}, {v(GE+2*j,2)}, s[56:57]")
                for r in range(8):
                    a(f"v_rcp_f32 {v(GE+r)}, {v(GE+r)}")
                a("s_nop 0")
                for j in range(4):
                    cc = v(c0 + 2 * j, 2)
                    a(f"v_pk_fma_f32 {cc}, {cc}, {v(GE+2*j,2)}, {cc} neg_lo:[1,0,0] neg_hi:[1,0,0]")
            for j in range(4):
                a(f"v_cvt_pk_bf16_f32 {v(c0+j)}, {v(c0+2*j)}, {v(c0+2*j+1)}")
            for q in range(2):
                a(f"ds_write_b64 {v(vc)}, {v(c0+2*q,2)} offset:{(mp+q)*16*CROW + nt*32}")
    if DRY: a(f"s_cbranch_execz {lab_store}")
    a("s_waitcnt lgkmcnt(0)")
    stamp(4)
    a("s_barrier")
    a(f"s_branch {lab_store}")
    if epi2: del a.lines[cut0:]

    if spf and NS > 8 * spf[0]:
        a.label(lsp)
        spf1()
        a(f"s_branch {lspb}")
    if sp4:
        a.label(lsp)
        a(f"s_sub_u32 s3, {PHS}, s48")
        a(f"s_cmp_ge_u32 s3, {4*NPH}")
        a(f"s_cbranch_scc1 {lspb}")
        spf1()
        a(f"s_branch {lspb}")
    if sp2:
        a.label(lsp)
        a("s_sub_u32 s98, s98, 8")
        a(f"s_cmp_le_u32 s48, {DD}")
        a(f"s_cbranch_scc1 {lspb}")
        spf1()
        a(f"s_branch {lspb}")
    for lsl, lbk in slow:
        a.label(lsl)
        if SLC: a(f"s_sleep {SLC}")
        a(f"ds_read_b32 {v(vFT)}, {v(vRA)}")
        a("s_waitcnt lgkmcnt(0)")
        a(f"v_cmp_ge_u32 vcc, {v(vCV)}, {v(vFT)}")
        a(f"s_cbranch_vccnz {lsl}")
        a(f"s_branch {lbk}")
    pos_l0 = len(a.lines)
    a.label(lab_loader)
    if 'noprio' not in EXP: a("s_setprio 2")
    if w2copy: a(f"s_load_dwordx2 s[94:95], s[0:1], {ARG['w2']}")
    NPL = (BN // 16 + 3) // 4
    LSA = 40
    LCW = 44
    LSC = 48; LCC = 52
    LONE = 56
    LST = 60
    LMS = 132
    LCS = 68
    LSD = 84
    LWD = 100
    assert vT[7] < 40
    NW2 = BN * 2 if BTILE else N * 2
    if FS:
        rs = TP if ATILE else lda
        a(f"v_lshrrev_b32 {v(t0)}, 3, v1")
        a(f"v_lshrrev_b32 {v(t1)}, 4, v1")
        a(f"v_and_b32 {v(t2)}, 7, v1")
        a(f"v_xor_b32 {v(t1)}, {v(t1)}, {v(t2)}")
        if alay == 'o':
            assert TP == 128 and PA == 4
            a(f"s_mul_i32 s3, s28, {BM*lda}")
            a("s_lshl_b32 s46, s30, 12")
            a("s_add_u32 s3, s3, s46")
            a(f"v_lshl_add_u32 {v(vA[0])}, v1, 4, s3")
            a(f"v_mov_b32 {v(t3)}, {v(vA[0])}")
        elif alay:
            assert TP == 128 and PA == 4
            rs = 64
            a(f"v_lshrrev_b32 {v(t3)}, 2, {v(t1)}")
            a(f"v_lshlrev_b32 {v(t3)}, 13, {v(t3)}")
            a(f"v_and_b32 {v(t1)}, 3, {v(t1)}")
            a(f"v_lshl_add_u32 {v(t3)}, {v(t1)}, 4, {v(t3)}")
            a(f"v_lshl_add_u32 {v(t3)}, {v(t0)}, 6, {v(t3)}")
            a(f"s_mul_i32 s3, s28, {BM*lda}")
            a("s_lshl_b32 s46, s30, 11")
            a("s_add_u32 s3, s3, s46")
            a(f"v_add_u32 {v(vA[0])}, s3, {v(t3)}")
            a(f"v_xor_b32 {v(t3)}, 0x2000, {v(vA[0])}")
        else:
            a(f"v_mul_u32_u24 {v(t3)}, {rs}, {v(t0)}")
            a(f"v_lshl_add_u32 {v(t3)}, {v(t1)}, 4, {v(t3)}")
            a(f"s_mul_i32 s3, s28, {BM*lda}")
            a(f"s_mul_i32 s46, s30, {PA*8*rs}")
            a("s_add_u32 s3, s3, s46")
            a(f"v_add_u32 {v(vA[0])}, s3, {v(t3)}")
            a(f"v_xor_b32 {v(t3)}, 64, {v(vA[0])}")
        a(f"v_add_u32 {v(vA[1])}, {8*rs}, {v(t3)}")
        for i in range(2, PA):
            a(f"v_add_u32 {v(vA[i])}, {16*rs}, {v(vA[i-2])}")
        if alay == 'o':
            a(f"v_lshrrev_b32 {v(t3)}, 5, v1")
            a(f"v_and_b32 {v(t0)}, 3, {v(t0)}")
            a(f"v_lshl_add_u32 {v(t0)}, {v(t3)}, 3, {v(t0)}")
        a(f"s_mul_i32 s31, s30, {PA*1024}")
        a("s_waitcnt lgkmcnt(0)")
        srd(a, 4, 58, a_off, M * lda)
        stamp(1)
        for i in range(PA):
            a(f"s_add_u32 m0, s31, {i*1024}")
            if i == 0: a(f"s_mul_i32 s32, s30, {PB*1024}")
            elif i == 1: a(f"s_add_u32 s32, s32, {ABYTES}")
            elif i == 2: a(f"s_mul_i32 s3, s29, {(K//2)*1024 if wt7 else BN*2*(K if BTILE else 1)}")
            elif i == 3: a(f"s_mul_i32 s46, s30, {8192 if wt7 else 16*NW2}")
            else: a("s_nop 0")
            if not fz: a(f"buffer_load_dwordx4 {v(vA[i])}, s[4:7], 0 offen lds")
        a("s_add_u32 s3, s3, s46")
        srd(a, 8, 26, w_off or 0, WBYTES)
        if c3 is not None:
            srd(a, 50, 24, c3, 2 * K * 256)
            a("s_lshr_b32 s47, s29, 3")
            a(f"s_mul_i32 s47, s47, {K*256}")
            a(f"s_mul_i32 s46, s30, {16*256}")
            a("s_add_u32 s47, s47, s46")
            a("s_and_b32 s46, s29, 7")
            a("s_cmp_eq_u32 s46, 3")
            a("s_cselect_b32 s3, s47, s3")
            for i in range(3): a(f"s_cselect_b32 s{8+i}, s{50+i}, s{8+i}")
            assert NW2 == 2048
            a("s_cselect_b32 s55, 8, 11")
            a("s_lshl_b32 s54, 1, s55")
            a(f"s_lshl_b32 s46, {4 if alay == 'o' else 8}, s55")
            a("s_lshl_b32 s55, 64, s55")
        if RB == 448:
            a(f"s_mov_b32 s47, {((1 << 32) + 27) // 28}")
            for i in range(PB):
                a(f"v_add_u32 {v(t1)}, {i*64}, v1")
                a(f"v_mul_hi_u32 {v(t0)}, {v(t1)}, s47")
                a(f"v_mul_u32_u24 {v(t2)}, 28, {v(t0)}")
                a(f"v_sub_u32 {v(t1)}, {v(t1)}, {v(t2)}")
                a(f"v_bfe_u32 {v(t2)}, {v(t0)}, 3, 1")
                a(f"v_lshlrev_b32 {v(t2)}, 1, {v(t2)}")
                a(f"v_xor_b32 {v(t1)}, {v(t1)}, {v(t2)}")
                if wt7:
                    a(f"v_and_b32 {v(t2)}, 1, {v(t0)}")
                    a(f"v_mad_u32_u24 {v(t1)}, {v(t2)}, 28, {v(t1)}")
                    a(f"v_cmp_le_u32 vcc, 24, {v(t1)}")
                    a(f"v_lshrrev_b32 {v(t0)}, 1, {v(t0)}")
                    a(f"v_lshlrev_b32 {v(t0)}, 10, {v(t0)}")
                    a(f"v_add_u32 {v(t2)}, 8, {v(t1)}")
                    a(f"v_cndmask_b32 {v(t1)}, {v(t1)}, {v(t2)}, vcc")
                else:
                    a(f"v_mul_u32_u24 {v(t0)}, {NW2}, {v(t0)}")
                a(f"v_lshl_add_u32 {v(t0)}, {v(t1)}, 4, {v(t0)}")
                a(f"s_add_u32 m0, s32, {i*1024}")
                a(f"v_add_u32 {v(vB[i])}, s3, {v(t0)}")
                a(f"buffer_load_dwordx4 {v(vB[i])}, s[8:11], 0 offen lds")
        else:
            assert PB == 2
            a(f"v_bfe_u32 {v(t1)}, v1, 4, 1")
            a(f"v_lshlrev_b32 {v(t1)}, 1, {v(t1)}")
            a(f"v_xor_b32 {v(t1)}, {v(t1)}, {v(t2)}")
            a(f"v_mul_u32_u24 {v(t0)}, {'s54' if c3 is not None else NW2}, {v(t0)}")
            a(f"v_lshl_add_u32 {v(t0)}, {v(t1)}, 4, {v(t0)}")
            a("s_mov_b32 m0, s32")
            a(f"v_add_u32 {v(vB[0])}, s3, {v(t0)}")
            a(f"buffer_load_dwordx4 {v(vB[0])}, s[8:11], 0 offen lds")
            a(f"v_xor_b32 {v(t0)}, 64, {v(vB[0])}")
            a("s_add_u32 m0, s32, 1024")
            a(f"v_add_u32 {v(vB[1])}, {'s46' if c3 is not None else (4 if alay == 'o' else 8)*NW2}, {v(t0)}")
            a(f"buffer_load_dwordx4 {v(vB[1])}, s[8:11], 0 offen lds")
        a(f"s_mov_b32 s40, {ASTEP}")
        a(f"s_mov_b32 s41, {'s55' if c3 is not None else 32768 if wt7 else BK*NW2}")
        a(f"s_mov_b32 s43, {STAGE}")
        a("s_mov_b32 s42, 0")
    cut1 = len(a.lines)
    a(f"s_mul_i32 s3, s30, {PA*8}")
    a(f"v_lshrrev_b32 {v(t0)}, 3, v1")
    a(f"v_add_u32 {v(t0)}, s3, {v(t0)}")
    a(f"s_mul_i32 s3, s28, {BM}")
    for i in range(PA):
        a(f"v_add_u32 {v(t1)}, {8*i}, {v(t0)}")
        a(f"v_lshrrev_b32 {v(t2)}, 1, {v(t1)}")
        a(f"v_and_b32 {v(t2)}, 7, {v(t2)}")
        a(f"v_and_b32 {v(t3)}, 7, v1")
        a(f"v_xor_b32 {v(t2)}, {v(t2)}, {v(t3)}")
        if ATILE:
            a(f"v_lshlrev_b32 {v(t1)}, {TSH}, {v(t1)}")
            a(f"s_mul_i32 s46, s3, {lda}")
            a(f"v_add_u32 {v(t1)}, s46, {v(t1)}")
        else:
            a(f"v_add_u32 {v(t1)}, s3, {v(t1)}")
            a(f"v_mul_u32_u24 {v(t1)}, {lda}, {v(t1)}")
        a(f"v_lshl_add_u32 {v(vA[i])}, {v(t2)}, 4, {v(t1)}")
    a(f"s_mul_i32 s3, s29, {BN*2*(K if BTILE else 1)}")
    NW2 = BN * 2 if BTILE else N * 2
    if RB == 448:
        a(f"s_mov_b32 s47, {((1 << 32) + 27) // 28}")
        for i in range(PB):
            a(f"s_mul_i32 s46, s30, {PB*64}")
            a(f"s_add_u32 s46, s46, {i*64}")
            a(f"v_add_u32 {v(t1)}, s46, v1")
            a(f"v_mul_hi_u32 {v(t0)}, {v(t1)}, s47")
            a(f"v_mul_u32_u24 {v(t2)}, 28, {v(t0)}")
            a(f"v_sub_u32 {v(t1)}, {v(t1)}, {v(t2)}")
            a(f"v_bfe_u32 {v(t2)}, {v(t0)}, 3, 1")
            a(f"v_lshlrev_b32 {v(t2)}, 1, {v(t2)}")
            a(f"v_xor_b32 {v(t1)}, {v(t1)}, {v(t2)}")
            a(f"v_mul_u32_u24 {v(t0)}, {NW2}, {v(t0)}")
            a(f"v_lshl_add_u32 {v(t0)}, {v(t1)}, 4, {v(t0)}")
            a(f"v_add_u32 {v(vB[i])}, s3, {v(t0)}")
    else:
      CPR = RB // 16
      lg_cpr = int(math.log2(CPR))
      RPP = 1024 // RB
      PPB = RB // 16
      lg_ppb = int(math.log2(PPB))
      for i in range(PB):
        a(f"s_mul_i32 s46, s30, {PB}")
        a(f"s_add_u32 s46, s46, {i}")
        a(f"s_lshr_b32 s47, s46, {lg_ppb}")
        a(f"s_and_b32 s46, s46, {PPB-1}")
        a(f"s_mul_i32 s46, s46, {RPP}")
        a(f"s_mul_i32 s47, s47, {RB}")
        a("s_add_u32 s47, s47, s3")
        a(f"v_lshrrev_b32 {v(t0)}, {lg_cpr}, v1")
        a(f"v_add_u32 {v(t0)}, s46, {v(t0)}")
        a(f"v_and_b32 {v(t1)}, {CPR-1}, v1")
        if RB == 256:
            a(f"v_and_b32 {v(t2)}, 3, {v(t0)}")
            a(f"v_bfe_u32 {v(t3)}, {v(t0)}, 3, 1")
            a(f"v_lshl_add_u32 {v(t2)}, {v(t3)}, 2, {v(t2)}")
        elif RB == 128:
            a(f"v_bfe_u32 {v(t2)}, {v(t0)}, 1, 1")
            a(f"v_bfe_u32 {v(t3)}, {v(t0)}, 3, 1")
            a(f"v_lshl_add_u32 {v(t2)}, {v(t3)}, 1, {v(t2)}")
        elif RB == 64:
            a(f"v_bfe_u32 {v(t2)}, {v(t0)}, 3, 1")
        else:
            a(f"v_mov_b32 {v(t2)}, 0")
        a(f"v_lshlrev_b32 {v(t2)}, 1, {v(t2)}")
        a(f"v_xor_b32 {v(t1)}, {v(t1)}, {v(t2)}")
        a(f"v_mul_u32_u24 {v(t0)}, {NW2}, {v(t0)}")
        a(f"v_lshl_add_u32 {v(t0)}, {v(t1)}, 4, {v(t0)}")
        a(f"v_add_u32 {v(vB[i])}, s47, {v(t0)}")
    a(f"s_mul_i32 s31, s30, {PA*1024}")
    a(f"s_mul_i32 s32, s30, {PB*1024}")
    a(f"s_add_u32 s32, s32, {ABYTES}")
    a("s_mov_b32 s40, 0")
    a("s_mov_b32 s41, 0")
    a("s_mov_b32 s43, 0")
    a("s_mov_b32 s42, 0")
    if FS: del a.lines[cut1:]
    assert FS or (c3 is None and not wt7 and not alay)
    if not (FS and not pre): build_srds(FS)
    if zero_flags:
        lz = a.newlabel("L_nz")
        a("s_cmp_lg_u32 s2, 0")
        a(f"s_cbranch_scc1 {lz}")
        srd(a, 92, 24, WS_FLAG, 512)
        a(f"v_lshlrev_b32 {v(t0)}, 3, v1")
        a("v_mov_b32 v44, 0")
        a("v_mov_b32 v45, 0")
        a(f"buffer_store_dwordx2 v[44:45], {v(t0)}, s[92:95], 0 offen")
        a.label(lz)
    if splitk:
        a(f"s_mul_i32 s40, s92, {NSLO*ASTEP}")
        a(f"s_mul_i32 s41, s92, {NSLO*BK*NW2}")
        lab_lpass = a.newlabel("L_lpass")
        a.label(lab_lpass)

    def dma():
        if 'nodma' in EXP: return
        a("s_add_u32 s33, s43, s31")
        for i in range(PA):
            a(f"s_add_u32 m0, s33, {i*1024}")
            a("s_nop 0")
            a(f"buffer_load_dwordx4 {v(vA[i])}, s[4:7], s40 offen lds")
        a("s_add_u32 s33, s43, s32")
        for i in range(PB):
            a(f"s_add_u32 m0, s33, {i*1024}")
            a("s_nop 0")
            a(f"buffer_load_dwordx4 {v(vB[i])}, s[8:11], s41 offen lds")
        a(f"s_add_u32 s40, s40, {ASTEP}")
        a(f"s_add_u32 s41, s41, {'s55' if c3 is not None else 32768 if wt7 else BK*NW2}")
        if 'kwrap' in EXP:
            KW = int(os.environ.get('KW', '8'))
            a(f"s_cmp_ge_u32 s40, {KW*ASTEP}")
            a("s_cselect_b32 s40, 0, s40")
            a("s_cselect_b32 s41, 0, s41")
        a(f"s_add_u32 s43, s43, {STAGE}")
        a(f"s_cmp_ge_u32 s43, {STAGE*NSTAGE}")
        a("s_cselect_b32 s43, 0, s43")

    if not FS: stamp(1)
    def stats_loads():
        a(f"v_and_b32 {v(LSA)}, 15, v1")
        a(f"v_lshlrev_b32 {v(LSA)}, 4, {v(LSA)}")
        a("s_lshl_b32 s3, s30, 8")
        a(f"v_add_u32 {v(LSA)}, s3, {v(LSA)}")
        a(f"v_lshrrev_b32 {v(t1)}, 4, v1")
        a(f"v_lshl_add_u32 {v(t3)}, {v(t1)}, 10, {v(LSA)}")
        a("s_lshl_b32 s3, s28, 14")
        for i in range(4):
            a(f"buffer_load_dwordx4 {v(LSD+4*i,4)}, {v(t3)}, s[84:87], s3 offen")
            a("s_add_u32 s3, s3, 4096")
    if pre and NL:
        if not fz: stats_loads()
    elif pre:
        a(f"v_lshrrev_b32 {v(LSA)}, 1, v1")
        a("s_lshl_b32 s3, s30, 5")
        a(f"v_add_u32 {v(LSA)}, s3, {v(LSA)}")
        a(f"s_mul_i32 s3, s28, {BM}")
        a(f"v_add_u32 {v(t0)}, s3, {v(LSA)}")
        a(f"v_lshlrev_b32 {v(t0)}, 7, {v(t0)}")
        a(f"v_and_b32 {v(t1)}, 1, v1")
        a(f"v_lshl_add_u32 {v(t0)}, {v(t1)}, 6, {v(t0)}")
        for i in range(4):
            a(f"buffer_load_dwordx4 {v(LSD+4*i,4)}, {v(t0)}, s[84:87], 0 offen offset:{16*i}")
    if st_bias:
        a(f"v_lshlrev_b32 {v(t0)}, 4, v1")
        a(f"s_mul_i32 s3, s29, {BN*2}")
        a(f"s_mov_b32 m0, {EPI}")
        a("s_nop 0")
        a(f"buffer_load_dwordx4 {v(t0)}, s[20:23], s3 offen lds")
        a(f"s_mul_i32 s3, s29, {BN*4}")
        a(f"s_mul_i32 s46, s30, {4*N*4}")
        a("s_add_u32 s3, s3, s46")
        for g_ in range(4):
            a(f"buffer_load_dwordx4 {v(LWD+4*g_,4)}, {v(t0)}, s[88:91], s3 offen")
            a(f"s_add_u32 s3, s3, {N*4}")
    if fz:
        for st_ in range(1, NSTAGE - 1):
            for i in range(PB):
                a(f"s_add_u32 m0, s32, {st_*STAGE + i*1024}")
                a("s_nop 0")
                a(f"buffer_load_dwordx4 {v(vB[i])}, s[8:11], s41 offen lds")
            a(f"s_add_u32 s41, s41, {'s55' if c3 is not None else BK*NW2}")
        stamp(4, True)
        a("s_barrier")
        for st_ in range(NSTAGE - 1):
            for i in range(PA):
                a(f"s_add_u32 m0, s31, {st_*STAGE + i*1024}")
                a(f"s_mov_b32 s40, {st_*ASTEP}")
                a(f"buffer_load_dwordx4 {v(vA[i])}, s[4:7], s40 offen lds")
        a(f"s_mov_b32 s40, {(NSTAGE-1)*ASTEP}")
        a(f"s_mov_b32 s43, {(NSTAGE-1)*STAGE}")
        if pre: stats_loads()
    for _ in range(0 if fz else NSTAGE - 1 - (1 if FS else 0)):
        dma()
    if FS and not pre: build_srds(True)
    if sp3:
        assert RA * BM == 512 and RBN * BN == 512 and ATILE and TP == 128 and c3 is not None
        D0 = NSTAGE - 1 + sp3
        a("s_lshr_b32 s3, s2, 3")
        a("s_lshl_b32 s3, s3, 2")
        a("s_add_u32 s3, s3, s30")
        a(f"s_and_b32 s46, s28, {-RA & 0xffffffff}")
        a("s_lshr_b32 s47, s3, 4")
        a("s_add_u32 s46, s46, s47")
        a(f"s_mul_i32 s46, s46, {BM*lda}")
        a("s_and_b32 s47, s3, 15")
        a("s_lshl_b32 s47, s47, 10")
        a("s_add_u32 s46, s46, s47")
        a(f"s_add_u32 s96, s46, {D0*ASTEP}")
        a("s_add_u32 s98, s96, 384")
        a(f"s_add_u32 s46, s3, {D0*64-64}")
        a(f"s_lshr_b32 s47, s29, {int(math.log2(RBN))}")
        a(f"s_mul_i32 s99, s47, {K*256}")
        a("s_lshl_b32 s97, s46, 8")
        a("s_add_u32 s99, s99, s97")
        a("s_lshl_b32 s47, s47, 10")
        a("s_lshl_b32 s46, s46, 11")
        a("s_add_u32 s46, s46, s47")
        srd(a, 76, 26, 0, K * N * 2)
        a("s_cmp_lt_u32 s3, 64")
        a("s_cselect_b32 s96, s96, s46")
        a("s_cselect_b32 s98, s98, s99")
        a("s_cselect_b32 s97, 14, 17")
        a("s_cselect_b32 s99, 14, 14")
        for i in range(4):
            a(f"s_cselect_b32 s{76+i}, s{4+i}, s{76+i}")
            a(f"s_cselect_b32 s{92+i}, s{4+i}, s{50+i}")
        a("s_lshl_b32 s97, 1, s97")
        a("s_lshl_b32 s99, 1, s99")
        assert ASTEP == 1 << 14
    stamp(2)
    if ln and not pre:
        wfrag_addr_common()
        for i in range(NPL):
            a(f"s_mul_i32 s46, s30, {NPL}")
            a(f"s_add_u32 s46, s46, {i}")
            a(f"s_min_u32 s46, s46, {BN//16-1}")
            wfrag_addr(LCW + i)
        for i in range(4):
            a(f"v_mov_b32 {v(LONE+i)}, 0x3f803f80")
        for i in range(16):
            a(f"v_mov_b32 {v(LMS+i)}, 0")
        a(f"v_and_b32 {v(t0)}, 15, v1")
        a("s_lshl_b32 s3, s30, 5")
        a(f"v_add_u32 {v(t0)}, s3, {v(t0)}")
        a(f"v_lshlrev_b32 {v(t0)}, 7, {v(t0)}")
        a(f"v_lshrrev_b32 {v(t1)}, 4, v1")
        a(f"v_bfe_u32 {v(t2)}, v1, 1, 3")
        a(f"v_xor_b32 {v(t3)}, {v(t1)}, {v(t2)}")
        a(f"v_lshl_add_u32 {v(LSA)}, {v(t3)}, 4, {v(t0)}")
        a(f"v_xor_b32 {v(t3)}, 4, {v(t3)}")
        a(f"v_lshl_add_u32 {v(LSA+1)}, {v(t3)}, 4, {v(t0)}")
        for i in range(4 * NPL):
            a(f"v_mov_b32 {v(LCS+i)}, 0")

    def stats_reads():
        for i in range(2):
            a(f"v_add_u32 {v(LSC+i)}, s42, {v(LSA+i)}")
        for i in range(NPL):
            a(f"v_add_u32 {v(LCC+i)}, s42, {v(LCW+i)}")
        a(f"s_add_u32 s42, s42, {STAGE}")
        a(f"s_cmp_ge_u32 s42, {STAGE*NSTAGE}")
        a("s_cselect_b32 s42, 0, s42")
        for q in range(2):
            for kk in range(2):
                a(f"ds_read_b128 {v(LSD+8*q+4*kk,4)}, {v(LSC+kk)} offset:{2048*q}")
        for i in range(NPL):
            for kk in range(2):
                for rd in range(2):
                    a(f"ds_read_b64_tr_b16 {v(LWD+8*i+4*kk+2*rd,2)}, {v(LCC+i)} offset:{kk*32*RB+rd*4*RB}")

    def stats_math():
        a("s_waitcnt lgkmcnt(0)")
        for i in range(NPL):
            for kk in range(2):
                a(f"v_mfma_f32_16x16x32_bf16 {v(LCS+4*i,4)}, {v(LWD+8*i+4*kk,4)}, {v(LONE,4)}, {v(LCS+4*i,4)}")
        for kk in range(2):
            for q in range(2):
                d = v(LSD + 8 * q + 4 * kk, 4)
                a(f"v_mfma_f32_16x16x32_bf16 {v(LMS+8*q,4)}, {d}, {v(LONE,4)}, {v(LMS+8*q,4)}")
                a(f"v_mfma_f32_16x16x32_bf16 {v(LMS+8*q+4,4)}, {d}, {d}, {v(LMS+8*q+4,4)}")

    nloop = NS - NSTAGE + 1
    if fz:
        for j in range(NSTAGE - 2):
            a(f"s_waitcnt vmcnt({(NSTAGE-2-j)*PA + j*P + (4 if pre else 0)})")
            a("s_barrier")
            dma()
            nloop -= 1
    if splitk: a(f"s_sub_u32 s48, s93, {NSTAGE-1}")
    else: a(f"s_mov_b32 s48, {nloop}")
    lloop = a.newlabel("L_lloop")
    LF, LRA, LCA, LCV, LFT = 44, 52, 53, 54, 55
    if FL:
        lfirst = a.newlabel("L_lfirst")
        a("s_lshl_b32 s3, s30, 8")
        a(f"s_add_u32 s3, s3, {FLG}")
        a(f"v_lshl_add_u32 {v(LRA)}, v1, 2, s3")
        a(f"v_and_b32 {v(LCA)}, 3, v1")
        a(f"v_lshlrev_b32 {v(LCA)}, 8, {v(LCA)}")
        a(f"v_lshl_add_u32 {v(LCA)}, v1, 2, {v(LCA)}")
        a(f"v_add_u32 {v(LCA)}, {FLG+1024}, {v(LCA)}")
        a(f"v_mov_b32 {v(LCV)}, 1")
        a(f"ds_write_b32 {v(LRA)}, {v(LCV)}")
        a(f"s_waitcnt vmcnt({(NSTAGE-2)*P}) lgkmcnt(0)")
        a("s_barrier")
        a(f"s_branch {lfirst}")
        a.label(lloop)
        a(f"v_add_u32 {v(LFT)}, 1, {v(LCV)}")
        a(f"s_waitcnt vmcnt({(NSTAGE-2)*P})")
        a(f"ds_write_b32 {v(LRA)}, {v(LFT)}")
        lpl = a.newlabel("L_lpoll"); lp1 = a.newlabel("L_lpoll1")
        a(f"s_branch {lp1}")
        a.label(lpl)
        if SLL: a(f"s_sleep {SLL}")
        a.label(lp1)
        a(f"ds_read_b32 {v(LF)}, {v(LCA)}")
        a("s_waitcnt lgkmcnt(0)")
        a(f"v_cmp_gt_u32 vcc, {v(LCV)}, {v(LF)}")
        a(f"s_cbranch_vccnz {lpl}")
        a(f"v_mov_b32 {v(LCV)}, {v(LFT)}")
        a.label(lfirst)
    else:
        a.label(lloop)
        a(f"s_waitcnt vmcnt({(NSTAGE-2)*P})")
        a("s_barrier")
    if ln and not pre: stats_reads()
    dma()
    if sp3:
        lsk = a.newlabel("L_sp3")
        a(f"s_cmp_le_u32 s48, {sp3}")
        a(f"s_cbranch_scc1 {lsk}")
        for i in range(8):
            if i == 3: a("s_buffer_load_dwordx2 s[100:101], s[92:95], s98 offset:60")
            else: a(f"s_buffer_load_dwordx2 s[100:101], s[76:79], s96 offset:{128*i+60}")
        a("s_add_u32 s96, s96, s97")
        a("s_add_u32 s98, s98, s99")
        a.label(lsk)
    if ln and not pre: stats_math()
    a("s_sub_u32 s48, s48, 1")
    a("s_cmp_lg_u32 s48, 0")
    a(f"s_cbranch_scc1 {lloop}")
    if endpf:
        e_arg, e_bytes, e_lo, e_n = endpf
        a(f"s_load_dwordx2 s[94:95], s[0:1], {ARG[e_arg]}")
        a("s_lshl_b32 s3, s2, 2")
        a("s_add_u32 s3, s3, s30")
        a(f"s_mul_i32 s3, s3, {e_n*128}")
        if e_lo: a(f"s_add_u32 s3, s3, {e_lo}")
        a(f"v_lshlrev_b32 {v(W2A)}, 7, v1")
        a("s_waitcnt lgkmcnt(0)")
        srd(a, 76, 94, 0, e_bytes)
        a(f"s_mov_b64 exec, {hex((1 << e_n) - 1)}" if e_n <= 32 else f"s_mov_b32 exec_hi, {hex((1 << (e_n - 32)) - 1)}")
        a(f"buffer_load_dword {v(W2S)}, {v(W2A)}, s[76:79], s3 offen")
        a("s_mov_b64 exec, -1")
        NEX += 1
    if pre and NL:
        for i in range(1, 4):
            for j in range(2):
                a(f"v_pk_add_f32 {v(LSD+2*j,2)}, {v(LSD+2*j,2)}, {v(LSD+4*i+2*j,2)}")
        for x in (16, 32):
            a(f"v_xor_b32 {v(t0)}, {x}, v1")
            a(f"v_lshlrev_b32 {v(t0)}, 2, {v(t0)}")
            for j in range(4):
                a(f"ds_bpermute_b32 {v(LSD+4+j)}, {v(t0)}, {v(LSD+j)}")
            a("s_waitcnt lgkmcnt(0)")
            for j in range(2):
                a(f"v_pk_add_f32 {v(LSD+2*j,2)}, {v(LSD+2*j,2)}, {v(LSD+4+2*j,2)}")
        for q in range(2):
            sm, sq, r1, r2 = LSD + 2 * q, LSD + 2 * q + 1, LSD + 4 + 2 * q, LSD + 5 + 2 * q
            a(f"v_mul_f32 {v(sm)}, {hex_f32(1.0/K)}, {v(sm)}")
            a(f"v_mul_f32 {v(sq)}, {hex_f32(1.0/K)}, {v(sq)}")
            a(f"v_fma_f32 {v(sq)}, -{v(sm)}, {v(sm)}, {v(sq)}")
            a(f"v_max_f32 {v(sq)}, 0, {v(sq)}")
            a(f"v_add_f32 {v(r1)}, {hex_f32(1e-5)}, {v(sq)}")
            a(f"v_rsq_f32 {v(r1)}, {v(r1)}")
            a("s_nop 0")
            assert ln == 'double'
            a(f"v_mul_f32 {v(r2)}, {v(r1)}, {v(r1)}")
            a(f"v_mul_f32 {v(r2)}, {v(r2)}, {v(sq)}")
            a(f"v_add_f32 {v(r2)}, {hex_f32(1e-5)}, {v(r2)}")
            a(f"v_rsq_f32 {v(r2)}, {v(r2)}")
            a("s_nop 0")
            a(f"v_mul_f32 {v(r1)}, {v(r1)}, {v(r2)}")
            a(f"v_mul_f32 {v(r2)}, {v(sm)}, {v(r1)}")
            a(f"v_sub_f32 {v(r2)}, 0, {v(r2)}")
        a(f"v_add_u32 {v(LSC)}, {RTAB}, {v(LSA)}")
        a(f"ds_write_b128 {v(LSC)}, {v(LSD+4,4)}")
    if pre and not NL:
        for i in range(1, 8):
            a(f"v_add_f32 {v(LSD)}, {v(LSD)}, {v(LSD+2*i)}")
            a(f"v_add_f32 {v(LSD+1)}, {v(LSD+1)}, {v(LSD+2*i+1)}")
        a("s_nop 1")
        for k_ in range(2):
            a(f"v_add_f32_dpp {v(LST+k_)}, {v(LSD+k_)}, {v(LSD+k_)} quad_perm:[1,0,3,2] row_mask:0xf bank_mask:0xf")
        sm, sq, r1, r2 = LST, LST + 1, LSD, LSD + 1
        a(f"v_mul_f32 {v(sm)}, {hex_f32(1.0/K)}, {v(sm)}")
        a(f"v_mul_f32 {v(sq)}, {hex_f32(1.0/K)}, {v(sq)}")
        a(f"v_fma_f32 {v(sq)}, -{v(sm)}, {v(sm)}, {v(sq)}")
        a(f"v_max_f32 {v(sq)}, 0, {v(sq)}")
        a(f"v_add_f32 {v(r1)}, {hex_f32(1e-5)}, {v(sq)}")
        a(f"v_rsq_f32 {v(r1)}, {v(r1)}")
        a("s_nop 0")
        if ln == 'double':
            a(f"v_mul_f32 {v(r2)}, {v(r1)}, {v(r1)}")
            a(f"v_mul_f32 {v(r2)}, {v(r2)}, {v(sq)}")
            a(f"v_add_f32 {v(r2)}, {hex_f32(1e-5)}, {v(r2)}")
            a(f"v_rsq_f32 {v(r2)}, {v(r2)}")
            a("s_nop 0")
            a(f"v_mul_f32 {v(r1)}, {v(r1)}, {v(r2)}")
        a(f"v_mul_f32 {v(r2)}, {v(sm)}, {v(r1)}")
        a(f"v_sub_f32 {v(r2)}, 0, {v(r2)}")
        a(f"v_lshlrev_b32 {v(LSC)}, 3, {v(LSA)}")
        a(f"v_add_u32 {v(LSC)}, {RTAB}, {v(LSC)}")
        a(f"ds_write_b64 {v(LSC)}, {v(LSD,2)}")
    if pre:
        for g_ in range(1, 4):
            for j in range(2):
                a(f"v_pk_add_f32 {v(LWD+2*j,2)}, {v(LWD+2*j,2)}, {v(LWD+4*g_+2*j,2)}")
        a(f"v_lshlrev_b32 {v(t0)}, 4, v1")
        a(f"v_add_u32 {v(t0)}, {EPI+3072}, {v(t0)}")
        a("s_lshl_b32 s3, s30, 10")
        a(f"v_add_u32 {v(t1)}, s3, {v(t0)}")
        a(f"ds_write_b128 {v(t1)}, {v(LWD,4)}")
        a("s_waitcnt lgkmcnt(0)")
    if st_res:
        npc = BM * BN * 2 // 4096
        rpp = 1024 // (BN * 2)
        lpr = BN * 2 // 16
        a(f"v_lshrrev_b32 {v(t0)}, {int(math.log2(lpr))}, v1")
        RP = TP if rtile else N * 2
        a(f"s_mul_i32 s3, s30, {npc*rpp}")
        if not rtile:
            a(f"s_mul_i32 s46, s28, {BM}")
            a("s_add_u32 s3, s3, s46")
        a(f"v_add_u32 {v(t0)}, s3, {v(t0)}")
        a(f"v_mul_u32_u24 {v(t0)}, {RP}, {v(t0)}")
        a(f"v_and_b32 {v(t1)}, {lpr-1}, v1")
        a(f"v_lshl_add_u32 {v(t0)}, {v(t1)}, 4, {v(t0)}")
        if rtile:
            assert BN == 64
            a(f"s_mul_i32 s3, s29, {BM*TP}")
            a(f"s_mul_i32 s46, s28, {BM*N*2*TX}")
            a("s_add_u32 s3, s3, s46")
        else:
            a(f"s_mul_i32 s3, s29, {BN*2}")
        a(f"v_add_u32 {v(t0)}, s3, {v(t0)}")
        a(f"s_mul_i32 s33, s30, {npc*1024}")
        for i in range(npc):
            a(f"s_add_u32 m0, s33, {EPI + i*1024}")
            a(f"s_mov_b32 s3, {i*rpp*RP}")
            a(f"buffer_load_dwordx4 {v(t0)}, s[16:19], s3 offen lds")
    for j in range(NS - NSTAGE + 1, NS):
        if FL: a(f"v_mov_b32 {v(LCV)}, {j+1 if j < NS-1 else NS+1}")
        a(f"s_waitcnt vmcnt({(NS-1-j)*P + NEX})")
        if FL:
            a(f"ds_write_b32 {v(LRA)}, {v(LCV)}")
            a("s_nop 1")
            if j == NS - 1:
                stamp(3)
                a("s_barrier")
        else: a("s_barrier")
        if pre and j == (NS - 1 if FL else NS - NSTAGE + 1):
            assert NSTAGE >= 3
            lcs = a.newlabel("L_lcs")
            a("s_cmp_lg_u32 s30, 0")
            a(f"s_cbranch_scc1 {lcs}")
            for g_ in range(4):
                a(f"ds_read_b128 {v(LWD+4*g_,4)}, {v(t0)} offset:{1024*g_}")
            a("s_waitcnt lgkmcnt(0)")
            for g_ in range(1, 4):
                for j_ in range(2):
                    a(f"v_pk_add_f32 {v(LWD+2*j_,2)}, {v(LWD+2*j_,2)}, {v(LWD+4*g_+2*j_,2)}")
            a(f"v_subrev_u32 {v(t0)}, {EPI+3072-CTAB}, {v(t0)}")
            a(f"ds_write_b128 {v(t0)}, {v(LWD,4)}")
            a("s_waitcnt lgkmcnt(0)")
            a.label(lcs)
        if ln and not pre:
            stats_reads()
            stats_math()
    if not FL: stamp(3)
    if epi2 and not FL: a("s_barrier")
    if w2copy:
        a("s_lshl_b32 s92, s2, 2")
        a("s_add_u32 s92, s92, s30")
        a(f"v_lshrrev_b32 {v(t0)}, 3, v1")
        a(f"v_and_b32 {v(t1)}, 7, v1")
        a(f"v_lshlrev_b32 {v(t1)}, 4, {v(t1)}")
        a(f"v_lshl_add_u32 {v(W2A)}, {v(t0)}, 11, {v(t1)}")
        a("s_lshr_b32 s3, s92, 6")
        a("s_lshl_b32 s3, s3, 7")
        a("s_and_b32 s46, s92, 63")
        a(f"s_mul_i32 s46, s46, {56*D*2}")
        a("s_add_u32 s3, s3, s46")
        srd(a, 88, 94, 0, F * D * 2)
        for j in range(7):
            a(f"buffer_load_dwordx4 {v(W2S+4*j,4)}, {v(W2A)}, s[88:91], s3 offen")
            a(f"s_add_u32 s3, s3, {8*D*2}")
        def w2store(extra):
            srd(a, 88, 24, WS_W2T, F * D * 2)
            a("s_mul_i32 s3, s92, 7168")
            a(f"v_lshlrev_b32 {v(W2A)}, 4, v1")
            for j in range(7):
                if j == 4: a("s_add_u32 s3, s3, 4096")
                a(f"s_waitcnt vmcnt({6+extra})")
                a(f"buffer_store_dwordx4 {v(W2S+4*j,4)}, {v(W2A)}, s[88:91], s3 offen offset:{1024*(j&3)}")
        if not epi2: w2store(0)
    if ln and not pre:
        a("s_nop 7")
        a(f"v_and_b32 {v(t0)}, 3, v1")
        for r in range(1, 4):
            a(f"v_cmp_eq_u32 s[{48+2*r}:{49+2*r}], {r}, {v(t0)}")
        X0 = LSD
        for i in range(2):
            sm, sq = LST + 2 * i, LST + 2 * i + 1
            r1, r2 = X0 + 2 * i, X0 + 2 * i + 1
            for dst, src in ((sm, LMS + 8 * i), (sq, LMS + 8 * i + 4)):
                a(f"v_cndmask_b32 {v(dst)}, {v(src)}, {v(src+1)}, s[50:51]")
                a(f"v_cndmask_b32 {v(dst)}, {v(dst)}, {v(src+2)}, s[52:53]")
                a(f"v_cndmask_b32 {v(dst)}, {v(dst)}, {v(src+3)}, s[54:55]")
            a(f"v_mul_f32 {v(sm)}, {hex_f32(1.0/K)}, {v(sm)}")
            a(f"v_mul_f32 {v(sq)}, {hex_f32(1.0/K)}, {v(sq)}")
            a(f"v_fma_f32 {v(sq)}, -{v(sm)}, {v(sm)}, {v(sq)}")
            a(f"v_max_f32 {v(sq)}, 0, {v(sq)}")
            a(f"v_add_f32 {v(r1)}, {hex_f32(1e-5)}, {v(sq)}")
            a(f"v_rsq_f32 {v(r1)}, {v(r1)}")
            a("s_nop 0")
            assert ln == 'single'
            a(f"v_mul_f32 {v(r2)}, {v(sm)}, {v(r1)}")
            a(f"v_sub_f32 {v(r2)}, 0, {v(r2)}")
        a(f"v_lshrrev_b32 {v(LSC)}, 7, {v(LSA)}")
        a(f"v_lshlrev_b32 {v(LSC)}, 3, {v(LSC)}")
        a(f"v_add_u32 {v(LSC)}, {RTAB}, {v(LSC)}")
        a(f"v_lshrrev_b32 {v(t0)}, 4, v1")
        a(f"v_lshlrev_b32 {v(t0)}, 4, {v(t0)}")
        for i in range(NPL):
            a(f"s_mul_i32 s46, s30, {NPL}")
            a(f"s_add_u32 s46, s46, {i}")
            a(f"s_min_u32 s46, s46, {BN//16-1}")
            a("s_lshl_b32 s46, s46, 6")
            a(f"s_add_u32 s46, s46, {CTAB}")
            a(f"v_add_u32 {v(LCC+i)}, s46, {v(t0)}")
    if ln and not pre:
        a("s_mov_b32 exec_lo, 0x00f0000f")
        a("s_mov_b32 exec_hi, 0xf0000f00")
        for i in range(2):
            a(f"ds_write_b64 {v(LSC)}, {v(LSD+2*i,2)} offset:{128*i}")
        a("s_mov_b64 exec, -1")
        for i in range(NPL):
            a(f"ds_write_b128 {v(LCC+i)}, {v(LCS+4*i,4)}")
        a("s_waitcnt lgkmcnt(0)")
        a("s_barrier")
    if st_res: a("s_waitcnt vmcnt(0)")
    if splitk:
        lhi = a.newlabel("L_lhi"); lepi = a.newlabel("L_lepi")
        a("s_cmp_lg_u32 s92, 0")
        a(f"s_cbranch_scc1 {lhi}")
        a("s_barrier")
        a(f"s_branch {end}")
        a.label(lhi)
        a("s_barrier")
        a("s_cmp_eq_u32 s94, 2")
        a(f"s_cbranch_scc1 {lepi}")
        a(f"v_mov_b32 {v(t1)}, {DONE}")
        a(f"ds_read_b128 {v(44,4)}, {v(t1)}")
        a("s_waitcnt lgkmcnt(0)")
        a("v_and_b32 v44, v44, v45")
        a("v_and_b32 v46, v46, v47")
        a("v_and_b32 v44, v44, v46")
        a("s_nop 0")
        a("v_readfirstlane_b32 s3, v44")
        a("s_nop 3")
        a("s_cmp_eq_u32 s3, 1")
        a(f"s_cbranch_scc1 {lepi}")
        a("s_mov_b32 s94, 2")
        a(f"s_mov_b32 s93, {NSLO}")
        a("s_mov_b32 s40, 0"); a("s_mov_b32 s41, 0"); a("s_mov_b32 s43, 0")
        a("s_barrier")
        a(f"s_branch {lab_lpass}")
        a.label(lepi)
    stamp(4)
    a("s_barrier")

    if FS:
        a(f"s_branch {lab_store}")
        seg = a.lines[pos_l0:]
        del a.lines[pos_l0:]
        a.lines[pos_ins:pos_ins] = seg
    a.label(lab_store)
    if epi2:
        CPRW = BN // 8
        assert CPRW == 28 and otile
        vL, vR, vO = 2, 3, 4
        CSr, BFr, Dr, RCr, Gr, Or, K1 = 8, 16, [24, 32], [40, 42], 44, [52, 56], 60
        c2 = 2 * math.log2(math.e)
        k1 = struct.unpack("<I", struct.pack("<f", -0.7978845608 * c2))[0]
        k3 = struct.unpack("<I", struct.pack("<f", -0.7978845608 * 0.044715 * c2))[0]
        a("s_setprio 0")
        if NL:
            a("v_bfe_u32 v5, v1, 2, 1")
            a("v_lshl_add_u32 v5, v5, 3, s49")
            a("v_lshrrev_b32 v6, 3, v1")
            a("v_and_b32 v7, 3, v1")
            a("v_lshl_add_u32 v6, v6, 2, v7")
        else:
            a(f"v_cmp_le_u32 s[46:47], {CPRW}, v1")
            a(f"v_mov_b32 v5, 0")
            a(f"v_cndmask_b32 v5, v5, 1, s[46:47]")
            a(f"v_mul_u32_u24 v6, {CPRW}, v5")
            a(f"v_sub_u32 v6, v1, v6")
            a("s_lshl_b32 s3, s49, 1")
            a("v_add_u32 v5, s3, v5")
        a("s_mov_b32 exec_hi, 0x00ffffff")
        a(f"v_lshlrev_b32 v7, 5, v6")
        a(f"v_add_u32 v7, {CTAB}, v7")
        a(f"ds_read_b128 {v(CSr,4)}, v7")
        a(f"ds_read_b128 {v(CSr+4,4)}, v7 offset:16")
        a(f"v_lshlrev_b32 v7, 4, v6")
        a(f"v_add_u32 v62, {EPI}, v7")
        a(f"ds_read_b128 {v(Gr,4)}, v62")
        a(f"v_mul_u32_u24 {v(vL)}, {FROW}, v5")
        a(f"v_add_u32 {v(vL)}, {v(vL)}, v7")
        a(f"v_lshlrev_b32 {v(vR)}, 3, v5")
        a(f"v_add_u32 {v(vR)}, {RTAB}, {v(vR)}")

        def rd(b):
            a(f"ds_read_b128 {v(Dr[b],4)}, {v(vL)}")
            a(f"ds_read_b128 {v(Dr[b]+4,4)}, {v(vL)} offset:{BN*2}")
            a(f"ds_read_b64 {v(RCr[b],2)}, {v(vR)}")
            a(f"v_add_u32 {v(vL)}, {16*FROW}, {v(vL)}")
            a(f"v_add_u32 {v(vR)}, 128, {v(vR)}")
        rd(0)
        a(f"s_mul_i32 s3, s29, {CPRW}")
        a("v_add_u32 v6, s3, v6")
        if NL:
            a("v_lshrrev_b32 v7, 2, v6")
            a("v_lshlrev_b32 v7, 13, v7")
            a("s_lshl_b32 s3, s49, 7")
            a("v_add_u32 v7, s3, v7")
            a("v_and_b32 v6, 7, v1")
        else:
            a("v_lshrrev_b32 v7, 3, v6")
            a(f"v_lshlrev_b32 v7, {TSH+7}, v7")
            a(f"v_lshl_add_u32 v7, v5, {TSH}, v7")
            a("v_and_b32 v6, 7, v6")
        a(f"v_lshl_add_u32 {v(vO)}, v6, 4, v7")
        a(f"s_mul_i32 s50, s28, {BM*ldo}")
        a(f"s_mov_b32 s52, {k3}"); a(f"s_mov_b32 s53, {k3}")
        a(f"v_mov_b32 {v(K1)}, {k1}"); a(f"v_mov_b32 {v(K1+1)}, {k1}")
        a("s_mov_b32 s56, 1.0"); a("s_mov_b32 s57, 1.0")
        a("s_waitcnt lgkmcnt(3)")
        for j in range(4):
            a(f"v_lshlrev_b32 {v(BFr+2*j)}, 16, {v(Gr+j)}")
            a(f"v_and_b32 {v(BFr+2*j+1)}, 0xffff0000, {v(Gr+j)}")
        stamp(5)
        a(f"s_mov_b32 s48, {BM//32}")
        lp = a.newlabel("L_ep")
        a.label(lp)
        for b in range(2):
            rd(1 - b)
            a("s_waitcnt lgkmcnt(3)")
            d = Dr[b]; rc = v(RCr[b], 2)
            for j in range(4):
                a(f"v_pk_fma_f32 {v(Gr+2*j,2)}, {v(CSr+2*j,2)}, {rc}, {v(BFr+2*j,2)} op_sel:[0,1,0] op_sel_hi:[1,1,1]")
            for j in range(4):
                a(f"v_pk_fma_f32 {v(d+2*j,2)}, {v(d+2*j,2)}, {rc}, {v(Gr+2*j,2)} op_sel:[0,0,0] op_sel_hi:[1,0,1]")
            for j in range(4):
                a(f"v_pk_mul_f32 {v(Gr+2*j,2)}, {v(d+2*j,2)}, {v(d+2*j,2)}")
            for j in range(4):
                a(f"v_pk_fma_f32 {v(Gr+2*j,2)}, {v(Gr+2*j,2)}, s[52:53], {v(K1,2)}")
            for j in range(4):
                a(f"v_pk_mul_f32 {v(Gr+2*j,2)}, {v(Gr+2*j,2)}, {v(d+2*j,2)}")
            for r in range(8):
                a(f"v_exp_f32 {v(Gr+r)}, {v(Gr+r)}")
            a("s_nop 0")
            for j in range(4):
                a(f"v_pk_add_f32 {v(Gr+2*j,2)}, {v(Gr+2*j,2)}, s[56:57]")
            for r in range(8):
                a(f"v_rcp_f32 {v(Gr+r)}, {v(Gr+r)}")
            a("s_nop 0")
            for j in range(4):
                a(f"v_pk_mul_f32 {v(d+2*j,2)}, {v(d+2*j,2)}, {v(Gr+2*j,2)}")
            for j in range(4):
                a(f"v_cvt_pk_bf16_f32 {v(Or[b]+j)}, {v(d+2*j)}, {v(d+2*j+1)}")
            a(f"buffer_store_dwordx4 {v(Or[b],4)}, {v(vO)}, s[12:15], s50 offen {STMOD}")
            a(f"s_add_u32 s50, s50, {1024 if NL else 16*TP}")
        a("s_sub_u32 s48, s48, 1")
        a("s_cmp_lg_u32 s48, 0")
        a(f"s_cbranch_scc1 {lp}")
        a("s_mov_b64 exec, -1")
        a("s_waitcnt lgkmcnt(0)")
        if w2copy:
            lw = a.newlabel("L_nw2")
            a("s_cmp_lt_u32 s49, 4")
            a(f"s_cbranch_scc1 {lw}")
            w2store(BM // 16)
            a.label(lw)
        stamp(6)
        if 'stamp' in EXP and not fz: a("s_waitcnt vmcnt(0)")
        stamp(7)
        stamp_out()
        phase_end()
        a.label(end)
        a("s_endpgm")
        return dict(name=name, grid=ntiles, block=512, lds=lds, desc=kernel_desc(name, max(nvgpr, 168)))
    CPRW = BN // 8
    NIT = BM * CPRW // 512
    assert NIT * 512 == BM * CPRW
    magic = ((1 << 32) + CPRW - 1) // CPRW
    a(f"s_mov_b32 s46, {magic}")
    a(f"s_mul_i32 s3, s49, {NIT*64}")
    a(f"v_add_u32 {v(t0)}, s3, v1")
    a(f"s_mul_i32 s3, s28, {BM*ldo if otile else BM}")
    a(f"s_mul_i32 s47, s29, {CPRW if otile else BN*2}")
    if otile and stats_out:
        a(f"s_mul_i32 s50, s28, {BM*128}")
        a(f"s_lshl_b32 s51, s29, {10 if NL else 3}")
        a("s_add_u32 s50, s50, s51")
    R0 = (vT[7] + 4) // 4 * 4
    RR = R0 + 4 * NIT
    OFF = RR + 4 * NIT
    SOF = OFF + NIT
    GT = (SOF + NIT + 3) // 4 * 4
    assert GT + 10 <= 256
    for it in range(NIT):
        a(f"v_add_u32 {v(t1)}, {it*64}, {v(t0)}")
        a(f"v_mul_hi_u32 {v(t2)}, {v(t1)}, s46")
        a(f"v_mul_u32_u24 {v(t3)}, {CPRW}, {v(t2)}")
        a(f"v_sub_u32 {v(t3)}, {v(t1)}, {v(t3)}")
        a(f"v_mul_u32_u24 {v(t1)}, {CROW}, {v(t2)}")
        a(f"v_lshl_add_u32 {v(t1)}, {v(t3)}, 4, {v(t1)}")
        if CBASE: a(f"v_add_u32 {v(t1)}, {CBASE}, {v(t1)}")
        a(f"ds_read_b128 {v(R0+4*it,4)}, {v(t1)}")
        if not otile: a(f"v_add_u32 {v(t2)}, s3, {v(t2)}")
        if stats_out:
            if otile:
                a(f"v_lshl_add_u32 {v(SOF+it)}, {v(t2)}, {3 if NL else 7}, s50")
            else:
                a(f"v_lshlrev_b32 {v(SOF+it)}, 7, {v(t2)}")
                a(f"v_lshl_add_u32 {v(SOF+it)}, s29, 3, {v(SOF+it)}")
        if otile:
            a(f"v_add_u32 {v(t3)}, s47, {v(t3)}")
            a(f"v_lshrrev_b32 {v(t1)}, 3, {v(t3)}")
            a(f"v_lshlrev_b32 {v(t1)}, {TSH+7}, {v(t1)}")
            a(f"v_lshl_add_u32 {v(t1)}, {v(t2)}, {TSH}, {v(t1)}")
            a(f"v_and_b32 {v(t3)}, 7, {v(t3)}")
            a(f"v_lshl_add_u32 {v(t1)}, {v(t3)}, 4, {v(t1)}")
            a(f"v_add_u32 {v(OFF+it)}, s3, {v(t1)}")
        else:
            a(f"v_mul_u32_u24 {v(t2)}, {ldo}, {v(t2)}")
            a(f"v_lshlrev_b32 {v(t3)}, 4, {v(t3)}")
            a(f"v_add_u32 {v(t3)}, s47, {v(t3)}")
            a(f"v_add_u32 {v(OFF+it)}, {v(t3)}, {v(t2)}")
        if st_res:
            a(f"v_lshlrev_b32 {v(t1)}, 4, {v(t0)}")
            a(f"v_add_u32 {v(t1)}, {EPI + it*1024}, {v(t1)}")
            a(f"ds_read_b128 {v(RR+4*it,4)}, {v(t1)}")
        elif res_arg:
            a(f"buffer_load_dwordx4 {v(RR+4*it,4)}, {v(OFF+it)}, s[16:19], 0 offen")
    a("s_waitcnt vmcnt(0) lgkmcnt(0)" if (res_arg and not st_res) else "s_waitcnt lgkmcnt(0)")
    if DRY: a.dry_exit()
    stamp(5)
    for it in range(NIT):
        c0 = R0 + 4 * it
        if res_arg:
            for j in range(4):
                d = c0 + j
                r = RR + 4 * it + j
                a(f"v_lshlrev_b32 {v(GT)}, 16, {v(d)}")
                a(f"v_lshlrev_b32 {v(GT+1)}, 16, {v(r)}")
                a(f"v_and_b32 {v(GT+2)}, 0xffff0000, {v(d)}")
                a(f"v_and_b32 {v(GT+3)}, 0xffff0000, {v(r)}")
                a(f"v_add_f32 {v(GT)}, {v(GT)}, {v(GT+1)}")
                a(f"v_add_f32 {v(GT+2)}, {v(GT+2)}, {v(GT+3)}")
                a(f"v_cvt_pk_bf16_f32 {v(d)}, {v(GT)}, {v(GT+2)}")
        a(f"buffer_store_dwordx4 {v(c0,4)}, {v(OFF+it)}, s[12:15], 0 offen {STMOD if (ln or STALL or (fz and fz['next'])) else ''}")
        if stats_out:
            assert CPRW == 8
            a(f"v_mov_b32 {v(GT+8)}, 0x3f803f80")
            a(f"v_mov_b32 {v(GT)}, 0")
            a(f"v_mov_b32 {v(GT+1)}, 0")
            for j in range(4):
                a(f"v_dot2_f32_bf16 {v(GT)}, {v(c0+j)}, {v(GT+8)}, {v(GT)}")
                a(f"v_dot2_f32_bf16 {v(GT+1)}, {v(c0+j)}, {v(c0+j)}, {v(GT+1)}")
            a("s_nop 3")
            for q_, mode in enumerate(("quad_perm:[1,0,3,2]", "quad_perm:[2,3,0,1]", "row_half_mirror")):
                src = GT + 2 * (q_ & 1); dst = GT + 2 * ((q_ + 1) & 1)
                for k_ in range(2):
                    a(f"v_add_f32_dpp {v(dst+k_)}, {v(src+k_)}, {v(src+k_)} {mode} row_mask:0xf bank_mask:0xf")
                a("s_nop 1")
            a("s_mov_b32 exec_lo, 0x01010101")
            a("s_mov_b32 exec_hi, 0x01010101")
            a(f"buffer_store_dwordx2 {v(GT+2,2)}, {v(SOF+it)}, s[84:87], 0 offen {'sc0 sc1' if fz else ''}")
            a("s_mov_b64 exec, -1")
    stamp(6)
    if 'stamp' in EXP and not (fz and fz['next']): a("s_waitcnt vmcnt(0)")
    stamp(7)
    stamp_out()
    phase_end()
    a.label(end)
    a("s_endpgm")
    if DRY: a.dry_dispatch()
    return dict(name=name, grid=ntiles, block=512, lds=lds, desc=kernel_desc(name, max(nvgpr, GT + 10, 168)))


def gen_attn(a, name, pf=None, colsum=False):
    import struct
    NQB = S // 32
    ntask = H * NQB
    nwg = ntask // 4
    QKV_ROW = 3 * D * 2
    KLDS = 384 * 64
    lds = 2 * KLDS
    kernel_header(a, name)
    end = a.newlabel("L_end")
    npf = 0
    a(f"s_cmp_ge_u32 s2, {nwg + npf}")
    a(f"s_cbranch_scc1 {end}")
    a(f"s_load_dwordx2 s[24:25], s[0:1], {ARG['ws']}")
    a("v_and_b32 v1, 63, v0")
    a("v_lshrrev_b32 v2, 6, v0")
    a("s_nop 0")
    a("v_readfirstlane_b32 s30, v2")
    a("s_nop 3")
    a("s_lshl_b32 s3, s2, 2")
    a("s_add_u32 s92, s3, s30")
    a("s_and_b32 s28, s2, 31")
    a("s_lshr_b32 s29, s2, 5")
    a("s_lshl_b32 s39, s29, 7")
    a("s_sub_u32 s39, s39, 256")
    a("s_lshl_b32 s3, s30, 5")
    a("s_add_u32 s32, s39, s3")
    a("s_add_u32 s31, s32, 256")
    a("s_lshl_b32 s33, s28, 6")
    a(f"s_add_u32 s35, s33, {2*D*2}")
    a(f"s_add_u32 s36, s33, {D*2}")
    a("v_and_b32 v2, 31, v1")
    a("v_lshrrev_b32 v3, 5, v1")
    a("v_add_u32 v4, s31, v2")
    a(f"v_mul_u32_u24 v4, {QKV_ROW}, v4")
    a("v_lshl_add_u32 v4, v3, 4, v4")
    a("v_add_u32 v4, s33, v4")
    a("s_waitcnt lgkmcnt(0)")
    srd(a, 4, 24, WS_QKV, S * 3 * D * 2)
    srd(a, 8, 24, WS_O, S * D * 2)
    a("v_lshrrev_b32 v5, 2, v1")
    a("v_and_b32 v6, 3, v1")
    a("v_bfe_u32 v7, v1, 4, 2")
    a("v_xor_b32 v7, v7, v6")
    a("s_mul_i32 s3, s30, 96")
    a("s_add_u32 s3, s3, s39")
    a("s_mul_i32 s34, s30, 6144")
    for p in range(6):
        a(f"v_add_u32 v16, {16*p}, v5")
        a("v_add_u32 v16, s3, v16")
        a("v_max_i32 v16, 0, v16")
        a(f"v_mul_u32_u24 v16, {QKV_ROW}, v16")
        a("v_lshl_add_u32 v17, v7, 4, v16")
        a("v_add_u32 v17, s36, v17")
        a(f"s_add_u32 m0, s34, {p*1024}")
        a("v_lshl_add_u32 v16, v6, 4, v16")
        a(f"buffer_load_dwordx4 v17, s[4:7], 0 offen lds")
        a("v_add_u32 v16, s35, v16")
        a(f"s_add_u32 m0, s34, {KLDS + p*1024}")
        a("s_nop 0")
        a(f"buffer_load_dwordx4 v16, s[4:7], 0 offen lds")
    a("buffer_load_dwordx4 v[8:11], v4, s[4:7], 0 offen")
    a("buffer_load_dwordx4 v[12:15], v4, s[4:7], 0 offen offset:32")
    KF = 16
    if colsum:
        a(f"s_load_dwordx2 s[94:95], s[0:1], {ARG['w2']}")
        a(f"s_load_dwordx2 s[40:41], s[0:1], {ARG['wo']}")
        a(f"s_load_dwordx2 s[42:43], s[0:1], {ARG['w1']}")
        a("v_lshlrev_b32 v7, 4, v1")
        a(f"s_mul_i32 s93, s92, {F*D*2//2048}")
        a("s_lshl_b32 s3, s92, 10")
        a("v_add_u32 v16, s93, v7")
        a("v_add_u32 v17, s3, v7")
        a(f"s_mul_hi_u32 s44, s92, {((1 << 32) + 111) // 112}")
        a("s_mul_i32 s3, s44, 112")
        a("s_sub_u32 s45, s92, s3")
        a("s_lshl_b32 s3, s44, 6")
        a("v_lshrrev_b32 v18, 2, v1")
        a("v_add_u32 v18, s3, v18")
        a(f"v_mul_u32_u24 v18, {F*2}, v18")
        a("v_and_b32 v19, 3, v1")
        a("v_lshl_add_u32 v18, v19, 4, v18")
        a("s_lshl_b32 s3, s45, 6")
        a("v_add_u32 v18, s3, v18")
        a("s_waitcnt lgkmcnt(0)")
        npl = 4
        if 'nowpf' in EXP:
            srd(a, 96, 94, 0, F * D * 2)
            for j in range(4):
                a(f"buffer_load_dwordx4 v[240:243], v16, s[96:99], 0 offen offset:{1024*j}")
            srd(a, 96, 40, 0, D * D * 2)
            a("buffer_load_dwordx4 v[240:243], v17, s[96:99], 0 offen")
            npl = 9
        srd(a, 96, 42, 0, D * F * 2)
        for j in range(4):
            a(f"s_mov_b32 s3, {16*j*F*2}")
            a(f"buffer_load_dwordx4 {v(240+4*j,4)}, v18, s[96:99], s3 offen")
    else:
        npl = tail_prefetch(a, 92, 1, pf, 7, 240) if pf else 0
    a("v_bfe_u32 v5, v1, 2, 2")
    a("v_xor_b32 v5, v5, v3")
    a("v_lshlrev_b32 v6, 6, v2")
    a("s_lshl_b32 s34, s30, 11")
    a("v_add_u32 v6, s34, v6")
    a("v_lshl_add_u32 v88, v5, 4, v6")
    a("v_xor_b32 v5, 2, v5")
    a("v_lshl_add_u32 v89, v5, 4, v6")
    a(f"s_add_u32 s34, s34, {KLDS}")
    a(f"s_waitcnt vmcnt({npl})")
    a("s_barrier")
    for t_ in range(9):
        a(f"ds_read_b128 {v(KF+8*t_,4)}, v88 offset:{2048*t_}")
        a(f"ds_read_b128 {v(KF+8*t_+4,4)}, v89 offset:{2048*t_}")
    SC = 96
    a("v_mov_b32 v7, 0xf149f2ca")
    for t in range(9):
        a(f"s_waitcnt lgkmcnt({min(15, 2*(8-t))})")
        if t < 8:
            lab_inv = a.newlabel("L_inv"); lab_done = a.newlabel("L_tdone")
            a(f"s_add_i32 s3, s32, {32*t}")
            a("s_cmp_lt_i32 s3, 0")
            a(f"s_cbranch_scc1 {lab_inv}")
        a(f"v_mfma_f32_32x32x16_bf16 {v(SC+16*t,16)}, {v(KF+8*t,4)}, v[8:11], 0")
        a(f"v_mfma_f32_32x32x16_bf16 {v(SC+16*t,16)}, {v(KF+8*t+4,4)}, v[12:15], {v(SC+16*t,16)}")
        if t < 8:
            a(f"s_branch {lab_done}")
            a.label(lab_inv)
            for r in range(16):
                a(f"v_mov_b32 v{SC+16*t+r}, v7")
            a.label(lab_done)
    a("v_lshlrev_b32 v5, 2, v3")
    a("v_sub_u32 v5, v2, v5")
    a("s_nop 7")
    a("s_nop 7")
    for r in range(16):
        c = (r & 3) + 8 * (r >> 2)
        a(f"v_cmp_gt_i32 vcc, {c}, v5")
        a(f"v_cmp_le_i32 s[36:37], {c}, v5")
        a("s_nop 0")
        a(f"v_cndmask_b32 v{SC+r}, v7, v{SC+r}, vcc")
        a(f"v_cndmask_b32 v{SC+128+r}, v7, v{SC+128+r}, s[36:37]")
    a(f"v_max3_f32 v4, v{SC}, v{SC+1}, v{SC+2}")
    a(f"v_max3_f32 v6, v{SC+3}, v{SC+4}, v{SC+5}")
    for i in range(6, 144, 4):
        a(f"v_max3_f32 v4, v4, v{SC+i}, v{SC+i+1}")
        if i + 3 < 144:
            a(f"v_max3_f32 v6, v6, v{SC+i+2}, v{SC+i+3}")
    a("v_max_f32 v4, v4, v6")
    a("v_xor_b32 v88, 32, v1")
    a("v_lshlrev_b32 v88, 2, v88")
    a("ds_bpermute_b32 v89, v88, v4")
    a("s_waitcnt lgkmcnt(0)")
    a("v_max_f32 v4, v4, v89")
    sc = (DH ** -0.5) * math.log2(math.e)
    sc_bits = struct.unpack("<I", struct.pack("<f", sc))[0]
    a(f"s_mov_b32 s38, {sc_bits}")
    a("v_mul_f32 v4, s38, v4")
    sums = [5, 6, 90, 91]
    for sreg in sums:
        a(f"v_mov_b32 v{sreg}, 0")
    for g in range(0, 144, 4):
        for j in range(4):
            a(f"v_fma_f32 v{SC+g+j}, v{SC+g+j}, s38, -v4")
        for j in range(4):
            a(f"v_exp_f32 v{SC+g+j}, v{SC+g+j}")
        if g >= 4:
            for j in range(4):
                a(f"v_add_f32 v{sums[j]}, v{sums[j]}, v{SC+g-4+j}")
            tt, jj = divmod(g - 4, 16)
            a(f"v_cvt_pk_bf16_f32 v{KF+8*tt+jj//2}, v{SC+g-4}, v{SC+g-3}")
            a(f"v_cvt_pk_bf16_f32 v{KF+8*tt+jj//2+1}, v{SC+g-2}, v{SC+g-1}")
    a("s_nop 0")
    g = 144
    for j in range(4):
        a(f"v_add_f32 v{sums[j]}, v{sums[j]}, v{SC+g-4+j}")
    tt, jj = divmod(g - 4, 16)
    a(f"v_cvt_pk_bf16_f32 v{KF+8*tt+jj//2}, v{SC+g-4}, v{SC+g-3}")
    a(f"v_cvt_pk_bf16_f32 v{KF+8*tt+jj//2+1}, v{SC+g-2}, v{SC+g-1}")
    a("v_add_f32 v5, v5, v6")
    a("v_add_f32 v90, v90, v91")
    a("v_add_f32 v5, v5, v90")
    a("ds_bpermute_b32 v89, v88, v5")
    a("v_bfe_u32 v6, v1, 2, 2")
    a("v_lshl_add_u32 v6, v3, 2, v6")
    a("v_lshlrev_b32 v6, 6, v6")
    a("v_bfe_u32 v7, v1, 4, 1")
    a("v_lshl_add_u32 v6, v7, 5, v6")
    a("v_and_b32 v7, 3, v1")
    a("v_lshl_add_u32 v6, v7, 3, v6")
    a("v_add_u32 v6, s34, v6")
    OA = SC
    VF = SC + 16
    a(f"s_waitcnt lgkmcnt(0)")
    a("v_add_f32 v5, v5, v89")
    a("v_rcp_f32 v5, v5")
    for t in range(9):
        for sidx in range(2):
            f = VF + 4 * (2 * t + sidx)
            base = (32 * t + 16 * sidx) * 64
            a(f"ds_read_b64_tr_b16 {v(f,2)}, v6 offset:{base}")
            a(f"ds_read_b64_tr_b16 {v(f+2,2)}, v6 offset:{base+8*64}")
    first = True
    for t in range(9):
        for sidx in range(2):
            f = VF + 4 * (2 * t + sidx)
            idx = 2 * t + sidx
            rem = 36 - 2 * (idx + 1)
            a(f"s_waitcnt lgkmcnt({min(rem,15)})")
            a(f"v_mfma_f32_32x32x16_bf16 {v(OA,16)}, {v(f,4)}, {v(KF+8*t+4*sidx,4)}, {'0' if first else v(OA,16)}")
            first = False
    if colsum:
        lab_nc = a.newlabel("L_nocs")
        a("s_cmp_ge_u32 s44, 16")
        a(f"s_cbranch_scc1 {lab_nc}")
        CA = 184; CT = 192
        a("s_waitcnt vmcnt(0)")
        for j in range(4):
            a(f"v_lshlrev_b32 v{CA+2*j}, 16, v{240+j}")
            a(f"v_and_b32 v{CA+2*j+1}, 0xffff0000, v{240+j}")
        for i in range(1, 4):
            for j in range(4):
                a(f"v_lshlrev_b32 v{CT+2*j}, 16, v{240+4*i+j}")
                a(f"v_and_b32 v{CT+2*j+1}, 0xffff0000, v{240+4*i+j}")
            for j in range(4):
                a(f"v_pk_add_f32 {v(CA+2*j,2)}, {v(CA+2*j,2)}, {v(CT+2*j,2)}")
        a("s_nop 1")
        for mode in ("row_ror:4", "row_ror:8"):
            for j in range(8):
                a(f"v_add_f32_dpp v{CT+j}, v{CA+j}, v{CA+j} {mode} row_mask:0xf bank_mask:0xf")
            a("s_nop 1")
            for j in range(8):
                a(f"v_mov_b32 v{CA+j}, v{CT+j}")
            a("s_nop 1")
        for x in (16, 32):
            a(f"v_xor_b32 v200, {x}, v1")
            a("v_lshlrev_b32 v200, 2, v200")
            for j in range(8):
                a(f"ds_bpermute_b32 v{CT+j}, v200, v{CA+j}")
            a("s_waitcnt lgkmcnt(0)")
            for j in range(8):
                a(f"v_add_f32 v{CA+j}, v{CA+j}, v{CT+j}")
        srd(a, 96, 24, WS_CS, 16 * F * 4)
        a(f"s_mul_i32 s3, s44, {F*4}")
        a("s_lshl_b32 s45, s45, 7")
        a("s_add_u32 s3, s3, s45")
        a("v_lshlrev_b32 v200, 5, v1")
        a("s_mov_b64 exec, 15")
        a(f"buffer_store_dwordx4 {v(CA,4)}, v200, s[96:99], s3 offen")
        a(f"buffer_store_dwordx4 {v(CA+4,4)}, v200, s[96:99], s3 offen offset:16")
        a("s_mov_b64 exec, -1")
        a.label(lab_nc)
    a("v_add_u32 v7, s31, v2")
    a(f"v_lshlrev_b32 v7, 11, v7")
    a("v_lshl_add_u32 v7, v3, 3, v7")
    a("v_add_u32 v7, s33, v7")
    a("s_nop 7")
    a("s_nop 7")
    for g in range(4):
        for r in range(4):
            a(f"v_mul_f32 v{OA+4*g+r}, v{OA+4*g+r}, v5")
        a(f"v_cvt_pk_bf16_f32 v{OA+4*g}, v{OA+4*g}, v{OA+4*g+1}")
        a(f"v_cvt_pk_bf16_f32 v{OA+4*g+1}, v{OA+4*g+2}, v{OA+4*g+3}")
        a(f"buffer_store_dwordx2 {v(OA+4*g,2)}, v7, s[8:11], 0 offen offset:{16*g}")
    a.label(end)
    a("s_endpgm")
    return dict(name=name, grid=nwg + npf, block=256, lds=lds, desc=kernel_desc(name, 256 if colsum else 244))


def main():
    a = Asm()
    ks = []
    FLK = os.environ.get('FLK', 'x')
    NS2 = int(os.environ.get('NS2', '5'))
    FUSE = 'nofuse' not in EXP
    SPLIT = 'split' in EXP
    L2PF = int(os.environ.get('L2PF', '0'))
    W1HI = int(os.environ.get('W1HI', '10'))
    W2HI = int(os.environ.get('W2HI', '-1'))
    SKLO = int(os.environ.get('SKLO', '23'))
    QA = 'noqa' not in EXP
    W2T = QA and 'w2t' in EXP
    if QA:
        sys.path.insert(0, os.path.dirname(os.path.abspath(__file__)))
        import qa
        WOHI = int(os.environ.get('WOHI', '3'))
        ks.append(qa.gen_qa(sys.modules[__name__], a, "qa_kernel", wpf=[("wo", D*D*2)]))
    elif FUSE:
        ks.append(gen_gemm(a, "qkv_kernel", 3 * D, D, 192, 0, "wqkv", "plain", "ws", WS_QKV, NSTAGE=4, RA=8, RBN=4,
                           ln='single', a_arg='x',
                           wpf=[("w1", D*F*2, W1HI), ("wo", D*D*2, W1HI-7)]))
    else:
        ks.append(gen_ln(a, "ln1_kernel", "x", 0, WS_Y1, False, pf=[("wqkv", D*3*D*2), ("wo", D*D*2)]))
        ks.append(gen_gemm(a, "qkv_kernel", 3 * D, D, 192, WS_Y1, "wqkv", "plain", "ws", WS_QKV, NSTAGE=4, RA=8, RBN=4))
    if not QA: ks.append(gen_attn(a, "attn_kernel", pf=[("w1", D*F*2), ("w2", F*D*2), ("wo", D*D*2)] if FUSE else [("w1", D*F*2), ("w2", F*D*2)], colsum=FUSE))
    ks.append(gen_gemm(a, "oproj_kernel", D, D, 64, WS_O, "wo", "plain", "ws", WS_H, res_arg="x", NSTAGE=NS2, flags='o' in FLK, stats_out=FUSE, spf=eval(os.environ.get('SPFO', 'None')),
                       atile=OT, lda=D*2*TX if OT else None, otile=OT, ldo=D*2*TX if OT else None, c3=WS_WOC if C3 and (not FZ or 'oc3' in EXP) else None, sp2=eval(os.environ.get('SP2O', 'None')), sp3=eval(os.environ.get('SP3O', 'None')), alay='o' if NL else None, fz=dict(entry="P_oproj", ph=1, next="P_ffn1") if FZ else None))
    if FUSE:
        ks.append(gen_gemm(a, "ffn1_kernel", F, D, 224, WS_H, "ws" if W1T else "w1", "gelu", "ws", WS_H1, bias_arg="b1", RA=8, RBN=4,
                           w_off=WS_W1T if W1T else None, wt7=W1T, flags='1' in FLK, sp4=eval(os.environ.get('SP4', 'None')), ln='double', pre=True, ldo=LDH1, zero_flags=SPLIT, wpf=[("w2", F*D*2, W2HI)] if W2HI else None, otile=QA, w2copy=W2T and 'qw2' not in EXP, epi2='oldepi' not in EXP,
                           atile=OT, lda=D*2*TX if OT else None, c3src=("w2", F, WS_W2C) if C3 and not QC3 else None,
                           endpf=("w2", F*D*2, 0, 56) if 'endpf' in EXP else None, fz=dict(entry="P_ffn1", ph=2, next="P_ffn2") if FZ else None))
    else:
        ks.append(gen_ln(a, "ln2_kernel", "ws", WS_H, WS_Y2, True))
        ks.append(gen_gemm(a, "ffn1_kernel", F, D, 224, WS_Y2, "w1", "gelu", "ws", WS_H1, bias_arg="b1", RA=8, RBN=4))
    if SPLIT:
        ks.append(gen_gemm(a, "ffn2_kernel", D, F, 128, WS_H1, "w2", "plain", "out", 0, res_arg="ws", res_off=WS_H,
                           bias_arg="b2", NSTAGE=5, lda=LDH1, RA=int(os.environ.get('SRA','8')), RBN=4, splitk=(SKLO, 56 - SKLO), atile=QA))
    else:
        ks.append(gen_gemm(a, "ffn2_kernel", D, F, 64, WS_H1, "ws" if W2T else "w2", "plain", "out", 0, res_arg="ws", res_off=WS_H,
                           atile=QA, w_off=WS_W2T if W2T else None, rtile=OT, c3=WS_W2C if C3 else None, sp2=eval(os.environ.get('SP2', 'None')), sp3=eval(os.environ.get('SP3', 'None')),
                           bias_arg="b2", NSTAGE=NS2, alay='g32' if NL else None, fz=dict(entry="P_ffn2", ph=3, next=None) if FZ else None, flags='2' in FLK, lda=LDH1, l2pf=L2PF, spf=eval(os.environ.get('SPF2', 'None')), RA=int(os.environ.get('F2RA','4')), RBN=32//int(os.environ.get('F2RA','4'))))
    hdr = []
    if FZ: ks = ks[:1]
    for k in ks:
        hdr.append(f"; @launch kernel={k['name']} grid=({k['grid']},1,1) block=({k['block']},1,1) lds={k['lds']}")
    txt = "\n".join(hdr) + "\n"
    txt += '.amdgcn_target "amdgcn-amd-amdhsa--gfx950"\n.text\n'
    a.label("L_code_end")
    txt += "\n".join(a.lines) + "\n"
    txt += '.section .rodata,"a"\n'
    for k in ks:
        txt += ".p2align 6\n" + k["desc"]
    open(OUT, "w").write(txt)


if __name__ == "__main__":
    main()
```

```python
import math, struct, os


def gen_qa(G, a, name, wpf=None):
    v, s, srd, hex_f32 = G.v, G.s, G.srd, G.hex_f32
    ARG, EXP = G.ARG, G.EXP
    S, D, F, DH = G.S, G.D, G.F, G.DH
    MB = 1 << 20
    WT = 'sc0 sc1' if G.FZ else ''
    WOC = not G.FZ
    WS_RS = 3 * MB
    KFO = 65536
    WS_KV = 4 * MB
    K = D; N = 3 * D
    BM, BN, BK, NSTAGE = 256, 96, 64, 3
    MT, NTW, RB = 4, 6, 64
    ABYTES = BM * BK * 2; BBYTES = BK * BN * 2; STAGE = ABYTES + BBYTES
    PA, PB = 8, 3
    P = PA + PB
    NS = K // BK
    lda = K * 2
    XQ, PK, PV, OQ, OK_, OV = 49152, 65536, 81920, 98304, 114688, 131072
    RTAB = 147456; CTAB = 149504; STG = 149888; STAT = 149952; NONCE = 149960; STAT2 = 150016
    lds = 163840
    NPOLL = int(os.environ.get('NPOLL', '48'))
    vXb = [2, 3]; vWb = list(range(4, 10)); vXc = [10, 11]; vWc = list(range(12, 18))
    vT = list(range(18, 26))
    FX = [28, 44]; FW = [60, 84]; ACC = 108; CSA = 204; ONE = 212; PFD = 216; PFV = 220
    QF = 224
    XPA, XPB = 221, 222
    DUM = 232
    LA = int(os.environ.get('XLA', '5'))
    QW2 = 'qw2' in EXP
    SIDEATT = os.environ.get('SIDEAT', 'x') == 'att'
    W1S = 164; W2S = [232, 236, 240, 244, 248, 252, 196]
    t0, t1, t2, t3 = vT[0], vT[1], vT[2], vT[3]
    vA = list(range(2, 10)); vB = list(range(10, 13))

    def acc(nt, mt):
        return ACC + 4 * (nt * MT + mt)

    def stamp(i):
        if 'itst' in EXP and i in (4, 5, 6): return
        if 'stamp' in EXP:
            a(f"s_mem{'real' if ('rt2' in EXP and i in (0, 7)) or G.FZ else ''}time s[{60+2*i}:{61+2*i}]")
            if i >= 4: a("s_waitcnt lgkmcnt(0)")

    def stamp_out():
        if 'stamp' not in EXP: return
        a("s_waitcnt lgkmcnt(0)")
        srd(a, 80, 24, 200 * MB, 1 << 20)
        a("s_lshl_b32 s3, s2, 3")
        a("s_add_u32 s3, s3, s49")
        a("s_lshl_b32 s3, s3, 6")
        a("v_mov_b32 v2, s3")
        a("s_lshl_b32 s3, s101, 4")
        a("s_or_b32 s61, s3, s45")
        a("s_lshl_b32 s3, s51, 8")
        a("s_or_b32 s61, s3, s61")
        for i in range(8):
            a(f"v_mov_b32 v4, s{60+2*i}")
            a(f"v_mov_b32 v5, s{61+2*i}")
            a(f"buffer_store_dwordx2 v[4:5], v2, s[80:83], 0 offen offset:{8*i}")
            a("s_nop 1")

    def stats_load(Dr, T, srow):
        a(f"v_lshlrev_b32 {v(T)}, 5, v1")
        a(f"s_lshl_b32 s3, s{srow}, 11")
        for r in range(2):
            for j in range(2):
                a(f"buffer_load_dwordx4 {v(Dr+8*r+4*j,4)}, {v(T)}, s[4:7], s3 offen offset:{2048*r+16*j}")

    def stats_math(Dr, T):
        A0 = T; A1 = T + 4; O1 = T + 8; AD = T + 9
        a(f"v_mov_b32 {v(O1)}, 0x3f803f80")
        for j in range(4):
            a(f"v_mov_b32 {v(A0+j)}, 0")
        for r in range(2):
            for j in range(8):
                d = v(Dr + 8 * r + j)
                a(f"v_dot2_f32_bf16 {v(A0+2*r)}, {d}, {v(O1)}, {v(A0+2*r)}")
                a(f"v_dot2_f32_bf16 {v(A0+2*r+1)}, {d}, {d}, {v(A0+2*r+1)}")
        a("s_nop 3")
        cur, oth = A0, A1
        for mode in ("quad_perm:[1,0,3,2]", "quad_perm:[2,3,0,1]", "row_half_mirror", "row_mirror"):
            for j in range(4):
                a(f"v_add_f32_dpp {v(oth+j)}, {v(cur+j)}, {v(cur+j)} {mode} row_mask:0xf bank_mask:0xf")
            a("s_nop 1")
            cur, oth = oth, cur
        assert cur == A0
        for x in (16, 32):
            a(f"v_xor_b32 {v(AD)}, {x}, v1")
            a(f"v_lshlrev_b32 {v(AD)}, 2, {v(AD)}")
            for j in range(4):
                a(f"ds_bpermute_b32 {v(A1+j)}, {v(AD)}, {v(A0+j)}")
            a("s_waitcnt lgkmcnt(0)")
            for j in range(4):
                a(f"v_add_f32 {v(A0+j)}, {v(A0+j)}, {v(A1+j)}")
        for r in range(2):
            sm, sq = A0 + 2 * r, A0 + 2 * r + 1
            a(f"v_mul_f32 {v(sm)}, {hex_f32(1.0/K)}, {v(sm)}")
            a(f"v_mul_f32 {v(sq)}, {hex_f32(1.0/K)}, {v(sq)}")
            a(f"v_fma_f32 {v(sq)}, -{v(sm)}, {v(sm)}, {v(sq)}")
            a(f"v_max_f32 {v(sq)}, 0, {v(sq)}")
            a(f"v_add_f32 {v(sq)}, {hex_f32(1e-5)}, {v(sq)}")
            a(f"v_rsq_f32 {v(sq)}, {v(sq)}")
            a("s_nop 0")
            a(f"v_mul_f32 {v(A1)}, {v(sm)}, {v(sq)}")
            a(f"v_mov_b32 {v(sm)}, {v(sq)}")
            a(f"v_sub_f32 {v(sq)}, 0, {v(A1)}")

    def local_stats(Dr, T):
        lp = a.newlabel("L_ls")
        a("s_mov_b32 s101, 1")
        a("s_lshl_b32 s46, s49, 5")
        a("s_add_u32 s47, s46, s98")
        a("s_mov_b32 s52, 16")
        a.label(lp)
        stats_load(Dr, T, 47)
        a("s_waitcnt vmcnt(0)")
        stats_math(Dr, T)
        a("s_lshl_b32 s3, s46, 3")
        a(f"s_add_u32 s3, s3, {RTAB}")
        a(f"v_mov_b32 {v(T+9)}, s3")
        a(f"ds_write_b128 {v(T+9)}, {v(T,4)}")
        a("s_add_u32 s46, s46, 2")
        a("s_add_u32 s47, s47, 2")
        a("s_sub_u32 s52, s52, 1")
        a("s_cmp_lg_u32 s52, 0")
        a(f"s_cbranch_scc1 {lp}")
        a("s_waitcnt lgkmcnt(0)")
        a("s_barrier")

    G.kernel_header(a, name)
    end = a.newlabel("L_end")
    stamp(0)
    lab_loader = a.newlabel("L_loader")
    lab_att = a.newlabel("L_att")
    a("s_cmp_ge_u32 s2, 256")
    a(f"s_cbranch_scc1 {end}")
    if 'qtop' in EXP:
        lh = a.newlabel("L_pc")
        a("s_getpc_b64 s[46:47]")
        a.label(lh)
        a("v_lshrrev_b32 v2, 5, v0")
        a("v_and_b32 v3, 1, v0")
        a("s_lshr_b32 s3, s2, 3")
        a("s_lshl_b32 s3, s3, 4")
        a("v_add3_u32 v2, v2, v3, s3")
        a("v_lshlrev_b32 v2, 7, v2")
        a(f"v_min_u32 v2, {'L_code_end' if G.FZ else end}-{lh}-4, v2")
        a("s_mov_b64 exec, 3")
        a("global_load_dword v254, v2, s[46:47]")
        a("s_mov_b64 exec, -1")
    a(f"s_load_dwordx2 s[24:25], s[0:1], {ARG['ws']}")
    a(f"s_load_dwordx2 s[58:59], s[0:1], {ARG['x']}")
    a(f"s_load_dwordx2 s[26:27], s[0:1], {ARG['wqkv']}")
    a("s_memrealtime s[34:35]")
    a("s_and_b32 s3, s2, 7")
    a("s_lshr_b32 s46, s2, 3")
    a("s_and_b32 s29, s3, 3")
    a("s_lshl_b32 s29, s29, 3")
    a("s_and_b32 s47, s46, 7")
    a("s_add_u32 s29, s29, s47")
    a("s_lshr_b32 s28, s3, 2")
    a("s_lshl_b32 s28, s28, 2")
    a("s_lshr_b32 s47, s46, 3")
    a("s_add_u32 s28, s28, s47")
    if G.FZ:
        a("v_writelane_b32 v255, 0, 3")
        a("v_writelane_b32 v255, 0, 5")
        a("v_writelane_b32 v255, 0, 6")
        a.label("Q_go")
    a("s_lshl_b32 s99, s28, 5")
    a("s_add_u32 s99, s99, s29")
    a("s_lshl_b32 s98, s28, 8")
    a("v_and_b32 v1, 63, v0")
    a(f"v_lshrrev_b32 {v(t0)}, 6, v0")
    a("s_nop 0")
    a(f"v_readfirstlane_b32 s49, {v(t0)}")
    a("s_nop 3")
    a("s_and_b32 s30, s49, 3")
    a("s_mov_b32 s45, 1")
    a("s_mov_b32 s101, 0")
    a("s_mov_b32 s50, 0")
    a("s_mov_b32 s51, 0")
    a(f"s_mov_b32 s100, {OQ}")

    def build_srds():
        a("s_waitcnt lgkmcnt(0)")
        srd(a, 4, 58, 0, S * D * 2)
        srd(a, 8, 26, 0, K * N * 2)
        srd(a, 12, 24, G.WS_O, S * D * 2 * (G.TX if G.OT else 1))
        srd(a, 16, 24, WS_KV, 256 * 32768)
        a("s_add_u32 s20, s34, 0x1000000")
        a("s_addc_u32 s21, s35, 0")
        srd(a, 36, 24, WS_RS, 131072)
        if G.FZ:
            a("v_mov_b32 v219, 0")
            a("v_mov_b32 v240, 0")
            a("v_writelane_b32 v255, s34, 1")
            a("v_writelane_b32 v255, s35, 2")

    a("s_cmp_ge_u32 s49, 4")
    a(f"s_cbranch_scc1 {lab_loader}")

    build_srds()
    a("s_lshl_b32 s3, s2, 2")
    a("s_add_u32 s93, s3, s30")
    for q, (arg, nbytes) in enumerate(wpf):
        a(f"s_load_dwordx2 s[{76+2*q}:{77+2*q}], s[0:1], {ARG[arg]}")
    a("s_waitcnt lgkmcnt(0)")
    def wsel(q):
        arg, nbytes = wpf[q]
        srd(a, 84, 76 + 2 * q, 0, nbytes)
        a(f"s_mul_i32 s92, s93, {nbytes//1024}")
    wsel(0)
    if 'qpre' in EXP:
        lh = a.newlabel("L_pc")
        a("s_getpc_b64 s[46:47]")
        a.label(lh)
        a(f"s_sub_u32 s46, s46, {lh}-{name}")
        a("s_subb_u32 s47, s47, 0")
        a("s_lshr_b32 s3, s2, 3")
        a("s_lshl_b32 s3, s3, 2")
        a("s_add_u32 s3, s3, s30")
        a("s_lshl_b32 s3, s3, 10")
        a(f"s_min_u32 s3, s3, {end}-{name}-1024")
        a(f"v_lshlrev_b32 {v(t0)}, 4, v1")
        a(f"v_add_u32 {v(t0)}, s3, {v(t0)}")
        a(f"global_load_dwordx4 {v(DUM,4)}, {v(t0)}, s[46:47]")
    SPF = 'oldxla' not in EXP
    if SPF:
        a("s_lshr_b32 s3, s2, 3")
        a("s_lshl_b32 s3, s3, 2")
        a("s_add_u32 s3, s3, s30")
        a(f"v_lshrrev_b32 {v(t0)}, 2, v1")
        a(f"v_and_b32 {v(t1)}, 3, v1")
        a(f"v_lshlrev_b32 {v(t1)}, 7, {v(t1)}")
        a("s_lshr_b32 s46, s28, 2")
        a("s_lshl_b32 s46, s46, 10")
        a("s_lshl_b32 s47, s3, 4")
        a("s_add_u32 s46, s46, s47")
        a("s_lshl_b32 s40, s46, 11")
        a("s_sub_u32 s46, s3, 64")
        a("s_lshr_b32 s47, s46, 4")
        a("s_and_b32 s46, s46, 15")
        a(f"s_mul_i32 s46, s46, {16*N*2}")
        a("s_lshl_b32 s47, s47, 11")
        a("s_add_u32 s46, s46, s47")
        a("s_lshr_b32 s47, s29, 3")
        a("s_lshl_b32 s47, s47, 9")
        a("s_add_u32 s46, s46, s47")
        a("s_cmp_ge_u32 s3, 112")
        a("s_cselect_b32 s46, 0x60000000, s46")
        a(f"s_mov_b32 s41, {256*N*2}")
        a(f"s_mov_b32 s47, {N*2}")
        a("s_cmp_lt_u32 s3, 64")
        a("s_cselect_b32 s40, s40, s46")
        a("s_cselect_b32 s41, 512, s41")
        a("s_cselect_b32 s47, 2048, s47")
        for i in range(4):
            a(f"s_cselect_b32 s{88+i}, s{4+i}, s{8+i}")
        a(f"v_mul_u32_u24 {v(t0)}, s47, {v(t0)}")
        a(f"v_add_u32 {v(XPA)}, {v(t0)}, {v(t1)}")

        def spf():
            a(f"buffer_load_dword {v(DUM)}, {v(XPA)}, s[88:91], s40 offen")
            a("s_add_u32 s40, s40, s41")

        def xpf(): pass
        SPE = eval(os.environ.get('SPE', '(99,99,15,11,7)'))
        if len(SPE) == 5:
            a("s_cselect_b32 exec_lo, 0xcccccccc, -1")
            a("s_cselect_b32 exec_hi, 0xcccccccc, -1")
            a("s_lshr_b32 s3, s41, 1")
            a("s_sub_u32 s40, s40, s3")
        for i, e in enumerate(SPE):
            if e == 99: spf()
            if i == 0 and len(SPE) == 5: a("s_mov_b64 exec, -1")
    else:
        SPE = ()
        a("s_lshr_b32 s3, s2, 3")
        a("s_lshl_b32 s3, s3, 2")
        a("s_add_u32 s3, s3, s30")
        a("s_lshr_b32 s46, s28, 2")
        a("s_lshl_b32 s46, s46, 10")
        a("s_lshl_b32 s47, s3, 3")
        a("s_add_u32 s46, s46, s47")
        a(f"v_lshrrev_b32 {v(t0)}, 3, v1")
        a(f"v_add_u32 {v(t0)}, s46, {v(t0)}")
        a(f"v_lshlrev_b32 {v(t0)}, 11, {v(t0)}")
        a(f"v_and_b32 {v(t1)}, 7, v1")
        a(f"v_lshl_add_u32 {v(XPA)}, {v(t1)}, 4, {v(t0)}")
        a("s_lshr_b32 s46, s3, 5")
        a("s_and_b32 s47, s3, 31")
        a("s_lshl_b32 s47, s47, 1")
        a(f"v_lshrrev_b32 {v(t0)}, 5, v1")
        a(f"v_add_u32 {v(t0)}, s47, {v(t0)}")
        a(f"v_mul_u32_u24 {v(t0)}, {N*2}, {v(t0)}")
        a(f"v_and_b32 {v(t1)}, 31, v1")
        a(f"v_lshl_add_u32 {v(t0)}, {v(t1)}, 4, {v(t0)}")
        a("s_lshl_b32 s46, s46, 11")
        a("s_lshr_b32 s47, s29, 3")
        a("s_lshl_b32 s47, s47, 9")
        a("s_add_u32 s46, s46, s47")
        a("s_cmp_ge_u32 s3, 96")
        a("s_cselect_b32 s46, 0x7f000000, s46")
        a(f"v_add_u32 {v(XPB)}, s46, {v(t0)}")
        a(f"s_mov_b32 s40, {2*BK*2}")
        a(f"s_mov_b32 s41, {2*BK*N*2}")

        def xpf():
            if LA == 0: return
            a(f"buffer_load_dwordx4 {v(DUM,4)}, {v(XPA)}, s[4:7], s40 offen")
            a(f"buffer_load_dwordx4 {v(DUM,4)}, {v(XPB)}, s[8:11], s41 offen")
            a(f"s_add_u32 s40, s40, {BK*2}")
            a(f"s_add_u32 s41, s41, {BK*N*2}")
            a(f"s_min_u32 s40, s40, {(NS-1)*BK*2}")
            a(f"s_min_u32 s41, s41, {(NS-1)*BK*N*2}")
        for _ in range(2, LA + 1):
            xpf()
    lab_cpass = a.newlabel("L_cpass")
    a.label(lab_cpass)
    a(f"v_lshlrev_b32 {v(PFV)}, 4, v1")
    a(f"v_and_b32 {v(t0)}, 15, v1")
    a("s_lshl_b32 s3, s30, 6")
    a(f"v_add_u32 {v(t0)}, s3, {v(t0)}")
    a(f"v_lshlrev_b32 {v(t0)}, 7, {v(t0)}")
    a(f"v_lshrrev_b32 {v(t1)}, 4, v1")
    a(f"v_bfe_u32 {v(t2)}, v1, 1, 3")
    a(f"v_xor_b32 {v(t3)}, {v(t1)}, {v(t2)}")
    a(f"v_lshl_add_u32 {v(vXb[0])}, {v(t3)}, 4, {v(t0)}")
    a(f"v_xor_b32 {v(t3)}, 4, {v(t3)}")
    a(f"v_lshl_add_u32 {v(vXb[1])}, {v(t3)}, 4, {v(t0)}")
    a(f"v_bfe_u32 {v(t0)}, v1, 2, 2")
    a(f"v_lshl_add_u32 {v(t2)}, {v(t1)}, 3, {v(t0)}")
    a(f"v_and_b32 {v(t3)}, 1, {v(t1)}")
    a(f"v_mul_u32_u24 {v(t2)}, {RB}, {v(t2)}")
    a(f"v_and_b32 {v(t0)}, 3, v1")
    a(f"v_lshl_add_u32 {v(t2)}, {v(t0)}, 3, {v(t2)}")
    a(f"v_add_u32 {v(t2)}, {ABYTES}, {v(t2)}")
    for nt in range(NTW):
        blk, p = nt >> 1, nt & 1
        a(f"v_xor_b32 {v(t0)}, {p}, {v(t3)}")
        a(f"v_lshl_add_u32 {v(t0)}, {v(t0)}, 5, {v(t2)}")
        a(f"v_add_u32 {v(vWb[nt])}, {blk*64*RB}, {v(t0)}")
    for i in range(4 * MT * NTW + 8):
        a(f"v_mov_b32 v{ACC+i}, 0")
    for i in range(4):
        a(f"v_mov_b32 {v(ONE+i)}, 0x3f803f80")
    a("s_mov_b32 s42, 0")

    def set_cur():
        for kk in range(2):
            a(f"v_add_u32 {v(vXc[kk])}, s42, {v(vXb[kk])}")
        for nt in range(NTW):
            a(f"v_add_u32 {v(vWc[nt])}, s42, {v(vWb[nt])}")
        a(f"s_add_u32 s42, s42, {STAGE}")
        a(f"s_cmp_ge_u32 s42, {STAGE*NSTAGE}")
        a("s_cselect_b32 s42, 0, s42")

    def read_list(kk, f):
        L = []
        for nt in range(NTW):
            if nt < MT:
                L.append(f"ds_read_b128 {v(FX[f]+4*nt,4)}, {v(vXc[kk])} offset:{nt*2048}")
            for rd in range(2):
                L.append(f"ds_read_b64_tr_b16 {v(FW[f]+4*nt+2*rd,2)}, {v(vWc[nt])} offset:{kk*32*RB+rd*4*RB}")
        return L

    def mfma_list(f):
        L = []
        for nt in range(NTW):
            for mt in range(MT):
                L.append(f"v_mfma_f32_16x16x32_bf16 {v(acc(nt,mt),4)}, {v(FW[f]+4*nt,4)}, {v(FX[f]+4*mt,4)}, {v(acc(nt,mt),4)}")
        return L

    def cs_block(f, wv=None):
        if 'nocs' in EXP: return
        if wv is not None:
            a(f"v_mfma_f32_16x16x32_bf16 {v(CSA,4)}, {v(FW[f]+4*wv,4)}, {v(ONE,4)}, {v(CSA,4)}")
            if wv < 2:
                a(f"v_mfma_f32_16x16x32_bf16 {v(CSA+4,4)}, {v(FW[f]+4*(wv+4),4)}, {v(ONE,4)}, {v(CSA+4,4)}")
            return
        done = a.newlabel("L_cs")
        for w in range(4):
            nx = a.newlabel("L_csn")
            if w < 3:
                a(f"s_cmp_lg_u32 s30, {w}")
                a(f"s_cbranch_scc1 {nx}")
            a(f"v_mfma_f32_16x16x32_bf16 {v(CSA,4)}, {v(FW[f]+4*w,4)}, {v(ONE,4)}, {v(CSA,4)}")
            if w < 2:
                a(f"v_mfma_f32_16x16x32_bf16 {v(CSA+4,4)}, {v(FW[f]+4*(w+4),4)}, {v(ONE,4)}, {v(CSA+4,4)}")
            if w < 3:
                a(f"s_branch {done}")
                a.label(nx)
        a.label(done)

    def inter(kk, fr, fm, wv=None):
        R = read_list(kk, fr); Mm = mfma_list(fm)
        ri = 0
        for i in range(len(Mm)):
            a(Mm[i])
            if ri < len(R): a(R[ri]); ri += 1
        while ri < len(R): a(R[ri]); ri += 1
        cs_block(fm, wv)

    for e in SPE:
        if e == 98: spf()
    stamp(1)
    a("s_barrier")
    stamp(2)
    for e in SPE:
        if e == 97: spf()
    set_cur()
    for x in read_list(0, 0): a(x)
    a("s_waitcnt lgkmcnt(0)")
    inter(1, 1, 0)
    a("s_waitcnt lgkmcnt(0)")
    a(f"s_mov_b32 s48, {NS-1}")
    WOHI = int(os.environ.get('WOHI', '3'))
    EV = [(12, 'pub')] + [(WOHI - i, 'wo') for i in range(wpf[0][1] >> 20)] + [(e, 'spf') for e in SPE if e < 90]
    EV.sort(key=lambda e: -e[0])
    assert len(set(e[0] for e in EV)) == len(EV)
    a(f"s_mov_b32 s94, {EV[0][0]}")
    loops = [a.newlabel("L_cloop") for _ in range(4)]
    ldone = a.newlabel("L_cdone")
    for w in range(1, 4):
        a(f"s_cmp_eq_u32 s30, {w}")
        a(f"s_cbranch_scc1 {loops[w]}")
    rare = []
    for w in range(4):
        a.label(loops[w])
        a("s_barrier")
        set_cur()
        inter(0, 0, 1, w)
        xpf()
        a("s_waitcnt lgkmcnt(0)")
        inter(1, 1, 0, w)
        lpub = a.newlabel("L_pub"); lback = a.newlabel("L_pubb")
        a("s_cmp_eq_u32 s48, s94")
        a(f"s_cbranch_scc1 {lpub}")
        a.label(lback)
        rare.append(('pub', w, lpub, lback))
        if 'itst' in EXP:
            for sl, it in ((4, 12), (5, 8), (6, 4)):
                lx = a.newlabel("L_it")
                a(f"s_cmp_lg_u32 s48, {it}")
                a(f"s_cbranch_scc1 {lx}")
                a(f"s_memtime s[{60+2*sl}:{61+2*sl}]")
                a.label(lx)
        a("s_waitcnt lgkmcnt(0)")
        a("s_sub_u32 s48, s48, 1")
        a("s_cmp_lg_u32 s48, 0")
        a(f"s_cbranch_scc1 {loops[w]}")
        a(f"s_branch {ldone}")
    for kind, x, lab, lb in rare:
        a.label(lab)
        for ev in range(len(EV)):
            nxt_ = EV[ev+1][0] if ev + 1 < len(EV) else 0
            if EV[ev][1] == 'pub':
                pub_next = nxt_
                continue
            nx = a.newlabel("L_ev")
            a(f"s_cmp_lg_u32 s48, {EV[ev][0]}")
            a(f"s_cbranch_scc1 {nx}")
            if EV[ev][1] == 'wo':
                a(f"buffer_load_dwordx4 {v(DUM,4)}, {v(PFV)}, s[84:87], s92 offen")
                a("s_add_u32 s92, s92, 1024")
            else:
                spf()
            a(f"s_mov_b32 s94, {nxt_}")
            a(f"s_branch {lb}")
            a.label(nx)
        a(f"s_mov_b32 s94, {pub_next}")
        if True:
            a("s_cmp_lg_u32 s45, 1")
            a(f"s_cbranch_scc1 {lb}")
            a("s_memrealtime s[22:23]")
            a(f"v_and_b32 {v(t1)}, 1, v1")
            a(f"v_lshlrev_b32 {v(t0)}, 3, {v(t1)}")
            a(f"v_add_u32 {v(t0)}, {STG + 16*x}, {v(t0)}")
            a(f"ds_read_b64 {v(PFD,2)}, {v(t0)}")
            a("s_lshl_b32 s3, s29, 3")
            a("s_add_u32 s3, s3, s98")
            a(f"s_add_u32 s3, s3, {2*x}")
            a("s_lshl_b32 s3, s3, 4")
            a(f"v_lshlrev_b32 {v(t0)}, 4, {v(t1)}")
            a("s_waitcnt lgkmcnt(0)")
            a(f"v_mov_b32 {v(PFD+2)}, s22")
            a(f"v_mov_b32 {v(PFD+3)}, s23")
            a("s_mov_b64 exec, 3")
            if 'nostatflag' not in EXP: a(f"buffer_store_dwordx4 {v(PFD,4)}, {v(t0)}, s[36:39], s3 offen sc0 sc1")
            a("s_mov_b64 exec, -1")
        a(f"s_branch {lb}")
    a.label(ldone)
    stamp(3)
    cs_block(1)
    for x in mfma_list(1): a(x)
    a(f"v_lshrrev_b32 {v(t0)}, 4, v1")
    a(f"v_lshlrev_b32 {v(t0)}, 4, {v(t0)}")
    a("s_lshl_b32 s3, s30, 6")
    a(f"s_add_u32 s3, s3, {CTAB}")
    a(f"v_add_u32 {v(t1)}, s3, {v(t0)}")
    a("s_mov_b32 exec_lo, 0x00010001")
    a("s_mov_b32 exec_hi, 0x00010001")
    a(f"ds_write_b128 {v(t1)}, {v(CSA,4)}")
    lcs = a.newlabel("L_cs2")
    a("s_cmp_ge_u32 s30, 2")
    a(f"s_cbranch_scc1 {lcs}")
    a(f"ds_write_b128 {v(t1)}, {v(CSA+4,4)} offset:256")
    a.label(lcs)
    a("s_mov_b64 exec, -1")
    a(f"v_add_u32 {v(t0)}, {CTAB}, {v(t0)}")
    a(f"v_mov_b32 {v(t1)}, {STAT}")
    a("s_waitcnt lgkmcnt(0)")
    a("s_barrier")
    RT = FX[0]; RQ = RT + 8; CS = RQ + 8; GE = CS + 24
    assert GE + 8 <= ACC
    a(f"ds_read_b32 {v(t2)}, {v(t1)}")
    for nt in range(NTW):
        a(f"ds_read_b128 {v(CS+4*nt,4)}, {v(t0)} offset:{64*nt}")
    a("s_waitcnt lgkmcnt(0)")
    a(f"v_readfirstlane_b32 s3, {v(t2)}")
    a("s_nop 3")
    lok = a.newlabel("L_stok")
    a("s_cmp_eq_u32 s3, 1")
    a(f"s_cbranch_scc1 {lok}")
    local_stats(GE + 8, GE + 24)
    a.label(lok)
    a(f"v_and_b32 {v(t2)}, 15, v1")
    a("s_lshl_b32 s3, s30, 6")
    a(f"v_add_u32 {v(t2)}, s3, {v(t2)}")
    a(f"v_lshlrev_b32 {v(t0)}, 3, {v(t2)}")
    a(f"v_add_u32 {v(t0)}, {RTAB}, {v(t0)}")
    for mt in range(MT):
        a(f"ds_read_b64 {v(RT+2*mt,2)}, {v(t0)} offset:{128*mt}")
    a(f"v_lshlrev_b32 {v(t2)}, 6, {v(t2)}")
    a(f"v_add_u32 {v(t2)}, s100, {v(t2)}")
    a(f"v_lshrrev_b32 {v(t3)}, 4, v1")
    DV = vT[4]; DQ0 = vT[5]; DQ1 = vT[6]
    a(f"v_lshl_add_u32 {v(DV)}, {v(t3)}, 3, {v(t2)}")
    a(f"v_lshrrev_b32 {v(t0)}, 1, {v(t3)}")
    a(f"v_bfe_u32 {v(t1)}, v1, 2, 2")
    a(f"v_xor_b32 {v(t0)}, {v(t0)}, {v(t1)}")
    a(f"v_lshl_add_u32 {v(t0)}, {v(t0)}, 4, {v(t2)}")
    a(f"v_and_b32 {v(t1)}, 1, {v(t3)}")
    a(f"v_lshl_add_u32 {v(DQ0)}, {v(t1)}, 3, {v(t0)}")
    a(f"v_xor_b32 {v(DQ1)}, 32, {v(DQ0)}")
    sc = (DH ** -0.5) * math.log2(math.e)
    a(f"s_mov_b32 s52, {hex_f32(sc)}")
    a("s_waitcnt lgkmcnt(0)")
    for i in range(8):
        a(f"v_mul_f32 {v(RQ+i)}, s52, {v(RT+i)}")
    for nt in range(NTW):
        R_ = RQ if nt < 2 else RT
        for mp in range(0, MT, 2):
            c0 = acc(nt, mp)
            for q in range(2):
                for j in range(2):
                    a(f"v_pk_mul_f32 {v(GE+4*q+2*j,2)}, {v(CS+4*nt+2*j,2)}, {v(R_+2*(mp+q),2)} op_sel:[0,1] op_sel_hi:[1,1]")
            for q in range(2):
                for j in range(2):
                    cc = v(c0 + 4 * q + 2 * j, 2)
                    a(f"v_pk_fma_f32 {cc}, {cc}, {v(R_+2*(mp+q),2)}, {v(GE+4*q+2*j,2)} op_sel:[0,0,0] op_sel_hi:[1,0,1]")
            for j in range(4):
                a(f"v_cvt_pk_bf16_f32 {v(c0+j)}, {v(c0+2*j)}, {v(c0+2*j+1)}")
            for q in range(2):
                sec = nt >> 1
                if sec == 2:
                    a(f"ds_write_b64 {v(DV)}, {v(c0+2*q,2)} offset:{(mp+q)*1024 + sec*16384 + 32*(nt&1)}")
                else:
                    a(f"ds_write_b64 {v(DQ1 if nt & 1 else DQ0)}, {v(c0+2*q,2)} offset:{(mp+q)*1024 + sec*16384}")
    a("s_waitcnt vmcnt(0) lgkmcnt(0)")
    stamp(4)
    a("s_barrier")
    a(f"s_branch {lab_att}")

    a.label(lab_loader)
    a("s_setprio 2")
    a(f"s_load_dwordx2 s[94:95], s[0:1], {ARG['w1']}")
    a(f"s_load_dwordx2 s[96:97], s[0:1], {ARG['wo' if G.C3 else 'w2']}")
    assert not (G.C3 and QW2)
    LSD = 40; LST = 56; LNO = 68; LTB = 72
    a("s_lshl_b32 s3, s30, 6")
    a(f"v_lshrrev_b32 {v(t0)}, 3, v1")
    a(f"v_add_u32 {v(t0)}, s3, {v(t0)}")
    for i in range(PA):
        a(f"v_add_u32 {v(t1)}, {8*i}, {v(t0)}")
        a(f"v_lshrrev_b32 {v(t2)}, 1, {v(t1)}")
        a(f"v_and_b32 {v(t2)}, 7, {v(t2)}")
        a(f"v_and_b32 {v(t3)}, 7, v1")
        a(f"v_xor_b32 {v(t2)}, {v(t2)}, {v(t3)}")
        a(f"v_add_u32 {v(t1)}, s98, {v(t1)}")
        a(f"v_mul_u32_u24 {v(t1)}, {lda}, {v(t1)}")
        a(f"v_lshl_add_u32 {v(vA[i])}, {v(t2)}, 4, {v(t1)}")
    a("s_lshl_b32 s3, s29, 6")
    for i in range(PB):
        a(f"s_mul_i32 s46, s30, {PB}")
        a(f"s_add_u32 s46, s46, {i}")
        a("s_lshr_b32 s47, s46, 2")
        a("s_and_b32 s46, s46, 3")
        a("s_lshl_b32 s46, s46, 4")
        a("s_lshl_b32 s47, s47, 11")
        a("s_add_u32 s47, s47, s3")
        a(f"v_lshrrev_b32 {v(t0)}, {3 if 'bfull' in EXP else 2}, v1")
        a(f"v_add_u32 {v(t0)}, s46, {v(t0)}")
        a(f"v_and_b32 {v(t1)}, {7 if 'bfull' in EXP else 3}, v1")
        if 'bfull' in EXP: a("s_and_b32 s47, s47, 0xffffff80")
        a(f"v_bfe_u32 {v(t2)}, {v(t0)}, 3, 1")
        a(f"v_lshlrev_b32 {v(t2)}, 1, {v(t2)}")
        a(f"v_xor_b32 {v(t1)}, {v(t1)}, {v(t2)}")
        a(f"v_mul_u32_u24 {v(t0)}, {N*2}, {v(t0)}")
        a(f"v_lshl_add_u32 {v(t0)}, {v(t1)}, 4, {v(t0)}")
        a(f"v_add_u32 {v(vB[i])}, s47, {v(t0)}")
    a(f"s_mul_i32 s31, s30, {PA*1024}")
    a(f"s_mul_i32 s32, s30, {PB*1024}")
    a(f"s_add_u32 s32, s32, {ABYTES}")
    build_srds()
    a("s_lshl_b32 s46, s29, 3")
    a("s_add_u32 s46, s46, s98")
    a("s_lshl_b32 s47, s30, 1")
    a("s_add_u32 s47, s47, s46")
    stats_load(LSD, LST, 47)
    lab_lpass = a.newlabel("L_lpass")
    a.label(lab_lpass)
    a("s_mov_b32 s40, 0")
    a("s_mov_b32 s41, 0")
    a("s_mov_b32 s43, 0")
    a("s_mov_b32 s53, 0")

    def dma():
        a("s_add_u32 s33, s43, s31")
        for i in range(PA):
            a(f"s_add_u32 m0, s33, {i*1024}")
            a("s_nop 0")
            a(f"buffer_load_dwordx4 {v(vA[i])}, s[4:7], s40 offen lds")
        a("s_add_u32 s33, s43, s32")
        for i in range(PB):
            a(f"s_add_u32 m0, s33, {i*1024}")
            a("s_nop 0")
            a(f"buffer_load_dwordx4 {v(vB[i])}, s[8:11], s41 offen lds")
        a(f"s_add_u32 s40, s40, {BK*2}")
        a(f"s_add_u32 s41, s41, {BK*N*2}")
        a(f"s_add_u32 s43, s43, {STAGE}")
        a(f"s_cmp_ge_u32 s43, {STAGE*NSTAGE}")
        a("s_cselect_b32 s43, 0, s43")

    nloop = NS - NSTAGE + 1
    lab_l2p = a.newlabel("L_l2p"); lab_lend = a.newlabel("L_lend")
    a("s_cmp_lg_u32 s45, 1")
    a(f"s_cbranch_scc1 {lab_l2p}")
    stamp(1)
    Q = []
    def dmaq(j):
        dma(); Q.extend([('d', j)] * P)
    def waitq(*tags):
        last = max(i for i, x in enumerate(Q) if x in tags)
        a(f"s_waitcnt vmcnt({len(Q) - 1 - last})")
    for j in range(NSTAGE - 1):
        dmaq(j)
    stamp(2)
    SA1, SA2 = 218, 219
    a("s_lshl_b32 s92, s99, 2")
    a("s_add_u32 s92, s92, s30")
    srd(a, 76, 94, 0, D * F * 2)
    srd(a, 88, 96, 0, D * D * 2 if G.C3 else F * D * 2)
    a(f"v_lshrrev_b32 {v(t0)}, 3, v1")
    a(f"v_and_b32 {v(t1)}, 7, v1")
    a(f"v_lshlrev_b32 {v(t1)}, 4, {v(t1)}")
    a(f"v_lshl_add_u32 {v(SA2)}, {v(t0)}, 11, {v(t1)}")
    a("s_lshr_b32 s3, s92, 6")
    a("s_lshl_b32 s3, s3, 7")
    a("s_and_b32 s46, s92, 63")
    a(f"s_mul_i32 s46, s46, {56*D*2}")
    a("s_add_u32 s3, s3, s46")
    a(f"v_add_u32 {v(SA2)}, s3, {v(SA2)}")
    if G.FZ:
        a("s_and_b32 s93, s99, 15")
        a("s_lshr_b32 s3, s99, 4")
        a("s_mul_i32 s3, s3, 7")
        a("s_lshr_b32 s3, s3, 1")
        a("s_add_u32 s84, s3, s30")
    else:
        a("s_min_u32 s46, s92, 895")
        a(f"s_mul_hi_u32 s93, s46, {((1 << 32) + 55) // 56}")
        a("s_mul_i32 s3, s93, 56")
        a("s_sub_u32 s84, s46, s3")
    a(f"v_mul_u32_u24 {v(t0)}, {F*2}, {v(t0)}")
    a(f"v_add_u32 {v(SA1)}, {v(t0)}, {v(t1)}")
    a(f"s_mul_i32 s3, s93, {64*F*2}")
    a("s_lshl_b32 s46, s84, 7")
    a("s_add_u32 s3, s3, s46")
    a(f"v_add_u32 {v(SA1)}, s3, {v(SA1)}")
    side = [(W1S + 4 * j, SA1, 76, 8 * j * F * 2) for j in range(8)] + ([(W2S[j], SA2, 88, 8 * j * D * 2) for j in range(7)] if QW2 else [])
    SIDE0 = int(os.environ.get('SIDE0', '16')); SPI = int(os.environ.get('SPI', '1'))
    def sideq():
        if not side: return
        d, av, sr, off = side.pop(0)
        a(f"s_mov_b32 s3, {off}")
        a(f"buffer_load_dwordx4 {v(d,4)}, {v(av)}, s[{sr}:{sr+3}], s3 offen")
        Q.append('s')
    for j in range(NS):
        c = nloop - j
        waitq(('d', j), 't')
        a("s_barrier")
        if c == 2:
            l1 = a.newlabel("L_l1")
            a("s_cmp_lg_u32 s30, 0")
            a(f"s_cbranch_scc1 {l1}")
            a(f"v_lshlrev_b32 {v(t0)}, 4, v1")
            a("s_lshl_b32 s3, s28, 12")
            for jj in range(4):
                a(f"buffer_load_dwordx4 {v(LTB+4*jj,4)}, {v(t0)}, s[36:39], s3 offen offset:{1024*jj} sc0 sc1")
            a.label(l1)
            Q.append('t')
        if c == 1:
            l2 = a.newlabel("L_l2")
            a("s_cmp_lg_u32 s30, 0")
            a(f"s_cbranch_scc1 {l2}")
            a("s_mov_b64 s[54:55], exec")
            for jj in range(4):
                a(f"v_cmp_lt_u64 vcc, s[34:35], {v(LTB+4*jj+2,2)}")
                a(f"v_cmp_gt_u64 s[56:57], s[20:21], {v(LTB+4*jj+2,2)}")
                a("s_nop 3")
                a("s_and_b64 s[54:55], s[54:55], vcc")
                a("s_and_b64 s[54:55], s[54:55], s[56:57]")
            a("s_cmp_lg_u64 s[54:55], exec")
            a(f"s_cbranch_scc1 {l2}")
            a("s_mov_b32 s53, 1")
            a(f"v_lshlrev_b32 {v(t0)}, 3, v1")
            a(f"v_add_u32 {v(t0)}, {RTAB}, {v(t0)}")
            for jj in range(4):
                a(f"ds_write_b64 {v(t0)}, {v(LTB+4*jj,2)} offset:{512*jj}")
            a("s_waitcnt lgkmcnt(0)")
            a.label(l2)
        if j + NSTAGE - 1 < NS:
            dmaq(j + NSTAGE - 1)
        if j >= SIDE0:
            for _ in range(SPI): sideq()
        if j == 0:
            stats_math(LSD, LST)
            a("s_lshl_b32 s3, s30, 4")
            a(f"s_add_u32 s3, s3, {STG}")
            a(f"v_mov_b32 {v(LST+9)}, s3")
            a(f"ds_write_b128 {v(LST+9)}, {v(LST,4)}")
            a("s_waitcnt lgkmcnt(0)")
    while side and not SIDEATT: sideq()
    if G.C3:
        a(f"v_lshrrev_b32 {v(t0)}, 3, v1")
        a(f"v_and_b32 {v(t1)}, 7, v1")
        a(f"v_lshlrev_b32 {v(t1)}, 4, {v(t1)}")
        a(f"v_lshl_add_u32 {v(SA2)}, {v(t0)}, 10, {v(t1)}")
        a("s_lshl_b32 s3, s92, 11")
        if WOC:
            a("s_mov_b64 exec, 0xffff")
            a(f"buffer_load_dwordx4 {v(W2S[0],4)}, {v(SA2)}, s[88:91], s3 offen offset:384")
            a("s_mov_b64 exec, -1")
        if G.QC3:
            a(f"s_load_dwordx2 s[96:97], s[0:1], {ARG['w2']}")
            a("s_mul_i32 s3, s92, 7168")
            a("s_waitcnt lgkmcnt(0)")
            srd(a, 88, 96, 0, F * D * 2)
            a("s_mov_b32 exec_hi, 0x00ffffff")
            a(f"buffer_load_dwordx4 {v(W2S[1],4)}, {v(SA2)}, s[88:91], s3 offen offset:384")
            a("s_mov_b32 exec_hi, -1")
            a("s_mul_i32 s3, s92, 7")
            a(f"v_add_u32 {v(t2)}, s3, {v(t0)}")
            a(f"v_and_b32 {v(t3)}, 1, {v(t2)}")
            a(f"v_mul_u32_u24 {v(t3)}, {F*256}, {v(t3)}")
            a(f"v_lshrrev_b32 {v(t2)}, 1, {v(t2)}")
            a(f"v_lshl_add_u32 {v(t2)}, {v(t2)}, 8, {v(t1)}")
            a(f"v_add_u32 {v(W2S[2])}, {v(t2)}, {v(t3)}")
        a(f"v_lshl_add_u32 {v(SA2)}, {v(t0)}, 18, {v(t1)}")
    a(f"s_branch {lab_lend}")
    a.label(lab_l2p)
    for _ in range(NSTAGE - 1):
        dma()
    a(f"s_mov_b32 s48, {nloop}")
    lloop = a.newlabel("L_lloop")
    a.label(lloop)
    a(f"s_waitcnt vmcnt({(NSTAGE-2)*P})")
    a("s_barrier")
    dma()
    a("s_sub_u32 s48, s48, 1")
    a("s_cmp_lg_u32 s48, 0")
    a(f"s_cbranch_scc1 {lloop}")
    for j in range(NS - NSTAGE + 1, NS):
        a(f"s_waitcnt vmcnt({(NS-1-j)*P})")
        a("s_barrier")
    a.label(lab_lend)
    stamp(3)
    l4 = a.newlabel("L_l4")
    a(f"v_mov_b32 {v(t1)}, {STAT}")
    a("s_cmp_lg_u32 s30, 0")
    a(f"s_cbranch_scc1 {l4}")
    a(f"v_mov_b32 {v(t0)}, s53")
    a(f"ds_write_b32 {v(t1)}, {v(t0)}")
    for j in range(4):
        a(f"v_mov_b32 {v(LTB+j)}, 0")
    a(f"ds_write_b128 {v(t1)}, {v(LTB,4)} offset:{STAT2-STAT}")
    a("s_waitcnt lgkmcnt(0)")
    a.label(l4)
    a("s_barrier")
    a(f"ds_read_b32 {v(t2)}, {v(t1)}")
    a("s_waitcnt lgkmcnt(0)")
    a(f"v_readfirstlane_b32 s3, {v(t2)}")
    a("s_nop 3")
    lok = a.newlabel("L_stok")
    a("s_cmp_eq_u32 s3, 1")
    a(f"s_cbranch_scc1 {lok}")
    local_stats(LSD, LST)
    a.label(lok)
    stamp(4)
    a("s_barrier")

    a.label(lab_att)
    CM, MK1, MK2, SA, SB = 16, 32, 48, 64, 80
    KB_ = [96, 104]; VB_ = [112, 120]; PP = [128, 136]; OA = 144; SUM = 160
    CA = 64; CT = 72; PUB = 200; VM = 216
    vK1 = [2, 3]; vV1 = 4; vK2 = [5, 6]; vV2 = 7; vQQ = 8; vHH = 9; vX32 = 10; vNEG = 11; vL16 = 12
    T0, T1, T2 = 13, 14, 15
    vNO = 217
    lab_start = a.newlabel("L_astart"); lab_reload = a.newlabel("L_reload"); lab_fin = a.newlabel("L_fin")
    a("s_setprio 0")
    a("s_sub_u32 s3, 11, s49")
    a("s_cmp_lt_u32 s49, 4")
    a("s_cselect_b32 s44, s49, s3")
    a(f"v_and_b32 {v(vQQ)}, 31, v1")
    a(f"v_lshrrev_b32 {v(vHH)}, 5, v1")
    a(f"v_lshlrev_b32 {v(vL16)}, 4, v1")
    a(f"v_xor_b32 {v(vX32)}, 32, v1")
    a(f"v_lshlrev_b32 {v(vX32)}, 2, {v(vX32)}")
    a(f"v_mov_b32 {v(vNEG)}, 0xf149f2ca")
    a(f"v_mov_b32 {v(VM)}, 0")
    a(f"v_bfe_u32 {v(T0)}, v1, 2, 2")
    a(f"v_xor_b32 {v(T0)}, {v(T0)}, {v(vHH)}")
    a(f"v_lshlrev_b32 {v(T1)}, 6, {v(vQQ)}")
    a(f"v_lshl_add_u32 {v(T0)}, {v(T0)}, 4, {v(T1)}")
    a("s_lshl_b32 s3, s44, 11")
    a(f"s_add_u32 s46, s3, {OK_ - 7*2048}")
    a(f"v_add_u32 {v(vK1[0])}, s46, {v(T0)}")
    a(f"v_xor_b32 {v(vK1[1])}, 32, {v(vK1[0])}")
    a(f"s_add_u32 s46, s3, {PK}")
    a(f"v_add_u32 {v(vK2[0])}, s46, {v(T0)}")
    a(f"v_xor_b32 {v(vK2[1])}, 32, {v(vK2[0])}")
    a(f"s_add_u32 s46, s3, {OQ}")
    a(f"v_add_u32 {v(T0)}, s46, {v(T0)}")
    a(f"v_bfe_u32 {v(T1)}, v1, 2, 2")
    a(f"v_lshl_add_u32 {v(T1)}, {v(vHH)}, 2, {v(T1)}")
    a(f"v_lshlrev_b32 {v(T1)}, 6, {v(T1)}")
    a(f"v_bfe_u32 {v(T2)}, v1, 4, 1")
    a(f"v_lshl_add_u32 {v(T1)}, {v(T2)}, 5, {v(T1)}")
    a(f"v_and_b32 {v(T2)}, 3, v1")
    a(f"v_lshl_add_u32 {v(T1)}, {v(T2)}, 3, {v(T1)}")
    a(f"s_add_u32 s46, s3, {OV - 7*2048}")
    a(f"v_add_u32 {v(vV1)}, s46, {v(T1)}")
    a(f"s_add_u32 s46, s3, {PV}")
    a(f"v_add_u32 {v(vV2)}, s46, {v(T1)}")
    a("s_cmp_lg_u32 s45, 1")
    a(f"s_cbranch_scc1 {lab_reload}")
    a(f"ds_read_b128 {v(QF,4)}, {v(T0)}")
    a(f"v_xor_b32 {v(T0)}, 32, {v(T0)}")
    a(f"ds_read_b128 {v(QF+4,4)}, {v(T0)}")
    a("s_mov_b32 s33, 1")
    lab_pubw = a.newlabel("L_pubw")
    a("s_cmp_lt_u32 s49, 4")
    a(f"s_cbranch_scc1 {lab_pubw}")
    while side: sideq()
    a(f"s_branch {lab_start}")
    a.label(lab_pubw)
    a("s_lshl_b32 s3, s49, 13")
    a(f"s_add_u32 s46, s3, {OK_}")
    a(f"v_add_u32 {v(T1)}, s46, {v(vL16)}")
    for j in range(8):
        a(f"ds_read_b128 {v(W1S+4*j,4)}, {v(T1)} offset:{1024*j}")
    a("s_lshl_b32 s46, s99, 15")
    a("s_add_u32 s46, s46, s3")
    for j in range(8):
        if j == 4: a("s_add_u32 s46, s46, 4096")
        a(f"s_waitcnt lgkmcnt({7-j})")
        a(f"buffer_store_dwordx4 {v(W1S+4*j,4)}, {v(vL16)}, s[16:19], s46 offen offset:{1024*(j&3)} sc0 sc1")
    a("s_mov_b32 s33, 0")

    def kvflag():
        ldone = a.newlabel("L_kvf")
        a("s_or_b32 s3, s33, s50")
        a("s_cmp_lg_u32 s3, 0")
        a(f"s_cbranch_scc1 {ldone}")
        a("s_mov_b32 s33, 1")
        a("s_memrealtime s[22:23]")
        a("s_lshl_b32 s3, s99, 7")
        a("s_lshl_b32 s46, s49, 3")
        a("s_add_u32 s3, s3, s46")
        a(f"s_add_u32 s3, s3, {KFO}")
        a(f"v_mov_b32 {v(T0)}, 0")
        a("s_waitcnt vmcnt(0) lgkmcnt(0)")
        a(f"v_mov_b32 {v(PUB)}, s22")
        a(f"v_mov_b32 {v(PUB+1)}, s23")
        a("s_mov_b64 exec, 1")
        if 'nokvflag' not in EXP: a(f"buffer_store_dwordx2 {v(PUB,2)}, {v(T0)}, s[36:39], s3 offen sc0 sc1")
        a("s_mov_b64 exec, -1")
        a.label(ldone)

    a.label(lab_start)
    a(f"v_lshlrev_b32 {v(T0)}, 2, {v(vHH)}")
    a(f"v_sub_u32 {v(T0)}, {v(vQQ)}, {v(T0)}")
    for r in range(16):
        c = (r & 3) + 8 * (r >> 2)
        sp = 52 + 2 * (r & 1)
        a(f"v_cmp_le_i32 s[{sp}:{sp+1}], {c}, {v(T0)}")
        a(f"v_mov_b32 {v(CM+r)}, {v(VM)}")
        a(f"v_cndmask_b32 {v(MK1+r)}, {v(vNEG)}, {v(VM)}, s[{sp}:{sp+1}]")
        a(f"v_cndmask_b32 {v(MK2+r)}, {v(VM)}, {v(vNEG)}, s[{sp}:{sp+1}]")
    for r in range(16):
        a(f"v_mov_b32 {v(OA+r)}, 0")
    for r in range(4):
        a(f"v_mov_b32 {v(SUM+r)}, 0")

    def part(vK, vV, MK, off, last_cmp, lab_out, hook=None):
        SS = [SA, SB]

        def kread(i):
            for ks in range(2):
                a(f"ds_read_b128 {v(KB_[i&1]+4*ks,4)}, {v(vK[ks])} offset:{off(i)}")

        def smf(i, h):
            if h == 0:
                a(f"v_mfma_f32_32x32x16_bf16 {v(SS[i&1],16)}, {v(KB_[i&1],4)}, {v(QF,4)}, {v(MK if i == 0 else CM,16)}")
            else:
                a(f"v_mfma_f32_32x32x16_bf16 {v(SS[i&1],16)}, {v(KB_[i&1]+4,4)}, {v(QF+4,4)}, {v(SS[i&1],16)}")
        kread(0)
        kread(1)
        a("s_waitcnt lgkmcnt(2)")
        smf(0, 0); smf(0, 1)
        for i in range(8):
            Sx = SS[i & 1]; Px = PP[i & 1]; Vx = VB_[i & 1]

            def exps(g):
                for j in range(4):
                    a(f"v_exp_f32 {v(Sx+g+j)}, {v(Sx+g+j)}")

            def addcvt(g):
                for j in range(2):
                    a(f"v_pk_add_f32 {v(SUM+2*j,2)}, {v(SUM+2*j,2)}, {v(Sx+g+2*j,2)}")
                    a(f"v_cvt_pk_bf16_f32 {v(Px+g//2+j)}, {v(Sx+g+2*j)}, {v(Sx+g+1+2*j)}")

            def pv(sidx):
                a(f"v_mfma_f32_32x32x16_bf16 {v(OA,16)}, {v(Vx+4*sidx,4)}, {v(Px+4*sidx,4)}, {v(OA,16)}")
            for sidx in range(2):
                for rd in range(2):
                    a(f"ds_read_b64_tr_b16 {v(Vx+4*sidx+2*rd,2)}, {v(vV)} offset:{off(i) + (16*sidx+8*rd)*64}")
            if i < 7:
                a("s_waitcnt lgkmcnt(4)")
                smf(i + 1, 0)
            if i == 0:
                a("s_nop 7"); a("s_nop 7"); a("s_nop 7")
            exps(0)
            if i < 7:
                smf(i + 1, 1)
                if i < 6: kread(i + 2)
            exps(4); addcvt(0)
            exps(8); addcvt(4)
            a(f"s_waitcnt lgkmcnt({2 if i < 6 else 0})")
            pv(0)
            exps(12); addcvt(8)
            a("s_nop 0")
            addcvt(12)
            a("s_nop 1")
            pv(1)
            if i < 7:
                a(f"s_cmp_eq_u32 s44, {last_cmp(i)}")
                a(f"s_cbranch_scc1 {lab_out}")
            if hook and i == 2: hook()
        a.label(lab_out)
        a("s_waitcnt lgkmcnt(0)")

    part(vK1, vV1, MK1, lambda i: (7 - i) * 2048, lambda i: i, a.newlabel("L_p1e"), hook=kvflag)
    stamp(5)
    lab_p2 = a.newlabel("L_p2")
    a("s_cmp_lg_u32 s50, 0")
    a(f"s_cbranch_scc1 {lab_p2}")
    kvflag()
    lab_nc = a.newlabel("L_nocs")
    a("s_cmp_lt_u32 s49, 4")
    a(f"s_cbranch_scc1 {lab_nc}")
    if G.C3:
        srd(a, 88, 24, G.WS_WOC, 2 * D * 256)
        a("s_lshl_b32 s3, s92, 8")
        a("s_waitcnt vmcnt(0)")
        if WOC:
            a("s_mov_b64 exec, 0xffff")
            a(f"buffer_store_dwordx4 {v(W2S[0],4)}, {v(SA2)}, s[88:91], s3 offen {WT}")
            a("s_mov_b64 exec, -1")
        if G.QC3:
            srd(a, 88, 24, G.WS_W2C, 2 * F * 256)
            a("s_mov_b32 exec_hi, 0x00ffffff")
            a(f"buffer_store_dwordx4 {v(W2S[1],4)}, {v(W2S[2])}, s[88:91], 0 offen {WT}")
            a("s_mov_b32 exec_hi, -1")
    else:
        srd(a, 88, 24, G.WS_W2T, F * D * 2)
        a("s_mul_i32 s3, s92, 7168")
        a("s_waitcnt vmcnt(0)")
    for j in range(7 if QW2 else 0):
        if j == 4: a("s_add_u32 s3, s3, 4096")
        a(f"buffer_store_dwordx4 {v(W2S[j],4)}, {v(vL16)}, s[88:91], s3 offen offset:{1024*(j&3)}")
    if not G.FZ:
        a("s_cmp_ge_u32 s92, 896")
        a(f"s_cbranch_scc1 {lab_nc}")
    if G.W1T:
        srd(a, 88, 24, G.WS_W1T, 16 * 512 * 1024)
        a(f"v_and_b32 {v(T0)}, 7, v1")
        a("s_lshl_b32 s3, s84, 3")
        a(f"v_add_u32 {v(T0)}, s3, {v(T0)}")
        a(f"s_mov_b32 s3, {((1 << 32) + 27) // 28}")
        a(f"v_mul_hi_u32 {v(T1)}, {v(T0)}, s3")
        a(f"v_mul_u32_u24 {v(T2)}, 28, {v(T1)}")
        a(f"v_sub_u32 {v(T0)}, {v(T0)}, {v(T2)}")
        a(f"v_bfe_u32 {v(T2)}, v1, 3, 1")
        a(f"v_mad_u32_u24 {v(T0)}, {v(T2)}, 28, {v(T0)}")
        a(f"v_cmp_le_u32 vcc, 24, {v(T0)}")
        a(f"v_add_u32 {v(T2)}, 8, {v(T0)}")
        a(f"v_cndmask_b32 {v(T0)}, {v(T0)}, {v(T2)}, vcc")
        a(f"v_lshlrev_b32 {v(T1)}, 19, {v(T1)}")
        a(f"v_lshl_add_u32 {v(T0)}, {v(T0)}, 4, {v(T1)}")
        a(f"v_lshrrev_b32 {v(T1)}, 4, v1")
        a(f"v_lshl_add_u32 {v(T0)}, {v(T1)}, 10, {v(T0)}")
        a("s_lshl_b32 s3, s93, 15")
        for j in range(8):
            a(f"buffer_store_dwordx4 {v(W1S+4*j,4)}, {v(T0)}, s[88:91], s3 offen {os.environ.get('W1ST','sc0 sc1')}")
            a("s_add_u32 s3, s3, 4096")
    for j in range(4):
        a(f"v_lshlrev_b32 v{CA+2*j}, 16, v{W1S+j}")
        a(f"v_and_b32 v{CA+2*j+1}, 0xffff0000, v{W1S+j}")
    for i in range(1, 8):
        for j in range(4):
            a(f"v_lshlrev_b32 v{CT+2*j}, 16, v{W1S+4*i+j}")
            a(f"v_and_b32 v{CT+2*j+1}, 0xffff0000, v{W1S+4*i+j}")
        for j in range(4):
            a(f"v_pk_add_f32 {v(CA+2*j,2)}, {v(CA+2*j,2)}, {v(CT+2*j,2)}")
    a("s_nop 1")
    for j in range(8):
        a(f"v_add_f32_dpp v{CT+j}, v{CA+j}, v{CA+j} row_ror:8 row_mask:0xf bank_mask:0xf")
    a(f"v_xor_b32 {v(T0)}, 16, v1")
    a(f"v_lshlrev_b32 {v(T0)}, 2, {v(T0)}")
    for j in range(8):
        a(f"ds_bpermute_b32 v{CA+j}, {v(T0)}, v{CT+j}")
    a("s_waitcnt lgkmcnt(0)")
    for j in range(8):
        a(f"v_add_f32 v{CT+j}, v{CA+j}, v{CT+j}")
    for j in range(8):
        a(f"ds_bpermute_b32 v{CA+j}, {v(vX32)}, v{CT+j}")
    a("s_waitcnt lgkmcnt(0)")
    for j in range(8):
        a(f"v_add_f32 v{CA+j}, v{CA+j}, v{CT+j}")
    srd(a, 76, 24, G.WS_CS, 16 * F * 4)
    a(f"s_mul_i32 s3, s93, {F*4}")
    a("s_lshl_b32 s46, s84, 8")
    a("s_add_u32 s3, s3, s46")
    a(f"v_lshlrev_b32 {v(T0)}, 5, v1")
    a("s_mov_b64 exec, 0xff")
    a(f"buffer_store_dwordx4 {v(CA,4)}, {v(T0)}, s[76:79], s3 offen {WT}")
    a(f"buffer_store_dwordx4 {v(CA+4,4)}, {v(T0)}, s[76:79], s3 offen offset:16 {WT}")
    a("s_mov_b64 exec, -1")
    a.label(lab_nc)
    a("s_mov_b32 s50, 1")
    a("s_cmp_eq_u32 s28, 0")
    a(f"s_cbranch_scc1 {lab_p2}")
    lp = a.newlabel("L_poll"); lpo = a.newlabel("L_pollok"); lpd = a.newlabel("L_polld"); lsp = a.newlabel("L_spin")
    a("s_cmp_ge_u32 s49, 4")
    a(f"s_cbranch_scc1 {lsp}")
    a("s_sub_u32 s46, s99, 32")
    a("s_lshl_b32 s47, s46, 7")
    a(f"s_add_u32 s47, s47, {KFO}")
    a(f"v_and_b32 {v(T0)}, 3, v1")
    a(f"v_lshlrev_b32 {v(T0)}, 3, {v(T0)}")
    a(f"s_mov_b32 s52, {NPOLL}")
    a.label(lp)
    a(f"buffer_load_dwordx2 {v(PUB,2)}, {v(T0)}, s[36:39], s47 offen sc0 sc1")
    a("s_waitcnt vmcnt(0)")
    a(f"v_cmp_lt_u64 vcc, s[34:35], {v(PUB,2)}")
    a(f"v_cmp_gt_u64 s[54:55], s[20:21], {v(PUB,2)}")
    a("s_nop 3")
    a("s_and_b64 vcc, vcc, s[54:55]")
    a("s_cmp_eq_u64 vcc, exec")
    a(f"s_cbranch_scc1 {lpo}")
    a("s_sub_u32 s52, s52, 1")
    a("s_cmp_lg_u32 s52, 0")
    a(f"s_cbranch_scc1 {lp}")
    a(f"v_mov_b32 {v(T1)}, 2")
    a(f"s_branch {lpd}")
    a.label(lpo)
    a("s_lshl_b32 s3, s49, 13")
    a("s_lshl_b32 s46, s46, 15")
    a("s_add_u32 s46, s46, s3")
    for j in range(8):
        a(f"s_add_u32 m0, s3, {PK + 1024*j}")
        a("s_nop 0")
        a(f"buffer_load_dwordx4 {v(vL16)}, s[16:19], s46 offen sc0 sc1 lds")
        a("s_add_u32 s46, s46, 1024")
    a(f"v_mov_b32 {v(T1)}, 1")
    a.label(lpd)
    a("s_lshl_b32 s3, s49, 2")
    a(f"s_add_u32 s3, s3, {STAT2}")
    a(f"v_mov_b32 {v(T0)}, s3")
    a("s_waitcnt vmcnt(0)")
    a(f"ds_write_b32 {v(T0)}, {v(T1)}")
    a.label(lsp)
    a(f"v_mov_b32 {v(T0)}, {STAT2}")
    a(f"ds_read_b128 {v(PUB,4)}, {v(T0)}")
    a("s_waitcnt lgkmcnt(0)")
    a(f"v_min_u32 {v(T1)}, {v(PUB)}, {v(PUB+1)}")
    a(f"v_min3_u32 {v(T1)}, {v(T1)}, {v(PUB+2)}, {v(PUB+3)}")
    a(f"v_max_u32 {v(T2)}, {v(PUB)}, {v(PUB+1)}")
    a(f"v_max3_u32 {v(T2)}, {v(T2)}, {v(PUB+2)}, {v(PUB+3)}")
    a("s_nop 0")
    a(f"v_readfirstlane_b32 s3, {v(T1)}")
    a(f"v_readfirstlane_b32 s46, {v(T2)}")
    a("s_nop 3")
    a("s_cmp_eq_u32 s3, 0")
    a("s_sleep 1")
    a(f"s_cbranch_scc1 {lsp}")
    a("s_cmp_eq_u32 s46, 1")
    a(f"s_cbranch_scc1 {lab_p2}")
    a("s_mov_b32 s45, 2")
    a("s_sub_u32 s98, s98, 256")
    a(f"s_mov_b32 s100, {XQ}")
    a("s_barrier")
    if G.FZ:
        for i in range(4):
            a(f"s_mov_b32 s{84+i}, s{4+i}")
            a(f"s_mov_b32 s{88+i}, s{4+i}")
        a(f"v_mov_b32 {v(XPA)}, 0")
    a("s_cmp_lt_u32 s49, 4")
    a(f"s_cbranch_scc1 {lab_cpass}")
    a("s_setprio 2")
    a(f"s_branch {a.newlabel('L_lre')}")
    lab_lre = f"L_lre_{a.nlab}"

    a.label(lab_reload)
    a("s_lshl_b32 s3, s49, 12")
    a("s_lshl_b32 s46, s99, 15")
    a("s_add_u32 s46, s46, s3")
    for j in range(4):
        a(f"s_add_u32 m0, s3, {OK_ + 1024*j}")
        a("s_nop 0")
        a(f"buffer_load_dwordx4 {v(vL16)}, s[16:19], s46 offen sc0 sc1 lds")
        a("s_add_u32 s46, s46, 1024")
    a("s_waitcnt vmcnt(0)")
    a("s_barrier")
    a(f"s_branch {lab_start}")

    a.label(lab_p2)
    if G.FZ and 'fpre' in EXP:
        G.code_pf(a, lab_fin, 1, 49, T0, 1)
    if 'qpf2' in EXP:
        lq = a.newlabel("L_qpf")
        a("s_cmp_eq_u32 s33, 2")
        a(f"s_cbranch_scc1 {lq}")
        a("s_mov_b32 s33, 2")
        a(f"s_load_dwordx2 s[54:55], s[0:1], {ARG['w2']}")
        a("s_lshl_b32 s3, s99, 3")
        a("s_add_u32 s3, s3, s49")
        a("s_mul_i32 s3, s3, 3584")
        a(f"v_lshlrev_b32 {v(T0)}, 7, v1")
        a("s_waitcnt lgkmcnt(0)")
        srd(a, 88, 54, 0, F * D * 2)
        a("s_mov_b64 exec, 0xfffffff")
        a(f"buffer_load_dword v255, {v(T0)}, s[88:91], s3 offen")
        a("s_mov_b64 exec, -1")
        a.label(lq)
    a("s_cmp_eq_u32 s28, 0")
    a(f"s_cbranch_scc1 {lab_fin}")
    part(vK2, vV2, MK2, lambda i: i * 2048, lambda i: 7 - i, a.newlabel("L_p2e"))
    a.label(lab_fin)
    stamp(6)
    a(f"v_add_f32 {v(SUM)}, {v(SUM)}, {v(SUM+1)}")
    a(f"v_add_f32 {v(SUM+2)}, {v(SUM+2)}, {v(SUM+3)}")
    a(f"v_add_f32 {v(SUM)}, {v(SUM)}, {v(SUM+2)}")
    a(f"ds_bpermute_b32 {v(SUM+1)}, {v(vX32)}, {v(SUM)}")
    a("s_waitcnt lgkmcnt(0)")
    a(f"v_add_f32 {v(SUM)}, {v(SUM)}, {v(SUM+1)}")
    lab_out = a.newlabel("L_out")
    a("s_cmp_lg_u32 s51, 0")
    a(f"s_cbranch_scc1 {lab_out}")
    lo = 2.0 ** -40 if 'forcemax' not in EXP else 2.0 ** 39
    a(f"v_mov_b32 {v(T1)}, {hex_f32(lo)}")
    a(f"v_mov_b32 {v(T0)}, {hex_f32(2.0**40)}")
    a(f"v_cmp_lt_f32 s[52:53], {v(T1)}, {v(SUM)}")
    a(f"v_cmp_lt_f32 s[54:55], {v(SUM)}, {v(T0)}")
    a("s_nop 3")
    a("s_and_b64 s[52:53], s[52:53], s[54:55]")
    a("s_cmp_eq_u64 s[52:53], exec")
    a(f"s_cbranch_scc1 {lab_out}")
    a("s_mov_b32 s51, 1")
    a(f"v_mov_b32 {v(VM)}, {v(vNEG)}")

    def maxpart(vK, MK, first_off, step, cnt_expr):
        lp = a.newlabel("L_mx"); lpe = a.newlabel("L_mxe")
        a(f"v_add_u32 {v(T0)}, {first_off}, {v(vK[0])}")
        a(f"v_add_u32 {v(T1)}, {first_off}, {v(vK[1])}")
        cnt_expr()

        def tile(C):
            a(f"ds_read_b128 {v(KB_[0],4)}, {v(T0)}")
            a(f"ds_read_b128 {v(KB_[0]+4,4)}, {v(T1)}")
            a("s_waitcnt lgkmcnt(0)")
            a(f"v_mfma_f32_32x32x16_bf16 {v(SA,16)}, {v(KB_[0],4)}, {v(QF,4)}, {v(C,16)}")
            a(f"v_mfma_f32_32x32x16_bf16 {v(SA,16)}, {v(KB_[0]+4,4)}, {v(QF+4,4)}, {v(SA,16)}")
            a("s_nop 7"); a("s_nop 7"); a("s_nop 7")
            for r in range(0, 16, 2):
                a(f"v_max3_f32 {v(VM)}, {v(VM)}, {v(SA+r)}, {v(SA+r+1)}")
            a(f"v_add_u32 {v(T0)}, {step}, {v(T0)}")
            a(f"v_add_u32 {v(T1)}, {step}, {v(T1)}")
        tile(MK)
        a.label(lp)
        a("s_cmp_eq_u32 s52, 0")
        a(f"s_cbranch_scc1 {lpe}")
        tile(CM)
        a("s_sub_u32 s52, s52, 1")
        a(f"s_branch {lp}")
        a.label(lpe)

    maxpart(vK1, MK1, 7 * 2048, -2048, lambda: a("s_mov_b32 s52, s44"))
    lmx = a.newlabel("L_mxd")
    a("s_cmp_eq_u32 s28, 0")
    a(f"s_cbranch_scc1 {lmx}")
    maxpart(vK2, MK2, 0, 2048, lambda: a("s_sub_u32 s52, 7, s44"))
    a.label(lmx)
    a(f"ds_bpermute_b32 {v(T0)}, {v(vX32)}, {v(VM)}")
    a("s_waitcnt lgkmcnt(0)")
    a(f"v_max_f32 {v(VM)}, {v(VM)}, {v(T0)}")
    a(f"v_sub_f32 {v(VM)}, 0, {v(VM)}")
    a(f"s_branch {lab_start}")

    a.label(lab_out)
    a(f"v_rcp_f32 {v(SUM)}, {v(SUM)}")
    if G.NL:
        a("s_lshl_b32 s3, s28, 1")
        a("s_lshr_b32 s46, s44, 2")
        a("s_add_u32 s3, s3, s46")
        a("s_lshl_b32 s3, s3, 5")
        a("s_add_u32 s3, s3, s29")
        a("s_lshl_b32 s3, s3, 2")
        a("s_and_b32 s46, s44, 3")
        a("s_add_u32 s3, s3, s46")
        a("s_lshl_b32 s100, s99, 7")
        a("s_lshl_b32 s3, s3, 11")
    elif G.OT:
        a("s_lshl_b32 s3, s28, 1")
        a("s_lshr_b32 s46, s44, 2")
        a("s_add_u32 s3, s3, s46")
        a("s_lshl_b32 s3, s3, 4")
        a("s_lshr_b32 s46, s29, 1")
        a("s_add_u32 s3, s3, s46")
        a("s_lshl_b32 s3, s3, 2")
        a("s_and_b32 s46, s44, 3")
        a("s_add_u32 s3, s3, s46")
        a(f"s_lshl_b32 s3, s3, {5+G.TSH}")
        a("s_and_b32 s46, s29, 1")
        a("s_lshl_b32 s46, s46, 6")
        a("s_add_u32 s3, s3, s46")
        a(f"v_lshlrev_b32 {v(T0)}, {G.TSH}, {v(vQQ)}")
        a(f"v_lshl_add_u32 {v(T0)}, {v(vHH)}, 3, {v(T0)}")
        a(f"v_add_u32 {v(T0)}, s3, {v(T0)}")
    else:
        a("s_lshl_b32 s3, s28, 8")
        a("s_lshl_b32 s46, s44, 5")
        a("s_add_u32 s3, s3, s46")
        a(f"v_add_u32 {v(T0)}, s3, {v(vQQ)}")
        a(f"v_lshlrev_b32 {v(T0)}, 11, {v(T0)}")
        a(f"v_lshl_add_u32 {v(T0)}, {v(vHH)}, 3, {v(T0)}")
        a("s_lshl_b32 s3, s29, 6")
        a(f"v_add_u32 {v(T0)}, s3, {v(T0)}")
    a("s_nop 7")
    for j in range(2 if G.NL else 0):
        for r in range(8):
            a(f"v_mul_f32 v{OA+8*j+r}, v{OA+8*j+r}, {v(SUM)}")
        for r in range(4):
            a(f"v_cvt_pk_bf16_f32 v{OA+8*j+r}, v{OA+8*j+2*r}, v{OA+8*j+2*r+1}")
        a(f"buffer_store_dwordx4 {v(OA+8*j,4)}, {v(vL16)}, s[12:15], s3 offen offset:{1024*j} {'sc0 sc1' if G.FZ else ''}")
    for g in range(0 if G.NL else 4):
        for r in range(4):
            a(f"v_mul_f32 v{OA+4*g+r}, v{OA+4*g+r}, {v(SUM)}")
        a(f"v_cvt_pk_bf16_f32 v{OA+4*g}, v{OA+4*g}, v{OA+4*g+1}")
        a(f"v_cvt_pk_bf16_f32 v{OA+4*g+1}, v{OA+4*g+2}, v{OA+4*g+3}")
        a(f"buffer_store_dwordx2 {v(OA+4*g,2)}, {v(T0)}, s[12:15], 0 offen offset:{16*g}")
    if 'stamp' in EXP and not G.FZ: a("s_waitcnt vmcnt(0)")
    stamp(7)
    stamp_out()
    if G.FZ: G.publish(a, 'P_oproj', 0)
    else: a(f"s_branch {end}")

    a.label(lab_lre)
    a("s_lshl_b32 s3, s30, 6")
    a(f"v_lshrrev_b32 {v(t0)}, 3, v1")
    a(f"v_add_u32 {v(t0)}, s3, {v(t0)}")
    for i in range(PA):
        a(f"v_add_u32 {v(t1)}, {8*i}, {v(t0)}")
        a(f"v_lshrrev_b32 {v(t2)}, 1, {v(t1)}")
        a(f"v_and_b32 {v(t2)}, 7, {v(t2)}")
        a(f"v_and_b32 {v(t3)}, 7, v1")
        a(f"v_xor_b32 {v(t2)}, {v(t2)}, {v(t3)}")
        a(f"v_add_u32 {v(t1)}, s98, {v(t1)}")
        a(f"v_mul_u32_u24 {v(t1)}, {lda}, {v(t1)}")
        a(f"v_lshl_add_u32 {v(vA[i])}, {v(t2)}, 4, {v(t1)}")
    a("s_lshl_b32 s3, s29, 6")
    for i in range(PB):
        a(f"s_mul_i32 s46, s30, {PB}")
        a(f"s_add_u32 s46, s46, {i}")
        a("s_lshr_b32 s47, s46, 2")
        a("s_and_b32 s46, s46, 3")
        a("s_lshl_b32 s46, s46, 4")
        a("s_lshl_b32 s47, s47, 11")
        a("s_add_u32 s47, s47, s3")
        a(f"v_lshrrev_b32 {v(t0)}, 2, v1")
        a(f"v_add_u32 {v(t0)}, s46, {v(t0)}")
        a(f"v_and_b32 {v(t1)}, 3, v1")
        a(f"v_bfe_u32 {v(t2)}, {v(t0)}, 3, 1")
        a(f"v_lshlrev_b32 {v(t2)}, 1, {v(t2)}")
        a(f"v_xor_b32 {v(t1)}, {v(t1)}, {v(t2)}")
        a(f"v_mul_u32_u24 {v(t0)}, {N*2}, {v(t0)}")
        a(f"v_lshl_add_u32 {v(t0)}, {v(t1)}, 4, {v(t0)}")
        a(f"v_add_u32 {v(vB[i])}, s47, {v(t0)}")
    a(f"s_branch {lab_lpass}")
    if G.FZ:
        a.label("Q_help")
        a(f"s_load_dwordx2 s[24:25], s[0:1], {ARG['ws']}")
        a(f"s_load_dwordx2 s[58:59], s[0:1], {ARG['x']}")
        a(f"s_load_dwordx2 s[26:27], s[0:1], {ARG['wqkv']}")
        a("v_readlane_b32 s34, v255, 1")
        a("v_readlane_b32 s35, v255, 2")
        a("s_branch Q_go")
    a.label(end)
    a("s_endpgm")
    return dict(name=name, grid=256, block=512, lds=lds, desc=G.kernel_desc(name, 256))
```

```python
import sys, math, os
EXP=os.environ.get('EXP','')
STMOD=os.environ.get('STMOD','sc0 sc1')
STALL=os.environ.get('STALL','')
RPM=int(os.environ.get('RPM','2'))
PFS=int(os.environ.get('PFS','4'))

OUT = os.environ.get("OUTF","sequential_preLN__sliding_block__mixer_channel_mlp__prompt.s")

S = 2048; D = 1024; F = 3584; H = 32; DH = 32; WIN = 256
ARG = dict(x=0, wqkv=8, wo=16, bx=24, w1=32, b1=40, w2=48, b2=56, out=64, dbg=72, ws=80)
MB = 1 << 20
WS_Y1 = 0
WS_QKV = 4 * MB
TP = int(os.environ.get('TP', '128')); TX = TP // 128; TSH = 7 + TX.bit_length() - 1
OT = 'noot' not in EXP
C3 = 'noc3' not in EXP
QC3 = 'qc3' in EXP
FZ = 'fz' in EXP
NL = 'nl' in EXP or FZ
WS_O = 16 * MB
WS_H = 24 * MB
WS_Y2 = 24 * MB
WS_H1 = 32 * MB
WS_W2C = 62 * MB
WS_WOC = 64 * MB
WS_ST = 0
WS_CS = 1 * MB
WS_SIZE = 256 * MB
WS_FLAG = 2 * MB
WS_W2T = 72 * MB
WS_W1T = 88 * MB
W1T = 'w1t' in EXP
WS_FL = 3 * MB + 262144
CTRL = 163840 - 64
WS_PART = 80 * MB
LDH1 = F * 2 * TX


class Asm:
    def __init__(self):
        self.lines = []
        self.nlab = 0

    def __call__(self, s):
        self.lines.append("    " + s)

    def label(self, l):
        self.lines.append(l + ":")

    def newlabel(self, base="L"):
        self.nlab += 1
        return f"{base}_{self.nlab}"

    def c(self, s):
        self.lines.append("    ; " + s)

    def dry_begin(self, wave_sreg, idx_sreg, nw=4):
        self.dry = dict(ret=self.newlabel("L_dret"), disp=self.newlabel("L_ddisp"), done=self.newlabel("L_ddone"),
                        ent=[], idx=idx_sreg, nw=nw)
        self(f"s_mov_b32 s{idx_sreg}, s{wave_sreg}")
        self("s_mov_b64 exec, 0")
        self(f"s_branch {self.dry['disp']}")
        self.label(self.dry['done'])
        self("s_mov_b64 exec, -1")

    def dry_entry(self):
        l = self.newlabel("L_dent")
        self.label(l)
        self.dry['ent'].append(l)

    def dry_exit(self):
        self(f"s_cbranch_execz {self.dry['ret']}")

    def dry_mark(self):
        self.dry_exit(); self.dry_entry()

    def dry_dispatch(self):
        d = self.dry
        self.label(d['ret'])
        self(f"s_add_u32 s{d['idx']}, s{d['idx']}, {d['nw']}")
        self.label(d['disp'])
        for i, l in enumerate(d['ent']):
            self(f"s_cmp_eq_u32 s{d['idx']}, {i}")
            self(f"s_cbranch_scc1 {l}")
        self(f"s_branch {d['done']}")


def v(i, n=1):
    return f"v{i}" if n == 1 else f"v[{i}:{i+n-1}]"


def s(i, n=1):
    return f"s{i}" if n == 1 else f"s[{i}:{i+n-1}]"


def srd(a, d, base, off, nbytes):
    if off:
        a(f"s_add_u32 s{d}, s{base}, {off}")
        a(f"s_addc_u32 s{d+1}, s{base+1}, 0")
    else:
        a(f"s_mov_b32 s{d}, s{base}")
        a(f"s_mov_b32 s{d+1}, s{base+1}")
    a(f"s_and_b32 s{d+1}, s{d+1}, 0xffff")
    a(f"s_mov_b32 s{d+2}, {nbytes}")
    a(f"s_mov_b32 s{d+3}, 0x00020000")


def publish(a, nxt, ph):
    x = 246
    a("s_memrealtime s[96:97]")
    srd(a, 76, 24, WS_FL, 98304)
    a(f"v_lshlrev_b32 {v(x+4)}, 4, v1")
    a("s_waitcnt lgkmcnt(0)")
    for j in range(4):
        a(f"v_mov_b32 {v(x+j)}, s{96+(j&1)}")
    if ph == 2:
        lw = a.newlabel("L_c3w")
        a("s_cmp_lg_u32 s49, 1")
        a(f"s_cbranch_scc1 {lw}")
        a("v_readlane_b32 s3, v255, 5")
        a(f"v_mov_b32 {v(x+5)}, {CTRL}")
        a("s_nop 1")
        a(f"v_mov_b32 {v(x+6)}, s3")
        a(f"ds_write_b32 {v(x+5)}, {v(x+6)} offset:4")
        a("s_waitcnt lgkmcnt(0)")
        a.label(lw)
    a("s_cmp_lg_u32 s49, 0")
    a("s_waitcnt vmcnt(0)")
    a("s_barrier")
    a(f"s_cbranch_scc1 {nxt}")
    if 'ftest' in EXP and str(ph) in os.environ.get('FTP', '012'):
        a("v_readlane_b32 s3, v255, 3")
        a("s_and_b32 s46, s2, 63")
        a(f"s_xor_b32 s46, s46, {5 + 7 * ph}")
        a("s_or_b32 s3, s3, s46")
        a("s_cmp_eq_u32 s3, 0")
        a(f"s_cbranch_scc1 {nxt}")
    a("s_mov_b64 exec, 0xff")
    a(f"buffer_store_dwordx4 {v(x,4)}, {v(x+4)}, s[76:79], s100 offen sc0 sc1")
    a("s_mov_b64 exec, -1")
    a(f"s_branch {nxt}")


def gen_sched(a):
    go = {1: "P_oproj_go", 2: "P_ffn1_go", 3: "P_ffn2_go"}
    nd = {1: 32, 2: 32, 3: 16}
    for p in (1, 2, 3):
        a.label(f"S_fail{p}")
        a("s_waitcnt vmcnt(0) lgkmcnt(0)")
        a("s_barrier")
        a("v_readlane_b32 s46, v255, 3")
        a("s_lshl_b32 s47, s29, 8")
        a("s_or_b32 s47, s47, s28")
        a(f"v_writelane_b32 v255, s47, {8+2*p}")
        a(f"v_writelane_b32 v255, 0, {9+2*p}")
        a(f"v_writelane_b32 v255, {p}, 3")
        a("s_cmp_lg_u32 s46, 0")
        a("s_cbranch_scc1 S_next")
        a(f"v_writelane_b32 v255, {p}, 4")
        a("s_branch S_next")
    a.label("S_next")
    a("s_setprio 0")
    a("s_nop 1")
    a("v_readlane_b32 s3, v255, 3")
    a("s_nop 3")
    for p in (1, 2):
        a(f"s_cmp_eq_u32 s3, {p}")
        a(f"s_cbranch_scc1 S_n{p}")
    for p in (3, 2, 1):
        a.label(f"S_n{p}")
        a(f"v_readlane_b32 s46, v255, {8+2*p}")
        a(f"v_readlane_b32 s47, v255, {9+2*p}")
        a("v_readlane_b32 s3, v255, 4")
        a("s_nop 3")
        a("s_and_b32 s28, s46, 15")
        a("s_bfe_u32 s29, s46, 0x40008")
        a(f"s_cmp_lt_u32 s47, {nd[p]}")
        a(f"s_cbranch_scc1 S_d{p}")
        a(f"s_cmp_eq_u32 s3, {p}")
        a(f"s_cselect_b32 s3, 0, {p+1}")
        a("v_writelane_b32 v255, s3, 3")
        a("v_writelane_b32 v255, 1, 6")
        a(f"s_branch {go[p]}")
        a.label(f"S_d{p}")
        a("s_add_u32 s3, s47, 1")
        a(f"v_writelane_b32 v255, s3, {9+2*p}")
        if p == 1:
            a("s_lshr_b32 s28, s28, 1")
            a("s_mov_b32 s29, s47")
            a("s_branch Q_help")
        elif p == 2:
            a("s_lshl_b32 s3, s29, 4")
            a("s_mov_b32 s29, s47")
            a("s_cmp_lt_u32 s47, 16")
            a(f"s_cbranch_scc1 {go[1]}")
            a("s_add_u32 s3, s3, s47")
            a("s_sub_u32 s3, s3, 16")
            a("s_lshr_b32 s28, s3, 5")
            a("s_and_b32 s29, s3, 31")
            a("s_branch Q_help")
        else:
            a("s_mov_b32 s29, s47")
            a(f"s_branch {go[2]}")


def code_pf(a, lab_from, nwaves, wave_sreg, vt, first=0):
    lh = a.newlabel("L_pc"); ls = a.newlabel("L_pcs")
    a(f"s_sub_u32 s3, s{wave_sreg}, {first}")
    a(f"s_cmp_ge_u32 s3, {nwaves}")
    a(f"s_cbranch_scc1 {ls}")
    a("s_getpc_b64 s[46:47]")
    a.label(lh)
    if lab_from:
        a(f"s_add_u32 s46, s46, {lab_from}-{lh}")
        a("s_addc_u32 s47, s47, 0")
    else: lab_from = lh
    a("s_lshl_b32 s3, s3, 13")
    a(f"v_lshl_add_u32 {v(vt)}, v1, 7, s3")
    a(f"v_min_u32 {v(vt)}, L_code_end-{lab_from}-4, {v(vt)}")
    a(f"global_load_dword v254, {v(vt)}, s[46:47]")
    a.label(ls)


def hex_f32(x):
    import struct
    return hex(struct.unpack('<I', struct.pack('<f', x))[0])


def kernel_header(a, name):
    a.lines.append(".p2align 8")
    a.lines.append(f".globl {name}")
    a.lines.append(f".type {name},@function")
    a.label(name)


def kernel_desc(name, nvgpr, nsgpr=102, accum=None):
    nv = ((nvgpr + 7) // 8) * 8
    acc = accum if accum is not None else ((nvgpr + 3) // 4) * 4
    return f""".amdhsa_kernel {name}
  .amdhsa_next_free_vgpr {nv if accum is None else nvgpr}
  .amdhsa_next_free_sgpr {nsgpr}
  .amdhsa_accum_offset {min(acc,256)}
  .amdhsa_group_segment_fixed_size 0
  .amdhsa_kernarg_size 88
  .amdhsa_user_sgpr_count 2
  .amdhsa_user_sgpr_kernarg_segment_ptr 1
  .amdhsa_system_sgpr_workgroup_id_x 1
.end_amdhsa_kernel
"""


def gen_prefetch(a, regions, end_label):
    CH = 32768
    counts = [nbytes // CH for _, nbytes in regions]
    for (_, nbytes), c in zip(regions, counts):
        assert c * CH == nbytes
    total = sum(counts)
    skip = a.newlabel("L_nopf")
    a(f"s_cmp_ge_u32 s2, {total}")
    a(f"s_cbranch_scc1 {skip}")
    base = 0
    for (arg, nbytes), c in zip(regions, counts):
        nxt = a.newlabel("L_pfn")
        a(f"s_cmp_ge_u32 s2, {base + c}")
        a(f"s_cbranch_scc1 {nxt}")
        a(f"s_load_dwordx2 s[4:5], s[0:1], {ARG[arg]}")
        a(f"s_sub_u32 s3, s2, {base}")
        a("s_lshl_b32 s3, s3, 15")
        a("v_lshlrev_b32 v1, 4, v0")
        a("v_add_u32 v1, s3, v1")
        a("s_waitcnt lgkmcnt(0)")
        srd(a, 8, 4, 0, nbytes)
        for j in range(8):
            a(f"v_add_u32 v2, {4096*j}, v1")
            a(f"buffer_load_dwordx4 {v(4+4*j,4)}, v2, s[8:11], 0 offen")
        a("s_waitcnt vmcnt(0)")
        a(f"s_branch {end_label}")
        a.label(nxt)
        base += c
    a.label(skip)
    a(f"s_sub_u32 s2, s2, {total}")
    return total


def tail_prefetch(a, task, lane, regions, vtmp, vdst):
    ntask = 2048
    total = sum(n for _, n in regions)
    per = total // ntask
    assert per * ntask == total and per % 1024 == 0
    nld = per // 1024
    base = 0
    done = a.newlabel("L_pfdone")
    for arg, nbytes in regions:
        cnt = nbytes // per
        assert cnt * per == nbytes
        nxt = a.newlabel("L_pfn")
        a(f"s_cmp_ge_u32 s{task}, {base + cnt}")
        a(f"s_cbranch_scc1 {nxt}")
        a(f"s_load_dwordx2 s[94:95], s[0:1], {ARG[arg]}")
        a(f"s_sub_u32 s93, s{task}, {base}")
        a(f"s_mul_i32 s93, s93, {per}")
        a(f"v_lshlrev_b32 {v(vtmp)}, 4, {v(lane)}")
        a(f"v_add_u32 {v(vtmp)}, s93, {v(vtmp)}")
        a("s_waitcnt lgkmcnt(0)")
        srd(a, 96, 94, 0, nbytes)
        for j in range(nld):
            if j and j % 4 == 0:
                a(f"v_add_u32 {v(vtmp)}, 4096, {v(vtmp)}")
            a(f"buffer_load_dwordx4 {v(vdst,4)}, {v(vtmp)}, s[96:99], 0 offen offset:{1024*(j%4)}")
        a(f"s_branch {done}")
        a.label(nxt)
        base += cnt
    a.label(done)
    return nld

def gen_ln(a, name, src_arg, src_off, dst_off, double, pf=None):
    nwg = S // 4
    kernel_header(a, name)
    end = a.newlabel("L_end")
    npf = 0
    a(f"s_cmp_ge_u32 s2, {nwg}")
    a(f"s_cbranch_scc1 {end}")
    a(f"s_load_dwordx2 s[4:5], s[0:1], {ARG[src_arg]}")
    a(f"s_load_dwordx2 s[6:7], s[0:1], {ARG['ws']}")
    a("v_lshrrev_b32 v1, 6, v0")
    a("v_and_b32 v2, 63, v0")
    a("s_lshl_b32 s3, s2, 2")
    a("v_add_u32 v1, s3, v1")
    a("v_lshlrev_b32 v3, 11, v1")
    a("v_lshl_add_u32 v3, v2, 5, v3")
    for i, m in enumerate([1, 2, 4, 8, 16, 32]):
        a(f"v_xor_b32 v{12+i}, {m}, v2")
        a(f"v_lshlrev_b32 v{12+i}, 2, v{12+i}")
    a("s_waitcnt lgkmcnt(0)")
    srd(a, 8, 4, src_off, S * D * 2)
    srd(a, 12, 6, dst_off, S * D * 2)
    a("buffer_load_dwordx4 v[4:7], v3, s[8:11], 0 offen")
    a("buffer_load_dwordx4 v[8:11], v3, s[8:11], 0 offen offset:16")
    npl = 0
    if pf:
        a("v_readfirstlane_b32 s92, v1")
        a("s_nop 3")
        npl = tail_prefetch(a, 92, 2, pf, 44, 48)
    a(f"s_waitcnt vmcnt({npl})")

    def unpack():
        for i in range(8):
            a(f"v_lshlrev_b32 v{20+2*i}, 16, v{4+i}")
            a(f"v_and_b32 v{21+2*i}, 0xffff0000, v{4+i}")

    def bfly():
        for i in range(6):
            a(f"ds_bpermute_b32 v41, v{12+i}, v40")
            a("s_waitcnt lgkmcnt(0)")
            a("v_add_f32 v40, v40, v41")

    def norm():
        a("v_add_f32 v40, v20, v21")
        for i in range(2, 16):
            a(f"v_add_f32 v40, v40, v{20+i}")
        bfly()
        a("v_mul_f32 v40, 0x3a800000, v40")
        for i in range(16):
            a(f"v_sub_f32 v{20+i}, v{20+i}, v40")
        a("v_mul_f32 v40, v20, v20")
        for i in range(1, 16):
            a(f"v_fmac_f32 v40, v{20+i}, v{20+i}")
        bfly()
        a("v_mov_b32 v42, 0x3727c5ac")
        a("v_fma_f32 v40, v40, v43, v42")
        a("v_rsq_f32 v40, v40")
        a("s_nop 0")
        for i in range(16):
            a(f"v_mul_f32 v{20+i}, v{20+i}, v40")
        for i in range(8):
            a(f"v_cvt_pk_bf16_f32 v{4+i}, v{20+2*i}, v{21+2*i}")

    a("v_mov_b32 v43, 0x3a800000")
    unpack()
    norm()
    if double:
        unpack()
        norm()
    a("buffer_store_dwordx4 v[4:7], v3, s[12:15], 0 offen")
    a("buffer_store_dwordx4 v[8:11], v3, s[12:15], 0 offen offset:16")
    a.label(end)
    a("s_endpgm")
    return dict(name=name, grid=nwg + npf, block=256, lds=0, desc=kernel_desc(name, 56))


def gen_gemm(a, name, N, K, BN, a_off, w_arg, epi, out_arg, out_off, res_arg=None, res_off=0,
             bias_arg=None, BM=128, NSTAGE=3, RA=4, RBN=8, ln=None, a_arg='ws', pre=False, stats_out=False, lda=None, ldo=None, splitk=None, zero_flags=False, l2pf=0, wpf=None, atile=False, w_off=None, otile=False, w2copy=False, dry=0, epi2=False, spf=None, rtile=False, c3src=None, c3=None, sp2=None, sp3=None, wt7=False, flags=False, sp4=None, endpf=None, alay=None, fz=None):
    import struct
    M = S
    BK = 64
    lda = lda or K * 2
    ldo = ldo or N * 2
    ATILE = ('at_' + name.split('_')[0]) in EXP or atile
    BTILE = ('bt_' + name.split('_')[0]) in EXP or w_off is not None
    ASTEP = BM * TP if ATILE else BK * 2
    NT_M = M // BM
    NT_N = N // BN
    ntiles = NT_M * NT_N
    MT = BM // 2 // 16
    NTW = BN // 2 // 16
    RB = {64: 128, 128: 128, 192: 128, 96: 64, 224: 448, 112: 32}[BN]
    ABYTES = BM * BK * 2
    BBYTES = BK * BN * 2
    STAGE = ABYTES + BBYTES
    PA = ABYTES // 1024 // 4
    PB = BBYTES // 1024 // 4
    assert PA * 4096 == ABYTES and PB * 4096 == BBYTES
    P = PA + PB
    NS = K // BK
    if splitk:
        NSLO, NSHI = splitk
        assert NSLO + NSHI == NS and (NSLO - NSHI) % NSTAGE == 0
        NS = NSHI
        ntiles *= 2
    lds = STAGE * NSTAGE
    CROW = BN * 2 + 16
    CSZ = BM * CROW
    LASTB = (NS - 1) % NSTAGE
    TBL = 2048 if (ln and not pre) else 0
    CBASE = 0 if LASTB * STAGE >= CSZ + TBL else (LASTB + 1) * STAGE
    assert CBASE + CSZ + TBL <= lds
    EPI = lds
    st_res = bool(res_arg) and not splitk
    if splitk:
        DONE = CBASE + CSZ
        assert DONE + 16 <= (LASTB * STAGE if CBASE == 0 else lds)
    st_bias = pre
    if st_res: lds += BM * BN * 2
    if st_bias: lds += 3072 + 4096
    FL = flags and not splitk and not (ln and not pre)
    if FL:
        FLG = lds; lds += 2048
    assert lds <= 163840
    if pre:
        CTAB = EPI + 1024; RTAB = EPI + 2048
    else:
        RTAB = CBASE + CSZ; CTAB = RTAB + 1024
    NEX = (BM * BN * 2 // 4096 if st_res else 0)
    PPR = RB // 32
    lg_ppr = int(math.log2(PPR)) if RB != 448 else 0

    vA = list(range(2, 2 + PA))
    vB = list(range(2 + PA, 2 + PA + PB))
    nxt = 2 + PA + PB
    vXb = [nxt, nxt + 1]; nxt += 2
    vWb = list(range(nxt, nxt + NTW)); nxt += NTW
    vXc = [nxt, nxt + 1]; nxt += 2
    vWc = list(range(nxt, nxt + NTW)); nxt += NTW
    vT = list(range(nxt, nxt + 8)); nxt += 8
    nxt = (nxt + 3) // 4 * 4
    FX = [nxt, nxt + 4 * MT]; nxt += 8 * MT
    FW = [nxt, nxt + 4 * NTW]; nxt += 8 * NTW
    ACC = nxt; nxt += 4 * MT * NTW
    PBI = nxt
    if bias_arg and not pre: nxt += 2 * NTW
    if l2pf or wpf or spf or sp2:
        nxt = (nxt + 3) // 4 * 4
        PFD = nxt; PFV = nxt + 4; nxt += 5
    W2S = 136; W2A = 164
    if splitk:
        PRT = nxt; nxt += 4 * MT * NTW
        PFL = nxt; PFA = nxt + 1; PPA = nxt + 2; nxt += 3
    nvgpr = nxt
    assert nvgpr <= 256
    t0, t1, t2, t3 = vT[0], vT[1], vT[2], vT[3]

    def acc(nt, mt):
        return ACC + 4 * (nt * MT + mt)

    def stamp(i, force=False):
        if 'bst' in EXP and i in (4, 5, 6) and not force: return
        if 'bst' not in EXP and force: return
        if 'stamp' in EXP:
            if ('rt2' in EXP and i in (0, 7)) or fz:
                a(f"s_memrealtime s[{60+2*i}:{61+2*i}]")
            elif 'rt' in EXP and 'rt2' not in EXP and i in (1, 6):
                a(f"s_memrealtime s[{60+2*i}:{61+2*i}]")
                a(f"s_memtime s[{62 if i == 1 else 70}+0:{63 if i == 1 else 71}]".replace("+0","")) if False else None
            else:
                a(f"s_memtime s[{60+2*i}:{61+2*i}]")
            if i >= 6: a("s_waitcnt lgkmcnt(0)")

    def stamp_out():
        if 'stamp' not in EXP: return
        a("s_waitcnt lgkmcnt(0)")
        srd(a, 80, 24, (200 + ({'o':1,'1':2,'2':3}[name[0] if name[0]=='o' else name[3]] if 'rt2' in EXP or fz else 0)) * MB, 1 << 20)
        a("s_lshl_b32 s3, s2, 3")
        a("s_add_u32 s3, s3, s49")
        a("s_lshl_b32 s3, s3, 6")
        a("v_mov_b32 v2, s3")
        for i in range(8):
            a(f"v_mov_b32 v4, s{60+2*i}")
            a(f"v_mov_b32 v5, s{61+2*i}")
            a(f"buffer_store_dwordx2 v[4:5], v2, s[80:83], 0 offen offset:{8*i}")
            a("s_nop 1")

    def wfrag_addr_common():
        a(f"v_lshrrev_b32 {v(t1)}, 4, v1")
        a(f"v_bfe_u32 {v(t0)}, v1, 2, 2")
        a(f"v_lshl_add_u32 {v(t2)}, {v(t1)}, 3, {v(t0)}")
        if RB == 256:
            a(f"v_and_b32 {v(t3)}, 1, {v(t1)}")
            a(f"v_lshl_add_u32 {v(t3)}, {v(t3)}, 2, {v(t0)}")
        elif RB == 128:
            a(f"v_and_b32 {v(t3)}, 1, {v(t1)}")
            a(f"v_lshrrev_b32 {v(t0)}, 1, {v(t0)}")
            a(f"v_lshl_add_u32 {v(t3)}, {v(t3)}, 1, {v(t0)}")
        elif RB in (64, 448):
            a(f"v_and_b32 {v(t3)}, 1, {v(t1)}")
        else:
            a(f"v_mov_b32 {v(t3)}, 0")
        a(f"v_mul_u32_u24 {v(t2)}, {RB}, {v(t2)}")
        a(f"v_and_b32 {v(t0)}, 3, v1")
        a(f"v_lshl_add_u32 {v(t2)}, {v(t0)}, 3, {v(t2)}")
        a(f"v_add_u32 {v(t2)}, {ABYTES}, {v(t2)}")

    def wfrag_addr(dst):
        if RB == 448:
            a("s_mov_b32 s47, 0")
        elif PPR > 1:
            a(f"s_lshr_b32 s47, s46, {lg_ppr}")
            a(f"s_and_b32 s46, s46, {PPR-1}")
        else:
            a("s_mov_b32 s47, s46")
            a("s_mov_b32 s46, 0")
        a(f"s_mul_i32 s47, s47, {64*RB}")
        a(f"v_xor_b32 {v(t0)}, s46, {v(t3)}")
        a(f"v_lshl_add_u32 {v(t0)}, {v(t0)}, 5, {v(t2)}")
        a(f"v_add_u32 {v(dst)}, s47, {v(t0)}")

    def poll(x):
        lp = a.newlabel("L_fpoll"); ld = a.newlabel("L_fpolld")
        a("s_cmp_lg_u32 s49, 0")
        a(f"s_cbranch_scc1 {ld}")
        nd = 16 if fz['ph'] == 3 else 32
        a(f"s_mov_b32 exec_lo, {hex((1 << nd) - 1)}")
        a("s_mov_b32 exec_hi, 0")
        a("v_readlane_b32 s96, v255, 1")
        a("v_readlane_b32 s97, v255, 2")
        a("v_readlane_b32 s47, v255, 6")
        a(f"v_lshlrev_b32 {v(x+4)}, 7, v1")
        if fz['ph'] == 1:
            a("s_lshr_b32 s3, s28, 1")
            a("s_lshl_b32 s3, s3, 12")
        else:
            a("s_lshl_b32 s3, s28, 11")
            a(f"s_add_u32 s3, s3, {32768*(fz['ph']-1)}")
        if fz['ph'] == 2:
            a("s_lshl_b32 s46, s29, 11")
            a("s_sub_u32 s46, s46, 2048")
            a(f"v_add_u32 {v(x+5)}, s3, {v(x+4)}")
            a("s_mov_b32 exec_lo, 0xffff0000")
            a(f"v_add_u32 {v(x+5)}, s46, {v(x+4)}")
            a("s_mov_b32 exec_lo, -1")
            a(f"v_mov_b32 {v(x+4)}, {v(x+5)}")
            a("s_mov_b32 s3, 0")
        a("s_add_u32 s98, s96, 0x1000000")
        a("s_addc_u32 s99, s97, 0")
        a(f"s_mov_b32 s101, {int(os.environ.get('FZPOLL', '200'))}")
        a("v_writelane_b32 v255, 0, 6")
        a("s_cmp_lg_u32 s47, 0")
        a(f"s_cbranch_scc1 {lp}x")
        a.label(lp)
        a(f"buffer_load_dwordx2 {v(x+6,2)}, {v(x+4)}, s[76:79], s3 offen sc0 sc1")
        a("s_waitcnt vmcnt(0)")
        a(f"v_cmp_lt_u64 vcc, s[96:97], {v(x+6,2)}")
        a(f"v_cmp_gt_u64 s[46:47], s[98:99], {v(x+6,2)}")
        a("s_nop 1")
        a("s_and_b64 s[46:47], s[46:47], vcc")
        a("s_sub_u32 s101, s101, 1")
        a("s_cselect_b64 s[46:47], exec, s[46:47]")
        a("s_cmp_lg_u64 s[46:47], exec")
        a(f"s_cbranch_scc1 {lp}")
        a.label(lp + "x")
        a("s_mov_b64 exec, -1")
        a("s_lshr_b32 s3, s101, 31")
        a(f"v_mov_b32 {v(x+4)}, {CTRL}")
        a(f"v_mov_b32 {v(x+5)}, s3")
        a(f"ds_write_b32 {v(x+4)}, {v(x+5)}")
        a("s_cmp_lg_u32 s3, 0")
        stamp(1)
        a("s_waitcnt lgkmcnt(0)")
        a("s_barrier")
        a(f"s_cbranch_scc1 S_fail{fz['ph']}")
        a.label(ld)

    def t2_wait(x):
        a(f"v_mov_b32 {v(x)}, {CTRL}")
        a("s_barrier")
        a(f"ds_read_b32 {v(x)}, {v(x)}")
        a("s_waitcnt lgkmcnt(0)")
        a(f"v_cmp_ne_u32 vcc, 0, {v(x)}")
        a(f"s_cbranch_vccnz S_fail{fz['ph']}")

    def phase_end():
        if fz and fz['next']:
            a("s_lshl_b32 s3, s28, 4")
            a("s_add_u32 s3, s3, s29")
            a("s_lshl_b32 s3, s3, 7")
            a(f"s_add_u32 s100, s3, {32768*fz['ph']}")
            publish(a, fz['next'], fz['ph'])

    end = a.newlabel("L_end")
    if fz:
        a.lines.append(".p2align 6")
        a.label(fz['entry'])
    else:
        kernel_header(a, name)
    stamp(0)
    lab_loader = a.newlabel("L_loader")
    lab_store = a.newlabel("L_store")
    if fz:
        a("v_readlane_b32 s46, v255, 3")
        a("s_setprio 0")
        a("s_nop 2")
        a("s_cmp_lg_u32 s46, 0")
        a("s_cbranch_scc1 S_next")
    else:
        a(f"s_cmp_ge_u32 s2, {ntiles}")
        a(f"s_cbranch_scc1 {end}")
    pos_ld = len(a.lines)
    a(f"s_load_dwordx2 s[24:25], s[0:1], {ARG['ws']}")
    a(f"s_load_dwordx2 s[58:59], s[0:1], {ARG[a_arg]}")
    a(f"s_load_dwordx2 s[26:27], s[0:1], {ARG[w_arg]}")
    a(f"s_load_dwordx2 s[34:35], s[0:1], {ARG[out_arg]}")
    if res_arg:
        a(f"s_load_dwordx2 s[36:37], s[0:1], {ARG[res_arg]}")
    if bias_arg:
        a(f"s_load_dwordx2 s[38:39], s[0:1], {ARG[bias_arg]}")
    lds_ = a.lines[pos_ld:]
    if fz: del a.lines[pos_ld:]
    XSPL = bool(splitk) and RA * RBN == 32
    assert ntiles == 256 and RA * RBN == (16 if splitk and not XSPL else 32) and NT_M % RA == 0 and NT_N % RBN == 0
    XB = NT_N // RBN
    a("s_and_b32 s3, s2, 7")
    a("s_lshr_b32 s46, s2, 3")
    if splitk:
        if XSPL:
            a("s_and_b32 s92, s3, 1")
            a("s_lshr_b32 s3, s3, 1")
            a("s_lshl_b32 s96, s3, 5")
        else:
            a("s_lshr_b32 s92, s46, 4")
            a("s_and_b32 s46, s46, 15")
            a("s_lshl_b32 s96, s3, 4")
        a("s_add_u32 s96, s96, s46")
        a("s_cmp_eq_u32 s92, 0")
        a(f"s_cselect_b32 s93, {NSLO}, {NSHI}")
        a("s_mov_b32 s94, 1")
    a(f"s_lshr_b32 s28, s3, {int(math.log2(XB))}")
    a(f"s_and_b32 s29, s3, {XB-1}")
    a(f"s_mul_i32 s28, s28, {RA}")
    a(f"s_mul_i32 s29, s29, {RBN}")
    a(f"s_lshr_b32 s3, s46, {int(math.log2(RBN))}")
    a("s_add_u32 s28, s28, s3")
    NROT = int(os.environ.get('NROT', '0'))
    if NROT: a(f"s_add_u32 s46, s46, {NROT}")
    a(f"s_and_b32 s3, s46, {RBN-1}")
    a("s_add_u32 s29, s29, s3")
    if fz:
        a.label(fz['entry'] + "_go")
        a.lines.extend(lds_)
    a("v_and_b32 v1, 63, v0")
    a(f"v_lshrrev_b32 {v(vT[0])}, 6, v0")
    a("s_nop 0")
    a(f"v_readfirstlane_b32 s49, {v(vT[0])}")
    a("s_nop 3")
    a("s_and_b32 s30, s49, 3")
    a("s_lshr_b32 s44, s30, 1")
    a("s_and_b32 s45, s30, 1")
    if fz: poll(246)

    WBYTES = NT_N * (K // 2) * 1024 if wt7 else K * N * 2
    def build_srds(rest=False):
        if not rest:
            a("s_waitcnt lgkmcnt(0)")
            srd(a, 4, 58, a_off, M * lda)
            srd(a, 8, 26, w_off or 0, WBYTES)
        srd(a, 12, 34, out_off, M * ldo)
        if res_arg:
            srd(a, 16, 36, res_off, M * N * 2 * (TX if rtile else 1))
        if bias_arg:
            srd(a, 20, 38, 0, N * 2)
        if pre or stats_out:
            srd(a, 84, 24, WS_ST, S * 128)
        if pre:
            srd(a, 88, 24, WS_CS, 16 * N * 4)
        if splitk:
            srd(a, 84, 24, WS_PART, 128 * 65536)
            srd(a, 88, 24, WS_FLAG, 512)

    FS = 'nofs' not in EXP and not splitk and not zero_flags and RB in (128, 448) and BN in (64, 224) and 'nodma' not in EXP
    if FS:
        lab_comp = a.newlabel("L_comp")
        a("s_cmp_lt_u32 s49, 4")
        a(f"s_cbranch_scc1 {lab_comp}")
        pos_ins = len(a.lines)
        a.label(lab_comp)
    else:
        a("s_cmp_ge_u32 s49, 4")
        a(f"s_cbranch_scc1 {lab_loader}")

    a(f"v_and_b32 {v(t0)}, 15, v1")
    if alay == 'o':
        a("s_lshl_b32 s3, s44, 12")
        a(f"v_lshl_add_u32 {v(t0)}, {v(t0)}, 4, s3")
        a(f"v_lshrrev_b32 {v(t1)}, 4, v1")
        a(f"v_lshl_add_u32 {v(vXb[0])}, {v(t1)}, 9, {v(t0)}")
        a(f"v_add_u32 {v(vXb[1])}, 0x2000, {v(vXb[0])}")
    else:
        a("s_lshl_b32 s3, s44, 6")
        a(f"v_add_u32 {v(t0)}, s3, {v(t0)}")
        a(f"v_lshlrev_b32 {v(t0)}, 7, {v(t0)}")
        a(f"v_lshrrev_b32 {v(t1)}, 4, v1")
        a(f"v_bfe_u32 {v(t2)}, v1, 1, 3")
        a(f"v_xor_b32 {v(t3)}, {v(t1)}, {v(t2)}")
        a(f"v_lshl_add_u32 {v(vXb[0])}, {v(t3)}, 4, {v(t0)}")
        a(f"v_xor_b32 {v(t3)}, 4, {v(t3)}")
        a(f"v_lshl_add_u32 {v(vXb[1])}, {v(t3)}, 4, {v(t0)}")
    xoff = (lambda mt: (mt >> 1) * 2048 + (mt & 1) * 256) if alay == 'o' else (lambda mt: mt * 2048)
    wfrag_addr_common()
    a(f"s_mul_i32 s3, s45, {NTW}")
    for nt in range(NTW):
        a(f"s_add_u32 s46, s3, {nt}")
        wfrag_addr(vWb[nt])
    for i in range(4 * MT * NTW):
        a(f"v_mov_b32 v{ACC+i}, 0")
    a("s_mov_b32 s42, 0")
    build_srds()
    if bias_arg and not pre:
        a(f"v_lshrrev_b32 {v(t0)}, 4, v1")
        a(f"v_lshlrev_b32 {v(t0)}, 3, {v(t0)}")
        a(f"s_mul_i32 s3, s29, {BN*2}")
        a(f"s_mul_i32 s46, s45, {BN}")
        a("s_add_u32 s3, s3, s46")
        for nt in range(NTW):
            a(f"buffer_load_dwordx2 {v(PBI+2*nt,2)}, {v(t0)}, s[20:23], s3 offen offset:{32*nt}")

    def set_cur():
        for kk in range(2):
            a(f"v_add_u32 {v(vXc[kk])}, s42, {v(vXb[kk])}")
        for nt in range(NTW):
            a(f"v_add_u32 {v(vWc[nt])}, s42, {v(vWb[nt])}")
        a(f"s_add_u32 s42, s42, {STAGE}")
        a(f"s_cmp_ge_u32 s42, {STAGE*NSTAGE}")
        a("s_cselect_b32 s42, 0, s42")

    def read_list(kk, f):
        if 'noreads' in EXP: return []
        L = []
        for nt in range(NTW):
            if nt < MT:
                L.append(f"ds_read_b128 {v(FX[f]+4*nt,4)}, {v(vXc[kk])} offset:{xoff(nt)}")
            for rd in range(2):
                L.append(f"ds_read_b64_tr_b16 {v(FW[f]+4*nt+2*rd,2)}, {v(vWc[nt])} offset:{kk*32*RB+rd*4*RB}")
        for mt in range(NTW, MT):
            L.append(f"ds_read_b128 {v(FX[f]+4*mt,4)}, {v(vXc[kk])} offset:{xoff(mt)}")
        return L

    def mfma_list(f):
        if 'nomfma' in EXP: return []
        L = []
        for nt in range(NTW):
            for mt in range(MT):
                L.append(f"v_mfma_f32_16x16x32_bf16 {v(acc(nt,mt),4)}, {v(FW[f]+4*nt,4)}, {v(FX[f]+4*mt,4)}, {v(acc(nt,mt),4)}")
        return L

    def reads(kk, f):
        for x in read_list(kk, f): a(x)

    def mfmas(f):
        for x in mfma_list(f): a(x)

    def inter(kk, fr, fm):
        R = read_list(kk, fr); Mm = mfma_list(fm)
        rpm = RPM if NTW <= 4 else 1
        ri = 0
        for i in range(len(Mm)):
            a(Mm[i])
            for _ in range(rpm):
                if ri < len(R): a(R[ri]); ri += 1
        while ri < len(R): a(R[ri]); ri += 1

    SLC = int(os.environ.get('SLC', '1')); SLL = int(os.environ.get('SLL', '1'))
    vRA, vCA, vCV, vFT = vT[4], vT[5], vT[6], vT[7]
    slow = []
    SH = not FL and not splitk and 'nosh' not in EXP
    def blockS(extra=None, tail=()):
        R = read_list(1, 1); Mm = mfma_list(0)
        rpm = RPM if NTW <= 4 else 1
        cur = [f"v_add_u32 {v(vXc[kk])}, s42, {v(vXb[kk])}" for kk in range(2)] + [f"v_add_u32 {v(vWc[nt])}, s42, {v(vWb[nt])}" for nt in range(NTW)]
        cur += [f"s_add_u32 s42, s42, {STAGE}", f"s_cmp_ge_u32 s42, {STAGE*NSTAGE}", "s_cselect_b32 s42, 0, s42"]
        ri = 0; ex_done = False; tail = list(tail)
        for i in range(len(Mm)):
            a(Mm[i])
            k_ = 0
            while k_ < rpm and ri < len(R): a(R[ri]); ri += 1; k_ += 1
            if ri == len(R) and k_ == 0:
                if cur:
                    for _ in range(3):
                        if cur: a(cur.pop(0))
                elif not ex_done:
                    if extra: extra()
                    ex_done = True
                    for x in tail: a(x)
        while ri < len(R): a(R[ri]); ri += 1
        for x in cur: a(x)
        if not ex_done:
            if extra: extra()
            for x in tail: a(x)
        a("s_waitcnt lgkmcnt(0)")
    def blockB(extra=None):
        R = read_list(1, 1); Mm = mfma_list(0)
        rpm = RPM if NTW <= 4 else 1
        HB = int(os.environ.get('FLHB', '4')) if len(Mm) > 16 else int(os.environ.get('FLHS', '2'))
        FP = int(os.environ.get('FLFP', '8')) if len(Mm) > 16 else 0
        cur = [f"v_add_u32 {v(vXc[kk])}, s42, {v(vXb[kk])}" for kk in range(2)] + [f"v_add_u32 {v(vWc[nt])}, s42, {v(vWb[nt])}" for nt in range(NTW)]
        cur += [f"s_add_u32 s42, s42, {STAGE}", f"s_cmp_ge_u32 s42, {STAGE*NSTAGE}", "s_cselect_b32 s42, 0, s42"]
        fr = f"ds_read_b32 {v(vFT)}, {v(vRA)}"
        ri = 0; done_fr = False
        n1 = len(Mm) - HB
        for i in range(n1):
            a(Mm[i])
            k_ = 0
            while k_ < rpm and ri < len(R): a(R[ri]); ri += 1; k_ += 1
            if ri == len(R) and k_ < rpm or (ri == len(R) and k_ == 0):
                if not done_fr and i >= n1 - 1 - FP: a(fr); done_fr = True
                for _ in range(3):
                    if cur: a(cur.pop(0))
        while ri < len(R): a(R[ri]); ri += 1
        if not done_fr: a(fr)
        for x in cur: a(x)
        if extra: extra()
        a(f"v_add_u32 {v(vCV)}, 1, {v(vCV)}")
        a("s_waitcnt lgkmcnt(0)")
        rest = Mm[n1:]
        lsl = a.newlabel("L_fslow"); lbk = a.newlabel("L_fback")
        seq = [[f"ds_write_b32 {v(vCA)}, {v(vCV)}", f"v_cmp_ge_u32 vcc, {v(vCV)}, {v(vFT)}"]]
        for g_ in seq:
            if rest: a(rest.pop(0))
            for x in g_: a(x)
        for x in rest: a(x)
        a(f"s_cbranch_vccnz {lsl}")
        a.label(lbk)
        slow.append((lsl, lbk))

    if 'cpf' in EXP:
        lh = a.newlabel("L_pc")
        a("s_getpc_b64 s[46:47]")
        a.label(lh)
        a(f"v_lshlrev_b32 {v(t0)}, 4, v1")
        a("s_lshl_b32 s3, s30, 10")
        for j in range(int(os.environ.get('NCPF', '4'))):
            a(f"s_min_u32 s92, s3, {end}-{lh}-1024")
            a(f"v_add_u32 {v(t1)}, s92, {v(t0)}")
            a(f"global_load_dwordx4 {v(FX[0],4)}, {v(t1)}, s[46:47]")
            a("s_add_u32 s3, s3, 4096")
        a("s_waitcnt vmcnt(0)")
    if wpf:
        a("s_lshl_b32 s3, s2, 2")
        a("s_add_u32 s3, s3, s30")
        for q, (arg, nbytes, hi) in enumerate(wpf):
            a(f"s_load_dwordx2 s[{94+2*q}:{95+2*q}], s[0:1], {ARG[arg]}")
            a(f"s_mul_i32 s{92+q}, s3, {nbytes//1024}")
        a("s_waitcnt lgkmcnt(0)")
        for q, (arg, nbytes, hi) in enumerate(wpf):
            assert nbytes % (1 << 20) == 0
            srd(a, 84 + 4 * q, 94 + 2 * q, 0, nbytes)
        a(f"v_lshlrev_b32 {v(PFV)}, {PFS}, v1")
    if c3src:
        c_arg, c_rows, c_off = c3src
        assert c_rows * 2 == 7 * 1024 and wpf[0][0] == c_arg and PFS == 4 and wpf[0][2] < 0 and NS == 16 and len(wpf) == 1
        a("s_mul_i32 s3, s3, 7")
        a("v_lshrrev_b32 v2, 3, v1")
        a("v_and_b32 v4, 7, v1")
        a("v_lshlrev_b32 v4, 4, v4")
        a("v_lshl_add_u32 v3, v2, 10, v4")
        a("v_add_u32 v2, s3, v2")
        a("v_and_b32 v5, 1, v2")
        a(f"v_mul_u32_u24 v5, {c_rows*256}, v5")
        a("v_lshrrev_b32 v2, 1, v2")
        a("v_lshl_add_u32 v2, v2, 8, v4")
        a("v_add_u32 v2, v2, v5")
    if spf:
        assert RA * BM == 512 and RBN * BN == 512
        a("s_lshr_b32 s3, s2, 3")
        a("s_lshl_b32 s3, s3, 2")
        a("s_add_u32 s3, s3, s30")
        a(f"s_lshr_b32 s46, s28, {int(math.log2(RA))}")
        if ATILE:
            a(f"s_mul_i32 s46, s46, {RA*BM*lda}")
            a("s_lshr_b32 s47, s3, 4")
            a(f"s_mul_i32 s47, s47, {BM*lda}")
            a("s_add_u32 s46, s46, s47")
            a("s_and_b32 s47, s3, 15")
            a("s_lshl_b32 s47, s47, 13")
            a("s_add_u32 s96, s46, s47")
            astep, arow = 8 * BM * 128, 1024
        else:
            a(f"s_mul_i32 s46, s46, {RA*BM}")
            a("s_lshl_b32 s47, s3, 3")
            a("s_add_u32 s46, s46, s47")
            a(f"s_mul_i32 s96, s46, {lda}")
            astep, arow = 1024, lda
        a("s_sub_u32 s46, s3, 64")
        a(f"s_mul_i32 s46, s46, {8*N*2}")
        a(f"s_lshr_b32 s47, s29, {int(math.log2(RBN))}")
        a("s_lshl_b32 s47, s47, 10")
        a("s_add_u32 s46, s46, s47")
        a(f"s_mov_b32 s97, {512*N*2}")
        a(f"s_mov_b32 s47, {N*2}")
        a("s_cmp_lt_u32 s3, 64")
        a("s_cselect_b32 s96, s96, s46")
        a(f"s_cselect_b32 s97, {astep}, s97")
        a(f"s_cselect_b32 s47, {arow}, s47")
        for i in range(4):
            a(f"s_cselect_b32 s{76+i}, s{4+i}, s{8+i}")
        a(f"v_lshrrev_b32 {v(t0)}, 3, v1")
        a(f"v_and_b32 {v(t1)}, 7, v1")
        a(f"v_mul_u32_u24 {v(t0)}, s47, {v(t0)}")
        a(f"v_lshl_add_u32 {v(PFD+1)}, {v(t1)}, 7, {v(t0)}")

        def spf1():
            a(f"buffer_load_dword {v(PFD)}, {v(PFD+1)}, s[76:79], s96 offen")
            a("s_add_u32 s96, s96, s97")
        for _ in range(spf[0]): spf1()
    if sp2:
        assert RA * BM == 512 and RBN * BN == 512 and ATILE
        W0 = sp2; DD = W0 + 7
        a("s_lshr_b32 s3, s2, 3")
        a("s_lshl_b32 s3, s3, 2")
        a("s_add_u32 s3, s3, s30")
        a(f"s_sub_u32 s98, s3, {W0}")
        a("s_and_b32 s98, s98, 7")
        a(f"s_add_u32 s99, s98, {W0}")
        a("s_lshr_b32 s3, s3, 3")
        a(f"s_and_b32 s46, s28, {-RA & 0xffffffff}")
        a("s_lshr_b32 s47, s3, 1")
        a("s_add_u32 s46, s46, s47")
        a(f"s_mul_i32 s46, s46, {BM*lda}")
        a("s_and_b32 s47, s3, 1")
        a(f"s_mul_i32 s47, s47, {64*TP}")
        a("s_add_u32 s46, s46, s47")
        a(f"s_mul_i32 s47, s99, {ASTEP}")
        a("s_add_u32 s96, s46, s47")
        a("s_sub_u32 s46, s3, 8")
        a("s_lshl_b32 s46, s46, 3")
        a("s_lshl_b32 s47, s99, 6")
        a("s_add_u32 s46, s46, s47")
        a(f"s_mul_i32 s46, s46, {N*2}")
        a(f"s_lshr_b32 s47, s29, {int(math.log2(RBN))}")
        a("s_lshl_b32 s47, s47, 10")
        a("s_add_u32 s46, s46, s47")
        a(f"s_mov_b32 s97, {512*N*2}")
        a(f"s_mov_b32 s47, {N*2}")
        a("s_mov_b32 s93, 7")
        a("s_cmp_lt_u32 s3, 8")
        a("s_cselect_b32 s96, s96, s46")
        a(f"s_cselect_b32 s97, {8*ASTEP}, s97")
        a(f"s_cselect_b32 s47, {8*TP}, s47")
        a(f"s_cselect_b32 s93, {TSH}, s93")
        for i in range(4):
            a(f"s_cselect_b32 s{76+i}, s{4+i}, s{8+i}")
        a(f"v_lshrrev_b32 {v(t0)}, 3, v1")
        a(f"v_and_b32 {v(t1)}, 7, v1")
        a(f"v_mul_u32_u24 {v(t0)}, s47, {v(t0)}")
        a(f"v_lshlrev_b32 {v(t1)}, s93, {v(t1)}")
        a(f"v_add_u32 {v(PFD+1)}, {v(t1)}, {v(t0)}")
        a(f"s_sub_u32 s98, {NS + DD - 8}, s99")

        def spf1():
            a(f"buffer_load_dword {v(PFD)}, {v(PFD+1)}, s[76:79], s96 offen")
            a("s_add_u32 s96, s96, s97")
        if 'sp2late' not in EXP: spf1()
    if sp4:
        assert RA == 8 and RBN * BN * 2 == 1792 and ATILE and TP == 128 and not wt7
        K0, NINI, PHS = sp4
        a("s_lshr_b32 s3, s2, 3")
        a("s_lshl_b32 s3, s3, 2")
        a("s_add_u32 s3, s3, s30")
        a(f"s_and_b32 s46, s28, {-RA & 0xffffffff}")
        a("s_lshr_b32 s47, s3, 3")
        a("s_add_u32 s46, s46, s47")
        a(f"s_mul_i32 s46, s46, {BM*lda}")
        a("s_and_b32 s47, s3, 7")
        a("s_lshl_b32 s47, s47, 13")
        a("s_add_u32 s46, s46, s47")
        a(f"s_add_u32 s96, s46, {K0*ASTEP}")
        a(f"v_lshlrev_b32 {v(t0)}, 7, v1")
        a("s_sub_u32 s46, s3, 64")
        a("s_lshl_b32 s46, s46, 6")
        a(f"v_add_u32 {v(t1)}, s46, v1")
        a(f"s_mov_b32 s47, {((1 << 32) + 13) // 14}")
        a(f"v_mul_hi_u32 {v(t2)}, {v(t1)}, s47")
        a(f"v_mul_u32_u24 {v(t3)}, 14, {v(t2)}")
        a(f"v_sub_u32 {v(t1)}, {v(t1)}, {v(t3)}")
        a(f"v_mul_u32_u24 {v(t2)}, {N*2}, {v(t2)}")
        a(f"v_lshl_add_u32 {v(t1)}, {v(t1)}, 7, {v(t2)}")
        a(f"s_lshr_b32 s47, s29, {int(math.log2(RBN))}")
        a("s_mul_i32 s47, s47, 1792")
        a(f"s_add_u32 s47, s47, {K0*64*N*2}")
        a("s_cmp_ge_u32 s3, 120")
        a("s_cselect_b32 s47, 0x60000000, s47")
        a(f"s_mov_b32 s97, {256*N*2}")
        a("s_cmp_lt_u32 s3, 64")
        a("s_cselect_b64 vcc, -1, 0")
        a("s_cselect_b32 s96, s96, s47")
        a(f"s_cselect_b32 s97, {4*ASTEP}, s97")
        for i in range(4):
            a(f"s_cselect_b32 s{76+i}, s{4+i}, s{8+i}")
        a(f"v_cndmask_b32 v8, {v(t1)}, {v(t0)}, vcc")

        def spf1():
            a(f"buffer_load_dword {v(PFD)}, v8, s[76:79], s96 offen")
            a("s_add_u32 s96, s96, s97")
        for _ in range(NINI): spf1()
        NPH = -(-(NS - K0) // 4) - NINI
    if l2pf:
        NPA = RA * BM // 8
        NPW = BK * (RBN * BN * 2) // 1024
        WPR = RBN * BN * 2 // 1024
        assert NPA + NPW == 128 and WPR == 1
        lw = a.newlabel("L_pfw"); ld = a.newlabel("L_pfd")
        a("s_lshr_b32 s3, s2, 3")
        a("s_lshl_b32 s3, s3, 2")
        a("s_add_u32 s3, s3, s30")
        a(f"s_cmp_ge_u32 s3, {NPA}")
        a(f"s_cbranch_scc1 {lw}")
        a(f"s_lshr_b32 s46, s28, {int(math.log2(RA))}")
        a(f"s_mul_i32 s46, s46, {RA*BM}")
        a("s_lshl_b32 s3, s3, 3")
        a("s_add_u32 s3, s3, s46")
        a(f"v_lshrrev_b32 {v(PFV)}, 3, v1")
        a(f"v_add_u32 {v(PFV)}, s3, {v(PFV)}")
        a(f"v_mul_u32_u24 {v(PFV)}, {lda}, {v(PFV)}")
        a(f"v_and_b32 {v(t0)}, 7, v1")
        a(f"v_lshl_add_u32 {v(PFV)}, {v(t0)}, 4, {v(PFV)}")
        for i in range(4): a(f"s_mov_b32 s{84+i}, s{4+i}")
        a(f"s_mov_b32 s92, {l2pf*BK*2}")
        a(f"s_mov_b32 s93, {BK*2}")
        a(f"s_branch {ld}")
        a.label(lw)
        a(f"s_sub_u32 s3, s3, {NPA}")
        a(f"s_mul_i32 s3, s3, {N*2}")
        a(f"s_lshr_b32 s46, s29, {int(math.log2(RBN))}")
        a(f"s_mul_i32 s46, s46, {RBN*BN*2}")
        a("s_add_u32 s3, s3, s46")
        a(f"v_lshlrev_b32 {v(PFV)}, 4, v1")
        a(f"v_add_u32 {v(PFV)}, s3, {v(PFV)}")
        for i in range(4): a(f"s_mov_b32 s{84+i}, s{8+i}")
        a(f"s_mov_b32 s92, {l2pf*BK*N*2}")
        a(f"s_mov_b32 s93, {BK*N*2}")
        a.label(ld)
        a(f"s_mul_i32 s3, s93, {NSTAGE-1}")
        for j in range(NSTAGE - 1, l2pf):
            a(f"buffer_load_dwordx4 {v(PFD,4)}, {v(PFV)}, s[84:87], s3 offen")
            a("s_add_u32 s3, s3, s93")
    if splitk:
        a("s_xor_b32 s95, s92, 1")
        a(f"v_mov_b32 {v(PFL)}, 0")
        a("s_lshl_b32 s3, s96, 2")
        a(f"v_mov_b32 {v(PFA)}, s3")
        a("s_add_u32 s3, s3, s30")
        a("s_lshl_b32 s3, s3, 14")
        a(f"v_lshlrev_b32 {v(PPA)}, 4, v1")
        a(f"v_add_u32 {v(PPA)}, s3, {v(PPA)}")
    DRY = dry and not splitk
    if DRY:
        a.dry_begin(30, 95)
    if FL:
        a(f"v_and_b32 {v(vRA)}, 3, v1")
        a(f"v_lshlrev_b32 {v(vRA)}, 8, {v(vRA)}")
        a(f"v_lshl_add_u32 {v(vRA)}, v1, 2, {v(vRA)}")
        a(f"v_add_u32 {v(vRA)}, {FLG}, {v(vRA)}")
        a("s_lshl_b32 s3, s30, 8")
        a(f"s_add_u32 s3, s3, {FLG+1024}")
        a(f"v_lshl_add_u32 {v(vCA)}, v1, 2, s3")
        a(f"v_mov_b32 {v(vCV)}, 0")
        a(f"ds_write_b32 {v(vCA)}, {v(vCV)}")
        set_cur()
        a("s_waitcnt lgkmcnt(0)")
    if SH: set_cur()
    if fz and 'fpre' in EXP:
        code_pf(a, None, 2 if fz['next'] else 1, 49, t0, 1)
    if fz:
        lt2 = a.newlabel("L_t2")
        a("s_cmp_eq_u32 s49, 0")
        a(f"s_cbranch_scc1 {lt2}")
        if fz['ph'] == 2 and C3:
            lc = a.newlabel("L_c3c")
            x = FX[0]
            a("s_cmp_lg_u32 s49, 1")
            a(f"s_cbranch_scc1 {lc}")
            a("v_readlane_b32 s96, v255, 1")
            a("v_readlane_b32 s97, v255, 2")
            a(f"v_lshlrev_b32 {v(x+8)}, 7, v1")
            a("s_mov_b32 s3, 0")
            for j in range(4):
                a(f"buffer_load_dwordx2 {v(x+2*j,2)}, {v(x+8)}, s[76:79], s3 offen sc0 sc1")
                a("s_add_u32 s3, s3, 8192")
            a("s_add_u32 s98, s96, 0x1000000")
            a("s_addc_u32 s99, s97, 0")
            a("s_mov_b64 s[46:47], -1")
            a("s_waitcnt vmcnt(0)")
            for j in range(4):
                a(f"v_cmp_lt_u64 vcc, s[96:97], {v(x+2*j,2)}")
                a("s_nop 1")
                a("s_and_b64 s[46:47], s[46:47], vcc")
                a(f"v_cmp_gt_u64 vcc, s[98:99], {v(x+2*j,2)}")
                a("s_nop 1")
                a("s_and_b64 s[46:47], s[46:47], vcc")
            a("s_cmp_eq_u64 s[46:47], exec")
            a("s_cselect_b32 s3, 1, 0")
            a("v_writelane_b32 v255, s3, 5")
            a.label(lc)
        stamp(1)
        t2_wait(246)
        a.label(lt2)
    else: stamp(1)
    lab_cpass = a.newlabel("L_cpass")
    a.label(lab_cpass)
    a("s_barrier")
    stamp(2)
    if not FL and not SH: set_cur()
    reads(0, 0)
    a("s_waitcnt lgkmcnt(0)")
    if FL: blockB()
    elif SH: blockS()
    else:
        inter(1, 1, 0)
        a("s_waitcnt lgkmcnt(0)")
    if splitk: a("s_sub_u32 s48, s93, 1")
    else: a(f"s_mov_b32 s48, {NS-1}")
    if sp2 and 'sp2late' in EXP: spf1()
    if c3src:
        a("s_mov_b32 exec_hi, 0x00ffffff")
        a("buffer_load_dwordx4 v[4:7], v3, s[84:87], s92 offen offset:384")
        a("s_mov_b32 exec_hi, -1")
    loop = a.newlabel("L_cloop")
    a.label(loop)
    if not FL:
        a("s_barrier")
        if not SH: set_cur()
    inter(0, 0, 1)
    a("s_waitcnt lgkmcnt(0)")
    if not FL and not SH: inter(1, 1, 0)
    cutx = len(a.lines)
    if l2pf:
        a(f"buffer_load_dwordx4 {v(PFD,4)}, {v(PFV)}, s[84:87], s92 offen")
        a("s_add_u32 s92, s92, s93")
    if spf and NS > 8 * spf[0]:
        lsp = a.newlabel("L_spf"); lspb = a.newlabel("L_spfb")
        a("s_and_b32 s3, s48, 7")
        a(f"s_cmp_eq_u32 s3, {spf[1]}")
        a(f"s_cbranch_scc1 {lsp}")
        a.label(lspb)
    if sp4:
        lsp = a.newlabel("L_spf"); lspb = a.newlabel("L_spfb")
        a("s_and_b32 s3, s48, 3")
        a(f"s_cmp_eq_u32 s3, {PHS & 3}")
        a(f"s_cbranch_scc1 {lsp}")
        a.label(lspb)
    if sp2:
        lsp = a.newlabel("L_spf"); lspb = a.newlabel("L_spfb")
        a("s_cmp_eq_u32 s48, s98")
        a(f"s_cbranch_scc1 {lsp}")
        a.label(lspb)
    if wpf:
        for q, (arg, nbytes, hi) in enumerate(wpf):
            n = (nbytes >> 20) if PFS == 4 else -(-(nbytes >> 10) // (64 << PFS))
            lsk = a.newlabel("L_wpfs")
            if hi < 0:
                a("s_bitcmp1_b32 s48, 0")
            else:
                a(f"s_sub_u32 s3, s48, {hi-n+1}")
                a(f"s_cmp_ge_u32 s3, {n}")
            a(f"s_cbranch_scc1 {lsk}")
            if PFS == 4:
                a(f"buffer_load_dwordx4 {v(PFD,4)}, {v(PFV)}, s[{84+4*q}:{87+4*q}], s{92+q} offen")
            else:
                a(f"buffer_load_dword {v(PFD)}, {v(PFV)}, s[{84+4*q}:{87+4*q}], s{92+q} offen")
            a(f"s_add_u32 s{92+q}, s{92+q}, {64 << PFS}")
            a.label(lsk)
    if splitk:
        cskip = a.newlabel("L_cskip"); cpoll = a.newlabel("L_cpoll")
        a("s_cmp_lg_u32 s95, 0")
        a(f"s_cbranch_scc1 {cskip}")
        a(f"v_readfirstlane_b32 s3, {v(PFL)}")
        a("s_nop 3")
        a("s_cmp_eq_u32 s3, 0")
        a(f"s_cbranch_scc1 {cpoll}")
        a("s_mov_b32 s95, 1")
        for t_ in range(MT * NTW):
            a(f"s_mov_b32 s3, {1024*t_}")
            a(f"buffer_load_dwordx4 {v(PRT+4*t_,4)}, {v(PPA)}, s[84:87], s3 offen")
        a(f"s_branch {cskip}")
        a.label(cpoll)
        if 'forcefb' not in EXP: a(f"buffer_load_dword {v(PFL)}, {v(PFA)}, s[88:91], 0 offen sc0 sc1")
        a.label(cskip)
    if FL:
        ex = a.lines[cutx:]; del a.lines[cutx:]
        blockB(lambda: a.lines.extend(ex))
    elif SH:
        ex = a.lines[cutx:]; del a.lines[cutx:]
        blockS(lambda: a.lines.extend(ex), ["s_sub_u32 s48, s48, 1", "s_cmp_lg_u32 s48, 0"])
    else: a("s_waitcnt lgkmcnt(0)")
    if not SH:
        a("s_sub_u32 s48, s48, 1")
        a("s_cmp_lg_u32 s48, 0")
    a(f"s_cbranch_scc1 {loop}")
    stamp(3)
    if FL and not epi2: a("s_barrier")
    if c3src:
        srd(a, 76, 24, c_off, 2 * c_rows * 256)
        a("s_waitcnt vmcnt(7)")
        a("s_mov_b32 exec_hi, 0x00ffffff")
        a("buffer_store_dwordx4 v[4:7], v2, s[76:79], 0 offen")
        a("s_mov_b32 exec_hi, -1")
    if epi2:
        FROW = BN * 4 + 16
        assert BM * FROW <= STAGE * NSTAGE and (FROW // 4) % 32 == 4
        a("s_barrier")
        ml = mfma_list(1)
        a(f"v_and_b32 {v(t2)}, 15, v1")
        a("s_lshl_b32 s3, s44, 6")
        a(f"v_add_u32 {v(t2)}, s3, {v(t2)}")
        a(f"v_mul_u32_u24 {v(t2)}, {FROW}, {v(t2)}")
        a(f"v_bfe_u32 {v(t3)}, v1, 4, 1")
        a(f"v_mul_u32_u24 {v(t3)}, {BN*2}, {v(t3)}")
        a(f"v_add_u32 {v(t2)}, {v(t2)}, {v(t3)}")
        a(f"v_lshrrev_b32 {v(t3)}, 5, v1")
        a(f"v_lshl_add_u32 {v(t2)}, {v(t3)}, 4, {v(t2)}")
        a(f"s_mul_i32 s3, s45, {NTW*32}")
        a(f"v_add_u32 {v(t2)}, s3, {v(t2)}")
        wl = [f"ds_write_b128 {v(t2)}, {v(acc(nt,mt),4)} offset:{mt*16*FROW + nt*32}" for nt in range(NTW) for mt in range(MT)]
        for i, x in enumerate(ml):
            a(x)
            if i >= 6: a(wl[i - 6])
        a("s_nop 7")
        a("s_nop 7")
        for x in wl[len(ml) - 6:]: a(x)
        a("s_waitcnt lgkmcnt(0)")
        stamp(4)
        a("s_barrier")
        a(f"s_branch {lab_store}")
    else:
        mfmas(1)
    if ln and not pre:
        a("s_barrier")
    if splitk:
        lab_hi = a.newlabel("L_hi"); lab_epi = a.newlabel("L_epi"); lab_fb = a.newlabel("L_fb")
        a("s_cmp_lg_u32 s92, 0")
        a(f"s_cbranch_scc1 {lab_hi}")
        a("s_nop 7")
        for t_ in range(MT * NTW):
            a(f"s_mov_b32 s3, {1024*t_}")
            a(f"buffer_store_dwordx4 {v(ACC+4*t_,4)}, {v(PPA)}, s[84:87], s3 offen sc0 sc1")
        a("s_waitcnt vmcnt(0)")
        a("s_barrier")
        a("s_cmp_lg_u32 s30, 0")
        a(f"s_cbranch_scc1 {end}")
        a(f"v_mov_b32 {v(t1)}, 1")
        a("s_mov_b64 exec, 1")
        a(f"buffer_store_dword {v(t1)}, {v(PFA)}, s[88:91], 0 offen sc0 sc1")
        a(f"s_branch {end}")
        a.label(lab_hi)
        a("s_lshl_b32 s3, s30, 2")
        a(f"s_add_u32 s3, s3, {DONE}")
        a(f"v_mov_b32 {v(t0)}, s3")
        a(f"v_mov_b32 {v(t1)}, s95")
        a(f"ds_write_b32 {v(t0)}, {v(t1)}")
        a("s_waitcnt lgkmcnt(0)")
        a("s_barrier")
        a("s_cmp_eq_u32 s94, 2")
        a(f"s_cbranch_scc1 {lab_epi}")
        a(f"v_mov_b32 {v(t1)}, {DONE}")
        a(f"ds_read_b128 {v(FX[0],4)}, {v(t1)}")
        a("s_waitcnt lgkmcnt(0)")
        a(f"v_and_b32 {v(FX[0])}, {v(FX[0])}, {v(FX[0]+1)}")
        a(f"v_and_b32 {v(FX[0]+2)}, {v(FX[0]+2)}, {v(FX[0]+3)}")
        a(f"v_and_b32 {v(FX[0])}, {v(FX[0])}, {v(FX[0]+2)}")
        a("s_nop 0")
        a(f"v_readfirstlane_b32 s3, {v(FX[0])}")
        a("s_nop 3")
        a("s_cmp_eq_u32 s3, 1")
        a(f"s_cbranch_scc0 {lab_fb}")
        a("s_waitcnt vmcnt(0)")
        for t_ in range(MT * NTW):
            for j in range(2):
                a(f"v_pk_add_f32 {v(ACC+4*t_+2*j,2)}, {v(ACC+4*t_+2*j,2)}, {v(PRT+4*t_+2*j,2)}")
        a(f"s_branch {lab_epi}")
        a.label(lab_fb)
        a("s_mov_b32 s94, 2")
        a("s_mov_b32 s95, 1")
        a(f"s_mov_b32 s93, {NSLO}")
        a("s_mov_b32 s42, 0")
        a("s_barrier")
        a(f"s_branch {lab_cpass}")
        a.label(lab_epi)
    cut0 = len(a.lines)
    if DRY: a.dry_entry()
    RT = FX[0]; CS = RT + 8; BR = CS + 4 * NTW; BF = BR + 2 * NTW; GE = BF + 4 * NTW
    assert GE + 10 <= ACC
    if alay == 'g32':
        a(f"v_bfe_u32 {v(t2)}, v1, 1, 3")
        a(f"v_and_b32 {v(t3)}, 1, v1")
        a(f"v_lshl_add_u32 {v(t2)}, {v(t3)}, 3, {v(t2)}")
    else:
        a(f"v_and_b32 {v(t2)}, 15, v1")
    a("s_lshl_b32 s3, s44, 6")
    a(f"v_add_u32 {v(t2)}, s3, {v(t2)}")
    a(f"v_lshrrev_b32 {v(t3)}, 4, v1")
    a(f"s_mul_i32 s3, s45, {NTW*4}")
    a(f"v_add_u32 {v(t3)}, s3, {v(t3)}")
    if ln:
        a(f"v_lshlrev_b32 {v(t0)}, 3, {v(t2)}")
        a(f"v_add_u32 {v(t0)}, {RTAB}, {v(t0)}")
        for mt in range(MT):
            a(f"ds_read_b64 {v(RT+2*mt,2)}, {v(t0)} offset:{128*mt}")
        a(f"v_lshlrev_b32 {v(t0)}, 4, {v(t3)}")
        a(f"v_add_u32 {v(t0)}, {CTAB}, {v(t0)}")
        for nt in range(NTW):
            a(f"ds_read_b128 {v(CS+4*nt,4)}, {v(t0)} offset:{64*nt}")
    if bias_arg and pre:
        a(f"v_lshlrev_b32 {v(t0)}, 3, {v(t3)}")
        a(f"v_add_u32 {v(t0)}, {EPI}, {v(t0)}")
        for nt in range(NTW):
            a(f"ds_read_b64 {v(BR+2*nt,2)}, {v(t0)} offset:{32*nt}")
    vc = vT[0]
    a(f"v_mul_u32_u24 {v(t2)}, {CROW}, {v(t2)}")
    a(f"v_lshl_add_u32 {v(vc)}, {v(t3)}, 3, {v(t2)}")
    if CBASE: a(f"v_add_u32 {v(vc)}, {CBASE}, {v(vc)}")
    if epi == 'gelu':
        c2 = 2 * math.log2(math.e)
        k1 = struct.unpack("<I", struct.pack("<f", 0.7978845608 * c2))[0]
        k3 = struct.unpack("<I", struct.pack("<f", 0.7978845608 * 0.044715 * c2))[0]
        a(f"s_mov_b32 s52, {k3}"); a(f"s_mov_b32 s53, {k3}")
        a(f"v_mov_b32 {v(GE+8)}, {k1}"); a(f"v_mov_b32 {v(GE+9)}, {k1}")
        a("s_mov_b32 s56, 1.0"); a("s_mov_b32 s57, 1.0")
    a("s_waitcnt vmcnt(0) lgkmcnt(0)" if (bias_arg and not pre) else "s_waitcnt lgkmcnt(0)")
    a("s_nop 7")
    if bias_arg:
        bsrc = BR if pre else PBI
        for nt in range(NTW):
            for j in range(2):
                a(f"v_lshlrev_b32 {v(BF+4*nt+2*j)}, 16, {v(bsrc+2*nt+j)}")
                a(f"v_and_b32 {v(BF+4*nt+2*j+1)}, 0xffff0000, {v(bsrc+2*nt+j)}")
    for nt in range(NTW):
        if DRY and nt in dry: a.dry_mark()
        for mp in range(0, MT, 2):
            c0 = acc(nt, mp)
            for q in range(2):
                mt = mp + q
                for j in range(2):
                    cc = v(c0 + 4 * q + 2 * j, 2)
                    tt = v(GE + 4 * q + 2 * j, 2)
                    if ln:
                        if bias_arg:
                            a(f"v_pk_fma_f32 {tt}, {v(CS+4*nt+2*j,2)}, {v(RT+2*mt,2)}, {v(BF+4*nt+2*j,2)} op_sel:[0,1,0] op_sel_hi:[1,1,1]")
                        else:
                            a(f"v_pk_mul_f32 {tt}, {v(CS+4*nt+2*j,2)}, {v(RT+2*mt,2)} op_sel:[0,1] op_sel_hi:[1,1]")
                    elif bias_arg:
                        a(f"v_pk_add_f32 {cc}, {cc}, {v(BF+4*nt+2*j,2)}")
            if ln:
                for q in range(2):
                    mt = mp + q
                    for j in range(2):
                        cc = v(c0 + 4 * q + 2 * j, 2)
                        tt = v(GE + 4 * q + 2 * j, 2)
                        a(f"v_pk_fma_f32 {cc}, {cc}, {v(RT+2*mt,2)}, {tt} op_sel:[0,0,0] op_sel_hi:[1,0,1]")
            if epi == 'gelu':
                for j in range(4):
                    a(f"v_pk_mul_f32 {v(GE+2*j,2)}, {v(c0+2*j,2)}, {v(c0+2*j,2)}")
                for j in range(4):
                    a(f"v_pk_fma_f32 {v(GE+2*j,2)}, {v(GE+2*j,2)}, s[52:53], {v(GE+8,2)}")
                for j in range(4):
                    a(f"v_pk_mul_f32 {v(GE+2*j,2)}, {v(GE+2*j,2)}, {v(c0+2*j,2)}")
                for r in range(8):
                    a(f"v_exp_f32 {v(GE+r)}, {v(GE+r)}")
                a("s_nop 0")
                for j in range(4):
                    a(f"v_pk_add_f32 {v(GE+2*j,2)}, {v(GE+2*j,2)}, s[56:57]")
                for r in range(8):
                    a(f"v_rcp_f32 {v(GE+r)}, {v(GE+r)}")
                a("s_nop 0")
                for j in range(4):
                    cc = v(c0 + 2 * j, 2)
                    a(f"v_pk_fma_f32 {cc}, {cc}, {v(GE+2*j,2)}, {cc} neg_lo:[1,0,0] neg_hi:[1,0,0]")
            for j in range(4):
                a(f"v_cvt_pk_bf16_f32 {v(c0+j)}, {v(c0+2*j)}, {v(c0+2*j+1)}")
            for q in range(2):
                a(f"ds_write_b64 {v(vc)}, {v(c0+2*q,2)} offset:{(mp+q)*16*CROW + nt*32}")
    if DRY: a(f"s_cbranch_execz {lab_store}")
    a("s_waitcnt lgkmcnt(0)")
    stamp(4)
    a("s_barrier")
    a(f"s_branch {lab_store}")
    if epi2: del a.lines[cut0:]

    if spf and NS > 8 * spf[0]:
        a.label(lsp)
        spf1()
        a(f"s_branch {lspb}")
    if sp4:
        a.label(lsp)
        a(f"s_sub_u32 s3, {PHS}, s48")
        a(f"s_cmp_ge_u32 s3, {4*NPH}")
        a(f"s_cbranch_scc1 {lspb}")
        spf1()
        a(f"s_branch {lspb}")
    if sp2:
        a.label(lsp)
        a("s_sub_u32 s98, s98, 8")
        a(f"s_cmp_le_u32 s48, {DD}")
        a(f"s_cbranch_scc1 {lspb}")
        spf1()
        a(f"s_branch {lspb}")
    for lsl, lbk in slow:
        a.label(lsl)
        if SLC: a(f"s_sleep {SLC}")
        a(f"ds_read_b32 {v(vFT)}, {v(vRA)}")
        a("s_waitcnt lgkmcnt(0)")
        a(f"v_cmp_ge_u32 vcc, {v(vCV)}, {v(vFT)}")
        a(f"s_cbranch_vccnz {lsl}")
        a(f"s_branch {lbk}")
    pos_l0 = len(a.lines)
    a.label(lab_loader)
    if 'noprio' not in EXP: a("s_setprio 2")
    if w2copy: a(f"s_load_dwordx2 s[94:95], s[0:1], {ARG['w2']}")
    NPL = (BN // 16 + 3) // 4
    LSA = 40
    LCW = 44
    LSC = 48; LCC = 52
    LONE = 56
    LST = 60
    LMS = 132
    LCS = 68
    LSD = 84
    LWD = 100
    assert vT[7] < 40
    NW2 = BN * 2 if BTILE else N * 2
    if FS:
        rs = TP if ATILE else lda
        a(f"v_lshrrev_b32 {v(t0)}, 3, v1")
        a(f"v_lshrrev_b32 {v(t1)}, 4, v1")
        a(f"v_and_b32 {v(t2)}, 7, v1")
        a(f"v_xor_b32 {v(t1)}, {v(t1)}, {v(t2)}")
        if alay == 'o':
            assert TP == 128 and PA == 4
            a(f"s_mul_i32 s3, s28, {BM*lda}")
            a("s_lshl_b32 s46, s30, 12")
            a("s_add_u32 s3, s3, s46")
            a(f"v_lshl_add_u32 {v(vA[0])}, v1, 4, s3")
            a(f"v_mov_b32 {v(t3)}, {v(vA[0])}")
        elif alay:
            assert TP == 128 and PA == 4
            rs = 64
            a(f"v_lshrrev_b32 {v(t3)}, 2, {v(t1)}")
            a(f"v_lshlrev_b32 {v(t3)}, 13, {v(t3)}")
            a(f"v_and_b32 {v(t1)}, 3, {v(t1)}")
            a(f"v_lshl_add_u32 {v(t3)}, {v(t1)}, 4, {v(t3)}")
            a(f"v_lshl_add_u32 {v(t3)}, {v(t0)}, 6, {v(t3)}")
            a(f"s_mul_i32 s3, s28, {BM*lda}")
            a("s_lshl_b32 s46, s30, 11")
            a("s_add_u32 s3, s3, s46")
            a(f"v_add_u32 {v(vA[0])}, s3, {v(t3)}")
            a(f"v_xor_b32 {v(t3)}, 0x2000, {v(vA[0])}")
        else:
            a(f"v_mul_u32_u24 {v(t3)}, {rs}, {v(t0)}")
            a(f"v_lshl_add_u32 {v(t3)}, {v(t1)}, 4, {v(t3)}")
            a(f"s_mul_i32 s3, s28, {BM*lda}")
            a(f"s_mul_i32 s46, s30, {PA*8*rs}")
            a("s_add_u32 s3, s3, s46")
            a(f"v_add_u32 {v(vA[0])}, s3, {v(t3)}")
            a(f"v_xor_b32 {v(t3)}, 64, {v(vA[0])}")
        a(f"v_add_u32 {v(vA[1])}, {8*rs}, {v(t3)}")
        for i in range(2, PA):
            a(f"v_add_u32 {v(vA[i])}, {16*rs}, {v(vA[i-2])}")
        if alay == 'o':
            a(f"v_lshrrev_b32 {v(t3)}, 5, v1")
            a(f"v_and_b32 {v(t0)}, 3, {v(t0)}")
            a(f"v_lshl_add_u32 {v(t0)}, {v(t3)}, 3, {v(t0)}")
        a(f"s_mul_i32 s31, s30, {PA*1024}")
        if fz and c3 is not None:
            a(f"v_mov_b32 v247, {CTRL}")
            a("ds_read_b32 v247, v247 offset:4")
        a("s_waitcnt lgkmcnt(0)")
        srd(a, 4, 58, a_off, M * lda)
        stamp(1)
        for i in range(PA):
            a(f"s_add_u32 m0, s31, {i*1024}")
            if i == 0: a(f"s_mul_i32 s32, s30, {PB*1024}")
            elif i == 1: a(f"s_add_u32 s32, s32, {ABYTES}")
            elif i == 2: a(f"s_mul_i32 s3, s29, {(K//2)*1024 if wt7 else BN*2*(K if BTILE else 1)}")
            elif i == 3: a(f"s_mul_i32 s46, s30, {8192 if wt7 else 16*NW2}")
            else: a("s_nop 0")
            if not fz: a(f"buffer_load_dwordx4 {v(vA[i])}, s[4:7], 0 offen lds")
        a("s_add_u32 s3, s3, s46")
        srd(a, 8, 26, w_off or 0, WBYTES)
        if c3 is not None:
            srd(a, 50, 24, c3, 2 * K * 256)
            a("s_lshr_b32 s47, s29, 3")
            a(f"s_mul_i32 s47, s47, {K*256}")
            a(f"s_mul_i32 s46, s30, {16*256}")
            a("s_add_u32 s47, s47, s46")
            a("s_and_b32 s46, s29, 7")
            if fz:
                a("v_readfirstlane_b32 s54, v247")
                a("s_nop 3")
                a("s_lshl_b32 s54, s54, 3")
                a("s_add_u32 s46, s46, s54")
                a("s_cmp_eq_u32 s46, 11")
            else:
                a("s_cmp_eq_u32 s46, 3")
            a("s_cselect_b32 s3, s47, s3")
            for i in range(3): a(f"s_cselect_b32 s{8+i}, s{50+i}, s{8+i}")
            assert NW2 == 2048
            a("s_cselect_b32 s55, 8, 11")
            a("s_lshl_b32 s54, 1, s55")
            a(f"s_lshl_b32 s46, {4 if alay == 'o' else 8}, s55")
            a("s_lshl_b32 s55, 64, s55")
        if RB == 448:
            a(f"s_mov_b32 s47, {((1 << 32) + 27) // 28}")
            for i in range(PB):
                a(f"v_add_u32 {v(t1)}, {i*64}, v1")
                a(f"v_mul_hi_u32 {v(t0)}, {v(t1)}, s47")
                a(f"v_mul_u32_u24 {v(t2)}, 28, {v(t0)}")
                a(f"v_sub_u32 {v(t1)}, {v(t1)}, {v(t2)}")
                a(f"v_bfe_u32 {v(t2)}, {v(t0)}, 3, 1")
                a(f"v_lshlrev_b32 {v(t2)}, 1, {v(t2)}")
                a(f"v_xor_b32 {v(t1)}, {v(t1)}, {v(t2)}")
                if wt7:
                    a(f"v_and_b32 {v(t2)}, 1, {v(t0)}")
                    a(f"v_mad_u32_u24 {v(t1)}, {v(t2)}, 28, {v(t1)}")
                    a(f"v_cmp_le_u32 vcc, 24, {v(t1)}")
                    a(f"v_lshrrev_b32 {v(t0)}, 1, {v(t0)}")
                    a(f"v_lshlrev_b32 {v(t0)}, 10, {v(t0)}")
                    a(f"v_add_u32 {v(t2)}, 8, {v(t1)}")
                    a(f"v_cndmask_b32 {v(t1)}, {v(t1)}, {v(t2)}, vcc")
                else:
                    a(f"v_mul_u32_u24 {v(t0)}, {NW2}, {v(t0)}")
                a(f"v_lshl_add_u32 {v(t0)}, {v(t1)}, 4, {v(t0)}")
                a(f"s_add_u32 m0, s32, {i*1024}")
                a(f"v_add_u32 {v(vB[i])}, s3, {v(t0)}")
                a(f"buffer_load_dwordx4 {v(vB[i])}, s[8:11], 0 offen lds")
        else:
            assert PB == 2
            a(f"v_bfe_u32 {v(t1)}, v1, 4, 1")
            a(f"v_lshlrev_b32 {v(t1)}, 1, {v(t1)}")
            a(f"v_xor_b32 {v(t1)}, {v(t1)}, {v(t2)}")
            a(f"v_mul_u32_u24 {v(t0)}, {'s54' if c3 is not None else NW2}, {v(t0)}")
            a(f"v_lshl_add_u32 {v(t0)}, {v(t1)}, 4, {v(t0)}")
            a("s_mov_b32 m0, s32")
            a(f"v_add_u32 {v(vB[0])}, s3, {v(t0)}")
            a(f"buffer_load_dwordx4 {v(vB[0])}, s[8:11], 0 offen lds")
            a(f"v_xor_b32 {v(t0)}, 64, {v(vB[0])}")
            a("s_add_u32 m0, s32, 1024")
            a(f"v_add_u32 {v(vB[1])}, {'s46' if c3 is not None else (4 if alay == 'o' else 8)*NW2}, {v(t0)}")
            a(f"buffer_load_dwordx4 {v(vB[1])}, s[8:11], 0 offen lds")
        a(f"s_mov_b32 s40, {ASTEP}")
        a(f"s_mov_b32 s41, {'s55' if c3 is not None else 32768 if wt7 else BK*NW2}")
        a(f"s_mov_b32 s43, {STAGE}")
        a("s_mov_b32 s42, 0")
    cut1 = len(a.lines)
    a(f"s_mul_i32 s3, s30, {PA*8}")
    a(f"v_lshrrev_b32 {v(t0)}, 3, v1")
    a(f"v_add_u32 {v(t0)}, s3, {v(t0)}")
    a(f"s_mul_i32 s3, s28, {BM}")
    for i in range(PA):
        a(f"v_add_u32 {v(t1)}, {8*i}, {v(t0)}")
        a(f"v_lshrrev_b32 {v(t2)}, 1, {v(t1)}")
        a(f"v_and_b32 {v(t2)}, 7, {v(t2)}")
        a(f"v_and_b32 {v(t3)}, 7, v1")
        a(f"v_xor_b32 {v(t2)}, {v(t2)}, {v(t3)}")
        if ATILE:
            a(f"v_lshlrev_b32 {v(t1)}, {TSH}, {v(t1)}")
            a(f"s_mul_i32 s46, s3, {lda}")
            a(f"v_add_u32 {v(t1)}, s46, {v(t1)}")
        else:
            a(f"v_add_u32 {v(t1)}, s3, {v(t1)}")
            a(f"v_mul_u32_u24 {v(t1)}, {lda}, {v(t1)}")
        a(f"v_lshl_add_u32 {v(vA[i])}, {v(t2)}, 4, {v(t1)}")
    a(f"s_mul_i32 s3, s29, {BN*2*(K if BTILE else 1)}")
    NW2 = BN * 2 if BTILE else N * 2
    if RB == 448:
        a(f"s_mov_b32 s47, {((1 << 32) + 27) // 28}")
        for i in range(PB):
            a(f"s_mul_i32 s46, s30, {PB*64}")
            a(f"s_add_u32 s46, s46, {i*64}")
            a(f"v_add_u32 {v(t1)}, s46, v1")
            a(f"v_mul_hi_u32 {v(t0)}, {v(t1)}, s47")
            a(f"v_mul_u32_u24 {v(t2)}, 28, {v(t0)}")
            a(f"v_sub_u32 {v(t1)}, {v(t1)}, {v(t2)}")
            a(f"v_bfe_u32 {v(t2)}, {v(t0)}, 3, 1")
            a(f"v_lshlrev_b32 {v(t2)}, 1, {v(t2)}")
            a(f"v_xor_b32 {v(t1)}, {v(t1)}, {v(t2)}")
            a(f"v_mul_u32_u24 {v(t0)}, {NW2}, {v(t0)}")
            a(f"v_lshl_add_u32 {v(t0)}, {v(t1)}, 4, {v(t0)}")
            a(f"v_add_u32 {v(vB[i])}, s3, {v(t0)}")
    else:
      CPR = RB // 16
      lg_cpr = int(math.log2(CPR))
      RPP = 1024 // RB
      PPB = RB // 16
      lg_ppb = int(math.log2(PPB))
      for i in range(PB):
        a(f"s_mul_i32 s46, s30, {PB}")
        a(f"s_add_u32 s46, s46, {i}")
        a(f"s_lshr_b32 s47, s46, {lg_ppb}")
        a(f"s_and_b32 s46, s46, {PPB-1}")
        a(f"s_mul_i32 s46, s46, {RPP}")
        a(f"s_mul_i32 s47, s47, {RB}")
        a("s_add_u32 s47, s47, s3")
        a(f"v_lshrrev_b32 {v(t0)}, {lg_cpr}, v1")
        a(f"v_add_u32 {v(t0)}, s46, {v(t0)}")
        a(f"v_and_b32 {v(t1)}, {CPR-1}, v1")
        if RB == 256:
            a(f"v_and_b32 {v(t2)}, 3, {v(t0)}")
            a(f"v_bfe_u32 {v(t3)}, {v(t0)}, 3, 1")
            a(f"v_lshl_add_u32 {v(t2)}, {v(t3)}, 2, {v(t2)}")
        elif RB == 128:
            a(f"v_bfe_u32 {v(t2)}, {v(t0)}, 1, 1")
            a(f"v_bfe_u32 {v(t3)}, {v(t0)}, 3, 1")
            a(f"v_lshl_add_u32 {v(t2)}, {v(t3)}, 1, {v(t2)}")
        elif RB == 64:
            a(f"v_bfe_u32 {v(t2)}, {v(t0)}, 3, 1")
        else:
            a(f"v_mov_b32 {v(t2)}, 0")
        a(f"v_lshlrev_b32 {v(t2)}, 1, {v(t2)}")
        a(f"v_xor_b32 {v(t1)}, {v(t1)}, {v(t2)}")
        a(f"v_mul_u32_u24 {v(t0)}, {NW2}, {v(t0)}")
        a(f"v_lshl_add_u32 {v(t0)}, {v(t1)}, 4, {v(t0)}")
        a(f"v_add_u32 {v(vB[i])}, s47, {v(t0)}")
    a(f"s_mul_i32 s31, s30, {PA*1024}")
    a(f"s_mul_i32 s32, s30, {PB*1024}")
    a(f"s_add_u32 s32, s32, {ABYTES}")
    a("s_mov_b32 s40, 0")
    a("s_mov_b32 s41, 0")
    a("s_mov_b32 s43, 0")
    a("s_mov_b32 s42, 0")
    if FS: del a.lines[cut1:]
    assert FS or (c3 is None and not wt7 and not alay)
    if not (FS and not pre): build_srds(FS)
    if zero_flags:
        lz = a.newlabel("L_nz")
        a("s_cmp_lg_u32 s2, 0")
        a(f"s_cbranch_scc1 {lz}")
        srd(a, 92, 24, WS_FLAG, 512)
        a(f"v_lshlrev_b32 {v(t0)}, 3, v1")
        a("v_mov_b32 v44, 0")
        a("v_mov_b32 v45, 0")
        a(f"buffer_store_dwordx2 v[44:45], {v(t0)}, s[92:95], 0 offen")
        a.label(lz)
    if splitk:
        a(f"s_mul_i32 s40, s92, {NSLO*ASTEP}")
        a(f"s_mul_i32 s41, s92, {NSLO*BK*NW2}")
        lab_lpass = a.newlabel("L_lpass")
        a.label(lab_lpass)

    def dma():
        if 'nodma' in EXP: return
        a("s_add_u32 s33, s43, s31")
        for i in range(PA):
            a(f"s_add_u32 m0, s33, {i*1024}")
            a("s_nop 0")
            a(f"buffer_load_dwordx4 {v(vA[i])}, s[4:7], s40 offen lds")
        a("s_add_u32 s33, s43, s32")
        for i in range(PB):
            a(f"s_add_u32 m0, s33, {i*1024}")
            a("s_nop 0")
            a(f"buffer_load_dwordx4 {v(vB[i])}, s[8:11], s41 offen lds")
        a(f"s_add_u32 s40, s40, {ASTEP}")
        a(f"s_add_u32 s41, s41, {'s55' if c3 is not None else 32768 if wt7 else BK*NW2}")
        if 'kwrap' in EXP:
            KW = int(os.environ.get('KW', '8'))
            a(f"s_cmp_ge_u32 s40, {KW*ASTEP}")
            a("s_cselect_b32 s40, 0, s40")
            a("s_cselect_b32 s41, 0, s41")
        a(f"s_add_u32 s43, s43, {STAGE}")
        a(f"s_cmp_ge_u32 s43, {STAGE*NSTAGE}")
        a("s_cselect_b32 s43, 0, s43")

    if not FS: stamp(1)
    def stats_loads():
        a(f"v_and_b32 {v(LSA)}, 15, v1")
        a(f"v_lshlrev_b32 {v(LSA)}, 4, {v(LSA)}")
        a("s_lshl_b32 s3, s30, 8")
        a(f"v_add_u32 {v(LSA)}, s3, {v(LSA)}")
        a(f"v_lshrrev_b32 {v(t1)}, 4, v1")
        a(f"v_lshl_add_u32 {v(t3)}, {v(t1)}, 10, {v(LSA)}")
        a("s_lshl_b32 s3, s28, 14")
        for i in range(4):
            a(f"buffer_load_dwordx4 {v(LSD+4*i,4)}, {v(t3)}, s[84:87], s3 offen")
            a("s_add_u32 s3, s3, 4096")
    if pre and NL:
        if not fz: stats_loads()
    elif pre:
        a(f"v_lshrrev_b32 {v(LSA)}, 1, v1")
        a("s_lshl_b32 s3, s30, 5")
        a(f"v_add_u32 {v(LSA)}, s3, {v(LSA)}")
        a(f"s_mul_i32 s3, s28, {BM}")
        a(f"v_add_u32 {v(t0)}, s3, {v(LSA)}")
        a(f"v_lshlrev_b32 {v(t0)}, 7, {v(t0)}")
        a(f"v_and_b32 {v(t1)}, 1, v1")
        a(f"v_lshl_add_u32 {v(t0)}, {v(t1)}, 6, {v(t0)}")
        for i in range(4):
            a(f"buffer_load_dwordx4 {v(LSD+4*i,4)}, {v(t0)}, s[84:87], 0 offen offset:{16*i}")
    if st_bias:
        a(f"v_lshlrev_b32 {v(t0)}, 4, v1")
        a(f"s_mul_i32 s3, s29, {BN*2}")
        a(f"s_mov_b32 m0, {EPI}")
        a("s_nop 0")
        a(f"buffer_load_dwordx4 {v(t0)}, s[20:23], s3 offen lds")
        def cs_loads():
            a(f"s_mul_i32 s3, s29, {BN*4}")
            a(f"s_mul_i32 s46, s30, {4*N*4}")
            a("s_add_u32 s3, s3, s46")
            if fz: a("s_mov_b32 exec_hi, 0x00ffffff")
            for g_ in range(4):
                a(f"buffer_load_dwordx4 {v(LWD+4*g_,4)}, {v(t0)}, s[88:91], s3 offen")
                a(f"s_add_u32 s3, s3, {N*4}")
            if fz: a("s_mov_b32 exec_hi, -1")
        if not fz: cs_loads()
    if fz:
        for st_ in range(1, NSTAGE - 1):
            for i in range(PB):
                a(f"s_add_u32 m0, s32, {st_*STAGE + i*1024}")
                a("s_nop 0")
                a(f"buffer_load_dwordx4 {v(vB[i])}, s[8:11], s41 offen lds")
            a(f"s_add_u32 s41, s41, {'s55' if c3 is not None else BK*NW2}")
        stamp(4, True)
        t2_wait(246)
        for st_ in range(NSTAGE - 1):
            for i in range(PA):
                a(f"s_add_u32 m0, s31, {st_*STAGE + i*1024}")
                a(f"s_mov_b32 s40, {st_*ASTEP}")
                a(f"buffer_load_dwordx4 {v(vA[i])}, s[4:7], s40 offen lds")
        a(f"s_mov_b32 s40, {(NSTAGE-1)*ASTEP}")
        a(f"s_mov_b32 s43, {(NSTAGE-1)*STAGE}")
        if pre:
            stats_loads()
            cs_loads()
    for _ in range(0 if fz else NSTAGE - 1 - (1 if FS else 0)):
        dma()
    if FS and not pre: build_srds(True)
    if sp3:
        assert RA * BM == 512 and RBN * BN == 512 and ATILE and TP == 128 and c3 is not None
        D0 = NSTAGE - 1 + sp3
        a("s_lshr_b32 s3, s2, 3")
        a("s_lshl_b32 s3, s3, 2")
        a("s_add_u32 s3, s3, s30")
        a(f"s_and_b32 s46, s28, {-RA & 0xffffffff}")
        a("s_lshr_b32 s47, s3, 4")
        a("s_add_u32 s46, s46, s47")
        a(f"s_mul_i32 s46, s46, {BM*lda}")
        a("s_and_b32 s47, s3, 15")
        a("s_lshl_b32 s47, s47, 10")
        a("s_add_u32 s46, s46, s47")
        a(f"s_add_u32 s96, s46, {D0*ASTEP}")
        a("s_add_u32 s98, s96, 384")
        a(f"s_add_u32 s46, s3, {D0*64-64}")
        a(f"s_lshr_b32 s47, s29, {int(math.log2(RBN))}")
        a(f"s_mul_i32 s99, s47, {K*256}")
        a("s_lshl_b32 s97, s46, 8")
        a("s_add_u32 s99, s99, s97")
        a("s_lshl_b32 s47, s47, 10")
        a("s_lshl_b32 s46, s46, 11")
        a("s_add_u32 s46, s46, s47")
        srd(a, 76, 26, 0, K * N * 2)
        a("s_cmp_lt_u32 s3, 64")
        a("s_cselect_b32 s96, s96, s46")
        a("s_cselect_b32 s98, s98, s99")
        a("s_cselect_b32 s97, 14, 17")
        a("s_cselect_b32 s99, 14, 14")
        for i in range(4):
            a(f"s_cselect_b32 s{76+i}, s{4+i}, s{76+i}")
            a(f"s_cselect_b32 s{92+i}, s{4+i}, s{50+i}")
        a("s_lshl_b32 s97, 1, s97")
        a("s_lshl_b32 s99, 1, s99")
        assert ASTEP == 1 << 14
    stamp(2)
    if ln and not pre:
        wfrag_addr_common()
        for i in range(NPL):
            a(f"s_mul_i32 s46, s30, {NPL}")
            a(f"s_add_u32 s46, s46, {i}")
            a(f"s_min_u32 s46, s46, {BN//16-1}")
            wfrag_addr(LCW + i)
        for i in range(4):
            a(f"v_mov_b32 {v(LONE+i)}, 0x3f803f80")
        for i in range(16):
            a(f"v_mov_b32 {v(LMS+i)}, 0")
        a(f"v_and_b32 {v(t0)}, 15, v1")
        a("s_lshl_b32 s3, s30, 5")
        a(f"v_add_u32 {v(t0)}, s3, {v(t0)}")
        a(f"v_lshlrev_b32 {v(t0)}, 7, {v(t0)}")
        a(f"v_lshrrev_b32 {v(t1)}, 4, v1")
        a(f"v_bfe_u32 {v(t2)}, v1, 1, 3")
        a(f"v_xor_b32 {v(t3)}, {v(t1)}, {v(t2)}")
        a(f"v_lshl_add_u32 {v(LSA)}, {v(t3)}, 4, {v(t0)}")
        a(f"v_xor_b32 {v(t3)}, 4, {v(t3)}")
        a(f"v_lshl_add_u32 {v(LSA+1)}, {v(t3)}, 4, {v(t0)}")
        for i in range(4 * NPL):
            a(f"v_mov_b32 {v(LCS+i)}, 0")

    def stats_reads():
        for i in range(2):
            a(f"v_add_u32 {v(LSC+i)}, s42, {v(LSA+i)}")
        for i in range(NPL):
            a(f"v_add_u32 {v(LCC+i)}, s42, {v(LCW+i)}")
        a(f"s_add_u32 s42, s42, {STAGE}")
        a(f"s_cmp_ge_u32 s42, {STAGE*NSTAGE}")
        a("s_cselect_b32 s42, 0, s42")
        for q in range(2):
            for kk in range(2):
                a(f"ds_read_b128 {v(LSD+8*q+4*kk,4)}, {v(LSC+kk)} offset:{2048*q}")
        for i in range(NPL):
            for kk in range(2):
                for rd in range(2):
                    a(f"ds_read_b64_tr_b16 {v(LWD+8*i+4*kk+2*rd,2)}, {v(LCC+i)} offset:{kk*32*RB+rd*4*RB}")

    def stats_math():
        a("s_waitcnt lgkmcnt(0)")
        for i in range(NPL):
            for kk in range(2):
                a(f"v_mfma_f32_16x16x32_bf16 {v(LCS+4*i,4)}, {v(LWD+8*i+4*kk,4)}, {v(LONE,4)}, {v(LCS+4*i,4)}")
        for kk in range(2):
            for q in range(2):
                d = v(LSD + 8 * q + 4 * kk, 4)
                a(f"v_mfma_f32_16x16x32_bf16 {v(LMS+8*q,4)}, {d}, {v(LONE,4)}, {v(LMS+8*q,4)}")
                a(f"v_mfma_f32_16x16x32_bf16 {v(LMS+8*q+4,4)}, {d}, {d}, {v(LMS+8*q+4,4)}")

    nloop = NS - NSTAGE + 1
    if fz:
        for j in range(NSTAGE - 2):
            a(f"s_waitcnt vmcnt({(NSTAGE-2-j)*PA + j*P + (8 if pre else 0)})")
            a("s_barrier")
            dma()
            nloop -= 1
    if splitk: a(f"s_sub_u32 s48, s93, {NSTAGE-1}")
    else: a(f"s_mov_b32 s48, {nloop}")
    lloop = a.newlabel("L_lloop")
    LF, LRA, LCA, LCV, LFT = 44, 52, 53, 54, 55
    if FL:
        lfirst = a.newlabel("L_lfirst")
        a("s_lshl_b32 s3, s30, 8")
        a(f"s_add_u32 s3, s3, {FLG}")
        a(f"v_lshl_add_u32 {v(LRA)}, v1, 2, s3")
        a(f"v_and_b32 {v(LCA)}, 3, v1")
        a(f"v_lshlrev_b32 {v(LCA)}, 8, {v(LCA)}")
        a(f"v_lshl_add_u32 {v(LCA)}, v1, 2, {v(LCA)}")
        a(f"v_add_u32 {v(LCA)}, {FLG+1024}, {v(LCA)}")
        a(f"v_mov_b32 {v(LCV)}, 1")
        a(f"ds_write_b32 {v(LRA)}, {v(LCV)}")
        a(f"s_waitcnt vmcnt({(NSTAGE-2)*P}) lgkmcnt(0)")
        a("s_barrier")
        a(f"s_branch {lfirst}")
        a.label(lloop)
        a(f"v_add_u32 {v(LFT)}, 1, {v(LCV)}")
        a(f"s_waitcnt vmcnt({(NSTAGE-2)*P})")
        a(f"ds_write_b32 {v(LRA)}, {v(LFT)}")
        lpl = a.newlabel("L_lpoll"); lp1 = a.newlabel("L_lpoll1")
        a(f"s_branch {lp1}")
        a.label(lpl)
        if SLL: a(f"s_sleep {SLL}")
        a.label(lp1)
        a(f"ds_read_b32 {v(LF)}, {v(LCA)}")
        a("s_waitcnt lgkmcnt(0)")
        a(f"v_cmp_gt_u32 vcc, {v(LCV)}, {v(LF)}")
        a(f"s_cbranch_vccnz {lpl}")
        a(f"v_mov_b32 {v(LCV)}, {v(LFT)}")
        a.label(lfirst)
    else:
        a.label(lloop)
        a(f"s_waitcnt vmcnt({(NSTAGE-2)*P})")
        a("s_barrier")
    if ln and not pre: stats_reads()
    dma()
    if sp3:
        lsk = a.newlabel("L_sp3")
        a(f"s_cmp_le_u32 s48, {sp3}")
        a(f"s_cbranch_scc1 {lsk}")
        for i in range(8):
            if i == 3: a("s_buffer_load_dwordx2 s[100:101], s[92:95], s98 offset:60")
            else: a(f"s_buffer_load_dwordx2 s[100:101], s[76:79], s96 offset:{128*i+60}")
        a("s_add_u32 s96, s96, s97")
        a("s_add_u32 s98, s98, s99")
        a.label(lsk)
    if ln and not pre: stats_math()
    a("s_sub_u32 s48, s48, 1")
    a("s_cmp_lg_u32 s48, 0")
    a(f"s_cbranch_scc1 {lloop}")
    if endpf:
        e_arg, e_bytes, e_lo, e_n = endpf
        a(f"s_load_dwordx2 s[94:95], s[0:1], {ARG[e_arg]}")
        a("s_lshl_b32 s3, s2, 2")
        a("s_add_u32 s3, s3, s30")
        a(f"s_mul_i32 s3, s3, {e_n*128}")
        if e_lo: a(f"s_add_u32 s3, s3, {e_lo}")
        a(f"v_lshlrev_b32 {v(W2A)}, 7, v1")
        a("s_waitcnt lgkmcnt(0)")
        srd(a, 76, 94, 0, e_bytes)
        a(f"s_mov_b64 exec, {hex((1 << e_n) - 1)}" if e_n <= 32 else f"s_mov_b32 exec_hi, {hex((1 << (e_n - 32)) - 1)}")
        a(f"buffer_load_dword {v(W2S)}, {v(W2A)}, s[76:79], s3 offen")
        a("s_mov_b64 exec, -1")
        NEX += 1
    if pre and NL:
        for i in range(1, 4):
            for j in range(2):
                a(f"v_pk_add_f32 {v(LSD+2*j,2)}, {v(LSD+2*j,2)}, {v(LSD+4*i+2*j,2)}")
        for x in (16, 32):
            a(f"v_xor_b32 {v(t0)}, {x}, v1")
            a(f"v_lshlrev_b32 {v(t0)}, 2, {v(t0)}")
            for j in range(4):
                a(f"ds_bpermute_b32 {v(LSD+4+j)}, {v(t0)}, {v(LSD+j)}")
            a("s_waitcnt lgkmcnt(0)")
            for j in range(2):
                a(f"v_pk_add_f32 {v(LSD+2*j,2)}, {v(LSD+2*j,2)}, {v(LSD+4+2*j,2)}")
        for q in range(2):
            sm, sq, r1, r2 = LSD + 2 * q, LSD + 2 * q + 1, LSD + 4 + 2 * q, LSD + 5 + 2 * q
            a(f"v_mul_f32 {v(sm)}, {hex_f32(1.0/K)}, {v(sm)}")
            a(f"v_mul_f32 {v(sq)}, {hex_f32(1.0/K)}, {v(sq)}")
            a(f"v_fma_f32 {v(sq)}, -{v(sm)}, {v(sm)}, {v(sq)}")
            a(f"v_max_f32 {v(sq)}, 0, {v(sq)}")
            a(f"v_add_f32 {v(r1)}, {hex_f32(1e-5)}, {v(sq)}")
            a(f"v_rsq_f32 {v(r1)}, {v(r1)}")
            a("s_nop 0")
            assert ln == 'double'
            a(f"v_mul_f32 {v(r2)}, {v(r1)}, {v(r1)}")
            a(f"v_mul_f32 {v(r2)}, {v(r2)}, {v(sq)}")
            a(f"v_add_f32 {v(r2)}, {hex_f32(1e-5)}, {v(r2)}")
            a(f"v_rsq_f32 {v(r2)}, {v(r2)}")
            a("s_nop 0")
            a(f"v_mul_f32 {v(r1)}, {v(r1)}, {v(r2)}")
            a(f"v_mul_f32 {v(r2)}, {v(sm)}, {v(r1)}")
            a(f"v_sub_f32 {v(r2)}, 0, {v(r2)}")
        a(f"v_add_u32 {v(LSC)}, {RTAB}, {v(LSA)}")
        a(f"ds_write_b128 {v(LSC)}, {v(LSD+4,4)}")
    if pre and not NL:
        for i in range(1, 8):
            a(f"v_add_f32 {v(LSD)}, {v(LSD)}, {v(LSD+2*i)}")
            a(f"v_add_f32 {v(LSD+1)}, {v(LSD+1)}, {v(LSD+2*i+1)}")
        a("s_nop 1")
        for k_ in range(2):
            a(f"v_add_f32_dpp {v(LST+k_)}, {v(LSD+k_)}, {v(LSD+k_)} quad_perm:[1,0,3,2] row_mask:0xf bank_mask:0xf")
        sm, sq, r1, r2 = LST, LST + 1, LSD, LSD + 1
        a(f"v_mul_f32 {v(sm)}, {hex_f32(1.0/K)}, {v(sm)}")
        a(f"v_mul_f32 {v(sq)}, {hex_f32(1.0/K)}, {v(sq)}")
        a(f"v_fma_f32 {v(sq)}, -{v(sm)}, {v(sm)}, {v(sq)}")
        a(f"v_max_f32 {v(sq)}, 0, {v(sq)}")
        a(f"v_add_f32 {v(r1)}, {hex_f32(1e-5)}, {v(sq)}")
        a(f"v_rsq_f32 {v(r1)}, {v(r1)}")
        a("s_nop 0")
        if ln == 'double':
            a(f"v_mul_f32 {v(r2)}, {v(r1)}, {v(r1)}")
            a(f"v_mul_f32 {v(r2)}, {v(r2)}, {v(sq)}")
            a(f"v_add_f32 {v(r2)}, {hex_f32(1e-5)}, {v(r2)}")
            a(f"v_rsq_f32 {v(r2)}, {v(r2)}")
            a("s_nop 0")
            a(f"v_mul_f32 {v(r1)}, {v(r1)}, {v(r2)}")
        a(f"v_mul_f32 {v(r2)}, {v(sm)}, {v(r1)}")
        a(f"v_sub_f32 {v(r2)}, 0, {v(r2)}")
        a(f"v_lshlrev_b32 {v(LSC)}, 3, {v(LSA)}")
        a(f"v_add_u32 {v(LSC)}, {RTAB}, {v(LSC)}")
        a(f"ds_write_b64 {v(LSC)}, {v(LSD,2)}")
    if pre:
        for g_ in range(1, 4):
            for j in range(2):
                a(f"v_pk_add_f32 {v(LWD+2*j,2)}, {v(LWD+2*j,2)}, {v(LWD+4*g_+2*j,2)}")
        a(f"v_lshlrev_b32 {v(t0)}, 4, v1")
        a(f"v_add_u32 {v(t0)}, {EPI+3072}, {v(t0)}")
        a("s_lshl_b32 s3, s30, 10")
        a(f"v_add_u32 {v(t1)}, s3, {v(t0)}")
        a(f"ds_write_b128 {v(t1)}, {v(LWD,4)}")
        a("s_waitcnt lgkmcnt(0)")
    if st_res:
        npc = BM * BN * 2 // 4096
        rpp = 1024 // (BN * 2)
        lpr = BN * 2 // 16
        a(f"v_lshrrev_b32 {v(t0)}, {int(math.log2(lpr))}, v1")
        RP = TP if rtile else N * 2
        a(f"s_mul_i32 s3, s30, {npc*rpp}")
        if not rtile:
            a(f"s_mul_i32 s46, s28, {BM}")
            a("s_add_u32 s3, s3, s46")
        a(f"v_add_u32 {v(t0)}, s3, {v(t0)}")
        a(f"v_mul_u32_u24 {v(t0)}, {RP}, {v(t0)}")
        a(f"v_and_b32 {v(t1)}, {lpr-1}, v1")
        a(f"v_lshl_add_u32 {v(t0)}, {v(t1)}, 4, {v(t0)}")
        if rtile:
            assert BN == 64
            a(f"s_mul_i32 s3, s29, {BM*TP}")
            a(f"s_mul_i32 s46, s28, {BM*N*2*TX}")
            a("s_add_u32 s3, s3, s46")
        else:
            a(f"s_mul_i32 s3, s29, {BN*2}")
        a(f"v_add_u32 {v(t0)}, s3, {v(t0)}")
        a(f"s_mul_i32 s33, s30, {npc*1024}")
        for i in range(npc):
            a(f"s_add_u32 m0, s33, {EPI + i*1024}")
            a(f"s_mov_b32 s3, {i*rpp*RP}")
            a(f"buffer_load_dwordx4 {v(t0)}, s[16:19], s3 offen lds")
    for j in range(NS - NSTAGE + 1, NS):
        if FL: a(f"v_mov_b32 {v(LCV)}, {j+1 if j < NS-1 else NS+1}")
        a(f"s_waitcnt vmcnt({(NS-1-j)*P + NEX})")
        if FL:
            a(f"ds_write_b32 {v(LRA)}, {v(LCV)}")
            a("s_nop 1")
            if j == NS - 1:
                stamp(3)
                a("s_barrier")
        else: a("s_barrier")
        if pre and j == (NS - 1 if FL else NS - NSTAGE + 1):
            assert NSTAGE >= 3
            lcs = a.newlabel("L_lcs")
            a("s_cmp_lg_u32 s30, 0")
            a(f"s_cbranch_scc1 {lcs}")
            for g_ in range(4):
                a(f"ds_read_b128 {v(LWD+4*g_,4)}, {v(t0)} offset:{1024*g_}")
            a("s_waitcnt lgkmcnt(0)")
            for g_ in range(1, 4):
                for j_ in range(2):
                    a(f"v_pk_add_f32 {v(LWD+2*j_,2)}, {v(LWD+2*j_,2)}, {v(LWD+4*g_+2*j_,2)}")
            a(f"v_subrev_u32 {v(t0)}, {EPI+3072-CTAB}, {v(t0)}")
            a(f"ds_write_b128 {v(t0)}, {v(LWD,4)}")
            a("s_waitcnt lgkmcnt(0)")
            a.label(lcs)
        if ln and not pre:
            stats_reads()
            stats_math()
    if not FL: stamp(3)
    if epi2 and not FL: a("s_barrier")
    if w2copy:
        a("s_lshl_b32 s92, s2, 2")
        a("s_add_u32 s92, s92, s30")
        a(f"v_lshrrev_b32 {v(t0)}, 3, v1")
        a(f"v_and_b32 {v(t1)}, 7, v1")
        a(f"v_lshlrev_b32 {v(t1)}, 4, {v(t1)}")
        a(f"v_lshl_add_u32 {v(W2A)}, {v(t0)}, 11, {v(t1)}")
        a("s_lshr_b32 s3, s92, 6")
        a("s_lshl_b32 s3, s3, 7")
        a("s_and_b32 s46, s92, 63")
        a(f"s_mul_i32 s46, s46, {56*D*2}")
        a("s_add_u32 s3, s3, s46")
        srd(a, 88, 94, 0, F * D * 2)
        for j in range(7):
            a(f"buffer_load_dwordx4 {v(W2S+4*j,4)}, {v(W2A)}, s[88:91], s3 offen")
            a(f"s_add_u32 s3, s3, {8*D*2}")
        def w2store(extra):
            srd(a, 88, 24, WS_W2T, F * D * 2)
            a("s_mul_i32 s3, s92, 7168")
            a(f"v_lshlrev_b32 {v(W2A)}, 4, v1")
            for j in range(7):
                if j == 4: a("s_add_u32 s3, s3, 4096")
                a(f"s_waitcnt vmcnt({6+extra})")
                a(f"buffer_store_dwordx4 {v(W2S+4*j,4)}, {v(W2A)}, s[88:91], s3 offen offset:{1024*(j&3)}")
        if not epi2: w2store(0)
    if ln and not pre:
        a("s_nop 7")
        a(f"v_and_b32 {v(t0)}, 3, v1")
        for r in range(1, 4):
            a(f"v_cmp_eq_u32 s[{48+2*r}:{49+2*r}], {r}, {v(t0)}")
        X0 = LSD
        for i in range(2):
            sm, sq = LST + 2 * i, LST + 2 * i + 1
            r1, r2 = X0 + 2 * i, X0 + 2 * i + 1
            for dst, src in ((sm, LMS + 8 * i), (sq, LMS + 8 * i + 4)):
                a(f"v_cndmask_b32 {v(dst)}, {v(src)}, {v(src+1)}, s[50:51]")
                a(f"v_cndmask_b32 {v(dst)}, {v(dst)}, {v(src+2)}, s[52:53]")
                a(f"v_cndmask_b32 {v(dst)}, {v(dst)}, {v(src+3)}, s[54:55]")
            a(f"v_mul_f32 {v(sm)}, {hex_f32(1.0/K)}, {v(sm)}")
            a(f"v_mul_f32 {v(sq)}, {hex_f32(1.0/K)}, {v(sq)}")
            a(f"v_fma_f32 {v(sq)}, -{v(sm)}, {v(sm)}, {v(sq)}")
            a(f"v_max_f32 {v(sq)}, 0, {v(sq)}")
            a(f"v_add_f32 {v(r1)}, {hex_f32(1e-5)}, {v(sq)}")
            a(f"v_rsq_f32 {v(r1)}, {v(r1)}")
            a("s_nop 0")
            assert ln == 'single'
            a(f"v_mul_f32 {v(r2)}, {v(sm)}, {v(r1)}")
            a(f"v_sub_f32 {v(r2)}, 0, {v(r2)}")
        a(f"v_lshrrev_b32 {v(LSC)}, 7, {v(LSA)}")
        a(f"v_lshlrev_b32 {v(LSC)}, 3, {v(LSC)}")
        a(f"v_add_u32 {v(LSC)}, {RTAB}, {v(LSC)}")
        a(f"v_lshrrev_b32 {v(t0)}, 4, v1")
        a(f"v_lshlrev_b32 {v(t0)}, 4, {v(t0)}")
        for i in range(NPL):
            a(f"s_mul_i32 s46, s30, {NPL}")
            a(f"s_add_u32 s46, s46, {i}")
            a(f"s_min_u32 s46, s46, {BN//16-1}")
            a("s_lshl_b32 s46, s46, 6")
            a(f"s_add_u32 s46, s46, {CTAB}")
            a(f"v_add_u32 {v(LCC+i)}, s46, {v(t0)}")
    if ln and not pre:
        a("s_mov_b32 exec_lo, 0x00f0000f")
        a("s_mov_b32 exec_hi, 0xf0000f00")
        for i in range(2):
            a(f"ds_write_b64 {v(LSC)}, {v(LSD+2*i,2)} offset:{128*i}")
        a("s_mov_b64 exec, -1")
        for i in range(NPL):
            a(f"ds_write_b128 {v(LCC+i)}, {v(LCS+4*i,4)}")
        a("s_waitcnt lgkmcnt(0)")
        a("s_barrier")
    if st_res: a("s_waitcnt vmcnt(0)")
    if splitk:
        lhi = a.newlabel("L_lhi"); lepi = a.newlabel("L_lepi")
        a("s_cmp_lg_u32 s92, 0")
        a(f"s_cbranch_scc1 {lhi}")
        a("s_barrier")
        a(f"s_branch {end}")
        a.label(lhi)
        a("s_barrier")
        a("s_cmp_eq_u32 s94, 2")
        a(f"s_cbranch_scc1 {lepi}")
        a(f"v_mov_b32 {v(t1)}, {DONE}")
        a(f"ds_read_b128 {v(44,4)}, {v(t1)}")
        a("s_waitcnt lgkmcnt(0)")
        a("v_and_b32 v44, v44, v45")
        a("v_and_b32 v46, v46, v47")
        a("v_and_b32 v44, v44, v46")
        a("s_nop 0")
        a("v_readfirstlane_b32 s3, v44")
        a("s_nop 3")
        a("s_cmp_eq_u32 s3, 1")
        a(f"s_cbranch_scc1 {lepi}")
        a("s_mov_b32 s94, 2")
        a(f"s_mov_b32 s93, {NSLO}")
        a("s_mov_b32 s40, 0"); a("s_mov_b32 s41, 0"); a("s_mov_b32 s43, 0")
        a("s_barrier")
        a(f"s_branch {lab_lpass}")
        a.label(lepi)
    stamp(4)
    a("s_barrier")

    if FS:
        a(f"s_branch {lab_store}")
        seg = a.lines[pos_l0:]
        del a.lines[pos_l0:]
        a.lines[pos_ins:pos_ins] = seg
    a.label(lab_store)
    if epi2:
        CPRW = BN // 8
        assert CPRW == 28 and otile
        vL, vR, vO = 2, 3, 4
        CSr, BFr, Dr, RCr, Gr, Or, K1 = 8, 16, [24, 32], [40, 42], 44, [52, 56], 60
        c2 = 2 * math.log2(math.e)
        k1 = struct.unpack("<I", struct.pack("<f", -0.7978845608 * c2))[0]
        k3 = struct.unpack("<I", struct.pack("<f", -0.7978845608 * 0.044715 * c2))[0]
        a("s_setprio 0")
        if NL:
            a("v_bfe_u32 v5, v1, 2, 1")
            a("v_lshl_add_u32 v5, v5, 3, s49")
            a("v_lshrrev_b32 v6, 3, v1")
            a("v_and_b32 v7, 3, v1")
            a("v_lshl_add_u32 v6, v6, 2, v7")
        else:
            a(f"v_cmp_le_u32 s[46:47], {CPRW}, v1")
            a(f"v_mov_b32 v5, 0")
            a(f"v_cndmask_b32 v5, v5, 1, s[46:47]")
            a(f"v_mul_u32_u24 v6, {CPRW}, v5")
            a(f"v_sub_u32 v6, v1, v6")
            a("s_lshl_b32 s3, s49, 1")
            a("v_add_u32 v5, s3, v5")
        a("s_mov_b32 exec_hi, 0x00ffffff")
        a(f"v_lshlrev_b32 v7, 5, v6")
        a(f"v_add_u32 v7, {CTAB}, v7")
        a(f"ds_read_b128 {v(CSr,4)}, v7")
        a(f"ds_read_b128 {v(CSr+4,4)}, v7 offset:16")
        a(f"v_lshlrev_b32 v7, 4, v6")
        a(f"v_add_u32 v62, {EPI}, v7")
        a(f"ds_read_b128 {v(Gr,4)}, v62")
        a(f"v_mul_u32_u24 {v(vL)}, {FROW}, v5")
        a(f"v_add_u32 {v(vL)}, {v(vL)}, v7")
        a(f"v_lshlrev_b32 {v(vR)}, 3, v5")
        a(f"v_add_u32 {v(vR)}, {RTAB}, {v(vR)}")

        def rd(b):
            a(f"ds_read_b128 {v(Dr[b],4)}, {v(vL)}")
            a(f"ds_read_b128 {v(Dr[b]+4,4)}, {v(vL)} offset:{BN*2}")
            a(f"ds_read_b64 {v(RCr[b],2)}, {v(vR)}")
            a(f"v_add_u32 {v(vL)}, {16*FROW}, {v(vL)}")
            a(f"v_add_u32 {v(vR)}, 128, {v(vR)}")
        rd(0)
        a(f"s_mul_i32 s3, s29, {CPRW}")
        a("v_add_u32 v6, s3, v6")
        if NL:
            a("v_lshrrev_b32 v7, 2, v6")
            a("v_lshlrev_b32 v7, 13, v7")
            a("s_lshl_b32 s3, s49, 7")
            a("v_add_u32 v7, s3, v7")
            a("v_and_b32 v6, 7, v1")
        else:
            a("v_lshrrev_b32 v7, 3, v6")
            a(f"v_lshlrev_b32 v7, {TSH+7}, v7")
            a(f"v_lshl_add_u32 v7, v5, {TSH}, v7")
            a("v_and_b32 v6, 7, v6")
        a(f"v_lshl_add_u32 {v(vO)}, v6, 4, v7")
        a(f"s_mul_i32 s50, s28, {BM*ldo}")
        a(f"s_mov_b32 s52, {k3}"); a(f"s_mov_b32 s53, {k3}")
        a(f"v_mov_b32 {v(K1)}, {k1}"); a(f"v_mov_b32 {v(K1+1)}, {k1}")
        a("s_mov_b32 s56, 1.0"); a("s_mov_b32 s57, 1.0")
        a("s_waitcnt lgkmcnt(3)")
        for j in range(4):
            a(f"v_lshlrev_b32 {v(BFr+2*j)}, 16, {v(Gr+j)}")
            a(f"v_and_b32 {v(BFr+2*j+1)}, 0xffff0000, {v(Gr+j)}")
        stamp(5)
        a(f"s_mov_b32 s48, {BM//32}")
        lp = a.newlabel("L_ep")
        a.label(lp)
        for b in range(2):
            rd(1 - b)
            a("s_waitcnt lgkmcnt(3)")
            d = Dr[b]; rc = v(RCr[b], 2)
            for j in range(4):
                a(f"v_pk_fma_f32 {v(Gr+2*j,2)}, {v(CSr+2*j,2)}, {rc}, {v(BFr+2*j,2)} op_sel:[0,1,0] op_sel_hi:[1,1,1]")
            for j in range(4):
                a(f"v_pk_fma_f32 {v(d+2*j,2)}, {v(d+2*j,2)}, {rc}, {v(Gr+2*j,2)} op_sel:[0,0,0] op_sel_hi:[1,0,1]")
            for j in range(4):
                a(f"v_pk_mul_f32 {v(Gr+2*j,2)}, {v(d+2*j,2)}, {v(d+2*j,2)}")
            for j in range(4):
                a(f"v_pk_fma_f32 {v(Gr+2*j,2)}, {v(Gr+2*j,2)}, s[52:53], {v(K1,2)}")
            for j in range(4):
                a(f"v_pk_mul_f32 {v(Gr+2*j,2)}, {v(Gr+2*j,2)}, {v(d+2*j,2)}")
            for r in range(8):
                a(f"v_exp_f32 {v(Gr+r)}, {v(Gr+r)}")
            a("s_nop 0")
            for j in range(4):
                a(f"v_pk_add_f32 {v(Gr+2*j,2)}, {v(Gr+2*j,2)}, s[56:57]")
            for r in range(8):
                a(f"v_rcp_f32 {v(Gr+r)}, {v(Gr+r)}")
            a("s_nop 0")
            for j in range(4):
                a(f"v_pk_mul_f32 {v(d+2*j,2)}, {v(d+2*j,2)}, {v(Gr+2*j,2)}")
            for j in range(4):
                a(f"v_cvt_pk_bf16_f32 {v(Or[b]+j)}, {v(d+2*j)}, {v(d+2*j+1)}")
            a(f"buffer_store_dwordx4 {v(Or[b],4)}, {v(vO)}, s[12:15], s50 offen {STMOD}")
            a(f"s_add_u32 s50, s50, {1024 if NL else 16*TP}")
        a("s_sub_u32 s48, s48, 1")
        a("s_cmp_lg_u32 s48, 0")
        a(f"s_cbranch_scc1 {lp}")
        a("s_mov_b64 exec, -1")
        a("s_waitcnt lgkmcnt(0)")
        if w2copy:
            lw = a.newlabel("L_nw2")
            a("s_cmp_lt_u32 s49, 4")
            a(f"s_cbranch_scc1 {lw}")
            w2store(BM // 16)
            a.label(lw)
        stamp(6)
        if 'stamp' in EXP and not fz: a("s_waitcnt vmcnt(0)")
        stamp(7)
        stamp_out()
        phase_end()
        a.label(end)
        a("s_endpgm")
        return dict(name=name, grid=ntiles, block=512, lds=lds, desc=kernel_desc(name, max(nvgpr, 168)))
    CPRW = BN // 8
    NIT = BM * CPRW // 512
    assert NIT * 512 == BM * CPRW
    magic = ((1 << 32) + CPRW - 1) // CPRW
    a(f"s_mov_b32 s46, {magic}")
    a(f"s_mul_i32 s3, s49, {NIT*64}")
    a(f"v_add_u32 {v(t0)}, s3, v1")
    a(f"s_mul_i32 s3, s28, {BM*ldo if otile else BM}")
    a(f"s_mul_i32 s47, s29, {CPRW if otile else BN*2}")
    if otile and stats_out:
        a(f"s_mul_i32 s50, s28, {BM*128}")
        a(f"s_lshl_b32 s51, s29, {10 if NL else 3}")
        a("s_add_u32 s50, s50, s51")
    R0 = (vT[7] + 4) // 4 * 4
    RR = R0 + 4 * NIT
    OFF = RR + 4 * NIT
    SOF = OFF + NIT
    GT = (SOF + NIT + 3) // 4 * 4
    assert GT + 10 <= 256
    for it in range(NIT):
        a(f"v_add_u32 {v(t1)}, {it*64}, {v(t0)}")
        a(f"v_mul_hi_u32 {v(t2)}, {v(t1)}, s46")
        a(f"v_mul_u32_u24 {v(t3)}, {CPRW}, {v(t2)}")
        a(f"v_sub_u32 {v(t3)}, {v(t1)}, {v(t3)}")
        a(f"v_mul_u32_u24 {v(t1)}, {CROW}, {v(t2)}")
        a(f"v_lshl_add_u32 {v(t1)}, {v(t3)}, 4, {v(t1)}")
        if CBASE: a(f"v_add_u32 {v(t1)}, {CBASE}, {v(t1)}")
        a(f"ds_read_b128 {v(R0+4*it,4)}, {v(t1)}")
        if not otile: a(f"v_add_u32 {v(t2)}, s3, {v(t2)}")
        if stats_out:
            if otile:
                a(f"v_lshl_add_u32 {v(SOF+it)}, {v(t2)}, {3 if NL else 7}, s50")
            else:
                a(f"v_lshlrev_b32 {v(SOF+it)}, 7, {v(t2)}")
                a(f"v_lshl_add_u32 {v(SOF+it)}, s29, 3, {v(SOF+it)}")
        if otile:
            a(f"v_add_u32 {v(t3)}, s47, {v(t3)}")
            a(f"v_lshrrev_b32 {v(t1)}, 3, {v(t3)}")
            a(f"v_lshlrev_b32 {v(t1)}, {TSH+7}, {v(t1)}")
            a(f"v_lshl_add_u32 {v(t1)}, {v(t2)}, {TSH}, {v(t1)}")
            a(f"v_and_b32 {v(t3)}, 7, {v(t3)}")
            a(f"v_lshl_add_u32 {v(t1)}, {v(t3)}, 4, {v(t1)}")
            a(f"v_add_u32 {v(OFF+it)}, s3, {v(t1)}")
        else:
            a(f"v_mul_u32_u24 {v(t2)}, {ldo}, {v(t2)}")
            a(f"v_lshlrev_b32 {v(t3)}, 4, {v(t3)}")
            a(f"v_add_u32 {v(t3)}, s47, {v(t3)}")
            a(f"v_add_u32 {v(OFF+it)}, {v(t3)}, {v(t2)}")
        if st_res:
            a(f"v_lshlrev_b32 {v(t1)}, 4, {v(t0)}")
            a(f"v_add_u32 {v(t1)}, {EPI + it*1024}, {v(t1)}")
            a(f"ds_read_b128 {v(RR+4*it,4)}, {v(t1)}")
        elif res_arg:
            a(f"buffer_load_dwordx4 {v(RR+4*it,4)}, {v(OFF+it)}, s[16:19], 0 offen")
    a("s_waitcnt vmcnt(0) lgkmcnt(0)" if (res_arg and not st_res) else "s_waitcnt lgkmcnt(0)")
    if DRY: a.dry_exit()
    stamp(5)
    for it in range(NIT):
        c0 = R0 + 4 * it
        if res_arg:
            for j in range(4):
                d = c0 + j
                r = RR + 4 * it + j
                a(f"v_lshlrev_b32 {v(GT)}, 16, {v(d)}")
                a(f"v_lshlrev_b32 {v(GT+1)}, 16, {v(r)}")
                a(f"v_and_b32 {v(GT+2)}, 0xffff0000, {v(d)}")
                a(f"v_and_b32 {v(GT+3)}, 0xffff0000, {v(r)}")
                a(f"v_add_f32 {v(GT)}, {v(GT)}, {v(GT+1)}")
                a(f"v_add_f32 {v(GT+2)}, {v(GT+2)}, {v(GT+3)}")
                a(f"v_cvt_pk_bf16_f32 {v(d)}, {v(GT)}, {v(GT+2)}")
        a(f"buffer_store_dwordx4 {v(c0,4)}, {v(OFF+it)}, s[12:15], 0 offen {STMOD if (ln or STALL or (fz and fz['next'])) else ''}")
        if stats_out:
            assert CPRW == 8
            a(f"v_mov_b32 {v(GT+8)}, 0x3f803f80")
            a(f"v_mov_b32 {v(GT)}, 0")
            a(f"v_mov_b32 {v(GT+1)}, 0")
            for j in range(4):
                a(f"v_dot2_f32_bf16 {v(GT)}, {v(c0+j)}, {v(GT+8)}, {v(GT)}")
                a(f"v_dot2_f32_bf16 {v(GT+1)}, {v(c0+j)}, {v(c0+j)}, {v(GT+1)}")
            a("s_nop 3")
            for q_, mode in enumerate(("quad_perm:[1,0,3,2]", "quad_perm:[2,3,0,1]", "row_half_mirror")):
                src = GT + 2 * (q_ & 1); dst = GT + 2 * ((q_ + 1) & 1)
                for k_ in range(2):
                    a(f"v_add_f32_dpp {v(dst+k_)}, {v(src+k_)}, {v(src+k_)} {mode} row_mask:0xf bank_mask:0xf")
                a("s_nop 1")
            a("s_mov_b32 exec_lo, 0x01010101")
            a("s_mov_b32 exec_hi, 0x01010101")
            a(f"buffer_store_dwordx2 {v(GT+2,2)}, {v(SOF+it)}, s[84:87], 0 offen {'sc0 sc1' if fz else ''}")
            a("s_mov_b64 exec, -1")
    stamp(6)
    if 'stamp' in EXP and not (fz and fz['next']): a("s_waitcnt vmcnt(0)")
    stamp(7)
    stamp_out()
    phase_end()
    a.label(end)
    a("s_endpgm")
    if DRY: a.dry_dispatch()
    return dict(name=name, grid=ntiles, block=512, lds=lds, desc=kernel_desc(name, max(nvgpr, GT + 10, 168)))


def gen_attn(a, name, pf=None, colsum=False):
    import struct
    NQB = S // 32
    ntask = H * NQB
    nwg = ntask // 4
    QKV_ROW = 3 * D * 2
    KLDS = 384 * 64
    lds = 2 * KLDS
    kernel_header(a, name)
    end = a.newlabel("L_end")
    npf = 0
    a(f"s_cmp_ge_u32 s2, {nwg + npf}")
    a(f"s_cbranch_scc1 {end}")
    a(f"s_load_dwordx2 s[24:25], s[0:1], {ARG['ws']}")
    a("v_and_b32 v1, 63, v0")
    a("v_lshrrev_b32 v2, 6, v0")
    a("s_nop 0")
    a("v_readfirstlane_b32 s30, v2")
    a("s_nop 3")
    a("s_lshl_b32 s3, s2, 2")
    a("s_add_u32 s92, s3, s30")
    a("s_and_b32 s28, s2, 31")
    a("s_lshr_b32 s29, s2, 5")
    a("s_lshl_b32 s39, s29, 7")
    a("s_sub_u32 s39, s39, 256")
    a("s_lshl_b32 s3, s30, 5")
    a("s_add_u32 s32, s39, s3")
    a("s_add_u32 s31, s32, 256")
    a("s_lshl_b32 s33, s28, 6")
    a(f"s_add_u32 s35, s33, {2*D*2}")
    a(f"s_add_u32 s36, s33, {D*2}")
    a("v_and_b32 v2, 31, v1")
    a("v_lshrrev_b32 v3, 5, v1")
    a("v_add_u32 v4, s31, v2")
    a(f"v_mul_u32_u24 v4, {QKV_ROW}, v4")
    a("v_lshl_add_u32 v4, v3, 4, v4")
    a("v_add_u32 v4, s33, v4")
    a("s_waitcnt lgkmcnt(0)")
    srd(a, 4, 24, WS_QKV, S * 3 * D * 2)
    srd(a, 8, 24, WS_O, S * D * 2)
    a("v_lshrrev_b32 v5, 2, v1")
    a("v_and_b32 v6, 3, v1")
    a("v_bfe_u32 v7, v1, 4, 2")
    a("v_xor_b32 v7, v7, v6")
    a("s_mul_i32 s3, s30, 96")
    a("s_add_u32 s3, s3, s39")
    a("s_mul_i32 s34, s30, 6144")
    for p in range(6):
        a(f"v_add_u32 v16, {16*p}, v5")
        a("v_add_u32 v16, s3, v16")
        a("v_max_i32 v16, 0, v16")
        a(f"v_mul_u32_u24 v16, {QKV_ROW}, v16")
        a("v_lshl_add_u32 v17, v7, 4, v16")
        a("v_add_u32 v17, s36, v17")
        a(f"s_add_u32 m0, s34, {p*1024}")
        a("v_lshl_add_u32 v16, v6, 4, v16")
        a(f"buffer_load_dwordx4 v17, s[4:7], 0 offen lds")
        a("v_add_u32 v16, s35, v16")
        a(f"s_add_u32 m0, s34, {KLDS + p*1024}")
        a("s_nop 0")
        a(f"buffer_load_dwordx4 v16, s[4:7], 0 offen lds")
    a("buffer_load_dwordx4 v[8:11], v4, s[4:7], 0 offen")
    a("buffer_load_dwordx4 v[12:15], v4, s[4:7], 0 offen offset:32")
    KF = 16
    if colsum:
        a(f"s_load_dwordx2 s[94:95], s[0:1], {ARG['w2']}")
        a(f"s_load_dwordx2 s[40:41], s[0:1], {ARG['wo']}")
        a(f"s_load_dwordx2 s[42:43], s[0:1], {ARG['w1']}")
        a("v_lshlrev_b32 v7, 4, v1")
        a(f"s_mul_i32 s93, s92, {F*D*2//2048}")
        a("s_lshl_b32 s3, s92, 10")
        a("v_add_u32 v16, s93, v7")
        a("v_add_u32 v17, s3, v7")
        a(f"s_mul_hi_u32 s44, s92, {((1 << 32) + 111) // 112}")
        a("s_mul_i32 s3, s44, 112")
        a("s_sub_u32 s45, s92, s3")
        a("s_lshl_b32 s3, s44, 6")
        a("v_lshrrev_b32 v18, 2, v1")
        a("v_add_u32 v18, s3, v18")
        a(f"v_mul_u32_u24 v18, {F*2}, v18")
        a("v_and_b32 v19, 3, v1")
        a("v_lshl_add_u32 v18, v19, 4, v18")
        a("s_lshl_b32 s3, s45, 6")
        a("v_add_u32 v18, s3, v18")
        a("s_waitcnt lgkmcnt(0)")
        npl = 4
        if 'nowpf' in EXP:
            srd(a, 96, 94, 0, F * D * 2)
            for j in range(4):
                a(f"buffer_load_dwordx4 v[240:243], v16, s[96:99], 0 offen offset:{1024*j}")
            srd(a, 96, 40, 0, D * D * 2)
            a("buffer_load_dwordx4 v[240:243], v17, s[96:99], 0 offen")
            npl = 9
        srd(a, 96, 42, 0, D * F * 2)
        for j in range(4):
            a(f"s_mov_b32 s3, {16*j*F*2}")
            a(f"buffer_load_dwordx4 {v(240+4*j,4)}, v18, s[96:99], s3 offen")
    else:
        npl = tail_prefetch(a, 92, 1, pf, 7, 240) if pf else 0
    a("v_bfe_u32 v5, v1, 2, 2")
    a("v_xor_b32 v5, v5, v3")
    a("v_lshlrev_b32 v6, 6, v2")
    a("s_lshl_b32 s34, s30, 11")
    a("v_add_u32 v6, s34, v6")
    a("v_lshl_add_u32 v88, v5, 4, v6")
    a("v_xor_b32 v5, 2, v5")
    a("v_lshl_add_u32 v89, v5, 4, v6")
    a(f"s_add_u32 s34, s34, {KLDS}")
    a(f"s_waitcnt vmcnt({npl})")
    a("s_barrier")
    for t_ in range(9):
        a(f"ds_read_b128 {v(KF+8*t_,4)}, v88 offset:{2048*t_}")
        a(f"ds_read_b128 {v(KF+8*t_+4,4)}, v89 offset:{2048*t_}")
    SC = 96
    a("v_mov_b32 v7, 0xf149f2ca")
    for t in range(9):
        a(f"s_waitcnt lgkmcnt({min(15, 2*(8-t))})")
        if t < 8:
            lab_inv = a.newlabel("L_inv"); lab_done = a.newlabel("L_tdone")
            a(f"s_add_i32 s3, s32, {32*t}")
            a("s_cmp_lt_i32 s3, 0")
            a(f"s_cbranch_scc1 {lab_inv}")
        a(f"v_mfma_f32_32x32x16_bf16 {v(SC+16*t,16)}, {v(KF+8*t,4)}, v[8:11], 0")
        a(f"v_mfma_f32_32x32x16_bf16 {v(SC+16*t,16)}, {v(KF+8*t+4,4)}, v[12:15], {v(SC+16*t,16)}")
        if t < 8:
            a(f"s_branch {lab_done}")
            a.label(lab_inv)
            for r in range(16):
                a(f"v_mov_b32 v{SC+16*t+r}, v7")
            a.label(lab_done)
    a("v_lshlrev_b32 v5, 2, v3")
    a("v_sub_u32 v5, v2, v5")
    a("s_nop 7")
    a("s_nop 7")
    for r in range(16):
        c = (r & 3) + 8 * (r >> 2)
        a(f"v_cmp_gt_i32 vcc, {c}, v5")
        a(f"v_cmp_le_i32 s[36:37], {c}, v5")
        a("s_nop 0")
        a(f"v_cndmask_b32 v{SC+r}, v7, v{SC+r}, vcc")
        a(f"v_cndmask_b32 v{SC+128+r}, v7, v{SC+128+r}, s[36:37]")
    a(f"v_max3_f32 v4, v{SC}, v{SC+1}, v{SC+2}")
    a(f"v_max3_f32 v6, v{SC+3}, v{SC+4}, v{SC+5}")
    for i in range(6, 144, 4):
        a(f"v_max3_f32 v4, v4, v{SC+i}, v{SC+i+1}")
        if i + 3 < 144:
            a(f"v_max3_f32 v6, v6, v{SC+i+2}, v{SC+i+3}")
    a("v_max_f32 v4, v4, v6")
    a("v_xor_b32 v88, 32, v1")
    a("v_lshlrev_b32 v88, 2, v88")
    a("ds_bpermute_b32 v89, v88, v4")
    a("s_waitcnt lgkmcnt(0)")
    a("v_max_f32 v4, v4, v89")
    sc = (DH ** -0.5) * math.log2(math.e)
    sc_bits = struct.unpack("<I", struct.pack("<f", sc))[0]
    a(f"s_mov_b32 s38, {sc_bits}")
    a("v_mul_f32 v4, s38, v4")
    sums = [5, 6, 90, 91]
    for sreg in sums:
        a(f"v_mov_b32 v{sreg}, 0")
    for g in range(0, 144, 4):
        for j in range(4):
            a(f"v_fma_f32 v{SC+g+j}, v{SC+g+j}, s38, -v4")
        for j in range(4):
            a(f"v_exp_f32 v{SC+g+j}, v{SC+g+j}")
        if g >= 4:
            for j in range(4):
                a(f"v_add_f32 v{sums[j]}, v{sums[j]}, v{SC+g-4+j}")
            tt, jj = divmod(g - 4, 16)
            a(f"v_cvt_pk_bf16_f32 v{KF+8*tt+jj//2}, v{SC+g-4}, v{SC+g-3}")
            a(f"v_cvt_pk_bf16_f32 v{KF+8*tt+jj//2+1}, v{SC+g-2}, v{SC+g-1}")
    a("s_nop 0")
    g = 144
    for j in range(4):
        a(f"v_add_f32 v{sums[j]}, v{sums[j]}, v{SC+g-4+j}")
    tt, jj = divmod(g - 4, 16)
    a(f"v_cvt_pk_bf16_f32 v{KF+8*tt+jj//2}, v{SC+g-4}, v{SC+g-3}")
    a(f"v_cvt_pk_bf16_f32 v{KF+8*tt+jj//2+1}, v{SC+g-2}, v{SC+g-1}")
    a("v_add_f32 v5, v5, v6")
    a("v_add_f32 v90, v90, v91")
    a("v_add_f32 v5, v5, v90")
    a("ds_bpermute_b32 v89, v88, v5")
    a("v_bfe_u32 v6, v1, 2, 2")
    a("v_lshl_add_u32 v6, v3, 2, v6")
    a("v_lshlrev_b32 v6, 6, v6")
    a("v_bfe_u32 v7, v1, 4, 1")
    a("v_lshl_add_u32 v6, v7, 5, v6")
    a("v_and_b32 v7, 3, v1")
    a("v_lshl_add_u32 v6, v7, 3, v6")
    a("v_add_u32 v6, s34, v6")
    OA = SC
    VF = SC + 16
    a(f"s_waitcnt lgkmcnt(0)")
    a("v_add_f32 v5, v5, v89")
    a("v_rcp_f32 v5, v5")
    for t in range(9):
        for sidx in range(2):
            f = VF + 4 * (2 * t + sidx)
            base = (32 * t + 16 * sidx) * 64
            a(f"ds_read_b64_tr_b16 {v(f,2)}, v6 offset:{base}")
            a(f"ds_read_b64_tr_b16 {v(f+2,2)}, v6 offset:{base+8*64}")
    first = True
    for t in range(9):
        for sidx in range(2):
            f = VF + 4 * (2 * t + sidx)
            idx = 2 * t + sidx
            rem = 36 - 2 * (idx + 1)
            a(f"s_waitcnt lgkmcnt({min(rem,15)})")
            a(f"v_mfma_f32_32x32x16_bf16 {v(OA,16)}, {v(f,4)}, {v(KF+8*t+4*sidx,4)}, {'0' if first else v(OA,16)}")
            first = False
    if colsum:
        lab_nc = a.newlabel("L_nocs")
        a("s_cmp_ge_u32 s44, 16")
        a(f"s_cbranch_scc1 {lab_nc}")
        CA = 184; CT = 192
        a("s_waitcnt vmcnt(0)")
        for j in range(4):
            a(f"v_lshlrev_b32 v{CA+2*j}, 16, v{240+j}")
            a(f"v_and_b32 v{CA+2*j+1}, 0xffff0000, v{240+j}")
        for i in range(1, 4):
            for j in range(4):
                a(f"v_lshlrev_b32 v{CT+2*j}, 16, v{240+4*i+j}")
                a(f"v_and_b32 v{CT+2*j+1}, 0xffff0000, v{240+4*i+j}")
            for j in range(4):
                a(f"v_pk_add_f32 {v(CA+2*j,2)}, {v(CA+2*j,2)}, {v(CT+2*j,2)}")
        a("s_nop 1")
        for mode in ("row_ror:4", "row_ror:8"):
            for j in range(8):
                a(f"v_add_f32_dpp v{CT+j}, v{CA+j}, v{CA+j} {mode} row_mask:0xf bank_mask:0xf")
            a("s_nop 1")
            for j in range(8):
                a(f"v_mov_b32 v{CA+j}, v{CT+j}")
            a("s_nop 1")
        for x in (16, 32):
            a(f"v_xor_b32 v200, {x}, v1")
            a("v_lshlrev_b32 v200, 2, v200")
            for j in range(8):
                a(f"ds_bpermute_b32 v{CT+j}, v200, v{CA+j}")
            a("s_waitcnt lgkmcnt(0)")
            for j in range(8):
                a(f"v_add_f32 v{CA+j}, v{CA+j}, v{CT+j}")
        srd(a, 96, 24, WS_CS, 16 * F * 4)
        a(f"s_mul_i32 s3, s44, {F*4}")
        a("s_lshl_b32 s45, s45, 7")
        a("s_add_u32 s3, s3, s45")
        a("v_lshlrev_b32 v200, 5, v1")
        a("s_mov_b64 exec, 15")
        a(f"buffer_store_dwordx4 {v(CA,4)}, v200, s[96:99], s3 offen")
        a(f"buffer_store_dwordx4 {v(CA+4,4)}, v200, s[96:99], s3 offen offset:16")
        a("s_mov_b64 exec, -1")
        a.label(lab_nc)
    a("v_add_u32 v7, s31, v2")
    a(f"v_lshlrev_b32 v7, 11, v7")
    a("v_lshl_add_u32 v7, v3, 3, v7")
    a("v_add_u32 v7, s33, v7")
    a("s_nop 7")
    a("s_nop 7")
    for g in range(4):
        for r in range(4):
            a(f"v_mul_f32 v{OA+4*g+r}, v{OA+4*g+r}, v5")
        a(f"v_cvt_pk_bf16_f32 v{OA+4*g}, v{OA+4*g}, v{OA+4*g+1}")
        a(f"v_cvt_pk_bf16_f32 v{OA+4*g+1}, v{OA+4*g+2}, v{OA+4*g+3}")
        a(f"buffer_store_dwordx2 {v(OA+4*g,2)}, v7, s[8:11], 0 offen offset:{16*g}")
    a.label(end)
    a("s_endpgm")
    return dict(name=name, grid=nwg + npf, block=256, lds=lds, desc=kernel_desc(name, 256 if colsum else 244))


def main():
    a = Asm()
    ks = []
    FLK = os.environ.get('FLK', 'x')
    NS2 = int(os.environ.get('NS2', '5'))
    FUSE = 'nofuse' not in EXP
    SPLIT = 'split' in EXP
    L2PF = int(os.environ.get('L2PF', '0'))
    W1HI = int(os.environ.get('W1HI', '10'))
    W2HI = int(os.environ.get('W2HI', '-1'))
    SKLO = int(os.environ.get('SKLO', '23'))
    QA = 'noqa' not in EXP
    W2T = QA and 'w2t' in EXP
    if QA:
        sys.path.insert(0, os.path.dirname(os.path.abspath(__file__)))
        import qa
        WOHI = int(os.environ.get('WOHI', '3'))
        ks.append(qa.gen_qa(sys.modules[__name__], a, "qa_kernel", wpf=[("wo", D*D*2)]))
    elif FUSE:
        ks.append(gen_gemm(a, "qkv_kernel", 3 * D, D, 192, 0, "wqkv", "plain", "ws", WS_QKV, NSTAGE=4, RA=8, RBN=4,
                           ln='single', a_arg='x',
                           wpf=[("w1", D*F*2, W1HI), ("wo", D*D*2, W1HI-7)]))
    else:
        ks.append(gen_ln(a, "ln1_kernel", "x", 0, WS_Y1, False, pf=[("wqkv", D*3*D*2), ("wo", D*D*2)]))
        ks.append(gen_gemm(a, "qkv_kernel", 3 * D, D, 192, WS_Y1, "wqkv", "plain", "ws", WS_QKV, NSTAGE=4, RA=8, RBN=4))
    if not QA: ks.append(gen_attn(a, "attn_kernel", pf=[("w1", D*F*2), ("w2", F*D*2), ("wo", D*D*2)] if FUSE else [("w1", D*F*2), ("w2", F*D*2)], colsum=FUSE))
    ks.append(gen_gemm(a, "oproj_kernel", D, D, 64, WS_O, "wo", "plain", "ws", WS_H, res_arg="x", NSTAGE=NS2, flags='o' in FLK, stats_out=FUSE, spf=eval(os.environ.get('SPFO', 'None')),
                       atile=OT, lda=D*2*TX if OT else None, otile=OT, ldo=D*2*TX if OT else None, c3=WS_WOC if C3 and (not FZ or 'oc3' in EXP) else None, sp2=eval(os.environ.get('SP2O', 'None')), sp3=eval(os.environ.get('SP3O', 'None')), alay='o' if NL else None, fz=dict(entry="P_oproj", ph=1, next="P_ffn1") if FZ else None))
    if FUSE:
        ks.append(gen_gemm(a, "ffn1_kernel", F, D, 224, WS_H, "ws" if W1T else "w1", "gelu", "ws", WS_H1, bias_arg="b1", RA=8, RBN=4,
                           w_off=WS_W1T if W1T else None, wt7=W1T, flags='1' in FLK, sp4=eval(os.environ.get('SP4', 'None')), ln='double', pre=True, ldo=LDH1, zero_flags=SPLIT, wpf=[("w2", F*D*2, W2HI)] if W2HI else None, otile=QA, w2copy=W2T and 'qw2' not in EXP, epi2='oldepi' not in EXP,
                           atile=OT, lda=D*2*TX if OT else None, c3src=("w2", F, WS_W2C) if C3 and not QC3 else None,
                           endpf=("w2", F*D*2, 0, 56) if 'endpf' in EXP else None, fz=dict(entry="P_ffn1", ph=2, next="P_ffn2") if FZ else None))
    else:
        ks.append(gen_ln(a, "ln2_kernel", "ws", WS_H, WS_Y2, True))
        ks.append(gen_gemm(a, "ffn1_kernel", F, D, 224, WS_Y2, "w1", "gelu", "ws", WS_H1, bias_arg="b1", RA=8, RBN=4))
    if SPLIT:
        ks.append(gen_gemm(a, "ffn2_kernel", D, F, 128, WS_H1, "w2", "plain", "out", 0, res_arg="ws", res_off=WS_H,
                           bias_arg="b2", NSTAGE=5, lda=LDH1, RA=int(os.environ.get('SRA','8')), RBN=4, splitk=(SKLO, 56 - SKLO), atile=QA))
    else:
        ks.append(gen_gemm(a, "ffn2_kernel", D, F, 64, WS_H1, "ws" if W2T else "w2", "plain", "out", 0, res_arg="ws", res_off=WS_H,
                           atile=QA, w_off=WS_W2T if W2T else None, rtile=OT, c3=WS_W2C if C3 else None, sp2=eval(os.environ.get('SP2', 'None')), sp3=eval(os.environ.get('SP3', 'None')),
                           bias_arg="b2", NSTAGE=NS2, alay='g32' if NL else None, fz=dict(entry="P_ffn2", ph=3, next=None) if FZ else None, flags='2' in FLK, lda=LDH1, l2pf=L2PF, spf=eval(os.environ.get('SPF2', 'None')), RA=int(os.environ.get('F2RA','4')), RBN=32//int(os.environ.get('F2RA','4'))))
    hdr = []
    if FZ: ks = ks[:1]
    for k in ks:
        hdr.append(f"; @launch kernel={k['name']} grid=({k['grid']},1,1) block=({k['block']},1,1) lds={k['lds']}")
    txt = "\n".join(hdr) + "\n"
    txt += '.amdgcn_target "amdgcn-amd-amdhsa--gfx950"\n.text\n'
    if FZ: gen_sched(a)
    a.label("L_code_end")
    txt += "\n".join(a.lines) + "\n"
    txt += '.section .rodata,"a"\n'
    for k in ks:
        txt += ".p2align 6\n" + k["desc"]
    open(OUT, "w").write(txt)


if __name__ == "__main__":
    main()
```

```python
import math, os


def gen_f2(G, a):
    v, srd, ARG, EXP = G.v, G.srd, G.ARG, G.EXP
    S, D, F, MB = G.S, G.D, G.F, G.MB
    CTRL = G.CTRL
    N = D; K = F
    NSTAGE = 5; NS = 28
    MT = NTW = 4; RB = 128
    ABYTES = 16384; STAGE = 32768; PA = PB = 4; P = 8
    ASTEP = 16384
    lda = F * 2
    CROW = 272; CBASE = 0; RES = ((NS - 5) % NSTAGE) * STAGE
    assert (NS - 1) % NSTAGE not in (0, (NS - 5) % NSTAGE, 4)
    XTAG = 98304
    RPM = int(os.environ.get('RPM2', '1'))
    vA = [2, 3, 4, 5]; vB = [6, 7, 8, 9]
    vXb = [2, 3]; vWb = [4, 5, 6, 7]; vXc = [8, 9]; vWc = [10, 11, 12, 13]
    vT = list(range(14, 22))
    FX = [24, 40]; FW = [56, 72]; ACC = 88; PBI = 152; PRT = 160; vL16 = 192
    t0, t1, t2, t3 = vT[:4]

    def acc(nt, mt): return ACC + 4 * (nt * MT + mt)

    def stamp(i, force=False):
        if 'stamp' in EXP:
            a(f"s_memrealtime s[{60+2*i}:{61+2*i}]")
            if i >= 6: a("s_waitcnt lgkmcnt(0)")

    def stamp_out():
        if 'stamp' not in EXP: return
        a("s_waitcnt lgkmcnt(0)")
        srd(a, 80, 24, 203 * MB, 1 << 20)
        a("s_lshl_b32 s3, s2, 3")
        a("s_add_u32 s3, s3, s49")
        a("s_lshl_b32 s3, s3, 6")
        a("v_mov_b32 v2, s3")
        for i in range(8):
            a(f"v_mov_b32 v4, s{60+2*i}")
            a(f"v_mov_b32 v5, s{61+2*i}")
            a(f"buffer_store_dwordx2 v[4:5], v2, s[80:83], 0 offen offset:{8*i}")
            a("s_nop 1")

    a.lines.append(".p2align 6")
    a.label("P_ffn2")
    stamp(0)
    a("v_readlane_b32 s46, v255, 3")
    a("s_setprio 0")
    a("s_nop 2")
    a("s_cmp_lg_u32 s46, 0")
    a("s_cbranch_scc1 S_next")
    a("s_lshr_b32 s46, s2, 3")
    a("s_bfe_u32 s28, s2, 0x10002")
    a("s_lshl_b32 s28, s28, 3")
    a("s_and_b32 s3, s2, 1")
    a("s_lshl_b32 s3, s3, 2")
    if os.environ.get('F2MAP', 'A') == 'A':
        a("s_lshr_b32 s47, s46, 2")
        a("s_add_u32 s28, s28, s47")
        a("s_and_b32 s47, s46, 3")
        a("s_add_u32 s29, s3, s47")
    else:
        a("s_lshr_b32 s47, s46, 3")
        a("s_add_u32 s28, s28, s47")
        a("s_add_u32 s28, s28, s3")
        a("s_and_b32 s29, s46, 7")
    a("s_lshl_b32 s29, s29, 1")
    a("s_bfe_u32 s3, s2, 0x10001")
    a("s_add_u32 s29, s29, s3")
    a.label("P_ffn2_go")
    a(f"s_load_dwordx2 s[24:25], s[0:1], {ARG['ws']}")
    a(f"s_load_dwordx2 s[26:27], s[0:1], {ARG['w2']}")
    a(f"s_load_dwordx2 s[34:35], s[0:1], {ARG['out']}")
    a(f"s_load_dwordx2 s[38:39], s[0:1], {ARG['b2']}")
    a("s_and_b32 s92, s29, 1")
    a("s_lshr_b32 s93, s29, 1")
    a("v_and_b32 v1, 63, v0")
    a(f"v_lshrrev_b32 {v(t0)}, 6, v0")
    a("s_nop 0")
    a(f"v_readfirstlane_b32 s49, {v(t0)}")
    a("s_nop 3")
    a("s_and_b32 s30, s49, 3")
    a("s_lshr_b32 s44, s30, 1")
    a("s_and_b32 s45, s30, 1")
    G.fz_poll(a, 3, stamp, 246)
    lab_comp = a.newlabel("L_comp"); lab_store = a.newlabel("L_store"); lab_help = a.newlabel("L_help")
    a("s_cmp_lt_u32 s49, 4")
    a(f"s_cbranch_scc1 {lab_comp}")

    a("s_setprio 2")
    if G.C3:
        a(f"v_mov_b32 v247, {CTRL}")
        a("ds_read_b32 v247, v247 offset:4")
    a(f"v_lshrrev_b32 {v(t0)}, 3, v1")
    a(f"v_lshrrev_b32 {v(t1)}, 4, v1")
    a(f"v_and_b32 {v(t2)}, 7, v1")
    a(f"v_xor_b32 {v(t1)}, {v(t1)}, {v(t2)}")
    a(f"v_lshrrev_b32 {v(t3)}, 2, {v(t1)}")
    a(f"v_lshlrev_b32 {v(t3)}, 13, {v(t3)}")
    a(f"v_and_b32 {v(t1)}, 3, {v(t1)}")
    a(f"v_lshl_add_u32 {v(t3)}, {v(t1)}, 4, {v(t3)}")
    a(f"v_lshl_add_u32 {v(t3)}, {v(t0)}, 6, {v(t3)}")
    a(f"s_mul_i32 s3, s28, {128*lda}")
    a("s_xor_b32 s46, s30, s92")
    a("s_lshl_b32 s46, s46, 11")
    a("s_add_u32 s3, s3, s46")
    a(f"s_mul_i32 s46, s92, {NS*ASTEP}")
    a("s_add_u32 s3, s3, s46")
    a(f"v_add_u32 {v(vA[0])}, s3, {v(t3)}")
    a(f"v_xor_b32 {v(t3)}, 0x2000, {v(vA[0])}")
    a(f"v_add_u32 {v(vA[1])}, 512, {v(t3)}")
    a(f"v_add_u32 {v(vA[2])}, 1024, {v(vA[0])}")
    a(f"v_add_u32 {v(vA[3])}, 1024, {v(vA[1])}")
    a("s_lshl_b32 s31, s30, 12")
    a(f"s_add_u32 s32, s31, {ABYTES}")
    a("s_lshl_b32 s94, s93, 1")
    a("s_add_u32 s94, s94, s44")
    a("s_lshl_b32 s3, s94, 7")
    a("s_mov_b32 s55, 11")
    a("s_waitcnt lgkmcnt(0)")
    srd(a, 8, 26, 0, K * N * 2)
    if G.C3:
        srd(a, 50, 24, G.WS_W2C, 2 * K * 256)
        a("v_readfirstlane_b32 s54, v247")
        a("s_lshr_b32 s47, s94, 3")
        a(f"s_mul_i32 s47, s47, {K*256}")
        a("s_and_b32 s46, s94, 7")
        a("s_lshl_b32 s54, s54, 3")
        a("s_add_u32 s46, s46, s54")
        a("s_cmp_eq_u32 s46, 11")
        a("s_cselect_b32 s3, s47, s3")
        for i in range(3): a(f"s_cselect_b32 s{8+i}, s{50+i}, s{8+i}")
        a("s_cselect_b32 s55, 8, 11")
    a("s_lshl_b32 s46, s45, 5")
    a(f"s_mul_i32 s47, s92, {NS*64}")
    a("s_add_u32 s46, s46, s47")
    a(f"v_add_u32 {v(t0)}, s46, {v(t0)}")
    a(f"v_lshlrev_b32 {v(t0)}, s55, {v(t0)}")
    a(f"v_bfe_u32 {v(t1)}, v1, 4, 1")
    a(f"v_lshlrev_b32 {v(t1)}, 1, {v(t1)}")
    a(f"v_xor_b32 {v(t1)}, {v(t1)}, {v(t2)}")
    a(f"v_lshl_add_u32 {v(t0)}, {v(t1)}, 4, {v(t0)}")
    a("s_lshl_b32 s46, 8, s55")
    a("s_lshl_b32 s47, 16, s55")
    a("s_lshl_b32 s55, 64, s55")
    a(f"v_add_u32 {v(vB[0])}, s3, {v(t0)}")
    a(f"v_xor_b32 {v(t0)}, 64, {v(vB[0])}")
    a(f"v_add_u32 {v(vB[1])}, s46, {v(t0)}")
    a(f"v_add_u32 {v(vB[2])}, s47, {v(vB[0])}")
    a(f"v_add_u32 {v(vB[3])}, s47, {v(vB[1])}")
    a("s_mov_b32 s41, 0")
    stamp(1)
    for st in range(NSTAGE - 1):
        for i in range(PB):
            a(f"s_add_u32 m0, s32, {st*STAGE + i*1024}")
            a("s_nop 0")
            a(f"buffer_load_dwordx4 {v(vB[i])}, s[8:11], s41 offen lds")
        a("s_add_u32 s41, s41, s55")
    srd(a, 4, 24, G.WS_H1, S * lda)
    srd(a, 12, 34, 0, S * N * 2)
    srd(a, 16, 24, G.WS_H, S * N * 2)
    G.fz_t2(a, 3, 246)
    for st in range(NSTAGE - 1):
        for i in range(PA):
            a(f"s_add_u32 m0, s31, {st*STAGE + i*1024}")
            a(f"s_mov_b32 s40, {st*ASTEP}")
            a(f"buffer_load_dwordx4 {v(vA[i])}, s[4:7], s40 offen lds")
    a(f"s_mov_b32 s40, {(NSTAGE-1)*ASTEP}")
    a(f"s_mov_b32 s43, {(NSTAGE-1)*STAGE}")
    stamp(2)

    def dma():
        a("s_add_u32 s33, s43, s31")
        for i in range(PA):
            a(f"s_add_u32 m0, s33, {i*1024}")
            a("s_nop 0")
            a(f"buffer_load_dwordx4 {v(vA[i])}, s[4:7], s40 offen lds")
        a("s_add_u32 s33, s43, s32")
        for i in range(PB):
            a(f"s_add_u32 m0, s33, {i*1024}")
            a("s_nop 0")
            a(f"buffer_load_dwordx4 {v(vB[i])}, s[8:11], s41 offen lds")
        a(f"s_add_u32 s40, s40, {ASTEP}")
        a("s_add_u32 s41, s41, s55")
        a(f"s_add_u32 s43, s43, {STAGE}")
        a(f"s_cmp_ge_u32 s43, {STAGE*NSTAGE}")
        a("s_cselect_b32 s43, 0, s43")

    nloop = NS - NSTAGE + 1
    for j in range(NSTAGE - 2):
        a(f"s_waitcnt vmcnt({(NSTAGE-2-j)*PA + j*P})")
        a("s_barrier")
        dma()
        nloop -= 1
    a(f"s_mov_b32 s48, {nloop}")
    lloop = a.newlabel("L_lloop")
    a.label(lloop)
    a(f"s_waitcnt vmcnt({(NSTAGE-2)*P})")
    a("s_barrier")
    dma()
    a("s_sub_u32 s48, s48, 1")
    a("s_cmp_lg_u32 s48, 0")
    a(f"s_cbranch_scc1 {lloop}")
    a(f"v_lshrrev_b32 {v(t0)}, 4, v1")
    a(f"v_lshlrev_b32 {v(t0)}, 7, {v(t0)}")
    a(f"v_bfe_u32 {v(t1)}, v1, 3, 1")
    a(f"v_lshl_add_u32 {v(t0)}, {v(t1)}, 14, {v(t0)}")
    a(f"v_lshl_add_u32 {v(t0)}, {v(t2)}, 4, {v(t0)}")
    a("s_lshl_b32 s3, s28, 18")
    a("s_lshl_b32 s46, s93, 15")
    a("s_add_u32 s3, s3, s46")
    a("s_lshl_b32 s46, s44, 13")
    a("s_add_u32 s3, s3, s46")
    a("s_lshl_b32 s46, s92, 12")
    a("s_add_u32 s3, s3, s46")
    a("s_lshl_b32 s46, s45, 11")
    a("s_add_u32 s3, s3, s46")
    for j in range(NS - NSTAGE + 1, NS):
        first = j == NS - NSTAGE + 1
        a(f"s_waitcnt vmcnt({(NS-1-j)*P + (0 if first else 4)})")
        a("s_barrier")
        if first:
            for i in range(4):
                a(f"s_add_u32 m0, s31, {RES + i*512}")
                a("s_nop 0")
                a(f"buffer_load_dwordx4 {v(t0)}, s[16:19], s3 offen offset:{512*i} lds")
    stamp(3)
    a("v_readlane_b32 s46, v255, 3")
    a("s_nop 3")
    a("s_waitcnt vmcnt(0)")
    a("s_cmp_eq_u32 s46, 4")
    a(f"s_cbranch_scc1 {lab_help}")
    stamp(4)
    a("s_barrier")
    a(f"s_branch {lab_store}")

    a.label(lab_comp)
    a(f"v_and_b32 {v(t0)}, 15, v1")
    a("s_lshl_b32 s3, s44, 6")
    a(f"v_add_u32 {v(t0)}, s3, {v(t0)}")
    a(f"v_lshlrev_b32 {v(t0)}, 7, {v(t0)}")
    a(f"v_lshrrev_b32 {v(t1)}, 4, v1")
    a(f"v_bfe_u32 {v(t2)}, v1, 1, 3")
    a(f"v_xor_b32 {v(t3)}, {v(t1)}, {v(t2)}")
    a(f"v_lshl_add_u32 {v(vXb[0])}, {v(t3)}, 4, {v(t0)}")
    a(f"v_xor_b32 {v(t3)}, 4, {v(t3)}")
    a(f"v_lshl_add_u32 {v(vXb[1])}, {v(t3)}, 4, {v(t0)}")
    a(f"v_bfe_u32 {v(t0)}, v1, 2, 2")
    a(f"v_lshl_add_u32 {v(t2)}, {v(t1)}, 3, {v(t0)}")
    a(f"v_and_b32 {v(t3)}, 1, {v(t1)}")
    a(f"v_lshrrev_b32 {v(t0)}, 1, {v(t0)}")
    a(f"v_lshl_add_u32 {v(t3)}, {v(t3)}, 1, {v(t0)}")
    a(f"v_lshlrev_b32 {v(t2)}, 7, {v(t2)}")
    a(f"v_and_b32 {v(t0)}, 3, v1")
    a(f"v_lshl_add_u32 {v(t2)}, {v(t0)}, 3, {v(t2)}")
    a("s_lshl_b32 s3, s45, 13")
    a(f"s_add_u32 s3, s3, {ABYTES}")
    a(f"v_add_u32 {v(t2)}, s3, {v(t2)}")
    for nt in range(NTW):
        a(f"v_xor_b32 {v(t0)}, {nt}, {v(t3)}")
        a(f"v_lshl_add_u32 {v(vWb[nt])}, {v(t0)}, 5, {v(t2)}")
    for i in range(4 * MT * NTW):
        a(f"v_mov_b32 v{ACC+i}, 0")
    a(f"v_lshlrev_b32 {v(vL16)}, 4, v1")
    a("s_mov_b32 s42, 0")
    a("s_waitcnt lgkmcnt(0)")
    srd(a, 12, 34, 0, S * N * 2)
    srd(a, 20, 38, 0, N * 2)
    srd(a, 84, 24, G.WS_PART, 256 * 32768)
    srd(a, 88, 24, G.WS_FL + XTAG, 256 * 512)
    a(f"v_lshlrev_b32 {v(t0)}, 3, {v(t1)}")
    a("s_lshl_b32 s3, s93, 8")
    a("s_lshl_b32 s46, s45, 7")
    a("s_add_u32 s3, s3, s46")
    for nt in range(NTW):
        a(f"buffer_load_dwordx2 {v(PBI+2*nt,2)}, {v(t0)}, s[20:23], s3 offen offset:{32*nt}")
    a("s_lshl_b32 s94, s28, 4")
    a("s_add_u32 s94, s94, s29")
    a("s_lshl_b32 s94, s94, 2")
    a("s_add_u32 s94, s94, s30")

    cur = lambda: ([f"v_add_u32 {v(vXc[kk])}, s42, {v(vXb[kk])}" for kk in range(2)] +
                   [f"v_add_u32 {v(vWc[nt])}, s42, {v(vWb[nt])}" for nt in range(NTW)] +
                   [f"s_add_u32 s42, s42, {STAGE}", f"s_cmp_ge_u32 s42, {STAGE*NSTAGE}", "s_cselect_b32 s42, 0, s42"])

    def read_list(kk, f):
        L = []
        for nt in range(NTW):
            L.append(f"ds_read_b128 {v(FX[f]+4*nt,4)}, {v(vXc[kk])} offset:{nt*2048}")
            for rd in range(2):
                L.append(f"ds_read_b64_tr_b16 {v(FW[f]+4*nt+2*rd,2)}, {v(vWc[nt])} offset:{kk*32*RB+rd*4*RB}")
        return L

    def mf(f, nt, mt):
        return f"v_mfma_f32_16x16x32_bf16 {v(acc(nt,mt),4)}, {v(FW[f]+4*nt,4)}, {v(FX[f]+4*mt,4)}, {v(acc(nt,mt),4)}"

    def mfma_list(f):
        return [mf(f, nt, mt) for nt in range(NTW) for mt in range(MT)]

    def inter(kk, fr, fm, extra=()):
        R = read_list(kk, fr); Mm = mfma_list(fm); extra = list(extra)
        ri = 0
        for i in range(len(Mm)):
            a(Mm[i])
            k_ = 0
            while k_ < RPM and ri < len(R): a(R[ri]); ri += 1; k_ += 1
            if ri == len(R) and k_ == 0:
                for _ in range(3):
                    if extra: a(extra.pop(0))
        while ri < len(R): a(R[ri]); ri += 1
        for x in extra: a(x)
        a("s_waitcnt lgkmcnt(0)")

    for x in cur(): a(x)
    lt2 = a.newlabel("L_t2")
    a("s_cmp_eq_u32 s49, 0")
    a(f"s_cbranch_scc1 {lt2}")
    stamp(1)
    G.fz_t2(a, 3, 246)
    a.label(lt2)
    a("s_barrier")
    stamp(2)
    for x in read_list(0, 0): a(x)
    a("s_waitcnt lgkmcnt(0)")
    inter(1, 1, 0, cur())
    a(f"s_mov_b32 s48, {NS-1}")
    loop = a.newlabel("L_cloop")
    a.label(loop)
    a("s_barrier")
    inter(0, 0, 1)
    inter(1, 1, 0, cur() + ["s_sub_u32 s48, s48, 1", "s_cmp_lg_u32 s48, 0"])
    a(f"s_cbranch_scc1 {loop}")
    stamp(3)
    a("s_memrealtime s[96:97]")
    a("s_lshl_b32 s3, s94, 13")
    a("s_add_u32 s46, s3, 4096")
    for nt in range(NTW):
        for mt in (2, 3): a(mf(1, nt, mt))
    keep = [mf(1, nt, mt) for nt in range(NTW) for mt in (0, 1)]
    st = [f"buffer_store_dwordx4 {v(acc(nt,mt),4)}, {v(vL16)}, s[84:87], s{3 if nt < 2 else 46} offen offset:{1024*((2*nt+mt-2)&3)} sc0 sc1"
          for nt in range(NTW) for mt in (2, 3)]
    for i, x in enumerate(keep):
        a(x)
        if i >= 1: a(st[i - 1])
    a("s_nop 3")
    a(st[7])
    TG = FX[0]
    a("v_readlane_b32 s46, v255, 3")
    a("v_readlane_b32 s47, v255, 7")
    a("v_readlane_b32 s98, v255, 1")
    a("v_readlane_b32 s99, v255, 2")
    a("v_writelane_b32 v255, 0, 7")
    a("s_waitcnt lgkmcnt(0)")
    for j in range(4):
        a(f"v_mov_b32 {v(TG+j)}, s{96+(j&1)}")
    a("s_lshl_b32 s3, s94, 7")
    a("s_add_u32 s100, s98, 0x1000000")
    a("s_addc_u32 s101, s99, 0")
    a("s_mov_b64 exec, 0xff")
    a("s_waitcnt vmcnt(0)")
    if 'ftest' in EXP and '3' in os.environ.get('FTP', '0123'):
        lsk = a.newlabel("L_ft")
        a("s_and_b32 s95, s2, 63")
        a("s_xor_b32 s95, s95, 33")
        a("s_or_b32 s95, s95, s46")
        a("s_cmp_eq_u32 s95, 0")
        a(f"s_cbranch_scc1 {lsk}")
    a(f"buffer_store_dwordx4 {v(TG,4)}, {v(vL16)}, s[88:91], s3 offen sc0 sc1")
    if 'ftest' in EXP and '3' in os.environ.get('FTP', '0123'): a.label(lsk)
    a("s_mov_b64 exec, -1")
    a("s_cmp_eq_u32 s46, 4")
    a(f"s_cbranch_scc1 {lab_help}")
    stamp(4)
    a("s_xor_b32 s94, s94, 4")
    a("s_lshl_b32 s3, s94, 7")
    a(f"s_mov_b32 s95, {int(os.environ.get('FZPOLL', '200'))}")
    lp = a.newlabel("L_xp"); lok = a.newlabel("L_xok"); lno = a.newlabel("L_xno")
    a(f"v_mov_b32 {v(TG+4)}, 0")
    a("s_cmp_lg_u32 s47, 0")
    a(f"s_cbranch_scc1 {lok}")
    a("s_mov_b64 exec, 1")
    a.label(lp)
    a(f"buffer_load_dwordx2 {v(TG+6,2)}, {v(TG+4)}, s[88:91], s3 offen sc0 sc1")
    a("s_waitcnt vmcnt(0)")
    a(f"v_cmp_lt_u64 vcc, s[98:99], {v(TG+6,2)}")
    a(f"v_cmp_gt_u64 s[46:47], s[100:101], {v(TG+6,2)}")
    a("s_nop 1")
    a("s_and_b64 s[46:47], s[46:47], vcc")
    a("s_sub_u32 s95, s95, 1")
    a("s_cselect_b64 s[46:47], exec, s[46:47]")
    a("s_cmp_lg_u64 s[46:47], exec")
    a(f"s_cbranch_scc1 {lp}")
    a("s_mov_b64 exec, -1")
    a("s_bitcmp1_b32 s95, 31")
    a(f"s_cbranch_scc1 {lno}")
    a.label(lok)
    a("s_lshl_b32 s3, s94, 13")
    a("s_add_u32 s46, s3, 4096")
    for i in range(8):
        a(f"buffer_load_dwordx4 {v(PRT+4*i,4)}, {v(vL16)}, s[84:87], s{3 if i < 4 else 46} offen offset:{1024*(i&3)}")
    a.label(lno)
    stamp(5)
    a("s_lshr_b32 s3, s95, 31")
    a("s_lshl_b32 s46, s30, 2")
    a(f"s_add_u32 s46, s46, {CTRL+16}")
    a(f"v_mov_b32 {v(t0)}, s46")
    a(f"v_mov_b32 {v(t1)}, s3")
    a(f"ds_write_b32 {v(t0)}, {v(t1)}")
    BF = FW[0]
    for nt in range(NTW):
        for j in range(2):
            a(f"v_lshlrev_b32 {v(BF+4*nt+2*j)}, 16, {v(PBI+2*nt+j)}")
            a(f"v_and_b32 {v(BF+4*nt+2*j+1)}, 0xffff0000, {v(PBI+2*nt+j)}")
    a(f"v_bfe_u32 {v(t2)}, v1, 1, 3")
    a(f"v_and_b32 {v(t3)}, 1, v1")
    a(f"v_lshl_add_u32 {v(t2)}, {v(t3)}, 3, {v(t2)}")
    a("s_lshl_b32 s3, s44, 5")
    a(f"v_add_u32 {v(t2)}, s3, {v(t2)}")
    a(f"v_mul_u32_u24 {v(t2)}, {CROW}, {v(t2)}")
    a(f"v_lshrrev_b32 {v(t3)}, 4, v1")
    a(f"v_lshl_add_u32 {v(t2)}, {v(t3)}, 3, {v(t2)}")
    a("s_lshl_b32 s3, s45, 7")
    a(f"v_add_u32 {v(t2)}, s3, {v(t2)}")
    for nt in range(NTW):
        for mt in range(2):
            c0 = acc(nt, mt)
            for j in range(2):
                a(f"v_pk_add_f32 {v(c0+2*j,2)}, {v(c0+2*j,2)}, {v(BF+4*nt+2*j,2)}")
    for nt in range(NTW):
        for mt in range(2):
            c0 = acc(nt, mt); i = 2 * nt + mt
            a(f"s_waitcnt vmcnt({7-i})")
            for j in range(2):
                a(f"v_pk_add_f32 {v(c0+2*j,2)}, {v(c0+2*j,2)}, {v(PRT+4*i+2*j,2)}")
            for j in range(2):
                a(f"v_cvt_pk_bf16_f32 {v(c0+j)}, {v(c0+2*j)}, {v(c0+2*j+1)}")
            a(f"ds_write_b64 {v(t2)}, {v(c0,2)} offset:{CBASE + mt*16*CROW + nt*32}")
    a("s_waitcnt lgkmcnt(0)")
    a("s_barrier")

    a.label(lab_store)
    R0 = 24; RR = 32; OFF = 40; GT = 44; ST = 48
    a(f"v_mov_b32 {v(t3)}, {CTRL+16}")
    a(f"ds_read_b128 {v(ST,4)}, {v(t3)}")
    a("s_lshl_b32 s3, s49, 3")
    a(f"v_lshrrev_b32 {v(t0)}, 4, v1")
    a(f"v_add_u32 {v(t0)}, s3, {v(t0)}")
    a(f"v_and_b32 {v(t1)}, 15, v1")
    a(f"v_lshlrev_b32 {v(t1)}, 4, {v(t1)}")
    a(f"v_mul_u32_u24 {v(t2)}, {CROW}, {v(t0)}")
    a(f"v_add_u32 {v(t2)}, {v(t2)}, {v(t1)}")
    a("s_lshl_b32 s3, s49, 11")
    a(f"s_add_u32 s3, s3, {RES}")
    a(f"v_lshl_add_u32 {v(t3)}, v1, 4, s3")
    for it in range(2):
        a(f"ds_read_b128 {v(R0+4*it,4)}, {v(t2)} offset:{CBASE + 4*it*CROW}")
        a(f"ds_read_b128 {v(RR+4*it,4)}, {v(t3)} offset:{1024*it}")
    a(f"v_and_b32 {v(t0)}, 31, {v(t0)}")
    a(f"v_lshl_add_u32 {v(OFF)}, {v(t0)}, 11, {v(t1)}")
    a("s_lshl_b32 s3, s28, 18")
    a("s_lshr_b32 s46, s49, 2")
    a("s_lshl_b32 s46, s46, 17")
    a("s_add_u32 s3, s3, s46")
    a("s_lshl_b32 s46, s92, 16")
    a("s_add_u32 s3, s3, s46")
    a("s_lshl_b32 s46, s93, 8")
    a("s_add_u32 s3, s3, s46")
    a("s_add_u32 s46, s3, 8192")
    a("s_waitcnt lgkmcnt(0)")
    a(f"v_or3_b32 {v(ST)}, {v(ST)}, {v(ST+1)}, {v(ST+2)}")
    a(f"v_or_b32 {v(ST)}, {v(ST)}, {v(ST+3)}")
    a(f"v_cmp_ne_u32 vcc, 0, {v(ST)}")
    a("s_cbranch_vccnz S_fail4")
    for it in range(2):
        c0 = R0 + 4 * it
        for j in range(4):
            d = c0 + j; r = RR + 4 * it + j
            a(f"v_lshlrev_b32 {v(GT)}, 16, {v(d)}")
            a(f"v_lshlrev_b32 {v(GT+1)}, 16, {v(r)}")
            a(f"v_and_b32 {v(GT+2)}, 0xffff0000, {v(d)}")
            a(f"v_and_b32 {v(GT+3)}, 0xffff0000, {v(r)}")
            a(f"v_add_f32 {v(GT)}, {v(GT)}, {v(GT+1)}")
            a(f"v_add_f32 {v(GT+2)}, {v(GT+2)}, {v(GT+3)}")
            a(f"v_cvt_pk_bf16_f32 {v(d)}, {v(GT)}, {v(GT+2)}")
        a(f"buffer_store_dwordx4 {v(c0,4)}, {v(OFF)}, s[12:15], s{3 if it == 0 else 46} offen")
    stamp(6)
    if 'stamp' in EXP: a("s_waitcnt vmcnt(0)")
    stamp(7)
    stamp_out()
    a("s_endpgm")
    a.label(lab_help)
    G.c3_write(a)
    a("s_waitcnt vmcnt(0) lgkmcnt(0)")
    a("s_barrier")
    a("s_branch S_next")
```

```python
import math, struct, os


def gen_qa(G, a, name, wpf=None):
    v, s, srd, hex_f32 = G.v, G.s, G.srd, G.hex_f32
    ARG, EXP = G.ARG, G.EXP
    S, D, F, DH = G.S, G.D, G.F, G.DH
    MB = 1 << 20
    WT = 'sc0 sc1' if G.FZ else ''
    WOC = not G.FZ
    WS_RS = 3 * MB
    KFO = 65536
    WS_KV = 4 * MB
    K = D; N = 3 * D
    BM, BN, BK, NSTAGE = 256, 96, 64, 3
    MT, NTW, RB = 4, 6, 64
    ABYTES = BM * BK * 2; BBYTES = BK * BN * 2; STAGE = ABYTES + BBYTES
    PA, PB = 8, 3
    P = PA + PB
    NS = K // BK
    lda = K * 2
    XQ, PK, PV, OQ, OK_, OV = 49152, 65536, 81920, 98304, 114688, 131072
    RTAB = 147456; CTAB = 149504; STG = 149888; STAT = 149952; NONCE = 149960; STAT2 = 150016
    lds = 163840
    NPOLL = int(os.environ.get('NPOLL', '48'))
    vXb = [2, 3]; vWb = list(range(4, 10)); vXc = [10, 11]; vWc = list(range(12, 18))
    vT = list(range(18, 26))
    FX = [28, 44]; FW = [60, 84]; ACC = 108; CSA = 204; ONE = 212; PFD = 216; PFV = 220
    QF = 224
    XPA, XPB = 221, 222
    DUM = 232
    LA = int(os.environ.get('XLA', '5'))
    QW2 = 'qw2' in EXP
    SIDEATT = os.environ.get('SIDEAT', 'x') == 'att'
    W1S = 164; W2S = [232, 236, 240, 244, 248, 252, 196]
    t0, t1, t2, t3 = vT[0], vT[1], vT[2], vT[3]
    vA = list(range(2, 10)); vB = list(range(10, 13))

    def acc(nt, mt):
        return ACC + 4 * (nt * MT + mt)

    def stamp(i):
        if 'itst' in EXP and i in (4, 5, 6): return
        if 'stamp' in EXP:
            a(f"s_mem{'real' if ('rt2' in EXP and i in (0, 7)) or G.FZ else ''}time s[{60+2*i}:{61+2*i}]")
            if i >= 4: a("s_waitcnt lgkmcnt(0)")

    def stamp_out():
        if 'stamp' not in EXP: return
        a("s_waitcnt lgkmcnt(0)")
        srd(a, 80, 24, 200 * MB, 1 << 20)
        a("s_lshl_b32 s3, s2, 3")
        a("s_add_u32 s3, s3, s49")
        a("s_lshl_b32 s3, s3, 6")
        a("v_mov_b32 v2, s3")
        a("s_lshl_b32 s3, s101, 4")
        a("s_or_b32 s61, s3, s45")
        a("s_lshl_b32 s3, s51, 8")
        a("s_or_b32 s61, s3, s61")
        for i in range(8):
            a(f"v_mov_b32 v4, s{60+2*i}")
            a(f"v_mov_b32 v5, s{61+2*i}")
            a(f"buffer_store_dwordx2 v[4:5], v2, s[80:83], 0 offen offset:{8*i}")
            a("s_nop 1")

    def stats_load(Dr, T, srow):
        a(f"v_lshlrev_b32 {v(T)}, 5, v1")
        a(f"s_lshl_b32 s3, s{srow}, 11")
        for r in range(2):
            for j in range(2):
                a(f"buffer_load_dwordx4 {v(Dr+8*r+4*j,4)}, {v(T)}, s[4:7], s3 offen offset:{2048*r+16*j}")

    def stats_math(Dr, T):
        A0 = T; A1 = T + 4; O1 = T + 8; AD = T + 9
        a(f"v_mov_b32 {v(O1)}, 0x3f803f80")
        for j in range(4):
            a(f"v_mov_b32 {v(A0+j)}, 0")
        for r in range(2):
            for j in range(8):
                d = v(Dr + 8 * r + j)
                a(f"v_dot2_f32_bf16 {v(A0+2*r)}, {d}, {v(O1)}, {v(A0+2*r)}")
                a(f"v_dot2_f32_bf16 {v(A0+2*r+1)}, {d}, {d}, {v(A0+2*r+1)}")
        a("s_nop 3")
        cur, oth = A0, A1
        for mode in ("quad_perm:[1,0,3,2]", "quad_perm:[2,3,0,1]", "row_half_mirror", "row_mirror"):
            for j in range(4):
                a(f"v_add_f32_dpp {v(oth+j)}, {v(cur+j)}, {v(cur+j)} {mode} row_mask:0xf bank_mask:0xf")
            a("s_nop 1")
            cur, oth = oth, cur
        assert cur == A0
        for x in (16, 32):
            a(f"v_xor_b32 {v(AD)}, {x}, v1")
            a(f"v_lshlrev_b32 {v(AD)}, 2, {v(AD)}")
            for j in range(4):
                a(f"ds_bpermute_b32 {v(A1+j)}, {v(AD)}, {v(A0+j)}")
            a("s_waitcnt lgkmcnt(0)")
            for j in range(4):
                a(f"v_add_f32 {v(A0+j)}, {v(A0+j)}, {v(A1+j)}")
        for r in range(2):
            sm, sq = A0 + 2 * r, A0 + 2 * r + 1
            a(f"v_mul_f32 {v(sm)}, {hex_f32(1.0/K)}, {v(sm)}")
            a(f"v_mul_f32 {v(sq)}, {hex_f32(1.0/K)}, {v(sq)}")
            a(f"v_fma_f32 {v(sq)}, -{v(sm)}, {v(sm)}, {v(sq)}")
            a(f"v_max_f32 {v(sq)}, 0, {v(sq)}")
            a(f"v_add_f32 {v(sq)}, {hex_f32(1e-5)}, {v(sq)}")
            a(f"v_rsq_f32 {v(sq)}, {v(sq)}")
            a("s_nop 0")
            a(f"v_mul_f32 {v(A1)}, {v(sm)}, {v(sq)}")
            a(f"v_mov_b32 {v(sm)}, {v(sq)}")
            a(f"v_sub_f32 {v(sq)}, 0, {v(A1)}")

    def local_stats(Dr, T):
        lp = a.newlabel("L_ls")
        a("s_mov_b32 s101, 1")
        a("s_lshl_b32 s46, s49, 5")
        a("s_add_u32 s47, s46, s98")
        a("s_mov_b32 s52, 16")
        a.label(lp)
        stats_load(Dr, T, 47)
        a("s_waitcnt vmcnt(0)")
        stats_math(Dr, T)
        a("s_lshl_b32 s3, s46, 3")
        a(f"s_add_u32 s3, s3, {RTAB}")
        a(f"v_mov_b32 {v(T+9)}, s3")
        a(f"ds_write_b128 {v(T+9)}, {v(T,4)}")
        a("s_add_u32 s46, s46, 2")
        a("s_add_u32 s47, s47, 2")
        a("s_sub_u32 s52, s52, 1")
        a("s_cmp_lg_u32 s52, 0")
        a(f"s_cbranch_scc1 {lp}")
        a("s_waitcnt lgkmcnt(0)")
        a("s_barrier")

    G.kernel_header(a, name)
    end = a.newlabel("L_end")
    stamp(0)
    lab_loader = a.newlabel("L_loader")
    lab_att = a.newlabel("L_att")
    a("s_cmp_ge_u32 s2, 256")
    a(f"s_cbranch_scc1 {end}")
    if 'fdelay' in EXP:
        a("s_and_b32 s3, s2, 63")
        a("s_cmp_lg_u32 s3, 9")
        a("s_cbranch_scc1 L_nodelay")
        a(f"s_mov_b32 s3, {os.environ.get('FDEL', '200')}")
        a.label("L_delay")
        a("s_sleep 64")
        a("s_sub_u32 s3, s3, 1")
        a("s_cmp_lg_u32 s3, 0")
        a("s_cbranch_scc1 L_delay")
        a.label("L_nodelay")
    if 'qtop' in EXP:
        lh = a.newlabel("L_pc")
        a("s_getpc_b64 s[46:47]")
        a.label(lh)
        a("v_lshrrev_b32 v2, 5, v0")
        a("v_and_b32 v3, 1, v0")
        a("s_lshr_b32 s3, s2, 3")
        a("s_lshl_b32 s3, s3, 4")
        a("v_add3_u32 v2, v2, v3, s3")
        a("v_lshlrev_b32 v2, 7, v2")
        a(f"v_min_u32 v2, {'L_code_end' if G.FZ else end}-{lh}-4, v2")
        a("s_mov_b64 exec, 3")
        a("global_load_dword v254, v2, s[46:47]")
        a("s_mov_b64 exec, -1")
    a(f"s_load_dwordx2 s[24:25], s[0:1], {ARG['ws']}")
    a(f"s_load_dwordx2 s[58:59], s[0:1], {ARG['x']}")
    a(f"s_load_dwordx2 s[26:27], s[0:1], {ARG['wqkv']}")
    a("s_memrealtime s[34:35]")
    a("s_and_b32 s3, s2, 7")
    a("s_lshr_b32 s46, s2, 3")
    a("s_and_b32 s29, s3, 3")
    a("s_lshl_b32 s29, s29, 3")
    a("s_and_b32 s47, s46, 7")
    a("s_add_u32 s29, s29, s47")
    a("s_lshr_b32 s28, s3, 2")
    a("s_lshl_b32 s28, s28, 2")
    a("s_lshr_b32 s47, s46, 3")
    a("s_add_u32 s28, s28, s47")
    if G.FZ:
        a("v_writelane_b32 v255, 0, 3")
        a("v_writelane_b32 v255, 0, 5")
        a("v_writelane_b32 v255, 0, 6")
        a("v_writelane_b32 v255, 0, 7")
        a.label("Q_go")
    a("s_lshl_b32 s99, s28, 5")
    a("s_add_u32 s99, s99, s29")
    a("s_lshl_b32 s98, s28, 8")
    a("v_and_b32 v1, 63, v0")
    a(f"v_lshrrev_b32 {v(t0)}, 6, v0")
    a("s_nop 0")
    a(f"v_readfirstlane_b32 s49, {v(t0)}")
    a("s_nop 3")
    a("s_and_b32 s30, s49, 3")
    a("s_mov_b32 s45, 1")
    a("s_mov_b32 s101, 0")
    a("s_mov_b32 s50, 0")
    a("s_mov_b32 s51, 0")
    a(f"s_mov_b32 s100, {OQ}")

    def build_srds():
        a("s_waitcnt lgkmcnt(0)")
        srd(a, 4, 58, 0, S * D * 2)
        srd(a, 8, 26, 0, K * N * 2)
        srd(a, 12, 24, G.WS_O, S * D * 2 * (G.TX if G.OT else 1))
        srd(a, 16, 24, WS_KV, 256 * 32768)
        a("s_add_u32 s20, s34, 0x1000000")
        a("s_addc_u32 s21, s35, 0")
        srd(a, 36, 24, WS_RS, 131072)
        if G.FZ:
            a("v_mov_b32 v219, 0")
            a("v_mov_b32 v240, 0")
            a("v_writelane_b32 v255, s34, 1")
            a("v_writelane_b32 v255, s35, 2")

    a("s_cmp_ge_u32 s49, 4")
    a(f"s_cbranch_scc1 {lab_loader}")

    build_srds()
    a("s_lshl_b32 s3, s2, 2")
    a("s_add_u32 s93, s3, s30")
    for q, (arg, nbytes) in enumerate(wpf):
        a(f"s_load_dwordx2 s[{76+2*q}:{77+2*q}], s[0:1], {ARG[arg]}")
    a("s_waitcnt lgkmcnt(0)")
    def wsel(q):
        arg, nbytes = wpf[q]
        srd(a, 84, 76 + 2 * q, 0, nbytes)
        a(f"s_mul_i32 s92, s93, {nbytes//1024}")
    wsel(0)
    if 'qpre' in EXP:
        lh = a.newlabel("L_pc")
        a("s_getpc_b64 s[46:47]")
        a.label(lh)
        a(f"s_sub_u32 s46, s46, {lh}-{name}")
        a("s_subb_u32 s47, s47, 0")
        a("s_lshr_b32 s3, s2, 3")
        a("s_lshl_b32 s3, s3, 2")
        a("s_add_u32 s3, s3, s30")
        a("s_lshl_b32 s3, s3, 10")
        a(f"s_min_u32 s3, s3, {end}-{name}-1024")
        a(f"v_lshlrev_b32 {v(t0)}, 4, v1")
        a(f"v_add_u32 {v(t0)}, s3, {v(t0)}")
        a(f"global_load_dwordx4 {v(DUM,4)}, {v(t0)}, s[46:47]")
    SPF = 'oldxla' not in EXP
    if SPF:
        a("s_lshr_b32 s3, s2, 3")
        a("s_lshl_b32 s3, s3, 2")
        a("s_add_u32 s3, s3, s30")
        a(f"v_lshrrev_b32 {v(t0)}, 2, v1")
        a(f"v_and_b32 {v(t1)}, 3, v1")
        a(f"v_lshlrev_b32 {v(t1)}, 7, {v(t1)}")
        a("s_lshr_b32 s46, s28, 2")
        a("s_lshl_b32 s46, s46, 10")
        a("s_lshl_b32 s47, s3, 4")
        a("s_add_u32 s46, s46, s47")
        a("s_lshl_b32 s40, s46, 11")
        a("s_sub_u32 s46, s3, 64")
        a("s_lshr_b32 s47, s46, 4")
        a("s_and_b32 s46, s46, 15")
        a(f"s_mul_i32 s46, s46, {16*N*2}")
        a("s_lshl_b32 s47, s47, 11")
        a("s_add_u32 s46, s46, s47")
        a("s_lshr_b32 s47, s29, 3")
        a("s_lshl_b32 s47, s47, 9")
        a("s_add_u32 s46, s46, s47")
        a("s_cmp_ge_u32 s3, 112")
        a("s_cselect_b32 s46, 0x60000000, s46")
        a(f"s_mov_b32 s41, {256*N*2}")
        a(f"s_mov_b32 s47, {N*2}")
        a("s_cmp_lt_u32 s3, 64")
        a("s_cselect_b32 s40, s40, s46")
        a("s_cselect_b32 s41, 512, s41")
        a("s_cselect_b32 s47, 2048, s47")
        for i in range(4):
            a(f"s_cselect_b32 s{88+i}, s{4+i}, s{8+i}")
        a(f"v_mul_u32_u24 {v(t0)}, s47, {v(t0)}")
        a(f"v_add_u32 {v(XPA)}, {v(t0)}, {v(t1)}")

        def spf():
            a(f"buffer_load_dword {v(DUM)}, {v(XPA)}, s[88:91], s40 offen")
            a("s_add_u32 s40, s40, s41")

        def xpf(): pass
        SPE = eval(os.environ.get('SPE', '(99,99,15,11,7)'))
        if len(SPE) == 5:
            a("s_cselect_b32 exec_lo, 0xcccccccc, -1")
            a("s_cselect_b32 exec_hi, 0xcccccccc, -1")
            a("s_lshr_b32 s3, s41, 1")
            a("s_sub_u32 s40, s40, s3")
        for i, e in enumerate(SPE):
            if e == 99: spf()
            if i == 0 and len(SPE) == 5: a("s_mov_b64 exec, -1")
    else:
        SPE = ()
        a("s_lshr_b32 s3, s2, 3")
        a("s_lshl_b32 s3, s3, 2")
        a("s_add_u32 s3, s3, s30")
        a("s_lshr_b32 s46, s28, 2")
        a("s_lshl_b32 s46, s46, 10")
        a("s_lshl_b32 s47, s3, 3")
        a("s_add_u32 s46, s46, s47")
        a(f"v_lshrrev_b32 {v(t0)}, 3, v1")
        a(f"v_add_u32 {v(t0)}, s46, {v(t0)}")
        a(f"v_lshlrev_b32 {v(t0)}, 11, {v(t0)}")
        a(f"v_and_b32 {v(t1)}, 7, v1")
        a(f"v_lshl_add_u32 {v(XPA)}, {v(t1)}, 4, {v(t0)}")
        a("s_lshr_b32 s46, s3, 5")
        a("s_and_b32 s47, s3, 31")
        a("s_lshl_b32 s47, s47, 1")
        a(f"v_lshrrev_b32 {v(t0)}, 5, v1")
        a(f"v_add_u32 {v(t0)}, s47, {v(t0)}")
        a(f"v_mul_u32_u24 {v(t0)}, {N*2}, {v(t0)}")
        a(f"v_and_b32 {v(t1)}, 31, v1")
        a(f"v_lshl_add_u32 {v(t0)}, {v(t1)}, 4, {v(t0)}")
        a("s_lshl_b32 s46, s46, 11")
        a("s_lshr_b32 s47, s29, 3")
        a("s_lshl_b32 s47, s47, 9")
        a("s_add_u32 s46, s46, s47")
        a("s_cmp_ge_u32 s3, 96")
        a("s_cselect_b32 s46, 0x7f000000, s46")
        a(f"v_add_u32 {v(XPB)}, s46, {v(t0)}")
        a(f"s_mov_b32 s40, {2*BK*2}")
        a(f"s_mov_b32 s41, {2*BK*N*2}")

        def xpf():
            if LA == 0: return
            a(f"buffer_load_dwordx4 {v(DUM,4)}, {v(XPA)}, s[4:7], s40 offen")
            a(f"buffer_load_dwordx4 {v(DUM,4)}, {v(XPB)}, s[8:11], s41 offen")
            a(f"s_add_u32 s40, s40, {BK*2}")
            a(f"s_add_u32 s41, s41, {BK*N*2}")
            a(f"s_min_u32 s40, s40, {(NS-1)*BK*2}")
            a(f"s_min_u32 s41, s41, {(NS-1)*BK*N*2}")
        for _ in range(2, LA + 1):
            xpf()
    lab_cpass = a.newlabel("L_cpass")
    a.label(lab_cpass)
    a(f"v_lshlrev_b32 {v(PFV)}, 4, v1")
    a(f"v_and_b32 {v(t0)}, 15, v1")
    a("s_lshl_b32 s3, s30, 6")
    a(f"v_add_u32 {v(t0)}, s3, {v(t0)}")
    a(f"v_lshlrev_b32 {v(t0)}, 7, {v(t0)}")
    a(f"v_lshrrev_b32 {v(t1)}, 4, v1")
    a(f"v_bfe_u32 {v(t2)}, v1, 1, 3")
    a(f"v_xor_b32 {v(t3)}, {v(t1)}, {v(t2)}")
    a(f"v_lshl_add_u32 {v(vXb[0])}, {v(t3)}, 4, {v(t0)}")
    a(f"v_xor_b32 {v(t3)}, 4, {v(t3)}")
    a(f"v_lshl_add_u32 {v(vXb[1])}, {v(t3)}, 4, {v(t0)}")
    a(f"v_bfe_u32 {v(t0)}, v1, 2, 2")
    a(f"v_lshl_add_u32 {v(t2)}, {v(t1)}, 3, {v(t0)}")
    a(f"v_and_b32 {v(t3)}, 1, {v(t1)}")
    a(f"v_mul_u32_u24 {v(t2)}, {RB}, {v(t2)}")
    a(f"v_and_b32 {v(t0)}, 3, v1")
    a(f"v_lshl_add_u32 {v(t2)}, {v(t0)}, 3, {v(t2)}")
    a(f"v_add_u32 {v(t2)}, {ABYTES}, {v(t2)}")
    for nt in range(NTW):
        blk, p = nt >> 1, nt & 1
        a(f"v_xor_b32 {v(t0)}, {p}, {v(t3)}")
        a(f"v_lshl_add_u32 {v(t0)}, {v(t0)}, 5, {v(t2)}")
        a(f"v_add_u32 {v(vWb[nt])}, {blk*64*RB}, {v(t0)}")
    for i in range(4 * MT * NTW + 8):
        a(f"v_mov_b32 v{ACC+i}, 0")
    for i in range(4):
        a(f"v_mov_b32 {v(ONE+i)}, 0x3f803f80")
    a("s_mov_b32 s42, 0")

    def set_cur():
        for kk in range(2):
            a(f"v_add_u32 {v(vXc[kk])}, s42, {v(vXb[kk])}")
        for nt in range(NTW):
            a(f"v_add_u32 {v(vWc[nt])}, s42, {v(vWb[nt])}")
        a(f"s_add_u32 s42, s42, {STAGE}")
        a(f"s_cmp_ge_u32 s42, {STAGE*NSTAGE}")
        a("s_cselect_b32 s42, 0, s42")

    def read_list(kk, f):
        L = []
        for nt in range(NTW):
            if nt < MT:
                L.append(f"ds_read_b128 {v(FX[f]+4*nt,4)}, {v(vXc[kk])} offset:{nt*2048}")
            for rd in range(2):
                L.append(f"ds_read_b64_tr_b16 {v(FW[f]+4*nt+2*rd,2)}, {v(vWc[nt])} offset:{kk*32*RB+rd*4*RB}")
        return L

    def mfma_list(f):
        L = []
        for nt in range(NTW):
            for mt in range(MT):
                L.append(f"v_mfma_f32_16x16x32_bf16 {v(acc(nt,mt),4)}, {v(FW[f]+4*nt,4)}, {v(FX[f]+4*mt,4)}, {v(acc(nt,mt),4)}")
        return L

    def cs_block(f, wv=None):
        if 'nocs' in EXP: return
        if wv is not None:
            a(f"v_mfma_f32_16x16x32_bf16 {v(CSA,4)}, {v(FW[f]+4*wv,4)}, {v(ONE,4)}, {v(CSA,4)}")
            if wv < 2:
                a(f"v_mfma_f32_16x16x32_bf16 {v(CSA+4,4)}, {v(FW[f]+4*(wv+4),4)}, {v(ONE,4)}, {v(CSA+4,4)}")
            return
        done = a.newlabel("L_cs")
        for w in range(4):
            nx = a.newlabel("L_csn")
            if w < 3:
                a(f"s_cmp_lg_u32 s30, {w}")
                a(f"s_cbranch_scc1 {nx}")
            a(f"v_mfma_f32_16x16x32_bf16 {v(CSA,4)}, {v(FW[f]+4*w,4)}, {v(ONE,4)}, {v(CSA,4)}")
            if w < 2:
                a(f"v_mfma_f32_16x16x32_bf16 {v(CSA+4,4)}, {v(FW[f]+4*(w+4),4)}, {v(ONE,4)}, {v(CSA+4,4)}")
            if w < 3:
                a(f"s_branch {done}")
                a.label(nx)
        a.label(done)

    def inter(kk, fr, fm, wv=None):
        R = read_list(kk, fr); Mm = mfma_list(fm)
        ri = 0
        for i in range(len(Mm)):
            a(Mm[i])
            if ri < len(R): a(R[ri]); ri += 1
        while ri < len(R): a(R[ri]); ri += 1
        cs_block(fm, wv)

    for e in SPE:
        if e == 98: spf()
    stamp(1)
    a("s_barrier")
    stamp(2)
    for e in SPE:
        if e == 97: spf()
    set_cur()
    for x in read_list(0, 0): a(x)
    a("s_waitcnt lgkmcnt(0)")
    inter(1, 1, 0)
    a("s_waitcnt lgkmcnt(0)")
    a(f"s_mov_b32 s48, {NS-1}")
    WOHI = int(os.environ.get('WOHI', '3'))
    EV = [(12, 'pub')] + [(WOHI - i, 'wo') for i in range(wpf[0][1] >> 20)] + [(e, 'spf') for e in SPE if e < 90]
    EV.sort(key=lambda e: -e[0])
    assert len(set(e[0] for e in EV)) == len(EV)
    a(f"s_mov_b32 s94, {EV[0][0]}")
    loops = [a.newlabel("L_cloop") for _ in range(4)]
    ldone = a.newlabel("L_cdone")
    for w in range(1, 4):
        a(f"s_cmp_eq_u32 s30, {w}")
        a(f"s_cbranch_scc1 {loops[w]}")
    rare = []
    for w in range(4):
        a.label(loops[w])
        a("s_barrier")
        set_cur()
        inter(0, 0, 1, w)
        xpf()
        a("s_waitcnt lgkmcnt(0)")
        inter(1, 1, 0, w)
        lpub = a.newlabel("L_pub"); lback = a.newlabel("L_pubb")
        a("s_cmp_eq_u32 s48, s94")
        a(f"s_cbranch_scc1 {lpub}")
        a.label(lback)
        rare.append(('pub', w, lpub, lback))
        if 'itst' in EXP:
            for sl, it in ((4, 12), (5, 8), (6, 4)):
                lx = a.newlabel("L_it")
                a(f"s_cmp_lg_u32 s48, {it}")
                a(f"s_cbranch_scc1 {lx}")
                a(f"s_memtime s[{60+2*sl}:{61+2*sl}]")
                a.label(lx)
        a("s_waitcnt lgkmcnt(0)")
        a("s_sub_u32 s48, s48, 1")
        a("s_cmp_lg_u32 s48, 0")
        a(f"s_cbranch_scc1 {loops[w]}")
        a(f"s_branch {ldone}")
    for kind, x, lab, lb in rare:
        a.label(lab)
        for ev in range(len(EV)):
            nxt_ = EV[ev+1][0] if ev + 1 < len(EV) else 0
            if EV[ev][1] == 'pub':
                pub_next = nxt_
                continue
            nx = a.newlabel("L_ev")
            a(f"s_cmp_lg_u32 s48, {EV[ev][0]}")
            a(f"s_cbranch_scc1 {nx}")
            if EV[ev][1] == 'wo':
                a(f"buffer_load_dwordx4 {v(DUM,4)}, {v(PFV)}, s[84:87], s92 offen")
                a("s_add_u32 s92, s92, 1024")
            else:
                spf()
            a(f"s_mov_b32 s94, {nxt_}")
            a(f"s_branch {lb}")
            a.label(nx)
        a(f"s_mov_b32 s94, {pub_next}")
        if True:
            a("s_cmp_lg_u32 s45, 1")
            a(f"s_cbranch_scc1 {lb}")
            a("s_memrealtime s[22:23]")
            a(f"v_and_b32 {v(t1)}, 1, v1")
            a(f"v_lshlrev_b32 {v(t0)}, 3, {v(t1)}")
            a(f"v_add_u32 {v(t0)}, {STG + 16*x}, {v(t0)}")
            a(f"ds_read_b64 {v(PFD,2)}, {v(t0)}")
            a("s_lshl_b32 s3, s29, 3")
            a("s_add_u32 s3, s3, s98")
            a(f"s_add_u32 s3, s3, {2*x}")
            a("s_lshl_b32 s3, s3, 4")
            a(f"v_lshlrev_b32 {v(t0)}, 4, {v(t1)}")
            a("s_waitcnt lgkmcnt(0)")
            a(f"v_mov_b32 {v(PFD+2)}, s22")
            a(f"v_mov_b32 {v(PFD+3)}, s23")
            a("s_mov_b64 exec, 3")
            if 'nostatflag' not in EXP: a(f"buffer_store_dwordx4 {v(PFD,4)}, {v(t0)}, s[36:39], s3 offen sc0 sc1")
            a("s_mov_b64 exec, -1")
        a(f"s_branch {lb}")
    a.label(ldone)
    stamp(3)
    cs_block(1)
    for x in mfma_list(1): a(x)
    a(f"v_lshrrev_b32 {v(t0)}, 4, v1")
    a(f"v_lshlrev_b32 {v(t0)}, 4, {v(t0)}")
    a("s_lshl_b32 s3, s30, 6")
    a(f"s_add_u32 s3, s3, {CTAB}")
    a(f"v_add_u32 {v(t1)}, s3, {v(t0)}")
    a("s_mov_b32 exec_lo, 0x00010001")
    a("s_mov_b32 exec_hi, 0x00010001")
    a(f"ds_write_b128 {v(t1)}, {v(CSA,4)}")
    lcs = a.newlabel("L_cs2")
    a("s_cmp_ge_u32 s30, 2")
    a(f"s_cbranch_scc1 {lcs}")
    a(f"ds_write_b128 {v(t1)}, {v(CSA+4,4)} offset:256")
    a.label(lcs)
    a("s_mov_b64 exec, -1")
    a(f"v_add_u32 {v(t0)}, {CTAB}, {v(t0)}")
    a(f"v_mov_b32 {v(t1)}, {STAT}")
    a("s_waitcnt lgkmcnt(0)")
    a("s_barrier")
    RT = FX[0]; RQ = RT + 8; CS = RQ + 8; GE = CS + 24
    assert GE + 8 <= ACC
    a(f"ds_read_b32 {v(t2)}, {v(t1)}")
    for nt in range(NTW):
        a(f"ds_read_b128 {v(CS+4*nt,4)}, {v(t0)} offset:{64*nt}")
    a("s_waitcnt lgkmcnt(0)")
    a(f"v_readfirstlane_b32 s3, {v(t2)}")
    a("s_nop 3")
    lok = a.newlabel("L_stok")
    a("s_cmp_eq_u32 s3, 1")
    a(f"s_cbranch_scc1 {lok}")
    local_stats(GE + 8, GE + 24)
    a.label(lok)
    a(f"v_and_b32 {v(t2)}, 15, v1")
    a("s_lshl_b32 s3, s30, 6")
    a(f"v_add_u32 {v(t2)}, s3, {v(t2)}")
    a(f"v_lshlrev_b32 {v(t0)}, 3, {v(t2)}")
    a(f"v_add_u32 {v(t0)}, {RTAB}, {v(t0)}")
    for mt in range(MT):
        a(f"ds_read_b64 {v(RT+2*mt,2)}, {v(t0)} offset:{128*mt}")
    a(f"v_lshlrev_b32 {v(t2)}, 6, {v(t2)}")
    a(f"v_add_u32 {v(t2)}, s100, {v(t2)}")
    a(f"v_lshrrev_b32 {v(t3)}, 4, v1")
    DV = vT[4]; DQ0 = vT[5]; DQ1 = vT[6]
    a(f"v_lshl_add_u32 {v(DV)}, {v(t3)}, 3, {v(t2)}")
    a(f"v_lshrrev_b32 {v(t0)}, 1, {v(t3)}")
    a(f"v_bfe_u32 {v(t1)}, v1, 2, 2")
    a(f"v_xor_b32 {v(t0)}, {v(t0)}, {v(t1)}")
    a(f"v_lshl_add_u32 {v(t0)}, {v(t0)}, 4, {v(t2)}")
    a(f"v_and_b32 {v(t1)}, 1, {v(t3)}")
    a(f"v_lshl_add_u32 {v(DQ0)}, {v(t1)}, 3, {v(t0)}")
    a(f"v_xor_b32 {v(DQ1)}, 32, {v(DQ0)}")
    sc = (DH ** -0.5) * math.log2(math.e)
    a(f"s_mov_b32 s52, {hex_f32(sc)}")
    a("s_waitcnt lgkmcnt(0)")
    for i in range(8):
        a(f"v_mul_f32 {v(RQ+i)}, s52, {v(RT+i)}")
    for nt in range(NTW):
        R_ = RQ if nt < 2 else RT
        for mp in range(0, MT, 2):
            c0 = acc(nt, mp)
            for q in range(2):
                for j in range(2):
                    a(f"v_pk_mul_f32 {v(GE+4*q+2*j,2)}, {v(CS+4*nt+2*j,2)}, {v(R_+2*(mp+q),2)} op_sel:[0,1] op_sel_hi:[1,1]")
            for q in range(2):
                for j in range(2):
                    cc = v(c0 + 4 * q + 2 * j, 2)
                    a(f"v_pk_fma_f32 {cc}, {cc}, {v(R_+2*(mp+q),2)}, {v(GE+4*q+2*j,2)} op_sel:[0,0,0] op_sel_hi:[1,0,1]")
            for j in range(4):
                a(f"v_cvt_pk_bf16_f32 {v(c0+j)}, {v(c0+2*j)}, {v(c0+2*j+1)}")
            for q in range(2):
                sec = nt >> 1
                if sec == 2:
                    a(f"ds_write_b64 {v(DV)}, {v(c0+2*q,2)} offset:{(mp+q)*1024 + sec*16384 + 32*(nt&1)}")
                else:
                    a(f"ds_write_b64 {v(DQ1 if nt & 1 else DQ0)}, {v(c0+2*q,2)} offset:{(mp+q)*1024 + sec*16384}")
    a("s_waitcnt vmcnt(0) lgkmcnt(0)")
    stamp(4)
    a("s_barrier")
    a(f"s_branch {lab_att}")

    a.label(lab_loader)
    a("s_setprio 2")
    a(f"s_load_dwordx2 s[94:95], s[0:1], {ARG['w1']}")
    a(f"s_load_dwordx2 s[96:97], s[0:1], {ARG['wo' if G.C3 else 'w2']}")
    assert not (G.C3 and QW2)
    LSD = 40; LST = 56; LNO = 68; LTB = 72
    a("s_lshl_b32 s3, s30, 6")
    a(f"v_lshrrev_b32 {v(t0)}, 3, v1")
    a(f"v_add_u32 {v(t0)}, s3, {v(t0)}")
    for i in range(PA):
        a(f"v_add_u32 {v(t1)}, {8*i}, {v(t0)}")
        a(f"v_lshrrev_b32 {v(t2)}, 1, {v(t1)}")
        a(f"v_and_b32 {v(t2)}, 7, {v(t2)}")
        a(f"v_and_b32 {v(t3)}, 7, v1")
        a(f"v_xor_b32 {v(t2)}, {v(t2)}, {v(t3)}")
        a(f"v_add_u32 {v(t1)}, s98, {v(t1)}")
        a(f"v_mul_u32_u24 {v(t1)}, {lda}, {v(t1)}")
        a(f"v_lshl_add_u32 {v(vA[i])}, {v(t2)}, 4, {v(t1)}")
    a("s_lshl_b32 s3, s29, 6")
    for i in range(PB):
        a(f"s_mul_i32 s46, s30, {PB}")
        a(f"s_add_u32 s46, s46, {i}")
        a("s_lshr_b32 s47, s46, 2")
        a("s_and_b32 s46, s46, 3")
        a("s_lshl_b32 s46, s46, 4")
        a("s_lshl_b32 s47, s47, 11")
        a("s_add_u32 s47, s47, s3")
        a(f"v_lshrrev_b32 {v(t0)}, {3 if 'bfull' in EXP else 2}, v1")
        a(f"v_add_u32 {v(t0)}, s46, {v(t0)}")
        a(f"v_and_b32 {v(t1)}, {7 if 'bfull' in EXP else 3}, v1")
        if 'bfull' in EXP: a("s_and_b32 s47, s47, 0xffffff80")
        a(f"v_bfe_u32 {v(t2)}, {v(t0)}, 3, 1")
        a(f"v_lshlrev_b32 {v(t2)}, 1, {v(t2)}")
        a(f"v_xor_b32 {v(t1)}, {v(t1)}, {v(t2)}")
        a(f"v_mul_u32_u24 {v(t0)}, {N*2}, {v(t0)}")
        a(f"v_lshl_add_u32 {v(t0)}, {v(t1)}, 4, {v(t0)}")
        a(f"v_add_u32 {v(vB[i])}, s47, {v(t0)}")
    a(f"s_mul_i32 s31, s30, {PA*1024}")
    a(f"s_mul_i32 s32, s30, {PB*1024}")
    a(f"s_add_u32 s32, s32, {ABYTES}")
    build_srds()
    a("s_lshl_b32 s46, s29, 3")
    a("s_add_u32 s46, s46, s98")
    a("s_lshl_b32 s47, s30, 1")
    a("s_add_u32 s47, s47, s46")
    stats_load(LSD, LST, 47)
    lab_lpass = a.newlabel("L_lpass")
    a.label(lab_lpass)
    a("s_mov_b32 s40, 0")
    a("s_mov_b32 s41, 0")
    a("s_mov_b32 s43, 0")
    a("s_mov_b32 s53, 0")

    def dma():
        a("s_add_u32 s33, s43, s31")
        for i in range(PA):
            a(f"s_add_u32 m0, s33, {i*1024}")
            a("s_nop 0")
            a(f"buffer_load_dwordx4 {v(vA[i])}, s[4:7], s40 offen lds")
        a("s_add_u32 s33, s43, s32")
        for i in range(PB):
            a(f"s_add_u32 m0, s33, {i*1024}")
            a("s_nop 0")
            a(f"buffer_load_dwordx4 {v(vB[i])}, s[8:11], s41 offen lds")
        a(f"s_add_u32 s40, s40, {BK*2}")
        a(f"s_add_u32 s41, s41, {BK*N*2}")
        a(f"s_add_u32 s43, s43, {STAGE}")
        a(f"s_cmp_ge_u32 s43, {STAGE*NSTAGE}")
        a("s_cselect_b32 s43, 0, s43")

    nloop = NS - NSTAGE + 1
    lab_l2p = a.newlabel("L_l2p"); lab_lend = a.newlabel("L_lend")
    a("s_cmp_lg_u32 s45, 1")
    a(f"s_cbranch_scc1 {lab_l2p}")
    stamp(1)
    Q = []
    def dmaq(j):
        dma(); Q.extend([('d', j)] * P)
    def waitq(*tags):
        last = max(i for i, x in enumerate(Q) if x in tags)
        a(f"s_waitcnt vmcnt({len(Q) - 1 - last})")
    for j in range(NSTAGE - 1):
        dmaq(j)
    stamp(2)
    SA1, SA2 = 218, 219
    a("s_lshl_b32 s92, s99, 2")
    a("s_add_u32 s92, s92, s30")
    srd(a, 76, 94, 0, D * F * 2)
    srd(a, 88, 96, 0, D * D * 2 if G.C3 else F * D * 2)
    a(f"v_lshrrev_b32 {v(t0)}, 3, v1")
    a(f"v_and_b32 {v(t1)}, 7, v1")
    a(f"v_lshlrev_b32 {v(t1)}, 4, {v(t1)}")
    a(f"v_lshl_add_u32 {v(SA2)}, {v(t0)}, 11, {v(t1)}")
    a("s_lshr_b32 s3, s92, 6")
    a("s_lshl_b32 s3, s3, 7")
    a("s_and_b32 s46, s92, 63")
    a(f"s_mul_i32 s46, s46, {56*D*2}")
    a("s_add_u32 s3, s3, s46")
    a(f"v_add_u32 {v(SA2)}, s3, {v(SA2)}")
    if G.FZ:
        a("s_and_b32 s93, s99, 15")
        a("s_lshr_b32 s3, s99, 4")
        a("s_mul_i32 s3, s3, 7")
        a("s_lshr_b32 s3, s3, 1")
        a("s_add_u32 s84, s3, s30")
    else:
        a("s_min_u32 s46, s92, 895")
        a(f"s_mul_hi_u32 s93, s46, {((1 << 32) + 55) // 56}")
        a("s_mul_i32 s3, s93, 56")
        a("s_sub_u32 s84, s46, s3")
    a(f"v_mul_u32_u24 {v(t0)}, {F*2}, {v(t0)}")
    a(f"v_add_u32 {v(SA1)}, {v(t0)}, {v(t1)}")
    a(f"s_mul_i32 s3, s93, {64*F*2}")
    a("s_lshl_b32 s46, s84, 7")
    a("s_add_u32 s3, s3, s46")
    a(f"v_add_u32 {v(SA1)}, s3, {v(SA1)}")
    side = [(W1S + 4 * j, SA1, 76, 8 * j * F * 2) for j in range(8)] + ([(W2S[j], SA2, 88, 8 * j * D * 2) for j in range(7)] if QW2 else [])
    SIDE0 = int(os.environ.get('SIDE0', '16')); SPI = int(os.environ.get('SPI', '1'))
    def sideq():
        if not side: return
        d, av, sr, off = side.pop(0)
        a(f"s_mov_b32 s3, {off}")
        a(f"buffer_load_dwordx4 {v(d,4)}, {v(av)}, s[{sr}:{sr+3}], s3 offen")
        Q.append('s')
    for j in range(NS):
        c = nloop - j
        waitq(('d', j), 't')
        a("s_barrier")
        if c == 2:
            l1 = a.newlabel("L_l1")
            a("s_cmp_lg_u32 s30, 0")
            a(f"s_cbranch_scc1 {l1}")
            a(f"v_lshlrev_b32 {v(t0)}, 4, v1")
            a("s_lshl_b32 s3, s28, 12")
            for jj in range(4):
                a(f"buffer_load_dwordx4 {v(LTB+4*jj,4)}, {v(t0)}, s[36:39], s3 offen offset:{1024*jj} sc0 sc1")
            a.label(l1)
            Q.append('t')
        if c == 1:
            l2 = a.newlabel("L_l2")
            a("s_cmp_lg_u32 s30, 0")
            a(f"s_cbranch_scc1 {l2}")
            a("s_mov_b64 s[54:55], exec")
            for jj in range(4):
                a(f"v_cmp_lt_u64 vcc, s[34:35], {v(LTB+4*jj+2,2)}")
                a(f"v_cmp_gt_u64 s[56:57], s[20:21], {v(LTB+4*jj+2,2)}")
                a("s_nop 3")
                a("s_and_b64 s[54:55], s[54:55], vcc")
                a("s_and_b64 s[54:55], s[54:55], s[56:57]")
            a("s_cmp_lg_u64 s[54:55], exec")
            a(f"s_cbranch_scc1 {l2}")
            a("s_mov_b32 s53, 1")
            a(f"v_lshlrev_b32 {v(t0)}, 3, v1")
            a(f"v_add_u32 {v(t0)}, {RTAB}, {v(t0)}")
            for jj in range(4):
                a(f"ds_write_b64 {v(t0)}, {v(LTB+4*jj,2)} offset:{512*jj}")
            a("s_waitcnt lgkmcnt(0)")
            a.label(l2)
        if j + NSTAGE - 1 < NS:
            dmaq(j + NSTAGE - 1)
        if j >= SIDE0:
            for _ in range(SPI): sideq()
        if j == 0:
            stats_math(LSD, LST)
            a("s_lshl_b32 s3, s30, 4")
            a(f"s_add_u32 s3, s3, {STG}")
            a(f"v_mov_b32 {v(LST+9)}, s3")
            a(f"ds_write_b128 {v(LST+9)}, {v(LST,4)}")
            a("s_waitcnt lgkmcnt(0)")
    while side and not SIDEATT: sideq()
    if G.C3:
        a(f"v_lshrrev_b32 {v(t0)}, 3, v1")
        a(f"v_and_b32 {v(t1)}, 7, v1")
        a(f"v_lshlrev_b32 {v(t1)}, 4, {v(t1)}")
        a(f"v_lshl_add_u32 {v(SA2)}, {v(t0)}, 10, {v(t1)}")
        a("s_lshl_b32 s3, s92, 11")
        if WOC:
            a("s_mov_b64 exec, 0xffff")
            a(f"buffer_load_dwordx4 {v(W2S[0],4)}, {v(SA2)}, s[88:91], s3 offen offset:384")
            a("s_mov_b64 exec, -1")
        if G.QC3:
            a(f"s_load_dwordx2 s[96:97], s[0:1], {ARG['w2']}")
            a("s_mul_i32 s3, s92, 7168")
            a("s_waitcnt lgkmcnt(0)")
            srd(a, 88, 96, 0, F * D * 2)
            a("s_mov_b32 exec_hi, 0x00ffffff")
            a(f"buffer_load_dwordx4 {v(W2S[1],4)}, {v(SA2)}, s[88:91], s3 offen offset:384")
            a("s_mov_b32 exec_hi, -1")
            a("s_mul_i32 s3, s92, 7")
            a(f"v_add_u32 {v(t2)}, s3, {v(t0)}")
            a(f"v_and_b32 {v(t3)}, 1, {v(t2)}")
            a(f"v_mul_u32_u24 {v(t3)}, {F*256}, {v(t3)}")
            a(f"v_lshrrev_b32 {v(t2)}, 1, {v(t2)}")
            a(f"v_lshl_add_u32 {v(t2)}, {v(t2)}, 8, {v(t1)}")
            a(f"v_add_u32 {v(W2S[2])}, {v(t2)}, {v(t3)}")
        a(f"v_lshl_add_u32 {v(SA2)}, {v(t0)}, 18, {v(t1)}")
    a(f"s_branch {lab_lend}")
    a.label(lab_l2p)
    for _ in range(NSTAGE - 1):
        dma()
    a(f"s_mov_b32 s48, {nloop}")
    lloop = a.newlabel("L_lloop")
    a.label(lloop)
    a(f"s_waitcnt vmcnt({(NSTAGE-2)*P})")
    a("s_barrier")
    dma()
    a("s_sub_u32 s48, s48, 1")
    a("s_cmp_lg_u32 s48, 0")
    a(f"s_cbranch_scc1 {lloop}")
    for j in range(NS - NSTAGE + 1, NS):
        a(f"s_waitcnt vmcnt({(NS-1-j)*P})")
        a("s_barrier")
    a.label(lab_lend)
    stamp(3)
    l4 = a.newlabel("L_l4")
    a(f"v_mov_b32 {v(t1)}, {STAT}")
    a("s_cmp_lg_u32 s30, 0")
    a(f"s_cbranch_scc1 {l4}")
    a(f"v_mov_b32 {v(t0)}, s53")
    a(f"ds_write_b32 {v(t1)}, {v(t0)}")
    for j in range(4):
        a(f"v_mov_b32 {v(LTB+j)}, 0")
    a(f"ds_write_b128 {v(t1)}, {v(LTB,4)} offset:{STAT2-STAT}")
    a("s_waitcnt lgkmcnt(0)")
    a.label(l4)
    a("s_barrier")
    a(f"ds_read_b32 {v(t2)}, {v(t1)}")
    a("s_waitcnt lgkmcnt(0)")
    a(f"v_readfirstlane_b32 s3, {v(t2)}")
    a("s_nop 3")
    lok = a.newlabel("L_stok")
    a("s_cmp_eq_u32 s3, 1")
    a(f"s_cbranch_scc1 {lok}")
    local_stats(LSD, LST)
    a.label(lok)
    stamp(4)
    a("s_barrier")

    a.label(lab_att)
    CM, MK1, MK2, SA, SB = 16, 32, 48, 64, 80
    KB_ = [96, 104]; VB_ = [112, 120]; PP = [128, 136]; OA = 144; SUM = 160
    CA = 64; CT = 72; PUB = 200; VM = 216
    vK1 = [2, 3]; vV1 = 4; vK2 = [5, 6]; vV2 = 7; vQQ = 8; vHH = 9; vX32 = 10; vNEG = 11; vL16 = 12
    T0, T1, T2 = 13, 14, 15
    vNO = 217
    lab_start = a.newlabel("L_astart"); lab_reload = a.newlabel("L_reload"); lab_fin = a.newlabel("L_fin")
    a("s_setprio 0")
    a("s_sub_u32 s3, 11, s49")
    a("s_cmp_lt_u32 s49, 4")
    a("s_cselect_b32 s44, s49, s3")
    a(f"v_and_b32 {v(vQQ)}, 31, v1")
    a(f"v_lshrrev_b32 {v(vHH)}, 5, v1")
    a(f"v_lshlrev_b32 {v(vL16)}, 4, v1")
    a(f"v_xor_b32 {v(vX32)}, 32, v1")
    a(f"v_lshlrev_b32 {v(vX32)}, 2, {v(vX32)}")
    a(f"v_mov_b32 {v(vNEG)}, 0xf149f2ca")
    a(f"v_mov_b32 {v(VM)}, 0")
    a(f"v_bfe_u32 {v(T0)}, v1, 2, 2")
    a(f"v_xor_b32 {v(T0)}, {v(T0)}, {v(vHH)}")
    a(f"v_lshlrev_b32 {v(T1)}, 6, {v(vQQ)}")
    a(f"v_lshl_add_u32 {v(T0)}, {v(T0)}, 4, {v(T1)}")
    a("s_lshl_b32 s3, s44, 11")
    a(f"s_add_u32 s46, s3, {OK_ - 7*2048}")
    a(f"v_add_u32 {v(vK1[0])}, s46, {v(T0)}")
    a(f"v_xor_b32 {v(vK1[1])}, 32, {v(vK1[0])}")
    a(f"s_add_u32 s46, s3, {PK}")
    a(f"v_add_u32 {v(vK2[0])}, s46, {v(T0)}")
    a(f"v_xor_b32 {v(vK2[1])}, 32, {v(vK2[0])}")
    a(f"s_add_u32 s46, s3, {OQ}")
    a(f"v_add_u32 {v(T0)}, s46, {v(T0)}")
    a(f"v_bfe_u32 {v(T1)}, v1, 2, 2")
    a(f"v_lshl_add_u32 {v(T1)}, {v(vHH)}, 2, {v(T1)}")
    a(f"v_lshlrev_b32 {v(T1)}, 6, {v(T1)}")
    a(f"v_bfe_u32 {v(T2)}, v1, 4, 1")
    a(f"v_lshl_add_u32 {v(T1)}, {v(T2)}, 5, {v(T1)}")
    a(f"v_and_b32 {v(T2)}, 3, v1")
    a(f"v_lshl_add_u32 {v(T1)}, {v(T2)}, 3, {v(T1)}")
    a(f"s_add_u32 s46, s3, {OV - 7*2048}")
    a(f"v_add_u32 {v(vV1)}, s46, {v(T1)}")
    a(f"s_add_u32 s46, s3, {PV}")
    a(f"v_add_u32 {v(vV2)}, s46, {v(T1)}")
    a("s_cmp_lg_u32 s45, 1")
    a(f"s_cbranch_scc1 {lab_reload}")
    a(f"ds_read_b128 {v(QF,4)}, {v(T0)}")
    a(f"v_xor_b32 {v(T0)}, 32, {v(T0)}")
    a(f"ds_read_b128 {v(QF+4,4)}, {v(T0)}")
    a("s_mov_b32 s33, 1")
    lab_pubw = a.newlabel("L_pubw")
    a("s_cmp_lt_u32 s49, 4")
    a(f"s_cbranch_scc1 {lab_pubw}")
    while side: sideq()
    a(f"s_branch {lab_start}")
    a.label(lab_pubw)
    a("s_lshl_b32 s3, s49, 13")
    a(f"s_add_u32 s46, s3, {OK_}")
    a(f"v_add_u32 {v(T1)}, s46, {v(vL16)}")
    for j in range(8):
        a(f"ds_read_b128 {v(W1S+4*j,4)}, {v(T1)} offset:{1024*j}")
    a("s_lshl_b32 s46, s99, 15")
    a("s_add_u32 s46, s46, s3")
    for j in range(8):
        if j == 4: a("s_add_u32 s46, s46, 4096")
        a(f"s_waitcnt lgkmcnt({7-j})")
        a(f"buffer_store_dwordx4 {v(W1S+4*j,4)}, {v(vL16)}, s[16:19], s46 offen offset:{1024*(j&3)} sc0 sc1")
    a("s_mov_b32 s33, 0")

    def kvflag():
        ldone = a.newlabel("L_kvf")
        a("s_or_b32 s3, s33, s50")
        a("s_cmp_lg_u32 s3, 0")
        a(f"s_cbranch_scc1 {ldone}")
        a("s_mov_b32 s33, 1")
        a("s_memrealtime s[22:23]")
        a("s_lshl_b32 s3, s99, 7")
        a("s_lshl_b32 s46, s49, 3")
        a("s_add_u32 s3, s3, s46")
        a(f"s_add_u32 s3, s3, {KFO}")
        a(f"v_mov_b32 {v(T0)}, 0")
        a("s_waitcnt vmcnt(0) lgkmcnt(0)")
        a(f"v_mov_b32 {v(PUB)}, s22")
        a(f"v_mov_b32 {v(PUB+1)}, s23")
        a("s_mov_b64 exec, 1")
        if 'nokvflag' not in EXP: a(f"buffer_store_dwordx2 {v(PUB,2)}, {v(T0)}, s[36:39], s3 offen sc0 sc1")
        a("s_mov_b64 exec, -1")
        a.label(ldone)

    a.label(lab_start)
    a(f"v_lshlrev_b32 {v(T0)}, 2, {v(vHH)}")
    a(f"v_sub_u32 {v(T0)}, {v(vQQ)}, {v(T0)}")
    for r in range(16):
        c = (r & 3) + 8 * (r >> 2)
        sp = 52 + 2 * (r & 1)
        a(f"v_cmp_le_i32 s[{sp}:{sp+1}], {c}, {v(T0)}")
        a(f"v_mov_b32 {v(CM+r)}, {v(VM)}")
        a(f"v_cndmask_b32 {v(MK1+r)}, {v(vNEG)}, {v(VM)}, s[{sp}:{sp+1}]")
        a(f"v_cndmask_b32 {v(MK2+r)}, {v(VM)}, {v(vNEG)}, s[{sp}:{sp+1}]")
    for r in range(16):
        a(f"v_mov_b32 {v(OA+r)}, 0")
    for r in range(4):
        a(f"v_mov_b32 {v(SUM+r)}, 0")

    def part(vK, vV, MK, off, last_cmp, lab_out, hook=None):
        SS = [SA, SB]

        def kread(i):
            for ks in range(2):
                a(f"ds_read_b128 {v(KB_[i&1]+4*ks,4)}, {v(vK[ks])} offset:{off(i)}")

        def smf(i, h):
            if h == 0:
                a(f"v_mfma_f32_32x32x16_bf16 {v(SS[i&1],16)}, {v(KB_[i&1],4)}, {v(QF,4)}, {v(MK if i == 0 else CM,16)}")
            else:
                a(f"v_mfma_f32_32x32x16_bf16 {v(SS[i&1],16)}, {v(KB_[i&1]+4,4)}, {v(QF+4,4)}, {v(SS[i&1],16)}")
        kread(0)
        kread(1)
        a("s_waitcnt lgkmcnt(2)")
        smf(0, 0); smf(0, 1)
        for i in range(8):
            Sx = SS[i & 1]; Px = PP[i & 1]; Vx = VB_[i & 1]

            def exps(g):
                for j in range(4):
                    a(f"v_exp_f32 {v(Sx+g+j)}, {v(Sx+g+j)}")

            def addcvt(g):
                for j in range(2):
                    a(f"v_pk_add_f32 {v(SUM+2*j,2)}, {v(SUM+2*j,2)}, {v(Sx+g+2*j,2)}")
                    a(f"v_cvt_pk_bf16_f32 {v(Px+g//2+j)}, {v(Sx+g+2*j)}, {v(Sx+g+1+2*j)}")

            def pv(sidx):
                a(f"v_mfma_f32_32x32x16_bf16 {v(OA,16)}, {v(Vx+4*sidx,4)}, {v(Px+4*sidx,4)}, {v(OA,16)}")
            for sidx in range(2):
                for rd in range(2):
                    a(f"ds_read_b64_tr_b16 {v(Vx+4*sidx+2*rd,2)}, {v(vV)} offset:{off(i) + (16*sidx+8*rd)*64}")
            if i < 7:
                a("s_waitcnt lgkmcnt(4)")
                smf(i + 1, 0)
            if i == 0:
                a("s_nop 7"); a("s_nop 7"); a("s_nop 7")
            exps(0)
            if i < 7:
                smf(i + 1, 1)
                if i < 6: kread(i + 2)
            exps(4); addcvt(0)
            exps(8); addcvt(4)
            a(f"s_waitcnt lgkmcnt({2 if i < 6 else 0})")
            pv(0)
            exps(12); addcvt(8)
            a("s_nop 0")
            addcvt(12)
            a("s_nop 1")
            pv(1)
            if i < 7:
                a(f"s_cmp_eq_u32 s44, {last_cmp(i)}")
                a(f"s_cbranch_scc1 {lab_out}")
            if hook and i == 2: hook()
        a.label(lab_out)
        a("s_waitcnt lgkmcnt(0)")

    part(vK1, vV1, MK1, lambda i: (7 - i) * 2048, lambda i: i, a.newlabel("L_p1e"), hook=kvflag)
    stamp(5)
    lab_p2 = a.newlabel("L_p2")
    a("s_cmp_lg_u32 s50, 0")
    a(f"s_cbranch_scc1 {lab_p2}")
    kvflag()
    lab_nc = a.newlabel("L_nocs")
    a("s_cmp_lt_u32 s49, 4")
    a(f"s_cbranch_scc1 {lab_nc}")
    if G.C3:
        srd(a, 88, 24, G.WS_WOC, 2 * D * 256)
        a("s_lshl_b32 s3, s92, 8")
        a("s_waitcnt vmcnt(0)")
        if WOC:
            a("s_mov_b64 exec, 0xffff")
            a(f"buffer_store_dwordx4 {v(W2S[0],4)}, {v(SA2)}, s[88:91], s3 offen {WT}")
            a("s_mov_b64 exec, -1")
        if G.QC3:
            srd(a, 88, 24, G.WS_W2C, 2 * F * 256)
            a("s_mov_b32 exec_hi, 0x00ffffff")
            a(f"buffer_store_dwordx4 {v(W2S[1],4)}, {v(W2S[2])}, s[88:91], 0 offen {WT}")
            a("s_mov_b32 exec_hi, -1")
    else:
        srd(a, 88, 24, G.WS_W2T, F * D * 2)
        a("s_mul_i32 s3, s92, 7168")
        a("s_waitcnt vmcnt(0)")
    for j in range(7 if QW2 else 0):
        if j == 4: a("s_add_u32 s3, s3, 4096")
        a(f"buffer_store_dwordx4 {v(W2S[j],4)}, {v(vL16)}, s[88:91], s3 offen offset:{1024*(j&3)}")
    if not G.FZ:
        a("s_cmp_ge_u32 s92, 896")
        a(f"s_cbranch_scc1 {lab_nc}")
    if G.W1T:
        srd(a, 88, 24, G.WS_W1T, 16 * 512 * 1024)
        a(f"v_and_b32 {v(T0)}, 7, v1")
        a("s_lshl_b32 s3, s84, 3")
        a(f"v_add_u32 {v(T0)}, s3, {v(T0)}")
        a(f"s_mov_b32 s3, {((1 << 32) + 27) // 28}")
        a(f"v_mul_hi_u32 {v(T1)}, {v(T0)}, s3")
        a(f"v_mul_u32_u24 {v(T2)}, 28, {v(T1)}")
        a(f"v_sub_u32 {v(T0)}, {v(T0)}, {v(T2)}")
        a(f"v_bfe_u32 {v(T2)}, v1, 3, 1")
        a(f"v_mad_u32_u24 {v(T0)}, {v(T2)}, 28, {v(T0)}")
        a(f"v_cmp_le_u32 vcc, 24, {v(T0)}")
        a(f"v_add_u32 {v(T2)}, 8, {v(T0)}")
        a(f"v_cndmask_b32 {v(T0)}, {v(T0)}, {v(T2)}, vcc")
        a(f"v_lshlrev_b32 {v(T1)}, 19, {v(T1)}")
        a(f"v_lshl_add_u32 {v(T0)}, {v(T0)}, 4, {v(T1)}")
        a(f"v_lshrrev_b32 {v(T1)}, 4, v1")
        a(f"v_lshl_add_u32 {v(T0)}, {v(T1)}, 10, {v(T0)}")
        a("s_lshl_b32 s3, s93, 15")
        for j in range(8):
            a(f"buffer_store_dwordx4 {v(W1S+4*j,4)}, {v(T0)}, s[88:91], s3 offen {os.environ.get('W1ST','sc0 sc1')}")
            a("s_add_u32 s3, s3, 4096")
    for j in range(4):
        a(f"v_lshlrev_b32 v{CA+2*j}, 16, v{W1S+j}")
        a(f"v_and_b32 v{CA+2*j+1}, 0xffff0000, v{W1S+j}")
    for i in range(1, 8):
        for j in range(4):
            a(f"v_lshlrev_b32 v{CT+2*j}, 16, v{W1S+4*i+j}")
            a(f"v_and_b32 v{CT+2*j+1}, 0xffff0000, v{W1S+4*i+j}")
        for j in range(4):
            a(f"v_pk_add_f32 {v(CA+2*j,2)}, {v(CA+2*j,2)}, {v(CT+2*j,2)}")
    a("s_nop 1")
    for j in range(8):
        a(f"v_add_f32_dpp v{CT+j}, v{CA+j}, v{CA+j} row_ror:8 row_mask:0xf bank_mask:0xf")
    a(f"v_xor_b32 {v(T0)}, 16, v1")
    a(f"v_lshlrev_b32 {v(T0)}, 2, {v(T0)}")
    for j in range(8):
        a(f"ds_bpermute_b32 v{CA+j}, {v(T0)}, v{CT+j}")
    a("s_waitcnt lgkmcnt(0)")
    for j in range(8):
        a(f"v_add_f32 v{CT+j}, v{CA+j}, v{CT+j}")
    for j in range(8):
        a(f"ds_bpermute_b32 v{CA+j}, {v(vX32)}, v{CT+j}")
    a("s_waitcnt lgkmcnt(0)")
    for j in range(8):
        a(f"v_add_f32 v{CA+j}, v{CA+j}, v{CT+j}")
    srd(a, 76, 24, G.WS_CS, 16 * F * 4)
    a(f"s_mul_i32 s3, s93, {F*4}")
    a("s_lshl_b32 s46, s84, 8")
    a("s_add_u32 s3, s3, s46")
    a(f"v_lshlrev_b32 {v(T0)}, 5, v1")
    a("s_mov_b64 exec, 0xff")
    a(f"buffer_store_dwordx4 {v(CA,4)}, {v(T0)}, s[76:79], s3 offen {WT}")
    a(f"buffer_store_dwordx4 {v(CA+4,4)}, {v(T0)}, s[76:79], s3 offen offset:16 {WT}")
    a("s_mov_b64 exec, -1")
    a.label(lab_nc)
    a("s_mov_b32 s50, 1")
    a("s_cmp_eq_u32 s28, 0")
    a(f"s_cbranch_scc1 {lab_p2}")
    lp = a.newlabel("L_poll"); lpo = a.newlabel("L_pollok"); lpd = a.newlabel("L_polld"); lsp = a.newlabel("L_spin")
    a("s_cmp_ge_u32 s49, 4")
    a(f"s_cbranch_scc1 {lsp}")
    a("s_sub_u32 s46, s99, 32")
    a("s_lshl_b32 s47, s46, 7")
    a(f"s_add_u32 s47, s47, {KFO}")
    a(f"v_and_b32 {v(T0)}, 3, v1")
    a(f"v_lshlrev_b32 {v(T0)}, 3, {v(T0)}")
    a(f"s_mov_b32 s52, {NPOLL}")
    a.label(lp)
    a(f"buffer_load_dwordx2 {v(PUB,2)}, {v(T0)}, s[36:39], s47 offen sc0 sc1")
    a("s_waitcnt vmcnt(0)")
    a(f"v_cmp_lt_u64 vcc, s[34:35], {v(PUB,2)}")
    a(f"v_cmp_gt_u64 s[54:55], s[20:21], {v(PUB,2)}")
    a("s_nop 3")
    a("s_and_b64 vcc, vcc, s[54:55]")
    a("s_cmp_eq_u64 vcc, exec")
    a(f"s_cbranch_scc1 {lpo}")
    a("s_sub_u32 s52, s52, 1")
    a("s_cmp_lg_u32 s52, 0")
    a(f"s_cbranch_scc1 {lp}")
    a(f"v_mov_b32 {v(T1)}, 2")
    a(f"s_branch {lpd}")
    a.label(lpo)
    a("s_lshl_b32 s3, s49, 13")
    a("s_lshl_b32 s46, s46, 15")
    a("s_add_u32 s46, s46, s3")
    for j in range(8):
        a(f"s_add_u32 m0, s3, {PK + 1024*j}")
        a("s_nop 0")
        a(f"buffer_load_dwordx4 {v(vL16)}, s[16:19], s46 offen sc0 sc1 lds")
        a("s_add_u32 s46, s46, 1024")
    a(f"v_mov_b32 {v(T1)}, 1")
    a.label(lpd)
    a("s_lshl_b32 s3, s49, 2")
    a(f"s_add_u32 s3, s3, {STAT2}")
    a(f"v_mov_b32 {v(T0)}, s3")
    a("s_waitcnt vmcnt(0)")
    a(f"ds_write_b32 {v(T0)}, {v(T1)}")
    a.label(lsp)
    a(f"v_mov_b32 {v(T0)}, {STAT2}")
    a(f"ds_read_b128 {v(PUB,4)}, {v(T0)}")
    a("s_waitcnt lgkmcnt(0)")
    a(f"v_min_u32 {v(T1)}, {v(PUB)}, {v(PUB+1)}")
    a(f"v_min3_u32 {v(T1)}, {v(T1)}, {v(PUB+2)}, {v(PUB+3)}")
    a(f"v_max_u32 {v(T2)}, {v(PUB)}, {v(PUB+1)}")
    a(f"v_max3_u32 {v(T2)}, {v(T2)}, {v(PUB+2)}, {v(PUB+3)}")
    a("s_nop 0")
    a(f"v_readfirstlane_b32 s3, {v(T1)}")
    a(f"v_readfirstlane_b32 s46, {v(T2)}")
    a("s_nop 3")
    a("s_cmp_eq_u32 s3, 0")
    a("s_sleep 1")
    a(f"s_cbranch_scc1 {lsp}")
    a("s_cmp_eq_u32 s46, 1")
    a(f"s_cbranch_scc1 {lab_p2}")
    a("s_mov_b32 s45, 2")
    a("s_sub_u32 s98, s98, 256")
    a(f"s_mov_b32 s100, {XQ}")
    a("s_barrier")
    if G.FZ:
        for i in range(4):
            a(f"s_mov_b32 s{84+i}, s{4+i}")
            a(f"s_mov_b32 s{88+i}, s{4+i}")
        a(f"v_mov_b32 {v(XPA)}, 0")
    a("s_cmp_lt_u32 s49, 4")
    a(f"s_cbranch_scc1 {lab_cpass}")
    a("s_setprio 2")
    a(f"s_branch {a.newlabel('L_lre')}")
    lab_lre = f"L_lre_{a.nlab}"

    a.label(lab_reload)
    a("s_lshl_b32 s3, s49, 12")
    a("s_lshl_b32 s46, s99, 15")
    a("s_add_u32 s46, s46, s3")
    for j in range(4):
        a(f"s_add_u32 m0, s3, {OK_ + 1024*j}")
        a("s_nop 0")
        a(f"buffer_load_dwordx4 {v(vL16)}, s[16:19], s46 offen sc0 sc1 lds")
        a("s_add_u32 s46, s46, 1024")
    a("s_waitcnt vmcnt(0)")
    a("s_barrier")
    a(f"s_branch {lab_start}")

    a.label(lab_p2)
    if G.FZ and 'fpre' in EXP:
        G.code_pf(a, lab_fin, 1, 49, T0, 1)
    if 'qpf2' in EXP:
        lq = a.newlabel("L_qpf")
        a("s_cmp_eq_u32 s33, 2")
        a(f"s_cbranch_scc1 {lq}")
        a("s_mov_b32 s33, 2")
        a(f"s_load_dwordx2 s[54:55], s[0:1], {ARG['w2']}")
        a("s_lshl_b32 s3, s99, 3")
        a("s_add_u32 s3, s3, s49")
        a("s_mul_i32 s3, s3, 3584")
        a(f"v_lshlrev_b32 {v(T0)}, 7, v1")
        a("s_waitcnt lgkmcnt(0)")
        srd(a, 88, 54, 0, F * D * 2)
        a("s_mov_b64 exec, 0xfffffff")
        a(f"buffer_load_dword v255, {v(T0)}, s[88:91], s3 offen")
        a("s_mov_b64 exec, -1")
        a.label(lq)
    a("s_cmp_eq_u32 s28, 0")
    a(f"s_cbranch_scc1 {lab_fin}")
    part(vK2, vV2, MK2, lambda i: i * 2048, lambda i: 7 - i, a.newlabel("L_p2e"))
    a.label(lab_fin)
    stamp(6)
    a(f"v_add_f32 {v(SUM)}, {v(SUM)}, {v(SUM+1)}")
    a(f"v_add_f32 {v(SUM+2)}, {v(SUM+2)}, {v(SUM+3)}")
    a(f"v_add_f32 {v(SUM)}, {v(SUM)}, {v(SUM+2)}")
    a(f"ds_bpermute_b32 {v(SUM+1)}, {v(vX32)}, {v(SUM)}")
    a("s_waitcnt lgkmcnt(0)")
    a(f"v_add_f32 {v(SUM)}, {v(SUM)}, {v(SUM+1)}")
    lab_out = a.newlabel("L_out")
    a("s_cmp_lg_u32 s51, 0")
    a(f"s_cbranch_scc1 {lab_out}")
    lo = 2.0 ** -40 if 'forcemax' not in EXP else 2.0 ** 39
    a(f"v_mov_b32 {v(T1)}, {hex_f32(lo)}")
    a(f"v_mov_b32 {v(T0)}, {hex_f32(2.0**40)}")
    a(f"v_cmp_lt_f32 s[52:53], {v(T1)}, {v(SUM)}")
    a(f"v_cmp_lt_f32 s[54:55], {v(SUM)}, {v(T0)}")
    a("s_nop 3")
    a("s_and_b64 s[52:53], s[52:53], s[54:55]")
    a("s_cmp_eq_u64 s[52:53], exec")
    a(f"s_cbranch_scc1 {lab_out}")
    a("s_mov_b32 s51, 1")
    a(f"v_mov_b32 {v(VM)}, {v(vNEG)}")

    def maxpart(vK, MK, first_off, step, cnt_expr):
        lp = a.newlabel("L_mx"); lpe = a.newlabel("L_mxe")
        a(f"v_add_u32 {v(T0)}, {first_off}, {v(vK[0])}")
        a(f"v_add_u32 {v(T1)}, {first_off}, {v(vK[1])}")
        cnt_expr()

        def tile(C):
            a(f"ds_read_b128 {v(KB_[0],4)}, {v(T0)}")
            a(f"ds_read_b128 {v(KB_[0]+4,4)}, {v(T1)}")
            a("s_waitcnt lgkmcnt(0)")
            a(f"v_mfma_f32_32x32x16_bf16 {v(SA,16)}, {v(KB_[0],4)}, {v(QF,4)}, {v(C,16)}")
            a(f"v_mfma_f32_32x32x16_bf16 {v(SA,16)}, {v(KB_[0]+4,4)}, {v(QF+4,4)}, {v(SA,16)}")
            a("s_nop 7"); a("s_nop 7"); a("s_nop 7")
            for r in range(0, 16, 2):
                a(f"v_max3_f32 {v(VM)}, {v(VM)}, {v(SA+r)}, {v(SA+r+1)}")
            a(f"v_add_u32 {v(T0)}, {step}, {v(T0)}")
            a(f"v_add_u32 {v(T1)}, {step}, {v(T1)}")
        tile(MK)
        a.label(lp)
        a("s_cmp_eq_u32 s52, 0")
        a(f"s_cbranch_scc1 {lpe}")
        tile(CM)
        a("s_sub_u32 s52, s52, 1")
        a(f"s_branch {lp}")
        a.label(lpe)

    maxpart(vK1, MK1, 7 * 2048, -2048, lambda: a("s_mov_b32 s52, s44"))
    lmx = a.newlabel("L_mxd")
    a("s_cmp_eq_u32 s28, 0")
    a(f"s_cbranch_scc1 {lmx}")
    maxpart(vK2, MK2, 0, 2048, lambda: a("s_sub_u32 s52, 7, s44"))
    a.label(lmx)
    a(f"ds_bpermute_b32 {v(T0)}, {v(vX32)}, {v(VM)}")
    a("s_waitcnt lgkmcnt(0)")
    a(f"v_max_f32 {v(VM)}, {v(VM)}, {v(T0)}")
    a(f"v_sub_f32 {v(VM)}, 0, {v(VM)}")
    a(f"s_branch {lab_start}")

    a.label(lab_out)
    a(f"v_rcp_f32 {v(SUM)}, {v(SUM)}")
    if G.NL:
        a("s_lshl_b32 s3, s28, 1")
        a("s_lshr_b32 s46, s44, 2")
        a("s_add_u32 s3, s3, s46")
        a("s_lshl_b32 s3, s3, 5")
        a("s_add_u32 s3, s3, s29")
        a("s_lshl_b32 s3, s3, 2")
        a("s_and_b32 s46, s44, 3")
        a("s_add_u32 s3, s3, s46")
        a("s_lshl_b32 s100, s99, 7")
        a("s_lshl_b32 s3, s3, 11")
    elif G.OT:
        a("s_lshl_b32 s3, s28, 1")
        a("s_lshr_b32 s46, s44, 2")
        a("s_add_u32 s3, s3, s46")
        a("s_lshl_b32 s3, s3, 4")
        a("s_lshr_b32 s46, s29, 1")
        a("s_add_u32 s3, s3, s46")
        a("s_lshl_b32 s3, s3, 2")
        a("s_and_b32 s46, s44, 3")
        a("s_add_u32 s3, s3, s46")
        a(f"s_lshl_b32 s3, s3, {5+G.TSH}")
        a("s_and_b32 s46, s29, 1")
        a("s_lshl_b32 s46, s46, 6")
        a("s_add_u32 s3, s3, s46")
        a(f"v_lshlrev_b32 {v(T0)}, {G.TSH}, {v(vQQ)}")
        a(f"v_lshl_add_u32 {v(T0)}, {v(vHH)}, 3, {v(T0)}")
        a(f"v_add_u32 {v(T0)}, s3, {v(T0)}")
    else:
        a("s_lshl_b32 s3, s28, 8")
        a("s_lshl_b32 s46, s44, 5")
        a("s_add_u32 s3, s3, s46")
        a(f"v_add_u32 {v(T0)}, s3, {v(vQQ)}")
        a(f"v_lshlrev_b32 {v(T0)}, 11, {v(T0)}")
        a(f"v_lshl_add_u32 {v(T0)}, {v(vHH)}, 3, {v(T0)}")
        a("s_lshl_b32 s3, s29, 6")
        a(f"v_add_u32 {v(T0)}, s3, {v(T0)}")
    a("s_nop 7")
    for j in range(2 if G.NL else 0):
        for r in range(8):
            a(f"v_mul_f32 v{OA+8*j+r}, v{OA+8*j+r}, {v(SUM)}")
        for r in range(4):
            a(f"v_cvt_pk_bf16_f32 v{OA+8*j+r}, v{OA+8*j+2*r}, v{OA+8*j+2*r+1}")
        a(f"buffer_store_dwordx4 {v(OA+8*j,4)}, {v(vL16)}, s[12:15], s3 offen offset:{1024*j} {'sc0 sc1' if G.FZ else ''}")
    for g in range(0 if G.NL else 4):
        for r in range(4):
            a(f"v_mul_f32 v{OA+4*g+r}, v{OA+4*g+r}, {v(SUM)}")
        a(f"v_cvt_pk_bf16_f32 v{OA+4*g}, v{OA+4*g}, v{OA+4*g+1}")
        a(f"v_cvt_pk_bf16_f32 v{OA+4*g+1}, v{OA+4*g+2}, v{OA+4*g+3}")
        a(f"buffer_store_dwordx2 {v(OA+4*g,2)}, {v(T0)}, s[12:15], 0 offen offset:{16*g}")
    if 'stamp' in EXP and not G.FZ: a("s_waitcnt vmcnt(0)")
    stamp(7)
    stamp_out()
    if G.FZ: G.publish(a, 'P_oproj', 0)
    else: a(f"s_branch {end}")

    a.label(lab_lre)
    a("s_lshl_b32 s3, s30, 6")
    a(f"v_lshrrev_b32 {v(t0)}, 3, v1")
    a(f"v_add_u32 {v(t0)}, s3, {v(t0)}")
    for i in range(PA):
        a(f"v_add_u32 {v(t1)}, {8*i}, {v(t0)}")
        a(f"v_lshrrev_b32 {v(t2)}, 1, {v(t1)}")
        a(f"v_and_b32 {v(t2)}, 7, {v(t2)}")
        a(f"v_and_b32 {v(t3)}, 7, v1")
        a(f"v_xor_b32 {v(t2)}, {v(t2)}, {v(t3)}")
        a(f"v_add_u32 {v(t1)}, s98, {v(t1)}")
        a(f"v_mul_u32_u24 {v(t1)}, {lda}, {v(t1)}")
        a(f"v_lshl_add_u32 {v(vA[i])}, {v(t2)}, 4, {v(t1)}")
    a("s_lshl_b32 s3, s29, 6")
    for i in range(PB):
        a(f"s_mul_i32 s46, s30, {PB}")
        a(f"s_add_u32 s46, s46, {i}")
        a("s_lshr_b32 s47, s46, 2")
        a("s_and_b32 s46, s46, 3")
        a("s_lshl_b32 s46, s46, 4")
        a("s_lshl_b32 s47, s47, 11")
        a("s_add_u32 s47, s47, s3")
        a(f"v_lshrrev_b32 {v(t0)}, 2, v1")
        a(f"v_add_u32 {v(t0)}, s46, {v(t0)}")
        a(f"v_and_b32 {v(t1)}, 3, v1")
        a(f"v_bfe_u32 {v(t2)}, {v(t0)}, 3, 1")
        a(f"v_lshlrev_b32 {v(t2)}, 1, {v(t2)}")
        a(f"v_xor_b32 {v(t1)}, {v(t1)}, {v(t2)}")
        a(f"v_mul_u32_u24 {v(t0)}, {N*2}, {v(t0)}")
        a(f"v_lshl_add_u32 {v(t0)}, {v(t1)}, 4, {v(t0)}")
        a(f"v_add_u32 {v(vB[i])}, s47, {v(t0)}")
    a(f"s_branch {lab_lpass}")
    if G.FZ:
        a.label("Q_help")
        a(f"s_load_dwordx2 s[24:25], s[0:1], {ARG['ws']}")
        a(f"s_load_dwordx2 s[58:59], s[0:1], {ARG['x']}")
        a(f"s_load_dwordx2 s[26:27], s[0:1], {ARG['wqkv']}")
        a("v_readlane_b32 s34, v255, 1")
        a("v_readlane_b32 s35, v255, 2")
        a("s_branch Q_go")
    a.label(end)
    a("s_endpgm")
    return dict(name=name, grid=256, block=512, lds=lds, desc=G.kernel_desc(name, 256))
```

```python
import sys, math, os
EXP=os.environ.get('EXP','')
STMOD=os.environ.get('STMOD','sc0 sc1')
STALL=os.environ.get('STALL','')
RPM=int(os.environ.get('RPM','2'))
PFS=int(os.environ.get('PFS','4'))

OUT = os.environ.get("OUTF","sequential_preLN__sliding_block__mixer_channel_mlp__prompt.s")

S = 2048; D = 1024; F = 3584; H = 32; DH = 32; WIN = 256
ARG = dict(x=0, wqkv=8, wo=16, bx=24, w1=32, b1=40, w2=48, b2=56, out=64, dbg=72, ws=80)
MB = 1 << 20
WS_Y1 = 0
WS_QKV = 4 * MB
TP = int(os.environ.get('TP', '128')); TX = TP // 128; TSH = 7 + TX.bit_length() - 1
OT = 'noot' not in EXP
C3 = 'noc3' not in EXP
QC3 = 'qc3' in EXP
FZ = 'fz' in EXP
SK2 = FZ and 'nosk' not in EXP
NL = 'nl' in EXP or FZ
WS_O = 16 * MB
WS_H = 24 * MB
WS_Y2 = 24 * MB
WS_H1 = 32 * MB
WS_W2C = 62 * MB
WS_WOC = 64 * MB
WS_ST = 0
WS_CS = 1 * MB
WS_SIZE = 256 * MB
WS_FLAG = 2 * MB
WS_W2T = 72 * MB
WS_W1T = 88 * MB
W1T = 'w1t' in EXP
WS_FL = 3 * MB + 262144
CTRL = 163840 - 64
WS_PART = 80 * MB
LDH1 = F * 2 * TX


class Asm:
    def __init__(self):
        self.lines = []
        self.nlab = 0

    def __call__(self, s):
        self.lines.append("    " + s)

    def label(self, l):
        self.lines.append(l + ":")

    def newlabel(self, base="L"):
        self.nlab += 1
        return f"{base}_{self.nlab}"

    def c(self, s):
        self.lines.append("    ; " + s)

    def dry_begin(self, wave_sreg, idx_sreg, nw=4):
        self.dry = dict(ret=self.newlabel("L_dret"), disp=self.newlabel("L_ddisp"), done=self.newlabel("L_ddone"),
                        ent=[], idx=idx_sreg, nw=nw)
        self(f"s_mov_b32 s{idx_sreg}, s{wave_sreg}")
        self("s_mov_b64 exec, 0")
        self(f"s_branch {self.dry['disp']}")
        self.label(self.dry['done'])
        self("s_mov_b64 exec, -1")

    def dry_entry(self):
        l = self.newlabel("L_dent")
        self.label(l)
        self.dry['ent'].append(l)

    def dry_exit(self):
        self(f"s_cbranch_execz {self.dry['ret']}")

    def dry_mark(self):
        self.dry_exit(); self.dry_entry()

    def dry_dispatch(self):
        d = self.dry
        self.label(d['ret'])
        self(f"s_add_u32 s{d['idx']}, s{d['idx']}, {d['nw']}")
        self.label(d['disp'])
        for i, l in enumerate(d['ent']):
            self(f"s_cmp_eq_u32 s{d['idx']}, {i}")
            self(f"s_cbranch_scc1 {l}")
        self(f"s_branch {d['done']}")


def v(i, n=1):
    return f"v{i}" if n == 1 else f"v[{i}:{i+n-1}]"


def s(i, n=1):
    return f"s{i}" if n == 1 else f"s[{i}:{i+n-1}]"


def srd(a, d, base, off, nbytes):
    if off:
        a(f"s_add_u32 s{d}, s{base}, {off}")
        a(f"s_addc_u32 s{d+1}, s{base+1}, 0")
    else:
        a(f"s_mov_b32 s{d}, s{base}")
        a(f"s_mov_b32 s{d+1}, s{base+1}")
    a(f"s_and_b32 s{d+1}, s{d+1}, 0xffff")
    a(f"s_mov_b32 s{d+2}, {nbytes}")
    a(f"s_mov_b32 s{d+3}, 0x00020000")


def c3_write(a):
    x = 246
    lw = a.newlabel("L_c3w")
    a("s_cmp_lg_u32 s49, 1")
    a(f"s_cbranch_scc1 {lw}")
    a("v_readlane_b32 s3, v255, 5")
    a(f"v_mov_b32 {v(x+5)}, {CTRL}")
    a("s_nop 1")
    a(f"v_mov_b32 {v(x+6)}, s3")
    a(f"ds_write_b32 {v(x+5)}, {v(x+6)} offset:4")
    a("s_waitcnt lgkmcnt(0)")
    a.label(lw)


def publish(a, nxt, ph):
    x = 246
    a("s_memrealtime s[96:97]")
    srd(a, 76, 24, WS_FL, 98304)
    a(f"v_lshlrev_b32 {v(x+4)}, 4, v1")
    a("s_waitcnt lgkmcnt(0)")
    for j in range(4):
        a(f"v_mov_b32 {v(x+j)}, s{96+(j&1)}")
    if ph == 2: c3_write(a)
    a("s_cmp_lg_u32 s49, 0")
    a("s_waitcnt vmcnt(0)")
    a("s_barrier")
    a(f"s_cbranch_scc1 {nxt}")
    if 'ftest' in EXP and str(ph) in os.environ.get('FTP', '012'):
        a("v_readlane_b32 s3, v255, 3")
        a("s_and_b32 s46, s2, 63")
        a(f"s_xor_b32 s46, s46, {5 + 7 * ph}")
        a("s_or_b32 s3, s3, s46")
        a("s_cmp_eq_u32 s3, 0")
        a(f"s_cbranch_scc1 {nxt}")
    a("s_mov_b64 exec, 0xff")
    a(f"buffer_store_dwordx4 {v(x,4)}, {v(x+4)}, s[76:79], s100 offen sc0 sc1")
    a("s_mov_b64 exec, -1")
    a(f"s_branch {nxt}")


def fz_poll(a, ph, stamp, x):
    lp = a.newlabel("L_fpoll"); ld = a.newlabel("L_fpolld")
    a("s_cmp_lg_u32 s49, 0")
    a(f"s_cbranch_scc1 {ld}")
    nd = (8 if SK2 else 16) if ph == 3 else 32
    a(f"s_mov_b32 exec_lo, {hex((1 << nd) - 1)}")
    a("s_mov_b32 exec_hi, 0")
    a("v_readlane_b32 s96, v255, 1")
    a("v_readlane_b32 s97, v255, 2")
    a("v_readlane_b32 s47, v255, 6")
    a(f"v_lshlrev_b32 {v(x+4)}, 7, v1")
    if ph == 1:
        a("s_lshr_b32 s3, s28, 1")
        a("s_lshl_b32 s3, s3, 12")
    else:
        a("s_lshl_b32 s3, s28, 11")
        a(f"s_add_u32 s3, s3, {32768*(ph-1)}")
        if ph == 3 and SK2:
            a("s_lshl_b32 s46, s92, 10")
            a("s_add_u32 s3, s3, s46")
    if ph == 2:
        a("s_lshl_b32 s46, s29, 11")
        a("s_sub_u32 s46, s46, 2048")
        a(f"v_add_u32 {v(x+5)}, s3, {v(x+4)}")
        a("s_mov_b32 exec_lo, 0xffff0000")
        a(f"v_add_u32 {v(x+5)}, s46, {v(x+4)}")
        a("s_mov_b32 exec_lo, -1")
        a(f"v_mov_b32 {v(x+4)}, {v(x+5)}")
        a("s_mov_b32 s3, 0")
    a("s_add_u32 s98, s96, 0x1000000")
    a("s_addc_u32 s99, s97, 0")
    a(f"s_mov_b32 s101, {int(os.environ.get('FZPOLL', '200'))}")
    a("v_writelane_b32 v255, 0, 6")
    a("s_cmp_lg_u32 s47, 0")
    a(f"s_cbranch_scc1 {lp}x")
    a.label(lp)
    a(f"buffer_load_dwordx2 {v(x+6,2)}, {v(x+4)}, s[76:79], s3 offen sc0 sc1")
    a("s_waitcnt vmcnt(0)")
    a(f"v_cmp_lt_u64 vcc, s[96:97], {v(x+6,2)}")
    a(f"v_cmp_gt_u64 s[46:47], s[98:99], {v(x+6,2)}")
    a("s_nop 1")
    a("s_and_b64 s[46:47], s[46:47], vcc")
    a("s_sub_u32 s101, s101, 1")
    a("s_cselect_b64 s[46:47], exec, s[46:47]")
    a("s_cmp_lg_u64 s[46:47], exec")
    a(f"s_cbranch_scc1 {lp}")
    a.label(lp + "x")
    a("s_mov_b64 exec, -1")
    a("s_lshr_b32 s3, s101, 31")
    a(f"v_mov_b32 {v(x+4)}, {CTRL}")
    a(f"v_mov_b32 {v(x+5)}, s3")
    a(f"ds_write_b32 {v(x+4)}, {v(x+5)}")
    a("s_cmp_lg_u32 s3, 0")
    stamp(1)
    a("s_waitcnt lgkmcnt(0)")
    a("s_barrier")
    a(f"s_cbranch_scc1 S_fail{ph}")
    a.label(ld)


def fz_t2(a, ph, x):
    a(f"v_mov_b32 {v(x)}, {CTRL}")
    a("s_barrier")
    a(f"ds_read_b32 {v(x)}, {v(x)}")
    a("s_waitcnt lgkmcnt(0)")
    a(f"v_cmp_ne_u32 vcc, 0, {v(x)}")
    a(f"s_cbranch_vccnz S_fail{ph}")


def gen_sched(a):
    go = {1: "P_oproj_go", 2: "P_ffn1_go", 3: "P_ffn2_go", 4: "P_ffn2_go"}
    nd = {1: 32, 2: 32, 3: 8 if SK2 else 16, 4: 1}
    PH = (1, 2, 3, 4) if SK2 else (1, 2, 3)
    for p in PH:
        a.label(f"S_fail{p}")
        if p == 4: c3_write(a)
        a("s_waitcnt vmcnt(0) lgkmcnt(0)")
        a("s_barrier")
        a("v_readlane_b32 s46, v255, 3")
        a("s_lshl_b32 s47, s29, 8")
        a("s_or_b32 s47, s47, s28")
        a(f"v_writelane_b32 v255, s47, {8+2*p}")
        a(f"v_writelane_b32 v255, 0, {9+2*p}")
        a(f"v_writelane_b32 v255, {p}, 3")
        a("s_cmp_lg_u32 s46, 0")
        a("s_cbranch_scc1 S_next")
        a(f"v_writelane_b32 v255, {p}, 4")
        a("s_branch S_next")
    a.label("S_next")
    a("s_setprio 0")
    a("s_nop 1")
    a("v_readlane_b32 s3, v255, 3")
    a("s_nop 3")
    for p in PH[:-1]:
        a(f"s_cmp_eq_u32 s3, {p}")
        a(f"s_cbranch_scc1 S_n{p}")
    for p in PH[::-1]:
        a.label(f"S_n{p}")
        a(f"v_readlane_b32 s46, v255, {8+2*p}")
        a(f"v_readlane_b32 s47, v255, {9+2*p}")
        a("v_readlane_b32 s3, v255, 4")
        a("s_nop 3")
        a("s_and_b32 s28, s46, 15")
        a("s_bfe_u32 s29, s46, 0x40008")
        a(f"s_cmp_lt_u32 s47, {nd[p]}")
        a(f"s_cbranch_scc1 S_d{p}")
        a(f"s_cmp_eq_u32 s3, {p}")
        a(f"s_cselect_b32 s3, 0, {p+1}")
        a("v_writelane_b32 v255, s3, 3")
        a("v_writelane_b32 v255, 1, 6")
        if p == 4: a("v_writelane_b32 v255, 1, 7")
        a(f"s_branch {go[p]}")
        a.label(f"S_d{p}")
        a("s_add_u32 s3, s47, 1")
        a(f"v_writelane_b32 v255, s3, {9+2*p}")
        if p == 1:
            a("s_lshr_b32 s28, s28, 1")
            a("s_mov_b32 s29, s47")
            a("s_branch Q_help")
        elif p == 2:
            a("s_lshl_b32 s3, s29, 4")
            a("s_mov_b32 s29, s47")
            a("s_cmp_lt_u32 s47, 16")
            a(f"s_cbranch_scc1 {go[1]}")
            a("s_add_u32 s3, s3, s47")
            a("s_sub_u32 s3, s3, 16")
            a("s_lshr_b32 s28, s3, 5")
            a("s_and_b32 s29, s3, 31")
            a("s_branch Q_help")
        elif p == 4:
            a("s_xor_b32 s29, s29, 1")
            a(f"s_branch {go[3]}")
        elif SK2:
            a("s_and_b32 s29, s29, 1")
            a("s_lshl_b32 s29, s29, 3")
            a("s_add_u32 s29, s29, s47")
            a(f"s_branch {go[2]}")
        else:
            a("s_mov_b32 s29, s47")
            a(f"s_branch {go[2]}")


def code_pf(a, lab_from, nwaves, wave_sreg, vt, first=0):
    lh = a.newlabel("L_pc"); ls = a.newlabel("L_pcs")
    a(f"s_sub_u32 s3, s{wave_sreg}, {first}")
    a(f"s_cmp_ge_u32 s3, {nwaves}")
    a(f"s_cbranch_scc1 {ls}")
    a("s_getpc_b64 s[46:47]")
    a.label(lh)
    if lab_from:
        a(f"s_add_u32 s46, s46, {lab_from}-{lh}")
        a("s_addc_u32 s47, s47, 0")
    else: lab_from = lh
    a("s_lshl_b32 s3, s3, 13")
    a(f"v_lshl_add_u32 {v(vt)}, v1, 7, s3")
    a(f"v_min_u32 {v(vt)}, L_code_end-{lab_from}-4, {v(vt)}")
    a(f"global_load_dword v254, {v(vt)}, s[46:47]")
    a.label(ls)


def hex_f32(x):
    import struct
    return hex(struct.unpack('<I', struct.pack('<f', x))[0])


def kernel_header(a, name):
    a.lines.append(".p2align 8")
    a.lines.append(f".globl {name}")
    a.lines.append(f".type {name},@function")
    a.label(name)


def kernel_desc(name, nvgpr, nsgpr=102, accum=None):
    nv = ((nvgpr + 7) // 8) * 8
    acc = accum if accum is not None else ((nvgpr + 3) // 4) * 4
    return f""".amdhsa_kernel {name}
  .amdhsa_next_free_vgpr {nv if accum is None else nvgpr}
  .amdhsa_next_free_sgpr {nsgpr}
  .amdhsa_accum_offset {min(acc,256)}
  .amdhsa_group_segment_fixed_size 0
  .amdhsa_kernarg_size 88
  .amdhsa_user_sgpr_count 2
  .amdhsa_user_sgpr_kernarg_segment_ptr 1
  .amdhsa_system_sgpr_workgroup_id_x 1
.end_amdhsa_kernel
"""


def gen_prefetch(a, regions, end_label):
    CH = 32768
    counts = [nbytes // CH for _, nbytes in regions]
    for (_, nbytes), c in zip(regions, counts):
        assert c * CH == nbytes
    total = sum(counts)
    skip = a.newlabel("L_nopf")
    a(f"s_cmp_ge_u32 s2, {total}")
    a(f"s_cbranch_scc1 {skip}")
    base = 0
    for (arg, nbytes), c in zip(regions, counts):
        nxt = a.newlabel("L_pfn")
        a(f"s_cmp_ge_u32 s2, {base + c}")
        a(f"s_cbranch_scc1 {nxt}")
        a(f"s_load_dwordx2 s[4:5], s[0:1], {ARG[arg]}")
        a(f"s_sub_u32 s3, s2, {base}")
        a("s_lshl_b32 s3, s3, 15")
        a("v_lshlrev_b32 v1, 4, v0")
        a("v_add_u32 v1, s3, v1")
        a("s_waitcnt lgkmcnt(0)")
        srd(a, 8, 4, 0, nbytes)
        for j in range(8):
            a(f"v_add_u32 v2, {4096*j}, v1")
            a(f"buffer_load_dwordx4 {v(4+4*j,4)}, v2, s[8:11], 0 offen")
        a("s_waitcnt vmcnt(0)")
        a(f"s_branch {end_label}")
        a.label(nxt)
        base += c
    a.label(skip)
    a(f"s_sub_u32 s2, s2, {total}")
    return total


def tail_prefetch(a, task, lane, regions, vtmp, vdst):
    ntask = 2048
    total = sum(n for _, n in regions)
    per = total // ntask
    assert per * ntask == total and per % 1024 == 0
    nld = per // 1024
    base = 0
    done = a.newlabel("L_pfdone")
    for arg, nbytes in regions:
        cnt = nbytes // per
        assert cnt * per == nbytes
        nxt = a.newlabel("L_pfn")
        a(f"s_cmp_ge_u32 s{task}, {base + cnt}")
        a(f"s_cbranch_scc1 {nxt}")
        a(f"s_load_dwordx2 s[94:95], s[0:1], {ARG[arg]}")
        a(f"s_sub_u32 s93, s{task}, {base}")
        a(f"s_mul_i32 s93, s93, {per}")
        a(f"v_lshlrev_b32 {v(vtmp)}, 4, {v(lane)}")
        a(f"v_add_u32 {v(vtmp)}, s93, {v(vtmp)}")
        a("s_waitcnt lgkmcnt(0)")
        srd(a, 96, 94, 0, nbytes)
        for j in range(nld):
            if j and j % 4 == 0:
                a(f"v_add_u32 {v(vtmp)}, 4096, {v(vtmp)}")
            a(f"buffer_load_dwordx4 {v(vdst,4)}, {v(vtmp)}, s[96:99], 0 offen offset:{1024*(j%4)}")
        a(f"s_branch {done}")
        a.label(nxt)
        base += cnt
    a.label(done)
    return nld

def gen_ln(a, name, src_arg, src_off, dst_off, double, pf=None):
    nwg = S // 4
    kernel_header(a, name)
    end = a.newlabel("L_end")
    npf = 0
    a(f"s_cmp_ge_u32 s2, {nwg}")
    a(f"s_cbranch_scc1 {end}")
    a(f"s_load_dwordx2 s[4:5], s[0:1], {ARG[src_arg]}")
    a(f"s_load_dwordx2 s[6:7], s[0:1], {ARG['ws']}")
    a("v_lshrrev_b32 v1, 6, v0")
    a("v_and_b32 v2, 63, v0")
    a("s_lshl_b32 s3, s2, 2")
    a("v_add_u32 v1, s3, v1")
    a("v_lshlrev_b32 v3, 11, v1")
    a("v_lshl_add_u32 v3, v2, 5, v3")
    for i, m in enumerate([1, 2, 4, 8, 16, 32]):
        a(f"v_xor_b32 v{12+i}, {m}, v2")
        a(f"v_lshlrev_b32 v{12+i}, 2, v{12+i}")
    a("s_waitcnt lgkmcnt(0)")
    srd(a, 8, 4, src_off, S * D * 2)
    srd(a, 12, 6, dst_off, S * D * 2)
    a("buffer_load_dwordx4 v[4:7], v3, s[8:11], 0 offen")
    a("buffer_load_dwordx4 v[8:11], v3, s[8:11], 0 offen offset:16")
    npl = 0
    if pf:
        a("v_readfirstlane_b32 s92, v1")
        a("s_nop 3")
        npl = tail_prefetch(a, 92, 2, pf, 44, 48)
    a(f"s_waitcnt vmcnt({npl})")

    def unpack():
        for i in range(8):
            a(f"v_lshlrev_b32 v{20+2*i}, 16, v{4+i}")
            a(f"v_and_b32 v{21+2*i}, 0xffff0000, v{4+i}")

    def bfly():
        for i in range(6):
            a(f"ds_bpermute_b32 v41, v{12+i}, v40")
            a("s_waitcnt lgkmcnt(0)")
            a("v_add_f32 v40, v40, v41")

    def norm():
        a("v_add_f32 v40, v20, v21")
        for i in range(2, 16):
            a(f"v_add_f32 v40, v40, v{20+i}")
        bfly()
        a("v_mul_f32 v40, 0x3a800000, v40")
        for i in range(16):
            a(f"v_sub_f32 v{20+i}, v{20+i}, v40")
        a("v_mul_f32 v40, v20, v20")
        for i in range(1, 16):
            a(f"v_fmac_f32 v40, v{20+i}, v{20+i}")
        bfly()
        a("v_mov_b32 v42, 0x3727c5ac")
        a("v_fma_f32 v40, v40, v43, v42")
        a("v_rsq_f32 v40, v40")
        a("s_nop 0")
        for i in range(16):
            a(f"v_mul_f32 v{20+i}, v{20+i}, v40")
        for i in range(8):
            a(f"v_cvt_pk_bf16_f32 v{4+i}, v{20+2*i}, v{21+2*i}")

    a("v_mov_b32 v43, 0x3a800000")
    unpack()
    norm()
    if double:
        unpack()
        norm()
    a("buffer_store_dwordx4 v[4:7], v3, s[12:15], 0 offen")
    a("buffer_store_dwordx4 v[8:11], v3, s[12:15], 0 offen offset:16")
    a.label(end)
    a("s_endpgm")
    return dict(name=name, grid=nwg + npf, block=256, lds=0, desc=kernel_desc(name, 56))


def gen_gemm(a, name, N, K, BN, a_off, w_arg, epi, out_arg, out_off, res_arg=None, res_off=0,
             bias_arg=None, BM=128, NSTAGE=3, RA=4, RBN=8, ln=None, a_arg='ws', pre=False, stats_out=False, lda=None, ldo=None, splitk=None, zero_flags=False, l2pf=0, wpf=None, atile=False, w_off=None, otile=False, w2copy=False, dry=0, epi2=False, spf=None, rtile=False, c3src=None, c3=None, sp2=None, sp3=None, wt7=False, flags=False, sp4=None, endpf=None, alay=None, fz=None):
    import struct
    M = S
    BK = 64
    lda = lda or K * 2
    ldo = ldo or N * 2
    ATILE = ('at_' + name.split('_')[0]) in EXP or atile
    BTILE = ('bt_' + name.split('_')[0]) in EXP or w_off is not None
    ASTEP = BM * TP if ATILE else BK * 2
    NT_M = M // BM
    NT_N = N // BN
    ntiles = NT_M * NT_N
    MT = BM // 2 // 16
    NTW = BN // 2 // 16
    RB = {64: 128, 128: 128, 192: 128, 96: 64, 224: 448, 112: 32}[BN]
    ABYTES = BM * BK * 2
    BBYTES = BK * BN * 2
    STAGE = ABYTES + BBYTES
    PA = ABYTES // 1024 // 4
    PB = BBYTES // 1024 // 4
    assert PA * 4096 == ABYTES and PB * 4096 == BBYTES
    P = PA + PB
    NS = K // BK
    if splitk:
        NSLO, NSHI = splitk
        assert NSLO + NSHI == NS and (NSLO - NSHI) % NSTAGE == 0
        NS = NSHI
        ntiles *= 2
    lds = STAGE * NSTAGE
    CROW = BN * 2 + 16
    CSZ = BM * CROW
    LASTB = (NS - 1) % NSTAGE
    TBL = 2048 if (ln and not pre) else 0
    CBASE = 0 if LASTB * STAGE >= CSZ + TBL else (LASTB + 1) * STAGE
    assert CBASE + CSZ + TBL <= lds
    EPI = lds
    st_res = bool(res_arg) and not splitk
    if splitk:
        DONE = CBASE + CSZ
        assert DONE + 16 <= (LASTB * STAGE if CBASE == 0 else lds)
    st_bias = pre
    if st_res: lds += BM * BN * 2
    if st_bias: lds += 3072 + 4096
    FL = flags and not splitk and not (ln and not pre)
    if FL:
        FLG = lds; lds += 2048
    assert lds <= 163840
    if pre:
        CTAB = EPI + 1024; RTAB = EPI + 2048
    else:
        RTAB = CBASE + CSZ; CTAB = RTAB + 1024
    NEX = (BM * BN * 2 // 4096 if st_res else 0)
    PPR = RB // 32
    lg_ppr = int(math.log2(PPR)) if RB != 448 else 0

    vA = list(range(2, 2 + PA))
    vB = list(range(2 + PA, 2 + PA + PB))
    nxt = 2 + PA + PB
    vXb = [nxt, nxt + 1]; nxt += 2
    vWb = list(range(nxt, nxt + NTW)); nxt += NTW
    vXc = [nxt, nxt + 1]; nxt += 2
    vWc = list(range(nxt, nxt + NTW)); nxt += NTW
    vT = list(range(nxt, nxt + 8)); nxt += 8
    nxt = (nxt + 3) // 4 * 4
    FX = [nxt, nxt + 4 * MT]; nxt += 8 * MT
    FW = [nxt, nxt + 4 * NTW]; nxt += 8 * NTW
    ACC = nxt; nxt += 4 * MT * NTW
    PBI = nxt
    if bias_arg and not pre: nxt += 2 * NTW
    if l2pf or wpf or spf or sp2:
        nxt = (nxt + 3) // 4 * 4
        PFD = nxt; PFV = nxt + 4; nxt += 5
    W2S = 136; W2A = 164
    if splitk:
        PRT = nxt; nxt += 4 * MT * NTW
        PFL = nxt; PFA = nxt + 1; PPA = nxt + 2; nxt += 3
    nvgpr = nxt
    assert nvgpr <= 256
    t0, t1, t2, t3 = vT[0], vT[1], vT[2], vT[3]

    def acc(nt, mt):
        return ACC + 4 * (nt * MT + mt)

    def stamp(i, force=False):
        if 'bst' in EXP and i in (4, 5, 6) and not force: return
        if 'bst' not in EXP and force: return
        if 'stamp' in EXP:
            if ('rt2' in EXP and i in (0, 7)) or fz:
                a(f"s_memrealtime s[{60+2*i}:{61+2*i}]")
            elif 'rt' in EXP and 'rt2' not in EXP and i in (1, 6):
                a(f"s_memrealtime s[{60+2*i}:{61+2*i}]")
                a(f"s_memtime s[{62 if i == 1 else 70}+0:{63 if i == 1 else 71}]".replace("+0","")) if False else None
            else:
                a(f"s_memtime s[{60+2*i}:{61+2*i}]")
            if i >= 6: a("s_waitcnt lgkmcnt(0)")

    def stamp_out():
        if 'stamp' not in EXP: return
        a("s_waitcnt lgkmcnt(0)")
        srd(a, 80, 24, (200 + ({'o':1,'1':2,'2':3}[name[0] if name[0]=='o' else name[3]] if 'rt2' in EXP or fz else 0)) * MB, 1 << 20)
        a("s_lshl_b32 s3, s2, 3")
        a("s_add_u32 s3, s3, s49")
        a("s_lshl_b32 s3, s3, 6")
        a("v_mov_b32 v2, s3")
        for i in range(8):
            a(f"v_mov_b32 v4, s{60+2*i}")
            a(f"v_mov_b32 v5, s{61+2*i}")
            a(f"buffer_store_dwordx2 v[4:5], v2, s[80:83], 0 offen offset:{8*i}")
            a("s_nop 1")

    def wfrag_addr_common():
        a(f"v_lshrrev_b32 {v(t1)}, 4, v1")
        a(f"v_bfe_u32 {v(t0)}, v1, 2, 2")
        a(f"v_lshl_add_u32 {v(t2)}, {v(t1)}, 3, {v(t0)}")
        if RB == 256:
            a(f"v_and_b32 {v(t3)}, 1, {v(t1)}")
            a(f"v_lshl_add_u32 {v(t3)}, {v(t3)}, 2, {v(t0)}")
        elif RB == 128:
            a(f"v_and_b32 {v(t3)}, 1, {v(t1)}")
            a(f"v_lshrrev_b32 {v(t0)}, 1, {v(t0)}")
            a(f"v_lshl_add_u32 {v(t3)}, {v(t3)}, 1, {v(t0)}")
        elif RB in (64, 448):
            a(f"v_and_b32 {v(t3)}, 1, {v(t1)}")
        else:
            a(f"v_mov_b32 {v(t3)}, 0")
        a(f"v_mul_u32_u24 {v(t2)}, {RB}, {v(t2)}")
        a(f"v_and_b32 {v(t0)}, 3, v1")
        a(f"v_lshl_add_u32 {v(t2)}, {v(t0)}, 3, {v(t2)}")
        a(f"v_add_u32 {v(t2)}, {ABYTES}, {v(t2)}")

    def wfrag_addr(dst):
        if RB == 448:
            a("s_mov_b32 s47, 0")
        elif PPR > 1:
            a(f"s_lshr_b32 s47, s46, {lg_ppr}")
            a(f"s_and_b32 s46, s46, {PPR-1}")
        else:
            a("s_mov_b32 s47, s46")
            a("s_mov_b32 s46, 0")
        a(f"s_mul_i32 s47, s47, {64*RB}")
        a(f"v_xor_b32 {v(t0)}, s46, {v(t3)}")
        a(f"v_lshl_add_u32 {v(t0)}, {v(t0)}, 5, {v(t2)}")
        a(f"v_add_u32 {v(dst)}, s47, {v(t0)}")

    def poll(x): fz_poll(a, fz['ph'], stamp, x)
    def t2_wait(x): fz_t2(a, fz['ph'], x)

    def phase_end():
        if fz and fz['next']:
            a("s_lshl_b32 s3, s28, 4")
            a("s_add_u32 s3, s3, s29")
            a("s_lshl_b32 s3, s3, 7")
            a(f"s_add_u32 s100, s3, {32768*fz['ph']}")
            publish(a, fz['next'], fz['ph'])

    end = a.newlabel("L_end")
    if fz:
        a.lines.append(".p2align 6")
        a.label(fz['entry'])
    else:
        kernel_header(a, name)
    stamp(0)
    lab_loader = a.newlabel("L_loader")
    lab_store = a.newlabel("L_store")
    if fz:
        a("v_readlane_b32 s46, v255, 3")
        a("s_setprio 0")
        a("s_nop 2")
        a("s_cmp_lg_u32 s46, 0")
        a("s_cbranch_scc1 S_next")
    else:
        a(f"s_cmp_ge_u32 s2, {ntiles}")
        a(f"s_cbranch_scc1 {end}")
    pos_ld = len(a.lines)
    a(f"s_load_dwordx2 s[24:25], s[0:1], {ARG['ws']}")
    a(f"s_load_dwordx2 s[58:59], s[0:1], {ARG[a_arg]}")
    a(f"s_load_dwordx2 s[26:27], s[0:1], {ARG[w_arg]}")
    a(f"s_load_dwordx2 s[34:35], s[0:1], {ARG[out_arg]}")
    if res_arg:
        a(f"s_load_dwordx2 s[36:37], s[0:1], {ARG[res_arg]}")
    if bias_arg:
        a(f"s_load_dwordx2 s[38:39], s[0:1], {ARG[bias_arg]}")
    lds_ = a.lines[pos_ld:]
    if fz: del a.lines[pos_ld:]
    XSPL = bool(splitk) and RA * RBN == 32
    assert ntiles == 256 and RA * RBN == (16 if splitk and not XSPL else 32) and NT_M % RA == 0 and NT_N % RBN == 0
    XB = NT_N // RBN
    a("s_and_b32 s3, s2, 7")
    a("s_lshr_b32 s46, s2, 3")
    if splitk:
        if XSPL:
            a("s_and_b32 s92, s3, 1")
            a("s_lshr_b32 s3, s3, 1")
            a("s_lshl_b32 s96, s3, 5")
        else:
            a("s_lshr_b32 s92, s46, 4")
            a("s_and_b32 s46, s46, 15")
            a("s_lshl_b32 s96, s3, 4")
        a("s_add_u32 s96, s96, s46")
        a("s_cmp_eq_u32 s92, 0")
        a(f"s_cselect_b32 s93, {NSLO}, {NSHI}")
        a("s_mov_b32 s94, 1")
    a(f"s_lshr_b32 s28, s3, {int(math.log2(XB))}")
    a(f"s_and_b32 s29, s3, {XB-1}")
    a(f"s_mul_i32 s28, s28, {RA}")
    a(f"s_mul_i32 s29, s29, {RBN}")
    a(f"s_lshr_b32 s3, s46, {int(math.log2(RBN))}")
    a("s_add_u32 s28, s28, s3")
    NROT = int(os.environ.get('NROT', '0'))
    if NROT: a(f"s_add_u32 s46, s46, {NROT}")
    a(f"s_and_b32 s3, s46, {RBN-1}")
    a("s_add_u32 s29, s29, s3")
    if fz:
        a.label(fz['entry'] + "_go")
        a.lines.extend(lds_)
    a("v_and_b32 v1, 63, v0")
    a(f"v_lshrrev_b32 {v(vT[0])}, 6, v0")
    a("s_nop 0")
    a(f"v_readfirstlane_b32 s49, {v(vT[0])}")
    a("s_nop 3")
    a("s_and_b32 s30, s49, 3")
    a("s_lshr_b32 s44, s30, 1")
    a("s_and_b32 s45, s30, 1")
    if fz: poll(246)

    WBYTES = NT_N * (K // 2) * 1024 if wt7 else K * N * 2
    def build_srds(rest=False):
        if not rest:
            a("s_waitcnt lgkmcnt(0)")
            srd(a, 4, 58, a_off, M * lda)
            srd(a, 8, 26, w_off or 0, WBYTES)
        srd(a, 12, 34, out_off, M * ldo)
        if res_arg:
            srd(a, 16, 36, res_off, M * N * 2 * (TX if rtile else 1))
        if bias_arg:
            srd(a, 20, 38, 0, N * 2)
        if pre or stats_out:
            srd(a, 84, 24, WS_ST, S * 128)
        if pre:
            srd(a, 88, 24, WS_CS, 16 * N * 4)
        if splitk:
            srd(a, 84, 24, WS_PART, 128 * 65536)
            srd(a, 88, 24, WS_FLAG, 512)

    FS = 'nofs' not in EXP and not splitk and not zero_flags and RB in (128, 448) and BN in (64, 224) and 'nodma' not in EXP
    if FS:
        lab_comp = a.newlabel("L_comp")
        a("s_cmp_lt_u32 s49, 4")
        a(f"s_cbranch_scc1 {lab_comp}")
        pos_ins = len(a.lines)
        a.label(lab_comp)
    else:
        a("s_cmp_ge_u32 s49, 4")
        a(f"s_cbranch_scc1 {lab_loader}")

    a(f"v_and_b32 {v(t0)}, 15, v1")
    if alay == 'o':
        a("s_lshl_b32 s3, s44, 12")
        a(f"v_lshl_add_u32 {v(t0)}, {v(t0)}, 4, s3")
        a(f"v_lshrrev_b32 {v(t1)}, 4, v1")
        a(f"v_lshl_add_u32 {v(vXb[0])}, {v(t1)}, 9, {v(t0)}")
        a(f"v_add_u32 {v(vXb[1])}, 0x2000, {v(vXb[0])}")
    else:
        a("s_lshl_b32 s3, s44, 6")
        a(f"v_add_u32 {v(t0)}, s3, {v(t0)}")
        a(f"v_lshlrev_b32 {v(t0)}, 7, {v(t0)}")
        a(f"v_lshrrev_b32 {v(t1)}, 4, v1")
        a(f"v_bfe_u32 {v(t2)}, v1, 1, 3")
        a(f"v_xor_b32 {v(t3)}, {v(t1)}, {v(t2)}")
        a(f"v_lshl_add_u32 {v(vXb[0])}, {v(t3)}, 4, {v(t0)}")
        a(f"v_xor_b32 {v(t3)}, 4, {v(t3)}")
        a(f"v_lshl_add_u32 {v(vXb[1])}, {v(t3)}, 4, {v(t0)}")
    xoff = (lambda mt: (mt >> 1) * 2048 + (mt & 1) * 256) if alay == 'o' else (lambda mt: mt * 2048)
    wfrag_addr_common()
    a(f"s_mul_i32 s3, s45, {NTW}")
    for nt in range(NTW):
        a(f"s_add_u32 s46, s3, {nt}")
        wfrag_addr(vWb[nt])
    for i in range(4 * MT * NTW):
        a(f"v_mov_b32 v{ACC+i}, 0")
    a("s_mov_b32 s42, 0")
    build_srds()
    if bias_arg and not pre:
        a(f"v_lshrrev_b32 {v(t0)}, 4, v1")
        a(f"v_lshlrev_b32 {v(t0)}, 3, {v(t0)}")
        a(f"s_mul_i32 s3, s29, {BN*2}")
        a(f"s_mul_i32 s46, s45, {BN}")
        a("s_add_u32 s3, s3, s46")
        for nt in range(NTW):
            a(f"buffer_load_dwordx2 {v(PBI+2*nt,2)}, {v(t0)}, s[20:23], s3 offen offset:{32*nt}")

    def set_cur():
        for kk in range(2):
            a(f"v_add_u32 {v(vXc[kk])}, s42, {v(vXb[kk])}")
        for nt in range(NTW):
            a(f"v_add_u32 {v(vWc[nt])}, s42, {v(vWb[nt])}")
        a(f"s_add_u32 s42, s42, {STAGE}")
        a(f"s_cmp_ge_u32 s42, {STAGE*NSTAGE}")
        a("s_cselect_b32 s42, 0, s42")

    def read_list(kk, f):
        if 'noreads' in EXP: return []
        L = []
        for nt in range(NTW):
            if nt < MT:
                L.append(f"ds_read_b128 {v(FX[f]+4*nt,4)}, {v(vXc[kk])} offset:{xoff(nt)}")
            for rd in range(2):
                L.append(f"ds_read_b64_tr_b16 {v(FW[f]+4*nt+2*rd,2)}, {v(vWc[nt])} offset:{kk*32*RB+rd*4*RB}")
        for mt in range(NTW, MT):
            L.append(f"ds_read_b128 {v(FX[f]+4*mt,4)}, {v(vXc[kk])} offset:{xoff(mt)}")
        return L

    def mfma_list(f):
        if 'nomfma' in EXP: return []
        L = []
        for nt in range(NTW):
            for mt in range(MT):
                L.append(f"v_mfma_f32_16x16x32_bf16 {v(acc(nt,mt),4)}, {v(FW[f]+4*nt,4)}, {v(FX[f]+4*mt,4)}, {v(acc(nt,mt),4)}")
        return L

    def reads(kk, f):
        for x in read_list(kk, f): a(x)

    def mfmas(f):
        for x in mfma_list(f): a(x)

    def inter(kk, fr, fm):
        R = read_list(kk, fr); Mm = mfma_list(fm)
        rpm = RPM if NTW <= 4 else 1
        ri = 0
        for i in range(len(Mm)):
            a(Mm[i])
            for _ in range(rpm):
                if ri < len(R): a(R[ri]); ri += 1
        while ri < len(R): a(R[ri]); ri += 1

    SLC = int(os.environ.get('SLC', '1')); SLL = int(os.environ.get('SLL', '1'))
    vRA, vCA, vCV, vFT = vT[4], vT[5], vT[6], vT[7]
    slow = []
    SH = not FL and not splitk and 'nosh' not in EXP
    def blockS(extra=None, tail=()):
        R = read_list(1, 1); Mm = mfma_list(0)
        rpm = RPM if NTW <= 4 else 1
        cur = [f"v_add_u32 {v(vXc[kk])}, s42, {v(vXb[kk])}" for kk in range(2)] + [f"v_add_u32 {v(vWc[nt])}, s42, {v(vWb[nt])}" for nt in range(NTW)]
        cur += [f"s_add_u32 s42, s42, {STAGE}", f"s_cmp_ge_u32 s42, {STAGE*NSTAGE}", "s_cselect_b32 s42, 0, s42"]
        ri = 0; ex_done = False; tail = list(tail)
        for i in range(len(Mm)):
            a(Mm[i])
            k_ = 0
            while k_ < rpm and ri < len(R): a(R[ri]); ri += 1; k_ += 1
            if ri == len(R) and k_ == 0:
                if cur:
                    for _ in range(3):
                        if cur: a(cur.pop(0))
                elif not ex_done:
                    if extra: extra()
                    ex_done = True
                    for x in tail: a(x)
        while ri < len(R): a(R[ri]); ri += 1
        for x in cur: a(x)
        if not ex_done:
            if extra: extra()
            for x in tail: a(x)
        a("s_waitcnt lgkmcnt(0)")
    def blockB(extra=None):
        R = read_list(1, 1); Mm = mfma_list(0)
        rpm = RPM if NTW <= 4 else 1
        HB = int(os.environ.get('FLHB', '4')) if len(Mm) > 16 else int(os.environ.get('FLHS', '2'))
        FP = int(os.environ.get('FLFP', '8')) if len(Mm) > 16 else 0
        cur = [f"v_add_u32 {v(vXc[kk])}, s42, {v(vXb[kk])}" for kk in range(2)] + [f"v_add_u32 {v(vWc[nt])}, s42, {v(vWb[nt])}" for nt in range(NTW)]
        cur += [f"s_add_u32 s42, s42, {STAGE}", f"s_cmp_ge_u32 s42, {STAGE*NSTAGE}", "s_cselect_b32 s42, 0, s42"]
        fr = f"ds_read_b32 {v(vFT)}, {v(vRA)}"
        ri = 0; done_fr = False
        n1 = len(Mm) - HB
        for i in range(n1):
            a(Mm[i])
            k_ = 0
            while k_ < rpm and ri < len(R): a(R[ri]); ri += 1; k_ += 1
            if ri == len(R) and k_ < rpm or (ri == len(R) and k_ == 0):
                if not done_fr and i >= n1 - 1 - FP: a(fr); done_fr = True
                for _ in range(3):
                    if cur: a(cur.pop(0))
        while ri < len(R): a(R[ri]); ri += 1
        if not done_fr: a(fr)
        for x in cur: a(x)
        if extra: extra()
        a(f"v_add_u32 {v(vCV)}, 1, {v(vCV)}")
        a("s_waitcnt lgkmcnt(0)")
        rest = Mm[n1:]
        lsl = a.newlabel("L_fslow"); lbk = a.newlabel("L_fback")
        seq = [[f"ds_write_b32 {v(vCA)}, {v(vCV)}", f"v_cmp_ge_u32 vcc, {v(vCV)}, {v(vFT)}"]]
        for g_ in seq:
            if rest: a(rest.pop(0))
            for x in g_: a(x)
        for x in rest: a(x)
        a(f"s_cbranch_vccnz {lsl}")
        a.label(lbk)
        slow.append((lsl, lbk))

    if 'cpf' in EXP:
        lh = a.newlabel("L_pc")
        a("s_getpc_b64 s[46:47]")
        a.label(lh)
        a(f"v_lshlrev_b32 {v(t0)}, 4, v1")
        a("s_lshl_b32 s3, s30, 10")
        for j in range(int(os.environ.get('NCPF', '4'))):
            a(f"s_min_u32 s92, s3, {end}-{lh}-1024")
            a(f"v_add_u32 {v(t1)}, s92, {v(t0)}")
            a(f"global_load_dwordx4 {v(FX[0],4)}, {v(t1)}, s[46:47]")
            a("s_add_u32 s3, s3, 4096")
        a("s_waitcnt vmcnt(0)")
    if wpf:
        a("s_lshl_b32 s3, s2, 2")
        a("s_add_u32 s3, s3, s30")
        for q, (arg, nbytes, hi) in enumerate(wpf):
            a(f"s_load_dwordx2 s[{94+2*q}:{95+2*q}], s[0:1], {ARG[arg]}")
            a(f"s_mul_i32 s{92+q}, s3, {nbytes//1024}")
        a("s_waitcnt lgkmcnt(0)")
        for q, (arg, nbytes, hi) in enumerate(wpf):
            assert nbytes % (1 << 20) == 0
            srd(a, 84 + 4 * q, 94 + 2 * q, 0, nbytes)
        a(f"v_lshlrev_b32 {v(PFV)}, {PFS}, v1")
    if c3src:
        c_arg, c_rows, c_off = c3src
        assert c_rows * 2 == 7 * 1024 and wpf[0][0] == c_arg and PFS == 4 and wpf[0][2] < 0 and NS == 16 and len(wpf) == 1
        a("s_mul_i32 s3, s3, 7")
        a("v_lshrrev_b32 v2, 3, v1")
        a("v_and_b32 v4, 7, v1")
        a("v_lshlrev_b32 v4, 4, v4")
        a("v_lshl_add_u32 v3, v2, 10, v4")
        a("v_add_u32 v2, s3, v2")
        a("v_and_b32 v5, 1, v2")
        a(f"v_mul_u32_u24 v5, {c_rows*256}, v5")
        a("v_lshrrev_b32 v2, 1, v2")
        a("v_lshl_add_u32 v2, v2, 8, v4")
        a("v_add_u32 v2, v2, v5")
    if spf:
        assert RA * BM == 512 and RBN * BN == 512
        a("s_lshr_b32 s3, s2, 3")
        a("s_lshl_b32 s3, s3, 2")
        a("s_add_u32 s3, s3, s30")
        a(f"s_lshr_b32 s46, s28, {int(math.log2(RA))}")
        if ATILE:
            a(f"s_mul_i32 s46, s46, {RA*BM*lda}")
            a("s_lshr_b32 s47, s3, 4")
            a(f"s_mul_i32 s47, s47, {BM*lda}")
            a("s_add_u32 s46, s46, s47")
            a("s_and_b32 s47, s3, 15")
            a("s_lshl_b32 s47, s47, 13")
            a("s_add_u32 s96, s46, s47")
            astep, arow = 8 * BM * 128, 1024
        else:
            a(f"s_mul_i32 s46, s46, {RA*BM}")
            a("s_lshl_b32 s47, s3, 3")
            a("s_add_u32 s46, s46, s47")
            a(f"s_mul_i32 s96, s46, {lda}")
            astep, arow = 1024, lda
        a("s_sub_u32 s46, s3, 64")
        a(f"s_mul_i32 s46, s46, {8*N*2}")
        a(f"s_lshr_b32 s47, s29, {int(math.log2(RBN))}")
        a("s_lshl_b32 s47, s47, 10")
        a("s_add_u32 s46, s46, s47")
        a(f"s_mov_b32 s97, {512*N*2}")
        a(f"s_mov_b32 s47, {N*2}")
        a("s_cmp_lt_u32 s3, 64")
        a("s_cselect_b32 s96, s96, s46")
        a(f"s_cselect_b32 s97, {astep}, s97")
        a(f"s_cselect_b32 s47, {arow}, s47")
        for i in range(4):
            a(f"s_cselect_b32 s{76+i}, s{4+i}, s{8+i}")
        a(f"v_lshrrev_b32 {v(t0)}, 3, v1")
        a(f"v_and_b32 {v(t1)}, 7, v1")
        a(f"v_mul_u32_u24 {v(t0)}, s47, {v(t0)}")
        a(f"v_lshl_add_u32 {v(PFD+1)}, {v(t1)}, 7, {v(t0)}")

        def spf1():
            a(f"buffer_load_dword {v(PFD)}, {v(PFD+1)}, s[76:79], s96 offen")
            a("s_add_u32 s96, s96, s97")
        for _ in range(spf[0]): spf1()
    if sp2:
        assert RA * BM == 512 and RBN * BN == 512 and ATILE
        W0 = sp2; DD = W0 + 7
        a("s_lshr_b32 s3, s2, 3")
        a("s_lshl_b32 s3, s3, 2")
        a("s_add_u32 s3, s3, s30")
        a(f"s_sub_u32 s98, s3, {W0}")
        a("s_and_b32 s98, s98, 7")
        a(f"s_add_u32 s99, s98, {W0}")
        a("s_lshr_b32 s3, s3, 3")
        a(f"s_and_b32 s46, s28, {-RA & 0xffffffff}")
        a("s_lshr_b32 s47, s3, 1")
        a("s_add_u32 s46, s46, s47")
        a(f"s_mul_i32 s46, s46, {BM*lda}")
        a("s_and_b32 s47, s3, 1")
        a(f"s_mul_i32 s47, s47, {64*TP}")
        a("s_add_u32 s46, s46, s47")
        a(f"s_mul_i32 s47, s99, {ASTEP}")
        a("s_add_u32 s96, s46, s47")
        a("s_sub_u32 s46, s3, 8")
        a("s_lshl_b32 s46, s46, 3")
        a("s_lshl_b32 s47, s99, 6")
        a("s_add_u32 s46, s46, s47")
        a(f"s_mul_i32 s46, s46, {N*2}")
        a(f"s_lshr_b32 s47, s29, {int(math.log2(RBN))}")
        a("s_lshl_b32 s47, s47, 10")
        a("s_add_u32 s46, s46, s47")
        a(f"s_mov_b32 s97, {512*N*2}")
        a(f"s_mov_b32 s47, {N*2}")
        a("s_mov_b32 s93, 7")
        a("s_cmp_lt_u32 s3, 8")
        a("s_cselect_b32 s96, s96, s46")
        a(f"s_cselect_b32 s97, {8*ASTEP}, s97")
        a(f"s_cselect_b32 s47, {8*TP}, s47")
        a(f"s_cselect_b32 s93, {TSH}, s93")
        for i in range(4):
            a(f"s_cselect_b32 s{76+i}, s{4+i}, s{8+i}")
        a(f"v_lshrrev_b32 {v(t0)}, 3, v1")
        a(f"v_and_b32 {v(t1)}, 7, v1")
        a(f"v_mul_u32_u24 {v(t0)}, s47, {v(t0)}")
        a(f"v_lshlrev_b32 {v(t1)}, s93, {v(t1)}")
        a(f"v_add_u32 {v(PFD+1)}, {v(t1)}, {v(t0)}")
        a(f"s_sub_u32 s98, {NS + DD - 8}, s99")

        def spf1():
            a(f"buffer_load_dword {v(PFD)}, {v(PFD+1)}, s[76:79], s96 offen")
            a("s_add_u32 s96, s96, s97")
        if 'sp2late' not in EXP: spf1()
    if sp4:
        assert RA == 8 and RBN * BN * 2 == 1792 and ATILE and TP == 128 and not wt7
        K0, NINI, PHS = sp4
        a("s_lshr_b32 s3, s2, 3")
        a("s_lshl_b32 s3, s3, 2")
        a("s_add_u32 s3, s3, s30")
        a(f"s_and_b32 s46, s28, {-RA & 0xffffffff}")
        a("s_lshr_b32 s47, s3, 3")
        a("s_add_u32 s46, s46, s47")
        a(f"s_mul_i32 s46, s46, {BM*lda}")
        a("s_and_b32 s47, s3, 7")
        a("s_lshl_b32 s47, s47, 13")
        a("s_add_u32 s46, s46, s47")
        a(f"s_add_u32 s96, s46, {K0*ASTEP}")
        a(f"v_lshlrev_b32 {v(t0)}, 7, v1")
        a("s_sub_u32 s46, s3, 64")
        a("s_lshl_b32 s46, s46, 6")
        a(f"v_add_u32 {v(t1)}, s46, v1")
        a(f"s_mov_b32 s47, {((1 << 32) + 13) // 14}")
        a(f"v_mul_hi_u32 {v(t2)}, {v(t1)}, s47")
        a(f"v_mul_u32_u24 {v(t3)}, 14, {v(t2)}")
        a(f"v_sub_u32 {v(t1)}, {v(t1)}, {v(t3)}")
        a(f"v_mul_u32_u24 {v(t2)}, {N*2}, {v(t2)}")
        a(f"v_lshl_add_u32 {v(t1)}, {v(t1)}, 7, {v(t2)}")
        a(f"s_lshr_b32 s47, s29, {int(math.log2(RBN))}")
        a("s_mul_i32 s47, s47, 1792")
        a(f"s_add_u32 s47, s47, {K0*64*N*2}")
        a("s_cmp_ge_u32 s3, 120")
        a("s_cselect_b32 s47, 0x60000000, s47")
        a(f"s_mov_b32 s97, {256*N*2}")
        a("s_cmp_lt_u32 s3, 64")
        a("s_cselect_b64 vcc, -1, 0")
        a("s_cselect_b32 s96, s96, s47")
        a(f"s_cselect_b32 s97, {4*ASTEP}, s97")
        for i in range(4):
            a(f"s_cselect_b32 s{76+i}, s{4+i}, s{8+i}")
        a(f"v_cndmask_b32 v8, {v(t1)}, {v(t0)}, vcc")

        def spf1():
            a(f"buffer_load_dword {v(PFD)}, v8, s[76:79], s96 offen")
            a("s_add_u32 s96, s96, s97")
        for _ in range(NINI): spf1()
        NPH = -(-(NS - K0) // 4) - NINI
    if l2pf:
        NPA = RA * BM // 8
        NPW = BK * (RBN * BN * 2) // 1024
        WPR = RBN * BN * 2 // 1024
        assert NPA + NPW == 128 and WPR == 1
        lw = a.newlabel("L_pfw"); ld = a.newlabel("L_pfd")
        a("s_lshr_b32 s3, s2, 3")
        a("s_lshl_b32 s3, s3, 2")
        a("s_add_u32 s3, s3, s30")
        a(f"s_cmp_ge_u32 s3, {NPA}")
        a(f"s_cbranch_scc1 {lw}")
        a(f"s_lshr_b32 s46, s28, {int(math.log2(RA))}")
        a(f"s_mul_i32 s46, s46, {RA*BM}")
        a("s_lshl_b32 s3, s3, 3")
        a("s_add_u32 s3, s3, s46")
        a(f"v_lshrrev_b32 {v(PFV)}, 3, v1")
        a(f"v_add_u32 {v(PFV)}, s3, {v(PFV)}")
        a(f"v_mul_u32_u24 {v(PFV)}, {lda}, {v(PFV)}")
        a(f"v_and_b32 {v(t0)}, 7, v1")
        a(f"v_lshl_add_u32 {v(PFV)}, {v(t0)}, 4, {v(PFV)}")
        for i in range(4): a(f"s_mov_b32 s{84+i}, s{4+i}")
        a(f"s_mov_b32 s92, {l2pf*BK*2}")
        a(f"s_mov_b32 s93, {BK*2}")
        a(f"s_branch {ld}")
        a.label(lw)
        a(f"s_sub_u32 s3, s3, {NPA}")
        a(f"s_mul_i32 s3, s3, {N*2}")
        a(f"s_lshr_b32 s46, s29, {int(math.log2(RBN))}")
        a(f"s_mul_i32 s46, s46, {RBN*BN*2}")
        a("s_add_u32 s3, s3, s46")
        a(f"v_lshlrev_b32 {v(PFV)}, 4, v1")
        a(f"v_add_u32 {v(PFV)}, s3, {v(PFV)}")
        for i in range(4): a(f"s_mov_b32 s{84+i}, s{8+i}")
        a(f"s_mov_b32 s92, {l2pf*BK*N*2}")
        a(f"s_mov_b32 s93, {BK*N*2}")
        a.label(ld)
        a(f"s_mul_i32 s3, s93, {NSTAGE-1}")
        for j in range(NSTAGE - 1, l2pf):
            a(f"buffer_load_dwordx4 {v(PFD,4)}, {v(PFV)}, s[84:87], s3 offen")
            a("s_add_u32 s3, s3, s93")
    if splitk:
        a("s_xor_b32 s95, s92, 1")
        a(f"v_mov_b32 {v(PFL)}, 0")
        a("s_lshl_b32 s3, s96, 2")
        a(f"v_mov_b32 {v(PFA)}, s3")
        a("s_add_u32 s3, s3, s30")
        a("s_lshl_b32 s3, s3, 14")
        a(f"v_lshlrev_b32 {v(PPA)}, 4, v1")
        a(f"v_add_u32 {v(PPA)}, s3, {v(PPA)}")
    DRY = dry and not splitk
    if DRY:
        a.dry_begin(30, 95)
    if FL:
        a(f"v_and_b32 {v(vRA)}, 3, v1")
        a(f"v_lshlrev_b32 {v(vRA)}, 8, {v(vRA)}")
        a(f"v_lshl_add_u32 {v(vRA)}, v1, 2, {v(vRA)}")
        a(f"v_add_u32 {v(vRA)}, {FLG}, {v(vRA)}")
        a("s_lshl_b32 s3, s30, 8")
        a(f"s_add_u32 s3, s3, {FLG+1024}")
        a(f"v_lshl_add_u32 {v(vCA)}, v1, 2, s3")
        a(f"v_mov_b32 {v(vCV)}, 0")
        a(f"ds_write_b32 {v(vCA)}, {v(vCV)}")
        set_cur()
        a("s_waitcnt lgkmcnt(0)")
    if SH: set_cur()
    if fz and 'fpre' in EXP:
        code_pf(a, None, 2 if fz['next'] else 1, 49, t0, 1)
    if fz:
        lt2 = a.newlabel("L_t2")
        a("s_cmp_eq_u32 s49, 0")
        a(f"s_cbranch_scc1 {lt2}")
        if fz['ph'] == 2 and C3:
            lc = a.newlabel("L_c3c")
            x = FX[0]
            a("s_cmp_lg_u32 s49, 1")
            a(f"s_cbranch_scc1 {lc}")
            a("v_readlane_b32 s96, v255, 1")
            a("v_readlane_b32 s97, v255, 2")
            a(f"v_lshlrev_b32 {v(x+8)}, 7, v1")
            a("s_mov_b32 s3, 0")
            for j in range(4):
                a(f"buffer_load_dwordx2 {v(x+2*j,2)}, {v(x+8)}, s[76:79], s3 offen sc0 sc1")
                a("s_add_u32 s3, s3, 8192")
            a("s_add_u32 s98, s96, 0x1000000")
            a("s_addc_u32 s99, s97, 0")
            a("s_mov_b64 s[46:47], -1")
            a("s_waitcnt vmcnt(0)")
            for j in range(4):
                a(f"v_cmp_lt_u64 vcc, s[96:97], {v(x+2*j,2)}")
                a("s_nop 1")
                a("s_and_b64 s[46:47], s[46:47], vcc")
                a(f"v_cmp_gt_u64 vcc, s[98:99], {v(x+2*j,2)}")
                a("s_nop 1")
                a("s_and_b64 s[46:47], s[46:47], vcc")
            a("s_cmp_eq_u64 s[46:47], exec")
            a("s_cselect_b32 s3, 1, 0")
            a("v_writelane_b32 v255, s3, 5")
            a.label(lc)
        stamp(1)
        t2_wait(246)
        a.label(lt2)
    else: stamp(1)
    lab_cpass = a.newlabel("L_cpass")
    a.label(lab_cpass)
    a("s_barrier")
    stamp(2)
    if not FL and not SH: set_cur()
    reads(0, 0)
    a("s_waitcnt lgkmcnt(0)")
    if FL: blockB()
    elif SH: blockS()
    else:
        inter(1, 1, 0)
        a("s_waitcnt lgkmcnt(0)")
    if splitk: a("s_sub_u32 s48, s93, 1")
    else: a(f"s_mov_b32 s48, {NS-1}")
    if sp2 and 'sp2late' in EXP: spf1()
    if c3src:
        a("s_mov_b32 exec_hi, 0x00ffffff")
        a("buffer_load_dwordx4 v[4:7], v3, s[84:87], s92 offen offset:384")
        a("s_mov_b32 exec_hi, -1")
    loop = a.newlabel("L_cloop")
    a.label(loop)
    if not FL:
        a("s_barrier")
        if not SH: set_cur()
    inter(0, 0, 1)
    a("s_waitcnt lgkmcnt(0)")
    if not FL and not SH: inter(1, 1, 0)
    cutx = len(a.lines)
    if l2pf:
        a(f"buffer_load_dwordx4 {v(PFD,4)}, {v(PFV)}, s[84:87], s92 offen")
        a("s_add_u32 s92, s92, s93")
    if spf and NS > 8 * spf[0]:
        lsp = a.newlabel("L_spf"); lspb = a.newlabel("L_spfb")
        a("s_and_b32 s3, s48, 7")
        a(f"s_cmp_eq_u32 s3, {spf[1]}")
        a(f"s_cbranch_scc1 {lsp}")
        a.label(lspb)
    if sp4:
        lsp = a.newlabel("L_spf"); lspb = a.newlabel("L_spfb")
        a("s_and_b32 s3, s48, 3")
        a(f"s_cmp_eq_u32 s3, {PHS & 3}")
        a(f"s_cbranch_scc1 {lsp}")
        a.label(lspb)
    if sp2:
        lsp = a.newlabel("L_spf"); lspb = a.newlabel("L_spfb")
        a("s_cmp_eq_u32 s48, s98")
        a(f"s_cbranch_scc1 {lsp}")
        a.label(lspb)
    if wpf:
        for q, (arg, nbytes, hi) in enumerate(wpf):
            n = (nbytes >> 20) if PFS == 4 else -(-(nbytes >> 10) // (64 << PFS))
            lsk = a.newlabel("L_wpfs")
            if hi < 0:
                a("s_bitcmp1_b32 s48, 0")
            else:
                a(f"s_sub_u32 s3, s48, {hi-n+1}")
                a(f"s_cmp_ge_u32 s3, {n}")
            a(f"s_cbranch_scc1 {lsk}")
            if PFS == 4:
                a(f"buffer_load_dwordx4 {v(PFD,4)}, {v(PFV)}, s[{84+4*q}:{87+4*q}], s{92+q} offen")
            else:
                a(f"buffer_load_dword {v(PFD)}, {v(PFV)}, s[{84+4*q}:{87+4*q}], s{92+q} offen")
            a(f"s_add_u32 s{92+q}, s{92+q}, {64 << PFS}")
            a.label(lsk)
    if splitk:
        cskip = a.newlabel("L_cskip"); cpoll = a.newlabel("L_cpoll")
        a("s_cmp_lg_u32 s95, 0")
        a(f"s_cbranch_scc1 {cskip}")
        a(f"v_readfirstlane_b32 s3, {v(PFL)}")
        a("s_nop 3")
        a("s_cmp_eq_u32 s3, 0")
        a(f"s_cbranch_scc1 {cpoll}")
        a("s_mov_b32 s95, 1")
        for t_ in range(MT * NTW):
            a(f"s_mov_b32 s3, {1024*t_}")
            a(f"buffer_load_dwordx4 {v(PRT+4*t_,4)}, {v(PPA)}, s[84:87], s3 offen")
        a(f"s_branch {cskip}")
        a.label(cpoll)
        if 'forcefb' not in EXP: a(f"buffer_load_dword {v(PFL)}, {v(PFA)}, s[88:91], 0 offen sc0 sc1")
        a.label(cskip)
    if FL:
        ex = a.lines[cutx:]; del a.lines[cutx:]
        blockB(lambda: a.lines.extend(ex))
    elif SH:
        ex = a.lines[cutx:]; del a.lines[cutx:]
        blockS(lambda: a.lines.extend(ex), ["s_sub_u32 s48, s48, 1", "s_cmp_lg_u32 s48, 0"])
    else: a("s_waitcnt lgkmcnt(0)")
    if not SH:
        a("s_sub_u32 s48, s48, 1")
        a("s_cmp_lg_u32 s48, 0")
    a(f"s_cbranch_scc1 {loop}")
    stamp(3)
    if FL and not epi2: a("s_barrier")
    if c3src:
        srd(a, 76, 24, c_off, 2 * c_rows * 256)
        a("s_waitcnt vmcnt(7)")
        a("s_mov_b32 exec_hi, 0x00ffffff")
        a("buffer_store_dwordx4 v[4:7], v2, s[76:79], 0 offen")
        a("s_mov_b32 exec_hi, -1")
    if epi2:
        FROW = BN * 4 + 16
        assert BM * FROW <= STAGE * NSTAGE and (FROW // 4) % 32 == 4
        a("s_barrier")
        ml = mfma_list(1)
        a(f"v_and_b32 {v(t2)}, 15, v1")
        a("s_lshl_b32 s3, s44, 6")
        a(f"v_add_u32 {v(t2)}, s3, {v(t2)}")
        a(f"v_mul_u32_u24 {v(t2)}, {FROW}, {v(t2)}")
        a(f"v_bfe_u32 {v(t3)}, v1, 4, 1")
        a(f"v_mul_u32_u24 {v(t3)}, {BN*2}, {v(t3)}")
        a(f"v_add_u32 {v(t2)}, {v(t2)}, {v(t3)}")
        a(f"v_lshrrev_b32 {v(t3)}, 5, v1")
        a(f"v_lshl_add_u32 {v(t2)}, {v(t3)}, 4, {v(t2)}")
        a(f"s_mul_i32 s3, s45, {NTW*32}")
        a(f"v_add_u32 {v(t2)}, s3, {v(t2)}")
        wl = [f"ds_write_b128 {v(t2)}, {v(acc(nt,mt),4)} offset:{mt*16*FROW + nt*32}" for nt in range(NTW) for mt in range(MT)]
        for i, x in enumerate(ml):
            a(x)
            if i >= 6: a(wl[i - 6])
        a("s_nop 7")
        a("s_nop 7")
        for x in wl[len(ml) - 6:]: a(x)
        a("s_waitcnt lgkmcnt(0)")
        stamp(4)
        a("s_barrier")
        a(f"s_branch {lab_store}")
    else:
        mfmas(1)
    if ln and not pre:
        a("s_barrier")
    if splitk:
        lab_hi = a.newlabel("L_hi"); lab_epi = a.newlabel("L_epi"); lab_fb = a.newlabel("L_fb")
        a("s_cmp_lg_u32 s92, 0")
        a(f"s_cbranch_scc1 {lab_hi}")
        a("s_nop 7")
        for t_ in range(MT * NTW):
            a(f"s_mov_b32 s3, {1024*t_}")
            a(f"buffer_store_dwordx4 {v(ACC+4*t_,4)}, {v(PPA)}, s[84:87], s3 offen sc0 sc1")
        a("s_waitcnt vmcnt(0)")
        a("s_barrier")
        a("s_cmp_lg_u32 s30, 0")
        a(f"s_cbranch_scc1 {end}")
        a(f"v_mov_b32 {v(t1)}, 1")
        a("s_mov_b64 exec, 1")
        a(f"buffer_store_dword {v(t1)}, {v(PFA)}, s[88:91], 0 offen sc0 sc1")
        a(f"s_branch {end}")
        a.label(lab_hi)
        a("s_lshl_b32 s3, s30, 2")
        a(f"s_add_u32 s3, s3, {DONE}")
        a(f"v_mov_b32 {v(t0)}, s3")
        a(f"v_mov_b32 {v(t1)}, s95")
        a(f"ds_write_b32 {v(t0)}, {v(t1)}")
        a("s_waitcnt lgkmcnt(0)")
        a("s_barrier")
        a("s_cmp_eq_u32 s94, 2")
        a(f"s_cbranch_scc1 {lab_epi}")
        a(f"v_mov_b32 {v(t1)}, {DONE}")
        a(f"ds_read_b128 {v(FX[0],4)}, {v(t1)}")
        a("s_waitcnt lgkmcnt(0)")
        a(f"v_and_b32 {v(FX[0])}, {v(FX[0])}, {v(FX[0]+1)}")
        a(f"v_and_b32 {v(FX[0]+2)}, {v(FX[0]+2)}, {v(FX[0]+3)}")
        a(f"v_and_b32 {v(FX[0])}, {v(FX[0])}, {v(FX[0]+2)}")
        a("s_nop 0")
        a(f"v_readfirstlane_b32 s3, {v(FX[0])}")
        a("s_nop 3")
        a("s_cmp_eq_u32 s3, 1")
        a(f"s_cbranch_scc0 {lab_fb}")
        a("s_waitcnt vmcnt(0)")
        for t_ in range(MT * NTW):
            for j in range(2):
                a(f"v_pk_add_f32 {v(ACC+4*t_+2*j,2)}, {v(ACC+4*t_+2*j,2)}, {v(PRT+4*t_+2*j,2)}")
        a(f"s_branch {lab_epi}")
        a.label(lab_fb)
        a("s_mov_b32 s94, 2")
        a("s_mov_b32 s95, 1")
        a(f"s_mov_b32 s93, {NSLO}")
        a("s_mov_b32 s42, 0")
        a("s_barrier")
        a(f"s_branch {lab_cpass}")
        a.label(lab_epi)
    cut0 = len(a.lines)
    if DRY: a.dry_entry()
    RT = FX[0]; CS = RT + 8; BR = CS + 4 * NTW; BF = BR + 2 * NTW; GE = BF + 4 * NTW
    assert GE + 10 <= ACC
    if alay == 'g32':
        a(f"v_bfe_u32 {v(t2)}, v1, 1, 3")
        a(f"v_and_b32 {v(t3)}, 1, v1")
        a(f"v_lshl_add_u32 {v(t2)}, {v(t3)}, 3, {v(t2)}")
    else:
        a(f"v_and_b32 {v(t2)}, 15, v1")
    a("s_lshl_b32 s3, s44, 6")
    a(f"v_add_u32 {v(t2)}, s3, {v(t2)}")
    a(f"v_lshrrev_b32 {v(t3)}, 4, v1")
    a(f"s_mul_i32 s3, s45, {NTW*4}")
    a(f"v_add_u32 {v(t3)}, s3, {v(t3)}")
    if ln:
        a(f"v_lshlrev_b32 {v(t0)}, 3, {v(t2)}")
        a(f"v_add_u32 {v(t0)}, {RTAB}, {v(t0)}")
        for mt in range(MT):
            a(f"ds_read_b64 {v(RT+2*mt,2)}, {v(t0)} offset:{128*mt}")
        a(f"v_lshlrev_b32 {v(t0)}, 4, {v(t3)}")
        a(f"v_add_u32 {v(t0)}, {CTAB}, {v(t0)}")
        for nt in range(NTW):
            a(f"ds_read_b128 {v(CS+4*nt,4)}, {v(t0)} offset:{64*nt}")
    if bias_arg and pre:
        a(f"v_lshlrev_b32 {v(t0)}, 3, {v(t3)}")
        a(f"v_add_u32 {v(t0)}, {EPI}, {v(t0)}")
        for nt in range(NTW):
            a(f"ds_read_b64 {v(BR+2*nt,2)}, {v(t0)} offset:{32*nt}")
    vc = vT[0]
    a(f"v_mul_u32_u24 {v(t2)}, {CROW}, {v(t2)}")
    a(f"v_lshl_add_u32 {v(vc)}, {v(t3)}, 3, {v(t2)}")
    if CBASE: a(f"v_add_u32 {v(vc)}, {CBASE}, {v(vc)}")
    if epi == 'gelu':
        c2 = 2 * math.log2(math.e)
        k1 = struct.unpack("<I", struct.pack("<f", 0.7978845608 * c2))[0]
        k3 = struct.unpack("<I", struct.pack("<f", 0.7978845608 * 0.044715 * c2))[0]
        a(f"s_mov_b32 s52, {k3}"); a(f"s_mov_b32 s53, {k3}")
        a(f"v_mov_b32 {v(GE+8)}, {k1}"); a(f"v_mov_b32 {v(GE+9)}, {k1}")
        a("s_mov_b32 s56, 1.0"); a("s_mov_b32 s57, 1.0")
    a("s_waitcnt vmcnt(0) lgkmcnt(0)" if (bias_arg and not pre) else "s_waitcnt lgkmcnt(0)")
    a("s_nop 7")
    if bias_arg:
        bsrc = BR if pre else PBI
        for nt in range(NTW):
            for j in range(2):
                a(f"v_lshlrev_b32 {v(BF+4*nt+2*j)}, 16, {v(bsrc+2*nt+j)}")
                a(f"v_and_b32 {v(BF+4*nt+2*j+1)}, 0xffff0000, {v(bsrc+2*nt+j)}")
    for nt in range(NTW):
        if DRY and nt in dry: a.dry_mark()
        for mp in range(0, MT, 2):
            c0 = acc(nt, mp)
            for q in range(2):
                mt = mp + q
                for j in range(2):
                    cc = v(c0 + 4 * q + 2 * j, 2)
                    tt = v(GE + 4 * q + 2 * j, 2)
                    if ln:
                        if bias_arg:
                            a(f"v_pk_fma_f32 {tt}, {v(CS+4*nt+2*j,2)}, {v(RT+2*mt,2)}, {v(BF+4*nt+2*j,2)} op_sel:[0,1,0] op_sel_hi:[1,1,1]")
                        else:
                            a(f"v_pk_mul_f32 {tt}, {v(CS+4*nt+2*j,2)}, {v(RT+2*mt,2)} op_sel:[0,1] op_sel_hi:[1,1]")
                    elif bias_arg:
                        a(f"v_pk_add_f32 {cc}, {cc}, {v(BF+4*nt+2*j,2)}")
            if ln:
                for q in range(2):
                    mt = mp + q
                    for j in range(2):
                        cc = v(c0 + 4 * q + 2 * j, 2)
                        tt = v(GE + 4 * q + 2 * j, 2)
                        a(f"v_pk_fma_f32 {cc}, {cc}, {v(RT+2*mt,2)}, {tt} op_sel:[0,0,0] op_sel_hi:[1,0,1]")
            if epi == 'gelu':
                for j in range(4):
                    a(f"v_pk_mul_f32 {v(GE+2*j,2)}, {v(c0+2*j,2)}, {v(c0+2*j,2)}")
                for j in range(4):
                    a(f"v_pk_fma_f32 {v(GE+2*j,2)}, {v(GE+2*j,2)}, s[52:53], {v(GE+8,2)}")
                for j in range(4):
                    a(f"v_pk_mul_f32 {v(GE+2*j,2)}, {v(GE+2*j,2)}, {v(c0+2*j,2)}")
                for r in range(8):
                    a(f"v_exp_f32 {v(GE+r)}, {v(GE+r)}")
                a("s_nop 0")
                for j in range(4):
                    a(f"v_pk_add_f32 {v(GE+2*j,2)}, {v(GE+2*j,2)}, s[56:57]")
                for r in range(8):
                    a(f"v_rcp_f32 {v(GE+r)}, {v(GE+r)}")
                a("s_nop 0")
                for j in range(4):
                    cc = v(c0 + 2 * j, 2)
                    a(f"v_pk_fma_f32 {cc}, {cc}, {v(GE+2*j,2)}, {cc} neg_lo:[1,0,0] neg_hi:[1,0,0]")
            for j in range(4):
                a(f"v_cvt_pk_bf16_f32 {v(c0+j)}, {v(c0+2*j)}, {v(c0+2*j+1)}")
            for q in range(2):
                a(f"ds_write_b64 {v(vc)}, {v(c0+2*q,2)} offset:{(mp+q)*16*CROW + nt*32}")
    if DRY: a(f"s_cbranch_execz {lab_store}")
    a("s_waitcnt lgkmcnt(0)")
    stamp(4)
    a("s_barrier")
    a(f"s_branch {lab_store}")
    if epi2: del a.lines[cut0:]

    if spf and NS > 8 * spf[0]:
        a.label(lsp)
        spf1()
        a(f"s_branch {lspb}")
    if sp4:
        a.label(lsp)
        a(f"s_sub_u32 s3, {PHS}, s48")
        a(f"s_cmp_ge_u32 s3, {4*NPH}")
        a(f"s_cbranch_scc1 {lspb}")
        spf1()
        a(f"s_branch {lspb}")
    if sp2:
        a.label(lsp)
        a("s_sub_u32 s98, s98, 8")
        a(f"s_cmp_le_u32 s48, {DD}")
        a(f"s_cbranch_scc1 {lspb}")
        spf1()
        a(f"s_branch {lspb}")
    for lsl, lbk in slow:
        a.label(lsl)
        if SLC: a(f"s_sleep {SLC}")
        a(f"ds_read_b32 {v(vFT)}, {v(vRA)}")
        a("s_waitcnt lgkmcnt(0)")
        a(f"v_cmp_ge_u32 vcc, {v(vCV)}, {v(vFT)}")
        a(f"s_cbranch_vccnz {lsl}")
        a(f"s_branch {lbk}")
    pos_l0 = len(a.lines)
    a.label(lab_loader)
    if 'noprio' not in EXP: a("s_setprio 2")
    if w2copy: a(f"s_load_dwordx2 s[94:95], s[0:1], {ARG['w2']}")
    NPL = (BN // 16 + 3) // 4
    LSA = 40
    LCW = 44
    LSC = 48; LCC = 52
    LONE = 56
    LST = 60
    LMS = 132
    LCS = 68
    LSD = 84
    LWD = 100
    assert vT[7] < 40
    NW2 = BN * 2 if BTILE else N * 2
    if FS:
        rs = TP if ATILE else lda
        a(f"v_lshrrev_b32 {v(t0)}, 3, v1")
        a(f"v_lshrrev_b32 {v(t1)}, 4, v1")
        a(f"v_and_b32 {v(t2)}, 7, v1")
        a(f"v_xor_b32 {v(t1)}, {v(t1)}, {v(t2)}")
        if alay == 'o':
            assert TP == 128 and PA == 4
            a(f"s_mul_i32 s3, s28, {BM*lda}")
            a("s_lshl_b32 s46, s30, 12")
            a("s_add_u32 s3, s3, s46")
            a(f"v_lshl_add_u32 {v(vA[0])}, v1, 4, s3")
            a(f"v_mov_b32 {v(t3)}, {v(vA[0])}")
        elif alay:
            assert TP == 128 and PA == 4
            rs = 64
            a(f"v_lshrrev_b32 {v(t3)}, 2, {v(t1)}")
            a(f"v_lshlrev_b32 {v(t3)}, 13, {v(t3)}")
            a(f"v_and_b32 {v(t1)}, 3, {v(t1)}")
            a(f"v_lshl_add_u32 {v(t3)}, {v(t1)}, 4, {v(t3)}")
            a(f"v_lshl_add_u32 {v(t3)}, {v(t0)}, 6, {v(t3)}")
            a(f"s_mul_i32 s3, s28, {BM*lda}")
            a("s_lshl_b32 s46, s30, 11")
            a("s_add_u32 s3, s3, s46")
            a(f"v_add_u32 {v(vA[0])}, s3, {v(t3)}")
            a(f"v_xor_b32 {v(t3)}, 0x2000, {v(vA[0])}")
        else:
            a(f"v_mul_u32_u24 {v(t3)}, {rs}, {v(t0)}")
            a(f"v_lshl_add_u32 {v(t3)}, {v(t1)}, 4, {v(t3)}")
            a(f"s_mul_i32 s3, s28, {BM*lda}")
            a(f"s_mul_i32 s46, s30, {PA*8*rs}")
            a("s_add_u32 s3, s3, s46")
            a(f"v_add_u32 {v(vA[0])}, s3, {v(t3)}")
            a(f"v_xor_b32 {v(t3)}, 64, {v(vA[0])}")
        a(f"v_add_u32 {v(vA[1])}, {8*rs}, {v(t3)}")
        for i in range(2, PA):
            a(f"v_add_u32 {v(vA[i])}, {16*rs}, {v(vA[i-2])}")
        if alay == 'o':
            a(f"v_lshrrev_b32 {v(t3)}, 5, v1")
            a(f"v_and_b32 {v(t0)}, 3, {v(t0)}")
            a(f"v_lshl_add_u32 {v(t0)}, {v(t3)}, 3, {v(t0)}")
        a(f"s_mul_i32 s31, s30, {PA*1024}")
        if fz and c3 is not None:
            a(f"v_mov_b32 v247, {CTRL}")
            a("ds_read_b32 v247, v247 offset:4")
        a("s_waitcnt lgkmcnt(0)")
        srd(a, 4, 58, a_off, M * lda)
        stamp(1)
        for i in range(PA):
            a(f"s_add_u32 m0, s31, {i*1024}")
            if i == 0: a(f"s_mul_i32 s32, s30, {PB*1024}")
            elif i == 1: a(f"s_add_u32 s32, s32, {ABYTES}")
            elif i == 2: a(f"s_mul_i32 s3, s29, {(K//2)*1024 if wt7 else BN*2*(K if BTILE else 1)}")
            elif i == 3: a(f"s_mul_i32 s46, s30, {8192 if wt7 else 16*NW2}")
            else: a("s_nop 0")
            if not fz: a(f"buffer_load_dwordx4 {v(vA[i])}, s[4:7], 0 offen lds")
        a("s_add_u32 s3, s3, s46")
        srd(a, 8, 26, w_off or 0, WBYTES)
        if c3 is not None:
            srd(a, 50, 24, c3, 2 * K * 256)
            a("s_lshr_b32 s47, s29, 3")
            a(f"s_mul_i32 s47, s47, {K*256}")
            a(f"s_mul_i32 s46, s30, {16*256}")
            a("s_add_u32 s47, s47, s46")
            a("s_and_b32 s46, s29, 7")
            if fz:
                a("v_readfirstlane_b32 s54, v247")
                a("s_nop 3")
                a("s_lshl_b32 s54, s54, 3")
                a("s_add_u32 s46, s46, s54")
                a("s_cmp_eq_u32 s46, 11")
            else:
                a("s_cmp_eq_u32 s46, 3")
            a("s_cselect_b32 s3, s47, s3")
            for i in range(3): a(f"s_cselect_b32 s{8+i}, s{50+i}, s{8+i}")
            assert NW2 == 2048
            a("s_cselect_b32 s55, 8, 11")
            a("s_lshl_b32 s54, 1, s55")
            a(f"s_lshl_b32 s46, {4 if alay == 'o' else 8}, s55")
            a("s_lshl_b32 s55, 64, s55")
        if RB == 448:
            a(f"s_mov_b32 s47, {((1 << 32) + 27) // 28}")
            for i in range(PB):
                a(f"v_add_u32 {v(t1)}, {i*64}, v1")
                a(f"v_mul_hi_u32 {v(t0)}, {v(t1)}, s47")
                a(f"v_mul_u32_u24 {v(t2)}, 28, {v(t0)}")
                a(f"v_sub_u32 {v(t1)}, {v(t1)}, {v(t2)}")
                a(f"v_bfe_u32 {v(t2)}, {v(t0)}, 3, 1")
                a(f"v_lshlrev_b32 {v(t2)}, 1, {v(t2)}")
                a(f"v_xor_b32 {v(t1)}, {v(t1)}, {v(t2)}")
                if wt7:
                    a(f"v_and_b32 {v(t2)}, 1, {v(t0)}")
                    a(f"v_mad_u32_u24 {v(t1)}, {v(t2)}, 28, {v(t1)}")
                    a(f"v_cmp_le_u32 vcc, 24, {v(t1)}")
                    a(f"v_lshrrev_b32 {v(t0)}, 1, {v(t0)}")
                    a(f"v_lshlrev_b32 {v(t0)}, 10, {v(t0)}")
                    a(f"v_add_u32 {v(t2)}, 8, {v(t1)}")
                    a(f"v_cndmask_b32 {v(t1)}, {v(t1)}, {v(t2)}, vcc")
                else:
                    a(f"v_mul_u32_u24 {v(t0)}, {NW2}, {v(t0)}")
                a(f"v_lshl_add_u32 {v(t0)}, {v(t1)}, 4, {v(t0)}")
                a(f"s_add_u32 m0, s32, {i*1024}")
                a(f"v_add_u32 {v(vB[i])}, s3, {v(t0)}")
                a(f"buffer_load_dwordx4 {v(vB[i])}, s[8:11], 0 offen lds")
        else:
            assert PB == 2
            a(f"v_bfe_u32 {v(t1)}, v1, 4, 1")
            a(f"v_lshlrev_b32 {v(t1)}, 1, {v(t1)}")
            a(f"v_xor_b32 {v(t1)}, {v(t1)}, {v(t2)}")
            a(f"v_mul_u32_u24 {v(t0)}, {'s54' if c3 is not None else NW2}, {v(t0)}")
            a(f"v_lshl_add_u32 {v(t0)}, {v(t1)}, 4, {v(t0)}")
            a("s_mov_b32 m0, s32")
            a(f"v_add_u32 {v(vB[0])}, s3, {v(t0)}")
            a(f"buffer_load_dwordx4 {v(vB[0])}, s[8:11], 0 offen lds")
            a(f"v_xor_b32 {v(t0)}, 64, {v(vB[0])}")
            a("s_add_u32 m0, s32, 1024")
            a(f"v_add_u32 {v(vB[1])}, {'s46' if c3 is not None else (4 if alay == 'o' else 8)*NW2}, {v(t0)}")
            a(f"buffer_load_dwordx4 {v(vB[1])}, s[8:11], 0 offen lds")
        a(f"s_mov_b32 s40, {ASTEP}")
        a(f"s_mov_b32 s41, {'s55' if c3 is not None else 32768 if wt7 else BK*NW2}")
        a(f"s_mov_b32 s43, {STAGE}")
        a("s_mov_b32 s42, 0")
    cut1 = len(a.lines)
    a(f"s_mul_i32 s3, s30, {PA*8}")
    a(f"v_lshrrev_b32 {v(t0)}, 3, v1")
    a(f"v_add_u32 {v(t0)}, s3, {v(t0)}")
    a(f"s_mul_i32 s3, s28, {BM}")
    for i in range(PA):
        a(f"v_add_u32 {v(t1)}, {8*i}, {v(t0)}")
        a(f"v_lshrrev_b32 {v(t2)}, 1, {v(t1)}")
        a(f"v_and_b32 {v(t2)}, 7, {v(t2)}")
        a(f"v_and_b32 {v(t3)}, 7, v1")
        a(f"v_xor_b32 {v(t2)}, {v(t2)}, {v(t3)}")
        if ATILE:
            a(f"v_lshlrev_b32 {v(t1)}, {TSH}, {v(t1)}")
            a(f"s_mul_i32 s46, s3, {lda}")
            a(f"v_add_u32 {v(t1)}, s46, {v(t1)}")
        else:
            a(f"v_add_u32 {v(t1)}, s3, {v(t1)}")
            a(f"v_mul_u32_u24 {v(t1)}, {lda}, {v(t1)}")
        a(f"v_lshl_add_u32 {v(vA[i])}, {v(t2)}, 4, {v(t1)}")
    a(f"s_mul_i32 s3, s29, {BN*2*(K if BTILE else 1)}")
    NW2 = BN * 2 if BTILE else N * 2
    if RB == 448:
        a(f"s_mov_b32 s47, {((1 << 32) + 27) // 28}")
        for i in range(PB):
            a(f"s_mul_i32 s46, s30, {PB*64}")
            a(f"s_add_u32 s46, s46, {i*64}")
            a(f"v_add_u32 {v(t1)}, s46, v1")
            a(f"v_mul_hi_u32 {v(t0)}, {v(t1)}, s47")
            a(f"v_mul_u32_u24 {v(t2)}, 28, {v(t0)}")
            a(f"v_sub_u32 {v(t1)}, {v(t1)}, {v(t2)}")
            a(f"v_bfe_u32 {v(t2)}, {v(t0)}, 3, 1")
            a(f"v_lshlrev_b32 {v(t2)}, 1, {v(t2)}")
            a(f"v_xor_b32 {v(t1)}, {v(t1)}, {v(t2)}")
            a(f"v_mul_u32_u24 {v(t0)}, {NW2}, {v(t0)}")
            a(f"v_lshl_add_u32 {v(t0)}, {v(t1)}, 4, {v(t0)}")
            a(f"v_add_u32 {v(vB[i])}, s3, {v(t0)}")
    else:
      CPR = RB // 16
      lg_cpr = int(math.log2(CPR))
      RPP = 1024 // RB
      PPB = RB // 16
      lg_ppb = int(math.log2(PPB))
      for i in range(PB):
        a(f"s_mul_i32 s46, s30, {PB}")
        a(f"s_add_u32 s46, s46, {i}")
        a(f"s_lshr_b32 s47, s46, {lg_ppb}")
        a(f"s_and_b32 s46, s46, {PPB-1}")
        a(f"s_mul_i32 s46, s46, {RPP}")
        a(f"s_mul_i32 s47, s47, {RB}")
        a("s_add_u32 s47, s47, s3")
        a(f"v_lshrrev_b32 {v(t0)}, {lg_cpr}, v1")
        a(f"v_add_u32 {v(t0)}, s46, {v(t0)}")
        a(f"v_and_b32 {v(t1)}, {CPR-1}, v1")
        if RB == 256:
            a(f"v_and_b32 {v(t2)}, 3, {v(t0)}")
            a(f"v_bfe_u32 {v(t3)}, {v(t0)}, 3, 1")
            a(f"v_lshl_add_u32 {v(t2)}, {v(t3)}, 2, {v(t2)}")
        elif RB == 128:
            a(f"v_bfe_u32 {v(t2)}, {v(t0)}, 1, 1")
            a(f"v_bfe_u32 {v(t3)}, {v(t0)}, 3, 1")
            a(f"v_lshl_add_u32 {v(t2)}, {v(t3)}, 1, {v(t2)}")
        elif RB == 64:
            a(f"v_bfe_u32 {v(t2)}, {v(t0)}, 3, 1")
        else:
            a(f"v_mov_b32 {v(t2)}, 0")
        a(f"v_lshlrev_b32 {v(t2)}, 1, {v(t2)}")
        a(f"v_xor_b32 {v(t1)}, {v(t1)}, {v(t2)}")
        a(f"v_mul_u32_u24 {v(t0)}, {NW2}, {v(t0)}")
        a(f"v_lshl_add_u32 {v(t0)}, {v(t1)}, 4, {v(t0)}")
        a(f"v_add_u32 {v(vB[i])}, s47, {v(t0)}")
    a(f"s_mul_i32 s31, s30, {PA*1024}")
    a(f"s_mul_i32 s32, s30, {PB*1024}")
    a(f"s_add_u32 s32, s32, {ABYTES}")
    a("s_mov_b32 s40, 0")
    a("s_mov_b32 s41, 0")
    a("s_mov_b32 s43, 0")
    a("s_mov_b32 s42, 0")
    if FS: del a.lines[cut1:]
    assert FS or (c3 is None and not wt7 and not alay)
    if not (FS and not pre): build_srds(FS)
    if zero_flags:
        lz = a.newlabel("L_nz")
        a("s_cmp_lg_u32 s2, 0")
        a(f"s_cbranch_scc1 {lz}")
        srd(a, 92, 24, WS_FLAG, 512)
        a(f"v_lshlrev_b32 {v(t0)}, 3, v1")
        a("v_mov_b32 v44, 0")
        a("v_mov_b32 v45, 0")
        a(f"buffer_store_dwordx2 v[44:45], {v(t0)}, s[92:95], 0 offen")
        a.label(lz)
    if splitk:
        a(f"s_mul_i32 s40, s92, {NSLO*ASTEP}")
        a(f"s_mul_i32 s41, s92, {NSLO*BK*NW2}")
        lab_lpass = a.newlabel("L_lpass")
        a.label(lab_lpass)

    def dma():
        if 'nodma' in EXP: return
        a("s_add_u32 s33, s43, s31")
        for i in range(PA):
            a(f"s_add_u32 m0, s33, {i*1024}")
            a("s_nop 0")
            a(f"buffer_load_dwordx4 {v(vA[i])}, s[4:7], s40 offen lds")
        a("s_add_u32 s33, s43, s32")
        for i in range(PB):
            a(f"s_add_u32 m0, s33, {i*1024}")
            a("s_nop 0")
            a(f"buffer_load_dwordx4 {v(vB[i])}, s[8:11], s41 offen lds")
        a(f"s_add_u32 s40, s40, {ASTEP}")
        a(f"s_add_u32 s41, s41, {'s55' if c3 is not None else 32768 if wt7 else BK*NW2}")
        if 'kwrap' in EXP:
            KW = int(os.environ.get('KW', '8'))
            a(f"s_cmp_ge_u32 s40, {KW*ASTEP}")
            a("s_cselect_b32 s40, 0, s40")
            a("s_cselect_b32 s41, 0, s41")
        a(f"s_add_u32 s43, s43, {STAGE}")
        a(f"s_cmp_ge_u32 s43, {STAGE*NSTAGE}")
        a("s_cselect_b32 s43, 0, s43")

    if not FS: stamp(1)
    def stats_loads():
        a(f"v_and_b32 {v(LSA)}, 15, v1")
        a(f"v_lshlrev_b32 {v(LSA)}, 4, {v(LSA)}")
        a("s_lshl_b32 s3, s30, 8")
        a(f"v_add_u32 {v(LSA)}, s3, {v(LSA)}")
        a(f"v_lshrrev_b32 {v(t1)}, 4, v1")
        a(f"v_lshl_add_u32 {v(t3)}, {v(t1)}, 10, {v(LSA)}")
        a("s_lshl_b32 s3, s28, 14")
        for i in range(4):
            a(f"buffer_load_dwordx4 {v(LSD+4*i,4)}, {v(t3)}, s[84:87], s3 offen")
            a("s_add_u32 s3, s3, 4096")
    if pre and NL:
        if not fz: stats_loads()
    elif pre:
        a(f"v_lshrrev_b32 {v(LSA)}, 1, v1")
        a("s_lshl_b32 s3, s30, 5")
        a(f"v_add_u32 {v(LSA)}, s3, {v(LSA)}")
        a(f"s_mul_i32 s3, s28, {BM}")
        a(f"v_add_u32 {v(t0)}, s3, {v(LSA)}")
        a(f"v_lshlrev_b32 {v(t0)}, 7, {v(t0)}")
        a(f"v_and_b32 {v(t1)}, 1, v1")
        a(f"v_lshl_add_u32 {v(t0)}, {v(t1)}, 6, {v(t0)}")
        for i in range(4):
            a(f"buffer_load_dwordx4 {v(LSD+4*i,4)}, {v(t0)}, s[84:87], 0 offen offset:{16*i}")
    if st_bias:
        a(f"v_lshlrev_b32 {v(t0)}, 4, v1")
        a(f"s_mul_i32 s3, s29, {BN*2}")
        a(f"s_mov_b32 m0, {EPI}")
        a("s_nop 0")
        a(f"buffer_load_dwordx4 {v(t0)}, s[20:23], s3 offen lds")
        def cs_loads():
            a(f"s_mul_i32 s3, s29, {BN*4}")
            a(f"s_mul_i32 s46, s30, {4*N*4}")
            a("s_add_u32 s3, s3, s46")
            if fz: a("s_mov_b32 exec_hi, 0x00ffffff")
            for g_ in range(4):
                a(f"buffer_load_dwordx4 {v(LWD+4*g_,4)}, {v(t0)}, s[88:91], s3 offen")
                a(f"s_add_u32 s3, s3, {N*4}")
            if fz: a("s_mov_b32 exec_hi, -1")
        if not fz: cs_loads()
    if fz:
        for st_ in range(1, NSTAGE - 1):
            for i in range(PB):
                a(f"s_add_u32 m0, s32, {st_*STAGE + i*1024}")
                a("s_nop 0")
                a(f"buffer_load_dwordx4 {v(vB[i])}, s[8:11], s41 offen lds")
            a(f"s_add_u32 s41, s41, {'s55' if c3 is not None else BK*NW2}")
        stamp(4, True)
        t2_wait(246)
        for st_ in range(NSTAGE - 1):
            for i in range(PA):
                a(f"s_add_u32 m0, s31, {st_*STAGE + i*1024}")
                a(f"s_mov_b32 s40, {st_*ASTEP}")
                a(f"buffer_load_dwordx4 {v(vA[i])}, s[4:7], s40 offen lds")
        a(f"s_mov_b32 s40, {(NSTAGE-1)*ASTEP}")
        a(f"s_mov_b32 s43, {(NSTAGE-1)*STAGE}")
        if pre:
            stats_loads()
            cs_loads()
    for _ in range(0 if fz else NSTAGE - 1 - (1 if FS else 0)):
        dma()
    if FS and not pre: build_srds(True)
    if sp3:
        assert RA * BM == 512 and RBN * BN == 512 and ATILE and TP == 128 and c3 is not None
        D0 = NSTAGE - 1 + sp3
        a("s_lshr_b32 s3, s2, 3")
        a("s_lshl_b32 s3, s3, 2")
        a("s_add_u32 s3, s3, s30")
        a(f"s_and_b32 s46, s28, {-RA & 0xffffffff}")
        a("s_lshr_b32 s47, s3, 4")
        a("s_add_u32 s46, s46, s47")
        a(f"s_mul_i32 s46, s46, {BM*lda}")
        a("s_and_b32 s47, s3, 15")
        a("s_lshl_b32 s47, s47, 10")
        a("s_add_u32 s46, s46, s47")
        a(f"s_add_u32 s96, s46, {D0*ASTEP}")
        a("s_add_u32 s98, s96, 384")
        a(f"s_add_u32 s46, s3, {D0*64-64}")
        a(f"s_lshr_b32 s47, s29, {int(math.log2(RBN))}")
        a(f"s_mul_i32 s99, s47, {K*256}")
        a("s_lshl_b32 s97, s46, 8")
        a("s_add_u32 s99, s99, s97")
        a("s_lshl_b32 s47, s47, 10")
        a("s_lshl_b32 s46, s46, 11")
        a("s_add_u32 s46, s46, s47")
        srd(a, 76, 26, 0, K * N * 2)
        a("s_cmp_lt_u32 s3, 64")
        a("s_cselect_b32 s96, s96, s46")
        a("s_cselect_b32 s98, s98, s99")
        a("s_cselect_b32 s97, 14, 17")
        a("s_cselect_b32 s99, 14, 14")
        for i in range(4):
            a(f"s_cselect_b32 s{76+i}, s{4+i}, s{76+i}")
            a(f"s_cselect_b32 s{92+i}, s{4+i}, s{50+i}")
        a("s_lshl_b32 s97, 1, s97")
        a("s_lshl_b32 s99, 1, s99")
        assert ASTEP == 1 << 14
    stamp(2)
    if ln and not pre:
        wfrag_addr_common()
        for i in range(NPL):
            a(f"s_mul_i32 s46, s30, {NPL}")
            a(f"s_add_u32 s46, s46, {i}")
            a(f"s_min_u32 s46, s46, {BN//16-1}")
            wfrag_addr(LCW + i)
        for i in range(4):
            a(f"v_mov_b32 {v(LONE+i)}, 0x3f803f80")
        for i in range(16):
            a(f"v_mov_b32 {v(LMS+i)}, 0")
        a(f"v_and_b32 {v(t0)}, 15, v1")
        a("s_lshl_b32 s3, s30, 5")
        a(f"v_add_u32 {v(t0)}, s3, {v(t0)}")
        a(f"v_lshlrev_b32 {v(t0)}, 7, {v(t0)}")
        a(f"v_lshrrev_b32 {v(t1)}, 4, v1")
        a(f"v_bfe_u32 {v(t2)}, v1, 1, 3")
        a(f"v_xor_b32 {v(t3)}, {v(t1)}, {v(t2)}")
        a(f"v_lshl_add_u32 {v(LSA)}, {v(t3)}, 4, {v(t0)}")
        a(f"v_xor_b32 {v(t3)}, 4, {v(t3)}")
        a(f"v_lshl_add_u32 {v(LSA+1)}, {v(t3)}, 4, {v(t0)}")
        for i in range(4 * NPL):
            a(f"v_mov_b32 {v(LCS+i)}, 0")

    def stats_reads():
        for i in range(2):
            a(f"v_add_u32 {v(LSC+i)}, s42, {v(LSA+i)}")
        for i in range(NPL):
            a(f"v_add_u32 {v(LCC+i)}, s42, {v(LCW+i)}")
        a(f"s_add_u32 s42, s42, {STAGE}")
        a(f"s_cmp_ge_u32 s42, {STAGE*NSTAGE}")
        a("s_cselect_b32 s42, 0, s42")
        for q in range(2):
            for kk in range(2):
                a(f"ds_read_b128 {v(LSD+8*q+4*kk,4)}, {v(LSC+kk)} offset:{2048*q}")
        for i in range(NPL):
            for kk in range(2):
                for rd in range(2):
                    a(f"ds_read_b64_tr_b16 {v(LWD+8*i+4*kk+2*rd,2)}, {v(LCC+i)} offset:{kk*32*RB+rd*4*RB}")

    def stats_math():
        a("s_waitcnt lgkmcnt(0)")
        for i in range(NPL):
            for kk in range(2):
                a(f"v_mfma_f32_16x16x32_bf16 {v(LCS+4*i,4)}, {v(LWD+8*i+4*kk,4)}, {v(LONE,4)}, {v(LCS+4*i,4)}")
        for kk in range(2):
            for q in range(2):
                d = v(LSD + 8 * q + 4 * kk, 4)
                a(f"v_mfma_f32_16x16x32_bf16 {v(LMS+8*q,4)}, {d}, {v(LONE,4)}, {v(LMS+8*q,4)}")
                a(f"v_mfma_f32_16x16x32_bf16 {v(LMS+8*q+4,4)}, {d}, {d}, {v(LMS+8*q+4,4)}")

    nloop = NS - NSTAGE + 1
    if fz:
        for j in range(NSTAGE - 2):
            a(f"s_waitcnt vmcnt({(NSTAGE-2-j)*PA + j*P + (8 if pre else 0)})")
            a("s_barrier")
            dma()
            nloop -= 1
    if splitk: a(f"s_sub_u32 s48, s93, {NSTAGE-1}")
    else: a(f"s_mov_b32 s48, {nloop}")
    lloop = a.newlabel("L_lloop")
    LF, LRA, LCA, LCV, LFT = 44, 52, 53, 54, 55
    if FL:
        lfirst = a.newlabel("L_lfirst")
        a("s_lshl_b32 s3, s30, 8")
        a(f"s_add_u32 s3, s3, {FLG}")
        a(f"v_lshl_add_u32 {v(LRA)}, v1, 2, s3")
        a(f"v_and_b32 {v(LCA)}, 3, v1")
        a(f"v_lshlrev_b32 {v(LCA)}, 8, {v(LCA)}")
        a(f"v_lshl_add_u32 {v(LCA)}, v1, 2, {v(LCA)}")
        a(f"v_add_u32 {v(LCA)}, {FLG+1024}, {v(LCA)}")
        a(f"v_mov_b32 {v(LCV)}, 1")
        a(f"ds_write_b32 {v(LRA)}, {v(LCV)}")
        a(f"s_waitcnt vmcnt({(NSTAGE-2)*P}) lgkmcnt(0)")
        a("s_barrier")
        a(f"s_branch {lfirst}")
        a.label(lloop)
        a(f"v_add_u32 {v(LFT)}, 1, {v(LCV)}")
        a(f"s_waitcnt vmcnt({(NSTAGE-2)*P})")
        a(f"ds_write_b32 {v(LRA)}, {v(LFT)}")
        lpl = a.newlabel("L_lpoll"); lp1 = a.newlabel("L_lpoll1")
        a(f"s_branch {lp1}")
        a.label(lpl)
        if SLL: a(f"s_sleep {SLL}")
        a.label(lp1)
        a(f"ds_read_b32 {v(LF)}, {v(LCA)}")
        a("s_waitcnt lgkmcnt(0)")
        a(f"v_cmp_gt_u32 vcc, {v(LCV)}, {v(LF)}")
        a(f"s_cbranch_vccnz {lpl}")
        a(f"v_mov_b32 {v(LCV)}, {v(LFT)}")
        a.label(lfirst)
    else:
        a.label(lloop)
        a(f"s_waitcnt vmcnt({(NSTAGE-2)*P})")
        a("s_barrier")
    if ln and not pre: stats_reads()
    dma()
    if sp3:
        lsk = a.newlabel("L_sp3")
        a(f"s_cmp_le_u32 s48, {sp3}")
        a(f"s_cbranch_scc1 {lsk}")
        for i in range(8):
            if i == 3: a("s_buffer_load_dwordx2 s[100:101], s[92:95], s98 offset:60")
            else: a(f"s_buffer_load_dwordx2 s[100:101], s[76:79], s96 offset:{128*i+60}")
        a("s_add_u32 s96, s96, s97")
        a("s_add_u32 s98, s98, s99")
        a.label(lsk)
    if ln and not pre: stats_math()
    a("s_sub_u32 s48, s48, 1")
    a("s_cmp_lg_u32 s48, 0")
    a(f"s_cbranch_scc1 {lloop}")
    if endpf:
        e_arg, e_bytes, e_lo, e_n = endpf
        a(f"s_load_dwordx2 s[94:95], s[0:1], {ARG[e_arg]}")
        a("s_lshl_b32 s3, s2, 2")
        a("s_add_u32 s3, s3, s30")
        a(f"s_mul_i32 s3, s3, {e_n*128}")
        if e_lo: a(f"s_add_u32 s3, s3, {e_lo}")
        a(f"v_lshlrev_b32 {v(W2A)}, 7, v1")
        a("s_waitcnt lgkmcnt(0)")
        srd(a, 76, 94, 0, e_bytes)
        a(f"s_mov_b64 exec, {hex((1 << e_n) - 1)}" if e_n <= 32 else f"s_mov_b32 exec_hi, {hex((1 << (e_n - 32)) - 1)}")
        a(f"buffer_load_dword {v(W2S)}, {v(W2A)}, s[76:79], s3 offen")
        a("s_mov_b64 exec, -1")
        NEX += 1
    if pre and NL:
        for i in range(1, 4):
            for j in range(2):
                a(f"v_pk_add_f32 {v(LSD+2*j,2)}, {v(LSD+2*j,2)}, {v(LSD+4*i+2*j,2)}")
        for x in (16, 32):
            a(f"v_xor_b32 {v(t0)}, {x}, v1")
            a(f"v_lshlrev_b32 {v(t0)}, 2, {v(t0)}")
            for j in range(4):
                a(f"ds_bpermute_b32 {v(LSD+4+j)}, {v(t0)}, {v(LSD+j)}")
            a("s_waitcnt lgkmcnt(0)")
            for j in range(2):
                a(f"v_pk_add_f32 {v(LSD+2*j,2)}, {v(LSD+2*j,2)}, {v(LSD+4+2*j,2)}")
        for q in range(2):
            sm, sq, r1, r2 = LSD + 2 * q, LSD + 2 * q + 1, LSD + 4 + 2 * q, LSD + 5 + 2 * q
            a(f"v_mul_f32 {v(sm)}, {hex_f32(1.0/K)}, {v(sm)}")
            a(f"v_mul_f32 {v(sq)}, {hex_f32(1.0/K)}, {v(sq)}")
            a(f"v_fma_f32 {v(sq)}, -{v(sm)}, {v(sm)}, {v(sq)}")
            a(f"v_max_f32 {v(sq)}, 0, {v(sq)}")
            a(f"v_add_f32 {v(r1)}, {hex_f32(1e-5)}, {v(sq)}")
            a(f"v_rsq_f32 {v(r1)}, {v(r1)}")
            a("s_nop 0")
            assert ln == 'double'
            a(f"v_mul_f32 {v(r2)}, {v(r1)}, {v(r1)}")
            a(f"v_mul_f32 {v(r2)}, {v(r2)}, {v(sq)}")
            a(f"v_add_f32 {v(r2)}, {hex_f32(1e-5)}, {v(r2)}")
            a(f"v_rsq_f32 {v(r2)}, {v(r2)}")
            a("s_nop 0")
            a(f"v_mul_f32 {v(r1)}, {v(r1)}, {v(r2)}")
            a(f"v_mul_f32 {v(r2)}, {v(sm)}, {v(r1)}")
            a(f"v_sub_f32 {v(r2)}, 0, {v(r2)}")
        a(f"v_add_u32 {v(LSC)}, {RTAB}, {v(LSA)}")
        a(f"ds_write_b128 {v(LSC)}, {v(LSD+4,4)}")
    if pre and not NL:
        for i in range(1, 8):
            a(f"v_add_f32 {v(LSD)}, {v(LSD)}, {v(LSD+2*i)}")
            a(f"v_add_f32 {v(LSD+1)}, {v(LSD+1)}, {v(LSD+2*i+1)}")
        a("s_nop 1")
        for k_ in range(2):
            a(f"v_add_f32_dpp {v(LST+k_)}, {v(LSD+k_)}, {v(LSD+k_)} quad_perm:[1,0,3,2] row_mask:0xf bank_mask:0xf")
        sm, sq, r1, r2 = LST, LST + 1, LSD, LSD + 1
        a(f"v_mul_f32 {v(sm)}, {hex_f32(1.0/K)}, {v(sm)}")
        a(f"v_mul_f32 {v(sq)}, {hex_f32(1.0/K)}, {v(sq)}")
        a(f"v_fma_f32 {v(sq)}, -{v(sm)}, {v(sm)}, {v(sq)}")
        a(f"v_max_f32 {v(sq)}, 0, {v(sq)}")
        a(f"v_add_f32 {v(r1)}, {hex_f32(1e-5)}, {v(sq)}")
        a(f"v_rsq_f32 {v(r1)}, {v(r1)}")
        a("s_nop 0")
        if ln == 'double':
            a(f"v_mul_f32 {v(r2)}, {v(r1)}, {v(r1)}")
            a(f"v_mul_f32 {v(r2)}, {v(r2)}, {v(sq)}")
            a(f"v_add_f32 {v(r2)}, {hex_f32(1e-5)}, {v(r2)}")
            a(f"v_rsq_f32 {v(r2)}, {v(r2)}")
            a("s_nop 0")
            a(f"v_mul_f32 {v(r1)}, {v(r1)}, {v(r2)}")
        a(f"v_mul_f32 {v(r2)}, {v(sm)}, {v(r1)}")
        a(f"v_sub_f32 {v(r2)}, 0, {v(r2)}")
        a(f"v_lshlrev_b32 {v(LSC)}, 3, {v(LSA)}")
        a(f"v_add_u32 {v(LSC)}, {RTAB}, {v(LSC)}")
        a(f"ds_write_b64 {v(LSC)}, {v(LSD,2)}")
    if pre:
        for g_ in range(1, 4):
            for j in range(2):
                a(f"v_pk_add_f32 {v(LWD+2*j,2)}, {v(LWD+2*j,2)}, {v(LWD+4*g_+2*j,2)}")
        a(f"v_lshlrev_b32 {v(t0)}, 4, v1")
        a(f"v_add_u32 {v(t0)}, {EPI+3072}, {v(t0)}")
        a("s_lshl_b32 s3, s30, 10")
        a(f"v_add_u32 {v(t1)}, s3, {v(t0)}")
        a(f"ds_write_b128 {v(t1)}, {v(LWD,4)}")
        a("s_waitcnt lgkmcnt(0)")
    if st_res:
        npc = BM * BN * 2 // 4096
        rpp = 1024 // (BN * 2)
        lpr = BN * 2 // 16
        a(f"v_lshrrev_b32 {v(t0)}, {int(math.log2(lpr))}, v1")
        RP = TP if rtile else N * 2
        a(f"s_mul_i32 s3, s30, {npc*rpp}")
        if not rtile:
            a(f"s_mul_i32 s46, s28, {BM}")
            a("s_add_u32 s3, s3, s46")
        a(f"v_add_u32 {v(t0)}, s3, {v(t0)}")
        a(f"v_mul_u32_u24 {v(t0)}, {RP}, {v(t0)}")
        a(f"v_and_b32 {v(t1)}, {lpr-1}, v1")
        a(f"v_lshl_add_u32 {v(t0)}, {v(t1)}, 4, {v(t0)}")
        if rtile:
            assert BN == 64
            a(f"s_mul_i32 s3, s29, {BM*TP}")
            a(f"s_mul_i32 s46, s28, {BM*N*2*TX}")
            a("s_add_u32 s3, s3, s46")
        else:
            a(f"s_mul_i32 s3, s29, {BN*2}")
        a(f"v_add_u32 {v(t0)}, s3, {v(t0)}")
        a(f"s_mul_i32 s33, s30, {npc*1024}")
        for i in range(npc):
            a(f"s_add_u32 m0, s33, {EPI + i*1024}")
            a(f"s_mov_b32 s3, {i*rpp*RP}")
            a(f"buffer_load_dwordx4 {v(t0)}, s[16:19], s3 offen lds")
    for j in range(NS - NSTAGE + 1, NS):
        if FL: a(f"v_mov_b32 {v(LCV)}, {j+1 if j < NS-1 else NS+1}")
        a(f"s_waitcnt vmcnt({(NS-1-j)*P + NEX})")
        if FL:
            a(f"ds_write_b32 {v(LRA)}, {v(LCV)}")
            a("s_nop 1")
            if j == NS - 1:
                stamp(3)
                a("s_barrier")
        else: a("s_barrier")
        if pre and j == (NS - 1 if FL else NS - NSTAGE + 1):
            assert NSTAGE >= 3
            lcs = a.newlabel("L_lcs")
            a("s_cmp_lg_u32 s30, 0")
            a(f"s_cbranch_scc1 {lcs}")
            for g_ in range(4):
                a(f"ds_read_b128 {v(LWD+4*g_,4)}, {v(t0)} offset:{1024*g_}")
            a("s_waitcnt lgkmcnt(0)")
            for g_ in range(1, 4):
                for j_ in range(2):
                    a(f"v_pk_add_f32 {v(LWD+2*j_,2)}, {v(LWD+2*j_,2)}, {v(LWD+4*g_+2*j_,2)}")
            a(f"v_subrev_u32 {v(t0)}, {EPI+3072-CTAB}, {v(t0)}")
            a(f"ds_write_b128 {v(t0)}, {v(LWD,4)}")
            a("s_waitcnt lgkmcnt(0)")
            a.label(lcs)
        if ln and not pre:
            stats_reads()
            stats_math()
    if not FL: stamp(3)
    if epi2 and not FL: a("s_barrier")
    if w2copy:
        a("s_lshl_b32 s92, s2, 2")
        a("s_add_u32 s92, s92, s30")
        a(f"v_lshrrev_b32 {v(t0)}, 3, v1")
        a(f"v_and_b32 {v(t1)}, 7, v1")
        a(f"v_lshlrev_b32 {v(t1)}, 4, {v(t1)}")
        a(f"v_lshl_add_u32 {v(W2A)}, {v(t0)}, 11, {v(t1)}")
        a("s_lshr_b32 s3, s92, 6")
        a("s_lshl_b32 s3, s3, 7")
        a("s_and_b32 s46, s92, 63")
        a(f"s_mul_i32 s46, s46, {56*D*2}")
        a("s_add_u32 s3, s3, s46")
        srd(a, 88, 94, 0, F * D * 2)
        for j in range(7):
            a(f"buffer_load_dwordx4 {v(W2S+4*j,4)}, {v(W2A)}, s[88:91], s3 offen")
            a(f"s_add_u32 s3, s3, {8*D*2}")
        def w2store(extra):
            srd(a, 88, 24, WS_W2T, F * D * 2)
            a("s_mul_i32 s3, s92, 7168")
            a(f"v_lshlrev_b32 {v(W2A)}, 4, v1")
            for j in range(7):
                if j == 4: a("s_add_u32 s3, s3, 4096")
                a(f"s_waitcnt vmcnt({6+extra})")
                a(f"buffer_store_dwordx4 {v(W2S+4*j,4)}, {v(W2A)}, s[88:91], s3 offen offset:{1024*(j&3)}")
        if not epi2: w2store(0)
    if ln and not pre:
        a("s_nop 7")
        a(f"v_and_b32 {v(t0)}, 3, v1")
        for r in range(1, 4):
            a(f"v_cmp_eq_u32 s[{48+2*r}:{49+2*r}], {r}, {v(t0)}")
        X0 = LSD
        for i in range(2):
            sm, sq = LST + 2 * i, LST + 2 * i + 1
            r1, r2 = X0 + 2 * i, X0 + 2 * i + 1
            for dst, src in ((sm, LMS + 8 * i), (sq, LMS + 8 * i + 4)):
                a(f"v_cndmask_b32 {v(dst)}, {v(src)}, {v(src+1)}, s[50:51]")
                a(f"v_cndmask_b32 {v(dst)}, {v(dst)}, {v(src+2)}, s[52:53]")
                a(f"v_cndmask_b32 {v(dst)}, {v(dst)}, {v(src+3)}, s[54:55]")
            a(f"v_mul_f32 {v(sm)}, {hex_f32(1.0/K)}, {v(sm)}")
            a(f"v_mul_f32 {v(sq)}, {hex_f32(1.0/K)}, {v(sq)}")
            a(f"v_fma_f32 {v(sq)}, -{v(sm)}, {v(sm)}, {v(sq)}")
            a(f"v_max_f32 {v(sq)}, 0, {v(sq)}")
            a(f"v_add_f32 {v(r1)}, {hex_f32(1e-5)}, {v(sq)}")
            a(f"v_rsq_f32 {v(r1)}, {v(r1)}")
            a("s_nop 0")
            assert ln == 'single'
            a(f"v_mul_f32 {v(r2)}, {v(sm)}, {v(r1)}")
            a(f"v_sub_f32 {v(r2)}, 0, {v(r2)}")
        a(f"v_lshrrev_b32 {v(LSC)}, 7, {v(LSA)}")
        a(f"v_lshlrev_b32 {v(LSC)}, 3, {v(LSC)}")
        a(f"v_add_u32 {v(LSC)}, {RTAB}, {v(LSC)}")
        a(f"v_lshrrev_b32 {v(t0)}, 4, v1")
        a(f"v_lshlrev_b32 {v(t0)}, 4, {v(t0)}")
        for i in range(NPL):
            a(f"s_mul_i32 s46, s30, {NPL}")
            a(f"s_add_u32 s46, s46, {i}")
            a(f"s_min_u32 s46, s46, {BN//16-1}")
            a("s_lshl_b32 s46, s46, 6")
            a(f"s_add_u32 s46, s46, {CTAB}")
            a(f"v_add_u32 {v(LCC+i)}, s46, {v(t0)}")
    if ln and not pre:
        a("s_mov_b32 exec_lo, 0x00f0000f")
        a("s_mov_b32 exec_hi, 0xf0000f00")
        for i in range(2):
            a(f"ds_write_b64 {v(LSC)}, {v(LSD+2*i,2)} offset:{128*i}")
        a("s_mov_b64 exec, -1")
        for i in range(NPL):
            a(f"ds_write_b128 {v(LCC+i)}, {v(LCS+4*i,4)}")
        a("s_waitcnt lgkmcnt(0)")
        a("s_barrier")
    if st_res: a("s_waitcnt vmcnt(0)")
    if splitk:
        lhi = a.newlabel("L_lhi"); lepi = a.newlabel("L_lepi")
        a("s_cmp_lg_u32 s92, 0")
        a(f"s_cbranch_scc1 {lhi}")
        a("s_barrier")
        a(f"s_branch {end}")
        a.label(lhi)
        a("s_barrier")
        a("s_cmp_eq_u32 s94, 2")
        a(f"s_cbranch_scc1 {lepi}")
        a(f"v_mov_b32 {v(t1)}, {DONE}")
        a(f"ds_read_b128 {v(44,4)}, {v(t1)}")
        a("s_waitcnt lgkmcnt(0)")
        a("v_and_b32 v44, v44, v45")
        a("v_and_b32 v46, v46, v47")
        a("v_and_b32 v44, v44, v46")
        a("s_nop 0")
        a("v_readfirstlane_b32 s3, v44")
        a("s_nop 3")
        a("s_cmp_eq_u32 s3, 1")
        a(f"s_cbranch_scc1 {lepi}")
        a("s_mov_b32 s94, 2")
        a(f"s_mov_b32 s93, {NSLO}")
        a("s_mov_b32 s40, 0"); a("s_mov_b32 s41, 0"); a("s_mov_b32 s43, 0")
        a("s_barrier")
        a(f"s_branch {lab_lpass}")
        a.label(lepi)
    stamp(4)
    a("s_barrier")

    if FS:
        a(f"s_branch {lab_store}")
        seg = a.lines[pos_l0:]
        del a.lines[pos_l0:]
        a.lines[pos_ins:pos_ins] = seg
    a.label(lab_store)
    if epi2:
        CPRW = BN // 8
        assert CPRW == 28 and otile
        vL, vR, vO = 2, 3, 4
        CSr, BFr, Dr, RCr, Gr, Or, K1 = 8, 16, [24, 32], [40, 42], 44, [52, 56], 60
        c2 = 2 * math.log2(math.e)
        k1 = struct.unpack("<I", struct.pack("<f", -0.7978845608 * c2))[0]
        k3 = struct.unpack("<I", struct.pack("<f", -0.7978845608 * 0.044715 * c2))[0]
        a("s_setprio 0")
        if NL:
            a("v_bfe_u32 v5, v1, 2, 1")
            a("v_lshl_add_u32 v5, v5, 3, s49")
            a("v_lshrrev_b32 v6, 3, v1")
            a("v_and_b32 v7, 3, v1")
            a("v_lshl_add_u32 v6, v6, 2, v7")
        else:
            a(f"v_cmp_le_u32 s[46:47], {CPRW}, v1")
            a(f"v_mov_b32 v5, 0")
            a(f"v_cndmask_b32 v5, v5, 1, s[46:47]")
            a(f"v_mul_u32_u24 v6, {CPRW}, v5")
            a(f"v_sub_u32 v6, v1, v6")
            a("s_lshl_b32 s3, s49, 1")
            a("v_add_u32 v5, s3, v5")
        a("s_mov_b32 exec_hi, 0x00ffffff")
        a(f"v_lshlrev_b32 v7, 5, v6")
        a(f"v_add_u32 v7, {CTAB}, v7")
        a(f"ds_read_b128 {v(CSr,4)}, v7")
        a(f"ds_read_b128 {v(CSr+4,4)}, v7 offset:16")
        a(f"v_lshlrev_b32 v7, 4, v6")
        a(f"v_add_u32 v62, {EPI}, v7")
        a(f"ds_read_b128 {v(Gr,4)}, v62")
        a(f"v_mul_u32_u24 {v(vL)}, {FROW}, v5")
        a(f"v_add_u32 {v(vL)}, {v(vL)}, v7")
        a(f"v_lshlrev_b32 {v(vR)}, 3, v5")
        a(f"v_add_u32 {v(vR)}, {RTAB}, {v(vR)}")

        def rd(b):
            a(f"ds_read_b128 {v(Dr[b],4)}, {v(vL)}")
            a(f"ds_read_b128 {v(Dr[b]+4,4)}, {v(vL)} offset:{BN*2}")
            a(f"ds_read_b64 {v(RCr[b],2)}, {v(vR)}")
            a(f"v_add_u32 {v(vL)}, {16*FROW}, {v(vL)}")
            a(f"v_add_u32 {v(vR)}, 128, {v(vR)}")
        rd(0)
        a(f"s_mul_i32 s3, s29, {CPRW}")
        a("v_add_u32 v6, s3, v6")
        if NL:
            a("v_lshrrev_b32 v7, 2, v6")
            a("v_lshlrev_b32 v7, 13, v7")
            a("s_lshl_b32 s3, s49, 7")
            a("v_add_u32 v7, s3, v7")
            a("v_and_b32 v6, 7, v1")
        else:
            a("v_lshrrev_b32 v7, 3, v6")
            a(f"v_lshlrev_b32 v7, {TSH+7}, v7")
            a(f"v_lshl_add_u32 v7, v5, {TSH}, v7")
            a("v_and_b32 v6, 7, v6")
        a(f"v_lshl_add_u32 {v(vO)}, v6, 4, v7")
        a(f"s_mul_i32 s50, s28, {BM*ldo}")
        a(f"s_mov_b32 s52, {k3}"); a(f"s_mov_b32 s53, {k3}")
        a(f"v_mov_b32 {v(K1)}, {k1}"); a(f"v_mov_b32 {v(K1+1)}, {k1}")
        a("s_mov_b32 s56, 1.0"); a("s_mov_b32 s57, 1.0")
        a("s_waitcnt lgkmcnt(3)")
        for j in range(4):
            a(f"v_lshlrev_b32 {v(BFr+2*j)}, 16, {v(Gr+j)}")
            a(f"v_and_b32 {v(BFr+2*j+1)}, 0xffff0000, {v(Gr+j)}")
        stamp(5)
        a(f"s_mov_b32 s48, {BM//32}")
        lp = a.newlabel("L_ep")
        a.label(lp)
        for b in range(2):
            rd(1 - b)
            a("s_waitcnt lgkmcnt(3)")
            d = Dr[b]; rc = v(RCr[b], 2)
            for j in range(4):
                a(f"v_pk_fma_f32 {v(Gr+2*j,2)}, {v(CSr+2*j,2)}, {rc}, {v(BFr+2*j,2)} op_sel:[0,1,0] op_sel_hi:[1,1,1]")
            for j in range(4):
                a(f"v_pk_fma_f32 {v(d+2*j,2)}, {v(d+2*j,2)}, {rc}, {v(Gr+2*j,2)} op_sel:[0,0,0] op_sel_hi:[1,0,1]")
            for j in range(4):
                a(f"v_pk_mul_f32 {v(Gr+2*j,2)}, {v(d+2*j,2)}, {v(d+2*j,2)}")
            for j in range(4):
                a(f"v_pk_fma_f32 {v(Gr+2*j,2)}, {v(Gr+2*j,2)}, s[52:53], {v(K1,2)}")
            for j in range(4):
                a(f"v_pk_mul_f32 {v(Gr+2*j,2)}, {v(Gr+2*j,2)}, {v(d+2*j,2)}")
            for r in range(8):
                a(f"v_exp_f32 {v(Gr+r)}, {v(Gr+r)}")
            a("s_nop 0")
            for j in range(4):
                a(f"v_pk_add_f32 {v(Gr+2*j,2)}, {v(Gr+2*j,2)}, s[56:57]")
            for r in range(8):
                a(f"v_rcp_f32 {v(Gr+r)}, {v(Gr+r)}")
            a("s_nop 0")
            for j in range(4):
                a(f"v_pk_mul_f32 {v(d+2*j,2)}, {v(d+2*j,2)}, {v(Gr+2*j,2)}")
            for j in range(4):
                a(f"v_cvt_pk_bf16_f32 {v(Or[b]+j)}, {v(d+2*j)}, {v(d+2*j+1)}")
            a(f"buffer_store_dwordx4 {v(Or[b],4)}, {v(vO)}, s[12:15], s50 offen {STMOD}")
            a(f"s_add_u32 s50, s50, {1024 if NL else 16*TP}")
        a("s_sub_u32 s48, s48, 1")
        a("s_cmp_lg_u32 s48, 0")
        a(f"s_cbranch_scc1 {lp}")
        a("s_mov_b64 exec, -1")
        a("s_waitcnt lgkmcnt(0)")
        if w2copy:
            lw = a.newlabel("L_nw2")
            a("s_cmp_lt_u32 s49, 4")
            a(f"s_cbranch_scc1 {lw}")
            w2store(BM // 16)
            a.label(lw)
        stamp(6)
        if 'stamp' in EXP and not fz: a("s_waitcnt vmcnt(0)")
        stamp(7)
        stamp_out()
        phase_end()
        a.label(end)
        a("s_endpgm")
        return dict(name=name, grid=ntiles, block=512, lds=lds, desc=kernel_desc(name, max(nvgpr, 168)))
    CPRW = BN // 8
    NIT = BM * CPRW // 512
    assert NIT * 512 == BM * CPRW
    magic = ((1 << 32) + CPRW - 1) // CPRW
    a(f"s_mov_b32 s46, {magic}")
    a(f"s_mul_i32 s3, s49, {NIT*64}")
    a(f"v_add_u32 {v(t0)}, s3, v1")
    a(f"s_mul_i32 s3, s28, {BM*ldo if otile else BM}")
    a(f"s_mul_i32 s47, s29, {CPRW if otile else BN*2}")
    if otile and stats_out:
        a(f"s_mul_i32 s50, s28, {BM*128}")
        a(f"s_lshl_b32 s51, s29, {10 if NL else 3}")
        a("s_add_u32 s50, s50, s51")
    R0 = (vT[7] + 4) // 4 * 4
    RR = R0 + 4 * NIT
    OFF = RR + 4 * NIT
    SOF = OFF + NIT
    GT = (SOF + NIT + 3) // 4 * 4
    assert GT + 10 <= 256
    for it in range(NIT):
        a(f"v_add_u32 {v(t1)}, {it*64}, {v(t0)}")
        a(f"v_mul_hi_u32 {v(t2)}, {v(t1)}, s46")
        a(f"v_mul_u32_u24 {v(t3)}, {CPRW}, {v(t2)}")
        a(f"v_sub_u32 {v(t3)}, {v(t1)}, {v(t3)}")
        a(f"v_mul_u32_u24 {v(t1)}, {CROW}, {v(t2)}")
        a(f"v_lshl_add_u32 {v(t1)}, {v(t3)}, 4, {v(t1)}")
        if CBASE: a(f"v_add_u32 {v(t1)}, {CBASE}, {v(t1)}")
        a(f"ds_read_b128 {v(R0+4*it,4)}, {v(t1)}")
        if not otile: a(f"v_add_u32 {v(t2)}, s3, {v(t2)}")
        if stats_out:
            if otile:
                a(f"v_lshl_add_u32 {v(SOF+it)}, {v(t2)}, {3 if NL else 7}, s50")
            else:
                a(f"v_lshlrev_b32 {v(SOF+it)}, 7, {v(t2)}")
                a(f"v_lshl_add_u32 {v(SOF+it)}, s29, 3, {v(SOF+it)}")
        if otile:
            a(f"v_add_u32 {v(t3)}, s47, {v(t3)}")
            a(f"v_lshrrev_b32 {v(t1)}, 3, {v(t3)}")
            a(f"v_lshlrev_b32 {v(t1)}, {TSH+7}, {v(t1)}")
            a(f"v_lshl_add_u32 {v(t1)}, {v(t2)}, {TSH}, {v(t1)}")
            a(f"v_and_b32 {v(t3)}, 7, {v(t3)}")
            a(f"v_lshl_add_u32 {v(t1)}, {v(t3)}, 4, {v(t1)}")
            a(f"v_add_u32 {v(OFF+it)}, s3, {v(t1)}")
        else:
            a(f"v_mul_u32_u24 {v(t2)}, {ldo}, {v(t2)}")
            a(f"v_lshlrev_b32 {v(t3)}, 4, {v(t3)}")
            a(f"v_add_u32 {v(t3)}, s47, {v(t3)}")
            a(f"v_add_u32 {v(OFF+it)}, {v(t3)}, {v(t2)}")
        if st_res:
            a(f"v_lshlrev_b32 {v(t1)}, 4, {v(t0)}")
            a(f"v_add_u32 {v(t1)}, {EPI + it*1024}, {v(t1)}")
            a(f"ds_read_b128 {v(RR+4*it,4)}, {v(t1)}")
        elif res_arg:
            a(f"buffer_load_dwordx4 {v(RR+4*it,4)}, {v(OFF+it)}, s[16:19], 0 offen")
    a("s_waitcnt vmcnt(0) lgkmcnt(0)" if (res_arg and not st_res) else "s_waitcnt lgkmcnt(0)")
    if DRY: a.dry_exit()
    stamp(5)
    for it in range(NIT):
        c0 = R0 + 4 * it
        if res_arg:
            for j in range(4):
                d = c0 + j
                r = RR + 4 * it + j
                a(f"v_lshlrev_b32 {v(GT)}, 16, {v(d)}")
                a(f"v_lshlrev_b32 {v(GT+1)}, 16, {v(r)}")
                a(f"v_and_b32 {v(GT+2)}, 0xffff0000, {v(d)}")
                a(f"v_and_b32 {v(GT+3)}, 0xffff0000, {v(r)}")
                a(f"v_add_f32 {v(GT)}, {v(GT)}, {v(GT+1)}")
                a(f"v_add_f32 {v(GT+2)}, {v(GT+2)}, {v(GT+3)}")
                a(f"v_cvt_pk_bf16_f32 {v(d)}, {v(GT)}, {v(GT+2)}")
        a(f"buffer_store_dwordx4 {v(c0,4)}, {v(OFF+it)}, s[12:15], 0 offen {STMOD if (ln or STALL or (fz and fz['next'])) else ''}")
        if stats_out:
            assert CPRW == 8
            a(f"v_mov_b32 {v(GT+8)}, 0x3f803f80")
            a(f"v_mov_b32 {v(GT)}, 0")
            a(f"v_mov_b32 {v(GT+1)}, 0")
            for j in range(4):
                a(f"v_dot2_f32_bf16 {v(GT)}, {v(c0+j)}, {v(GT+8)}, {v(GT)}")
                a(f"v_dot2_f32_bf16 {v(GT+1)}, {v(c0+j)}, {v(c0+j)}, {v(GT+1)}")
            a("s_nop 3")
            for q_, mode in enumerate(("quad_perm:[1,0,3,2]", "quad_perm:[2,3,0,1]", "row_half_mirror")):
                src = GT + 2 * (q_ & 1); dst = GT + 2 * ((q_ + 1) & 1)
                for k_ in range(2):
                    a(f"v_add_f32_dpp {v(dst+k_)}, {v(src+k_)}, {v(src+k_)} {mode} row_mask:0xf bank_mask:0xf")
                a("s_nop 1")
            a("s_mov_b32 exec_lo, 0x01010101")
            a("s_mov_b32 exec_hi, 0x01010101")
            a(f"buffer_store_dwordx2 {v(GT+2,2)}, {v(SOF+it)}, s[84:87], 0 offen {'sc0 sc1' if fz else ''}")
            a("s_mov_b64 exec, -1")
    stamp(6)
    if 'stamp' in EXP and not (fz and fz['next']): a("s_waitcnt vmcnt(0)")
    stamp(7)
    stamp_out()
    phase_end()
    a.label(end)
    a("s_endpgm")
    if DRY: a.dry_dispatch()
    return dict(name=name, grid=ntiles, block=512, lds=lds, desc=kernel_desc(name, max(nvgpr, GT + 10, 168)))


def gen_attn(a, name, pf=None, colsum=False):
    import struct
    NQB = S // 32
    ntask = H * NQB
    nwg = ntask // 4
    QKV_ROW = 3 * D * 2
    KLDS = 384 * 64
    lds = 2 * KLDS
    kernel_header(a, name)
    end = a.newlabel("L_end")
    npf = 0
    a(f"s_cmp_ge_u32 s2, {nwg + npf}")
    a(f"s_cbranch_scc1 {end}")
    a(f"s_load_dwordx2 s[24:25], s[0:1], {ARG['ws']}")
    a("v_and_b32 v1, 63, v0")
    a("v_lshrrev_b32 v2, 6, v0")
    a("s_nop 0")
    a("v_readfirstlane_b32 s30, v2")
    a("s_nop 3")
    a("s_lshl_b32 s3, s2, 2")
    a("s_add_u32 s92, s3, s30")
    a("s_and_b32 s28, s2, 31")
    a("s_lshr_b32 s29, s2, 5")
    a("s_lshl_b32 s39, s29, 7")
    a("s_sub_u32 s39, s39, 256")
    a("s_lshl_b32 s3, s30, 5")
    a("s_add_u32 s32, s39, s3")
    a("s_add_u32 s31, s32, 256")
    a("s_lshl_b32 s33, s28, 6")
    a(f"s_add_u32 s35, s33, {2*D*2}")
    a(f"s_add_u32 s36, s33, {D*2}")
    a("v_and_b32 v2, 31, v1")
    a("v_lshrrev_b32 v3, 5, v1")
    a("v_add_u32 v4, s31, v2")
    a(f"v_mul_u32_u24 v4, {QKV_ROW}, v4")
    a("v_lshl_add_u32 v4, v3, 4, v4")
    a("v_add_u32 v4, s33, v4")
    a("s_waitcnt lgkmcnt(0)")
    srd(a, 4, 24, WS_QKV, S * 3 * D * 2)
    srd(a, 8, 24, WS_O, S * D * 2)
    a("v_lshrrev_b32 v5, 2, v1")
    a("v_and_b32 v6, 3, v1")
    a("v_bfe_u32 v7, v1, 4, 2")
    a("v_xor_b32 v7, v7, v6")
    a("s_mul_i32 s3, s30, 96")
    a("s_add_u32 s3, s3, s39")
    a("s_mul_i32 s34, s30, 6144")
    for p in range(6):
        a(f"v_add_u32 v16, {16*p}, v5")
        a("v_add_u32 v16, s3, v16")
        a("v_max_i32 v16, 0, v16")
        a(f"v_mul_u32_u24 v16, {QKV_ROW}, v16")
        a("v_lshl_add_u32 v17, v7, 4, v16")
        a("v_add_u32 v17, s36, v17")
        a(f"s_add_u32 m0, s34, {p*1024}")
        a("v_lshl_add_u32 v16, v6, 4, v16")
        a(f"buffer_load_dwordx4 v17, s[4:7], 0 offen lds")
        a("v_add_u32 v16, s35, v16")
        a(f"s_add_u32 m0, s34, {KLDS + p*1024}")
        a("s_nop 0")
        a(f"buffer_load_dwordx4 v16, s[4:7], 0 offen lds")
    a("buffer_load_dwordx4 v[8:11], v4, s[4:7], 0 offen")
    a("buffer_load_dwordx4 v[12:15], v4, s[4:7], 0 offen offset:32")
    KF = 16
    if colsum:
        a(f"s_load_dwordx2 s[94:95], s[0:1], {ARG['w2']}")
        a(f"s_load_dwordx2 s[40:41], s[0:1], {ARG['wo']}")
        a(f"s_load_dwordx2 s[42:43], s[0:1], {ARG['w1']}")
        a("v_lshlrev_b32 v7, 4, v1")
        a(f"s_mul_i32 s93, s92, {F*D*2//2048}")
        a("s_lshl_b32 s3, s92, 10")
        a("v_add_u32 v16, s93, v7")
        a("v_add_u32 v17, s3, v7")
        a(f"s_mul_hi_u32 s44, s92, {((1 << 32) + 111) // 112}")
        a("s_mul_i32 s3, s44, 112")
        a("s_sub_u32 s45, s92, s3")
        a("s_lshl_b32 s3, s44, 6")
        a("v_lshrrev_b32 v18, 2, v1")
        a("v_add_u32 v18, s3, v18")
        a(f"v_mul_u32_u24 v18, {F*2}, v18")
        a("v_and_b32 v19, 3, v1")
        a("v_lshl_add_u32 v18, v19, 4, v18")
        a("s_lshl_b32 s3, s45, 6")
        a("v_add_u32 v18, s3, v18")
        a("s_waitcnt lgkmcnt(0)")
        npl = 4
        if 'nowpf' in EXP:
            srd(a, 96, 94, 0, F * D * 2)
            for j in range(4):
                a(f"buffer_load_dwordx4 v[240:243], v16, s[96:99], 0 offen offset:{1024*j}")
            srd(a, 96, 40, 0, D * D * 2)
            a("buffer_load_dwordx4 v[240:243], v17, s[96:99], 0 offen")
            npl = 9
        srd(a, 96, 42, 0, D * F * 2)
        for j in range(4):
            a(f"s_mov_b32 s3, {16*j*F*2}")
            a(f"buffer_load_dwordx4 {v(240+4*j,4)}, v18, s[96:99], s3 offen")
    else:
        npl = tail_prefetch(a, 92, 1, pf, 7, 240) if pf else 0
    a("v_bfe_u32 v5, v1, 2, 2")
    a("v_xor_b32 v5, v5, v3")
    a("v_lshlrev_b32 v6, 6, v2")
    a("s_lshl_b32 s34, s30, 11")
    a("v_add_u32 v6, s34, v6")
    a("v_lshl_add_u32 v88, v5, 4, v6")
    a("v_xor_b32 v5, 2, v5")
    a("v_lshl_add_u32 v89, v5, 4, v6")
    a(f"s_add_u32 s34, s34, {KLDS}")
    a(f"s_waitcnt vmcnt({npl})")
    a("s_barrier")
    for t_ in range(9):
        a(f"ds_read_b128 {v(KF+8*t_,4)}, v88 offset:{2048*t_}")
        a(f"ds_read_b128 {v(KF+8*t_+4,4)}, v89 offset:{2048*t_}")
    SC = 96
    a("v_mov_b32 v7, 0xf149f2ca")
    for t in range(9):
        a(f"s_waitcnt lgkmcnt({min(15, 2*(8-t))})")
        if t < 8:
            lab_inv = a.newlabel("L_inv"); lab_done = a.newlabel("L_tdone")
            a(f"s_add_i32 s3, s32, {32*t}")
            a("s_cmp_lt_i32 s3, 0")
            a(f"s_cbranch_scc1 {lab_inv}")
        a(f"v_mfma_f32_32x32x16_bf16 {v(SC+16*t,16)}, {v(KF+8*t,4)}, v[8:11], 0")
        a(f"v_mfma_f32_32x32x16_bf16 {v(SC+16*t,16)}, {v(KF+8*t+4,4)}, v[12:15], {v(SC+16*t,16)}")
        if t < 8:
            a(f"s_branch {lab_done}")
            a.label(lab_inv)
            for r in range(16):
                a(f"v_mov_b32 v{SC+16*t+r}, v7")
            a.label(lab_done)
    a("v_lshlrev_b32 v5, 2, v3")
    a("v_sub_u32 v5, v2, v5")
    a("s_nop 7")
    a("s_nop 7")
    for r in range(16):
        c = (r & 3) + 8 * (r >> 2)
        a(f"v_cmp_gt_i32 vcc, {c}, v5")
        a(f"v_cmp_le_i32 s[36:37], {c}, v5")
        a("s_nop 0")
        a(f"v_cndmask_b32 v{SC+r}, v7, v{SC+r}, vcc")
        a(f"v_cndmask_b32 v{SC+128+r}, v7, v{SC+128+r}, s[36:37]")
    a(f"v_max3_f32 v4, v{SC}, v{SC+1}, v{SC+2}")
    a(f"v_max3_f32 v6, v{SC+3}, v{SC+4}, v{SC+5}")
    for i in range(6, 144, 4):
        a(f"v_max3_f32 v4, v4, v{SC+i}, v{SC+i+1}")
        if i + 3 < 144:
            a(f"v_max3_f32 v6, v6, v{SC+i+2}, v{SC+i+3}")
    a("v_max_f32 v4, v4, v6")
    a("v_xor_b32 v88, 32, v1")
    a("v_lshlrev_b32 v88, 2, v88")
    a("ds_bpermute_b32 v89, v88, v4")
    a("s_waitcnt lgkmcnt(0)")
    a("v_max_f32 v4, v4, v89")
    sc = (DH ** -0.5) * math.log2(math.e)
    sc_bits = struct.unpack("<I", struct.pack("<f", sc))[0]
    a(f"s_mov_b32 s38, {sc_bits}")
    a("v_mul_f32 v4, s38, v4")
    sums = [5, 6, 90, 91]
    for sreg in sums:
        a(f"v_mov_b32 v{sreg}, 0")
    for g in range(0, 144, 4):
        for j in range(4):
            a(f"v_fma_f32 v{SC+g+j}, v{SC+g+j}, s38, -v4")
        for j in range(4):
            a(f"v_exp_f32 v{SC+g+j}, v{SC+g+j}")
        if g >= 4:
            for j in range(4):
                a(f"v_add_f32 v{sums[j]}, v{sums[j]}, v{SC+g-4+j}")
            tt, jj = divmod(g - 4, 16)
            a(f"v_cvt_pk_bf16_f32 v{KF+8*tt+jj//2}, v{SC+g-4}, v{SC+g-3}")
            a(f"v_cvt_pk_bf16_f32 v{KF+8*tt+jj//2+1}, v{SC+g-2}, v{SC+g-1}")
    a("s_nop 0")
    g = 144
    for j in range(4):
        a(f"v_add_f32 v{sums[j]}, v{sums[j]}, v{SC+g-4+j}")
    tt, jj = divmod(g - 4, 16)
    a(f"v_cvt_pk_bf16_f32 v{KF+8*tt+jj//2}, v{SC+g-4}, v{SC+g-3}")
    a(f"v_cvt_pk_bf16_f32 v{KF+8*tt+jj//2+1}, v{SC+g-2}, v{SC+g-1}")
    a("v_add_f32 v5, v5, v6")
    a("v_add_f32 v90, v90, v91")
    a("v_add_f32 v5, v5, v90")
    a("ds_bpermute_b32 v89, v88, v5")
    a("v_bfe_u32 v6, v1, 2, 2")
    a("v_lshl_add_u32 v6, v3, 2, v6")
    a("v_lshlrev_b32 v6, 6, v6")
    a("v_bfe_u32 v7, v1, 4, 1")
    a("v_lshl_add_u32 v6, v7, 5, v6")
    a("v_and_b32 v7, 3, v1")
    a("v_lshl_add_u32 v6, v7, 3, v6")
    a("v_add_u32 v6, s34, v6")
    OA = SC
    VF = SC + 16
    a(f"s_waitcnt lgkmcnt(0)")
    a("v_add_f32 v5, v5, v89")
    a("v_rcp_f32 v5, v5")
    for t in range(9):
        for sidx in range(2):
            f = VF + 4 * (2 * t + sidx)
            base = (32 * t + 16 * sidx) * 64
            a(f"ds_read_b64_tr_b16 {v(f,2)}, v6 offset:{base}")
            a(f"ds_read_b64_tr_b16 {v(f+2,2)}, v6 offset:{base+8*64}")
    first = True
    for t in range(9):
        for sidx in range(2):
            f = VF + 4 * (2 * t + sidx)
            idx = 2 * t + sidx
            rem = 36 - 2 * (idx + 1)
            a(f"s_waitcnt lgkmcnt({min(rem,15)})")
            a(f"v_mfma_f32_32x32x16_bf16 {v(OA,16)}, {v(f,4)}, {v(KF+8*t+4*sidx,4)}, {'0' if first else v(OA,16)}")
            first = False
    if colsum:
        lab_nc = a.newlabel("L_nocs")
        a("s_cmp_ge_u32 s44, 16")
        a(f"s_cbranch_scc1 {lab_nc}")
        CA = 184; CT = 192
        a("s_waitcnt vmcnt(0)")
        for j in range(4):
            a(f"v_lshlrev_b32 v{CA+2*j}, 16, v{240+j}")
            a(f"v_and_b32 v{CA+2*j+1}, 0xffff0000, v{240+j}")
        for i in range(1, 4):
            for j in range(4):
                a(f"v_lshlrev_b32 v{CT+2*j}, 16, v{240+4*i+j}")
                a(f"v_and_b32 v{CT+2*j+1}, 0xffff0000, v{240+4*i+j}")
            for j in range(4):
                a(f"v_pk_add_f32 {v(CA+2*j,2)}, {v(CA+2*j,2)}, {v(CT+2*j,2)}")
        a("s_nop 1")
        for mode in ("row_ror:4", "row_ror:8"):
            for j in range(8):
                a(f"v_add_f32_dpp v{CT+j}, v{CA+j}, v{CA+j} {mode} row_mask:0xf bank_mask:0xf")
            a("s_nop 1")
            for j in range(8):
                a(f"v_mov_b32 v{CA+j}, v{CT+j}")
            a("s_nop 1")
        for x in (16, 32):
            a(f"v_xor_b32 v200, {x}, v1")
            a("v_lshlrev_b32 v200, 2, v200")
            for j in range(8):
                a(f"ds_bpermute_b32 v{CT+j}, v200, v{CA+j}")
            a("s_waitcnt lgkmcnt(0)")
            for j in range(8):
                a(f"v_add_f32 v{CA+j}, v{CA+j}, v{CT+j}")
        srd(a, 96, 24, WS_CS, 16 * F * 4)
        a(f"s_mul_i32 s3, s44, {F*4}")
        a("s_lshl_b32 s45, s45, 7")
        a("s_add_u32 s3, s3, s45")
        a("v_lshlrev_b32 v200, 5, v1")
        a("s_mov_b64 exec, 15")
        a(f"buffer_store_dwordx4 {v(CA,4)}, v200, s[96:99], s3 offen")
        a(f"buffer_store_dwordx4 {v(CA+4,4)}, v200, s[96:99], s3 offen offset:16")
        a("s_mov_b64 exec, -1")
        a.label(lab_nc)
    a("v_add_u32 v7, s31, v2")
    a(f"v_lshlrev_b32 v7, 11, v7")
    a("v_lshl_add_u32 v7, v3, 3, v7")
    a("v_add_u32 v7, s33, v7")
    a("s_nop 7")
    a("s_nop 7")
    for g in range(4):
        for r in range(4):
            a(f"v_mul_f32 v{OA+4*g+r}, v{OA+4*g+r}, v5")
        a(f"v_cvt_pk_bf16_f32 v{OA+4*g}, v{OA+4*g}, v{OA+4*g+1}")
        a(f"v_cvt_pk_bf16_f32 v{OA+4*g+1}, v{OA+4*g+2}, v{OA+4*g+3}")
        a(f"buffer_store_dwordx2 {v(OA+4*g,2)}, v7, s[8:11], 0 offen offset:{16*g}")
    a.label(end)
    a("s_endpgm")
    return dict(name=name, grid=nwg + npf, block=256, lds=lds, desc=kernel_desc(name, 256 if colsum else 244))


def main():
    a = Asm()
    ks = []
    FLK = os.environ.get('FLK', 'x')
    NS2 = int(os.environ.get('NS2', '5'))
    FUSE = 'nofuse' not in EXP
    SPLIT = 'split' in EXP
    L2PF = int(os.environ.get('L2PF', '0'))
    W1HI = int(os.environ.get('W1HI', '10'))
    W2HI = int(os.environ.get('W2HI', '-1'))
    SKLO = int(os.environ.get('SKLO', '23'))
    QA = 'noqa' not in EXP
    W2T = QA and 'w2t' in EXP
    if QA:
        sys.path.insert(0, os.path.dirname(os.path.abspath(__file__)))
        import qa
        WOHI = int(os.environ.get('WOHI', '3'))
        ks.append(qa.gen_qa(sys.modules[__name__], a, "qa_kernel", wpf=[("wo", D*D*2)]))
    elif FUSE:
        ks.append(gen_gemm(a, "qkv_kernel", 3 * D, D, 192, 0, "wqkv", "plain", "ws", WS_QKV, NSTAGE=4, RA=8, RBN=4,
                           ln='single', a_arg='x',
                           wpf=[("w1", D*F*2, W1HI), ("wo", D*D*2, W1HI-7)]))
    else:
        ks.append(gen_ln(a, "ln1_kernel", "x", 0, WS_Y1, False, pf=[("wqkv", D*3*D*2), ("wo", D*D*2)]))
        ks.append(gen_gemm(a, "qkv_kernel", 3 * D, D, 192, WS_Y1, "wqkv", "plain", "ws", WS_QKV, NSTAGE=4, RA=8, RBN=4))
    if not QA: ks.append(gen_attn(a, "attn_kernel", pf=[("w1", D*F*2), ("w2", F*D*2), ("wo", D*D*2)] if FUSE else [("w1", D*F*2), ("w2", F*D*2)], colsum=FUSE))
    ks.append(gen_gemm(a, "oproj_kernel", D, D, 64, WS_O, "wo", "plain", "ws", WS_H, res_arg="x", NSTAGE=NS2, flags='o' in FLK, stats_out=FUSE, spf=eval(os.environ.get('SPFO', 'None')),
                       atile=OT, lda=D*2*TX if OT else None, otile=OT, ldo=D*2*TX if OT else None, c3=WS_WOC if C3 and (not FZ or 'oc3' in EXP) else None, sp2=eval(os.environ.get('SP2O', 'None')), sp3=eval(os.environ.get('SP3O', 'None')), alay='o' if NL else None, fz=dict(entry="P_oproj", ph=1, next="P_ffn1") if FZ else None))
    if FUSE:
        ks.append(gen_gemm(a, "ffn1_kernel", F, D, 224, WS_H, "ws" if W1T else "w1", "gelu", "ws", WS_H1, bias_arg="b1", RA=8, RBN=4,
                           w_off=WS_W1T if W1T else None, wt7=W1T, flags='1' in FLK, sp4=eval(os.environ.get('SP4', 'None')), ln='double', pre=True, ldo=LDH1, zero_flags=SPLIT, wpf=[("w2", F*D*2, W2HI)] if W2HI else None, otile=QA, w2copy=W2T and 'qw2' not in EXP, epi2='oldepi' not in EXP,
                           atile=OT, lda=D*2*TX if OT else None, c3src=("w2", F, WS_W2C) if C3 and not QC3 else None,
                           endpf=("w2", F*D*2, 0, 56) if 'endpf' in EXP else None, fz=dict(entry="P_ffn1", ph=2, next="P_ffn2") if FZ else None))
    else:
        ks.append(gen_ln(a, "ln2_kernel", "ws", WS_H, WS_Y2, True))
        ks.append(gen_gemm(a, "ffn1_kernel", F, D, 224, WS_Y2, "w1", "gelu", "ws", WS_H1, bias_arg="b1", RA=8, RBN=4))
    if SK2:
        import f2
        f2.gen_f2(sys.modules[__name__], a)
    elif SPLIT:
        ks.append(gen_gemm(a, "ffn2_kernel", D, F, 128, WS_H1, "w2", "plain", "out", 0, res_arg="ws", res_off=WS_H,
                           bias_arg="b2", NSTAGE=5, lda=LDH1, RA=int(os.environ.get('SRA','8')), RBN=4, splitk=(SKLO, 56 - SKLO), atile=QA))
    else:
        ks.append(gen_gemm(a, "ffn2_kernel", D, F, 64, WS_H1, "ws" if W2T else "w2", "plain", "out", 0, res_arg="ws", res_off=WS_H,
                           atile=QA, w_off=WS_W2T if W2T else None, rtile=OT, c3=WS_W2C if C3 else None, sp2=eval(os.environ.get('SP2', 'None')), sp3=eval(os.environ.get('SP3', 'None')),
                           bias_arg="b2", NSTAGE=NS2, alay='g32' if NL else None, fz=dict(entry="P_ffn2", ph=3, next=None) if FZ else None, flags='2' in FLK, lda=LDH1, l2pf=L2PF, spf=eval(os.environ.get('SPF2', 'None')), RA=int(os.environ.get('F2RA','4')), RBN=32//int(os.environ.get('F2RA','4'))))
    hdr = []
    if FZ: ks = ks[:1]
    for k in ks:
        hdr.append(f"; @launch kernel={k['name']} grid=({k['grid']},1,1) block=({k['block']},1,1) lds={k['lds']}")
    txt = "\n".join(hdr) + "\n"
    txt += '.amdgcn_target "amdgcn-amd-amdhsa--gfx950"\n.text\n'
    if FZ: gen_sched(a)
    a.label("L_code_end")
    txt += "\n".join(a.lines) + "\n"
    txt += '.section .rodata,"a"\n'
    for k in ks:
        txt += ".p2align 6\n" + k["desc"]
    open(OUT, "w").write(txt)


if __name__ == "__main__":
    main()
```

```python
import math, os


def gen_f2(G, a):
    v, srd, ARG, EXP = G.v, G.srd, G.ARG, G.EXP
    S, D, F, MB = G.S, G.D, G.F, G.MB
    CTRL = G.CTRL
    N = D; K = F
    NSTAGE = 5; NS = 28
    MT = NTW = 4; RB = 128
    ABYTES = 16384; STAGE = 32768; PA = PB = 4; P = 8
    ASTEP = 16384
    lda = F * 2
    CROW = 272; CBASE = 0; RES = ((NS - 5) % NSTAGE) * STAGE
    assert (NS - 1) % NSTAGE not in (0, (NS - 5) % NSTAGE, 4)
    XTAG = 98304
    RPM = int(os.environ.get('RPM2', '1'))
    vA = [2, 3, 4, 5]; vB = [6, 7, 8, 9]
    vXb = [2, 3]; vWb = [4, 5, 6, 7]; vXc = [8, 9]; vWc = [10, 11, 12, 13]
    vT = list(range(14, 22))
    FX = [24, 40]; FW = [56, 72]; ACC = 88; PBI = 152; PRT = 160; vL16 = 192
    t0, t1, t2, t3 = vT[:4]

    def acc(nt, mt): return ACC + 4 * (nt * MT + mt)

    def stamp(i, force=False):
        if os.environ.get('XT'):
            if i >= 6: return
            if i in (2, 3): a(f"s_memtime s[{68+2*i}:{69+2*i}]")
        if 'stamp' in EXP:
            a(f"s_memrealtime s[{60+2*i}:{61+2*i}]")
            if i >= 6: a("s_waitcnt lgkmcnt(0)")

    def stamp_out():
        if 'stamp' not in EXP: return
        a("s_waitcnt lgkmcnt(0)")
        a("s_lshl_b32 s3, s2, 3")
        a("s_add_u32 s3, s3, s49")
        a("s_lshl_b32 s3, s3, 6")
        a("v_mov_b32 v2, s3")
        for i in range(4): a(f"v_mov_b32 v{4+i}, s{60+i}")
        srd(a, 60, 24, 203 * MB, 1 << 20)
        a("buffer_store_dwordx4 v[4:7], v2, s[60:63], 0 offen")
        a("s_nop 1")
        for i in range(2, 8):
            a(f"v_mov_b32 v4, s{60+2*i}")
            a(f"v_mov_b32 v5, s{61+2*i}")
            a(f"buffer_store_dwordx2 v[4:5], v2, s[60:63], 0 offen offset:{8*i}")
            a("s_nop 1")

    a.lines.append(".p2align 6")
    a.label("P_ffn2")
    stamp(0)
    a("v_readlane_b32 s46, v255, 3")
    a("s_setprio 0")
    a("s_nop 2")
    a("s_cmp_lg_u32 s46, 0")
    a("s_cbranch_scc1 S_next")
    a("s_lshr_b32 s46, s2, 3")
    a("s_bfe_u32 s28, s2, 0x10002")
    a("s_lshl_b32 s28, s28, 3")
    a("s_and_b32 s3, s2, 1")
    a("s_lshl_b32 s3, s3, 2")
    if os.environ.get('F2MAP', 'A') == 'A':
        a("s_lshr_b32 s47, s46, 2")
        a("s_add_u32 s28, s28, s47")
        a("s_and_b32 s47, s46, 3")
        a("s_add_u32 s29, s3, s47")
    else:
        a("s_lshr_b32 s47, s46, 3")
        a("s_add_u32 s28, s28, s47")
        a("s_add_u32 s28, s28, s3")
        a("s_and_b32 s29, s46, 7")
    a("s_lshl_b32 s29, s29, 1")
    a("s_bfe_u32 s3, s2, 0x10001")
    a("s_add_u32 s29, s29, s3")
    a.label("P_ffn2_go")
    a(f"s_load_dwordx2 s[24:25], s[0:1], {ARG['ws']}")
    a(f"s_load_dwordx2 s[26:27], s[0:1], {ARG['w2']}")
    a(f"s_load_dwordx2 s[34:35], s[0:1], {ARG['out']}")
    a(f"s_load_dwordx2 s[38:39], s[0:1], {ARG['b2']}")
    a("s_and_b32 s92, s29, 1")
    a("s_lshr_b32 s93, s29, 1")
    a("v_and_b32 v1, 63, v0")
    a(f"v_lshrrev_b32 {v(t0)}, 6, v0")
    a("s_nop 0")
    a(f"v_readfirstlane_b32 s49, {v(t0)}")
    a("s_nop 3")
    a("s_and_b32 s30, s49, 3")
    a("s_lshr_b32 s44, s30, 1")
    a("s_and_b32 s45, s30, 1")
    G.fz_poll(a, 3, stamp, 246)
    lab_comp = a.newlabel("L_comp"); lab_store = a.newlabel("L_store"); lab_help = a.newlabel("L_help")
    a("s_cmp_lt_u32 s49, 4")
    a(f"s_cbranch_scc1 {lab_comp}")

    a("s_setprio 2")
    if G.C3:
        a(f"v_mov_b32 v247, {CTRL}")
        a("ds_read_b32 v247, v247 offset:4")
    a(f"v_lshrrev_b32 {v(t0)}, 3, v1")
    a(f"v_lshrrev_b32 {v(t1)}, 4, v1")
    a(f"v_and_b32 {v(t2)}, 7, v1")
    a(f"v_xor_b32 {v(t1)}, {v(t1)}, {v(t2)}")
    a(f"v_lshrrev_b32 {v(t3)}, 2, {v(t1)}")
    a(f"v_lshlrev_b32 {v(t3)}, 13, {v(t3)}")
    a(f"v_and_b32 {v(t1)}, 3, {v(t1)}")
    a(f"v_lshl_add_u32 {v(t3)}, {v(t1)}, 4, {v(t3)}")
    a(f"v_lshl_add_u32 {v(t3)}, {v(t0)}, 6, {v(t3)}")
    a(f"s_mul_i32 s3, s28, {128*lda}")
    if os.environ.get('XA'):
        a(f"s_and_b32 s3, s28, {os.environ['XA']}")
        a(f"s_mul_i32 s3, s3, {128*lda}")
    a("s_xor_b32 s46, s30, s92")
    a("s_lshl_b32 s46, s46, 11")
    a("s_add_u32 s3, s3, s46")
    a(f"s_mul_i32 s46, s92, {NS*ASTEP}")
    a("s_add_u32 s3, s3, s46")
    a(f"v_add_u32 {v(vA[0])}, s3, {v(t3)}")
    a(f"v_xor_b32 {v(t3)}, 0x2000, {v(vA[0])}")
    a(f"v_add_u32 {v(vA[1])}, 512, {v(t3)}")
    a(f"v_add_u32 {v(vA[2])}, 1024, {v(vA[0])}")
    a(f"v_add_u32 {v(vA[3])}, 1024, {v(vA[1])}")
    a("s_lshl_b32 s31, s30, 12")
    a(f"s_add_u32 s32, s31, {ABYTES}")
    a("s_lshl_b32 s94, s93, 1")
    if os.environ.get('XB'): a(f"s_and_b32 s94, s94, {os.environ['XB']}")
    a("s_add_u32 s94, s94, s44")
    a("s_lshl_b32 s3, s94, 7")
    a("s_mov_b32 s55, 11")
    a("s_waitcnt lgkmcnt(0)")
    srd(a, 8, 26, 0, K * N * 2)
    if G.C3:
        srd(a, 50, 24, G.WS_W2C, 2 * K * 256)
        a("v_readfirstlane_b32 s54, v247")
        a("s_lshr_b32 s47, s94, 3")
        a(f"s_mul_i32 s47, s47, {K*256}")
        a("s_and_b32 s46, s94, 7")
        a("s_lshl_b32 s54, s54, 3")
        a("s_add_u32 s46, s46, s54")
        a("s_cmp_eq_u32 s46, 11")
        a("s_cselect_b32 s3, s47, s3")
        for i in range(3): a(f"s_cselect_b32 s{8+i}, s{50+i}, s{8+i}")
        a("s_cselect_b32 s55, 8, 11")
    a("s_lshl_b32 s46, s45, 5")
    a(f"s_mul_i32 s47, s92, {NS*64}")
    a("s_add_u32 s46, s46, s47")
    a(f"v_add_u32 {v(t0)}, s46, {v(t0)}")
    a(f"v_lshlrev_b32 {v(t0)}, s55, {v(t0)}")
    a(f"v_bfe_u32 {v(t1)}, v1, 4, 1")
    a(f"v_lshlrev_b32 {v(t1)}, 1, {v(t1)}")
    a(f"v_xor_b32 {v(t1)}, {v(t1)}, {v(t2)}")
    a(f"v_lshl_add_u32 {v(t0)}, {v(t1)}, 4, {v(t0)}")
    a("s_lshl_b32 s46, 8, s55")
    a("s_lshl_b32 s47, 16, s55")
    a("s_lshl_b32 s55, 64, s55")
    a(f"v_add_u32 {v(vB[0])}, s3, {v(t0)}")
    a(f"v_xor_b32 {v(t0)}, 64, {v(vB[0])}")
    a(f"v_add_u32 {v(vB[1])}, s46, {v(t0)}")
    a(f"v_add_u32 {v(vB[2])}, s47, {v(vB[0])}")
    a(f"v_add_u32 {v(vB[3])}, s47, {v(vB[1])}")
    a("s_mov_b32 s41, 0")
    stamp(1)
    for st in range(NSTAGE - 1):
        for i in range(PB):
            a(f"s_add_u32 m0, s32, {st*STAGE + i*1024}")
            a("s_nop 0")
            a(f"buffer_load_dwordx4 {v(vB[i])}, s[8:11], s41 offen lds")
        a("s_add_u32 s41, s41, s55")
    srd(a, 4, 24, G.WS_H1, S * lda)
    srd(a, 12, 34, 0, S * N * 2)
    srd(a, 16, 24, G.WS_H, S * N * 2)
    G.fz_t2(a, 3, 246)
    for st in range(NSTAGE - 1):
        for i in range(PA):
            a(f"s_add_u32 m0, s31, {st*STAGE + i*1024}")
            a(f"s_mov_b32 s40, {st*ASTEP}")
            a(f"buffer_load_dwordx4 {v(vA[i])}, s[4:7], s40 offen lds")
    a(f"s_mov_b32 s40, {(NSTAGE-1)*ASTEP}")
    a(f"s_mov_b32 s43, {(NSTAGE-1)*STAGE}")
    stamp(2)

    XN = os.environ.get('XN', '')
    def dma():
        a("s_add_u32 s33, s43, s31")
        for i in range(PA):
            a(f"s_add_u32 m0, s33, {i*1024}")
            a("s_nop 0")
            if 'a' not in XN: a(f"buffer_load_dwordx4 {v(vA[i])}, s[4:7], s40 offen lds")
        a("s_add_u32 s33, s43, s32")
        for i in range(PB):
            a(f"s_add_u32 m0, s33, {i*1024}")
            a("s_nop 0")
            if 'b' not in XN: a(f"buffer_load_dwordx4 {v(vB[i])}, s[8:11], s41 offen lds")
        a(f"s_add_u32 s40, s40, {ASTEP}")
        a("s_add_u32 s41, s41, s55")
        a(f"s_add_u32 s43, s43, {STAGE}")
        a(f"s_cmp_ge_u32 s43, {STAGE*NSTAGE}")
        a("s_cselect_b32 s43, 0, s43")

    nloop = NS - NSTAGE + 1
    for j in range(NSTAGE - 2):
        a(f"s_waitcnt vmcnt({(NSTAGE-2-j)*PA + j*P})")
        a("s_barrier")
        dma()
        nloop -= 1
    a(f"s_mov_b32 s48, {nloop}")
    lloop = a.newlabel("L_lloop")
    a.label(lloop)
    a(f"s_waitcnt vmcnt({(NSTAGE-2)*P})")
    a("s_barrier")
    dma()
    a("s_sub_u32 s48, s48, 1")
    a("s_cmp_lg_u32 s48, 0")
    a(f"s_cbranch_scc1 {lloop}")
    a(f"v_lshrrev_b32 {v(t0)}, 4, v1")
    a(f"v_lshlrev_b32 {v(t0)}, 7, {v(t0)}")
    a(f"v_bfe_u32 {v(t1)}, v1, 3, 1")
    a(f"v_lshl_add_u32 {v(t0)}, {v(t1)}, 14, {v(t0)}")
    a(f"v_lshl_add_u32 {v(t0)}, {v(t2)}, 4, {v(t0)}")
    a("s_lshl_b32 s3, s28, 18")
    a("s_lshl_b32 s46, s93, 15")
    a("s_add_u32 s3, s3, s46")
    a("s_lshl_b32 s46, s44, 13")
    a("s_add_u32 s3, s3, s46")
    a("s_lshl_b32 s46, s92, 12")
    a("s_add_u32 s3, s3, s46")
    a("s_lshl_b32 s46, s45, 11")
    a("s_add_u32 s3, s3, s46")
    for j in range(NS - NSTAGE + 1, NS):
        first = j == NS - NSTAGE + 1
        a(f"s_waitcnt vmcnt({(NS-1-j)*P + (0 if first else 4)})")
        a("s_barrier")
        if first:
            for i in range(4):
                a(f"s_add_u32 m0, s31, {RES + i*512}")
                a("s_nop 0")
                a(f"buffer_load_dwordx4 {v(t0)}, s[16:19], s3 offen offset:{512*i} lds")
    stamp(3)
    a("v_readlane_b32 s46, v255, 3")
    a("s_nop 3")
    a("s_waitcnt vmcnt(0)")
    a("s_cmp_eq_u32 s46, 4")
    a(f"s_cbranch_scc1 {lab_help}")
    stamp(4)
    a("s_barrier")
    a(f"s_branch {lab_store}")

    a.label(lab_comp)
    a(f"v_and_b32 {v(t0)}, 15, v1")
    a("s_lshl_b32 s3, s44, 6")
    a(f"v_add_u32 {v(t0)}, s3, {v(t0)}")
    a(f"v_lshlrev_b32 {v(t0)}, 7, {v(t0)}")
    a(f"v_lshrrev_b32 {v(t1)}, 4, v1")
    a(f"v_bfe_u32 {v(t2)}, v1, 1, 3")
    a(f"v_xor_b32 {v(t3)}, {v(t1)}, {v(t2)}")
    a(f"v_lshl_add_u32 {v(vXb[0])}, {v(t3)}, 4, {v(t0)}")
    a(f"v_xor_b32 {v(t3)}, 4, {v(t3)}")
    a(f"v_lshl_add_u32 {v(vXb[1])}, {v(t3)}, 4, {v(t0)}")
    a(f"v_bfe_u32 {v(t0)}, v1, 2, 2")
    a(f"v_lshl_add_u32 {v(t2)}, {v(t1)}, 3, {v(t0)}")
    a(f"v_and_b32 {v(t3)}, 1, {v(t1)}")
    a(f"v_lshrrev_b32 {v(t0)}, 1, {v(t0)}")
    a(f"v_lshl_add_u32 {v(t3)}, {v(t3)}, 1, {v(t0)}")
    a(f"v_lshlrev_b32 {v(t2)}, 7, {v(t2)}")
    a(f"v_and_b32 {v(t0)}, 3, v1")
    a(f"v_lshl_add_u32 {v(t2)}, {v(t0)}, 3, {v(t2)}")
    a("s_lshl_b32 s3, s45, 13")
    a(f"s_add_u32 s3, s3, {ABYTES}")
    a(f"v_add_u32 {v(t2)}, s3, {v(t2)}")
    for nt in range(NTW):
        a(f"v_xor_b32 {v(t0)}, {nt}, {v(t3)}")
        a(f"v_lshl_add_u32 {v(vWb[nt])}, {v(t0)}, 5, {v(t2)}")
    for i in range(4 * MT * NTW):
        a(f"v_mov_b32 v{ACC+i}, 0")
    a(f"v_lshlrev_b32 {v(vL16)}, 4, v1")
    a("s_mov_b32 s42, 0")
    a("s_waitcnt lgkmcnt(0)")
    srd(a, 12, 34, 0, S * N * 2)
    srd(a, 20, 38, 0, N * 2)
    srd(a, 84, 24, G.WS_PART, 256 * 32768)
    srd(a, 88, 24, G.WS_FL + XTAG, 256 * 512)
    a(f"v_lshlrev_b32 {v(t0)}, 3, {v(t1)}")
    a("s_lshl_b32 s3, s93, 8")
    a("s_lshl_b32 s46, s45, 7")
    a("s_add_u32 s3, s3, s46")
    for nt in range(NTW):
        a(f"buffer_load_dwordx2 {v(PBI+2*nt,2)}, {v(t0)}, s[20:23], s3 offen offset:{32*nt}")
    a("s_lshl_b32 s94, s28, 4")
    a("s_add_u32 s94, s94, s29")
    a("s_lshl_b32 s94, s94, 2")
    a("s_add_u32 s94, s94, s30")

    cur = lambda: ([f"v_add_u32 {v(vXc[kk])}, s42, {v(vXb[kk])}" for kk in range(2)] +
                   [f"v_add_u32 {v(vWc[nt])}, s42, {v(vWb[nt])}" for nt in range(NTW)] +
                   [f"s_add_u32 s42, s42, {STAGE}", f"s_cmp_ge_u32 s42, {STAGE*NSTAGE}", "s_cselect_b32 s42, 0, s42"])

    def read_list(kk, f):
        L = []
        for nt in range(NTW):
            if 'x' not in XN: L.append(f"ds_read_b128 {v(FX[f]+4*nt,4)}, {v(vXc[kk])} offset:{nt*2048}")
            for rd in range(2):
                if 'w' not in XN: L.append(f"ds_read_b64_tr_b16 {v(FW[f]+4*nt+2*rd,2)}, {v(vWc[nt])} offset:{kk*32*RB+rd*4*RB}")
        return L

    def mf(f, nt, mt):
        return f"v_mfma_f32_16x16x32_bf16 {v(acc(nt,mt),4)}, {v(FW[f]+4*nt,4)}, {v(FX[f]+4*mt,4)}, {v(acc(nt,mt),4)}"

    def mfma_list(f):
        if 'M' in XN:
            L = []
            for kh in range(2):
                for i in range(2):
                    for j in range(2):
                        c = v(ACC + 16 * (2 * i + j), 16)
                        L += [f"v_mfma_f32_32x32x16_bf16 {c}, {v(FW[f]+4*(2*i+kh),4)}, {v(FX[f]+4*(2*j+kh),4)}, {c}", "s_nop 0"]
            return L
        return [mf(f, nt, mt) for nt in range(NTW) for mt in range(MT)]

    def inter(kk, fr, fm, extra=()):
        R = read_list(kk, fr); Mm = mfma_list(fm); extra = list(extra)
        ri = 0
        for i in range(len(Mm)):
            if 'm' not in XN: a(Mm[i])
            k_ = 0
            while k_ < RPM and ri < len(R): a(R[ri]); ri += 1; k_ += 1
            if ri == len(R) and k_ == 0:
                for _ in range(3):
                    if extra: a(extra.pop(0))
        while ri < len(R): a(R[ri]); ri += 1
        for x in extra: a(x)
        a("s_waitcnt lgkmcnt(0)")

    for x in cur(): a(x)
    lt2 = a.newlabel("L_t2")
    a("s_cmp_eq_u32 s49, 0")
    a(f"s_cbranch_scc1 {lt2}")
    stamp(1)
    G.fz_t2(a, 3, 246)
    a.label(lt2)
    a("s_barrier")
    stamp(2)
    for x in read_list(0, 0): a(x)
    a("s_waitcnt lgkmcnt(0)")
    inter(1, 1, 0, cur())
    a(f"s_mov_b32 s48, {NS-1}")
    loop = a.newlabel("L_cloop")
    a.label(loop)
    a("s_barrier")
    inter(0, 0, 1)
    inter(1, 1, 0, cur() + ["s_sub_u32 s48, s48, 1", "s_cmp_lg_u32 s48, 0"])
    a(f"s_cbranch_scc1 {loop}")
    stamp(3)
    a("s_memrealtime s[96:97]")
    a("s_lshl_b32 s3, s94, 13")
    a("s_add_u32 s46, s3, 4096")
    for nt in range(NTW):
        for mt in (2, 3): a(mf(1, nt, mt))
    keep = [mf(1, nt, mt) for nt in range(NTW) for mt in (0, 1)]
    st = [f"buffer_store_dwordx4 {v(acc(nt,mt),4)}, {v(vL16)}, s[84:87], s{3 if nt < 2 else 46} offen offset:{1024*((2*nt+mt-2)&3)} sc0 sc1"
          for nt in range(NTW) for mt in (2, 3)]
    for i, x in enumerate(keep):
        a(x)
        if i >= 1: a(st[i - 1])
    a("s_nop 3")
    a(st[7])
    TG = FX[0]
    a("v_readlane_b32 s46, v255, 3")
    a("v_readlane_b32 s47, v255, 7")
    a("v_readlane_b32 s98, v255, 1")
    a("v_readlane_b32 s99, v255, 2")
    a("v_writelane_b32 v255, 0, 7")
    a("s_waitcnt lgkmcnt(0)")
    for j in range(4):
        a(f"v_mov_b32 {v(TG+j)}, s{96+(j&1)}")
    a("s_lshl_b32 s3, s94, 7")
    a("s_add_u32 s100, s98, 0x1000000")
    a("s_addc_u32 s101, s99, 0")
    a("s_mov_b64 exec, 0xff")
    a("s_waitcnt vmcnt(0)")
    if 'ftest' in EXP and '3' in os.environ.get('FTP', '0123'):
        lsk = a.newlabel("L_ft")
        a("s_and_b32 s95, s2, 63")
        a("s_xor_b32 s95, s95, 33")
        a("s_or_b32 s95, s95, s46")
        a("s_cmp_eq_u32 s95, 0")
        a(f"s_cbranch_scc1 {lsk}")
    a(f"buffer_store_dwordx4 {v(TG,4)}, {v(vL16)}, s[88:91], s3 offen sc0 sc1")
    if 'ftest' in EXP and '3' in os.environ.get('FTP', '0123'): a.label(lsk)
    a("s_mov_b64 exec, -1")
    a("s_cmp_eq_u32 s46, 4")
    a(f"s_cbranch_scc1 {lab_help}")
    stamp(4)
    a("s_xor_b32 s94, s94, 4")
    a("s_lshl_b32 s3, s94, 7")
    a(f"s_mov_b32 s95, {int(os.environ.get('FZPOLL', '200'))}")
    lp = a.newlabel("L_xp"); lok = a.newlabel("L_xok"); lno = a.newlabel("L_xno")
    a(f"v_mov_b32 {v(TG+4)}, 0")
    a("s_cmp_lg_u32 s47, 0")
    a(f"s_cbranch_scc1 {lok}")
    a("s_mov_b64 exec, 1")
    a.label(lp)
    a(f"buffer_load_dwordx2 {v(TG+6,2)}, {v(TG+4)}, s[88:91], s3 offen sc0 sc1")
    a("s_waitcnt vmcnt(0)")
    a(f"v_cmp_lt_u64 vcc, s[98:99], {v(TG+6,2)}")
    a(f"v_cmp_gt_u64 s[46:47], s[100:101], {v(TG+6,2)}")
    a("s_nop 1")
    a("s_and_b64 s[46:47], s[46:47], vcc")
    a("s_sub_u32 s95, s95, 1")
    a("s_cselect_b64 s[46:47], exec, s[46:47]")
    a("s_cmp_lg_u64 s[46:47], exec")
    a(f"s_cbranch_scc1 {lp}")
    a("s_mov_b64 exec, -1")
    a("s_bitcmp1_b32 s95, 31")
    a(f"s_cbranch_scc1 {lno}")
    a.label(lok)
    a("s_lshl_b32 s3, s94, 13")
    a("s_add_u32 s46, s3, 4096")
    for i in range(8):
        a(f"buffer_load_dwordx4 {v(PRT+4*i,4)}, {v(vL16)}, s[84:87], s{3 if i < 4 else 46} offen offset:{1024*(i&3)}")
    a.label(lno)
    stamp(5)
    a("s_lshr_b32 s3, s95, 31")
    a("s_lshl_b32 s46, s30, 2")
    a(f"s_add_u32 s46, s46, {CTRL+16}")
    a(f"v_mov_b32 {v(t0)}, s46")
    a(f"v_mov_b32 {v(t1)}, s3")
    a(f"ds_write_b32 {v(t0)}, {v(t1)}")
    BF = FW[0]
    for nt in range(NTW):
        for j in range(2):
            a(f"v_lshlrev_b32 {v(BF+4*nt+2*j)}, 16, {v(PBI+2*nt+j)}")
            a(f"v_and_b32 {v(BF+4*nt+2*j+1)}, 0xffff0000, {v(PBI+2*nt+j)}")
    a(f"v_bfe_u32 {v(t2)}, v1, 1, 3")
    a(f"v_and_b32 {v(t3)}, 1, v1")
    a(f"v_lshl_add_u32 {v(t2)}, {v(t3)}, 3, {v(t2)}")
    a("s_lshl_b32 s3, s44, 5")
    a(f"v_add_u32 {v(t2)}, s3, {v(t2)}")
    a(f"v_mul_u32_u24 {v(t2)}, {CROW}, {v(t2)}")
    a(f"v_lshrrev_b32 {v(t3)}, 4, v1")
    a(f"v_lshl_add_u32 {v(t2)}, {v(t3)}, 3, {v(t2)}")
    a("s_lshl_b32 s3, s45, 7")
    a(f"v_add_u32 {v(t2)}, s3, {v(t2)}")
    for nt in range(NTW):
        for mt in range(2):
            c0 = acc(nt, mt)
            for j in range(2):
                a(f"v_pk_add_f32 {v(c0+2*j,2)}, {v(c0+2*j,2)}, {v(BF+4*nt+2*j,2)}")
    for nt in range(NTW):
        for mt in range(2):
            c0 = acc(nt, mt); i = 2 * nt + mt
            a(f"s_waitcnt vmcnt({7-i})")
            for j in range(2):
                a(f"v_pk_add_f32 {v(c0+2*j,2)}, {v(c0+2*j,2)}, {v(PRT+4*i+2*j,2)}")
            for j in range(2):
                a(f"v_cvt_pk_bf16_f32 {v(c0+j)}, {v(c0+2*j)}, {v(c0+2*j+1)}")
            a(f"ds_write_b64 {v(t2)}, {v(c0,2)} offset:{CBASE + mt*16*CROW + nt*32}")
    a("s_waitcnt lgkmcnt(0)")
    a("s_barrier")

    a.label(lab_store)
    R0 = 24; RR = 32; OFF = 40; GT = 44; ST = 48
    a(f"v_mov_b32 {v(t3)}, {CTRL+16}")
    a(f"ds_read_b128 {v(ST,4)}, {v(t3)}")
    a("s_lshl_b32 s3, s49, 3")
    a(f"v_lshrrev_b32 {v(t0)}, 4, v1")
    a(f"v_add_u32 {v(t0)}, s3, {v(t0)}")
    a(f"v_and_b32 {v(t1)}, 15, v1")
    a(f"v_lshlrev_b32 {v(t1)}, 4, {v(t1)}")
    a(f"v_mul_u32_u24 {v(t2)}, {CROW}, {v(t0)}")
    a(f"v_add_u32 {v(t2)}, {v(t2)}, {v(t1)}")
    a("s_lshl_b32 s3, s49, 11")
    a(f"s_add_u32 s3, s3, {RES}")
    a(f"v_lshl_add_u32 {v(t3)}, v1, 4, s3")
    for it in range(2):
        a(f"ds_read_b128 {v(R0+4*it,4)}, {v(t2)} offset:{CBASE + 4*it*CROW}")
        a(f"ds_read_b128 {v(RR+4*it,4)}, {v(t3)} offset:{1024*it}")
    a(f"v_and_b32 {v(t0)}, 31, {v(t0)}")
    a(f"v_lshl_add_u32 {v(OFF)}, {v(t0)}, 11, {v(t1)}")
    a("s_lshl_b32 s3, s28, 18")
    a("s_lshr_b32 s46, s49, 2")
    a("s_lshl_b32 s46, s46, 17")
    a("s_add_u32 s3, s3, s46")
    a("s_lshl_b32 s46, s92, 16")
    a("s_add_u32 s3, s3, s46")
    a("s_lshl_b32 s46, s93, 8")
    a("s_add_u32 s3, s3, s46")
    a("s_add_u32 s46, s3, 8192")
    a("s_waitcnt lgkmcnt(0)")
    a(f"v_or3_b32 {v(ST)}, {v(ST)}, {v(ST+1)}, {v(ST+2)}")
    a(f"v_or_b32 {v(ST)}, {v(ST)}, {v(ST+3)}")
    a(f"v_cmp_ne_u32 vcc, 0, {v(ST)}")
    a("s_cbranch_vccnz S_fail4")
    for it in range(2):
        c0 = R0 + 4 * it
        for j in range(4):
            d = c0 + j; r = RR + 4 * it + j
            a(f"v_lshlrev_b32 {v(GT)}, 16, {v(d)}")
            a(f"v_lshlrev_b32 {v(GT+1)}, 16, {v(r)}")
            a(f"v_and_b32 {v(GT+2)}, 0xffff0000, {v(d)}")
            a(f"v_and_b32 {v(GT+3)}, 0xffff0000, {v(r)}")
            a(f"v_add_f32 {v(GT)}, {v(GT)}, {v(GT+1)}")
            a(f"v_add_f32 {v(GT+2)}, {v(GT+2)}, {v(GT+3)}")
            a(f"v_cvt_pk_bf16_f32 {v(d)}, {v(GT)}, {v(GT+2)}")
        a(f"buffer_store_dwordx4 {v(c0,4)}, {v(OFF)}, s[12:15], s{3 if it == 0 else 46} offen")
    stamp(6)
    if 'stamp' in EXP: a("s_waitcnt vmcnt(0)")
    stamp(7)
    stamp_out()
    a("s_endpgm")
    a.label(lab_help)
    G.c3_write(a)
    a("s_waitcnt vmcnt(0) lgkmcnt(0)")
    a("s_barrier")
    a("s_branch S_next")
```

```python
import math, os, struct

TAG2 = 65536
TAGSZ = 65536 + 262144
RESR, BIAR = 56, 100
TGR = 246


def res_loads(G, a, t0, t1, sh, sb):
    v = G.v
    a(f"v_and_b32 {v(t0)}, 15, v1")
    a(f"v_lshrrev_b32 {v(t1)}, 4, v1")
    a(f"v_lshlrev_b32 {v(t1)}, 3, {v(t1)}")
    a(f"v_lshl_add_u32 {v(t0)}, {v(t0)}, 7, {v(t1)}")
    a("s_lshl_b32 s3, s28, 18")
    a("s_lshl_b32 s46, s93, 15")
    a("s_add_u32 s3, s3, s46")
    a("s_lshl_b32 s46, s45, 14")
    a("s_add_u32 s3, s3, s46")
    a("s_lshl_b32 s46, s44, 13")
    a("s_add_u32 s3, s3, s46")
    a("s_lshl_b32 s46, s92, 12")
    a("s_add_u32 s3, s3, s46")
    for nt in range(4):
        for mt in range(2):
            a(f"buffer_load_dwordx2 {v(RESR+4*nt+2*mt,2)}, {v(t0)}, s[{sh}:{sh+3}], s3 offen offset:{2048*mt+32*nt}")
    a("s_lshl_b32 s3, s93, 8")
    a("s_lshl_b32 s46, s45, 7")
    a("s_add_u32 s3, s3, s46")
    for nt in range(4):
        a(f"buffer_load_dwordx2 {v(BIAR+2*nt,2)}, {v(t1)}, s[{sb}:{sb+3}], s3 offen offset:{32*nt}")


def ftest_skip(G, a, ph, key):
    if 'ftest' in G.EXP and ph in os.environ.get('FTP', '0123'):
        l = a.newlabel("L_ft")
        a("v_readlane_b32 s46, v255, 3")
        a("s_and_b32 s47, s2, 63")
        a(f"s_xor_b32 s47, s47, {key}")
        a("s_nop 1")
        a("s_or_b32 s47, s47, s46")
        a("s_cmp_eq_u32 s47, 0")
        a(f"s_cbranch_scc1 {l}")
        return l
    return None


def tag_store(G, a, vl16, off, ph, key):
    v = G.v
    l = ftest_skip(G, a, ph, key)
    a(f"s_add_u32 s3, s100, {off}")
    a("s_mov_b64 exec, 0xff")
    a(f"buffer_store_dwordx4 {v(TGR,4)}, {v(vl16)}, s[76:79], s3 offen sc0 sc1")
    a("s_mov_b64 exec, -1")
    if l: a.label(l)


C16 = [(0, 10), (1, 11), (2, 12), (3, 13), (4, 8), (5, 9), (6, 7)]


def f1_epilogue(G, a, acc, FX, FW, RTAB, CTAB, BTAB, stamp, stamp_out):
    v, srd = G.v, G.srd
    F = G.F
    MT = 4
    assert FX == [40, 56] and FW == [72, 100]
    vL, vTb, vW0, vW1, vG3, tA, tB = 2, 3, 28, 29, 30, 31, 32
    RT = 40; K1 = 48
    GE = [72, 80]
    CB = [[4, 8, 12, 16], [20, 24, 88, 92]]
    c2 = 2 * math.log2(math.e)
    k1 = struct.unpack("<I", struct.pack("<f", -0.7978845608 * c2))[0]
    k3 = struct.unpack("<I", struct.pack("<f", -0.7978845608 * 0.044715 * c2))[0]
    POLY = 'nopoly' not in G.EXP
    PC = [0.3986486494541168, -0.06595586240291595, 0.009466097690165043, -0.0009645209647715092, 6.4104788179975e-05,
          -2.4431010388070717e-06, 3.9966728593299194e-08][::-1] + [0.5]
    PS = [52, 56, 40, 98]
    ETP = int(os.environ.get('ETP', '10'))

    def mf(q, mt):
        return f"v_mfma_f32_16x16x32_bf16 {v(acc(q,mt),4)}, {v(FW[1]+4*q,4)}, {v(FX[1]+4*mt,4)}, {v(acc(q,mt),4)}"
    M = [(q, mt) for p in range(3) for mt in range(MT) for q in (2 * p, 2 * p + 1)] + [(6, mt) for mt in range(MT)]
    midx = {x: i for i, x in enumerate(M)}

    V = []
    XE = os.environ.get('XE', '')
    def e(x, need=-1):
        if isinstance(x, str):
            if 's' in XE and x.startswith('buffer_store'): return
            if 'd' in XE and x.startswith('ds_write'): return
            if 'p' in XE and x.startswith('v_pk') and 's[' in x: return
            if 'q' in XE and x.startswith('v_pk') and need < 0: return
            if 'r' in XE and x == 'RES': return
        V.append((x, need))

    def tabread(p):
        b = CB[p & 1]
        e(f"s_mul_i32 s3, s45, {64*(C16[2*p][1] - C16[2*p][0])}")
        e(f"v_add_u32 {v(tA)}, s3, {v(vTb)}")
        for h in range(2 if p < 3 else 1):
            e(f"ds_read_b128 {v(b[h],4)}, {v(tA)} offset:{64*(h + C16[2*p][0])}")
            e(f"ds_read_b128 {v(b[2+h],4)}, {v(tA)} offset:{BTAB - CTAB + 64*(h + C16[2*p][0])}")

    def unit(u, c, cs, bf, rt, need):
        g = GE[u & 1] if not POLY else GE[0]
        P = [(c[h] + 2 * j, g + 4 * h + 2 * j, cs[h] + 2 * j, bf[h] + 2 * j, rt[h]) for h in range(2) for j in range(2)]
        for cc, t, s_, b_, r_ in P:
            e(f"v_pk_fma_f32 {v(t,2)}, {v(s_,2)}, {v(r_,2)}, {v(b_,2)} op_sel:[0,1,0] op_sel_hi:[1,1,1]")
        for cc, t, s_, b_, r_ in P:
            e(f"v_pk_fma_f32 {v(cc,2)}, {v(cc,2)}, {v(r_,2)}, {v(t,2)} op_sel:[0,0,0] op_sel_hi:[1,0,1]", need)
        if POLY:
            for cc, t, *_ in P: e(f"v_pk_mul_f32 {v(t+8,2)}, {v(cc,2)}, {v(cc,2)}")
            for cc, t, *_ in P: e(f"v_pk_fma_f32 {v(t,2)}, {v(t+8,2)}, s[52:53], s[52:53] op_sel:[0,0,1] op_sel_hi:[1,0,1]")
            for k in range(2, len(PC)):
                sp = PS[k >> 1]; h = k & 1
                for cc, t, *_ in P:
                    e(f"v_pk_fma_f32 {v(t,2)}, {v(t,2)}, {v(t+8 if k < len(PC)-1 else cc,2)}, s[{sp}:{sp+1}] op_sel:[0,0,{h}] op_sel_hi:[1,1,{h}]" + (" clamp" if k == len(PC) - 1 else ""))
            for cc, t, *_ in P: e(f"v_pk_mul_f32 {v(cc,2)}, {v(cc,2)}, {v(t,2)}")
            for i, (cc, *_) in enumerate(P): e(f"v_cvt_pk_bf16_f32 {v(c[0]+i)}, {v(cc)}, {v(cc+1)}")
            return
        for cc, t, *_ in P: e(f"v_pk_mul_f32 {v(t,2)}, {v(cc,2)}, {v(cc,2)}")
        for cc, t, *_ in P: e(f"v_pk_fma_f32 {v(t,2)}, {v(t,2)}, s[52:53], {v(K1,2)}")
        for cc, t, *_ in P: e(f"v_pk_mul_f32 {v(t,2)}, {v(t,2)}, {v(cc,2)}")
        for r in range(8): e(f"v_exp_f32 {v(g+r)}, {v(g+r)}")
        for cc, t, *_ in P: e(f"v_pk_add_f32 {v(t,2)}, {v(t,2)}, s[56:57]")
        for r in range(8): e(f"v_rcp_f32 {v(g+r)}, {v(g+r)}")
        for cc, t, *_ in P: e(f"v_pk_mul_f32 {v(cc,2)}, {v(cc,2)}, {v(t,2)}")
        for i, (cc, *_) in enumerate(P): e(f"v_cvt_pk_bf16_f32 {v(c[0]+i)}, {v(cc)}, {v(cc+1)}")

    if 'prio3' in G.EXP: a("s_setprio 3")
    a("s_memrealtime s[96:97]")
    a(f"v_and_b32 {v(tA)}, 15, v1")
    a("s_lshl_b32 s3, s44, 9")
    a(f"s_add_u32 s3, s3, {RTAB}")
    a(f"v_lshl_add_u32 {v(tA)}, {v(tA)}, 3, s3")
    for mt in range(MT):
        a(f"ds_read_b64 {v(RT+2*mt,2)}, {v(tA)} offset:{128*mt}")
    a(f"v_lshrrev_b32 {v(tB)}, 4, v1")
    a(f"v_lshlrev_b32 {v(vTb)}, 4, {v(tB)}")
    a(f"v_add_u32 {v(vTb)}, {CTAB}, {v(vTb)}")
    tabread(0)
    for x, _ in V: a(x)
    V.clear()
    tabread(1)
    e(f"v_lshlrev_b32 {v(vL)}, 4, v1")
    if POLY:
        for k, x in enumerate(PC): e(f"s_mov_b32 s{PS[k>>1]+(k&1)}, {G.hex_f32(x)}")
    else:
        e(f"s_mov_b32 s52, {k3}"); e(f"s_mov_b32 s53, {k3}")
        e(f"v_mov_b32 {v(K1)}, {k1}"); e(f"v_mov_b32 {v(K1+1)}, {k1}")
        e("s_mov_b32 s56, 1.0"); e("s_mov_b32 s57, 1.0")
    e("s_barrier")
    e(f"s_mul_i32 s50, s28, {128*F*2}")
    e(f"s_mul_i32 s3, s29, {7*8192}")
    e("s_add_u32 s50, s50, s3")
    e("s_lshl_b32 s3, s44, 12")
    e("s_add_u32 s50, s50, s3")
    e("s_lshr_b32 s92, s29, 3")
    e("s_and_b32 s93, s29, 7")
    e("s_lshl_b32 s46, s92, 11")
    e("s_add_u32 s54, s3, s46")
    e("s_xor_b32 s55, s54, 2048")
    e("s_lshl_b32 s100, s28, 4")
    e("s_add_u32 s100, s100, s29")
    e("s_lshl_b32 s100, s100, 2")
    e("s_add_u32 s100, s100, s30")
    e("s_lshl_b32 s100, s100, 7")
    e(f"v_and_b32 {v(vG3)}, 1, {v(tB)}")
    e(f"v_lshlrev_b32 {v(vG3)}, 10, {v(vG3)}")
    e(f"v_lshrrev_b32 {v(tB)}, 1, {v(tB)}")
    e(f"v_lshl_add_u32 {v(vG3)}, {v(tB)}, 8, {v(vG3)}")
    e(f"v_and_b32 {v(tB)}, 15, v1")
    e(f"v_lshl_add_u32 {v(vG3)}, {v(tB)}, 4, {v(vG3)}")
    e("s_waitcnt lgkmcnt(0)")
    u = 0
    nst = 0
    for p in range(4):
        b = CB[p & 1]
        if p < 3:
            e(f"s_mul_i32 s51, s45, {8192*(5, 5, 2)[p]}")
            e(f"s_add_u32 s51, s51, {8192*p}")
            e("s_lshl_b32 s3, s45, 13")
            e(f"s_add_u32 s3, s3, {32768*(p+1)}")
            e("s_add_u32 s51, s51, s50")
            e("s_add_u32 s46, s3, s54")
            e("s_add_u32 s47, s3, s55")
            e(f"v_add_u32 {v(vW0)}, s46, {v(vL)}")
            e(f"v_add_u32 {v(vW1)}, s47, {v(vL)}")
        else:
            e("s_lshl_b32 s51, s45, 9")
            e(f"s_add_u32 s51, s51, {3*8192}")
            e("s_add_u32 s51, s51, s50")
        if p >= 1: e("s_waitcnt lgkmcnt(0)")
        if p == 1:
            for j in range(4): e(f"v_mov_b32 {v(TGR+j)}, s{96+(j&1)}")
        for mt in (range(MT) if p < 3 else (0, 2)):
            if p < 3:
                c = [acc(2 * p, mt), acc(2 * p + 1, mt)]
                unit(u, c, b[0:2], b[2:4], [RT + 2 * mt] * 2, midx[(2 * p + 1, mt)])
                e(f"buffer_store_dwordx4 {v(c[0],4)}, {v(vL)}, s[12:15], s51 offen offset:{1024*mt}" + ("" if 'loc1' in G.EXP else " sc0 sc1"))
                e(f"ds_write_b128 {v(vW0 if mt < 2 else vW1)}, {v(c[0],4)} offset:{1024*(mt&1)}")
            else:
                c = [acc(6, mt), acc(6, mt + 1)]
                unit(u, c, [b[0]] * 2, [b[2]] * 2, [RT + 2 * mt, RT + 2 * mt + 2], midx[(6, mt + 1)])
                e("s_nop 1")
                e(f"v_permlane16_swap_b32 {v(c[0])}, {v(c[0]+2)}")
                e(f"v_permlane16_swap_b32 {v(c[0]+1)}, {v(c[0]+3)}")
                e("s_nop 1")
                e(f"buffer_store_dwordx4 {v(c[0],4)}, {v(vG3)}, s[12:15], s51 offen offset:{1024*mt} sc0 sc1")
            u += 1
            if u > 4: nst += 1
            if u == 2: e('RES', len(M) - 1)
            if os.environ.get('XS') and u in (1, 2, 4, 8): e(f"s_memrealtime s[{60+2*(1,2,4,8).index(u)}:{61+2*(1,2,4,8).index(u)}]")
            if os.environ.get('XS') and u == ETP: e(f"s_memrealtime s[72:73]")
            if u == ETP: e(('TAG', nst))
            if p < 2 and mt == MT - 1:
                tabread(p + 2)
    mi = 0
    def emit(x):
        if x == 'RES':
            srd(a, 16, 36, 0, G.D * 2)
            res_loads(G, a, tA, tB, 4, 16)
        elif isinstance(x, tuple):
            a(f"s_waitcnt vmcnt({x[1]})")
            tag_store(G, a, vL, TAG2, 'e', 19)
            stamp(5)
        else: a(x)
    vi = 0
    while mi < len(M):
        a(mf(*M[mi])); mi += 1
        k = 0
        while k < 2 and vi < len(V) and V[vi][1] <= mi - 3 and not V[vi][0].startswith('v_pk'):
            emit(V[vi][0])
            if V[vi][0][0] != 's': k += 1
            vi += 1
    a("s_nop 7")
    stamp(4)
    while vi < len(V):
        emit(V[vi][0]); vi += 1
    if not os.environ.get('XS'): stamp(6)
    stamp(7)
    stamp_out()
    a("s_branch P_f2_cw")


def gen_f2(G, a):
    v, srd, ARG, EXP = G.v, G.srd, G.ARG, G.EXP
    S, D, F, MB = G.S, G.D, G.F, G.MB
    CTRL = G.CTRL
    N = D; K = F
    NSTAGE = 5; NF = 25; NS = 31
    MT = NTW = 4; RB = 128
    ABYTES = 16384; STAGE = 32768
    lda = F * 2
    BUF = lambda st: ((st + 1) % NSTAGE) * STAGE
    LS = BUF(0) + 2048; XS = LS + 16
    RPM = int(os.environ.get('RPM2', '1'))
    JP = int(os.environ.get('JP', '8')); JL = float(os.environ.get('JL', '28'))
    NPOLL = int(os.environ.get('FZPOLL', '200'))
    XN = os.environ.get('XN', '')
    vA = [2, 3]; vB = [6, 7, 8, 9]; vTA = 10; vTB = 11; vB2 = [12, 13, 22, 23]; vPL = 24; PD = 26
    vL16 = 2; vXb = 3; vWb = [4, 5, 6, 7]; vXc = 8; vWc = [10, 11, 12, 13]
    vT = list(range(14, 22))
    FX = [24, 40]; FW = [56, 72]; PRT = 110; ACC = 160; TP = 144; XA = 148; ST = 152; vO = 9
    t0, t1, t2, t3 = vT[:4]

    def acc(nt, mt): return ACC + 4 * (nt * MT + mt)

    def stamp(i, force=False):
        if os.environ.get('XT'):
            if i >= 6: return
            if i in (2, 3): a(f"s_memtime s[{68+2*i}:{69+2*i}]")
        if 'stamp' in EXP:
            a(f"s_memrealtime s[{60+2*i}:{61+2*i}]")
            if i >= 6: a("s_waitcnt lgkmcnt(0)")

    def stamp_out():
        if 'stamp' not in EXP: return
        a("s_waitcnt lgkmcnt(0)")
        a("s_lshl_b32 s3, s2, 3")
        a("s_add_u32 s3, s3, s49")
        a("s_lshl_b32 s3, s3, 6")
        a("v_mov_b32 v2, s3")
        for i in range(4): a(f"v_mov_b32 v{4+i}, s{60+i}")
        srd(a, 60, 24, 203 * MB, 1 << 20)
        a("buffer_store_dwordx4 v[4:7], v2, s[60:63], 0 offen")
        a("s_nop 1")
        for i in range(2, 8):
            a(f"v_mov_b32 v4, s{60+2*i}")
            a(f"v_mov_b32 v5, s{61+2*i}")
            a(f"buffer_store_dwordx2 v[4:5], v2, s[60:63], 0 offen offset:{8*i}")
            a("s_nop 1")

    lab_lset = a.newlabel("L_lset"); lab_cset = a.newlabel("L_cset"); lab_fin = a.newlabel("L_fin")
    lab_h1 = a.newlabel("L_h1"); lab_h2 = a.newlabel("L_h2")

    a.label("P_ffn2_go")
    a(f"s_load_dwordx2 s[24:25], s[0:1], {ARG['ws']}")
    a(f"s_load_dwordx2 s[36:37], s[0:1], {ARG['b2']}")
    a("s_and_b32 s92, s29, 1")
    a("s_lshr_b32 s93, s29, 1")
    a("v_and_b32 v1, 63, v0")
    a(f"v_lshrrev_b32 {v(t0)}, 6, v0")
    a("s_nop 0")
    a(f"v_readfirstlane_b32 s49, {v(t0)}")
    a("s_nop 3")
    a("s_and_b32 s30, s49, 3")
    a("s_lshr_b32 s44, s30, 1")
    a("s_and_b32 s45, s30, 1")
    G.c3_write(a)
    a("s_add_u32 s95, s95, 1")
    a("s_waitcnt lgkmcnt(0)")
    a("s_barrier")
    a("s_cmp_ge_u32 s49, 4")
    a(f"s_cbranch_scc1 {lab_lset}")
    srd(a, 4, 24, G.WS_H, S * N * 2)
    srd(a, 16, 36, 0, N * 2)
    res_loads(G, a, t0, t1, 4, 16)
    a("s_waitcnt vmcnt(0)")
    a(f"s_branch {lab_cset}")
    lab_h3 = a.newlabel("L_h3")
    a.label(lab_h3)
    a("s_waitcnt vmcnt(0)")
    a("s_barrier")
    a("s_barrier")
    a(f"s_branch {lab_h2}")
    a.label(lab_h1)
    a("v_lshlrev_b32 v2, 4, v1")
    a("s_waitcnt vmcnt(0)")
    tag_store(G, a, 2, TAG2 + 131072, 'f', 23)
    a.label(lab_h2)
    a("s_waitcnt vmcnt(0) lgkmcnt(0)")
    a("s_barrier")
    a("s_branch S_next")

    a.lines.append(".p2align 6")
    a.label("P_f2_lw")
    stamp(0)
    a("v_readlane_b32 s46, v255, 3")
    a("s_lshr_b32 s92, s29, 3")
    a("s_and_b32 s93, s29, 7")
    a("s_mov_b32 s95, 0")
    a("s_cmp_lg_u32 s46, 0")
    a(f"s_cbranch_scc1 {lab_h3}")
    a("s_lshl_b32 s29, s93, 1")
    a("s_add_u32 s29, s29, s92")
    a.label(lab_lset)
    a(f"s_load_dwordx2 s[26:27], s[0:1], {ARG['w2']}")
    a("s_setprio 2")
    a(f"v_mov_b32 v247, {G.C3W}")
    a("ds_read_b32 v247, v247 offset:4")
    a(f"v_subrev_u32 {v(t0)}, 3, v1")
    a(f"v_mul_u32_u24 {v(t1)}, 37, {v(t0)}")
    a(f"v_lshrrev_b32 {v(t1)}, 8, {v(t1)}")
    a(f"v_mul_u32_u24 {v(t2)}, 7, {v(t1)}")
    a(f"v_sub_u32 {v(t0)}, {v(t0)}, {v(t2)}")
    a(f"v_add_u32 {v(t0)}, 1, {v(t0)}")
    a("v_cmp_gt_u32 vcc, 3, v1")
    a(f"v_cndmask_b32 {v(t0)}, {v(t0)}, 0, vcc")
    a(f"v_cndmask_b32 {v(t1)}, {v(t1)}, v1, vcc")
    a(f"v_add_u32 {v(t0)}, s93, {v(t0)}")
    a(f"v_and_b32 {v(t0)}, 7, {v(t0)}")
    a(f"v_mad_u32_u24 {v(t0)}, {v(t0)}, 7, {v(t1)}")
    a(f"v_cmp_gt_u32 vcc, 2, {v(t1)}")
    a(f"v_cndmask_b32 {v(t1)}, 2, 5, vcc")
    a(f"v_mad_u32_u24 {v(t0)}, {v(t1)}, s45, {v(t0)}")
    a("s_mul_i32 s3, s92, 56")
    a(f"v_add_u32 {v(vTB)}, s3, {v(t0)}")
    a(f"v_lshlrev_b32 {v(vTA)}, 13, {v(vTB)}")
    a(f"s_mul_i32 s3, s28, {128*lda}")
    a("s_lshl_b32 s46, s44, 12")
    a("s_add_u32 s3, s3, s46")
    a("s_add_u32 s3, s3, 4096")
    a("s_lshl_b32 s47, s92, 11")
    a("s_add_u32 s31, s3, s47")
    a("s_sub_u32 s3, s3, s47")
    a(f"v_lshl_add_u32 {v(vA[0])}, v1, 4, s31")
    a(f"v_lshl_add_u32 {v(vA[1])}, v1, 4, s3")
    a("s_lshl_b32 s31, s45, 13")
    a("s_add_u32 s31, s31, s46")
    a("s_lshl_b32 s32, s30, 12")
    a(f"s_add_u32 s32, s32, {ABYTES}")
    a("s_lshl_b32 s94, s93, 1")
    a("s_add_u32 s94, s94, s44")
    a("s_lshl_b32 s3, s94, 7")
    a(f"v_lshrrev_b32 {v(t0)}, 3, v1")
    a(f"v_and_b32 {v(t2)}, 7, v1")
    a(f"v_bfe_u32 {v(t1)}, v1, 4, 1")
    a(f"v_lshlrev_b32 {v(t1)}, 1, {v(t1)}")
    a(f"v_xor_b32 {v(t1)}, {v(t1)}, {v(t2)}")
    a(f"v_lshlrev_b32 {v(t1)}, 4, {v(t1)}")
    a(f"v_lshrrev_b32 {v(t2)}, 5, v1")
    a(f"v_and_b32 {v(t3)}, 3, {v(t0)}")
    a(f"v_lshl_add_u32 {v(t2)}, {v(t2)}, 4, {v(t3)}")
    a("s_waitcnt lgkmcnt(0)")
    srd(a, 8, 26, 0, K * N * 2)
    srd(a, 50, 24, G.WS_W2C, 2 * K * 256)
    a("v_readfirstlane_b32 s54, v247")
    a("s_lshr_b32 s47, s94, 3")
    a(f"s_mul_i32 s47, s47, {K*256}")
    a("s_and_b32 s46, s94, 7")
    a("s_nop 0")
    a("s_lshl_b32 s54, s54, 3")
    a("s_add_u32 s46, s46, s54")
    a("s_cmp_eq_u32 s46, 11")
    a("s_cselect_b32 s3, s47, s3")
    for i in range(3): a(f"s_cselect_b32 s{8+i}, s{50+i}, s{8+i}")
    a("s_cselect_b32 s55, 8, 11")
    a(f"v_add_u32 {v(t1)}, s3, {v(t1)}")
    a("s_add_u32 s54, s55, 5")
    a(f"v_lshlrev_b32 {v(vTB)}, s54, {v(vTB)}")
    for R, row, st in ((vB, t2, 4), (vB2, t0, 8)):
        a(f"v_lshl_add_u32 {v(R[0])}, {v(row)}, s55, {v(t1)}")
        a(f"s_lshl_b32 s46, {st}, s55")
        a(f"s_lshl_b32 s47, {2*st}, s55")
        a(f"v_xor_b32 {v(t3)}, 64, {v(R[0])}")
        a(f"v_add_u32 {v(R[1])}, s46, {v(t3)}")
        a(f"v_add_u32 {v(R[2])}, s47, {v(R[0])}")
        a(f"v_add_u32 {v(R[3])}, s47, {v(R[1])}")
    stamp(1)

    def lda_(base, n=4, so="s40"):
        a(f"s_add_u32 m0, s31, {base}")
        a("s_nop 0")
        for i in range(n):
            if 'a' not in XN: a(f"buffer_load_dwordx4 {v(vA[i>>1])}, s[4:7], {so} offen offset:{1024*i} lds")

    def ldb_(base, R=None, so="s41"):
        R = R or vB
        if isinstance(base, str):
            a(f"s_add_u32 s33, s32, {base}")
        for i in range(4):
            if isinstance(base, str): a(f"s_add_u32 m0, s33, {i*1024}")
            else: a(f"s_add_u32 m0, s32, {base + i*1024}")
            a("s_nop 0")
            if 'b' not in XN: a(f"buffer_load_dwordx4 {v(R[i])}, s[8:11], {so} offen lds")

    for st in range(4): a(f"v_readlane_b32 s{84+st}, {v(vTB)}, {st}")
    a(f"v_readlane_b32 s88, {v(vTB)}, 4")
    a("v_readlane_b32 s96, v255, 1")
    a("v_readlane_b32 s97, v255, 2")
    a(f"v_lshlrev_b32 {v(vPL)}, 7, v1")
    a("s_nop 1")
    for st in (0, 3): ldb_(BUF(st), so=f"s{84+st}")
    lc = a.newlabel("L_cold")
    a("s_cmp_lg_u32 s95, 0")
    a(f"s_cbranch_scc1 {lc}")
    a("s_waitcnt vmcnt(8)")
    a("s_barrier")
    a.label(lc)
    for st in (1, 2): ldb_(BUF(st), so=f"s{84+st}")
    srd(a, 4, 24, G.WS_H1 - 4096, S * lda + 4096)
    srd(a, 76, 24, G.WS_FL, TAGSZ)
    for st in range(5): a(f"v_readlane_b32 s{84+st if st < 4 else 89}, {v(vTA)}, {st}")
    a("s_add_u32 s98, s96, 0x1000000")
    a("s_addc_u32 s99, s97, 0")
    a("s_lshl_b32 s90, s28, 13")
    a(f"s_add_u32 s90, s90, {TAG2}")
    a(f"s_add_u32 s91, s90, 131072")
    a("s_lshl_b32 s3, s92, 12")
    a("s_add_u32 s90, s90, s3")
    a("s_mov_b32 s101, 0")

    def check():
        a(f"v_cmp_lt_u64 vcc, s[96:97], {v(PD,2)}")
        a(f"v_cmp_gt_u64 s[46:47], s[98:99], {v(PD,2)}")
        a("s_nop 1")
        a("s_and_b64 s[46:47], s[46:47], vcc")

    def poll(so, half):
        lp = a.newlabel("L_poll"); lok = a.newlabel("L_pok")
        if half: a("s_mov_b32 exec_hi, 0")
        a(f"s_mov_b32 s48, {NPOLL}")
        a.label(lp)
        a(f"buffer_load_dwordx2 {v(PD,2)}, {v(vPL)}, s[76:79], {so} offen sc0 sc1")
        a("s_waitcnt vmcnt(0)")
        check()
        a("s_cmp_eq_u64 s[46:47], exec")
        a(f"s_cbranch_scc1 {lok}")
        a("s_sub_u32 s48, s48, 1")
        a("s_cmp_lg_u32 s48, 0")
        a(f"s_cbranch_scc1 {lp}")
        a("s_mov_b32 s101, 1")
        a("s_mov_b32 s6, 0")
        a.label(lok)
        a("s_mov_b64 exec, -1")

    lw = a.newlabel("L_warm"); lnp = a.newlabel("L_np"); lw2 = a.newlabel("L_warm")
    a("s_cmp_eq_u32 s95, 0")
    a(f"s_cbranch_scc1 {lw}")
    a("s_cmp_eq_u32 s95, 2")
    a(f"s_cbranch_scc1 {lnp}")
    poll("s91", False)
    a.label(lnp)
    for st in range(3): lda_(BUF(st), so=f"s{84+st}")
    a(f"s_branch {lw2}")
    a.label(lw)
    a("s_barrier")
    a.label(lw2)
    a("s_waitcnt vmcnt(0)")
    a("s_barrier")
    ldb_(BUF(4), so="s88")
    lnp = a.newlabel("L_np")
    a("s_cmp_lg_u32 s95, 0")
    a(f"s_cbranch_scc1 {lnp}")
    poll("s90", True)
    a.label(lnp)
    stamp(2)
    lda_(BUF(3), so="s87")
    lda_(BUF(4), so="s89")
    for st in range(3):
        a(f"v_readlane_b32 s{84+st}, {v(vTA)}, {5+st}")
        a(f"v_readlane_b32 s{87+st}, {v(vTB)}, {5+st}")
    a(f"v_readlane_b32 s40, {v(vTA)}, 8")
    a(f"v_readlane_b32 s41, {v(vTB)}, 8")
    a("s_cmp_eq_u32 s95, 0")
    a("s_cselect_b32 s53, 8, 0")
    a("s_mov_b32 s48, 8")
    a(f"s_mov_b32 s43, {BUF(8)}")
    a("s_waitcnt vmcnt(4)")
    a("s_barrier")
    for st in range(3):
        lda_(BUF(5 + st), so=f"s{84+st}")
        ldb_(BUF(5 + st), so=f"s{87+st}")
    lloop = a.newlabel("L_lloop"); lev = a.newlabel("L_lev"); levb = a.newlabel("L_levb")
    a.label(lloop)
    a("s_cmp_eq_u32 s48, s53")
    a("s_waitcnt vmcnt(24)")
    a("s_barrier")
    a(f"s_cbranch_scc1 {lev}")
    a.label(levb)
    a("s_add_u32 s48, s48, 1")
    lda_("s43")
    a(f"v_readlane_b32 s40, {v(vTA)}, s48")
    ldb_("s43")
    a(f"v_readlane_b32 s41, {v(vTB)}, s48")
    a(f"s_add_u32 s43, s43, {STAGE}")
    a(f"s_cmp_ge_u32 s43, {STAGE*NSTAGE}")
    a("s_cselect_b32 s43, 0, s43")
    a("s_cmp_lg_u32 s48, 24")
    a(f"s_cbranch_scc1 {lloop}")
    a("s_mul_i32 s84, s45, 7")
    a("s_add_u32 s84, s84, 3")
    a("s_mul_i32 s3, s92, 56")
    a("s_sub_u32 s85, s84, s3")
    a("s_add_u32 s85, s85, 56")
    a("s_add_u32 s84, s84, s3")
    Q = [('d', j) for j in range(20, 24) for _ in range(8)]
    for j in range(20, NS):
        last = max(i for i, x in enumerate(Q) if x == ('d', j))
        st = j + 4
        if st < NS:
            a(f"s_add_u32 s41, s{84 if st < 28 else 85}, {14*(st-24 if st < 28 else st-27)}")
            a("s_lshl_b32 s40, s41, 13")
            a("s_lshl_b32 s41, s41, s54")
        a(f"s_waitcnt vmcnt({len(Q)-1-last})")
        a("s_barrier")
        if st < NS:
            n = 4 if st < NF else 2
            lda_(BUF(st), n)
            ldb_(BUF(st), vB2)
            Q += [('d', st)] * (n + 4)
        if j == 21:
            a("s_lshl_b32 s3, s30, 2")
            a(f"s_add_u32 s3, s3, {LS}")
            a(f"v_mov_b32 {v(t0)}, s3")
            a(f"v_mov_b32 {v(t1)}, s101")
            a(f"ds_write_b32 {v(t0)}, {v(t1)}")
            a("s_waitcnt lgkmcnt(0)")
    stamp(3)
    a(f"s_branch {lab_fin}")
    a.label(lev)
    l2 = a.newlabel("L_lev2"); l3 = a.newlabel("L_lev3")
    a("s_bitcmp1_b32 s48, 1")
    a(f"s_cbranch_scc1 {l2}")
    a(f"buffer_load_dwordx2 {v(PD,2)}, {v(vPL)}, s[76:79], s91 offen sc0 sc1")
    a("s_add_u32 s53, s48, 2")
    a(f"s_branch {levb}")
    a.label(l2)
    a("s_waitcnt vmcnt(16)")
    check()
    a("s_cmp_eq_u64 s[46:47], exec")
    a(f"s_cbranch_scc1 {levb}")
    a("s_mov_b32 s52, s48")
    a("s_cmp_eq_u32 s48, 10")
    a(f"s_cbranch_scc0 {l3}")
    a("s_mov_b32 s53, 20")
    a("s_cmp_eq_u32 s92, 0")
    a("s_cselect_b32 s46, s46, s47")
    a("s_cmp_eq_u32 s46, -1")
    a(f"s_cbranch_scc1 {levb}")
    a("s_add_u32 s90, s90, 131072")
    poll("s90", True)
    a("s_mov_b32 s48, s52")
    a(f"s_branch {levb}")
    a.label(l3)
    poll("s91", False)
    a("s_mov_b32 s48, s52")
    a(f"s_branch {levb}")

    a.lines.append(".p2align 6")
    a.label("P_f2_cw")
    stamp(0)
    a("v_readlane_b32 s46, v255, 3")
    a("s_mov_b32 s95, 0")
    a("s_nop 2")
    a("s_cmp_lg_u32 s46, 0")
    a(f"s_cbranch_scc1 {lab_h1}")
    a("s_lshl_b32 s29, s93, 1")
    a("s_add_u32 s29, s29, s92")
    a.label(lab_cset)
    a(f"s_load_dwordx2 s[34:35], s[0:1], {ARG['out']}")
    a(f"v_lshlrev_b32 {v(vL16)}, 4, v1")
    a("s_lshl_b32 s3, s44, 12")
    a(f"v_add_u32 {v(vXb)}, s3, {v(vL16)}")
    a(f"v_lshrrev_b32 {v(t1)}, 4, v1")
    a(f"v_bfe_u32 {v(t0)}, v1, 2, 2")
    a(f"v_lshl_add_u32 {v(t2)}, {v(t1)}, 3, {v(t0)}")
    a(f"v_and_b32 {v(t3)}, 1, {v(t1)}")
    a(f"v_lshrrev_b32 {v(t0)}, 1, {v(t0)}")
    a(f"v_lshl_add_u32 {v(t3)}, {v(t3)}, 1, {v(t0)}")
    a(f"v_lshlrev_b32 {v(t2)}, 7, {v(t2)}")
    a(f"v_and_b32 {v(t0)}, 3, v1")
    a(f"v_lshl_add_u32 {v(t2)}, {v(t0)}, 3, {v(t2)}")
    a("s_lshl_b32 s3, s45, 13")
    a(f"s_add_u32 s3, s3, {ABYTES}")
    a(f"v_add_u32 {v(t2)}, s3, {v(t2)}")
    for nt in range(NTW):
        a(f"v_xor_b32 {v(t0)}, {nt}, {v(t3)}")
        a(f"v_lshl_add_u32 {v(vWb[nt])}, {v(t0)}, 5, {v(t2)}")
    a(f"s_mov_b32 s42, {BUF(0)}")

    cur = lambda: ([f"v_add_u32 {v(vXc)}, s42, {v(vXb)}"] +
                   [f"v_add_u32 {v(vWc[nt])}, s42, {v(vWb[nt])}" for nt in range(NTW)] +
                   [f"s_add_u32 s42, s42, {STAGE}", f"s_cmp_ge_u32 s42, {STAGE*NSTAGE}", "s_cselect_b32 s42, 0, s42"])

    def read_list(kk, f, nm=MT):
        L = []
        for nt in range(NTW):
            if nt < nm and 'x' not in XN: L.append(f"ds_read_b128 {v(FX[f]+4*nt,4)}, {v(vXc)} offset:{kk*8192+nt*1024}")
            for rd in range(2):
                if 'w' not in XN: L.append(f"ds_read_b64_tr_b16 {v(FW[f]+4*nt+2*rd,2)}, {v(vWc[nt])} offset:{kk*32*RB+rd*4*RB}")
        return L

    def mf(f, nt, mt):
        return f"v_mfma_f32_16x16x32_bf16 {v(acc(nt,mt),4)}, {v(FW[f]+4*nt,4)}, {v(FX[f]+4*mt,4)}, {v(acc(nt,mt),4)}"

    def inter(R, Mm, extra=(), rpm=RPM, epm=3, early=False):
        extra = list(extra)
        ri = 0
        for i in range(len(Mm)):
            if 'm' not in XN: a(Mm[i])
            k_ = 0
            while k_ < rpm and ri < len(R): a(R[ri]); ri += 1; k_ += 1
            if early or (ri == len(R) and k_ == 0):
                for _ in range(epm):
                    if extra:
                        x = extra.pop(0)
                        if x: a(x)
        while ri < len(R): a(R[ri]); ri += 1
        for x in extra:
            if x: a(x)
        a("s_waitcnt lgkmcnt(0)")

    full = lambda f: [mf(f, nt, mt) for nt in range(NTW) for mt in range(MT)]
    keep = lambda f: [mf(f, nt, mt) for nt in range(NTW) for mt in range(2)]
    send = lambda f: [mf(f, nt, mt) for nt in range(NTW) for mt in (2, 3)]

    for x in cur(): a(x)
    a("s_waitcnt lgkmcnt(0)")
    stamp(1)
    if 'prio3' in EXP: a("s_setprio 0")
    a("s_barrier")
    stamp(2)
    for x in read_list(0, 1): a(x)
    for nt in range(NTW):
        for mt in range(2):
            c0 = acc(nt, mt)
            for j in range(2):
                a(f"v_lshlrev_b32 {v(c0+2*j)}, 16, {v(RESR+4*nt+2*mt+j)}")
                a(f"v_and_b32 {v(c0+2*j+1)}, 0xffff0000, {v(RESR+4*nt+2*mt+j)}")
        for j in range(2):
            a(f"v_lshlrev_b32 {v(TP+2*j)}, 16, {v(BIAR+2*nt+j)}")
            a(f"v_and_b32 {v(TP+2*j+1)}, 0xffff0000, {v(BIAR+2*nt+j)}")
        for mt in range(2):
            c0 = acc(nt, mt)
            for j in range(2):
                a(f"v_pk_add_f32 {v(c0+2*j,2)}, {v(c0+2*j,2)}, {v(TP+2*j,2)}")
    a("s_waitcnt lgkmcnt(0)")
    srd(a, 12, 34, 0, S * N * 2)
    srd(a, 84, 24, G.WS_PART, 256 * 32768)
    first = [f"v_mfma_f32_16x16x32_bf16 {v(acc(nt,mt),4)}, {v(FW[1]+4*nt,4)}, {v(FX[1]+4*mt,4)}, {v(acc(nt,mt),4) if mt < 2 else 0}"
             for nt in range(NTW) for mt in (2, 3, 0, 1)]
    FT = int(os.environ.get('FT', '2'))
    inter(read_list(1, 0), first, cur() + [f"s_mov_b32 s48, {NF-1}", "s_cmp_eq_u32 s95, 0", f"s_cselect_b32 s53, {NF-FT}, 0"])
    lbar = a.newlabel("L_cbar"); lnb = a.newlabel("L_cnb")
    a(f"s_branch {lnb}")
    lft = a.newlabel("L_ft"); lftb = a.newlabel("L_ftb")
    a.label(lft)
    a("s_waitcnt vmcnt(0)")
    tag_store(G, a, vL16, TAG2 + 131072, 'f', 23)
    a(f"s_branch {lftb}")
    jx = ["s_cmp_eq_u32 s48, s53", f"s_cbranch_scc1 {lft}", f"{lftb}:"]
    a.label(lbar)
    a("s_barrier")
    a.label(lnb)
    inter(read_list(0, 1), full(0), jx)
    inter(read_list(1, 0), full(1), cur() + ["s_sub_u32 s48, s48, 1", "s_sub_u32 s47, s48, 1", f"s_cmp_lt_u32 s47, {NF-3}"])
    a(f"s_cbranch_scc1 {lbar}")
    a("s_cmp_lg_u32 s48, 0")
    a(f"s_cbranch_scc1 {lnb}")
    stamp(3)
    if 'prio4' in EXP: a("s_setprio 3")
    a("s_memrealtime s[96:97]")
    a("s_lshl_b32 s94, s28, 4")
    a("s_add_u32 s94, s94, s29")
    a("s_lshl_b32 s94, s94, 2")
    a("s_add_u32 s94, s94, s30")
    a("s_lshl_b32 s50, s94, 13")
    a("s_add_u32 s51, s50, 4096")
    a("s_xor_b32 s52, s50, 0x8000")
    a("s_xor_b32 s53, s51, 0x8000")
    a("s_mov_b32 s54, 0xfffff000")
    a(f"v_mov_b32 {v(t0)}, {LS}")
    pl = [f"buffer_load_dwordx4 {v(PRT+4*i,4)}, {v(vL16)}, s[84:87], s{52 if i < 4 else 53} offen offset:{1024*(i&3)} sc0 sc1" for i in range(8)]
    for j in range(NF, NS):
        a("s_barrier")
        if j == NF:
            inter([f"ds_read_b128 {v(ST,4)}, {v(t0)}"] + read_list(0, 1, 2), send(0) + keep(0))
            ex = ["s_and_b32 s3, s96, 0xfff", "s_bfe_u32 s46, s96, 0xc000c", "s_bfe_u64 s[98:99], s[96:97], 0xc0018", "s_bfe_u32 s47, s97, 0xc0004",
                  f"v_or3_b32 {v(ST)}, {v(ST)}, {v(ST+1)}, {v(ST+2)}", f"v_or_b32 {v(ST)}, {v(ST)}, {v(ST+3)}",
                  f"v_mov_b32 {v(TP)}, s3", f"v_mov_b32 {v(TP+1)}, s46", f"v_mov_b32 {v(TP+2)}, s98", f"v_mov_b32 {v(TP+3)}, s47",
                  f"v_cmp_eq_u32 s[56:57], 0, {v(ST)}"]
            for x in ex: a(x)
            SM = 56
            if 'ftest' in EXP and '3' in os.environ.get('FTP', '0123'):
                SM = 58
                a("s_mov_b64 s[58:59], 0")
                lsk = ftest_skip(G, a, '3', 33)
                a("s_mov_b64 s[58:59], s[56:57]")
                a.label(lsk)
            SD = []
            for nt in range(NTW):
                for mt in (2, 3):
                    c0 = acc(nt, mt)
                    SD.append([f"v_and_or_b32 {v(c0+r)}, {v(c0+r)}, s54, {v(TP+r)}" for r in range(4)] +
                              [f"s_mov_b64 exec, s[{SM}:{SM+1}]",
                               f"buffer_store_dwordx4 {v(c0,4)}, {v(vL16)}, s[84:87], s{50 if nt < 2 else 51} offen offset:{1024*((2*nt+mt-2)&3)} sc0 sc1",
                               "s_mov_b64 exec, -1"])
            SPR = list(eval(os.environ.get('SPR', '(4,2,2)')))
            def sd():
                n = SPR.pop(0) if SPR else 0
                L = []
                for i in range(n):
                    L += SD.pop(0)
                    if n <= 4: L += [None] * (7 * (8 // n - 1))
                return L
            inter(read_list(1, 0, 2), keep(1), sd() + cur(), rpm=2, epm=7, early=True)
            stamp(4)
        else:
            x = sd()
            inter(read_list(0, 1, 2), keep(0), x + (pl if j == JL else []), rpm=2, epm=7 if x else 3, early=bool(x))
            x = sd()
            inter(read_list(1, 0, 2), keep(1), x + (pl if j == JL - 0.5 else []) + (cur() if j < NS - 1 else []), rpm=2, epm=7 if x else 3, early=bool(x))
    assert not SD
    a("v_readlane_b32 s96, v255, 1")
    a("v_readlane_b32 s97, v255, 2")
    a("v_readlane_b32 s55, v255, 7")
    a("v_writelane_b32 v255, 0, 7")
    a(f"v_and_b32 {v(vO)}, 15, v1")
    a(f"v_bfe_u32 {v(t0)}, v1, 4, 1")
    a(f"v_lshlrev_b32 {v(vO)}, 11, {v(vO)}")
    a(f"v_lshl_add_u32 {v(vO)}, {v(t0)}, 5, {v(vO)}")
    a(f"v_lshrrev_b32 {v(t0)}, 5, v1")
    a(f"v_lshl_add_u32 {v(vO)}, {v(t0)}, 4, {v(vO)}")
    a("s_and_b32 s97, s97, 0xffff")
    a("s_add_u32 s98, s96, 0x1000000")
    a("s_addc_u32 s99, s97, 0")
    a(f"s_mov_b32 s48, {NPOLL}")
    a("s_movk_i32 s54, 0xfff")
    val = [f"v_xor_b32 {v(XA+r)}, {v(PRT+4+r)}, {v(PRT+r)}" for r in range(4)]
    for i in range(2, 8):
        val += [f"v_bitop3_b32 {v(XA+r)}, {v(XA+r)}, {v(PRT+4*i+r)}, {v(PRT+r)} bitop3:0xf6" for r in range(4)]
    val += [f"v_and_b32 {v(TP)}, s54, {v(PRT)}", f"v_and_b32 {v(TP+2)}, s54, {v(PRT+1)}",
            f"v_bfe_u32 {v(TP+1)}, {v(PRT+2)}, 8, 4", f"v_and_b32 {v(TP+3)}, s54, {v(PRT+3)}",
            f"v_or3_b32 {v(XA)}, {v(XA)}, {v(XA+1)}, {v(XA+2)}",
            f"v_lshl_or_b32 {v(TP)}, {v(TP+2)}, 12, {v(TP)}", f"v_lshl_or_b32 {v(TP+1)}, {v(TP+3)}, 4, {v(TP+1)}",
            f"v_or_b32 {v(XA)}, {v(XA)}, {v(XA+3)}",
            f"v_lshl_or_b32 {v(TP)}, {v(PRT+2)}, 24, {v(TP)}", f"v_lshl_or_b32 {v(TP+1)}, {v(XA)}, 20, {v(TP+1)}",
            f"v_cmp_lt_u64 vcc, s[96:97], {v(TP,2)}", f"v_cmp_gt_u64 s[46:47], s[98:99], {v(TP,2)}",
            "s_nop 1", "s_and_b64 s[46:47], s[46:47], vcc", "s_cmp_eq_u64 s[46:47], exec"]
    km = keep(0)
    a(km[0]); a(km[1])
    a("s_waitcnt vmcnt(0)")
    vv = list(val)
    for x in km[2:]:
        a(x)
        for _ in range(3): a(vv.pop(0))
    for x in vv: a(x)
    lok = a.newlabel("L_xok"); lp = a.newlabel("L_xp"); lno = a.newlabel("L_xno")
    a(f"s_cbranch_scc0 {lp}")
    a.label(lok)
    stamp(5)
    a("s_lshl_b32 s3, s28, 18")
    a("s_lshl_b32 s46, s44, 17")
    a("s_add_u32 s3, s3, s46")
    a("s_lshl_b32 s46, s92, 16")
    a("s_add_u32 s3, s3, s46")
    a("s_lshl_b32 s46, s93, 8")
    a("s_add_u32 s3, s3, s46")
    a("s_lshl_b32 s46, s45, 7")
    a("s_add_u32 s3, s3, s46")
    a("s_add_u32 s46, s3, 32768")
    a("s_mov_b64 exec, s[56:57]")
    U = [(p, mt) for p in range(2) for mt in range(2)]
    a("s_mov_b32 s54, 0xfffff000")
    def fin_a(p, mt):
        for q in (2 * p, 2 * p + 1):
            for r in range(4):
                a(f"v_and_b32 {v(PRT+4*(2*q+mt)+r)}, s54, {v(PRT+4*(2*q+mt)+r)}")
        for q in (2 * p, 2 * p + 1):
            for j in range(2):
                a(f"v_pk_add_f32 {v(acc(q,mt)+2*j,2)}, {v(acc(q,mt)+2*j,2)}, {v(PRT+4*(2*q+mt)+2*j,2)}")
        c0 = acc(2 * p, mt)
        for i in range(4):
            cc = acc(2 * p + (i >> 1), mt) + 2 * (i & 1)
            a(f"v_cvt_pk_bf16_f32 {v(c0+i)}, {v(cc)}, {v(cc+1)}")
    def fin_b(p, mt):
        c0 = acc(2 * p, mt)
        a(f"v_permlane16_swap_b32 {v(c0)}, {v(c0+2)}")
        a(f"v_permlane16_swap_b32 {v(c0+1)}, {v(c0+3)}")
    def fin_c(p, mt):
        a(f"buffer_store_dwordx4 {v(acc(2*p,mt),4)}, {v(vO)}, s[12:15], s{3 if mt == 0 else 46} offen offset:{64*p}")
    for i in range(6):
        if i < 4: fin_a(*U[i])
        elif i == 4: a("s_nop 1")
        if 1 <= i < 5: fin_b(*U[i - 1])
        if i == 5: a("s_nop 1")
        if i >= 2: fin_c(*U[i - 2])
    a("s_mov_b32 s48, 1")
    a("s_mov_b64 exec, -1")
    a.label(lno)
    a("s_cmp_eq_u32 s48, 0")
    a("s_cselect_b32 s3, 1, 0")
    a("s_lshl_b32 s46, s30, 2")
    a(f"s_add_u32 s46, s46, {XS}")
    a(f"v_mov_b32 {v(t0)}, s46")
    a(f"v_mov_b32 {v(t1)}, s3")
    a(f"ds_write_b32 {v(t0)}, {v(t1)}")
    a("s_waitcnt lgkmcnt(0)")

    a.label(lab_fin)
    a(f"v_mov_b32 {v(t0)}, {LS}")
    a("v_readlane_b32 s46, v255, 3")
    stamp(6)
    a("s_barrier")
    a(f"ds_read_b128 {v(ST,4)}, {v(t0)}")
    a(f"ds_read_b128 {v(ST+4,4)}, {v(t0)} offset:16")
    a("s_waitcnt lgkmcnt(0)")
    for h in range(2):
        a(f"v_or3_b32 {v(ST+4*h)}, {v(ST+4*h)}, {v(ST+4*h+1)}, {v(ST+4*h+2)}")
        a(f"v_or_b32 {v(ST+4*h)}, {v(ST+4*h)}, {v(ST+4*h+3)}")
    a(f"v_cmp_ne_u32 vcc, 0, {v(ST)}")
    a("s_cbranch_vccnz S_fail3")
    a("s_cmp_lg_u32 s46, 0")
    a(f"s_cbranch_scc1 {lab_h2}")
    a(f"v_cmp_ne_u32 vcc, 0, {v(ST+4)}")
    a("s_cbranch_vccnz S_fail4")
    if 'stamp' in EXP: a("s_waitcnt vmcnt(0)")
    stamp(7)
    stamp_out()
    a("s_endpgm")
    a.label(lp)
    a("s_cmp_lg_u32 s55, 0")
    a(f"s_cbranch_scc1 {lok}")
    a("s_sub_u32 s48, s48, 1")
    a("s_cmp_eq_u32 s48, 0")
    a(f"s_cbranch_scc1 {lno}")
    for x in pl: a(x)
    a("s_waitcnt vmcnt(0)")
    for x in val: a(x)
    a(f"s_cbranch_scc1 {lok}")
    a(f"s_branch {lp}")
```

```python
import math, struct, os


def gen_qa(G, a, name, wpf=None):
    v, s, srd, hex_f32 = G.v, G.s, G.srd, G.hex_f32
    ARG, EXP = G.ARG, G.EXP
    S, D, F, DH = G.S, G.D, G.F, G.DH
    MB = 1 << 20
    WT = 'sc0 sc1' if G.FZ else ''
    WOC = not G.FZ
    WS_RS = 3 * MB
    KFO = 65536
    WS_KV = 4 * MB
    K = D; N = 3 * D
    BM, BN, BK, NSTAGE = 256, 96, 64, 3
    MT, NTW, RB = 4, 6, 64
    ABYTES = BM * BK * 2; BBYTES = BK * BN * 2; STAGE = ABYTES + BBYTES
    PA, PB = 8, 3
    P = PA + PB
    NS = K // BK
    lda = K * 2
    XQ, PK, PV, OQ, OK_, OV = 49152, 65536, 81920, 98304, 114688, 131072
    RTAB = 147456; CTAB = 149504; STG = 149888; STAT = 149952; NONCE = 149960; STAT2 = 150016
    lds = 163840
    NPOLL = int(os.environ.get('NPOLL', '48'))
    vXb = [2, 3]; vWb = list(range(4, 10)); vXc = [10, 11]; vWc = list(range(12, 18))
    vT = list(range(18, 26))
    FX = [28, 44]; FW = [60, 84]; ACC = 108; CSA = 204; ONE = 212; PFD = 216; PFV = 220
    QF = 224
    XPA, XPB = 221, 222
    DUM = 232
    LA = int(os.environ.get('XLA', '5'))
    QW2 = 'qw2' in EXP
    SIDEATT = os.environ.get('SIDEAT', 'x') == 'att'
    W1S = 164; W2S = [232, 236, 240, 244, 248, 252, 196]
    t0, t1, t2, t3 = vT[0], vT[1], vT[2], vT[3]
    vA = list(range(2, 10)); vB = list(range(10, 13))

    def acc(nt, mt):
        return ACC + 4 * (nt * MT + mt)

    def stamp(i):
        if 'itst' in EXP and i in (4, 5, 6): return
        if 'stamp' in EXP:
            a(f"s_mem{'real' if ('rt2' in EXP and i in (0, 7)) or G.FZ else ''}time s[{60+2*i}:{61+2*i}]")
            if i >= 4: a("s_waitcnt lgkmcnt(0)")

    def stamp_out():
        if 'stamp' not in EXP: return
        a("s_waitcnt lgkmcnt(0)")
        a("s_lshl_b32 s3, s2, 3")
        a("s_add_u32 s3, s3, s49")
        a("s_lshl_b32 s3, s3, 6")
        a("v_mov_b32 v2, s3")
        a("s_lshl_b32 s3, s101, 4")
        a("s_or_b32 s61, s3, s45")
        a("s_lshl_b32 s3, s51, 8")
        a("s_or_b32 s61, s3, s61")
        for i in range(4): a(f"v_mov_b32 v{4+i}, s{60+i}")
        srd(a, 60, 24, 200 * MB, 1 << 20)
        a("buffer_store_dwordx4 v[4:7], v2, s[60:63], 0 offen")
        a("s_nop 1")
        for i in range(2, 8):
            a(f"v_mov_b32 v4, s{60+2*i}")
            a(f"v_mov_b32 v5, s{61+2*i}")
            a(f"buffer_store_dwordx2 v[4:5], v2, s[60:63], 0 offen offset:{8*i}")
            a("s_nop 1")

    def stats_load(Dr, T, srow):
        a(f"v_lshlrev_b32 {v(T)}, 5, v1")
        a(f"s_lshl_b32 s3, s{srow}, 11")
        for r in range(2):
            for j in range(2):
                a(f"buffer_load_dwordx4 {v(Dr+8*r+4*j,4)}, {v(T)}, s[4:7], s3 offen offset:{2048*r+16*j}")

    def stats_math(Dr, T):
        A0 = T; A1 = T + 4; O1 = T + 8; AD = T + 9
        a(f"v_mov_b32 {v(O1)}, 0x3f803f80")
        for j in range(4):
            a(f"v_mov_b32 {v(A0+j)}, 0")
        for r in range(2):
            for j in range(8):
                d = v(Dr + 8 * r + j)
                a(f"v_dot2_f32_bf16 {v(A0+2*r)}, {d}, {v(O1)}, {v(A0+2*r)}")
                a(f"v_dot2_f32_bf16 {v(A0+2*r+1)}, {d}, {d}, {v(A0+2*r+1)}")
        a("s_nop 3")
        cur, oth = A0, A1
        for mode in ("quad_perm:[1,0,3,2]", "quad_perm:[2,3,0,1]", "row_half_mirror", "row_mirror"):
            for j in range(4):
                a(f"v_add_f32_dpp {v(oth+j)}, {v(cur+j)}, {v(cur+j)} {mode} row_mask:0xf bank_mask:0xf")
            a("s_nop 1")
            cur, oth = oth, cur
        assert cur == A0
        for x in (16, 32):
            a(f"v_xor_b32 {v(AD)}, {x}, v1")
            a(f"v_lshlrev_b32 {v(AD)}, 2, {v(AD)}")
            for j in range(4):
                a(f"ds_bpermute_b32 {v(A1+j)}, {v(AD)}, {v(A0+j)}")
            a("s_waitcnt lgkmcnt(0)")
            for j in range(4):
                a(f"v_add_f32 {v(A0+j)}, {v(A0+j)}, {v(A1+j)}")
        for r in range(2):
            sm, sq = A0 + 2 * r, A0 + 2 * r + 1
            a(f"v_mul_f32 {v(sm)}, {hex_f32(1.0/K)}, {v(sm)}")
            a(f"v_mul_f32 {v(sq)}, {hex_f32(1.0/K)}, {v(sq)}")
            a(f"v_fma_f32 {v(sq)}, -{v(sm)}, {v(sm)}, {v(sq)}")
            a(f"v_max_f32 {v(sq)}, 0, {v(sq)}")
            a(f"v_add_f32 {v(sq)}, {hex_f32(1e-5)}, {v(sq)}")
            a(f"v_rsq_f32 {v(sq)}, {v(sq)}")
            a("s_nop 0")
            a(f"v_mul_f32 {v(A1)}, {v(sm)}, {v(sq)}")
            a(f"v_mov_b32 {v(sm)}, {v(sq)}")
            a(f"v_sub_f32 {v(sq)}, 0, {v(A1)}")

    def local_stats(Dr, T):
        lp = a.newlabel("L_ls")
        a("s_mov_b32 s101, 1")
        a("s_lshl_b32 s46, s49, 5")
        a("s_add_u32 s47, s46, s98")
        a("s_mov_b32 s52, 16")
        a.label(lp)
        stats_load(Dr, T, 47)
        a("s_waitcnt vmcnt(0)")
        stats_math(Dr, T)
        a("s_lshl_b32 s3, s46, 3")
        a(f"s_add_u32 s3, s3, {RTAB}")
        a(f"v_mov_b32 {v(T+9)}, s3")
        a(f"ds_write_b128 {v(T+9)}, {v(T,4)}")
        a("s_add_u32 s46, s46, 2")
        a("s_add_u32 s47, s47, 2")
        a("s_sub_u32 s52, s52, 1")
        a("s_cmp_lg_u32 s52, 0")
        a(f"s_cbranch_scc1 {lp}")
        a("s_waitcnt lgkmcnt(0)")
        a("s_barrier")

    G.kernel_header(a, name)
    end = a.newlabel("L_end")
    stamp(0)
    lab_loader = a.newlabel("L_loader")
    lab_att = a.newlabel("L_att")
    a("s_cmp_ge_u32 s2, 256")
    a(f"s_cbranch_scc1 {end}")
    if 'hop' in EXP: a("s_mov_b32 s80, 0")
    if 'fdelay' in EXP:
        a("s_and_b32 s3, s2, 63")
        a("s_cmp_lg_u32 s3, 9")
        a("s_cbranch_scc1 L_nodelay")
        a(f"s_mov_b32 s3, {os.environ.get('FDEL', '200')}")
        a.label("L_delay")
        a("s_sleep 64")
        a("s_sub_u32 s3, s3, 1")
        a("s_cmp_lg_u32 s3, 0")
        a("s_cbranch_scc1 L_delay")
        a.label("L_nodelay")
    if 'qtop' in EXP:
        lh = a.newlabel("L_pc")
        a("s_getpc_b64 s[46:47]")
        a.label(lh)
        a("v_lshrrev_b32 v2, 5, v0")
        a("v_and_b32 v3, 1, v0")
        a("s_lshr_b32 s3, s2, 3")
        a("s_lshl_b32 s3, s3, 4")
        a("v_add3_u32 v2, v2, v3, s3")
        a("v_lshlrev_b32 v2, 7, v2")
        a(f"v_min_u32 v2, {'L_code_end' if G.FZ else end}-{lh}-4, v2")
        a("s_mov_b64 exec, 3")
        a("global_load_dword v254, v2, s[46:47]")
        a("s_mov_b64 exec, -1")
    a(f"s_load_dwordx2 s[24:25], s[0:1], {ARG['ws']}")
    a(f"s_load_dwordx2 s[58:59], s[0:1], {ARG['x']}")
    a(f"s_load_dwordx2 s[26:27], s[0:1], {ARG['wqkv']}")
    a("s_memrealtime s[34:35]")
    a("s_and_b32 s3, s2, 7")
    a("s_lshr_b32 s46, s2, 3")
    a("s_and_b32 s29, s3, 3")
    a("s_lshl_b32 s29, s29, 3")
    a("s_and_b32 s47, s46, 7")
    a("s_add_u32 s29, s29, s47")
    a("s_lshr_b32 s28, s3, 2")
    a("s_lshl_b32 s28, s28, 2")
    a("s_lshr_b32 s47, s46, 3")
    a("s_add_u32 s28, s28, s47")
    RM = G.RM
    if RM:
        a("s_mov_b32 s28, s3")
        a("s_mov_b32 s29, s46")
    if G.FZ:
        a("v_writelane_b32 v255, 0, 3")
        a("v_writelane_b32 v255, 0, 5")
        a("v_writelane_b32 v255, 0, 6")
        a("v_writelane_b32 v255, 0, 7")
        a.label("Q_go")
    a("s_lshl_b32 s99, s28, 5")
    a("s_add_u32 s99, s99, s29")
    a("s_lshl_b32 s98, s28, 8")
    a("v_and_b32 v1, 63, v0")
    a(f"v_lshrrev_b32 {v(t0)}, 6, v0")
    a("s_nop 0")
    a(f"v_readfirstlane_b32 s49, {v(t0)}")
    a("s_nop 3")
    a("s_and_b32 s30, s49, 3")
    a("s_mov_b32 s45, 1")
    a("s_mov_b32 s101, 0")
    a("s_mov_b32 s50, 0")
    a("s_mov_b32 s51, 0")
    a(f"s_mov_b32 s100, {OQ}")

    def build_srds():
        a("s_waitcnt lgkmcnt(0)")
        srd(a, 4, 58, 0, S * D * 2)
        srd(a, 8, 26, 0, K * N * 2)
        srd(a, 12, 24, G.WS_O, S * D * 2 * (G.TX if G.OT else 1))
        srd(a, 16, 24, WS_KV, 256 * 32768)
        a("s_add_u32 s20, s34, 0x1000000")
        a("s_addc_u32 s21, s35, 0")
        srd(a, 36, 24, WS_RS, 131072)
        if G.FZ:
            a("v_mov_b32 v219, 0")
            a("v_mov_b32 v240, 0")
            a("v_writelane_b32 v255, s34, 1")
            a("v_writelane_b32 v255, s35, 2")

    a("s_cmp_ge_u32 s49, 4")
    a(f"s_cbranch_scc1 {lab_loader}")

    build_srds()
    a("s_lshl_b32 s3, s2, 2")
    a("s_add_u32 s93, s3, s30")
    for q, (arg, nbytes) in enumerate(wpf):
        a(f"s_load_dwordx2 s[{76+2*q}:{77+2*q}], s[0:1], {ARG[arg]}")
    a("s_waitcnt lgkmcnt(0)")
    def wsel(q):
        arg, nbytes = wpf[q]
        srd(a, 84, 76 + 2 * q, 0, nbytes)
        a(f"s_mul_i32 s92, s93, {nbytes//1024}")
    wsel(0)
    if 'qpre' in EXP:
        lh = a.newlabel("L_pc")
        a("s_getpc_b64 s[46:47]")
        a.label(lh)
        a(f"s_sub_u32 s46, s46, {lh}-{name}")
        a("s_subb_u32 s47, s47, 0")
        a("s_lshr_b32 s3, s2, 3")
        a("s_lshl_b32 s3, s3, 2")
        a("s_add_u32 s3, s3, s30")
        a("s_lshl_b32 s3, s3, 10")
        a(f"s_min_u32 s3, s3, {end}-{name}-1024")
        a(f"v_lshlrev_b32 {v(t0)}, 4, v1")
        a(f"v_add_u32 {v(t0)}, s3, {v(t0)}")
        a(f"global_load_dwordx4 {v(DUM,4)}, {v(t0)}, s[46:47]")
    SPF = 'oldxla' not in EXP
    if SPF:
        a("s_lshr_b32 s3, s2, 3")
        a("s_lshl_b32 s3, s3, 2")
        a("s_add_u32 s3, s3, s30")
        a(f"v_lshrrev_b32 {v(t0)}, 2, v1")
        a(f"v_and_b32 {v(t1)}, 3, v1")
        a(f"v_lshlrev_b32 {v(t1)}, 7, {v(t1)}")
        a("s_lshr_b32 s46, s28, 2")
        a("s_lshl_b32 s46, s46, 10")
        a("s_lshl_b32 s47, s3, 4")
        a("s_add_u32 s46, s46, s47")
        a("s_lshl_b32 s40, s46, 11")
        a("s_sub_u32 s46, s3, 64")
        a("s_lshr_b32 s47, s46, 4")
        a("s_and_b32 s46, s46, 15")
        a(f"s_mul_i32 s46, s46, {16*N*2}")
        a("s_lshl_b32 s47, s47, 11")
        a("s_add_u32 s46, s46, s47")
        a("s_lshr_b32 s47, s29, 3")
        a("s_lshl_b32 s47, s47, 9")
        a("s_add_u32 s46, s46, s47")
        if RM:
            a("s_lshl_b32 s46, s28, 8")
            a("s_lshl_b32 s47, s3, 4")
            a("s_add_u32 s46, s46, s47")
            a("s_lshl_b32 s40, s46, 11")
            a("s_sub_u32 s46, s3, 16")
            a(f"s_mul_hi_u32 s47, s46, {((1 << 32) + 5) // 6}")
            a("s_mul_i32 s41, s47, 6")
            a("s_sub_u32 s46, s46, s41")
            a("s_lshl_b32 s46, s46, 10")
            a(f"s_mul_i32 s47, s47, {16*N*2}")
            a("s_add_u32 s46, s46, s47")
        a("s_cmp_ge_u32 s3, 112")
        a("s_cselect_b32 s46, 0x60000000, s46")
        a(f"s_mov_b32 s41, {256*N*2}")
        a(f"s_mov_b32 s47, {N*2}")
        a(f"s_cmp_lt_u32 s3, {16 if RM else 64}")
        a("s_cselect_b32 s40, s40, s46")
        a("s_cselect_b32 s41, 512, s41")
        a("s_cselect_b32 s47, 2048, s47")
        for i in range(4):
            a(f"s_cselect_b32 s{88+i}, s{4+i}, s{8+i}")
        a(f"v_mul_u32_u24 {v(t0)}, s47, {v(t0)}")
        a(f"v_add_u32 {v(XPA)}, {v(t0)}, {v(t1)}")

        def spf():
            a(f"buffer_load_dword {v(DUM)}, {v(XPA)}, s[88:91], s40 offen")
            if RM: a(f"buffer_load_dword {v(DUM)}, {v(XPA)}, s[88:91], s40 offen offset:512")
            a("s_add_u32 s40, s40, s41")

        def xpf(): pass
        SPE = eval(os.environ.get('SPE', '(99,99,15,11,7)'))
        if len(SPE) == 5:
            a("s_cselect_b32 exec_lo, 0xcccccccc, -1")
            a("s_cselect_b32 exec_hi, 0xcccccccc, -1")
            a("s_lshr_b32 s3, s41, 1")
            a("s_sub_u32 s40, s40, s3")
        for i, e in enumerate(SPE):
            if e == 99: spf()
            if i == 0 and len(SPE) == 5: a("s_mov_b64 exec, -1")
    else:
        SPE = ()
        a("s_lshr_b32 s3, s2, 3")
        a("s_lshl_b32 s3, s3, 2")
        a("s_add_u32 s3, s3, s30")
        a("s_lshr_b32 s46, s28, 2")
        a("s_lshl_b32 s46, s46, 10")
        a("s_lshl_b32 s47, s3, 3")
        a("s_add_u32 s46, s46, s47")
        a(f"v_lshrrev_b32 {v(t0)}, 3, v1")
        a(f"v_add_u32 {v(t0)}, s46, {v(t0)}")
        a(f"v_lshlrev_b32 {v(t0)}, 11, {v(t0)}")
        a(f"v_and_b32 {v(t1)}, 7, v1")
        a(f"v_lshl_add_u32 {v(XPA)}, {v(t1)}, 4, {v(t0)}")
        a("s_lshr_b32 s46, s3, 5")
        a("s_and_b32 s47, s3, 31")
        a("s_lshl_b32 s47, s47, 1")
        a(f"v_lshrrev_b32 {v(t0)}, 5, v1")
        a(f"v_add_u32 {v(t0)}, s47, {v(t0)}")
        a(f"v_mul_u32_u24 {v(t0)}, {N*2}, {v(t0)}")
        a(f"v_and_b32 {v(t1)}, 31, v1")
        a(f"v_lshl_add_u32 {v(t0)}, {v(t1)}, 4, {v(t0)}")
        a("s_lshl_b32 s46, s46, 11")
        a("s_lshr_b32 s47, s29, 3")
        a("s_lshl_b32 s47, s47, 9")
        a("s_add_u32 s46, s46, s47")
        a("s_cmp_ge_u32 s3, 96")
        a("s_cselect_b32 s46, 0x7f000000, s46")
        a(f"v_add_u32 {v(XPB)}, s46, {v(t0)}")
        a(f"s_mov_b32 s40, {2*BK*2}")
        a(f"s_mov_b32 s41, {2*BK*N*2}")

        def xpf():
            if LA == 0: return
            a(f"buffer_load_dwordx4 {v(DUM,4)}, {v(XPA)}, s[4:7], s40 offen")
            a(f"buffer_load_dwordx4 {v(DUM,4)}, {v(XPB)}, s[8:11], s41 offen")
            a(f"s_add_u32 s40, s40, {BK*2}")
            a(f"s_add_u32 s41, s41, {BK*N*2}")
            a(f"s_min_u32 s40, s40, {(NS-1)*BK*2}")
            a(f"s_min_u32 s41, s41, {(NS-1)*BK*N*2}")
        for _ in range(2, LA + 1):
            xpf()
    lab_cpass = a.newlabel("L_cpass")
    a.label(lab_cpass)
    a(f"v_lshlrev_b32 {v(PFV)}, 4, v1")
    a(f"v_and_b32 {v(t0)}, 15, v1")
    a("s_lshl_b32 s3, s30, 6")
    a(f"v_add_u32 {v(t0)}, s3, {v(t0)}")
    a(f"v_lshlrev_b32 {v(t0)}, 7, {v(t0)}")
    a(f"v_lshrrev_b32 {v(t1)}, 4, v1")
    a(f"v_bfe_u32 {v(t2)}, v1, 1, 3")
    a(f"v_xor_b32 {v(t3)}, {v(t1)}, {v(t2)}")
    a(f"v_lshl_add_u32 {v(vXb[0])}, {v(t3)}, 4, {v(t0)}")
    a(f"v_xor_b32 {v(t3)}, 4, {v(t3)}")
    a(f"v_lshl_add_u32 {v(vXb[1])}, {v(t3)}, 4, {v(t0)}")
    a(f"v_bfe_u32 {v(t0)}, v1, 2, 2")
    a(f"v_lshl_add_u32 {v(t2)}, {v(t1)}, 3, {v(t0)}")
    a(f"v_and_b32 {v(t3)}, 1, {v(t1)}")
    a(f"v_mul_u32_u24 {v(t2)}, {RB}, {v(t2)}")
    a(f"v_and_b32 {v(t0)}, 3, v1")
    a(f"v_lshl_add_u32 {v(t2)}, {v(t0)}, 3, {v(t2)}")
    a(f"v_add_u32 {v(t2)}, {ABYTES}, {v(t2)}")
    for nt in range(NTW):
        blk, p = nt >> 1, nt & 1
        a(f"v_xor_b32 {v(t0)}, {p}, {v(t3)}")
        a(f"v_lshl_add_u32 {v(t0)}, {v(t0)}, 5, {v(t2)}")
        a(f"v_add_u32 {v(vWb[nt])}, {blk*64*RB}, {v(t0)}")
    for i in range(4 * MT * NTW + 8):
        a(f"v_mov_b32 v{ACC+i}, 0")
    for i in range(4):
        a(f"v_mov_b32 {v(ONE+i)}, 0x3f803f80")
    a("s_mov_b32 s42, 0")

    def set_cur():
        for kk in range(2):
            a(f"v_add_u32 {v(vXc[kk])}, s42, {v(vXb[kk])}")
        for nt in range(NTW):
            a(f"v_add_u32 {v(vWc[nt])}, s42, {v(vWb[nt])}")
        a(f"s_add_u32 s42, s42, {STAGE}")
        a(f"s_cmp_ge_u32 s42, {STAGE*NSTAGE}")
        a("s_cselect_b32 s42, 0, s42")

    def read_list(kk, f):
        L = []
        for nt in range(NTW):
            if nt < MT:
                L.append(f"ds_read_b128 {v(FX[f]+4*nt,4)}, {v(vXc[kk])} offset:{nt*2048}")
            for rd in range(2):
                L.append(f"ds_read_b64_tr_b16 {v(FW[f]+4*nt+2*rd,2)}, {v(vWc[nt])} offset:{kk*32*RB+rd*4*RB}")
        return L

    def mfma_list(f):
        L = []
        for nt in range(NTW):
            for mt in range(MT):
                L.append(f"v_mfma_f32_16x16x32_bf16 {v(acc(nt,mt),4)}, {v(FW[f]+4*nt,4)}, {v(FX[f]+4*mt,4)}, {v(acc(nt,mt),4)}")
        return L

    def cs_block(f, wv=None):
        if 'nocs' in EXP: return
        if wv is not None:
            a(f"v_mfma_f32_16x16x32_bf16 {v(CSA,4)}, {v(FW[f]+4*wv,4)}, {v(ONE,4)}, {v(CSA,4)}")
            if wv < 2:
                a(f"v_mfma_f32_16x16x32_bf16 {v(CSA+4,4)}, {v(FW[f]+4*(wv+4),4)}, {v(ONE,4)}, {v(CSA+4,4)}")
            return
        done = a.newlabel("L_cs")
        for w in range(4):
            nx = a.newlabel("L_csn")
            if w < 3:
                a(f"s_cmp_lg_u32 s30, {w}")
                a(f"s_cbranch_scc1 {nx}")
            a(f"v_mfma_f32_16x16x32_bf16 {v(CSA,4)}, {v(FW[f]+4*w,4)}, {v(ONE,4)}, {v(CSA,4)}")
            if w < 2:
                a(f"v_mfma_f32_16x16x32_bf16 {v(CSA+4,4)}, {v(FW[f]+4*(w+4),4)}, {v(ONE,4)}, {v(CSA+4,4)}")
            if w < 3:
                a(f"s_branch {done}")
                a.label(nx)
        a.label(done)

    def inter(kk, fr, fm, wv=None):
        R = read_list(kk, fr); Mm = mfma_list(fm)
        ri = 0
        for i in range(len(Mm)):
            a(Mm[i])
            if ri < len(R): a(R[ri]); ri += 1
        while ri < len(R): a(R[ri]); ri += 1
        cs_block(fm, wv)

    for e in SPE:
        if e == 98: spf()
    if 'hop' in EXP: a.lines.append("@HOP")
    stamp(1)
    a("s_barrier")
    stamp(2)
    for e in SPE:
        if e == 97: spf()
    set_cur()
    for x in read_list(0, 0): a(x)
    a("s_waitcnt lgkmcnt(0)")
    inter(1, 1, 0)
    a("s_waitcnt lgkmcnt(0)")
    a(f"s_mov_b32 s48, {NS-1}")
    WOHI = int(os.environ.get('WOHI', '3'))
    EV = [(12, 'pub')] + [(WOHI - i, 'wo') for i in range(wpf[0][1] >> 20) if 'nowo' not in EXP] + [(e, 'spf') for e in SPE if e < 90]
    JPF = int(os.environ.get('JPF0', '0'))
    if JPF: EV.append((JPF, 'jpf'))
    EV.sort(key=lambda e: -e[0])
    assert len(set(e[0] for e in EV)) == len(EV)
    a(f"s_mov_b32 s94, {EV[0][0]}")
    loops = [a.newlabel("L_cloop") for _ in range(4)]
    ldone = a.newlabel("L_cdone")
    for w in range(1, 4):
        a(f"s_cmp_eq_u32 s30, {w}")
        a(f"s_cbranch_scc1 {loops[w]}")
    rare = []
    for w in range(4):
        a.label(loops[w])
        a("s_barrier")
        set_cur()
        inter(0, 0, 1, w)
        xpf()
        a("s_waitcnt lgkmcnt(0)")
        inter(1, 1, 0, w)
        lpub = a.newlabel("L_pub"); lback = a.newlabel("L_pubb")
        a("s_cmp_eq_u32 s48, s94")
        a(f"s_cbranch_scc1 {lpub}")
        a.label(lback)
        rare.append(('pub', w, lpub, lback))
        if 'itst' in EXP:
            for sl, it in ((4, 12), (5, 8), (6, 4)):
                lx = a.newlabel("L_it")
                a(f"s_cmp_lg_u32 s48, {it}")
                a(f"s_cbranch_scc1 {lx}")
                a(f"s_memtime s[{60+2*sl}:{61+2*sl}]")
                a.label(lx)
        a("s_waitcnt lgkmcnt(0)")
        a("s_sub_u32 s48, s48, 1")
        a("s_cmp_lg_u32 s48, 0")
        a(f"s_cbranch_scc1 {loops[w]}")
        a(f"s_branch {ldone}")
    for kind, x, lab, lb in rare:
        a.label(lab)
        for ev in range(len(EV)):
            nxt_ = EV[ev+1][0] if ev + 1 < len(EV) else 0
            if EV[ev][1] == 'pub':
                pub_next = nxt_
                continue
            nx = a.newlabel("L_ev")
            a(f"s_cmp_lg_u32 s48, {EV[ev][0]}")
            a(f"s_cbranch_scc1 {nx}")
            if EV[ev][1] == 'wo':
                a(f"buffer_load_dwordx4 {v(DUM,4)}, {v(PFV)}, s[84:87], s92 offen")
                a("s_add_u32 s92, s92, 1024")
            elif EV[ev][1] == 'jpf':
                G.jit_pf(a, ldone, t0, nl=int(os.environ.get('JNL0', '16')))
            else:
                spf()
            a(f"s_mov_b32 s94, {nxt_}")
            a(f"s_branch {lb}")
            a.label(nx)
        a(f"s_mov_b32 s94, {pub_next}")
        if True:
            a("s_cmp_lg_u32 s45, 1")
            a(f"s_cbranch_scc1 {lb}")
            a("s_memrealtime s[22:23]")
            a(f"v_and_b32 {v(t1)}, 1, v1")
            a(f"v_lshlrev_b32 {v(t0)}, 3, {v(t1)}")
            a(f"v_add_u32 {v(t0)}, {STG + 16*x}, {v(t0)}")
            a(f"ds_read_b64 {v(PFD,2)}, {v(t0)}")
            a("s_lshl_b32 s3, s29, 3")
            a("s_add_u32 s3, s3, s98")
            a(f"s_add_u32 s3, s3, {2*x}")
            a("s_lshl_b32 s3, s3, 4")
            a(f"v_lshlrev_b32 {v(t0)}, 4, {v(t1)}")
            a("s_waitcnt lgkmcnt(0)")
            a(f"v_mov_b32 {v(PFD+2)}, s22")
            a(f"v_mov_b32 {v(PFD+3)}, s23")
            a("s_mov_b64 exec, 3")
            if 'nostatflag' not in EXP: a(f"buffer_store_dwordx4 {v(PFD,4)}, {v(t0)}, s[36:39], s3 offen sc0 sc1")
            a("s_mov_b64 exec, -1")
        a(f"s_branch {lb}")
    a.label(ldone)
    stamp(3)
    cs_block(1)
    for x in mfma_list(1): a(x)
    a(f"v_lshrrev_b32 {v(t0)}, 4, v1")
    a(f"v_lshlrev_b32 {v(t0)}, 4, {v(t0)}")
    a("s_lshl_b32 s3, s30, 6")
    a(f"s_add_u32 s3, s3, {CTAB}")
    a(f"v_add_u32 {v(t1)}, s3, {v(t0)}")
    a("s_mov_b32 exec_lo, 0x00010001")
    a("s_mov_b32 exec_hi, 0x00010001")
    a(f"ds_write_b128 {v(t1)}, {v(CSA,4)}")
    lcs = a.newlabel("L_cs2")
    a("s_cmp_ge_u32 s30, 2")
    a(f"s_cbranch_scc1 {lcs}")
    a(f"ds_write_b128 {v(t1)}, {v(CSA+4,4)} offset:256")
    a.label(lcs)
    a("s_mov_b64 exec, -1")
    a(f"v_add_u32 {v(t0)}, {CTAB}, {v(t0)}")
    a(f"v_mov_b32 {v(t1)}, {STAT}")
    a("s_waitcnt lgkmcnt(0)")
    a("s_barrier")
    RT = FX[0]; RQ = RT + 8; CS = RQ + 8; GE = CS + 24
    assert GE + 8 <= ACC
    a(f"ds_read_b32 {v(t2)}, {v(t1)}")
    for nt in range(NTW):
        a(f"ds_read_b128 {v(CS+4*nt,4)}, {v(t0)} offset:{64*nt}")
    a("s_waitcnt lgkmcnt(0)")
    a(f"v_readfirstlane_b32 s3, {v(t2)}")
    a("s_nop 3")
    lok = a.newlabel("L_stok")
    a("s_cmp_eq_u32 s3, 1")
    a(f"s_cbranch_scc1 {lok}")
    local_stats(GE + 8, GE + 24)
    a.label(lok)
    a(f"v_and_b32 {v(t2)}, 15, v1")
    a("s_lshl_b32 s3, s30, 6")
    a(f"v_add_u32 {v(t2)}, s3, {v(t2)}")
    a(f"v_lshlrev_b32 {v(t0)}, 3, {v(t2)}")
    a(f"v_add_u32 {v(t0)}, {RTAB}, {v(t0)}")
    for mt in range(MT):
        a(f"ds_read_b64 {v(RT+2*mt,2)}, {v(t0)} offset:{128*mt}")
    a(f"v_lshlrev_b32 {v(t2)}, 6, {v(t2)}")
    a(f"v_add_u32 {v(t2)}, s100, {v(t2)}")
    a(f"v_lshrrev_b32 {v(t3)}, 4, v1")
    DV = vT[4]; DQ0 = vT[5]; DQ1 = vT[6]
    a(f"v_lshl_add_u32 {v(DV)}, {v(t3)}, 3, {v(t2)}")
    a(f"v_lshrrev_b32 {v(t0)}, 1, {v(t3)}")
    a(f"v_bfe_u32 {v(t1)}, v1, 2, 2")
    a(f"v_xor_b32 {v(t0)}, {v(t0)}, {v(t1)}")
    a(f"v_lshl_add_u32 {v(t0)}, {v(t0)}, 4, {v(t2)}")
    a(f"v_and_b32 {v(t1)}, 1, {v(t3)}")
    a(f"v_lshl_add_u32 {v(DQ0)}, {v(t1)}, 3, {v(t0)}")
    a(f"v_xor_b32 {v(DQ1)}, 32, {v(DQ0)}")
    sc = (DH ** -0.5) * math.log2(math.e)
    a(f"s_mov_b32 s52, {hex_f32(sc)}")
    a("s_waitcnt lgkmcnt(0)")
    for i in range(8):
        a(f"v_mul_f32 {v(RQ+i)}, s52, {v(RT+i)}")
    for nt in range(NTW):
        R_ = RQ if nt < 2 else RT
        for mp in range(0, MT, 2):
            c0 = acc(nt, mp)
            for q in range(2):
                for j in range(2):
                    a(f"v_pk_mul_f32 {v(GE+4*q+2*j,2)}, {v(CS+4*nt+2*j,2)}, {v(R_+2*(mp+q),2)} op_sel:[0,1] op_sel_hi:[1,1]")
            for q in range(2):
                for j in range(2):
                    cc = v(c0 + 4 * q + 2 * j, 2)
                    a(f"v_pk_fma_f32 {cc}, {cc}, {v(R_+2*(mp+q),2)}, {v(GE+4*q+2*j,2)} op_sel:[0,0,0] op_sel_hi:[1,0,1]")
            for j in range(4):
                a(f"v_cvt_pk_bf16_f32 {v(c0+j)}, {v(c0+2*j)}, {v(c0+2*j+1)}")
            for q in range(2):
                sec = nt >> 1
                if sec == 2:
                    a(f"ds_write_b64 {v(DV)}, {v(c0+2*q,2)} offset:{(mp+q)*1024 + sec*16384 + 32*(nt&1)}")
                else:
                    a(f"ds_write_b64 {v(DQ1 if nt & 1 else DQ0)}, {v(c0+2*q,2)} offset:{(mp+q)*1024 + sec*16384}")
    a("s_waitcnt vmcnt(0) lgkmcnt(0)")
    stamp(4)
    a("s_barrier")
    a(f"s_branch {lab_att}")

    a.label(lab_loader)
    a("s_setprio 2")
    a(f"s_load_dwordx2 s[94:95], s[0:1], {ARG['w1']}")
    a(f"s_load_dwordx2 s[96:97], s[0:1], {ARG['wo' if G.C3 else 'w2']}")
    assert not (G.C3 and QW2)
    LSD = 40; LST = 56; LNO = 68; LTB = 72
    a("s_lshl_b32 s3, s30, 6")
    a(f"v_lshrrev_b32 {v(t0)}, 3, v1")
    a(f"v_add_u32 {v(t0)}, s3, {v(t0)}")
    for i in range(PA):
        a(f"v_add_u32 {v(t1)}, {8*i}, {v(t0)}")
        a(f"v_lshrrev_b32 {v(t2)}, 1, {v(t1)}")
        a(f"v_and_b32 {v(t2)}, 7, {v(t2)}")
        a(f"v_and_b32 {v(t3)}, 7, v1")
        a(f"v_xor_b32 {v(t2)}, {v(t2)}, {v(t3)}")
        a(f"v_add_u32 {v(t1)}, s98, {v(t1)}")
        a(f"v_mul_u32_u24 {v(t1)}, {lda}, {v(t1)}")
        a(f"v_lshl_add_u32 {v(vA[i])}, {v(t2)}, 4, {v(t1)}")
    a("s_lshl_b32 s3, s29, 6")
    for i in range(PB):
        a(f"s_mul_i32 s46, s30, {PB}")
        a(f"s_add_u32 s46, s46, {i}")
        a("s_lshr_b32 s47, s46, 2")
        a("s_and_b32 s46, s46, 3")
        a("s_lshl_b32 s46, s46, 4")
        a("s_lshl_b32 s47, s47, 11")
        a("s_add_u32 s47, s47, s3")
        a(f"v_lshrrev_b32 {v(t0)}, {3 if 'bfull' in EXP else 2}, v1")
        a(f"v_add_u32 {v(t0)}, s46, {v(t0)}")
        a(f"v_and_b32 {v(t1)}, {7 if 'bfull' in EXP else 3}, v1")
        if 'bfull' in EXP: a("s_and_b32 s47, s47, 0xffffff80")
        a(f"v_bfe_u32 {v(t2)}, {v(t0)}, 3, 1")
        a(f"v_lshlrev_b32 {v(t2)}, 1, {v(t2)}")
        a(f"v_xor_b32 {v(t1)}, {v(t1)}, {v(t2)}")
        a(f"v_mul_u32_u24 {v(t0)}, {N*2}, {v(t0)}")
        a(f"v_lshl_add_u32 {v(t0)}, {v(t1)}, 4, {v(t0)}")
        a(f"v_add_u32 {v(vB[i])}, s47, {v(t0)}")
    a(f"s_mul_i32 s31, s30, {PA*1024}")
    a(f"s_mul_i32 s32, s30, {PB*1024}")
    a(f"s_add_u32 s32, s32, {ABYTES}")
    build_srds()
    a("s_lshl_b32 s46, s29, 3")
    a("s_add_u32 s46, s46, s98")
    a("s_lshl_b32 s47, s30, 1")
    a("s_add_u32 s47, s47, s46")
    stats_load(LSD, LST, 47)
    lab_lpass = a.newlabel("L_lpass")
    a.label(lab_lpass)
    a("s_mov_b32 s40, 0")
    a("s_mov_b32 s41, 0")
    a("s_mov_b32 s43, 0")
    a("s_mov_b32 s53, 0")

    def dma():
        a("s_add_u32 s33, s43, s31")
        for i in range(PA):
            a(f"s_add_u32 m0, s33, {i*1024}")
            a("s_nop 0")
            a(f"buffer_load_dwordx4 {v(vA[i])}, s[4:7], s40 offen lds")
        a("s_add_u32 s33, s43, s32")
        for i in range(PB):
            a(f"s_add_u32 m0, s33, {i*1024}")
            a("s_nop 0")
            a(f"buffer_load_dwordx4 {v(vB[i])}, s[8:11], s41 offen lds")
        a(f"s_add_u32 s40, s40, {BK*2}")
        a(f"s_add_u32 s41, s41, {BK*N*2}")
        a(f"s_add_u32 s43, s43, {STAGE}")
        a(f"s_cmp_ge_u32 s43, {STAGE*NSTAGE}")
        a("s_cselect_b32 s43, 0, s43")

    nloop = NS - NSTAGE + 1
    lab_l2p = a.newlabel("L_l2p"); lab_lend = a.newlabel("L_lend")
    a("s_cmp_lg_u32 s45, 1")
    a(f"s_cbranch_scc1 {lab_l2p}")
    stamp(1)
    Q = []
    def dmaq(j):
        dma(); Q.extend([('d', j)] * P)
    def waitq(*tags):
        last = max(i for i, x in enumerate(Q) if x in tags)
        a(f"s_waitcnt vmcnt({len(Q) - 1 - last})")
    for j in range(NSTAGE - 1):
        dmaq(j)
    stamp(2)
    SA1, SA2 = 218, 219
    a("s_lshl_b32 s92, s99, 2")
    a("s_add_u32 s92, s92, s30")
    srd(a, 76, 94, 0, D * F * 2)
    srd(a, 88, 96, 0, D * D * 2 if G.C3 else F * D * 2)
    a(f"v_lshrrev_b32 {v(t0)}, 3, v1")
    a(f"v_and_b32 {v(t1)}, 7, v1")
    a(f"v_lshlrev_b32 {v(t1)}, 4, {v(t1)}")
    a(f"v_lshl_add_u32 {v(SA2)}, {v(t0)}, 11, {v(t1)}")
    a("s_lshr_b32 s3, s92, 6")
    a("s_lshl_b32 s3, s3, 7")
    a("s_and_b32 s46, s92, 63")
    a(f"s_mul_i32 s46, s46, {56*D*2}")
    a("s_add_u32 s3, s3, s46")
    a(f"v_add_u32 {v(SA2)}, s3, {v(SA2)}")
    if G.FZ:
        a("s_and_b32 s93, s99, 15")
        a("s_lshr_b32 s3, s99, 4")
        a("s_mul_i32 s3, s3, 7")
        a("s_lshr_b32 s3, s3, 1")
        a("s_add_u32 s84, s3, s30")
    else:
        a("s_min_u32 s46, s92, 895")
        a(f"s_mul_hi_u32 s93, s46, {((1 << 32) + 55) // 56}")
        a("s_mul_i32 s3, s93, 56")
        a("s_sub_u32 s84, s46, s3")
    a(f"v_mul_u32_u24 {v(t0)}, {F*2}, {v(t0)}")
    a(f"v_add_u32 {v(SA1)}, {v(t0)}, {v(t1)}")
    a(f"s_mul_i32 s3, s93, {64*F*2}")
    a("s_lshl_b32 s46, s84, 7")
    a("s_add_u32 s3, s3, s46")
    a(f"v_add_u32 {v(SA1)}, s3, {v(SA1)}")
    side = [(W1S + 4 * j, SA1, 76, 8 * j * F * 2) for j in range(8)] + ([(W2S[j], SA2, 88, 8 * j * D * 2) for j in range(7)] if QW2 else [])
    SIDE0 = int(os.environ.get('SIDE0', '16')); SPI = int(os.environ.get('SPI', '1'))
    def sideq():
        if not side: return
        d, av, sr, off = side.pop(0)
        a(f"s_mov_b32 s3, {off}")
        a(f"buffer_load_dwordx4 {v(d,4)}, {v(av)}, s[{sr}:{sr+3}], s3 offen")
        Q.append('s')
    for j in range(NS):
        c = nloop - j
        waitq(('d', j), 't')
        a("s_barrier")
        if c == 2:
            l1 = a.newlabel("L_l1")
            a("s_cmp_lg_u32 s30, 0")
            a(f"s_cbranch_scc1 {l1}")
            a(f"v_lshlrev_b32 {v(t0)}, 4, v1")
            a("s_lshl_b32 s3, s28, 12")
            for jj in range(4):
                a(f"buffer_load_dwordx4 {v(LTB+4*jj,4)}, {v(t0)}, s[36:39], s3 offen offset:{1024*jj} sc0 sc1")
            a.label(l1)
            Q.append('t')
        if c == 1:
            l2 = a.newlabel("L_l2")
            a("s_cmp_lg_u32 s30, 0")
            a(f"s_cbranch_scc1 {l2}")
            a("s_mov_b64 s[54:55], exec")
            for jj in range(4):
                a(f"v_cmp_lt_u64 vcc, s[34:35], {v(LTB+4*jj+2,2)}")
                a(f"v_cmp_gt_u64 s[56:57], s[20:21], {v(LTB+4*jj+2,2)}")
                a("s_nop 3")
                a("s_and_b64 s[54:55], s[54:55], vcc")
                a("s_and_b64 s[54:55], s[54:55], s[56:57]")
            a("s_cmp_lg_u64 s[54:55], exec")
            a(f"s_cbranch_scc1 {l2}")
            a("s_mov_b32 s53, 1")
            a(f"v_lshlrev_b32 {v(t0)}, 3, v1")
            a(f"v_add_u32 {v(t0)}, {RTAB}, {v(t0)}")
            for jj in range(4):
                a(f"ds_write_b64 {v(t0)}, {v(LTB+4*jj,2)} offset:{512*jj}")
            a("s_waitcnt lgkmcnt(0)")
            a.label(l2)
        if j + NSTAGE - 1 < NS:
            dmaq(j + NSTAGE - 1)
        if j >= SIDE0:
            for _ in range(SPI): sideq()
        if j == 0:
            stats_math(LSD, LST)
            a("s_lshl_b32 s3, s30, 4")
            a(f"s_add_u32 s3, s3, {STG}")
            a(f"v_mov_b32 {v(LST+9)}, s3")
            a(f"ds_write_b128 {v(LST+9)}, {v(LST,4)}")
            a("s_waitcnt lgkmcnt(0)")
    while side and not SIDEATT: sideq()
    if G.C3:
        a(f"v_lshrrev_b32 {v(t0)}, 3, v1")
        a(f"v_and_b32 {v(t1)}, 7, v1")
        a(f"v_lshlrev_b32 {v(t1)}, 4, {v(t1)}")
        a(f"v_lshl_add_u32 {v(SA2)}, {v(t0)}, 10, {v(t1)}")
        a("s_lshl_b32 s3, s92, 11")
        if WOC:
            a("s_mov_b64 exec, 0xffff")
            a(f"buffer_load_dwordx4 {v(W2S[0],4)}, {v(SA2)}, s[88:91], s3 offen offset:384")
            a("s_mov_b64 exec, -1")
        if G.QC3:
            a(f"s_load_dwordx2 s[96:97], s[0:1], {ARG['w2']}")
            a("s_mul_i32 s3, s92, 7168")
            a("s_waitcnt lgkmcnt(0)")
            srd(a, 88, 96, 0, F * D * 2)
            a("s_mov_b32 exec_hi, 0x00ffffff")
            a(f"buffer_load_dwordx4 {v(W2S[1],4)}, {v(SA2)}, s[88:91], s3 offen offset:384")
            a("s_mov_b32 exec_hi, -1")
            a("s_mul_i32 s3, s92, 7")
            a(f"v_add_u32 {v(t2)}, s3, {v(t0)}")
            a(f"v_and_b32 {v(t3)}, 1, {v(t2)}")
            a(f"v_mul_u32_u24 {v(t3)}, {F*256}, {v(t3)}")
            a(f"v_lshrrev_b32 {v(t2)}, 1, {v(t2)}")
            a(f"v_lshl_add_u32 {v(t2)}, {v(t2)}, 8, {v(t1)}")
            a(f"v_add_u32 {v(W2S[2])}, {v(t2)}, {v(t3)}")
        a(f"v_lshl_add_u32 {v(SA2)}, {v(t0)}, 18, {v(t1)}")
    a(f"s_branch {lab_lend}")
    a.label(lab_l2p)
    for _ in range(NSTAGE - 1):
        dma()
    a(f"s_mov_b32 s48, {nloop}")
    lloop = a.newlabel("L_lloop")
    a.label(lloop)
    a(f"s_waitcnt vmcnt({(NSTAGE-2)*P})")
    a("s_barrier")
    dma()
    a("s_sub_u32 s48, s48, 1")
    a("s_cmp_lg_u32 s48, 0")
    a(f"s_cbranch_scc1 {lloop}")
    for j in range(NS - NSTAGE + 1, NS):
        a(f"s_waitcnt vmcnt({(NS-1-j)*P})")
        a("s_barrier")
    a.label(lab_lend)
    stamp(3)
    l4 = a.newlabel("L_l4")
    a(f"v_mov_b32 {v(t1)}, {STAT}")
    a("s_cmp_lg_u32 s30, 0")
    a(f"s_cbranch_scc1 {l4}")
    a(f"v_mov_b32 {v(t0)}, s53")
    a(f"ds_write_b32 {v(t1)}, {v(t0)}")
    for j in range(4):
        a(f"v_mov_b32 {v(LTB+j)}, 0")
    a(f"ds_write_b128 {v(t1)}, {v(LTB,4)} offset:{STAT2-STAT}")
    a("s_waitcnt lgkmcnt(0)")
    a.label(l4)
    a("s_barrier")
    a(f"ds_read_b32 {v(t2)}, {v(t1)}")
    a("s_waitcnt lgkmcnt(0)")
    a(f"v_readfirstlane_b32 s3, {v(t2)}")
    a("s_nop 3")
    lok = a.newlabel("L_stok")
    a("s_cmp_eq_u32 s3, 1")
    a(f"s_cbranch_scc1 {lok}")
    local_stats(LSD, LST)
    a.label(lok)
    stamp(4)
    a("s_barrier")

    a.label(lab_att)
    CM, MK1, MK2, SA, SB = 16, 32, 48, 64, 80
    KB_ = [96, 104]; VB_ = [112, 120]; PP = [128, 136]; OA = 144; SUM = 160
    CA = 64; CT = 72; PUB = 200; VM = 216
    vK1 = [2, 3]; vV1 = 4; vK2 = [5, 6]; vV2 = 7; vQQ = 8; vHH = 9; vX32 = 10; vNEG = 11; vL16 = 12
    T0, T1, T2 = 13, 14, 15
    vNO = 217
    lab_start = a.newlabel("L_astart"); lab_reload = a.newlabel("L_reload"); lab_fin = a.newlabel("L_fin")
    a("s_setprio 0")
    a("s_sub_u32 s3, 11, s49")
    a("s_cmp_lt_u32 s49, 4")
    a("s_cselect_b32 s44, s49, s3")
    a(f"v_and_b32 {v(vQQ)}, 31, v1")
    a(f"v_lshrrev_b32 {v(vHH)}, 5, v1")
    a(f"v_lshlrev_b32 {v(vL16)}, 4, v1")
    a(f"v_xor_b32 {v(vX32)}, 32, v1")
    a(f"v_lshlrev_b32 {v(vX32)}, 2, {v(vX32)}")
    a(f"v_mov_b32 {v(vNEG)}, 0xf149f2ca")
    a(f"v_mov_b32 {v(VM)}, 0")
    a(f"v_bfe_u32 {v(T0)}, v1, 2, 2")
    a(f"v_xor_b32 {v(T0)}, {v(T0)}, {v(vHH)}")
    a(f"v_lshlrev_b32 {v(T1)}, 6, {v(vQQ)}")
    a(f"v_lshl_add_u32 {v(T0)}, {v(T0)}, 4, {v(T1)}")
    a("s_lshl_b32 s3, s44, 11")
    a(f"s_add_u32 s46, s3, {OK_ - 7*2048}")
    a(f"v_add_u32 {v(vK1[0])}, s46, {v(T0)}")
    a(f"v_xor_b32 {v(vK1[1])}, 32, {v(vK1[0])}")
    a(f"s_add_u32 s46, s3, {PK}")
    a(f"v_add_u32 {v(vK2[0])}, s46, {v(T0)}")
    a(f"v_xor_b32 {v(vK2[1])}, 32, {v(vK2[0])}")
    a(f"s_add_u32 s46, s3, {OQ}")
    a(f"v_add_u32 {v(T0)}, s46, {v(T0)}")
    a(f"v_bfe_u32 {v(T1)}, v1, 2, 2")
    a(f"v_lshl_add_u32 {v(T1)}, {v(vHH)}, 2, {v(T1)}")
    a(f"v_lshlrev_b32 {v(T1)}, 6, {v(T1)}")
    a(f"v_bfe_u32 {v(T2)}, v1, 4, 1")
    a(f"v_lshl_add_u32 {v(T1)}, {v(T2)}, 5, {v(T1)}")
    a(f"v_and_b32 {v(T2)}, 3, v1")
    a(f"v_lshl_add_u32 {v(T1)}, {v(T2)}, 3, {v(T1)}")
    a(f"s_add_u32 s46, s3, {OV - 7*2048}")
    a(f"v_add_u32 {v(vV1)}, s46, {v(T1)}")
    a(f"s_add_u32 s46, s3, {PV}")
    a(f"v_add_u32 {v(vV2)}, s46, {v(T1)}")
    a("s_cmp_lg_u32 s45, 1")
    a(f"s_cbranch_scc1 {lab_reload}")
    a(f"ds_read_b128 {v(QF,4)}, {v(T0)}")
    a(f"v_xor_b32 {v(T0)}, 32, {v(T0)}")
    a(f"ds_read_b128 {v(QF+4,4)}, {v(T0)}")
    a("s_mov_b32 s33, 1")
    lab_pubw = a.newlabel("L_pubw")
    a("s_cmp_lt_u32 s49, 4")
    a(f"s_cbranch_scc1 {lab_pubw}")
    while side: sideq()
    a(f"s_branch {lab_start}")
    a.label(lab_pubw)
    a("s_lshl_b32 s3, s49, 13")
    a(f"s_add_u32 s46, s3, {OK_}")
    a(f"v_add_u32 {v(T1)}, s46, {v(vL16)}")
    for j in range(8):
        a(f"ds_read_b128 {v(W1S+4*j,4)}, {v(T1)} offset:{1024*j}")
    a("s_lshl_b32 s46, s99, 15")
    a("s_add_u32 s46, s46, s3")
    for j in range(8):
        if j == 4: a("s_add_u32 s46, s46, 4096")
        a(f"s_waitcnt lgkmcnt({7-j})")
        a(f"buffer_store_dwordx4 {v(W1S+4*j,4)}, {v(vL16)}, s[16:19], s46 offen offset:{1024*(j&3)} sc0 sc1")
    a("s_mov_b32 s33, 0")

    def kvflag():
        ldone = a.newlabel("L_kvf")
        a("s_or_b32 s3, s33, s50")
        a("s_cmp_lg_u32 s3, 0")
        a(f"s_cbranch_scc1 {ldone}")
        a("s_mov_b32 s33, 1")
        a("s_memrealtime s[22:23]")
        a("s_lshl_b32 s3, s99, 7")
        a("s_lshl_b32 s46, s49, 3")
        a("s_add_u32 s3, s3, s46")
        a(f"s_add_u32 s3, s3, {KFO}")
        a(f"v_mov_b32 {v(T0)}, 0")
        a("s_waitcnt vmcnt(0) lgkmcnt(0)")
        a(f"v_mov_b32 {v(PUB)}, s22")
        a(f"v_mov_b32 {v(PUB+1)}, s23")
        a("s_mov_b64 exec, 1")
        if 'nokvflag' not in EXP: a(f"buffer_store_dwordx2 {v(PUB,2)}, {v(T0)}, s[36:39], s3 offen sc0 sc1")
        a("s_mov_b64 exec, -1")
        a.label(ldone)

    a.label(lab_start)
    a(f"v_lshlrev_b32 {v(T0)}, 2, {v(vHH)}")
    a(f"v_sub_u32 {v(T0)}, {v(vQQ)}, {v(T0)}")
    for r in range(16):
        c = (r & 3) + 8 * (r >> 2)
        sp = 52 + 2 * (r & 1)
        a(f"v_cmp_le_i32 s[{sp}:{sp+1}], {c}, {v(T0)}")
        a(f"v_mov_b32 {v(CM+r)}, {v(VM)}")
        a(f"v_cndmask_b32 {v(MK1+r)}, {v(vNEG)}, {v(VM)}, s[{sp}:{sp+1}]")
        a(f"v_cndmask_b32 {v(MK2+r)}, {v(VM)}, {v(vNEG)}, s[{sp}:{sp+1}]")
    for r in range(16):
        a(f"v_mov_b32 {v(OA+r)}, 0")
    for r in range(4):
        a(f"v_mov_b32 {v(SUM+r)}, 0")

    def part(vK, vV, MK, off, last_cmp, lab_out, hook=None):
        SS = [SA, SB]

        def kread(i):
            for ks in range(2):
                a(f"ds_read_b128 {v(KB_[i&1]+4*ks,4)}, {v(vK[ks])} offset:{off(i)}")

        def smf(i, h):
            if h == 0:
                a(f"v_mfma_f32_32x32x16_bf16 {v(SS[i&1],16)}, {v(KB_[i&1],4)}, {v(QF,4)}, {v(MK if i == 0 else CM,16)}")
            else:
                a(f"v_mfma_f32_32x32x16_bf16 {v(SS[i&1],16)}, {v(KB_[i&1]+4,4)}, {v(QF+4,4)}, {v(SS[i&1],16)}")
        kread(0)
        kread(1)
        a("s_waitcnt lgkmcnt(2)")
        smf(0, 0); smf(0, 1)
        for i in range(8):
            Sx = SS[i & 1]; Px = PP[i & 1]; Vx = VB_[i & 1]

            def exps(g):
                for j in range(4):
                    a(f"v_exp_f32 {v(Sx+g+j)}, {v(Sx+g+j)}")

            def addcvt(g):
                for j in range(2):
                    a(f"v_pk_add_f32 {v(SUM+2*j,2)}, {v(SUM+2*j,2)}, {v(Sx+g+2*j,2)}")
                    a(f"v_cvt_pk_bf16_f32 {v(Px+g//2+j)}, {v(Sx+g+2*j)}, {v(Sx+g+1+2*j)}")

            def pv(sidx):
                a(f"v_mfma_f32_32x32x16_bf16 {v(OA,16)}, {v(Vx+4*sidx,4)}, {v(Px+4*sidx,4)}, {v(OA,16)}")
            for sidx in range(2):
                for rd in range(2):
                    a(f"ds_read_b64_tr_b16 {v(Vx+4*sidx+2*rd,2)}, {v(vV)} offset:{off(i) + (16*sidx+8*rd)*64}")
            if i < 7:
                a("s_waitcnt lgkmcnt(4)")
                smf(i + 1, 0)
            if i == 0:
                a("s_nop 7"); a("s_nop 7"); a("s_nop 7")
            exps(0)
            if i < 7:
                smf(i + 1, 1)
                if i < 6: kread(i + 2)
            exps(4); addcvt(0)
            exps(8); addcvt(4)
            a(f"s_waitcnt lgkmcnt({2 if i < 6 else 0})")
            pv(0)
            exps(12); addcvt(8)
            a("s_nop 0")
            addcvt(12)
            a("s_nop 1")
            pv(1)
            if i < 7:
                a(f"s_cmp_eq_u32 s44, {last_cmp(i)}")
                a(f"s_cbranch_scc1 {lab_out}")
            if hook and i == 2: hook()
        a.label(lab_out)
        a("s_waitcnt lgkmcnt(0)")

    part(vK1, vV1, MK1, lambda i: (7 - i) * 2048, lambda i: i, a.newlabel("L_p1e"), hook=kvflag)
    stamp(5)
    lab_p2 = a.newlabel("L_p2")
    a("s_cmp_lg_u32 s50, 0")
    a(f"s_cbranch_scc1 {lab_p2}")
    kvflag()
    lab_nc = a.newlabel("L_nocs")
    a("s_cmp_lt_u32 s49, 4")
    a(f"s_cbranch_scc1 {lab_nc}")
    if G.C3:
        srd(a, 88, 24, G.WS_WOC, 2 * D * 256)
        a("s_lshl_b32 s3, s92, 8")
        a("s_waitcnt vmcnt(0)")
        if WOC:
            a("s_mov_b64 exec, 0xffff")
            a(f"buffer_store_dwordx4 {v(W2S[0],4)}, {v(SA2)}, s[88:91], s3 offen {WT}")
            a("s_mov_b64 exec, -1")
        if G.QC3:
            srd(a, 88, 24, G.WS_W2C, 2 * F * 256)
            a("s_mov_b32 exec_hi, 0x00ffffff")
            a(f"buffer_store_dwordx4 {v(W2S[1],4)}, {v(W2S[2])}, s[88:91], 0 offen {WT}")
            a("s_mov_b32 exec_hi, -1")
    else:
        srd(a, 88, 24, G.WS_W2T, F * D * 2)
        a("s_mul_i32 s3, s92, 7168")
        a("s_waitcnt vmcnt(0)")
    for j in range(7 if QW2 else 0):
        if j == 4: a("s_add_u32 s3, s3, 4096")
        a(f"buffer_store_dwordx4 {v(W2S[j],4)}, {v(vL16)}, s[88:91], s3 offen offset:{1024*(j&3)}")
    if not G.FZ:
        a("s_cmp_ge_u32 s92, 896")
        a(f"s_cbranch_scc1 {lab_nc}")
    if G.W1T:
        srd(a, 88, 24, G.WS_W1T, 16 * 512 * 1024)
        a(f"v_and_b32 {v(T0)}, 7, v1")
        a("s_lshl_b32 s3, s84, 3")
        a(f"v_add_u32 {v(T0)}, s3, {v(T0)}")
        a(f"s_mov_b32 s3, {((1 << 32) + 27) // 28}")
        a(f"v_mul_hi_u32 {v(T1)}, {v(T0)}, s3")
        a(f"v_mul_u32_u24 {v(T2)}, 28, {v(T1)}")
        a(f"v_sub_u32 {v(T0)}, {v(T0)}, {v(T2)}")
        a(f"v_bfe_u32 {v(T2)}, v1, 3, 1")
        a(f"v_mad_u32_u24 {v(T0)}, {v(T2)}, 28, {v(T0)}")
        a(f"v_cmp_le_u32 vcc, 24, {v(T0)}")
        a(f"v_add_u32 {v(T2)}, 8, {v(T0)}")
        a(f"v_cndmask_b32 {v(T0)}, {v(T0)}, {v(T2)}, vcc")
        a(f"v_lshlrev_b32 {v(T1)}, 19, {v(T1)}")
        a(f"v_lshl_add_u32 {v(T0)}, {v(T0)}, 4, {v(T1)}")
        a(f"v_lshrrev_b32 {v(T1)}, 4, v1")
        a(f"v_lshl_add_u32 {v(T0)}, {v(T1)}, 10, {v(T0)}")
        a("s_lshl_b32 s3, s93, 15")
        for j in range(8):
            a(f"buffer_store_dwordx4 {v(W1S+4*j,4)}, {v(T0)}, s[88:91], s3 offen {os.environ.get('W1ST','sc0 sc1')}")
            a("s_add_u32 s3, s3, 4096")
    for j in range(4):
        a(f"v_lshlrev_b32 v{CA+2*j}, 16, v{W1S+j}")
        a(f"v_and_b32 v{CA+2*j+1}, 0xffff0000, v{W1S+j}")
    for i in range(1, 8):
        for j in range(4):
            a(f"v_lshlrev_b32 v{CT+2*j}, 16, v{W1S+4*i+j}")
            a(f"v_and_b32 v{CT+2*j+1}, 0xffff0000, v{W1S+4*i+j}")
        for j in range(4):
            a(f"v_pk_add_f32 {v(CA+2*j,2)}, {v(CA+2*j,2)}, {v(CT+2*j,2)}")
    a("s_nop 1")
    for j in range(8):
        a(f"v_add_f32_dpp v{CT+j}, v{CA+j}, v{CA+j} row_ror:8 row_mask:0xf bank_mask:0xf")
    a(f"v_xor_b32 {v(T0)}, 16, v1")
    a(f"v_lshlrev_b32 {v(T0)}, 2, {v(T0)}")
    for j in range(8):
        a(f"ds_bpermute_b32 v{CA+j}, {v(T0)}, v{CT+j}")
    a("s_waitcnt lgkmcnt(0)")
    for j in range(8):
        a(f"v_add_f32 v{CT+j}, v{CA+j}, v{CT+j}")
    for j in range(8):
        a(f"ds_bpermute_b32 v{CA+j}, {v(vX32)}, v{CT+j}")
    a("s_waitcnt lgkmcnt(0)")
    for j in range(8):
        a(f"v_add_f32 v{CA+j}, v{CA+j}, v{CT+j}")
    srd(a, 76, 24, G.WS_CS, 16 * F * 4)
    a(f"s_mul_i32 s3, s93, {F*4}")
    a("s_lshl_b32 s46, s84, 8")
    a("s_add_u32 s3, s3, s46")
    a(f"v_lshlrev_b32 {v(T0)}, 5, v1")
    a("s_mov_b64 exec, 0xff")
    a(f"buffer_store_dwordx4 {v(CA,4)}, {v(T0)}, s[76:79], s3 offen {WT}")
    a(f"buffer_store_dwordx4 {v(CA+4,4)}, {v(T0)}, s[76:79], s3 offen offset:16 {WT}")
    a("s_mov_b64 exec, -1")
    a.label(lab_nc)
    a("s_mov_b32 s50, 1")
    a("s_cmp_eq_u32 s28, 0")
    a(f"s_cbranch_scc1 {lab_p2}")
    lp = a.newlabel("L_poll"); lpo = a.newlabel("L_pollok"); lpd = a.newlabel("L_polld"); lsp = a.newlabel("L_spin")
    a("s_cmp_ge_u32 s49, 4")
    a(f"s_cbranch_scc1 {lsp}")
    a("s_sub_u32 s46, s99, 32")
    a("s_lshl_b32 s47, s46, 7")
    a(f"s_add_u32 s47, s47, {KFO}")
    a(f"v_and_b32 {v(T0)}, 3, v1")
    a(f"v_lshlrev_b32 {v(T0)}, 3, {v(T0)}")
    a(f"s_mov_b32 s52, {NPOLL}")
    a.label(lp)
    a(f"buffer_load_dwordx2 {v(PUB,2)}, {v(T0)}, s[36:39], s47 offen sc0 sc1")
    a("s_waitcnt vmcnt(0)")
    a(f"v_cmp_lt_u64 vcc, s[34:35], {v(PUB,2)}")
    a(f"v_cmp_gt_u64 s[54:55], s[20:21], {v(PUB,2)}")
    a("s_nop 3")
    a("s_and_b64 vcc, vcc, s[54:55]")
    a("s_cmp_eq_u64 vcc, exec")
    a(f"s_cbranch_scc1 {lpo}")
    a("s_sub_u32 s52, s52, 1")
    a("s_cmp_lg_u32 s52, 0")
    a(f"s_cbranch_scc1 {lp}")
    a(f"v_mov_b32 {v(T1)}, 2")
    a(f"s_branch {lpd}")
    a.label(lpo)
    a("s_lshl_b32 s3, s49, 13")
    a("s_lshl_b32 s46, s46, 15")
    a("s_add_u32 s46, s46, s3")
    for j in range(8):
        a(f"s_add_u32 m0, s3, {PK + 1024*j}")
        a("s_nop 0")
        a(f"buffer_load_dwordx4 {v(vL16)}, s[16:19], s46 offen sc0 sc1 lds")
        a("s_add_u32 s46, s46, 1024")
    a(f"v_mov_b32 {v(T1)}, 1")
    a.label(lpd)
    a("s_lshl_b32 s3, s49, 2")
    a(f"s_add_u32 s3, s3, {STAT2}")
    a(f"v_mov_b32 {v(T0)}, s3")
    a("s_waitcnt vmcnt(0)")
    a(f"ds_write_b32 {v(T0)}, {v(T1)}")
    a.label(lsp)
    a(f"v_mov_b32 {v(T0)}, {STAT2}")
    a(f"ds_read_b128 {v(PUB,4)}, {v(T0)}")
    a("s_waitcnt lgkmcnt(0)")
    a(f"v_min_u32 {v(T1)}, {v(PUB)}, {v(PUB+1)}")
    a(f"v_min3_u32 {v(T1)}, {v(T1)}, {v(PUB+2)}, {v(PUB+3)}")
    a(f"v_max_u32 {v(T2)}, {v(PUB)}, {v(PUB+1)}")
    a(f"v_max3_u32 {v(T2)}, {v(T2)}, {v(PUB+2)}, {v(PUB+3)}")
    a("s_nop 0")
    a(f"v_readfirstlane_b32 s3, {v(T1)}")
    a(f"v_readfirstlane_b32 s46, {v(T2)}")
    a("s_nop 3")
    a("s_cmp_eq_u32 s3, 0")
    a("s_sleep 1")
    a(f"s_cbranch_scc1 {lsp}")
    a("s_cmp_eq_u32 s46, 1")
    a(f"s_cbranch_scc1 {lab_p2}")
    a("s_mov_b32 s45, 2")
    a("s_sub_u32 s98, s98, 256")
    a(f"s_mov_b32 s100, {XQ}")
    a("s_barrier")
    if G.FZ:
        for i in range(4):
            a(f"s_mov_b32 s{84+i}, s{4+i}")
            a(f"s_mov_b32 s{88+i}, s{4+i}")
        a(f"v_mov_b32 {v(XPA)}, 0")
    a("s_cmp_lt_u32 s49, 4")
    a(f"s_cbranch_scc1 {lab_cpass}")
    a("s_setprio 2")
    a(f"s_branch {a.newlabel('L_lre')}")
    lab_lre = f"L_lre_{a.nlab}"

    a.label(lab_reload)
    a("s_lshl_b32 s3, s49, 12")
    a("s_lshl_b32 s46, s99, 15")
    a("s_add_u32 s46, s46, s3")
    for j in range(4):
        a(f"s_add_u32 m0, s3, {OK_ + 1024*j}")
        a("s_nop 0")
        a(f"buffer_load_dwordx4 {v(vL16)}, s[16:19], s46 offen sc0 sc1 lds")
        a("s_add_u32 s46, s46, 1024")
    a("s_waitcnt vmcnt(0)")
    a("s_barrier")
    a(f"s_branch {lab_start}")

    a.label(lab_p2)
    if G.FZ and 'fpre' in EXP:
        G.code_pf(a, lab_fin, 1, 49, T0, 1)
    if 'xwo' in EXP:
        a(f"s_load_dwordx2 s[54:55], s[0:1], {ARG['wo']}")
        a(f"v_lshrrev_b32 {v(T0)}, 3, v1")
        a(f"v_and_b32 {v(T1)}, 7, v1")
        a(f"v_lshlrev_b32 {v(T1)}, 7, {v(T1)}")
        a(f"v_lshl_add_u32 {v(T0)}, {v(T0)}, 11, {v(T1)}")
        a("s_lshr_b32 s3, s2, 3")
        a("s_lshl_b32 s3, s3, 3")
        a("s_add_u32 s3, s3, s49")
        a("s_lshl_b32 s3, s3, 13")
        a("s_and_b32 s46, s2, 1")
        a("s_lshl_b32 s46, s46, 10")
        a("s_add_u32 s3, s3, s46")
        a("s_waitcnt lgkmcnt(0)")
        srd(a, 88, 54, 0, D * D * 2)
        a("s_mov_b32 exec_hi, 0")
        a(f"buffer_load_dword v254, {v(T0)}, s[88:91], s3 offen")
        a("s_mov_b64 exec, -1")
    if os.environ.get('JPFA'):
        G.jit_pf(a, lab_fin, T0, nl=int(os.environ.get('JPFA')))
    if 'qpf2' in EXP:
        lq = a.newlabel("L_qpf")
        a("s_cmp_eq_u32 s33, 2")
        a(f"s_cbranch_scc1 {lq}")
        a("s_mov_b32 s33, 2")
        a(f"s_load_dwordx2 s[54:55], s[0:1], {ARG['w2']}")
        a("s_lshl_b32 s3, s99, 3")
        a("s_add_u32 s3, s3, s49")
        a("s_mul_i32 s3, s3, 3584")
        a(f"v_lshlrev_b32 {v(T0)}, 7, v1")
        a("s_waitcnt lgkmcnt(0)")
        srd(a, 88, 54, 0, F * D * 2)
        a("s_mov_b64 exec, 0xfffffff")
        a(f"buffer_load_dword v255, {v(T0)}, s[88:91], s3 offen")
        a("s_mov_b64 exec, -1")
        a.label(lq)
    a("s_cmp_eq_u32 s28, 0")
    a(f"s_cbranch_scc1 {lab_fin}")
    part(vK2, vV2, MK2, lambda i: i * 2048, lambda i: 7 - i, a.newlabel("L_p2e"))
    a.label(lab_fin)
    stamp(6)
    a(f"v_add_f32 {v(SUM)}, {v(SUM)}, {v(SUM+1)}")
    a(f"v_add_f32 {v(SUM+2)}, {v(SUM+2)}, {v(SUM+3)}")
    a(f"v_add_f32 {v(SUM)}, {v(SUM)}, {v(SUM+2)}")
    a(f"ds_bpermute_b32 {v(SUM+1)}, {v(vX32)}, {v(SUM)}")
    a("s_waitcnt lgkmcnt(0)")
    a(f"v_add_f32 {v(SUM)}, {v(SUM)}, {v(SUM+1)}")
    lab_out = a.newlabel("L_out")
    a("s_cmp_lg_u32 s51, 0")
    a(f"s_cbranch_scc1 {lab_out}")
    lo = 2.0 ** -40 if 'forcemax' not in EXP else 2.0 ** 39
    a(f"v_mov_b32 {v(T1)}, {hex_f32(lo)}")
    a(f"v_mov_b32 {v(T0)}, {hex_f32(2.0**40)}")
    a(f"v_cmp_lt_f32 s[52:53], {v(T1)}, {v(SUM)}")
    a(f"v_cmp_lt_f32 s[54:55], {v(SUM)}, {v(T0)}")
    a("s_nop 3")
    a("s_and_b64 s[52:53], s[52:53], s[54:55]")
    a("s_cmp_eq_u64 s[52:53], exec")
    a(f"s_cbranch_scc1 {lab_out}")
    a("s_mov_b32 s51, 1")
    a(f"v_mov_b32 {v(VM)}, {v(vNEG)}")

    def maxpart(vK, MK, first_off, step, cnt_expr):
        lp = a.newlabel("L_mx"); lpe = a.newlabel("L_mxe")
        a(f"v_add_u32 {v(T0)}, {first_off}, {v(vK[0])}")
        a(f"v_add_u32 {v(T1)}, {first_off}, {v(vK[1])}")
        cnt_expr()

        def tile(C):
            a(f"ds_read_b128 {v(KB_[0],4)}, {v(T0)}")
            a(f"ds_read_b128 {v(KB_[0]+4,4)}, {v(T1)}")
            a("s_waitcnt lgkmcnt(0)")
            a(f"v_mfma_f32_32x32x16_bf16 {v(SA,16)}, {v(KB_[0],4)}, {v(QF,4)}, {v(C,16)}")
            a(f"v_mfma_f32_32x32x16_bf16 {v(SA,16)}, {v(KB_[0]+4,4)}, {v(QF+4,4)}, {v(SA,16)}")
            a("s_nop 7"); a("s_nop 7"); a("s_nop 7")
            for r in range(0, 16, 2):
                a(f"v_max3_f32 {v(VM)}, {v(VM)}, {v(SA+r)}, {v(SA+r+1)}")
            a(f"v_add_u32 {v(T0)}, {step}, {v(T0)}")
            a(f"v_add_u32 {v(T1)}, {step}, {v(T1)}")
        tile(MK)
        a.label(lp)
        a("s_cmp_eq_u32 s52, 0")
        a(f"s_cbranch_scc1 {lpe}")
        tile(CM)
        a("s_sub_u32 s52, s52, 1")
        a(f"s_branch {lp}")
        a.label(lpe)

    maxpart(vK1, MK1, 7 * 2048, -2048, lambda: a("s_mov_b32 s52, s44"))
    lmx = a.newlabel("L_mxd")
    a("s_cmp_eq_u32 s28, 0")
    a(f"s_cbranch_scc1 {lmx}")
    maxpart(vK2, MK2, 0, 2048, lambda: a("s_sub_u32 s52, 7, s44"))
    a.label(lmx)
    a(f"ds_bpermute_b32 {v(T0)}, {v(vX32)}, {v(VM)}")
    a("s_waitcnt lgkmcnt(0)")
    a(f"v_max_f32 {v(VM)}, {v(VM)}, {v(T0)}")
    a(f"v_sub_f32 {v(VM)}, 0, {v(VM)}")
    a(f"s_branch {lab_start}")

    a.label(lab_out)
    a(f"v_rcp_f32 {v(SUM)}, {v(SUM)}")
    if G.NL:
        a("s_lshl_b32 s3, s28, 1")
        a("s_lshr_b32 s46, s44, 2")
        a("s_add_u32 s3, s3, s46")
        a("s_lshl_b32 s3, s3, 5")
        a("s_add_u32 s3, s3, s29")
        a("s_lshl_b32 s3, s3, 2")
        a("s_and_b32 s46, s44, 3")
        a("s_add_u32 s3, s3, s46")
        a("s_lshl_b32 s100, s99, 7")
        a("s_lshl_b32 s3, s3, 11")
    elif G.OT:
        a("s_lshl_b32 s3, s28, 1")
        a("s_lshr_b32 s46, s44, 2")
        a("s_add_u32 s3, s3, s46")
        a("s_lshl_b32 s3, s3, 4")
        a("s_lshr_b32 s46, s29, 1")
        a("s_add_u32 s3, s3, s46")
        a("s_lshl_b32 s3, s3, 2")
        a("s_and_b32 s46, s44, 3")
        a("s_add_u32 s3, s3, s46")
        a(f"s_lshl_b32 s3, s3, {5+G.TSH}")
        a("s_and_b32 s46, s29, 1")
        a("s_lshl_b32 s46, s46, 6")
        a("s_add_u32 s3, s3, s46")
        a(f"v_lshlrev_b32 {v(T0)}, {G.TSH}, {v(vQQ)}")
        a(f"v_lshl_add_u32 {v(T0)}, {v(vHH)}, 3, {v(T0)}")
        a(f"v_add_u32 {v(T0)}, s3, {v(T0)}")
    else:
        a("s_lshl_b32 s3, s28, 8")
        a("s_lshl_b32 s46, s44, 5")
        a("s_add_u32 s3, s3, s46")
        a(f"v_add_u32 {v(T0)}, s3, {v(vQQ)}")
        a(f"v_lshlrev_b32 {v(T0)}, 11, {v(T0)}")
        a(f"v_lshl_add_u32 {v(T0)}, {v(vHH)}, 3, {v(T0)}")
        a("s_lshl_b32 s3, s29, 6")
        a(f"v_add_u32 {v(T0)}, s3, {v(T0)}")
    a("s_nop 7")
    for j in range(2 if G.NL else 0):
        for r in range(8):
            a(f"v_mul_f32 v{OA+8*j+r}, v{OA+8*j+r}, {v(SUM)}")
        for r in range(4):
            a(f"v_cvt_pk_bf16_f32 v{OA+8*j+r}, v{OA+8*j+2*r}, v{OA+8*j+2*r+1}")
        a(f"buffer_store_dwordx4 {v(OA+8*j,4)}, {v(vL16)}, s[12:15], s3 offen offset:{1024*j} {'sc0 sc1' if G.FZ else ''}")
    for g in range(0 if G.NL else 4):
        for r in range(4):
            a(f"v_mul_f32 v{OA+4*g+r}, v{OA+4*g+r}, {v(SUM)}")
        a(f"v_cvt_pk_bf16_f32 v{OA+4*g}, v{OA+4*g}, v{OA+4*g+1}")
        a(f"v_cvt_pk_bf16_f32 v{OA+4*g+1}, v{OA+4*g+2}, v{OA+4*g+3}")
        a(f"buffer_store_dwordx2 {v(OA+4*g,2)}, {v(T0)}, s[12:15], 0 offen offset:{16*g}")
    if 'stamp' in EXP and not G.FZ: a("s_waitcnt vmcnt(0)")
    stamp(7)
    stamp_out()
    if G.FZ: G.publish(a, 'P_oproj', 0)
    else: a(f"s_branch {end}")

    a.label(lab_lre)
    a("s_lshl_b32 s3, s30, 6")
    a(f"v_lshrrev_b32 {v(t0)}, 3, v1")
    a(f"v_add_u32 {v(t0)}, s3, {v(t0)}")
    for i in range(PA):
        a(f"v_add_u32 {v(t1)}, {8*i}, {v(t0)}")
        a(f"v_lshrrev_b32 {v(t2)}, 1, {v(t1)}")
        a(f"v_and_b32 {v(t2)}, 7, {v(t2)}")
        a(f"v_and_b32 {v(t3)}, 7, v1")
        a(f"v_xor_b32 {v(t2)}, {v(t2)}, {v(t3)}")
        a(f"v_add_u32 {v(t1)}, s98, {v(t1)}")
        a(f"v_mul_u32_u24 {v(t1)}, {lda}, {v(t1)}")
        a(f"v_lshl_add_u32 {v(vA[i])}, {v(t2)}, 4, {v(t1)}")
    a("s_lshl_b32 s3, s29, 6")
    for i in range(PB):
        a(f"s_mul_i32 s46, s30, {PB}")
        a(f"s_add_u32 s46, s46, {i}")
        a("s_lshr_b32 s47, s46, 2")
        a("s_and_b32 s46, s46, 3")
        a("s_lshl_b32 s46, s46, 4")
        a("s_lshl_b32 s47, s47, 11")
        a("s_add_u32 s47, s47, s3")
        a(f"v_lshrrev_b32 {v(t0)}, 2, v1")
        a(f"v_add_u32 {v(t0)}, s46, {v(t0)}")
        a(f"v_and_b32 {v(t1)}, 3, v1")
        a(f"v_bfe_u32 {v(t2)}, {v(t0)}, 3, 1")
        a(f"v_lshlrev_b32 {v(t2)}, 1, {v(t2)}")
        a(f"v_xor_b32 {v(t1)}, {v(t1)}, {v(t2)}")
        a(f"v_mul_u32_u24 {v(t0)}, {N*2}, {v(t0)}")
        a(f"v_lshl_add_u32 {v(t0)}, {v(t1)}, 4, {v(t0)}")
        a(f"v_add_u32 {v(vB[i])}, s47, {v(t0)}")
    a(f"s_branch {lab_lpass}")
    if G.FZ:
        a.label("Q_help")
        a(f"s_load_dwordx2 s[24:25], s[0:1], {ARG['ws']}")
        a(f"s_load_dwordx2 s[58:59], s[0:1], {ARG['x']}")
        a(f"s_load_dwordx2 s[26:27], s[0:1], {ARG['wqkv']}")
        a("v_readlane_b32 s34, v255, 1")
        a("v_readlane_b32 s35, v255, 2")
        a("s_branch Q_go")
    a.label(end)
    a("s_endpgm")
    return dict(name=name, grid=256, block=512, lds=lds, desc=G.kernel_desc(name, 256))
```

```python
import sys, math, os
EXP=os.environ.get('EXP','')
STMOD=os.environ.get('STMOD','sc0 sc1')
STALL=os.environ.get('STALL','')
RPM=int(os.environ.get('RPM','2'))
PFS=int(os.environ.get('PFS','4'))

OUT = os.environ.get("OUTF","sequential_preLN__sliding_block__mixer_channel_mlp__prompt.s")

S = 2048; D = 1024; F = 3584; H = 32; DH = 32; WIN = 256
ARG = dict(x=0, wqkv=8, wo=16, bx=24, w1=32, b1=40, w2=48, b2=56, out=64, dbg=72, ws=80)
MB = 1 << 20
WS_Y1 = 0
WS_QKV = 4 * MB
TP = int(os.environ.get('TP', '128')); TX = TP // 128; TSH = 7 + TX.bit_length() - 1
OT = 'noot' not in EXP
C3 = 'noc3' not in EXP
QC3 = 'qc3' in EXP
FZ = 'fz' in EXP
SK2 = FZ and 'nosk' not in EXP
E3 = SK2 and 'noe3' not in EXP
RM = 'rowmap' in EXP
NL = 'nl' in EXP or FZ
WS_O = 16 * MB
WS_H = 24 * MB
WS_Y2 = 24 * MB
WS_H1 = 32 * MB
WS_W2C = 62 * MB
WS_WOC = 64 * MB
WS_ST = 0
WS_CS = 1 * MB
WS_SIZE = 256 * MB
WS_FLAG = 2 * MB
WS_W2T = 72 * MB
WS_W1T = 88 * MB
W1T = 'w1t' in EXP
WS_FL = 3 * MB + 262144
C3W = 143360
CTRL = 163840 - 64
WS_PART = 80 * MB
LDH1 = F * 2 * TX


class Asm:
    def __init__(self):
        self.lines = []
        self.nlab = 0

    def __call__(self, s):
        self.lines.append("    " + s)

    def label(self, l):
        self.lines.append(l + ":")

    def newlabel(self, base="L"):
        self.nlab += 1
        return f"{base}_{self.nlab}"

    def c(self, s):
        self.lines.append("    ; " + s)

    def dry_begin(self, wave_sreg, idx_sreg, nw=4):
        self.dry = dict(ret=self.newlabel("L_dret"), disp=self.newlabel("L_ddisp"), done=self.newlabel("L_ddone"),
                        ent=[], idx=idx_sreg, nw=nw)
        self(f"s_mov_b32 s{idx_sreg}, s{wave_sreg}")
        self("s_mov_b64 exec, 0")
        self(f"s_branch {self.dry['disp']}")
        self.label(self.dry['done'])
        self("s_mov_b64 exec, -1")

    def dry_entry(self):
        l = self.newlabel("L_dent")
        self.label(l)
        self.dry['ent'].append(l)

    def dry_exit(self):
        self(f"s_cbranch_execz {self.dry['ret']}")

    def dry_mark(self):
        self.dry_exit(); self.dry_entry()

    def dry_dispatch(self):
        d = self.dry
        self.label(d['ret'])
        self(f"s_add_u32 s{d['idx']}, s{d['idx']}, {d['nw']}")
        self.label(d['disp'])
        for i, l in enumerate(d['ent']):
            self(f"s_cmp_eq_u32 s{d['idx']}, {i}")
            self(f"s_cbranch_scc1 {l}")
        self(f"s_branch {d['done']}")


def v(i, n=1):
    return f"v{i}" if n == 1 else f"v[{i}:{i+n-1}]"


def s(i, n=1):
    return f"s{i}" if n == 1 else f"s[{i}:{i+n-1}]"


def srd(a, d, base, off, nbytes):
    if off:
        a(f"s_add_u32 s{d}, s{base}, {off}")
        a(f"s_addc_u32 s{d+1}, s{base+1}, 0")
    else:
        a(f"s_mov_b32 s{d}, s{base}")
        a(f"s_mov_b32 s{d+1}, s{base+1}")
    a(f"s_and_b32 s{d+1}, s{d+1}, 0xffff")
    a(f"s_mov_b32 s{d+2}, {nbytes}")
    a(f"s_mov_b32 s{d+3}, 0x00020000")


def c3_write(a):
    x = 246
    lw = a.newlabel("L_c3w")
    a("s_cmp_lg_u32 s49, 1")
    a(f"s_cbranch_scc1 {lw}")
    a("v_readlane_b32 s3, v255, 5")
    a(f"v_mov_b32 {v(x+5)}, {C3W if E3 else CTRL}")
    a("s_nop 1")
    a(f"v_mov_b32 {v(x+6)}, s3")
    a(f"ds_write_b32 {v(x+5)}, {v(x+6)} offset:4")
    a("s_waitcnt lgkmcnt(0)")
    a.label(lw)


def publish(a, nxt, ph):
    x = 246
    a("s_memrealtime s[96:97]")
    srd(a, 76, 24, WS_FL, 327680 if E3 else 98304)
    a(f"v_lshlrev_b32 {v(x+4)}, 4, v1")
    a("s_waitcnt lgkmcnt(0)")
    for j in range(4):
        a(f"v_mov_b32 {v(x+j)}, s{96+(j&1)}")
    if ph == 2: c3_write(a)
    a("s_cmp_lg_u32 s49, 0")
    a("s_waitcnt vmcnt(0)")
    a("s_barrier")
    a(f"s_cbranch_scc1 {nxt}")
    if 'ftest' in EXP and str(ph) in os.environ.get('FTP', '012'):
        a("v_readlane_b32 s3, v255, 3")
        a("s_and_b32 s46, s2, 63")
        a(f"s_xor_b32 s46, s46, {5 + 7 * ph}")
        a("s_or_b32 s3, s3, s46")
        a("s_cmp_eq_u32 s3, 0")
        a(f"s_cbranch_scc1 {nxt}")
    a("s_mov_b64 exec, 0xff")
    a(f"buffer_store_dwordx4 {v(x,4)}, {v(x+4)}, s[76:79], s100 offen sc0 sc1")
    a("s_mov_b64 exec, -1")
    a(f"s_branch {nxt}")


def fz_poll(a, ph, stamp, x):
    lp = a.newlabel("L_fpoll"); ld = a.newlabel("L_fpolld")
    a("s_cmp_lg_u32 s49, 0")
    a(f"s_cbranch_scc1 {ld}")
    nd = (8 if SK2 else 16) if ph == 3 else 32
    a(f"s_mov_b32 exec_lo, {hex((1 << nd) - 1)}")
    a("s_mov_b32 exec_hi, 0")
    a("v_readlane_b32 s96, v255, 1")
    a("v_readlane_b32 s97, v255, 2")
    a("v_readlane_b32 s47, v255, 6")
    a(f"v_lshlrev_b32 {v(x+4)}, 7, v1")
    if ph == 1:
        a("s_lshr_b32 s3, s28, 1")
        a("s_lshl_b32 s3, s3, 12")
    else:
        a("s_lshl_b32 s3, s28, 11")
        a(f"s_add_u32 s3, s3, {32768*(ph-1)}")
        if ph == 3 and SK2:
            a("s_lshl_b32 s46, s92, 10")
            a("s_add_u32 s3, s3, s46")
    if ph == 2:
        a("s_lshl_b32 s46, s29, 11")
        a("s_sub_u32 s46, s46, 2048")
        a(f"v_add_u32 {v(x+5)}, s3, {v(x+4)}")
        a("s_mov_b32 exec_lo, 0xffff0000")
        a(f"v_add_u32 {v(x+5)}, s46, {v(x+4)}")
        a("s_mov_b32 exec_lo, -1")
        a(f"v_mov_b32 {v(x+4)}, {v(x+5)}")
        a("s_mov_b32 s3, 0")
    a("s_add_u32 s98, s96, 0x1000000")
    a("s_addc_u32 s99, s97, 0")
    a(f"s_mov_b32 s101, {int(os.environ.get('FZPOLL', '200'))}")
    a("v_writelane_b32 v255, 0, 6")
    a("s_cmp_lg_u32 s47, 0")
    a(f"s_cbranch_scc1 {lp}x")
    a.label(lp)
    a(f"buffer_load_dwordx2 {v(x+6,2)}, {v(x+4)}, s[76:79], s3 offen sc0 sc1")
    a("s_waitcnt vmcnt(0)")
    a(f"v_cmp_lt_u64 vcc, s[96:97], {v(x+6,2)}")
    a(f"v_cmp_gt_u64 s[46:47], s[98:99], {v(x+6,2)}")
    a("s_nop 1")
    a("s_and_b64 s[46:47], s[46:47], vcc")
    a("s_sub_u32 s101, s101, 1")
    a("s_cselect_b64 s[46:47], exec, s[46:47]")
    a("s_cmp_lg_u64 s[46:47], exec")
    a(f"s_cbranch_scc1 {lp}")
    a.label(lp + "x")
    a("s_mov_b64 exec, -1")
    a("s_lshr_b32 s3, s101, 31")
    a(f"v_mov_b32 {v(x+4)}, {CTRL}")
    a(f"v_mov_b32 {v(x+5)}, s3")
    a(f"ds_write_b32 {v(x+4)}, {v(x+5)}")
    a("s_cmp_lg_u32 s3, 0")
    stamp(1)
    a("s_waitcnt lgkmcnt(0)")
    a("s_barrier")
    a(f"s_cbranch_scc1 S_fail{ph}")
    a.label(ld)


def fz_t2(a, ph, x):
    a(f"v_mov_b32 {v(x)}, {CTRL}")
    a("s_barrier")
    a(f"ds_read_b32 {v(x)}, {v(x)}")
    a("s_waitcnt lgkmcnt(0)")
    a(f"v_cmp_ne_u32 vcc, 0, {v(x)}")
    a(f"s_cbranch_vccnz S_fail{ph}")


def gen_sched(a):
    go = {1: "P_oproj_go", 2: "P_ffn1_go", 3: "P_ffn2_go", 4: "P_ffn2_go"}
    nd = {1: 32, 2: 32, 3: 8 if SK2 and not E3 else 16, 4: 1}
    PH = (1, 2, 3, 4) if SK2 else (1, 2, 3)
    for p in PH:
        a.label(f"S_fail{p}")
        if p == 4: c3_write(a)
        a("s_waitcnt vmcnt(0) lgkmcnt(0)")
        a("s_barrier")
        a("v_readlane_b32 s46, v255, 3")
        a("s_lshl_b32 s47, s29, 8")
        a("s_or_b32 s47, s47, s28")
        a(f"v_writelane_b32 v255, s47, {8+2*p}")
        a(f"v_writelane_b32 v255, 0, {9+2*p}")
        a(f"v_writelane_b32 v255, {p}, 3")
        a("s_cmp_lg_u32 s46, 0")
        a("s_cbranch_scc1 S_next")
        a(f"v_writelane_b32 v255, {p}, 4")
        a("s_branch S_next")
    a.label("S_next")
    a("s_setprio 0")
    a("s_nop 1")
    a("v_readlane_b32 s3, v255, 3")
    a("s_nop 3")
    for p in PH[:-1]:
        a(f"s_cmp_eq_u32 s3, {p}")
        a(f"s_cbranch_scc1 S_n{p}")
    for p in PH[::-1]:
        a.label(f"S_n{p}")
        a(f"v_readlane_b32 s46, v255, {8+2*p}")
        a(f"v_readlane_b32 s47, v255, {9+2*p}")
        a("v_readlane_b32 s3, v255, 4")
        a("s_nop 3")
        a("s_and_b32 s28, s46, 15")
        a("s_bfe_u32 s29, s46, 0x40008")
        a(f"s_cmp_lt_u32 s47, {nd[p]}")
        a(f"s_cbranch_scc1 S_d{p}")
        a(f"s_cmp_eq_u32 s3, {p}")
        a(f"s_cselect_b32 s3, 0, {p+1}")
        a("v_writelane_b32 v255, s3, 3")
        if E3 and p >= 3: a("s_mov_b32 s95, 1")
        else: a("v_writelane_b32 v255, 1, 6")
        if p == 4: a("v_writelane_b32 v255, 1, 7")
        a(f"s_branch {go[p]}")
        a.label(f"S_d{p}")
        a("s_add_u32 s3, s47, 1")
        a(f"v_writelane_b32 v255, s3, {9+2*p}")
        if p == 1:
            a("s_lshr_b32 s28, s28, 1")
            a("s_mov_b32 s29, s47")
            a("s_branch Q_help")
        elif p == 2:
            a("s_lshl_b32 s3, s29, 4")
            a("s_mov_b32 s29, s47")
            a("s_cmp_lt_u32 s47, 16")
            a(f"s_cbranch_scc1 {go[1]}")
            a("s_add_u32 s3, s3, s47")
            a("s_sub_u32 s3, s3, 16")
            a("s_lshr_b32 s28, s3, 5")
            a("s_and_b32 s29, s3, 31")
            a("s_branch Q_help")
        elif p == 4:
            a("s_xor_b32 s29, s29, 1")
            a("s_mov_b32 s95, 0")
            a(f"s_branch {go[3]}")
        elif SK2 and not E3:
            a("s_and_b32 s29, s29, 1")
            a("s_lshl_b32 s29, s29, 3")
            a("s_add_u32 s29, s29, s47")
            a(f"s_branch {go[2]}")
        else:
            a("s_mov_b32 s29, s47")
            a(f"s_branch {go[2]}")


def code_pf(a, lab_from, nwaves, wave_sreg, vt, first=0):
    lh = a.newlabel("L_pc"); ls = a.newlabel("L_pcs")
    a(f"s_sub_u32 s3, s{wave_sreg}, {first}")
    a(f"s_cmp_ge_u32 s3, {nwaves}")
    a(f"s_cbranch_scc1 {ls}")
    a("s_getpc_b64 s[46:47]")
    a.label(lh)
    if lab_from:
        a(f"s_add_u32 s46, s46, {lab_from}-{lh}")
        a("s_addc_u32 s47, s47, 0")
    else: lab_from = lh
    a("s_lshl_b32 s3, s3, 13")
    a(f"v_lshl_add_u32 {v(vt)}, v1, 7, s3")
    a(f"v_min_u32 {v(vt)}, L_code_end-{lab_from}-4, {v(vt)}")
    a(f"global_load_dword v254, {v(vt)}, s[46:47]")
    a.label(ls)


def jit_pf(a, lab_from, vt, wave='s30', nl=16):
    lh = a.newlabel("L_pc")
    a("s_getpc_b64 s[46:47]")
    a.label(lh)
    a(f"s_add_u32 s46, s46, {lab_from}-{lh}")
    a(f"s_addc_u32 s47, s47, 0")
    a("s_bfe_u32 s3, s2, 0x20003")
    a("s_lshl_b32 s3, s3, 2")
    a(f"s_add_u32 s3, s3, {wave}")
    a(f"s_mul_i32 s3, s3, {nl*128}")
    a(f"v_lshl_add_u32 {v(vt)}, v1, 7, s3")
    a(f"v_min_u32 {v(vt)}, L_code_end-{lab_from}-4, {v(vt)}")
    a(f"s_mov_b64 exec, {hex((1 << nl) - 1)}")
    a(f"global_load_dword v254, {v(vt)}, s[46:47]")
    a("s_mov_b64 exec, -1")


def hex_f32(x):
    import struct
    return hex(struct.unpack('<I', struct.pack('<f', x))[0])


def kernel_header(a, name):
    a.lines.append(".p2align 8")
    a.lines.append(f".globl {name}")
    a.lines.append(f".type {name},@function")
    a.label(name)


def kernel_desc(name, nvgpr, nsgpr=102, accum=None):
    nv = ((nvgpr + 7) // 8) * 8
    acc = accum if accum is not None else ((nvgpr + 3) // 4) * 4
    return f""".amdhsa_kernel {name}
  .amdhsa_next_free_vgpr {nv if accum is None else nvgpr}
  .amdhsa_next_free_sgpr {nsgpr}
  .amdhsa_accum_offset {min(acc,256)}
  .amdhsa_group_segment_fixed_size 0
  .amdhsa_kernarg_size 88
  .amdhsa_user_sgpr_count 2
  .amdhsa_user_sgpr_kernarg_segment_ptr 1
  .amdhsa_system_sgpr_workgroup_id_x 1
.end_amdhsa_kernel
"""


def gen_prefetch(a, regions, end_label):
    CH = 32768
    counts = [nbytes // CH for _, nbytes in regions]
    for (_, nbytes), c in zip(regions, counts):
        assert c * CH == nbytes
    total = sum(counts)
    skip = a.newlabel("L_nopf")
    a(f"s_cmp_ge_u32 s2, {total}")
    a(f"s_cbranch_scc1 {skip}")
    base = 0
    for (arg, nbytes), c in zip(regions, counts):
        nxt = a.newlabel("L_pfn")
        a(f"s_cmp_ge_u32 s2, {base + c}")
        a(f"s_cbranch_scc1 {nxt}")
        a(f"s_load_dwordx2 s[4:5], s[0:1], {ARG[arg]}")
        a(f"s_sub_u32 s3, s2, {base}")
        a("s_lshl_b32 s3, s3, 15")
        a("v_lshlrev_b32 v1, 4, v0")
        a("v_add_u32 v1, s3, v1")
        a("s_waitcnt lgkmcnt(0)")
        srd(a, 8, 4, 0, nbytes)
        for j in range(8):
            a(f"v_add_u32 v2, {4096*j}, v1")
            a(f"buffer_load_dwordx4 {v(4+4*j,4)}, v2, s[8:11], 0 offen")
        a("s_waitcnt vmcnt(0)")
        a(f"s_branch {end_label}")
        a.label(nxt)
        base += c
    a.label(skip)
    a(f"s_sub_u32 s2, s2, {total}")
    return total


def tail_prefetch(a, task, lane, regions, vtmp, vdst):
    ntask = 2048
    total = sum(n for _, n in regions)
    per = total // ntask
    assert per * ntask == total and per % 1024 == 0
    nld = per // 1024
    base = 0
    done = a.newlabel("L_pfdone")
    for arg, nbytes in regions:
        cnt = nbytes // per
        assert cnt * per == nbytes
        nxt = a.newlabel("L_pfn")
        a(f"s_cmp_ge_u32 s{task}, {base + cnt}")
        a(f"s_cbranch_scc1 {nxt}")
        a(f"s_load_dwordx2 s[94:95], s[0:1], {ARG[arg]}")
        a(f"s_sub_u32 s93, s{task}, {base}")
        a(f"s_mul_i32 s93, s93, {per}")
        a(f"v_lshlrev_b32 {v(vtmp)}, 4, {v(lane)}")
        a(f"v_add_u32 {v(vtmp)}, s93, {v(vtmp)}")
        a("s_waitcnt lgkmcnt(0)")
        srd(a, 96, 94, 0, nbytes)
        for j in range(nld):
            if j and j % 4 == 0:
                a(f"v_add_u32 {v(vtmp)}, 4096, {v(vtmp)}")
            a(f"buffer_load_dwordx4 {v(vdst,4)}, {v(vtmp)}, s[96:99], 0 offen offset:{1024*(j%4)}")
        a(f"s_branch {done}")
        a.label(nxt)
        base += cnt
    a.label(done)
    return nld

def gen_ln(a, name, src_arg, src_off, dst_off, double, pf=None):
    nwg = S // 4
    kernel_header(a, name)
    end = a.newlabel("L_end")
    npf = 0
    a(f"s_cmp_ge_u32 s2, {nwg}")
    a(f"s_cbranch_scc1 {end}")
    a(f"s_load_dwordx2 s[4:5], s[0:1], {ARG[src_arg]}")
    a(f"s_load_dwordx2 s[6:7], s[0:1], {ARG['ws']}")
    a("v_lshrrev_b32 v1, 6, v0")
    a("v_and_b32 v2, 63, v0")
    a("s_lshl_b32 s3, s2, 2")
    a("v_add_u32 v1, s3, v1")
    a("v_lshlrev_b32 v3, 11, v1")
    a("v_lshl_add_u32 v3, v2, 5, v3")
    for i, m in enumerate([1, 2, 4, 8, 16, 32]):
        a(f"v_xor_b32 v{12+i}, {m}, v2")
        a(f"v_lshlrev_b32 v{12+i}, 2, v{12+i}")
    a("s_waitcnt lgkmcnt(0)")
    srd(a, 8, 4, src_off, S * D * 2)
    srd(a, 12, 6, dst_off, S * D * 2)
    a("buffer_load_dwordx4 v[4:7], v3, s[8:11], 0 offen")
    a("buffer_load_dwordx4 v[8:11], v3, s[8:11], 0 offen offset:16")
    npl = 0
    if pf:
        a("v_readfirstlane_b32 s92, v1")
        a("s_nop 3")
        npl = tail_prefetch(a, 92, 2, pf, 44, 48)
    a(f"s_waitcnt vmcnt({npl})")

    def unpack():
        for i in range(8):
            a(f"v_lshlrev_b32 v{20+2*i}, 16, v{4+i}")
            a(f"v_and_b32 v{21+2*i}, 0xffff0000, v{4+i}")

    def bfly():
        for i in range(6):
            a(f"ds_bpermute_b32 v41, v{12+i}, v40")
            a("s_waitcnt lgkmcnt(0)")
            a("v_add_f32 v40, v40, v41")

    def norm():
        a("v_add_f32 v40, v20, v21")
        for i in range(2, 16):
            a(f"v_add_f32 v40, v40, v{20+i}")
        bfly()
        a("v_mul_f32 v40, 0x3a800000, v40")
        for i in range(16):
            a(f"v_sub_f32 v{20+i}, v{20+i}, v40")
        a("v_mul_f32 v40, v20, v20")
        for i in range(1, 16):
            a(f"v_fmac_f32 v40, v{20+i}, v{20+i}")
        bfly()
        a("v_mov_b32 v42, 0x3727c5ac")
        a("v_fma_f32 v40, v40, v43, v42")
        a("v_rsq_f32 v40, v40")
        a("s_nop 0")
        for i in range(16):
            a(f"v_mul_f32 v{20+i}, v{20+i}, v40")
        for i in range(8):
            a(f"v_cvt_pk_bf16_f32 v{4+i}, v{20+2*i}, v{21+2*i}")

    a("v_mov_b32 v43, 0x3a800000")
    unpack()
    norm()
    if double:
        unpack()
        norm()
    a("buffer_store_dwordx4 v[4:7], v3, s[12:15], 0 offen")
    a("buffer_store_dwordx4 v[8:11], v3, s[12:15], 0 offen offset:16")
    a.label(end)
    a("s_endpgm")
    return dict(name=name, grid=nwg + npf, block=256, lds=0, desc=kernel_desc(name, 56))


def gen_gemm(a, name, N, K, BN, a_off, w_arg, epi, out_arg, out_off, res_arg=None, res_off=0,
             bias_arg=None, BM=128, NSTAGE=3, RA=4, RBN=8, ln=None, a_arg='ws', pre=False, stats_out=False, lda=None, ldo=None, splitk=None, zero_flags=False, l2pf=0, wpf=None, atile=False, w_off=None, otile=False, w2copy=False, dry=0, epi2=False, spf=None, rtile=False, c3src=None, c3=None, sp2=None, sp3=None, wt7=False, flags=False, sp4=None, endpf=None, alay=None, fz=None):
    import struct
    M = S
    BK = 64
    lda = lda or K * 2
    ldo = ldo or N * 2
    ATILE = ('at_' + name.split('_')[0]) in EXP or atile
    BTILE = ('bt_' + name.split('_')[0]) in EXP or w_off is not None
    ASTEP = BM * TP if ATILE else BK * 2
    NT_M = M // BM
    NT_N = N // BN
    ntiles = NT_M * NT_N
    MT = BM // 2 // 16
    NTW = BN // 2 // 16
    RB = {64: 128, 128: 128, 192: 128, 96: 64, 224: 448, 112: 32}[BN]
    ABYTES = BM * BK * 2
    BBYTES = BK * BN * 2
    STAGE = ABYTES + BBYTES
    PA = ABYTES // 1024 // 4
    PB = BBYTES // 1024 // 4
    assert PA * 4096 == ABYTES and PB * 4096 == BBYTES
    P = PA + PB
    NS = K // BK
    if splitk:
        NSLO, NSHI = splitk
        assert NSLO + NSHI == NS and (NSLO - NSHI) % NSTAGE == 0
        NS = NSHI
        ntiles *= 2
    lds = STAGE * NSTAGE
    CROW = BN * 2 + 16
    CSZ = BM * CROW
    LASTB = (NS - 1) % NSTAGE
    TBL = 2048 if (ln and not pre) else 0
    CBASE = 0 if LASTB * STAGE >= CSZ + TBL else (LASTB + 1) * STAGE
    assert CBASE + CSZ + TBL <= lds
    EPI = lds
    st_res = bool(res_arg) and not splitk
    if splitk:
        DONE = CBASE + CSZ
        assert DONE + 16 <= (LASTB * STAGE if CBASE == 0 else lds)
    st_bias = pre
    if st_res: lds += BM * BN * 2
    if st_bias: lds += 3072 + 4096
    FL = flags and not splitk and not (ln and not pre)
    if FL:
        FLG = lds; lds += 2048
    assert lds <= 163840
    if pre:
        CTAB = EPI + 1024; RTAB = EPI + 2048
    else:
        RTAB = CBASE + CSZ; CTAB = RTAB + 1024
    NEX = (BM * BN * 2 // 4096 if st_res else 0)
    PPR = RB // 32
    lg_ppr = int(math.log2(PPR)) if RB != 448 else 0

    vA = list(range(2, 2 + PA))
    vB = list(range(2 + PA, 2 + PA + PB))
    nxt = 2 + PA + PB
    vXb = [nxt, nxt + 1]; nxt += 2
    vWb = list(range(nxt, nxt + NTW)); nxt += NTW
    vXc = [nxt, nxt + 1]; nxt += 2
    vWc = list(range(nxt, nxt + NTW)); nxt += NTW
    vT = list(range(nxt, nxt + 8)); nxt += 8
    nxt = (nxt + 3) // 4 * 4
    FX = [nxt, nxt + 4 * MT]; nxt += 8 * MT
    FW = [nxt, nxt + 4 * NTW]; nxt += 8 * NTW
    ACC = nxt; nxt += 4 * MT * NTW
    PBI = nxt
    if bias_arg and not pre: nxt += 2 * NTW
    if l2pf or wpf or spf or sp2:
        nxt = (nxt + 3) // 4 * 4
        PFD = nxt; PFV = nxt + 4; nxt += 5
    W2S = 136; W2A = 164
    if splitk:
        PRT = nxt; nxt += 4 * MT * NTW
        PFL = nxt; PFA = nxt + 1; PPA = nxt + 2; nxt += 3
    nvgpr = nxt
    assert nvgpr <= 256
    t0, t1, t2, t3 = vT[0], vT[1], vT[2], vT[3]

    def acc(nt, mt):
        return ACC + 4 * (nt * MT + mt)

    def stamp(i, force=False):
        if 'bst' in EXP and i in (4, 5, 6) and not force: return
        if 'bst' not in EXP and force: return
        if 'stamp' in EXP:
            if ('rt2' in EXP and i in (0, 7)) or fz:
                a(f"s_memrealtime s[{60+2*i}:{61+2*i}]")
            elif 'rt' in EXP and 'rt2' not in EXP and i in (1, 6):
                a(f"s_memrealtime s[{60+2*i}:{61+2*i}]")
                a(f"s_memtime s[{62 if i == 1 else 70}+0:{63 if i == 1 else 71}]".replace("+0","")) if False else None
            else:
                a(f"s_memtime s[{60+2*i}:{61+2*i}]")
            if i >= 6: a("s_waitcnt lgkmcnt(0)")

    def stamp_out():
        if 'stamp' not in EXP: return
        a("s_waitcnt lgkmcnt(0)")
        a("s_lshl_b32 s3, s2, 3")
        a("s_add_u32 s3, s3, s49")
        a("s_lshl_b32 s3, s3, 6")
        a("v_mov_b32 v2, s3")
        for i in range(4): a(f"v_mov_b32 v{4+i}, s{60+i}")
        srd(a, 60, 24, (200 + ({'o':1,'1':2,'2':3}[name[0] if name[0]=='o' else name[3]] if 'rt2' in EXP or fz else 0)) * MB, 1 << 20)
        a("buffer_store_dwordx4 v[4:7], v2, s[60:63], 0 offen")
        a("s_nop 1")
        for i in range(2, 8):
            a(f"v_mov_b32 v4, s{60+2*i}")
            a(f"v_mov_b32 v5, s{61+2*i}")
            a(f"buffer_store_dwordx2 v[4:5], v2, s[60:63], 0 offen offset:{8*i}")
            a("s_nop 1")

    def wfrag_addr_common():
        a(f"v_lshrrev_b32 {v(t1)}, 4, v1")
        a(f"v_bfe_u32 {v(t0)}, v1, 2, 2")
        a(f"v_lshl_add_u32 {v(t2)}, {v(t1)}, 3, {v(t0)}")
        if RB == 256:
            a(f"v_and_b32 {v(t3)}, 1, {v(t1)}")
            a(f"v_lshl_add_u32 {v(t3)}, {v(t3)}, 2, {v(t0)}")
        elif RB == 128:
            a(f"v_and_b32 {v(t3)}, 1, {v(t1)}")
            a(f"v_lshrrev_b32 {v(t0)}, 1, {v(t0)}")
            a(f"v_lshl_add_u32 {v(t3)}, {v(t3)}, 1, {v(t0)}")
        elif RB in (64, 448):
            a(f"v_and_b32 {v(t3)}, 1, {v(t1)}")
        else:
            a(f"v_mov_b32 {v(t3)}, 0")
        a(f"v_mul_u32_u24 {v(t2)}, {RB}, {v(t2)}")
        a(f"v_and_b32 {v(t0)}, 3, v1")
        a(f"v_lshl_add_u32 {v(t2)}, {v(t0)}, 3, {v(t2)}")
        a(f"v_add_u32 {v(t2)}, {ABYTES}, {v(t2)}")

    def wfrag_addr(dst):
        if RB == 448:
            a("s_mov_b32 s47, 0")
        elif PPR > 1:
            a(f"s_lshr_b32 s47, s46, {lg_ppr}")
            a(f"s_and_b32 s46, s46, {PPR-1}")
        else:
            a("s_mov_b32 s47, s46")
            a("s_mov_b32 s46, 0")
        a(f"s_mul_i32 s47, s47, {64*RB}")
        a(f"v_xor_b32 {v(t0)}, s46, {v(t3)}")
        a(f"v_lshl_add_u32 {v(t0)}, {v(t0)}, 5, {v(t2)}")
        a(f"v_add_u32 {v(dst)}, s47, {v(t0)}")

    def poll(x): fz_poll(a, fz['ph'], stamp, x)
    def t2_wait(x): fz_t2(a, fz['ph'], x)

    def phase_end():
        if fz and fz['next']:
            a("s_lshl_b32 s3, s28, 4")
            a("s_add_u32 s3, s3, s29")
            a("s_lshl_b32 s3, s3, 7")
            a(f"s_add_u32 s100, s3, {32768*fz['ph']}")
            publish(a, fz['next'], fz['ph'])

    end = a.newlabel("L_end")
    if fz:
        a.lines.append(".p2align 6")
        a.label(fz['entry'])
    else:
        kernel_header(a, name)
    stamp(0)
    lab_loader = a.newlabel("L_loader")
    lab_store = a.newlabel("L_store")
    if fz:
        a("v_readlane_b32 s46, v255, 3")
        a("s_setprio 0")
        a("s_nop 2")
        a("s_cmp_lg_u32 s46, 0")
        a("s_cbranch_scc1 S_next")
    else:
        a(f"s_cmp_ge_u32 s2, {ntiles}")
        a(f"s_cbranch_scc1 {end}")
    pos_ld = len(a.lines)
    a(f"s_load_dwordx2 s[24:25], s[0:1], {ARG['ws']}")
    a(f"s_load_dwordx2 s[58:59], s[0:1], {ARG[a_arg]}")
    a(f"s_load_dwordx2 s[26:27], s[0:1], {ARG[w_arg]}")
    a(f"s_load_dwordx2 s[34:35], s[0:1], {ARG[out_arg]}")
    if res_arg:
        a(f"s_load_dwordx2 s[36:37], s[0:1], {ARG[res_arg]}")
    if bias_arg:
        a(f"s_load_dwordx2 s[38:39], s[0:1], {ARG[bias_arg]}")
    lds_ = a.lines[pos_ld:]
    if fz: del a.lines[pos_ld:]
    XSPL = bool(splitk) and RA * RBN == 32
    assert ntiles == 256 and RA * RBN == (16 if splitk and not XSPL else 32) and NT_M % RA == 0 and NT_N % RBN == 0
    XB = NT_N // RBN
    a("s_and_b32 s3, s2, 7")
    a("s_lshr_b32 s46, s2, 3")
    if splitk:
        if XSPL:
            a("s_and_b32 s92, s3, 1")
            a("s_lshr_b32 s3, s3, 1")
            a("s_lshl_b32 s96, s3, 5")
        else:
            a("s_lshr_b32 s92, s46, 4")
            a("s_and_b32 s46, s46, 15")
            a("s_lshl_b32 s96, s3, 4")
        a("s_add_u32 s96, s96, s46")
        a("s_cmp_eq_u32 s92, 0")
        a(f"s_cselect_b32 s93, {NSLO}, {NSHI}")
        a("s_mov_b32 s94, 1")
    a(f"s_lshr_b32 s28, s3, {int(math.log2(XB))}")
    a(f"s_and_b32 s29, s3, {XB-1}")
    a(f"s_mul_i32 s28, s28, {RA}")
    a(f"s_mul_i32 s29, s29, {RBN}")
    a(f"s_lshr_b32 s3, s46, {int(math.log2(RBN))}")
    a("s_add_u32 s28, s28, s3")
    NROT = int(os.environ.get('NROT', '0'))
    if NROT: a(f"s_add_u32 s46, s46, {NROT}")
    a(f"s_and_b32 s3, s46, {RBN-1}")
    a("s_add_u32 s29, s29, s3")
    if fz:
        a.label(fz['entry'] + "_go")
        a.lines.extend(lds_)
    a("v_and_b32 v1, 63, v0")
    a(f"v_lshrrev_b32 {v(vT[0])}, 6, v0")
    a("s_nop 0")
    a(f"v_readfirstlane_b32 s49, {v(vT[0])}")
    a("s_nop 3")
    a("s_and_b32 s30, s49, 3")
    a("s_lshr_b32 s44, s30, 1")
    a("s_and_b32 s45, s30, 1")
    if fz: poll(246)

    WBYTES = NT_N * (K // 2) * 1024 if wt7 else K * N * 2
    def build_srds(rest=False):
        if not rest:
            a("s_waitcnt lgkmcnt(0)")
            srd(a, 4, 58, a_off, M * lda)
            srd(a, 8, 26, w_off or 0, WBYTES)
        srd(a, 12, 34, out_off, M * ldo)
        if res_arg:
            srd(a, 16, 36, res_off, M * N * 2 * (TX if rtile else 1))
        if bias_arg:
            srd(a, 20, 38, 0, N * 2)
        if pre or stats_out:
            srd(a, 84, 24, WS_ST, S * 128)
        if pre:
            srd(a, 88, 24, WS_CS, 16 * N * 4)
        if splitk:
            srd(a, 84, 24, WS_PART, 128 * 65536)
            srd(a, 88, 24, WS_FLAG, 512)

    FS = 'nofs' not in EXP and not splitk and not zero_flags and RB in (128, 448) and BN in (64, 224) and 'nodma' not in EXP
    if FS:
        lab_comp = a.newlabel("L_comp")
        a("s_cmp_lt_u32 s49, 4")
        a(f"s_cbranch_scc1 {lab_comp}")
        pos_ins = len(a.lines)
        a.label(lab_comp)
    else:
        a("s_cmp_ge_u32 s49, 4")
        a(f"s_cbranch_scc1 {lab_loader}")

    a(f"v_and_b32 {v(t0)}, 15, v1")
    if alay == 'o':
        a("s_lshl_b32 s3, s44, 12")
        a(f"v_lshl_add_u32 {v(t0)}, {v(t0)}, 4, s3")
        a(f"v_lshrrev_b32 {v(t1)}, 4, v1")
        a(f"v_lshl_add_u32 {v(vXb[0])}, {v(t1)}, 9, {v(t0)}")
        a(f"v_add_u32 {v(vXb[1])}, 0x2000, {v(vXb[0])}")
    else:
        a("s_lshl_b32 s3, s44, 6")
        a(f"v_add_u32 {v(t0)}, s3, {v(t0)}")
        a(f"v_lshlrev_b32 {v(t0)}, 7, {v(t0)}")
        a(f"v_lshrrev_b32 {v(t1)}, 4, v1")
        a(f"v_bfe_u32 {v(t2)}, v1, 1, 3")
        a(f"v_xor_b32 {v(t3)}, {v(t1)}, {v(t2)}")
        a(f"v_lshl_add_u32 {v(vXb[0])}, {v(t3)}, 4, {v(t0)}")
        a(f"v_xor_b32 {v(t3)}, 4, {v(t3)}")
        a(f"v_lshl_add_u32 {v(vXb[1])}, {v(t3)}, 4, {v(t0)}")
    xoff = (lambda mt: (mt >> 1) * 2048 + (mt & 1) * 256) if alay == 'o' else (lambda mt: mt * 2048)
    wfrag_addr_common()
    a(f"s_mul_i32 s3, s45, {NTW}")
    epi3 = epi2 and E3
    if epi3:
        import f3
        a(f"s_load_dwordx2 s[36:37], s[0:1], {ARG['b2']}")
    for nt in range(NTW):
        if epi3:
            a("s_cmp_eq_u32 s45, 0")
            a(f"s_cselect_b32 s46, {f3.C16[nt][0]}, {f3.C16[nt][1]}")
        else: a(f"s_add_u32 s46, s3, {nt}")
        wfrag_addr(vWb[nt])
    for i in range(4 * MT * NTW):
        a(f"v_mov_b32 v{ACC+i}, 0")
    a("s_mov_b32 s42, 0")
    build_srds()
    if bias_arg and not pre:
        a(f"v_lshrrev_b32 {v(t0)}, 4, v1")
        a(f"v_lshlrev_b32 {v(t0)}, 3, {v(t0)}")
        a(f"s_mul_i32 s3, s29, {BN*2}")
        a(f"s_mul_i32 s46, s45, {BN}")
        a("s_add_u32 s3, s3, s46")
        for nt in range(NTW):
            a(f"buffer_load_dwordx2 {v(PBI+2*nt,2)}, {v(t0)}, s[20:23], s3 offen offset:{32*nt}")

    def set_cur():
        for kk in range(2):
            a(f"v_add_u32 {v(vXc[kk])}, s42, {v(vXb[kk])}")
        for nt in range(NTW):
            a(f"v_add_u32 {v(vWc[nt])}, s42, {v(vWb[nt])}")
        a(f"s_add_u32 s42, s42, {STAGE}")
        a(f"s_cmp_ge_u32 s42, {STAGE*NSTAGE}")
        a("s_cselect_b32 s42, 0, s42")

    def read_list(kk, f):
        if 'noreads' in EXP: return []
        L = []
        for nt in range(NTW):
            if nt < MT:
                L.append(f"ds_read_b128 {v(FX[f]+4*nt,4)}, {v(vXc[kk])} offset:{xoff(nt)}")
            for rd in range(2):
                L.append(f"ds_read_b64_tr_b16 {v(FW[f]+4*nt+2*rd,2)}, {v(vWc[nt])} offset:{kk*32*RB+rd*4*RB}")
        for mt in range(NTW, MT):
            L.append(f"ds_read_b128 {v(FX[f]+4*mt,4)}, {v(vXc[kk])} offset:{xoff(mt)}")
        return L

    def mfma_list(f):
        if 'nomfma' in EXP: return []
        L = []
        for nt in range(NTW):
            for mt in range(MT):
                L.append(f"v_mfma_f32_16x16x32_bf16 {v(acc(nt,mt),4)}, {v(FW[f]+4*nt,4)}, {v(FX[f]+4*mt,4)}, {v(acc(nt,mt),4)}")
        return L

    def reads(kk, f):
        for x in read_list(kk, f): a(x)

    def mfmas(f):
        for x in mfma_list(f): a(x)

    def inter(kk, fr, fm):
        R = read_list(kk, fr); Mm = mfma_list(fm)
        rpm = RPM if NTW <= 4 else 1
        ri = 0
        for i in range(len(Mm)):
            a(Mm[i])
            for _ in range(rpm):
                if ri < len(R): a(R[ri]); ri += 1
        while ri < len(R): a(R[ri]); ri += 1

    SLC = int(os.environ.get('SLC', '1')); SLL = int(os.environ.get('SLL', '1'))
    vRA, vCA, vCV, vFT = vT[4], vT[5], vT[6], vT[7]
    slow = []
    SH = not FL and not splitk and 'nosh' not in EXP
    def blockS(extra=None, tail=()):
        R = read_list(1, 1); Mm = mfma_list(0)
        rpm = RPM if NTW <= 4 else 1
        cur = [f"v_add_u32 {v(vXc[kk])}, s42, {v(vXb[kk])}" for kk in range(2)] + [f"v_add_u32 {v(vWc[nt])}, s42, {v(vWb[nt])}" for nt in range(NTW)]
        cur += [f"s_add_u32 s42, s42, {STAGE}", f"s_cmp_ge_u32 s42, {STAGE*NSTAGE}", "s_cselect_b32 s42, 0, s42"]
        ri = 0; ex_done = False; tail = list(tail)
        for i in range(len(Mm)):
            a(Mm[i])
            k_ = 0
            while k_ < rpm and ri < len(R): a(R[ri]); ri += 1; k_ += 1
            if ri == len(R) and k_ == 0:
                if cur:
                    for _ in range(3):
                        if cur: a(cur.pop(0))
                elif not ex_done:
                    if extra: extra()
                    ex_done = True
                    for x in tail: a(x)
        while ri < len(R): a(R[ri]); ri += 1
        for x in cur: a(x)
        if not ex_done:
            if extra: extra()
            for x in tail: a(x)
        a("s_waitcnt lgkmcnt(0)")
    def blockB(extra=None):
        R = read_list(1, 1); Mm = mfma_list(0)
        rpm = RPM if NTW <= 4 else 1
        HB = int(os.environ.get('FLHB', '4')) if len(Mm) > 16 else int(os.environ.get('FLHS', '2'))
        FP = int(os.environ.get('FLFP', '8')) if len(Mm) > 16 else 0
        cur = [f"v_add_u32 {v(vXc[kk])}, s42, {v(vXb[kk])}" for kk in range(2)] + [f"v_add_u32 {v(vWc[nt])}, s42, {v(vWb[nt])}" for nt in range(NTW)]
        cur += [f"s_add_u32 s42, s42, {STAGE}", f"s_cmp_ge_u32 s42, {STAGE*NSTAGE}", "s_cselect_b32 s42, 0, s42"]
        fr = f"ds_read_b32 {v(vFT)}, {v(vRA)}"
        ri = 0; done_fr = False
        n1 = len(Mm) - HB
        for i in range(n1):
            a(Mm[i])
            k_ = 0
            while k_ < rpm and ri < len(R): a(R[ri]); ri += 1; k_ += 1
            if ri == len(R) and k_ < rpm or (ri == len(R) and k_ == 0):
                if not done_fr and i >= n1 - 1 - FP: a(fr); done_fr = True
                for _ in range(3):
                    if cur: a(cur.pop(0))
        while ri < len(R): a(R[ri]); ri += 1
        if not done_fr: a(fr)
        for x in cur: a(x)
        if extra: extra()
        a(f"v_add_u32 {v(vCV)}, 1, {v(vCV)}")
        a("s_waitcnt lgkmcnt(0)")
        rest = Mm[n1:]
        lsl = a.newlabel("L_fslow"); lbk = a.newlabel("L_fback")
        seq = [[f"ds_write_b32 {v(vCA)}, {v(vCV)}", f"v_cmp_ge_u32 vcc, {v(vCV)}, {v(vFT)}"]]
        for g_ in seq:
            if rest: a(rest.pop(0))
            for x in g_: a(x)
        for x in rest: a(x)
        a(f"s_cbranch_vccnz {lsl}")
        a.label(lbk)
        slow.append((lsl, lbk))

    if 'cpf' in EXP:
        lh = a.newlabel("L_pc")
        a("s_getpc_b64 s[46:47]")
        a.label(lh)
        a(f"v_lshlrev_b32 {v(t0)}, 4, v1")
        a("s_lshl_b32 s3, s30, 10")
        for j in range(int(os.environ.get('NCPF', '4'))):
            a(f"s_min_u32 s92, s3, {end}-{lh}-1024")
            a(f"v_add_u32 {v(t1)}, s92, {v(t0)}")
            a(f"global_load_dwordx4 {v(FX[0],4)}, {v(t1)}, s[46:47]")
            a("s_add_u32 s3, s3, 4096")
        a("s_waitcnt vmcnt(0)")
    if wpf:
        a("s_lshl_b32 s3, s2, 2")
        a("s_add_u32 s3, s3, s30")
        for q, (arg, nbytes, hi) in enumerate(wpf):
            a(f"s_load_dwordx2 s[{94+2*q}:{95+2*q}], s[0:1], {ARG[arg]}")
            a(f"s_mul_i32 s{92+q}, s3, {nbytes//1024}")
        a("s_waitcnt lgkmcnt(0)")
        for q, (arg, nbytes, hi) in enumerate(wpf):
            assert nbytes % (1 << 20) == 0
            srd(a, 84 + 4 * q, 94 + 2 * q, 0, nbytes)
        a(f"v_lshlrev_b32 {v(PFV)}, {PFS}, v1")
    if c3src:
        c_arg, c_rows, c_off = c3src
        assert c_rows * 2 == 7 * 1024 and wpf[0][0] == c_arg and PFS == 4 and wpf[0][2] < 0 and NS == 16 and len(wpf) == 1
        a("s_mul_i32 s3, s3, 7")
        a("v_lshrrev_b32 v2, 3, v1")
        a("v_and_b32 v4, 7, v1")
        a("v_lshlrev_b32 v4, 4, v4")
        a("v_lshl_add_u32 v3, v2, 10, v4")
        a("v_add_u32 v2, s3, v2")
        a("v_and_b32 v5, 1, v2")
        a(f"v_mul_u32_u24 v5, {c_rows*256}, v5")
        a("v_lshrrev_b32 v2, 1, v2")
        a("v_lshl_add_u32 v2, v2, 8, v4")
        a("v_add_u32 v2, v2, v5")
    if spf:
        assert RA * BM == 512 and RBN * BN == 512
        a("s_lshr_b32 s3, s2, 3")
        a("s_lshl_b32 s3, s3, 2")
        a("s_add_u32 s3, s3, s30")
        a(f"s_lshr_b32 s46, s28, {int(math.log2(RA))}")
        if ATILE:
            a(f"s_mul_i32 s46, s46, {RA*BM*lda}")
            a("s_lshr_b32 s47, s3, 4")
            a(f"s_mul_i32 s47, s47, {BM*lda}")
            a("s_add_u32 s46, s46, s47")
            a("s_and_b32 s47, s3, 15")
            a("s_lshl_b32 s47, s47, 13")
            a("s_add_u32 s96, s46, s47")
            astep, arow = 8 * BM * 128, 1024
        else:
            a(f"s_mul_i32 s46, s46, {RA*BM}")
            a("s_lshl_b32 s47, s3, 3")
            a("s_add_u32 s46, s46, s47")
            a(f"s_mul_i32 s96, s46, {lda}")
            astep, arow = 1024, lda
        a("s_sub_u32 s46, s3, 64")
        a(f"s_mul_i32 s46, s46, {8*N*2}")
        a(f"s_lshr_b32 s47, s29, {int(math.log2(RBN))}")
        a("s_lshl_b32 s47, s47, 10")
        a("s_add_u32 s46, s46, s47")
        a(f"s_mov_b32 s97, {512*N*2}")
        a(f"s_mov_b32 s47, {N*2}")
        a("s_cmp_lt_u32 s3, 64")
        a("s_cselect_b32 s96, s96, s46")
        a(f"s_cselect_b32 s97, {astep}, s97")
        a(f"s_cselect_b32 s47, {arow}, s47")
        for i in range(4):
            a(f"s_cselect_b32 s{76+i}, s{4+i}, s{8+i}")
        a(f"v_lshrrev_b32 {v(t0)}, 3, v1")
        a(f"v_and_b32 {v(t1)}, 7, v1")
        a(f"v_mul_u32_u24 {v(t0)}, s47, {v(t0)}")
        a(f"v_lshl_add_u32 {v(PFD+1)}, {v(t1)}, 7, {v(t0)}")

        def spf1():
            a(f"buffer_load_dword {v(PFD)}, {v(PFD+1)}, s[76:79], s96 offen")
            a("s_add_u32 s96, s96, s97")
        for _ in range(spf[0]): spf1()
    if sp2:
        assert RA * BM == 512 and RBN * BN == 512 and ATILE
        W0 = sp2; DD = W0 + 7
        a("s_lshr_b32 s3, s2, 3")
        a("s_lshl_b32 s3, s3, 2")
        a("s_add_u32 s3, s3, s30")
        a(f"s_sub_u32 s98, s3, {W0}")
        a("s_and_b32 s98, s98, 7")
        a(f"s_add_u32 s99, s98, {W0}")
        a("s_lshr_b32 s3, s3, 3")
        a(f"s_and_b32 s46, s28, {-RA & 0xffffffff}")
        a("s_lshr_b32 s47, s3, 1")
        a("s_add_u32 s46, s46, s47")
        a(f"s_mul_i32 s46, s46, {BM*lda}")
        a("s_and_b32 s47, s3, 1")
        a(f"s_mul_i32 s47, s47, {64*TP}")
        a("s_add_u32 s46, s46, s47")
        a(f"s_mul_i32 s47, s99, {ASTEP}")
        a("s_add_u32 s96, s46, s47")
        a("s_sub_u32 s46, s3, 8")
        a("s_lshl_b32 s46, s46, 3")
        a("s_lshl_b32 s47, s99, 6")
        a("s_add_u32 s46, s46, s47")
        a(f"s_mul_i32 s46, s46, {N*2}")
        a(f"s_lshr_b32 s47, s29, {int(math.log2(RBN))}")
        a("s_lshl_b32 s47, s47, 10")
        a("s_add_u32 s46, s46, s47")
        a(f"s_mov_b32 s97, {512*N*2}")
        a(f"s_mov_b32 s47, {N*2}")
        a("s_mov_b32 s93, 7")
        a("s_cmp_lt_u32 s3, 8")
        a("s_cselect_b32 s96, s96, s46")
        a(f"s_cselect_b32 s97, {8*ASTEP}, s97")
        a(f"s_cselect_b32 s47, {8*TP}, s47")
        a(f"s_cselect_b32 s93, {TSH}, s93")
        for i in range(4):
            a(f"s_cselect_b32 s{76+i}, s{4+i}, s{8+i}")
        a(f"v_lshrrev_b32 {v(t0)}, 3, v1")
        a(f"v_and_b32 {v(t1)}, 7, v1")
        a(f"v_mul_u32_u24 {v(t0)}, s47, {v(t0)}")
        a(f"v_lshlrev_b32 {v(t1)}, s93, {v(t1)}")
        a(f"v_add_u32 {v(PFD+1)}, {v(t1)}, {v(t0)}")
        a(f"s_sub_u32 s98, {NS + DD - 8}, s99")

        def spf1():
            a(f"buffer_load_dword {v(PFD)}, {v(PFD+1)}, s[76:79], s96 offen")
            a("s_add_u32 s96, s96, s97")
        if 'sp2late' not in EXP: spf1()
    if sp4:
        assert RA == 8 and RBN * BN * 2 == 1792 and ATILE and TP == 128 and not wt7
        K0, NINI, PHS = sp4
        a("s_lshr_b32 s3, s2, 3")
        a("s_lshl_b32 s3, s3, 2")
        a("s_add_u32 s3, s3, s30")
        a(f"s_and_b32 s46, s28, {-RA & 0xffffffff}")
        a("s_lshr_b32 s47, s3, 3")
        a("s_add_u32 s46, s46, s47")
        a(f"s_mul_i32 s46, s46, {BM*lda}")
        a("s_and_b32 s47, s3, 7")
        a("s_lshl_b32 s47, s47, 13")
        a("s_add_u32 s46, s46, s47")
        a(f"s_add_u32 s96, s46, {K0*ASTEP}")
        a(f"v_lshlrev_b32 {v(t0)}, 7, v1")
        a("s_sub_u32 s46, s3, 64")
        a("s_lshl_b32 s46, s46, 6")
        a(f"v_add_u32 {v(t1)}, s46, v1")
        a(f"s_mov_b32 s47, {((1 << 32) + 13) // 14}")
        a(f"v_mul_hi_u32 {v(t2)}, {v(t1)}, s47")
        a(f"v_mul_u32_u24 {v(t3)}, 14, {v(t2)}")
        a(f"v_sub_u32 {v(t1)}, {v(t1)}, {v(t3)}")
        a(f"v_mul_u32_u24 {v(t2)}, {N*2}, {v(t2)}")
        a(f"v_lshl_add_u32 {v(t1)}, {v(t1)}, 7, {v(t2)}")
        a(f"s_lshr_b32 s47, s29, {int(math.log2(RBN))}")
        a("s_mul_i32 s47, s47, 1792")
        a(f"s_add_u32 s47, s47, {K0*64*N*2}")
        a("s_cmp_ge_u32 s3, 120")
        a("s_cselect_b32 s47, 0x60000000, s47")
        a(f"s_mov_b32 s97, {256*N*2}")
        a("s_cmp_lt_u32 s3, 64")
        a("s_cselect_b64 vcc, -1, 0")
        a("s_cselect_b32 s96, s96, s47")
        a(f"s_cselect_b32 s97, {4*ASTEP}, s97")
        for i in range(4):
            a(f"s_cselect_b32 s{76+i}, s{4+i}, s{8+i}")
        a(f"v_cndmask_b32 v8, {v(t1)}, {v(t0)}, vcc")

        def spf1():
            a(f"buffer_load_dword {v(PFD)}, v8, s[76:79], s96 offen")
            a("s_add_u32 s96, s96, s97")
        for _ in range(NINI): spf1()
        NPH = -(-(NS - K0) // 4) - NINI
    if l2pf:
        NPA = RA * BM // 8
        NPW = BK * (RBN * BN * 2) // 1024
        WPR = RBN * BN * 2 // 1024
        assert NPA + NPW == 128 and WPR == 1
        lw = a.newlabel("L_pfw"); ld = a.newlabel("L_pfd")
        a("s_lshr_b32 s3, s2, 3")
        a("s_lshl_b32 s3, s3, 2")
        a("s_add_u32 s3, s3, s30")
        a(f"s_cmp_ge_u32 s3, {NPA}")
        a(f"s_cbranch_scc1 {lw}")
        a(f"s_lshr_b32 s46, s28, {int(math.log2(RA))}")
        a(f"s_mul_i32 s46, s46, {RA*BM}")
        a("s_lshl_b32 s3, s3, 3")
        a("s_add_u32 s3, s3, s46")
        a(f"v_lshrrev_b32 {v(PFV)}, 3, v1")
        a(f"v_add_u32 {v(PFV)}, s3, {v(PFV)}")
        a(f"v_mul_u32_u24 {v(PFV)}, {lda}, {v(PFV)}")
        a(f"v_and_b32 {v(t0)}, 7, v1")
        a(f"v_lshl_add_u32 {v(PFV)}, {v(t0)}, 4, {v(PFV)}")
        for i in range(4): a(f"s_mov_b32 s{84+i}, s{4+i}")
        a(f"s_mov_b32 s92, {l2pf*BK*2}")
        a(f"s_mov_b32 s93, {BK*2}")
        a(f"s_branch {ld}")
        a.label(lw)
        a(f"s_sub_u32 s3, s3, {NPA}")
        a(f"s_mul_i32 s3, s3, {N*2}")
        a(f"s_lshr_b32 s46, s29, {int(math.log2(RBN))}")
        a(f"s_mul_i32 s46, s46, {RBN*BN*2}")
        a("s_add_u32 s3, s3, s46")
        a(f"v_lshlrev_b32 {v(PFV)}, 4, v1")
        a(f"v_add_u32 {v(PFV)}, s3, {v(PFV)}")
        for i in range(4): a(f"s_mov_b32 s{84+i}, s{8+i}")
        a(f"s_mov_b32 s92, {l2pf*BK*N*2}")
        a(f"s_mov_b32 s93, {BK*N*2}")
        a.label(ld)
        a(f"s_mul_i32 s3, s93, {NSTAGE-1}")
        for j in range(NSTAGE - 1, l2pf):
            a(f"buffer_load_dwordx4 {v(PFD,4)}, {v(PFV)}, s[84:87], s3 offen")
            a("s_add_u32 s3, s3, s93")
    if splitk:
        a("s_xor_b32 s95, s92, 1")
        a(f"v_mov_b32 {v(PFL)}, 0")
        a("s_lshl_b32 s3, s96, 2")
        a(f"v_mov_b32 {v(PFA)}, s3")
        a("s_add_u32 s3, s3, s30")
        a("s_lshl_b32 s3, s3, 14")
        a(f"v_lshlrev_b32 {v(PPA)}, 4, v1")
        a(f"v_add_u32 {v(PPA)}, s3, {v(PPA)}")
    DRY = dry and not splitk
    if DRY:
        a.dry_begin(30, 95)
    if FL:
        a(f"v_and_b32 {v(vRA)}, 3, v1")
        a(f"v_lshlrev_b32 {v(vRA)}, 8, {v(vRA)}")
        a(f"v_lshl_add_u32 {v(vRA)}, v1, 2, {v(vRA)}")
        a(f"v_add_u32 {v(vRA)}, {FLG}, {v(vRA)}")
        a("s_lshl_b32 s3, s30, 8")
        a(f"s_add_u32 s3, s3, {FLG+1024}")
        a(f"v_lshl_add_u32 {v(vCA)}, v1, 2, s3")
        a(f"v_mov_b32 {v(vCV)}, 0")
        a(f"ds_write_b32 {v(vCA)}, {v(vCV)}")
        set_cur()
        a("s_waitcnt lgkmcnt(0)")
    if SH: set_cur()
    if fz and 'fpre' in EXP:
        code_pf(a, None, 2 if fz['next'] else 1, 49, t0, 1)
    if fz:
        lt2 = a.newlabel("L_t2")
        a("s_cmp_eq_u32 s49, 0")
        a(f"s_cbranch_scc1 {lt2}")
        if fz['ph'] == 2 and C3:
            lc = a.newlabel("L_c3c")
            x = FX[0]
            a("s_cmp_lg_u32 s49, 1")
            a(f"s_cbranch_scc1 {lc}")
            a("v_readlane_b32 s96, v255, 1")
            a("v_readlane_b32 s97, v255, 2")
            a(f"v_lshlrev_b32 {v(x+8)}, 7, v1")
            a("s_mov_b32 s3, 0")
            for j in range(4):
                a(f"buffer_load_dwordx2 {v(x+2*j,2)}, {v(x+8)}, s[76:79], s3 offen sc0 sc1")
                a("s_add_u32 s3, s3, 8192")
            a("s_add_u32 s98, s96, 0x1000000")
            a("s_addc_u32 s99, s97, 0")
            a("s_mov_b64 s[46:47], -1")
            a("s_waitcnt vmcnt(0)")
            for j in range(4):
                a(f"v_cmp_lt_u64 vcc, s[96:97], {v(x+2*j,2)}")
                a("s_nop 1")
                a("s_and_b64 s[46:47], s[46:47], vcc")
                a(f"v_cmp_gt_u64 vcc, s[98:99], {v(x+2*j,2)}")
                a("s_nop 1")
                a("s_and_b64 s[46:47], s[46:47], vcc")
            a("s_cmp_eq_u64 s[46:47], exec")
            a("s_cselect_b32 s3, 1, 0")
            a("v_writelane_b32 v255, s3, 5")
            a.label(lc)
            if epi3: c3_write(a)
        if epi3 and 'xw1' in EXP:
            assert RA == 8
            a(f"v_mul_u32_u24 {v(t0)}, 147, v1")
            a(f"v_lshrrev_b32 {v(t0)}, 11, {v(t0)}")
            a(f"v_mul_u32_u24 {v(t0)}, {N*2 - 14*128}, {v(t0)}")
            a(f"v_lshl_add_u32 {v(t0)}, v1, 7, {v(t0)}")
            a("s_lshr_b32 s3, s2, 3")
            a("s_mul_i32 s3, s3, 3")
            a("s_add_u32 s3, s3, s30")
            a("s_sub_u32 s3, s3, 1")
            a(f"s_mul_i32 s3, s3, {4*N*2}")
            a("s_lshr_b32 s46, s29, 2")
            a("s_mul_i32 s46, s46, 1792")
            a("s_add_u32 s3, s3, s46")
            a("s_mov_b32 exec_hi, 0x00ffffff")
            for j in range(3):
                a(f"buffer_load_dword v254, {v(t0)}, s[8:11], s3 offen")
                a(f"s_add_u32 s3, s3, {384*N*2}")
                if j == 1: a(f"v_add_u32 {v(t0)}, s3, {v(t0)}"); a("s_mov_b32 s3, 0")
            a("s_mov_b64 exec, -1")
        stamp(1)
        t2_wait(246)
        a.label(lt2)
    else: stamp(1)
    lab_cpass = a.newlabel("L_cpass")
    a.label(lab_cpass)
    a("s_barrier")
    stamp(2)
    if not FL and not SH: set_cur()
    reads(0, 0)
    a("s_waitcnt lgkmcnt(0)")
    if FL: blockB()
    elif SH: blockS()
    else:
        inter(1, 1, 0)
        a("s_waitcnt lgkmcnt(0)")
    if splitk: a("s_sub_u32 s48, s93, 1")
    else: a(f"s_mov_b32 s48, {NS-1}")
    if sp2 and 'sp2late' in EXP: spf1()
    if c3src:
        a("s_mov_b32 exec_hi, 0x00ffffff")
        a("buffer_load_dwordx4 v[4:7], v3, s[84:87], s92 offen offset:384")
        a("s_mov_b32 exec_hi, -1")
    loop = a.newlabel("L_cloop")
    pos_jpf = len(a.lines)
    a.label(loop)
    if not FL:
        a("s_barrier")
        if not SH: set_cur()
    inter(0, 0, 1)
    a("s_waitcnt lgkmcnt(0)")
    if not FL and not SH: inter(1, 1, 0)
    cutx = len(a.lines)
    if l2pf:
        a(f"buffer_load_dwordx4 {v(PFD,4)}, {v(PFV)}, s[84:87], s92 offen")
        a("s_add_u32 s92, s92, s93")
    if spf and NS > 8 * spf[0]:
        lsp = a.newlabel("L_spf"); lspb = a.newlabel("L_spfb")
        a("s_and_b32 s3, s48, 7")
        a(f"s_cmp_eq_u32 s3, {spf[1]}")
        a(f"s_cbranch_scc1 {lsp}")
        a.label(lspb)
    if sp4:
        lsp = a.newlabel("L_spf"); lspb = a.newlabel("L_spfb")
        a("s_and_b32 s3, s48, 3")
        a(f"s_cmp_eq_u32 s3, {PHS & 3}")
        a(f"s_cbranch_scc1 {lsp}")
        a.label(lspb)
    if sp2:
        lsp = a.newlabel("L_spf"); lspb = a.newlabel("L_spfb")
        a("s_cmp_eq_u32 s48, s98")
        a(f"s_cbranch_scc1 {lsp}")
        a.label(lspb)
    JPF = fz and int(os.environ.get('JPF%d' % fz['ph'], '0'))
    XW = eval(os.environ.get('XW', '(5,3,0)')) if epi3 else None
    if XW:
        lxw = a.newlabel("L_xw"); lxwb = a.newlabel("L_xwb")
        a("s_cmp_eq_u32 s48, s97")
        a(f"s_cbranch_scc1 {lxw}")
        a.label(lxwb)
    if JPF:
        ljp = a.newlabel("L_jpf"); ljpb = a.newlabel("L_jpfb"); ljq = a.newlabel("L_jpq")
        a(f"s_cmp_eq_u32 s48, {JPF}")
        a(f"s_cbranch_scc1 {ljp}")
        a.label(ljpb)
    if wpf and not (XW and len(XW) > 2):
        for q, (arg, nbytes, hi) in enumerate(wpf):
            n = (nbytes >> 20) if PFS == 4 else -(-(nbytes >> 10) // (64 << PFS))
            lsk = a.newlabel("L_wpfs")
            if hi < 0:
                a("s_bitcmp1_b32 s48, 0")
            else:
                a(f"s_sub_u32 s3, s48, {hi-n+1}")
                a(f"s_cmp_ge_u32 s3, {n}")
            a(f"s_cbranch_scc1 {lsk}")
            if PFS == 4:
                a(f"buffer_load_dwordx4 {v(PFD,4)}, {v(PFV)}, s[{84+4*q}:{87+4*q}], s{92+q} offen")
            else:
                a(f"buffer_load_dword {v(PFD)}, {v(PFV)}, s[{84+4*q}:{87+4*q}], s{92+q} offen")
            a(f"s_add_u32 s{92+q}, s{92+q}, {64 << PFS}")
            a.label(lsk)
    if splitk:
        cskip = a.newlabel("L_cskip"); cpoll = a.newlabel("L_cpoll")
        a("s_cmp_lg_u32 s95, 0")
        a(f"s_cbranch_scc1 {cskip}")
        a(f"v_readfirstlane_b32 s3, {v(PFL)}")
        a("s_nop 3")
        a("s_cmp_eq_u32 s3, 0")
        a(f"s_cbranch_scc1 {cpoll}")
        a("s_mov_b32 s95, 1")
        for t_ in range(MT * NTW):
            a(f"s_mov_b32 s3, {1024*t_}")
            a(f"buffer_load_dwordx4 {v(PRT+4*t_,4)}, {v(PPA)}, s[84:87], s3 offen")
        a(f"s_branch {cskip}")
        a.label(cpoll)
        if 'forcefb' not in EXP: a(f"buffer_load_dword {v(PFL)}, {v(PFA)}, s[88:91], 0 offen sc0 sc1")
        a.label(cskip)
    if FL:
        ex = a.lines[cutx:]; del a.lines[cutx:]
        blockB(lambda: a.lines.extend(ex))
    elif SH:
        ex = a.lines[cutx:]; del a.lines[cutx:]
        blockS(lambda: a.lines.extend(ex), ["s_sub_u32 s48, s48, 1", "s_cmp_lg_u32 s48, 0"])
    else: a("s_waitcnt lgkmcnt(0)")
    if not SH:
        a("s_sub_u32 s48, s48, 1")
        a("s_cmp_lg_u32 s48, 0")
    a(f"s_cbranch_scc1 {loop}")
    if XW:
        tl = a.lines[pos_jpf:]; del a.lines[pos_jpf:]
        a(f"v_lshrrev_b32 {v(t1)}, 3, v1")
        a(f"v_and_b32 {v(t0)}, 7, v1")
        a(f"v_lshlrev_b32 {v(t0)}, 7, {v(t0)}")
        a(f"v_lshl_add_u32 {v(t1)}, {v(t1)}, 11, {v(t0)}")
        a("s_lshr_b32 s3, s2, 3")
        a("s_lshl_b32 s3, s3, 2")
        a("s_add_u32 s3, s3, s30")
        a("s_lshr_b32 s46, s29, 3")
        a("s_lshl_b32 s46, s46, 7")
        a("s_add_u32 s3, s3, s46")
        a(f"s_mul_i32 s96, s3, {14*2048}")
        a("s_bfe_u32 s3, s29, 0x10002")
        a("s_lshl_b32 s3, s3, 10")
        a("s_add_u32 s96, s96, s3")
        a(f"s_mov_b32 s97, {XW[0]}")
        a(f"s_branch {loop}")
        a.label(lxw)
        a("s_mov_b32 exec_hi, 0x00f7f7f7")
        a("s_mov_b32 exec_lo, 0xf7f7f7f7")
        a(f"buffer_load_dword {v(PFD)}, {v(t1)}, s[84:87], s96 offen")
        a("s_mov_b64 exec, -1")
        a(f"s_add_u32 s96, s96, {7*2048}")
        a(f"s_cmp_eq_u32 s97, {XW[0]}")
        a(f"s_cselect_b32 s97, {XW[1]}, 0")
        a(f"s_branch {lxwb}")
        a.lines.extend(tl)
    if JPF:
        a.label(ljq)
        tl = a.lines[pos_jpf:]; del a.lines[pos_jpf:]
        a(f"s_branch {loop}")
        a.label(ljp)
        jit_pf(a, ljq, vT[0], nl=int(os.environ.get('JNL%d' % fz['ph'], '16')))
        a(f"s_branch {ljpb}")
        a.lines.extend(tl)
    stamp(3)
    if FL and not epi2: a("s_barrier")
    if c3src:
        srd(a, 76, 24, c_off, 2 * c_rows * 256)
        a("s_waitcnt vmcnt(7)")
        a("s_mov_b32 exec_hi, 0x00ffffff")
        a("buffer_store_dwordx4 v[4:7], v2, s[76:79], 0 offen")
        a("s_mov_b32 exec_hi, -1")
    if epi3:
        FROW = BN * 4 + 16
        f3.f1_epilogue(sys.modules[__name__], a, acc, FX, FW, RTAB, CTAB, EPI + 3072, stamp, stamp_out)
    elif epi2:
        FROW = BN * 4 + 16
        assert BM * FROW <= STAGE * NSTAGE and (FROW // 4) % 32 == 4
        a("s_barrier")
        ml = mfma_list(1)
        a(f"v_and_b32 {v(t2)}, 15, v1")
        a("s_lshl_b32 s3, s44, 6")
        a(f"v_add_u32 {v(t2)}, s3, {v(t2)}")
        a(f"v_mul_u32_u24 {v(t2)}, {FROW}, {v(t2)}")
        a(f"v_bfe_u32 {v(t3)}, v1, 4, 1")
        a(f"v_mul_u32_u24 {v(t3)}, {BN*2}, {v(t3)}")
        a(f"v_add_u32 {v(t2)}, {v(t2)}, {v(t3)}")
        a(f"v_lshrrev_b32 {v(t3)}, 5, v1")
        a(f"v_lshl_add_u32 {v(t2)}, {v(t3)}, 4, {v(t2)}")
        a(f"s_mul_i32 s3, s45, {NTW*32}")
        a(f"v_add_u32 {v(t2)}, s3, {v(t2)}")
        wl = [f"ds_write_b128 {v(t2)}, {v(acc(nt,mt),4)} offset:{mt*16*FROW + nt*32}" for nt in range(NTW) for mt in range(MT)]
        for i, x in enumerate(ml):
            a(x)
            if i >= 6: a(wl[i - 6])
        a("s_nop 7")
        a("s_nop 7")
        for x in wl[len(ml) - 6:]: a(x)
        a("s_waitcnt lgkmcnt(0)")
        stamp(4)
        a("s_barrier")
        a(f"s_branch {lab_store}")
    else:
        mfmas(1)
    if ln and not pre:
        a("s_barrier")
    if splitk:
        lab_hi = a.newlabel("L_hi"); lab_epi = a.newlabel("L_epi"); lab_fb = a.newlabel("L_fb")
        a("s_cmp_lg_u32 s92, 0")
        a(f"s_cbranch_scc1 {lab_hi}")
        a("s_nop 7")
        for t_ in range(MT * NTW):
            a(f"s_mov_b32 s3, {1024*t_}")
            a(f"buffer_store_dwordx4 {v(ACC+4*t_,4)}, {v(PPA)}, s[84:87], s3 offen sc0 sc1")
        a("s_waitcnt vmcnt(0)")
        a("s_barrier")
        a("s_cmp_lg_u32 s30, 0")
        a(f"s_cbranch_scc1 {end}")
        a(f"v_mov_b32 {v(t1)}, 1")
        a("s_mov_b64 exec, 1")
        a(f"buffer_store_dword {v(t1)}, {v(PFA)}, s[88:91], 0 offen sc0 sc1")
        a(f"s_branch {end}")
        a.label(lab_hi)
        a("s_lshl_b32 s3, s30, 2")
        a(f"s_add_u32 s3, s3, {DONE}")
        a(f"v_mov_b32 {v(t0)}, s3")
        a(f"v_mov_b32 {v(t1)}, s95")
        a(f"ds_write_b32 {v(t0)}, {v(t1)}")
        a("s_waitcnt lgkmcnt(0)")
        a("s_barrier")
        a("s_cmp_eq_u32 s94, 2")
        a(f"s_cbranch_scc1 {lab_epi}")
        a(f"v_mov_b32 {v(t1)}, {DONE}")
        a(f"ds_read_b128 {v(FX[0],4)}, {v(t1)}")
        a("s_waitcnt lgkmcnt(0)")
        a(f"v_and_b32 {v(FX[0])}, {v(FX[0])}, {v(FX[0]+1)}")
        a(f"v_and_b32 {v(FX[0]+2)}, {v(FX[0]+2)}, {v(FX[0]+3)}")
        a(f"v_and_b32 {v(FX[0])}, {v(FX[0])}, {v(FX[0]+2)}")
        a("s_nop 0")
        a(f"v_readfirstlane_b32 s3, {v(FX[0])}")
        a("s_nop 3")
        a("s_cmp_eq_u32 s3, 1")
        a(f"s_cbranch_scc0 {lab_fb}")
        a("s_waitcnt vmcnt(0)")
        for t_ in range(MT * NTW):
            for j in range(2):
                a(f"v_pk_add_f32 {v(ACC+4*t_+2*j,2)}, {v(ACC+4*t_+2*j,2)}, {v(PRT+4*t_+2*j,2)}")
        a(f"s_branch {lab_epi}")
        a.label(lab_fb)
        a("s_mov_b32 s94, 2")
        a("s_mov_b32 s95, 1")
        a(f"s_mov_b32 s93, {NSLO}")
        a("s_mov_b32 s42, 0")
        a("s_barrier")
        a(f"s_branch {lab_cpass}")
        a.label(lab_epi)
    cut0 = len(a.lines)
    if DRY: a.dry_entry()
    RT = FX[0]; CS = RT + 8; BR = CS + 4 * NTW; BF = BR + 2 * NTW; GE = BF + 4 * NTW
    assert GE + 10 <= ACC
    if alay == 'g32':
        a(f"v_bfe_u32 {v(t2)}, v1, 1, 3")
        a(f"v_and_b32 {v(t3)}, 1, v1")
        a(f"v_lshl_add_u32 {v(t2)}, {v(t3)}, 3, {v(t2)}")
    else:
        a(f"v_and_b32 {v(t2)}, 15, v1")
    a("s_lshl_b32 s3, s44, 6")
    a(f"v_add_u32 {v(t2)}, s3, {v(t2)}")
    a(f"v_lshrrev_b32 {v(t3)}, 4, v1")
    a(f"s_mul_i32 s3, s45, {NTW*4}")
    a(f"v_add_u32 {v(t3)}, s3, {v(t3)}")
    if ln:
        a(f"v_lshlrev_b32 {v(t0)}, 3, {v(t2)}")
        a(f"v_add_u32 {v(t0)}, {RTAB}, {v(t0)}")
        for mt in range(MT):
            a(f"ds_read_b64 {v(RT+2*mt,2)}, {v(t0)} offset:{128*mt}")
        a(f"v_lshlrev_b32 {v(t0)}, 4, {v(t3)}")
        a(f"v_add_u32 {v(t0)}, {CTAB}, {v(t0)}")
        for nt in range(NTW):
            a(f"ds_read_b128 {v(CS+4*nt,4)}, {v(t0)} offset:{64*nt}")
    if bias_arg and pre:
        a(f"v_lshlrev_b32 {v(t0)}, 3, {v(t3)}")
        a(f"v_add_u32 {v(t0)}, {EPI}, {v(t0)}")
        for nt in range(NTW):
            a(f"ds_read_b64 {v(BR+2*nt,2)}, {v(t0)} offset:{32*nt}")
    vc = vT[0]
    a(f"v_mul_u32_u24 {v(t2)}, {CROW}, {v(t2)}")
    a(f"v_lshl_add_u32 {v(vc)}, {v(t3)}, 3, {v(t2)}")
    if CBASE: a(f"v_add_u32 {v(vc)}, {CBASE}, {v(vc)}")
    if epi == 'gelu':
        c2 = 2 * math.log2(math.e)
        k1 = struct.unpack("<I", struct.pack("<f", 0.7978845608 * c2))[0]
        k3 = struct.unpack("<I", struct.pack("<f", 0.7978845608 * 0.044715 * c2))[0]
        a(f"s_mov_b32 s52, {k3}"); a(f"s_mov_b32 s53, {k3}")
        a(f"v_mov_b32 {v(GE+8)}, {k1}"); a(f"v_mov_b32 {v(GE+9)}, {k1}")
        a("s_mov_b32 s56, 1.0"); a("s_mov_b32 s57, 1.0")
    a("s_waitcnt vmcnt(0) lgkmcnt(0)" if (bias_arg and not pre) else "s_waitcnt lgkmcnt(0)")
    a("s_nop 7")
    if bias_arg:
        bsrc = BR if pre else PBI
        for nt in range(NTW):
            for j in range(2):
                a(f"v_lshlrev_b32 {v(BF+4*nt+2*j)}, 16, {v(bsrc+2*nt+j)}")
                a(f"v_and_b32 {v(BF+4*nt+2*j+1)}, 0xffff0000, {v(bsrc+2*nt+j)}")
    for nt in range(NTW):
        if DRY and nt in dry: a.dry_mark()
        for mp in range(0, MT, 2):
            c0 = acc(nt, mp)
            for q in range(2):
                mt = mp + q
                for j in range(2):
                    cc = v(c0 + 4 * q + 2 * j, 2)
                    tt = v(GE + 4 * q + 2 * j, 2)
                    if ln:
                        if bias_arg:
                            a(f"v_pk_fma_f32 {tt}, {v(CS+4*nt+2*j,2)}, {v(RT+2*mt,2)}, {v(BF+4*nt+2*j,2)} op_sel:[0,1,0] op_sel_hi:[1,1,1]")
                        else:
                            a(f"v_pk_mul_f32 {tt}, {v(CS+4*nt+2*j,2)}, {v(RT+2*mt,2)} op_sel:[0,1] op_sel_hi:[1,1]")
                    elif bias_arg:
                        a(f"v_pk_add_f32 {cc}, {cc}, {v(BF+4*nt+2*j,2)}")
            if ln:
                for q in range(2):
                    mt = mp + q
                    for j in range(2):
                        cc = v(c0 + 4 * q + 2 * j, 2)
                        tt = v(GE + 4 * q + 2 * j, 2)
                        a(f"v_pk_fma_f32 {cc}, {cc}, {v(RT+2*mt,2)}, {tt} op_sel:[0,0,0] op_sel_hi:[1,0,1]")
            if epi == 'gelu':
                for j in range(4):
                    a(f"v_pk_mul_f32 {v(GE+2*j,2)}, {v(c0+2*j,2)}, {v(c0+2*j,2)}")
                for j in range(4):
                    a(f"v_pk_fma_f32 {v(GE+2*j,2)}, {v(GE+2*j,2)}, s[52:53], {v(GE+8,2)}")
                for j in range(4):
                    a(f"v_pk_mul_f32 {v(GE+2*j,2)}, {v(GE+2*j,2)}, {v(c0+2*j,2)}")
                for r in range(8):
                    a(f"v_exp_f32 {v(GE+r)}, {v(GE+r)}")
                a("s_nop 0")
                for j in range(4):
                    a(f"v_pk_add_f32 {v(GE+2*j,2)}, {v(GE+2*j,2)}, s[56:57]")
                for r in range(8):
                    a(f"v_rcp_f32 {v(GE+r)}, {v(GE+r)}")
                a("s_nop 0")
                for j in range(4):
                    cc = v(c0 + 2 * j, 2)
                    a(f"v_pk_fma_f32 {cc}, {cc}, {v(GE+2*j,2)}, {cc} neg_lo:[1,0,0] neg_hi:[1,0,0]")
            for j in range(4):
                a(f"v_cvt_pk_bf16_f32 {v(c0+j)}, {v(c0+2*j)}, {v(c0+2*j+1)}")
            for q in range(2):
                a(f"ds_write_b64 {v(vc)}, {v(c0+2*q,2)} offset:{(mp+q)*16*CROW + nt*32}")
    if DRY: a(f"s_cbranch_execz {lab_store}")
    a("s_waitcnt lgkmcnt(0)")
    stamp(4)
    a("s_barrier")
    a(f"s_branch {lab_store}")
    if epi2: del a.lines[cut0:]

    if spf and NS > 8 * spf[0]:
        a.label(lsp)
        spf1()
        a(f"s_branch {lspb}")
    if sp4:
        a.label(lsp)
        a(f"s_sub_u32 s3, {PHS}, s48")
        a(f"s_cmp_ge_u32 s3, {4*NPH}")
        a(f"s_cbranch_scc1 {lspb}")
        spf1()
        a(f"s_branch {lspb}")
    if sp2:
        a.label(lsp)
        a("s_sub_u32 s98, s98, 8")
        a(f"s_cmp_le_u32 s48, {DD}")
        a(f"s_cbranch_scc1 {lspb}")
        spf1()
        a(f"s_branch {lspb}")
    for lsl, lbk in slow:
        a.label(lsl)
        if SLC: a(f"s_sleep {SLC}")
        a(f"ds_read_b32 {v(vFT)}, {v(vRA)}")
        a("s_waitcnt lgkmcnt(0)")
        a(f"v_cmp_ge_u32 vcc, {v(vCV)}, {v(vFT)}")
        a(f"s_cbranch_vccnz {lsl}")
        a(f"s_branch {lbk}")
    pos_l0 = len(a.lines)
    a.label(lab_loader)
    if 'noprio' not in EXP: a("s_setprio 2")
    if w2copy: a(f"s_load_dwordx2 s[94:95], s[0:1], {ARG['w2']}")
    NPL = (BN // 16 + 3) // 4
    LSA = 40
    LCW = 44
    LSC = 48; LCC = 52
    LONE = 56
    LST = 60
    LMS = 132
    LCS = 68
    LSD = 84
    LWD = 100
    assert vT[7] < 40
    NW2 = BN * 2 if BTILE else N * 2
    if FS:
        rs = TP if ATILE else lda
        a(f"v_lshrrev_b32 {v(t0)}, 3, v1")
        a(f"v_lshrrev_b32 {v(t1)}, 4, v1")
        a(f"v_and_b32 {v(t2)}, 7, v1")
        a(f"v_xor_b32 {v(t1)}, {v(t1)}, {v(t2)}")
        if alay == 'o':
            assert TP == 128 and PA == 4
            a(f"s_mul_i32 s3, s28, {BM*lda}")
            a("s_lshl_b32 s46, s30, 12")
            a("s_add_u32 s3, s3, s46")
            a(f"v_lshl_add_u32 {v(vA[0])}, v1, 4, s3")
            a(f"v_mov_b32 {v(t3)}, {v(vA[0])}")
        elif alay:
            assert TP == 128 and PA == 4
            rs = 64
            a(f"v_lshrrev_b32 {v(t3)}, 2, {v(t1)}")
            a(f"v_lshlrev_b32 {v(t3)}, 13, {v(t3)}")
            a(f"v_and_b32 {v(t1)}, 3, {v(t1)}")
            a(f"v_lshl_add_u32 {v(t3)}, {v(t1)}, 4, {v(t3)}")
            a(f"v_lshl_add_u32 {v(t3)}, {v(t0)}, 6, {v(t3)}")
            a(f"s_mul_i32 s3, s28, {BM*lda}")
            a("s_lshl_b32 s46, s30, 11")
            a("s_add_u32 s3, s3, s46")
            a(f"v_add_u32 {v(vA[0])}, s3, {v(t3)}")
            a(f"v_xor_b32 {v(t3)}, 0x2000, {v(vA[0])}")
        else:
            a(f"v_mul_u32_u24 {v(t3)}, {rs}, {v(t0)}")
            a(f"v_lshl_add_u32 {v(t3)}, {v(t1)}, 4, {v(t3)}")
            a(f"s_mul_i32 s3, s28, {BM*lda}")
            a(f"s_mul_i32 s46, s30, {PA*8*rs}")
            a("s_add_u32 s3, s3, s46")
            a(f"v_add_u32 {v(vA[0])}, s3, {v(t3)}")
            a(f"v_xor_b32 {v(t3)}, 64, {v(vA[0])}")
        a(f"v_add_u32 {v(vA[1])}, {8*rs}, {v(t3)}")
        for i in range(2, PA):
            a(f"v_add_u32 {v(vA[i])}, {16*rs}, {v(vA[i-2])}")
        if alay == 'o':
            a(f"v_lshrrev_b32 {v(t3)}, 5, v1")
            a(f"v_and_b32 {v(t0)}, 3, {v(t0)}")
            a(f"v_lshl_add_u32 {v(t0)}, {v(t3)}, 3, {v(t0)}")
        a(f"s_mul_i32 s31, s30, {PA*1024}")
        if fz and c3 is not None:
            a(f"v_mov_b32 v247, {CTRL}")
            a("ds_read_b32 v247, v247 offset:4")
        a("s_waitcnt lgkmcnt(0)")
        srd(a, 4, 58, a_off, M * lda)
        stamp(1)
        for i in range(PA):
            a(f"s_add_u32 m0, s31, {i*1024}")
            if i == 0: a(f"s_mul_i32 s32, s30, {PB*1024}")
            elif i == 1: a(f"s_add_u32 s32, s32, {ABYTES}")
            elif i == 2: a(f"s_mul_i32 s3, s29, {(K//2)*1024 if wt7 else BN*2*(K if BTILE else 1)}")
            elif i == 3: a(f"s_mul_i32 s46, s30, {8192 if wt7 else 16*NW2}")
            else: a("s_nop 0")
            if not fz: a(f"buffer_load_dwordx4 {v(vA[i])}, s[4:7], 0 offen lds")
        a("s_add_u32 s3, s3, s46")
        srd(a, 8, 26, w_off or 0, WBYTES)
        if c3 is not None:
            srd(a, 50, 24, c3, 2 * K * 256)
            a("s_lshr_b32 s47, s29, 3")
            a(f"s_mul_i32 s47, s47, {K*256}")
            a(f"s_mul_i32 s46, s30, {16*256}")
            a("s_add_u32 s47, s47, s46")
            a("s_and_b32 s46, s29, 7")
            if fz:
                a("v_readfirstlane_b32 s54, v247")
                a("s_nop 3")
                a("s_lshl_b32 s54, s54, 3")
                a("s_add_u32 s46, s46, s54")
                a("s_cmp_eq_u32 s46, 11")
            else:
                a("s_cmp_eq_u32 s46, 3")
            a("s_cselect_b32 s3, s47, s3")
            for i in range(3): a(f"s_cselect_b32 s{8+i}, s{50+i}, s{8+i}")
            assert NW2 == 2048
            a("s_cselect_b32 s55, 8, 11")
            a("s_lshl_b32 s54, 1, s55")
            a(f"s_lshl_b32 s46, {4 if alay == 'o' else 8}, s55")
            a("s_lshl_b32 s55, 64, s55")
        if RB == 448:
            a(f"s_mov_b32 s47, {((1 << 32) + 27) // 28}")
            for i in range(PB):
                a(f"v_add_u32 {v(t1)}, {i*64}, v1")
                a(f"v_mul_hi_u32 {v(t0)}, {v(t1)}, s47")
                a(f"v_mul_u32_u24 {v(t2)}, 28, {v(t0)}")
                a(f"v_sub_u32 {v(t1)}, {v(t1)}, {v(t2)}")
                a(f"v_bfe_u32 {v(t2)}, {v(t0)}, 3, 1")
                a(f"v_lshlrev_b32 {v(t2)}, 1, {v(t2)}")
                a(f"v_xor_b32 {v(t1)}, {v(t1)}, {v(t2)}")
                if wt7:
                    a(f"v_and_b32 {v(t2)}, 1, {v(t0)}")
                    a(f"v_mad_u32_u24 {v(t1)}, {v(t2)}, 28, {v(t1)}")
                    a(f"v_cmp_le_u32 vcc, 24, {v(t1)}")
                    a(f"v_lshrrev_b32 {v(t0)}, 1, {v(t0)}")
                    a(f"v_lshlrev_b32 {v(t0)}, 10, {v(t0)}")
                    a(f"v_add_u32 {v(t2)}, 8, {v(t1)}")
                    a(f"v_cndmask_b32 {v(t1)}, {v(t1)}, {v(t2)}, vcc")
                else:
                    a(f"v_mul_u32_u24 {v(t0)}, {NW2}, {v(t0)}")
                a(f"v_lshl_add_u32 {v(t0)}, {v(t1)}, 4, {v(t0)}")
                a(f"s_add_u32 m0, s32, {i*1024}")
                a(f"v_add_u32 {v(vB[i])}, s3, {v(t0)}")
                a(f"buffer_load_dwordx4 {v(vB[i])}, s[8:11], 0 offen lds")
        else:
            assert PB == 2
            a(f"v_bfe_u32 {v(t1)}, v1, 4, 1")
            a(f"v_lshlrev_b32 {v(t1)}, 1, {v(t1)}")
            a(f"v_xor_b32 {v(t1)}, {v(t1)}, {v(t2)}")
            a(f"v_mul_u32_u24 {v(t0)}, {'s54' if c3 is not None else NW2}, {v(t0)}")
            a(f"v_lshl_add_u32 {v(t0)}, {v(t1)}, 4, {v(t0)}")
            a("s_mov_b32 m0, s32")
            a(f"v_add_u32 {v(vB[0])}, s3, {v(t0)}")
            a(f"buffer_load_dwordx4 {v(vB[0])}, s[8:11], 0 offen lds")
            a(f"v_xor_b32 {v(t0)}, 64, {v(vB[0])}")
            a("s_add_u32 m0, s32, 1024")
            a(f"v_add_u32 {v(vB[1])}, {'s46' if c3 is not None else (4 if alay == 'o' else 8)*NW2}, {v(t0)}")
            a(f"buffer_load_dwordx4 {v(vB[1])}, s[8:11], 0 offen lds")
        a(f"s_mov_b32 s40, {ASTEP}")
        a(f"s_mov_b32 s41, {'s55' if c3 is not None else 32768 if wt7 else BK*NW2}")
        a(f"s_mov_b32 s43, {STAGE}")
        a("s_mov_b32 s42, 0")
    cut1 = len(a.lines)
    a(f"s_mul_i32 s3, s30, {PA*8}")
    a(f"v_lshrrev_b32 {v(t0)}, 3, v1")
    a(f"v_add_u32 {v(t0)}, s3, {v(t0)}")
    a(f"s_mul_i32 s3, s28, {BM}")
    for i in range(PA):
        a(f"v_add_u32 {v(t1)}, {8*i}, {v(t0)}")
        a(f"v_lshrrev_b32 {v(t2)}, 1, {v(t1)}")
        a(f"v_and_b32 {v(t2)}, 7, {v(t2)}")
        a(f"v_and_b32 {v(t3)}, 7, v1")
        a(f"v_xor_b32 {v(t2)}, {v(t2)}, {v(t3)}")
        if ATILE:
            a(f"v_lshlrev_b32 {v(t1)}, {TSH}, {v(t1)}")
            a(f"s_mul_i32 s46, s3, {lda}")
            a(f"v_add_u32 {v(t1)}, s46, {v(t1)}")
        else:
            a(f"v_add_u32 {v(t1)}, s3, {v(t1)}")
            a(f"v_mul_u32_u24 {v(t1)}, {lda}, {v(t1)}")
        a(f"v_lshl_add_u32 {v(vA[i])}, {v(t2)}, 4, {v(t1)}")
    a(f"s_mul_i32 s3, s29, {BN*2*(K if BTILE else 1)}")
    NW2 = BN * 2 if BTILE else N * 2
    if RB == 448:
        a(f"s_mov_b32 s47, {((1 << 32) + 27) // 28}")
        for i in range(PB):
            a(f"s_mul_i32 s46, s30, {PB*64}")
            a(f"s_add_u32 s46, s46, {i*64}")
            a(f"v_add_u32 {v(t1)}, s46, v1")
            a(f"v_mul_hi_u32 {v(t0)}, {v(t1)}, s47")
            a(f"v_mul_u32_u24 {v(t2)}, 28, {v(t0)}")
            a(f"v_sub_u32 {v(t1)}, {v(t1)}, {v(t2)}")
            a(f"v_bfe_u32 {v(t2)}, {v(t0)}, 3, 1")
            a(f"v_lshlrev_b32 {v(t2)}, 1, {v(t2)}")
            a(f"v_xor_b32 {v(t1)}, {v(t1)}, {v(t2)}")
            a(f"v_mul_u32_u24 {v(t0)}, {NW2}, {v(t0)}")
            a(f"v_lshl_add_u32 {v(t0)}, {v(t1)}, 4, {v(t0)}")
            a(f"v_add_u32 {v(vB[i])}, s3, {v(t0)}")
    else:
      CPR = RB // 16
      lg_cpr = int(math.log2(CPR))
      RPP = 1024 // RB
      PPB = RB // 16
      lg_ppb = int(math.log2(PPB))
      for i in range(PB):
        a(f"s_mul_i32 s46, s30, {PB}")
        a(f"s_add_u32 s46, s46, {i}")
        a(f"s_lshr_b32 s47, s46, {lg_ppb}")
        a(f"s_and_b32 s46, s46, {PPB-1}")
        a(f"s_mul_i32 s46, s46, {RPP}")
        a(f"s_mul_i32 s47, s47, {RB}")
        a("s_add_u32 s47, s47, s3")
        a(f"v_lshrrev_b32 {v(t0)}, {lg_cpr}, v1")
        a(f"v_add_u32 {v(t0)}, s46, {v(t0)}")
        a(f"v_and_b32 {v(t1)}, {CPR-1}, v1")
        if RB == 256:
            a(f"v_and_b32 {v(t2)}, 3, {v(t0)}")
            a(f"v_bfe_u32 {v(t3)}, {v(t0)}, 3, 1")
            a(f"v_lshl_add_u32 {v(t2)}, {v(t3)}, 2, {v(t2)}")
        elif RB == 128:
            a(f"v_bfe_u32 {v(t2)}, {v(t0)}, 1, 1")
            a(f"v_bfe_u32 {v(t3)}, {v(t0)}, 3, 1")
            a(f"v_lshl_add_u32 {v(t2)}, {v(t3)}, 1, {v(t2)}")
        elif RB == 64:
            a(f"v_bfe_u32 {v(t2)}, {v(t0)}, 3, 1")
        else:
            a(f"v_mov_b32 {v(t2)}, 0")
        a(f"v_lshlrev_b32 {v(t2)}, 1, {v(t2)}")
        a(f"v_xor_b32 {v(t1)}, {v(t1)}, {v(t2)}")
        a(f"v_mul_u32_u24 {v(t0)}, {NW2}, {v(t0)}")
        a(f"v_lshl_add_u32 {v(t0)}, {v(t1)}, 4, {v(t0)}")
        a(f"v_add_u32 {v(vB[i])}, s47, {v(t0)}")
    a(f"s_mul_i32 s31, s30, {PA*1024}")
    a(f"s_mul_i32 s32, s30, {PB*1024}")
    a(f"s_add_u32 s32, s32, {ABYTES}")
    a("s_mov_b32 s40, 0")
    a("s_mov_b32 s41, 0")
    a("s_mov_b32 s43, 0")
    a("s_mov_b32 s42, 0")
    if FS: del a.lines[cut1:]
    assert FS or (c3 is None and not wt7 and not alay)
    if not (FS and not pre): build_srds(FS)
    if zero_flags:
        lz = a.newlabel("L_nz")
        a("s_cmp_lg_u32 s2, 0")
        a(f"s_cbranch_scc1 {lz}")
        srd(a, 92, 24, WS_FLAG, 512)
        a(f"v_lshlrev_b32 {v(t0)}, 3, v1")
        a("v_mov_b32 v44, 0")
        a("v_mov_b32 v45, 0")
        a(f"buffer_store_dwordx2 v[44:45], {v(t0)}, s[92:95], 0 offen")
        a.label(lz)
    if splitk:
        a(f"s_mul_i32 s40, s92, {NSLO*ASTEP}")
        a(f"s_mul_i32 s41, s92, {NSLO*BK*NW2}")
        lab_lpass = a.newlabel("L_lpass")
        a.label(lab_lpass)

    def dma():
        if 'nodma' in EXP: return
        a("s_add_u32 s33, s43, s31")
        for i in range(PA):
            a(f"s_add_u32 m0, s33, {i*1024}")
            a("s_nop 0")
            a(f"buffer_load_dwordx4 {v(vA[i])}, s[4:7], s40 offen lds")
        a("s_add_u32 s33, s43, s32")
        for i in range(PB):
            a(f"s_add_u32 m0, s33, {i*1024}")
            a("s_nop 0")
            a(f"buffer_load_dwordx4 {v(vB[i])}, s[8:11], s41 offen lds")
        a(f"s_add_u32 s40, s40, {ASTEP}")
        a(f"s_add_u32 s41, s41, {'s55' if c3 is not None else 32768 if wt7 else BK*NW2}")
        if 'kwrap' in EXP:
            KW = int(os.environ.get('KW', '8'))
            a(f"s_cmp_ge_u32 s40, {KW*ASTEP}")
            a("s_cselect_b32 s40, 0, s40")
            a("s_cselect_b32 s41, 0, s41")
        a(f"s_add_u32 s43, s43, {STAGE}")
        a(f"s_cmp_ge_u32 s43, {STAGE*NSTAGE}")
        a("s_cselect_b32 s43, 0, s43")

    if not FS: stamp(1)
    def stats_loads():
        a(f"v_and_b32 {v(LSA)}, 15, v1")
        a(f"v_lshlrev_b32 {v(LSA)}, 4, {v(LSA)}")
        a("s_lshl_b32 s3, s30, 8")
        a(f"v_add_u32 {v(LSA)}, s3, {v(LSA)}")
        a(f"v_lshrrev_b32 {v(t1)}, 4, v1")
        a(f"v_lshl_add_u32 {v(t3)}, {v(t1)}, 10, {v(LSA)}")
        a("s_lshl_b32 s3, s28, 14")
        for i in range(4):
            a(f"buffer_load_dwordx4 {v(LSD+4*i,4)}, {v(t3)}, s[84:87], s3 offen")
            a("s_add_u32 s3, s3, 4096")
    if pre and NL:
        if not fz: stats_loads()
    elif pre:
        a(f"v_lshrrev_b32 {v(LSA)}, 1, v1")
        a("s_lshl_b32 s3, s30, 5")
        a(f"v_add_u32 {v(LSA)}, s3, {v(LSA)}")
        a(f"s_mul_i32 s3, s28, {BM}")
        a(f"v_add_u32 {v(t0)}, s3, {v(LSA)}")
        a(f"v_lshlrev_b32 {v(t0)}, 7, {v(t0)}")
        a(f"v_and_b32 {v(t1)}, 1, v1")
        a(f"v_lshl_add_u32 {v(t0)}, {v(t1)}, 6, {v(t0)}")
        for i in range(4):
            a(f"buffer_load_dwordx4 {v(LSD+4*i,4)}, {v(t0)}, s[84:87], 0 offen offset:{16*i}")
    if st_bias:
        a(f"v_lshlrev_b32 {v(t0)}, 4, v1")
        a(f"s_mul_i32 s3, s29, {BN*2}")
        a(f"s_mov_b32 m0, {EPI}")
        a("s_nop 0")
        a(f"buffer_load_dwordx4 {v(t0)}, s[20:23], s3 offen lds")
        def cs_loads():
            a(f"s_mul_i32 s3, s29, {BN*4}")
            a(f"s_mul_i32 s46, s30, {4*N*4}")
            a("s_add_u32 s3, s3, s46")
            if fz: a("s_mov_b32 exec_hi, 0x00ffffff")
            for g_ in range(4):
                a(f"buffer_load_dwordx4 {v(LWD+4*g_,4)}, {v(t0)}, s[88:91], s3 offen")
                a(f"s_add_u32 s3, s3, {N*4}")
            if fz: a("s_mov_b32 exec_hi, -1")
        if not fz: cs_loads()
    if fz:
        for st_ in range(1, NSTAGE - 1):
            for i in range(PB):
                a(f"s_add_u32 m0, s32, {st_*STAGE + i*1024}")
                a("s_nop 0")
                a(f"buffer_load_dwordx4 {v(vB[i])}, s[8:11], s41 offen lds")
            a(f"s_add_u32 s41, s41, {'s55' if c3 is not None else BK*NW2}")
        stamp(4, True)
        t2_wait(246)
        for st_ in range(NSTAGE - 1):
            for i in range(PA):
                a(f"s_add_u32 m0, s31, {st_*STAGE + i*1024}")
                a(f"s_mov_b32 s40, {st_*ASTEP}")
                a(f"buffer_load_dwordx4 {v(vA[i])}, s[4:7], s40 offen lds")
        a(f"s_mov_b32 s40, {(NSTAGE-1)*ASTEP}")
        a(f"s_mov_b32 s43, {(NSTAGE-1)*STAGE}")
        if pre:
            stats_loads()
            cs_loads()
    for _ in range(0 if fz else NSTAGE - 1 - (1 if FS else 0)):
        dma()
    if FS and not pre: build_srds(True)
    if sp3:
        assert RA * BM == 512 and RBN * BN == 512 and ATILE and TP == 128 and c3 is not None
        D0 = NSTAGE - 1 + sp3
        a("s_lshr_b32 s3, s2, 3")
        a("s_lshl_b32 s3, s3, 2")
        a("s_add_u32 s3, s3, s30")
        a(f"s_and_b32 s46, s28, {-RA & 0xffffffff}")
        a("s_lshr_b32 s47, s3, 4")
        a("s_add_u32 s46, s46, s47")
        a(f"s_mul_i32 s46, s46, {BM*lda}")
        a("s_and_b32 s47, s3, 15")
        a("s_lshl_b32 s47, s47, 10")
        a("s_add_u32 s46, s46, s47")
        a(f"s_add_u32 s96, s46, {D0*ASTEP}")
        a("s_add_u32 s98, s96, 384")
        a(f"s_add_u32 s46, s3, {D0*64-64}")
        a(f"s_lshr_b32 s47, s29, {int(math.log2(RBN))}")
        a(f"s_mul_i32 s99, s47, {K*256}")
        a("s_lshl_b32 s97, s46, 8")
        a("s_add_u32 s99, s99, s97")
        a("s_lshl_b32 s47, s47, 10")
        a("s_lshl_b32 s46, s46, 11")
        a("s_add_u32 s46, s46, s47")
        srd(a, 76, 26, 0, K * N * 2)
        a("s_cmp_lt_u32 s3, 64")
        a("s_cselect_b32 s96, s96, s46")
        a("s_cselect_b32 s98, s98, s99")
        a("s_cselect_b32 s97, 14, 17")
        a("s_cselect_b32 s99, 14, 14")
        for i in range(4):
            a(f"s_cselect_b32 s{76+i}, s{4+i}, s{76+i}")
            a(f"s_cselect_b32 s{92+i}, s{4+i}, s{50+i}")
        a("s_lshl_b32 s97, 1, s97")
        a("s_lshl_b32 s99, 1, s99")
        assert ASTEP == 1 << 14
    stamp(2)
    if ln and not pre:
        wfrag_addr_common()
        for i in range(NPL):
            a(f"s_mul_i32 s46, s30, {NPL}")
            a(f"s_add_u32 s46, s46, {i}")
            a(f"s_min_u32 s46, s46, {BN//16-1}")
            wfrag_addr(LCW + i)
        for i in range(4):
            a(f"v_mov_b32 {v(LONE+i)}, 0x3f803f80")
        for i in range(16):
            a(f"v_mov_b32 {v(LMS+i)}, 0")
        a(f"v_and_b32 {v(t0)}, 15, v1")
        a("s_lshl_b32 s3, s30, 5")
        a(f"v_add_u32 {v(t0)}, s3, {v(t0)}")
        a(f"v_lshlrev_b32 {v(t0)}, 7, {v(t0)}")
        a(f"v_lshrrev_b32 {v(t1)}, 4, v1")
        a(f"v_bfe_u32 {v(t2)}, v1, 1, 3")
        a(f"v_xor_b32 {v(t3)}, {v(t1)}, {v(t2)}")
        a(f"v_lshl_add_u32 {v(LSA)}, {v(t3)}, 4, {v(t0)}")
        a(f"v_xor_b32 {v(t3)}, 4, {v(t3)}")
        a(f"v_lshl_add_u32 {v(LSA+1)}, {v(t3)}, 4, {v(t0)}")
        for i in range(4 * NPL):
            a(f"v_mov_b32 {v(LCS+i)}, 0")

    def stats_reads():
        for i in range(2):
            a(f"v_add_u32 {v(LSC+i)}, s42, {v(LSA+i)}")
        for i in range(NPL):
            a(f"v_add_u32 {v(LCC+i)}, s42, {v(LCW+i)}")
        a(f"s_add_u32 s42, s42, {STAGE}")
        a(f"s_cmp_ge_u32 s42, {STAGE*NSTAGE}")
        a("s_cselect_b32 s42, 0, s42")
        for q in range(2):
            for kk in range(2):
                a(f"ds_read_b128 {v(LSD+8*q+4*kk,4)}, {v(LSC+kk)} offset:{2048*q}")
        for i in range(NPL):
            for kk in range(2):
                for rd in range(2):
                    a(f"ds_read_b64_tr_b16 {v(LWD+8*i+4*kk+2*rd,2)}, {v(LCC+i)} offset:{kk*32*RB+rd*4*RB}")

    def stats_math():
        a("s_waitcnt lgkmcnt(0)")
        for i in range(NPL):
            for kk in range(2):
                a(f"v_mfma_f32_16x16x32_bf16 {v(LCS+4*i,4)}, {v(LWD+8*i+4*kk,4)}, {v(LONE,4)}, {v(LCS+4*i,4)}")
        for kk in range(2):
            for q in range(2):
                d = v(LSD + 8 * q + 4 * kk, 4)
                a(f"v_mfma_f32_16x16x32_bf16 {v(LMS+8*q,4)}, {d}, {v(LONE,4)}, {v(LMS+8*q,4)}")
                a(f"v_mfma_f32_16x16x32_bf16 {v(LMS+8*q+4,4)}, {d}, {d}, {v(LMS+8*q+4,4)}")

    nloop = NS - NSTAGE + 1
    if fz:
        for j in range(NSTAGE - 2):
            a(f"s_waitcnt vmcnt({(NSTAGE-2-j)*PA + j*P + (8 if pre else 0)})")
            a("s_barrier")
            dma()
            nloop -= 1
    if splitk: a(f"s_sub_u32 s48, s93, {NSTAGE-1}")
    else: a(f"s_mov_b32 s48, {nloop}")
    lloop = a.newlabel("L_lloop")
    LF, LRA, LCA, LCV, LFT = 44, 52, 53, 54, 55
    if FL:
        lfirst = a.newlabel("L_lfirst")
        a("s_lshl_b32 s3, s30, 8")
        a(f"s_add_u32 s3, s3, {FLG}")
        a(f"v_lshl_add_u32 {v(LRA)}, v1, 2, s3")
        a(f"v_and_b32 {v(LCA)}, 3, v1")
        a(f"v_lshlrev_b32 {v(LCA)}, 8, {v(LCA)}")
        a(f"v_lshl_add_u32 {v(LCA)}, v1, 2, {v(LCA)}")
        a(f"v_add_u32 {v(LCA)}, {FLG+1024}, {v(LCA)}")
        a(f"v_mov_b32 {v(LCV)}, 1")
        a(f"ds_write_b32 {v(LRA)}, {v(LCV)}")
        a(f"s_waitcnt vmcnt({(NSTAGE-2)*P}) lgkmcnt(0)")
        a("s_barrier")
        a(f"s_branch {lfirst}")
        a.label(lloop)
        a(f"v_add_u32 {v(LFT)}, 1, {v(LCV)}")
        a(f"s_waitcnt vmcnt({(NSTAGE-2)*P})")
        a(f"ds_write_b32 {v(LRA)}, {v(LFT)}")
        lpl = a.newlabel("L_lpoll"); lp1 = a.newlabel("L_lpoll1")
        a(f"s_branch {lp1}")
        a.label(lpl)
        if SLL: a(f"s_sleep {SLL}")
        a.label(lp1)
        a(f"ds_read_b32 {v(LF)}, {v(LCA)}")
        a("s_waitcnt lgkmcnt(0)")
        a(f"v_cmp_gt_u32 vcc, {v(LCV)}, {v(LF)}")
        a(f"s_cbranch_vccnz {lpl}")
        a(f"v_mov_b32 {v(LCV)}, {v(LFT)}")
        a.label(lfirst)
    else:
        a.label(lloop)
        a(f"s_waitcnt vmcnt({(NSTAGE-2)*P})")
        a("s_barrier")
    if ln and not pre: stats_reads()
    dma()
    if sp3:
        lsk = a.newlabel("L_sp3")
        a(f"s_cmp_le_u32 s48, {sp3}")
        a(f"s_cbranch_scc1 {lsk}")
        for i in range(8):
            if i == 3: a("s_buffer_load_dwordx2 s[100:101], s[92:95], s98 offset:60")
            else: a(f"s_buffer_load_dwordx2 s[100:101], s[76:79], s96 offset:{128*i+60}")
        a("s_add_u32 s96, s96, s97")
        a("s_add_u32 s98, s98, s99")
        a.label(lsk)
    if ln and not pre: stats_math()
    a("s_sub_u32 s48, s48, 1")
    a("s_cmp_lg_u32 s48, 0")
    a(f"s_cbranch_scc1 {lloop}")
    if endpf:
        e_arg, e_bytes, e_lo, e_n = endpf
        a(f"s_load_dwordx2 s[94:95], s[0:1], {ARG[e_arg]}")
        a("s_lshl_b32 s3, s2, 2")
        a("s_add_u32 s3, s3, s30")
        a(f"s_mul_i32 s3, s3, {e_n*128}")
        if e_lo: a(f"s_add_u32 s3, s3, {e_lo}")
        a(f"v_lshlrev_b32 {v(W2A)}, 7, v1")
        a("s_waitcnt lgkmcnt(0)")
        srd(a, 76, 94, 0, e_bytes)
        a(f"s_mov_b64 exec, {hex((1 << e_n) - 1)}" if e_n <= 32 else f"s_mov_b32 exec_hi, {hex((1 << (e_n - 32)) - 1)}")
        a(f"buffer_load_dword {v(W2S)}, {v(W2A)}, s[76:79], s3 offen")
        a("s_mov_b64 exec, -1")
        NEX += 1
    if pre and NL:
        for i in range(1, 4):
            for j in range(2):
                a(f"v_pk_add_f32 {v(LSD+2*j,2)}, {v(LSD+2*j,2)}, {v(LSD+4*i+2*j,2)}")
        for x in (16, 32):
            a(f"v_xor_b32 {v(t0)}, {x}, v1")
            a(f"v_lshlrev_b32 {v(t0)}, 2, {v(t0)}")
            for j in range(4):
                a(f"ds_bpermute_b32 {v(LSD+4+j)}, {v(t0)}, {v(LSD+j)}")
            a("s_waitcnt lgkmcnt(0)")
            for j in range(2):
                a(f"v_pk_add_f32 {v(LSD+2*j,2)}, {v(LSD+2*j,2)}, {v(LSD+4+2*j,2)}")
        for q in range(2):
            sm, sq, r1, r2 = LSD + 2 * q, LSD + 2 * q + 1, LSD + 4 + 2 * q, LSD + 5 + 2 * q
            a(f"v_mul_f32 {v(sm)}, {hex_f32(1.0/K)}, {v(sm)}")
            a(f"v_mul_f32 {v(sq)}, {hex_f32(1.0/K)}, {v(sq)}")
            a(f"v_fma_f32 {v(sq)}, -{v(sm)}, {v(sm)}, {v(sq)}")
            a(f"v_max_f32 {v(sq)}, 0, {v(sq)}")
            a(f"v_add_f32 {v(r1)}, {hex_f32(1e-5)}, {v(sq)}")
            a(f"v_rsq_f32 {v(r1)}, {v(r1)}")
            a("s_nop 0")
            assert ln == 'double'
            a(f"v_mul_f32 {v(r2)}, {v(r1)}, {v(r1)}")
            a(f"v_mul_f32 {v(r2)}, {v(r2)}, {v(sq)}")
            a(f"v_add_f32 {v(r2)}, {hex_f32(1e-5)}, {v(r2)}")
            a(f"v_rsq_f32 {v(r2)}, {v(r2)}")
            a("s_nop 0")
            a(f"v_mul_f32 {v(r1)}, {v(r1)}, {v(r2)}")
            a(f"v_mul_f32 {v(r2)}, {v(sm)}, {v(r1)}")
            a(f"v_sub_f32 {v(r2)}, 0, {v(r2)}")
        a(f"v_add_u32 {v(LSC)}, {RTAB}, {v(LSA)}")
        a(f"ds_write_b128 {v(LSC)}, {v(LSD+4,4)}")
    if pre and not NL:
        for i in range(1, 8):
            a(f"v_add_f32 {v(LSD)}, {v(LSD)}, {v(LSD+2*i)}")
            a(f"v_add_f32 {v(LSD+1)}, {v(LSD+1)}, {v(LSD+2*i+1)}")
        a("s_nop 1")
        for k_ in range(2):
            a(f"v_add_f32_dpp {v(LST+k_)}, {v(LSD+k_)}, {v(LSD+k_)} quad_perm:[1,0,3,2] row_mask:0xf bank_mask:0xf")
        sm, sq, r1, r2 = LST, LST + 1, LSD, LSD + 1
        a(f"v_mul_f32 {v(sm)}, {hex_f32(1.0/K)}, {v(sm)}")
        a(f"v_mul_f32 {v(sq)}, {hex_f32(1.0/K)}, {v(sq)}")
        a(f"v_fma_f32 {v(sq)}, -{v(sm)}, {v(sm)}, {v(sq)}")
        a(f"v_max_f32 {v(sq)}, 0, {v(sq)}")
        a(f"v_add_f32 {v(r1)}, {hex_f32(1e-5)}, {v(sq)}")
        a(f"v_rsq_f32 {v(r1)}, {v(r1)}")
        a("s_nop 0")
        if ln == 'double':
            a(f"v_mul_f32 {v(r2)}, {v(r1)}, {v(r1)}")
            a(f"v_mul_f32 {v(r2)}, {v(r2)}, {v(sq)}")
            a(f"v_add_f32 {v(r2)}, {hex_f32(1e-5)}, {v(r2)}")
            a(f"v_rsq_f32 {v(r2)}, {v(r2)}")
            a("s_nop 0")
            a(f"v_mul_f32 {v(r1)}, {v(r1)}, {v(r2)}")
        a(f"v_mul_f32 {v(r2)}, {v(sm)}, {v(r1)}")
        a(f"v_sub_f32 {v(r2)}, 0, {v(r2)}")
        a(f"v_lshlrev_b32 {v(LSC)}, 3, {v(LSA)}")
        a(f"v_add_u32 {v(LSC)}, {RTAB}, {v(LSC)}")
        a(f"ds_write_b64 {v(LSC)}, {v(LSD,2)}")
    if pre:
        for g_ in range(1, 4):
            for j in range(2):
                a(f"v_pk_add_f32 {v(LWD+2*j,2)}, {v(LWD+2*j,2)}, {v(LWD+4*g_+2*j,2)}")
        a(f"v_lshlrev_b32 {v(t0)}, 4, v1")
        a(f"v_add_u32 {v(t0)}, {EPI+3072}, {v(t0)}")
        a("s_lshl_b32 s3, s30, 10")
        a(f"v_add_u32 {v(t1)}, s3, {v(t0)}")
        a(f"ds_write_b128 {v(t1)}, {v(LWD,4)}")
        a("s_waitcnt lgkmcnt(0)")
    if st_res:
        npc = BM * BN * 2 // 4096
        rpp = 1024 // (BN * 2)
        lpr = BN * 2 // 16
        a(f"v_lshrrev_b32 {v(t0)}, {int(math.log2(lpr))}, v1")
        RP = TP if rtile else N * 2
        a(f"s_mul_i32 s3, s30, {npc*rpp}")
        if not rtile:
            a(f"s_mul_i32 s46, s28, {BM}")
            a("s_add_u32 s3, s3, s46")
        a(f"v_add_u32 {v(t0)}, s3, {v(t0)}")
        a(f"v_mul_u32_u24 {v(t0)}, {RP}, {v(t0)}")
        a(f"v_and_b32 {v(t1)}, {lpr-1}, v1")
        a(f"v_lshl_add_u32 {v(t0)}, {v(t1)}, 4, {v(t0)}")
        if rtile:
            assert BN == 64
            a(f"s_mul_i32 s3, s29, {BM*TP}")
            a(f"s_mul_i32 s46, s28, {BM*N*2*TX}")
            a("s_add_u32 s3, s3, s46")
        else:
            a(f"s_mul_i32 s3, s29, {BN*2}")
        a(f"v_add_u32 {v(t0)}, s3, {v(t0)}")
        a(f"s_mul_i32 s33, s30, {npc*1024}")
        for i in range(npc):
            a(f"s_add_u32 m0, s33, {EPI + i*1024}")
            a(f"s_mov_b32 s3, {i*rpp*RP}")
            a(f"buffer_load_dwordx4 {v(t0)}, s[16:19], s3 offen lds")
    for j in range(NS - NSTAGE + 1, NS):
        if epi3 and j == NS - 1: break
        if FL: a(f"v_mov_b32 {v(LCV)}, {j+1 if j < NS-1 else NS+1}")
        a(f"s_waitcnt vmcnt({(NS-1-j)*P + NEX})")
        if FL:
            a(f"ds_write_b32 {v(LRA)}, {v(LCV)}")
            a("s_nop 1")
            if j == NS - 1:
                stamp(3)
                a("s_barrier")
        else: a("s_barrier")
        if pre and j == (NS - 1 if FL else NS - NSTAGE + 1):
            assert NSTAGE >= 3
            lcs = a.newlabel("L_lcs")
            a("s_cmp_lg_u32 s30, 0")
            a(f"s_cbranch_scc1 {lcs}")
            for g_ in range(4):
                a(f"ds_read_b128 {v(LWD+4*g_,4)}, {v(t0)} offset:{1024*g_}")
            if epi3:
                a(f"v_lshlrev_b32 {v(t1)}, 3, v1")
                a(f"v_add_u32 {v(t1)}, {EPI}, {v(t1)}")
                a(f"ds_read_b64 {v(LSD,2)}, {v(t1)}")
            a("s_waitcnt lgkmcnt(0)")
            if epi3:
                for j_ in range(2):
                    a(f"v_lshlrev_b32 {v(LSD+4+2*j_)}, 16, {v(LSD+j_)}")
                    a(f"v_and_b32 {v(LSD+5+2*j_)}, 0xffff0000, {v(LSD+j_)}")
                a(f"ds_write_b128 {v(t0)}, {v(LSD+4,4)}")
            for g_ in range(1, 4):
                for j_ in range(2):
                    a(f"v_pk_add_f32 {v(LWD+2*j_,2)}, {v(LWD+2*j_,2)}, {v(LWD+4*g_+2*j_,2)}")
            a(f"v_subrev_u32 {v(t0)}, {EPI+3072-CTAB}, {v(t0)}")
            a(f"ds_write_b128 {v(t0)}, {v(LWD,4)}")
            a("s_waitcnt lgkmcnt(0)")
            a.label(lcs)
        if ln and not pre:
            stats_reads()
            stats_math()
    if not FL: stamp(3)
    if epi2 and not FL and not epi3: a("s_barrier")
    if epi3:
        assert NEX == 0 and NSTAGE == 3 and NS == 16 and STAGE == 45056
        if os.environ.get('LSO'): stamp_out()
        a("s_branch P_f2_lw")
        seg = a.lines[pos_l0:]
        del a.lines[pos_l0:]
        a.lines[pos_ins:pos_ins] = seg
        return None
    if w2copy:
        a("s_lshl_b32 s92, s2, 2")
        a("s_add_u32 s92, s92, s30")
        a(f"v_lshrrev_b32 {v(t0)}, 3, v1")
        a(f"v_and_b32 {v(t1)}, 7, v1")
        a(f"v_lshlrev_b32 {v(t1)}, 4, {v(t1)}")
        a(f"v_lshl_add_u32 {v(W2A)}, {v(t0)}, 11, {v(t1)}")
        a("s_lshr_b32 s3, s92, 6")
        a("s_lshl_b32 s3, s3, 7")
        a("s_and_b32 s46, s92, 63")
        a(f"s_mul_i32 s46, s46, {56*D*2}")
        a("s_add_u32 s3, s3, s46")
        srd(a, 88, 94, 0, F * D * 2)
        for j in range(7):
            a(f"buffer_load_dwordx4 {v(W2S+4*j,4)}, {v(W2A)}, s[88:91], s3 offen")
            a(f"s_add_u32 s3, s3, {8*D*2}")
        def w2store(extra):
            srd(a, 88, 24, WS_W2T, F * D * 2)
            a("s_mul_i32 s3, s92, 7168")
            a(f"v_lshlrev_b32 {v(W2A)}, 4, v1")
            for j in range(7):
                if j == 4: a("s_add_u32 s3, s3, 4096")
                a(f"s_waitcnt vmcnt({6+extra})")
                a(f"buffer_store_dwordx4 {v(W2S+4*j,4)}, {v(W2A)}, s[88:91], s3 offen offset:{1024*(j&3)}")
        if not epi2: w2store(0)
    if ln and not pre:
        a("s_nop 7")
        a(f"v_and_b32 {v(t0)}, 3, v1")
        for r in range(1, 4):
            a(f"v_cmp_eq_u32 s[{48+2*r}:{49+2*r}], {r}, {v(t0)}")
        X0 = LSD
        for i in range(2):
            sm, sq = LST + 2 * i, LST + 2 * i + 1
            r1, r2 = X0 + 2 * i, X0 + 2 * i + 1
            for dst, src in ((sm, LMS + 8 * i), (sq, LMS + 8 * i + 4)):
                a(f"v_cndmask_b32 {v(dst)}, {v(src)}, {v(src+1)}, s[50:51]")
                a(f"v_cndmask_b32 {v(dst)}, {v(dst)}, {v(src+2)}, s[52:53]")
                a(f"v_cndmask_b32 {v(dst)}, {v(dst)}, {v(src+3)}, s[54:55]")
            a(f"v_mul_f32 {v(sm)}, {hex_f32(1.0/K)}, {v(sm)}")
            a(f"v_mul_f32 {v(sq)}, {hex_f32(1.0/K)}, {v(sq)}")
            a(f"v_fma_f32 {v(sq)}, -{v(sm)}, {v(sm)}, {v(sq)}")
            a(f"v_max_f32 {v(sq)}, 0, {v(sq)}")
            a(f"v_add_f32 {v(r1)}, {hex_f32(1e-5)}, {v(sq)}")
            a(f"v_rsq_f32 {v(r1)}, {v(r1)}")
            a("s_nop 0")
            assert ln == 'single'
            a(f"v_mul_f32 {v(r2)}, {v(sm)}, {v(r1)}")
            a(f"v_sub_f32 {v(r2)}, 0, {v(r2)}")
        a(f"v_lshrrev_b32 {v(LSC)}, 7, {v(LSA)}")
        a(f"v_lshlrev_b32 {v(LSC)}, 3, {v(LSC)}")
        a(f"v_add_u32 {v(LSC)}, {RTAB}, {v(LSC)}")
        a(f"v_lshrrev_b32 {v(t0)}, 4, v1")
        a(f"v_lshlrev_b32 {v(t0)}, 4, {v(t0)}")
        for i in range(NPL):
            a(f"s_mul_i32 s46, s30, {NPL}")
            a(f"s_add_u32 s46, s46, {i}")
            a(f"s_min_u32 s46, s46, {BN//16-1}")
            a("s_lshl_b32 s46, s46, 6")
            a(f"s_add_u32 s46, s46, {CTAB}")
            a(f"v_add_u32 {v(LCC+i)}, s46, {v(t0)}")
    if ln and not pre:
        a("s_mov_b32 exec_lo, 0x00f0000f")
        a("s_mov_b32 exec_hi, 0xf0000f00")
        for i in range(2):
            a(f"ds_write_b64 {v(LSC)}, {v(LSD+2*i,2)} offset:{128*i}")
        a("s_mov_b64 exec, -1")
        for i in range(NPL):
            a(f"ds_write_b128 {v(LCC+i)}, {v(LCS+4*i,4)}")
        a("s_waitcnt lgkmcnt(0)")
        a("s_barrier")
    if st_res: a("s_waitcnt vmcnt(0)")
    if splitk:
        lhi = a.newlabel("L_lhi"); lepi = a.newlabel("L_lepi")
        a("s_cmp_lg_u32 s92, 0")
        a(f"s_cbranch_scc1 {lhi}")
        a("s_barrier")
        a(f"s_branch {end}")
        a.label(lhi)
        a("s_barrier")
        a("s_cmp_eq_u32 s94, 2")
        a(f"s_cbranch_scc1 {lepi}")
        a(f"v_mov_b32 {v(t1)}, {DONE}")
        a(f"ds_read_b128 {v(44,4)}, {v(t1)}")
        a("s_waitcnt lgkmcnt(0)")
        a("v_and_b32 v44, v44, v45")
        a("v_and_b32 v46, v46, v47")
        a("v_and_b32 v44, v44, v46")
        a("s_nop 0")
        a("v_readfirstlane_b32 s3, v44")
        a("s_nop 3")
        a("s_cmp_eq_u32 s3, 1")
        a(f"s_cbranch_scc1 {lepi}")
        a("s_mov_b32 s94, 2")
        a(f"s_mov_b32 s93, {NSLO}")
        a("s_mov_b32 s40, 0"); a("s_mov_b32 s41, 0"); a("s_mov_b32 s43, 0")
        a("s_barrier")
        a(f"s_branch {lab_lpass}")
        a.label(lepi)
    stamp(4)
    a("s_barrier")

    if FS:
        a(f"s_branch {lab_store}")
        seg = a.lines[pos_l0:]
        del a.lines[pos_l0:]
        a.lines[pos_ins:pos_ins] = seg
    a.label(lab_store)
    if epi2:
        CPRW = BN // 8
        assert CPRW == 28 and otile
        vL, vR, vO = 2, 3, 4
        CSr, BFr, Dr, RCr, Gr, Or, K1 = 8, 16, [24, 32], [40, 42], 44, [52, 56], 60
        c2 = 2 * math.log2(math.e)
        k1 = struct.unpack("<I", struct.pack("<f", -0.7978845608 * c2))[0]
        k3 = struct.unpack("<I", struct.pack("<f", -0.7978845608 * 0.044715 * c2))[0]
        a("s_setprio 0")
        if NL:
            a("v_bfe_u32 v5, v1, 2, 1")
            a("v_lshl_add_u32 v5, v5, 3, s49")
            a("v_lshrrev_b32 v6, 3, v1")
            a("v_and_b32 v7, 3, v1")
            a("v_lshl_add_u32 v6, v6, 2, v7")
        else:
            a(f"v_cmp_le_u32 s[46:47], {CPRW}, v1")
            a(f"v_mov_b32 v5, 0")
            a(f"v_cndmask_b32 v5, v5, 1, s[46:47]")
            a(f"v_mul_u32_u24 v6, {CPRW}, v5")
            a(f"v_sub_u32 v6, v1, v6")
            a("s_lshl_b32 s3, s49, 1")
            a("v_add_u32 v5, s3, v5")
        a("s_mov_b32 exec_hi, 0x00ffffff")
        a(f"v_lshlrev_b32 v7, 5, v6")
        a(f"v_add_u32 v7, {CTAB}, v7")
        a(f"ds_read_b128 {v(CSr,4)}, v7")
        a(f"ds_read_b128 {v(CSr+4,4)}, v7 offset:16")
        a(f"v_lshlrev_b32 v7, 4, v6")
        a(f"v_add_u32 v62, {EPI}, v7")
        a(f"ds_read_b128 {v(Gr,4)}, v62")
        a(f"v_mul_u32_u24 {v(vL)}, {FROW}, v5")
        a(f"v_add_u32 {v(vL)}, {v(vL)}, v7")
        a(f"v_lshlrev_b32 {v(vR)}, 3, v5")
        a(f"v_add_u32 {v(vR)}, {RTAB}, {v(vR)}")

        def rd(b):
            a(f"ds_read_b128 {v(Dr[b],4)}, {v(vL)}")
            a(f"ds_read_b128 {v(Dr[b]+4,4)}, {v(vL)} offset:{BN*2}")
            a(f"ds_read_b64 {v(RCr[b],2)}, {v(vR)}")
            a(f"v_add_u32 {v(vL)}, {16*FROW}, {v(vL)}")
            a(f"v_add_u32 {v(vR)}, 128, {v(vR)}")
        rd(0)
        a(f"s_mul_i32 s3, s29, {CPRW}")
        a("v_add_u32 v6, s3, v6")
        if NL:
            a("v_lshrrev_b32 v7, 2, v6")
            a("v_lshlrev_b32 v7, 13, v7")
            a("s_lshl_b32 s3, s49, 7")
            a("v_add_u32 v7, s3, v7")
            a("v_and_b32 v6, 7, v1")
        else:
            a("v_lshrrev_b32 v7, 3, v6")
            a(f"v_lshlrev_b32 v7, {TSH+7}, v7")
            a(f"v_lshl_add_u32 v7, v5, {TSH}, v7")
            a("v_and_b32 v6, 7, v6")
        a(f"v_lshl_add_u32 {v(vO)}, v6, 4, v7")
        a(f"s_mul_i32 s50, s28, {BM*ldo}")
        a(f"s_mov_b32 s52, {k3}"); a(f"s_mov_b32 s53, {k3}")
        a(f"v_mov_b32 {v(K1)}, {k1}"); a(f"v_mov_b32 {v(K1+1)}, {k1}")
        a("s_mov_b32 s56, 1.0"); a("s_mov_b32 s57, 1.0")
        a("s_waitcnt lgkmcnt(3)")
        for j in range(4):
            a(f"v_lshlrev_b32 {v(BFr+2*j)}, 16, {v(Gr+j)}")
            a(f"v_and_b32 {v(BFr+2*j+1)}, 0xffff0000, {v(Gr+j)}")
        stamp(5)
        a(f"s_mov_b32 s48, {BM//32}")
        lp = a.newlabel("L_ep")
        a.label(lp)
        for b in range(2):
            rd(1 - b)
            a("s_waitcnt lgkmcnt(3)")
            d = Dr[b]; rc = v(RCr[b], 2)
            for j in range(4):
                a(f"v_pk_fma_f32 {v(Gr+2*j,2)}, {v(CSr+2*j,2)}, {rc}, {v(BFr+2*j,2)} op_sel:[0,1,0] op_sel_hi:[1,1,1]")
            for j in range(4):
                a(f"v_pk_fma_f32 {v(d+2*j,2)}, {v(d+2*j,2)}, {rc}, {v(Gr+2*j,2)} op_sel:[0,0,0] op_sel_hi:[1,0,1]")
            for j in range(4):
                a(f"v_pk_mul_f32 {v(Gr+2*j,2)}, {v(d+2*j,2)}, {v(d+2*j,2)}")
            for j in range(4):
                a(f"v_pk_fma_f32 {v(Gr+2*j,2)}, {v(Gr+2*j,2)}, s[52:53], {v(K1,2)}")
            for j in range(4):
                a(f"v_pk_mul_f32 {v(Gr+2*j,2)}, {v(Gr+2*j,2)}, {v(d+2*j,2)}")
            for r in range(8):
                a(f"v_exp_f32 {v(Gr+r)}, {v(Gr+r)}")
            a("s_nop 0")
            for j in range(4):
                a(f"v_pk_add_f32 {v(Gr+2*j,2)}, {v(Gr+2*j,2)}, s[56:57]")
            for r in range(8):
                a(f"v_rcp_f32 {v(Gr+r)}, {v(Gr+r)}")
            a("s_nop 0")
            for j in range(4):
                a(f"v_pk_mul_f32 {v(d+2*j,2)}, {v(d+2*j,2)}, {v(Gr+2*j,2)}")
            for j in range(4):
                a(f"v_cvt_pk_bf16_f32 {v(Or[b]+j)}, {v(d+2*j)}, {v(d+2*j+1)}")
            a(f"buffer_store_dwordx4 {v(Or[b],4)}, {v(vO)}, s[12:15], s50 offen {STMOD}")
            a(f"s_add_u32 s50, s50, {1024 if NL else 16*TP}")
        a("s_sub_u32 s48, s48, 1")
        a("s_cmp_lg_u32 s48, 0")
        a(f"s_cbranch_scc1 {lp}")
        a("s_mov_b64 exec, -1")
        a("s_waitcnt lgkmcnt(0)")
        if w2copy:
            lw = a.newlabel("L_nw2")
            a("s_cmp_lt_u32 s49, 4")
            a(f"s_cbranch_scc1 {lw}")
            w2store(BM // 16)
            a.label(lw)
        stamp(6)
        if 'stamp' in EXP and not fz: a("s_waitcnt vmcnt(0)")
        stamp(7)
        stamp_out()
        phase_end()
        a.label(end)
        a("s_endpgm")
        return dict(name=name, grid=ntiles, block=512, lds=lds, desc=kernel_desc(name, max(nvgpr, 168)))
    CPRW = BN // 8
    NIT = BM * CPRW // 512
    assert NIT * 512 == BM * CPRW
    magic = ((1 << 32) + CPRW - 1) // CPRW
    a(f"s_mov_b32 s46, {magic}")
    a(f"s_mul_i32 s3, s49, {NIT*64}")
    a(f"v_add_u32 {v(t0)}, s3, v1")
    a(f"s_mul_i32 s3, s28, {BM*ldo if otile else BM}")
    a(f"s_mul_i32 s47, s29, {CPRW if otile else BN*2}")
    if otile and stats_out:
        a(f"s_mul_i32 s50, s28, {BM*128}")
        a(f"s_lshl_b32 s51, s29, {10 if NL else 3}")
        a("s_add_u32 s50, s50, s51")
    R0 = (vT[7] + 4) // 4 * 4
    RR = R0 + 4 * NIT
    OFF = RR + 4 * NIT
    SOF = OFF + NIT
    GT = (SOF + NIT + 3) // 4 * 4
    assert GT + 10 <= 256
    for it in range(NIT):
        a(f"v_add_u32 {v(t1)}, {it*64}, {v(t0)}")
        a(f"v_mul_hi_u32 {v(t2)}, {v(t1)}, s46")
        a(f"v_mul_u32_u24 {v(t3)}, {CPRW}, {v(t2)}")
        a(f"v_sub_u32 {v(t3)}, {v(t1)}, {v(t3)}")
        a(f"v_mul_u32_u24 {v(t1)}, {CROW}, {v(t2)}")
        a(f"v_lshl_add_u32 {v(t1)}, {v(t3)}, 4, {v(t1)}")
        if CBASE: a(f"v_add_u32 {v(t1)}, {CBASE}, {v(t1)}")
        a(f"ds_read_b128 {v(R0+4*it,4)}, {v(t1)}")
        if not otile: a(f"v_add_u32 {v(t2)}, s3, {v(t2)}")
        if stats_out:
            if otile:
                a(f"v_lshl_add_u32 {v(SOF+it)}, {v(t2)}, {3 if NL else 7}, s50")
            else:
                a(f"v_lshlrev_b32 {v(SOF+it)}, 7, {v(t2)}")
                a(f"v_lshl_add_u32 {v(SOF+it)}, s29, 3, {v(SOF+it)}")
        if otile:
            a(f"v_add_u32 {v(t3)}, s47, {v(t3)}")
            a(f"v_lshrrev_b32 {v(t1)}, 3, {v(t3)}")
            a(f"v_lshlrev_b32 {v(t1)}, {TSH+7}, {v(t1)}")
            a(f"v_lshl_add_u32 {v(t1)}, {v(t2)}, {TSH}, {v(t1)}")
            a(f"v_and_b32 {v(t3)}, 7, {v(t3)}")
            a(f"v_lshl_add_u32 {v(t1)}, {v(t3)}, 4, {v(t1)}")
            a(f"v_add_u32 {v(OFF+it)}, s3, {v(t1)}")
        else:
            a(f"v_mul_u32_u24 {v(t2)}, {ldo}, {v(t2)}")
            a(f"v_lshlrev_b32 {v(t3)}, 4, {v(t3)}")
            a(f"v_add_u32 {v(t3)}, s47, {v(t3)}")
            a(f"v_add_u32 {v(OFF+it)}, {v(t3)}, {v(t2)}")
        if st_res:
            a(f"v_lshlrev_b32 {v(t1)}, 4, {v(t0)}")
            a(f"v_add_u32 {v(t1)}, {EPI + it*1024}, {v(t1)}")
            a(f"ds_read_b128 {v(RR+4*it,4)}, {v(t1)}")
        elif res_arg:
            a(f"buffer_load_dwordx4 {v(RR+4*it,4)}, {v(OFF+it)}, s[16:19], 0 offen")
    a("s_waitcnt vmcnt(0) lgkmcnt(0)" if (res_arg and not st_res) else "s_waitcnt lgkmcnt(0)")
    if DRY: a.dry_exit()
    stamp(5)
    for it in range(NIT):
        c0 = R0 + 4 * it
        if res_arg:
            for j in range(4):
                d = c0 + j
                r = RR + 4 * it + j
                a(f"v_lshlrev_b32 {v(GT)}, 16, {v(d)}")
                a(f"v_lshlrev_b32 {v(GT+1)}, 16, {v(r)}")
                a(f"v_and_b32 {v(GT+2)}, 0xffff0000, {v(d)}")
                a(f"v_and_b32 {v(GT+3)}, 0xffff0000, {v(r)}")
                a(f"v_add_f32 {v(GT)}, {v(GT)}, {v(GT+1)}")
                a(f"v_add_f32 {v(GT+2)}, {v(GT+2)}, {v(GT+3)}")
                a(f"v_cvt_pk_bf16_f32 {v(d)}, {v(GT)}, {v(GT+2)}")
        a(f"buffer_store_dwordx4 {v(c0,4)}, {v(OFF+it)}, s[12:15], 0 offen {STMOD if (ln or STALL or (fz and fz['next'])) else ''}")
        if stats_out:
            assert CPRW == 8
            a(f"v_mov_b32 {v(GT+8)}, 0x3f803f80")
            a(f"v_mov_b32 {v(GT)}, 0")
            a(f"v_mov_b32 {v(GT+1)}, 0")
            for j in range(4):
                a(f"v_dot2_f32_bf16 {v(GT)}, {v(c0+j)}, {v(GT+8)}, {v(GT)}")
                a(f"v_dot2_f32_bf16 {v(GT+1)}, {v(c0+j)}, {v(c0+j)}, {v(GT+1)}")
            a("s_nop 3")
            for q_, mode in enumerate(("quad_perm:[1,0,3,2]", "quad_perm:[2,3,0,1]", "row_half_mirror")):
                src = GT + 2 * (q_ & 1); dst = GT + 2 * ((q_ + 1) & 1)
                for k_ in range(2):
                    a(f"v_add_f32_dpp {v(dst+k_)}, {v(src+k_)}, {v(src+k_)} {mode} row_mask:0xf bank_mask:0xf")
                a("s_nop 1")
            a("s_mov_b32 exec_lo, 0x01010101")
            a("s_mov_b32 exec_hi, 0x01010101")
            a(f"buffer_store_dwordx2 {v(GT+2,2)}, {v(SOF+it)}, s[84:87], 0 offen {'sc0 sc1' if fz else ''}")
            a("s_mov_b64 exec, -1")
    stamp(6)
    if 'stamp' in EXP and not (fz and fz['next']): a("s_waitcnt vmcnt(0)")
    stamp(7)
    stamp_out()
    phase_end()
    a.label(end)
    a("s_endpgm")
    if DRY: a.dry_dispatch()
    return dict(name=name, grid=ntiles, block=512, lds=lds, desc=kernel_desc(name, max(nvgpr, GT + 10, 168)))


def gen_attn(a, name, pf=None, colsum=False):
    import struct
    NQB = S // 32
    ntask = H * NQB
    nwg = ntask // 4
    QKV_ROW = 3 * D * 2
    KLDS = 384 * 64
    lds = 2 * KLDS
    kernel_header(a, name)
    end = a.newlabel("L_end")
    npf = 0
    a(f"s_cmp_ge_u32 s2, {nwg + npf}")
    a(f"s_cbranch_scc1 {end}")
    a(f"s_load_dwordx2 s[24:25], s[0:1], {ARG['ws']}")
    a("v_and_b32 v1, 63, v0")
    a("v_lshrrev_b32 v2, 6, v0")
    a("s_nop 0")
    a("v_readfirstlane_b32 s30, v2")
    a("s_nop 3")
    a("s_lshl_b32 s3, s2, 2")
    a("s_add_u32 s92, s3, s30")
    a("s_and_b32 s28, s2, 31")
    a("s_lshr_b32 s29, s2, 5")
    a("s_lshl_b32 s39, s29, 7")
    a("s_sub_u32 s39, s39, 256")
    a("s_lshl_b32 s3, s30, 5")
    a("s_add_u32 s32, s39, s3")
    a("s_add_u32 s31, s32, 256")
    a("s_lshl_b32 s33, s28, 6")
    a(f"s_add_u32 s35, s33, {2*D*2}")
    a(f"s_add_u32 s36, s33, {D*2}")
    a("v_and_b32 v2, 31, v1")
    a("v_lshrrev_b32 v3, 5, v1")
    a("v_add_u32 v4, s31, v2")
    a(f"v_mul_u32_u24 v4, {QKV_ROW}, v4")
    a("v_lshl_add_u32 v4, v3, 4, v4")
    a("v_add_u32 v4, s33, v4")
    a("s_waitcnt lgkmcnt(0)")
    srd(a, 4, 24, WS_QKV, S * 3 * D * 2)
    srd(a, 8, 24, WS_O, S * D * 2)
    a("v_lshrrev_b32 v5, 2, v1")
    a("v_and_b32 v6, 3, v1")
    a("v_bfe_u32 v7, v1, 4, 2")
    a("v_xor_b32 v7, v7, v6")
    a("s_mul_i32 s3, s30, 96")
    a("s_add_u32 s3, s3, s39")
    a("s_mul_i32 s34, s30, 6144")
    for p in range(6):
        a(f"v_add_u32 v16, {16*p}, v5")
        a("v_add_u32 v16, s3, v16")
        a("v_max_i32 v16, 0, v16")
        a(f"v_mul_u32_u24 v16, {QKV_ROW}, v16")
        a("v_lshl_add_u32 v17, v7, 4, v16")
        a("v_add_u32 v17, s36, v17")
        a(f"s_add_u32 m0, s34, {p*1024}")
        a("v_lshl_add_u32 v16, v6, 4, v16")
        a(f"buffer_load_dwordx4 v17, s[4:7], 0 offen lds")
        a("v_add_u32 v16, s35, v16")
        a(f"s_add_u32 m0, s34, {KLDS + p*1024}")
        a("s_nop 0")
        a(f"buffer_load_dwordx4 v16, s[4:7], 0 offen lds")
    a("buffer_load_dwordx4 v[8:11], v4, s[4:7], 0 offen")
    a("buffer_load_dwordx4 v[12:15], v4, s[4:7], 0 offen offset:32")
    KF = 16
    if colsum:
        a(f"s_load_dwordx2 s[94:95], s[0:1], {ARG['w2']}")
        a(f"s_load_dwordx2 s[40:41], s[0:1], {ARG['wo']}")
        a(f"s_load_dwordx2 s[42:43], s[0:1], {ARG['w1']}")
        a("v_lshlrev_b32 v7, 4, v1")
        a(f"s_mul_i32 s93, s92, {F*D*2//2048}")
        a("s_lshl_b32 s3, s92, 10")
        a("v_add_u32 v16, s93, v7")
        a("v_add_u32 v17, s3, v7")
        a(f"s_mul_hi_u32 s44, s92, {((1 << 32) + 111) // 112}")
        a("s_mul_i32 s3, s44, 112")
        a("s_sub_u32 s45, s92, s3")
        a("s_lshl_b32 s3, s44, 6")
        a("v_lshrrev_b32 v18, 2, v1")
        a("v_add_u32 v18, s3, v18")
        a(f"v_mul_u32_u24 v18, {F*2}, v18")
        a("v_and_b32 v19, 3, v1")
        a("v_lshl_add_u32 v18, v19, 4, v18")
        a("s_lshl_b32 s3, s45, 6")
        a("v_add_u32 v18, s3, v18")
        a("s_waitcnt lgkmcnt(0)")
        npl = 4
        if 'nowpf' in EXP:
            srd(a, 96, 94, 0, F * D * 2)
            for j in range(4):
                a(f"buffer_load_dwordx4 v[240:243], v16, s[96:99], 0 offen offset:{1024*j}")
            srd(a, 96, 40, 0, D * D * 2)
            a("buffer_load_dwordx4 v[240:243], v17, s[96:99], 0 offen")
            npl = 9
        srd(a, 96, 42, 0, D * F * 2)
        for j in range(4):
            a(f"s_mov_b32 s3, {16*j*F*2}")
            a(f"buffer_load_dwordx4 {v(240+4*j,4)}, v18, s[96:99], s3 offen")
    else:
        npl = tail_prefetch(a, 92, 1, pf, 7, 240) if pf else 0
    a("v_bfe_u32 v5, v1, 2, 2")
    a("v_xor_b32 v5, v5, v3")
    a("v_lshlrev_b32 v6, 6, v2")
    a("s_lshl_b32 s34, s30, 11")
    a("v_add_u32 v6, s34, v6")
    a("v_lshl_add_u32 v88, v5, 4, v6")
    a("v_xor_b32 v5, 2, v5")
    a("v_lshl_add_u32 v89, v5, 4, v6")
    a(f"s_add_u32 s34, s34, {KLDS}")
    a(f"s_waitcnt vmcnt({npl})")
    a("s_barrier")
    for t_ in range(9):
        a(f"ds_read_b128 {v(KF+8*t_,4)}, v88 offset:{2048*t_}")
        a(f"ds_read_b128 {v(KF+8*t_+4,4)}, v89 offset:{2048*t_}")
    SC = 96
    a("v_mov_b32 v7, 0xf149f2ca")
    for t in range(9):
        a(f"s_waitcnt lgkmcnt({min(15, 2*(8-t))})")
        if t < 8:
            lab_inv = a.newlabel("L_inv"); lab_done = a.newlabel("L_tdone")
            a(f"s_add_i32 s3, s32, {32*t}")
            a("s_cmp_lt_i32 s3, 0")
            a(f"s_cbranch_scc1 {lab_inv}")
        a(f"v_mfma_f32_32x32x16_bf16 {v(SC+16*t,16)}, {v(KF+8*t,4)}, v[8:11], 0")
        a(f"v_mfma_f32_32x32x16_bf16 {v(SC+16*t,16)}, {v(KF+8*t+4,4)}, v[12:15], {v(SC+16*t,16)}")
        if t < 8:
            a(f"s_branch {lab_done}")
            a.label(lab_inv)
            for r in range(16):
                a(f"v_mov_b32 v{SC+16*t+r}, v7")
            a.label(lab_done)
    a("v_lshlrev_b32 v5, 2, v3")
    a("v_sub_u32 v5, v2, v5")
    a("s_nop 7")
    a("s_nop 7")
    for r in range(16):
        c = (r & 3) + 8 * (r >> 2)
        a(f"v_cmp_gt_i32 vcc, {c}, v5")
        a(f"v_cmp_le_i32 s[36:37], {c}, v5")
        a("s_nop 0")
        a(f"v_cndmask_b32 v{SC+r}, v7, v{SC+r}, vcc")
        a(f"v_cndmask_b32 v{SC+128+r}, v7, v{SC+128+r}, s[36:37]")
    a(f"v_max3_f32 v4, v{SC}, v{SC+1}, v{SC+2}")
    a(f"v_max3_f32 v6, v{SC+3}, v{SC+4}, v{SC+5}")
    for i in range(6, 144, 4):
        a(f"v_max3_f32 v4, v4, v{SC+i}, v{SC+i+1}")
        if i + 3 < 144:
            a(f"v_max3_f32 v6, v6, v{SC+i+2}, v{SC+i+3}")
    a("v_max_f32 v4, v4, v6")
    a("v_xor_b32 v88, 32, v1")
    a("v_lshlrev_b32 v88, 2, v88")
    a("ds_bpermute_b32 v89, v88, v4")
    a("s_waitcnt lgkmcnt(0)")
    a("v_max_f32 v4, v4, v89")
    sc = (DH ** -0.5) * math.log2(math.e)
    sc_bits = struct.unpack("<I", struct.pack("<f", sc))[0]
    a(f"s_mov_b32 s38, {sc_bits}")
    a("v_mul_f32 v4, s38, v4")
    sums = [5, 6, 90, 91]
    for sreg in sums:
        a(f"v_mov_b32 v{sreg}, 0")
    for g in range(0, 144, 4):
        for j in range(4):
            a(f"v_fma_f32 v{SC+g+j}, v{SC+g+j}, s38, -v4")
        for j in range(4):
            a(f"v_exp_f32 v{SC+g+j}, v{SC+g+j}")
        if g >= 4:
            for j in range(4):
                a(f"v_add_f32 v{sums[j]}, v{sums[j]}, v{SC+g-4+j}")
            tt, jj = divmod(g - 4, 16)
            a(f"v_cvt_pk_bf16_f32 v{KF+8*tt+jj//2}, v{SC+g-4}, v{SC+g-3}")
            a(f"v_cvt_pk_bf16_f32 v{KF+8*tt+jj//2+1}, v{SC+g-2}, v{SC+g-1}")
    a("s_nop 0")
    g = 144
    for j in range(4):
        a(f"v_add_f32 v{sums[j]}, v{sums[j]}, v{SC+g-4+j}")
    tt, jj = divmod(g - 4, 16)
    a(f"v_cvt_pk_bf16_f32 v{KF+8*tt+jj//2}, v{SC+g-4}, v{SC+g-3}")
    a(f"v_cvt_pk_bf16_f32 v{KF+8*tt+jj//2+1}, v{SC+g-2}, v{SC+g-1}")
    a("v_add_f32 v5, v5, v6")
    a("v_add_f32 v90, v90, v91")
    a("v_add_f32 v5, v5, v90")
    a("ds_bpermute_b32 v89, v88, v5")
    a("v_bfe_u32 v6, v1, 2, 2")
    a("v_lshl_add_u32 v6, v3, 2, v6")
    a("v_lshlrev_b32 v6, 6, v6")
    a("v_bfe_u32 v7, v1, 4, 1")
    a("v_lshl_add_u32 v6, v7, 5, v6")
    a("v_and_b32 v7, 3, v1")
    a("v_lshl_add_u32 v6, v7, 3, v6")
    a("v_add_u32 v6, s34, v6")
    OA = SC
    VF = SC + 16
    a(f"s_waitcnt lgkmcnt(0)")
    a("v_add_f32 v5, v5, v89")
    a("v_rcp_f32 v5, v5")
    for t in range(9):
        for sidx in range(2):
            f = VF + 4 * (2 * t + sidx)
            base = (32 * t + 16 * sidx) * 64
            a(f"ds_read_b64_tr_b16 {v(f,2)}, v6 offset:{base}")
            a(f"ds_read_b64_tr_b16 {v(f+2,2)}, v6 offset:{base+8*64}")
    first = True
    for t in range(9):
        for sidx in range(2):
            f = VF + 4 * (2 * t + sidx)
            idx = 2 * t + sidx
            rem = 36 - 2 * (idx + 1)
            a(f"s_waitcnt lgkmcnt({min(rem,15)})")
            a(f"v_mfma_f32_32x32x16_bf16 {v(OA,16)}, {v(f,4)}, {v(KF+8*t+4*sidx,4)}, {'0' if first else v(OA,16)}")
            first = False
    if colsum:
        lab_nc = a.newlabel("L_nocs")
        a("s_cmp_ge_u32 s44, 16")
        a(f"s_cbranch_scc1 {lab_nc}")
        CA = 184; CT = 192
        a("s_waitcnt vmcnt(0)")
        for j in range(4):
            a(f"v_lshlrev_b32 v{CA+2*j}, 16, v{240+j}")
            a(f"v_and_b32 v{CA+2*j+1}, 0xffff0000, v{240+j}")
        for i in range(1, 4):
            for j in range(4):
                a(f"v_lshlrev_b32 v{CT+2*j}, 16, v{240+4*i+j}")
                a(f"v_and_b32 v{CT+2*j+1}, 0xffff0000, v{240+4*i+j}")
            for j in range(4):
                a(f"v_pk_add_f32 {v(CA+2*j,2)}, {v(CA+2*j,2)}, {v(CT+2*j,2)}")
        a("s_nop 1")
        for mode in ("row_ror:4", "row_ror:8"):
            for j in range(8):
                a(f"v_add_f32_dpp v{CT+j}, v{CA+j}, v{CA+j} {mode} row_mask:0xf bank_mask:0xf")
            a("s_nop 1")
            for j in range(8):
                a(f"v_mov_b32 v{CA+j}, v{CT+j}")
            a("s_nop 1")
        for x in (16, 32):
            a(f"v_xor_b32 v200, {x}, v1")
            a("v_lshlrev_b32 v200, 2, v200")
            for j in range(8):
                a(f"ds_bpermute_b32 v{CT+j}, v200, v{CA+j}")
            a("s_waitcnt lgkmcnt(0)")
            for j in range(8):
                a(f"v_add_f32 v{CA+j}, v{CA+j}, v{CT+j}")
        srd(a, 96, 24, WS_CS, 16 * F * 4)
        a(f"s_mul_i32 s3, s44, {F*4}")
        a("s_lshl_b32 s45, s45, 7")
        a("s_add_u32 s3, s3, s45")
        a("v_lshlrev_b32 v200, 5, v1")
        a("s_mov_b64 exec, 15")
        a(f"buffer_store_dwordx4 {v(CA,4)}, v200, s[96:99], s3 offen")
        a(f"buffer_store_dwordx4 {v(CA+4,4)}, v200, s[96:99], s3 offen offset:16")
        a("s_mov_b64 exec, -1")
        a.label(lab_nc)
    a("v_add_u32 v7, s31, v2")
    a(f"v_lshlrev_b32 v7, 11, v7")
    a("v_lshl_add_u32 v7, v3, 3, v7")
    a("v_add_u32 v7, s33, v7")
    a("s_nop 7")
    a("s_nop 7")
    for g in range(4):
        for r in range(4):
            a(f"v_mul_f32 v{OA+4*g+r}, v{OA+4*g+r}, v5")
        a(f"v_cvt_pk_bf16_f32 v{OA+4*g}, v{OA+4*g}, v{OA+4*g+1}")
        a(f"v_cvt_pk_bf16_f32 v{OA+4*g+1}, v{OA+4*g+2}, v{OA+4*g+3}")
        a(f"buffer_store_dwordx2 {v(OA+4*g,2)}, v7, s[8:11], 0 offen offset:{16*g}")
    a.label(end)
    a("s_endpgm")
    return dict(name=name, grid=nwg + npf, block=256, lds=lds, desc=kernel_desc(name, 256 if colsum else 244))


def add_hops(lines, wave='s30', nch=4):
    import re
    GAP = int(os.environ.get('HOPGAP', '240'))
    site = lines.index("@HOP")
    out = []; marks = []; acc = GAP; unsafe = False
    hot = set()
    while True:
        fl = False; n0 = len(hot); busy = []
        for l in lines:
            t = l.strip()
            if t.endswith(':') and t[:-1] in hot: fl = True
            busy.append(fl)
            if t.startswith(('s_mem', 's_load')) and not re.search(r's\[(6[4-9]|7[0-5]):', t): fl = True
            if t.startswith('s_waitcnt') and 'lgkmcnt(0)' in t: fl = False
            if fl and t.startswith(('s_branch', 's_cbranch')): hot.add(t.split()[1])
            if t.startswith(('s_branch', 's_endpgm')): fl = False
        if len(hot) == n0: break
    for k, l in enumerate(lines):
        if k <= site: continue
        t = l.strip()
        ins = l.startswith("    ") and not t.startswith(';')
        if ins and acc >= GAP and not unsafe and not busy[k]:
            marks.append(len(out)); out.append(None); acc = 4
        out.append(l)
        if t.startswith('.p2align'): acc += 1 << int(t.split()[1])
        if not ins: continue
        op = t.split()[0]
        small = op.startswith('s_') and not op.startswith(('s_load', 's_mem', 's_buffer')) and not re.search(r'(0x[0-9a-f]+|\b\d{2,}\b|L_|-)', t.split(None, 1)[1] if ' ' in t else '')
        acc += 4 if small else 8
        m = re.match(r's_\w+ exec(_lo|_hi)?, (.*)', t)
        if m:
            if t == 's_mov_b64 exec, -1': unsafe = False
            elif m.group(2).startswith(('s[', 'vcc')) or (m.group(2) == '0' and not m.group(1)): unsafe = True
    n = len(marks)
    first = [n * c // nch for c in range(nch)]
    for i, pos in enumerate(marks):
        nxt = "L_hdone" if (i + 1 in first or i + 1 == n) else f"L_hop_{i+1}"
        out[pos] = f"L_hop_{i}:\n    s_cbranch_execz {nxt}"
    d = ["    s_mov_b32 s80, 1", "    s_mov_b64 exec, 0", "    s_cbranch_execz L_hgo", "    s_branch L_hdone", "L_hgo:"]
    for c in range(nch):
        if c < nch - 1: d += [f"    s_cmp_eq_u32 {wave}, {c}", f"    s_cbranch_scc1 L_hop_{first[c]}"]
        else: d += [f"    s_branch L_hop_{first[c]}"]
    d += ["L_hdone:", "    s_cmp_eq_u32 s80, 1", "    s_cbranch_scc0 L_hend", "    s_mov_b32 s80, 0", "    s_mov_b64 exec, -1"]
    out += ["L_hend:", "    s_endpgm"]
    return lines[:site] + d + out


def line_sizes(lines):
    import subprocess, re, tempfile
    flat = []
    for x in lines: flat += x.split("\n")
    isins = [bool(x.strip()) and not x.strip().endswith(':') and not x.strip().startswith(('.', ';')) for x in flat]
    src = ['.amdgcn_target "amdgcn-amd-amdhsa--gfx950"', '.text']
    for i, x in enumerate(flat):
        if isins[i]: src += [f"Z{i}a:", x, f"Z{i}b:"]
        else: src.append(x)
    d = tempfile.mkdtemp()
    open(d + "/s.s", "w").write("\n".join(src) + "\n")
    subprocess.run(["clang", "-x", "assembler", "-target", "amdgcn-amd-amdhsa", "-mcpu=gfx950", "-c", d + "/s.s", "-o", d + "/s.o"], check=True)
    o = subprocess.run(["llvm-objdump", "-t", d + "/s.o"], capture_output=True, text=True).stdout
    ad = {}
    for l in o.splitlines():
        m = re.match(r"([0-9a-f]{16}) .*\.text\s+[0-9a-f]+ (Z\d+[ab])$", l)
        if m: ad[m.group(2)] = int(m.group(1), 16)
    return flat, [ad[f"Z{i}b"] - ad[f"Z{i}a"] if isins[i] else None for i in range(len(flat))]


WIDE = ('v_mov_b32', 'v_add_u32', 'v_and_b32', 'v_lshlrev_b32', 'v_lshrrev_b32', 'v_xor_b32', 'v_or_b32', 'v_add_f32', 'v_mul_f32',
        'v_exp_f32', 'v_rcp_f32', 'v_sub_u32', 'v_subrev_u32', 'v_mul_u32_u24', 'v_min_u32', 'v_max_u32', 'v_sub_f32', 'v_max_f32', 'v_rsq_f32')


def align8(lines, minrun):
    flat, sz = line_sizes(lines)
    out = []; pos = 0; prev = None; n = len(flat); fixed = [0, 0]
    for i, x in enumerate(flat):
        if sz[i] is None:
            t = x.strip()
            if t.startswith('.p2align'): pos = 0; prev = None
            out.append(x)
            continue
        if sz[i] == 8 and pos & 4:
            run = 0; j = i
            while j < n and (sz[j] == 8 or (sz[j] is None and not flat[j].strip().startswith('.p2align'))):
                if 'v_mfma' in flat[j]: break
                run += sz[j] == 8; j += 1
            if run >= minrun:
                op = out[prev].split()[0] if prev is not None else ''
                if op in WIDE and 'dpp' not in out[prev] and 'sdwa' not in out[prev]:
                    out[prev] = out[prev].replace(op, op + '_e64', 1); fixed[0] += 1
                else:
                    out.append("    s_nop 0"); fixed[1] += 1
                pos += 4
        prev = len(out) if sz[i] == 4 else None
        out.append(x)
        pos += sz[i]
    print("align8: widened %d, nops %d" % tuple(fixed), file=sys.stderr)
    return out


def main():
    a = Asm()
    ks = []
    FLK = os.environ.get('FLK', 'x')
    NS2 = int(os.environ.get('NS2', '5'))
    FUSE = 'nofuse' not in EXP
    SPLIT = 'split' in EXP
    L2PF = int(os.environ.get('L2PF', '0'))
    W1HI = int(os.environ.get('W1HI', '10'))
    W2HI = int(os.environ.get('W2HI', '-1'))
    SKLO = int(os.environ.get('SKLO', '23'))
    F1RA = int(os.environ.get('F1RA', '8'))
    QA = 'noqa' not in EXP
    W2T = QA and 'w2t' in EXP
    if QA:
        sys.path.insert(0, os.path.dirname(os.path.abspath(__file__)))
        import qa
        WOHI = int(os.environ.get('WOHI', '3'))
        ks.append(qa.gen_qa(sys.modules[__name__], a, "qa_kernel", wpf=[("wo", D*D*2)]))
    elif FUSE:
        ks.append(gen_gemm(a, "qkv_kernel", 3 * D, D, 192, 0, "wqkv", "plain", "ws", WS_QKV, NSTAGE=4, RA=8, RBN=4,
                           ln='single', a_arg='x',
                           wpf=[("w1", D*F*2, W1HI), ("wo", D*D*2, W1HI-7)]))
    else:
        ks.append(gen_ln(a, "ln1_kernel", "x", 0, WS_Y1, False, pf=[("wqkv", D*3*D*2), ("wo", D*D*2)]))
        ks.append(gen_gemm(a, "qkv_kernel", 3 * D, D, 192, WS_Y1, "wqkv", "plain", "ws", WS_QKV, NSTAGE=4, RA=8, RBN=4))
    if not QA: ks.append(gen_attn(a, "attn_kernel", pf=[("w1", D*F*2), ("w2", F*D*2), ("wo", D*D*2)] if FUSE else [("w1", D*F*2), ("w2", F*D*2)], colsum=FUSE))
    ks.append(gen_gemm(a, "oproj_kernel", D, D, 64, WS_O, "wo", "plain", "ws", WS_H, res_arg="x", NSTAGE=NS2, RA=2 if RM else 4, RBN=16 if RM else 8, flags='o' in FLK, stats_out=FUSE, spf=eval(os.environ.get('SPFO', 'None')),
                       atile=OT, lda=D*2*TX if OT else None, otile=OT, ldo=D*2*TX if OT else None, c3=WS_WOC if C3 and (not FZ or 'oc3' in EXP) else None, sp2=eval(os.environ.get('SP2O', 'None')), sp3=eval(os.environ.get('SP3O', 'None')), alay='o' if NL else None, fz=dict(entry="P_oproj", ph=1, next="P_ffn1") if FZ else None))
    if FUSE:
        ks.append(gen_gemm(a, "ffn1_kernel", F, D, 224, WS_H, "ws" if W1T else "w1", "gelu", "ws", WS_H1, bias_arg="b1", RA=2 if RM else F1RA, RBN=16 if RM else 32//F1RA,
                           w_off=WS_W1T if W1T else None, wt7=W1T, flags='1' in FLK, sp4=eval(os.environ.get('SP4', 'None')), ln='double', pre=True, ldo=LDH1, zero_flags=SPLIT, wpf=[("w2", F*D*2, W2HI)] if W2HI else None, otile=QA, w2copy=W2T and 'qw2' not in EXP, epi2='oldepi' not in EXP,
                           atile=OT, lda=D*2*TX if OT else None, c3src=("w2", F, WS_W2C) if C3 and not QC3 else None,
                           endpf=("w2", F*D*2, 0, 56) if 'endpf' in EXP else None, fz=dict(entry="P_ffn1", ph=2, next="P_ffn2") if FZ else None))
    else:
        ks.append(gen_ln(a, "ln2_kernel", "ws", WS_H, WS_Y2, True))
        ks.append(gen_gemm(a, "ffn1_kernel", F, D, 224, WS_Y2, "w1", "gelu", "ws", WS_H1, bias_arg="b1", RA=8, RBN=4))
    if E3:
        import f3
        f3.gen_f2(sys.modules[__name__], a)
    elif SK2:
        import f2
        f2.gen_f2(sys.modules[__name__], a)
    elif SPLIT:
        ks.append(gen_gemm(a, "ffn2_kernel", D, F, 128, WS_H1, "w2", "plain", "out", 0, res_arg="ws", res_off=WS_H,
                           bias_arg="b2", NSTAGE=5, lda=LDH1, RA=int(os.environ.get('SRA','8')), RBN=4, splitk=(SKLO, 56 - SKLO), atile=QA))
    else:
        ks.append(gen_gemm(a, "ffn2_kernel", D, F, 64, WS_H1, "ws" if W2T else "w2", "plain", "out", 0, res_arg="ws", res_off=WS_H,
                           atile=QA, w_off=WS_W2T if W2T else None, rtile=OT, c3=WS_W2C if C3 else None, sp2=eval(os.environ.get('SP2', 'None')), sp3=eval(os.environ.get('SP3', 'None')),
                           bias_arg="b2", NSTAGE=NS2, alay='g32' if NL else None, fz=dict(entry="P_ffn2", ph=3, next=None) if FZ else None, flags='2' in FLK, lda=LDH1, l2pf=L2PF, spf=eval(os.environ.get('SPF2', 'None')), RA=int(os.environ.get('F2RA','4')), RBN=32//int(os.environ.get('F2RA','4'))))
    hdr = []
    if FZ: ks = ks[:1]
    for k in ks:
        hdr.append(f"; @launch kernel={k['name']} grid=({k['grid']},1,1) block=({k['block']},1,1) lds={k['lds']}")
    txt = "\n".join(hdr) + "\n"
    txt += '.amdgcn_target "amdgcn-amd-amdhsa--gfx950"\n.text\n'
    if FZ: gen_sched(a)
    if 'hop' in EXP: a.lines = add_hops(a.lines)
    a.label("L_code_end")
    if int(os.environ.get('AL8', '8')): a.lines = align8(a.lines, int(os.environ.get('AL8', '8')))
    txt += "\n".join(a.lines) + "\n"
    txt += '.section .rodata,"a"\n'
    for k in ks:
        txt += ".p2align 6\n" + k["desc"]
    open(OUT, "w").write(txt)


if __name__ == "__main__":
    main()
```
